```python
import torch

def _softmax(x, axis=-1):
    return torch.softmax(x, dim=axis)
def _gelu(x):
    return torch.nn.functional.gelu(x, approximate="tanh")
def _silu(x):
    return torch.nn.functional.silu(x)
def _sigmoid(x):
    return torch.sigmoid(x)
def _layernorm(x, axis=-1, eps=1e-5):
    m = x.mean(dim=axis, keepdim=True)
    v = x.var(dim=axis, keepdim=True, unbiased=False)
    return (x - m) / torch.sqrt(v + eps)
def _scatter_add(tgt, idx, src, axis=0):
    return tgt.clone().index_add_(axis, idx, src)
def _segment_sum(src, seg, n):
    out = torch.zeros((n,) + src.shape[1:], dtype=src.dtype)
    return out.index_add_(0, seg, src)
def _pad(x, pw):
    flat = tuple(v for pair in reversed(pw) for v in pair)
    return torch.nn.functional.pad(x, flat)

kernel_name = 'gated_mix__linear_attn_block__mixer_token_mlp__prompt'

def setup_inputs():

    _w = (lambda a: (lambda t: t.to(torch.bfloat16) if t.is_floating_point() else t)(torch.as_tensor(a)))
    def _A_setup():
        B, S, D = 1, 2048, 640
        return {
            "x": _w((lambda *s: torch.randn(*s, dtype=torch.bfloat16) * 0.05)(B, S, D)),
            "wqkv": _w((lambda *s: torch.randn(*s, dtype=torch.bfloat16) * 0.4)(D, 3 * D)),
            "wo": _w((lambda *s: torch.randn(*s, dtype=torch.bfloat16) * 0.05)(D, D)),
        }
    _A_in = _A_setup()

    def _B_setup():
        B, S, D, F = 1, 2048, 640, 1536
        return {
            "x": _w((lambda *s: torch.randn(*s, dtype=torch.bfloat16) * 0.05)(B, S, D)),
            "w1": _w((lambda *s: torch.randn(*s, dtype=torch.bfloat16) * 0.4)(S, F) * (S ** -0.5)),
            "b1": _w((lambda *s: torch.randn(*s, dtype=torch.bfloat16) * 3.2)(F) * 0.02),
            "w2": _w((lambda *s: torch.randn(*s, dtype=torch.bfloat16) * 0.05)(F, S) * (F ** -0.5)),
            "b2": _w((lambda *s: torch.randn(*s, dtype=torch.bfloat16) * 0.1)(S) * 0.02),
        }
    _B_in = _B_setup()

    return {
        "A_x": _A_in["x"],
        "A_wqkv": _A_in["wqkv"],
        "A_wo": _A_in["wo"],
        "B_x": _B_in["x"],
        "B_w1": _B_in["w1"],
        "B_b1": _B_in["b1"],
        "B_w2": _B_in["w2"],
        "B_b2": _B_in["b2"],
        "gate_w": _w((lambda *s: torch.randn(*s, dtype=torch.bfloat16) * 0.05)(640) * 16.0),
    }

def reference(A_x, A_wqkv, A_wo, B_x, B_w1, B_b1, B_w2, B_b2, gate_w):
    def _A_ref(x, wqkv, wo):
        B, S, D = x.shape
        H = 32; Dh = D // H
        qkv = (lambda x, *d: x.permute(*d))((x @ wqkv).reshape(B, S, 3, H, Dh), 2, 0, 3, 1, 4)
        q, k, v = qkv[0], qkv[1], qkv[2]
        phi = lambda t: torch.where(t > 0, t + 1, torch.exp(t)) + 1e-6
        pq, pk = phi(q), phi(k)
        kv = torch.einsum("bhsd,bhse->bhde", pk, v)
        z = torch.einsum("bhsd->bhd", pk)
        num = torch.einsum("bhqd,bhde->bhqe", pq, kv)
        den = torch.einsum("bhqd,bhd->bhq", pq, z)[..., None] + 1e-6
        o = num / den
        return (lambda x, *d: x.permute(*d))(o, 0, 2, 1, 3).reshape(B, S, D) @ wo

    def _B_ref(x, w1, b1, w2, b2):
        B, S, D = x.shape
        h = _layernorm(x, axis=-1)
        u = torch.einsum("bsd,sf->bdf", h, w1) + b1
        u = _gelu(u)
        y = torch.einsum("bdf,fs->bds", u, w2) + b2
        return (lambda x, *d: x.permute(*d))(y, 0, 2, 1)

    x = A_x
    g = _sigmoid((x * gate_w).sum(-1, keepdims=True))
    a = _A_ref(x, A_wqkv, A_wo)
    b = _B_ref(x, B_w1, B_b1, B_w2, B_b2)
    return g * a + (1 - g) * b
```

```python
import re

class Asm:
    def __init__(self):
        self.lines = []
    def __call__(self, s):
        for l in s.strip("\n").split("\n"):
            self.lines.append(l.strip())
    def label(self, n):
        self.lines.append(n + ":")
    def text(self):
        out = []
        for l in self.lines:
            if l.endswith(":") or l.startswith(".") or l.startswith(";"):
                out.append(l)
            else:
                out.append("    " + l)
        return "\n".join(out) + "\n"

def vr(b, n=1):
    return f"v{b}" if n == 1 else f"v[{b}:{b+n-1}]"
def ar(b, n=1):
    return f"a{b}" if n == 1 else f"a[{b}:{b+n-1}]"
def sr(b, n=1):
    return f"s{b}" if n == 1 else f"s[{b}:{b+n-1}]"

REG = re.compile(r"(?<![\w.])([vas])(?:(\d+)|\[(\d+):(\d+)\])(?![\w])")
def regs(tok):
    out = set()
    for m in REG.finditer(tok):
        k = m.group(1)
        if m.group(2) is not None: out.add((k, int(m.group(2))))
        else: out.update((k, i) for i in range(int(m.group(3)), int(m.group(4)) + 1))
    if re.search(r"\bvcc\b", tok): out.update({("s", "vcc")})
    if re.search(r"\bexec\b", tok): out.update({("s", "exec")})
    if re.search(r"\bm0\b", tok): out.update({("s", "m0")})
    return out

TRANS = ("v_exp_f32", "v_log_f32", "v_rcp_f32", "v_rsq_f32", "v_sqrt_f32", "v_sin_f32", "v_cos_f32", "v_rcp_iflag")
class Ins:
    def __init__(self, text):
        self.text = text
        t = text.split(";")[0].strip()
        parts = t.split(None, 1)
        self.op = parts[0]
        ops = [o.strip() for o in parts[1].split(",")] if len(parts) > 1 else []
        self.ops = ops
        op = self.op
        self.ws = 1
        self.dst = set(); self.src = set()
        self.mfma = op.startswith("v_mfma")
        self.valu = op.startswith("v_") and not self.mfma
        self.salu = op.startswith("s_")
        self.vmem = op.startswith("buffer_") or op.startswith("global_")
        self.ds = op.startswith("ds_")
        self.trans = any(op.startswith(x) for x in TRANS)
        self.dpp = "_dpp" in op or "quad_perm" in t or "row_" in t
        self.dlop = op.startswith("v_dot")
        self.srcC = set(); self.srcAB = set()
        if op == "s_nop":
            self.ws = int(ops[0]) + 1
        if self.mfma:
            self.dst = regs(ops[0]); self.srcAB = regs(ops[1]) | regs(ops[2]); self.srcC = regs(ops[3]); self.src = self.srcAB | self.srcC
            self.passes = 4 if "16x16" in op else 8
        elif self.valu:
            if op.startswith("v_cmp"):
                self.dst = regs(ops[0]); self.src = set().union(*[regs(o) for o in ops[1:]])
                if op.startswith("v_cmpx"): self.dst |= {("s", "exec")}
            elif op.startswith("v_permlane") and "swap" in op:
                self.dst = regs(ops[0]) | regs(ops[1]); self.src = set(self.dst)
            else:
                self.dst = regs(ops[0]); rest = ops[1:]
                if "_co_" in op or op.startswith("v_div_scale") or op.startswith("v_mad_u64"):
                    self.dst |= regs(ops[1]); rest = ops[2:]
                self.src = set().union(*[regs(o) for o in rest]) if rest else set()
                if op.startswith("v_fmac") or op.startswith("v_dot2c") or op.startswith("v_pk_fmac") or "writelane" in op or self.dpp: self.src |= regs(ops[0])
                if op.startswith("v_cndmask") and len(ops) == 3: self.src |= {("s", "vcc")}
        elif self.vmem:
            allr = [regs(o) for o in ops]
            if "store" in op or "atomic" in op:
                self.src = set().union(*allr)
                self.storedata = regs(ops[0]) if op.startswith("buffer_") else regs(ops[1])
                self.wide = ("x3" in op or "x4" in op)
            elif " lds" in t or "load_lds" in op:
                self.src = set().union(*allr) | {("s", "m0")}
            elif op in ("buffer_inv", "buffer_wbl2"):
                pass
            else:
                self.dst = allr[0]; self.src = set().union(*allr[1:])
        elif self.ds:
            allr = [regs(o) for o in ops]
            if "write" in op: self.src = set().union(*allr)
            else: self.dst = allr[0]; self.src = set().union(*allr[1:])
        elif self.salu:
            if op.startswith("s_cmp") or op.startswith("s_cbranch") or op.startswith("s_branch") or op in ("s_waitcnt", "s_barrier", "s_nop", "s_endpgm", "s_sleep", "s_setprio"):
                self.src = set().union(*[regs(o) for o in ops]) if ops else set()
            else:
                self.dst = regs(ops[0]); self.src = set().union(*[regs(o) for o in ops[1:]]) if len(ops) > 1 else set()
                if "saveexec" in op: self.dst |= {("s", "exec")}

def need(p, c):
    n = 0
    vd = {r for r in p.dst if r[0] in "va"}
    sd = {r for r in p.dst if r[0] == "s"}
    if p.valu and not p.dlop:
        if c.mfma and vd & c.src: n = max(n, 2)
    if p.valu:
        if c.valu and c.dpp and vd & c.src: n = max(n, 2)
        if c.valu and ("readlane" in c.op or "readfirstlane" in c.op) and vd & c.src: n = max(n, 1)
        if c.valu and c.op.startswith("v_permlane") and vd & c.src: n = max(n, 2)
        if c.vmem and sd & c.src: n = max(n, 5)
        if c.valu and (sd - {("s", "exec")}) & c.src: n = max(n, 2)
        if ("s", "exec") in sd:
            if c.valu and c.dpp: n = max(n, 5)
            if c.mfma: n = max(n, 4)
            if c.valu and ("lane" in c.op): n = max(n, 4)
        if p.trans and c.valu and not c.trans and vd & c.src: n = max(n, 1)
        if p.trans and (c.mfma) and vd & c.src: n = max(n, 2)
    if p.dlop:
        if (c.valu or c.mfma or c.vmem or c.ds) and vd & (c.src | c.dst):
            if c.op == p.op and not (vd & (regs(c.ops[1]) | regs(c.ops[2]))): pass
            else: n = max(n, 3)
    if p.mfma:
        P = p.passes
        if c.mfma:
            if vd & c.srcAB: n = max(n, {4: 8, 8: 12}[P])
            if vd & c.srcC:
                if not (vd == c.srcC and p.passes == c.passes): n = max(n, {4: 6, 8: 10}[P])
        elif c.valu or c.vmem or c.ds:
            if vd & (c.src | c.dst): n = max(n, {4: 8, 8: 12}[P])
        if c.valu and p.srcC & c.dst: n = max(n, {4: 3, 8: 7}[P])
    if p.salu and ("s", "m0") in p.dst and ("s", "m0") in c.src and (c.vmem or c.ds): n = max(n, 1)
    if p.vmem and getattr(p, "wide", False) and hasattr(p, "storedata"):
        if p.storedata & c.dst: n = max(n, 2 if c.valu else 1)
    return n

def check(lines, verbose=True):
    ins = []; labels = {}
    for l in lines:
        t = l.split(";")[0].strip()
        if not t or t.startswith("."): continue
        if t.endswith(":"):
            labels[t[:-1]] = len(ins); continue
        ins.append(Ins(t))
    n = len(ins)
    preds = [[] for _ in range(n + 1)]
    for i, x in enumerate(ins):
        if x.op in ("s_branch",) or x.op.startswith("s_cbranch"):
            tgt = labels.get(x.ops[0])
            if tgt is not None: preds[tgt].append(i)
        if x.op not in ("s_branch", "s_endpgm", "s_setpc_b64"):
            preds[i + 1].append(i)
    bad = 0
    for i, c in enumerate(ins):
        stack = [(p, 0) for p in preds[i]]
        seen = {}
        while stack:
            j, d = stack.pop()
            if j in seen and seen[j] <= d: continue
            seen[j] = d
            p = ins[j]
            k = need(p, c)
            if k > d:
                bad += 1
                if verbose: print(f"HAZARD need {k} have {d}: [{j}] {p.text}  ->  [{i}] {c.text}")
            d2 = d + p.ws
            if d2 < 20:
                for q in preds[j]: stack.append((q, d2))
    return bad
```

```python
import sys
from asmlib import Asm, vr, ar, sr, check

NAME = "gated_mix__linear_attn_block__mixer_token_mlp__prompt"
WS_H   = 0x000000
WS_U   = 0x280000
WS_PQ  = 0x460000
WS_M   = 0x6E0000
WS_KVP = 0x7A8000
WS_ZP  = 0x968000
WS_G   = 0x972000
WS_FLAG = 0x974000
WS_SIZE = 0x978000
sX, sW, sWS, sW1, sW2, sOUT, sWO, sB1, sB2, sGW = 28, 32, 36, 40, 44, 48, 52, 56, 60, 64
sWAVE = 68
sA, sBp = 69, 70
sG1D, sG1F, sFS, sFD = 71, 72, 73, 74
sCNT, sO1, sO2, sRD, sWR, sM0 = 75, 76, 77, 78, 79, 80
sT = 81
sEX = 90
sMK = 92
sU, sNR = 94, 95
sWR_, sWC_ = 96, 97
LOG2E = 0x3FB8AA3B
EPS6 = 0x358637BD
LDS_RING = 0
LDS_RED = 65536
LDS_BYTES = 163840

def srd(A, base, ptr, size):
    A(f"s_mov_b32 s{base}, s{ptr}")
    A(f"s_mov_b32 s{base+1}, s{ptr+1}")
    A(f"s_mov_b32 s{base+2}, {size:#x}")
    A(f"s_mov_b32 s{base+3}, 0x20000")

def prologue(A, pfx):
    A(f"s_cmp_ge_u32 s2, 256")
    A(f"s_cbranch_scc1 {pfx}_end")
    A("s_load_dwordx16 s[4:19], s[0:1], 0")
    A("s_load_dwordx8 s[20:27], s[0:1], 64")
    A("v_lshrrev_b32 v2, 6, v0")
    A("v_and_b32 v1, 63, v0")
    A(f"v_readfirstlane_b32 s{sWAVE}, v2")
    A("s_and_b32 s81, s2, 7")
    A("s_lshr_b32 s82, s2, 3")
    A("s_lshr_b32 s83, s81, 1")
    A("s_and_b32 s84, s81, 1")
    A("s_lshr_b32 s85, s82, 2")
    A("s_lshl_b32 s86, s83, 3")
    A(f"s_add_u32 s{sFS}, s85, s86")
    A("s_and_b32 s85, s82, 3")
    A("s_lshl_b32 s86, s84, 2")
    A(f"s_add_u32 s{sFD}, s85, s86")
    A("s_sub_u32 s85, s82, 8")
    A("s_cmp_lt_u32 s82, 16")
    A("s_cselect_b32 s85, s82, s85")
    A("s_and_b32 s87, s85, 3")
    A(f"s_add_u32 s{sG1D}, s87, s86")
    A("s_lshr_b32 s85, s85, 2")
    A("s_mul_i32 s87, s83, 6")
    A(f"s_add_u32 s{sG1F}, s85, s87")

def all_srds(A, which):
    tab = {"X": (sX, 4, 2048*1280), "W": (sW, 6, 640*3840), "WO": (sWO, 8, 640*1280), "W1": (sW1, 12, 2048*3072), "B1": (sB1, 14, 3072),
           "W2": (sW2, 16, 1536*4096), "B2": (sB2, 18, 4096), "GW": (sGW, 20, 1280), "OUT": (sOUT, 22, 2048*1280), "WS": (sWS, 26, WS_SIZE)}
    for w in which:
        srd(A, *tab[w])

vXO, vWO_, vXB, vCUR = 16, 20, 25, 29
ACC = 48
FA_, FB_ = 112, 148
STG = 36864

def qkv_setup(A, isq):
    A(f"s_lshr_b32 s{sWR_}, s{sWAVE}, 1")
    A(f"s_and_b32 s{sWC_}, s{sWAVE}, 1")
    A("v_lshrrev_b32 v2, 3, v1")
    A(f"s_lshl_b32 s85, s{sWAVE}, 5")
    A("v_add_u32 v2, s85, v2")
    A("v_mul_u32_u24 v2, 1280, v2")
    A("v_lshrrev_b32 v3, 4, v1")
    A("v_and_b32 v4, 7, v1")
    A("v_xor_b32 v4, v4, v3")
    A("v_lshl_add_u32 v5, v4, 4, v2")
    A("v_xor_b32 v4, 4, v4")
    A("v_lshl_add_u32 v6, v4, 4, v2")
    A(f"v_mov_b32 v{vXO}, v5")
    A(f"v_add_u32 v{vXO+1}, {8*1280-1024}, v6")
    A(f"v_add_u32 v{vXO+2}, {16*1280-2048}, v5")
    A(f"v_add_u32 v{vXO+3}, {24*1280-3072}, v6")
    A(f"s_mul_i32 s{sO1}, s{sA}, {128*1280}")
    if isq:
        A(f"s_mul_i32 s86, s{sBp}, 320")
    else:
        A(f"s_mul_i32 s86, s{sBp}, 160")
        A("s_add_u32 s86, s86, 1280")
    A(f"s_mul_i32 s85, s{sWAVE}, {16*3840}")
    A("s_add_u32 s85, s85, s86")
    for n in range(5):
        A(f"v_add_u32 v2, {64*n}, v1")
        A("v_mul_u32_u24 v3, 3277, v2")
        A("v_lshrrev_b32 v3, 16, v3")
        A("v_mul_u32_u24 v4, 20, v3")
        A("v_sub_u32 v4, v2, v4")
        A("v_lshrrev_b32 v5, 2, v3")
        A("v_and_b32 v5, 2, v5")
        A("v_xor_b32 v4, v4, v5")
        A("v_mul_u32_u24 v3, 3840, v3")
        if isq:
            A("v_lshl_add_u32 v3, v4, 4, v3")
        else:
            A("v_cmp_le_u32 vcc, 10, v4")
            A("v_subrev_u32 v5, 5, v4")
            A("s_nop 0")
            A("v_cndmask_b32 v5, v4, v5, vcc")
            A("v_subrev_u32 v6, 10, v4")
            A("v_cndmask_b32 v6, v4, v6, vcc")
            A("v_cmp_le_u32 vcc, 5, v6")
            A("v_lshl_add_u32 v3, v5, 4, v3")
            A("v_add_u32 v5, 1200, v3")
            A("v_cndmask_b32 v3, v3, v5, vcc")
        comp = 1024*n if n < 4 else 0
        A(f"s_sub_u32 s87, s85, {comp}" if comp else "s_mov_b32 s87, s85")
        A(f"v_add_u32 v{vWO_+n}, s87, v3")
    A(f"s_mov_b32 s{sO2}, 0")

def qkv_dma(A, emit):
    L = []
    L.append([f"s_add_u32 m0, s{sWR}, s{sM0}"])
    for n in range(4):
        L.append([f"buffer_load_dwordx4 v{vXO+n}, s[{sX}:{sX+3}], s{sO1} offen offset:{1024*n} lds"])
    L.append([f"s_add_u32 m0, s{sWR}, s{sM0+18}"])
    for n in range(4):
        L.append([f"buffer_load_dwordx4 v{vWO_+n}, s[{sW}:{sW+3}], s{sO2} offen offset:{1024*n} lds"])
    L.append([f"s_add_u32 m0, m0, 4096", "s_nop 0", f"buffer_load_dwordx4 v{vWO_+4}, s[{sW}:{sW+3}], s{sO2} offen lds"])
    return L

def qkv_adv(A):
    A(f"s_add_u32 s{sO1}, s{sO1}, 128")
    A(f"s_add_u32 s{sO2}, s{sO2}, {64*3840}")
    A(f"s_add_u32 s{sWR}, s{sWR}, {STG}")
    A(f"s_cmp_ge_u32 s{sWR}, {4*STG}")
    A(f"s_cselect_b32 s85, {4*STG}, 0")
    A(f"s_sub_u32 s{sWR}, s{sWR}, s85")

def qkv_reads(kk, fs):
    L = []
    def wr(t):
        a = vCUR + 2 + (t & 1)
        return [f"ds_read_b64_tr_b16 {ar(fs+16+4*t+2*j,2)}, v{a} offset:{kk*10240 + j*1280 + t*32}" for j in range(2)]
    L += wr(0)
    for st in range(4):
        L.append(f"ds_read_b128 {ar(fs+4*st,4)}, v{vCUR+kk} offset:{st*2048}")
    for t in range(1, 5):
        L += wr(t)
    return L

def qkv_mfmas(fs, isq):
    L = []
    for t in range(5):
        for st in range(4):
            x = ar(fs + 4*st, 4); w = ar(fs + 16 + 4*t, 4); c = vr(ACC + (st*5+t)*4, 4)
            L.append(f"v_mfma_f32_16x16x32_bf16 {c}, {w}, {x}, {c}" if isq else f"v_mfma_f32_16x16x32_bf16 {c}, {x}, {w}, {c}")
    return L

def interleave(A, mf, others, start=0, per=2):
    o = list(others)
    for i, m in enumerate(mf):
        A(m)
        if i >= start:
            for _ in range(per):
                if o:
                    g = o.pop(0)
                    for x in (g if isinstance(g, list) else [g]): A(x)
    for g in o:
        for x in (g if isinstance(g, list) else [g]): A(x)

def qkv_gemm(A, pfx, isq):
    A(f"s_lshl_b32 s{sM0}, s{sWAVE}, 12")
    A(f"s_mul_i32 s{sM0+18}, s{sWAVE}, 5120")
    A(f"s_add_u32 s{sM0+18}, s{sM0+18}, 16384")
    A(f"s_mov_b32 s{sWR}, {2*STG}")
    for s in range(3):
        for g in qkv_dma(A, None):
            for x in g: A(x)
            if "m0" in g[0] and len(g) == 1: A("s_nop 0")
        qkv_adv(A)
    A("v_and_b32 v2, 15, v1")
    A("v_lshrrev_b32 v3, 4, v1")
    A("v_lshrrev_b32 v4, 1, v2")
    A("v_xor_b32 v4, v4, v3")
    A("v_lshlrev_b32 v4, 4, v4")
    A("v_lshl_add_u32 v4, v2, 7, v4")
    A(f"s_lshl_b32 s85, s{sWR_}, 13")
    A(f"v_add_u32 v{vXB}, s85, v4")
    A(f"v_xor_b32 v{vXB+1}, 64, v{vXB}")
    A("v_lshrrev_b32 v4, 2, v2")
    A("v_lshl_add_u32 v4, v3, 3, v4")
    A("v_mul_u32_u24 v4, 320, v4")
    A("v_and_b32 v5, 3, v1")
    A("v_lshl_add_u32 v4, v5, 3, v4")
    A(f"s_mul_i32 s85, s{sWC_}, 160")
    A("s_add_u32 s85, s85, 16384")
    A("v_add_u32 v4, s85, v4")
    A("v_and_b32 v5, 1, v3")
    A("v_lshlrev_b32 v5, 5, v5")
    A(f"s_cmp_eq_u32 s{sWC_}, 0")
    A("s_cselect_b32 s85, 1, -1")
    A("v_mul_lo_u32 v5, v5, s85")
    A(f"v_add_u32 v{vXB+2}, v4, v5")
    A(f"v_sub_u32 v{vXB+3}, v4, v5")
    for i in range(80):
        A(f"v_mov_b32 v{ACC+i}, 0")
    A(f"s_mov_b32 s{sRD}, {2*STG}")
    A(f"s_mov_b32 s{sCNT}, 0")
    def addr_upd():
        return [f"v_add_u32 v{vCUR+i}, s{sRD}, v{vXB+i}" for i in range(4)]
    def oob():
        A(f"s_cmp_ge_u32 s{sCNT}, 7")
        A(f"s_cselect_b32 s{sO1}, 0x40000000, s{sO1}")
        A(f"s_cselect_b32 s{sO2}, 0x40000000, s{sO2}")
    for x in addr_upd(): A(x)
    A("s_waitcnt vmcnt(18)")
    A("s_barrier")
    for x in qkv_reads(0, FA_): A(x)
    for g in qkv_dma(A, None):
        for x in g: A(x)
        if "m0" in g[0] and len(g) == 1: A("s_nop 0")
    A(f"s_branch {pfx}_mid")
    A(".p2align 3")
    A.label(f"{pfx}_loop")
    for x in addr_upd(): A(x)
    oob()
    A("s_waitcnt vmcnt(18) lgkmcnt(0)")
    A("s_barrier")
    rd = qkv_reads(0, FA_)
    dm = qkv_dma(A, None)
    others = []
    mf = qkv_mfmas(FB_, isq)
    seq = []
    i = 0
    for m in mf[:7]:
        seq.append(m); seq += rd[i:i+2]; i += 2
    dmf = []
    for g in dm: dmf.append(g)
    k = 0
    for m in mf[7:]:
        seq.append(m)
        if k < len(dmf):
            seq += dmf[k]; k += 1
    assert k == len(dmf)
    for x in seq: A(x)
    A.label(f"{pfx}_mid")
    qkv_adv(A)
    A(f"s_add_u32 s{sRD}, s{sRD}, {STG}")
    A(f"s_cmp_ge_u32 s{sRD}, {4*STG}")
    A(f"s_cselect_b32 s85, {4*STG}, 0")
    A(f"s_sub_u32 s{sRD}, s{sRD}, s85")
    A("s_waitcnt lgkmcnt(0)")
    interleave(A, qkv_mfmas(FA_, isq), qkv_reads(1, FB_), per=1)
    A(f"s_add_u32 s{sCNT}, s{sCNT}, 1")
    A(f"s_cmp_lt_u32 s{sCNT}, 10")
    A(f"s_cbranch_scc1 {pfx}_loop")
    A("s_waitcnt vmcnt(0) lgkmcnt(0)")
    A("s_barrier")
    for m in qkv_mfmas(FB_, isq): A(m)
    A("s_nop 7")

def phi(A, r, t, dst=None):
    dst = r if dst is None else dst
    A(f"v_mul_f32 v{t}, {LOG2E:#x}, v{r}")
    A(f"v_exp_f32 v{t}, v{t} clamp")
    A(f"v_max_f32 v{dst}, {EPS6:#x}, v{r}")
    A(f"v_add_f32 v{dst}, v{dst}, v{t}")

def kv_epilogue(A, fused):
    PB, KA, ONE = 128, 168, 208
    TMP = 212
    A("v_and_b32 v2, 15, v1")
    A(f"v_cmp_gt_u32 s[{sMK}:{sMK+1}], 8, v2")
    for i in range(4): A(f"v_mov_b32 v{ONE+i}, 0x3f803f80")
    for st in range(4):
        for t in range(3):
            b = ACC + (st*5+t)*4
            for i in range(4):
                A(f"v_mul_f32 v{TMP+i}, {LOG2E:#x}, v{b+i}")
            for i in range(4):
                A(f"v_exp_f32 v{TMP+i}, v{TMP+i} clamp")
            if t < 2:
                for i in range(4): A(f"v_max_f32 v{b+i}, {EPS6:#x}, v{b+i}")
                for i in range(4): A(f"v_add_f32 v{b+i}, v{b+i}, v{TMP+i}")
            else:
                for i in range(4): A(f"v_max_f32 v{TMP+4+i}, {EPS6:#x}, v{b+i}")
                for i in range(4): A(f"v_add_f32 v{TMP+i}, v{TMP+4+i}, v{TMP+i}")
                for i in range(4): A(f"v_cndmask_b32 v{b+i}, v{b+i}, v{TMP+i}, s[{sMK}:{sMK+1}]")
        for t in range(5):
            b = ACC + (st*5+t)*4
            d = PB + (t*2 + st//2)*4 + (st & 1)*2
            A(f"v_cvt_pk_bf16_f32 v{d}, v{b}, v{b+1}")
            A(f"v_cvt_pk_bf16_f32 v{d+1}, v{b+2}, v{b+3}")
    A("s_nop 1")
    pairs = [(2,0),(3,0),(2,1),(3,1),(4,1),(3,2),(4,2)]
    for sp in range(2):
        for i, (te, tc) in enumerate(pairs):
            c = vr(KA+4*i, 4)
            A(f"v_mfma_f32_16x16x32_bf16 {c}, {vr(PB+(te*2+sp)*4,4)}, {vr(PB+(tc*2+sp)*4,4)}, {c if sp else 0}")
        for tc in range(3):
            c = vr(KA+4*(7+tc), 4)
            A(f"v_mfma_f32_16x16x32_bf16 {c}, {vr(ONE,4)}, {vr(PB+(tc*2+sp)*4,4)}, {c if sp else 0}")
    A(f"s_mul_i32 s85, s{sWC_}, 10240")
    A(f"s_add_u32 s85, s85, {LDS_RED}")
    A("v_lshlrev_b32 v2, 4, v1")
    A("v_add_u32 v3, s85, v2")
    A(f"s_cmp_eq_u32 s{sWR_}, 0")
    A("s_cbranch_scc1 kv_e1")
    A("s_nop 4")
    for i in range(10):
        A(f"ds_write_b128 v3, {vr(KA+4*i,4)} offset:{1024*i}")
    A("s_waitcnt lgkmcnt(0)")
    A.label("kv_e1")
    A("s_barrier")
    A(f"s_cmp_lg_u32 s{sWR_}, 0")
    A("s_cbranch_scc1 kv_e2")
    for i in range(10):
        A(f"ds_read_b128 {vr(PB+4*i,4)}, v3 offset:{1024*i}")
    A(f"s_lshl_b32 s85, s{sBp}, 1")
    A(f"s_add_u32 s85, s85, s{sWC_}")
    A("s_lshl_b32 s86, s85, 4")
    A(f"s_add_u32 s86, s86, s{sA}")
    A("s_mul_i32 s86, s86, 7168")
    A(f"s_add_u32 s86, s86, {WS_KVP:#x}")
    A("s_add_u32 s87, s86, 4096")
    A("s_mul_i32 s85, s85, 160")
    A(f"s_mul_i32 s88, s{sA}, 2560")
    A("s_add_u32 s85, s85, s88")
    A(f"s_add_u32 s85, s85, {WS_ZP:#x}")
    A("v_lshlrev_b32 v4, 2, v1")
    for i in range(10):
        A(f"s_waitcnt lgkmcnt({9-i})")
        for k in range(4 if i < 7 else 1):
            A(f"v_add_f32 v{KA+4*i+k}, v{KA+4*i+k}, v{PB+4*i+k}")
        if i < 7:
            A(f"buffer_store_dwordx4 {vr(KA+4*i,4)}, v2, s[{sWS}:{sWS+3}], s{86 if i < 4 else 87} offen offset:{1024*(i&3)} sc1")
    A("s_mov_b64 exec, 0xffff")
    A(f"buffer_store_dword v{KA+28}, v4, s[{sWS}:{sWS+3}], s85 offen sc1")
    A(f"buffer_store_dword v{KA+32}, v4, s[{sWS}:{sWS+3}], s85 offen offset:64 sc1")
    A("s_mov_b64 exec, 0xff")
    A(f"buffer_store_dword v{KA+36}, v4, s[{sWS}:{sWS+3}], s85 offen offset:128 sc1")
    A("s_mov_b64 exec, -1")
    A.label("kv_e2")

def q_epilogue(A, fused):
    TMP = 244
    for b in range(ACC, ACC+80, 4):
        for i in range(4): A(f"v_mul_f32 v{TMP+i}, {LOG2E:#x}, v{b+i}")
        for i in range(4): A(f"v_exp_f32 v{TMP+i}, v{TMP+i} clamp")
        for i in range(4): A(f"v_max_f32 v{b+i}, {EPS6:#x}, v{b+i}")
        for i in range(4): A(f"v_add_f32 v{b+i}, v{b+i}, v{TMP+i}")
    A(f"s_mul_i32 s85, s{sU}, {40*1280}")
    A(f"s_mul_i32 s86, s{sNR}, 320")
    A("s_add_u32 s85, s85, s86")
    A(f"s_lshl_b32 s86, s{sWAVE}, 8")
    A(f"s_lshl_b32 m0, s{sWAVE}, 12")
    for n in range(4):
        A(f"v_add_u32 v2, {64*n}, v1")
        A("v_add_u32 v2, s86, v2")
        A("v_mul_u32_u24 v3, 3277, v2")
        A("v_lshrrev_b32 v3, 16, v3")
        A("v_mul_u32_u24 v4, 20, v3")
        A("v_sub_u32 v4, v2, v4")
        A("v_mul_u32_u24 v3, 1280, v3")
        A("v_lshl_add_u32 v3, v4, 4, v3")
        if n: A(f"v_subrev_u32 v3, {1024*n}, v3")
        A(f"buffer_load_dwordx4 v3, s[{sWO}:{sWO+3}], s85 offen offset:{1024*n} lds")
    A(";SYNC_Q")
    A("v_lshlrev_b32 v2, 4, v1")
    A(f"s_add_u32 s85, s{sWAVE}, 4")
    A("s_min_u32 s85, s85, 6")
    A(f"s_mul_i32 s86, s{sU}, {16*7168}")
    A(f"s_add_u32 s86, s86, {WS_KVP:#x}")
    A(f"s_lshl_b32 s87, s{sWAVE}, 10")
    A("s_add_u32 s87, s87, s86")
    A("s_lshl_b32 s88, s85, 10")
    A("s_add_u32 s88, s88, s86")
    for rb in range(16):
        A(f"buffer_load_dwordx4 {vr(128+4*rb,4)}, v2, s[{sWS}:{sWS+3}], s87 offen sc1")
        A("s_add_u32 s87, s87, 7168")
    for rb in range(16):
        A(f"buffer_load_dwordx4 {vr(192+4*rb,4)}, v2, s[{sWS}:{sWS+3}], s88 offen sc1")
        A("s_add_u32 s88, s88, 7168")
    A("v_and_b32 v3, 15, v1")
    A("v_lshrrev_b32 v4, 4, v1")
    A("v_mul_u32_u24 v5, 2560, v3")
    A("v_lshl_add_u32 v5, v4, 4, v5")
    A(f"s_mul_i32 s86, s{sBp}, 640")
    A(f"s_mul_i32 s87, s{sWC_}, 320")
    A("s_add_u32 s86, s86, s87")
    A(f"s_add_u32 s86, s86, {WS_ZP:#x}")
    for t in range(5):
        A(f"buffer_load_dwordx4 {ar(4*t,4)}, v5, s[{sWS}:{sWS+3}], s86 offen offset:{64*t} sc1")
    A("v_lshlrev_b32 v6, 2, v3")
    A(f"s_lshl_b32 s86, s{sA}, 9")
    A(f"s_lshl_b32 s87, s{sWR_}, 8")
    A("s_add_u32 s86, s86, s87")
    A(f"s_add_u32 s86, s86, {WS_G:#x}")
    for st in range(4):
        A(f"buffer_load_dword a{20+st}, v6, s[{sWS}:{sWS+3}], s86 offen offset:{64*st} sc1")
    tcs = [0,0,1,1,1,2,2]; ecs = [0,1,0,1,2,1,2]
    tab = sum(((tcs[i] | (ecs[i] << 2)) << (4*i)) for i in range(7))
    for h, sidx in ((0, sWAVE), (1, 85)):
        A(f"s_lshl_b32 s86, s{sidx}, 2")
        A(f"s_lshr_b32 s86, {tab:#x}, s86")
        A("s_and_b32 s87, s86, 3")
        A("s_lshl_b32 s87, s87, 4")
        A("s_bfe_u32 s86, s86, 0x20002")
        A("s_lshl_b32 s86, s86, 4")
        A("v_add_u32 v7, s87, v3")
        A("v_lshl_add_u32 v8, v4, 2, s86")
        A("v_cmp_le_u32 vcc, 20, v7")
        A("v_cmp_le_u32 s[88:89], 28, v8")
        A("s_xnor_b64 vcc, vcc, s[88:89]")
        A("v_cmp_gt_u32 s[88:89], 40, v7")
        A("s_and_b64 vcc, vcc, s[88:89]")
        A("v_cmp_le_u32 s[88:89], 8, v8")
        A(f"s_and_b64 vcc, vcc, s[88:89]")
        base = 128 + 64*h
        A(f"s_waitcnt vmcnt({25 if h == 0 else 9})")
        for w in (32, 16, 8, 4):
            for i in range(w):
                A(f"v_add_f32 v{base+i}, v{base+i}, v{base+w+i}")
        for i in range(4):
            A(f"v_cndmask_b32 v{base+i}, 0, v{base+i}, vcc")
        A(f"v_cvt_pk_bf16_f32 v{base}, v{base}, v{base+1}")
        A(f"v_cvt_pk_bf16_f32 v{base+1}, v{base+2}, v{base+3}")
        A(f"s_lshl_b32 s86, s{sidx}, 9")
        A(f"s_add_u32 s86, s86, {LDS_RED}")
        A("v_lshlrev_b32 v7, 3, v1")
        A("v_add_u32 v7, s86, v7")
        A(f"ds_write_b64 v7, {vr(base,2)}")
    A("s_waitcnt lgkmcnt(0)")
    A("s_barrier")
    KV = 128
    A("v_lshlrev_b32 v7, 3, v1")
    A(f"v_add_u32 v7, {LDS_RED}, v7")
    for i in range(7):
        A(f"ds_read_b64 {vr(KV+2*i,2)}, v7 offset:{512*i}")
    A("v_lshrrev_b32 v8, 2, v3")
    A("v_lshl_add_u32 v8, v4, 2, v8")
    A("v_and_b32 v9, 7, v8")
    A("v_mul_u32_u24 v9, 320, v9")
    A("v_mul_u32_u24 v8, 320, v8")
    A("v_and_b32 v10, 3, v1")
    A("v_lshlrev_b32 v10, 3, v10")
    A(f"s_lshl_b32 s86, s{sWAVE}, 5")
    A("v_add_u32 v10, s86, v10")
    A("v_add_u32 v9, v9, v10")
    A("v_add_u32 v8, v8, v10")
    WB = 144
    for i in range(3):
        A(f"ds_read_b64_tr_b16 {vr(WB+6*i,2)}, v9 offset:{128*i}")
        A(f"ds_read_b64_tr_b16 {vr(WB+6*i+2,2)}, v8 offset:{128*i + 8*320}")
        A(f"ds_read_b64_tr_b16 {vr(WB+6*i+4,2)}, v8 offset:{128*i + 24*320}")
    A(f"s_mul_i32 s86, s{sU}, 10")
    for tc in range(3):
        d = 11 + tc
        A(f"v_add_u32 v14, s86, v4")
        if tc: A(f"v_add_u32 v14, {4*tc}, v14")
        A("v_and_b32 v15, 3, v14")
        A("v_lshrrev_b32 v14, 2, v14")
        A(f"v_lshlrev_b32 v{d}, 8, v15")
        A(f"v_lshl_add_u32 v{d}, v3, 4, v{d}")
        A("v_mul_u32_u24 v15, 205, v14")
        A("v_lshrrev_b32 v15, 10, v15")
        A(f"v_mul_u32_u24 v{TMP}, 5, v15")
        A(f"v_sub_u32 v14, v14, v{TMP}")
        A(f"v_and_b32 v{TMP}, 1, v15")
        A("v_lshrrev_b32 v15, 1, v15")
        A("v_mul_u32_u24 v15, 5, v15")
        A(f"v_mul_u32_u24 v{TMP+1}, 3, v{TMP}")
        A(f"v_lshrrev_b32 v{TMP+2}, 1, v14")
        A(f"v_add_u32 v{TMP+1}, v{TMP+1}, v{TMP+2}")
        A(f"v_and_b32 v{TMP+2}, 1, v14")
        A("v_cmp_eq_u32 vcc, 4, v14")
        A("s_nop 1")
        A(f"v_cndmask_b32 v{TMP+1}, v{TMP+1}, 2, vcc")
        A(f"v_cndmask_b32 v{TMP+2}, v{TMP+2}, v{TMP}, vcc")
        A(f"v_add_u32 v15, v15, v{TMP+1}")
        A("v_mul_u32_u24 v15, 40960, v15")
        A(f"v_add_u32 v{d}, v{d}, v15")
        A(f"v_lshl_add_u32 v{d}, v{TMP+2}, 3, v{d}")
    A(f"s_mul_i32 s86, s{sNR}, 10240")
    A(f"s_lshl_b32 s87, s{sWAVE}, 10")
    A("s_add_u32 s86, s86, s87")
    A(f"s_add_u32 s86, s86, {WS_M:#x}")
    A("s_waitcnt lgkmcnt(0)")
    MD = 164
    pairs = [(2,0),(3,0),(2,1),(3,1),(4,1),(3,2),(4,2)]
    for i in range(3):
        seen = set()
        for k, (te, tc) in enumerate(pairs):
            c = vr(MD + (i*3+tc)*4, 4)
            A(f"v_mfma_f32_16x16x16_bf16 {c}, {vr(KV+2*k,2)}, {vr(WB+6*i+2*(te-2),2)}, {c if tc in seen else 0}")
            seen.add(tc)
    A("s_nop 7")
    for i in range(3):
        if i == 2:
            A(f"s_cmp_ge_u32 s{sWAVE}, 2")
            A("s_cbranch_scc1 q_m_done")
        for tc in range(3):
            b = MD + (i*3+tc)*4
            A(f"v_cvt_pk_bf16_f32 v{b}, v{b}, v{b+1}")
            A(f"v_cvt_pk_bf16_f32 v{b+1}, v{b+2}, v{b+3}")
            if tc == 2: A("s_mov_b32 exec_hi, 0")
            A(f"buffer_store_dwordx2 {vr(b,2)}, v{11+tc}, s[{sWS}:{sWS+3}], s86 offen sc1")
            if tc == 2: A("s_mov_b32 exec_hi, -1")
        A("s_add_u32 s86, s86, 4096")
    A.label("q_m_done")
    PK, Z, ZP, AF, DEN, G = 128, 168, 188, 198, 224, 8
    A("s_waitcnt vmcnt(0)")
    for i in range(20): A(f"v_accvgpr_read_b32 v{Z+i}, a{i}")
    for i in range(4): A(f"v_accvgpr_read_b32 v{G+i}, a{20+i}")
    for i in range(40):
        A(f"v_cvt_pk_bf16_f32 v{PK+i}, v{ACC+2*i}, v{ACC+2*i+1}")
    for rot in (8, 4, 2, 1):
        for i in range(20):
            A(f"v_add_f32_dpp v{Z+i}, v{Z+i}, v{Z+i} row_ror:{rot} row_mask:0xf bank_mask:0xf")
    for i in range(10):
        A(f"v_cvt_pk_bf16_f32 v{ZP+i}, v{Z+2*i}, v{Z+2*i+1}")
    for t in range(5):
        A(f"v_lshl_add_u32 v{Z+t}, v4, 2, {16*t}" if t <= 4 else "")
        A(f"v_mul_u32_u24 v{Z+t}, 205, v{Z+t}")
        A(f"v_lshrrev_b32 v{Z+t}, 12, v{Z+t}")
        A(f"v_add_u32 v{Z+5+t}, {16*t}, v3")
        A(f"v_mul_u32_u24 v{Z+5+t}, 205, v{Z+5+t}")
        A(f"v_lshrrev_b32 v{Z+5+t}, 12, v{Z+5+t}")
    dp = [(tp, t) for tp in range(5) for t in range(5) if abs(tp - t) <= 1]
    assert len(dp) == 13
    for k, (tp, t) in enumerate(dp):
        A(f"v_cmp_eq_u32 vcc, v{Z+t}, v{Z+5+tp}")
        A("s_nop 1")
        A(f"v_cndmask_b32 v{AF+2*k}, 0, v{ZP+2*t}, vcc")
        A(f"v_cndmask_b32 v{AF+2*k+1}, 0, v{ZP+2*t+1}, vcc")
    A(f"s_lshl_b32 s85, s{sA}, 1")
    A(f"s_add_u32 s85, s85, s{sWR_}")
    A("s_mul_i32 s85, s85, 20")
    A(f"s_mul_i32 s86, s{sBp}, 5")
    A("s_add_u32 s85, s85, s86")
    A("s_lshl_b32 s85, s85, 12")
    A(f"s_add_u32 s85, s85, {WS_PQ:#x}")
    A(f"s_mul_i32 s86, s{sWC_}, {3*4096}")
    A("s_add_u32 s86, s86, s85")
    A("s_add_u32 s87, s86, 4096")
    A(f"s_lshl_b32 s88, s{sWC_}, 3")
    A("s_add_u32 s88, s88, s85")
    A("s_add_u32 s88, s88, 8192")
    OUT = Z
    for st in range(4):
        seen = set()
        for k, (tp, t) in enumerate(dp):
            c = vr(DEN + 4*tp, 4)
            A(f"v_mfma_f32_16x16x16_bf16 {c}, {vr(AF+2*k,2)}, {vr(PK+(st*5+t)*2,2)}, {c if tp in seen else 0}")
            seen.add(tp)
        A("s_nop 7")
        o = OUT + 10*(st & 1)
        for tp in range(5): A(f"v_add_f32 v{TMP+tp}, {EPS6:#x}, v{DEN+4*tp}")
        for tp in range(5): A(f"v_rcp_f32 v{TMP+tp}, v{TMP+tp}")
        A("s_nop 0")
        for tp in range(5): A(f"v_mul_f32 v{TMP+tp}, v{TMP+tp}, v{G+st}")
        for tp in range(5):
            b = ACC + (st*5+tp)*4
            for i in range(4): A(f"v_mul_f32 v{b+i}, v{b+i}, v{TMP+tp}")
            A(f"v_cvt_pk_bf16_f32 v{o+2*tp}, v{b}, v{b+1}")
            A(f"v_cvt_pk_bf16_f32 v{o+2*tp+1}, v{b+2}, v{b+3}")
        A(f"buffer_store_dwordx4 {vr(o,4)}, v2, s[{sWS}:{sWS+3}], s86 offen offset:{1024*st} sc1")
        A(f"buffer_store_dwordx4 {vr(o+4,4)}, v2, s[{sWS}:{sWS+3}], s87 offen offset:{1024*st} sc1")
        A(f"buffer_store_dwordx2 {vr(o+8,2)}, v2, s[{sWS}:{sWS+3}], s88 offen offset:{1024*st} sc1")

def ln_role(A, fused):
    X, GW, D = 48, 88, 128
    A("v_lshrrev_b32 v2, 3, v1")
    A(f"s_lshl_b32 s85, s{sWAVE}, 3")
    A("v_add_u32 v2, s85, v2")
    A("v_and_b32 v3, 7, v1")
    A("v_lshlrev_b32 v3, 4, v3")
    A("v_mul_u32_u24 v4, 1280, v2")
    A("v_add_u32 v4, v4, v3")
    A(f"s_mul_i32 s85, s{sA}, {32*1280}")
    for i in range(10):
        A(f"buffer_load_dwordx4 {vr(X+4*i,4)}, v4, s[{sX}:{sX+3}], s85 offen offset:{128*i}")
    for i in range(10):
        A(f"buffer_load_dwordx4 {vr(GW+4*i,4)}, v3, s[{sGW}:{sGW+3}], 0 offen offset:{128*i}")
    A(";LN_PREFETCH")
    A("v_mov_b32 v5, 0x3f803f80")
    for i in range(4): A(f"v_mov_b32 v{8+i}, 0")
    A("v_mul_u32_u24 v6, 1312, v2")
    A("v_add_u32 v6, v6, v3")
    A("s_waitcnt vmcnt(10)")
    for i in range(40):
        A(f"v_dot2_f32_bf16 v{8+(i&1)}, v{X+i}, v5, v{8+(i&1)}")
    A("s_waitcnt vmcnt(0)")
    for i in range(40):
        A(f"v_dot2_f32_bf16 v{10+(i&1)}, v{X+i}, v{GW+i}, v{10+(i&1)}")
    A("s_nop 2")
    A("v_add_f32 v8, v8, v9")
    A("v_add_f32 v10, v10, v11")
    def red8(r):
        for m in ("quad_perm:[1,0,3,2]", "quad_perm:[2,3,0,1]", "row_half_mirror"):
            A("s_nop 1")
            for x in r: A(f"v_add_f32_dpp v{x}, v{x}, v{x} {m} row_mask:0xf bank_mask:0xf")
    red8([8, 10])
    A(f"v_mul_f32 v8, {0xBACCCCCD:#x}, v8")
    A("v_mov_b32 v9, v8")
    A(f"v_mul_f32 v10, {LOG2E | 0x80000000:#x}, v10")
    A("v_exp_f32 v10, v10")
    for i in range(40):
        A(f"v_lshlrev_b32 v{D+2*i}, 16, v{X+i}")
        A(f"v_and_b32 v{D+2*i+1}, 0xffff0000, v{X+i}")
    A("v_add_f32 v10, 1.0, v10")
    A("v_rcp_f32 v10, v10")
    for i in range(40):
        A(f"v_pk_add_f32 {vr(D+2*i,2)}, {vr(D+2*i,2)}, v[8:9]")
    A("v_pk_mul_f32 v[12:13], v[128:129], v[128:129]")
    A("v_pk_mul_f32 v[14:15], v[130:131], v[130:131]")
    for i in range(2, 40):
        a = 12 + 2*(i & 1)
        A(f"v_pk_fma_f32 {vr(a,2)}, {vr(D+2*i,2)}, {vr(D+2*i,2)}, {vr(a,2)}")
    A("v_pk_add_f32 v[12:13], v[12:13], v[14:15]")
    A("v_lshlrev_b32 v7, 2, v2")
    A(f"s_lshl_b32 s85, s{sA}, 7")
    A(f"s_add_u32 s85, s85, {WS_G:#x}")
    A("v_cmp_eq_u32 vcc, 0, v3")
    A(f"s_and_saveexec_b64 s[{sEX}:{sEX+1}], vcc")
    A(f"buffer_store_dword v10, v7, s[{sWS}:{sWS+3}], s85 offen sc1")
    A(f"s_mov_b64 exec, s[{sEX}:{sEX+1}]")
    A("v_add_f32 v12, v12, v13")
    red8([12])
    A(f"v_mov_b32 v13, {0x3727C5AC:#x}")
    A(f"v_fmac_f32 v13, {0x3ACCCCCD:#x}, v12")
    A("v_rsq_f32 v12, v13")
    A("s_nop 0")
    A("v_mov_b32 v13, v12")
    for i in range(40):
        A(f"v_pk_mul_f32 {vr(D+2*i,2)}, {vr(D+2*i,2)}, v[12:13]")
        A(f"v_cvt_pk_bf16_f32 v{X+i}, v{D+2*i}, v{D+2*i+1}")
        if (i & 3) == 3:
            A(f"ds_write_b128 v6, {vr(X+i-3,4)} offset:{128*(i//4)}")
    A("v_lshrrev_b32 v2, 2, v1")
    A("v_mul_u32_u24 v2, 1312, v2")
    A("v_and_b32 v3, 3, v1")
    A("v_lshl_add_u32 v2, v3, 3, v2")
    A(f"s_mul_i32 s85, s{sWAVE}, 320")
    A("v_add_u32 v2, s85, v2")
    A("v_lshlrev_b32 v3, 4, v1")
    A(f"s_mul_i32 s85, s{sA}, 40960")
    A(f"s_mul_i32 s86, s{sWAVE}, 10240")
    A("s_add_u32 s85, s85, s86")
    if WS_H: A(f"s_add_u32 s85, s85, {WS_H:#x}")
    A("s_add_u32 s86, s85, 4096")
    A("s_add_u32 s87, s85, 8192")
    A("s_waitcnt lgkmcnt(0)")
    A("s_barrier")
    for t in range(10):
        A(f"ds_read_b64_tr_b16 {vr(D+4*t,2)}, v2 offset:{32*t}")
        A(f"ds_read_b64_tr_b16 {vr(D+4*t+2,2)}, v2 offset:{32*t + 16*1312}")
        if t == 6: A("s_waitcnt lgkmcnt(6)")
    for t in range(10):
        A(f"s_waitcnt lgkmcnt({min(2*(9-t), 6)})")
        A(f"buffer_store_dwordx4 {vr(D+4*t,4)}, v3, s[{sWS}:{sWS+3}], s{85 + t//4} offen offset:{1024*(t&3)} sc1")

vWS_, vB0, vB1, vTR = 33, 37, 38, 39
BR, AS = 0, 80

def core_setup_common(A):
    A(f"v_lshlrev_b32 v{vB0}, 4, v1")
    A(f"v_add_u32 v{vB1}, 4096, v{vB0}")
    A("v_lshrrev_b32 v2, 2, v1")
    A("v_lshrrev_b32 v3, 1, v2")
    A("v_and_b32 v3, 3, v3")
    A("v_lshlrev_b32 v2, 7, v2")
    A("v_lshl_add_u32 v2, v3, 5, v2")
    A("v_and_b32 v3, 3, v1")
    A("v_lshl_add_u32 v2, v3, 3, v2")
    A(f"s_lshl_b32 s{sM0}, s{sWAVE}, 14")
    A(f"v_add_u32 v{vTR}, s{sM0}, v2")
    for t in range(1, 4):
        A(f"v_xor_b32 v{vTR+t}, {32*t}, v{vTR}")

def core_setup_w(A, stride):
    A("v_lshrrev_b32 v2, 3, v1")
    A(f"v_mul_u32_u24 v2, {stride}, v2")
    A("v_lshrrev_b32 v3, 4, v1")
    A("v_lshlrev_b32 v3, 1, v3")
    A("v_and_b32 v4, 7, v1")
    A("v_xor_b32 v3, v3, v4")
    A(f"v_lshl_add_u32 v{vWS_}, v3, 4, v2")
    for q in range(1, 4):
        A(f"v_add_u32 v{vWS_+q}, {q*(8*stride-1024)}, v{vWS_}")

def core_wdma(slot, srdw):
    L = [[f"s_add_u32 m0, s{sM0}, {4096*slot}"]]
    for q in range(4):
        L.append([f"buffer_load_dwordx4 v{vWS_+q}, s[{srdw}:{srdw+3}], s{sO1} offen offset:{1024*q} lds"])
    return L

def core_bload(slot, n):
    return f"buffer_load_dwordx4 {ar(BR+20*slot+4*n,4)}, v{vB0 if n < 4 else vB1}, s[{sWS}:{sWS+3}], s{sO2} offen offset:{1024*(n&3)} sc1"

def core_tr(slot, aset):
    return [f"ds_read_b64_tr_b16 {ar(AS+16*aset+4*t+2*j,2)}, v{vTR+t} offset:{4096*slot+2048*j}" for t in range(4) for j in range(2)]

def core(A, pfx, srdw, stride, nks, acc, w_is_A):
    wstep = 32*stride
    for s in range(4):
        for g in core_wdma(s, srdw):
            for x in g: A(x)
            if "m0" in g[0]: A("s_nop 0")
        for n in range(5): A(core_bload(s, n))
        A(f"s_add_u32 s{sO1}, s{sO1}, {wstep}")
        A(f"s_add_u32 s{sO2}, s{sO2}, 40960")
    A("s_waitcnt vmcnt(32)")
    for x in core_tr(0, 0): A(x)
    A(f"s_mov_b32 s{sCNT}, {nks//4}")
    A(".p2align 3")
    A.label(f"{pfx}_loop")
    A(f"s_cmp_eq_u32 s{sCNT}, 1")
    A(f"s_cselect_b32 s{sO1}, 0x40000000, s{sO1}")
    A(f"s_cselect_b32 s{sO2}, 0x40000000, s{sO2}")
    for u in range(4):
        A("s_waitcnt vmcnt(23) lgkmcnt(0)")
        tr = core_tr((u+1) & 3, (u+1) & 1)
        wd = core_wdma(u, srdw)
        A(wd[0][0])
        k = 0
        for n in range(5):
            for t in range(4):
                w = ar(AS+16*(u & 1)+4*t, 4); b = ar(BR+20*u+4*n, 4); c = vr(acc+(t*5+n)*4, 4)
                A(f"v_mfma_f32_16x16x32_bf16 {c}, {w}, {b}, {c}" if w_is_A else f"v_mfma_f32_16x16x32_bf16 {c}, {b}, {w}, {c}")
                if n == 0: A(wd[1+t][0])
                elif n in (1, 2): A(tr[k]); k += 1
            A(core_bload(u, n))
        A(f"s_add_u32 s{sO1}, s{sO1}, {wstep}")
        A(f"s_add_u32 s{sO2}, s{sO2}, 40960")
    A(f"s_sub_u32 s{sCNT}, s{sCNT}, 1")
    A(f"s_cmp_lg_u32 s{sCNT}, 0")
    A(f"s_cbranch_scc1 {pfx}_loop")
    A("s_waitcnt vmcnt(0) lgkmcnt(0)")

def g1_phase(A, fused):
    core_setup_common(A)
    core_setup_w(A, 3072)
    A("v_lshrrev_b32 v2, 4, v1")
    A("v_lshlrev_b32 v2, 3, v2")
    A(f"s_lshl_b32 s85, s{sG1F}, 7")
    A(f"s_cmp_eq_u32 s{sWAVE}, 0")
    A("s_cselect_b32 s85, s85, 0x40000000")
    for t in range(4):
        A(f"buffer_load_dwordx2 {vr(4+2*t,2)}, v2, s[{sB1}:{sB1+3}], s85 offen offset:{32*t}")
    A(f"s_mul_i32 s{sO1}, s{sWAVE}, {16*32*3072}")
    A(f"s_lshl_b32 s85, s{sG1F}, 7")
    A(f"s_add_u32 s{sO1}, s{sO1}, s85")
    A(f"s_mul_i32 s{sO2}, s{sWAVE}, {16*40960}")
    A(f"s_mul_i32 s85, s{sG1D}, 5120")
    A(f"s_add_u32 s{sO2}, s{sO2}, s85")
    if WS_H: A(f"s_add_u32 s{sO2}, s{sO2}, {WS_H:#x}")
    A("s_waitcnt vmcnt(0)")
    for t in range(4):
        b = ACC + t*20
        A(f"v_lshlrev_b32 v{b}, 16, v{4+2*t}")
        A(f"v_and_b32 v{b+1}, 0xffff0000, v{4+2*t}")
        A(f"v_lshlrev_b32 v{b+2}, 16, v{5+2*t}")
        A(f"v_and_b32 v{b+3}, 0xffff0000, v{5+2*t}")
        for n in range(1, 5):
            for i in range(4): A(f"v_mov_b32 v{b+4*n+i}, v{b+i}")
    A(";SYNC_G1")
    core(A, "g1", sW1, 3072, 16, ACC, True)
    A("v_and_b32 v2, 15, v1")
    A("v_lshrrev_b32 v3, 4, v1")
    A("v_xor_b32 v4, v2, v3")
    A("v_lshlrev_b32 v4, 4, v4")
    A("v_lshl_add_u32 v4, v2, 8, v4")
    A(f"s_mul_i32 s85, s{sWAVE}, 20480")
    A(f"s_add_u32 s85, s85, {LDS_RED}")
    A("v_add_u32 v5, s85, v4")
    for t in range(1, 4): A(f"v_xor_b32 v{5+t}, {64*t}, v5")
    for t in range(4):
        for n in range(5):
            A(f"ds_write_b128 v{5+t}, {vr(ACC+(t*5+n)*4,4)} offset:{4096*n}")
    A(f"s_and_b32 s85, s{sWAVE}, 1")
    A(f"s_lshr_b32 s86, s{sWAVE}, 1")
    A("s_lshl_b32 s87, s85, 7")
    A("v_xor_b32 v4, s87, v4")
    A("s_lshl_b32 s87, s86, 12")
    A(f"s_add_u32 s87, s87, {LDS_RED}")
    A("v_add_u32 v9, s87, v4")
    A("v_xor_b32 v10, 64, v9")
    A("v_add_u32 v11, 40960, v9")
    A("v_add_u32 v12, 40960, v10")
    A(f"s_lshl_b32 s87, s{sG1F}, 1")
    A("s_add_u32 s87, s87, s85")
    A("s_mul_i32 s87, s87, 40")
    A(f"s_mul_i32 s88, s{sG1D}, 5")
    A("s_add_u32 s87, s87, s88")
    A("s_add_u32 s87, s87, s86")
    A("s_lshl_b32 s87, s87, 10")
    A(f"s_add_u32 s87, s87, {WS_U:#x}")
    A("s_add_u32 s88, s87, 4096")
    C0 = 0xC0135761
    C1 = 0xBDD2D3E8
    A(f"s_mov_b32 s85, {C1:#x}")
    A(f"v_mov_b32 v13, {C0:#x}")
    A("s_waitcnt lgkmcnt(0)")
    A("s_barrier")
    R = 128
    def rd(r):
        for part in range(4):
            for j in range(2):
                A(f"ds_read_b128 {vr(R+32*r+16*j+4*part,4)}, v{9+j+2*(part>>1)} offset:{8192*r + 20480*(part&1)}")
    def fin(r):
        b = R + 32*r
        for j in range(2):
            for i in range(4):
                x = b + 16*j + i
                A(f"v_add_f32 v{x}, v{x}, v{x+4}")
                A(f"v_add_f32 v{x+8}, v{x+8}, v{x+12}")
        for j in range(2):
            for i in range(4):
                x = b + 16*j + i
                A(f"v_add_f32 v{x}, v{x}, v{x+8}")
        E = [b + 16*j + i for j in range(2) for i in range(4)]
        for x in E: A(f"v_mul_f32 v{x+4}, v{x}, v{x}")
        for x in E: A(f"v_fma_f32 v{x+4}, v{x+4}, s85, v13")
        for x in E: A(f"v_mul_f32 v{x+4}, v{x+4}, v{x}")
        for x in E: A(f"v_exp_f32 v{x+4}, v{x+4}")
        for x in E: A(f"v_add_f32 v{x+4}, 1.0, v{x+4}")
        for x in E: A(f"v_rcp_f32 v{x+4}, v{x+4}")
        for x in E: A(f"v_mul_f32 v{x}, v{x}, v{x+4}")
        for j in range(2):
            x = b + 16*j
            A(f"v_cvt_pk_bf16_f32 v{b+8+2*j}, v{x}, v{x+1}")
            A(f"v_cvt_pk_bf16_f32 v{b+9+2*j}, v{x+2}, v{x+3}")
        A(f"buffer_store_dwordx4 {vr(b+8,4)}, v{vB0}, s[{sWS}:{sWS+3}], s{87 if r < 2 else 88} offen offset:{2048*(r&1)} sc1")
    rd(0)
    A("s_waitcnt lgkmcnt(4)")
    rd(1)
    A("s_waitcnt lgkmcnt(8)")
    fin(0)
    A(f"s_cmp_ge_u32 s{sWAVE}, 2")
    A("s_cbranch_scc1 g1_e1")
    rd(2)
    A("s_waitcnt lgkmcnt(8)")
    fin(1)
    A("s_waitcnt lgkmcnt(0)")
    fin(2)
    A("s_branch g1_e2")
    A.label("g1_e1")
    A("s_waitcnt lgkmcnt(0)")
    fin(1)
    A.label("g1_e2")

def f_phase(A, fused):
    ACA = 128
    core_setup_common(A)
    core_setup_w(A, 4096)
    A(";SYNC_FA")
    A("v_and_b32 v2, 15, v1")
    A("v_lshlrev_b32 v3, 2, v2")
    A(f"s_lshl_b32 s85, s{sFS}, 8")
    A(f"s_add_u32 s85, s85, {WS_G:#x}")
    for st in range(4):
        A(f"buffer_load_dword v{8+st}, v3, s[{sWS}:{sWS+3}], s85 offen offset:{64*st} sc1")
    A("v_lshlrev_b32 v3, 1, v2")
    A(f"s_lshl_b32 s85, s{sFS}, 7")
    A(f"s_cmp_eq_u32 s{sWAVE}, 0")
    A("s_cselect_b32 s85, s85, 0x40000000")
    for st in range(4):
        A(f"buffer_load_ushort v{12+st}, v3, s[{sB2}:{sB2+3}], s85 offen offset:{32*st}")
    A(f"s_mul_i32 s85, s{sFS}, 20")
    A(f"s_mul_i32 s86, s{sWAVE}, 5")
    A("s_add_u32 s85, s85, s86")
    A("s_lshl_b32 s85, s85, 12")
    A(f"s_add_u32 s85, s85, {WS_PQ:#x}")
    A("s_mul_i32 s86, s86, 40960")
    A(f"s_mul_i32 s87, s{sFD}, 5120")
    A("s_add_u32 s86, s86, s87")
    A(f"s_add_u32 s86, s86, {WS_M:#x}")
    fb = lambda i: 0 if i == 0 else 112 + 36*(i-1)
    for i in range(5):
        for st in range(4):
            A(f"buffer_load_dwordx4 {ar(fb(i)+4*st,4)}, v{vB0}, s[{sWS}:{sWS+3}], s85 offen offset:{1024*st} sc1")
        for n in range(5):
            A(f"buffer_load_dwordx4 {ar(fb(i)+16+4*n,4)}, v{vB0 if n < 4 else vB1}, s[{sWS}:{sWS+3}], s86 offen offset:{1024*(n&3)} sc1")
        A("s_add_u32 s85, s85, 4096")
        A("s_add_u32 s86, s86, 40960")
    A("s_waitcnt vmcnt(45)")
    for st in range(4):
        A(f"v_sub_f32 v{8+st}, 1.0, v{8+st}")
        A(f"v_lshlrev_b32 v{12+st}, 16, v{12+st}")
        for k in range(20): A(f"v_mov_b32 v{ACC+st*20+k}, v{12+st}")
    for i in range(5):
        A(f"s_waitcnt vmcnt({9*(4-i)})")
        for n in range(5):
            for st in range(4):
                c = vr(ACA+(st*5+n)*4, 4)
                A(f"v_mfma_f32_16x16x32_bf16 {c}, {ar(fb(i)+16+4*n,4)}, {ar(fb(i)+4*st,4)}, {c if i else 0}")
    A(f"s_mul_i32 s{sO1}, s{sWAVE}, {12*32*4096}")
    A(f"s_lshl_b32 s85, s{sFS}, 7")
    A(f"s_add_u32 s{sO1}, s{sO1}, s85")
    A(f"s_mul_i32 s{sO2}, s{sWAVE}, {12*40960}")
    A(f"s_mul_i32 s85, s{sFD}, 5120")
    A(f"s_add_u32 s{sO2}, s{sO2}, s85")
    A(f"s_add_u32 s{sO2}, s{sO2}, {WS_U:#x}")
    A(";SYNC_FB")
    core(A, "fb", sW2, 4096, 12, ACC, False)
    A("v_lshrrev_b32 v3, 4, v1")
    A("v_mul_u32_u24 v4, 336, v2")
    A("v_lshl_add_u32 v4, v3, 4, v4")
    A(f"s_mul_i32 s85, s{sWAVE}, 21504")
    A(f"s_add_u32 s85, s85, {LDS_RED}")
    A("v_add_u32 v4, s85, v4")
    A("s_nop 2")
    for st in range(4):
        for n in range(5):
            b = (st*5+n)*4
            for i in range(4):
                A(f"v_fma_f32 v{ACA+b+i}, v{ACC+b+i}, v{8+st}, v{ACA+b+i}")
            A(f"ds_write_b128 v4, {vr(ACA+b,4)} offset:{st*16*336 + 64*n}")
    A(f"s_mul_i32 s85, s{sWAVE}, {16*336}")
    A(f"s_add_u32 s85, s85, {LDS_RED}")
    A(f"s_lshl_b32 s86, s{sFS}, 2")
    A(f"s_add_u32 s86, s86, s{sWAVE}")
    A(f"s_mul_i32 s86, s86, {16*1280}")
    A(f"s_mul_i32 s87, s{sFD}, 160")
    A("s_add_u32 s86, s86, s87")
    for r in range(5):
        A(f"v_add_u32 v5, {64*r}, v1")
        A("v_mul_u32_u24 v6, 3277, v5")
        A("v_lshrrev_b32 v6, 16, v6")
        A("v_mul_u32_u24 v7, 20, v6")
        A("v_sub_u32 v7, v5, v7")
        A(f"v_mul_u32_u24 v{16+r}, 336, v6")
        A(f"v_lshl_add_u32 v{16+r}, v7, 4, v{16+r}")
        A(f"v_add_u32 v{16+r}, s85, v{16+r}")
        A(f"v_mul_u32_u24 v{24+r}, 1280, v6")
        A(f"v_lshl_add_u32 v{24+r}, v7, 3, v{24+r}")
    A("s_waitcnt lgkmcnt(0)")
    A("s_barrier")
    R = ACC
    def rd(r):
        for part in range(4):
            A(f"ds_read_b128 {vr(R+16*r+4*part,4)}, v{16+r} offset:{21504*part}")
    rd(0); rd(1); rd(2)
    for r in range(5):
        A(f"s_waitcnt lgkmcnt({8 if r < 3 else 4*(4-r)})")
        b = R + 16*r
        for i in range(4):
            A(f"v_add_f32 v{b+i}, v{b+i}, v{b+4+i}")
            A(f"v_add_f32 v{b+8+i}, v{b+8+i}, v{b+12+i}")
        if r + 3 < 5: rd(r+3)
        for i in range(4): A(f"v_add_f32 v{b+i}, v{b+i}, v{b+8+i}")
        A(f"v_cvt_pk_bf16_f32 v{b}, v{b}, v{b+1}")
        A(f"v_cvt_pk_bf16_f32 v{b+1}, v{b+2}, v{b+3}")
        A(f"buffer_store_dwordx2 {vr(b,2)}, v{24+r}, s[{sOUT}:{sOUT+3}], s86 offen")

def role_params_kv(A):
    A("s_and_b32 s85, s82, 3")
    A("s_lshl_b32 s86, s83, 2")
    A(f"s_add_u32 s{sA}, s85, s86")
    A("s_lshr_b32 s85, s82, 2")
    A("s_lshl_b32 s86, s84, 2")
    A(f"s_add_u32 s{sBp}, s85, s86")
def role_params_q(A):
    A("s_sub_u32 s87, s82, 16")
    A("s_and_b32 s85, s87, 3")
    A("s_lshl_b32 s86, s83, 2")
    A(f"s_add_u32 s{sA}, s85, s86")
    A("s_lshr_b32 s85, s87, 2")
    A("s_lshl_b32 s86, s84, 1")
    A(f"s_add_u32 s{sBp}, s85, s86")
    A("s_lshl_b32 s85, s81, 3")
    A("s_add_u32 s85, s85, s87")
    A(f"s_lshr_b32 s{sU}, s85, 2")
    A(f"s_and_b32 s{sNR}, s85, 3")
def role_params_ln(A):
    A("s_sub_u32 s87, s82, 24")
    A("s_lshl_b32 s85, s81, 3")
    A(f"s_add_u32 s{sA}, s85, s87")

def kd(name):
    return f""".section .rodata,"a"
.p2align 6
.amdhsa_kernel {name}
  .amdhsa_next_free_vgpr 512
  .amdhsa_next_free_sgpr 102
  .amdhsa_accum_offset 256
  .amdhsa_group_segment_fixed_size 0
  .amdhsa_kernarg_size 96
  .amdhsa_user_sgpr_count 2
  .amdhsa_user_sgpr_kernarg_segment_ptr 1
  .amdhsa_system_sgpr_workgroup_id_x 1
.end_amdhsa_kernel
"""

def khead(A, name):
    A(".text"); A(f".globl {name}"); A(".p2align 8"); A(f".type {name},@function"); A.label(name)

def gen_multi():
    hdr = "".join(f"; @launch kernel=k{i}_kernel grid=(256,1,1) block=(256,1,1) lds={LDS_BYTES}\n" for i in (1, 2, 3))
    hdr += '.amdgcn_target "amdgcn-amd-amdhsa--gfx950"\n'
    A = Asm()
    khead(A, "k1_kernel"); prologue(A, "k1")
    A("s_cmp_ge_u32 s82, 16"); A("s_cbranch_scc1 k1_notkv")
    role_params_kv(A)
    A("s_waitcnt lgkmcnt(0)"); all_srds(A, ["X", "W", "WS"])
    qkv_setup(A, False); qkv_gemm(A, "kv", False); kv_epilogue(A, False)
    A("s_endpgm")
    A.label("k1_notkv")
    A("s_cmp_lt_u32 s82, 24"); A("s_cbranch_scc1 k1_end")
    role_params_ln(A)
    A("s_waitcnt lgkmcnt(0)"); all_srds(A, ["X", "GW", "WS"])
    ln_role(A, False)
    A.label("k1_end"); A("s_endpgm")
    khead(A, "k2_kernel"); prologue(A, "k2")
    A("s_sub_u32 s85, s82, 16"); A("s_cmp_lt_u32 s85, 8"); A("s_cbranch_scc1 k2_q")
    A("s_waitcnt lgkmcnt(0)"); all_srds(A, ["W1", "B1", "WS"])
    g1_phase(A, False)
    A("s_endpgm")
    A.label("k2_q")
    role_params_q(A)
    A("s_waitcnt lgkmcnt(0)"); all_srds(A, ["X", "W", "WS", "WO"])
    qkv_setup(A, True); qkv_gemm(A, "q", True); q_epilogue(A, False)
    A.label("k2_end"); A("s_endpgm")
    khead(A, "k3_kernel"); prologue(A, "k3")
    A("s_waitcnt lgkmcnt(0)"); all_srds(A, ["W2", "B2", "WS", "OUT"])
    f_phase(A, False)
    A.label("k3_end"); A("s_endpgm")
    nb = check(A.lines)
    print("hazards:", nb, file=sys.stderr)
    return hdr + A.text() + "".join(kd(f"k{i}_kernel") for i in (1, 2, 3))

if __name__ == "__main__":
    mode = sys.argv[1] if len(sys.argv) > 1 else "multi"
    out = sys.argv[2] if len(sys.argv) > 2 else "multi.s"
    open(out, "w").write(gen_multi())
```

```python
import sys, json
from asmlib import Asm, vr, ar, sr, check

NAME = "gated_mix__linear_attn_block__mixer_token_mlp__prompt"
WS_H   = 0x000000
WS_U   = 0x280000
WS_PQ  = 0x460000
WS_M   = 0x6E0000
WS_KVP = 0x7A8000
WS_ZP  = 0x968000
WS_G   = 0x972000
WS_FLAG = 0x974000
FL_X = WS_FLAG
FL_LN = WS_FLAG + 128
FL_KV = FL_LN + 64*128
FL_Q = FL_KV + 128*128
FL_G1 = FL_Q + 64*128
WS_SIZE = FL_G1 + 192*128
WS_STAMP = 0x1000000

sX, sW, sWS, sW1, sW2, sOUT, sWO, sB1, sB2, sGW = 28, 32, 36, 40, 44, 48, 52, 56, 60, 64
sWAVE = 68
sA, sBp = 69, 70
sG1D, sG1F, sFS, sFD = 71, 72, 73, 74
sCNT, sO1, sO2, sRD, sWR, sM0 = 75, 76, 77, 78, 79, 80
sEX, sMK = 90, 92
sU, sNR = 94, 95
sWR_, sWC_ = 96, 97
sPUB = 3
sQOK = 99
sM1 = 98
sC1, sC2, sCM0, sCB1, sCE1, sCB2, sCE2, sCST, sCW, sNON = 4, 5, 6, 7, 8, 9, 10, 11, 12, 16
sF1, sFB1, sFE1, sF2, sFB2, sFE2 = 17, 18, 19, 20, 21, 22
LOG2E = 0x3FB8AA3B
EPS6 = 0x358637BD
LDS_RED = 65536
LDS_BYTES = 163840
vXO, vWO_, vXB, vCUR = 16, 20, 25, 29
vWS_, vB0, vB1, vTR, vWS2 = 33, 37, 38, 39, 43
ACC = 48
FA_, FB_ = 112, 148
BR, AS = 0, 80
STG = 36864
vPOLL, vPO = 14, 13
OPT = {"rot": 1, "pf_w1": 1, "pf_w2": 1, "pf_code": 1, "pf_pq": 1, "sleep": 4, "early": 1}
STAMPS = False
_st = {"n": 0, "names": []}

def stamp(A, name, real=False):
    if not STAMPS: return
    i = _st["n"]; _st["n"] += 1; _st["names"].append(name)
    A("s_memrealtime s[100:101]" if real else "s_memtime s[100:101]")
    A("s_waitcnt lgkmcnt(0)")
    A(f"v_writelane_b32 v47, s100, {i}")
def stamp_flush(A):
    if not STAMPS: return
    stamp(A, "end"); stamp(A, "endreal", True)
    A("s_lshl_b32 s100, s2, 2")
    A(f"s_add_u32 s100, s100, s{sWAVE}")
    A("s_lshl_b32 s100, s100, 8")
    A(f"s_add_u32 s100, s100, {WS_STAMP:#x}")
    A(f"s_mov_b32 s{sWS+2}, 0x2000000")
    A("v_lshlrev_b32 v46, 2, v1")
    A(f"buffer_store_dword v47, v46, s[{sWS}:{sWS+3}], s100 offen")

def srds(A, which):
    tab = {"X": (sX, 4, 2048*1280), "W": (sW, 6, 640*3840), "WO": (sWO, 8, 640*1280), "W1": (sW1, 12, 2048*3072), "B1": (sB1, 14, 3072),
           "W2": (sW2, 16, 1536*4096), "B2": (sB2, 18, 4096), "GW": (sGW, 20, 1280), "OUT": (sOUT, 22, 2048*1280), "WS": (sWS, 26, WS_SIZE)}
    for w in which:
        base, ptr, size = tab[w]
        A(f"s_mov_b64 s[{base}:{base+1}], s[{ptr}:{ptr+1}]")
        A(f"s_mov_b32 s{base+2}, {size:#x}")
        A(f"s_mov_b32 s{base+3}, 0x20000")

def flat(groups):
    out = []
    for g in groups: out += g if isinstance(g, list) else [g]
    return out

def weave(A, mf, fill, first=0):
    for i, m in enumerate(mf):
        A(m)
        if i < len(fill):
            for x in fill[i]: A(x)
    for g in fill[len(mf):]:
        for x in g: A(x)

def poll_off(A, dst, nper, total_waves_split=True):
    A(f"v_and_b32 v{dst}, {nper-1}, v1")
    A(f"s_mul_i32 s85, s{sWAVE}, {nper}")
    A(f"v_add_lshl_u32 v{dst}, v{dst}, s85, 7")
def poll_ld(vo, so):
    return f"buffer_load_dword v{vPOLL}, v{vo}, s[{sWS}:{sWS+3}], s{so} offen sc1"
def poll_check(A, name, vo, so):
    A(f"v_cmp_ne_u32 vcc, s{sNON}, v{vPOLL}")
    A(f"s_cbranch_vccz {name}_ok")
    A(f"s_mov_b32 s{sM1}, 0")
    A.label(f"{name}_spin")
    A(f"s_add_u32 s{sM1}, s{sM1}, 1")
    A(f"s_cmp_gt_u32 s{sM1}, 0x8000")
    A(f"s_cbranch_scc1 {name}_ok")
    A(f"s_sleep {OPT['sleep']}")
    A(poll_ld(vo, so))
    A("s_waitcnt vmcnt(0)")
    A(f"v_cmp_ne_u32 vcc, s{sNON}, v{vPOLL}")
    A(f"s_cbranch_vccnz {name}_spin")
    A.label(f"{name}_ok")
def publish(A, name, base, sidx, wait=0):
    if wait is not None: A(f"s_waitcnt vmcnt({wait})")
    A("s_barrier")
    A(f"s_cmp_lg_u32 s{sWAVE}, 0")
    A(f"s_cbranch_scc1 {name}_np")
    A(f"s_lshl_b32 s85, s{sidx}, 7")
    A(f"s_add_u32 s85, s85, {base:#x}")
    A(f"v_mov_b32 v2, s{sNON}")
    A("v_mov_b32 v3, 0")
    A("s_mov_b64 exec, 1")
    A(f"buffer_store_dword v2, v3, s[{sWS}:{sWS+3}], s85 offen sc1")
    A("s_mov_b64 exec, -1")
    A.label(f"{name}_np")

def prologue(A):
    A("s_cmp_ge_u32 s2, 256")
    A("s_cbranch_scc1 k_end")
    if STAMPS: A("v_mov_b32 v47, 0")
    stamp(A, "startreal", True); stamp(A, "start")
    A("s_load_dwordx16 s[4:19], s[0:1], 0")
    A("s_load_dwordx8 s[20:27], s[0:1], 64")
    A("v_lshrrev_b32 v2, 6, v0")
    A("v_and_b32 v1, 63, v0")
    A(f"v_readfirstlane_b32 s{sWAVE}, v2")
    A("s_and_b32 s81, s2, 7")
    A("s_lshr_b32 s82, s2, 3")
    A("s_lshr_b32 s83, s81, 1")
    A("s_and_b32 s84, s81, 1")

def params1(A):
    A(f"s_add_u32 s86, s26, {FL_X:#x}")
    A("s_addc_u32 s87, s27, 0")
    A("s_load_dword s3, s[86:87], 0")
    A("s_lshr_b32 s85, s82, 2")
    A("s_lshl_b32 s88, s83, 3")
    A(f"s_add_u32 s{sFS}, s85, s88")
    A("s_and_b32 s85, s82, 3")
    A("s_lshl_b32 s88, s84, 2")
    A(f"s_add_u32 s{sFD}, s85, s88")
    A("s_sub_u32 s85, s82, 8")
    A("s_cmp_lt_u32 s82, 16")
    A("s_cselect_b32 s85, s82, s85")
    A("s_and_b32 s89, s85, 3")
    A(f"s_add_u32 s{sG1D}, s89, s88")
    A("s_lshr_b32 s85, s85, 2")
    A("s_mul_i32 s88, s83, 6")
    A(f"s_add_u32 s{sG1F}, s85, s88")
    A("s_mul_i32 s85, s85, 3")
    A("s_lshl_b32 s89, s89, 2")
    A("s_add_u32 s85, s85, s89")
    A(f"s_and_b32 s99, s85, {15 if OPT['rot'] else 0}")

def params2(A):
    A(f"s_mul_i32 s{sCB1}, s{sWAVE}, {16*32*3072}")
    A(f"s_lshl_b32 s85, s{sG1F}, 7")
    A(f"s_add_u32 s{sCB1}, s{sCB1}, s85")
    A(f"s_add_u32 s{sCE1}, s{sCB1}, {16*32*3072}")
    A(f"s_mul_i32 s85, s99, {32*3072}")
    A(f"s_add_u32 s{sC1}, s{sCB1}, s85")
    A(f"s_mul_i32 s{sCB2}, s{sWAVE}, {16*40960}")
    A(f"s_mul_i32 s85, s{sG1D}, 5120")
    A(f"s_add_u32 s{sCB2}, s{sCB2}, s85")
    A(f"s_add_u32 s{sCE2}, s{sCB2}, {16*40960}")
    A(f"s_mul_i32 s85, s99, 40960")
    A(f"s_add_u32 s{sC2}, s{sCB2}, s85")
    A(f"s_mov_b32 s{sCST}, {32*3072}")
    A(f"s_mov_b64 s[{sCW}:{sCW+1}], s[{sW1}:{sW1+1}]")
    A(f"s_mov_b64 s[{sCW+2}:{sCW+3}], s[{sW1+2}:{sW1+3}]")
    A(f"s_lshl_b32 s{sCM0}, s{sWAVE}, 14")
    A("s_and_b32 s85, s82, 3")
    A("s_mul_i32 s85, s85, 3")
    A("s_lshr_b32 s86, s82, 2")
    A("s_mul_i32 s86, s86, 3")
    A("s_lshr_b32 s86, s86, 1")
    A("s_add_u32 s85, s85, s86")
    A("s_cmp_ge_u32 s85, 12")
    A("s_cselect_b32 s86, 12, 0")
    A("s_sub_u32 s85, s85, s86")
    if not OPT["rot"]: A("s_mov_b32 s85, 0")
    A(f"s_mul_i32 s{sFB1}, s{sWAVE}, {12*32*4096}")
    A(f"s_lshl_b32 s86, s{sFS}, 7")
    A(f"s_add_u32 s{sFB1}, s{sFB1}, s86")
    A(f"s_add_u32 s{sFE1}, s{sFB1}, {12*32*4096}")
    A(f"s_lshl_b32 s86, s85, 17")
    A(f"s_add_u32 s{sF1}, s{sFB1}, s86")
    A(f"s_mul_i32 s{sFB2}, s{sWAVE}, {12*40960}")
    A(f"s_mul_i32 s86, s{sFD}, 5120")
    A(f"s_add_u32 s{sFB2}, s{sFB2}, s86")
    A(f"s_add_u32 s{sFB2}, s{sFB2}, {WS_U:#x}")
    A(f"s_add_u32 s{sFE2}, s{sFB2}, {12*40960}")
    A(f"s_mul_i32 s86, s85, 40960")
    A(f"s_add_u32 s{sF2}, s{sFB2}, s86")
    A(f"v_lshlrev_b32 v{vB0}, 4, v1")
    A(f"v_add_u32 v{vB1}, 4096, v{vB0}")
    A("v_lshrrev_b32 v2, 2, v1")
    A("v_lshrrev_b32 v3, 1, v2")
    A("v_and_b32 v3, 3, v3")
    A("v_lshlrev_b32 v2, 7, v2")
    A("v_lshl_add_u32 v2, v3, 5, v2")
    A("v_and_b32 v3, 3, v1")
    A("v_lshl_add_u32 v2, v3, 3, v2")
    A(f"v_add_u32 v{vTR}, s{sCM0}, v2")
    for t in range(1, 4): A(f"v_xor_b32 v{vTR+t}, {32*t}, v{vTR}")
    A("v_lshrrev_b32 v2, 3, v1")
    A("v_lshrrev_b32 v3, 4, v1")
    A("v_lshlrev_b32 v3, 1, v3")
    A("v_and_b32 v4, 7, v1")
    A("v_xor_b32 v3, v3, v4")
    A("v_lshlrev_b32 v3, 4, v3")
    for base, stride in ((vWS_, 3072), (vWS2, 4096)):
        A(f"v_mul_u32_u24 v4, {stride}, v2")
        A(f"v_add_u32 v{base}, v3, v4")
        for q in range(1, 4): A(f"v_add_u32 v{base+q}, {q*(8*stride-1024)}, v{base}")
    poll_off(A, vPO, 16)
    A("v_lshlrev_b32 v15, 7, v1")
    A(f"s_mov_b32 s24, {FL_LN:#x}")
    A(f"s_mov_b32 s25, {FL_Q:#x}")
    A("s_waitcnt lgkmcnt(0)")
    A(f"s_mul_i32 s{sNON}, s3, 0x41C64E6D")
    A(f"s_add_u32 s{sNON}, s{sNON}, 0x3C6EF35F")

def qkv_setup(A, isq):
    A(f"s_lshr_b32 s{sWR_}, s{sWAVE}, 1")
    A(f"s_and_b32 s{sWC_}, s{sWAVE}, 1")
    A("v_lshrrev_b32 v2, 3, v1")
    A(f"s_lshl_b32 s85, s{sWAVE}, 5")
    A("v_add_u32 v2, s85, v2")
    A("v_mul_u32_u24 v2, 1280, v2")
    A("v_lshrrev_b32 v3, 4, v1")
    A("v_and_b32 v4, 7, v1")
    A("v_xor_b32 v4, v4, v3")
    A(f"v_lshl_add_u32 v{vXO}, v4, 4, v2")
    A("v_xor_b32 v4, 4, v4")
    A("v_lshl_add_u32 v6, v4, 4, v2")
    A(f"v_add_u32 v{vXO+1}, {8*1280-1024}, v6")
    A(f"v_add_u32 v{vXO+2}, {16*1280-2048}, v{vXO}")
    A(f"v_add_u32 v{vXO+3}, {24*1280-3072}, v6")
    A(f"s_mul_i32 s{sO1}, s{sA}, {128*1280}")
    if isq:
        A(f"s_mul_i32 s86, s{sBp}, 320")
    else:
        A(f"s_mul_i32 s86, s{sBp}, 160")
        A("s_add_u32 s86, s86, 1280")
    A(f"s_mul_i32 s85, s{sWAVE}, {16*3840}")
    A("s_add_u32 s85, s85, s86")
    A("s_movk_i32 s88, 3840")
    for n in range(5):
        if n: A(f"v_add_u32 v2, {64*n}, v1")
        q = "v2" if n else "v1"
        A(f"v_mul_u32_u24 v3, 3277, {q}")
        A("v_lshrrev_b32 v3, 16, v3")
        A(f"v_mad_i32_i24 v4, v3, -20, {q}")
        A("v_lshrrev_b32 v5, 2, v3")
        A("v_and_b32 v5, 2, v5")
        A("v_xor_b32 v4, v4, v5")
        comp = 1024*n if n < 4 else 0
        A(f"s_sub_u32 s87, s85, {comp}" if comp else "s_mov_b32 s87, s85")
        A("v_mad_u32_u24 v3, v3, s88, s87" if False else "v_mul_u32_u24 v3, 3840, v3")
        A("v_lshl_add_u32 v3, v4, 4, v3")
        if not isq:
            A("v_cmp_le_u32 vcc, 10, v4")
            A("v_add_u32 v5, 1120, v3")
            A("v_add_u32 v3, s87, v3")
            A("v_add_u32 v5, s87, v5")
            A(f"v_cndmask_b32 v{vWO_+n}, v3, v5, vcc")
        else:
            A(f"v_add_u32 v{vWO_+n}, s87, v3")
    A(f"s_mov_b32 s{sO2}, 0")
    if OPT["rot"]:
        A("s_and_b32 s85, s82, 3")
        A("s_lshl_b32 s85, s85, 2")
        A("s_lshr_b32 s85, 0x8530, s85")
        A("s_and_b32 s85, s85, 15")
        A("s_and_b32 s86, s82, 12")
        A("s_lshr_b32 s86, 0x8530, s86")
        A("s_and_b32 s86, s86, 15")
        A("s_add_u32 s85, s85, s86")
        A("s_add_u32 s85, s85, s83")
        A("s_add_u32 s85, s85, s84")
        if isq: A("s_add_u32 s85, s85, 1")
        A("s_mul_i32 s86, s85, 26")
        A("s_lshr_b32 s86, s86, 8")
        A("s_mul_i32 s86, s86, 10")
        A("s_sub_u32 s85, s85, s86")
        A(f"s_mul_i32 s{sO2}, s85, {64*3840}")
        A("s_lshl_b32 s85, s85, 7")
        A(f"s_add_u32 s{sO1}, s{sO1}, s85")
    A(f"s_lshl_b32 s{sM0}, s{sWAVE}, 12")
    A(f"s_mul_i32 s{sM1}, s{sWAVE}, 5120")
    A(f"s_add_u32 s{sM1}, s{sM1}, 16384")
    A(f"s_mov_b32 s{sWR}, {2*STG}")

def qkv_dma():
    L = [[f"s_add_u32 m0, s{sWR}, s{sM0}"]]
    for n in range(4):
        L.append([f"buffer_load_dwordx4 v{vXO+n}, s[{sX}:{sX+3}], s{sO1} offen offset:{1024*n} lds"])
    L.append([f"s_add_u32 m0, s{sWR}, s{sM1}"])
    for n in range(4):
        L.append([f"buffer_load_dwordx4 v{vWO_+n}, s[{sW}:{sW+3}], s{sO2} offen offset:{1024*n} lds"])
    L.append(["s_add_u32 m0, m0, 4096"])
    L.append([f"buffer_load_dwordx4 v{vWO_+4}, s[{sW}:{sW+3}], s{sO2} offen lds"])
    return L
def qkv_adv():
    return [f"s_add_u32 s{sO1}, s{sO1}, 128", f"s_add_u32 s{sO2}, s{sO2}, {64*3840}", f"s_cmp_eq_u32 s{sO2}, {640*3840}",
            "s_cselect_b32 s85, 1280, 0", f"s_cselect_b32 s{sO2}, 0, s{sO2}", f"s_sub_u32 s{sO1}, s{sO1}, s85",
            f"s_add_u32 s{sWR}, s{sWR}, {STG}", f"s_cmp_eq_u32 s{sWR}, {4*STG}", f"s_cselect_b32 s{sWR}, 0, s{sWR}"]
def emit_dma_block(A, groups):
    for g in groups:
        for x in g: A(x)
        if "m0" in g[0].split(",")[0]: A("s_nop 0")

NW = 5
vXB, vCUR = 26, 6
vXB = 208
vCUR = 215
def qkv_reads(kk, fs):
    def wr(t):
        return [f"ds_read_b64_tr_b16 {ar(fs+16+4*t+2*j,2)}, v{vCUR+2+t} offset:{kk*10240 + j*1280}" for j in range(2)]
    L = wr(0)
    for st in range(4):
        L.append(f"ds_read_b128 {ar(fs+4*st,4)}, v{vCUR+kk} offset:{st*2048}")
    for t in range(1, 5): L += wr(t)
    return L
def qkv_mfmas(fs, isq):
    L = []
    for t in range(5):
        for st in range(4):
            x = ar(fs + 4*st, 4); w = ar(fs + 16 + 4*t, 4); c = vr(ACC + (st*5+t)*4, 4)
            L.append(f"v_mfma_f32_16x16x32_bf16 {c}, {w}, {x}, {c}" if isq else f"v_mfma_f32_16x16x32_bf16 {c}, {x}, {w}, {c}")
    return L

def qkv_gemm(A, pfx, isq, mid_setup, extras, pre9):
    emit_dma_block(A, qkv_dma())
    for x in qkv_adv(): A(x)
    stamp(A, pfx + "_iss0")
    mid_setup(A)
    A("v_and_b32 v2, 15, v1")
    A("v_lshrrev_b32 v3, 4, v1")
    A("v_lshrrev_b32 v4, 1, v2")
    A("v_xor_b32 v4, v4, v3")
    A("v_lshlrev_b32 v4, 4, v4")
    A("v_lshl_add_u32 v4, v2, 7, v4")
    A(f"s_lshl_b32 s85, s{sWR_}, 13")
    A(f"v_add_u32 v{vXB}, s85, v4")
    A(f"v_xor_b32 v{vXB+1}, 64, v{vXB}")
    A("v_lshrrev_b32 v4, 2, v2")
    A("v_lshl_add_u32 v4, v3, 3, v4")
    A("v_mul_u32_u24 v4, 320, v4")
    A("v_and_b32 v5, 1, v1")
    A("v_lshl_add_u32 v4, v5, 3, v4")
    A("v_add_u32 v4, 16384, v4")
    A("v_bfe_u32 v5, v1, 1, 1")
    A("v_and_b32 v6, 1, v3")
    A("v_lshlrev_b32 v6, 1, v6")
    A(f"s_mul_i32 s85, s{sWC_}, {10 if isq else 5}")
    for t in range(5):
        if isq: c0, step = 2*t, 1
        else: c0, step = [(0, 1), (2, 1), (4, 6), (11, 1), (13, 1)][t]
        A(f"s_add_u32 s86, s85, {c0}")
        if step == 1: A("v_add_u32 v7, s86, v5")
        else: A(f"v_mad_u32_u24 v7, v5, {step}, s86")
        A("v_xor_b32 v7, v7, v6")
        A(f"v_lshl_add_u32 v{vXB+2+t}, v7, 4, v4")
    zero_acc(A)
    A(f"s_mov_b32 s{sRD}, {2*STG}")
    A(f"s_mov_b32 s{sCNT}, 0")
    upd = [f"v_add_u32 v{vCUR+i}, s{sRD}, v{vXB+i}" for i in range(7)]
    rdadv = [f"s_add_u32 s{sRD}, s{sRD}, {STG}", f"s_cmp_eq_u32 s{sRD}, {4*STG}", f"s_cselect_b32 s{sRD}, 0, s{sRD}"]
    def top_half(wait, groups, pre=None):
        A(f"s_waitcnt vmcnt({wait}) lgkmcnt(0)")
        if pre: pre(A)
        A("s_barrier")
        rd = qkv_reads(0, FA_)
        fill = [rd[2*i:2*i+2] for i in range(7)] + list(groups[:13])
        weave(A, qkv_mfmas(FB_, isq), fill)
        return groups[13:]
    def bot_half(adv, tail, groups=[]):
        A("s_waitcnt lgkmcnt(0)")
        rd = qkv_reads(1, FB_)
        sal = rdadv + (qkv_adv() if adv else [])
        fill = [rd[2*i:2*i+2] for i in range(7)]
        rest = sal[:3] + upd + sal[3:] + tail
        fill += [rest[2*i:2*i+2] for i in range((len(rest)+1)//2)] + list(groups)
        weave(A, qkv_mfmas(FA_, isq), fill)
    for x in upd: A(x)
    stamp(A, pfx + "_setup")
    emit_dma_block(A, qkv_dma())
    for x in qkv_adv(): A(x)
    stamp(A, pfx + "_issued")
    A("s_waitcnt vmcnt(9)")
    A("s_barrier")
    stamp(A, pfx + "_first")
    for x in qkv_reads(0, FA_): A(x)
    emit_dma_block(A, qkv_dma())
    A(f"s_branch {pfx}_mid")
    A(".p2align 3")
    A.label(f"{pfx}_loop")
    top_half(9, qkv_dma())
    A.label(f"{pfx}_mid")
    bot_half(True, [f"s_add_u32 s{sCNT}, s{sCNT}, 1", f"s_cmp_lt_u32 s{sCNT}, 8"])
    A(f"s_cbranch_scc1 {pfx}_loop")
    for it in (8, 9):
        g, w = extras.get(it, ([], 9 if it == 8 else 0))
        rest = top_half(w, g, pre9 if it == 9 else None)
        bot_half(False, [], rest)
    stamp(A, pfx + "_loop9")
    A("s_waitcnt lgkmcnt(0)")
    for m in qkv_mfmas(FB_, isq): A(m)
    A("s_nop 7")
    stamp(A, pfx + "_loopdone")

PAIRS = [(2,0),(3,0),(2,1),(3,1),(4,1),(3,2),(4,2)]
def kv_mask(i):
    te, tc = PAIRS[i]; m = 0
    for l in range(64):
        c = 16*tc + l % 16; e = [-8, 8, 24][te-2] + 4*(l//16)
        if c < 40 and e >= 0 and c//20 == e//20: m |= 1 << l
    return m

def phi4(A, b, T, dst=None):
    dst = b if dst is None else dst
    A(f"v_pk_mul_f32 {vr(T,2)}, {vr(b,2)}, s[{sL2}:{sL2+1}]")
    A(f"v_pk_mul_f32 {vr(T+2,2)}, {vr(b+2,2)}, s[{sL2}:{sL2+1}]")
    for i in range(4): A(f"v_exp_f32 v{T+i}, v{T+i} clamp")
    for i in range(4): A(f"v_max_f32 v{dst+i}, {EPS6:#x}, v{b+i}")
    A(f"v_pk_add_f32 {vr(dst,2)}, {vr(dst,2)}, {vr(T,2)}")
    A(f"v_pk_add_f32 {vr(dst+2,2)}, {vr(dst+2,2)}, {vr(T+2,2)}")
sL2 = 88
def kv_epilogue(A, side):
    PB, KA, ONE, TMP = 128, 168, 208, 212
    side = list(side)
    def sd(n=1):
        for _ in range(n):
            if side:
                for x in side.pop(0): A(x)
    A("v_and_b32 v2, 15, v1")
    A(f"v_cmp_gt_u32 s[{sMK}:{sMK+1}], 8, v2")
    A(f"s_mov_b32 s{sL2}, {LOG2E:#x}")
    A(f"s_mov_b32 s{sL2+1}, {LOG2E:#x}")
    for i in range(4): A(f"v_mov_b32 v{ONE+i}, 0x3f803f80")
    for st in range(4):
        for t in range(3):
            b = ACC + (st*5+t)*4
            sd()
            if t < 2: phi4(A, b, TMP)
            else:
                phi4(A, b, TMP, TMP+4)
                for i in range(4): A(f"v_cndmask_b32 v{b+i}, v{b+i}, v{TMP+4+i}, s[{sMK}:{sMK+1}]")
        sd()
        for t in range(5):
            b = ACC + (st*5+t)*4
            d = PB + (t*2 + st//2)*4 + (st & 1)*2
            A(f"v_cvt_pk_bf16_f32 v{d}, v{b}, v{b+1}")
            A(f"v_cvt_pk_bf16_f32 v{d+1}, v{b+2}, v{b+3}")
        sd()
        if st & 1:
            sp = st // 2
            A("s_nop 1")
            for i, (te, tc) in enumerate(PAIRS):
                c = vr(KA+4*i, 4)
                A(f"v_mfma_f32_16x16x32_bf16 {c}, {vr(PB+(te*2+sp)*4,4)}, {vr(PB+(tc*2+sp)*4,4)}, {c if sp else 0}")
            for tc in range(3):
                c = vr(KA+4*(7+tc), 4)
                A(f"v_mfma_f32_16x16x32_bf16 {c}, {vr(ONE,4)}, {vr(PB+(tc*2+sp)*4,4)}, {c if sp else 0}")
    assert not side
    A("s_waitcnt vmcnt(10)")
    A(f"s_mul_i32 s85, s{sWC_}, 10240")
    A(f"s_add_u32 s85, s85, {LDS_RED}")
    A(f"v_add_u32 v3, s85, v{vB0}")
    A(f"s_cmp_eq_u32 s{sWR_}, 0")
    A("s_cbranch_scc1 kv_e1")
    A("s_nop 4")
    for i in range(10):
        if i < 7: A(f"ds_write_b128 v3, {vr(KA+4*i,4)} offset:{1024*i}")
        else: A(f"ds_write_b32 v3, v{KA+4*i} offset:{1024*i}")
    A("s_waitcnt lgkmcnt(0)")
    A("s_barrier")
    zero_acc(A)
    A("s_branch kv_e2")
    A.label("kv_e1")
    zero_acc(A)
    A("s_barrier")
    for i in range(10):
        if i < 7: A(f"ds_read_b128 {vr(PB+4*i,4)}, v3 offset:{1024*i}")
        else: A(f"ds_read_b32 v{PB+4*i}, v3 offset:{1024*i}")
    A(f"s_lshl_b32 s85, s{sBp}, 1")
    A(f"s_add_u32 s85, s85, s{sWC_}")
    A("s_lshl_b32 s86, s85, 4")
    A(f"s_add_u32 s86, s86, s{sA}")
    A("s_mul_i32 s86, s86, 7168")
    A(f"s_add_u32 s86, s86, {WS_KVP:#x}")
    A("s_add_u32 s87, s86, 4096")
    A("s_mul_i32 s85, s85, 160")
    A(f"s_mul_i32 s88, s{sA}, 2560")
    A("s_add_u32 s85, s85, s88")
    A(f"s_add_u32 s85, s85, {WS_ZP:#x}")
    A("v_lshlrev_b32 v4, 2, v1")
    for i in range(10):
        A(f"s_waitcnt lgkmcnt({9-i})")
        for k in range(4 if i < 7 else 1):
            A(f"v_add_f32 v{KA+4*i+k}, v{KA+4*i+k}, v{PB+4*i+k}")
        if i < 7:
            m = kv_mask(i)
            A(f"s_mov_b32 exec_lo, {m & 0xffffffff:#x}")
            A(f"s_mov_b32 exec_hi, {m >> 32:#x}")
            A(f"buffer_store_dwordx4 {vr(KA+4*i,4)}, v{vB0}, s[{sWS}:{sWS+3}], s{86 if i < 4 else 87} offen offset:{1024*(i&3)} sc1")
            A("s_mov_b64 exec, -1")
    A("s_mov_b64 exec, 0xffff")
    A(f"buffer_store_dword v{KA+28}, v4, s[{sWS}:{sWS+3}], s85 offen sc1")
    A(f"buffer_store_dword v{KA+32}, v4, s[{sWS}:{sWS+3}], s85 offen offset:64 sc1")
    A("s_mov_b64 exec, 0xff")
    A(f"buffer_store_dword v{KA+36}, v4, s[{sWS}:{sWS+3}], s85 offen offset:128 sc1")
    A("s_mov_b64 exec, -1")
    A.label("kv_e2")

def w2_prefetch(A, locbase, parts):
    A(f"s_sub_u32 s85, s82, {locbase}")
    A("s_lshl_b32 s85, s85, 2")
    A(f"s_add_u32 s85, s85, s{sWAVE}")
    A("v_lshrrev_b32 v2, 3, v1")
    A("v_lshlrev_b32 v2, 12, v2")
    A("v_and_b32 v3, 7, v1")
    A("v_lshl_add_u32 v2, v3, 7, v2")
    A("s_mul_i32 s85, s85, 24")
    A("s_mul_i32 s86, s84, 768")
    A("s_add_u32 s85, s85, s86")
    A(f"s_add_u32 s85, s85, {8*parts[0]}")
    A("s_lshl_b32 s85, s85, 12")
    A("s_lshl_b32 s86, s83, 10")
    A("s_add_u32 s85, s85, s86")
    for i in parts:
        A(f"buffer_load_dword a255, v2, s[{sW2}:{sW2+3}], s85 offen")
        if i != parts[-1]: A(f"s_add_u32 s85, s85, {8*4096}")

def q_epilogue(A):
    PK, Z, AF, MSK, ZP, G = 128, 168, 168, 194, 16, 8
    KA_, DEN, OUT, TMP = 48, 208, 228, 112
    WBa, KVa, KBa = 0, 20, 40
    sMA, sMB, sIB = 26, 92, 23
    A(f"s_mul_i32 s85, s{sU}, {40*1280}")
    A(f"s_mul_i32 s86, s{sNR}, 320")
    A("s_add_u32 s85, s85, s86")
    A(f"s_lshl_b32 s86, s{sWAVE}, 8")
    A(f"s_lshl_b32 m0, s{sWAVE}, 12")
    for n in range(4):
        A(f"v_add_u32 v2, {64*n}, v1")
        A("v_add_u32 v2, s86, v2")
        A("v_mul_u32_u24 v3, 3277, v2")
        A("v_lshrrev_b32 v3, 16, v3")
        A("v_mul_u32_u24 v4, 20, v3")
        A("v_sub_u32 v4, v2, v4")
        A("v_mul_u32_u24 v3, 1280, v3")
        A("v_lshl_add_u32 v3, v4, 4, v3")
        if n: A(f"v_subrev_u32 v3, {1024*n}, v3")
        A(f"buffer_load_dwordx4 v3, s[{sWO}:{sWO+3}], s85 offen offset:{1024*n} lds")
    A(poll_ld(vPO, 24))
    npf = 0
    if OPT["pf_w2"]:
        w2_prefetch(A, 16, [2]); npf = 1
    A(f"s_mov_b32 s{sL2}, {LOG2E:#x}")
    A(f"s_mov_b32 s{sL2+1}, {LOG2E:#x}")
    for k, b in enumerate(range(ACC, ACC+80, 4)):
        phi4(A, b, DEN)
        A(f"v_cvt_pk_bf16_f32 v{PK+2*k}, v{b}, v{b+1}")
        A(f"v_cvt_pk_bf16_f32 v{PK+2*k+1}, v{b+2}, v{b+3}")
    A(f"s_waitcnt vmcnt({npf})")
    poll_check(A, "pln3", vPO, 24)
    A("s_barrier")
    A("v_and_b32 v3, 15, v1")
    A("v_lshrrev_b32 v4, 4, v1")
    A("v_lshlrev_b32 v6, 2, v3")
    A(f"s_lshl_b32 s86, s{sA}, 9")
    A(f"s_lshl_b32 s87, s{sWR_}, 8")
    A("s_add_u32 s86, s86, s87")
    A(f"s_add_u32 s86, s86, {WS_G:#x}")
    for st in range(4):
        A(f"buffer_load_dword v{G+st}, v6, s[{sWS}:{sWS+3}], s86 offen offset:{64*st} sc1")
    poll_off(A, 12, 32)
    A(f"s_mov_b32 s24, {FL_KV:#x}")
    A(poll_ld(12, 24))
    A("v_lshrrev_b32 v5, 2, v3")
    A("v_lshl_add_u32 v5, v4, 2, v5")
    A("v_and_b32 v6, 7, v5")
    A("v_mul_u32_u24 v6, 320, v6")
    A("v_mul_u32_u24 v5, 320, v5")
    A("v_and_b32 v7, 3, v1")
    A("v_lshlrev_b32 v7, 3, v7")
    A(f"s_lshl_b32 s86, s{sWAVE}, 5")
    A("v_add_u32 v7, s86, v7")
    A("v_add_u32 v6, v6, v7")
    A("v_add_u32 v5, v5, v7")
    for i in range(3):
        A(f"ds_read_b64_tr_b16 {ar(WBa+6*i,2)}, v6 offset:{128*i}")
        A(f"ds_read_b64_tr_b16 {ar(WBa+6*i+2,2)}, v5 offset:{128*i + 8*320}")
        A(f"ds_read_b64_tr_b16 {ar(WBa+6*i+4,2)}, v5 offset:{128*i + 24*320}")
    A(f"s_mul_i32 s86, s{sU}, 10")
    T = DEN
    for tc in range(3):
        d = 26 + tc
        A(f"v_add_u32 v5, s86, v4")
        if tc: A(f"v_add_u32 v5, {4*tc}, v5")
        A("v_and_b32 v6, 3, v5")
        A("v_lshrrev_b32 v5, 2, v5")
        A(f"v_lshlrev_b32 v{d}, 8, v6")
        A(f"v_lshl_add_u32 v{d}, v3, 4, v{d}")
        A("v_mul_u32_u24 v6, 205, v5")
        A("v_lshrrev_b32 v6, 10, v6")
        A(f"v_mul_u32_u24 v{T}, 5, v6")
        A(f"v_sub_u32 v5, v5, v{T}")
        A(f"v_and_b32 v{T}, 1, v6")
        A("v_lshrrev_b32 v6, 1, v6")
        A("v_mul_u32_u24 v6, 5, v6")
        A(f"v_mul_u32_u24 v{T+1}, 3, v{T}")
        A(f"v_lshrrev_b32 v{T+2}, 1, v5")
        A(f"v_add_u32 v{T+1}, v{T+1}, v{T+2}")
        A(f"v_and_b32 v{T+2}, 1, v5")
        A("v_cmp_eq_u32 vcc, 4, v5")
        A("s_nop 1")
        A(f"v_cndmask_b32 v{T+1}, v{T+1}, 2, vcc")
        A(f"v_cndmask_b32 v{T+2}, v{T+2}, v{T}, vcc")
        A(f"v_add_u32 v6, v6, v{T+1}")
        A("v_mul_u32_u24 v6, 40960, v6")
        A(f"v_add_u32 v{d}, v{d}, v6")
        A(f"v_lshl_add_u32 v{d}, v{T+2}, 3, v{d}")
    A(f"s_add_u32 s{sIB}, s{sWAVE}, 4")
    A(f"s_min_u32 s{sIB}, s{sIB}, 6")
    for sm, lo in ((sMA, 0), (sMB, 4)):
        for half in range(2):
            vals = [(kv_mask(min(lo + w, 6)) >> (32*half)) & 0xffffffff for w in range(4)]
            A(f"s_mov_b32 s{sm+half}, {vals[0]:#x}")
            for w in range(1, 4):
                A(f"s_cmp_eq_u32 s{sWAVE}, {w}")
                A(f"s_cselect_b32 s{sm+half}, {vals[w]:#x}, s{sm+half}")
    for t in range(5):
        A(f"v_lshl_add_u32 v{T+t}, v4, 2, {16*t}")
        A(f"v_mul_u32_u24 v{T+t}, 205, v{T+t}")
        A(f"v_lshrrev_b32 v{T+t}, 12, v{T+t}")
        A(f"v_add_u32 v{T+5+t}, {16*t}, v3")
        A(f"v_mul_u32_u24 v{T+5+t}, 205, v{T+5+t}")
        A(f"v_lshrrev_b32 v{T+5+t}, 12, v{T+5+t}")
    dp = [(tp, t) for tp in range(5) for t in range(5) if abs(tp - t) <= 1]
    for k, (tp, t) in enumerate(dp):
        A(f"v_cmp_eq_u32 vcc, v{T+t}, v{T+5+tp}")
        A("s_nop 1")
        A(f"v_cndmask_b32 v{MSK+k}, 0, -1, vcc")
    A("v_mul_u32_u24 v5, 2560, v3")
    A("v_lshl_add_u32 v5, v4, 4, v5")
    A(f"s_mul_i32 s86, s{sBp}, 640")
    A(f"s_mul_i32 s87, s{sWC_}, 320")
    A("s_add_u32 s86, s86, s87")
    A(f"s_add_u32 s86, s86, {WS_ZP:#x}")
    A(f"s_mul_i32 s89, s{sU}, {16*7168}")
    A(f"s_add_u32 s89, s89, {WS_KVP:#x}")
    A(f"s_lshl_b32 s87, s{sWAVE}, 10")
    A("s_add_u32 s87, s87, s89")
    A(f"s_lshl_b32 s88, s{sIB}, 10")
    A("s_add_u32 s88, s88, s89")
    stamp(A, "q_pre")
    A("s_waitcnt vmcnt(0) lgkmcnt(0)")
    poll_check(A, "pkv", 12, 24)
    A("s_barrier")
    stamp(A, "q_kvok")
    for t in range(5):
        A(f"buffer_load_dwordx4 {vr(Z+4*t,4)}, v5, s[{sWS}:{sWS+3}], s86 offen offset:{64*t} sc1")
    kvl = []
    for sm, so, dst in ((sMA, 24, lambda rb: vr(KA_+4*rb, 4)), (sMB, 25, lambda rb: ar(KBa+4*rb, 4))):
        for rb in range(0, 16, 2):
            kvl.append([f"s_mov_b64 exec, s[{sm}:{sm+1}]",
                        f"buffer_load_dwordx4 {dst(rb)}, v{vB0}, s[{sWS}:{sWS+3}], s{so} offen sc1",
                        f"buffer_load_dwordx4 {dst(rb+1)}, v29, s[{sWS}:{sWS+3}], s{so} offen sc1",
                        "s_mov_b64 exec, -1", f"s_add_u32 s{so}, s{so}, 14336"])
    def kv(n):
        for _ in range(n):
            if kvl:
                for x in kvl.pop(0): A(x)
    A("s_mov_b32 s24, s87")
    A("s_mov_b32 s25, s88")
    A(f"v_add_u32 v29, 7168, v{vB0}")
    kv(2)
    A(f"s_lshl_b32 s85, s{sA}, 1")
    A(f"s_add_u32 s85, s85, s{sWR_}")
    A("s_mul_i32 s85, s85, 20")
    A(f"s_mul_i32 s86, s{sBp}, 5")
    A("s_add_u32 s85, s85, s86")
    A("s_lshl_b32 s85, s85, 12")
    A(f"s_add_u32 s85, s85, {WS_PQ:#x}")
    A(f"s_mul_i32 s86, s{sWC_}, {3*4096}")
    A("s_add_u32 s86, s86, s85")
    A("s_add_u32 s87, s86, 4096")
    A(f"s_lshl_b32 s88, s{sWC_}, 3")
    A("s_add_u32 s88, s88, s85")
    A("s_add_u32 s88, s88, 8192")
    A("s_waitcnt vmcnt(4)")
    stamp(A, "q_z")
    for rot in (8, 4, 2, 1):
        kv(1)
        for i in range(20):
            A(f"v_add_f32_dpp v{Z+i}, v{Z+i}, v{Z+i} row_ror:{rot} row_mask:0xf bank_mask:0xf")
    for i in range(10): A(f"v_cvt_pk_bf16_f32 v{ZP+i}, v{Z+2*i}, v{Z+2*i+1}")
    kv(2)
    for k, (tp, t) in enumerate(dp):
        A(f"v_and_b32 v{AF+2*k}, v{MSK+k}, v{ZP+2*t}")
        A(f"v_and_b32 v{AF+2*k+1}, v{MSK+k}, v{ZP+2*t+1}")
    A("s_nop 0")
    def den(st):
        seen = set()
        for k, (tp, t) in enumerate(dp):
            c = vr(DEN + 4*tp, 4)
            A(f"v_mfma_f32_16x16x16_bf16 {c}, {vr(AF+2*k,2)}, {vr(PK+(st*5+t)*2,2)}, {c if tp in seen else 0}")
            seen.add(tp)
    for st in range(4):
        den(st)
        o = OUT + 10*(st & 1)
        U = TMP + 6
        if kvl: kv(2)
        else: A("s_nop 7")
        for tp in range(5): A(f"v_add_f32 v{TMP+tp}, {EPS6:#x}, v{DEN+4*tp}")
        for tp in range(5): A(f"v_rcp_f32 v{TMP+tp}, v{TMP+tp}")
        A("s_nop 0")
        for tp in range(5): A(f"v_mul_f32 v{TMP+tp}, v{TMP+tp}, v{G+st}")
        for tp in range(5):
            p = PK + (st*5+tp)*2
            if tp == 2: kv(2)
            A(f"v_lshlrev_b32 v{U}, 16, v{p}")
            A(f"v_and_b32 v{U+1}, 0xffff0000, v{p}")
            A(f"v_lshlrev_b32 v{U+2}, 16, v{p+1}")
            A(f"v_and_b32 v{U+3}, 0xffff0000, v{p+1}")
            for i in range(4): A(f"v_mul_f32 v{U+i}, v{U+i}, v{TMP+tp}")
            A(f"v_cvt_pk_bf16_f32 v{o+2*tp}, v{U}, v{U+1}")
            A(f"v_cvt_pk_bf16_f32 v{o+2*tp+1}, v{U+2}, v{U+3}")
        A(f"buffer_store_dwordx4 {vr(o,4)}, v{vB0}, s[{sWS}:{sWS+3}], s86 offen offset:{1024*st} sc1")
        A(f"buffer_store_dwordx4 {vr(o+4,4)}, v{vB0}, s[{sWS}:{sWS+3}], s87 offen offset:{1024*st} sc1")
        A(f"buffer_store_dwordx2 {vr(o+8,2)}, v{vB0}, s[{sWS}:{sWS+3}], s88 offen offset:{1024*st} sc1")
    assert not kvl
    stamp(A, "q_pq")
    A(f"s_mov_b32 s25, {FL_Q:#x}")
    A("s_waitcnt vmcnt(9)")
    KB = 128
    for i in range(64): A(f"v_accvgpr_read_b32 v{KB+i}, a{KBa+i}")
    for w in (32, 16, 8, 4):
        for base in (KA_, KB):
            for i in range(0, w, 2):
                A(f"v_pk_add_f32 {vr(base+i,2)}, {vr(base+i,2)}, {vr(base+w+i,2)}")
    A("v_lshlrev_b32 v7, 3, v1")
    A(f"v_add_u32 v7, {LDS_RED}, v7")
    for base, sm, sidx in ((KA_, sMA, sWAVE), (KB, sMB, sIB)):
        for i in range(4): A(f"v_cndmask_b32 v{base+i}, 0, v{base+i}, s[{sm}:{sm+1}]")
        A(f"v_cvt_pk_bf16_f32 v{base}, v{base}, v{base+1}")
        A(f"v_cvt_pk_bf16_f32 v{base+1}, v{base+2}, v{base+3}")
        A(f"s_lshl_b32 s86, s{sidx}, 9")
        A("v_add_u32 v6, s86, v7")
        A(f"ds_write_b64 v6, {vr(base,2)}")
    A(f"s_mul_i32 s86, s{sNR}, 10240")
    A(f"s_lshl_b32 s87, s{sWAVE}, 10")
    A("s_add_u32 s86, s86, s87")
    A(f"s_add_u32 s86, s86, {WS_M:#x}")
    A("s_waitcnt lgkmcnt(0)")
    A("s_barrier")
    for i in range(7): A(f"ds_read_b64 {ar(KVa+2*i,2)}, v7 offset:{512*i}")
    A("s_waitcnt lgkmcnt(0)")
    MD = 64
    for i in range(3):
        seen = set()
        for k, (te, tc) in enumerate(PAIRS):
            c = vr(MD + (i*3+tc)*4, 4)
            A(f"v_mfma_f32_16x16x16_bf16 {c}, {ar(KVa+2*k,2)}, {ar(WBa+6*i+2*(te-2),2)}, {c if tc in seen else 0}")
            seen.add(tc)
    for i in range(3):
        if i == 2:
            A(f"s_cmp_ge_u32 s{sWAVE}, 2")
            A("s_cbranch_scc1 q_m_done")
            A("s_nop 2")
        for tc in range(3):
            b = MD + (i*3+tc)*4
            A(f"v_cvt_pk_bf16_f32 v{b}, v{b}, v{b+1}")
            A(f"v_cvt_pk_bf16_f32 v{b+1}, v{b+2}, v{b+3}")
            if tc == 2: A("s_mov_b32 exec_hi, 0")
            A(f"buffer_store_dwordx2 {vr(b,2)}, v{26+tc}, s[{sWS}:{sWS+3}], s86 offen sc1")
            if tc == 2: A("s_mov_b32 exec_hi, -1")
        A("s_add_u32 s86, s86, 4096")
    A.label("q_m_done")
    stamp(A, "q_mdone")

def ln_role(A, after_loads, ne):
    X, GW, D = 48, 88, 128
    A("v_lshrrev_b32 v2, 3, v1")
    A(f"s_lshl_b32 s85, s{sWAVE}, 3")
    A("v_add_u32 v2, s85, v2")
    A("v_and_b32 v3, 7, v1")
    A("v_lshlrev_b32 v3, 4, v3")
    A("v_mul_u32_u24 v4, 1280, v2")
    A("v_add_u32 v4, v4, v3")
    A(f"s_mul_i32 s85, s{sA}, {32*1280}")
    A("s_waitcnt lgkmcnt(0)"); srds(A, ["X", "GW"])
    for i in range(10):
        A(f"buffer_load_dwordx4 {vr(X+4*i,4)}, v4, s[{sX}:{sX+3}], s85 offen offset:{128*i}")
    for i in range(10):
        A(f"buffer_load_dwordx4 {vr(GW+4*i,4)}, v3, s[{sGW}:{sGW+3}], 0 offen offset:{128*i}")
    A("v_mul_u32_u24 v16, 1312, v2")
    A("v_add_u32 v16, v16, v3")
    A("v_lshlrev_b32 v17, 2, v2")
    A("v_cmp_eq_u32 s[92:93], 0, v3")
    after_loads(A)
    A("v_mov_b32 v5, 0x3f803f80")
    for i in range(4): A(f"v_mov_b32 v{8+i}, 0")
    A(f"s_waitcnt vmcnt({10+ne})")
    stamp(A, "ln_first")
    for i in range(40):
        A(f"v_dot2_f32_bf16 v{8+(i&1)}, v{X+i}, v5, v{8+(i&1)}")
    A(f"s_waitcnt vmcnt({ne})")
    for i in range(40):
        A(f"v_dot2_f32_bf16 v{10+(i&1)}, v{X+i}, v{GW+i}, v{10+(i&1)}")
    A("s_nop 2")
    A("v_add_f32 v8, v8, v9")
    A("v_add_f32 v10, v10, v11")
    def red8(r):
        for m in ("quad_perm:[1,0,3,2]", "quad_perm:[2,3,0,1]", "row_half_mirror"):
            A("s_nop 1")
            for x in r: A(f"v_add_f32_dpp v{x}, v{x}, v{x} {m} row_mask:0xf bank_mask:0xf")
    red8([8, 10])
    A(f"v_mul_f32 v8, {0xBACCCCCD:#x}, v8")
    A("v_mov_b32 v9, v8")
    A(f"v_mul_f32 v10, {LOG2E | 0x80000000:#x}, v10")
    A("v_exp_f32 v10, v10")
    for i in range(40):
        A(f"v_lshlrev_b32 v{D+2*i}, 16, v{X+i}")
        A(f"v_and_b32 v{D+2*i+1}, 0xffff0000, v{X+i}")
    A("v_add_f32 v10, 1.0, v10")
    A("v_rcp_f32 v10, v10")
    for i in range(40):
        A(f"v_pk_add_f32 {vr(D+2*i,2)}, {vr(D+2*i,2)}, v[8:9]")
    A("v_pk_mul_f32 v[18:19], v[128:129], v[128:129]")
    A("v_pk_mul_f32 v[20:21], v[130:131], v[130:131]")
    for i in range(2, 40):
        a = 18 + 2*(i & 1)
        A(f"v_pk_fma_f32 {vr(a,2)}, {vr(D+2*i,2)}, {vr(D+2*i,2)}, {vr(a,2)}")
    A("v_pk_add_f32 v[18:19], v[18:19], v[20:21]")
    A(f"s_lshl_b32 s85, s{sA}, 7")
    A(f"s_add_u32 s85, s85, {WS_G:#x}")
    A("s_mov_b64 exec, s[92:93]")
    A(f"buffer_store_dword v10, v17, s[{sWS}:{sWS+3}], s85 offen sc1")
    A("s_mov_b64 exec, -1")
    A("v_add_f32 v18, v18, v19")
    red8([18])
    A(f"v_mov_b32 v19, {0x3727C5AC:#x}")
    A(f"v_fmac_f32 v19, {0x3ACCCCCD:#x}, v18")
    A("v_rsq_f32 v18, v19")
    A("s_nop 0")
    A("v_mov_b32 v19, v18")
    for i in range(40):
        A(f"v_pk_mul_f32 {vr(D+2*i,2)}, {vr(D+2*i,2)}, v[18:19]")
        A(f"v_cvt_pk_bf16_f32 v{X+i}, v{D+2*i}, v{D+2*i+1}")
        if (i & 3) == 3:
            A(f"ds_write_b128 v16, {vr(X+i-3,4)} offset:{128*(i//4)}")
    A("v_lshrrev_b32 v2, 2, v1")
    A("v_mul_u32_u24 v2, 1312, v2")
    A("v_and_b32 v3, 3, v1")
    A("v_lshl_add_u32 v2, v3, 3, v2")
    A(f"s_mul_i32 s85, s{sWAVE}, 320")
    A("v_add_u32 v2, s85, v2")
    A(f"s_mul_i32 s85, s{sA}, 40960")
    A(f"s_mul_i32 s86, s{sWAVE}, 10240")
    A("s_add_u32 s85, s85, s86")
    A("s_add_u32 s86, s85, 4096")
    A("s_add_u32 s87, s85, 8192")
    A("s_waitcnt lgkmcnt(0)")
    A("s_barrier")
    for t in range(10):
        A(f"ds_read_b64_tr_b16 {vr(D+4*t,2)}, v2 offset:{32*t}")
        A(f"ds_read_b64_tr_b16 {vr(D+4*t+2,2)}, v2 offset:{32*t + 16*1312}")
        if t == 6: A("s_waitcnt lgkmcnt(6)")
    for t in range(10):
        A(f"s_waitcnt lgkmcnt({min(2*(9-t), 6)})")
        A(f"buffer_store_dwordx4 {vr(D+4*t,4)}, v{vB0}, s[{sWS}:{sWS+3}], s{85 + t//4} offen offset:{1024*(t&3)} sc1")

def c_adv1(): return [f"s_add_u32 s{sC1}, s{sC1}, s{sCST}", f"s_cmp_eq_u32 s{sC1}, s{sCE1}", f"s_cselect_b32 s{sC1}, s{sCB1}, s{sC1}"]
def c_adv2(): return [f"s_add_u32 s{sC2}, s{sC2}, 40960", f"s_cmp_eq_u32 s{sC2}, s{sCE2}", f"s_cselect_b32 s{sC2}, s{sCB2}, s{sC2}"]
def c_wdma(slot):
    L = [[f"s_add_u32 m0, s{sCM0}, {4096*slot}"]]
    for q in range(4):
        L.append([f"buffer_load_dwordx4 v{vWS_+q}, s[{sCW}:{sCW+3}], s{sC1} offen offset:{1024*q} lds"])
    return L
def c_bload(slot, n):
    return f"buffer_load_dwordx4 {ar(BR+20*slot+4*n,4)}, v{vB0 if n < 4 else vB1}, s[{sWS}:{sWS+3}], s{sC2} offen offset:{1024*(n&3)} sc1"
def c_tr(slot, aset):
    return [f"ds_read_b64_tr_b16 {ar(AS+16*aset+4*t+2*j,2)}, v{vTR+t} offset:{4096*slot+2048*j}" for t in range(4) for j in range(2)]
def c_wring(A):
    for s in range(4):
        emit_dma_block(A, c_wdma(s))
        for x in c_adv1(): A(x)
def c_bring(A):
    for s in range(4):
        for n in range(5): A(c_bload(s, n))
        for x in c_adv2(): A(x)
def switch_to_fb(A):
    A(f"s_mov_b64 s[{sCW}:{sCW+1}], s[{sW2}:{sW2+1}]")
    A(f"s_mov_b64 s[{sCW+2}:{sCW+3}], s[{sW2+2}:{sW2+3}]")
    for i in range(4): A(f"v_mov_b32 v{vWS_+i}, v{vWS2+i}")
    A(f"s_mov_b32 s{sC1}, s{sF1}")
    A(f"s_mov_b32 s{sCB1}, s{sFB1}")
    A(f"s_mov_b32 s{sCE1}, s{sFE1}")
    A(f"s_mov_b32 s{sCST}, {32*4096}")

def c_loop(A, pfx, nks, acc, w_is_A, tail_next, drain):
    def step(u, wait, doW, doB, doT, extra=[], last=False):
        A(f"s_waitcnt vmcnt({wait}) lgkmcnt(0)")
        tr = c_tr((u+1) & 3, (u+1) & 1) if doT else []
        mf = []
        for n in range(5):
            for t in range(4):
                w = ar(AS+16*(u & 1)+4*t, 4); b = ar(BR+20*u+4*n, 4); c = vr(acc+(t*5+n)*4, 4)
                mf.append(f"v_mfma_f32_16x16x32_bf16 {c}, {w}, {b}, {c}" if w_is_A else f"v_mfma_f32_16x16x32_bf16 {c}, {b}, {w}, {c}")
        fill = [[] for _ in range(20)]
        wd = c_wdma(u)
        post = []
        if OPT.get("cv", 1) == 1 and not last:
            for k, x in enumerate(tr): fill[k].append(x)
            if doW:
                fill[8] += wd[0]
                fill[19] += flat(wd[1:])
                post = c_adv1()
            if doB:
                fill[19] += [c_bload(u, n) for n in range(5)]
                post += c_adv2()
        else:
            if doW:
                A(wd[0][0])
                for t in range(4): fill[t] += wd[1+t]
                if not last: fill[12] += c_adv1()
            for k, x in enumerate(tr): fill[4+k].append(x)
            if doB:
                for n in range(5): fill[4*n+3].append(c_bload(u, n))
                fill[19] += c_adv2()
            if last and doW: fill[5] += c_adv1()
        if last:
            for n in range(3):
                for t in range(4): fill[4*(n+2)+t] += drain(n, t)
            post += ["s_nop 3"] + flat([drain(3, t) for t in range(4)]) + flat([drain(4, t) for t in range(4)])
        weave(A, mf, fill)
        for x in post + extra: A(x)
    for x in c_tr(0, 0): A(x)
    A(f"s_mov_b32 s{sCNT}, {nks//4 - 1}")
    A(".p2align 3")
    A.label(f"{pfx}_loop")
    for u in range(4):
        if tail_next and u == 1:
            A(f"s_cmp_eq_u32 s{sPUB}, 0")
            A("s_cbranch_scc1 g1_nopub")
            A("s_waitcnt vmcnt(9)")
            A("s_barrier")
            A(f"s_cmp_lg_u32 s{sWAVE}, 0")
            A("s_cbranch_scc1 g1_pub1")
            A(f"v_mov_b32 v2, s{sNON}")
            A("v_mov_b32 v3, 0")
            A("s_mov_b64 exec, 1")
            A(f"buffer_store_dword v2, v3, s[{sWS}:{sWS+3}], s{sPUB} offen sc1")
            A("s_mov_b64 exec, -1")
            A.label("g1_pub1")
            stamp(A, "kv_pub")
            A(f"s_mov_b32 s{sPUB}, 0")
            A(".p2align 3")
            A.label("g1_nopub")
        step(u, 23, True, True, True)
    A(f"s_sub_u32 s{sCNT}, s{sCNT}, 1")
    A(f"s_cmp_lg_u32 s{sCNT}, 0")
    A(f"s_cbranch_scc1 {pfx}_loop")
    if tail_next:
        switch_to_fb(A)
        waits = (23, 18, 14, 13)
    else:
        waits = (23, 14, 5, 0)
    for u in range(4):
        step(u, waits[u], tail_next, False, u < 3, [poll_ld(15, 25)] if (tail_next and u == 1) else [], u == 3)
    stamp(A, pfx + "_loopdone")

sFA1, sFA2, sFR = 54, 55, 94
sUS = 52
vGE = 224
def fa_params(A):
    A(f"s_and_b32 s{sFR}, s{sFD}, 3")
    A(f"s_lshl_b32 s{sFR}, s{sFR}, 1")
    A(f"s_and_b32 s89, s{sFS}, 7")
    A(f"s_add_u32 s{sFR}, s{sFR}, s89")
    A(f"s_mul_i32 s89, s{sFR}, 52")
    A("s_lshr_b32 s89, s89, 8")
    A("s_mul_i32 s89, s89, 5")
    A(f"s_sub_u32 s{sFR}, s{sFR}, s89")
    if not OPT["rot"]: A(f"s_mov_b32 s{sFR}, 0")
    A(f"s_mul_i32 s86, s{sWAVE}, 5")
    A(f"s_add_u32 s86, s86, s{sFR}")
    A(f"s_mul_i32 s{sFA1}, s{sFS}, 20")
    A(f"s_add_u32 s{sFA1}, s{sFA1}, s86")
    A(f"s_lshl_b32 s{sFA1}, s{sFA1}, 12")
    A(f"s_add_u32 s{sFA1}, s{sFA1}, {WS_PQ:#x}")
    A(f"s_mul_i32 s{sFA2}, s86, 40960")
    A(f"s_mul_i32 s89, s{sFD}, 5120")
    A(f"s_add_u32 s{sFA2}, s{sFA2}, s89")
    A(f"s_add_u32 s{sFA2}, s{sFA2}, {WS_M:#x}")
fa_b = lambda i: 0 if i == 0 else 112 + 36*(i-1)
def fa_ld(A, i):
    for st in range(4):
        A(f"buffer_load_dwordx4 {ar(fa_b(i)+4*st,4)}, v{vB0}, s[{sWS}:{sWS+3}], s{sFA1} offen offset:{1024*st} sc1")
    for n in range(5):
        A(f"buffer_load_dwordx4 {ar(fa_b(i)+16+4*n,4)}, v{vB0 if n < 4 else vB1}, s[{sWS}:{sWS+3}], s{sFA2} offen offset:{1024*(n&3)} sc1")
    if i < 4:
        A(f"s_add_u32 s{sFA1}, s{sFA1}, 4096")
        A(f"s_add_u32 s{sFA2}, s{sFA2}, 40960")
        A(f"s_add_u32 s{sFR}, s{sFR}, 1")
        A(f"s_cmp_eq_u32 s{sFR}, 5")
        A(f"s_cselect_b32 s86, {5*4096}, 0")
        A(f"s_cselect_b32 s89, {5*40960}, 0")
        A(f"s_sub_u32 s{sFA1}, s{sFA1}, s86")
        A(f"s_sub_u32 s{sFA2}, s{sFA2}, s89")

def g1_params(A):
    W, Rr = vGE, vGE + 4
    A("v_and_b32 v2, 15, v1")
    A("v_lshrrev_b32 v3, 4, v1")
    A("v_xor_b32 v4, v2, v3")
    A("v_lshlrev_b32 v4, 4, v4")
    A("v_lshl_add_u32 v4, v2, 8, v4")
    A(f"s_mul_i32 s85, s{sWAVE}, 20480")
    A(f"s_add_u32 s85, s85, {LDS_RED}")
    A(f"v_add_u32 v{W}, s85, v4")
    for t in range(1, 4): A(f"v_xor_b32 v{W+t}, {64*t}, v{W}")
    A(f"s_and_b32 s85, s{sWAVE}, 1")
    A(f"s_lshr_b32 s86, s{sWAVE}, 1")
    A("s_lshl_b32 s87, s85, 7")
    A("v_xor_b32 v4, s87, v4")
    A("s_lshl_b32 s87, s86, 12")
    A(f"s_add_u32 s87, s87, {LDS_RED}")
    A(f"v_add_u32 v{Rr}, s87, v4")
    A(f"v_xor_b32 v{Rr+1}, 64, v{Rr}")
    A(f"v_add_u32 v{Rr+2}, 40960, v{Rr}")
    A(f"v_add_u32 v{Rr+3}, 40960, v{Rr+1}")
    A(f"s_lshl_b32 s87, s{sG1F}, 1")
    A("s_add_u32 s87, s87, s85")
    A("s_lshl_b32 s23, s87, 6")
    A("v_lshlrev_b32 v12, 3, v3")
    A("s_mul_i32 s87, s87, 40")
    A(f"s_mul_i32 s88, s{sG1D}, 5")
    A("s_add_u32 s87, s87, s88")
    A("s_add_u32 s87, s87, s86")
    A("s_lshl_b32 s87, s87, 10")
    A(f"s_add_u32 s{sUS}, s87, {WS_U:#x}")
    A(f"s_add_u32 s{sUS+1}, s{sUS}, 4096")
    A(f"s_mov_b32 s90, {0xBDD2D3E8:#x}")
    A(f"s_mov_b32 s91, {0xBDD2D3E8:#x}")
    A(f"v_mov_b32 v{vGE+8}, {0xC0135761:#x}")
    A(f"v_mov_b32 v{vGE+9}, {0xC0135761:#x}")
    fa_params(A)
def b1_loads():
    return [[f"buffer_load_dwordx2 {vr(vGE+18+2*j,2)}, v12, s[{sB1}:{sB1+3}], s23 offen offset:{32*j}"] for j in range(2)]
def zero_acc(A):
    for i in range(0, 80, 2): A(f"v_mov_b64 {vr(ACC+i,2)}, 0")

def g1_phase(A):
    A.label("g1_entry")
    stamp(A, "g1_first")
    c_loop(A, "g1", 16, ACC, True, True, lambda n, t: [f"ds_write_b128 v{vGE+t}, {vr(ACC+(t*5+n)*4,4)} offset:{4096*n}"])
    A("s_waitcnt vmcnt(8)")
    A(f"v_cmp_ne_u32 vcc, s{sNON}, v{vPOLL}")
    A(f"s_mov_b32 s{sQOK}, 0")
    A("s_cbranch_vccnz g1_q0")
    A(f"s_mov_b32 s{sQOK}, 1")
    fa_ld(A, 0)
    A.label("g1_q0")
    for j in range(2):
        for k in range(2):
            A(f"v_lshlrev_b32 v{vGE+10+4*j+2*k}, 16, v{vGE+18+2*j+k}")
            A(f"v_and_b32 v{vGE+11+4*j+2*k}, 0xffff0000, v{vGE+18+2*j+k}")
    A("s_waitcnt lgkmcnt(0)")
    A("s_barrier")
    stamp(A, "g1_red")
    R = 128
    def rd(r):
        for j in range(2):
            for part in range(4):
                A(f"ds_read_b128 {vr(R+32*r+16*j+4*part,4)}, v{vGE+4+j+2*(part>>1)} offset:{8192*r + 20480*(part&1)}")
    def fin(r):
        b = R + 32*r
        for j in range(2):
            x = b + 16*j
            for i in (0, 2):
                A(f"v_pk_add_f32 {vr(x+i,2)}, {vr(x+i,2)}, {vr(x+4+i,2)}")
                A(f"v_pk_add_f32 {vr(x+8+i,2)}, {vr(x+8+i,2)}, {vr(x+12+i,2)}")
        for j in range(2):
            x = b + 16*j
            for i in (0, 2): A(f"v_pk_add_f32 {vr(x+i,2)}, {vr(x+i,2)}, {vr(vGE+10+4*j+i,2)}")
        for j in range(2):
            x = b + 16*j
            for i in (0, 2): A(f"v_pk_add_f32 {vr(x+i,2)}, {vr(x+i,2)}, {vr(x+8+i,2)}")
        E = [b + 16*j + i for j in range(2) for i in range(4)]
        E2 = E[::2]
        for x in E2: A(f"v_pk_mul_f32 {vr(x+4,2)}, {vr(x,2)}, {vr(x,2)}")
        for x in E2: A(f"v_pk_fma_f32 {vr(x+4,2)}, {vr(x+4,2)}, s[90:91], {vr(vGE+8,2)}")
        for x in E2: A(f"v_pk_mul_f32 {vr(x+4,2)}, {vr(x+4,2)}, {vr(x,2)}")
        for x in E: A(f"v_exp_f32 v{x+4}, v{x+4}")
        for x in E2: A(f"v_pk_add_f32 {vr(x+4,2)}, {vr(x+4,2)}, 1.0 op_sel_hi:[1,0]")
        for x in E: A(f"v_rcp_f32 v{x+4}, v{x+4}")
        for x in E2: A(f"v_pk_mul_f32 {vr(x,2)}, {vr(x,2)}, {vr(x+4,2)}")
        for j in range(2):
            x = b + 16*j
            A(f"v_cvt_pk_bf16_f32 v{b+8+2*j}, v{x}, v{x+1}")
            A(f"v_cvt_pk_bf16_f32 v{b+9+2*j}, v{x+2}, v{x+3}")
        A(f"buffer_store_dwordx4 {vr(b+8,4)}, v{vB0}, s[{sWS}:{sWS+3}], s{sUS if r < 2 else sUS+1} offen offset:{2048*(r&1)} sc1")
    rd(0)
    A("s_waitcnt lgkmcnt(4)")
    rd(1)
    A("s_waitcnt lgkmcnt(8)")
    fin(0)
    A(f"s_cmp_ge_u32 s{sWAVE}, 2")
    A("s_cbranch_scc1 g1_e1")
    rd(2)
    A("s_waitcnt lgkmcnt(8)")
    fin(1)
    A("s_waitcnt lgkmcnt(0)")
    fin(2)
    A("s_branch g1_e2")
    A.label("g1_e1")
    A("s_waitcnt lgkmcnt(0)")
    fin(1)
    A.label("g1_e2")
    stamp(A, "g1_st")
    A(f"s_cmp_eq_u32 s{sQOK}, 0")
    A("s_cbranch_scc1 g1_q1")
    fa_ld(A, 1)
    A("s_waitcnt vmcnt(9)")
    A("s_branch g1_q2")
    A.label("g1_q1")
    A("s_waitcnt vmcnt(0)")
    A.label("g1_q2")
    A(f"s_mul_i32 s88, s{sG1D}, 24")
    A(f"s_add_u32 s88, s88, s{sG1F}")
    publish(A, "pub_u", FL_G1, 88, None)
    stamp(A, "g1_pub")
    A(f"s_cmp_lg_u32 s{sQOK}, 0")
    A("s_cbranch_scc1 f_go")
    A(poll_ld(15, 25))
    A("s_waitcnt vmcnt(0)")
    poll_check(A, "pq", 15, 25)

def f_phase(A):
    ACA = 128
    A.label("f_entry")
    fa_ld(A, 0); fa_ld(A, 1)
    A.label("f_go")
    stamp(A, "f_qok")
    A(f"s_or_b32 s85, s2, s{sWAVE}")
    A("s_cmp_lg_u32 s85, 0")
    A("s_cbranch_scc1 f_nox")
    A(f"v_mov_b32 v2, s{sNON}")
    A("v_mov_b32 v3, 0")
    A(f"s_mov_b32 s85, {FL_X:#x}")
    A("s_mov_b64 exec, 1")
    A(f"buffer_store_dword v2, v3, s[{sWS}:{sWS+3}], s85 offen sc1")
    A("s_mov_b64 exec, -1")
    A.label("f_nox")
    fb = fa_b
    def fam(i):
        for n in range(5):
            for st in range(4):
                c = vr(ACA+(st*5+n)*4, 4)
                A(f"v_mfma_f32_16x16x32_bf16 {c}, {ar(fb(i)+16+4*n,4)}, {ar(fb(i)+4*st,4)}, {c if i else 0}")
    A("v_and_b32 v2, 15, v1")
    A("v_lshlrev_b32 v3, 2, v2")
    A(f"s_lshl_b32 s23, s{sFS}, 8")
    A(f"s_add_u32 s23, s23, {WS_G:#x}")
    for st in range(4):
        A(f"buffer_load_dword v{8+st}, v3, s[{sWS}:{sWS+3}], s23 offen offset:{64*st} sc1")
    A("v_lshlrev_b32 v3, 1, v2")
    A(f"s_lshl_b32 s23, s{sFS}, 7")
    A(f"s_cmp_eq_u32 s{sWAVE}, 0")
    A("s_cselect_b32 s23, s23, 0x40000000")
    for st in range(4):
        A(f"buffer_load_ushort v{4+st}, v3, s[{sB2}:{sB2+3}], s23 offen offset:{32*st}")
    fa_ld(A, 2)
    A("v_min_u32 v12, 23, v1")
    A("v_lshlrev_b32 v12, 7, v12")
    A(f"s_mul_i32 s23, s{sFD}, {24*128}")
    A(f"s_add_u32 s23, s23, {FL_G1:#x}")
    pp = OPT.get("upoll", 3)
    if pp == 2: A(poll_ld(12, 23))
    A(f"s_waitcnt vmcnt({26 + (pp == 2)})")
    fam(0)
    fa_ld(A, 3)
    if pp == 3: A(poll_ld(12, 23))
    A("s_waitcnt vmcnt(19)")
    fam(1)
    fa_ld(A, 4)
    for st in range(4):
        A(f"v_sub_f32 v{8+st}, 1.0, v{8+st}")
        A(f"v_lshlrev_b32 v{4+st}, 16, v{4+st}")
        for k in range(20): A(f"v_mov_b32 v{ACC+st*20+k}, v{4+st}")
    A(f"s_mov_b32 s{sC2}, s{sF2}")
    A(f"s_mov_b32 s{sCB2}, s{sFB2}")
    A(f"s_mov_b32 s{sCE2}, s{sFE2}")
    A("v_lshrrev_b32 v3, 4, v1")
    A("v_mul_u32_u24 v4, 336, v2")
    A("v_lshl_add_u32 v4, v3, 4, v4")
    A(f"s_mul_i32 s85, s{sWAVE}, 21504")
    A(f"s_add_u32 s85, s85, {LDS_RED}")
    A("v_add_u32 v4, s85, v4")
    A(f"s_mul_i32 s85, s{sWAVE}, {16*336}")
    A(f"s_add_u32 s85, s85, {LDS_RED}")
    A(f"s_lshl_b32 s90, s{sFS}, 2")
    A(f"s_add_u32 s90, s90, s{sWAVE}")
    A(f"s_mul_i32 s90, s90, {16*1280}")
    A(f"s_mul_i32 s87, s{sFD}, 160")
    A("s_add_u32 s90, s90, s87")
    for r in range(5):
        A(f"v_add_u32 v5, {64*r}, v1")
        A("v_mul_u32_u24 v6, 3277, v5")
        A("v_lshrrev_b32 v6, 16, v6")
        A("v_mul_u32_u24 v7, 20, v6")
        A("v_sub_u32 v7, v5, v7")
        A(f"v_mul_u32_u24 v{16+r}, 336, v6")
        A(f"v_lshl_add_u32 v{16+r}, v7, 4, v{16+r}")
        A(f"v_add_u32 v{16+r}, s85, v{16+r}")
        A(f"v_mul_u32_u24 v{24+r}, 1280, v6")
        A(f"v_lshl_add_u32 v{24+r}, v7, 3, v{24+r}")
    if pp == 2:
        A("s_waitcnt vmcnt(18)")
        poll_check(A, "pu", 12, 23)
        stamp(A, "f_uok")
        fam(2)
        c_bring(A)
        A("s_waitcnt vmcnt(29)")
        fam(3)
    else:
        A("s_waitcnt vmcnt(19)")
        fam(2)
        A("s_waitcnt vmcnt(9)")
        poll_check(A, "pu", 12, 23)
        stamp(A, "f_uok")
        c_bring(A)
        fam(3)
    A("s_waitcnt vmcnt(20)")
    fam(4)
    A("s_waitcnt vmcnt(10)")
    stamp(A, "fb_first")
    def drain(n, st):
        b = (st*5+n)*4
        return [f"v_fma_f32 v{ACA+b+i}, v{ACC+b+i}, v{8+st}, v{ACA+b+i}" for i in range(4)] + [f"ds_write_b128 v4, {vr(ACA+b,4)} offset:{st*16*336 + 64*n}"]
    c_loop(A, "fb", 12, ACC, False, False, drain)
    A("s_waitcnt lgkmcnt(0)")
    A("s_barrier")
    stamp(A, "f_red")
    R = ACC
    def rd(r):
        for part in range(4):
            A(f"ds_read_b128 {vr(R+16*r+4*part,4)}, v{16+r} offset:{21504*part}")
    rd(0); rd(1); rd(2)
    for r in range(5):
        A(f"s_waitcnt lgkmcnt({8 if r < 3 else 4*(4-r)})")
        b = R + 16*r
        for i in (0, 2):
            A(f"v_pk_add_f32 {vr(b+i,2)}, {vr(b+i,2)}, {vr(b+4+i,2)}")
            A(f"v_pk_add_f32 {vr(b+8+i,2)}, {vr(b+8+i,2)}, {vr(b+12+i,2)}")
        if r + 3 < 5: rd(r+3)
        for i in (0, 2): A(f"v_pk_add_f32 {vr(b+i,2)}, {vr(b+i,2)}, {vr(b+8+i,2)}")
        A(f"v_cvt_pk_bf16_f32 v{b}, v{b}, v{b+1}")
        A(f"v_cvt_pk_bf16_f32 v{b+1}, v{b+2}, v{b+3}")
        A(f"buffer_store_dwordx2 {vr(b,2)}, v{24+r}, s[{sOUT}:{sOUT+3}], s90 offen")

def kd(name):
    return f""".section .rodata,"a"
.p2align 6
.amdhsa_kernel {name}
  .amdhsa_next_free_vgpr 512
  .amdhsa_next_free_sgpr 102
  .amdhsa_accum_offset 256
  .amdhsa_group_segment_fixed_size 0
  .amdhsa_kernarg_size 96
  .amdhsa_user_sgpr_count 2
  .amdhsa_user_sgpr_kernarg_segment_ptr 1
  .amdhsa_system_sgpr_workgroup_id_x 1
.end_amdhsa_kernel
"""

def gen():
    hdr = open("cdna_kernels/" + NAME + ".s.ref").read().split("; Override")[0]
    hdr += f"; @launch grid=(256,1,1) block=(256,1,1) lds={LDS_BYTES}\n"
    hdr += '.amdgcn_target "amdgcn-amd-amdhsa--gfx950"\n'
    A = Asm()
    K = NAME + "_kernel"
    A(".text"); A(f".globl {K}"); A(".p2align 8"); A(f".type {K},@function"); A.label(K)
    prologue(A)
    A("s_cmp_ge_u32 s82, 16"); A("s_cbranch_scc1 r_notkv")
    A("s_and_b32 s85, s82, 3")
    A("s_lshl_b32 s86, s83, 2")
    A(f"s_add_u32 s{sA}, s85, s86")
    A("s_lshr_b32 s85, s82, 2")
    A("s_lshl_b32 s86, s84, 2")
    A(f"s_add_u32 s{sBp}, s85, s86")
    qkv_setup(A, False)
    A("s_waitcnt lgkmcnt(0)"); srds(A, ["X", "W"])
    stamp(A, "kv_pre")
    def mid(A):
        params1(A); srds(A, ["WS", "W1", "B1", "W2", "B2", "OUT"]); params2(A); g1_params(A)
    ex = {}
    for it in (8, 9):
        g = ([[poll_ld(vPO, 24)]] + b1_loads()) if it == 8 else []
        for s in (2*(it-8), 2*(it-8)+1):
            g += c_wdma(s); g[-1] = g[-1] + c_adv1()
        ex[it] = (g, 9 if it == 8 else 8)
    qkv_gemm(A, "kv", False, mid, ex, lambda A: poll_check(A, "pln", vPO, 24))
    side = []
    for sl in range(4):
        for n in range(5): side.append([c_bload(sl, n)] + (c_adv2() if n == 4 else []))
    kv_epilogue(A, side)
    stamp(A, "kv_st")
    A(f"s_lshl_b32 s{sPUB}, s{sA}, 3")
    A(f"s_add_u32 s{sPUB}, s{sPUB}, s{sBp}")
    A(f"s_lshl_b32 s{sPUB}, s{sPUB}, 7")
    A(f"s_add_u32 s{sPUB}, s{sPUB}, {FL_KV:#x}")
    g1_phase(A)
    f_phase(A)
    stamp_flush(A)
    A.label("k_end"); A("s_endpgm")
    A.label("r_notkv")
    if OPT["pf_code"]:
        A("s_getpc_b64 s[86:87]")
        A.label("pc_here")
        A(f"s_sub_u32 s86, s86, pc_here-{K}")
        A("s_subb_u32 s87, s87, 0")
        A("s_sub_u32 s85, s82, 16")
        A("s_lshl_b32 s85, s85, 2")
        A(f"s_add_u32 s85, s85, s{sWAVE}")
        A("s_lshl_b32 s85, s85, 3")
        A("v_add_lshl_u32 v2, v1, s85, 7")
        A(f"v_min_u32 v2, k_codeend-{K}-4, v2")
        A("s_mov_b64 exec, 0xff")
        A("global_load_dword a255, v2, s[86:87]")
        A("s_mov_b64 exec, -1")
    A("s_cmp_lt_u32 s82, 24"); A("s_cbranch_scc1 r_q")
    A("s_sub_u32 s87, s82, 24")
    A("s_lshl_b32 s85, s81, 3")
    A(f"s_add_u32 s{sA}, s85, s87")
    aux = " nt" if OPT.get("nt") else ""
    w1l = lambda k: f"buffer_load_dword a255, v22, s[{sW1}:{sW1+3}], s{26 + k//3} offen offset:{256*(k%3)}{aux}"
    def after(A):
        params1(A); srds(A, ["WS", "W1", "B1", "W2", "B2", "OUT"]); params2(A); g1_params(A)
        A("s_sub_u32 s88, s82, 24")
        A("s_lshl_b32 s88, s88, 2")
        A(f"s_add_u32 s88, s88, s{sWAVE}")
        A("v_and_b32 v22, 31, v1")
        A("v_mul_u32_u24 v22, 3072, v22")
        A("v_lshrrev_b32 v3, 5, v1")
        A("v_lshl_add_u32 v22, v3, 7, v22")
        A(f"s_mul_i32 s85, s88, {32*3072}")
        A("s_mul_i32 s86, s83, 768")
        A("s_add_u32 s85, s85, s86")
        A(f"s_mul_i32 s86, s84, {1024*3072}")
        A("s_add_u32 s26, s86, s85")
        A("s_xor_b32 s87, s84, 1")
        A(f"s_mul_i32 s87, s87, {1024*3072}")
        A("s_add_u32 s27, s87, s85")
        for k in range(OPT["early"] if OPT["pf_w1"] else 0): A(w1l(k))
    ln_role(A, after, OPT["early"] if OPT["pf_w1"] else 0)
    publish(A, "pub_ln", FL_LN, sA)
    stamp(A, "ln_pub")
    for k in range(OPT["early"], 6 if OPT["pf_w1"] else 0): A(w1l(k))
    if OPT["pf_w2"]: w2_prefetch(A, 24, [0, 1])
    stamp(A, "ln_pf")
    for g in b1_loads(): A(g[0])
    A(poll_ld(vPO, 24))
    c_wring(A)
    A("s_waitcnt vmcnt(16)")
    poll_check(A, "pln2", vPO, 24)
    A("s_barrier")
    c_bring(A)
    A(f"s_mov_b32 s{sPUB}, 0")
    zero_acc(A)
    A("s_waitcnt vmcnt(10)")
    stamp(A, "ln_ready")
    A("s_branch g1_entry")
    A.label("r_q")
    A("s_sub_u32 s87, s82, 16")
    A("s_and_b32 s85, s87, 3")
    A("s_lshl_b32 s86, s83, 2")
    A(f"s_add_u32 s{sA}, s85, s86")
    A("s_lshr_b32 s85, s87, 2")
    A("s_lshl_b32 s86, s84, 1")
    A(f"s_add_u32 s{sBp}, s85, s86")
    A("s_lshl_b32 s85, s81, 3")
    A("s_add_u32 s85, s85, s87")
    A(f"s_lshr_b32 s{sU}, s85, 2")
    A(f"s_and_b32 s{sNR}, s85, 3")
    qkv_setup(A, True)
    A("s_waitcnt lgkmcnt(0)"); srds(A, ["X", "W"])
    def midq(A):
        params1(A); srds(A, ["WS", "W1", "WO", "W2", "B2", "OUT"]); params2(A)
    qkv_gemm(A, "q", True, midq, {}, None)
    q_epilogue(A)
    A("s_lshl_b32 s88, s81, 3")
    A("s_add_u32 s88, s88, s82")
    A("s_sub_u32 s88, s88, 16")
    publish(A, "pub_q", FL_Q, 88)
    stamp(A, "q_pub")
    switch_to_fb(A)
    A(poll_ld(vPO, 25))
    c_wring(A)
    A("s_waitcnt vmcnt(16)")
    poll_check(A, "pq2", vPO, 25)
    A("s_barrier")
    stamp(A, "q_allq")
    if OPT["pf_pq"]:
        A("s_sub_u32 s88, s82, 16")
        A("s_lshl_b32 s88, s88, 2")
        A(f"s_add_u32 s88, s88, s{sWAVE}")
        A("v_lshlrev_b32 v2, 7, v1")
        A(f"s_mul_i32 s85, s83, {8*81920}")
        A(f"s_mul_i32 s86, s88, {160*128}")
        A("s_add_u32 s85, s85, s86")
        A(f"s_add_u32 s85, s85, {WS_PQ:#x}")
        for i in range(3):
            if i == 2: A("s_mov_b32 exec_hi, 0")
            A(f"buffer_load_dword a255, v2, s[{sWS}:{sWS+3}], s85 offen sc1")
            A("s_add_u32 s85, s85, 8192")
        A("s_mov_b32 exec_hi, -1")
        A("s_cmp_ge_u32 s88, 20")
        A("s_cbranch_scc1 q_pfd")
        A("s_mul_i32 s85, s88, 40960")
        A("s_mul_i32 s86, s84, 20480")
        A("s_add_u32 s85, s85, s86")
        A(f"s_add_u32 s85, s85, {WS_M:#x}")
        for i in range(3):
            if i == 2: A("s_mov_b32 exec_hi, 0")
            A(f"buffer_load_dword a255, v2, s[{sWS}:{sWS+3}], s85 offen sc1")
            A("s_add_u32 s85, s85, 8192")
        A("s_mov_b32 exec_hi, -1")
        A.label("q_pfd")
    fa_params(A)
    A("s_waitcnt vmcnt(0)")
    A("s_branch f_entry")
    A.label("k_codeend")
    for i, l in enumerate(A.lines):
        if l.startswith("v_mad_i32_i24 v4, v3, -20"):
            A.lines[i] = l.replace("-20", "s89")
        if l == "s_movk_i32 s88, 3840":
            A.lines[i] = "s_movk_i32 s89, -20"
    nb = check(A.lines)
    print("hazards:", nb, file=sys.stderr)
    return hdr + A.text() + kd(K)

if __name__ == "__main__":
    out = sys.argv[1]
    for a in sys.argv[2:]:
        if a == "st": STAMPS = True
        else:
            k, v = a.split("="); OPT[k] = int(v)
    open(out, "w").write(gen())
    if STAMPS: json.dump(_st["names"], open(out + ".names", "w"))
```

```python
import sys, json
from asmlib import Asm, vr, ar, sr, check

NAME = "gated_mix__linear_attn_block__mixer_token_mlp__prompt"
WS_H   = 0x000000
WS_U   = 0x280000
WS_PQ  = 0x460000
WS_M   = 0x6E0000
WS_KVP = 0x7A8000
WS_ZP  = 0x968000
WS_G   = 0x972000
WS_FLAG = 0x974000
FL_X = WS_FLAG
FL_LN = WS_FLAG + 128
FL_KV = FL_LN + 64*128
FL_Q = FL_KV + 128*128
FL_G1 = FL_Q + 64*128
WS_SIZE = FL_G1 + 192*128
WS_STAMP = 0x1000000

sX, sW, sWS, sW1, sW2, sOUT, sWO, sB1, sB2, sGW = 28, 32, 36, 40, 44, 48, 52, 56, 60, 64
sWAVE = 68
sA, sBp = 69, 70
sG1D, sG1F, sFS, sFD = 71, 72, 73, 74
sCNT, sO1, sO2, sRD, sWR, sM0 = 75, 76, 77, 78, 79, 80
sEX, sMK = 90, 92
sU, sNR = 94, 95
sWR_, sWC_ = 96, 97
sPUB = 3
sQOK = 99
sM1 = 98
sC1, sC2, sCM0, sCB1, sCE1, sCB2, sCE2, sCST, sCW, sNON = 4, 5, 6, 7, 8, 9, 10, 11, 12, 16
sF1, sFB1, sFE1, sF2, sFB2, sFE2 = 17, 18, 19, 20, 21, 22
LOG2E = 0x3FB8AA3B
EPS6 = 0x358637BD
LDS_RED = 65536
LDS_BYTES = 163840
vXO, vWO_, vXB, vCUR = 16, 20, 25, 29
vWS_, vB0, vB1, vTR, vWS2 = 33, 37, 38, 39, 43
ACC = 48
FA_, FB_ = 112, 148
BR, AS = 0, 80
STG = 36864
vPOLL, vPO = 14, 13
OPT = {"rot": 1, "pf_w1": 1, "pf_w2": 1, "pf_code": 1, "pf_pq": 1, "sleep": 4, "early": 1}
STAMPS = False
_st = {"n": 0, "names": []}

def stamp(A, name, real=False):
    if not STAMPS: return
    i = _st["n"]; _st["n"] += 1; _st["names"].append(name)
    A("s_memrealtime s[100:101]" if real else "s_memtime s[100:101]")
    A("s_waitcnt lgkmcnt(0)")
    A(f"v_writelane_b32 v47, s100, {i}")
def stamp_flush(A):
    if not STAMPS: return
    stamp(A, "end"); stamp(A, "endreal", True)
    A("s_lshl_b32 s100, s2, 2")
    A(f"s_add_u32 s100, s100, s{sWAVE}")
    A("s_lshl_b32 s100, s100, 8")
    A(f"s_add_u32 s100, s100, {WS_STAMP:#x}")
    A(f"s_mov_b32 s{sWS+2}, 0x2000000")
    A("v_lshlrev_b32 v46, 2, v1")
    A(f"buffer_store_dword v47, v46, s[{sWS}:{sWS+3}], s100 offen")

def srds(A, which):
    tab = {"X": (sX, 4, 2048*1280), "W": (sW, 6, 640*3840), "WO": (sWO, 8, 640*1280), "W1": (sW1, 12, 2048*3072), "B1": (sB1, 14, 3072),
           "W2": (sW2, 16, 1536*4096), "B2": (sB2, 18, 4096), "GW": (sGW, 20, 1280), "OUT": (sOUT, 22, 2048*1280), "WS": (sWS, 26, WS_SIZE)}
    for w in which:
        base, ptr, size = tab[w]
        A(f"s_mov_b64 s[{base}:{base+1}], s[{ptr}:{ptr+1}]")
        A(f"s_mov_b32 s{base+2}, {size:#x}")
        A(f"s_mov_b32 s{base+3}, 0x20000")

def flat(groups):
    out = []
    for g in groups: out += g if isinstance(g, list) else [g]
    return out

def weave(A, mf, fill, first=0):
    for i, m in enumerate(mf):
        A(m)
        if i < len(fill):
            for x in fill[i]: A(x)
    for g in fill[len(mf):]:
        for x in g: A(x)

def poll_off(A, dst, nper, total_waves_split=True):
    A(f"v_and_b32 v{dst}, {nper-1}, v1")
    A(f"s_mul_i32 s85, s{sWAVE}, {nper}")
    A(f"v_add_lshl_u32 v{dst}, v{dst}, s85, 7")
def poll_ld(vo, so):
    return f"buffer_load_dword v{vPOLL}, v{vo}, s[{sWS}:{sWS+3}], s{so} offen sc1"
def poll_check(A, name, vo, so):
    A(f"v_cmp_ne_u32 vcc, s{sNON}, v{vPOLL}")
    A(f"s_cbranch_vccz {name}_ok")
    A(f"s_mov_b32 s{sM1}, 0")
    A.label(f"{name}_spin")
    A(f"s_add_u32 s{sM1}, s{sM1}, 1")
    A(f"s_cmp_gt_u32 s{sM1}, 0x8000")
    A(f"s_cbranch_scc1 {name}_ok")
    A(f"s_sleep {OPT['sleep']}")
    A(poll_ld(vo, so))
    A("s_waitcnt vmcnt(0)")
    A(f"v_cmp_ne_u32 vcc, s{sNON}, v{vPOLL}")
    A(f"s_cbranch_vccnz {name}_spin")
    A.label(f"{name}_ok")
def publish(A, name, base, sidx, wait=0):
    if wait is not None: A(f"s_waitcnt vmcnt({wait})")
    A("s_barrier")
    A(f"s_cmp_lg_u32 s{sWAVE}, 0")
    A(f"s_cbranch_scc1 {name}_np")
    A(f"s_lshl_b32 s85, s{sidx}, 7")
    A(f"s_add_u32 s85, s85, {base:#x}")
    A(f"v_mov_b32 v2, s{sNON}")
    A("v_mov_b32 v3, 0")
    A("s_mov_b64 exec, 1")
    A(f"buffer_store_dword v2, v3, s[{sWS}:{sWS+3}], s85 offen sc1")
    A("s_mov_b64 exec, -1")
    A.label(f"{name}_np")

def prologue(A):
    A("s_cmp_ge_u32 s2, 256")
    A("s_cbranch_scc1 k_end")
    if STAMPS: A("v_mov_b32 v47, 0")
    stamp(A, "startreal", True); stamp(A, "start")
    A("s_load_dwordx16 s[4:19], s[0:1], 0")
    A("s_load_dwordx8 s[20:27], s[0:1], 64")
    A("v_lshrrev_b32 v2, 6, v0")
    A("v_and_b32 v1, 63, v0")
    A(f"v_readfirstlane_b32 s{sWAVE}, v2")
    A("s_and_b32 s81, s2, 7")
    A("s_lshr_b32 s82, s2, 3")
    A("s_lshr_b32 s83, s81, 1")
    A("s_and_b32 s84, s81, 1")

def params1(A):
    A(f"s_add_u32 s86, s26, {FL_X:#x}")
    A("s_addc_u32 s87, s27, 0")
    A("s_load_dword s3, s[86:87], 0")
    A("s_lshr_b32 s85, s82, 2")
    A("s_lshl_b32 s88, s83, 3")
    A(f"s_add_u32 s{sFS}, s85, s88")
    A("s_and_b32 s85, s82, 3")
    A("s_lshl_b32 s88, s84, 2")
    A(f"s_add_u32 s{sFD}, s85, s88")
    A("s_sub_u32 s85, s82, 8")
    A("s_cmp_lt_u32 s82, 16")
    A("s_cselect_b32 s85, s82, s85")
    A("s_and_b32 s89, s85, 3")
    A(f"s_add_u32 s{sG1D}, s89, s88")
    A("s_lshr_b32 s85, s85, 2")
    A("s_mul_i32 s88, s83, 6")
    A(f"s_add_u32 s{sG1F}, s85, s88")
    A("s_mul_i32 s85, s85, 3")
    A("s_lshl_b32 s89, s89, 2")
    A("s_add_u32 s85, s85, s89")
    A(f"s_and_b32 s99, s85, {15 if OPT['rot'] else 0}")

def params2(A):
    if OPT.get("same"):
        for k, r in enumerate((sG1D, sG1F, sFS, sFD)):
            A(f"s_mov_b32 s{100 if not STAMPS else 64+k}, s{r}")
            A(f"s_mov_b32 s{r}, 0")
        params2_(A)
        for k, r in enumerate((sG1D, sG1F, sFS, sFD)): A(f"s_mov_b32 s{r}, s{64+k}")
    else: params2_(A)
def params2_(A):
    A(f"s_mul_i32 s{sCB1}, s{sWAVE}, {16*32*3072}")
    A(f"s_lshl_b32 s85, s{sG1F}, 7")
    A(f"s_add_u32 s{sCB1}, s{sCB1}, s85")
    A(f"s_add_u32 s{sCE1}, s{sCB1}, {16*32*3072}")
    A(f"s_mul_i32 s85, s99, {32*3072}")
    A(f"s_add_u32 s{sC1}, s{sCB1}, s85")
    A(f"s_mul_i32 s{sCB2}, s{sWAVE}, {16*40960}")
    A(f"s_mul_i32 s85, s{sG1D}, 5120")
    A(f"s_add_u32 s{sCB2}, s{sCB2}, s85")
    A(f"s_add_u32 s{sCE2}, s{sCB2}, {16*40960}")
    A(f"s_mul_i32 s85, s99, 40960")
    A(f"s_add_u32 s{sC2}, s{sCB2}, s85")
    A(f"s_mov_b32 s{sCST}, {32*3072}")
    A(f"s_mov_b64 s[{sCW}:{sCW+1}], s[{sW1}:{sW1+1}]")
    A(f"s_mov_b64 s[{sCW+2}:{sCW+3}], s[{sW1+2}:{sW1+3}]")
    A(f"s_lshl_b32 s{sCM0}, s{sWAVE}, 14")
    A("s_and_b32 s85, s82, 3")
    A("s_mul_i32 s85, s85, 3")
    A("s_lshr_b32 s86, s82, 2")
    A("s_mul_i32 s86, s86, 3")
    A("s_lshr_b32 s86, s86, 1")
    A("s_add_u32 s85, s85, s86")
    A("s_cmp_ge_u32 s85, 12")
    A("s_cselect_b32 s86, 12, 0")
    A("s_sub_u32 s85, s85, s86")
    if not OPT["rot"]: A("s_mov_b32 s85, 0")
    A(f"s_mul_i32 s{sFB1}, s{sWAVE}, {12*32*4096}")
    A(f"s_lshl_b32 s86, s{sFS}, 7")
    A(f"s_add_u32 s{sFB1}, s{sFB1}, s86")
    A(f"s_add_u32 s{sFE1}, s{sFB1}, {12*32*4096}")
    A(f"s_lshl_b32 s86, s85, 17")
    A(f"s_add_u32 s{sF1}, s{sFB1}, s86")
    A(f"s_mul_i32 s{sFB2}, s{sWAVE}, {12*40960}")
    A(f"s_mul_i32 s86, s{sFD}, 5120")
    A(f"s_add_u32 s{sFB2}, s{sFB2}, s86")
    A(f"s_add_u32 s{sFB2}, s{sFB2}, {WS_U:#x}")
    A(f"s_add_u32 s{sFE2}, s{sFB2}, {12*40960}")
    A(f"s_mul_i32 s86, s85, 40960")
    A(f"s_add_u32 s{sF2}, s{sFB2}, s86")
    A(f"v_lshlrev_b32 v{vB0}, 4, v1")
    A(f"v_add_u32 v{vB1}, 4096, v{vB0}")
    A("v_lshrrev_b32 v2, 2, v1")
    A("v_lshrrev_b32 v3, 1, v2")
    A("v_and_b32 v3, 3, v3")
    A("v_lshlrev_b32 v2, 7, v2")
    A("v_lshl_add_u32 v2, v3, 5, v2")
    A("v_and_b32 v3, 3, v1")
    A("v_lshl_add_u32 v2, v3, 3, v2")
    A(f"v_add_u32 v{vTR}, s{sCM0}, v2")
    for t in range(1, 4): A(f"v_xor_b32 v{vTR+t}, {32*t}, v{vTR}")
    A("v_lshrrev_b32 v2, 3, v1")
    A("v_lshrrev_b32 v3, 4, v1")
    A("v_lshlrev_b32 v3, 1, v3")
    A("v_and_b32 v4, 7, v1")
    A("v_xor_b32 v3, v3, v4")
    A("v_lshlrev_b32 v3, 4, v3")
    for base, stride in ((vWS_, 3072), (vWS2, 4096)):
        A(f"v_mul_u32_u24 v4, {stride}, v2")
        A(f"v_add_u32 v{base}, v3, v4")
        for q in range(1, 4): A(f"v_add_u32 v{base+q}, {q*(8*stride-1024)}, v{base}")
    poll_off(A, vPO, 16)
    A("v_lshlrev_b32 v15, 7, v1")
    A(f"s_mov_b32 s24, {FL_LN:#x}")
    A(f"s_mov_b32 s25, {FL_Q:#x}")
    A("s_waitcnt lgkmcnt(0)")
    A(f"s_mul_i32 s{sNON}, s3, 0x41C64E6D")
    A(f"s_add_u32 s{sNON}, s{sNON}, 0x3C6EF35F")

def qkv_setup(A, isq):
    A(f"s_lshr_b32 s{sWR_}, s{sWAVE}, 1")
    A(f"s_and_b32 s{sWC_}, s{sWAVE}, 1")
    A("v_lshrrev_b32 v2, 3, v1")
    A(f"s_lshl_b32 s85, s{sWAVE}, 5")
    A("v_add_u32 v2, s85, v2")
    A("v_mul_u32_u24 v2, 1280, v2")
    A("v_lshrrev_b32 v3, 4, v1")
    A("v_and_b32 v4, 7, v1")
    A("v_xor_b32 v4, v4, v3")
    A(f"v_lshl_add_u32 v{vXO}, v4, 4, v2")
    A("v_xor_b32 v4, 4, v4")
    A("v_lshl_add_u32 v6, v4, 4, v2")
    A(f"v_add_u32 v{vXO+1}, {8*1280-1024}, v6")
    A(f"v_add_u32 v{vXO+2}, {16*1280-2048}, v{vXO}")
    A(f"v_add_u32 v{vXO+3}, {24*1280-3072}, v6")
    A(f"s_mul_i32 s{sO1}, s{sA}, {0 if OPT.get('same') else 128*1280}")
    if OPT.get("same"):
        A("s_mov_b32 s86, 1280")
    elif isq:
        A(f"s_mul_i32 s86, s{sBp}, 320")
    else:
        A(f"s_mul_i32 s86, s{sBp}, 160")
        A("s_add_u32 s86, s86, 1280")
    A(f"s_mul_i32 s85, s{sWAVE}, {16*3840}")
    A("s_add_u32 s85, s85, s86")
    A("s_movk_i32 s88, 3840")
    for n in range(5):
        if n: A(f"v_add_u32 v2, {64*n}, v1")
        q = "v2" if n else "v1"
        A(f"v_mul_u32_u24 v3, 3277, {q}")
        A("v_lshrrev_b32 v3, 16, v3")
        A(f"v_mad_i32_i24 v4, v3, -20, {q}")
        A("v_lshrrev_b32 v5, 2, v3")
        A("v_and_b32 v5, 2, v5")
        A("v_xor_b32 v4, v4, v5")
        comp = 1024*n if n < 4 else 0
        A(f"s_sub_u32 s87, s85, {comp}" if comp else "s_mov_b32 s87, s85")
        A("v_mad_u32_u24 v3, v3, s88, s87" if False else "v_mul_u32_u24 v3, 3840, v3")
        A("v_lshl_add_u32 v3, v4, 4, v3")
        if not isq:
            A("v_cmp_le_u32 vcc, 10, v4")
            A("v_add_u32 v5, 1120, v3")
            A("v_add_u32 v3, s87, v3")
            A("v_add_u32 v5, s87, v5")
            A(f"v_cndmask_b32 v{vWO_+n}, v3, v5, vcc")
        else:
            A(f"v_add_u32 v{vWO_+n}, s87, v3")
    A(f"s_mov_b32 s{sO2}, 0")
    if OPT["rot"]:
        A("s_and_b32 s85, s82, 3")
        A("s_lshl_b32 s85, s85, 2")
        A("s_lshr_b32 s85, 0x8530, s85")
        A("s_and_b32 s85, s85, 15")
        A("s_and_b32 s86, s82, 12")
        A("s_lshr_b32 s86, 0x8530, s86")
        A("s_and_b32 s86, s86, 15")
        A("s_add_u32 s85, s85, s86")
        A("s_add_u32 s85, s85, s83")
        A("s_add_u32 s85, s85, s84")
        if isq: A("s_add_u32 s85, s85, 1")
        A("s_mul_i32 s86, s85, 26")
        A("s_lshr_b32 s86, s86, 8")
        A("s_mul_i32 s86, s86, 10")
        A("s_sub_u32 s85, s85, s86")
        A(f"s_mul_i32 s{sO2}, s85, {64*3840}")
        A("s_lshl_b32 s85, s85, 7")
        A(f"s_add_u32 s{sO1}, s{sO1}, s85")
    A(f"s_lshl_b32 s{sM0}, s{sWAVE}, 12")
    A(f"s_mul_i32 s{sM1}, s{sWAVE}, 5120")
    A(f"s_add_u32 s{sM1}, s{sM1}, 16384")
    A(f"s_mov_b32 s{sWR}, {2*STG}")

def qkv_dma():
    L = [[f"s_add_u32 m0, s{sWR}, s{sM0}"]]
    for n in range(4):
        L.append([f"buffer_load_dwordx4 v{vXO+n}, s[{sX}:{sX+3}], s{sO1} offen offset:{1024*n} lds"])
    L.append([f"s_add_u32 m0, s{sWR}, s{sM1}"])
    for n in range(4):
        L.append([f"buffer_load_dwordx4 v{vWO_+n}, s[{sW}:{sW+3}], s{sO2} offen offset:{1024*n} lds"])
    L.append(["s_add_u32 m0, m0, 4096"])
    L.append([f"buffer_load_dwordx4 v{vWO_+4}, s[{sW}:{sW+3}], s{sO2} offen lds"])
    return L
def qkv_adv():
    return [f"s_add_u32 s{sO1}, s{sO1}, 128", f"s_add_u32 s{sO2}, s{sO2}, {64*3840}", f"s_cmp_eq_u32 s{sO2}, {640*3840}",
            "s_cselect_b32 s85, 1280, 0", f"s_cselect_b32 s{sO2}, 0, s{sO2}", f"s_sub_u32 s{sO1}, s{sO1}, s85",
            f"s_add_u32 s{sWR}, s{sWR}, {STG}", f"s_cmp_eq_u32 s{sWR}, {4*STG}", f"s_cselect_b32 s{sWR}, 0, s{sWR}"]
def emit_dma_block(A, groups):
    for g in groups:
        for x in g: A(x)
        if "m0" in g[0].split(",")[0]: A("s_nop 0")

NW = 5
vXB, vCUR = 26, 6
vXB = 208
vCUR = 215
def qkv_reads(kk, fs):
    def wr(t):
        return [f"ds_read_b64_tr_b16 {ar(fs+16+4*t+2*j,2)}, v{vCUR+2+t} offset:{kk*10240 + j*1280}" for j in range(2)]
    L = wr(0)
    for st in range(4):
        L.append(f"ds_read_b128 {ar(fs+4*st,4)}, v{vCUR+kk} offset:{st*2048}")
    for t in range(1, 5): L += wr(t)
    return L
def qkv_mfmas(fs, isq):
    L = []
    for t in range(5):
        for st in range(4):
            x = ar(fs + 4*st, 4); w = ar(fs + 16 + 4*t, 4); c = vr(ACC + (st*5+t)*4, 4)
            L.append(f"v_mfma_f32_16x16x32_bf16 {c}, {w}, {x}, {c}" if isq else f"v_mfma_f32_16x16x32_bf16 {c}, {x}, {w}, {c}")
    return L

def qkv_gemm(A, pfx, isq, mid_setup, extras, pre9):
    emit_dma_block(A, qkv_dma())
    for x in qkv_adv(): A(x)
    stamp(A, pfx + "_iss0")
    mid_setup(A)
    A("v_and_b32 v2, 15, v1")
    A("v_lshrrev_b32 v3, 4, v1")
    A("v_lshrrev_b32 v4, 1, v2")
    A("v_xor_b32 v4, v4, v3")
    A("v_lshlrev_b32 v4, 4, v4")
    A("v_lshl_add_u32 v4, v2, 7, v4")
    A(f"s_lshl_b32 s85, s{sWR_}, 13")
    A(f"v_add_u32 v{vXB}, s85, v4")
    A(f"v_xor_b32 v{vXB+1}, 64, v{vXB}")
    A("v_lshrrev_b32 v4, 2, v2")
    A("v_lshl_add_u32 v4, v3, 3, v4")
    A("v_mul_u32_u24 v4, 320, v4")
    A("v_and_b32 v5, 1, v1")
    A("v_lshl_add_u32 v4, v5, 3, v4")
    A("v_add_u32 v4, 16384, v4")
    A("v_bfe_u32 v5, v1, 1, 1")
    A("v_and_b32 v6, 1, v3")
    A("v_lshlrev_b32 v6, 1, v6")
    A(f"s_mul_i32 s85, s{sWC_}, {10 if isq else 5}")
    for t in range(5):
        if isq: c0, step = 2*t, 1
        else: c0, step = [(0, 1), (2, 1), (4, 6), (11, 1), (13, 1)][t]
        A(f"s_add_u32 s86, s85, {c0}")
        if step == 1: A("v_add_u32 v7, s86, v5")
        else: A(f"v_mad_u32_u24 v7, v5, {step}, s86")
        A("v_xor_b32 v7, v7, v6")
        A(f"v_lshl_add_u32 v{vXB+2+t}, v7, 4, v4")
    zero_acc(A)
    A(f"s_mov_b32 s{sRD}, {2*STG}")
    A(f"s_mov_b32 s{sCNT}, 0")
    upd = [f"v_add_u32 v{vCUR+i}, s{sRD}, v{vXB+i}" for i in range(7)]
    rdadv = [f"s_add_u32 s{sRD}, s{sRD}, {STG}", f"s_cmp_eq_u32 s{sRD}, {4*STG}", f"s_cselect_b32 s{sRD}, 0, s{sRD}"]
    def top_half(wait, groups, pre=None):
        A(f"s_waitcnt vmcnt({wait}) lgkmcnt(0)")
        if pre: pre(A)
        A("s_barrier")
        rd = qkv_reads(0, FA_)
        fill = [rd[2*i:2*i+2] for i in range(7)] + list(groups[:13])
        weave(A, qkv_mfmas(FB_, isq), fill)
        return groups[13:]
    def bot_half(adv, tail, groups=[]):
        A("s_waitcnt lgkmcnt(0)")
        rd = qkv_reads(1, FB_)
        sal = rdadv + (qkv_adv() if adv else [])
        fill = [rd[2*i:2*i+2] for i in range(7)]
        rest = sal[:3] + upd + sal[3:] + tail
        fill += [rest[2*i:2*i+2] for i in range((len(rest)+1)//2)] + list(groups)
        weave(A, qkv_mfmas(FA_, isq), fill)
    for x in upd: A(x)
    stamp(A, pfx + "_setup")
    emit_dma_block(A, qkv_dma())
    for x in qkv_adv(): A(x)
    stamp(A, pfx + "_issued")
    A("s_waitcnt vmcnt(9)")
    A("s_barrier")
    stamp(A, pfx + "_first")
    for x in qkv_reads(0, FA_): A(x)
    emit_dma_block(A, qkv_dma())
    A(f"s_branch {pfx}_mid")
    A(".p2align 3")
    A.label(f"{pfx}_loop")
    top_half(9, qkv_dma())
    A.label(f"{pfx}_mid")
    bot_half(True, [f"s_add_u32 s{sCNT}, s{sCNT}, 1", f"s_cmp_lt_u32 s{sCNT}, 8"])
    A(f"s_cbranch_scc1 {pfx}_loop")
    for it in (8, 9):
        g, w = extras.get(it, ([], 9 if it == 8 else 0))
        rest = top_half(w, g, pre9 if it == 9 else None)
        bot_half(False, [], rest)
    stamp(A, pfx + "_loop9")
    A("s_waitcnt lgkmcnt(0)")
    for m in qkv_mfmas(FB_, isq): A(m)
    A("s_nop 7")
    stamp(A, pfx + "_loopdone")

PAIRS = [(2,0),(3,0),(2,1),(3,1),(4,1),(3,2),(4,2)]
def kv_mask(i):
    te, tc = PAIRS[i]; m = 0
    for l in range(64):
        c = 16*tc + l % 16; e = [-8, 8, 24][te-2] + 4*(l//16)
        if c < 40 and e >= 0 and c//20 == e//20: m |= 1 << l
    return m

def phi4(A, b, T, dst=None):
    dst = b if dst is None else dst
    A(f"v_pk_mul_f32 {vr(T,2)}, {vr(b,2)}, s[{sL2}:{sL2+1}]")
    A(f"v_pk_mul_f32 {vr(T+2,2)}, {vr(b+2,2)}, s[{sL2}:{sL2+1}]")
    for i in range(4): A(f"v_exp_f32 v{T+i}, v{T+i} clamp")
    for i in range(4): A(f"v_max_f32 v{dst+i}, {EPS6:#x}, v{b+i}")
    A(f"v_pk_add_f32 {vr(dst,2)}, {vr(dst,2)}, {vr(T,2)}")
    A(f"v_pk_add_f32 {vr(dst+2,2)}, {vr(dst+2,2)}, {vr(T+2,2)}")
sL2 = 88
def kv_epilogue(A, side):
    PB, KA, ONE, TMP = 128, 168, 208, 212
    side = list(side)
    def sd(n=1):
        for _ in range(n):
            if side:
                for x in side.pop(0): A(x)
    A("v_and_b32 v2, 15, v1")
    A(f"v_cmp_gt_u32 s[{sMK}:{sMK+1}], 8, v2")
    A(f"s_mov_b32 s{sL2}, {LOG2E:#x}")
    A(f"s_mov_b32 s{sL2+1}, {LOG2E:#x}")
    for i in range(4): A(f"v_mov_b32 v{ONE+i}, 0x3f803f80")
    for st in range(4):
        for t in range(3):
            b = ACC + (st*5+t)*4
            sd()
            if t < 2: phi4(A, b, TMP)
            else:
                phi4(A, b, TMP, TMP+4)
                for i in range(4): A(f"v_cndmask_b32 v{b+i}, v{b+i}, v{TMP+4+i}, s[{sMK}:{sMK+1}]")
        sd()
        for t in range(5):
            b = ACC + (st*5+t)*4
            d = PB + (t*2 + st//2)*4 + (st & 1)*2
            A(f"v_cvt_pk_bf16_f32 v{d}, v{b}, v{b+1}")
            A(f"v_cvt_pk_bf16_f32 v{d+1}, v{b+2}, v{b+3}")
        sd()
        if st & 1:
            sp = st // 2
            A("s_nop 1")
            for i, (te, tc) in enumerate(PAIRS):
                c = vr(KA+4*i, 4)
                A(f"v_mfma_f32_16x16x32_bf16 {c}, {vr(PB+(te*2+sp)*4,4)}, {vr(PB+(tc*2+sp)*4,4)}, {c if sp else 0}")
            for tc in range(3):
                c = vr(KA+4*(7+tc), 4)
                A(f"v_mfma_f32_16x16x32_bf16 {c}, {vr(ONE,4)}, {vr(PB+(tc*2+sp)*4,4)}, {c if sp else 0}")
    assert not side
    A("s_waitcnt vmcnt(10)")
    A(f"s_mul_i32 s85, s{sWC_}, 10240")
    A(f"s_add_u32 s85, s85, {LDS_RED}")
    A(f"v_add_u32 v3, s85, v{vB0}")
    A(f"s_cmp_eq_u32 s{sWR_}, 0")
    A("s_cbranch_scc1 kv_e1")
    A("s_nop 4")
    for i in range(10):
        if i < 7: A(f"ds_write_b128 v3, {vr(KA+4*i,4)} offset:{1024*i}")
        else: A(f"ds_write_b32 v3, v{KA+4*i} offset:{1024*i}")
    A("s_waitcnt lgkmcnt(0)")
    A("s_barrier")
    zero_acc(A)
    A("s_branch kv_e2")
    A.label("kv_e1")
    zero_acc(A)
    A("s_barrier")
    for i in range(10):
        if i < 7: A(f"ds_read_b128 {vr(PB+4*i,4)}, v3 offset:{1024*i}")
        else: A(f"ds_read_b32 v{PB+4*i}, v3 offset:{1024*i}")
    A(f"s_lshl_b32 s85, s{sBp}, 1")
    A(f"s_add_u32 s85, s85, s{sWC_}")
    A("s_lshl_b32 s86, s85, 4")
    A(f"s_add_u32 s86, s86, s{sA}")
    A("s_mul_i32 s86, s86, 7168")
    A(f"s_add_u32 s86, s86, {WS_KVP:#x}")
    A("s_add_u32 s87, s86, 4096")
    A("s_mul_i32 s85, s85, 160")
    A(f"s_mul_i32 s88, s{sA}, 2560")
    A("s_add_u32 s85, s85, s88")
    A(f"s_add_u32 s85, s85, {WS_ZP:#x}")
    A("v_lshlrev_b32 v4, 2, v1")
    for i in range(10):
        A(f"s_waitcnt lgkmcnt({9-i})")
        for k in range(4 if i < 7 else 1):
            A(f"v_add_f32 v{KA+4*i+k}, v{KA+4*i+k}, v{PB+4*i+k}")
        if i < 7:
            m = kv_mask(i)
            A(f"s_mov_b32 exec_lo, {m & 0xffffffff:#x}")
            A(f"s_mov_b32 exec_hi, {m >> 32:#x}")
            A(f"buffer_store_dwordx4 {vr(KA+4*i,4)}, v{vB0}, s[{sWS}:{sWS+3}], s{86 if i < 4 else 87} offen offset:{1024*(i&3)} sc1")
            A("s_mov_b64 exec, -1")
    A("s_mov_b64 exec, 0xffff")
    A(f"buffer_store_dword v{KA+28}, v4, s[{sWS}:{sWS+3}], s85 offen sc1")
    A(f"buffer_store_dword v{KA+32}, v4, s[{sWS}:{sWS+3}], s85 offen offset:64 sc1")
    A("s_mov_b64 exec, 0xff")
    A(f"buffer_store_dword v{KA+36}, v4, s[{sWS}:{sWS+3}], s85 offen offset:128 sc1")
    A("s_mov_b64 exec, -1")
    A.label("kv_e2")

def w2_prefetch(A, locbase, parts):
    A(f"s_sub_u32 s85, s82, {locbase}")
    A("s_lshl_b32 s85, s85, 2")
    A(f"s_add_u32 s85, s85, s{sWAVE}")
    A("v_lshrrev_b32 v2, 3, v1")
    A("v_lshlrev_b32 v2, 12, v2")
    A("v_and_b32 v3, 7, v1")
    A("v_lshl_add_u32 v2, v3, 7, v2")
    A("s_mul_i32 s85, s85, 24")
    A("s_mul_i32 s86, s84, 768")
    A("s_add_u32 s85, s85, s86")
    A(f"s_add_u32 s85, s85, {8*parts[0]}")
    A("s_lshl_b32 s85, s85, 12")
    A("s_lshl_b32 s86, s83, 10")
    A("s_add_u32 s85, s85, s86")
    for i in parts:
        A(f"buffer_load_dword a255, v2, s[{sW2}:{sW2+3}], s85 offen")
        if i != parts[-1]: A(f"s_add_u32 s85, s85, {8*4096}")

def q_epilogue(A):
    PK, Z, AF, MSK, ZP, G = 128, 168, 168, 194, 16, 8
    KA_, DEN, OUT, TMP = 48, 208, 228, 112
    WBa, KVa, KBa = 0, 20, 40
    sMA, sMB, sIB = 26, 92, 23
    A(f"s_mul_i32 s85, s{sU}, {40*1280}")
    A(f"s_mul_i32 s86, s{sNR}, 320")
    A("s_add_u32 s85, s85, s86")
    A(f"s_lshl_b32 s86, s{sWAVE}, 8")
    A(f"s_lshl_b32 m0, s{sWAVE}, 12")
    for n in range(4):
        A(f"v_add_u32 v2, {64*n}, v1")
        A("v_add_u32 v2, s86, v2")
        A("v_mul_u32_u24 v3, 3277, v2")
        A("v_lshrrev_b32 v3, 16, v3")
        A("v_mul_u32_u24 v4, 20, v3")
        A("v_sub_u32 v4, v2, v4")
        A("v_mul_u32_u24 v3, 1280, v3")
        A("v_lshl_add_u32 v3, v4, 4, v3")
        if n: A(f"v_subrev_u32 v3, {1024*n}, v3")
        A(f"buffer_load_dwordx4 v3, s[{sWO}:{sWO+3}], s85 offen offset:{1024*n} lds")
    A(poll_ld(vPO, 24))
    npf = 0
    if OPT["pf_w2"]:
        w2_prefetch(A, 16, [2]); npf = 1
    A(f"s_mov_b32 s{sL2}, {LOG2E:#x}")
    A(f"s_mov_b32 s{sL2+1}, {LOG2E:#x}")
    for k, b in enumerate(range(ACC, ACC+80, 4)):
        phi4(A, b, DEN)
        A(f"v_cvt_pk_bf16_f32 v{PK+2*k}, v{b}, v{b+1}")
        A(f"v_cvt_pk_bf16_f32 v{PK+2*k+1}, v{b+2}, v{b+3}")
    A(f"s_waitcnt vmcnt({npf})")
    poll_check(A, "pln3", vPO, 24)
    A("s_barrier")
    A("v_and_b32 v3, 15, v1")
    A("v_lshrrev_b32 v4, 4, v1")
    A("v_lshlrev_b32 v6, 2, v3")
    A(f"s_lshl_b32 s86, s{sA}, 9")
    A(f"s_lshl_b32 s87, s{sWR_}, 8")
    A("s_add_u32 s86, s86, s87")
    A(f"s_add_u32 s86, s86, {WS_G:#x}")
    for st in range(4):
        A(f"buffer_load_dword v{G+st}, v6, s[{sWS}:{sWS+3}], s86 offen offset:{64*st} sc1")
    poll_off(A, 12, 32)
    A(f"s_mov_b32 s24, {FL_KV:#x}")
    A(poll_ld(12, 24))
    A("v_lshrrev_b32 v5, 2, v3")
    A("v_lshl_add_u32 v5, v4, 2, v5")
    A("v_and_b32 v6, 7, v5")
    A("v_mul_u32_u24 v6, 320, v6")
    A("v_mul_u32_u24 v5, 320, v5")
    A("v_and_b32 v7, 3, v1")
    A("v_lshlrev_b32 v7, 3, v7")
    A(f"s_lshl_b32 s86, s{sWAVE}, 5")
    A("v_add_u32 v7, s86, v7")
    A("v_add_u32 v6, v6, v7")
    A("v_add_u32 v5, v5, v7")
    for i in range(3):
        A(f"ds_read_b64_tr_b16 {ar(WBa+6*i,2)}, v6 offset:{128*i}")
        A(f"ds_read_b64_tr_b16 {ar(WBa+6*i+2,2)}, v5 offset:{128*i + 8*320}")
        A(f"ds_read_b64_tr_b16 {ar(WBa+6*i+4,2)}, v5 offset:{128*i + 24*320}")
    A(f"s_mul_i32 s86, s{sU}, 10")
    T = DEN
    for tc in range(3):
        d = 26 + tc
        A(f"v_add_u32 v5, s86, v4")
        if tc: A(f"v_add_u32 v5, {4*tc}, v5")
        A("v_and_b32 v6, 3, v5")
        A("v_lshrrev_b32 v5, 2, v5")
        A(f"v_lshlrev_b32 v{d}, 8, v6")
        A(f"v_lshl_add_u32 v{d}, v3, 4, v{d}")
        A("v_mul_u32_u24 v6, 205, v5")
        A("v_lshrrev_b32 v6, 10, v6")
        A(f"v_mul_u32_u24 v{T}, 5, v6")
        A(f"v_sub_u32 v5, v5, v{T}")
        A(f"v_and_b32 v{T}, 1, v6")
        A("v_lshrrev_b32 v6, 1, v6")
        A("v_mul_u32_u24 v6, 5, v6")
        A(f"v_mul_u32_u24 v{T+1}, 3, v{T}")
        A(f"v_lshrrev_b32 v{T+2}, 1, v5")
        A(f"v_add_u32 v{T+1}, v{T+1}, v{T+2}")
        A(f"v_and_b32 v{T+2}, 1, v5")
        A("v_cmp_eq_u32 vcc, 4, v5")
        A("s_nop 1")
        A(f"v_cndmask_b32 v{T+1}, v{T+1}, 2, vcc")
        A(f"v_cndmask_b32 v{T+2}, v{T+2}, v{T}, vcc")
        A(f"v_add_u32 v6, v6, v{T+1}")
        A("v_mul_u32_u24 v6, 40960, v6")
        A(f"v_add_u32 v{d}, v{d}, v6")
        A(f"v_lshl_add_u32 v{d}, v{T+2}, 3, v{d}")
    A(f"s_add_u32 s{sIB}, s{sWAVE}, 4")
    A(f"s_min_u32 s{sIB}, s{sIB}, 6")
    for sm, lo in ((sMA, 0), (sMB, 4)):
        for half in range(2):
            vals = [(kv_mask(min(lo + w, 6)) >> (32*half)) & 0xffffffff for w in range(4)]
            A(f"s_mov_b32 s{sm+half}, {vals[0]:#x}")
            for w in range(1, 4):
                A(f"s_cmp_eq_u32 s{sWAVE}, {w}")
                A(f"s_cselect_b32 s{sm+half}, {vals[w]:#x}, s{sm+half}")
    for t in range(5):
        A(f"v_lshl_add_u32 v{T+t}, v4, 2, {16*t}")
        A(f"v_mul_u32_u24 v{T+t}, 205, v{T+t}")
        A(f"v_lshrrev_b32 v{T+t}, 12, v{T+t}")
        A(f"v_add_u32 v{T+5+t}, {16*t}, v3")
        A(f"v_mul_u32_u24 v{T+5+t}, 205, v{T+5+t}")
        A(f"v_lshrrev_b32 v{T+5+t}, 12, v{T+5+t}")
    dp = [(tp, t) for tp in range(5) for t in range(5) if abs(tp - t) <= 1]
    for k, (tp, t) in enumerate(dp):
        A(f"v_cmp_eq_u32 vcc, v{T+t}, v{T+5+tp}")
        A("s_nop 1")
        A(f"v_cndmask_b32 v{MSK+k}, 0, -1, vcc")
    A("v_mul_u32_u24 v5, 2560, v3")
    A("v_lshl_add_u32 v5, v4, 4, v5")
    A(f"s_mul_i32 s86, s{sBp}, 640")
    A(f"s_mul_i32 s87, s{sWC_}, 320")
    A("s_add_u32 s86, s86, s87")
    A(f"s_add_u32 s86, s86, {WS_ZP:#x}")
    A(f"s_mul_i32 s89, s{sU}, {16*7168}")
    A(f"s_add_u32 s89, s89, {WS_KVP:#x}")
    A(f"s_lshl_b32 s87, s{sWAVE}, 10")
    A("s_add_u32 s87, s87, s89")
    A(f"s_lshl_b32 s88, s{sIB}, 10")
    A("s_add_u32 s88, s88, s89")
    stamp(A, "q_pre")
    A("s_waitcnt vmcnt(0) lgkmcnt(0)")
    poll_check(A, "pkv", 12, 24)
    A("s_barrier")
    stamp(A, "q_kvok")
    for t in range(5):
        A(f"buffer_load_dwordx4 {vr(Z+4*t,4)}, v5, s[{sWS}:{sWS+3}], s86 offen offset:{64*t} sc1")
    kvl = []
    for sm, so, dst in ((sMA, 24, lambda rb: vr(KA_+4*rb, 4)), (sMB, 25, lambda rb: ar(KBa+4*rb, 4))):
        for rb in range(0, 16, 2):
            kvl.append([f"s_mov_b64 exec, s[{sm}:{sm+1}]",
                        f"buffer_load_dwordx4 {dst(rb)}, v{vB0}, s[{sWS}:{sWS+3}], s{so} offen sc1",
                        f"buffer_load_dwordx4 {dst(rb+1)}, v29, s[{sWS}:{sWS+3}], s{so} offen sc1",
                        "s_mov_b64 exec, -1", f"s_add_u32 s{so}, s{so}, 14336"])
    def kv(n):
        for _ in range(n):
            if kvl:
                for x in kvl.pop(0): A(x)
    A("s_mov_b32 s24, s87")
    A("s_mov_b32 s25, s88")
    A(f"v_add_u32 v29, 7168, v{vB0}")
    kv(2)
    A(f"s_lshl_b32 s85, s{sA}, 1")
    A(f"s_add_u32 s85, s85, s{sWR_}")
    A("s_mul_i32 s85, s85, 20")
    A(f"s_mul_i32 s86, s{sBp}, 5")
    A("s_add_u32 s85, s85, s86")
    A("s_lshl_b32 s85, s85, 12")
    A(f"s_add_u32 s85, s85, {WS_PQ:#x}")
    A(f"s_mul_i32 s86, s{sWC_}, {3*4096}")
    A("s_add_u32 s86, s86, s85")
    A("s_add_u32 s87, s86, 4096")
    A(f"s_lshl_b32 s88, s{sWC_}, 3")
    A("s_add_u32 s88, s88, s85")
    A("s_add_u32 s88, s88, 8192")
    A("s_waitcnt vmcnt(4)")
    stamp(A, "q_z")
    for rot in (8, 4, 2, 1):
        kv(1)
        for i in range(20):
            A(f"v_add_f32_dpp v{Z+i}, v{Z+i}, v{Z+i} row_ror:{rot} row_mask:0xf bank_mask:0xf")
    for i in range(10): A(f"v_cvt_pk_bf16_f32 v{ZP+i}, v{Z+2*i}, v{Z+2*i+1}")
    kv(2)
    for k, (tp, t) in enumerate(dp):
        A(f"v_and_b32 v{AF+2*k}, v{MSK+k}, v{ZP+2*t}")
        A(f"v_and_b32 v{AF+2*k+1}, v{MSK+k}, v{ZP+2*t+1}")
    A("s_nop 0")
    def den(st):
        seen = set()
        for k, (tp, t) in enumerate(dp):
            c = vr(DEN + 4*tp, 4)
            A(f"v_mfma_f32_16x16x16_bf16 {c}, {vr(AF+2*k,2)}, {vr(PK+(st*5+t)*2,2)}, {c if tp in seen else 0}")
            seen.add(tp)
    for st in range(4):
        den(st)
        o = OUT + 10*(st & 1)
        U = TMP + 6
        if kvl: kv(2)
        else: A("s_nop 7")
        for tp in range(5): A(f"v_add_f32 v{TMP+tp}, {EPS6:#x}, v{DEN+4*tp}")
        for tp in range(5): A(f"v_rcp_f32 v{TMP+tp}, v{TMP+tp}")
        A("s_nop 0")
        for tp in range(5): A(f"v_mul_f32 v{TMP+tp}, v{TMP+tp}, v{G+st}")
        for tp in range(5):
            p = PK + (st*5+tp)*2
            if tp == 2: kv(2)
            A(f"v_lshlrev_b32 v{U}, 16, v{p}")
            A(f"v_and_b32 v{U+1}, 0xffff0000, v{p}")
            A(f"v_lshlrev_b32 v{U+2}, 16, v{p+1}")
            A(f"v_and_b32 v{U+3}, 0xffff0000, v{p+1}")
            for i in range(4): A(f"v_mul_f32 v{U+i}, v{U+i}, v{TMP+tp}")
            A(f"v_cvt_pk_bf16_f32 v{o+2*tp}, v{U}, v{U+1}")
            A(f"v_cvt_pk_bf16_f32 v{o+2*tp+1}, v{U+2}, v{U+3}")
        A(f"buffer_store_dwordx4 {vr(o,4)}, v{vB0}, s[{sWS}:{sWS+3}], s86 offen offset:{1024*st} sc1")
        A(f"buffer_store_dwordx4 {vr(o+4,4)}, v{vB0}, s[{sWS}:{sWS+3}], s87 offen offset:{1024*st} sc1")
        A(f"buffer_store_dwordx2 {vr(o+8,2)}, v{vB0}, s[{sWS}:{sWS+3}], s88 offen offset:{1024*st} sc1")
    assert not kvl
    stamp(A, "q_pq")
    A(f"s_mov_b32 s25, {FL_Q:#x}")
    A("s_waitcnt vmcnt(9)")
    KB = 128
    for i in range(64): A(f"v_accvgpr_read_b32 v{KB+i}, a{KBa+i}")
    for w in (32, 16, 8, 4):
        for base in (KA_, KB):
            for i in range(0, w, 2):
                A(f"v_pk_add_f32 {vr(base+i,2)}, {vr(base+i,2)}, {vr(base+w+i,2)}")
    A("v_lshlrev_b32 v7, 3, v1")
    A(f"v_add_u32 v7, {LDS_RED}, v7")
    for base, sm, sidx in ((KA_, sMA, sWAVE), (KB, sMB, sIB)):
        for i in range(4): A(f"v_cndmask_b32 v{base+i}, 0, v{base+i}, s[{sm}:{sm+1}]")
        A(f"v_cvt_pk_bf16_f32 v{base}, v{base}, v{base+1}")
        A(f"v_cvt_pk_bf16_f32 v{base+1}, v{base+2}, v{base+3}")
        A(f"s_lshl_b32 s86, s{sidx}, 9")
        A("v_add_u32 v6, s86, v7")
        A(f"ds_write_b64 v6, {vr(base,2)}")
    A(f"s_mul_i32 s86, s{sNR}, 10240")
    A(f"s_lshl_b32 s87, s{sWAVE}, 10")
    A("s_add_u32 s86, s86, s87")
    A(f"s_add_u32 s86, s86, {WS_M:#x}")
    A("s_waitcnt lgkmcnt(0)")
    A("s_barrier")
    for i in range(7): A(f"ds_read_b64 {ar(KVa+2*i,2)}, v7 offset:{512*i}")
    A("s_waitcnt lgkmcnt(0)")
    MD = 64
    for i in range(3):
        seen = set()
        for k, (te, tc) in enumerate(PAIRS):
            c = vr(MD + (i*3+tc)*4, 4)
            A(f"v_mfma_f32_16x16x16_bf16 {c}, {ar(KVa+2*k,2)}, {ar(WBa+6*i+2*(te-2),2)}, {c if tc in seen else 0}")
            seen.add(tc)
    for i in range(3):
        if i == 2:
            A(f"s_cmp_ge_u32 s{sWAVE}, 2")
            A("s_cbranch_scc1 q_m_done")
            A("s_nop 2")
        for tc in range(3):
            b = MD + (i*3+tc)*4
            A(f"v_cvt_pk_bf16_f32 v{b}, v{b}, v{b+1}")
            A(f"v_cvt_pk_bf16_f32 v{b+1}, v{b+2}, v{b+3}")
            if tc == 2: A("s_mov_b32 exec_hi, 0")
            A(f"buffer_store_dwordx2 {vr(b,2)}, v{26+tc}, s[{sWS}:{sWS+3}], s86 offen sc1")
            if tc == 2: A("s_mov_b32 exec_hi, -1")
        A("s_add_u32 s86, s86, 4096")
    A.label("q_m_done")
    stamp(A, "q_mdone")

def ln_role(A, after_loads, ne):
    X, GW, D = 48, 88, 128
    A("v_lshrrev_b32 v2, 3, v1")
    A(f"s_lshl_b32 s85, s{sWAVE}, 3")
    A("v_add_u32 v2, s85, v2")
    A("v_and_b32 v3, 7, v1")
    A("v_lshlrev_b32 v3, 4, v3")
    A("v_mul_u32_u24 v4, 1280, v2")
    A("v_add_u32 v4, v4, v3")
    A(f"s_mul_i32 s85, s{sA}, {32*1280}")
    A("s_waitcnt lgkmcnt(0)"); srds(A, ["X", "GW"])
    for i in range(10):
        A(f"buffer_load_dwordx4 {vr(X+4*i,4)}, v4, s[{sX}:{sX+3}], s85 offen offset:{128*i}")
    for i in range(10):
        A(f"buffer_load_dwordx4 {vr(GW+4*i,4)}, v3, s[{sGW}:{sGW+3}], 0 offen offset:{128*i}")
    A("v_mul_u32_u24 v16, 1312, v2")
    A("v_add_u32 v16, v16, v3")
    A("v_lshlrev_b32 v17, 2, v2")
    A("v_cmp_eq_u32 s[92:93], 0, v3")
    after_loads(A)
    A("v_mov_b32 v5, 0x3f803f80")
    for i in range(4): A(f"v_mov_b32 v{8+i}, 0")
    A(f"s_waitcnt vmcnt({10+ne})")
    stamp(A, "ln_first")
    for i in range(40):
        A(f"v_dot2_f32_bf16 v{8+(i&1)}, v{X+i}, v5, v{8+(i&1)}")
    A(f"s_waitcnt vmcnt({ne})")
    for i in range(40):
        A(f"v_dot2_f32_bf16 v{10+(i&1)}, v{X+i}, v{GW+i}, v{10+(i&1)}")
    A("s_nop 2")
    A("v_add_f32 v8, v8, v9")
    A("v_add_f32 v10, v10, v11")
    def red8(r):
        for m in ("quad_perm:[1,0,3,2]", "quad_perm:[2,3,0,1]", "row_half_mirror"):
            A("s_nop 1")
            for x in r: A(f"v_add_f32_dpp v{x}, v{x}, v{x} {m} row_mask:0xf bank_mask:0xf")
    red8([8, 10])
    A(f"v_mul_f32 v8, {0xBACCCCCD:#x}, v8")
    A("v_mov_b32 v9, v8")
    A(f"v_mul_f32 v10, {LOG2E | 0x80000000:#x}, v10")
    A("v_exp_f32 v10, v10")
    for i in range(40):
        A(f"v_lshlrev_b32 v{D+2*i}, 16, v{X+i}")
        A(f"v_and_b32 v{D+2*i+1}, 0xffff0000, v{X+i}")
    A("v_add_f32 v10, 1.0, v10")
    A("v_rcp_f32 v10, v10")
    for i in range(40):
        A(f"v_pk_add_f32 {vr(D+2*i,2)}, {vr(D+2*i,2)}, v[8:9]")
    A("v_pk_mul_f32 v[18:19], v[128:129], v[128:129]")
    A("v_pk_mul_f32 v[20:21], v[130:131], v[130:131]")
    for i in range(2, 40):
        a = 18 + 2*(i & 1)
        A(f"v_pk_fma_f32 {vr(a,2)}, {vr(D+2*i,2)}, {vr(D+2*i,2)}, {vr(a,2)}")
    A("v_pk_add_f32 v[18:19], v[18:19], v[20:21]")
    A(f"s_lshl_b32 s85, s{sA}, 7")
    A(f"s_add_u32 s85, s85, {WS_G:#x}")
    A("s_mov_b64 exec, s[92:93]")
    A(f"buffer_store_dword v10, v17, s[{sWS}:{sWS+3}], s85 offen sc1")
    A("s_mov_b64 exec, -1")
    A("v_add_f32 v18, v18, v19")
    red8([18])
    A(f"v_mov_b32 v19, {0x3727C5AC:#x}")
    A(f"v_fmac_f32 v19, {0x3ACCCCCD:#x}, v18")
    A("v_rsq_f32 v18, v19")
    A("s_nop 0")
    A("v_mov_b32 v19, v18")
    for i in range(40):
        A(f"v_pk_mul_f32 {vr(D+2*i,2)}, {vr(D+2*i,2)}, v[18:19]")
        A(f"v_cvt_pk_bf16_f32 v{X+i}, v{D+2*i}, v{D+2*i+1}")
        if (i & 3) == 3:
            A(f"ds_write_b128 v16, {vr(X+i-3,4)} offset:{128*(i//4)}")
    A("v_lshrrev_b32 v2, 2, v1")
    A("v_mul_u32_u24 v2, 1312, v2")
    A("v_and_b32 v3, 3, v1")
    A("v_lshl_add_u32 v2, v3, 3, v2")
    A(f"s_mul_i32 s85, s{sWAVE}, 320")
    A("v_add_u32 v2, s85, v2")
    A(f"s_mul_i32 s85, s{sA}, 40960")
    A(f"s_mul_i32 s86, s{sWAVE}, 10240")
    A("s_add_u32 s85, s85, s86")
    A("s_add_u32 s86, s85, 4096")
    A("s_add_u32 s87, s85, 8192")
    A("s_waitcnt lgkmcnt(0)")
    A("s_barrier")
    for t in range(10):
        A(f"ds_read_b64_tr_b16 {vr(D+4*t,2)}, v2 offset:{32*t}")
        A(f"ds_read_b64_tr_b16 {vr(D+4*t+2,2)}, v2 offset:{32*t + 16*1312}")
        if t == 6: A("s_waitcnt lgkmcnt(6)")
    for t in range(10):
        A(f"s_waitcnt lgkmcnt({min(2*(9-t), 6)})")
        A(f"buffer_store_dwordx4 {vr(D+4*t,4)}, v{vB0}, s[{sWS}:{sWS+3}], s{85 + t//4} offen offset:{1024*(t&3)} sc1")

def c_adv1(): return [f"s_add_u32 s{sC1}, s{sC1}, s{sCST}", f"s_cmp_eq_u32 s{sC1}, s{sCE1}", f"s_cselect_b32 s{sC1}, s{sCB1}, s{sC1}"]
def c_adv2(): return [f"s_add_u32 s{sC2}, s{sC2}, 40960", f"s_cmp_eq_u32 s{sC2}, s{sCE2}", f"s_cselect_b32 s{sC2}, s{sCB2}, s{sC2}"]
def c_wdma(slot):
    L = [[f"s_add_u32 m0, s{sCM0}, {4096*slot}"]]
    for q in range(4):
        L.append([f"buffer_load_dwordx4 v{vWS_+q}, s[{sCW}:{sCW+3}], s{sC1} offen offset:{1024*q} lds"])
    return L
def c_bload(slot, n):
    return f"buffer_load_dwordx4 {ar(BR+20*slot+4*n,4)}, v{vB0 if n < 4 else vB1}, s[{sWS}:{sWS+3}], s{sC2} offen offset:{1024*(n&3)} sc1"
def c_tr(slot, aset):
    return [f"ds_read_b64_tr_b16 {ar(AS+16*aset+4*t+2*j,2)}, v{vTR+t} offset:{4096*slot+2048*j}" for t in range(4) for j in range(2)]
def c_wring(A):
    for s in range(4):
        emit_dma_block(A, c_wdma(s))
        for x in c_adv1(): A(x)
def c_bring(A):
    for s in range(4):
        for n in range(5): A(c_bload(s, n))
        for x in c_adv2(): A(x)
def switch_to_fb(A):
    A(f"s_mov_b64 s[{sCW}:{sCW+1}], s[{sW2}:{sW2+1}]")
    A(f"s_mov_b64 s[{sCW+2}:{sCW+3}], s[{sW2+2}:{sW2+3}]")
    for i in range(4): A(f"v_mov_b32 v{vWS_+i}, v{vWS2+i}")
    A(f"s_mov_b32 s{sC1}, s{sF1}")
    A(f"s_mov_b32 s{sCB1}, s{sFB1}")
    A(f"s_mov_b32 s{sCE1}, s{sFE1}")
    A(f"s_mov_b32 s{sCST}, {32*4096}")

def c_loop(A, pfx, nks, acc, w_is_A, tail_next, drain):
    def step(u, wait, doW, doB, doT, extra=[], last=False):
        A(f"s_waitcnt vmcnt({wait}) lgkmcnt(0)")
        tr = c_tr((u+1) & 3, (u+1) & 1) if doT else []
        mf = []
        for n in range(5):
            for t in range(4):
                w = ar(AS+16*(u & 1)+4*t, 4); b = ar(BR+20*u+4*n, 4); c = vr(acc+(t*5+n)*4, 4)
                mf.append(f"v_mfma_f32_16x16x32_bf16 {c}, {w}, {b}, {c}" if w_is_A else f"v_mfma_f32_16x16x32_bf16 {c}, {b}, {w}, {c}")
        fill = [[] for _ in range(20)]
        wd = c_wdma(u)
        post = []
        if OPT.get("cv", 1) == 1 and not last:
            for k, x in enumerate(tr): fill[k].append(x)
            if doW:
                fill[8] += wd[0]
                fill[19] += flat(wd[1:])
                post = c_adv1()
            if doB:
                fill[19] += [c_bload(u, n) for n in range(5)]
                post += c_adv2()
        else:
            if doW:
                A(wd[0][0])
                for t in range(4): fill[t] += wd[1+t]
                if not last: fill[12] += c_adv1()
            for k, x in enumerate(tr): fill[4+k].append(x)
            if doB:
                for n in range(5): fill[4*n+3].append(c_bload(u, n))
                fill[19] += c_adv2()
            if last and doW: fill[5] += c_adv1()
        if last:
            for n in range(3):
                for t in range(4): fill[4*(n+2)+t] += drain(n, t)
            post += ["s_nop 3"] + flat([drain(3, t) for t in range(4)]) + flat([drain(4, t) for t in range(4)])
        weave(A, mf, fill)
        for x in post + extra: A(x)
    for x in c_tr(0, 0): A(x)
    A(f"s_mov_b32 s{sCNT}, {nks//4 - 1}")
    A(".p2align 3")
    A.label(f"{pfx}_loop")
    for u in range(4):
        if tail_next and u == 1:
            A(f"s_cmp_eq_u32 s{sPUB}, 0")
            A("s_cbranch_scc1 g1_nopub")
            A("s_waitcnt vmcnt(9)")
            A("s_barrier")
            A(f"s_cmp_lg_u32 s{sWAVE}, 0")
            A("s_cbranch_scc1 g1_pub1")
            A(f"v_mov_b32 v2, s{sNON}")
            A("v_mov_b32 v3, 0")
            A("s_mov_b64 exec, 1")
            A(f"buffer_store_dword v2, v3, s[{sWS}:{sWS+3}], s{sPUB} offen sc1")
            A("s_mov_b64 exec, -1")
            A.label("g1_pub1")
            stamp(A, "kv_pub")
            A(f"s_mov_b32 s{sPUB}, 0")
            A(".p2align 3")
            A.label("g1_nopub")
        step(u, 23, True, True, True)
    A(f"s_sub_u32 s{sCNT}, s{sCNT}, 1")
    A(f"s_cmp_lg_u32 s{sCNT}, 0")
    A(f"s_cbranch_scc1 {pfx}_loop")
    if tail_next:
        switch_to_fb(A)
        waits = (23, 18, 14, 13)
    else:
        waits = (23, 14, 5, 0)
    for u in range(4):
        step(u, waits[u], tail_next, False, u < 3, [poll_ld(15, 25)] if (tail_next and u == 1) else [], u == 3)
    stamp(A, pfx + "_loopdone")

sFA1, sFA2, sFR = 54, 55, 94
sUS = 52
vGE = 224
def fa_params(A):
    A(f"s_and_b32 s{sFR}, s{sFD}, 3")
    A(f"s_lshl_b32 s{sFR}, s{sFR}, 1")
    A(f"s_and_b32 s89, s{sFS}, 7")
    A(f"s_add_u32 s{sFR}, s{sFR}, s89")
    A(f"s_mul_i32 s89, s{sFR}, 52")
    A("s_lshr_b32 s89, s89, 8")
    A("s_mul_i32 s89, s89, 5")
    A(f"s_sub_u32 s{sFR}, s{sFR}, s89")
    if not OPT["rot"]: A(f"s_mov_b32 s{sFR}, 0")
    A(f"s_mul_i32 s86, s{sWAVE}, 5")
    A(f"s_add_u32 s86, s86, s{sFR}")
    A(f"s_mul_i32 s{sFA1}, s{sFS}, {0 if OPT.get('same') else 20}")
    A(f"s_add_u32 s{sFA1}, s{sFA1}, s86")
    A(f"s_lshl_b32 s{sFA1}, s{sFA1}, 12")
    A(f"s_add_u32 s{sFA1}, s{sFA1}, {WS_PQ:#x}")
    A(f"s_mul_i32 s{sFA2}, s86, 40960")
    A(f"s_mul_i32 s89, s{sFD}, {0 if OPT.get('same') else 5120}")
    A(f"s_add_u32 s{sFA2}, s{sFA2}, s89")
    A(f"s_add_u32 s{sFA2}, s{sFA2}, {WS_M:#x}")
fa_b = lambda i: 0 if i == 0 else 112 + 36*(i-1)
def fa_ld(A, i):
    for st in range(4):
        A(f"buffer_load_dwordx4 {ar(fa_b(i)+4*st,4)}, v{vB0}, s[{sWS}:{sWS+3}], s{sFA1} offen offset:{1024*st} sc1")
    for n in range(5):
        A(f"buffer_load_dwordx4 {ar(fa_b(i)+16+4*n,4)}, v{vB0 if n < 4 else vB1}, s[{sWS}:{sWS+3}], s{sFA2} offen offset:{1024*(n&3)} sc1")
    if i < 4:
        A(f"s_add_u32 s{sFA1}, s{sFA1}, 4096")
        A(f"s_add_u32 s{sFA2}, s{sFA2}, 40960")
        A(f"s_add_u32 s{sFR}, s{sFR}, 1")
        A(f"s_cmp_eq_u32 s{sFR}, 5")
        A(f"s_cselect_b32 s86, {5*4096}, 0")
        A(f"s_cselect_b32 s89, {5*40960}, 0")
        A(f"s_sub_u32 s{sFA1}, s{sFA1}, s86")
        A(f"s_sub_u32 s{sFA2}, s{sFA2}, s89")

def g1_params(A):
    W, Rr = vGE, vGE + 4
    A("v_and_b32 v2, 15, v1")
    A("v_lshrrev_b32 v3, 4, v1")
    A("v_xor_b32 v4, v2, v3")
    A("v_lshlrev_b32 v4, 4, v4")
    A("v_lshl_add_u32 v4, v2, 8, v4")
    A(f"s_mul_i32 s85, s{sWAVE}, 20480")
    A(f"s_add_u32 s85, s85, {LDS_RED}")
    A(f"v_add_u32 v{W}, s85, v4")
    for t in range(1, 4): A(f"v_xor_b32 v{W+t}, {64*t}, v{W}")
    A(f"s_and_b32 s85, s{sWAVE}, 1")
    A(f"s_lshr_b32 s86, s{sWAVE}, 1")
    A("s_lshl_b32 s87, s85, 7")
    A("v_xor_b32 v4, s87, v4")
    A("s_lshl_b32 s87, s86, 12")
    A(f"s_add_u32 s87, s87, {LDS_RED}")
    A(f"v_add_u32 v{Rr}, s87, v4")
    A(f"v_xor_b32 v{Rr+1}, 64, v{Rr}")
    A(f"v_add_u32 v{Rr+2}, 40960, v{Rr}")
    A(f"v_add_u32 v{Rr+3}, 40960, v{Rr+1}")
    A(f"s_lshl_b32 s87, s{sG1F}, 1")
    A("s_add_u32 s87, s87, s85")
    A("s_lshl_b32 s23, s87, 6")
    A("v_lshlrev_b32 v12, 3, v3")
    A("s_mul_i32 s87, s87, 40")
    A(f"s_mul_i32 s88, s{sG1D}, 5")
    A("s_add_u32 s87, s87, s88")
    A("s_add_u32 s87, s87, s86")
    A("s_lshl_b32 s87, s87, 10")
    A(f"s_add_u32 s{sUS}, s87, {WS_U:#x}")
    A(f"s_add_u32 s{sUS+1}, s{sUS}, 4096")
    A(f"s_mov_b32 s90, {0xBDD2D3E8:#x}")
    A(f"s_mov_b32 s91, {0xBDD2D3E8:#x}")
    A(f"v_mov_b32 v{vGE+8}, {0xC0135761:#x}")
    A(f"v_mov_b32 v{vGE+9}, {0xC0135761:#x}")
    fa_params(A)
def b1_loads():
    return [[f"buffer_load_dwordx2 {vr(vGE+18+2*j,2)}, v12, s[{sB1}:{sB1+3}], s23 offen offset:{32*j}"] for j in range(2)]
def zero_acc(A):
    for i in range(0, 80, 2): A(f"v_mov_b64 {vr(ACC+i,2)}, 0")

def g1_phase(A):
    A.label("g1_entry")
    stamp(A, "g1_first")
    c_loop(A, "g1", 16, ACC, True, True, lambda n, t: [f"ds_write_b128 v{vGE+t}, {vr(ACC+(t*5+n)*4,4)} offset:{4096*n}"])
    A("s_waitcnt vmcnt(8)")
    A(f"v_cmp_ne_u32 vcc, s{sNON}, v{vPOLL}")
    A(f"s_mov_b32 s{sQOK}, 0")
    A("s_cbranch_vccnz g1_q0")
    A(f"s_mov_b32 s{sQOK}, 1")
    fa_ld(A, 0)
    A.label("g1_q0")
    for j in range(2):
        for k in range(2):
            A(f"v_lshlrev_b32 v{vGE+10+4*j+2*k}, 16, v{vGE+18+2*j+k}")
            A(f"v_and_b32 v{vGE+11+4*j+2*k}, 0xffff0000, v{vGE+18+2*j+k}")
    A("s_waitcnt lgkmcnt(0)")
    A("s_barrier")
    stamp(A, "g1_red")
    R = 128
    def rd(r):
        for j in range(2):
            for part in range(4):
                A(f"ds_read_b128 {vr(R+32*r+16*j+4*part,4)}, v{vGE+4+j+2*(part>>1)} offset:{8192*r + 20480*(part&1)}")
    def fin(r):
        b = R + 32*r
        for j in range(2):
            x = b + 16*j
            for i in (0, 2):
                A(f"v_pk_add_f32 {vr(x+i,2)}, {vr(x+i,2)}, {vr(x+4+i,2)}")
                A(f"v_pk_add_f32 {vr(x+8+i,2)}, {vr(x+8+i,2)}, {vr(x+12+i,2)}")
        for j in range(2):
            x = b + 16*j
            for i in (0, 2): A(f"v_pk_add_f32 {vr(x+i,2)}, {vr(x+i,2)}, {vr(vGE+10+4*j+i,2)}")
        for j in range(2):
            x = b + 16*j
            for i in (0, 2): A(f"v_pk_add_f32 {vr(x+i,2)}, {vr(x+i,2)}, {vr(x+8+i,2)}")
        E = [b + 16*j + i for j in range(2) for i in range(4)]
        E2 = E[::2]
        for x in E2: A(f"v_pk_mul_f32 {vr(x+4,2)}, {vr(x,2)}, {vr(x,2)}")
        for x in E2: A(f"v_pk_fma_f32 {vr(x+4,2)}, {vr(x+4,2)}, s[90:91], {vr(vGE+8,2)}")
        for x in E2: A(f"v_pk_mul_f32 {vr(x+4,2)}, {vr(x+4,2)}, {vr(x,2)}")
        for x in E: A(f"v_exp_f32 v{x+4}, v{x+4}")
        for x in E2: A(f"v_pk_add_f32 {vr(x+4,2)}, {vr(x+4,2)}, 1.0 op_sel_hi:[1,0]")
        for x in E: A(f"v_rcp_f32 v{x+4}, v{x+4}")
        for x in E2: A(f"v_pk_mul_f32 {vr(x,2)}, {vr(x,2)}, {vr(x+4,2)}")
        for j in range(2):
            x = b + 16*j
            A(f"v_cvt_pk_bf16_f32 v{b+8+2*j}, v{x}, v{x+1}")
            A(f"v_cvt_pk_bf16_f32 v{b+9+2*j}, v{x+2}, v{x+3}")
        A(f"buffer_store_dwordx4 {vr(b+8,4)}, v{vB0}, s[{sWS}:{sWS+3}], s{sUS if r < 2 else sUS+1} offen offset:{2048*(r&1)} sc1")
    rd(0)
    A("s_waitcnt lgkmcnt(4)")
    rd(1)
    A("s_waitcnt lgkmcnt(8)")
    fin(0)
    A(f"s_cmp_ge_u32 s{sWAVE}, 2")
    A("s_cbranch_scc1 g1_e1")
    rd(2)
    A("s_waitcnt lgkmcnt(8)")
    fin(1)
    A("s_waitcnt lgkmcnt(0)")
    fin(2)
    A("s_branch g1_e2")
    A.label("g1_e1")
    A("s_waitcnt lgkmcnt(0)")
    fin(1)
    A.label("g1_e2")
    stamp(A, "g1_st")
    A(f"s_cmp_eq_u32 s{sQOK}, 0")
    A("s_cbranch_scc1 g1_q1")
    fa_ld(A, 1)
    A("s_waitcnt vmcnt(9)")
    A("s_branch g1_q2")
    A.label("g1_q1")
    A("s_waitcnt vmcnt(0)")
    A.label("g1_q2")
    A(f"s_mul_i32 s88, s{sG1D}, 24")
    A(f"s_add_u32 s88, s88, s{sG1F}")
    publish(A, "pub_u", FL_G1, 88, None)
    stamp(A, "g1_pub")
    A(f"s_cmp_lg_u32 s{sQOK}, 0")
    A("s_cbranch_scc1 f_go")
    A(poll_ld(15, 25))
    A("s_waitcnt vmcnt(0)")
    poll_check(A, "pq", 15, 25)

def f_phase(A):
    ACA = 128
    A.label("f_entry")
    fa_ld(A, 0); fa_ld(A, 1)
    A.label("f_go")
    stamp(A, "f_qok")
    A(f"s_or_b32 s85, s2, s{sWAVE}")
    A("s_cmp_lg_u32 s85, 0")
    A("s_cbranch_scc1 f_nox")
    A(f"v_mov_b32 v2, s{sNON}")
    A("v_mov_b32 v3, 0")
    A(f"s_mov_b32 s85, {FL_X:#x}")
    A("s_mov_b64 exec, 1")
    A(f"buffer_store_dword v2, v3, s[{sWS}:{sWS+3}], s85 offen sc1")
    A("s_mov_b64 exec, -1")
    A.label("f_nox")
    fb = fa_b
    def fam(i):
        for n in range(5):
            for st in range(4):
                c = vr(ACA+(st*5+n)*4, 4)
                A(f"v_mfma_f32_16x16x32_bf16 {c}, {ar(fb(i)+16+4*n,4)}, {ar(fb(i)+4*st,4)}, {c if i else 0}")
    A("v_and_b32 v2, 15, v1")
    A("v_lshlrev_b32 v3, 2, v2")
    A(f"s_lshl_b32 s23, s{sFS}, 8")
    A(f"s_add_u32 s23, s23, {WS_G:#x}")
    for st in range(4):
        A(f"buffer_load_dword v{8+st}, v3, s[{sWS}:{sWS+3}], s23 offen offset:{64*st} sc1")
    A("v_lshlrev_b32 v3, 1, v2")
    A(f"s_lshl_b32 s23, s{sFS}, 7")
    A(f"s_cmp_eq_u32 s{sWAVE}, 0")
    A("s_cselect_b32 s23, s23, 0x40000000")
    for st in range(4):
        A(f"buffer_load_ushort v{4+st}, v3, s[{sB2}:{sB2+3}], s23 offen offset:{32*st}")
    fa_ld(A, 2)
    A("v_min_u32 v12, 23, v1")
    A("v_lshlrev_b32 v12, 7, v12")
    A(f"s_mul_i32 s23, s{sFD}, {24*128}")
    A(f"s_add_u32 s23, s23, {FL_G1:#x}")
    pp = OPT.get("upoll", 3)
    if pp == 2: A(poll_ld(12, 23))
    A(f"s_waitcnt vmcnt({26 + (pp == 2)})")
    fam(0)
    fa_ld(A, 3)
    if pp == 3: A(poll_ld(12, 23))
    A("s_waitcnt vmcnt(19)")
    fam(1)
    fa_ld(A, 4)
    for st in range(4):
        A(f"v_sub_f32 v{8+st}, 1.0, v{8+st}")
        A(f"v_lshlrev_b32 v{4+st}, 16, v{4+st}")
        for k in range(20): A(f"v_mov_b32 v{ACC+st*20+k}, v{4+st}")
    A(f"s_mov_b32 s{sC2}, s{sF2}")
    A(f"s_mov_b32 s{sCB2}, s{sFB2}")
    A(f"s_mov_b32 s{sCE2}, s{sFE2}")
    A("v_lshrrev_b32 v3, 4, v1")
    A("v_mul_u32_u24 v4, 336, v2")
    A("v_lshl_add_u32 v4, v3, 4, v4")
    A(f"s_mul_i32 s85, s{sWAVE}, 21504")
    A(f"s_add_u32 s85, s85, {LDS_RED}")
    A("v_add_u32 v4, s85, v4")
    A(f"s_mul_i32 s85, s{sWAVE}, {16*336}")
    A(f"s_add_u32 s85, s85, {LDS_RED}")
    A(f"s_lshl_b32 s90, s{sFS}, 2")
    A(f"s_add_u32 s90, s90, s{sWAVE}")
    A(f"s_mul_i32 s90, s90, {16*1280}")
    A(f"s_mul_i32 s87, s{sFD}, 160")
    A("s_add_u32 s90, s90, s87")
    for r in range(5):
        A(f"v_add_u32 v5, {64*r}, v1")
        A("v_mul_u32_u24 v6, 3277, v5")
        A("v_lshrrev_b32 v6, 16, v6")
        A("v_mul_u32_u24 v7, 20, v6")
        A("v_sub_u32 v7, v5, v7")
        A(f"v_mul_u32_u24 v{16+r}, 336, v6")
        A(f"v_lshl_add_u32 v{16+r}, v7, 4, v{16+r}")
        A(f"v_add_u32 v{16+r}, s85, v{16+r}")
        A(f"v_mul_u32_u24 v{24+r}, 1280, v6")
        A(f"v_lshl_add_u32 v{24+r}, v7, 3, v{24+r}")
    if pp == 2:
        A("s_waitcnt vmcnt(18)")
        poll_check(A, "pu", 12, 23)
        stamp(A, "f_uok")
        fam(2)
        c_bring(A)
        A("s_waitcnt vmcnt(29)")
        fam(3)
    else:
        A("s_waitcnt vmcnt(19)")
        fam(2)
        A("s_waitcnt vmcnt(9)")
        poll_check(A, "pu", 12, 23)
        stamp(A, "f_uok")
        c_bring(A)
        fam(3)
    A("s_waitcnt vmcnt(20)")
    fam(4)
    A("s_waitcnt vmcnt(10)")
    stamp(A, "fb_first")
    def drain(n, st):
        b = (st*5+n)*4
        return [f"v_fma_f32 v{ACA+b+i}, v{ACC+b+i}, v{8+st}, v{ACA+b+i}" for i in range(4)] + [f"ds_write_b128 v4, {vr(ACA+b,4)} offset:{st*16*336 + 64*n}"]
    c_loop(A, "fb", 12, ACC, False, False, drain)
    A("s_waitcnt lgkmcnt(0)")
    A("s_barrier")
    stamp(A, "f_red")
    R = ACC
    def rd(r):
        for part in range(4):
            A(f"ds_read_b128 {vr(R+16*r+4*part,4)}, v{16+r} offset:{21504*part}")
    rd(0); rd(1); rd(2)
    for r in range(5):
        A(f"s_waitcnt lgkmcnt({8 if r < 3 else 4*(4-r)})")
        b = R + 16*r
        for i in (0, 2):
            A(f"v_pk_add_f32 {vr(b+i,2)}, {vr(b+i,2)}, {vr(b+4+i,2)}")
            A(f"v_pk_add_f32 {vr(b+8+i,2)}, {vr(b+8+i,2)}, {vr(b+12+i,2)}")
        if r + 3 < 5: rd(r+3)
        for i in (0, 2): A(f"v_pk_add_f32 {vr(b+i,2)}, {vr(b+i,2)}, {vr(b+8+i,2)}")
        A(f"v_cvt_pk_bf16_f32 v{b}, v{b}, v{b+1}")
        A(f"v_cvt_pk_bf16_f32 v{b+1}, v{b+2}, v{b+3}")
        A(f"buffer_store_dwordx2 {vr(b,2)}, v{24+r}, s[{sOUT}:{sOUT+3}], s90 offen")

def kd(name):
    return f""".section .rodata,"a"
.p2align 6
.amdhsa_kernel {name}
  .amdhsa_next_free_vgpr 512
  .amdhsa_next_free_sgpr 102
  .amdhsa_accum_offset 256
  .amdhsa_group_segment_fixed_size 0
  .amdhsa_kernarg_size 96
  .amdhsa_user_sgpr_count 2
  .amdhsa_user_sgpr_kernarg_segment_ptr 1
  .amdhsa_system_sgpr_workgroup_id_x 1
.end_amdhsa_kernel
"""

def gen():
    hdr = open("cdna_kernels/" + NAME + ".s.ref").read().split("; Override")[0]
    hdr += f"; @launch grid=(256,1,1) block=(256,1,1) lds={LDS_BYTES}\n"
    hdr += '.amdgcn_target "amdgcn-amd-amdhsa--gfx950"\n'
    A = Asm()
    K = NAME + "_kernel"
    A(".text"); A(f".globl {K}"); A(".p2align 8"); A(f".type {K},@function"); A.label(K)
    prologue(A)
    A("s_cmp_ge_u32 s82, 16"); A("s_cbranch_scc1 r_notkv")
    A("s_and_b32 s85, s82, 3")
    A("s_lshl_b32 s86, s83, 2")
    A(f"s_add_u32 s{sA}, s85, s86")
    A("s_lshr_b32 s85, s82, 2")
    A("s_lshl_b32 s86, s84, 2")
    A(f"s_add_u32 s{sBp}, s85, s86")
    qkv_setup(A, False)
    A("s_waitcnt lgkmcnt(0)"); srds(A, ["X", "W"])
    stamp(A, "kv_pre")
    def mid(A):
        params1(A); srds(A, ["WS", "W1", "B1", "W2", "B2", "OUT"]); params2(A); g1_params(A)
    ex = {}
    for it in (8, 9):
        g = ([[poll_ld(vPO, 24)]] + b1_loads()) if it == 8 else []
        for s in (2*(it-8), 2*(it-8)+1):
            g += c_wdma(s); g[-1] = g[-1] + c_adv1()
        ex[it] = (g, 9 if it == 8 else 8)
    qkv_gemm(A, "kv", False, mid, ex, lambda A: poll_check(A, "pln", vPO, 24))
    side = []
    for sl in range(4):
        for n in range(5): side.append([c_bload(sl, n)] + (c_adv2() if n == 4 else []))
    kv_epilogue(A, side)
    stamp(A, "kv_st")
    A(f"s_lshl_b32 s{sPUB}, s{sA}, 3")
    A(f"s_add_u32 s{sPUB}, s{sPUB}, s{sBp}")
    A(f"s_lshl_b32 s{sPUB}, s{sPUB}, 7")
    A(f"s_add_u32 s{sPUB}, s{sPUB}, {FL_KV:#x}")
    g1_phase(A)
    f_phase(A)
    stamp_flush(A)
    A.label("k_end"); A("s_endpgm")
    A.label("r_notkv")
    if OPT["pf_code"]:
        A("s_getpc_b64 s[86:87]")
        A.label("pc_here")
        A(f"s_sub_u32 s86, s86, pc_here-{K}")
        A("s_subb_u32 s87, s87, 0")
        A("s_sub_u32 s85, s82, 16")
        A("s_lshl_b32 s85, s85, 2")
        A(f"s_add_u32 s85, s85, s{sWAVE}")
        A("s_lshl_b32 s85, s85, 3")
        A("v_add_lshl_u32 v2, v1, s85, 7")
        A(f"v_min_u32 v2, k_codeend-{K}-4, v2")
        A("s_mov_b64 exec, 0xff")
        A("global_load_dword a255, v2, s[86:87]")
        A("s_mov_b64 exec, -1")
    A("s_cmp_lt_u32 s82, 24"); A("s_cbranch_scc1 r_q")
    A("s_sub_u32 s87, s82, 24")
    A("s_lshl_b32 s85, s81, 3")
    A(f"s_add_u32 s{sA}, s85, s87")
    aux = " nt" if OPT.get("nt") else ""
    w1l = lambda k: f"buffer_load_dword a255, v22, s[{sW1}:{sW1+3}], s{26 + k//3} offen offset:{256*(k%3)}{aux}"
    def after(A):
        params1(A); srds(A, ["WS", "W1", "B1", "W2", "B2", "OUT"]); params2(A); g1_params(A)
        A("s_sub_u32 s88, s82, 24")
        A("s_lshl_b32 s88, s88, 2")
        A(f"s_add_u32 s88, s88, s{sWAVE}")
        A("v_and_b32 v22, 31, v1")
        A("v_mul_u32_u24 v22, 3072, v22")
        A("v_lshrrev_b32 v3, 5, v1")
        A("v_lshl_add_u32 v22, v3, 7, v22")
        A(f"s_mul_i32 s85, s88, {32*3072}")
        A("s_mul_i32 s86, s83, 768")
        A("s_add_u32 s85, s85, s86")
        A(f"s_mul_i32 s86, s84, {1024*3072}")
        A("s_add_u32 s26, s86, s85")
        A("s_xor_b32 s87, s84, 1")
        A(f"s_mul_i32 s87, s87, {1024*3072}")
        A("s_add_u32 s27, s87, s85")
        for k in range(OPT["early"] if OPT["pf_w1"] else 0): A(w1l(k))
    ln_role(A, after, OPT["early"] if OPT["pf_w1"] else 0)
    publish(A, "pub_ln", FL_LN, sA)
    stamp(A, "ln_pub")
    for k in range(OPT["early"], 6 if OPT["pf_w1"] else 0): A(w1l(k))
    if OPT["pf_w2"]: w2_prefetch(A, 24, [0, 1])
    stamp(A, "ln_pf")
    for g in b1_loads(): A(g[0])
    A(poll_ld(vPO, 24))
    c_wring(A)
    A("s_waitcnt vmcnt(16)")
    poll_check(A, "pln2", vPO, 24)
    A("s_barrier")
    c_bring(A)
    A(f"s_mov_b32 s{sPUB}, 0")
    zero_acc(A)
    A("s_waitcnt vmcnt(10)")
    stamp(A, "ln_ready")
    A("s_branch g1_entry")
    A.label("r_q")
    A("s_sub_u32 s87, s82, 16")
    A("s_and_b32 s85, s87, 3")
    A("s_lshl_b32 s86, s83, 2")
    A(f"s_add_u32 s{sA}, s85, s86")
    A("s_lshr_b32 s85, s87, 2")
    A("s_lshl_b32 s86, s84, 1")
    A(f"s_add_u32 s{sBp}, s85, s86")
    A("s_lshl_b32 s85, s81, 3")
    A("s_add_u32 s85, s85, s87")
    A(f"s_lshr_b32 s{sU}, s85, 2")
    A(f"s_and_b32 s{sNR}, s85, 3")
    qkv_setup(A, True)
    A("s_waitcnt lgkmcnt(0)"); srds(A, ["X", "W"])
    def midq(A):
        params1(A); srds(A, ["WS", "W1", "WO", "W2", "B2", "OUT"]); params2(A)
    qkv_gemm(A, "q", True, midq, {}, None)
    q_epilogue(A)
    A("s_lshl_b32 s88, s81, 3")
    A("s_add_u32 s88, s88, s82")
    A("s_sub_u32 s88, s88, 16")
    publish(A, "pub_q", FL_Q, 88)
    stamp(A, "q_pub")
    switch_to_fb(A)
    A(poll_ld(vPO, 25))
    c_wring(A)
    A("s_waitcnt vmcnt(16)")
    poll_check(A, "pq2", vPO, 25)
    A("s_barrier")
    stamp(A, "q_allq")
    if OPT["pf_pq"]:
        A("s_sub_u32 s88, s82, 16")
        A("s_lshl_b32 s88, s88, 2")
        A(f"s_add_u32 s88, s88, s{sWAVE}")
        A("v_lshlrev_b32 v2, 7, v1")
        A(f"s_mul_i32 s85, s83, {8*81920}")
        A(f"s_mul_i32 s86, s88, {160*128}")
        A("s_add_u32 s85, s85, s86")
        A(f"s_add_u32 s85, s85, {WS_PQ:#x}")
        for i in range(3):
            if i == 2: A("s_mov_b32 exec_hi, 0")
            A(f"buffer_load_dword a255, v2, s[{sWS}:{sWS+3}], s85 offen sc1")
            A("s_add_u32 s85, s85, 8192")
        A("s_mov_b32 exec_hi, -1")
        A("s_cmp_ge_u32 s88, 20")
        A("s_cbranch_scc1 q_pfd")
        A("s_mul_i32 s85, s88, 40960")
        A("s_mul_i32 s86, s84, 20480")
        A("s_add_u32 s85, s85, s86")
        A(f"s_add_u32 s85, s85, {WS_M:#x}")
        for i in range(3):
            if i == 2: A("s_mov_b32 exec_hi, 0")
            A(f"buffer_load_dword a255, v2, s[{sWS}:{sWS+3}], s85 offen sc1")
            A("s_add_u32 s85, s85, 8192")
        A("s_mov_b32 exec_hi, -1")
        A.label("q_pfd")
    fa_params(A)
    A("s_waitcnt vmcnt(0)")
    A("s_branch f_entry")
    A.label("k_codeend")
    for i, l in enumerate(A.lines):
        if l.startswith("v_mad_i32_i24 v4, v3, -20"):
            A.lines[i] = l.replace("-20", "s89")
        if l == "s_movk_i32 s88, 3840":
            A.lines[i] = "s_movk_i32 s89, -20"
    nb = check(A.lines)
    print("hazards:", nb, file=sys.stderr)
    return hdr + A.text() + kd(K)

if __name__ == "__main__":
    out = sys.argv[1]
    for a in sys.argv[2:]:
        if a == "st": STAMPS = True
        else:
            k, v = a.split("="); OPT[k] = int(v)
    open(out, "w").write(gen())
    if STAMPS: json.dump(_st["names"], open(out + ".names", "w"))
```

```python
import sys, json
from asmlib import Asm, vr, ar, sr, check

NAME = "gated_mix__linear_attn_block__mixer_token_mlp__prompt"
WS_H   = 0x000000
WS_U   = 0x280000
WS_PQ  = 0x460000
WS_M   = 0x6E0000
WS_KVP = 0x7A8000
WS_ZP  = 0x880000
WS_G   = 0x972000
WS_FLAG = 0x974000
FL_X = WS_FLAG
FL_LN = WS_FLAG + 128
FL_KV = FL_LN + 64*128
FL_Q = FL_KV + 128*128
FL_G1 = FL_Q + 64*128
WS_SIZE = FL_G1 + 192*128
WS_STAMP = 0x1000000

sX, sW, sWS, sW1, sW2, sOUT, sWO, sB1, sB2, sGW = 28, 32, 36, 40, 44, 48, 52, 56, 60, 64
sWAVE = 68
sA, sBp = 69, 70
sG1D, sG1F, sFS, sFD = 71, 72, 73, 74
sCNT, sO1, sO2, sRD, sWR, sM0 = 75, 76, 77, 78, 79, 80
sEX, sMK = 90, 92
sU, sNR = 94, 95
sWR_, sWC_ = 96, 97
sPUB = 3
sQOK = 99
sM1 = 98
sC1, sC2, sCM0, sCB1, sCE1, sCB2, sCE2, sCST, sCW, sNON = 4, 5, 6, 7, 8, 9, 10, 11, 12, 16
sF1, sFB1, sFE1, sF2, sFB2, sFE2 = 17, 18, 19, 20, 21, 22
LOG2E = 0x3FB8AA3B
EPS6 = 0x358637BD
LDS_RED = 65536
LDS_BYTES = 163840
vXO, vWO_, vXB, vCUR = 16, 20, 25, 29
vWS_, vB0, vB1, vTR, vWS2 = 33, 37, 38, 39, 43
ACC = 48
FA_, FB_ = 112, 148
BR, AS = 0, 80
STG = 36864
vPOLL, vPO = 14, 13
OPT = {"rot": 1, "pf_w1": 1, "pf_w2": 1, "pf_code": 1, "pf_pq": 1, "sleep": 4, "early": 1, "d": 3, "qpoll": 2, "nbin": 10, "cv": 0, "lnseq": 14, "qw2": 1, "qw2b": 0, "ntq": 0, "qw1": 3, "qw1n": 0, "kvr": 1, "touch": 1, "perm": 0, "otouch": 0, "rdb": 4, "w2c": 0}
STAMPS = False
_st = {"n": 0, "names": []}

def stamp(A, name, real=False):
    if not STAMPS: return
    i = _st["n"]; _st["n"] += 1; _st["names"].append(name)
    A("s_memrealtime s[100:101]" if real else "s_memtime s[100:101]")
    A("s_waitcnt lgkmcnt(0)")
    A(f"v_writelane_b32 v47, s100, {i}")
def stamp_flush(A):
    if not STAMPS: return
    stamp(A, "end"); stamp(A, "endreal", True)
    A("s_lshl_b32 s100, s2, 2")
    A(f"s_add_u32 s100, s100, s{sWAVE}")
    A("s_lshl_b32 s100, s100, 8")
    A(f"s_add_u32 s100, s100, {WS_STAMP:#x}")
    A(f"s_mov_b32 s{sWS+2}, 0x2000000")
    A("v_lshlrev_b32 v46, 2, v1")
    A(f"buffer_store_dword v47, v46, s[{sWS}:{sWS+3}], s100 offen")

def srds(A, which):
    tab = {"X": (sX, 4, 2048*1280), "W": (sW, 6, 640*3840), "WO": (sWO, 8, 640*1280), "W1": (sW1, 12, 2048*3072), "B1": (sB1, 14, 3072),
           "W2": (sW2, 16, 1536*4096), "B2": (sB2, 18, 4096), "GW": (sGW, 20, 1280), "OUT": (sOUT, 22, 2048*1280), "WS": (sWS, 26, WS_SIZE)}
    for w in which:
        base, ptr, size = tab[w]
        A(f"s_mov_b64 s[{base}:{base+1}], s[{ptr}:{ptr+1}]")
        A(f"s_mov_b32 s{base+2}, {size:#x}")
        A(f"s_mov_b32 s{base+3}, 0x20000")

def flat(groups):
    out = []
    for g in groups: out += g if isinstance(g, list) else [g]
    return out

def weave(A, mf, fill, first=0):
    for i, m in enumerate(mf):
        A(m)
        if i < len(fill):
            for x in fill[i]: A(x)
    for g in fill[len(mf):]:
        for x in g: A(x)

def poll_off(A, dst, nper, total_waves_split=True):
    A(f"v_and_b32 v{dst}, {nper-1}, v1")
    A(f"s_mul_i32 s85, s{sWAVE}, {nper}")
    A(f"v_add_lshl_u32 v{dst}, v{dst}, s85, 7")
def poll_ld(vo, so):
    return f"buffer_load_dword v{vPOLL}, v{vo}, s[{sWS}:{sWS+3}], s{so} offen sc1"
def poll_check(A, name, vo, so):
    A(f"v_cmp_ne_u32 vcc, s{sNON}, v{vPOLL}")
    A(f"s_cbranch_vccz {name}_ok")
    A(f"s_mov_b32 s{sM1}, 0")
    A.label(f"{name}_spin")
    A(f"s_add_u32 s{sM1}, s{sM1}, 1")
    A(f"s_cmp_gt_u32 s{sM1}, 0x8000")
    A(f"s_cbranch_scc1 {name}_ok")
    A(f"s_sleep {OPT['sleep']}")
    A(poll_ld(vo, so))
    A("s_waitcnt vmcnt(0)")
    A(f"v_cmp_ne_u32 vcc, s{sNON}, v{vPOLL}")
    A(f"s_cbranch_vccnz {name}_spin")
    A.label(f"{name}_ok")
def flag_store(A, so):
    A(f"v_mov_b32 v2, s{sNON}")
    A("v_lshlrev_b32 v3, 2, v1")
    A("s_mov_b32 exec_hi, 0")
    A(f"buffer_store_dword v2, v3, s[{sWS}:{sWS+3}], s{so} offen sc1")
    A("s_mov_b32 exec_hi, -1")
def publish(A, name, base, sidx, wait=0):
    if wait is not None: A(f"s_waitcnt vmcnt({wait})")
    A("s_barrier")
    A(f"s_cmp_lg_u32 s{sWAVE}, 0")
    A(f"s_cbranch_scc1 {name}_np")
    A(f"s_lshl_b32 s85, s{sidx}, 7")
    A(f"s_add_u32 s85, s85, {base:#x}")
    flag_store(A, 85)
    A.label(f"{name}_np")

def prologue(A):
    A("s_cmp_ge_u32 s2, 256")
    A("s_cbranch_scc1 k_end")
    if STAMPS: A("v_mov_b32 v47, 0")
    stamp(A, "startreal", True); stamp(A, "start")
    A("s_load_dwordx16 s[4:19], s[0:1], 0")
    A("s_load_dwordx8 s[20:27], s[0:1], 64")
    A("v_lshrrev_b32 v2, 6, v0")
    A("v_and_b32 v1, 63, v0")
    A(f"v_readfirstlane_b32 s{sWAVE}, v2")
    A("s_and_b32 s81, s2, 7")
    A("s_lshr_b32 s82, s2, 3")
    A("s_lshr_b32 s83, s81, 1")
    A("s_and_b32 s84, s81, 1")

def params1(A):
    A(f"s_add_u32 s86, s26, {FL_X:#x}")
    A("s_addc_u32 s87, s27, 0")
    A("s_load_dword s3, s[86:87], 0")
    A("s_lshr_b32 s85, s82, 2")
    A("s_lshl_b32 s88, s83, 3")
    if OPT["perm"]: A("s_xor_b32 s85, s85, 7")
    A(f"s_add_u32 s{sFS}, s85, s88")
    A("s_and_b32 s85, s82, 3")
    A("s_lshl_b32 s88, s84, 2")
    A(f"s_add_u32 s{sFD}, s85, s88")
    A("s_sub_u32 s85, s82, 8")
    A("s_cmp_lt_u32 s82, 16")
    A("s_cselect_b32 s85, s82, s85")
    A("s_and_b32 s89, s85, 3")
    A(f"s_add_u32 s{sG1D}, s89, s88")
    A("s_lshr_b32 s85, s85, 2")
    A("s_mul_i32 s88, s83, 6")
    if OPT["perm"]: A("s_sub_u32 s88, s88, s85\ns_sub_u32 s88, s88, s85\ns_add_u32 s88, s88, 5")
    A(f"s_add_u32 s{sG1F}, s85, s88")
    A("s_lshr_b32 s88, s85, 2")
    A("s_lshl_b32 s85, s85, 1")
    A("s_add_u32 s85, s85, s88")
    A("s_lshl_b32 s85, s85, 1")
    A(f"s_mul_i32 s89, s89, {OPT['rdb']}")
    A("s_add_u32 s85, s85, s89")
    A(f"s_and_b32 s99, s85, {15 if OPT['rot'] else 0}")

def params2(A):
    if OPT.get("same"):
        for k, r in enumerate((sG1D, sG1F, sFS, sFD)):
            A(f"s_mov_b32 s{100 if not STAMPS else 64+k}, s{r}")
            A(f"s_mov_b32 s{r}, 0")
        params2_(A)
        for k, r in enumerate((sG1D, sG1F, sFS, sFD)): A(f"s_mov_b32 s{r}, s{64+k}")
    else: params2_(A)
def params2_(A):
    A(f"s_mul_i32 s{sCB1}, s{sWAVE}, {16*32*3072}")
    A(f"s_lshl_b32 s85, s{sG1F}, 7")
    A(f"s_add_u32 s{sCB1}, s{sCB1}, s85")
    A(f"s_add_u32 s{sCE1}, s{sCB1}, {16*32*3072}")
    A(f"s_mul_i32 s85, s99, {32*3072}")
    A(f"s_add_u32 s{sC1}, s{sCB1}, s85")
    A(f"s_mul_i32 s{sCB2}, s{sWAVE}, {16*40960}")
    A(f"s_mul_i32 s85, s{sG1D}, 5120")
    A(f"s_add_u32 s{sCB2}, s{sCB2}, s85")
    A(f"s_add_u32 s{sCE2}, s{sCB2}, {16*40960}")
    A(f"s_mul_i32 s85, s99, 40960")
    A(f"s_add_u32 s{sC2}, s{sCB2}, s85")
    A(f"s_mov_b32 s{sCST}, {32*3072}")
    A(f"s_mov_b64 s[{sCW}:{sCW+1}], s[{sW1}:{sW1+1}]")
    A(f"s_mov_b64 s[{sCW+2}:{sCW+3}], s[{sW1+2}:{sW1+3}]")
    A(f"s_lshl_b32 s{sCM0}, s{sWAVE}, 14")
    A("s_and_b32 s85, s82, 3")
    A("s_mul_i32 s85, s85, 3")
    A("s_lshr_b32 s86, s82, 2")
    A("s_mul_i32 s86, s86, 3")
    A("s_lshr_b32 s86, s86, 1")
    A("s_add_u32 s85, s85, s86")
    A("s_cmp_ge_u32 s85, 12")
    A("s_cselect_b32 s86, 12, 0")
    A("s_sub_u32 s85, s85, s86")
    if not OPT["rot"]: A("s_mov_b32 s85, 0")
    A(f"s_mul_i32 s{sFB1}, s{sWAVE}, {12*32*4096}")
    A(f"s_lshl_b32 s86, s{sFS}, 7")
    A(f"s_add_u32 s{sFB1}, s{sFB1}, s86")
    A(f"s_add_u32 s{sFE1}, s{sFB1}, {12*32*4096}")
    A(f"s_lshl_b32 s86, s85, 17")
    A(f"s_add_u32 s{sF1}, s{sFB1}, s86")
    A(f"s_mul_i32 s{sFB2}, s{sWAVE}, {12*40960}")
    A(f"s_mul_i32 s86, s{sFD}, 5120")
    A(f"s_add_u32 s{sFB2}, s{sFB2}, s86")
    A(f"s_add_u32 s{sFB2}, s{sFB2}, {WS_U:#x}")
    A(f"s_add_u32 s{sFE2}, s{sFB2}, {12*40960}")
    A(f"s_mul_i32 s86, s85, 40960")
    A(f"s_add_u32 s{sF2}, s{sFB2}, s86")
    A(f"v_lshlrev_b32 v{vB0}, 4, v1")
    A(f"v_add_u32 v{vB1}, 4096, v{vB0}")
    A("v_lshrrev_b32 v2, 2, v1")
    A("v_lshrrev_b32 v3, 1, v2")
    A("v_and_b32 v3, 3, v3")
    A("v_lshlrev_b32 v2, 7, v2")
    A("v_lshl_add_u32 v2, v3, 5, v2")
    A("v_and_b32 v3, 3, v1")
    A("v_lshl_add_u32 v2, v3, 3, v2")
    A(f"v_add_u32 v{vTR}, s{sCM0}, v2")
    for t in range(1, 4): A(f"v_xor_b32 v{vTR+t}, {32*t}, v{vTR}")
    A("v_lshrrev_b32 v2, 3, v1")
    A("v_lshrrev_b32 v3, 4, v1")
    A("v_lshlrev_b32 v3, 1, v3")
    A("v_and_b32 v4, 7, v1")
    A("v_xor_b32 v3, v3, v4")
    A("v_lshlrev_b32 v3, 4, v3")
    for base, stride in ((vWS_, 3072), (vWS2, 4096)):
        A(f"v_mul_u32_u24 v4, {stride}, v2")
        A(f"v_add_u32 v{base}, v3, v4")
        for q in range(1, 4): A(f"v_add_u32 v{base+q}, {q*(8*stride-1024)}, v{base}")
    poll_off(A, vPO, 16)
    A("v_lshlrev_b32 v15, 7, v1")
    A(f"s_mov_b32 s24, {FL_LN:#x}")
    A(f"s_mov_b32 s25, {FL_Q:#x}")
    A("s_waitcnt lgkmcnt(0)")
    A(f"s_mul_i32 s{sNON}, s3, 0x41C64E6D")
    A(f"s_add_u32 s{sNON}, s{sNON}, 0x3C6EF35F")

def qkv_setup(A, isq):
    A(f"s_lshr_b32 s{sWR_}, s{sWAVE}, 1")
    A(f"s_and_b32 s{sWC_}, s{sWAVE}, 1")
    A("v_lshrrev_b32 v2, 3, v1")
    A(f"s_lshl_b32 s85, s{sWAVE}, 5")
    A("v_add_u32 v2, s85, v2")
    A("v_mul_u32_u24 v2, 1280, v2")
    A("v_lshrrev_b32 v3, 4, v1")
    A("v_and_b32 v4, 7, v1")
    A("v_xor_b32 v4, v4, v3")
    A(f"v_lshl_add_u32 v{vXO}, v4, 4, v2")
    A("v_xor_b32 v4, 4, v4")
    A("v_lshl_add_u32 v6, v4, 4, v2")
    A(f"v_add_u32 v{vXO+1}, {8*1280-1024}, v6")
    A(f"v_add_u32 v{vXO+2}, {16*1280-2048}, v{vXO}")
    A(f"v_add_u32 v{vXO+3}, {24*1280-3072}, v6")
    A(f"s_mul_i32 s{sO1}, s{sA}, {0 if OPT.get('same') else 128*1280}")
    if OPT.get("same"):
        A("s_mov_b32 s86, 1280")
    elif isq:
        A(f"s_mul_i32 s86, s{sBp}, 320")
    else:
        A(f"s_mul_i32 s86, s{sBp}, 160")
        A("s_add_u32 s86, s86, 1280")
    A(f"s_mul_i32 s85, s{sWAVE}, {16*3840}")
    A("s_add_u32 s85, s85, s86")
    A("s_movk_i32 s88, 3840")
    for n in range(5):
        if n: A(f"v_add_u32 v2, {64*n}, v1")
        q = "v2" if n else "v1"
        A(f"v_mul_u32_u24 v3, 3277, {q}")
        A("v_lshrrev_b32 v3, 16, v3")
        A(f"v_mad_i32_i24 v4, v3, -20, {q}")
        A("v_lshrrev_b32 v5, 2, v3")
        A("v_and_b32 v5, 2, v5")
        A("v_xor_b32 v4, v4, v5")
        comp = 1024*n if n < 4 else 0
        A(f"s_sub_u32 s87, s85, {comp}" if comp else "s_mov_b32 s87, s85")
        A("v_mad_u32_u24 v3, v3, s88, s87" if False else "v_mul_u32_u24 v3, 3840, v3")
        A("v_lshl_add_u32 v3, v4, 4, v3")
        if not isq:
            A("v_cmp_le_u32 vcc, 10, v4")
            A("v_add_u32 v5, 1120, v3")
            A("v_add_u32 v3, s87, v3")
            A("v_add_u32 v5, s87, v5")
            A(f"v_cndmask_b32 v{vWO_+n}, v3, v5, vcc")
        else:
            A(f"v_add_u32 v{vWO_+n}, s87, v3")
    A(f"s_mov_b32 s{sO2}, 0")
    if OPT["rot"]:
        A("s_and_b32 s85, s82, 3")
        A("s_lshl_b32 s85, s85, 2")
        A("s_lshr_b32 s85, 0x8530, s85")
        A("s_and_b32 s85, s85, 15")
        A("s_and_b32 s86, s82, 12")
        A("s_lshr_b32 s86, 0x8530, s86")
        A("s_and_b32 s86, s86, 15")
        A("s_add_u32 s85, s85, s86")
        A("s_add_u32 s85, s85, s83")
        A("s_add_u32 s85, s85, s84")
        if isq: A("s_add_u32 s85, s85, 1")
        A("s_mul_i32 s86, s85, 26")
        A("s_lshr_b32 s86, s86, 8")
        A("s_mul_i32 s86, s86, 10")
        A("s_sub_u32 s85, s85, s86")
        A(f"s_mul_i32 s{sO2}, s85, {64*3840}")
        A("s_lshl_b32 s85, s85, 7")
        A(f"s_add_u32 s{sO1}, s{sO1}, s85")
    A(f"s_lshl_b32 s{sM0}, s{sWAVE}, 12")
    A(f"s_mul_i32 s{sM1}, s{sWAVE}, 5120")
    A(f"s_add_u32 s{sM1}, s{sM1}, 16384")
    A(f"s_mov_b32 s{sWR}, {2*STG}")

def nt(b): return " nt" if OPT["ntq"] & b else ""
def qkv_dma():
    L = [[f"s_add_u32 m0, s{sWR}, s{sM0}"]]
    for n in range(4):
        L.append([f"buffer_load_dwordx4 v{vXO+n}, s[{sX}:{sX+3}], s{sO1} offen offset:{1024*n}{nt(1)} lds"])
    L.append([f"s_add_u32 m0, s{sWR}, s{sM1}"])
    for n in range(4):
        L.append([f"buffer_load_dwordx4 v{vWO_+n}, s[{sW}:{sW+3}], s{sO2} offen offset:{1024*n}{nt(2)} lds"])
    L.append(["s_add_u32 m0, m0, 4096"])
    L.append([f"buffer_load_dwordx4 v{vWO_+4}, s[{sW}:{sW+3}], s{sO2} offen{nt(2)} lds"])
    return L
def qkv_adv():
    return [f"s_add_u32 s{sO1}, s{sO1}, 128", f"s_add_u32 s{sO2}, s{sO2}, {64*3840}", f"s_cmp_eq_u32 s{sO2}, {640*3840}",
            "s_cselect_b32 s85, 1280, 0", f"s_cselect_b32 s{sO2}, 0, s{sO2}", f"s_sub_u32 s{sO1}, s{sO1}, s85",
            f"s_add_u32 s{sWR}, s{sWR}, {STG}", f"s_cmp_eq_u32 s{sWR}, {4*STG}", f"s_cselect_b32 s{sWR}, 0, s{sWR}"]
def emit_dma_block(A, groups):
    for g in groups:
        for x in g: A(x)
        if "m0" in g[0].split(",")[0]: A("s_nop 0")

NW = 5
vXB, vCUR = 26, 6
vXB = 208
vCUR = 215
def qkv_reads(kk, fs):
    def wr(t):
        return [f"ds_read_b64_tr_b16 {ar(fs+16+4*t+2*j,2)}, v{vCUR+2+t} offset:{kk*10240 + j*1280}" for j in range(2)]
    L = wr(0)
    for st in range(4):
        L.append(f"ds_read_b128 {ar(fs+4*st,4)}, v{vCUR+kk} offset:{st*2048}")
    for t in range(1, 5): L += wr(t)
    return L
def qkv_mfmas(fs, isq):
    L = []
    for t in range(5):
        for st in range(4):
            x = ar(fs + 4*st, 4); w = ar(fs + 16 + 4*t, 4); c = vr(ACC + (st*5+t)*4, 4)
            L.append(f"v_mfma_f32_16x16x32_bf16 {c}, {w}, {x}, {c}" if isq else f"v_mfma_f32_16x16x32_bf16 {c}, {x}, {w}, {c}")
    return L

def qkv_gemm(A, pfx, isq, mid_setup, extras, pre9):
    emit_dma_block(A, qkv_dma())
    for x in qkv_adv(): A(x)
    stamp(A, pfx + "_iss0")
    mid_setup(A)
    A("v_and_b32 v2, 15, v1")
    A("v_lshrrev_b32 v3, 4, v1")
    A("v_lshrrev_b32 v4, 1, v2")
    A("v_xor_b32 v4, v4, v3")
    A("v_lshlrev_b32 v4, 4, v4")
    A("v_lshl_add_u32 v4, v2, 7, v4")
    A(f"s_lshl_b32 s85, s{sWR_}, 13")
    A(f"v_add_u32 v{vXB}, s85, v4")
    A(f"v_xor_b32 v{vXB+1}, 64, v{vXB}")
    A("v_lshrrev_b32 v4, 2, v2")
    A("v_lshl_add_u32 v4, v3, 3, v4")
    A("v_mul_u32_u24 v4, 320, v4")
    A("v_and_b32 v5, 1, v1")
    A("v_lshl_add_u32 v4, v5, 3, v4")
    A("v_add_u32 v4, 16384, v4")
    A("v_bfe_u32 v5, v1, 1, 1")
    A("v_and_b32 v6, 1, v3")
    A("v_lshlrev_b32 v6, 1, v6")
    A(f"s_mul_i32 s85, s{sWC_}, {10 if isq else 5}")
    for t in range(5):
        if isq: c0, step = [(0, 1), (2, 1), (4, 5), (5, 1), (7, 1)][t]
        else: c0, step = [(0, 1), (2, 1), (4, 6), (11, 1), (13, 1)][t]
        A(f"s_add_u32 s86, s85, {c0}")
        if step == 1: A("v_add_u32 v7, s86, v5")
        else: A(f"v_mad_u32_u24 v7, v5, {step}, s86")
        A("v_xor_b32 v7, v7, v6")
        A(f"v_lshl_add_u32 v{vXB+2+t}, v7, 4, v4")
    zero_acc(A)
    A(f"s_mov_b32 s{sRD}, {2*STG}")
    A(f"s_mov_b32 s{sCNT}, 0")
    upd = [f"v_add_u32 v{vCUR+i}, s{sRD}, v{vXB+i}" for i in range(7)]
    rdadv = [f"s_add_u32 s{sRD}, s{sRD}, {STG}", f"s_cmp_eq_u32 s{sRD}, {4*STG}", f"s_cselect_b32 s{sRD}, 0, s{sRD}"]
    def spread(rd, dma_slots, groups, scal):
        fill = [[] for _ in range(20)]
        k = 0
        for gi in range(9):
            for _ in range(2 if gi < 5 else 1):
                fill[gi].append(rd[k]); k += 1
        g = list(groups)
        for sl in dma_slots:
            if not g: break
            if "m0" in g[0][0].split(",")[0]:
                fill[sl-1] += g.pop(0)
            fill[sl] += g.pop(0)
        return fill, g
    def put_scal(fill, scal, start):
        sc = list(scal); gi = start
        while sc:
            room = 2 - len(fill[gi]) if gi < 19 else len(sc)
            for _ in range(max(room, 0)):
                if sc: fill[gi].append(sc.pop(0))
            gi += 1
    def top_half(wait, groups, pre=None, slots=(3, 7, 11, 15, 19)):
        A(f"s_waitcnt vmcnt({wait}) lgkmcnt(0)")
        if pre: pre(A)
        A("s_barrier")
        fill, rest = spread(qkv_reads(0, FA_), slots, groups, [])
        weave(A, qkv_mfmas(FB_, isq), fill)
        return rest
    def bot_half(adv, tail, groups=[], slots=(2, 6, 10, 13)):
        A("s_waitcnt lgkmcnt(0)")
        fill, rest = spread(qkv_reads(1, FB_), slots, groups, [])
        assert not rest
        put_scal(fill, rdadv + upd, 9)
        put_scal(fill, (qkv_adv() if adv else []) + tail, 14)
        weave(A, qkv_mfmas(FA_, isq), fill)
    for x in upd: A(x)
    stamp(A, pfx + "_setup")
    emit_dma_block(A, qkv_dma())
    for x in qkv_adv(): A(x)
    stamp(A, pfx + "_issued")
    A("s_waitcnt vmcnt(9)")
    A("s_barrier")
    stamp(A, pfx + "_first")
    for x in qkv_reads(0, FA_): A(x)
    emit_dma_block(A, qkv_dma()[:7])
    A(f"s_branch {pfx}_mid")
    A(".p2align 3")
    A.label(f"{pfx}_loop")
    if isq and OPT["qw1n"]:
        A(f"s_cmp_eq_u32 s{sCNT}, {OPT['qw1']}")
        A("s_cbranch_scc0 q_nopf")
        for k in range(3 - OPT["qw1n"], 3):
            A(f"buffer_load_dword a255, v12, s[{sW1}:{sW1+3}], s26 offen offset:{256*k}")
        A.label("q_nopf")
    rest = top_half(9, qkv_dma())
    assert len(rest) == 5
    A.label(f"{pfx}_mid")
    bot_half(True, [f"s_add_u32 s{sCNT}, s{sCNT}, 1", f"s_cmp_lt_u32 s{sCNT}, 8"], rest)
    A(f"s_cbranch_scc1 {pfx}_loop")
    for it in (8, 9):
        g, w = extras.get(it, ([], 9 if it == 8 else 0))
        rest = top_half(w, g, pre9 if it == 9 else None, (2, 5, 8, 11, 14, 17))
        bot_half(False, [], rest, (2, 5, 8, 11, 14, 17))
    stamp(A, pfx + "_loop9")
    A("s_waitcnt lgkmcnt(0)")
    for m in qkv_mfmas(FB_, isq): A(m)
    A("s_nop 7")
    stamp(A, pfx + "_loopdone")

PAIRS = [(2,0),(3,0),(2,1),(3,1),(4,1),(3,2),(4,2)]
def kv_mask(i):
    te, tc = PAIRS[i]; m = 0
    for l in range(64):
        c = 16*tc + l % 16; e = [-8, 8, 24][te-2] + 4*(l//16)
        if c < 40 and e >= 0 and c//20 == e//20: m |= 1 << l
    return m

KVB = [sum(bin(kv_mask(j)).count("1") for j in range(i)) for i in range(8)]
def kv_rank(A, dst, i, shift, add=0):
    m = kv_mask(i)
    A(f"s_mov_b32 s85, {m & 0xffffffff:#x}")
    A(f"s_mov_b32 s86, {m >> 32:#x}")
    A(f"v_mbcnt_lo_u32_b32 v{dst}, s85, {KVB[i]}" if KVB[i] <= 64 else f"v_mov_b32 v{dst}, {KVB[i]}\nv_mbcnt_lo_u32_b32 v{dst}, s85, v{dst}")
    A(f"v_mbcnt_hi_u32_b32 v{dst}, s86, v{dst}")
    A(f"v_lshlrev_b32 v{dst}, {shift}, v{dst}")
    if add: A(f"v_add_u32 v{dst}, {add}, v{dst}")
vKR = 246
def phi4(A, b, T, dst=None):
    dst = b if dst is None else dst
    A(f"v_pk_mul_f32 {vr(T,2)}, {vr(b,2)}, s[{sL2}:{sL2+1}]")
    A(f"v_pk_mul_f32 {vr(T+2,2)}, {vr(b+2,2)}, s[{sL2}:{sL2+1}]")
    for i in range(4): A(f"v_exp_f32 v{T+i}, v{T+i} clamp")
    for i in range(4): A(f"v_max_f32 v{dst+i}, {EPS6:#x}, v{b+i}")
    A(f"v_pk_add_f32 {vr(dst,2)}, {vr(dst,2)}, {vr(T,2)}")
    A(f"v_pk_add_f32 {vr(dst+2,2)}, {vr(dst+2,2)}, {vr(T+2,2)}")
sL2 = 88
def kv_epilogue(A, side, fin):
    PB, KA, ONE, TMP = 128, 168, 208, 212
    side = list(side)
    def sd(n=1):
        for _ in range(n):
            if side:
                for x in side.pop(0): A(x)
    A("v_and_b32 v2, 15, v1")
    A(f"v_cmp_gt_u32 s[{sMK}:{sMK+1}], 8, v2")
    A(f"s_mov_b32 s{sL2}, {LOG2E:#x}")
    A(f"s_mov_b32 s{sL2+1}, {LOG2E:#x}")
    for i in range(4): A(f"v_mov_b32 v{ONE+i}, 0x3f803f80")
    for st in range(4):
        for t in range(3):
            b = ACC + (st*5+t)*4
            sd()
            if t < 2: phi4(A, b, TMP)
            else:
                phi4(A, b, TMP, TMP+4)
                for i in range(4): A(f"v_cndmask_b32 v{b+i}, v{b+i}, v{TMP+4+i}, s[{sMK}:{sMK+1}]")
        sd()
        for t in range(5):
            b = ACC + (st*5+t)*4
            d = PB + (t*2 + st//2)*4 + (st & 1)*2
            A(f"v_cvt_pk_bf16_f32 v{d}, v{b}, v{b+1}")
            A(f"v_cvt_pk_bf16_f32 v{d+1}, v{b+2}, v{b+3}")
        sd()
        if st & 1:
            sp = st // 2
            A("s_nop 1")
            for i, (te, tc) in enumerate(PAIRS):
                c = vr(KA+4*i, 4)
                A(f"v_mfma_f32_16x16x32_bf16 {c}, {vr(PB+(te*2+sp)*4,4)}, {vr(PB+(tc*2+sp)*4,4)}, {c if sp else 0}")
            for tc in range(3):
                c = vr(KA+4*(7+tc), 4)
                A(f"v_mfma_f32_16x16x32_bf16 {c}, {vr(ONE,4)}, {vr(PB+(tc*2+sp)*4,4)}, {c if sp else 0}")
    assert not side
    A(f"s_mul_i32 s85, s{sWC_}, 10240")
    A(f"s_add_u32 s85, s85, {LDS_RED}")
    A(f"v_add_u32 v3, s85, v{vB0}")
    A(f"s_cmp_eq_u32 s{sWR_}, 0")
    A("s_cbranch_scc1 kv_e1")
    A("s_nop 4")
    for i in range(10):
        if i < 7: A(f"ds_write_b128 v3, {vr(KA+4*i,4)} offset:{1024*i}")
        else: A(f"ds_write_b32 v3, v{KA+4*i} offset:{1024*i}")
    A("s_waitcnt lgkmcnt(0)")
    A("s_barrier")
    zero_acc(A)
    fin(A, 0)
    A("s_branch kv_e2")
    A.label("kv_e1")
    zero_acc(A)
    A("s_barrier")
    for i in range(10):
        if i < 7: A(f"ds_read_b128 {vr(PB+4*i,4)}, v3 offset:{1024*i}")
        else: A(f"ds_read_b32 v{PB+4*i}, v3 offset:{1024*i}")
    A(f"s_lshl_b32 s85, s{sBp}, 1")
    A(f"s_add_u32 s85, s85, s{sWC_}")
    A("s_lshl_b32 s86, s85, 4")
    A(f"s_add_u32 s86, s86, s{sA}")
    A("s_lshl_b32 s85, s86, 8")
    A(f"s_add_u32 s85, s85, {WS_ZP:#x}")
    A("s_mul_i32 s86, s86, 3200")
    A(f"s_add_u32 s86, s86, {WS_KVP:#x}")
    A("v_lshlrev_b32 v4, 2, v1")
    A("v_cmp_lt_u32 vcc, 15, v1")
    A(f"v_cmp_lt_u32 s[{sMK}:{sMK+1}], 31, v1")
    for i in range(10):
        A(f"s_waitcnt lgkmcnt({9-i})")
        for k in range(4 if i < 7 else 1):
            A(f"v_add_f32 v{KA+4*i+k}, v{KA+4*i+k}, v{PB+4*i+k}")
        if i < 7:
            m = kv_mask(i)
            A(f"s_mov_b32 exec_lo, {m & 0xffffffff:#x}")
            A(f"s_mov_b32 exec_hi, {m >> 32:#x}")
            A(f"buffer_store_dwordx4 {vr(KA+4*i,4)}, v{vKR+i}, s[{sWS}:{sWS+3}], s86 offen sc1")
            A("s_mov_b64 exec, -1")
    A(f"v_cndmask_b32 v{KA+28}, v{KA+28}, v{KA+32}, vcc")
    A(f"v_cndmask_b32 v{KA+28}, v{KA+28}, v{KA+36}, s[{sMK}:{sMK+1}]")
    A(f"buffer_store_dword v{KA+28}, v4, s[{sWS}:{sWS+3}], s85 offen sc1")
    fin(A, 8)
    A.label("kv_e2")

def w1_setup(A, locbase, vreg):
    A(f"s_sub_u32 s88, s82, {locbase}")
    A("s_lshl_b32 s88, s88, 2")
    A(f"s_add_u32 s88, s88, s{sWAVE}")
    A(f"v_and_b32 v{vreg}, 31, v1")
    A(f"v_mul_u32_u24 v{vreg}, 3072, v{vreg}")
    A("v_lshrrev_b32 v3, 5, v1")
    A(f"v_lshl_add_u32 v{vreg}, v3, 7, v{vreg}")
    A(f"s_mul_i32 s85, s88, {32*3072}")
    A("s_mul_i32 s86, s83, 768")
    A("s_add_u32 s85, s85, s86")
    A(f"s_mul_i32 s86, s84, {1024*3072}")
    A("s_add_u32 s26, s86, s85")
    A("s_xor_b32 s87, s84, 1")
    A(f"s_mul_i32 s87, s87, {1024*3072}")
    A("s_add_u32 s27, s87, s85")

def w2_prefetch(A, locbase, parts):
    A(f"s_sub_u32 s85, s82, {locbase}")
    A("s_lshl_b32 s85, s85, 2")
    A(f"s_add_u32 s85, s85, s{sWAVE}")
    if OPT["w2c"]:
        A("s_lshl_b32 s86, s81, 5")
        A("s_add_u32 s85, s85, s86")
        A("s_mul_i32 s85, s85, 24576")
        A(f"s_add_u32 s85, s85, {8192*parts[0]}")
        for i in parts:
            A(f"buffer_load_dword a255, v15, s[{sW2}:{sW2+3}], s85 offen")
            if i != parts[-1]: A("s_add_u32 s85, s85, 8192")
        return
    A("v_lshrrev_b32 v2, 3, v1")
    A("v_lshlrev_b32 v2, 12, v2")
    A("v_and_b32 v3, 7, v1")
    A("v_lshl_add_u32 v2, v3, 7, v2")
    A("s_mul_i32 s85, s85, 24")
    A("s_mul_i32 s86, s84, 768")
    A("s_add_u32 s85, s85, s86")
    A(f"s_add_u32 s85, s85, {8*parts[0]}")
    A("s_lshl_b32 s85, s85, 12")
    A("s_lshl_b32 s86, s83, 10")
    A("s_add_u32 s85, s85, s86")
    for i in parts:
        A(f"buffer_load_dword a255, v2, s[{sW2}:{sW2+3}], s85 offen")
        if i != parts[-1]: A(f"s_add_u32 s85, s85, {8*4096}")

def q_epilogue(A):
    PK, Z, AF, MSK, ZP, G = 128, 168, 168, 194, 16, 8
    KA_, DEN, OUT, TMP = 48, 208, 228, 112
    WBa, KVa, KBa = 0, 20, 40
    sMA, sMB, sIB = 26, 92, 23
    A(f"s_mul_i32 s85, s{sU}, {40*1280}")
    A(f"s_mul_i32 s86, s{sNR}, 320")
    A("s_add_u32 s85, s85, s86")
    A(f"s_lshl_b32 s86, s{sWAVE}, 8")
    A(f"s_lshl_b32 m0, s{sWAVE}, 12")
    for n in range(4):
        A(f"v_add_u32 v2, {64*n}, v1")
        A("v_add_u32 v2, s86, v2")
        A("v_mul_u32_u24 v3, 3277, v2")
        A("v_lshrrev_b32 v3, 16, v3")
        A("v_mul_u32_u24 v4, 20, v3")
        A("v_sub_u32 v4, v2, v4")
        A("v_mul_u32_u24 v3, 1280, v3")
        A("v_lshl_add_u32 v3, v4, 4, v3")
        if n: A(f"v_subrev_u32 v3, {1024*n}, v3")
        A(f"buffer_load_dwordx4 v3, s[{sWO}:{sWO+3}], s85 offen offset:{1024*n} lds")
    A(poll_ld(vPO, 24))
    npf = 0
    if OPT["qw2"]:
        parts = list(range(3 - OPT["qw2"], 3))
        w2_prefetch(A, 16, parts); npf = len(parts)
    A(f"s_mov_b32 s{sL2}, {LOG2E:#x}")
    A(f"s_mov_b32 s{sL2+1}, {LOG2E:#x}")
    for k, b in enumerate(range(ACC, ACC+80, 4)):
        phi4(A, b, DEN)
        A(f"v_cvt_pk_bf16_f32 v{PK+2*k}, v{b}, v{b+1}")
        A(f"v_cvt_pk_bf16_f32 v{PK+2*k+1}, v{b+2}, v{b+3}")
    A(f"s_waitcnt vmcnt({npf})")
    poll_check(A, "pln3", vPO, 24)
    A("s_barrier")
    A("v_and_b32 v3, 15, v1")
    A("v_lshrrev_b32 v4, 4, v1")
    A("v_lshlrev_b32 v6, 2, v3")
    A(f"s_lshl_b32 s86, s{sA}, 9")
    A(f"s_lshl_b32 s87, s{sWR_}, 8")
    A("s_add_u32 s86, s86, s87")
    A(f"s_add_u32 s86, s86, {WS_G:#x}")
    for st in range(4):
        A(f"buffer_load_dword v{G+st}, v6, s[{sWS}:{sWS+3}], s86 offen offset:{64*st} sc1")
    poll_off(A, 12, 32)
    A(f"s_mov_b32 s24, {FL_KV:#x}")
    A(poll_ld(12, 24))
    A("v_lshrrev_b32 v5, 2, v3")
    A("v_lshl_add_u32 v5, v4, 2, v5")
    A("v_and_b32 v6, 7, v5")
    A("v_mul_u32_u24 v6, 320, v6")
    A("v_mul_u32_u24 v5, 320, v5")
    A("v_and_b32 v7, 3, v1")
    A("v_lshlrev_b32 v7, 3, v7")
    A(f"s_lshl_b32 s86, s{sWAVE}, 5")
    A("v_add_u32 v7, s86, v7")
    A("v_add_u32 v6, v6, v7")
    A("v_add_u32 v5, v5, v7")
    for i in range(3):
        A(f"ds_read_b64_tr_b16 {ar(WBa+6*i,2)}, v6 offset:{128*i}")
        A(f"ds_read_b64_tr_b16 {ar(WBa+6*i+2,2)}, v5 offset:{128*i + 8*320}")
        A(f"ds_read_b64_tr_b16 {ar(WBa+6*i+4,2)}, v5 offset:{128*i + 24*320}")
    A(f"s_lshr_b32 s86, s{sU}, 2")
    A("s_mul_i32 s86, s86, 5")
    A(f"s_bfe_u32 s87, s{sU}, 0x10001")
    A(f"s_and_b32 s88, s{sU}, 1")
    A("s_mul_i32 s89, s87, 3")
    A("s_add_u32 s89, s89, s88")
    A("s_add_u32 s89, s89, s86")
    A(f"s_mul_i32 s{sMA}, s89, 40960")
    A("s_add_u32 s86, s86, 2")
    A(f"s_mul_i32 s{sMA+1}, s86, 40960")
    A("s_lshl_b32 s87, s87, 3")
    A("s_lshl_b32 s88, s88, 9")
    A(f"s_add_u32 s{sMA+1}, s{sMA+1}, s87")
    A(f"s_add_u32 s{sMA+1}, s{sMA+1}, s88")
    A(f"s_mul_i32 s86, s{sNR}, 10240")
    A(f"s_lshl_b32 s87, s{sWAVE}, 10")
    A("s_add_u32 s86, s86, s87")
    A(f"s_add_u32 s86, s86, {WS_M:#x}")
    A(f"s_add_u32 s{sMA}, s{sMA}, s86")
    A(f"s_add_u32 s{sMA+1}, s{sMA+1}, s86")
    if OPT["touch"]:
        A("v_lshrrev_b32 v5, 2, v1")
        A("v_and_b32 v6, 3, v1")
        A("v_lshlrev_b32 v6, 7, v6")
        A("v_lshl_add_u32 v5, v5, 10, v6")
        A(f"s_sub_u32 s85, s{sMA+1}, s87")
        A("s_and_b32 s85, s85, 0xffffff80")
        A(f"s_cmp_lg_u32 s{sWAVE}, 0")
        A("s_cbranch_scc1 q_nt1")
        A("s_mov_b32 exec_hi, 0xff")
        A(f"buffer_load_dword a255, v5, s[{sWS}:{sWS+3}], s85 offen sc1")
        A("s_mov_b32 exec_hi, -1")
        A.label("q_nt1")
        A(f"s_lshl_b32 s85, s{sA}, 1")
        A(f"s_add_u32 s85, s85, s{sWR_}")
        A("s_mul_i32 s85, s85, 20")
        A(f"s_mul_i32 s86, s{sBp}, 5")
        A("s_add_u32 s85, s85, s86")
        A("s_lshl_b32 s85, s85, 12")
        A(f"s_add_u32 s85, s85, {WS_PQ + 8192:#x}")
        A(f"s_lshl_b32 s86, s{sWC_}, 11")
        A("s_add_u32 s85, s85, s86")
        A("s_mov_b64 exec, 0xffff")
        A(f"buffer_load_dword a255, v15, s[{sWS}:{sWS+3}], s85 offen sc1")
        A("s_mov_b64 exec, -1")
    T = DEN
    A(f"v_mov_b32 v{T}, {LDS_RED + 1600}")
    A(f"v_mov_b64 {vr(T+2,2)}, 0")
    A(f"ds_write_b64 v{T}, {vr(T+2,2)}")
    for i in range(7):
        kv_rank(A, 26+i, i, 3, LDS_RED)
        A(f"s_mov_b32 s92, s85")
        A(f"s_mov_b32 s93, s86")
        A(f"v_cndmask_b32 v{26+i}, v{T}, v{26+i}, s[92:93]")
    cb = [0, 16, 32, 40, 56]
    for t in range(5):
        A(f"v_lshl_add_u32 v{T+t}, v4, 2, {cb[t]}")
        A(f"v_add_u32 v{T+5+t}, {cb[t]}, v3")
        if t == 2:
            A("v_lshrrev_b32 v5, 1, v4")
            A(f"v_lshl_add_u32 v{T+t}, v5, 5, v{T+t}")
            A("v_mul_u32_u24 v7, 4064, v5")
            A("v_lshrrev_b32 v5, 3, v3")
            A(f"v_lshl_add_u32 v{T+5+t}, v5, 5, v{T+5+t}")
        A(f"v_mul_u32_u24 v{T+t}, 205, v{T+t}")
        A(f"v_lshrrev_b32 v{T+t}, 12, v{T+t}")
        A(f"v_mul_u32_u24 v{T+5+t}, 205, v{T+5+t}")
        A(f"v_lshrrev_b32 v{T+5+t}, 12, v{T+5+t}")
    dp = [(0,0),(0,1),(1,0),(1,1),(1,2),(2,1),(2,2),(2,4),(3,3),(3,4),(4,2),(4,3),(4,4)]
    for k, (tp, t) in enumerate(dp):
        A(f"v_cmp_eq_u32 vcc, v{T+t}, v{T+5+tp}")
        A("s_nop 1")
        A(f"v_cndmask_b32 v{MSK+k}, 0, -1, vcc")
    A("v_lshlrev_b32 v5, 8, v3")
    A("v_lshl_add_u32 v5, v4, 4, v5")
    A("v_add_u32 v7, v7, v5")
    A("v_add_u32 v6, 4096, v5")
    A(f"s_lshl_b32 s86, s{sBp}, 14")
    A(f"s_lshl_b32 s87, s{sWC_}, 13")
    A("s_add_u32 s86, s86, s87")
    A(f"s_add_u32 s86, s86, {WS_ZP:#x}")
    A(f"s_mul_i32 s89, s{sU}, {16*3200}")
    A(f"s_mul_i32 s87, s{sWAVE}, 800")
    A("s_add_u32 s87, s87, s89")
    A(f"s_add_u32 s87, s87, {WS_KVP:#x}")
    stamp(A, "q_pre")
    A("s_waitcnt vmcnt(0) lgkmcnt(0)")
    poll_check(A, "pkv", 12, 24)
    A("s_barrier")
    stamp(A, "q_kvok")
    for t in range(5):
        A(f"buffer_load_dwordx4 {vr(Z+4*t,4)}, v{[5,5,7,6,6][t]}, s[{sWS}:{sWS+3}], s86 offen offset:{[0,64,128,0,64][t]} sc1")
    kvl = []
    for rb in range(0, 16, 2):
        kvl.append(["s_mov_b32 exec_hi, 0x3ffff",
                    f"buffer_load_dwordx4 {vr(KA_+4*rb,4)}, v{vB0}, s[{sWS}:{sWS+3}], s24 offen sc1",
                    f"buffer_load_dwordx4 {vr(KA_+4*rb+4,4)}, v{vB0}, s[{sWS}:{sWS+3}], s24 offen offset:3200 sc1",
                    "s_mov_b32 exec_hi, -1", "s_add_u32 s24, s24, 6400"])
    def kv(n):
        for _ in range(n):
            if kvl:
                for x in kvl.pop(0): A(x)
    A("s_mov_b32 s24, s87")
    kv(2)
    A(f"s_lshl_b32 s85, s{sA}, 1")
    A(f"s_add_u32 s85, s85, s{sWR_}")
    A("s_mul_i32 s85, s85, 20")
    A(f"s_mul_i32 s86, s{sBp}, 5")
    A("s_add_u32 s85, s85, s86")
    A("s_lshl_b32 s85, s85, 12")
    A(f"s_add_u32 s85, s85, {WS_PQ:#x}")
    A(f"s_mul_i32 s86, s{sWC_}, {3*4096}")
    A("s_add_u32 s86, s86, s85")
    A("s_add_u32 s87, s86, 4096")
    A(f"s_lshl_b32 s88, s{sWC_}, 3")
    A("s_add_u32 s88, s88, s85")
    A("s_add_u32 s88, s88, 8192")
    A("s_waitcnt vmcnt(4)")
    stamp(A, "q_z")
    for rot in (8, 4, 2, 1):
        kv(1)
        for i in range(20):
            A(f"v_add_f32_dpp v{Z+i}, v{Z+i}, v{Z+i} row_ror:{rot} row_mask:0xf bank_mask:0xf")
    for i in range(10): A(f"v_cvt_pk_bf16_f32 v{ZP+i}, v{Z+2*i}, v{Z+2*i+1}")
    kv(2)
    for k, (tp, t) in enumerate(dp):
        A(f"v_and_b32 v{AF+2*k}, v{MSK+k}, v{ZP+2*t}")
        A(f"v_and_b32 v{AF+2*k+1}, v{MSK+k}, v{ZP+2*t+1}")
    A("s_nop 0")
    DEN2 = OUT
    def den(st, Dn):
        seen = set()
        for k, (tp, t) in enumerate(dp):
            c = vr(Dn + 4*tp, 4)
            A(f"v_mfma_f32_16x16x16_bf16 {c}, {vr(AF+2*k,2)}, {vr(PK+(st*5+t)*2,2)}, {c if tp in seen else 0}")
            seen.add(tp)
    den(0, DEN)
    for st in range(4):
        Dn = DEN if (st & 1) == 0 else DEN2
        o = OUT
        U = TMP + 10
        if st < 3: den(st + 1, DEN2 if (st & 1) == 0 else DEN)
        else: A("s_nop 7")
        kv(OPT["kvr"])
        for tp in range(5): A(f"v_add_f32 v{TMP+2*tp}, {EPS6:#x}, v{Dn+4*tp}")
        for tp in range(5): A(f"v_rcp_f32 v{TMP+2*tp}, v{TMP+2*tp}")
        A("s_nop 0")
        for tp in range(5): A(f"v_mul_f32 v{TMP+2*tp}, v{TMP+2*tp}, v{G+st}")
        for tp in range(5):
            p = PK + (st*5+tp)*2
            if tp == 2: kv(OPT["kvr"])
            A(f"v_lshlrev_b32 v{U}, 16, v{p}")
            A(f"v_and_b32 v{U+1}, 0xffff0000, v{p}")
            A(f"v_lshlrev_b32 v{U+2}, 16, v{p+1}")
            A(f"v_and_b32 v{U+3}, 0xffff0000, v{p+1}")
            A(f"v_pk_mul_f32 {vr(U,2)}, {vr(U,2)}, {vr(TMP+2*tp,2)} op_sel_hi:[1,0]")
            A(f"v_pk_mul_f32 {vr(U+2,2)}, {vr(U+2,2)}, {vr(TMP+2*tp,2)} op_sel_hi:[1,0]")
            A(f"v_cvt_pk_bf16_f32 v{p}, v{U}, v{U+1}")
            A(f"v_cvt_pk_bf16_f32 v{p+1}, v{U+2}, v{U+3}")
        p = PK + st*10
        A(f"buffer_store_dwordx4 {vr(p,4)}, v{vB0}, s[{sWS}:{sWS+3}], s86 offen offset:{1024*st} sc1")
        A(f"buffer_store_dwordx4 {vr(p+6,4)}, v{vB0}, s[{sWS}:{sWS+3}], s87 offen offset:{1024*st} sc1")
        A(f"buffer_store_dwordx2 {vr(p+4,2)}, v{vB0}, s[{sWS}:{sWS+3}], s88 offen offset:{1024*st} sc1")
    assert not kvl
    stamp(A, "q_pq")
    A("s_waitcnt vmcnt(12)")
    stamp(A, "q_kv")
    for w in (32, 16, 8, 4):
        for i in range(0, w, 2):
            A(f"v_pk_add_f32 {vr(KA_+i,2)}, {vr(KA_+i,2)}, {vr(KA_+w+i,2)}")
    A(f"s_mul_i32 s86, s{sWAVE}, 400")
    A(f"s_add_u32 s86, s86, {LDS_RED}")
    A("v_lshlrev_b32 v7, 3, v1")
    A("v_add_u32 v7, s86, v7")
    A(f"v_cvt_pk_bf16_f32 v{KA_}, v{KA_}, v{KA_+1}")
    A(f"v_cvt_pk_bf16_f32 v{KA_+1}, v{KA_+2}, v{KA_+3}")
    A("s_mov_b32 exec_hi, 0x3ffff")
    A(f"ds_write_b64 v7, {vr(KA_,2)}")
    A("s_mov_b32 exec_hi, -1")
    A("s_waitcnt lgkmcnt(0)")
    A("s_barrier")
    stamp(A, "q_bar")
    for i in range(7): A(f"ds_read_b64 {ar(KVa+2*i,2)}, v{26+i}")
    A("s_waitcnt lgkmcnt(0)")
    MD = 64
    for i in range(3):
        seen = set()
        for k, (te, tc) in enumerate(PAIRS):
            c = vr(MD + (i*3+tc)*4, 4)
            A(f"v_mfma_f32_16x16x16_bf16 {c}, {ar(KVa+2*k,2)}, {ar(WBa+6*i+2*(te-2),2)}, {c if tc in seen else 0}")
            seen.add(tc)
    for i in range(3):
        if i == 2:
            A(f"s_cmp_ge_u32 s{sWAVE}, 2")
            A("s_cbranch_scc1 q_m_done")
            A("s_nop 2")
        b = MD + i*12
        for k in range(6): A(f"v_cvt_pk_bf16_f32 v{b+k}, v{b+2*k}, v{b+2*k+1}")
        A(f"buffer_store_dwordx4 {vr(b,4)}, v{vB0}, s[{sWS}:{sWS+3}], s{sMA} offen sc1")
        A("s_mov_b32 exec_hi, 0")
        A(f"buffer_store_dwordx2 {vr(b+4,2)}, v{vB0}, s[{sWS}:{sWS+3}], s{sMA+1} offen sc1")
        A("s_mov_b32 exec_hi, -1")
        A(f"s_add_u32 s{sMA}, s{sMA}, 4096")
        A(f"s_add_u32 s{sMA+1}, s{sMA+1}, 4096")
    A.label("q_m_done")
    stamp(A, "q_mdone")

def ln_role(A, after_loads, ne):
    X, GW, D = 48, 88, 128
    A("v_lshrrev_b32 v2, 3, v1")
    A(f"s_lshl_b32 s85, s{sWAVE}, 3")
    A("v_add_u32 v2, s85, v2")
    A("v_and_b32 v3, 7, v1")
    A("v_lshlrev_b32 v3, 4, v3")
    A("v_mul_u32_u24 v4, 1280, v2")
    A("v_add_u32 v4, v4, v3")
    A(f"s_mul_i32 s85, s{sA}, {32*1280}")
    A("s_waitcnt lgkmcnt(0)"); srds(A, ["X", "GW"])
    for i in range(10):
        A(f"buffer_load_dwordx4 {vr(X+4*i,4)}, v4, s[{sX}:{sX+3}], s85 offen offset:{128*i}")
    for i in range(10):
        A(f"buffer_load_dwordx4 {vr(GW+4*i,4)}, v3, s[{sGW}:{sGW+3}], 0 offen offset:{128*i}")
    A("v_mul_u32_u24 v16, 1312, v2")
    A("v_add_u32 v16, v16, v3")
    A("v_lshlrev_b32 v17, 2, v2")
    after_loads(A)
    A("v_mov_b32 v5, 0x3f803f80")
    for i in range(4): A(f"v_mov_b32 v{8+i}, 0")
    A(f"s_waitcnt vmcnt({10+ne})")
    stamp(A, "ln_first")
    for i in range(40):
        A(f"v_dot2_f32_bf16 v{8+(i&1)}, v{X+i}, v5, v{8+(i&1)}")
    A(f"s_waitcnt vmcnt({ne})")
    for i in range(40):
        A(f"v_dot2_f32_bf16 v{10+(i&1)}, v{X+i}, v{GW+i}, v{10+(i&1)}")
    A("s_nop 2")
    A("v_add_f32 v8, v8, v9")
    A("v_add_f32 v10, v10, v11")
    def red8(r):
        for m in ("quad_perm:[1,0,3,2]", "quad_perm:[2,3,0,1]", "row_half_mirror"):
            A("s_nop 1")
            for x in r: A(f"v_add_f32_dpp v{x}, v{x}, v{x} {m} row_mask:0xf bank_mask:0xf")
    red8([8, 10])
    A(f"v_mul_f32 v8, {0xBACCCCCD:#x}, v8")
    A("v_mov_b32 v9, v8")
    A(f"v_mul_f32 v10, {LOG2E | 0x80000000:#x}, v10")
    A("v_exp_f32 v10, v10")
    for i in range(40):
        A(f"v_lshlrev_b32 v{D+2*i}, 16, v{X+i}")
        A(f"v_and_b32 v{D+2*i+1}, 0xffff0000, v{X+i}")
    A("v_add_f32 v10, 1.0, v10")
    A("v_rcp_f32 v10, v10")
    for i in range(40):
        A(f"v_pk_add_f32 {vr(D+2*i,2)}, {vr(D+2*i,2)}, v[8:9]")
    A("v_pk_mul_f32 v[18:19], v[128:129], v[128:129]")
    A("v_pk_mul_f32 v[20:21], v[130:131], v[130:131]")
    for i in range(2, 40):
        a = 18 + 2*(i & 1)
        A(f"v_pk_fma_f32 {vr(a,2)}, {vr(D+2*i,2)}, {vr(D+2*i,2)}, {vr(a,2)}")
    A("v_pk_add_f32 v[18:19], v[18:19], v[20:21]")
    A("ds_write_b32 v17, v10 offset:49152")
    A("v_add_f32 v18, v18, v19")
    red8([18])
    A(f"v_mov_b32 v19, {0x3727C5AC:#x}")
    A(f"v_fmac_f32 v19, {0x3ACCCCCD:#x}, v18")
    A("v_rsq_f32 v18, v19")
    A("s_nop 0")
    A("v_mov_b32 v19, v18")
    for i in range(40):
        A(f"v_pk_mul_f32 {vr(D+2*i,2)}, {vr(D+2*i,2)}, v[18:19]")
        A(f"v_cvt_pk_bf16_f32 v{X+i}, v{D+2*i}, v{D+2*i+1}")
        if (i & 3) == 3:
            A(f"ds_write_b128 v16, {vr(X+i-3,4)} offset:{128*(i//4)}")
    A("v_lshrrev_b32 v2, 2, v1")
    A("v_mul_u32_u24 v2, 1312, v2")
    A("v_and_b32 v3, 3, v1")
    A("v_lshl_add_u32 v2, v3, 3, v2")
    A(f"s_mul_i32 s85, s{sWAVE}, 320")
    A("v_add_u32 v2, s85, v2")
    A(f"s_mul_i32 s85, s{sA}, 40960")
    A(f"s_mul_i32 s86, s{sWAVE}, 10240")
    A("s_add_u32 s85, s85, s86")
    A("s_add_u32 s86, s85, 4096")
    A("s_add_u32 s87, s85, 8192")
    A("v_lshlrev_b32 v17, 2, v1")
    A(f"s_lshl_b32 s88, s{sA}, 7")
    A(f"s_add_u32 s88, s88, {WS_G:#x}")
    A("s_waitcnt lgkmcnt(0)")
    A("s_barrier")
    A(f"s_cmp_lg_u32 s{sWAVE}, 3")
    A("s_cbranch_scc1 ln_ng")
    A("ds_read_b32 v10, v17 offset:49152")
    A("s_waitcnt lgkmcnt(0)")
    A("s_mov_b32 exec_hi, 0")
    A(f"buffer_store_dword v10, v17, s[{sWS}:{sWS+3}], s88 offen sc1")
    A("s_mov_b32 exec_hi, -1")
    A.label("ln_ng")
    for t in range(10):
        A(f"ds_read_b64_tr_b16 {vr(D+4*t,2)}, v2 offset:{32*t}")
        A(f"ds_read_b64_tr_b16 {vr(D+4*t+2,2)}, v2 offset:{32*t + 16*1312}")
        if t == 6: A("s_waitcnt lgkmcnt(6)")
    for t in range(10):
        A(f"s_waitcnt lgkmcnt({min(2*(9-t), 6)})")
        A(f"buffer_store_dwordx4 {vr(D+4*t,4)}, v{vB0}, s[{sWS}:{sWS+3}], s{85 + t//4} offen offset:{1024*(t&3)} sc1")

def c_adv1(): return [f"s_add_u32 s{sC1}, s{sC1}, s{sCST}", f"s_cmp_eq_u32 s{sC1}, s{sCE1}", f"s_cselect_b32 s{sC1}, s{sCB1}, s{sC1}"]
def c_adv2(): return [f"s_add_u32 s{sC2}, s{sC2}, 40960", f"s_cmp_eq_u32 s{sC2}, s{sCE2}", f"s_cselect_b32 s{sC2}, s{sCB2}, s{sC2}"]
def c_wdma(slot):
    L = [[f"s_add_u32 m0, s{sCM0}, {4096*slot}"]]
    for q in range(4):
        L.append([f"buffer_load_dwordx4 v{vWS_+q}, s[{sCW}:{sCW+3}], s{sC1} offen offset:{1024*q} lds"])
    return L
def c_bload(slot, n):
    return f"buffer_load_dwordx4 {ar(BR+20*slot+4*n,4)}, v{vB0 if n < 4 else vB1}, s[{sWS}:{sWS+3}], s{sC2} offen offset:{1024*(n&3)} sc1"
def c_tr(slot, aset):
    return [f"ds_read_b64_tr_b16 {ar(AS+16*aset+4*t+2*j,2)}, v{vTR+t} offset:{4096*slot+2048*j}" for t in range(4) for j in range(2)]
def c_wring(A):
    for s in range(OPT["d"]):
        emit_dma_block(A, c_wdma(s))
        for x in c_adv1(): A(x)
def c_bring(A):
    for s in range(OPT["d"]):
        for n in range(5): A(c_bload(s, n))
        for x in c_adv2(): A(x)
def switch_to_fb(A):
    A(f"s_mov_b64 s[{sCW}:{sCW+1}], s[{sW2}:{sW2+1}]")
    A(f"s_mov_b64 s[{sCW+2}:{sCW+3}], s[{sW2+2}:{sW2+3}]")
    for i in range(4): A(f"v_mov_b32 v{vWS_+i}, v{vWS2+i}")
    A(f"s_mov_b32 s{sC1}, s{sF1}")
    A(f"s_mov_b32 s{sCB1}, s{sFB1}")
    A(f"s_mov_b32 s{sCE1}, s{sFE1}")
    A(f"s_mov_b32 s{sCST}, {32*4096}")

def c_loop(A, pfx, nks, acc, w_is_A, tail_next, drain):
    DD = OPT["d"]; W0 = 5 + 9*(DD-2)
    def step(u, wait, doW, doB, doT, extra=[], last=False):
        A(f"s_waitcnt vmcnt({wait}) lgkmcnt(0)")
        tr = c_tr((u+1) & 3, (u+1) & 1) if doT else []
        mf = []
        for n in range(5):
            for t in range(4):
                w = ar(AS+16*(u & 1)+4*t, 4); b = ar(BR+20*u+4*n, 4); c = vr(acc+(t*5+n)*4, 4)
                mf.append(f"v_mfma_f32_16x16x32_bf16 {c}, {w}, {b}, {c}" if w_is_A else f"v_mfma_f32_16x16x32_bf16 {c}, {b}, {w}, {c}")
        fill = [[] for _ in range(20)]
        sl = (u + DD) & 3
        wd = c_wdma(sl)
        post = []
        if OPT.get("cv", 1) == 1 and not last:
            for k, x in enumerate(tr): fill[k].append(x)
            if doW:
                fill[8] += wd[0]
                fill[19] += flat(wd[1:])
                post = c_adv1()
            if doB:
                fill[19] += [c_bload(sl, n) for n in range(5)]
                post += c_adv2()
        else:
            if doW:
                A(wd[0][0])
                for t in range(4): fill[t] += wd[1+t]
                if not last: fill[12] += c_adv1()
            for k, x in enumerate(tr): fill[4+k].append(x)
            if doB:
                for n in range(5): fill[4*n+3].append(c_bload(sl, n))
                fill[19] += c_adv2()
            if last and doW: fill[5] += c_adv1()
        if last:
            for n in range(3):
                for t in range(4): fill[4*(n+2)+t] += drain(n, t)
            post += ["s_nop 3"] + flat([drain(3, t) for t in range(4)]) + flat([drain(4, t) for t in range(4)])
        weave(A, mf, fill)
        for x in post + extra: A(x)
    for x in c_tr(0, 0): A(x)
    A(f"s_mov_b32 s{sCNT}, {nks//4 - 1}")
    A(".p2align 3")
    A.label(f"{pfx}_loop")
    for u in range(4):
        if tail_next and u == 1:
            A(f"s_cmp_eq_u32 s{sPUB}, 0")
            A("s_cbranch_scc1 g1_nopub")
            A("s_waitcnt vmcnt(9)")
            A("s_barrier")
            A(f"s_cmp_lg_u32 s{sWAVE}, 0")
            A("s_cbranch_scc1 g1_pub1")
            flag_store(A, sPUB)
            A.label("g1_pub1")
            stamp(A, "kv_pub")
            A(f"s_mov_b32 s{sPUB}, 0")
            A(".p2align 3")
            A.label("g1_nopub")
        step(u, W0, True, True, True)
    if STAMPS:
        ng = nks//4 - 1
        i = _st["n"]; _st["n"] += ng; _st["names"] += [f"{pfx}_g{k}" for k in range(ng)]
        A("s_memtime s[100:101]")
        A("s_waitcnt lgkmcnt(0)")
        A(f"s_sub_u32 m0, {i + ng}, s{sCNT}")
        A("s_nop 0")
        A("v_writelane_b32 v47, s100, m0")
    A(f"s_sub_u32 s{sCNT}, s{sCNT}, 1")
    A(f"s_cmp_lg_u32 s{sCNT}, 0")
    A(f"s_cbranch_scc1 {pfx}_loop")
    seq = []
    for k in range(DD): seq += [("W", k)]*4 + [("B", k)]*5
    nW = 0
    for u in range(4):
        need = max([i for i, (t, k) in enumerate(seq) if (t == "B" and k == u) or (t == "W" and k == u+1)])
        wait = len(seq) - 1 - need
        own = u < 4 - DD
        if tail_next and u == 4 - DD: switch_to_fb(A)
        nxt = tail_next and not own
        ex = [poll_ld(vPO, 25)] if (tail_next and u == OPT["qpoll"]) else []
        step(u, wait, own or nxt, own, u < 3, ex, u == 3)
        if own: seq += [("W", u+DD)]*4 + [("B", u+DD)]*5
        elif nxt: seq += [("N", 0)]*4
        if ex: seq += [("P", 0)]
    after_poll = len(seq) - 1 - max([i for i, (t, k) in enumerate(seq) if t == "P"] + [0])
    stamp(A, pfx + "_loopdone")
    return after_poll

sFA1, sFA2, sFR = 54, 55, 94
sUS = 52
vGE = 224
def fa_params(A):
    A(f"s_and_b32 s{sFR}, s{sFD}, 3")
    A(f"s_lshl_b32 s{sFR}, s{sFR}, 1")
    A(f"s_and_b32 s89, s{sFS}, 7")
    A(f"s_add_u32 s{sFR}, s{sFR}, s89")
    A(f"s_mul_i32 s89, s{sFR}, 52")
    A("s_lshr_b32 s89, s89, 8")
    A("s_mul_i32 s89, s89, 5")
    A(f"s_sub_u32 s{sFR}, s{sFR}, s89")
    if not OPT["rot"]: A(f"s_mov_b32 s{sFR}, 0")
    A(f"s_mul_i32 s86, s{sWAVE}, 5")
    A(f"s_add_u32 s86, s86, s{sFR}")
    A(f"s_mul_i32 s{sFA1}, s{sFS}, {0 if OPT.get('same') else 20}")
    A(f"s_add_u32 s{sFA1}, s{sFA1}, s86")
    A(f"s_lshl_b32 s{sFA1}, s{sFA1}, 12")
    A(f"s_add_u32 s{sFA1}, s{sFA1}, {WS_PQ:#x}")
    A(f"s_mul_i32 s{sFA2}, s86, 40960")
    A(f"s_mul_i32 s89, s{sFD}, {0 if OPT.get('same') else 5120}")
    A(f"s_add_u32 s{sFA2}, s{sFA2}, s89")
    A(f"s_add_u32 s{sFA2}, s{sFA2}, {WS_M:#x}")
fa_b = lambda i: 0 if i == 0 else 112 + 36*(i-1)
def fa_ld(A, i):
    for st in range(4):
        A(f"buffer_load_dwordx4 {ar(fa_b(i)+4*st,4)}, v{vB0}, s[{sWS}:{sWS+3}], s{sFA1} offen offset:{1024*st} sc1")
    for n in range(5):
        A(f"buffer_load_dwordx4 {ar(fa_b(i)+16+4*n,4)}, v{vB0 if n < 4 else vB1}, s[{sWS}:{sWS+3}], s{sFA2} offen offset:{1024*(n&3)} sc1")
    if i < 4:
        A(f"s_add_u32 s{sFA1}, s{sFA1}, 4096")
        A(f"s_add_u32 s{sFA2}, s{sFA2}, 40960")
        A(f"s_add_u32 s{sFR}, s{sFR}, 1")
        A(f"s_cmp_eq_u32 s{sFR}, 5")
        A(f"s_cselect_b32 s86, {5*4096}, 0")
        A(f"s_cselect_b32 s89, {5*40960}, 0")
        A(f"s_sub_u32 s{sFA1}, s{sFA1}, s86")
        A(f"s_sub_u32 s{sFA2}, s{sFA2}, s89")

def g1_params(A):
    W, Rr = vGE, vGE + 4
    A("v_and_b32 v2, 15, v1")
    A("v_lshrrev_b32 v3, 4, v1")
    A("v_xor_b32 v4, v2, v3")
    A("v_lshlrev_b32 v4, 4, v4")
    A("v_lshl_add_u32 v4, v2, 8, v4")
    A(f"s_mul_i32 s85, s{sWAVE}, 20480")
    A(f"s_add_u32 s85, s85, {LDS_RED}")
    A(f"v_add_u32 v{W}, s85, v4")
    for t in range(1, 4): A(f"v_xor_b32 v{W+t}, {64*t}, v{W}")
    A(f"s_and_b32 s85, s{sWAVE}, 1")
    A(f"s_lshr_b32 s86, s{sWAVE}, 1")
    A("s_lshl_b32 s87, s85, 7")
    A("v_xor_b32 v4, s87, v4")
    A("s_lshl_b32 s87, s86, 12")
    A(f"s_add_u32 s87, s87, {LDS_RED}")
    A(f"v_add_u32 v{Rr}, s87, v4")
    A(f"v_xor_b32 v{Rr+1}, 64, v{Rr}")
    A(f"v_add_u32 v{Rr+2}, 40960, v{Rr}")
    A(f"v_add_u32 v{Rr+3}, 40960, v{Rr+1}")
    A(f"s_lshl_b32 s87, s{sG1F}, 1")
    A("s_add_u32 s87, s87, s85")
    A("s_lshl_b32 s23, s87, 6")
    A("v_lshlrev_b32 v12, 3, v3")
    A("s_mul_i32 s87, s87, 40")
    A(f"s_mul_i32 s88, s{sG1D}, 5")
    A("s_add_u32 s87, s87, s88")
    A("s_add_u32 s87, s87, s86")
    A("s_lshl_b32 s87, s87, 10")
    A(f"s_add_u32 s{sUS}, s87, {WS_U:#x}")
    A(f"s_add_u32 s{sUS+1}, s{sUS}, 4096")
    A(f"s_mov_b32 s90, {0xBDD2D3E8:#x}")
    A(f"s_mov_b32 s91, {0xBDD2D3E8:#x}")
    A(f"v_mov_b32 v{vGE+8}, {0xC0135761:#x}")
    A(f"v_mov_b32 v{vGE+9}, {0xC0135761:#x}")
    fa_params(A)
def b1_loads():
    return [[f"buffer_load_dwordx2 {vr(vGE+18+2*j,2)}, v12, s[{sB1}:{sB1+3}], s23 offen offset:{32*j}"] for j in range(2)]
def zero_acc(A):
    for i in range(0, 80, 2): A(f"v_mov_b64 {vr(ACC+i,2)}, 0")

def g1_phase(A):
    A.label("g1_entry")
    stamp(A, "g1_first")
    ap = c_loop(A, "g1", 16, ACC, True, True, lambda n, t: [f"ds_write_b128 v{vGE+t}, {vr(ACC+(t*5+n)*4,4)} offset:{4096*n}"])
    A(f"s_lshl_b32 s85, s{sWAVE}, 2")
    A(f"s_add_u32 s85, s85, {LDS_RED + 81920}")
    A("v_mov_b32 v2, s85")
    A(f"s_waitcnt vmcnt({ap})")
    A(f"v_cmp_ne_u32 vcc, s{sNON}, v{vPOLL}")
    A(f"v_mov_b32 v4, {LDS_RED + 81920}")
    A("s_cmp_eq_u64 vcc, 0")
    A("s_cselect_b32 s85, 1, 0")
    A("v_mov_b32 v3, s85")
    A("ds_write_b32 v2, v3")
    for j in range(2):
        for k in range(2):
            A(f"v_lshlrev_b32 v{vGE+10+4*j+2*k}, 16, v{vGE+18+2*j+k}")
            A(f"v_and_b32 v{vGE+11+4*j+2*k}, 0xffff0000, v{vGE+18+2*j+k}")
    A("s_waitcnt lgkmcnt(0)")
    A("s_barrier")
    stamp(A, "g1_red")
    A("ds_read_b128 v[4:7], v4")
    R = 128
    def rd(r):
        for j in range(2):
            for part in range(4):
                A(f"ds_read_b128 {vr(R+32*r+16*j+4*part,4)}, v{vGE+4+j+2*(part>>1)} offset:{8192*r + 20480*(part&1)}")
    def fin(r):
        b = R + 32*r
        for j in range(2):
            x = b + 16*j
            for i in (0, 2):
                A(f"v_pk_add_f32 {vr(x+i,2)}, {vr(x+i,2)}, {vr(x+4+i,2)}")
                A(f"v_pk_add_f32 {vr(x+8+i,2)}, {vr(x+8+i,2)}, {vr(x+12+i,2)}")
        for j in range(2):
            x = b + 16*j
            for i in (0, 2): A(f"v_pk_add_f32 {vr(x+i,2)}, {vr(x+i,2)}, {vr(vGE+10+4*j+i,2)}")
        for j in range(2):
            x = b + 16*j
            for i in (0, 2): A(f"v_pk_add_f32 {vr(x+i,2)}, {vr(x+i,2)}, {vr(x+8+i,2)}")
        E = [b + 16*j + i for j in range(2) for i in range(4)]
        E2 = E[::2]
        for x in E2: A(f"v_pk_mul_f32 {vr(x+4,2)}, {vr(x,2)}, {vr(x,2)}")
        for x in E2: A(f"v_pk_fma_f32 {vr(x+4,2)}, {vr(x+4,2)}, s[90:91], {vr(vGE+8,2)}")
        for x in E2: A(f"v_pk_mul_f32 {vr(x+4,2)}, {vr(x+4,2)}, {vr(x,2)}")
        for x in E: A(f"v_exp_f32 v{x+4}, v{x+4}")
        for x in E2: A(f"v_pk_add_f32 {vr(x+4,2)}, {vr(x+4,2)}, 1.0 op_sel_hi:[1,0]")
        for x in E: A(f"v_rcp_f32 v{x+4}, v{x+4}")
        for x in E2: A(f"v_pk_mul_f32 {vr(x,2)}, {vr(x,2)}, {vr(x+4,2)}")
        for j in range(2):
            x = b + 16*j
            A(f"v_cvt_pk_bf16_f32 v{b+8+2*j}, v{x}, v{x+1}")
            A(f"v_cvt_pk_bf16_f32 v{b+9+2*j}, v{x+2}, v{x+3}")
        A(f"buffer_store_dwordx4 {vr(b+8,4)}, v{vB0}, s[{sWS}:{sWS+3}], s{sUS if r < 2 else sUS+1} offen offset:{2048*(r&1)} sc1")
    rd(0)
    A("s_waitcnt lgkmcnt(4)")
    rd(1)
    A("v_and_b32 v4, v4, v5")
    A("v_and_b32 v6, v6, v7")
    A("v_and_b32 v4, v4, v6")
    A("s_nop 0")
    A(f"v_readfirstlane_b32 s{sQOK}, v4")
    A("s_nop 0")
    A(f"s_cmp_eq_u32 s{sQOK}, 0")
    A("s_cbranch_scc1 g1_q0")
    fa_ld(A, 0)
    A.label("g1_q0")
    A("s_waitcnt lgkmcnt(8)")
    fin(0)
    A(f"s_cmp_ge_u32 s{sWAVE}, 2")
    A("s_cbranch_scc1 g1_e1")
    rd(2)
    A("s_waitcnt lgkmcnt(8)")
    fin(1)
    A("s_waitcnt lgkmcnt(0)")
    fin(2)
    A("s_branch g1_e2")
    A.label("g1_e1")
    A("s_waitcnt lgkmcnt(0)")
    fin(1)
    A.label("g1_e2")
    stamp(A, "g1_st")
    A(f"s_cmp_eq_u32 s{sQOK}, 0")
    A("s_cbranch_scc1 g1_q1")
    fa_ld(A, 1)
    A("s_waitcnt vmcnt(9)")
    A("s_branch g1_q2")
    A.label("g1_q1")
    A("s_waitcnt vmcnt(0)")
    A.label("g1_q2")
    A(f"s_mul_i32 s88, s{sG1D}, 24")
    A(f"s_add_u32 s88, s88, s{sG1F}")
    publish(A, "pub_u", FL_G1, 88, None)
    stamp(A, "g1_pub")
    A(f"s_cmp_lg_u32 s{sQOK}, 0")
    A("s_cbranch_scc1 f_go")
    A(poll_ld(vPO, 25))
    A("s_waitcnt vmcnt(0)")
    poll_check(A, "pq", vPO, 25)
    A("s_barrier")

def f_phase(A):
    ACA = 128
    A.label("f_entry")
    fa_ld(A, 0); fa_ld(A, 1)
    A.label("f_go")
    stamp(A, "f_qok")
    A(f"s_or_b32 s85, s2, s{sWAVE}")
    A("s_cmp_lg_u32 s85, 0")
    A("s_cbranch_scc1 f_nox")
    A(f"s_mov_b32 s85, {FL_X:#x}")
    flag_store(A, 85)
    A.label("f_nox")
    fb = fa_b
    def fam(i):
        for n in range(5):
            for st in range(4):
                c = vr(ACA+(st*5+n)*4, 4)
                A(f"v_mfma_f32_16x16x32_bf16 {c}, {ar(fb(i)+16+4*n,4)}, {ar(fb(i)+4*st,4)}, {c if i else 0}")
    A("v_and_b32 v2, 15, v1")
    A("v_lshlrev_b32 v3, 2, v2")
    A(f"s_lshl_b32 s23, s{sFS}, 8")
    A(f"s_add_u32 s23, s23, {WS_G:#x}")
    for st in range(4):
        A(f"buffer_load_dword v{8+st}, v3, s[{sWS}:{sWS+3}], s23 offen offset:{64*st} sc1")
    A("v_lshlrev_b32 v3, 1, v2")
    A(f"s_lshl_b32 s23, s{sFS}, 7")
    A(f"s_cmp_eq_u32 s{sWAVE}, 0")
    A("s_cselect_b32 s23, s23, 0x40000000")
    for st in range(4):
        A(f"buffer_load_ushort v{4+st}, v3, s[{sB2}:{sB2+3}], s23 offen offset:{32*st}")
    fa_ld(A, 2)
    A("v_min_u32 v12, 23, v1")
    A("v_lshlrev_b32 v12, 7, v12")
    A(f"s_mul_i32 s23, s{sFD}, {24*128}")
    A(f"s_add_u32 s23, s23, {FL_G1:#x}")
    pp = OPT.get("upoll", 3)
    if pp == 2: A(poll_ld(12, 23))
    A(f"s_waitcnt vmcnt({26 + (pp == 2)})")
    fam(0)
    fa_ld(A, 3)
    if pp == 3: A(poll_ld(12, 23))
    A("s_waitcnt vmcnt(19)")
    fam(1)
    fa_ld(A, 4)
    for st in range(4):
        A(f"v_sub_f32 v{8+st}, 1.0, v{8+st}")
        A(f"v_lshlrev_b32 v{4+st}, 16, v{4+st}")
        for k in range(20): A(f"v_mov_b32 v{ACC+st*20+k}, v{4+st}")
    A(f"s_mov_b32 s{sC2}, s{sF2}")
    A(f"s_mov_b32 s{sCB2}, s{sFB2}")
    A(f"s_mov_b32 s{sCE2}, s{sFE2}")
    A("v_lshrrev_b32 v3, 4, v1")
    A("v_mul_u32_u24 v4, 336, v2")
    A("v_lshl_add_u32 v4, v3, 4, v4")
    A(f"s_mul_i32 s85, s{sWAVE}, 21504")
    A(f"s_add_u32 s85, s85, {LDS_RED}")
    A("v_add_u32 v4, s85, v4")
    A(f"s_mul_i32 s85, s{sWAVE}, {16*336}")
    A(f"s_add_u32 s85, s85, {LDS_RED}")
    A(f"s_lshl_b32 s90, s{sFS}, 2")
    A(f"s_add_u32 s90, s90, s{sWAVE}")
    A(f"s_mul_i32 s90, s90, {16*1280}")
    A(f"s_mul_i32 s87, s{sFD}, 160")
    A("s_add_u32 s90, s90, s87")
    for r in range(5):
        A(f"v_add_u32 v5, {64*r}, v1")
        A("v_mul_u32_u24 v6, 3277, v5")
        A("v_lshrrev_b32 v6, 16, v6")
        A("v_mul_u32_u24 v7, 20, v6")
        A("v_sub_u32 v7, v5, v7")
        A(f"v_mul_u32_u24 v{16+r}, 336, v6")
        A(f"v_lshl_add_u32 v{16+r}, v7, 4, v{16+r}")
        A(f"v_add_u32 v{16+r}, s85, v{16+r}")
        A(f"v_mul_u32_u24 v{24+r}, 1280, v6")
        A(f"v_lshl_add_u32 v{24+r}, v7, 3, v{24+r}")
    if pp == 2:
        A("s_waitcnt vmcnt(18)")
        poll_check(A, "pu", 12, 23)
        stamp(A, "f_uok")
        fam(2)
        c_bring(A)
        A(f"s_waitcnt vmcnt({9 + 5*OPT['d']})")
        fam(3)
    else:
        A("s_waitcnt vmcnt(19)")
        fam(2)
        A("s_waitcnt vmcnt(9)")
        poll_check(A, "pu", 12, 23)
        stamp(A, "f_uok")
        c_bring(A)
        fam(3)
    A(f"s_waitcnt vmcnt({5*OPT['d']})")
    fam(4)
    A(f"s_waitcnt vmcnt({5 if OPT['d'] == 2 else 10})")
    stamp(A, "fb_first")
    def drain(n, st):
        b = (st*5+n)*4
        return [f"v_fma_f32 v{ACA+b+i}, v{ACC+b+i}, v{8+st}, v{ACA+b+i}" for i in range(4)] + [f"ds_write_b128 v4, {vr(ACA+b,4)} offset:{st*16*336 + 64*n}"]
    c_loop(A, "fb", 12, ACC, False, False, drain)
    A("s_waitcnt lgkmcnt(0)")
    A("s_barrier")
    stamp(A, "f_red")
    R = ACC
    def rd(r):
        for part in range(4):
            A(f"ds_read_b128 {vr(R+16*r+4*part,4)}, v{16+r} offset:{21504*part}")
    rd(0); rd(1); rd(2)
    for r in range(5):
        A(f"s_waitcnt lgkmcnt({8 if r < 3 else 4*(4-r)})")
        b = R + 16*r
        for i in (0, 2):
            A(f"v_pk_add_f32 {vr(b+i,2)}, {vr(b+i,2)}, {vr(b+4+i,2)}")
            A(f"v_pk_add_f32 {vr(b+8+i,2)}, {vr(b+8+i,2)}, {vr(b+12+i,2)}")
        if r + 3 < 5: rd(r+3)
        for i in (0, 2): A(f"v_pk_add_f32 {vr(b+i,2)}, {vr(b+i,2)}, {vr(b+8+i,2)}")
        A(f"v_cvt_pk_bf16_f32 v{b}, v{b}, v{b+1}")
        A(f"v_cvt_pk_bf16_f32 v{b+1}, v{b+2}, v{b+3}")
        A(f"buffer_store_dwordx2 {vr(b,2)}, v{24+r}, s[{sOUT}:{sOUT+3}], s90 offen")

def kd(name):
    return f""".section .rodata,"a"
.p2align 6
.amdhsa_kernel {name}
  .amdhsa_next_free_vgpr 512
  .amdhsa_next_free_sgpr 102
  .amdhsa_accum_offset 256
  .amdhsa_group_segment_fixed_size 0
  .amdhsa_kernarg_size 96
  .amdhsa_user_sgpr_count 2
  .amdhsa_user_sgpr_kernarg_segment_ptr 1
  .amdhsa_system_sgpr_workgroup_id_x 1
.end_amdhsa_kernel
"""

def gen():
    hdr = open("cdna_kernels/" + NAME + ".s.ref").read().split("; Override")[0]
    hdr += f"; @launch grid=(256,1,1) block=(256,1,1) lds={LDS_BYTES}\n"
    hdr += '.amdgcn_target "amdgcn-amd-amdhsa--gfx950"\n'
    A = Asm()
    K = NAME + "_kernel"
    A(".text"); A(f".globl {K}"); A(".p2align 8"); A(f".type {K},@function"); A.label(K)
    prologue(A)
    A("s_cmp_ge_u32 s82, 16"); A("s_cbranch_scc1 r_notkv")
    A("s_and_b32 s85, s82, 3")
    A("s_lshl_b32 s86, s83, 2")
    A(f"s_add_u32 s{sA}, s85, s86")
    A("s_lshr_b32 s85, s82, 2")
    A("s_lshl_b32 s86, s84, 2")
    A(f"s_add_u32 s{sBp}, s85, s86")
    qkv_setup(A, False)
    A("s_waitcnt lgkmcnt(0)"); srds(A, ["X", "W"])
    stamp(A, "kv_pre")
    def mid(A):
        params1(A); srds(A, ["WS", "W1", "B1", "W2", "B2", "OUT"]); params2(A); g1_params(A)
        for i in range(7): kv_rank(A, vKR+i, i, 4)
    ex = {}
    for it in (8, 9):
        g = ([[poll_ld(vPO, 24)]] + b1_loads()) if it == 8 else []
        sts = [x for x in (2*(it-8), 2*(it-8)+1) if x < OPT["d"]]
        for s in sts:
            g += c_wdma(s); g[-1] = g[-1] + c_adv1()
        ex[it] = (g, 9 if it == 8 else 8)
    qkv_gemm(A, "kv", False, mid, ex, lambda A: poll_check(A, "pln", vPO, 24))
    side = []
    D = OPT["d"]; EW = 5 if D == 2 else 10; nbin = min(OPT["nbin"], 5*D)
    for sl in range(D):
        for n in range(5): side.append([c_bload(sl, n)] + (c_adv2() if n == 4 else []))
    def fin(A, nst):
        for g in side[nbin:]:
            for x in g: A(x)
        NB = 5*D - EW
        A(f"s_waitcnt vmcnt({(nbin - NB + nst + 5*D - nbin) if nbin >= NB else EW})")
    kv_epilogue(A, [[]]*(20 - nbin) + side[:nbin], fin)
    stamp(A, "kv_st")
    A(f"s_lshl_b32 s{sPUB}, s{sA}, 3")
    A(f"s_add_u32 s{sPUB}, s{sPUB}, s{sBp}")
    A(f"s_lshl_b32 s{sPUB}, s{sPUB}, 7")
    A(f"s_add_u32 s{sPUB}, s{sPUB}, {FL_KV:#x}")
    g1_phase(A)
    f_phase(A)
    stamp_flush(A)
    A.label("k_end"); A("s_endpgm")
    A.label("r_notkv")
    if OPT["pf_code"]:
        A("s_getpc_b64 s[86:87]")
        A.label("pc_here")
        A(f"s_sub_u32 s86, s86, pc_here-{K}")
        A("s_subb_u32 s87, s87, 0")
        A("s_sub_u32 s85, s82, 16")
        A("s_lshl_b32 s85, s85, 2")
        A(f"s_add_u32 s85, s85, s{sWAVE}")
        A("s_lshl_b32 s85, s85, 3")
        A("v_add_lshl_u32 v2, v1, s85, 7")
        A(f"v_min_u32 v2, k_codeend-{K}-4, v2")
        A("s_mov_b64 exec, 0xff")
        A("global_load_dword a255, v2, s[86:87]")
        A("s_mov_b64 exec, -1")
    A("s_cmp_lt_u32 s82, 24"); A("s_cbranch_scc1 r_q")
    A("s_sub_u32 s87, s82, 24")
    A("s_lshl_b32 s85, s81, 3")
    A(f"s_add_u32 s{sA}, s85, s87")
    aux = " nt" if OPT.get("nt") else ""
    w1l = lambda k: f"buffer_load_dword a255, v22, s[{sW1}:{sW1+3}], s{26 + k//3} offen offset:{256*(k%3)}{aux}"
    def after(A):
        params1(A); srds(A, ["WS", "W1", "B1", "W2", "B2", "OUT"]); params2(A); g1_params(A)
        w1_setup(A, 24, 22)
        for k in range(OPT["early"] if OPT["pf_w1"] else 0): A(w1l(k))
    ln_role(A, after, OPT["early"] if OPT["pf_w1"] else 0)
    publish(A, "pub_ln", FL_LN, sA)
    stamp(A, "ln_pub")
    for k in range(OPT["early"], (3 - OPT["qw1n"]) if OPT["pf_w1"] else 0): A(w1l(k))
    def pf_h():
        A(poll_ld(vPO, 24))
        A("v_lshrrev_b32 v2, 5, v1")
        A("v_mul_u32_u24 v2, 40960, v2")
        A("v_and_b32 v3, 31, v1")
        A("v_lshl_add_u32 v2, v3, 7, v2")
        A("s_sub_u32 s85, s82, 24")
        A("s_lshl_b32 s85, s85, 2")
        A(f"s_add_u32 s85, s85, s{sWAVE}")
        A(f"s_mul_i32 s87, s85, {2*40960}")
        A("s_mul_i32 s86, s84, 20480")
        A("s_add_u32 s87, s87, s86")
        A("s_waitcnt vmcnt(0)")
        poll_check(A, "plnh", vPO, 24)
        A("s_barrier")
        for i in range(5):
            A(f"buffer_load_dword a255, v2, s[{sWS}:{sWS+3}], s87 offen sc1")
            A("s_add_u32 s87, s87, 4096")
    for c in str(OPT["lnseq"]):
        if c == "1" and OPT["pf_w1"]:
            for k in range(3, 6): A(w1l(k))
        if c == "6":
            for k in range(3): A(w1l(k))
        if c == "2": pf_h()
        if c == "3": w2_prefetch(A, 24, [0])
        if c == "4": w2_prefetch(A, 24, [0, 1])
        if c == "5": w2_prefetch(A, 24, [0, 1, 2])
    stamp(A, "ln_pf")
    for g in b1_loads(): A(g[0])
    A(poll_ld(vPO, 24))
    c_wring(A)
    A(f"s_waitcnt vmcnt({4*OPT['d']})")
    poll_check(A, "pln2", vPO, 24)
    A("s_barrier")
    c_bring(A)
    A(f"s_mov_b32 s{sPUB}, 0")
    zero_acc(A)
    A(f"s_waitcnt vmcnt({EW})")
    stamp(A, "ln_ready")
    A("s_branch g1_entry")
    A.label("r_q")
    A("s_sub_u32 s87, s82, 16")
    A("s_and_b32 s85, s87, 3")
    A("s_lshl_b32 s86, s83, 2")
    A(f"s_add_u32 s{sA}, s85, s86")
    A("s_lshr_b32 s85, s87, 2")
    A("s_lshl_b32 s86, s84, 1")
    A(f"s_add_u32 s{sBp}, s85, s86")
    A("s_lshl_b32 s85, s81, 3")
    A("s_add_u32 s85, s85, s87")
    A(f"s_lshr_b32 s{sU}, s85, 2")
    A(f"s_and_b32 s{sNR}, s85, 3")
    qkv_setup(A, True)
    A("s_waitcnt lgkmcnt(0)"); srds(A, ["X", "W"])
    def midq(A):
        params1(A); srds(A, ["WS", "W1", "WO", "W2", "B2", "OUT"]); params2(A)
        w1_setup(A, 16, 12)
    qkv_gemm(A, "q", True, midq, {}, None)
    q_epilogue(A)
    A("s_lshl_b32 s88, s81, 3")
    A("s_add_u32 s88, s88, s82")
    A("s_sub_u32 s88, s88, 16")
    publish(A, "pub_q", FL_Q, 88)
    stamp(A, "q_pub")
    if OPT["qw2b"]: w2_prefetch(A, 16, list(range(OPT["qw2b"])))
    switch_to_fb(A)
    A(poll_ld(vPO, 25))
    c_wring(A)
    A(f"s_waitcnt vmcnt({4*OPT['d']})")
    poll_check(A, "pq2", vPO, 25)
    A("s_barrier")
    stamp(A, "q_allq")
    if OPT["pf_pq"]:
        A("s_sub_u32 s88, s82, 16")
        A("s_lshl_b32 s88, s88, 2")
        A(f"s_add_u32 s88, s88, s{sWAVE}")
        A("v_lshlrev_b32 v2, 7, v1")
        A(f"s_mul_i32 s85, s83, {8*81920}")
        A(f"s_mul_i32 s86, s88, {160*128}")
        A("s_add_u32 s85, s85, s86")
        A(f"s_add_u32 s85, s85, {WS_PQ:#x}")
        for i in range(3):
            if i == 2: A("s_mov_b32 exec_hi, 0")
            A(f"buffer_load_dword a255, v2, s[{sWS}:{sWS+3}], s85 offen sc1")
            A("s_add_u32 s85, s85, 8192")
        A("s_mov_b32 exec_hi, -1")
        A("s_cmp_ge_u32 s88, 20")
        A("s_cbranch_scc1 q_pfd")
        A("s_mul_i32 s85, s88, 40960")
        A("s_mul_i32 s86, s84, 20480")
        A("s_add_u32 s85, s85, s86")
        A(f"s_add_u32 s85, s85, {WS_M:#x}")
        for i in range(3):
            if i == 2: A("s_mov_b32 exec_hi, 0")
            A(f"buffer_load_dword a255, v2, s[{sWS}:{sWS+3}], s85 offen sc1")
            A("s_add_u32 s85, s85, 8192")
        A("s_mov_b32 exec_hi, -1")
        A.label("q_pfd")
    fa_params(A)
    A("s_waitcnt vmcnt(0)")
    A("s_branch f_entry")
    A.label("k_codeend")
    for i, l in enumerate(A.lines):
        if l.startswith("v_mad_i32_i24 v4, v3, -20"):
            A.lines[i] = l.replace("-20", "s89")
        if l == "s_movk_i32 s88, 3840":
            A.lines[i] = "s_movk_i32 s89, -20"
    nb = check(A.lines)
    print("hazards:", nb, file=sys.stderr)
    return hdr + A.text() + kd(K)

if __name__ == "__main__":
    out = sys.argv[1]
    for a in sys.argv[2:]:
        if a == "st": STAMPS = True
        else:
            k, v = a.split("="); OPT[k] = int(v)
    open(out, "w").write(gen())
    if STAMPS: json.dump(_st["names"], open(out + ".names", "w"))
```

```python
import sys, json
from asmlib import Asm, vr, ar, sr, check

NAME = "gated_mix__linear_attn_block__mixer_token_mlp__prompt"
WS_H   = 0x000000
WS_U   = 0x280000
WS_PQ  = 0x460000
WS_M   = 0x6E0000
WS_KVP = 0x7A8000
WS_ZP  = 0x880000
WS_G   = 0x972000
WS_FLAG = 0x974000
FL_X = WS_FLAG
FL_LN = WS_FLAG + 128
FL_KV = FL_LN + 64*128
FL_Q = FL_KV + 128*128
FL_G1 = FL_Q + 64*128
WS_SIZE = FL_G1 + 192*128
WS_STAMP = 0x1000000

sX, sW, sWS, sW1, sW2, sOUT, sWO, sB1, sB2, sGW = 28, 32, 36, 40, 44, 48, 52, 56, 60, 64
sWAVE = 68
sA, sBp = 69, 70
sG1D, sG1F, sFS, sFD = 71, 72, 73, 74
sCNT, sO1, sO2, sRD, sWR, sM0 = 75, 76, 77, 78, 79, 80
sEX, sMK = 90, 92
sU, sNR = 94, 95
sWR_, sWC_ = 96, 97
sPUB = 3
sQOK = 99
sM1 = 98
sC1, sC2, sCM0, sCB1, sCE1, sCB2, sCE2, sCST, sCW, sNON = 4, 5, 6, 7, 8, 9, 10, 11, 12, 16
sF1, sFB1, sFE1, sF2, sFB2, sFE2 = 17, 18, 19, 20, 21, 22
LOG2E = 0x3FB8AA3B
EPS6 = 0x358637BD
LDS_RED = 65536
LDS_BYTES = 163840
vXO, vWO_, vXB, vCUR = 16, 20, 25, 29
vWS_, vB0, vB1, vTR, vWS2 = 33, 37, 38, 39, 43
ACC = 48
FA_, FB_ = 112, 148
BR, AS = 0, 80
STG = 36864
vPOLL, vPO = 14, 13
OPT = {"rot": 1, "pf_w1": 1, "pf_w2": 1, "pf_code": 1, "pf_pq": 1, "sleep": 4, "early": 1, "d": 3, "qpoll": 2, "nbin": 10, "cv": 0, "lnseq": 14, "qw2": 1, "qw2b": 0, "ntq": 0, "qw1": 3, "qw1n": 0, "kvr": 1, "touch": 1, "perm": 0, "otouch": 0, "rdb": 4, "w2c": 1, "qfirst": 0, "rfd": 3, "tailw": 1, "pubat": 1, "kvw2": 0, "b0": 0, "qw1b": 0, "rfb": 4, "frot": 1, "arot": 1, "fmap": 0, "qrot": 1, "grot": 4}
STAMPS = False
_st = {"n": 0, "names": []}

def stamp(A, name, real=False):
    if not STAMPS: return
    i = _st["n"]; _st["n"] += 1; _st["names"].append(name)
    A("s_memrealtime s[100:101]" if real else "s_memtime s[100:101]")
    A("s_waitcnt lgkmcnt(0)")
    A(f"v_writelane_b32 v47, s100, {i}")
def stamp_flush(A):
    if not STAMPS: return
    stamp(A, "end"); stamp(A, "endreal", True)
    A("s_lshl_b32 s100, s2, 2")
    A(f"s_add_u32 s100, s100, s{sWAVE}")
    A("s_lshl_b32 s100, s100, 8")
    A(f"s_add_u32 s100, s100, {WS_STAMP:#x}")
    A(f"s_mov_b32 s{sWS+2}, 0x2000000")
    A("v_lshlrev_b32 v46, 2, v1")
    A(f"buffer_store_dword v47, v46, s[{sWS}:{sWS+3}], s100 offen")

def srds(A, which):
    tab = {"X": (sX, 4, 2048*1280), "W": (sW, 6, 640*3840), "WO": (sWO, 8, 640*1280), "W1": (sW1, 12, 2048*3072), "B1": (sB1, 14, 3072),
           "W2": (sW2, 16, 1536*4096), "B2": (sB2, 18, 4096), "GW": (sGW, 20, 1280), "OUT": (sOUT, 22, 2048*1280), "WS": (sWS, 26, WS_SIZE)}
    for w in which:
        base, ptr, size = tab[w]
        A(f"s_mov_b64 s[{base}:{base+1}], s[{ptr}:{ptr+1}]")
        A(f"s_mov_b32 s{base+2}, {size:#x}")
        A(f"s_mov_b32 s{base+3}, 0x20000")

def flat(groups):
    out = []
    for g in groups: out += g if isinstance(g, list) else [g]
    return out

def weave(A, mf, fill, first=0):
    for i, m in enumerate(mf):
        A(m)
        if i < len(fill):
            for x in fill[i]: A(x)
    for g in fill[len(mf):]:
        for x in g: A(x)

def poll_off(A, dst, nper, total_waves_split=True):
    A(f"v_and_b32 v{dst}, {nper-1}, v1")
    A(f"s_mul_i32 s85, s{sWAVE}, {nper}")
    A(f"v_add_lshl_u32 v{dst}, v{dst}, s85, 7")
def poll_ld(vo, so):
    return f"buffer_load_dword v{vPOLL}, v{vo}, s[{sWS}:{sWS+3}], s{so} offen sc1"
def poll_check(A, name, vo, so):
    A(f"v_cmp_ne_u32 vcc, s{sNON}, v{vPOLL}")
    A(f"s_cbranch_vccz {name}_ok")
    A(f"s_mov_b32 s{sM1}, 0")
    A.label(f"{name}_spin")
    A(f"s_add_u32 s{sM1}, s{sM1}, 1")
    A(f"s_cmp_gt_u32 s{sM1}, 0x8000")
    A(f"s_cbranch_scc1 {name}_ok")
    A(f"s_sleep {OPT['sleep']}")
    A(poll_ld(vo, so))
    A("s_waitcnt vmcnt(0)")
    A(f"v_cmp_ne_u32 vcc, s{sNON}, v{vPOLL}")
    A(f"s_cbranch_vccnz {name}_spin")
    A.label(f"{name}_ok")
def flag_store(A, so):
    A(f"v_mov_b32 v2, s{sNON}")
    A("v_lshlrev_b32 v3, 2, v1")
    A("s_mov_b32 exec_hi, 0")
    A(f"buffer_store_dword v2, v3, s[{sWS}:{sWS+3}], s{so} offen sc1")
    A("s_mov_b32 exec_hi, -1")
def publish(A, name, base, sidx, wait=0):
    if wait is not None: A(f"s_waitcnt vmcnt({wait})")
    A("s_barrier")
    A(f"s_cmp_lg_u32 s{sWAVE}, 0")
    A(f"s_cbranch_scc1 {name}_np")
    A(f"s_lshl_b32 s85, s{sidx}, 7")
    A(f"s_add_u32 s85, s85, {base:#x}")
    flag_store(A, 85)
    A.label(f"{name}_np")

def prologue(A):
    A("s_cmp_ge_u32 s2, 256")
    A("s_cbranch_scc1 k_end")
    if STAMPS: A("v_mov_b32 v47, 0")
    stamp(A, "startreal", True); stamp(A, "start")
    A("s_load_dwordx16 s[4:19], s[0:1], 0")
    A("s_load_dwordx8 s[20:27], s[0:1], 64")
    A("v_lshrrev_b32 v2, 6, v0")
    A("v_and_b32 v1, 63, v0")
    A(f"v_readfirstlane_b32 s{sWAVE}, v2")
    A("s_and_b32 s81, s2, 7")
    A("s_lshr_b32 s82, s2, 3")
    A("s_lshr_b32 s83, s81, 1")
    A("s_and_b32 s84, s81, 1")

def params1(A):
    A(f"s_add_u32 s86, s26, {FL_X:#x}")
    A("s_addc_u32 s87, s27, 0")
    A("s_load_dword s3, s[86:87], 0")
    A("s_lshr_b32 s85, s82, 2")
    A("s_lshl_b32 s88, s83, 3")
    if OPT["perm"]: A("s_xor_b32 s85, s85, 7")
    A(f"s_add_u32 s{sFS}, s85, s88")
    A("s_and_b32 s85, s82, 3")
    A("s_lshl_b32 s88, s84, 2")
    A(f"s_add_u32 s{sFD}, s85, s88")
    if OPT["fmap"]:
        A("s_lshr_b32 s85, s82, 3")
        A("s_lshl_b32 s85, s85, 3")
        A(f"s_add_u32 s{sFS}, s85, s81")
        A(f"s_and_b32 s{sFD}, s82, 7")
    A("s_sub_u32 s85, s82, 8")
    A("s_cmp_lt_u32 s82, 16")
    A("s_cselect_b32 s85, s82, s85")
    A("s_and_b32 s89, s85, 3")
    A(f"s_add_u32 s{sG1D}, s89, s88")
    A("s_lshr_b32 s85, s85, 2")
    A("s_lshl_b32 s88, s85, 2")
    A(f"s_add_u32 s{sG1F}, s83, s88")
    A("s_lshr_b32 s88, s85, 2")
    A("s_lshl_b32 s85, s85, 1")
    A("s_add_u32 s85, s85, s88")
    A("s_lshl_b32 s85, s85, 1")
    if OPT["rfb"] == 0: A("s_mov_b32 s85, 0")
    A(f"s_mul_i32 s89, s89, {OPT['rdb']}")
    A("s_add_u32 s85, s85, s89")
    if OPT["grot"] == 2: A("s_lshl_b32 s85, s85, 1")
    A(f"s_and_b32 s99, s85, {(15 if OPT['grot'] == 4 else 8) if OPT['grot'] else 0}")

def params2(A):
    if OPT.get("same"):
        for k, r in enumerate((sG1D, sG1F, sFS, sFD)):
            A(f"s_mov_b32 s{100 if not STAMPS else 64+k}, s{r}")
            A(f"s_mov_b32 s{r}, 0")
        params2_(A)
        for k, r in enumerate((sG1D, sG1F, sFS, sFD)): A(f"s_mov_b32 s{r}, s{64+k}")
    else: params2_(A)
def params2_(A):
    A(f"s_mul_i32 s{sCB1}, s{sWAVE}, {16*32*3072}")
    A(f"s_lshl_b32 s85, s{sG1F}, 7")
    A(f"s_add_u32 s{sCB1}, s{sCB1}, s85")
    A(f"s_add_u32 s{sCE1}, s{sCB1}, {16*32*3072}")
    A(f"s_mul_i32 s85, s99, {32*3072}")
    A(f"s_add_u32 s{sC1}, s{sCB1}, s85")
    A(f"s_mul_i32 s{sCB2}, s{sWAVE}, {16*40960}")
    A(f"s_mul_i32 s85, s{sG1D}, 5120")
    A(f"s_add_u32 s{sCB2}, s{sCB2}, s85")
    A(f"s_add_u32 s{sCE2}, s{sCB2}, {16*40960}")
    A(f"s_mul_i32 s85, s99, 40960")
    A(f"s_add_u32 s{sC2}, s{sCB2}, s85")
    A(f"s_mov_b32 s{sCST}, {32*3072}")
    A(f"s_mov_b64 s[{sCW}:{sCW+1}], s[{sW1}:{sW1+1}]")
    A(f"s_mov_b64 s[{sCW+2}:{sCW+3}], s[{sW1+2}:{sW1+3}]")
    A(f"s_lshl_b32 s{sCM0}, s{sWAVE}, 14")
    A("s_and_b32 s85, s82, 3")
    A(f"s_mul_i32 s85, s85, {OPT['rfd']}")
    A("s_lshr_b32 s86, s82, 2")
    A("s_mul_i32 s86, s86, 3")
    A("s_lshr_b32 s86, s86, 1")
    A("s_add_u32 s85, s85, s86")
    A("s_cmp_ge_u32 s85, 12")
    A("s_cselect_b32 s86, 12, 0")
    A("s_sub_u32 s85, s85, s86")
    if OPT["frot"] == 0: A("s_mov_b32 s85, 0")
    if OPT["frot"] == 2:
        A(f"s_add_u32 s85, s{sFS}, s{sFD}")
        A("s_and_b32 s85, s85, 1")
        A("s_mul_i32 s85, s85, 6")
    if OPT["frot"] == 3:
        A(f"s_add_u32 s85, s{sFS}, s{sFD}")
        A("s_mul_i32 s86, s85, 86")
        A("s_lshr_b32 s86, s86, 8")
        A("s_mul_i32 s86, s86, 3")
        A("s_sub_u32 s85, s85, s86")
        A("s_lshl_b32 s85, s85, 2")
    A(f"s_mul_i32 s{sFB1}, s{sWAVE}, {12*32*4096}")
    A(f"s_lshl_b32 s86, s{sFS}, 7")
    A(f"s_add_u32 s{sFB1}, s{sFB1}, s86")
    A(f"s_add_u32 s{sFE1}, s{sFB1}, {12*32*4096}")
    A(f"s_lshl_b32 s86, s85, 17")
    A(f"s_add_u32 s{sF1}, s{sFB1}, s86")
    A(f"s_mul_i32 s{sFB2}, s{sWAVE}, {12*40960}")
    A(f"s_mul_i32 s86, s{sFD}, 5120")
    A(f"s_add_u32 s{sFB2}, s{sFB2}, s86")
    A(f"s_add_u32 s{sFB2}, s{sFB2}, {WS_U:#x}")
    A(f"s_add_u32 s{sFE2}, s{sFB2}, {12*40960}")
    A(f"s_mul_i32 s86, s85, 40960")
    A(f"s_add_u32 s{sF2}, s{sFB2}, s86")
    A(f"v_lshlrev_b32 v{vB0}, 4, v1")
    A(f"v_add_u32 v{vB1}, 4096, v{vB0}")
    A("v_lshrrev_b32 v2, 2, v1")
    A("v_lshrrev_b32 v3, 1, v2")
    A("v_and_b32 v3, 3, v3")
    A("v_lshlrev_b32 v2, 7, v2")
    A("v_lshl_add_u32 v2, v3, 5, v2")
    A("v_and_b32 v3, 3, v1")
    A("v_lshl_add_u32 v2, v3, 3, v2")
    A(f"v_add_u32 v{vTR}, s{sCM0}, v2")
    for t in range(1, 4): A(f"v_xor_b32 v{vTR+t}, {32*t}, v{vTR}")
    A("v_lshrrev_b32 v2, 3, v1")
    A("v_lshrrev_b32 v3, 4, v1")
    A("v_lshlrev_b32 v3, 1, v3")
    A("v_and_b32 v4, 7, v1")
    A("v_xor_b32 v3, v3, v4")
    A("v_lshlrev_b32 v3, 4, v3")
    for base, stride in ((vWS_, 3072), (vWS2, 4096)):
        A(f"v_mul_u32_u24 v4, {stride}, v2")
        A(f"v_add_u32 v{base}, v3, v4")
        for q in range(1, 4): A(f"v_add_u32 v{base+q}, {q*(8*stride-1024)}, v{base}")
    poll_off(A, vPO, 16)
    A("v_lshlrev_b32 v15, 7, v1")
    A(f"s_mov_b32 s24, {FL_LN:#x}")
    A(f"s_mov_b32 s25, {FL_Q:#x}")
    A("s_waitcnt lgkmcnt(0)")
    A(f"s_mul_i32 s{sNON}, s3, 0x41C64E6D")
    A(f"s_add_u32 s{sNON}, s{sNON}, 0x3C6EF35F")

def qkv_setup(A, isq):
    A(f"s_lshr_b32 s{sWR_}, s{sWAVE}, 1")
    A(f"s_and_b32 s{sWC_}, s{sWAVE}, 1")
    A("v_lshrrev_b32 v2, 3, v1")
    A(f"s_lshl_b32 s85, s{sWAVE}, 5")
    A("v_add_u32 v2, s85, v2")
    A("v_mul_u32_u24 v2, 1280, v2")
    A("v_lshrrev_b32 v3, 4, v1")
    A("v_and_b32 v4, 7, v1")
    A("v_xor_b32 v4, v4, v3")
    A(f"v_lshl_add_u32 v{vXO}, v4, 4, v2")
    A("v_xor_b32 v4, 4, v4")
    A("v_lshl_add_u32 v6, v4, 4, v2")
    A(f"v_add_u32 v{vXO+1}, {8*1280-1024}, v6")
    A(f"v_add_u32 v{vXO+2}, {16*1280-2048}, v{vXO}")
    A(f"v_add_u32 v{vXO+3}, {24*1280-3072}, v6")
    A(f"s_mul_i32 s{sO1}, s{sA}, {0 if OPT.get('same') else 128*1280}")
    if OPT.get("same"):
        A("s_mov_b32 s86, 1280")
    elif isq:
        A(f"s_mul_i32 s86, s{sBp}, 320")
    else:
        A(f"s_mul_i32 s86, s{sBp}, 160")
        A("s_add_u32 s86, s86, 1280")
    A(f"s_mul_i32 s85, s{sWAVE}, {16*3840}")
    A("s_add_u32 s85, s85, s86")
    A("s_movk_i32 s88, 3840")
    for n in range(5):
        if n: A(f"v_add_u32 v2, {64*n}, v1")
        q = "v2" if n else "v1"
        A(f"v_mul_u32_u24 v3, 3277, {q}")
        A("v_lshrrev_b32 v3, 16, v3")
        A(f"v_mad_i32_i24 v4, v3, -20, {q}")
        A("v_lshrrev_b32 v5, 2, v3")
        A("v_and_b32 v5, 2, v5")
        A("v_xor_b32 v4, v4, v5")
        comp = 1024*n if n < 4 else 0
        A(f"s_sub_u32 s87, s85, {comp}" if comp else "s_mov_b32 s87, s85")
        A("v_mad_u32_u24 v3, v3, s88, s87" if False else "v_mul_u32_u24 v3, 3840, v3")
        A("v_lshl_add_u32 v3, v4, 4, v3")
        if not isq:
            A("v_cmp_le_u32 vcc, 10, v4")
            A("v_add_u32 v5, 1120, v3")
            A("v_add_u32 v3, s87, v3")
            A("v_add_u32 v5, s87, v5")
            A(f"v_cndmask_b32 v{vWO_+n}, v3, v5, vcc")
        else:
            A(f"v_add_u32 v{vWO_+n}, s87, v3")
    A(f"s_mov_b32 s{sO2}, 0")
    if OPT["rot"]:
        q = OPT["qrot"]
        if q == 1:
            A("s_and_b32 s85, s82, 3")
            A("s_lshl_b32 s85, s85, 2")
            A("s_lshr_b32 s85, 0x8530, s85")
            A("s_and_b32 s85, s85, 15")
            A("s_and_b32 s86, s82, 12")
            A("s_lshr_b32 s86, 0x8530, s86")
            A("s_and_b32 s86, s86, 15")
            A("s_add_u32 s85, s85, s86")
            A("s_add_u32 s85, s85, s83")
            A("s_add_u32 s85, s85, s84")
        else:
            A("s_lshr_b32 s85, s82, 2")
            A("s_add_u32 s85, s85, s82")
            A("s_and_b32 s85, s85, 1")
            A("s_mul_i32 s85, s85, 5")
            if q == 2:
                A("s_add_u32 s85, s85, s83")
                A("s_add_u32 s85, s85, s84")
            if q == 4:
                A("s_add_u32 s85, s85, s81")
            if q == 5:
                A("s_mov_b32 s85, s81")
        if isq: A("s_add_u32 s85, s85, 1")
        A("s_mul_i32 s86, s85, 26")
        A("s_lshr_b32 s86, s86, 8")
        A("s_mul_i32 s86, s86, 10")
        A("s_sub_u32 s85, s85, s86")
        A(f"s_mul_i32 s{sO2}, s85, {64*3840}")
        A("s_lshl_b32 s85, s85, 7")
        A(f"s_add_u32 s{sO1}, s{sO1}, s85")
    A(f"s_lshl_b32 s{sM0}, s{sWAVE}, 12")
    A(f"s_mul_i32 s{sM1}, s{sWAVE}, 5120")
    A(f"s_add_u32 s{sM1}, s{sM1}, 16384")
    A(f"s_mov_b32 s{sWR}, {2*STG}")

def nt(b): return " nt" if OPT["ntq"] & b else ""
def qkv_dma():
    L = [[f"s_add_u32 m0, s{sWR}, s{sM0}"]]
    for n in range(4):
        L.append([f"buffer_load_dwordx4 v{vXO+n}, s[{sX}:{sX+3}], s{sO1} offen offset:{1024*n}{nt(1)} lds"])
    L.append([f"s_add_u32 m0, s{sWR}, s{sM1}"])
    for n in range(4):
        L.append([f"buffer_load_dwordx4 v{vWO_+n}, s[{sW}:{sW+3}], s{sO2} offen offset:{1024*n}{nt(2)} lds"])
    L.append(["s_add_u32 m0, m0, 4096"])
    L.append([f"buffer_load_dwordx4 v{vWO_+4}, s[{sW}:{sW+3}], s{sO2} offen{nt(2)} lds"])
    return L
def qkv_adv():
    return [f"s_add_u32 s{sO1}, s{sO1}, 128", f"s_add_u32 s{sO2}, s{sO2}, {64*3840}", f"s_cmp_eq_u32 s{sO2}, {640*3840}",
            "s_cselect_b32 s85, 1280, 0", f"s_cselect_b32 s{sO2}, 0, s{sO2}", f"s_sub_u32 s{sO1}, s{sO1}, s85",
            f"s_add_u32 s{sWR}, s{sWR}, {STG}", f"s_cmp_eq_u32 s{sWR}, {4*STG}", f"s_cselect_b32 s{sWR}, 0, s{sWR}"]
def emit_dma_block(A, groups):
    for g in groups:
        for x in g: A(x)
        if "m0" in g[0].split(",")[0]: A("s_nop 0")

NW = 5
vXB, vCUR = 26, 6
vXB = 208
vCUR = 215
def qkv_reads(kk, fs):
    def wr(t):
        return [f"ds_read_b64_tr_b16 {ar(fs+16+4*t+2*j,2)}, v{vCUR+2+t} offset:{kk*10240 + j*1280}" for j in range(2)]
    L = wr(0)
    for st in range(4):
        L.append(f"ds_read_b128 {ar(fs+4*st,4)}, v{vCUR+kk} offset:{st*2048}")
    for t in range(1, 5): L += wr(t)
    return L
def qkv_mfmas(fs, isq):
    L = []
    for t in range(5):
        for st in range(4):
            x = ar(fs + 4*st, 4); w = ar(fs + 16 + 4*t, 4); c = vr(ACC + (st*5+t)*4, 4)
            L.append(f"v_mfma_f32_16x16x32_bf16 {c}, {w}, {x}, {c}" if isq else f"v_mfma_f32_16x16x32_bf16 {c}, {x}, {w}, {c}")
    return L

def qkv_gemm(A, pfx, isq, mid_setup, extras, pres, blk):
    emit_dma_block(A, qkv_dma())
    for x in qkv_adv(): A(x)
    stamp(A, pfx + "_iss0")
    mid_setup(A)
    A("v_and_b32 v2, 15, v1")
    A("v_lshrrev_b32 v3, 4, v1")
    A("v_lshrrev_b32 v4, 1, v2")
    A("v_xor_b32 v4, v4, v3")
    A("v_lshlrev_b32 v4, 4, v4")
    A("v_lshl_add_u32 v4, v2, 7, v4")
    A(f"s_lshl_b32 s85, s{sWR_}, 13")
    A(f"v_add_u32 v{vXB}, s85, v4")
    A(f"v_xor_b32 v{vXB+1}, 64, v{vXB}")
    A("v_lshrrev_b32 v4, 2, v2")
    A("v_lshl_add_u32 v4, v3, 3, v4")
    A("v_mul_u32_u24 v4, 320, v4")
    A("v_and_b32 v5, 1, v1")
    A("v_lshl_add_u32 v4, v5, 3, v4")
    A("v_add_u32 v4, 16384, v4")
    A("v_bfe_u32 v5, v1, 1, 1")
    A("v_and_b32 v6, 1, v3")
    A("v_lshlrev_b32 v6, 1, v6")
    A(f"s_mul_i32 s85, s{sWC_}, {10 if isq else 5}")
    for t in range(5):
        if isq: c0, step = [(0, 1), (2, 1), (4, 5), (5, 1), (7, 1)][t]
        else: c0, step = [(0, 1), (2, 1), (4, 6), (11, 1), (13, 1)][t]
        A(f"s_add_u32 s86, s85, {c0}")
        if step == 1: A("v_add_u32 v7, s86, v5")
        else: A(f"v_mad_u32_u24 v7, v5, {step}, s86")
        A("v_xor_b32 v7, v7, v6")
        A(f"v_lshl_add_u32 v{vXB+2+t}, v7, 4, v4")
    zero_acc(A)
    A(f"s_mov_b32 s{sRD}, {2*STG}")
    A(f"s_mov_b32 s{sCNT}, 0")
    upd = [f"v_add_u32 v{vCUR+i}, s{sRD}, v{vXB+i}" for i in range(7)]
    rdadv = [f"s_add_u32 s{sRD}, s{sRD}, {STG}", f"s_cmp_eq_u32 s{sRD}, {4*STG}", f"s_cselect_b32 s{sRD}, 0, s{sRD}"]
    def spread(rd, dma_slots, groups, scal):
        fill = [[] for _ in range(20)]
        k = 0
        for gi in range(9):
            for _ in range(2 if gi < 5 else 1):
                fill[gi].append(rd[k]); k += 1
        g = list(groups)
        for sl in dma_slots:
            if not g: break
            if "m0" in g[0][0].split(",")[0]:
                fill[sl-1] += g.pop(0)
            fill[sl] += g.pop(0)
        return fill, g
    def put_scal(fill, scal, start):
        sc = list(scal); gi = start
        while sc:
            room = 2 - len(fill[gi]) if gi < 19 else len(sc)
            for _ in range(max(room, 0)):
                if sc: fill[gi].append(sc.pop(0))
            gi += 1
    def top_half(wait, groups, pre=None, slots=(3, 7, 11, 15, 19)):
        A(f"s_waitcnt vmcnt({wait}) lgkmcnt(0)")
        if pre: pre(A)
        A("s_barrier")
        fill, rest = spread(qkv_reads(0, FA_), slots, groups, [])
        weave(A, qkv_mfmas(FB_, isq), fill)
        return rest
    def bot_half(adv, tail, groups=[], slots=(2, 6, 10, 13)):
        A("s_waitcnt lgkmcnt(0)")
        fill, rest = spread(qkv_reads(1, FB_), slots, groups, [])
        assert not rest
        put_scal(fill, rdadv + upd, 9)
        put_scal(fill, (qkv_adv() if adv else []) + tail, 14)
        weave(A, qkv_mfmas(FA_, isq), fill)
    for x in upd: A(x)
    stamp(A, pfx + "_setup")
    emit_dma_block(A, qkv_dma())
    for x in qkv_adv(): A(x)
    stamp(A, pfx + "_issued")
    A("s_waitcnt vmcnt(9)")
    A("s_barrier")
    stamp(A, pfx + "_first")
    for x in qkv_reads(0, FA_): A(x)
    emit_dma_block(A, qkv_dma()[:7])
    A(f"s_branch {pfx}_mid")
    A(".p2align 3")
    A.label(f"{pfx}_loop")
    if blk:
        A(f"s_cmp_eq_u32 s{sCNT}, {blk[0]}")
        A(f"s_cbranch_scc0 {pfx}_noblk")
        blk[1](A)
        A.label(f"{pfx}_noblk")
    rest = top_half(9, qkv_dma())
    assert len(rest) == 5
    A.label(f"{pfx}_mid")
    bot_half(True, [f"s_add_u32 s{sCNT}, s{sCNT}, 1", f"s_cmp_lt_u32 s{sCNT}, 8"], rest)
    A(f"s_cbranch_scc1 {pfx}_loop")
    for it in (8, 9):
        g, w = extras.get(it, ([], 9 if it == 8 else 0))
        sl = (1, 3, 5, 8, 10, 12, 14, 16, 18) if len(g) > 14 else (2, 5, 8, 11, 14, 17)
        rest = top_half(w, g, pres.get(it), sl)
        bot_half(False, [], rest, sl)
    stamp(A, pfx + "_loop9")
    A("s_waitcnt lgkmcnt(0)")
    if isq:
        for m in qkv_mfmas(FB_, isq): A(m)
        A("s_nop 7")
        stamp(A, pfx + "_loopdone")

PAIRS = [(2,0),(3,0),(2,1),(3,1),(4,1),(3,2),(4,2)]
def kv_mask(i):
    te, tc = PAIRS[i]; m = 0
    for l in range(64):
        c = 16*tc + l % 16; e = [-8, 8, 24][te-2] + 4*(l//16)
        if c < 40 and e >= 0 and c//20 == e//20: m |= 1 << l
    return m

KVB = [sum(bin(kv_mask(j)).count("1") for j in range(i)) for i in range(8)]
def kv_rank(A, dst, i, shift, add=0):
    m = kv_mask(i)
    A(f"s_mov_b32 s85, {m & 0xffffffff:#x}")
    A(f"s_mov_b32 s86, {m >> 32:#x}")
    A(f"v_mbcnt_lo_u32_b32 v{dst}, s85, {KVB[i]}" if KVB[i] <= 64 else f"v_mov_b32 v{dst}, {KVB[i]}\nv_mbcnt_lo_u32_b32 v{dst}, s85, v{dst}")
    A(f"v_mbcnt_hi_u32_b32 v{dst}, s86, v{dst}")
    A(f"v_lshlrev_b32 v{dst}, {shift}, v{dst}")
    if add: A(f"v_add_u32 v{dst}, {add}, v{dst}")
vKR = 246
def phi4(A, b, T, dst=None):
    dst = b if dst is None else dst
    A(f"v_pk_mul_f32 {vr(T,2)}, {vr(b,2)}, s[{sL2}:{sL2+1}]")
    A(f"v_pk_mul_f32 {vr(T+2,2)}, {vr(b+2,2)}, s[{sL2}:{sL2+1}]")
    for i in range(4): A(f"v_exp_f32 v{T+i}, v{T+i} clamp")
    for i in range(4): A(f"v_max_f32 v{dst+i}, {EPS6:#x}, v{b+i}")
    A(f"v_pk_add_f32 {vr(dst,2)}, {vr(dst,2)}, {vr(T,2)}")
    A(f"v_pk_add_f32 {vr(dst+2,2)}, {vr(dst+2,2)}, {vr(T+2,2)}")
sL2 = 88
vEW, vEZ, vER, sKVS = 250, 251, 252, 26
def kv_esetup(A):
    A(f"s_lshl_b32 s85, s{sBp}, 1")
    A(f"s_add_u32 s85, s85, s{sWC_}")
    A("s_lshl_b32 s86, s85, 4")
    A(f"s_add_u32 s86, s86, s{sA}")
    A("s_lshl_b32 s87, s86, 8")
    A(f"s_mul_i32 s{sKVS}, s86, 3200")
    A(f"s_sub_u32 s87, s87, s{sKVS}")
    A(f"s_add_u32 s87, s87, {WS_ZP - WS_KVP:#x}")
    A("s_lshr_b32 s87, s87, 4")
    A(f"s_add_u32 s{sKVS}, s{sKVS}, {WS_KVP:#x}")
    A("v_mov_b32 v2, 0x7ff00000")
    for k in range(4):
        mA = kv_mask(k); mB = kv_mask(4+k) if k < 3 else 0xffff
        A(f"s_cmp_eq_u32 s{sWR_}, 0")
        A(f"s_mov_b32 s92, {mB & 0xffffffff:#x}")
        A(f"s_cselect_b32 s92, {mA & 0xffffffff:#x}, s92")
        A(f"s_mov_b32 s93, {mB >> 32:#x}")
        A(f"s_cselect_b32 s93, {mA >> 32:#x}, s93")
        if k < 3: A(f"s_mov_b32 s88, {KVB[4+k]}")
        A(f"s_cselect_b32 s88, {KVB[k]}, s{88 if k < 3 else 87}")
        A(f"v_mov_b32 v{vKR+k}, s88")
        A(f"v_mbcnt_lo_u32_b32 v{vKR+k}, s92, v{vKR+k}")
        A(f"v_mbcnt_hi_u32_b32 v{vKR+k}, s93, v{vKR+k}")
        A(f"v_lshlrev_b32 v{vKR+k}, 4, v{vKR+k}")
        A(f"v_cndmask_b32 v{vKR+k}, v2, v{vKR+k}, s[92:93]")
    A(f"s_mul_i32 s85, s{sWAVE}, 8448")
    A(f"s_add_u32 s85, s85, {LDS_RED}")
    A(f"v_add_u32 v{vEW}, s85, v{vB0}")
    A(f"v_lshl_add_u32 v{vEZ}, v1, 2, s85")
    A(f"s_mul_i32 s85, s{sWC_}, 8448")
    A(f"s_lshl_b32 s86, s{sWR_}, 12")
    A("s_add_u32 s85, s85, s86")
    A(f"s_add_u32 s85, s85, {LDS_RED}")
    A(f"v_add_u32 v{vER}, s85, v{vB0}")
    A("v_and_b32 v2, 15, v1")
    A(f"v_cmp_gt_u32 s[{sMK}:{sMK+1}], 8, v2")
    A("v_cmp_lt_u32 s[64:65], 15, v1")
    A("v_cmp_lt_u32 s[66:67], 31, v1")
def kv_estream():
    PB, KA, ONE, TMP = 128, 168, 208, 212
    E = [Asm(), Asm(), Asm(), Asm()]
    A = E[0]
    A(f"s_mov_b32 s{sL2}, {LOG2E:#x}")
    A(f"s_mov_b32 s{sL2+1}, {LOG2E:#x}")
    for i in range(4): A(f"v_mov_b32 v{ONE+i}, 0x3f803f80")
    for st in range(4):
        A = E[st // 2]
        for t in range(3):
            b = ACC + (st*5+t)*4
            if t < 2: phi4(A, b, TMP)
            else:
                phi4(A, b, TMP, TMP+4)
                for i in range(4): A(f"v_cndmask_b32 v{b+i}, v{b+i}, v{TMP+4+i}, s[{sMK}:{sMK+1}]")
        for t in range(5):
            b = ACC + (st*5+t)*4
            d = PB + (t*2 + st//2)*4 + (st & 1)*2
            A(f"v_cvt_pk_bf16_f32 v{d}, v{b}, v{b+1}")
            A(f"v_cvt_pk_bf16_f32 v{d+1}, v{b+2}, v{b+3}")
        if st & 1:
            sp = st // 2
            A("s_nop 1")
            for tc in range(3):
                c = vr(KA+4*(7+tc), 4)
                A(f"v_mfma_f32_16x16x32_bf16 {c}, {vr(ONE,4)}, {vr(PB+(tc*2+sp)*4,4)}, {c if sp else 0}")
            for i, (te, tc) in enumerate(PAIRS):
                c = vr(KA+4*i, 4)
                A(f"v_mfma_f32_16x16x32_bf16 {c}, {vr(PB+(te*2+sp)*4,4)}, {vr(PB+(tc*2+sp)*4,4)}, {c if sp else 0}")
    A = E[1]
    A("s_nop 0")
    A(f"v_cndmask_b32 v{KA+28}, v{KA+28}, v{KA+32}, s[64:65]")
    A(f"v_cndmask_b32 v{KA+28}, v{KA+28}, v{KA+36}, s[66:67]")
    A(f"ds_write_b32 v{vEZ}, v{KA+28} offset:7168")
    for i in range(7): A(f"ds_write_b128 v{vEW}, {vr(KA+4*i,4)} offset:{1024*i}")
    A = E[2]
    for k in range(4):
        A(f"ds_read_b128 {vr(PB+8*k,4)}, v{vER} offset:{1024*k}")
        A(f"ds_read_b128 {vr(PB+8*k+4,4)}, v{vER} offset:{1024*k + 16896}")
    A = E[3]
    A("s_waitcnt lgkmcnt(0)")
    for k in range(4):
        for i in (0, 2): A(f"v_pk_add_f32 {vr(PB+8*k+i,2)}, {vr(PB+8*k+i,2)}, {vr(PB+8*k+4+i,2)}")
    for k in range(4):
        A(f"buffer_store_dwordx4 {vr(PB+8*k,4)}, v{vKR+k}, s[{sWS}:{sWS+3}], s{sKVS} offen sc1")
    return [e.lines for e in E]

def w1_setup(A, locbase, vreg):
    A(f"s_sub_u32 s88, s82, {locbase}")
    A("s_lshl_b32 s88, s88, 2")
    A(f"s_add_u32 s88, s88, s{sWAVE}")
    A(f"v_and_b32 v{vreg}, 31, v1")
    A(f"v_mul_u32_u24 v{vreg}, 3072, v{vreg}")
    A("v_lshrrev_b32 v3, 5, v1")
    A(f"v_lshl_add_u32 v{vreg}, v3, 9, v{vreg}")
    A(f"s_mul_i32 s85, s88, {32*3072}")
    A("s_lshl_b32 s86, s83, 7")
    A("s_add_u32 s85, s85, s86")
    A(f"s_mul_i32 s86, s84, {1024*3072}")
    A("s_add_u32 s26, s86, s85")
    A("s_xor_b32 s87, s84, 1")
    A(f"s_mul_i32 s87, s87, {1024*3072}")
    A("s_add_u32 s27, s87, s85")

def w2_prefetch(A, locbase, parts):
    A(f"s_sub_u32 s85, s82, {locbase}")
    A("s_lshl_b32 s85, s85, 2")
    A(f"s_add_u32 s85, s85, s{sWAVE}")
    if OPT["fmap"]:
        A("v_lshrrev_b32 v2, 2, v1")
        A("v_lshlrev_b32 v2, 12, v2")
        A("v_and_b32 v3, 3, v1")
        A("v_lshl_add_u32 v2, v3, 10, v2")
        A(f"s_mul_i32 s85, s85, {48*4096}")
        A("s_lshl_b32 s86, s81, 7")
        A("s_add_u32 s85, s85, s86")
        if parts[0]: A(f"s_add_u32 s85, s85, {16*4096*parts[0]}")
        for i in parts:
            A(f"buffer_load_dword a255, v2, s[{sW2}:{sW2+3}], s85 offen")
            if i != parts[-1]: A(f"s_add_u32 s85, s85, {16*4096}")
        return
    if OPT["w2c"]:
        A("s_lshl_b32 s86, s81, 5")
        A("s_add_u32 s85, s85, s86")
        A("s_lshl_b32 s85, s85, 13")
        if parts[0]: A(f"s_add_u32 s85, s85, {(8192*256)*parts[0]}")
        for i in parts:
            A(f"buffer_load_dword a255, v15, s[{sW2}:{sW2+3}], s85 offen")
            if i != parts[-1]: A(f"s_add_u32 s85, s85, {8192*256}")
        return
    A("v_lshrrev_b32 v2, 3, v1")
    A("v_lshlrev_b32 v2, 12, v2")
    A("v_and_b32 v3, 7, v1")
    A("v_lshl_add_u32 v2, v3, 7, v2")
    A("s_mul_i32 s85, s85, 24")
    A("s_mul_i32 s86, s84, 768")
    A("s_add_u32 s85, s85, s86")
    A(f"s_add_u32 s85, s85, {8*parts[0]}")
    A("s_lshl_b32 s85, s85, 12")
    A("s_lshl_b32 s86, s83, 10")
    A("s_add_u32 s85, s85, s86")
    for i in parts:
        A(f"buffer_load_dword a255, v2, s[{sW2}:{sW2+3}], s85 offen")
        if i != parts[-1]: A(f"s_add_u32 s85, s85, {8*4096}")

QCB = [0, 16, 32, 40, 56]
QDP = [(0,0),(0,1),(1,0),(1,1),(1,2),(2,1),(2,2),(2,4),(3,3),(3,4),(4,2),(4,3),(4,4)]
sMA, sZO, sKO, sPQ, sWOo, sGo = 56, 58, 59, 64, 67, 23
vWOd, vWOt, vZA, vKP, vGo, vT1 = 248, 246, 252, 245, 25, 244
MSK = 194
def q_setup(A):
    T = 128
    A(f"s_mul_i32 s{sWOo}, s{sU}, {40*1280}")
    A(f"s_mul_i32 s86, s{sNR}, 320")
    A(f"s_add_u32 s{sWOo}, s{sWOo}, s86")
    A(f"s_lshl_b32 s86, s{sWAVE}, 8")
    for n in range(4):
        A(f"v_add_u32 v2, {64*n}, v1")
        A("v_add_u32 v2, s86, v2")
        A("v_mul_u32_u24 v3, 3277, v2")
        A("v_lshrrev_b32 v3, 16, v3")
        A("v_mul_u32_u24 v4, 20, v3")
        A("v_sub_u32 v4, v2, v4")
        A("v_mul_u32_u24 v3, 1280, v3")
        A(f"v_lshl_add_u32 v{vWOd+n}, v4, 4, v3")
        if n: A(f"v_subrev_u32 v{vWOd+n}, {1024*n}, v{vWOd+n}")
    A("v_and_b32 v3, 15, v1")
    A("v_lshrrev_b32 v4, 4, v1")
    A(f"v_lshlrev_b32 v{vGo}, 2, v3")
    A(f"s_lshl_b32 s86, s{sA}, 9")
    A(f"s_lshl_b32 s87, s{sWR_}, 8")
    A("s_add_u32 s86, s86, s87")
    A(f"s_add_u32 s{sGo}, s86, {WS_G:#x}")
    A("v_bfe_u32 v5, v1, 1, 2")
    A(f"s_lshl_b32 s85, s{sWAVE}, 2")
    A("v_add_lshl_u32 v5, v5, s85, 3")
    A("v_and_b32 v6, 1, v1")
    A(f"s_lshl_b32 s85, s{sBp}, 1")
    A("v_add3_u32 v5, v5, v6, s85")
    A(f"v_lshlrev_b32 v{vKP}, 7, v5")
    A("v_lshrrev_b32 v5, 2, v3")
    A("v_lshl_add_u32 v5, v4, 2, v5")
    A("v_and_b32 v6, 7, v5")
    A("v_mul_u32_u24 v6, 320, v6")
    A("v_mul_u32_u24 v5, 320, v5")
    A("v_and_b32 v7, 3, v1")
    A("v_lshlrev_b32 v7, 3, v7")
    A(f"s_lshl_b32 s86, s{sWAVE}, 5")
    A("v_add_u32 v7, s86, v7")
    A(f"v_add_u32 v{vWOt}, v6, v7")
    A(f"v_add_u32 v{vWOt+1}, v5, v7")
    A(f"s_lshr_b32 s86, s{sU}, 2")
    A("s_mul_i32 s86, s86, 5")
    A(f"s_bfe_u32 s87, s{sU}, 0x10001")
    A(f"s_and_b32 s88, s{sU}, 1")
    A("s_mul_i32 s89, s87, 3")
    A("s_add_u32 s89, s89, s88")
    A("s_add_u32 s89, s89, s86")
    A(f"s_mul_i32 s{sMA}, s89, 40960")
    A("s_add_u32 s86, s86, 2")
    A(f"s_mul_i32 s{sMA+1}, s86, 40960")
    A("s_lshl_b32 s87, s87, 3")
    A("s_lshl_b32 s88, s88, 9")
    A(f"s_add_u32 s{sMA+1}, s{sMA+1}, s87")
    A(f"s_add_u32 s{sMA+1}, s{sMA+1}, s88")
    A(f"s_mul_i32 s86, s{sNR}, 10240")
    A(f"s_lshl_b32 s87, s{sWAVE}, 10")
    A("s_add_u32 s86, s86, s87")
    A(f"s_add_u32 s86, s86, {WS_M:#x}")
    A(f"s_add_u32 s{sMA}, s{sMA}, s86")
    A(f"s_add_u32 s{sMA+1}, s{sMA+1}, s86")
    A(f"s_lshl_b32 s85, s{sA}, 1")
    A(f"s_add_u32 s85, s85, s{sWR_}")
    A("s_mul_i32 s85, s85, 20")
    A(f"s_mul_i32 s86, s{sBp}, 5")
    A("s_add_u32 s85, s85, s86")
    A("s_lshl_b32 s85, s85, 12")
    A(f"s_add_u32 s85, s85, {WS_PQ:#x}")
    A(f"s_mul_i32 s86, s{sWC_}, {3*4096}")
    A(f"s_add_u32 s{sPQ}, s86, s85")
    A(f"s_add_u32 s{sPQ+1}, s{sPQ}, 4096")
    A(f"s_lshl_b32 s88, s{sWC_}, 3")
    A("s_add_u32 s88, s88, s85")
    A(f"s_add_u32 s{sPQ+2}, s88, 8192")
    A(f"v_add_u32 v5, s{sWAVE}, v1")
    A(f"s_mul_i32 s85, s{sWAVE}, 9")
    A("v_add_u32 v5, s85, v5")
    A("v_lshrrev_b32 v6, 2, v5")
    A("v_and_b32 v5, 3, v5")
    A("v_lshlrev_b32 v5, 7, v5")
    A("v_lshl_add_u32 v5, v6, 10, v5")
    A(f"s_sub_u32 s85, s{sMA+1}, s87")
    A("s_and_b32 s85, s85, 0xffffff80")
    A("v_add_u32 v5, s85, v5")
    A(f"s_and_b32 s85, s{sPQ+2}, 0xffffff80")
    A(f"s_lshl_b32 s86, s{sWC_}, 11")
    A("s_add_u32 s85, s85, s86")
    A("v_lshlrev_b32 v6, 7, v3")
    A("v_add_u32 v6, s85, v6")
    A("v_cmp_gt_u32 vcc, 10, v1")
    A("s_nop 1")
    A(f"v_cndmask_b32 v{vT1}, v6, v5, vcc")
    A(f"v_mov_b32 v{T}, {LDS_RED + 1600}")
    for i in range(7):
        kv_rank(A, 26+i, i, 3, LDS_RED)
        A(f"s_mov_b32 s92, s85")
        A(f"s_mov_b32 s93, s86")
        A(f"v_cndmask_b32 v{26+i}, v{T}, v{26+i}, s[92:93]")
    cb = QCB
    for t in range(5):
        A(f"v_lshl_add_u32 v{T+t}, v4, 2, {cb[t]}")
        A(f"v_add_u32 v{T+5+t}, {cb[t]}, v3")
        if t == 2:
            A("v_lshrrev_b32 v5, 1, v4")
            A(f"v_lshl_add_u32 v{T+t}, v5, 5, v{T+t}")
            A("v_mul_u32_u24 v7, 4064, v5")
            A("v_lshrrev_b32 v5, 3, v3")
            A(f"v_lshl_add_u32 v{T+5+t}, v5, 5, v{T+5+t}")
        A(f"v_mul_u32_u24 v{T+t}, 205, v{T+t}")
        A(f"v_lshrrev_b32 v{T+t}, 12, v{T+t}")
        A(f"v_mul_u32_u24 v{T+5+t}, 205, v{T+5+t}")
        A(f"v_lshrrev_b32 v{T+5+t}, 12, v{T+5+t}")
    for k, (tp, t) in enumerate(QDP):
        A(f"v_cmp_eq_u32 vcc, v{T+t}, v{T+5+tp}")
        A("s_nop 1")
        A(f"v_cndmask_b32 v{MSK+k}, 0, -1, vcc")
    A("v_lshlrev_b32 v5, 8, v3")
    A(f"v_lshl_add_u32 v{vZA}, v4, 4, v5")
    A(f"v_add_u32 v{vZA+2}, v7, v{vZA}")
    A(f"v_add_u32 v{vZA+1}, 4096, v{vZA}")
    A(f"s_lshl_b32 s86, s{sBp}, 14")
    A(f"s_lshl_b32 s87, s{sWC_}, 13")
    A("s_add_u32 s86, s86, s87")
    A(f"s_add_u32 s{sZO}, s86, {WS_ZP:#x}")
    A(f"s_mul_i32 s89, s{sU}, {16*3200}")
    A(f"s_mul_i32 s87, s{sWAVE}, 800")
    A("s_add_u32 s87, s87, s89")
    A(f"s_add_u32 s{sKO}, s87, {WS_KVP:#x}")
    if OPT["qw2"]:
        A("s_sub_u32 s85, s82, 16")
        A("s_lshl_b32 s85, s85, 2")
        A(f"s_add_u32 s85, s85, s{sWAVE}")
        A("s_lshl_b32 s86, s81, 5")
        A("s_add_u32 s85, s85, s86")
        A("s_lshl_b32 s85, s85, 13")
        A(f"s_add_u32 s99, s85, {8192*256*(3 - OPT['qw2'])}")
def q_loop_pf(A):
    for k in range(3 - OPT["qw1n"], 3):
        A(f"buffer_load_dword a255, v12, s[{sW1}:{sW1+3}], s26 offen offset:{1024*k}")
    if OPT["qw1b"]:
        for k in range(3): A(f"buffer_load_dword a255, v12, s[{sW1}:{sW1+3}], s27 offen offset:{1024*k}")
    for k in range(OPT["qw2"]):
        A(f"buffer_load_dword a255, v15, s[{sW2}:{sW2+3}], s99 offen")
        A(f"s_add_u32 s99, s99, {8192*256}")
    if OPT["touch"]:
        A("s_mov_b32 exec_lo, 0xffff03ff")
        A("s_mov_b32 exec_hi, 0")
        A(f"buffer_load_dword a255, v{vT1}, s[{sWS}:{sWS+3}], 0 offen sc1")
        A("s_mov_b64 exec, -1")
def q_extras():
    g8 = [[poll_ld(vPO, 24)], [f"s_lshl_b32 m0, s{sWAVE}, 12"]] + [[f"buffer_load_dwordx4 v{vWOd+n}, s[{sWO}:{sWO+3}], s{sWOo} offen offset:{1024*n} lds"] for n in range(4)]
    g9 = [[f"buffer_load_dword v{8+st}, v{vGo}, s[{sWS}:{sWS+3}], s{sGo} offen offset:{64*st} sc1"] for st in range(4)]
    return {8: (g8, 9), 9: (g9, 0)}

def q_epilogue(A):
    PK, Z, AF, ZP, G = 128, 168, 168, 16, 8
    KA_, DEN, OUT, TMP = 48, 204+0, 224, 112
    WBa, KVa = 0, 20
    cb, dp = QCB, QDP
    A(f"s_mov_b32 s24, {FL_KV:#x}")
    for i in range(3):
        A(f"ds_read_b64_tr_b16 {ar(WBa+6*i,2)}, v{vWOt} offset:{128*i}")
        A(f"ds_read_b64_tr_b16 {ar(WBa+6*i+2,2)}, v{vWOt+1} offset:{128*i + 8*320}")
        A(f"ds_read_b64_tr_b16 {ar(WBa+6*i+4,2)}, v{vWOt+1} offset:{128*i + 24*320}")
    A(f"v_mov_b32 v2, {LDS_RED + 1600}")
    A("v_mov_b64 v[4:5], 0")
    A("ds_write_b64 v2, v[4:5]")
    A(f"s_mov_b32 s{sL2}, {LOG2E:#x}")
    A(f"s_mov_b32 s{sL2+1}, {LOG2E:#x}")
    for k, b in enumerate(range(ACC, ACC+80, 4)):
        if k == 12: A(poll_ld(vKP, 24))
        phi4(A, b, 208)
        A(f"v_cvt_pk_bf16_f32 v{PK+2*k}, v{b}, v{b+1}")
        A(f"v_cvt_pk_bf16_f32 v{PK+2*k+1}, v{b+2}, v{b+3}")
    stamp(A, "q_pre")
    A("s_waitcnt vmcnt(0) lgkmcnt(0)")
    poll_check(A, "pkv", vKP, 24)
    A("s_barrier")
    stamp(A, "q_kvok")
    for t in range(5):
        A(f"buffer_load_dwordx4 {vr(Z+4*t,4)}, v{vZA+[0,0,2,1,1][t]}, s[{sWS}:{sWS+3}], s{sZO} offen offset:{[0,64,128,0,64][t]} sc1")
    kvl = []
    for rb in range(0, 16, 2):
        kvl.append(["s_mov_b32 exec_hi, 0x3ffff",
                    f"buffer_load_dwordx4 {vr(KA_+4*rb,4)}, v{vB0}, s[{sWS}:{sWS+3}], s{sKO} offen sc1",
                    f"buffer_load_dwordx4 {vr(KA_+4*rb+4,4)}, v{vB0}, s[{sWS}:{sWS+3}], s{sKO} offen offset:3200 sc1",
                    "s_mov_b32 exec_hi, -1", f"s_add_u32 s{sKO}, s{sKO}, 6400"])
    def kv(n):
        for _ in range(n):
            if kvl:
                for x in kvl.pop(0): A(x)
    kv(2)
    A("s_waitcnt vmcnt(4)")
    stamp(A, "q_z")
    for rot in (8, 4, 2, 1):
        kv(1)
        for i in range(20):
            A(f"v_add_f32_dpp v{Z+i}, v{Z+i}, v{Z+i} row_ror:{rot} row_mask:0xf bank_mask:0xf")
    for i in range(10): A(f"v_cvt_pk_bf16_f32 v{ZP+i}, v{Z+2*i}, v{Z+2*i+1}")
    kv(2)
    for k, (tp, t) in enumerate(dp):
        A(f"v_and_b32 v{AF+2*k}, v{MSK+k}, v{ZP+2*t}")
        A(f"v_and_b32 v{AF+2*k+1}, v{MSK+k}, v{ZP+2*t+1}")
    A("s_nop 0")
    DEN2 = 224
    def den(st, Dn):
        seen = set()
        for k, (tp, t) in enumerate(dp):
            c = vr(Dn + 4*tp, 4)
            A(f"v_mfma_f32_16x16x16_bf16 {c}, {vr(AF+2*k,2)}, {vr(PK+(st*5+t)*2,2)}, {c if tp in seen else 0}")
            seen.add(tp)
    den(0, DEN)
    for st in range(4):
        Dn = DEN if (st & 1) == 0 else DEN2
        o = OUT
        U = TMP + 10
        if st < 3: den(st + 1, DEN2 if (st & 1) == 0 else DEN)
        else: A("s_nop 7")
        kv(OPT["kvr"])
        for tp in range(5): A(f"v_add_f32 v{TMP+2*tp}, {EPS6:#x}, v{Dn+4*tp}")
        for tp in range(5): A(f"v_rcp_f32 v{TMP+2*tp}, v{TMP+2*tp}")
        A("s_nop 0")
        for tp in range(5): A(f"v_mul_f32 v{TMP+2*tp}, v{TMP+2*tp}, v{G+st}")
        for tp in range(5):
            p = PK + (st*5+tp)*2
            if tp == 2: kv(OPT["kvr"])
            A(f"v_lshlrev_b32 v{U}, 16, v{p}")
            A(f"v_and_b32 v{U+1}, 0xffff0000, v{p}")
            A(f"v_lshlrev_b32 v{U+2}, 16, v{p+1}")
            A(f"v_and_b32 v{U+3}, 0xffff0000, v{p+1}")
            A(f"v_pk_mul_f32 {vr(U,2)}, {vr(U,2)}, {vr(TMP+2*tp,2)} op_sel_hi:[1,0]")
            A(f"v_pk_mul_f32 {vr(U+2,2)}, {vr(U+2,2)}, {vr(TMP+2*tp,2)} op_sel_hi:[1,0]")
            A(f"v_cvt_pk_bf16_f32 v{p}, v{U}, v{U+1}")
            A(f"v_cvt_pk_bf16_f32 v{p+1}, v{U+2}, v{U+3}")
        p = PK + st*10
        A(f"buffer_store_dwordx4 {vr(p,4)}, v{vB0}, s[{sWS}:{sWS+3}], s{sPQ} offen offset:{1024*st} sc1")
        A(f"buffer_store_dwordx4 {vr(p+6,4)}, v{vB0}, s[{sWS}:{sWS+3}], s{sPQ+1} offen offset:{1024*st} sc1")
        A(f"buffer_store_dwordx2 {vr(p+4,2)}, v{vB0}, s[{sWS}:{sWS+3}], s{sPQ+2} offen offset:{1024*st} sc1")
    assert not kvl
    stamp(A, "q_pq")
    A("s_waitcnt vmcnt(12)")
    stamp(A, "q_kv")
    for w in (32, 16, 8, 4):
        for i in range(0, w, 2):
            A(f"v_pk_add_f32 {vr(KA_+i,2)}, {vr(KA_+i,2)}, {vr(KA_+w+i,2)}")
    A(f"s_mul_i32 s86, s{sWAVE}, 400")
    A(f"s_add_u32 s86, s86, {LDS_RED}")
    A("v_lshlrev_b32 v7, 3, v1")
    A("v_add_u32 v7, s86, v7")
    A(f"v_cvt_pk_bf16_f32 v{KA_}, v{KA_}, v{KA_+1}")
    A(f"v_cvt_pk_bf16_f32 v{KA_+1}, v{KA_+2}, v{KA_+3}")
    A("s_mov_b32 exec_hi, 0x3ffff")
    A(f"ds_write_b64 v7, {vr(KA_,2)}")
    A("s_mov_b32 exec_hi, -1")
    A("s_waitcnt lgkmcnt(0)")
    A("s_barrier")
    stamp(A, "q_bar")
    for i in range(7): A(f"ds_read_b64 {ar(KVa+2*i,2)}, v{26+i}")
    A("s_waitcnt lgkmcnt(0)")
    MD = 64
    for i in range(3):
        seen = set()
        for k, (te, tc) in enumerate(PAIRS):
            c = vr(MD + (i*3+tc)*4, 4)
            A(f"v_mfma_f32_16x16x16_bf16 {c}, {ar(KVa+2*k,2)}, {ar(WBa+6*i+2*(te-2),2)}, {c if tc in seen else 0}")
            seen.add(tc)
    for i in range(3):
        if i == 2:
            A(f"s_cmp_ge_u32 s{sWAVE}, 2")
            A("s_cbranch_scc1 q_m_done")
            A("s_nop 2")
        b = MD + i*12
        for k in range(6): A(f"v_cvt_pk_bf16_f32 v{b+k}, v{b+2*k}, v{b+2*k+1}")
        A(f"buffer_store_dwordx4 {vr(b,4)}, v{vB0}, s[{sWS}:{sWS+3}], s{sMA} offen sc1")
        A("s_mov_b32 exec_hi, 0")
        A(f"buffer_store_dwordx2 {vr(b+4,2)}, v{vB0}, s[{sWS}:{sWS+3}], s{sMA+1} offen sc1")
        A("s_mov_b32 exec_hi, -1")
        A(f"s_add_u32 s{sMA}, s{sMA}, 4096")
        A(f"s_add_u32 s{sMA+1}, s{sMA+1}, 4096")
    A.label("q_m_done")
    stamp(A, "q_mdone")

def ln_role(A, after_loads, ne):
    X, GW, D = 48, 88, 128
    A("v_lshrrev_b32 v2, 3, v1")
    A(f"s_lshl_b32 s85, s{sWAVE}, 3")
    A("v_add_u32 v2, s85, v2")
    A("v_and_b32 v3, 7, v1")
    A("v_lshlrev_b32 v3, 4, v3")
    A("v_mul_u32_u24 v4, 1280, v2")
    A("v_add_u32 v4, v4, v3")
    A(f"s_mul_i32 s85, s{sA}, {32*1280}")
    A("s_waitcnt lgkmcnt(0)"); srds(A, ["X", "GW"])
    for i in range(10):
        A(f"buffer_load_dwordx4 {vr(X+4*i,4)}, v4, s[{sX}:{sX+3}], s85 offen offset:{128*i}")
    for i in range(10):
        A(f"buffer_load_dwordx4 {vr(GW+4*i,4)}, v3, s[{sGW}:{sGW+3}], 0 offen offset:{128*i}")
    A("v_mul_u32_u24 v16, 1312, v2")
    A("v_add_u32 v16, v16, v3")
    A("v_lshlrev_b32 v17, 2, v2")
    after_loads(A)
    A("v_mov_b32 v5, 0x3f803f80")
    for i in range(4): A(f"v_mov_b32 v{8+i}, 0")
    A(f"s_waitcnt vmcnt({10+ne})")
    stamp(A, "ln_first")
    for i in range(40):
        A(f"v_dot2_f32_bf16 v{8+(i&1)}, v{X+i}, v5, v{8+(i&1)}")
    A(f"s_waitcnt vmcnt({ne})")
    for i in range(40):
        A(f"v_dot2_f32_bf16 v{10+(i&1)}, v{X+i}, v{GW+i}, v{10+(i&1)}")
    A("s_nop 2")
    A("v_add_f32 v8, v8, v9")
    A("v_add_f32 v10, v10, v11")
    def red8(r):
        for m in ("quad_perm:[1,0,3,2]", "quad_perm:[2,3,0,1]", "row_half_mirror"):
            A("s_nop 1")
            for x in r: A(f"v_add_f32_dpp v{x}, v{x}, v{x} {m} row_mask:0xf bank_mask:0xf")
    red8([8, 10])
    A(f"v_mul_f32 v8, {0xBACCCCCD:#x}, v8")
    A("v_mov_b32 v9, v8")
    A(f"v_mul_f32 v10, {LOG2E | 0x80000000:#x}, v10")
    A("v_exp_f32 v10, v10")
    for i in range(40):
        A(f"v_lshlrev_b32 v{D+2*i}, 16, v{X+i}")
        A(f"v_and_b32 v{D+2*i+1}, 0xffff0000, v{X+i}")
    A("v_add_f32 v10, 1.0, v10")
    A("v_rcp_f32 v10, v10")
    for i in range(40):
        A(f"v_pk_add_f32 {vr(D+2*i,2)}, {vr(D+2*i,2)}, v[8:9]")
    A("v_pk_mul_f32 v[18:19], v[128:129], v[128:129]")
    A("v_pk_mul_f32 v[20:21], v[130:131], v[130:131]")
    for i in range(2, 40):
        a = 18 + 2*(i & 1)
        A(f"v_pk_fma_f32 {vr(a,2)}, {vr(D+2*i,2)}, {vr(D+2*i,2)}, {vr(a,2)}")
    A("v_pk_add_f32 v[18:19], v[18:19], v[20:21]")
    A("ds_write_b32 v17, v10 offset:49152")
    A("v_add_f32 v18, v18, v19")
    red8([18])
    A(f"v_mov_b32 v19, {0x3727C5AC:#x}")
    A(f"v_fmac_f32 v19, {0x3ACCCCCD:#x}, v18")
    A("v_rsq_f32 v18, v19")
    A("s_nop 0")
    A("v_mov_b32 v19, v18")
    for i in range(40):
        A(f"v_pk_mul_f32 {vr(D+2*i,2)}, {vr(D+2*i,2)}, v[18:19]")
        A(f"v_cvt_pk_bf16_f32 v{X+i}, v{D+2*i}, v{D+2*i+1}")
        if (i & 3) == 3:
            A(f"ds_write_b128 v16, {vr(X+i-3,4)} offset:{128*(i//4)}")
    A("v_lshrrev_b32 v2, 2, v1")
    A("v_mul_u32_u24 v2, 1312, v2")
    A("v_and_b32 v3, 3, v1")
    A("v_lshl_add_u32 v2, v3, 3, v2")
    A(f"s_mul_i32 s85, s{sWAVE}, 320")
    A("v_add_u32 v2, s85, v2")
    A(f"s_mul_i32 s85, s{sA}, 40960")
    A(f"s_mul_i32 s86, s{sWAVE}, 10240")
    A("s_add_u32 s85, s85, s86")
    A("s_add_u32 s86, s85, 4096")
    A("s_add_u32 s87, s85, 8192")
    A("v_lshlrev_b32 v17, 2, v1")
    A(f"s_lshl_b32 s88, s{sA}, 7")
    A(f"s_add_u32 s88, s88, {WS_G:#x}")
    A("s_waitcnt lgkmcnt(0)")
    A("s_barrier")
    A(f"s_cmp_lg_u32 s{sWAVE}, 3")
    A("s_cbranch_scc1 ln_ng")
    A("ds_read_b32 v10, v17 offset:49152")
    A("s_waitcnt lgkmcnt(0)")
    A("s_mov_b32 exec_hi, 0")
    A(f"buffer_store_dword v10, v17, s[{sWS}:{sWS+3}], s88 offen sc1")
    A("s_mov_b32 exec_hi, -1")
    A.label("ln_ng")
    for t in range(10):
        A(f"ds_read_b64_tr_b16 {vr(D+4*t,2)}, v2 offset:{32*t}")
        A(f"ds_read_b64_tr_b16 {vr(D+4*t+2,2)}, v2 offset:{32*t + 16*1312}")
        if t == 6: A("s_waitcnt lgkmcnt(6)")
    for t in range(10):
        A(f"s_waitcnt lgkmcnt({min(2*(9-t), 6)})")
        A(f"buffer_store_dwordx4 {vr(D+4*t,4)}, v{vB0}, s[{sWS}:{sWS+3}], s{85 + t//4} offen offset:{1024*(t&3)} sc1")

def c_adv1(): return [f"s_add_u32 s{sC1}, s{sC1}, s{sCST}", f"s_cmp_eq_u32 s{sC1}, s{sCE1}", f"s_cselect_b32 s{sC1}, s{sCB1}, s{sC1}"]
def c_adv2(): return [f"s_add_u32 s{sC2}, s{sC2}, 40960", f"s_cmp_eq_u32 s{sC2}, s{sCE2}", f"s_cselect_b32 s{sC2}, s{sCB2}, s{sC2}"]
def c_wdma(slot):
    L = [[f"s_add_u32 m0, s{sCM0}, {4096*slot}"]]
    for q in range(4):
        L.append([f"buffer_load_dwordx4 v{vWS_+q}, s[{sCW}:{sCW+3}], s{sC1} offen offset:{1024*q} lds"])
    return L
def c_bload(slot, n):
    return f"buffer_load_dwordx4 {ar(BR+20*slot+4*n,4)}, v{vB0 if n < 4 else vB1}, s[{sWS}:{sWS+3}], s{sC2} offen offset:{1024*(n&3)} sc1"
def c_tr(slot, aset):
    return [f"ds_read_b64_tr_b16 {ar(AS+16*aset+4*t+2*j,2)}, v{vTR+t} offset:{4096*slot+2048*j}" for t in range(4) for j in range(2)]
def c_wring(A):
    for s in range(OPT["d"]):
        emit_dma_block(A, c_wdma(s))
        for x in c_adv1(): A(x)
def c_bring(A):
    for s in range(OPT["d"]):
        for n in range(5): A(c_bload(s, n))
        for x in c_adv2(): A(x)
def switch_to_fb(A):
    A(f"s_mov_b64 s[{sCW}:{sCW+1}], s[{sW2}:{sW2+1}]")
    A(f"s_mov_b64 s[{sCW+2}:{sCW+3}], s[{sW2+2}:{sW2+3}]")
    for i in range(4): A(f"v_mov_b32 v{vWS_+i}, v{vWS2+i}")
    A(f"s_mov_b32 s{sC1}, s{sF1}")
    A(f"s_mov_b32 s{sCB1}, s{sFB1}")
    A(f"s_mov_b32 s{sCE1}, s{sFE1}")
    A(f"s_mov_b32 s{sCST}, {32*4096}")

G1A = 112
def c_step(A, u, wait, doW, doB, doT, accf, w_is_A, drain=None, first=False, side=None, pre=[], late=None):
    DD = OPT["d"]
    A(f"s_waitcnt vmcnt({wait}) lgkmcnt(0)")
    for x in pre: A(x)
    tr = c_tr((u+1) & 3, (u+1) & 1) if doT else []
    mf = []
    for n in range(5):
        for t in range(4):
            w = ar(AS+16*(u & 1)+4*t, 4); b = ar(BR+20*u+4*n, 4); c = accf((t*5+n)*4)
            cin = "0" if first else c
            mf.append(f"v_mfma_f32_16x16x32_bf16 {c}, {w}, {b}, {cin}" if w_is_A else f"v_mfma_f32_16x16x32_bf16 {c}, {b}, {w}, {cin}")
    fill = [[] for _ in range(20)]
    sl = (u + DD) & 3
    wd = c_wdma(sl)
    post = []
    if doW:
        A(wd[0][0])
        for t in range(4): fill[t] += wd[1+t]
        fill[5 if drain else 12] += c_adv1()
    for k, x in enumerate(tr): fill[4+k].append(x)
    if doB:
        for n in range(5): fill[4*n+3].append(c_bload(sl, n))
        fill[19] += c_adv2()
    if side:
        per = -(-len(side) // 20)
        for g in range(20): fill[g] = side[g*per:(g+1)*per] + fill[g]
    if late:
        fill[13] += late[:9]
        post += late[9:]
    if drain:
        for n in range(3):
            for t in range(4): fill[4*(n+2)+t] += drain(n, t)
        post += ["s_nop 3"] + flat([drain(3, t) for t in range(4)]) + flat([drain(4, t) for t in range(4)])
    weave(A, mf, fill)
    for x in post: A(x)

def c_loop(A, pfx, nks, accf, w_is_A, isg1, drain):
    DD = OPT["d"]; W0 = 5 + 9*(DD-2)
    tail_next = isg1 and OPT["tailw"]
    A(".p2align 3")
    A.label(f"{pfx}_loop")
    for u in range(4):
        c_step(A, u, W0, True, True, True, accf, w_is_A)
    if STAMPS:
        ng = nks//4 - 1
        i = _st["n"]; _st["n"] += ng; _st["names"] += [f"{pfx}_g{k}" for k in range(ng)]
        A("s_memtime s[100:101]")
        A("s_waitcnt lgkmcnt(0)")
        A(f"s_sub_u32 m0, {i + ng}, s{sCNT}")
        A("s_nop 0")
        A("v_writelane_b32 v47, s100, m0")
    A(f"s_sub_u32 s{sCNT}, s{sCNT}, 1")
    A(f"s_cmp_lg_u32 s{sCNT}, 0")
    A(f"s_cbranch_scc1 {pfx}_loop")
    seq = []
    for k in range(DD): seq += [("W", k)]*4 + [("B", k)]*5
    for u in range(4):
        need = max([i for i, (t, k) in enumerate(seq) if (t == "B" and k == u) or (t == "W" and k == u+1)])
        wait = len(seq) - 1 - need
        own = u < 4 - DD
        if isg1 and u == 4 - DD: switch_to_fb(A)
        nxt = tail_next and not own
        c_step(A, u, wait, own or nxt, own, u < 3, accf, w_is_A, drain if u == 3 else None)
        if own: seq += [("W", u+DD)]*4 + [("B", u+DD)]*5
        elif nxt: seq += [("N", 0)]*4
    stamp(A, pfx + "_loopdone")

sFA1, sFA2, sFR = 54, 55, 94
sUS = 52
vGE = 224
def fa_params(A):
    A(f"s_and_b32 s{sFR}, s{sFD}, 3")
    A(f"s_lshl_b32 s{sFR}, s{sFR}, 1")
    A(f"s_and_b32 s89, s{sFS}, 7")
    A(f"s_add_u32 s{sFR}, s{sFR}, s89")
    A(f"s_mul_i32 s89, s{sFR}, 52")
    A("s_lshr_b32 s89, s89, 8")
    A("s_mul_i32 s89, s89, 5")
    A(f"s_sub_u32 s{sFR}, s{sFR}, s89")
    if OPT["arot"] == 0: A(f"s_mov_b32 s{sFR}, 0")
    if OPT["arot"] == 2:
        A(f"s_add_u32 s{sFR}, s{sFS}, s{sFD}")
        A(f"s_and_b32 s{sFR}, s{sFR}, 1")
        A(f"s_mul_i32 s{sFR}, s{sFR}, 3")
    A(f"s_mul_i32 s86, s{sWAVE}, 5")
    A(f"s_add_u32 s86, s86, s{sFR}")
    A(f"s_mul_i32 s{sFA1}, s{sFS}, {0 if OPT.get('same') else 20}")
    A(f"s_add_u32 s{sFA1}, s{sFA1}, s86")
    A(f"s_lshl_b32 s{sFA1}, s{sFA1}, 12")
    A(f"s_add_u32 s{sFA1}, s{sFA1}, {WS_PQ:#x}")
    A(f"s_mul_i32 s{sFA2}, s86, 40960")
    A(f"s_mul_i32 s89, s{sFD}, {0 if OPT.get('same') else 5120}")
    A(f"s_add_u32 s{sFA2}, s{sFA2}, s89")
    A(f"s_add_u32 s{sFA2}, s{sFA2}, {WS_M:#x}")
fa_b = lambda i: 0 if i == 0 else 112 + 36*(i-1)
def fa_ld(A, i):
    for st in range(4):
        A(f"buffer_load_dwordx4 {ar(fa_b(i)+4*st,4)}, v{vB0}, s[{sWS}:{sWS+3}], s{sFA1} offen offset:{1024*st} sc1")
    for n in range(5):
        A(f"buffer_load_dwordx4 {ar(fa_b(i)+16+4*n,4)}, v{vB0 if n < 4 else vB1}, s[{sWS}:{sWS+3}], s{sFA2} offen offset:{1024*(n&3)} sc1")
    if i < 4:
        A(f"s_add_u32 s{sFA1}, s{sFA1}, 4096")
        A(f"s_add_u32 s{sFA2}, s{sFA2}, 40960")
        A(f"s_add_u32 s{sFR}, s{sFR}, 1")
        A(f"s_cmp_eq_u32 s{sFR}, 5")
        A(f"s_cselect_b32 s86, {5*4096}, 0")
        A(f"s_cselect_b32 s89, {5*40960}, 0")
        A(f"s_sub_u32 s{sFA1}, s{sFA1}, s86")
        A(f"s_sub_u32 s{sFA2}, s{sFA2}, s89")

def g1_params(A):
    W, Rr = vGE, vGE + 4
    A("v_and_b32 v2, 15, v1")
    A("v_lshrrev_b32 v3, 4, v1")
    A("v_xor_b32 v4, v2, v3")
    A("v_lshlrev_b32 v4, 4, v4")
    A("v_lshl_add_u32 v4, v2, 8, v4")
    A(f"s_mul_i32 s85, s{sWAVE}, 20480")
    A(f"s_add_u32 s85, s85, {LDS_RED}")
    A(f"v_add_u32 v{W}, s85, v4")
    for t in range(1, 4): A(f"v_xor_b32 v{W+t}, {64*t}, v{W}")
    A(f"s_and_b32 s85, s{sWAVE}, 1")
    A(f"s_lshr_b32 s86, s{sWAVE}, 1")
    A("s_lshl_b32 s87, s85, 7")
    A("v_xor_b32 v4, s87, v4")
    A("s_lshl_b32 s87, s86, 12")
    A(f"s_add_u32 s87, s87, {LDS_RED}")
    A(f"v_add_u32 v{Rr}, s87, v4")
    A(f"v_xor_b32 v{Rr+1}, 64, v{Rr}")
    A(f"v_add_u32 v{Rr+2}, 40960, v{Rr}")
    A(f"v_add_u32 v{Rr+3}, 40960, v{Rr+1}")
    A(f"s_lshl_b32 s87, s{sG1F}, 1")
    A("s_add_u32 s87, s87, s85")
    A("s_lshl_b32 s23, s87, 6")
    A("v_lshlrev_b32 v12, 3, v3")
    A("s_mul_i32 s87, s87, 40")
    A(f"s_mul_i32 s88, s{sG1D}, 5")
    A("s_add_u32 s87, s87, s88")
    A("s_add_u32 s87, s87, s86")
    A("s_lshl_b32 s87, s87, 10")
    A(f"s_add_u32 s{sUS}, s87, {WS_U:#x}")
    A(f"s_add_u32 s{sUS+1}, s{sUS}, 4096")
    A(f"s_mov_b32 s90, {0xBDD2D3E8:#x}")
    A(f"s_mov_b32 s91, {0xBDD2D3E8:#x}")
    A(f"v_mov_b32 v{vGE+8}, {0xC0135761:#x}")
    A(f"v_mov_b32 v{vGE+9}, {0xC0135761:#x}")
    fa_params(A)
def b1_loads():
    return [[f"buffer_load_dwordx2 {vr(vGE+18+2*j,2)}, v12, s[{sB1}:{sB1+3}], s23 offen offset:{32*j}"] for j in range(2)]
def zero_acc(A):
    for i in range(0, 80, 2): A(f"v_mov_b64 {vr(ACC+i,2)}, 0")

def g1_phase(A):
    c_loop(A, "g1", 16, lambda o: ar(G1A+o, 4), True, True, lambda n, t: [f"ds_write_b128 v{vGE+t}, {ar(G1A+(t*5+n)*4,4)} offset:{4096*n}"])
    for j in range(2):
        for k in range(2):
            A(f"v_lshlrev_b32 v{vGE+10+4*j+2*k}, 16, v{vGE+18+2*j+k}")
            A(f"v_and_b32 v{vGE+11+4*j+2*k}, 0xffff0000, v{vGE+18+2*j+k}")
    A("s_waitcnt lgkmcnt(0)")
    A("s_barrier")
    stamp(A, "g1_red")
    A(poll_ld(15, 25))
    R = 128
    def rd(r):
        for j in range(2):
            for part in range(4):
                A(f"ds_read_b128 {vr(R+32*r+16*j+4*part,4)}, v{vGE+4+j+2*(part>>1)} offset:{8192*r + 20480*(part&1)}")
    def fin(r):
        b = R + 32*r
        for j in range(2):
            x = b + 16*j
            for i in (0, 2):
                A(f"v_pk_add_f32 {vr(x+i,2)}, {vr(x+i,2)}, {vr(x+4+i,2)}")
                A(f"v_pk_add_f32 {vr(x+8+i,2)}, {vr(x+8+i,2)}, {vr(x+12+i,2)}")
        for j in range(2):
            x = b + 16*j
            for i in (0, 2): A(f"v_pk_add_f32 {vr(x+i,2)}, {vr(x+i,2)}, {vr(vGE+10+4*j+i,2)}")
        for j in range(2):
            x = b + 16*j
            for i in (0, 2): A(f"v_pk_add_f32 {vr(x+i,2)}, {vr(x+i,2)}, {vr(x+8+i,2)}")
        E = [b + 16*j + i for j in range(2) for i in range(4)]
        E2 = E[::2]
        for x in E2: A(f"v_pk_mul_f32 {vr(x+4,2)}, {vr(x,2)}, {vr(x,2)}")
        for x in E2: A(f"v_pk_fma_f32 {vr(x+4,2)}, {vr(x+4,2)}, s[90:91], {vr(vGE+8,2)}")
        for x in E2: A(f"v_pk_mul_f32 {vr(x+4,2)}, {vr(x+4,2)}, {vr(x,2)}")
        for x in E: A(f"v_exp_f32 v{x+4}, v{x+4}")
        for x in E2: A(f"v_pk_add_f32 {vr(x+4,2)}, {vr(x+4,2)}, 1.0 op_sel_hi:[1,0]")
        for x in E: A(f"v_rcp_f32 v{x+4}, v{x+4}")
        for x in E2: A(f"v_pk_mul_f32 {vr(x,2)}, {vr(x,2)}, {vr(x+4,2)}")
        for j in range(2):
            x = b + 16*j
            A(f"v_cvt_pk_bf16_f32 v{b+8+2*j}, v{x}, v{x+1}")
            A(f"v_cvt_pk_bf16_f32 v{b+9+2*j}, v{x+2}, v{x+3}")
        A(f"buffer_store_dwordx4 {vr(b+8,4)}, v{vB0}, s[{sWS}:{sWS+3}], s{sUS if r < 2 else sUS+1} offen offset:{2048*(r&1)} sc1")
    rd(0)
    A("s_waitcnt lgkmcnt(4)")
    rd(1)
    A("s_waitcnt lgkmcnt(8)")
    fin(0)
    A(f"s_cmp_ge_u32 s{sWAVE}, 2")
    A("s_cbranch_scc1 g1_e1")
    rd(2)
    A("s_waitcnt lgkmcnt(8)")
    fin(1)
    A("s_waitcnt lgkmcnt(0)")
    fin(2)
    A("s_branch g1_e2")
    A.label("g1_e1")
    A("s_waitcnt lgkmcnt(0)")
    fin(1)
    A.label("g1_e2")
    stamp(A, "g1_st")
    A("s_waitcnt vmcnt(3)")
    A(f"s_cmp_lt_u32 s{sWAVE}, 2")
    A("s_cbranch_scc1 g1_q0")
    A("s_waitcnt vmcnt(2)")
    A.label("g1_q0")
    A(f"s_mov_b32 s{sQOK}, 0")
    A(f"v_cmp_ne_u32 vcc, s{sNON}, v{vPOLL}")
    A("s_cbranch_vccnz g1_q1")
    A(f"s_mov_b32 s{sQOK}, 1")
    fa_ld(A, 0)
    A("s_waitcnt vmcnt(9)")
    A("s_branch g1_q2")
    A.label("g1_q1")
    if OPT["tailw"]: A("s_waitcnt vmcnt(0)")
    else:
        c_wring(A)
        A(f"s_waitcnt vmcnt({4*OPT['d']})")
    A.label("g1_q2")
    A(f"s_mul_i32 s88, s{sG1D}, 24")
    A(f"s_add_u32 s88, s88, s{sG1F}")
    publish(A, "pub_u", FL_G1, 88, None)
    stamp(A, "g1_pub")
    if not OPT["tailw"]:
        A(f"s_cmp_eq_u32 s{sQOK}, 0")
        A("s_cbranch_scc1 g1_q3")
        c_wring(A)
        A("s_branch f_go")
        A.label("g1_q3")
    else:
        A(f"s_cmp_lg_u32 s{sQOK}, 0")
        A("s_cbranch_scc1 f_go")
    A(poll_ld(15, 25))
    A("s_waitcnt vmcnt(0)")
    poll_check(A, "pq", 15, 25)

def f_phase(A):
    ACA = 128
    A.label("f_entry")
    fa_ld(A, 0)
    A.label("f_go")
    fa_ld(A, 1)
    stamp(A, "f_qok")
    A(f"s_or_b32 s85, s2, s{sWAVE}")
    A("s_cmp_lg_u32 s85, 0")
    A("s_cbranch_scc1 f_nox")
    A(f"s_mov_b32 s85, {FL_X:#x}")
    flag_store(A, 85)
    A.label("f_nox")
    fb = fa_b
    def fam(i):
        for n in range(5):
            for st in range(4):
                c = vr(ACA+(st*5+n)*4, 4)
                A(f"v_mfma_f32_16x16x32_bf16 {c}, {ar(fb(i)+16+4*n,4)}, {ar(fb(i)+4*st,4)}, {c if i else 0}")
    A("v_and_b32 v2, 15, v1")
    A("v_lshlrev_b32 v3, 2, v2")
    A(f"s_lshl_b32 s23, s{sFS}, 8")
    A(f"s_add_u32 s23, s23, {WS_G:#x}")
    for st in range(4):
        A(f"buffer_load_dword v{8+st}, v3, s[{sWS}:{sWS+3}], s23 offen offset:{64*st} sc1")
    A("v_lshlrev_b32 v3, 1, v2")
    A(f"s_lshl_b32 s23, s{sFS}, 7")
    A(f"s_cmp_eq_u32 s{sWAVE}, 0")
    A("s_cselect_b32 s23, s23, 0x40000000")
    for st in range(4):
        A(f"buffer_load_ushort v{4+st}, v3, s[{sB2}:{sB2+3}], s23 offen offset:{32*st}")
    fa_ld(A, 2)
    A("v_min_u32 v12, 23, v1")
    A("v_lshlrev_b32 v12, 7, v12")
    A(f"s_mul_i32 s23, s{sFD}, {24*128}")
    A(f"s_add_u32 s23, s23, {FL_G1:#x}")
    pp = OPT.get("upoll", 3)
    if pp == 2: A(poll_ld(12, 23))
    A(f"s_waitcnt vmcnt({26 + (pp == 2)})")
    fam(0)
    fa_ld(A, 3)
    if pp == 3: A(poll_ld(12, 23))
    A("s_waitcnt vmcnt(19)")
    fam(1)
    fa_ld(A, 4)
    for st in range(4):
        A(f"v_sub_f32 v{8+st}, 1.0, v{8+st}")
        A(f"v_lshlrev_b32 v{4+st}, 16, v{4+st}")
        for k in range(20): A(f"v_mov_b32 v{ACC+st*20+k}, v{4+st}")
    A(f"s_mov_b32 s{sC2}, s{sF2}")
    A(f"s_mov_b32 s{sCB2}, s{sFB2}")
    A(f"s_mov_b32 s{sCE2}, s{sFE2}")
    A("v_lshrrev_b32 v3, 4, v1")
    A("v_mul_u32_u24 v4, 336, v2")
    A("v_lshl_add_u32 v4, v3, 4, v4")
    A(f"s_mul_i32 s85, s{sWAVE}, 21504")
    A(f"s_add_u32 s85, s85, {LDS_RED}")
    A("v_add_u32 v4, s85, v4")
    A(f"s_mul_i32 s85, s{sWAVE}, {16*336}")
    A(f"s_add_u32 s85, s85, {LDS_RED}")
    A(f"s_lshl_b32 s90, s{sFS}, 2")
    A(f"s_add_u32 s90, s90, s{sWAVE}")
    A(f"s_mul_i32 s90, s90, {16*1280}")
    A(f"s_mul_i32 s87, s{sFD}, 160")
    A("s_add_u32 s90, s90, s87")
    for r in range(5):
        A(f"v_add_u32 v5, {64*r}, v1")
        A("v_mul_u32_u24 v6, 3277, v5")
        A("v_lshrrev_b32 v6, 16, v6")
        A("v_mul_u32_u24 v7, 20, v6")
        A("v_sub_u32 v7, v5, v7")
        A(f"v_mul_u32_u24 v{16+r}, 336, v6")
        A(f"v_lshl_add_u32 v{16+r}, v7, 4, v{16+r}")
        A(f"v_add_u32 v{16+r}, s85, v{16+r}")
        A(f"v_mul_u32_u24 v{24+r}, 1280, v6")
        A(f"v_lshl_add_u32 v{24+r}, v7, 3, v{24+r}")
    if pp == 2:
        A("s_waitcnt vmcnt(18)")
        poll_check(A, "pu", 12, 23)
        stamp(A, "f_uok")
        fam(2)
        c_bring(A)
        A(f"s_waitcnt vmcnt({9 + 5*OPT['d']})")
        fam(3)
    else:
        A("s_waitcnt vmcnt(19)")
        fam(2)
        A("s_waitcnt vmcnt(9)")
        poll_check(A, "pu", 12, 23)
        stamp(A, "f_uok")
        c_bring(A)
        fam(3)
    A(f"s_waitcnt vmcnt({5*OPT['d']})")
    fam(4)
    A(f"s_waitcnt vmcnt({5 if OPT['d'] == 2 else 10})")
    stamp(A, "fb_first")
    def drain(n, st):
        b = (st*5+n)*4
        return [f"v_fma_f32 v{ACA+b+i}, v{ACC+b+i}, v{8+st}, v{ACA+b+i}" for i in range(4)] + [f"ds_write_b128 v4, {vr(ACA+b,4)} offset:{st*16*336 + 64*n}"]
    for x in c_tr(0, 0): A(x)
    A(f"s_mov_b32 s{sCNT}, 2")
    c_loop(A, "fb", 12, lambda o: vr(ACC+o, 4), False, False, drain)
    A("s_waitcnt lgkmcnt(0)")
    A("s_barrier")
    stamp(A, "f_red")
    R = ACC
    def rd(r):
        for part in range(4):
            A(f"ds_read_b128 {vr(R+16*r+4*part,4)}, v{16+r} offset:{21504*part}")
    rd(0); rd(1); rd(2)
    for r in range(5):
        A(f"s_waitcnt lgkmcnt({8 if r < 3 else 4*(4-r)})")
        b = R + 16*r
        for i in (0, 2):
            A(f"v_pk_add_f32 {vr(b+i,2)}, {vr(b+i,2)}, {vr(b+4+i,2)}")
            A(f"v_pk_add_f32 {vr(b+8+i,2)}, {vr(b+8+i,2)}, {vr(b+12+i,2)}")
        if r + 3 < 5: rd(r+3)
        for i in (0, 2): A(f"v_pk_add_f32 {vr(b+i,2)}, {vr(b+i,2)}, {vr(b+8+i,2)}")
        A(f"v_cvt_pk_bf16_f32 v{b}, v{b}, v{b+1}")
        A(f"v_cvt_pk_bf16_f32 v{b+1}, v{b+2}, v{b+3}")
        A(f"buffer_store_dwordx2 {vr(b,2)}, v{24+r}, s[{sOUT}:{sOUT+3}], s90 offen")

def kd(name):
    return f""".section .rodata,"a"
.p2align 6
.amdhsa_kernel {name}
  .amdhsa_next_free_vgpr 512
  .amdhsa_next_free_sgpr 102
  .amdhsa_accum_offset 256
  .amdhsa_group_segment_fixed_size 0
  .amdhsa_kernarg_size 96
  .amdhsa_user_sgpr_count 2
  .amdhsa_user_sgpr_kernarg_segment_ptr 1
  .amdhsa_system_sgpr_workgroup_id_x 1
.end_amdhsa_kernel
"""

def gen():
    hdr = open("cdna_kernels/" + NAME + ".s.ref").read().split("; Override")[0]
    hdr += f"; @launch grid=(256,1,1) block=(256,1,1) lds={LDS_BYTES}\n"
    hdr += '.amdgcn_target "amdgcn-amd-amdhsa--gfx950"\n'
    A = Asm()
    K = NAME + "_kernel"
    A(".text"); A(f".globl {K}"); A(".p2align 8"); A(f".type {K},@function"); A.label(K)
    prologue(A)
    A("s_cmp_ge_u32 s82, 16"); A("s_cbranch_scc1 r_notkv")
    A("s_and_b32 s85, s82, 3")
    A("s_lshl_b32 s86, s83, 2")
    A(f"s_add_u32 s{sA}, s85, s86")
    A("s_lshr_b32 s85, s82, 2")
    A("s_lshl_b32 s86, s84, 2")
    A(f"s_add_u32 s{sBp}, s85, s86")
    qkv_setup(A, False)
    A("s_waitcnt lgkmcnt(0)"); srds(A, ["X", "W"])
    stamp(A, "kv_pre")
    def mid(A):
        params1(A); srds(A, ["WS", "W1", "B1", "W2", "B2", "OUT"]); params2(A); g1_params(A)
        kv_esetup(A)
        A("s_lshl_b32 s85, s81, 4")
        A("s_add_u32 s85, s85, s82")
        A("s_lshl_b32 s85, s85, 2")
        A(f"s_add_u32 s85, s85, s{sWAVE}")
        A("s_lshl_b32 s27, s85, 13")
        A(f"s_lshl_b32 s{sPUB}, s{sA}, 3")
        A(f"s_add_u32 s{sPUB}, s{sPUB}, s{sBp}")
        A(f"s_lshl_b32 s{sPUB}, s{sPUB}, 7")
        A(f"s_add_u32 s{sPUB}, s{sPUB}, {FL_KV:#x}")
    D = OPT["d"]; EW = 5 if D == 2 else 10
    assert D == 3
    def wst(k):
        g = c_wdma(k); g[-1] = g[-1] + c_adv1(); return g
    def bst(k):
        g = [[c_bload(k, n)] for n in range(5)]; g[-1] = g[-1] + c_adv2(); return g
    E = kv_estream()
    g1acc = lambda o: ar(G1A+o, 4)
    def pubkv(A, wait):
        A(f"s_waitcnt vmcnt({wait})")
        A("s_barrier")
        A(f"s_cmp_lg_u32 s{sWAVE}, 0")
        A("s_cbranch_scc1 g1_pub1")
        flag_store(A, sPUB)
        A.label("g1_pub1")
        stamp(A, "kv_pub")
    nin = OPT["nbin"]
    ex = {8: ([[poll_ld(vPO, 24)]] + b1_loads() + wst(0) + wst(1), 9), 9: (wst(2), 8)}
    qkv_gemm(A, "kv", False, mid, ex, {9: lambda A: poll_check(A, "pln", vPO, 24)}, None)
    if OPT["kvw2"]:
        A(f"buffer_load_dword a255, v15, s[{sW2}:{sW2+3}], s27 offen")
    for m in qkv_mfmas(FB_, False): A(m)
    stamp(A, "kv_loopdone")
    Bs = bst(0) + bst(1) + bst(2)
    body = E[0] + E[1]
    sp = min(26, (len(body) - 30 - OPT["b0"]) // max(nin, 1))
    pos = [len(body) - 30 - sp*(nin - 1 - k) for k in range(nin)]
    assert not pos or pos[0] >= 0
    for i, x in enumerate(body):
        if i in pos:
            for y in Bs[pos.index(i)]: A(y)
        A(x)
    A("s_waitcnt lgkmcnt(0)")
    A("s_barrier")
    for x in E[2] + E[3]: A(x)
    stamp(A, "kv_st")
    for g in Bs[nin:]:
        for y in g: A(y)
    seq = ["W"]*12 + [f"B{k//5}" for k in range(nin)] + ["S"]*4 + [f"B{k//5}" for k in range(nin, 15)]
    def need(tags): return len(seq) - 1 - max(i for i, t in enumerate(seq) if t in tags)
    A(f"s_waitcnt vmcnt({need(['W'])})")
    for x in c_tr(0, 0): A(x)
    if OPT["pubat"] == 0: pubkv(A, need(["S"]))
    for u in range(4):
        c_step(A, u, min(need([f"B{u}", f"W{u+1}", "W"]), 63), True, True, True, g1acc, True, first=(u == 0))
        seq += [f"W{u+3}"]*4 + [f"B{u+3}"]*5
        if OPT["pubat"] == u + 1: pubkv(A, need(["S"]))
    A(f"s_mov_b32 s{sCNT}, 2")
    g1_phase(A)
    f_phase(A)
    stamp_flush(A)
    A.label("k_end"); A("s_endpgm")
    A.label("r_notkv")
    if OPT["pf_code"]:
        A("s_getpc_b64 s[86:87]")
        A.label("pc_here")
        A(f"s_sub_u32 s86, s86, pc_here-{K}")
        A("s_subb_u32 s87, s87, 0")
        A("s_sub_u32 s85, s82, 16")
        A("s_lshl_b32 s85, s85, 2")
        A(f"s_add_u32 s85, s85, s{sWAVE}")
        A("s_lshl_b32 s85, s85, 3")
        A("v_add_lshl_u32 v2, v1, s85, 7")
        A(f"v_min_u32 v2, k_codeend-{K}-4, v2")
        A("s_mov_b64 exec, 0xff")
        A("global_load_dword a255, v2, s[86:87]")
        A("s_mov_b64 exec, -1")
    A("s_cmp_lt_u32 s82, 24"); A("s_cbranch_scc1 r_q")
    A("s_sub_u32 s87, s82, 24")
    A("s_lshl_b32 s85, s81, 3")
    A(f"s_add_u32 s{sA}, s85, s87")
    aux = " nt" if OPT.get("nt") else ""
    w1l = lambda k: f"buffer_load_dword a255, v22, s[{sW1}:{sW1+3}], s{26 + k//3} offen offset:{1024*(k%3)}{aux}"
    def after(A):
        params1(A); srds(A, ["WS", "W1", "B1", "W2", "B2", "OUT"]); params2(A); g1_params(A)
        w1_setup(A, 24, 22)
        for k in range(OPT["early"] if OPT["pf_w1"] else 0): A(w1l(k))
    ln_role(A, after, OPT["early"] if OPT["pf_w1"] else 0)
    publish(A, "pub_ln", FL_LN, sA)
    stamp(A, "ln_pub")
    for k in range(OPT["early"], (3 - OPT["qw1n"]) if (OPT["pf_w1"] and not OPT["qfirst"]) else 0): A(w1l(k))
    def pf_h():
        A(poll_ld(vPO, 24))
        A("v_lshrrev_b32 v2, 5, v1")
        A("v_mul_u32_u24 v2, 40960, v2")
        A("v_and_b32 v3, 31, v1")
        A("v_lshl_add_u32 v2, v3, 7, v2")
        A("s_sub_u32 s85, s82, 24")
        A("s_lshl_b32 s85, s85, 2")
        A(f"s_add_u32 s85, s85, s{sWAVE}")
        A(f"s_mul_i32 s87, s85, {2*40960}")
        A("s_mul_i32 s86, s84, 20480")
        A("s_add_u32 s87, s87, s86")
        A("s_waitcnt vmcnt(0)")
        poll_check(A, "plnh", vPO, 24)
        A("s_barrier")
        for i in range(5):
            A(f"buffer_load_dword a255, v2, s[{sWS}:{sWS+3}], s87 offen sc1")
            A("s_add_u32 s87, s87, 4096")
    for c in str(OPT["lnseq"]):
        if c == "1" and OPT["pf_w1"]:
            for k in range(3, 6): A(w1l(k))
        if c == "6":
            for k in range(3): A(w1l(k))
        if c == "2": pf_h()
        if c == "3": w2_prefetch(A, 24, [0])
        if c == "7": w2_prefetch(A, 24, [2])
        if c == "4": w2_prefetch(A, 24, [0, 1])
        if c == "5": w2_prefetch(A, 24, [0, 1, 2])
    stamp(A, "ln_pf")
    for g in b1_loads(): A(g[0])
    A(poll_ld(vPO, 24))
    c_wring(A)
    A(f"s_waitcnt vmcnt({4*OPT['d']})")
    poll_check(A, "pln2", vPO, 24)
    A("s_barrier")
    c_bring(A)
    for i in range(80): A(f"v_accvgpr_write_b32 a{G1A+i}, 0")
    A(f"s_mov_b32 s{sCNT}, 3")
    A(f"s_waitcnt vmcnt({EW})")
    for x in c_tr(0, 0): A(x)
    stamp(A, "ln_ready")
    A("s_branch g1_loop")
    A.label("r_q")
    A("s_sub_u32 s87, s82, 16")
    A("s_and_b32 s85, s87, 3")
    A("s_lshl_b32 s86, s83, 2")
    A(f"s_add_u32 s{sA}, s85, s86")
    A("s_lshr_b32 s85, s87, 2")
    A("s_lshl_b32 s86, s84, 1")
    A(f"s_add_u32 s{sBp}, s85, s86")
    A(f"s_lshl_b32 s{sU}, s{sBp}, 2")
    A(f"s_and_b32 s85, s{sA}, 3")
    A(f"s_add_u32 s{sU}, s{sU}, s85")
    A(f"s_lshr_b32 s{sNR}, s{sA}, 2")
    def midq(A):
        params1(A); srds(A, ["WS", "W1", "WO", "W2", "B2", "OUT"]); params2(A)
        w1_setup(A, 16, 12)
        q_setup(A)
    qkv_setup(A, True)
    A("s_waitcnt lgkmcnt(0)"); srds(A, ["X", "W"])
    qkv_gemm(A, "q", True, midq, q_extras(), {9: lambda A: poll_check(A, "pln3", vPO, 24)}, (OPT["qw1"], q_loop_pf))
    q_epilogue(A)
    A("s_lshl_b32 s88, s81, 3")
    A("s_add_u32 s88, s88, s82")
    A("s_sub_u32 s88, s88, 16")
    publish(A, "pub_q", FL_Q, 88)
    stamp(A, "q_pub")
    if OPT["qw2b"]: w2_prefetch(A, 16, list(range(3 - OPT["qw2b"], 3)))
    switch_to_fb(A)
    c_wring(A)
    A(poll_ld(vPO, 25))
    A("s_waitcnt vmcnt(0)")
    poll_check(A, "pq2", vPO, 25)
    A("s_barrier")
    stamp(A, "q_allq")
    if OPT["pf_pq"]:
        A("s_sub_u32 s88, s82, 16")
        A("s_lshl_b32 s88, s88, 2")
        A(f"s_add_u32 s88, s88, s{sWAVE}")
        A("v_lshlrev_b32 v2, 7, v1")
        A(f"s_mul_i32 s85, s83, {8*81920}")
        A(f"s_mul_i32 s86, s88, {160*128}")
        A("s_add_u32 s85, s85, s86")
        A(f"s_add_u32 s85, s85, {WS_PQ:#x}")
        for i in range(3):
            if i == 2: A("s_mov_b32 exec_hi, 0")
            A(f"buffer_load_dword a255, v2, s[{sWS}:{sWS+3}], s85 offen sc1")
            A("s_add_u32 s85, s85, 8192")
        A("s_mov_b32 exec_hi, -1")
        A("s_cmp_ge_u32 s88, 20")
        A("s_cbranch_scc1 q_pfd")
        A("s_mul_i32 s85, s88, 40960")
        A("s_mul_i32 s86, s84, 20480")
        A("s_add_u32 s85, s85, s86")
        A(f"s_add_u32 s85, s85, {WS_M:#x}")
        for i in range(3):
            if i == 2: A("s_mov_b32 exec_hi, 0")
            A(f"buffer_load_dword a255, v2, s[{sWS}:{sWS+3}], s85 offen sc1")
            A("s_add_u32 s85, s85, 8192")
        A("s_mov_b32 exec_hi, -1")
        A.label("q_pfd")
    fa_params(A)
    A("s_branch f_entry")
    A.label("k_codeend")
    for i, l in enumerate(A.lines):
        if l.startswith("v_mad_i32_i24 v4, v3, -20"):
            A.lines[i] = l.replace("-20", "s89")
        if l == "s_movk_i32 s88, 3840":
            A.lines[i] = "s_movk_i32 s89, -20"
    nb = check(A.lines)
    print("hazards:", nb, file=sys.stderr)
    return hdr + A.text() + kd(K)

if __name__ == "__main__":
    out = sys.argv[1]
    for a in sys.argv[2:]:
        if a == "st": STAMPS = True
        else:
            k, v = a.split("="); OPT[k] = int(v)
    open(out, "w").write(gen())
    if STAMPS: json.dump(_st["names"], open(out + ".names", "w"))
```

```python
import re

class Asm:
    def __init__(self):
        self.lines = []
    def __call__(self, s):
        for l in s.strip("\n").split("\n"):
            self.lines.append(l.strip())
    def label(self, n):
        self.lines.append(n + ":")
    def text(self):
        out = []
        for l in self.lines:
            if l.endswith(":") or l.startswith(".") or l.startswith(";"):
                out.append(l)
            else:
                out.append("    " + l)
        return "\n".join(out) + "\n"

def vr(b, n=1):
    return f"v{b}" if n == 1 else f"v[{b}:{b+n-1}]"
def ar(b, n=1):
    return f"a{b}" if n == 1 else f"a[{b}:{b+n-1}]"
def sr(b, n=1):
    return f"s{b}" if n == 1 else f"s[{b}:{b+n-1}]"

REG = re.compile(r"(?<![\w.])([vas])(?:(\d+)|\[(\d+):(\d+)\])(?![\w])")
def regs(tok):
    out = set()
    for m in REG.finditer(tok):
        k = m.group(1)
        if m.group(2) is not None: out.add((k, int(m.group(2))))
        else: out.update((k, i) for i in range(int(m.group(3)), int(m.group(4)) + 1))
    if re.search(r"\bvcc\b", tok): out.update({("s", "vcc")})
    if re.search(r"\bexec\b", tok): out.update({("s", "exec")})
    if re.search(r"\bm0\b", tok): out.update({("s", "m0")})
    return out

TRANS = ("v_exp_f32", "v_log_f32", "v_rcp_f32", "v_rsq_f32", "v_sqrt_f32", "v_sin_f32", "v_cos_f32", "v_rcp_iflag")
class Ins:
    def __init__(self, text):
        self.text = text
        t = text.split(";")[0].strip()
        parts = t.split(None, 1)
        self.op = parts[0]
        ops = [o.strip() for o in parts[1].split(",")] if len(parts) > 1 else []
        self.ops = ops
        op = self.op
        self.ws = 1
        self.dst = set(); self.src = set()
        self.mfma = op.startswith("v_mfma")
        self.valu = op.startswith("v_") and not self.mfma
        self.salu = op.startswith("s_")
        self.vmem = op.startswith("buffer_") or op.startswith("global_")
        self.ds = op.startswith("ds_")
        self.trans = any(op.startswith(x) for x in TRANS)
        self.dpp = "_dpp" in op or "quad_perm" in t or "row_" in t
        self.dlop = op.startswith("v_dot")
        self.srcC = set(); self.srcAB = set()
        if op == "s_nop":
            self.ws = int(ops[0]) + 1
        if self.mfma:
            self.dst = regs(ops[0]); self.srcAB = regs(ops[1]) | regs(ops[2]); self.srcC = regs(ops[3]); self.src = self.srcAB | self.srcC
            self.passes = 4 if "16x16" in op else 8
        elif self.valu:
            if op.startswith("v_cmp"):
                self.dst = regs(ops[0]); self.src = set().union(*[regs(o) for o in ops[1:]])
                if op.startswith("v_cmpx"): self.dst |= {("s", "exec")}
            elif op.startswith("v_permlane") and "swap" in op:
                self.dst = regs(ops[0]) | regs(ops[1]); self.src = set(self.dst)
            else:
                self.dst = regs(ops[0]); rest = ops[1:]
                if "_co_" in op or op.startswith("v_div_scale") or op.startswith("v_mad_u64"):
                    self.dst |= regs(ops[1]); rest = ops[2:]
                self.src = set().union(*[regs(o) for o in rest]) if rest else set()
                if op.startswith("v_fmac") or op.startswith("v_dot2c") or op.startswith("v_pk_fmac") or "writelane" in op or self.dpp: self.src |= regs(ops[0])
                if op.startswith("v_cndmask") and len(ops) == 3: self.src |= {("s", "vcc")}
        elif self.vmem:
            allr = [regs(o) for o in ops]
            if "store" in op or "atomic" in op:
                self.src = set().union(*allr)
                self.storedata = regs(ops[0]) if op.startswith("buffer_") else regs(ops[1])
                self.wide = ("x3" in op or "x4" in op)
            elif " lds" in t or "load_lds" in op:
                self.src = set().union(*allr) | {("s", "m0")}
            elif op in ("buffer_inv", "buffer_wbl2"):
                pass
            else:
                self.dst = allr[0]; self.src = set().union(*allr[1:])
        elif self.ds:
            allr = [regs(o) for o in ops]
            if "write" in op: self.src = set().union(*allr)
            else: self.dst = allr[0]; self.src = set().union(*allr[1:])
        elif self.salu:
            if op.startswith("s_cmp") or op.startswith("s_cbranch") or op.startswith("s_branch") or op in ("s_waitcnt", "s_barrier", "s_nop", "s_endpgm", "s_sleep", "s_setprio"):
                self.src = set().union(*[regs(o) for o in ops]) if ops else set()
            else:
                self.dst = regs(ops[0]); self.src = set().union(*[regs(o) for o in ops[1:]]) if len(ops) > 1 else set()
                if "saveexec" in op: self.dst |= {("s", "exec")}

def need(p, c):
    n = 0
    vd = {r for r in p.dst if r[0] in "va"}
    sd = {r for r in p.dst if r[0] == "s"}
    if p.valu and not p.dlop:
        if c.mfma and vd & c.src: n = max(n, 2)
    if p.valu:
        if c.valu and c.dpp and vd & c.src: n = max(n, 2)
        if c.valu and ("readlane" in c.op or "readfirstlane" in c.op) and vd & c.src: n = max(n, 1)
        if c.valu and c.op.startswith("v_permlane") and vd & c.src: n = max(n, 2)
        if c.vmem and sd & c.src: n = max(n, 5)
        if c.valu and (sd - {("s", "exec")}) & c.src: n = max(n, 2)
        if ("s", "exec") in sd:
            if c.valu and c.dpp: n = max(n, 5)
            if c.mfma: n = max(n, 4)
            if c.valu and ("lane" in c.op): n = max(n, 4)
        if p.trans and c.valu and not c.trans and vd & c.src: n = max(n, 1)
        if p.trans and (c.mfma) and vd & c.src: n = max(n, 2)
    if p.dlop:
        if (c.valu or c.mfma or c.vmem or c.ds) and vd & (c.src | c.dst):
            if c.op == p.op and not (vd & (regs(c.ops[1]) | regs(c.ops[2]))): pass
            else: n = max(n, 3)
    if p.mfma:
        P = p.passes
        if c.mfma:
            if vd & c.srcAB: n = max(n, {4: 8, 8: 12}[P])
            if vd & c.srcC:
                if not (vd == c.srcC and p.passes == c.passes): n = max(n, {4: 6, 8: 10}[P])
        elif c.valu or c.vmem or c.ds:
            if vd & (c.src | c.dst): n = max(n, {4: 8, 8: 12}[P])
        if c.valu and p.srcC & c.dst: n = max(n, {4: 3, 8: 7}[P])
    if p.salu and ("s", "m0") in p.dst and ("s", "m0") in c.src and (c.vmem or c.ds): n = max(n, 1)
    if p.vmem and getattr(p, "wide", False) and hasattr(p, "storedata"):
        if p.storedata & c.dst: n = max(n, 2 if c.valu else 1)
    return n

def check(lines, verbose=True):
    ins = []; labels = {}
    for l in lines:
        t = l.split(";")[0].strip()
        if not t or t.startswith("."): continue
        if t.endswith(":"):
            labels[t[:-1]] = len(ins); continue
        ins.append(Ins(t))
    n = len(ins)
    preds = [[] for _ in range(n + 1)]
    for i, x in enumerate(ins):
        if x.op in ("s_branch",) or x.op.startswith("s_cbranch"):
            tgt = labels.get(x.ops[0])
            if tgt is not None: preds[tgt].append(i)
        if x.op not in ("s_branch", "s_endpgm", "s_setpc_b64"):
            preds[i + 1].append(i)
    bad = 0
    for i, c in enumerate(ins):
        stack = [(p, 0) for p in preds[i]]
        seen = {}
        while stack:
            j, d = stack.pop()
            if j in seen and seen[j] <= d: continue
            seen[j] = d
            p = ins[j]
            k = need(p, c)
            if k > d:
                bad += 1
                if verbose: print(f"HAZARD need {k} have {d}: [{j}] {p.text}  ->  [{i}] {c.text}")
            d2 = d + p.ws
            if d2 < 20:
                for q in preds[j]: stack.append((q, d2))
    return bad

import subprocess, os, tempfile
def _sizes(texts):
    uniq = list(dict.fromkeys(texts))
    src = '.amdgcn_target "amdgcn-amd-amdhsa--gfx950"\n.text\n' + "\n".join(f"L{i}:\n{t}" for i, t in enumerate(uniq)) + f"\nL{len(uniq)}:\ns_endpgm\n"
    d = tempfile.mkdtemp()
    open(d + "/a.s", "w").write(src)
    r = subprocess.run(["clang", "-x", "assembler", "-target", "amdgcn-amd-amdhsa", "-mcpu=gfx950", "-c", d + "/a.s", "-o", d + "/a.o"], capture_output=True, text=True)
    if r.returncode:
        bad = set(int(m) for m in re.findall(r"a\.s:(\d+):", r.stderr))
        badidx = {(ln - 4) // 2 for ln in bad}
        good = [t for i, t in enumerate(uniq) if i not in badidx]
        res = _sizes(good) if good and len(good) < len(uniq) else {}
        for i in badidx: res[uniq[i]] = None
        return res
    o = subprocess.run(["llvm-objdump", "-t", d + "/a.o"], capture_output=True, text=True).stdout
    ad = {}
    for l in o.splitlines():
        p = l.split()
        if len(p) >= 3 and re.fullmatch(r"L\d+", p[-1]): ad[int(p[-1][1:])] = int(p[0], 16)
    return {t: ad[i + 1] - ad[i] for i, t in enumerate(uniq)}

def align(lines, minrun=5):
    isins = lambda l: l and not l.endswith(":") and not l.startswith(".") and not l.startswith(";")
    probe = lambda l: re.sub(r"(s_c?branch\w*) \w+", r"\1 0", re.sub(r"[a-zA-Z_]\w*-[a-zA-Z_]\w*(-4)?", "0x12345", l))
    ins = [l for l in lines if isins(l)]
    def wide(l):
        op = l.split()[0]
        if op.startswith("v_") and not op.endswith("_e64") and "_dpp" not in op and "lane" not in op: return l.replace(op, op + "_e64", 1)
        return None
    cands = [probe(l) for l in ins] + [wide(probe(l)) for l in ins if wide(probe(l))]
    sz = _sizes(cands)
    out = list(lines); par = 0; run = []; i = 0; nconv = nnop = 0
    while i < len(out):
        l = out[i]
        if l.startswith(".p2align"): par = 0; run = []
        elif isins(l):
            s = sz[probe(l)]
            if s == 4:
                par ^= 4; run.append(i)
            else:
                if par:
                    fixed = False
                    for j in reversed(run):
                        w = wide(out[j])
                        if w and sz.get(wide(probe(out[j]))) == 8:
                            out[j] = w; par = 0; fixed = True; nconv += 1; break
                    if not fixed:
                        k = i; n = 0
                        while k < len(out) and (not isins(out[k]) or sz[probe(out[k])] != 4) and not out[k].startswith(".p2align"):
                            n += isins(out[k]); k += 1
                        if n >= minrun:
                            out.insert(i, "s_nop 0"); sz.setdefault("s_nop 0", 4); par = 0; nnop += 1; i += 1
                run = [] if not par else run
        i += 1
    return out, nconv, nnop
```

```python
import sys, json
from asmlib import Asm, vr, ar, sr, check, align

NAME = "gated_mix__linear_attn_block__mixer_token_mlp__prompt"
WS_H   = 0x000000
WS_U   = 0x280000
WS_PQ  = 0x460000
WS_M   = 0x6E0000
WS_KVP = 0x7A8000
WS_ZP  = 0x880000
WS_G   = 0x972000
WS_FLAG = 0x974000
FL_X = WS_FLAG
FL_LN = WS_FLAG + 128
FL_KV = FL_LN + 64*128
FL_Q = FL_KV + 128*128
FL_G1 = FL_Q + 64*128
WS_SIZE = FL_G1 + 192*128
WS_STAMP = 0x1000000

sX, sW, sWS, sW1, sW2, sOUT, sWO, sB1, sB2, sGW = 28, 32, 36, 40, 44, 48, 52, 56, 60, 64
sWAVE = 68
sA, sBp = 69, 70
sG1D, sG1F, sFS, sFD = 71, 72, 73, 74
sCNT, sO1, sO2, sRD, sWR, sM0 = 75, 76, 77, 78, 79, 80
sEX, sMK = 90, 92
sU, sNR = 94, 95
sWR_, sWC_ = 96, 97
sPUB = 3
sQOK = 99
sM1 = 98
sC1, sC2, sCM0, sCB1, sCE1, sCB2, sCE2, sCST, sCW, sNON = 4, 5, 6, 7, 8, 9, 10, 11, 12, 16
sF1, sFB1, sFE1, sF2, sFB2, sFE2 = 17, 18, 19, 20, 21, 22
LOG2E = 0x3FB8AA3B
EPS6 = 0x358637BD
LDS_RED = 65536
LDS_BYTES = 163840
vXO, vWO_, vXB, vCUR = 16, 20, 25, 29
vWS_, vB0, vB1, vTR, vWS2 = 33, 37, 38, 39, 43
ACC = 48
FA_, FB_ = 112, 148
BR, AS = 0, 80
STG = 36864
vPOLL, vPO = 14, 13
OPT = {"rot": 1, "pf_w1": 1, "pf_w2": 1, "pf_code": 1, "pf_pq": 0, "sleep": 1, "early": 1, "d": 3, "qpoll": 2, "nbin": 10, "cv": 0, "lnseq": 15, "qw2": 0, "qw2b": 0, "ntq": 0, "qw1": 1, "qw1n": 2, "kvr": 1, "touch": 1, "perm": 0, "otouch": 0, "rdb": 4, "w2c": 1, "qfirst": 0, "rfd": 3, "tailw": 1, "pubat": 1, "kvw2": 0, "b0": 0, "qw1b": 0, "rfb": 4, "frot": 2, "arot": 2, "fmap": 1, "qrot": 1, "grot": 4, "lnpost": 0, "lnpn": 3, "align": 5, "defer": 0, "qdefer": 0, "lnmid": 0}
STAMPS = False
_st = {"n": 0, "names": []}

def stamp(A, name, real=False):
    if not STAMPS: return
    i = _st["n"]; _st["n"] += 1; _st["names"].append(name)
    A("s_memrealtime s[100:101]" if real else "s_memtime s[100:101]")
    A("s_waitcnt lgkmcnt(0)")
    A(f"v_writelane_b32 v47, s100, {i}")
def stamp_flush(A):
    if not STAMPS: return
    stamp(A, "end"); stamp(A, "endreal", True)
    A("s_lshl_b32 s100, s2, 2")
    A(f"s_add_u32 s100, s100, s{sWAVE}")
    A("s_lshl_b32 s100, s100, 8")
    A(f"s_add_u32 s100, s100, {WS_STAMP:#x}")
    A(f"s_mov_b32 s{sWS+2}, 0x2000000")
    A("v_lshlrev_b32 v46, 2, v1")
    A(f"buffer_store_dword v47, v46, s[{sWS}:{sWS+3}], s100 offen")

def srds(A, which):
    tab = {"X": (sX, 4, 2048*1280), "W": (sW, 6, 640*3840), "WO": (sWO, 8, 640*1280), "W1": (sW1, 12, 2048*3072), "B1": (sB1, 14, 3072),
           "W2": (sW2, 16, 1536*4096), "B2": (sB2, 18, 4096), "GW": (sGW, 20, 1280), "OUT": (sOUT, 22, 2048*1280), "WS": (sWS, 26, WS_SIZE)}
    for w in which:
        base, ptr, size = tab[w]
        A(f"s_mov_b64 s[{base}:{base+1}], s[{ptr}:{ptr+1}]")
        A(f"s_mov_b32 s{base+2}, {size:#x}")
        A(f"s_mov_b32 s{base+3}, 0x20000")

def flat(groups):
    out = []
    for g in groups: out += g if isinstance(g, list) else [g]
    return out

def weave(A, mf, fill, first=0):
    for i, m in enumerate(mf):
        A(m)
        if i < len(fill):
            for x in fill[i]: A(x)
    for g in fill[len(mf):]:
        for x in g: A(x)

def poll_off(A, dst, nper, total_waves_split=True):
    A(f"v_and_b32 v{dst}, {nper-1}, v1")
    A(f"s_mul_i32 s85, s{sWAVE}, {nper}")
    A(f"v_add_lshl_u32 v{dst}, v{dst}, s85, 7")
def poll_ld(vo, so):
    return f"buffer_load_dword v{vPOLL}, v{vo}, s[{sWS}:{sWS+3}], s{so} offen sc1"
def poll_check(A, name, vo, so):
    A(f"v_cmp_ne_u32 vcc, s{sNON}, v{vPOLL}")
    A(f"s_cbranch_vccz {name}_ok")
    A(f"s_mov_b32 s{sM1}, 0")
    A.label(f"{name}_spin")
    A(f"s_add_u32 s{sM1}, s{sM1}, 1")
    A(f"s_cmp_gt_u32 s{sM1}, 0x8000")
    A(f"s_cbranch_scc1 {name}_ok")
    A(f"s_sleep {OPT['sleep']}")
    A(poll_ld(vo, so))
    A("s_waitcnt vmcnt(0)")
    A(f"v_cmp_ne_u32 vcc, s{sNON}, v{vPOLL}")
    A(f"s_cbranch_vccnz {name}_spin")
    A.label(f"{name}_ok")
def flag_store(A, so):
    A(f"v_mov_b32 v2, s{sNON}")
    A("v_lshlrev_b32 v3, 2, v1")
    A("s_mov_b32 exec_hi, 0")
    A(f"buffer_store_dword v2, v3, s[{sWS}:{sWS+3}], s{so} offen sc1")
    A("s_mov_b32 exec_hi, -1")
def publish(A, name, base, sidx, wait=0):
    if wait is not None: A(f"s_waitcnt vmcnt({wait})")
    A("s_barrier")
    A(f"s_cmp_lg_u32 s{sWAVE}, 0")
    A(f"s_cbranch_scc1 {name}_np")
    A(f"s_lshl_b32 s85, s{sidx}, 7")
    A(f"s_add_u32 s85, s85, {base:#x}")
    flag_store(A, 85)
    A.label(f"{name}_np")

def prologue(A):
    A("s_cmp_ge_u32 s2, 256")
    A("s_cbranch_scc1 k_end")
    if STAMPS: A("v_mov_b32 v47, 0")
    stamp(A, "startreal", True); stamp(A, "start")
    A("s_load_dwordx16 s[4:19], s[0:1], 0")
    A("s_load_dwordx8 s[20:27], s[0:1], 64")
    A("v_lshrrev_b32 v2, 6, v0")
    A("v_and_b32 v1, 63, v0")
    A(f"v_readfirstlane_b32 s{sWAVE}, v2")
    A("s_and_b32 s81, s2, 7")
    A("s_lshr_b32 s82, s2, 3")
    A("s_lshr_b32 s83, s81, 1")
    A("s_and_b32 s84, s81, 1")

def params1(A):
    A(f"s_add_u32 s86, s26, {FL_X:#x}")
    A("s_addc_u32 s87, s27, 0")
    A("s_load_dword s3, s[86:87], 0")
    A("s_lshr_b32 s85, s82, 2")
    A("s_lshl_b32 s88, s83, 3")
    if OPT["perm"]: A("s_xor_b32 s85, s85, 7")
    A(f"s_add_u32 s{sFS}, s85, s88")
    A("s_and_b32 s85, s82, 3")
    A("s_lshl_b32 s88, s84, 2")
    A(f"s_add_u32 s{sFD}, s85, s88")
    if OPT["fmap"]:
        A("s_lshr_b32 s85, s82, 3")
        if OPT["fmap"] == 1:
            A("s_lshl_b32 s85, s85, 3")
            A(f"s_add_u32 s{sFS}, s85, s81")
        else:
            A(f"s_lshl_b32 s{sFS}, s81, 2")
            A(f"s_add_u32 s{sFS}, s{sFS}, s85")
        A(f"s_and_b32 s{sFD}, s82, 7")
    A("s_sub_u32 s85, s82, 8")
    A("s_cmp_lt_u32 s82, 16")
    A("s_cselect_b32 s85, s82, s85")
    A("s_and_b32 s89, s85, 3")
    A(f"s_add_u32 s{sG1D}, s89, s88")
    A("s_lshr_b32 s85, s85, 2")
    A("s_lshl_b32 s88, s85, 2")
    A(f"s_add_u32 s{sG1F}, s83, s88")
    A("s_lshr_b32 s88, s85, 2")
    A("s_lshl_b32 s85, s85, 1")
    A("s_add_u32 s85, s85, s88")
    A("s_lshl_b32 s85, s85, 1")
    if OPT["rfb"] == 0: A("s_mov_b32 s85, 0")
    A(f"s_mul_i32 s89, s89, {OPT['rdb']}")
    A("s_add_u32 s85, s85, s89")
    if OPT["grot"] == 2: A("s_lshl_b32 s85, s85, 1")
    A(f"s_and_b32 s99, s85, {(15 if OPT['grot'] == 4 else 8) if OPT['grot'] else 0}")

def cw_init(A):
    A(f"s_mov_b64 s[{sCW}:{sCW+1}], s[{sW1}:{sW1+1}]")
    A(f"s_mov_b64 s[{sCW+2}:{sCW+3}], s[{sW1+2}:{sW1+3}]")
def params2(A):
    if OPT.get("same"):
        for k, r in enumerate((sG1D, sG1F, sFS, sFD)):
            A(f"s_mov_b32 s{100 if not STAMPS else 64+k}, s{r}")
            A(f"s_mov_b32 s{r}, 0")
        params2_(A)
        for k, r in enumerate((sG1D, sG1F, sFS, sFD)): A(f"s_mov_b32 s{r}, s{64+k}")
    else: params2_(A)
def params2_(A):
    A(f"s_mul_i32 s{sCB1}, s{sWAVE}, {16*32*3072}")
    A(f"s_lshl_b32 s85, s{sG1F}, 7")
    A(f"s_add_u32 s{sCB1}, s{sCB1}, s85")
    A(f"s_add_u32 s{sCE1}, s{sCB1}, {16*32*3072}")
    A(f"s_mul_i32 s85, s99, {32*3072}")
    A(f"s_add_u32 s{sC1}, s{sCB1}, s85")
    A(f"s_mul_i32 s{sCB2}, s{sWAVE}, {16*40960}")
    A(f"s_mul_i32 s85, s{sG1D}, 5120")
    A(f"s_add_u32 s{sCB2}, s{sCB2}, s85")
    A(f"s_add_u32 s{sCE2}, s{sCB2}, {16*40960}")
    A(f"s_mul_i32 s85, s99, 40960")
    A(f"s_add_u32 s{sC2}, s{sCB2}, s85")
    A(f"s_mov_b32 s{sCST}, {32*3072}")
    A(f"s_lshl_b32 s{sCM0}, s{sWAVE}, 14")
    A("s_and_b32 s85, s82, 3")
    A(f"s_mul_i32 s85, s85, {OPT['rfd']}")
    A("s_lshr_b32 s86, s82, 2")
    A("s_mul_i32 s86, s86, 3")
    A("s_lshr_b32 s86, s86, 1")
    A("s_add_u32 s85, s85, s86")
    A("s_cmp_ge_u32 s85, 12")
    A("s_cselect_b32 s86, 12, 0")
    A("s_sub_u32 s85, s85, s86")
    if OPT["frot"] == 0: A("s_mov_b32 s85, 0")
    if OPT["frot"] == 2:
        A(f"s_add_u32 s85, s{sFS}, s{sFD}")
        A("s_and_b32 s85, s85, 1")
        A("s_mul_i32 s85, s85, 6")
    if OPT["frot"] == 3:
        A(f"s_add_u32 s85, s{sFS}, s{sFD}")
        A("s_mul_i32 s86, s85, 86")
        A("s_lshr_b32 s86, s86, 8")
        A("s_mul_i32 s86, s86, 3")
        A("s_sub_u32 s85, s85, s86")
        A("s_lshl_b32 s85, s85, 2")
    A(f"s_mul_i32 s{sFB1}, s{sWAVE}, {12*32*4096}")
    A(f"s_lshl_b32 s86, s{sFS}, 7")
    A(f"s_add_u32 s{sFB1}, s{sFB1}, s86")
    A(f"s_add_u32 s{sFE1}, s{sFB1}, {12*32*4096}")
    A(f"s_lshl_b32 s86, s85, 17")
    A(f"s_add_u32 s{sF1}, s{sFB1}, s86")
    A(f"s_mul_i32 s{sFB2}, s{sWAVE}, {12*40960}")
    A(f"s_mul_i32 s86, s{sFD}, 5120")
    A(f"s_add_u32 s{sFB2}, s{sFB2}, s86")
    A(f"s_add_u32 s{sFB2}, s{sFB2}, {WS_U:#x}")
    A(f"s_add_u32 s{sFE2}, s{sFB2}, {12*40960}")
    A(f"s_mul_i32 s86, s85, 40960")
    A(f"s_add_u32 s{sF2}, s{sFB2}, s86")
    A(f"v_lshlrev_b32 v{vB0}, 4, v1")
    A(f"v_add_u32 v{vB1}, 4096, v{vB0}")
    A("v_lshrrev_b32 v2, 2, v1")
    A("v_lshrrev_b32 v3, 1, v2")
    A("v_and_b32 v3, 3, v3")
    A("v_lshlrev_b32 v2, 7, v2")
    A("v_lshl_add_u32 v2, v3, 5, v2")
    A("v_and_b32 v3, 3, v1")
    A("v_lshl_add_u32 v2, v3, 3, v2")
    A(f"v_add_u32 v{vTR}, s{sCM0}, v2")
    for t in range(1, 4): A(f"v_xor_b32 v{vTR+t}, {32*t}, v{vTR}")
    A("v_lshrrev_b32 v2, 3, v1")
    A("v_lshrrev_b32 v3, 4, v1")
    A("v_lshlrev_b32 v3, 1, v3")
    A("v_and_b32 v4, 7, v1")
    A("v_xor_b32 v3, v3, v4")
    A("v_lshlrev_b32 v3, 4, v3")
    for base, stride in ((vWS_, 3072), (vWS2, 4096)):
        A(f"v_mul_u32_u24 v4, {stride}, v2")
        A(f"v_add_u32 v{base}, v3, v4")
        for q in range(1, 4): A(f"v_add_u32 v{base+q}, {q*(8*stride-1024)}, v{base}")
    poll_off(A, vPO, 16)
    A("v_lshlrev_b32 v15, 7, v1")
    A(f"s_mov_b32 s24, {FL_LN:#x}")
    A(f"s_mov_b32 s25, {FL_Q:#x}")
    A("s_waitcnt lgkmcnt(0)")
    A(f"s_mul_i32 s{sNON}, s3, 0x41C64E6D")
    A(f"s_add_u32 s{sNON}, s{sNON}, 0x3C6EF35F")

def qkv_setup(A, isq):
    A(f"s_lshr_b32 s{sWR_}, s{sWAVE}, 1")
    A(f"s_and_b32 s{sWC_}, s{sWAVE}, 1")
    A("v_lshrrev_b32 v2, 3, v1")
    A(f"s_lshl_b32 s85, s{sWAVE}, 5")
    A("v_add_u32 v2, s85, v2")
    A("v_mul_u32_u24 v2, 1280, v2")
    A("v_lshrrev_b32 v3, 4, v1")
    A("v_and_b32 v4, 7, v1")
    A("v_xor_b32 v4, v4, v3")
    A(f"v_lshl_add_u32 v{vXO}, v4, 4, v2")
    A("v_xor_b32 v4, 4, v4")
    A("v_lshl_add_u32 v6, v4, 4, v2")
    A(f"v_add_u32 v{vXO+1}, {8*1280-1024}, v6")
    A(f"v_add_u32 v{vXO+2}, {16*1280-2048}, v{vXO}")
    A(f"v_add_u32 v{vXO+3}, {24*1280-3072}, v6")
    A(f"s_mul_i32 s{sO1}, s{sA}, {0 if OPT.get('same') else 128*1280}")
    if OPT.get("same"):
        A("s_mov_b32 s86, 1280")
    elif isq:
        A(f"s_mul_i32 s86, s{sBp}, 320")
    else:
        A(f"s_mul_i32 s86, s{sBp}, 160")
        A("s_add_u32 s86, s86, 1280")
    A(f"s_mul_i32 s85, s{sWAVE}, {16*3840}")
    A("s_add_u32 s85, s85, s86")
    A("s_movk_i32 s88, 3840")
    for n in range(5):
        if n: A(f"v_add_u32 v2, {64*n}, v1")
        q = "v2" if n else "v1"
        A(f"v_mul_u32_u24 v3, 3277, {q}")
        A("v_lshrrev_b32 v3, 16, v3")
        A(f"v_mad_i32_i24 v4, v3, -20, {q}")
        A("v_lshrrev_b32 v5, 2, v3")
        A("v_and_b32 v5, 2, v5")
        A("v_xor_b32 v4, v4, v5")
        comp = 1024*n if n < 4 else 0
        A(f"s_sub_u32 s87, s85, {comp}" if comp else "s_mov_b32 s87, s85")
        A("v_mad_u32_u24 v3, v3, s88, s87" if False else "v_mul_u32_u24 v3, 3840, v3")
        A("v_lshl_add_u32 v3, v4, 4, v3")
        if not isq:
            A("v_cmp_le_u32 vcc, 10, v4")
            A("v_add_u32 v5, 1120, v3")
            A("v_add_u32 v3, s87, v3")
            A("v_add_u32 v5, s87, v5")
            A(f"v_cndmask_b32 v{vWO_+n}, v3, v5, vcc")
        else:
            A(f"v_add_u32 v{vWO_+n}, s87, v3")
    A(f"s_mov_b32 s{sO2}, 0")
    if OPT["rot"]:
        q = OPT["qrot"]
        if q == 1:
            A("s_and_b32 s85, s82, 3")
            A("s_lshl_b32 s85, s85, 2")
            A("s_lshr_b32 s85, 0x8530, s85")
            A("s_and_b32 s85, s85, 15")
            A("s_and_b32 s86, s82, 12")
            A("s_lshr_b32 s86, 0x8530, s86")
            A("s_and_b32 s86, s86, 15")
            A("s_add_u32 s85, s85, s86")
            A("s_add_u32 s85, s85, s83")
            A("s_add_u32 s85, s85, s84")
        else:
            A("s_lshr_b32 s85, s82, 2")
            A("s_add_u32 s85, s85, s82")
            A("s_and_b32 s85, s85, 1")
            A("s_mul_i32 s85, s85, 5")
            if q == 2:
                A("s_add_u32 s85, s85, s83")
                A("s_add_u32 s85, s85, s84")
            if q == 4:
                A("s_add_u32 s85, s85, s81")
            if q == 5:
                A("s_mov_b32 s85, s81")
        if isq: A("s_add_u32 s85, s85, 1")
        A("s_mul_i32 s86, s85, 26")
        A("s_lshr_b32 s86, s86, 8")
        A("s_mul_i32 s86, s86, 10")
        A("s_sub_u32 s85, s85, s86")
        A(f"s_mul_i32 s{sO2}, s85, {64*3840}")
        A("s_lshl_b32 s85, s85, 7")
        A(f"s_add_u32 s{sO1}, s{sO1}, s85")
    A(f"s_lshl_b32 s{sM0}, s{sWAVE}, 12")
    A(f"s_mul_i32 s{sM1}, s{sWAVE}, 5120")
    A(f"s_add_u32 s{sM1}, s{sM1}, 16384")
    A(f"s_mov_b32 s{sWR}, {2*STG}")

def nt(b): return " nt" if OPT["ntq"] & b else ""
def qkv_dma():
    L = [[f"s_add_u32 m0, s{sWR}, s{sM0}"]]
    for n in range(4):
        L.append([f"buffer_load_dwordx4 v{vXO+n}, s[{sX}:{sX+3}], s{sO1} offen offset:{1024*n}{nt(1)} lds"])
    L.append([f"s_add_u32 m0, s{sWR}, s{sM1}"])
    for n in range(4):
        L.append([f"buffer_load_dwordx4 v{vWO_+n}, s[{sW}:{sW+3}], s{sO2} offen offset:{1024*n}{nt(2)} lds"])
    L.append(["s_add_u32 m0, m0, 4096"])
    L.append([f"buffer_load_dwordx4 v{vWO_+4}, s[{sW}:{sW+3}], s{sO2} offen{nt(2)} lds"])
    return L
def qkv_adv():
    return [f"s_add_u32 s{sO1}, s{sO1}, 128", f"s_add_u32 s{sO2}, s{sO2}, {64*3840}", f"s_cmp_eq_u32 s{sO2}, {640*3840}",
            "s_cselect_b32 s85, 1280, 0", f"s_cselect_b32 s{sO2}, 0, s{sO2}", f"s_sub_u32 s{sO1}, s{sO1}, s85",
            f"s_add_u32 s{sWR}, s{sWR}, {STG}", f"s_cmp_eq_u32 s{sWR}, {4*STG}", f"s_cselect_b32 s{sWR}, 0, s{sWR}"]
def emit_dma_block(A, groups):
    for g in groups:
        for x in g: A(x)
        if "m0" in g[0].split(",")[0]: A("s_nop 0")

NW = 5
vXB, vCUR = 26, 6
vXB = 208
vCUR = 215
def qkv_reads(kk, fs):
    def wr(t):
        return [f"ds_read_b64_tr_b16 {ar(fs+16+4*t+2*j,2)}, v{vCUR+2+t} offset:{kk*10240 + j*1280}" for j in range(2)]
    L = wr(0)
    for st in range(4):
        L.append(f"ds_read_b128 {ar(fs+4*st,4)}, v{vCUR+kk} offset:{st*2048}")
    for t in range(1, 5): L += wr(t)
    return L
def qkv_mfmas(fs, isq):
    L = []
    for t in range(5):
        for st in range(4):
            x = ar(fs + 4*st, 4); w = ar(fs + 16 + 4*t, 4); c = vr(ACC + (st*5+t)*4, 4)
            L.append(f"v_mfma_f32_16x16x32_bf16 {c}, {w}, {x}, {c}" if isq else f"v_mfma_f32_16x16x32_bf16 {c}, {x}, {w}, {c}")
    return L

def qkv_gemm(A, pfx, isq, mid_setup, extras, pres, blk):
    emit_dma_block(A, qkv_dma())
    for x in qkv_adv(): A(x)
    stamp(A, pfx + "_iss0")
    mid_setup(A)
    A("v_and_b32 v2, 15, v1")
    A("v_lshrrev_b32 v3, 4, v1")
    A("v_lshrrev_b32 v4, 1, v2")
    A("v_xor_b32 v4, v4, v3")
    A("v_lshlrev_b32 v4, 4, v4")
    A("v_lshl_add_u32 v4, v2, 7, v4")
    A(f"s_lshl_b32 s85, s{sWR_}, 13")
    A(f"v_add_u32 v{vXB}, s85, v4")
    A(f"v_xor_b32 v{vXB+1}, 64, v{vXB}")
    A("v_lshrrev_b32 v4, 2, v2")
    A("v_lshl_add_u32 v4, v3, 3, v4")
    A("v_mul_u32_u24 v4, 320, v4")
    A("v_and_b32 v5, 1, v1")
    A("v_lshl_add_u32 v4, v5, 3, v4")
    A("v_add_u32 v4, 16384, v4")
    A("v_bfe_u32 v5, v1, 1, 1")
    A("v_and_b32 v6, 1, v3")
    A("v_lshlrev_b32 v6, 1, v6")
    A(f"s_mul_i32 s85, s{sWC_}, {10 if isq else 5}")
    for t in range(5):
        if isq: c0, step = [(0, 1), (2, 1), (4, 5), (5, 1), (7, 1)][t]
        else: c0, step = [(0, 1), (2, 1), (4, 6), (11, 1), (13, 1)][t]
        A(f"s_add_u32 s86, s85, {c0}")
        if step == 1: A("v_add_u32 v7, s86, v5")
        else: A(f"v_mad_u32_u24 v7, v5, {step}, s86")
        A("v_xor_b32 v7, v7, v6")
        A(f"v_lshl_add_u32 v{vXB+2+t}, v7, 4, v4")
    zero_acc(A)
    A(f"s_mov_b32 s{sRD}, {2*STG}")
    A(f"s_mov_b32 s{sCNT}, 0")
    upd = [f"v_add_u32 v{vCUR+i}, s{sRD}, v{vXB+i}" for i in range(7)]
    rdadv = [f"s_add_u32 s{sRD}, s{sRD}, {STG}", f"s_cmp_eq_u32 s{sRD}, {4*STG}", f"s_cselect_b32 s{sRD}, 0, s{sRD}"]
    def spread(rd, dma_slots, groups, scal):
        fill = [[] for _ in range(20)]
        k = 0
        for gi in range(9):
            for _ in range(2 if gi < 5 else 1):
                fill[gi].append(rd[k]); k += 1
        g = list(groups)
        for sl in dma_slots:
            if not g: break
            if "m0" in g[0][0].split(",")[0]:
                fill[sl-1] += g.pop(0)
            fill[sl] += g.pop(0)
        return fill, g
    def put_scal(fill, scal, start):
        sc = list(scal); gi = start
        while sc:
            room = 2 - len(fill[gi]) if gi < 19 else len(sc)
            for _ in range(max(room, 0)):
                if sc: fill[gi].append(sc.pop(0))
            gi += 1
    def top_half(wait, groups, pre=None, slots=(3, 7, 11, 15, 19)):
        A(f"s_waitcnt vmcnt({wait}) lgkmcnt(0)")
        if pre: pre(A)
        A("s_barrier")
        fill, rest = spread(qkv_reads(0, FA_), slots, groups, [])
        weave(A, qkv_mfmas(FB_, isq), fill)
        return rest
    def bot_half(adv, tail, groups=[], slots=(2, 6, 10, 13)):
        A("s_waitcnt lgkmcnt(0)")
        fill, rest = spread(qkv_reads(1, FB_), slots, groups, [])
        assert not rest
        put_scal(fill, rdadv + upd, 9)
        put_scal(fill, (qkv_adv() if adv else []) + tail, 14)
        weave(A, qkv_mfmas(FA_, isq), fill)
    for x in upd: A(x)
    stamp(A, pfx + "_setup")
    emit_dma_block(A, qkv_dma())
    for x in qkv_adv(): A(x)
    stamp(A, pfx + "_issued")
    A("s_waitcnt vmcnt(9)")
    A("s_barrier")
    stamp(A, pfx + "_first")
    for x in qkv_reads(0, FA_): A(x)
    emit_dma_block(A, qkv_dma()[:7])
    A(f"s_branch {pfx}_mid")
    A(".p2align 3")
    A.label(f"{pfx}_loop")
    outl = []
    for k, (c, fn) in enumerate(blk):
        A(f"s_cmp_eq_u32 s{sCNT}, {c}")
        A(f"s_cbranch_scc1 {pfx}_blk{k}")
    A.label(f"{pfx}_noblk")
    rest = top_half(9, qkv_dma())
    assert len(rest) == 5
    A.label(f"{pfx}_mid")
    bot_half(True, [f"s_add_u32 s{sCNT}, s{sCNT}, 1", f"s_cmp_lt_u32 s{sCNT}, 8"], rest)
    A(f"s_cbranch_scc1 {pfx}_loop")
    for it in (8, 9):
        g, w = extras.get(it, ([], 9 if it == 8 else 0))
        sl = (1, 3, 5, 8, 10, 12, 14, 16, 18) if len(g) > 14 else (2, 5, 8, 11, 14, 17)
        rest = top_half(w, g, pres.get(it), sl)
        bot_half(False, [], rest, sl)
    stamp(A, pfx + "_loop9")
    A("s_waitcnt lgkmcnt(0)")
    if isq:
        for m in qkv_mfmas(FB_, isq): A(m)
        A("s_nop 7")
        stamp(A, pfx + "_loopdone")
    def outline(A):
        for k, (c, fn) in enumerate(blk):
            A.label(f"{pfx}_blk{k}")
            fn(A)
            A(f"s_branch {pfx}_noblk")
    return outline

PAIRS = [(2,0),(3,0),(2,1),(3,1),(4,1),(3,2),(4,2)]
def kv_mask(i):
    te, tc = PAIRS[i]; m = 0
    for l in range(64):
        c = 16*tc + l % 16; e = [-8, 8, 24][te-2] + 4*(l//16)
        if c < 40 and e >= 0 and c//20 == e//20: m |= 1 << l
    return m

KVB = [sum(bin(kv_mask(j)).count("1") for j in range(i)) for i in range(8)]
def kv_rank(A, dst, i, shift, add=0):
    m = kv_mask(i)
    A(f"s_mov_b32 s85, {m & 0xffffffff:#x}")
    A(f"s_mov_b32 s86, {m >> 32:#x}")
    A(f"v_mbcnt_lo_u32_b32 v{dst}, s85, {KVB[i]}" if KVB[i] <= 64 else f"v_mov_b32 v{dst}, {KVB[i]}\nv_mbcnt_lo_u32_b32 v{dst}, s85, v{dst}")
    A(f"v_mbcnt_hi_u32_b32 v{dst}, s86, v{dst}")
    A(f"v_lshlrev_b32 v{dst}, {shift}, v{dst}")
    if add: A(f"v_add_u32 v{dst}, {add}, v{dst}")
vKR = 246
def phi4(A, b, T, dst=None):
    dst = b if dst is None else dst
    A(f"v_pk_mul_f32 {vr(T,2)}, {vr(b,2)}, s[{sL2}:{sL2+1}]")
    A(f"v_pk_mul_f32 {vr(T+2,2)}, {vr(b+2,2)}, s[{sL2}:{sL2+1}]")
    for i in range(4): A(f"v_exp_f32 v{T+i}, v{T+i} clamp")
    for i in range(4): A(f"v_max_f32 v{dst+i}, {EPS6:#x}, v{b+i}")
    A(f"v_pk_add_f32 {vr(dst,2)}, {vr(dst,2)}, {vr(T,2)}")
    A(f"v_pk_add_f32 {vr(dst+2,2)}, {vr(dst+2,2)}, {vr(T+2,2)}")
sL2 = 88
vEW, vEZ, vER, sKVS = 250, 251, 252, 26
def kv_esetup(A):
    A(f"s_lshl_b32 s85, s{sBp}, 1")
    A(f"s_add_u32 s85, s85, s{sWC_}")
    A("s_lshl_b32 s86, s85, 4")
    A(f"s_add_u32 s86, s86, s{sA}")
    A("s_lshl_b32 s87, s86, 8")
    A(f"s_mul_i32 s{sKVS}, s86, 3200")
    A(f"s_sub_u32 s87, s87, s{sKVS}")
    A(f"s_add_u32 s87, s87, {WS_ZP - WS_KVP:#x}")
    A("s_lshr_b32 s87, s87, 4")
    A(f"s_add_u32 s{sKVS}, s{sKVS}, {WS_KVP:#x}")
    A("v_mov_b32 v2, 0x7ff00000")
    for k in range(4):
        mA = kv_mask(k); mB = kv_mask(4+k) if k < 3 else 0xffff
        A(f"s_cmp_eq_u32 s{sWR_}, 0")
        A(f"s_mov_b32 s92, {mB & 0xffffffff:#x}")
        A(f"s_cselect_b32 s92, {mA & 0xffffffff:#x}, s92")
        A(f"s_mov_b32 s93, {mB >> 32:#x}")
        A(f"s_cselect_b32 s93, {mA >> 32:#x}, s93")
        if k < 3: A(f"s_mov_b32 s88, {KVB[4+k]}")
        A(f"s_cselect_b32 s88, {KVB[k]}, s{88 if k < 3 else 87}")
        A(f"v_mov_b32 v{vKR+k}, s88")
        A(f"v_mbcnt_lo_u32_b32 v{vKR+k}, s92, v{vKR+k}")
        A(f"v_mbcnt_hi_u32_b32 v{vKR+k}, s93, v{vKR+k}")
        A(f"v_lshlrev_b32 v{vKR+k}, 4, v{vKR+k}")
        A(f"v_cndmask_b32 v{vKR+k}, v2, v{vKR+k}, s[92:93]")
    A(f"s_mul_i32 s85, s{sWAVE}, 8448")
    A(f"s_add_u32 s85, s85, {LDS_RED}")
    A(f"v_add_u32 v{vEW}, s85, v{vB0}")
    A(f"v_lshl_add_u32 v{vEZ}, v1, 2, s85")
    A(f"s_mul_i32 s85, s{sWC_}, 8448")
    A(f"s_lshl_b32 s86, s{sWR_}, 12")
    A("s_add_u32 s85, s85, s86")
    A(f"s_add_u32 s85, s85, {LDS_RED}")
    A(f"v_add_u32 v{vER}, s85, v{vB0}")
    A("v_and_b32 v2, 15, v1")
    A(f"v_cmp_gt_u32 s[{sMK}:{sMK+1}], 8, v2")
    A("v_cmp_lt_u32 s[64:65], 15, v1")
    A("v_cmp_lt_u32 s[66:67], 31, v1")
def kv_estream():
    PB, KA, ONE, TMP = 128, 168, 208, 212
    E = [Asm(), Asm(), Asm(), Asm()]
    A = E[0]
    A(f"s_mov_b32 s{sL2}, {LOG2E:#x}")
    A(f"s_mov_b32 s{sL2+1}, {LOG2E:#x}")
    for i in range(4): A(f"v_mov_b32 v{ONE+i}, 0x3f803f80")
    for st in range(4):
        A = E[st // 2]
        for t in range(3):
            b = ACC + (st*5+t)*4
            if t < 2: phi4(A, b, TMP)
            else:
                phi4(A, b, TMP, TMP+4)
                for i in range(4): A(f"v_cndmask_b32 v{b+i}, v{b+i}, v{TMP+4+i}, s[{sMK}:{sMK+1}]")
        for t in range(5):
            b = ACC + (st*5+t)*4
            d = PB + (t*2 + st//2)*4 + (st & 1)*2
            A(f"v_cvt_pk_bf16_f32 v{d}, v{b}, v{b+1}")
            A(f"v_cvt_pk_bf16_f32 v{d+1}, v{b+2}, v{b+3}")
        if st & 1:
            sp = st // 2
            A("s_nop 1")
            for tc in range(3):
                c = vr(KA+4*(7+tc), 4)
                A(f"v_mfma_f32_16x16x32_bf16 {c}, {vr(ONE,4)}, {vr(PB+(tc*2+sp)*4,4)}, {c if sp else 0}")
            for i, (te, tc) in enumerate(PAIRS):
                c = vr(KA+4*i, 4)
                A(f"v_mfma_f32_16x16x32_bf16 {c}, {vr(PB+(te*2+sp)*4,4)}, {vr(PB+(tc*2+sp)*4,4)}, {c if sp else 0}")
    A = E[1]
    A("s_nop 0")
    A(f"v_cndmask_b32 v{KA+28}, v{KA+28}, v{KA+32}, s[64:65]")
    A(f"v_cndmask_b32 v{KA+28}, v{KA+28}, v{KA+36}, s[66:67]")
    A(f"ds_write_b32 v{vEZ}, v{KA+28} offset:7168")
    for i in range(7): A(f"ds_write_b128 v{vEW}, {vr(KA+4*i,4)} offset:{1024*i}")
    A = E[2]
    for k in range(4):
        A(f"ds_read_b128 {vr(PB+8*k,4)}, v{vER} offset:{1024*k}")
        A(f"ds_read_b128 {vr(PB+8*k+4,4)}, v{vER} offset:{1024*k + 16896}")
    A = E[3]
    A("s_waitcnt lgkmcnt(0)")
    for k in range(4):
        for i in (0, 2): A(f"v_pk_add_f32 {vr(PB+8*k+i,2)}, {vr(PB+8*k+i,2)}, {vr(PB+8*k+4+i,2)}")
    for k in range(4):
        A(f"buffer_store_dwordx4 {vr(PB+8*k,4)}, v{vKR+k}, s[{sWS}:{sWS+3}], s{sKVS} offen sc1")
    return [e.lines for e in E]

def w1_setup(A, locbase, vreg):
    A(f"s_sub_u32 s88, s82, {locbase}")
    A("s_lshl_b32 s88, s88, 2")
    A(f"s_add_u32 s88, s88, s{sWAVE}")
    A(f"v_and_b32 v{vreg}, 31, v1")
    A(f"v_mul_u32_u24 v{vreg}, 3072, v{vreg}")
    A("v_lshrrev_b32 v3, 5, v1")
    A(f"v_lshl_add_u32 v{vreg}, v3, 9, v{vreg}")
    A(f"s_mul_i32 s85, s88, {32*3072}")
    A("s_lshl_b32 s86, s83, 7")
    A("s_add_u32 s85, s85, s86")
    A(f"s_mul_i32 s86, s84, {1024*3072}")
    A("s_add_u32 s26, s86, s85")
    A("s_xor_b32 s87, s84, 1")
    A(f"s_mul_i32 s87, s87, {1024*3072}")
    A("s_add_u32 s27, s87, s85")

def w2_prefetch(A, locbase, parts):
    A(f"s_sub_u32 s85, s82, {locbase}")
    A("s_lshl_b32 s85, s85, 2")
    A(f"s_add_u32 s85, s85, s{sWAVE}")
    if OPT["fmap"]:
        A("v_lshrrev_b32 v2, 2, v1")
        A("v_lshlrev_b32 v2, 12, v2")
        A("v_and_b32 v3, 3, v1")
        A(f"v_lshl_add_u32 v2, v3, {10 if OPT['fmap'] == 1 else 7}, v2")
        A(f"s_mul_i32 s85, s85, {48*4096}")
        A(f"s_lshl_b32 s86, s81, {7 if OPT['fmap'] == 1 else 9}")
        A("s_add_u32 s85, s85, s86")
        if parts[0]: A(f"s_add_u32 s85, s85, {16*4096*parts[0]}")
        for i in parts:
            A(f"buffer_load_dword a255, v2, s[{sW2}:{sW2+3}], s85 offen")
            if i != parts[-1]: A(f"s_add_u32 s85, s85, {16*4096}")
        return
    if OPT["w2c"]:
        A("s_lshl_b32 s86, s81, 5")
        A("s_add_u32 s85, s85, s86")
        A("s_lshl_b32 s85, s85, 13")
        if parts[0]: A(f"s_add_u32 s85, s85, {(8192*256)*parts[0]}")
        for i in parts:
            A(f"buffer_load_dword a255, v15, s[{sW2}:{sW2+3}], s85 offen")
            if i != parts[-1]: A(f"s_add_u32 s85, s85, {8192*256}")
        return
    A("v_lshrrev_b32 v2, 3, v1")
    A("v_lshlrev_b32 v2, 12, v2")
    A("v_and_b32 v3, 7, v1")
    A("v_lshl_add_u32 v2, v3, 7, v2")
    A("s_mul_i32 s85, s85, 24")
    A("s_mul_i32 s86, s84, 768")
    A("s_add_u32 s85, s85, s86")
    A(f"s_add_u32 s85, s85, {8*parts[0]}")
    A("s_lshl_b32 s85, s85, 12")
    A("s_lshl_b32 s86, s83, 10")
    A("s_add_u32 s85, s85, s86")
    for i in parts:
        A(f"buffer_load_dword a255, v2, s[{sW2}:{sW2+3}], s85 offen")
        if i != parts[-1]: A(f"s_add_u32 s85, s85, {8*4096}")

QCB = [0, 16, 32, 40, 56]
QDP = [(0,0),(0,1),(1,0),(1,1),(1,2),(2,1),(2,2),(2,4),(3,3),(3,4),(4,2),(4,3),(4,4)]
sMA, sZO, sKO, sPQ, sWOo, sGo = 56, 58, 59, 64, 67, 23
vWOd, vWOt, vZA, vKP, vGo, vT1 = 248, 246, 252, 245, 25, 244
MSK = 194
def q_setup(A):
    T = 128
    A(f"s_mul_i32 s{sWOo}, s{sU}, {40*1280}")
    A(f"s_mul_i32 s86, s{sNR}, 320")
    A(f"s_add_u32 s{sWOo}, s{sWOo}, s86")
    A(f"s_lshl_b32 s86, s{sWAVE}, 8")
    for n in range(4):
        A(f"v_add_u32 v2, {64*n}, v1")
        A("v_add_u32 v2, s86, v2")
        A("v_mul_u32_u24 v3, 3277, v2")
        A("v_lshrrev_b32 v3, 16, v3")
        A("v_mul_u32_u24 v4, 20, v3")
        A("v_sub_u32 v4, v2, v4")
        A("v_mul_u32_u24 v3, 1280, v3")
        A(f"v_lshl_add_u32 v{vWOd+n}, v4, 4, v3")
        if n: A(f"v_subrev_u32 v{vWOd+n}, {1024*n}, v{vWOd+n}")
    A("v_and_b32 v3, 15, v1")
    A("v_lshrrev_b32 v4, 4, v1")
    A(f"v_lshlrev_b32 v{vGo}, 2, v3")
    A(f"s_lshl_b32 s86, s{sA}, 9")
    A(f"s_lshl_b32 s87, s{sWR_}, 8")
    A("s_add_u32 s86, s86, s87")
    A(f"s_add_u32 s{sGo}, s86, {WS_G:#x}")
    A("v_bfe_u32 v5, v1, 1, 2")
    A(f"s_lshl_b32 s85, s{sWAVE}, 2")
    A("v_add_lshl_u32 v5, v5, s85, 3")
    A("v_and_b32 v6, 1, v1")
    A(f"s_lshl_b32 s85, s{sBp}, 1")
    A("v_add3_u32 v5, v5, v6, s85")
    A(f"v_lshlrev_b32 v{vKP}, 7, v5")
    A("v_lshrrev_b32 v5, 2, v3")
    A("v_lshl_add_u32 v5, v4, 2, v5")
    A("v_and_b32 v6, 7, v5")
    A("v_mul_u32_u24 v6, 320, v6")
    A("v_mul_u32_u24 v5, 320, v5")
    A("v_and_b32 v7, 3, v1")
    A("v_lshlrev_b32 v7, 3, v7")
    A(f"s_lshl_b32 s86, s{sWAVE}, 5")
    A("v_add_u32 v7, s86, v7")
    A(f"v_add_u32 v{vWOt}, v6, v7")
    A(f"v_add_u32 v{vWOt+1}, v5, v7")
    A(f"s_lshr_b32 s86, s{sU}, 2")
    A("s_mul_i32 s86, s86, 5")
    A(f"s_bfe_u32 s87, s{sU}, 0x10001")
    A(f"s_and_b32 s88, s{sU}, 1")
    A("s_mul_i32 s89, s87, 3")
    A("s_add_u32 s89, s89, s88")
    A("s_add_u32 s89, s89, s86")
    A(f"s_mul_i32 s{sMA}, s89, 40960")
    A("s_add_u32 s86, s86, 2")
    A(f"s_mul_i32 s{sMA+1}, s86, 40960")
    A("s_lshl_b32 s87, s87, 3")
    A("s_lshl_b32 s88, s88, 9")
    A(f"s_add_u32 s{sMA+1}, s{sMA+1}, s87")
    A(f"s_add_u32 s{sMA+1}, s{sMA+1}, s88")
    A(f"s_mul_i32 s86, s{sNR}, 10240")
    A(f"s_lshl_b32 s87, s{sWAVE}, 10")
    A("s_add_u32 s86, s86, s87")
    A(f"s_add_u32 s86, s86, {WS_M:#x}")
    A(f"s_add_u32 s{sMA}, s{sMA}, s86")
    A(f"s_add_u32 s{sMA+1}, s{sMA+1}, s86")
    A(f"s_lshl_b32 s85, s{sA}, 1")
    A(f"s_add_u32 s85, s85, s{sWR_}")
    A("s_mul_i32 s85, s85, 20")
    A(f"s_mul_i32 s86, s{sBp}, 5")
    A("s_add_u32 s85, s85, s86")
    A("s_lshl_b32 s85, s85, 12")
    A(f"s_add_u32 s85, s85, {WS_PQ:#x}")
    A(f"s_mul_i32 s86, s{sWC_}, {3*4096}")
    A(f"s_add_u32 s{sPQ}, s86, s85")
    A(f"s_add_u32 s{sPQ+1}, s{sPQ}, 4096")
    A(f"s_lshl_b32 s88, s{sWC_}, 3")
    A("s_add_u32 s88, s88, s85")
    A(f"s_add_u32 s{sPQ+2}, s88, 8192")
    A(f"v_add_u32 v5, s{sWAVE}, v1")
    A(f"s_mul_i32 s85, s{sWAVE}, 9")
    A("v_add_u32 v5, s85, v5")
    A("v_lshrrev_b32 v6, 2, v5")
    A("v_and_b32 v5, 3, v5")
    A("v_lshlrev_b32 v5, 7, v5")
    A("v_lshl_add_u32 v5, v6, 10, v5")
    A(f"s_sub_u32 s85, s{sMA+1}, s87")
    A("s_and_b32 s85, s85, 0xffffff80")
    A("v_add_u32 v5, s85, v5")
    A(f"s_and_b32 s85, s{sPQ+2}, 0xffffff80")
    A(f"s_lshl_b32 s86, s{sWC_}, 11")
    A("s_add_u32 s85, s85, s86")
    A("v_lshlrev_b32 v6, 7, v3")
    A("v_add_u32 v6, s85, v6")
    A("v_cmp_gt_u32 vcc, 10, v1")
    A("s_nop 1")
    A(f"v_cndmask_b32 v{vT1}, v6, v5, vcc")
    A(f"v_mov_b32 v{T}, {LDS_RED + 1600}")
    for i in range(7):
        kv_rank(A, 26+i, i, 3, LDS_RED)
        A(f"s_mov_b32 s92, s85")
        A(f"s_mov_b32 s93, s86")
        A(f"v_cndmask_b32 v{26+i}, v{T}, v{26+i}, s[92:93]")
    cb = QCB
    for t in range(5):
        A(f"v_lshl_add_u32 v{T+t}, v4, 2, {cb[t]}")
        A(f"v_add_u32 v{T+5+t}, {cb[t]}, v3")
        if t == 2:
            A("v_lshrrev_b32 v5, 1, v4")
            A(f"v_lshl_add_u32 v{T+t}, v5, 5, v{T+t}")
            A("v_mul_u32_u24 v7, 4064, v5")
            A("v_lshrrev_b32 v5, 3, v3")
            A(f"v_lshl_add_u32 v{T+5+t}, v5, 5, v{T+5+t}")
        A(f"v_mul_u32_u24 v{T+t}, 205, v{T+t}")
        A(f"v_lshrrev_b32 v{T+t}, 12, v{T+t}")
        A(f"v_mul_u32_u24 v{T+5+t}, 205, v{T+5+t}")
        A(f"v_lshrrev_b32 v{T+5+t}, 12, v{T+5+t}")
    for k, (tp, t) in enumerate(QDP):
        A(f"v_cmp_eq_u32 vcc, v{T+t}, v{T+5+tp}")
        A("s_nop 1")
        A(f"v_cndmask_b32 v{MSK+k}, 0, -1, vcc")
    A("v_lshlrev_b32 v5, 8, v3")
    A(f"v_lshl_add_u32 v{vZA}, v4, 4, v5")
    A(f"v_add_u32 v{vZA+2}, v7, v{vZA}")
    A(f"v_add_u32 v{vZA+1}, 4096, v{vZA}")
    A(f"s_lshl_b32 s86, s{sBp}, 14")
    A(f"s_lshl_b32 s87, s{sWC_}, 13")
    A("s_add_u32 s86, s86, s87")
    A(f"s_add_u32 s{sZO}, s86, {WS_ZP:#x}")
    A(f"s_mul_i32 s89, s{sU}, {16*3200}")
    A(f"s_mul_i32 s87, s{sWAVE}, 800")
    A("s_add_u32 s87, s87, s89")
    A(f"s_add_u32 s{sKO}, s87, {WS_KVP:#x}")
    if OPT["qw2"]:
        A("s_sub_u32 s85, s82, 16")
        A("s_lshl_b32 s85, s85, 2")
        A(f"s_add_u32 s85, s85, s{sWAVE}")
        A("s_lshl_b32 s86, s81, 5")
        A("s_add_u32 s85, s85, s86")
        A("s_lshl_b32 s85, s85, 13")
        A(f"s_add_u32 s99, s85, {8192*256*(3 - OPT['qw2'])}")
def q_pf_only(A):
    for k in range(3 - OPT["qw1n"], 3):
        A(f"buffer_load_dword a255, v12, s[{sW1}:{sW1+3}], s26 offen offset:{1024*k}")
def q_loop_pf(A):
    if OPT["qw1"] == 0:
        A("s_mov_b32 exec_lo, 0xffff03ff")
        A("s_mov_b32 exec_hi, 0")
        A(f"buffer_load_dword a255, v{vT1}, s[{sWS}:{sWS+3}], 0 offen sc1")
        A("s_mov_b64 exec, -1")
        return
    for k in range(3 - OPT["qw1n"], 3):
        A(f"buffer_load_dword a255, v12, s[{sW1}:{sW1+3}], s26 offen offset:{1024*k}")
    if OPT["qw1b"]:
        for k in range(3): A(f"buffer_load_dword a255, v12, s[{sW1}:{sW1+3}], s27 offen offset:{1024*k}")
    for k in range(OPT["qw2"]):
        A(f"buffer_load_dword a255, v15, s[{sW2}:{sW2+3}], s99 offen")
        A(f"s_add_u32 s99, s99, {8192*256}")
    if OPT["touch"] and not OPT["qdefer"]:
        A("s_mov_b32 exec_lo, 0xffff03ff")
        A("s_mov_b32 exec_hi, 0")
        A(f"buffer_load_dword a255, v{vT1}, s[{sWS}:{sWS+3}], 0 offen sc1")
        A("s_mov_b64 exec, -1")
def q_extras():
    g8 = [[poll_ld(vPO, 24)], [f"s_lshl_b32 m0, s{sWAVE}, 12"]] + [[f"buffer_load_dwordx4 v{vWOd+n}, s[{sWO}:{sWO+3}], s{sWOo} offen offset:{1024*n} lds"] for n in range(4)]
    g9 = [[f"buffer_load_dword v{8+st}, v{vGo}, s[{sWS}:{sWS+3}], s{sGo} offen offset:{64*st} sc1"] for st in range(4)]
    return {8: (g8, 9), 9: (g9, 0)}

def q_epilogue(A):
    PK, Z, AF, ZP, G = 128, 168, 168, 16, 8
    KA_, DEN, OUT, TMP = 48, 204+0, 224, 112
    WBa, KVa = 0, 20
    cb, dp = QCB, QDP
    A(f"s_mov_b32 s24, {FL_KV:#x}")
    for i in range(3):
        A(f"ds_read_b64_tr_b16 {ar(WBa+6*i,2)}, v{vWOt} offset:{128*i}")
        A(f"ds_read_b64_tr_b16 {ar(WBa+6*i+2,2)}, v{vWOt+1} offset:{128*i + 8*320}")
        A(f"ds_read_b64_tr_b16 {ar(WBa+6*i+4,2)}, v{vWOt+1} offset:{128*i + 24*320}")
    A(f"v_mov_b32 v2, {LDS_RED + 1600}")
    A("v_mov_b64 v[4:5], 0")
    A("ds_write_b64 v2, v[4:5]")
    A(f"s_mov_b32 s{sL2}, {LOG2E:#x}")
    A(f"s_mov_b32 s{sL2+1}, {LOG2E:#x}")
    for k, b in enumerate(range(ACC, ACC+80, 4)):
        if k == 12: A(poll_ld(vKP, 24))
        phi4(A, b, 208)
        A(f"v_cvt_pk_bf16_f32 v{PK+2*k}, v{b}, v{b+1}")
        A(f"v_cvt_pk_bf16_f32 v{PK+2*k+1}, v{b+2}, v{b+3}")
    stamp(A, "q_pre")
    A("s_waitcnt vmcnt(0) lgkmcnt(0)")
    poll_check(A, "pkv", vKP, 24)
    A("s_barrier")
    stamp(A, "q_kvok")
    for t in range(5):
        A(f"buffer_load_dwordx4 {vr(Z+4*t,4)}, v{vZA+[0,0,2,1,1][t]}, s[{sWS}:{sWS+3}], s{sZO} offen offset:{[0,64,128,0,64][t]} sc1")
    kvl = []
    for rb in range(0, 16, 2):
        kvl.append(["s_mov_b32 exec_hi, 0x3ffff",
                    f"buffer_load_dwordx4 {vr(KA_+4*rb,4)}, v{vB0}, s[{sWS}:{sWS+3}], s{sKO} offen sc1",
                    f"buffer_load_dwordx4 {vr(KA_+4*rb+4,4)}, v{vB0}, s[{sWS}:{sWS+3}], s{sKO} offen offset:3200 sc1",
                    "s_mov_b32 exec_hi, -1", f"s_add_u32 s{sKO}, s{sKO}, 6400"])
    def kv(n):
        for _ in range(n):
            if kvl:
                for x in kvl.pop(0): A(x)
    kv(2)
    A("s_waitcnt vmcnt(4)")
    stamp(A, "q_z")
    for rot in (8, 4, 2, 1):
        kv(1)
        for i in range(20):
            A(f"v_add_f32_dpp v{Z+i}, v{Z+i}, v{Z+i} row_ror:{rot} row_mask:0xf bank_mask:0xf")
    for i in range(10): A(f"v_cvt_pk_bf16_f32 v{ZP+i}, v{Z+2*i}, v{Z+2*i+1}")
    kv(2)
    for k, (tp, t) in enumerate(dp):
        A(f"v_and_b32 v{AF+2*k}, v{MSK+k}, v{ZP+2*t}")
        A(f"v_and_b32 v{AF+2*k+1}, v{MSK+k}, v{ZP+2*t+1}")
    A("s_nop 0")
    DEN2 = 224
    def den(st, Dn):
        seen = set()
        for k, (tp, t) in enumerate(dp):
            c = vr(Dn + 4*tp, 4)
            A(f"v_mfma_f32_16x16x16_bf16 {c}, {vr(AF+2*k,2)}, {vr(PK+(st*5+t)*2,2)}, {c if tp in seen else 0}")
            seen.add(tp)
    den(0, DEN)
    for st in range(4):
        Dn = DEN if (st & 1) == 0 else DEN2
        o = OUT
        U = TMP + 10
        if st < 3: den(st + 1, DEN2 if (st & 1) == 0 else DEN)
        else: A("s_nop 7")
        kv(OPT["kvr"])
        for tp in range(5): A(f"v_add_f32 v{TMP+2*tp}, {EPS6:#x}, v{Dn+4*tp}")
        for tp in range(5): A(f"v_rcp_f32 v{TMP+2*tp}, v{TMP+2*tp}")
        A("s_nop 0")
        for tp in range(5): A(f"v_mul_f32 v{TMP+2*tp}, v{TMP+2*tp}, v{G+st}")
        for tp in range(5):
            p = PK + (st*5+tp)*2
            if tp == 2: kv(OPT["kvr"])
            A(f"v_lshlrev_b32 v{U}, 16, v{p}")
            A(f"v_and_b32 v{U+1}, 0xffff0000, v{p}")
            A(f"v_lshlrev_b32 v{U+2}, 16, v{p+1}")
            A(f"v_and_b32 v{U+3}, 0xffff0000, v{p+1}")
            A(f"v_pk_mul_f32 {vr(U,2)}, {vr(U,2)}, {vr(TMP+2*tp,2)} op_sel_hi:[1,0]")
            A(f"v_pk_mul_f32 {vr(U+2,2)}, {vr(U+2,2)}, {vr(TMP+2*tp,2)} op_sel_hi:[1,0]")
            A(f"v_cvt_pk_bf16_f32 v{p}, v{U}, v{U+1}")
            A(f"v_cvt_pk_bf16_f32 v{p+1}, v{U+2}, v{U+3}")
        p = PK + st*10
        A(f"buffer_store_dwordx4 {vr(p,4)}, v{vB0}, s[{sWS}:{sWS+3}], s{sPQ} offen offset:{1024*st} sc1")
        A(f"buffer_store_dwordx4 {vr(p+6,4)}, v{vB0}, s[{sWS}:{sWS+3}], s{sPQ+1} offen offset:{1024*st} sc1")
        A(f"buffer_store_dwordx2 {vr(p+4,2)}, v{vB0}, s[{sWS}:{sWS+3}], s{sPQ+2} offen offset:{1024*st} sc1")
    assert not kvl
    stamp(A, "q_pq")
    A("s_waitcnt vmcnt(12)")
    stamp(A, "q_kv")
    for w in (32, 16, 8, 4):
        for i in range(0, w, 2):
            A(f"v_pk_add_f32 {vr(KA_+i,2)}, {vr(KA_+i,2)}, {vr(KA_+w+i,2)}")
    A(f"s_mul_i32 s86, s{sWAVE}, 400")
    A(f"s_add_u32 s86, s86, {LDS_RED}")
    A("v_lshlrev_b32 v7, 3, v1")
    A("v_add_u32 v7, s86, v7")
    A(f"v_cvt_pk_bf16_f32 v{KA_}, v{KA_}, v{KA_+1}")
    A(f"v_cvt_pk_bf16_f32 v{KA_+1}, v{KA_+2}, v{KA_+3}")
    A("s_mov_b32 exec_hi, 0x3ffff")
    A(f"ds_write_b64 v7, {vr(KA_,2)}")
    A("s_mov_b32 exec_hi, -1")
    A("s_waitcnt lgkmcnt(0)")
    A("s_barrier")
    stamp(A, "q_bar")
    for i in range(7): A(f"ds_read_b64 {ar(KVa+2*i,2)}, v{26+i}")
    A("s_waitcnt lgkmcnt(0)")
    MD = 64
    for i in range(3):
        seen = set()
        for k, (te, tc) in enumerate(PAIRS):
            c = vr(MD + (i*3+tc)*4, 4)
            A(f"v_mfma_f32_16x16x16_bf16 {c}, {ar(KVa+2*k,2)}, {ar(WBa+6*i+2*(te-2),2)}, {c if tc in seen else 0}")
            seen.add(tc)
    for i in range(3):
        if i == 2:
            A(f"s_cmp_ge_u32 s{sWAVE}, 2")
            A("s_cbranch_scc1 q_m_done")
            A("s_nop 2")
        b = MD + i*12
        for k in range(6): A(f"v_cvt_pk_bf16_f32 v{b+k}, v{b+2*k}, v{b+2*k+1}")
        A(f"buffer_store_dwordx4 {vr(b,4)}, v{vB0}, s[{sWS}:{sWS+3}], s{sMA} offen sc1")
        A("s_mov_b32 exec_hi, 0")
        A(f"buffer_store_dwordx2 {vr(b+4,2)}, v{vB0}, s[{sWS}:{sWS+3}], s{sMA+1} offen sc1")
        A("s_mov_b32 exec_hi, -1")
        A(f"s_add_u32 s{sMA}, s{sMA}, 4096")
        A(f"s_add_u32 s{sMA+1}, s{sMA+1}, 4096")
    A.label("q_m_done")
    stamp(A, "q_mdone")

def ln_role(A, after_loads, ne):
    X, GW, D = 48, 88, 128
    A("v_lshrrev_b32 v2, 3, v1")
    A(f"s_lshl_b32 s85, s{sWAVE}, 3")
    A("v_add_u32 v2, s85, v2")
    A("v_and_b32 v3, 7, v1")
    A("v_lshlrev_b32 v3, 4, v3")
    A("v_mul_u32_u24 v4, 1280, v2")
    A("v_add_u32 v4, v4, v3")
    A(f"s_mul_i32 s85, s{sA}, {32*1280}")
    A("s_waitcnt lgkmcnt(0)"); srds(A, ["X", "GW"])
    for i in range(10):
        A(f"buffer_load_dwordx4 {vr(X+4*i,4)}, v4, s[{sX}:{sX+3}], s85 offen offset:{128*i}")
    for i in range(10):
        A(f"buffer_load_dwordx4 {vr(GW+4*i,4)}, v3, s[{sGW}:{sGW+3}], 0 offen offset:{128*i}")
    A("v_mul_u32_u24 v16, 1312, v2")
    A("v_add_u32 v16, v16, v3")
    A("v_lshlrev_b32 v17, 2, v2")
    after_loads(A)
    A("v_mov_b32 v5, 0x3f803f80")
    for i in range(4): A(f"v_mov_b32 v{8+i}, 0")
    A(f"s_waitcnt vmcnt({10+ne})")
    stamp(A, "ln_first")
    for i in range(40):
        A(f"v_dot2_f32_bf16 v{8+(i&1)}, v{X+i}, v5, v{8+(i&1)}")
    A(f"s_waitcnt vmcnt({ne})")
    for i in range(40):
        A(f"v_dot2_f32_bf16 v{10+(i&1)}, v{X+i}, v{GW+i}, v{10+(i&1)}")
    A("s_nop 2")
    A("v_add_f32 v8, v8, v9")
    A("v_add_f32 v10, v10, v11")
    def red8(r):
        for m in ("quad_perm:[1,0,3,2]", "quad_perm:[2,3,0,1]", "row_half_mirror"):
            A("s_nop 1")
            for x in r: A(f"v_add_f32_dpp v{x}, v{x}, v{x} {m} row_mask:0xf bank_mask:0xf")
    red8([8, 10])
    A(f"v_mul_f32 v8, {0xBACCCCCD:#x}, v8")
    A("v_mov_b32 v9, v8")
    A(f"v_mul_f32 v10, {LOG2E | 0x80000000:#x}, v10")
    A("v_exp_f32 v10, v10")
    for i in range(40):
        A(f"v_lshlrev_b32 v{D+2*i}, 16, v{X+i}")
        A(f"v_and_b32 v{D+2*i+1}, 0xffff0000, v{X+i}")
    A("v_add_f32 v10, 1.0, v10")
    A("v_rcp_f32 v10, v10")
    for i in range(40):
        A(f"v_pk_add_f32 {vr(D+2*i,2)}, {vr(D+2*i,2)}, v[8:9]")
    A("v_pk_mul_f32 v[18:19], v[128:129], v[128:129]")
    A("v_pk_mul_f32 v[20:21], v[130:131], v[130:131]")
    for i in range(2, 40):
        a = 18 + 2*(i & 1)
        A(f"v_pk_fma_f32 {vr(a,2)}, {vr(D+2*i,2)}, {vr(D+2*i,2)}, {vr(a,2)}")
    A("v_pk_add_f32 v[18:19], v[18:19], v[20:21]")
    A("ds_write_b32 v17, v10 offset:49152")
    A("v_add_f32 v18, v18, v19")
    red8([18])
    A(f"v_mov_b32 v19, {0x3727C5AC:#x}")
    A(f"v_fmac_f32 v19, {0x3ACCCCCD:#x}, v18")
    A("v_rsq_f32 v18, v19")
    A("s_nop 0")
    A("v_mov_b32 v19, v18")
    for i in range(40):
        A(f"v_pk_mul_f32 {vr(D+2*i,2)}, {vr(D+2*i,2)}, v[18:19]")
        A(f"v_cvt_pk_bf16_f32 v{X+i}, v{D+2*i}, v{D+2*i+1}")
        if (i & 3) == 3:
            A(f"ds_write_b128 v16, {vr(X+i-3,4)} offset:{128*(i//4)}")
    A("v_lshrrev_b32 v2, 2, v1")
    A("v_mul_u32_u24 v2, 1312, v2")
    A("v_and_b32 v3, 3, v1")
    A("v_lshl_add_u32 v2, v3, 3, v2")
    A(f"s_mul_i32 s85, s{sWAVE}, 320")
    A("v_add_u32 v2, s85, v2")
    A(f"s_mul_i32 s85, s{sA}, 40960")
    A(f"s_mul_i32 s86, s{sWAVE}, 10240")
    A("s_add_u32 s85, s85, s86")
    A("s_add_u32 s86, s85, 4096")
    A("s_add_u32 s87, s85, 8192")
    A("v_lshlrev_b32 v17, 2, v1")
    A(f"s_lshl_b32 s88, s{sA}, 7")
    A(f"s_add_u32 s88, s88, {WS_G:#x}")
    A("s_waitcnt lgkmcnt(0)")
    A("s_barrier")
    A(f"s_cmp_lg_u32 s{sWAVE}, 3")
    A("s_cbranch_scc1 ln_ng")
    A("ds_read_b32 v10, v17 offset:49152")
    A("s_waitcnt lgkmcnt(0)")
    A("s_mov_b32 exec_hi, 0")
    A(f"buffer_store_dword v10, v17, s[{sWS}:{sWS+3}], s88 offen sc1")
    A("s_mov_b32 exec_hi, -1")
    A.label("ln_ng")
    for t in range(10):
        A(f"ds_read_b64_tr_b16 {vr(D+4*t,2)}, v2 offset:{32*t}")
        A(f"ds_read_b64_tr_b16 {vr(D+4*t+2,2)}, v2 offset:{32*t + 16*1312}")
        if t == 6: A("s_waitcnt lgkmcnt(6)")
    for t in range(10):
        A(f"s_waitcnt lgkmcnt({min(2*(9-t), 6)})")
        A(f"buffer_store_dwordx4 {vr(D+4*t,4)}, v{vB0}, s[{sWS}:{sWS+3}], s{85 + t//4} offen offset:{1024*(t&3)} sc1")

def c_adv1(): return [f"s_add_u32 s{sC1}, s{sC1}, s{sCST}", f"s_cmp_eq_u32 s{sC1}, s{sCE1}", f"s_cselect_b32 s{sC1}, s{sCB1}, s{sC1}"]
def c_adv2(): return [f"s_add_u32 s{sC2}, s{sC2}, 40960", f"s_cmp_eq_u32 s{sC2}, s{sCE2}", f"s_cselect_b32 s{sC2}, s{sCB2}, s{sC2}"]
def c_wdma(slot):
    L = [[f"s_add_u32 m0, s{sCM0}, {4096*slot}"]]
    for q in range(4):
        L.append([f"buffer_load_dwordx4 v{vWS_+q}, s[{sCW}:{sCW+3}], s{sC1} offen offset:{1024*q} lds"])
    return L
def c_bload(slot, n):
    return f"buffer_load_dwordx4 {ar(BR+20*slot+4*n,4)}, v{vB0 if n < 4 else vB1}, s[{sWS}:{sWS+3}], s{sC2} offen offset:{1024*(n&3)} sc1"
def c_tr(slot, aset):
    return [f"ds_read_b64_tr_b16 {ar(AS+16*aset+4*t+2*j,2)}, v{vTR+t} offset:{4096*slot+2048*j}" for t in range(4) for j in range(2)]
def c_wring(A):
    for s in range(OPT["d"]):
        emit_dma_block(A, c_wdma(s))
        for x in c_adv1(): A(x)
def c_bring(A):
    for s in range(OPT["d"]):
        for n in range(5): A(c_bload(s, n))
        for x in c_adv2(): A(x)
def switch_to_fb(A):
    A(f"s_mov_b64 s[{sCW}:{sCW+1}], s[{sW2}:{sW2+1}]")
    A(f"s_mov_b64 s[{sCW+2}:{sCW+3}], s[{sW2+2}:{sW2+3}]")
    for i in range(4): A(f"v_mov_b32 v{vWS_+i}, v{vWS2+i}")
    A(f"s_mov_b32 s{sC1}, s{sF1}")
    A(f"s_mov_b32 s{sCB1}, s{sFB1}")
    A(f"s_mov_b32 s{sCE1}, s{sFE1}")
    A(f"s_mov_b32 s{sCST}, {32*4096}")

G1A = 112
def c_step(A, u, wait, doW, doB, doT, accf, w_is_A, drain=None, first=False, side=None, pre=[], late=None):
    DD = OPT["d"]
    A(f"s_waitcnt vmcnt({wait}) lgkmcnt(0)")
    for x in pre: A(x)
    tr = c_tr((u+1) & 3, (u+1) & 1) if doT else []
    mf = []
    for n in range(5):
        for t in range(4):
            w = ar(AS+16*(u & 1)+4*t, 4); b = ar(BR+20*u+4*n, 4); c = accf((t*5+n)*4)
            cin = "0" if first else c
            mf.append(f"v_mfma_f32_16x16x32_bf16 {c}, {w}, {b}, {cin}" if w_is_A else f"v_mfma_f32_16x16x32_bf16 {c}, {b}, {w}, {cin}")
    fill = [[] for _ in range(20)]
    sl = (u + DD) & 3
    wd = c_wdma(sl)
    post = []
    if doW:
        A(wd[0][0])
        for t in range(4): fill[t] += wd[1+t]
        fill[5 if drain else 12] += c_adv1()
    for k, x in enumerate(tr): fill[4+k].append(x)
    if doB:
        for n in range(5): fill[4*n+3].append(c_bload(sl, n))
        fill[19] += c_adv2()
    if side:
        per = -(-len(side) // 20)
        for g in range(20): fill[g] = side[g*per:(g+1)*per] + fill[g]
    if late:
        fill[13] += late[:9]
        post += late[9:]
    if drain:
        for n in range(3):
            for t in range(4): fill[4*(n+2)+t] += drain(n, t)
        post += ["s_nop 3"] + flat([drain(3, t) for t in range(4)]) + flat([drain(4, t) for t in range(4)])
    weave(A, mf, fill)
    for x in post: A(x)

def c_loop(A, pfx, nks, accf, w_is_A, isg1, drain):
    DD = OPT["d"]; W0 = 5 + 9*(DD-2)
    tail_next = isg1 and OPT["tailw"]
    A(".p2align 3")
    A.label(f"{pfx}_loop")
    if isg1 and OPT["lnmid"]:
        A(f"s_cmp_eq_u32 s{sCNT}, s{sPUB}")
        A("s_cbranch_scc1 g1_blk")
        A.label("g1_noblk")
    for u in range(4):
        c_step(A, u, W0, True, True, True, accf, w_is_A)
    if STAMPS:
        ng = nks//4 - 1
        i = _st["n"]; _st["n"] += ng; _st["names"] += [f"{pfx}_g{k}" for k in range(ng)]
        A("s_memtime s[100:101]")
        A("s_waitcnt lgkmcnt(0)")
        A(f"s_sub_u32 m0, {i + ng}, s{sCNT}")
        A("s_nop 0")
        A("v_writelane_b32 v47, s100, m0")
    A(f"s_sub_u32 s{sCNT}, s{sCNT}, 1")
    A(f"s_cmp_lg_u32 s{sCNT}, 0")
    A(f"s_cbranch_scc1 {pfx}_loop")
    seq = []
    for k in range(DD): seq += [("W", k)]*4 + [("B", k)]*5
    for u in range(4):
        need = max([i for i, (t, k) in enumerate(seq) if (t == "B" and k == u) or (t == "W" and k == u+1)])
        wait = len(seq) - 1 - need
        own = u < 4 - DD
        if isg1 and u == 4 - DD: switch_to_fb(A)
        nxt = tail_next and not own
        c_step(A, u, wait, own or nxt, own, u < 3, accf, w_is_A, drain if u == 3 else None)
        if own: seq += [("W", u+DD)]*4 + [("B", u+DD)]*5
        elif nxt: seq += [("N", 0)]*4
    stamp(A, pfx + "_loopdone")

sFA1, sFA2, sFR = 54, 55, 94
sUS = 52
vGE = 224
def fa_params(A):
    A(f"s_and_b32 s{sFR}, s{sFD}, 3")
    A(f"s_lshl_b32 s{sFR}, s{sFR}, 1")
    A(f"s_and_b32 s89, s{sFS}, 7")
    A(f"s_add_u32 s{sFR}, s{sFR}, s89")
    A(f"s_mul_i32 s89, s{sFR}, 52")
    A("s_lshr_b32 s89, s89, 8")
    A("s_mul_i32 s89, s89, 5")
    A(f"s_sub_u32 s{sFR}, s{sFR}, s89")
    if OPT["arot"] == 0: A(f"s_mov_b32 s{sFR}, 0")
    if OPT["arot"] == 2:
        A(f"s_add_u32 s{sFR}, s{sFS}, s{sFD}")
        A(f"s_and_b32 s{sFR}, s{sFR}, 1")
        A(f"s_mul_i32 s{sFR}, s{sFR}, 3")
    A(f"s_mul_i32 s86, s{sWAVE}, 5")
    A(f"s_add_u32 s86, s86, s{sFR}")
    A(f"s_mul_i32 s{sFA1}, s{sFS}, {0 if OPT.get('same') else 20}")
    A(f"s_add_u32 s{sFA1}, s{sFA1}, s86")
    A(f"s_lshl_b32 s{sFA1}, s{sFA1}, 12")
    A(f"s_add_u32 s{sFA1}, s{sFA1}, {WS_PQ:#x}")
    A(f"s_mul_i32 s{sFA2}, s86, 40960")
    A(f"s_mul_i32 s89, s{sFD}, {0 if OPT.get('same') else 5120}")
    A(f"s_add_u32 s{sFA2}, s{sFA2}, s89")
    A(f"s_add_u32 s{sFA2}, s{sFA2}, {WS_M:#x}")
fa_b = lambda i: 0 if i == 0 else 112 + 36*(i-1)
def fa_ld(A, i):
    for st in range(4):
        A(f"buffer_load_dwordx4 {ar(fa_b(i)+4*st,4)}, v{vB0}, s[{sWS}:{sWS+3}], s{sFA1} offen offset:{1024*st} sc1")
    for n in range(5):
        A(f"buffer_load_dwordx4 {ar(fa_b(i)+16+4*n,4)}, v{vB0 if n < 4 else vB1}, s[{sWS}:{sWS+3}], s{sFA2} offen offset:{1024*(n&3)} sc1")
    if i < 4:
        A(f"s_add_u32 s{sFA1}, s{sFA1}, 4096")
        A(f"s_add_u32 s{sFA2}, s{sFA2}, 40960")
        A(f"s_add_u32 s{sFR}, s{sFR}, 1")
        A(f"s_cmp_eq_u32 s{sFR}, 5")
        A(f"s_cselect_b32 s86, {5*4096}, 0")
        A(f"s_cselect_b32 s89, {5*40960}, 0")
        A(f"s_sub_u32 s{sFA1}, s{sFA1}, s86")
        A(f"s_sub_u32 s{sFA2}, s{sFA2}, s89")

def g1_params(A):
    W, Rr = vGE, vGE + 4
    A("v_and_b32 v2, 15, v1")
    A("v_lshrrev_b32 v3, 4, v1")
    A("v_xor_b32 v4, v2, v3")
    A("v_lshlrev_b32 v4, 4, v4")
    A("v_lshl_add_u32 v4, v2, 8, v4")
    A(f"s_mul_i32 s85, s{sWAVE}, 20480")
    A(f"s_add_u32 s85, s85, {LDS_RED}")
    A(f"v_add_u32 v{W}, s85, v4")
    for t in range(1, 4): A(f"v_xor_b32 v{W+t}, {64*t}, v{W}")
    A(f"s_and_b32 s85, s{sWAVE}, 1")
    A(f"s_lshr_b32 s86, s{sWAVE}, 1")
    A("s_lshl_b32 s87, s85, 7")
    A("v_xor_b32 v4, s87, v4")
    A("s_lshl_b32 s87, s86, 12")
    A(f"s_add_u32 s87, s87, {LDS_RED}")
    A(f"v_add_u32 v{Rr}, s87, v4")
    A(f"v_xor_b32 v{Rr+1}, 64, v{Rr}")
    A(f"v_add_u32 v{Rr+2}, 40960, v{Rr}")
    A(f"v_add_u32 v{Rr+3}, 40960, v{Rr+1}")
    A(f"s_lshl_b32 s87, s{sG1F}, 1")
    A("s_add_u32 s87, s87, s85")
    A("s_lshl_b32 s23, s87, 6")
    A("v_lshlrev_b32 v12, 3, v3")
    A("s_mul_i32 s87, s87, 40")
    A(f"s_mul_i32 s88, s{sG1D}, 5")
    A("s_add_u32 s87, s87, s88")
    A("s_add_u32 s87, s87, s86")
    A("s_lshl_b32 s87, s87, 10")
    A(f"s_add_u32 s{sUS}, s87, {WS_U:#x}")
    A(f"s_add_u32 s{sUS+1}, s{sUS}, 4096")
    A(f"s_mov_b32 s90, {0xBDD2D3E8:#x}")
    A(f"s_mov_b32 s91, {0xBDD2D3E8:#x}")
    A(f"v_mov_b32 v{vGE+8}, {0xC0135761:#x}")
    A(f"v_mov_b32 v{vGE+9}, {0xC0135761:#x}")
    fa_params(A)
def b1_loads():
    return [[f"buffer_load_dwordx2 {vr(vGE+18+2*j,2)}, v12, s[{sB1}:{sB1+3}], s23 offen offset:{32*j}"] for j in range(2)]
def zero_acc(A):
    for i in range(0, 80, 2): A(f"v_mov_b64 {vr(ACC+i,2)}, 0")

def g1_phase(A):
    c_loop(A, "g1", 16, lambda o: ar(G1A+o, 4), True, True, lambda n, t: [f"ds_write_b128 v{vGE+t}, {ar(G1A+(t*5+n)*4,4)} offset:{4096*n}"])
    for j in range(2):
        for k in range(2):
            A(f"v_lshlrev_b32 v{vGE+10+4*j+2*k}, 16, v{vGE+18+2*j+k}")
            A(f"v_and_b32 v{vGE+11+4*j+2*k}, 0xffff0000, v{vGE+18+2*j+k}")
    A("s_waitcnt lgkmcnt(0)")
    A("s_barrier")
    stamp(A, "g1_red")
    if OPT["lnpost"] == 2:
        A("s_cmp_lt_u32 s82, 24")
        A("s_cbranch_scc1 g1_nw2")
        w2_prefetch(A, 24, list(range(3 - OPT["lnpn"], 3)))
        A.label("g1_nw2")
    A(poll_ld(15, 25))
    R = 128
    def rd(r):
        for j in range(2):
            for part in range(4):
                A(f"ds_read_b128 {vr(R+32*r+16*j+4*part,4)}, v{vGE+4+j+2*(part>>1)} offset:{8192*r + 20480*(part&1)}")
    def fin(r):
        b = R + 32*r
        for j in range(2):
            x = b + 16*j
            for i in (0, 2):
                A(f"v_pk_add_f32 {vr(x+i,2)}, {vr(x+i,2)}, {vr(x+4+i,2)}")
                A(f"v_pk_add_f32 {vr(x+8+i,2)}, {vr(x+8+i,2)}, {vr(x+12+i,2)}")
        for j in range(2):
            x = b + 16*j
            for i in (0, 2): A(f"v_pk_add_f32 {vr(x+i,2)}, {vr(x+i,2)}, {vr(vGE+10+4*j+i,2)}")
        for j in range(2):
            x = b + 16*j
            for i in (0, 2): A(f"v_pk_add_f32 {vr(x+i,2)}, {vr(x+i,2)}, {vr(x+8+i,2)}")
        E = [b + 16*j + i for j in range(2) for i in range(4)]
        E2 = E[::2]
        for x in E2: A(f"v_pk_mul_f32 {vr(x+4,2)}, {vr(x,2)}, {vr(x,2)}")
        for x in E2: A(f"v_pk_fma_f32 {vr(x+4,2)}, {vr(x+4,2)}, s[90:91], {vr(vGE+8,2)}")
        for x in E2: A(f"v_pk_mul_f32 {vr(x+4,2)}, {vr(x+4,2)}, {vr(x,2)}")
        for x in E: A(f"v_exp_f32 v{x+4}, v{x+4}")
        for x in E2: A(f"v_pk_add_f32 {vr(x+4,2)}, {vr(x+4,2)}, 1.0 op_sel_hi:[1,0]")
        for x in E: A(f"v_rcp_f32 v{x+4}, v{x+4}")
        for x in E2: A(f"v_pk_mul_f32 {vr(x,2)}, {vr(x,2)}, {vr(x+4,2)}")
        for j in range(2):
            x = b + 16*j
            A(f"v_cvt_pk_bf16_f32 v{b+8+2*j}, v{x}, v{x+1}")
            A(f"v_cvt_pk_bf16_f32 v{b+9+2*j}, v{x+2}, v{x+3}")
        A(f"buffer_store_dwordx4 {vr(b+8,4)}, v{vB0}, s[{sWS}:{sWS+3}], s{sUS if r < 2 else sUS+1} offen offset:{2048*(r&1)} sc1")
    rd(0)
    A("s_waitcnt lgkmcnt(4)")
    rd(1)
    A("s_waitcnt lgkmcnt(8)")
    fin(0)
    A(f"s_cmp_ge_u32 s{sWAVE}, 2")
    A("s_cbranch_scc1 g1_e1")
    rd(2)
    A("s_waitcnt lgkmcnt(8)")
    fin(1)
    A("s_waitcnt lgkmcnt(0)")
    fin(2)
    A("s_branch g1_e2")
    A.label("g1_e1")
    A("s_waitcnt lgkmcnt(0)")
    fin(1)
    A.label("g1_e2")
    stamp(A, "g1_st")
    A("s_waitcnt vmcnt(3)")
    A(f"s_cmp_lt_u32 s{sWAVE}, 2")
    A("s_cbranch_scc1 g1_q0")
    A("s_waitcnt vmcnt(2)")
    A.label("g1_q0")
    A(f"s_mov_b32 s{sQOK}, 0")
    A(f"v_cmp_ne_u32 vcc, s{sNON}, v{vPOLL}")
    A("s_cbranch_vccnz g1_q1")
    A(f"s_mov_b32 s{sQOK}, 1")
    fa_ld(A, 0)
    A("s_waitcnt vmcnt(9)")
    A("s_branch g1_q2")
    A.label("g1_q1")
    if OPT["tailw"]: A("s_waitcnt vmcnt(0)")
    else:
        c_wring(A)
        A(f"s_waitcnt vmcnt({4*OPT['d']})")
    A.label("g1_q2")
    A(f"s_mul_i32 s88, s{sG1D}, 24")
    A(f"s_add_u32 s88, s88, s{sG1F}")
    publish(A, "pub_u", FL_G1, 88, None)
    stamp(A, "g1_pub")
    if OPT["lnpost"] == 1:
        A("s_cmp_lt_u32 s82, 24")
        A("s_cbranch_scc1 g1_nw2")
        w2_prefetch(A, 24, list(range(3 - OPT["lnpn"], 3)))
        A.label("g1_nw2")
    if not OPT["tailw"]:
        A(f"s_cmp_eq_u32 s{sQOK}, 0")
        A("s_cbranch_scc1 g1_q3")
        c_wring(A)
        A("s_branch f_go")
        A.label("g1_q3")
    else:
        A(f"s_cmp_lg_u32 s{sQOK}, 0")
        A("s_cbranch_scc1 f_go")
    A(poll_ld(15, 25))
    A("s_waitcnt vmcnt(0)")
    poll_check(A, "pq", 15, 25)

def f_setup1():
    B = Asm()
    B("v_and_b32 v5, 15, v1")
    B("v_lshlrev_b32 v6, 2, v5")
    B(f"s_lshl_b32 s23, s{sFS}, 8")
    B(f"s_add_u32 s23, s23, {WS_G:#x}")
    for st in range(4):
        B(f"buffer_load_dword v{8+st}, v6, s[{sWS}:{sWS+3}], s23 offen offset:{64*st} sc1")
    B("v_lshlrev_b32 v6, 1, v5")
    B(f"s_lshl_b32 s23, s{sFS}, 7")
    B(f"s_cmp_eq_u32 s{sWAVE}, 0")
    B("s_cselect_b32 s23, s23, 0x40000000")
    for st in range(4):
        B(f"buffer_load_ushort v{29+st}, v6, s[{sB2}:{sB2+3}], s23 offen offset:{32*st}")
    return B.lines
def f_setup2():
    B = Asm()
    for st in range(4):
        B(f"v_sub_f32 v{8+st}, 1.0, v{8+st}")
        B(f"v_lshlrev_b32 v{ACC+st*20}, 16, v{29+st}")
        B(f"v_lshlrev_b32 v{ACC+st*20+1}, 16, v{29+st}")
        for k in range(2, 20, 2): B(f"v_mov_b64 {vr(ACC+st*20+k,2)}, {vr(ACC+st*20,2)}")
    B("v_min_u32 v12, 23, v1")
    B("v_lshlrev_b32 v12, 7, v12")
    B(f"s_mul_i32 s23, s{sFD}, {24*128}")
    B(f"s_add_u32 s23, s23, {FL_G1:#x}")
    B("v_and_b32 v5, 15, v1")
    B("v_lshrrev_b32 v6, 4, v1")
    B("v_mul_u32_u24 v4, 336, v5")
    B("v_lshl_add_u32 v4, v6, 4, v4")
    B(f"s_mul_i32 s85, s{sWAVE}, 21504")
    B(f"s_add_u32 s85, s85, {LDS_RED}")
    B("v_add_u32 v4, s85, v4")
    B(f"s_mul_i32 s85, s{sWAVE}, {16*336}")
    B(f"s_add_u32 s85, s85, {LDS_RED}")
    B(f"s_lshl_b32 s95, s{sFS}, 2")
    B(f"s_add_u32 s95, s95, s{sWAVE}")
    B(f"s_mul_i32 s95, s95, {16*1280}")
    B(f"s_mul_i32 s87, s{sFD}, 160")
    B("s_add_u32 s95, s95, s87")
    for r in range(5):
        B(f"v_add_u32 v5, {64*r}, v1")
        B("v_mul_u32_u24 v6, 3277, v5")
        B("v_lshrrev_b32 v6, 16, v6")
        B("v_mul_u32_u24 v7, 20, v6")
        B("v_sub_u32 v7, v5, v7")
        B(f"v_mul_u32_u24 v{16+r}, 336, v6")
        B(f"v_lshl_add_u32 v{16+r}, v7, 4, v{16+r}")
        B(f"v_add_u32 v{16+r}, s85, v{16+r}")
        B(f"v_mul_u32_u24 v{24+r}, 1280, v6")
        B(f"v_lshl_add_u32 v{24+r}, v7, 3, v{24+r}")
    return B.lines

def f_phase(A):
    ACA = 128
    A.label("f_entry")
    fa_ld(A, 0)
    A.label("f_go")
    fa_ld(A, 1)
    stamp(A, "f_qok")
    A(f"s_or_b32 s85, s2, s{sWAVE}")
    A("s_cmp_lg_u32 s85, 0")
    A("s_cbranch_scc1 f_nox")
    A(f"s_mov_b32 s85, {FL_X:#x}")
    flag_store(A, 85)
    A.label("f_nox")
    fb = fa_b
    def fam(i, side=[]):
        mf = []
        for n in range(5):
            for st in range(4):
                c = vr(ACA+(st*5+n)*4, 4)
                mf.append(f"v_mfma_f32_16x16x32_bf16 {c}, {ar(fb(i)+16+4*n,4)}, {ar(fb(i)+4*st,4)}, {c if i else 0}")
        fill = [[] for _ in range(20)]
        for k, g in enumerate(side): fill[(k*20)//len(side)] += g
        weave(A, mf, fill)
    def ldg(i):
        B = Asm(); fa_ld(B, i); g = [[x] for x in B.lines[:9]]; g[-1] += B.lines[9:]; return g
    D = OPT["d"]
    fa_ld(A, 2)
    A(f"s_mov_b32 s{sC2}, s{sF2}")
    A(f"s_mov_b32 s{sCB2}, s{sFB2}")
    A(f"s_mov_b32 s{sCE2}, s{sFE2}")
    stamp(A, "fa_i2")
    A("s_waitcnt vmcnt(18)")
    fam(0, ldg(3))
    stamp(A, "fa_m0")
    A("s_waitcnt vmcnt(18)")
    fam(1, [[poll_ld(12, 23)]] + ldg(4))
    stamp(A, "fa_m1")
    A("s_waitcnt vmcnt(19)")
    fam(2)
    stamp(A, "fa_m2")
    A("s_waitcnt vmcnt(9)")
    stamp(A, "fa_s3")
    poll_check(A, "pu", 12, 23)
    stamp(A, "f_uok")
    br = []
    for sl in range(D):
        br += [[c_bload(sl, n)] for n in range(5)]; br[-1] += c_adv2()
    fam(3, br)
    A(f"s_waitcnt vmcnt({5*D})")
    fam(4, [[]]*3 + [[x] for x in c_tr(0, 0)] + [[]]*5)
    A(f"s_waitcnt vmcnt({5 if D == 2 else 10})")
    stamp(A, "fb_first")
    def drain(n, st):
        b = (st*5+n)*4
        return [f"v_fma_f32 v{ACA+b+i}, v{ACC+b+i}, v{8+st}, v{ACA+b+i}" for i in range(4)] + [f"ds_write_b128 v4, {vr(ACA+b,4)} offset:{st*16*336 + 64*n}"]
    A(f"s_mov_b32 s{sCNT}, 2")
    c_loop(A, "fb", 12, lambda o: vr(ACC+o, 4), False, False, drain)
    A("s_waitcnt lgkmcnt(0)")
    A("s_barrier")
    stamp(A, "f_red")
    R = ACC
    def rd(r):
        for part in range(4):
            A(f"ds_read_b128 {vr(R+16*r+4*part,4)}, v{16+r} offset:{21504*part}")
    rd(0); rd(1); rd(2)
    for r in range(5):
        A(f"s_waitcnt lgkmcnt({8 if r < 3 else 4*(4-r)})")
        b = R + 16*r
        for i in (0, 2):
            A(f"v_pk_add_f32 {vr(b+i,2)}, {vr(b+i,2)}, {vr(b+4+i,2)}")
            A(f"v_pk_add_f32 {vr(b+8+i,2)}, {vr(b+8+i,2)}, {vr(b+12+i,2)}")
        if r + 3 < 5: rd(r+3)
        for i in (0, 2): A(f"v_pk_add_f32 {vr(b+i,2)}, {vr(b+i,2)}, {vr(b+8+i,2)}")
        A(f"v_cvt_pk_bf16_f32 v{b}, v{b}, v{b+1}")
        A(f"v_cvt_pk_bf16_f32 v{b+1}, v{b+2}, v{b+3}")
        A(f"buffer_store_dwordx2 {vr(b,2)}, v{24+r}, s[{sOUT}:{sOUT+3}], s95 offen" + ["", " nt", " sc1", " sc0 sc1"][OPT.get("ost", 0)])

def kd(name):
    return f""".section .rodata,"a"
.p2align 6
.amdhsa_kernel {name}
  .amdhsa_next_free_vgpr 512
  .amdhsa_next_free_sgpr 102
  .amdhsa_accum_offset 256
  .amdhsa_group_segment_fixed_size 0
  .amdhsa_kernarg_size 96
  .amdhsa_user_sgpr_count 2
  .amdhsa_user_sgpr_kernarg_segment_ptr 1
  .amdhsa_system_sgpr_workgroup_id_x 1
.end_amdhsa_kernel
"""

def gen():
    hdr = open("cdna_kernels/" + NAME + ".s.ref").read().split("; Override")[0]
    hdr += f"; @launch grid=(256,1,1) block=(256,1,1) lds={LDS_BYTES}\n"
    hdr += '.amdgcn_target "amdgcn-amd-amdhsa--gfx950"\n'
    A = Asm()
    K = NAME + "_kernel"
    A(".text"); A(f".globl {K}"); A(".p2align 8"); A(f".type {K},@function"); A.label(K)
    prologue(A)
    A("s_cmp_ge_u32 s82, 16"); A("s_cbranch_scc1 r_notkv")
    A("s_and_b32 s85, s82, 3")
    A("s_lshl_b32 s86, s83, 2")
    A(f"s_add_u32 s{sA}, s85, s86")
    A("s_lshr_b32 s85, s82, 2")
    A("s_lshl_b32 s86, s84, 2")
    A(f"s_add_u32 s{sBp}, s85, s86")
    qkv_setup(A, False)
    A("s_waitcnt lgkmcnt(0)"); srds(A, ["X", "W"])
    stamp(A, "kv_pre")
    def mid(A):
        params1(A); srds(A, ["WS", "W1", "B1", "W2", "B2", "OUT"]); cw_init(A)
        if not OPT["defer"]:
            params2(A); g1_params(A); mid3(A)
    def mid3(A):
        kv_esetup(A)
        A("s_lshl_b32 s85, s81, 4")
        A("s_add_u32 s85, s85, s82")
        A("s_lshl_b32 s85, s85, 2")
        A(f"s_add_u32 s85, s85, s{sWAVE}")
        A("s_lshl_b32 s27, s85, 13")
        A(f"s_lshl_b32 s{sPUB}, s{sA}, 3")
        A(f"s_add_u32 s{sPUB}, s{sPUB}, s{sBp}")
        A(f"s_lshl_b32 s{sPUB}, s{sPUB}, 7")
        A(f"s_add_u32 s{sPUB}, s{sPUB}, {FL_KV:#x}")
    D = OPT["d"]; EW = 5 if D == 2 else 10
    assert D == 3
    def wst(k):
        g = c_wdma(k); g[-1] = g[-1] + c_adv1(); return g
    def bst(k):
        g = [[c_bload(k, n)] for n in range(5)]; g[-1] = g[-1] + c_adv2(); return g
    E = kv_estream()
    g1acc = lambda o: ar(G1A+o, 4)
    def pubkv(A, wait):
        A(f"s_waitcnt vmcnt({wait})")
        A("s_barrier")
        A(f"s_cmp_lg_u32 s{sWAVE}, 0")
        A("s_cbranch_scc1 g1_pub1")
        flag_store(A, sPUB)
        A.label("g1_pub1")
        stamp(A, "kv_pub")
    nin = OPT["nbin"]
    ex = {8: ([[poll_ld(vPO, 24)]] + b1_loads() + wst(0) + wst(1), 9), 9: (wst(2), 8)}
    d0 = OPT["defer"]
    out_kv = qkv_gemm(A, "kv", False, mid, ex, {9: lambda A: poll_check(A, "pln", vPO, 24)},
                      [(d0, params2), (d0+1, g1_params), (d0+2, mid3)] if d0 else [])
    if OPT["kvw2"]:
        A(f"buffer_load_dword a255, v15, s[{sW2}:{sW2+3}], s27 offen")
    for m in qkv_mfmas(FB_, False): A(m)
    stamp(A, "kv_loopdone")
    Bs = bst(0) + bst(1) + bst(2)
    body = E[0] + E[1]
    sp = min(26, (len(body) - 30 - OPT["b0"]) // max(nin, 1))
    pos = [len(body) - 30 - sp*(nin - 1 - k) for k in range(nin)]
    assert not pos or pos[0] >= 0
    for i, x in enumerate(body):
        if i in pos:
            for y in Bs[pos.index(i)]: A(y)
        A(x)
    A("s_waitcnt lgkmcnt(0)")
    A("s_barrier")
    for x in E[2] + E[3]: A(x)
    stamp(A, "kv_st")
    for g in Bs[nin:]:
        for y in g: A(y)
    seq = ["W"]*12 + [f"B{k//5}" for k in range(nin)] + ["S"]*4 + [f"B{k//5}" for k in range(nin, 15)]
    def need(tags): return len(seq) - 1 - max(i for i, t in enumerate(seq) if t in tags)
    A(f"s_waitcnt vmcnt({need(['W'])})")
    for x in c_tr(0, 0): A(x)
    if OPT["pubat"] == 0: pubkv(A, need(["S"]))
    for u in range(4):
        c_step(A, u, min(need([f"B{u}", f"W{u+1}", "W"]), 63), True, True, True, g1acc, True, first=(u == 0),
               pre=f_setup1() if u == 1 else [], side=f_setup2() if u == 3 else None)
        if u == 1: seq += ["G"]*8
        seq += [f"W{u+3}"]*4 + [f"B{u+3}"]*5
        stamp(A, f"g1_s{u}")
        if OPT["pubat"] == u + 1: pubkv(A, need(["S"]))
    A(f"s_mov_b32 s{sCNT}, 2")
    g1_phase(A)
    f_phase(A)
    stamp_flush(A)
    A.label("k_end"); A("s_endpgm")
    out_kv(A)
    if OPT["lnmid"]:
        A.label("g1_blk")
        w2_prefetch(A, 24, list(range(3 - OPT["lnpn"], 3)))
        A("s_branch g1_noblk")
    A.label("r_notkv")
    if OPT["pf_code"]:
        A("s_getpc_b64 s[86:87]")
        A.label("pc_here")
        A(f"s_sub_u32 s86, s86, pc_here-{K}")
        A("s_subb_u32 s87, s87, 0")
        A("s_sub_u32 s85, s82, 16")
        A("s_lshl_b32 s85, s85, 2")
        A(f"s_add_u32 s85, s85, s{sWAVE}")
        A("s_lshl_b32 s85, s85, 3")
        A("v_add_lshl_u32 v2, v1, s85, 7")
        A(f"v_min_u32 v2, k_codeend-{K}-4, v2")
        A("s_mov_b64 exec, 0xff")
        A("global_load_dword a255, v2, s[86:87]")
        A("s_mov_b64 exec, -1")
    A("s_cmp_lt_u32 s82, 24"); A("s_cbranch_scc1 r_q")
    A("s_sub_u32 s87, s82, 24")
    A("s_lshl_b32 s85, s81, 3")
    A(f"s_add_u32 s{sA}, s85, s87")
    aux = " nt" if OPT.get("nt") else ""
    w1l = lambda k: f"buffer_load_dword a255, v22, s[{sW1}:{sW1+3}], s{26 + k//3} offen offset:{1024*(k%3)}{aux}"
    def after(A):
        params1(A); srds(A, ["WS", "W1", "B1", "W2", "B2", "OUT"]); cw_init(A); params2(A); g1_params(A)
        w1_setup(A, 24, 22)
        for k in range(OPT["early"] if OPT["pf_w1"] else 0): A(w1l(k))
    ln_role(A, after, OPT["early"] if OPT["pf_w1"] else 0)
    publish(A, "pub_ln", FL_LN, sA)
    stamp(A, "ln_pub")
    for k in range(OPT["early"], (3 - OPT["qw1n"]) if (OPT["pf_w1"] and not OPT["qfirst"]) else 0): A(w1l(k))
    def pf_h():
        A(poll_ld(vPO, 24))
        A("v_lshrrev_b32 v2, 5, v1")
        A("v_mul_u32_u24 v2, 40960, v2")
        A("v_and_b32 v3, 31, v1")
        A("v_lshl_add_u32 v2, v3, 7, v2")
        A("s_sub_u32 s85, s82, 24")
        A("s_lshl_b32 s85, s85, 2")
        A(f"s_add_u32 s85, s85, s{sWAVE}")
        A(f"s_mul_i32 s87, s85, {2*40960}")
        A("s_mul_i32 s86, s84, 20480")
        A("s_add_u32 s87, s87, s86")
        A("s_waitcnt vmcnt(0)")
        poll_check(A, "plnh", vPO, 24)
        A("s_barrier")
        for i in range(5):
            A(f"buffer_load_dword a255, v2, s[{sWS}:{sWS+3}], s87 offen sc1")
            A("s_add_u32 s87, s87, 4096")
    for c in str(OPT["lnseq"]):
        if c == "1" and OPT["pf_w1"]:
            for k in range(3, 6): A(w1l(k))
        if c == "6":
            for k in range(3): A(w1l(k))
        if c == "2": pf_h()
        if c == "3": w2_prefetch(A, 24, [0])
        if c == "7": w2_prefetch(A, 24, [2])
        if c == "4": w2_prefetch(A, 24, [0, 1])
        if c == "5": w2_prefetch(A, 24, [0, 1, 2])
    stamp(A, "ln_pf")
    for g in b1_loads(): A(g[0])
    A(poll_ld(vPO, 24))
    c_wring(A)
    A(f"s_waitcnt vmcnt({4*OPT['d']})")
    poll_check(A, "pln2", vPO, 24)
    A("s_barrier")
    for x in f_setup1(): A(x)
    c_bring(A)
    for i in range(80): A(f"v_accvgpr_write_b32 a{G1A+i}, 0")
    A(f"s_waitcnt vmcnt({5*D})")
    for x in f_setup2(): A(x)
    A(f"s_mov_b32 s{sCNT}, 3")
    A(f"s_mov_b32 s{sPUB}, {OPT['lnmid']}")
    A(f"s_waitcnt vmcnt({EW})")
    for x in c_tr(0, 0): A(x)
    stamp(A, "ln_ready")
    A("s_branch g1_loop")
    A.label("r_q")
    A("s_sub_u32 s87, s82, 16")
    A("s_and_b32 s85, s87, 3")
    A("s_lshl_b32 s86, s83, 2")
    A(f"s_add_u32 s{sA}, s85, s86")
    A("s_lshr_b32 s85, s87, 2")
    A("s_lshl_b32 s86, s84, 1")
    A(f"s_add_u32 s{sBp}, s85, s86")
    A(f"s_lshl_b32 s{sU}, s{sBp}, 2")
    A(f"s_and_b32 s85, s{sA}, 3")
    A(f"s_add_u32 s{sU}, s{sU}, s85")
    A(f"s_lshr_b32 s{sNR}, s{sA}, 2")
    def midq(A):
        params1(A); srds(A, ["WS", "W1", "WO", "W2", "B2", "OUT"]); cw_init(A); params2(A)
        w1_setup(A, 16, 12)
        if OPT["qw1"] == 0: q_pf_only(A)
        if not OPT["qdefer"]: q_setup(A)
    def qs(lo, hi):
        def f(A):
            B = Asm(); q_setup(B)
            assert len(B.lines) > 150
            for x in B.lines[lo:hi]: A(x)
        return f
    def qtouch(A):
        A("s_mov_b32 exec_lo, 0xffff03ff")
        A("s_mov_b32 exec_hi, 0")
        A(f"buffer_load_dword a255, v{vT1}, s[{sWS}:{sWS+3}], 0 offen sc1")
        A("s_mov_b64 exec, -1")
    qkv_setup(A, True)
    A("s_waitcnt lgkmcnt(0)"); srds(A, ["X", "W"])
    qb = [(max(OPT["qw1"], 1), q_loop_pf)]
    if OPT["qdefer"]:
        def both(A): q_loop_pf(A); q_setup(A); qtouch(A)
        qb = [(OPT["qw1"], both)]
    out_q = qkv_gemm(A, "q", True, midq, q_extras(), {9: lambda A: poll_check(A, "pln3", vPO, 24)}, qb)
    q_epilogue(A)
    A("s_lshl_b32 s88, s81, 3")
    A("s_add_u32 s88, s88, s82")
    A("s_sub_u32 s88, s88, 16")
    publish(A, "pub_q", FL_Q, 88)
    stamp(A, "q_pub")
    if OPT["qw2b"]: w2_prefetch(A, 16, list(range(3 - OPT["qw2b"], 3)))
    for x in f_setup1(): A(x)
    switch_to_fb(A)
    c_wring(A)
    A(poll_ld(vPO, 25))
    A(f"s_waitcnt vmcnt({4*D + 1})")
    for x in f_setup2(): A(x)
    A("s_waitcnt vmcnt(0)")
    poll_check(A, "pq2", vPO, 25)
    A("s_barrier")
    stamp(A, "q_allq")
    if OPT["pf_pq"]:
        A("s_sub_u32 s88, s82, 16")
        A("s_lshl_b32 s88, s88, 2")
        A(f"s_add_u32 s88, s88, s{sWAVE}")
        A("v_lshlrev_b32 v2, 7, v1")
        A(f"s_mul_i32 s85, s83, {8*81920}")
        A(f"s_mul_i32 s86, s88, {160*128}")
        A("s_add_u32 s85, s85, s86")
        A(f"s_add_u32 s85, s85, {WS_PQ:#x}")
        for i in range(3):
            if i == 2: A("s_mov_b32 exec_hi, 0")
            A(f"buffer_load_dword a255, v2, s[{sWS}:{sWS+3}], s85 offen sc1")
            A("s_add_u32 s85, s85, 8192")
        A("s_mov_b32 exec_hi, -1")
        A("s_cmp_ge_u32 s88, 20")
        A("s_cbranch_scc1 q_pfd")
        A("s_mul_i32 s85, s88, 40960")
        A("s_mul_i32 s86, s84, 20480")
        A("s_add_u32 s85, s85, s86")
        A(f"s_add_u32 s85, s85, {WS_M:#x}")
        for i in range(3):
            if i == 2: A("s_mov_b32 exec_hi, 0")
            A(f"buffer_load_dword a255, v2, s[{sWS}:{sWS+3}], s85 offen sc1")
            A("s_add_u32 s85, s85, 8192")
        A("s_mov_b32 exec_hi, -1")
        A.label("q_pfd")
    fa_params(A)
    A("s_branch f_entry")
    out_q(A)
    A.label("k_codeend")
    for i, l in enumerate(A.lines):
        if l.startswith("v_mad_i32_i24 v4, v3, -20"):
            A.lines[i] = l.replace("-20", "s89")
        if l == "s_movk_i32 s88, 3840":
            A.lines[i] = "s_movk_i32 s89, -20"
    if OPT["align"]:
        A.lines, nc, nn = align(A.lines, OPT["align"])
        print("aligned: widened", nc, "nops", nn, file=sys.stderr)
    nb = check(A.lines)
    print("hazards:", nb, file=sys.stderr)
    return hdr + A.text() + kd(K)

if __name__ == "__main__":
    out = sys.argv[1]
    for a in sys.argv[2:]:
        if a == "st": STAMPS = True
        else:
            k, v = a.split("="); OPT[k] = int(v)
    open(out, "w").write(gen())
    if STAMPS: json.dump(_st["names"], open(out + ".names", "w"))
```

```python
import sys, json
from asmlib import Asm, vr, ar, sr, check, align

NAME = "gated_mix__linear_attn_block__mixer_token_mlp__prompt"
WS_H   = 0x000000
WS_U   = 0x280000
WS_PQ  = 0x460000
WS_M   = 0x6E0000
WS_KVP = 0x7A8000
WS_ZP  = 0x880000
WS_G   = 0x972000
WS_FLAG = 0x974000
FL_X = WS_FLAG
FL_LN = WS_FLAG + 128
FL_KV = FL_LN + 64*128
FL_Q = FL_KV + 128*128
FL_G1 = FL_Q + 64*128
WS_SIZE = FL_G1 + 192*128
WS_STAMP = 0x1000000

sX, sW, sWS, sW1, sW2, sOUT, sWO, sB1, sB2, sGW = 28, 32, 36, 40, 44, 48, 52, 56, 60, 64
sWAVE = 68
sA, sBp = 69, 70
sG1D, sG1F, sFS, sFD = 71, 72, 73, 74
sCNT, sO1, sO2, sRD, sWR, sM0 = 75, 76, 77, 78, 79, 80
sEX, sMK = 90, 92
sU, sNR = 94, 95
sWR_, sWC_ = 96, 97
sPUB = 3
sQOK = 99
sM1 = 98
sC1, sC2, sCM0, sCB1, sCE1, sCB2, sCE2, sCST, sCW, sNON = 4, 5, 6, 7, 8, 9, 10, 11, 12, 16
sF1, sFB1, sFE1, sF2, sFB2, sFE2 = 17, 18, 19, 20, 21, 22
LOG2E = 0x3FB8AA3B
EPS6 = 0x358637BD
LDS_RED = 65536
LDS_BYTES = 163840
vXO, vWO_, vXB, vCUR = 16, 20, 25, 29
vWS_, vB0, vB1, vTR, vWS2 = 33, 37, 38, 39, 43
ACC = 48
FA_, FB_ = 112, 148
BR, AS = 0, 80
STG = 36864
vPOLL, vPO = 14, 13
OPT = {"rot": 1, "pf_w1": 1, "pf_w2": 1, "pf_code": 1, "pf_pq": 0, "sleep": 1, "early": 1, "d": 3, "qpoll": 2, "nbin": 10, "cv": 0, "lnseq": 15, "qw2": 0, "qw2b": 0, "ntq": 0, "qw1": 1, "qw1n": 2, "kvr": 1, "touch": 1, "perm": 0, "otouch": 0, "rdb": 4, "w2c": 1, "qfirst": 0, "rfd": 3, "tailw": 1, "pubat": 1, "kvw2": 0, "b0": 0, "qw1b": 0, "rfb": 4, "frot": 2, "arot": 2, "fmap": 1, "qrot": 1, "grot": 4, "lnpost": 0, "lnpn": 3, "align": 5, "defer": 0, "qdefer": 0, "lnmid": 0, "ost": 1}
STAMPS = False
_st = {"n": 0, "names": []}

def stamp(A, name, real=False):
    if not STAMPS: return
    i = _st["n"]; _st["n"] += 1; _st["names"].append(name)
    A("s_memrealtime s[100:101]" if real else "s_memtime s[100:101]")
    A("s_waitcnt lgkmcnt(0)")
    A(f"v_writelane_b32 v47, s100, {i}")
def stamp_flush(A):
    if not STAMPS: return
    stamp(A, "end"); stamp(A, "endreal", True)
    A("s_lshl_b32 s100, s2, 2")
    A(f"s_add_u32 s100, s100, s{sWAVE}")
    A("s_lshl_b32 s100, s100, 8")
    A(f"s_add_u32 s100, s100, {WS_STAMP:#x}")
    A(f"s_mov_b32 s{sWS+2}, 0x2000000")
    A("v_lshlrev_b32 v46, 2, v1")
    A(f"buffer_store_dword v47, v46, s[{sWS}:{sWS+3}], s100 offen")

def srds(A, which):
    tab = {"X": (sX, 4, 2048*1280), "W": (sW, 6, 640*3840), "WO": (sWO, 8, 640*1280), "W1": (sW1, 12, 2048*3072), "B1": (sB1, 14, 3072),
           "W2": (sW2, 16, 1536*4096), "B2": (sB2, 18, 4096), "GW": (sGW, 20, 1280), "OUT": (sOUT, 22, 2048*1280), "WS": (sWS, 26, WS_SIZE)}
    for w in which:
        base, ptr, size = tab[w]
        A(f"s_mov_b64 s[{base}:{base+1}], s[{ptr}:{ptr+1}]")
        A(f"s_mov_b32 s{base+2}, {size:#x}")
        A(f"s_mov_b32 s{base+3}, 0x20000")

def flat(groups):
    out = []
    for g in groups: out += g if isinstance(g, list) else [g]
    return out

def weave(A, mf, fill, first=0):
    for i, m in enumerate(mf):
        A(m)
        if i < len(fill):
            for x in fill[i]: A(x)
    for g in fill[len(mf):]:
        for x in g: A(x)

def poll_off(A, dst, nper, total_waves_split=True):
    A(f"v_and_b32 v{dst}, {nper-1}, v1")
    A(f"s_mul_i32 s85, s{sWAVE}, {nper}")
    A(f"v_add_lshl_u32 v{dst}, v{dst}, s85, 7")
def poll_ld(vo, so):
    return f"buffer_load_dword v{vPOLL}, v{vo}, s[{sWS}:{sWS+3}], s{so} offen sc1"
def poll_check(A, name, vo, so):
    A(f"v_cmp_ne_u32 vcc, s{sNON}, v{vPOLL}")
    A(f"s_cbranch_vccz {name}_ok")
    A(f"s_mov_b32 s{sM1}, 0")
    A.label(f"{name}_spin")
    A(f"s_add_u32 s{sM1}, s{sM1}, 1")
    A(f"s_cmp_gt_u32 s{sM1}, 0x8000")
    A(f"s_cbranch_scc1 {name}_ok")
    A(f"s_sleep {OPT['sleep']}")
    A(poll_ld(vo, so))
    A("s_waitcnt vmcnt(0)")
    A(f"v_cmp_ne_u32 vcc, s{sNON}, v{vPOLL}")
    A(f"s_cbranch_vccnz {name}_spin")
    A.label(f"{name}_ok")
def flag_store(A, so):
    A(f"v_mov_b32 v2, s{sNON}")
    A("v_lshlrev_b32 v3, 2, v1")
    A("s_mov_b32 exec_hi, 0")
    A(f"buffer_store_dword v2, v3, s[{sWS}:{sWS+3}], s{so} offen sc1")
    A("s_mov_b32 exec_hi, -1")
def publish(A, name, base, sidx, wait=0):
    if wait is not None: A(f"s_waitcnt vmcnt({wait})")
    A("s_barrier")
    A(f"s_cmp_lg_u32 s{sWAVE}, 0")
    A(f"s_cbranch_scc1 {name}_np")
    A(f"s_lshl_b32 s85, s{sidx}, 7")
    A(f"s_add_u32 s85, s85, {base:#x}")
    flag_store(A, 85)
    A.label(f"{name}_np")

def prologue(A):
    A("s_cmp_ge_u32 s2, 256")
    A("s_cbranch_scc1 k_end")
    if STAMPS: A("v_mov_b32 v47, 0")
    stamp(A, "startreal", True); stamp(A, "start")
    A("s_load_dwordx16 s[4:19], s[0:1], 0")
    A("s_load_dwordx8 s[20:27], s[0:1], 64")
    A("v_lshrrev_b32 v2, 6, v0")
    A("v_and_b32 v1, 63, v0")
    A(f"v_readfirstlane_b32 s{sWAVE}, v2")
    A("s_and_b32 s81, s2, 7")
    A("s_lshr_b32 s82, s2, 3")
    A("s_lshr_b32 s83, s81, 1")
    A("s_and_b32 s84, s81, 1")

def params1(A):
    A(f"s_add_u32 s86, s26, {FL_X:#x}")
    A("s_addc_u32 s87, s27, 0")
    A("s_load_dword s3, s[86:87], 0")
    A("s_lshr_b32 s85, s82, 2")
    A("s_lshl_b32 s88, s83, 3")
    if OPT["perm"]: A("s_xor_b32 s85, s85, 7")
    A(f"s_add_u32 s{sFS}, s85, s88")
    A("s_and_b32 s85, s82, 3")
    A("s_lshl_b32 s88, s84, 2")
    A(f"s_add_u32 s{sFD}, s85, s88")
    if OPT["fmap"]:
        A("s_lshr_b32 s85, s82, 3")
        if OPT["fmap"] == 1:
            A("s_lshl_b32 s85, s85, 3")
            A(f"s_add_u32 s{sFS}, s85, s81")
        else:
            A(f"s_lshl_b32 s{sFS}, s81, 2")
            A(f"s_add_u32 s{sFS}, s{sFS}, s85")
        A(f"s_and_b32 s{sFD}, s82, 7")
    A("s_sub_u32 s85, s82, 8")
    A("s_cmp_lt_u32 s82, 16")
    A("s_cselect_b32 s85, s82, s85")
    A("s_and_b32 s89, s85, 3")
    A(f"s_add_u32 s{sG1D}, s89, s88")
    A("s_lshr_b32 s85, s85, 2")
    A("s_lshl_b32 s88, s85, 2")
    A(f"s_add_u32 s{sG1F}, s83, s88")
    A("s_lshr_b32 s88, s85, 2")
    A("s_lshl_b32 s85, s85, 1")
    A("s_add_u32 s85, s85, s88")
    A("s_lshl_b32 s85, s85, 1")
    if OPT["rfb"] == 0: A("s_mov_b32 s85, 0")
    A(f"s_mul_i32 s89, s89, {OPT['rdb']}")
    A("s_add_u32 s85, s85, s89")
    if OPT["grot"] == 2: A("s_lshl_b32 s85, s85, 1")
    A(f"s_and_b32 s99, s85, {(15 if OPT['grot'] == 4 else 8) if OPT['grot'] else 0}")

def cw_init(A):
    A(f"s_mov_b64 s[{sCW}:{sCW+1}], s[{sW1}:{sW1+1}]")
    A(f"s_mov_b64 s[{sCW+2}:{sCW+3}], s[{sW1+2}:{sW1+3}]")
def params2(A):
    if OPT.get("same"):
        for k, r in enumerate((sG1D, sG1F, sFS, sFD)):
            A(f"s_mov_b32 s{100 if not STAMPS else 64+k}, s{r}")
            A(f"s_mov_b32 s{r}, 0")
        params2_(A)
        for k, r in enumerate((sG1D, sG1F, sFS, sFD)): A(f"s_mov_b32 s{r}, s{64+k}")
    else: params2_(A)
def params2_(A):
    A(f"s_mul_i32 s{sCB1}, s{sWAVE}, {16*32*3072}")
    A(f"s_lshl_b32 s85, s{sG1F}, 7")
    A(f"s_add_u32 s{sCB1}, s{sCB1}, s85")
    A(f"s_add_u32 s{sCE1}, s{sCB1}, {16*32*3072}")
    A(f"s_mul_i32 s85, s99, {32*3072}")
    A(f"s_add_u32 s{sC1}, s{sCB1}, s85")
    A(f"s_mul_i32 s{sCB2}, s{sWAVE}, {16*40960}")
    A(f"s_mul_i32 s85, s{sG1D}, 5120")
    A(f"s_add_u32 s{sCB2}, s{sCB2}, s85")
    A(f"s_add_u32 s{sCE2}, s{sCB2}, {16*40960}")
    A(f"s_mul_i32 s85, s99, 40960")
    A(f"s_add_u32 s{sC2}, s{sCB2}, s85")
    A(f"s_mov_b32 s{sCST}, {32*3072}")
    A(f"s_lshl_b32 s{sCM0}, s{sWAVE}, 14")
    A("s_and_b32 s85, s82, 3")
    A(f"s_mul_i32 s85, s85, {OPT['rfd']}")
    A("s_lshr_b32 s86, s82, 2")
    A("s_mul_i32 s86, s86, 3")
    A("s_lshr_b32 s86, s86, 1")
    A("s_add_u32 s85, s85, s86")
    A("s_cmp_ge_u32 s85, 12")
    A("s_cselect_b32 s86, 12, 0")
    A("s_sub_u32 s85, s85, s86")
    if OPT["frot"] == 0: A("s_mov_b32 s85, 0")
    if OPT["frot"] == 2:
        A(f"s_add_u32 s85, s{sFS}, s{sFD}")
        A("s_and_b32 s85, s85, 1")
        A("s_mul_i32 s85, s85, 6")
    if OPT["frot"] == 3:
        A(f"s_add_u32 s85, s{sFS}, s{sFD}")
        A("s_mul_i32 s86, s85, 86")
        A("s_lshr_b32 s86, s86, 8")
        A("s_mul_i32 s86, s86, 3")
        A("s_sub_u32 s85, s85, s86")
        A("s_lshl_b32 s85, s85, 2")
    A(f"s_mul_i32 s{sFB1}, s{sWAVE}, {12*32*4096}")
    A(f"s_lshl_b32 s86, s{sFS}, 7")
    A(f"s_add_u32 s{sFB1}, s{sFB1}, s86")
    A(f"s_add_u32 s{sFE1}, s{sFB1}, {12*32*4096}")
    A(f"s_lshl_b32 s86, s85, 17")
    A(f"s_add_u32 s{sF1}, s{sFB1}, s86")
    A(f"s_mul_i32 s{sFB2}, s{sWAVE}, {12*40960}")
    A(f"s_mul_i32 s86, s{sFD}, 5120")
    A(f"s_add_u32 s{sFB2}, s{sFB2}, s86")
    A(f"s_add_u32 s{sFB2}, s{sFB2}, {WS_U:#x}")
    A(f"s_add_u32 s{sFE2}, s{sFB2}, {12*40960}")
    A(f"s_mul_i32 s86, s85, 40960")
    A(f"s_add_u32 s{sF2}, s{sFB2}, s86")
    A(f"v_lshlrev_b32 v{vB0}, 4, v1")
    A(f"v_add_u32 v{vB1}, 4096, v{vB0}")
    A("v_lshrrev_b32 v2, 2, v1")
    A("v_lshrrev_b32 v3, 1, v2")
    A("v_and_b32 v3, 3, v3")
    A("v_lshlrev_b32 v2, 7, v2")
    A("v_lshl_add_u32 v2, v3, 5, v2")
    A("v_and_b32 v3, 3, v1")
    A("v_lshl_add_u32 v2, v3, 3, v2")
    A(f"v_add_u32 v{vTR}, s{sCM0}, v2")
    for t in range(1, 4): A(f"v_xor_b32 v{vTR+t}, {32*t}, v{vTR}")
    A("v_lshrrev_b32 v2, 3, v1")
    A("v_lshrrev_b32 v3, 4, v1")
    A("v_lshlrev_b32 v3, 1, v3")
    A("v_and_b32 v4, 7, v1")
    A("v_xor_b32 v3, v3, v4")
    A("v_lshlrev_b32 v3, 4, v3")
    for base, stride in ((vWS_, 3072), (vWS2, 4096)):
        A(f"v_mul_u32_u24 v4, {stride}, v2")
        A(f"v_add_u32 v{base}, v3, v4")
        for q in range(1, 4): A(f"v_add_u32 v{base+q}, {q*(8*stride-1024)}, v{base}")
    poll_off(A, vPO, 16)
    A("v_lshlrev_b32 v15, 7, v1")
    A(f"s_mov_b32 s24, {FL_LN:#x}")
    A(f"s_mov_b32 s25, {FL_Q:#x}")
    A("s_waitcnt lgkmcnt(0)")
    A(f"s_mul_i32 s{sNON}, s3, 0x41C64E6D")
    A(f"s_add_u32 s{sNON}, s{sNON}, 0x3C6EF35F")

def qkv_setup(A, isq):
    A(f"s_lshr_b32 s{sWR_}, s{sWAVE}, 1")
    A(f"s_and_b32 s{sWC_}, s{sWAVE}, 1")
    A("v_lshrrev_b32 v2, 3, v1")
    A(f"s_lshl_b32 s85, s{sWAVE}, 5")
    A("v_add_u32 v2, s85, v2")
    A("v_mul_u32_u24 v2, 1280, v2")
    A("v_lshrrev_b32 v3, 4, v1")
    A("v_and_b32 v4, 7, v1")
    A("v_xor_b32 v4, v4, v3")
    A(f"v_lshl_add_u32 v{vXO}, v4, 4, v2")
    A("v_xor_b32 v4, 4, v4")
    A("v_lshl_add_u32 v6, v4, 4, v2")
    A(f"v_add_u32 v{vXO+1}, {8*1280-1024}, v6")
    A(f"v_add_u32 v{vXO+2}, {16*1280-2048}, v{vXO}")
    A(f"v_add_u32 v{vXO+3}, {24*1280-3072}, v6")
    A(f"s_mul_i32 s{sO1}, s{sA}, {0 if OPT.get('same') else 128*1280}")
    if OPT.get("same"):
        A("s_mov_b32 s86, 1280")
    elif isq:
        A(f"s_mul_i32 s86, s{sBp}, 320")
    else:
        A(f"s_mul_i32 s86, s{sBp}, 160")
        A("s_add_u32 s86, s86, 1280")
    A(f"s_mul_i32 s85, s{sWAVE}, {16*3840}")
    A("s_add_u32 s85, s85, s86")
    A("s_movk_i32 s88, 3840")
    for n in range(5):
        if n: A(f"v_add_u32 v2, {64*n}, v1")
        q = "v2" if n else "v1"
        A(f"v_mul_u32_u24 v3, 3277, {q}")
        A("v_lshrrev_b32 v3, 16, v3")
        A(f"v_mad_i32_i24 v4, v3, -20, {q}")
        A("v_lshrrev_b32 v5, 2, v3")
        A("v_and_b32 v5, 2, v5")
        A("v_xor_b32 v4, v4, v5")
        comp = 1024*n if n < 4 else 0
        A(f"s_sub_u32 s87, s85, {comp}" if comp else "s_mov_b32 s87, s85")
        A("v_mad_u32_u24 v3, v3, s88, s87" if False else "v_mul_u32_u24 v3, 3840, v3")
        A("v_lshl_add_u32 v3, v4, 4, v3")
        if not isq:
            A("v_cmp_le_u32 vcc, 10, v4")
            A("v_add_u32 v5, 1120, v3")
            A("v_add_u32 v3, s87, v3")
            A("v_add_u32 v5, s87, v5")
            A(f"v_cndmask_b32 v{vWO_+n}, v3, v5, vcc")
        else:
            A(f"v_add_u32 v{vWO_+n}, s87, v3")
    A(f"s_mov_b32 s{sO2}, 0")
    if OPT["rot"]:
        q = OPT["qrot"]
        if q == 1:
            A("s_and_b32 s85, s82, 3")
            A("s_lshl_b32 s85, s85, 2")
            A("s_lshr_b32 s85, 0x8530, s85")
            A("s_and_b32 s85, s85, 15")
            A("s_and_b32 s86, s82, 12")
            A("s_lshr_b32 s86, 0x8530, s86")
            A("s_and_b32 s86, s86, 15")
            A("s_add_u32 s85, s85, s86")
            A("s_add_u32 s85, s85, s83")
            A("s_add_u32 s85, s85, s84")
        else:
            A("s_lshr_b32 s85, s82, 2")
            A("s_add_u32 s85, s85, s82")
            A("s_and_b32 s85, s85, 1")
            A("s_mul_i32 s85, s85, 5")
            if q == 2:
                A("s_add_u32 s85, s85, s83")
                A("s_add_u32 s85, s85, s84")
            if q == 4:
                A("s_add_u32 s85, s85, s81")
            if q == 5:
                A("s_mov_b32 s85, s81")
        if isq: A("s_add_u32 s85, s85, 1")
        A("s_mul_i32 s86, s85, 26")
        A("s_lshr_b32 s86, s86, 8")
        A("s_mul_i32 s86, s86, 10")
        A("s_sub_u32 s85, s85, s86")
        A(f"s_mul_i32 s{sO2}, s85, {64*3840}")
        A("s_lshl_b32 s85, s85, 7")
        A(f"s_add_u32 s{sO1}, s{sO1}, s85")
    A(f"s_lshl_b32 s{sM0}, s{sWAVE}, 12")
    A(f"s_mul_i32 s{sM1}, s{sWAVE}, 5120")
    A(f"s_add_u32 s{sM1}, s{sM1}, 16384")
    A(f"s_mov_b32 s{sWR}, {2*STG}")

def nt(b): return " nt" if OPT["ntq"] & b else ""
def qkv_dma():
    L = [[f"s_add_u32 m0, s{sWR}, s{sM0}"]]
    for n in range(4):
        L.append([f"buffer_load_dwordx4 v{vXO+n}, s[{sX}:{sX+3}], s{sO1} offen offset:{1024*n}{nt(1)} lds"])
    L.append([f"s_add_u32 m0, s{sWR}, s{sM1}"])
    for n in range(4):
        L.append([f"buffer_load_dwordx4 v{vWO_+n}, s[{sW}:{sW+3}], s{sO2} offen offset:{1024*n}{nt(2)} lds"])
    L.append(["s_add_u32 m0, m0, 4096"])
    L.append([f"buffer_load_dwordx4 v{vWO_+4}, s[{sW}:{sW+3}], s{sO2} offen{nt(2)} lds"])
    return L
def qkv_adv():
    return [f"s_add_u32 s{sO1}, s{sO1}, 128", f"s_add_u32 s{sO2}, s{sO2}, {64*3840}", f"s_cmp_eq_u32 s{sO2}, {640*3840}",
            "s_cselect_b32 s85, 1280, 0", f"s_cselect_b32 s{sO2}, 0, s{sO2}", f"s_sub_u32 s{sO1}, s{sO1}, s85",
            f"s_add_u32 s{sWR}, s{sWR}, {STG}", f"s_cmp_eq_u32 s{sWR}, {4*STG}", f"s_cselect_b32 s{sWR}, 0, s{sWR}"]
def emit_dma_block(A, groups):
    for g in groups:
        for x in g: A(x)
        if "m0" in g[0].split(",")[0]: A("s_nop 0")

NW = 5
vXB, vCUR = 26, 6
vXB = 208
vCUR = 215
def qkv_reads(kk, fs):
    def wr(t):
        return [f"ds_read_b64_tr_b16 {ar(fs+16+4*t+2*j,2)}, v{vCUR+2+t} offset:{kk*10240 + j*1280}" for j in range(2)]
    L = wr(0)
    for st in range(4):
        L.append(f"ds_read_b128 {ar(fs+4*st,4)}, v{vCUR+kk} offset:{st*2048}")
    for t in range(1, 5): L += wr(t)
    return L
def qkv_mfmas(fs, isq):
    L = []
    for t in range(5):
        for st in range(4):
            x = ar(fs + 4*st, 4); w = ar(fs + 16 + 4*t, 4); c = vr(ACC + (st*5+t)*4, 4)
            L.append(f"v_mfma_f32_16x16x32_bf16 {c}, {w}, {x}, {c}" if isq else f"v_mfma_f32_16x16x32_bf16 {c}, {x}, {w}, {c}")
    return L

def qkv_gemm(A, pfx, isq, mid_setup, extras, pres, blk):
    emit_dma_block(A, qkv_dma())
    for x in qkv_adv(): A(x)
    stamp(A, pfx + "_iss0")
    mid_setup(A)
    A("v_and_b32 v2, 15, v1")
    A("v_lshrrev_b32 v3, 4, v1")
    A("v_lshrrev_b32 v4, 1, v2")
    A("v_xor_b32 v4, v4, v3")
    A("v_lshlrev_b32 v4, 4, v4")
    A("v_lshl_add_u32 v4, v2, 7, v4")
    A(f"s_lshl_b32 s85, s{sWR_}, 13")
    A(f"v_add_u32 v{vXB}, s85, v4")
    A(f"v_xor_b32 v{vXB+1}, 64, v{vXB}")
    A("v_lshrrev_b32 v4, 2, v2")
    A("v_lshl_add_u32 v4, v3, 3, v4")
    A("v_mul_u32_u24 v4, 320, v4")
    A("v_and_b32 v5, 1, v1")
    A("v_lshl_add_u32 v4, v5, 3, v4")
    A("v_add_u32 v4, 16384, v4")
    A("v_bfe_u32 v5, v1, 1, 1")
    A("v_and_b32 v6, 1, v3")
    A("v_lshlrev_b32 v6, 1, v6")
    A(f"s_mul_i32 s85, s{sWC_}, {10 if isq else 5}")
    for t in range(5):
        if isq: c0, step = [(0, 1), (2, 1), (4, 5), (5, 1), (7, 1)][t]
        else: c0, step = [(0, 1), (2, 1), (4, 6), (11, 1), (13, 1)][t]
        A(f"s_add_u32 s86, s85, {c0}")
        if step == 1: A("v_add_u32 v7, s86, v5")
        else: A(f"v_mad_u32_u24 v7, v5, {step}, s86")
        A("v_xor_b32 v7, v7, v6")
        A(f"v_lshl_add_u32 v{vXB+2+t}, v7, 4, v4")
    zero_acc(A)
    A(f"s_mov_b32 s{sRD}, {2*STG}")
    A(f"s_mov_b32 s{sCNT}, 0")
    upd = [f"v_add_u32 v{vCUR+i}, s{sRD}, v{vXB+i}" for i in range(7)]
    rdadv = [f"s_add_u32 s{sRD}, s{sRD}, {STG}", f"s_cmp_eq_u32 s{sRD}, {4*STG}", f"s_cselect_b32 s{sRD}, 0, s{sRD}"]
    def spread(rd, dma_slots, groups, scal):
        fill = [[] for _ in range(20)]
        k = 0
        for gi in range(9):
            for _ in range(2 if gi < 5 else 1):
                fill[gi].append(rd[k]); k += 1
        g = list(groups)
        for sl in dma_slots:
            if not g: break
            if "m0" in g[0][0].split(",")[0]:
                fill[sl-1] += g.pop(0)
            fill[sl] += g.pop(0)
        return fill, g
    def put_scal(fill, scal, start):
        sc = list(scal); gi = start
        while sc:
            room = 2 - len(fill[gi]) if gi < 19 else len(sc)
            for _ in range(max(room, 0)):
                if sc: fill[gi].append(sc.pop(0))
            gi += 1
    def top_half(wait, groups, pre=None, slots=(3, 7, 11, 15, 19)):
        A(f"s_waitcnt vmcnt({wait}) lgkmcnt(0)")
        if pre: pre(A)
        A("s_barrier")
        fill, rest = spread(qkv_reads(0, FA_), slots, groups, [])
        weave(A, qkv_mfmas(FB_, isq), fill)
        return rest
    def bot_half(adv, tail, groups=[], slots=(2, 6, 10, 13)):
        A("s_waitcnt lgkmcnt(0)")
        fill, rest = spread(qkv_reads(1, FB_), slots, groups, [])
        assert not rest
        put_scal(fill, rdadv + upd, 9)
        put_scal(fill, (qkv_adv() if adv else []) + tail, 14)
        weave(A, qkv_mfmas(FA_, isq), fill)
    for x in upd: A(x)
    stamp(A, pfx + "_setup")
    emit_dma_block(A, qkv_dma())
    for x in qkv_adv(): A(x)
    stamp(A, pfx + "_issued")
    A("s_waitcnt vmcnt(9)")
    A("s_barrier")
    stamp(A, pfx + "_first")
    for x in qkv_reads(0, FA_): A(x)
    emit_dma_block(A, qkv_dma()[:7])
    A(f"s_branch {pfx}_mid")
    A(".p2align 3")
    A.label(f"{pfx}_loop")
    outl = []
    for k, (c, fn) in enumerate(blk):
        A(f"s_cmp_eq_u32 s{sCNT}, {c}")
        A(f"s_cbranch_scc1 {pfx}_blk{k}")
    A.label(f"{pfx}_noblk")
    rest = top_half(9, qkv_dma())
    assert len(rest) == 5
    A.label(f"{pfx}_mid")
    bot_half(True, [f"s_add_u32 s{sCNT}, s{sCNT}, 1", f"s_cmp_lt_u32 s{sCNT}, 8"], rest)
    A(f"s_cbranch_scc1 {pfx}_loop")
    for it in (8, 9):
        g, w = extras.get(it, ([], 9 if it == 8 else 0))
        sl = (1, 3, 5, 8, 10, 12, 14, 16, 18) if len(g) > 14 else (2, 5, 8, 11, 14, 17)
        rest = top_half(w, g, pres.get(it), sl)
        bot_half(False, [], rest, sl)
    stamp(A, pfx + "_loop9")
    A("s_waitcnt lgkmcnt(0)")
    if isq:
        for m in qkv_mfmas(FB_, isq): A(m)
        A("s_nop 7")
        stamp(A, pfx + "_loopdone")
    def outline(A):
        for k, (c, fn) in enumerate(blk):
            A.label(f"{pfx}_blk{k}")
            fn(A)
            A(f"s_branch {pfx}_noblk")
    return outline

PAIRS = [(2,0),(3,0),(2,1),(3,1),(4,1),(3,2),(4,2)]
def kv_mask(i):
    te, tc = PAIRS[i]; m = 0
    for l in range(64):
        c = 16*tc + l % 16; e = [-8, 8, 24][te-2] + 4*(l//16)
        if c < 40 and e >= 0 and c//20 == e//20: m |= 1 << l
    return m

KVB = [sum(bin(kv_mask(j)).count("1") for j in range(i)) for i in range(8)]
def kv_rank(A, dst, i, shift, add=0):
    m = kv_mask(i)
    A(f"s_mov_b32 s85, {m & 0xffffffff:#x}")
    A(f"s_mov_b32 s86, {m >> 32:#x}")
    A(f"v_mbcnt_lo_u32_b32 v{dst}, s85, {KVB[i]}" if KVB[i] <= 64 else f"v_mov_b32 v{dst}, {KVB[i]}\nv_mbcnt_lo_u32_b32 v{dst}, s85, v{dst}")
    A(f"v_mbcnt_hi_u32_b32 v{dst}, s86, v{dst}")
    A(f"v_lshlrev_b32 v{dst}, {shift}, v{dst}")
    if add: A(f"v_add_u32 v{dst}, {add}, v{dst}")
vKR = 246
def phi4(A, b, T, dst=None):
    dst = b if dst is None else dst
    A(f"v_pk_mul_f32 {vr(T,2)}, {vr(b,2)}, s[{sL2}:{sL2+1}]")
    A(f"v_pk_mul_f32 {vr(T+2,2)}, {vr(b+2,2)}, s[{sL2}:{sL2+1}]")
    for i in range(4): A(f"v_exp_f32 v{T+i}, v{T+i} clamp")
    for i in range(4): A(f"v_max_f32 v{dst+i}, {EPS6:#x}, v{b+i}")
    A(f"v_pk_add_f32 {vr(dst,2)}, {vr(dst,2)}, {vr(T,2)}")
    A(f"v_pk_add_f32 {vr(dst+2,2)}, {vr(dst+2,2)}, {vr(T+2,2)}")
sL2 = 88
vEW, vEZ, vER, sKVS = 250, 251, 252, 26
def kv_esetup(A):
    A(f"s_lshl_b32 s85, s{sBp}, 1")
    A(f"s_add_u32 s85, s85, s{sWC_}")
    A("s_lshl_b32 s86, s85, 4")
    A(f"s_add_u32 s86, s86, s{sA}")
    A("s_lshl_b32 s87, s86, 8")
    A(f"s_mul_i32 s{sKVS}, s86, 3200")
    A(f"s_sub_u32 s87, s87, s{sKVS}")
    A(f"s_add_u32 s87, s87, {WS_ZP - WS_KVP:#x}")
    A("s_lshr_b32 s87, s87, 4")
    A(f"s_add_u32 s{sKVS}, s{sKVS}, {WS_KVP:#x}")
    A("v_mov_b32 v2, 0x7ff00000")
    for k in range(4):
        mA = kv_mask(k); mB = kv_mask(4+k) if k < 3 else 0xffff
        A(f"s_cmp_eq_u32 s{sWR_}, 0")
        A(f"s_mov_b32 s92, {mB & 0xffffffff:#x}")
        A(f"s_cselect_b32 s92, {mA & 0xffffffff:#x}, s92")
        A(f"s_mov_b32 s93, {mB >> 32:#x}")
        A(f"s_cselect_b32 s93, {mA >> 32:#x}, s93")
        if k < 3: A(f"s_mov_b32 s88, {KVB[4+k]}")
        A(f"s_cselect_b32 s88, {KVB[k]}, s{88 if k < 3 else 87}")
        A(f"v_mov_b32 v{vKR+k}, s88")
        A(f"v_mbcnt_lo_u32_b32 v{vKR+k}, s92, v{vKR+k}")
        A(f"v_mbcnt_hi_u32_b32 v{vKR+k}, s93, v{vKR+k}")
        A(f"v_lshlrev_b32 v{vKR+k}, 4, v{vKR+k}")
        A(f"v_cndmask_b32 v{vKR+k}, v2, v{vKR+k}, s[92:93]")
    A(f"s_mul_i32 s85, s{sWAVE}, 8448")
    A(f"s_add_u32 s85, s85, {LDS_RED}")
    A(f"v_add_u32 v{vEW}, s85, v{vB0}")
    A(f"v_lshl_add_u32 v{vEZ}, v1, 2, s85")
    A(f"s_mul_i32 s85, s{sWC_}, 8448")
    A(f"s_lshl_b32 s86, s{sWR_}, 12")
    A("s_add_u32 s85, s85, s86")
    A(f"s_add_u32 s85, s85, {LDS_RED}")
    A(f"v_add_u32 v{vER}, s85, v{vB0}")
    A("v_and_b32 v2, 15, v1")
    A(f"v_cmp_gt_u32 s[{sMK}:{sMK+1}], 8, v2")
    A("v_cmp_lt_u32 s[64:65], 15, v1")
    A("v_cmp_lt_u32 s[66:67], 31, v1")
def kv_estream():
    PB, KA, ONE, TMP = 128, 168, 208, 212
    E = [Asm(), Asm(), Asm(), Asm()]
    A = E[0]
    A(f"s_mov_b32 s{sL2}, {LOG2E:#x}")
    A(f"s_mov_b32 s{sL2+1}, {LOG2E:#x}")
    for i in range(4): A(f"v_mov_b32 v{ONE+i}, 0x3f803f80")
    for st in range(4):
        A = E[st // 2]
        for t in range(3):
            b = ACC + (st*5+t)*4
            if t < 2: phi4(A, b, TMP)
            else:
                phi4(A, b, TMP, TMP+4)
                for i in range(4): A(f"v_cndmask_b32 v{b+i}, v{b+i}, v{TMP+4+i}, s[{sMK}:{sMK+1}]")
        for t in range(5):
            b = ACC + (st*5+t)*4
            d = PB + (t*2 + st//2)*4 + (st & 1)*2
            A(f"v_cvt_pk_bf16_f32 v{d}, v{b}, v{b+1}")
            A(f"v_cvt_pk_bf16_f32 v{d+1}, v{b+2}, v{b+3}")
        if st & 1:
            sp = st // 2
            A("s_nop 1")
            for tc in range(3):
                c = vr(KA+4*(7+tc), 4)
                A(f"v_mfma_f32_16x16x32_bf16 {c}, {vr(ONE,4)}, {vr(PB+(tc*2+sp)*4,4)}, {c if sp else 0}")
            for i, (te, tc) in enumerate(PAIRS):
                c = vr(KA+4*i, 4)
                A(f"v_mfma_f32_16x16x32_bf16 {c}, {vr(PB+(te*2+sp)*4,4)}, {vr(PB+(tc*2+sp)*4,4)}, {c if sp else 0}")
    A = E[1]
    A("s_nop 0")
    A(f"v_cndmask_b32 v{KA+28}, v{KA+28}, v{KA+32}, s[64:65]")
    A(f"v_cndmask_b32 v{KA+28}, v{KA+28}, v{KA+36}, s[66:67]")
    A(f"ds_write_b32 v{vEZ}, v{KA+28} offset:7168")
    for i in range(7): A(f"ds_write_b128 v{vEW}, {vr(KA+4*i,4)} offset:{1024*i}")
    A = E[2]
    for k in range(4):
        A(f"ds_read_b128 {vr(PB+8*k,4)}, v{vER} offset:{1024*k}")
        A(f"ds_read_b128 {vr(PB+8*k+4,4)}, v{vER} offset:{1024*k + 16896}")
    A = E[3]
    A("s_waitcnt lgkmcnt(0)")
    for k in range(4):
        for i in (0, 2): A(f"v_pk_add_f32 {vr(PB+8*k+i,2)}, {vr(PB+8*k+i,2)}, {vr(PB+8*k+4+i,2)}")
    for k in range(4):
        A(f"buffer_store_dwordx4 {vr(PB+8*k,4)}, v{vKR+k}, s[{sWS}:{sWS+3}], s{sKVS} offen sc1")
    return [e.lines for e in E]

def w1_setup(A, locbase, vreg):
    A(f"s_sub_u32 s88, s82, {locbase}")
    A("s_lshl_b32 s88, s88, 2")
    A(f"s_add_u32 s88, s88, s{sWAVE}")
    A(f"v_and_b32 v{vreg}, 31, v1")
    A(f"v_mul_u32_u24 v{vreg}, 3072, v{vreg}")
    A("v_lshrrev_b32 v3, 5, v1")
    A(f"v_lshl_add_u32 v{vreg}, v3, 9, v{vreg}")
    A(f"s_mul_i32 s85, s88, {32*3072}")
    A("s_lshl_b32 s86, s83, 7")
    A("s_add_u32 s85, s85, s86")
    A(f"s_mul_i32 s86, s84, {1024*3072}")
    A("s_add_u32 s26, s86, s85")
    A("s_xor_b32 s87, s84, 1")
    A(f"s_mul_i32 s87, s87, {1024*3072}")
    A("s_add_u32 s27, s87, s85")

def w2_prefetch(A, locbase, parts):
    A(f"s_sub_u32 s85, s82, {locbase}")
    A("s_lshl_b32 s85, s85, 2")
    A(f"s_add_u32 s85, s85, s{sWAVE}")
    if OPT["fmap"]:
        A("v_lshrrev_b32 v2, 2, v1")
        A("v_lshlrev_b32 v2, 12, v2")
        A("v_and_b32 v3, 3, v1")
        A(f"v_lshl_add_u32 v2, v3, {10 if OPT['fmap'] == 1 else 7}, v2")
        A(f"s_mul_i32 s85, s85, {48*4096}")
        A(f"s_lshl_b32 s86, s81, {7 if OPT['fmap'] == 1 else 9}")
        A("s_add_u32 s85, s85, s86")
        if parts[0]: A(f"s_add_u32 s85, s85, {16*4096*parts[0]}")
        for i in parts:
            A(f"buffer_load_dword a255, v2, s[{sW2}:{sW2+3}], s85 offen")
            if i != parts[-1]: A(f"s_add_u32 s85, s85, {16*4096}")
        return
    if OPT["w2c"]:
        A("s_lshl_b32 s86, s81, 5")
        A("s_add_u32 s85, s85, s86")
        A("s_lshl_b32 s85, s85, 13")
        if parts[0]: A(f"s_add_u32 s85, s85, {(8192*256)*parts[0]}")
        for i in parts:
            A(f"buffer_load_dword a255, v15, s[{sW2}:{sW2+3}], s85 offen")
            if i != parts[-1]: A(f"s_add_u32 s85, s85, {8192*256}")
        return
    A("v_lshrrev_b32 v2, 3, v1")
    A("v_lshlrev_b32 v2, 12, v2")
    A("v_and_b32 v3, 7, v1")
    A("v_lshl_add_u32 v2, v3, 7, v2")
    A("s_mul_i32 s85, s85, 24")
    A("s_mul_i32 s86, s84, 768")
    A("s_add_u32 s85, s85, s86")
    A(f"s_add_u32 s85, s85, {8*parts[0]}")
    A("s_lshl_b32 s85, s85, 12")
    A("s_lshl_b32 s86, s83, 10")
    A("s_add_u32 s85, s85, s86")
    for i in parts:
        A(f"buffer_load_dword a255, v2, s[{sW2}:{sW2+3}], s85 offen")
        if i != parts[-1]: A(f"s_add_u32 s85, s85, {8*4096}")

QCB = [0, 16, 32, 40, 56]
QDP = [(0,0),(0,1),(1,0),(1,1),(1,2),(2,1),(2,2),(2,4),(3,3),(3,4),(4,2),(4,3),(4,4)]
sMA, sZO, sKO, sPQ, sWOo, sGo = 56, 58, 59, 64, 67, 23
vWOd, vWOt, vZA, vKP, vGo, vT1 = 248, 246, 252, 245, 25, 244
MSK = 194
def q_setup(A):
    T = 128
    A(f"s_mul_i32 s{sWOo}, s{sU}, {40*1280}")
    A(f"s_mul_i32 s86, s{sNR}, 320")
    A(f"s_add_u32 s{sWOo}, s{sWOo}, s86")
    A(f"s_lshl_b32 s86, s{sWAVE}, 8")
    for n in range(4):
        A(f"v_add_u32 v2, {64*n}, v1")
        A("v_add_u32 v2, s86, v2")
        A("v_mul_u32_u24 v3, 3277, v2")
        A("v_lshrrev_b32 v3, 16, v3")
        A("v_mul_u32_u24 v4, 20, v3")
        A("v_sub_u32 v4, v2, v4")
        A("v_mul_u32_u24 v3, 1280, v3")
        A(f"v_lshl_add_u32 v{vWOd+n}, v4, 4, v3")
        if n: A(f"v_subrev_u32 v{vWOd+n}, {1024*n}, v{vWOd+n}")
    A("v_and_b32 v3, 15, v1")
    A("v_lshrrev_b32 v4, 4, v1")
    A(f"v_lshlrev_b32 v{vGo}, 2, v3")
    A(f"s_lshl_b32 s86, s{sA}, 9")
    A(f"s_lshl_b32 s87, s{sWR_}, 8")
    A("s_add_u32 s86, s86, s87")
    A(f"s_add_u32 s{sGo}, s86, {WS_G:#x}")
    A("v_bfe_u32 v5, v1, 1, 2")
    A(f"s_lshl_b32 s85, s{sWAVE}, 2")
    A("v_add_lshl_u32 v5, v5, s85, 3")
    A("v_and_b32 v6, 1, v1")
    A(f"s_lshl_b32 s85, s{sBp}, 1")
    A("v_add3_u32 v5, v5, v6, s85")
    A(f"v_lshlrev_b32 v{vKP}, 7, v5")
    A("v_lshrrev_b32 v5, 2, v3")
    A("v_lshl_add_u32 v5, v4, 2, v5")
    A("v_and_b32 v6, 7, v5")
    A("v_mul_u32_u24 v6, 320, v6")
    A("v_mul_u32_u24 v5, 320, v5")
    A("v_and_b32 v7, 3, v1")
    A("v_lshlrev_b32 v7, 3, v7")
    A(f"s_lshl_b32 s86, s{sWAVE}, 5")
    A("v_add_u32 v7, s86, v7")
    A(f"v_add_u32 v{vWOt}, v6, v7")
    A(f"v_add_u32 v{vWOt+1}, v5, v7")
    A(f"s_lshr_b32 s86, s{sU}, 2")
    A("s_mul_i32 s86, s86, 5")
    A(f"s_bfe_u32 s87, s{sU}, 0x10001")
    A(f"s_and_b32 s88, s{sU}, 1")
    A("s_mul_i32 s89, s87, 3")
    A("s_add_u32 s89, s89, s88")
    A("s_add_u32 s89, s89, s86")
    A(f"s_mul_i32 s{sMA}, s89, 40960")
    A("s_add_u32 s86, s86, 2")
    A(f"s_mul_i32 s{sMA+1}, s86, 40960")
    A("s_lshl_b32 s87, s87, 3")
    A("s_lshl_b32 s88, s88, 9")
    A(f"s_add_u32 s{sMA+1}, s{sMA+1}, s87")
    A(f"s_add_u32 s{sMA+1}, s{sMA+1}, s88")
    A(f"s_mul_i32 s86, s{sNR}, 10240")
    A(f"s_lshl_b32 s87, s{sWAVE}, 10")
    A("s_add_u32 s86, s86, s87")
    A(f"s_add_u32 s86, s86, {WS_M:#x}")
    A(f"s_add_u32 s{sMA}, s{sMA}, s86")
    A(f"s_add_u32 s{sMA+1}, s{sMA+1}, s86")
    A(f"s_lshl_b32 s85, s{sA}, 1")
    A(f"s_add_u32 s85, s85, s{sWR_}")
    A("s_mul_i32 s85, s85, 20")
    A(f"s_mul_i32 s86, s{sBp}, 5")
    A("s_add_u32 s85, s85, s86")
    A("s_lshl_b32 s85, s85, 12")
    A(f"s_add_u32 s85, s85, {WS_PQ:#x}")
    A(f"s_mul_i32 s86, s{sWC_}, {3*4096}")
    A(f"s_add_u32 s{sPQ}, s86, s85")
    A(f"s_add_u32 s{sPQ+1}, s{sPQ}, 4096")
    A(f"s_lshl_b32 s88, s{sWC_}, 3")
    A("s_add_u32 s88, s88, s85")
    A(f"s_add_u32 s{sPQ+2}, s88, 8192")
    A(f"v_add_u32 v5, s{sWAVE}, v1")
    A(f"s_mul_i32 s85, s{sWAVE}, 9")
    A("v_add_u32 v5, s85, v5")
    A("v_lshrrev_b32 v6, 2, v5")
    A("v_and_b32 v5, 3, v5")
    A("v_lshlrev_b32 v5, 7, v5")
    A("v_lshl_add_u32 v5, v6, 10, v5")
    A(f"s_sub_u32 s85, s{sMA+1}, s87")
    A("s_and_b32 s85, s85, 0xffffff80")
    A("v_add_u32 v5, s85, v5")
    A(f"s_and_b32 s85, s{sPQ+2}, 0xffffff80")
    A(f"s_lshl_b32 s86, s{sWC_}, 11")
    A("s_add_u32 s85, s85, s86")
    A("v_lshlrev_b32 v6, 7, v3")
    A("v_add_u32 v6, s85, v6")
    A("v_cmp_gt_u32 vcc, 10, v1")
    A("s_nop 1")
    A(f"v_cndmask_b32 v{vT1}, v6, v5, vcc")
    A(f"v_mov_b32 v{T}, {LDS_RED + 1600}")
    for i in range(7):
        kv_rank(A, 26+i, i, 3, LDS_RED)
        A(f"s_mov_b32 s92, s85")
        A(f"s_mov_b32 s93, s86")
        A(f"v_cndmask_b32 v{26+i}, v{T}, v{26+i}, s[92:93]")
    cb = QCB
    for t in range(5):
        A(f"v_lshl_add_u32 v{T+t}, v4, 2, {cb[t]}")
        A(f"v_add_u32 v{T+5+t}, {cb[t]}, v3")
        if t == 2:
            A("v_lshrrev_b32 v5, 1, v4")
            A(f"v_lshl_add_u32 v{T+t}, v5, 5, v{T+t}")
            A("v_mul_u32_u24 v7, 4064, v5")
            A("v_lshrrev_b32 v5, 3, v3")
            A(f"v_lshl_add_u32 v{T+5+t}, v5, 5, v{T+5+t}")
        A(f"v_mul_u32_u24 v{T+t}, 205, v{T+t}")
        A(f"v_lshrrev_b32 v{T+t}, 12, v{T+t}")
        A(f"v_mul_u32_u24 v{T+5+t}, 205, v{T+5+t}")
        A(f"v_lshrrev_b32 v{T+5+t}, 12, v{T+5+t}")
    for k, (tp, t) in enumerate(QDP):
        A(f"v_cmp_eq_u32 vcc, v{T+t}, v{T+5+tp}")
        A("s_nop 1")
        A(f"v_cndmask_b32 v{MSK+k}, 0, -1, vcc")
    A("v_lshlrev_b32 v5, 8, v3")
    A(f"v_lshl_add_u32 v{vZA}, v4, 4, v5")
    A(f"v_add_u32 v{vZA+2}, v7, v{vZA}")
    A(f"v_add_u32 v{vZA+1}, 4096, v{vZA}")
    A(f"s_lshl_b32 s86, s{sBp}, 14")
    A(f"s_lshl_b32 s87, s{sWC_}, 13")
    A("s_add_u32 s86, s86, s87")
    A(f"s_add_u32 s{sZO}, s86, {WS_ZP:#x}")
    A(f"s_mul_i32 s89, s{sU}, {16*3200}")
    A(f"s_mul_i32 s87, s{sWAVE}, 800")
    A("s_add_u32 s87, s87, s89")
    A(f"s_add_u32 s{sKO}, s87, {WS_KVP:#x}")
    if OPT["qw2"]:
        A("s_sub_u32 s85, s82, 16")
        A("s_lshl_b32 s85, s85, 2")
        A(f"s_add_u32 s85, s85, s{sWAVE}")
        A("s_lshl_b32 s86, s81, 5")
        A("s_add_u32 s85, s85, s86")
        A("s_lshl_b32 s85, s85, 13")
        A(f"s_add_u32 s99, s85, {8192*256*(3 - OPT['qw2'])}")
def q_pf_only(A):
    for k in range(3 - OPT["qw1n"], 3):
        A(f"buffer_load_dword a255, v12, s[{sW1}:{sW1+3}], s26 offen offset:{1024*k}")
def q_loop_pf(A):
    if OPT["qw1"] == 0:
        A("s_mov_b32 exec_lo, 0xffff03ff")
        A("s_mov_b32 exec_hi, 0")
        A(f"buffer_load_dword a255, v{vT1}, s[{sWS}:{sWS+3}], 0 offen sc1")
        A("s_mov_b64 exec, -1")
        return
    for k in range(3 - OPT["qw1n"], 3):
        A(f"buffer_load_dword a255, v12, s[{sW1}:{sW1+3}], s26 offen offset:{1024*k}")
    if OPT["qw1b"]:
        for k in range(3): A(f"buffer_load_dword a255, v12, s[{sW1}:{sW1+3}], s27 offen offset:{1024*k}")
    for k in range(OPT["qw2"]):
        A(f"buffer_load_dword a255, v15, s[{sW2}:{sW2+3}], s99 offen")
        A(f"s_add_u32 s99, s99, {8192*256}")
    if OPT["touch"] and not OPT["qdefer"]:
        A("s_mov_b32 exec_lo, 0xffff03ff")
        A("s_mov_b32 exec_hi, 0")
        A(f"buffer_load_dword a255, v{vT1}, s[{sWS}:{sWS+3}], 0 offen sc1")
        A("s_mov_b64 exec, -1")
def q_extras():
    g8 = [[poll_ld(vPO, 24)], [f"s_lshl_b32 m0, s{sWAVE}, 12"]] + [[f"buffer_load_dwordx4 v{vWOd+n}, s[{sWO}:{sWO+3}], s{sWOo} offen offset:{1024*n} lds"] for n in range(4)]
    g9 = [[f"buffer_load_dword v{8+st}, v{vGo}, s[{sWS}:{sWS+3}], s{sGo} offen offset:{64*st} sc1"] for st in range(4)]
    return {8: (g8, 9), 9: (g9, 0)}

def q_epilogue(A):
    PK, Z, AF, ZP, G = 128, 168, 168, 16, 8
    KA_, DEN, OUT, TMP = 48, 204+0, 224, 112
    WBa, KVa = 0, 20
    cb, dp = QCB, QDP
    A(f"s_mov_b32 s24, {FL_KV:#x}")
    for i in range(3):
        A(f"ds_read_b64_tr_b16 {ar(WBa+6*i,2)}, v{vWOt} offset:{128*i}")
        A(f"ds_read_b64_tr_b16 {ar(WBa+6*i+2,2)}, v{vWOt+1} offset:{128*i + 8*320}")
        A(f"ds_read_b64_tr_b16 {ar(WBa+6*i+4,2)}, v{vWOt+1} offset:{128*i + 24*320}")
    A(f"v_mov_b32 v2, {LDS_RED + 1600}")
    A("v_mov_b64 v[4:5], 0")
    A("ds_write_b64 v2, v[4:5]")
    A(f"s_mov_b32 s{sL2}, {LOG2E:#x}")
    A(f"s_mov_b32 s{sL2+1}, {LOG2E:#x}")
    for k, b in enumerate(range(ACC, ACC+80, 4)):
        if k == 12: A(poll_ld(vKP, 24))
        phi4(A, b, 208)
        A(f"v_cvt_pk_bf16_f32 v{PK+2*k}, v{b}, v{b+1}")
        A(f"v_cvt_pk_bf16_f32 v{PK+2*k+1}, v{b+2}, v{b+3}")
    stamp(A, "q_pre")
    A("s_waitcnt vmcnt(0) lgkmcnt(0)")
    poll_check(A, "pkv", vKP, 24)
    A("s_barrier")
    stamp(A, "q_kvok")
    for t in range(5):
        A(f"buffer_load_dwordx4 {vr(Z+4*t,4)}, v{vZA+[0,0,2,1,1][t]}, s[{sWS}:{sWS+3}], s{sZO} offen offset:{[0,64,128,0,64][t]} sc1")
    kvl = []
    for rb in range(0, 16, 2):
        kvl.append(["s_mov_b32 exec_hi, 0x3ffff",
                    f"buffer_load_dwordx4 {vr(KA_+4*rb,4)}, v{vB0}, s[{sWS}:{sWS+3}], s{sKO} offen sc1",
                    f"buffer_load_dwordx4 {vr(KA_+4*rb+4,4)}, v{vB0}, s[{sWS}:{sWS+3}], s{sKO} offen offset:3200 sc1",
                    "s_mov_b32 exec_hi, -1", f"s_add_u32 s{sKO}, s{sKO}, 6400"])
    def kv(n):
        for _ in range(n):
            if kvl:
                for x in kvl.pop(0): A(x)
    kv(2)
    A("s_waitcnt vmcnt(4)")
    stamp(A, "q_z")
    for rot in (8, 4, 2, 1):
        kv(1)
        for i in range(20):
            A(f"v_add_f32_dpp v{Z+i}, v{Z+i}, v{Z+i} row_ror:{rot} row_mask:0xf bank_mask:0xf")
    for i in range(10): A(f"v_cvt_pk_bf16_f32 v{ZP+i}, v{Z+2*i}, v{Z+2*i+1}")
    kv(2)
    for k, (tp, t) in enumerate(dp):
        A(f"v_and_b32 v{AF+2*k}, v{MSK+k}, v{ZP+2*t}")
        A(f"v_and_b32 v{AF+2*k+1}, v{MSK+k}, v{ZP+2*t+1}")
    A("s_nop 0")
    DEN2 = 224
    def den(st, Dn):
        seen = set()
        for k, (tp, t) in enumerate(dp):
            c = vr(Dn + 4*tp, 4)
            A(f"v_mfma_f32_16x16x16_bf16 {c}, {vr(AF+2*k,2)}, {vr(PK+(st*5+t)*2,2)}, {c if tp in seen else 0}")
            seen.add(tp)
    den(0, DEN)
    for st in range(4):
        Dn = DEN if (st & 1) == 0 else DEN2
        o = OUT
        U = TMP + 10
        if st < 3: den(st + 1, DEN2 if (st & 1) == 0 else DEN)
        else: A("s_nop 7")
        kv(OPT["kvr"])
        for tp in range(5): A(f"v_add_f32 v{TMP+2*tp}, {EPS6:#x}, v{Dn+4*tp}")
        for tp in range(5): A(f"v_rcp_f32 v{TMP+2*tp}, v{TMP+2*tp}")
        A("s_nop 0")
        for tp in range(5): A(f"v_mul_f32 v{TMP+2*tp}, v{TMP+2*tp}, v{G+st}")
        for tp in range(5):
            p = PK + (st*5+tp)*2
            if tp == 2: kv(OPT["kvr"])
            A(f"v_lshlrev_b32 v{U}, 16, v{p}")
            A(f"v_and_b32 v{U+1}, 0xffff0000, v{p}")
            A(f"v_lshlrev_b32 v{U+2}, 16, v{p+1}")
            A(f"v_and_b32 v{U+3}, 0xffff0000, v{p+1}")
            A(f"v_pk_mul_f32 {vr(U,2)}, {vr(U,2)}, {vr(TMP+2*tp,2)} op_sel_hi:[1,0]")
            A(f"v_pk_mul_f32 {vr(U+2,2)}, {vr(U+2,2)}, {vr(TMP+2*tp,2)} op_sel_hi:[1,0]")
            A(f"v_cvt_pk_bf16_f32 v{p}, v{U}, v{U+1}")
            A(f"v_cvt_pk_bf16_f32 v{p+1}, v{U+2}, v{U+3}")
        p = PK + st*10
        A(f"buffer_store_dwordx4 {vr(p,4)}, v{vB0}, s[{sWS}:{sWS+3}], s{sPQ} offen offset:{1024*st} sc1")
        A(f"buffer_store_dwordx4 {vr(p+6,4)}, v{vB0}, s[{sWS}:{sWS+3}], s{sPQ+1} offen offset:{1024*st} sc1")
        A(f"buffer_store_dwordx2 {vr(p+4,2)}, v{vB0}, s[{sWS}:{sWS+3}], s{sPQ+2} offen offset:{1024*st} sc1")
    assert not kvl
    stamp(A, "q_pq")
    A("s_waitcnt vmcnt(12)")
    stamp(A, "q_kv")
    for w in (32, 16, 8, 4):
        for i in range(0, w, 2):
            A(f"v_pk_add_f32 {vr(KA_+i,2)}, {vr(KA_+i,2)}, {vr(KA_+w+i,2)}")
    A(f"s_mul_i32 s86, s{sWAVE}, 400")
    A(f"s_add_u32 s86, s86, {LDS_RED}")
    A("v_lshlrev_b32 v7, 3, v1")
    A("v_add_u32 v7, s86, v7")
    A(f"v_cvt_pk_bf16_f32 v{KA_}, v{KA_}, v{KA_+1}")
    A(f"v_cvt_pk_bf16_f32 v{KA_+1}, v{KA_+2}, v{KA_+3}")
    A("s_mov_b32 exec_hi, 0x3ffff")
    A(f"ds_write_b64 v7, {vr(KA_,2)}")
    A("s_mov_b32 exec_hi, -1")
    A("s_waitcnt lgkmcnt(0)")
    A("s_barrier")
    stamp(A, "q_bar")
    for i in range(7): A(f"ds_read_b64 {ar(KVa+2*i,2)}, v{26+i}")
    A("s_waitcnt lgkmcnt(0)")
    MD = 64
    for i in range(3):
        seen = set()
        for k, (te, tc) in enumerate(PAIRS):
            c = vr(MD + (i*3+tc)*4, 4)
            A(f"v_mfma_f32_16x16x16_bf16 {c}, {ar(KVa+2*k,2)}, {ar(WBa+6*i+2*(te-2),2)}, {c if tc in seen else 0}")
            seen.add(tc)
    for i in range(3):
        if i == 2:
            A(f"s_cmp_ge_u32 s{sWAVE}, 2")
            A("s_cbranch_scc1 q_m_done")
            A("s_nop 2")
        b = MD + i*12
        for k in range(6): A(f"v_cvt_pk_bf16_f32 v{b+k}, v{b+2*k}, v{b+2*k+1}")
        A(f"buffer_store_dwordx4 {vr(b,4)}, v{vB0}, s[{sWS}:{sWS+3}], s{sMA} offen sc1")
        A("s_mov_b32 exec_hi, 0")
        A(f"buffer_store_dwordx2 {vr(b+4,2)}, v{vB0}, s[{sWS}:{sWS+3}], s{sMA+1} offen sc1")
        A("s_mov_b32 exec_hi, -1")
        A(f"s_add_u32 s{sMA}, s{sMA}, 4096")
        A(f"s_add_u32 s{sMA+1}, s{sMA+1}, 4096")
    A.label("q_m_done")
    stamp(A, "q_mdone")

def ln_role(A, after_loads, ne):
    X, GW, D = 48, 88, 128
    A("v_lshrrev_b32 v2, 3, v1")
    A(f"s_lshl_b32 s85, s{sWAVE}, 3")
    A("v_add_u32 v2, s85, v2")
    A("v_and_b32 v3, 7, v1")
    A("v_lshlrev_b32 v3, 4, v3")
    A("v_mul_u32_u24 v4, 1280, v2")
    A("v_add_u32 v4, v4, v3")
    A(f"s_mul_i32 s85, s{sA}, {32*1280}")
    A("s_waitcnt lgkmcnt(0)"); srds(A, ["X", "GW"])
    for i in range(10):
        A(f"buffer_load_dwordx4 {vr(X+4*i,4)}, v4, s[{sX}:{sX+3}], s85 offen offset:{128*i}")
    for i in range(10):
        A(f"buffer_load_dwordx4 {vr(GW+4*i,4)}, v3, s[{sGW}:{sGW+3}], 0 offen offset:{128*i}")
    A("v_mul_u32_u24 v16, 1312, v2")
    A("v_add_u32 v16, v16, v3")
    A("v_lshlrev_b32 v17, 2, v2")
    after_loads(A)
    A("v_mov_b32 v5, 0x3f803f80")
    for i in range(4): A(f"v_mov_b32 v{8+i}, 0")
    A(f"s_waitcnt vmcnt({10+ne})")
    stamp(A, "ln_first")
    for i in range(40):
        A(f"v_dot2_f32_bf16 v{8+(i&1)}, v{X+i}, v5, v{8+(i&1)}")
    A(f"s_waitcnt vmcnt({ne})")
    for i in range(40):
        A(f"v_dot2_f32_bf16 v{10+(i&1)}, v{X+i}, v{GW+i}, v{10+(i&1)}")
    A("s_nop 2")
    A("v_add_f32 v8, v8, v9")
    A("v_add_f32 v10, v10, v11")
    def red8(r):
        for m in ("quad_perm:[1,0,3,2]", "quad_perm:[2,3,0,1]", "row_half_mirror"):
            A("s_nop 1")
            for x in r: A(f"v_add_f32_dpp v{x}, v{x}, v{x} {m} row_mask:0xf bank_mask:0xf")
    red8([8, 10])
    A(f"v_mul_f32 v8, {0xBACCCCCD:#x}, v8")
    A("v_mov_b32 v9, v8")
    A(f"v_mul_f32 v10, {LOG2E | 0x80000000:#x}, v10")
    A("v_exp_f32 v10, v10")
    for i in range(40):
        A(f"v_lshlrev_b32 v{D+2*i}, 16, v{X+i}")
        A(f"v_and_b32 v{D+2*i+1}, 0xffff0000, v{X+i}")
    A("v_add_f32 v10, 1.0, v10")
    A("v_rcp_f32 v10, v10")
    for i in range(40):
        A(f"v_pk_add_f32 {vr(D+2*i,2)}, {vr(D+2*i,2)}, v[8:9]")
    A("v_pk_mul_f32 v[18:19], v[128:129], v[128:129]")
    A("v_pk_mul_f32 v[20:21], v[130:131], v[130:131]")
    for i in range(2, 40):
        a = 18 + 2*(i & 1)
        A(f"v_pk_fma_f32 {vr(a,2)}, {vr(D+2*i,2)}, {vr(D+2*i,2)}, {vr(a,2)}")
    A("v_pk_add_f32 v[18:19], v[18:19], v[20:21]")
    A("ds_write_b32 v17, v10 offset:49152")
    A("v_add_f32 v18, v18, v19")
    red8([18])
    A(f"v_mov_b32 v19, {0x3727C5AC:#x}")
    A(f"v_fmac_f32 v19, {0x3ACCCCCD:#x}, v18")
    A("v_rsq_f32 v18, v19")
    A("s_nop 0")
    A("v_mov_b32 v19, v18")
    for i in range(40):
        A(f"v_pk_mul_f32 {vr(D+2*i,2)}, {vr(D+2*i,2)}, v[18:19]")
        A(f"v_cvt_pk_bf16_f32 v{X+i}, v{D+2*i}, v{D+2*i+1}")
        if (i & 3) == 3:
            A(f"ds_write_b128 v16, {vr(X+i-3,4)} offset:{128*(i//4)}")
    A("v_lshrrev_b32 v2, 2, v1")
    A("v_mul_u32_u24 v2, 1312, v2")
    A("v_and_b32 v3, 3, v1")
    A("v_lshl_add_u32 v2, v3, 3, v2")
    A(f"s_mul_i32 s85, s{sWAVE}, 320")
    A("v_add_u32 v2, s85, v2")
    A(f"s_mul_i32 s85, s{sA}, 40960")
    A(f"s_mul_i32 s86, s{sWAVE}, 10240")
    A("s_add_u32 s85, s85, s86")
    A("s_add_u32 s86, s85, 4096")
    A("s_add_u32 s87, s85, 8192")
    A("v_lshlrev_b32 v17, 2, v1")
    A(f"s_lshl_b32 s88, s{sA}, 7")
    A(f"s_add_u32 s88, s88, {WS_G:#x}")
    A("s_waitcnt lgkmcnt(0)")
    A("s_barrier")
    A(f"s_cmp_lg_u32 s{sWAVE}, 3")
    A("s_cbranch_scc1 ln_ng")
    A("ds_read_b32 v10, v17 offset:49152")
    A("s_waitcnt lgkmcnt(0)")
    A("s_mov_b32 exec_hi, 0")
    A(f"buffer_store_dword v10, v17, s[{sWS}:{sWS+3}], s88 offen sc1")
    A("s_mov_b32 exec_hi, -1")
    A.label("ln_ng")
    for t in range(10):
        A(f"ds_read_b64_tr_b16 {vr(D+4*t,2)}, v2 offset:{32*t}")
        A(f"ds_read_b64_tr_b16 {vr(D+4*t+2,2)}, v2 offset:{32*t + 16*1312}")
        if t == 6: A("s_waitcnt lgkmcnt(6)")
    for t in range(10):
        A(f"s_waitcnt lgkmcnt({min(2*(9-t), 6)})")
        A(f"buffer_store_dwordx4 {vr(D+4*t,4)}, v{vB0}, s[{sWS}:{sWS+3}], s{85 + t//4} offen offset:{1024*(t&3)} sc1")

def c_adv1(): return [f"s_add_u32 s{sC1}, s{sC1}, s{sCST}", f"s_cmp_eq_u32 s{sC1}, s{sCE1}", f"s_cselect_b32 s{sC1}, s{sCB1}, s{sC1}"]
def c_adv2(): return [f"s_add_u32 s{sC2}, s{sC2}, 40960", f"s_cmp_eq_u32 s{sC2}, s{sCE2}", f"s_cselect_b32 s{sC2}, s{sCB2}, s{sC2}"]
def c_wdma(slot):
    L = [[f"s_add_u32 m0, s{sCM0}, {4096*slot}"]]
    for q in range(4):
        L.append([f"buffer_load_dwordx4 v{vWS_+q}, s[{sCW}:{sCW+3}], s{sC1} offen offset:{1024*q} lds"])
    return L
def c_bload(slot, n):
    return f"buffer_load_dwordx4 {ar(BR+20*slot+4*n,4)}, v{vB0 if n < 4 else vB1}, s[{sWS}:{sWS+3}], s{sC2} offen offset:{1024*(n&3)} sc1"
def c_tr(slot, aset):
    return [f"ds_read_b64_tr_b16 {ar(AS+16*aset+4*t+2*j,2)}, v{vTR+t} offset:{4096*slot+2048*j}" for t in range(4) for j in range(2)]
def c_wring(A):
    for s in range(OPT["d"]):
        emit_dma_block(A, c_wdma(s))
        for x in c_adv1(): A(x)
def c_bring(A):
    for s in range(OPT["d"]):
        for n in range(5): A(c_bload(s, n))
        for x in c_adv2(): A(x)
def switch_to_fb(A):
    A(f"s_mov_b64 s[{sCW}:{sCW+1}], s[{sW2}:{sW2+1}]")
    A(f"s_mov_b64 s[{sCW+2}:{sCW+3}], s[{sW2+2}:{sW2+3}]")
    for i in range(4): A(f"v_mov_b32 v{vWS_+i}, v{vWS2+i}")
    A(f"s_mov_b32 s{sC1}, s{sF1}")
    A(f"s_mov_b32 s{sCB1}, s{sFB1}")
    A(f"s_mov_b32 s{sCE1}, s{sFE1}")
    A(f"s_mov_b32 s{sCST}, {32*4096}")

G1A = 112
def c_step(A, u, wait, doW, doB, doT, accf, w_is_A, drain=None, first=False, side=None, pre=[], late=None):
    DD = OPT["d"]
    A(f"s_waitcnt vmcnt({wait}) lgkmcnt(0)")
    for x in pre: A(x)
    tr = c_tr((u+1) & 3, (u+1) & 1) if doT else []
    mf = []
    for n in range(5):
        for t in range(4):
            w = ar(AS+16*(u & 1)+4*t, 4); b = ar(BR+20*u+4*n, 4); c = accf((t*5+n)*4)
            cin = "0" if first else c
            mf.append(f"v_mfma_f32_16x16x32_bf16 {c}, {w}, {b}, {cin}" if w_is_A else f"v_mfma_f32_16x16x32_bf16 {c}, {b}, {w}, {cin}")
    fill = [[] for _ in range(20)]
    sl = (u + DD) & 3
    wd = c_wdma(sl)
    post = []
    if doW:
        A(wd[0][0])
        for t in range(4): fill[t] += wd[1+t]
        fill[5 if drain else 12] += c_adv1()
    for k, x in enumerate(tr): fill[4+k].append(x)
    if doB:
        for n in range(5): fill[4*n+3].append(c_bload(sl, n))
        fill[19] += c_adv2()
    if side:
        per = -(-len(side) // 20)
        for g in range(20): fill[g] = side[g*per:(g+1)*per] + fill[g]
    if late:
        fill[13] += late[:9]
        post += late[9:]
    if drain:
        for n in range(3):
            for t in range(4): fill[4*(n+2)+t] += drain(n, t)
        post += ["s_nop 3"] + flat([drain(3, t) for t in range(4)]) + flat([drain(4, t) for t in range(4)])
    weave(A, mf, fill)
    for x in post: A(x)

def c_loop(A, pfx, nks, accf, w_is_A, isg1, drain):
    DD = OPT["d"]; W0 = 5 + 9*(DD-2)
    tail_next = isg1 and OPT["tailw"]
    A(".p2align 3")
    A.label(f"{pfx}_loop")
    if isg1 and OPT["lnmid"]:
        A(f"s_cmp_eq_u32 s{sCNT}, s{sPUB}")
        A("s_cbranch_scc1 g1_blk")
        A.label("g1_noblk")
    for u in range(4):
        c_step(A, u, W0, True, True, True, accf, w_is_A)
    if STAMPS:
        ng = nks//4 - 1
        i = _st["n"]; _st["n"] += ng; _st["names"] += [f"{pfx}_g{k}" for k in range(ng)]
        A("s_memtime s[100:101]")
        A("s_waitcnt lgkmcnt(0)")
        A(f"s_sub_u32 m0, {i + ng}, s{sCNT}")
        A("s_nop 0")
        A("v_writelane_b32 v47, s100, m0")
    A(f"s_sub_u32 s{sCNT}, s{sCNT}, 1")
    A(f"s_cmp_lg_u32 s{sCNT}, 0")
    A(f"s_cbranch_scc1 {pfx}_loop")
    seq = []
    for k in range(DD): seq += [("W", k)]*4 + [("B", k)]*5
    for u in range(4):
        need = max([i for i, (t, k) in enumerate(seq) if (t == "B" and k == u) or (t == "W" and k == u+1)])
        wait = len(seq) - 1 - need
        own = u < 4 - DD
        if isg1 and u == 4 - DD: switch_to_fb(A)
        nxt = tail_next and not own
        c_step(A, u, wait, own or nxt, own, u < 3, accf, w_is_A, drain if u == 3 else None)
        if own: seq += [("W", u+DD)]*4 + [("B", u+DD)]*5
        if OPT["otouch"] and not isg1 and u == 3 - DD:
            A(f"buffer_load_dword a255, v5, s[{sOUT}:{sOUT+3}], s95 offen" + (" nt" if OPT["otouch"] == 2 else ""))
            seq += [("O", 0)]
        elif nxt: seq += [("N", 0)]*4
    stamp(A, pfx + "_loopdone")

sFA1, sFA2, sFR = 54, 55, 94
sUS = 52
vGE = 224
def fa_params(A):
    A(f"s_and_b32 s{sFR}, s{sFD}, 3")
    A(f"s_lshl_b32 s{sFR}, s{sFR}, 1")
    A(f"s_and_b32 s89, s{sFS}, 7")
    A(f"s_add_u32 s{sFR}, s{sFR}, s89")
    A(f"s_mul_i32 s89, s{sFR}, 52")
    A("s_lshr_b32 s89, s89, 8")
    A("s_mul_i32 s89, s89, 5")
    A(f"s_sub_u32 s{sFR}, s{sFR}, s89")
    if OPT["arot"] == 0: A(f"s_mov_b32 s{sFR}, 0")
    if OPT["arot"] == 2:
        A(f"s_add_u32 s{sFR}, s{sFS}, s{sFD}")
        A(f"s_and_b32 s{sFR}, s{sFR}, 1")
        A(f"s_mul_i32 s{sFR}, s{sFR}, 3")
    A(f"s_mul_i32 s86, s{sWAVE}, 5")
    A(f"s_add_u32 s86, s86, s{sFR}")
    A(f"s_mul_i32 s{sFA1}, s{sFS}, {0 if OPT.get('same') else 20}")
    A(f"s_add_u32 s{sFA1}, s{sFA1}, s86")
    A(f"s_lshl_b32 s{sFA1}, s{sFA1}, 12")
    A(f"s_add_u32 s{sFA1}, s{sFA1}, {WS_PQ:#x}")
    A(f"s_mul_i32 s{sFA2}, s86, 40960")
    A(f"s_mul_i32 s89, s{sFD}, {0 if OPT.get('same') else 5120}")
    A(f"s_add_u32 s{sFA2}, s{sFA2}, s89")
    A(f"s_add_u32 s{sFA2}, s{sFA2}, {WS_M:#x}")
fa_b = lambda i: 0 if i == 0 else 112 + 36*(i-1)
def fa_ld(A, i):
    for st in range(4):
        A(f"buffer_load_dwordx4 {ar(fa_b(i)+4*st,4)}, v{vB0}, s[{sWS}:{sWS+3}], s{sFA1} offen offset:{1024*st} sc1")
    for n in range(5):
        A(f"buffer_load_dwordx4 {ar(fa_b(i)+16+4*n,4)}, v{vB0 if n < 4 else vB1}, s[{sWS}:{sWS+3}], s{sFA2} offen offset:{1024*(n&3)} sc1")
    if i < 4:
        A(f"s_add_u32 s{sFA1}, s{sFA1}, 4096")
        A(f"s_add_u32 s{sFA2}, s{sFA2}, 40960")
        A(f"s_add_u32 s{sFR}, s{sFR}, 1")
        A(f"s_cmp_eq_u32 s{sFR}, 5")
        A(f"s_cselect_b32 s86, {5*4096}, 0")
        A(f"s_cselect_b32 s89, {5*40960}, 0")
        A(f"s_sub_u32 s{sFA1}, s{sFA1}, s86")
        A(f"s_sub_u32 s{sFA2}, s{sFA2}, s89")

def g1_params(A):
    W, Rr = vGE, vGE + 4
    A("v_and_b32 v2, 15, v1")
    A("v_lshrrev_b32 v3, 4, v1")
    A("v_xor_b32 v4, v2, v3")
    A("v_lshlrev_b32 v4, 4, v4")
    A("v_lshl_add_u32 v4, v2, 8, v4")
    A(f"s_mul_i32 s85, s{sWAVE}, 20480")
    A(f"s_add_u32 s85, s85, {LDS_RED}")
    A(f"v_add_u32 v{W}, s85, v4")
    for t in range(1, 4): A(f"v_xor_b32 v{W+t}, {64*t}, v{W}")
    A(f"s_and_b32 s85, s{sWAVE}, 1")
    A(f"s_lshr_b32 s86, s{sWAVE}, 1")
    A("s_lshl_b32 s87, s85, 7")
    A("v_xor_b32 v4, s87, v4")
    A("s_lshl_b32 s87, s86, 12")
    A(f"s_add_u32 s87, s87, {LDS_RED}")
    A(f"v_add_u32 v{Rr}, s87, v4")
    A(f"v_xor_b32 v{Rr+1}, 64, v{Rr}")
    A(f"v_add_u32 v{Rr+2}, 40960, v{Rr}")
    A(f"v_add_u32 v{Rr+3}, 40960, v{Rr+1}")
    A(f"s_lshl_b32 s87, s{sG1F}, 1")
    A("s_add_u32 s87, s87, s85")
    A("s_lshl_b32 s23, s87, 6")
    A("v_lshlrev_b32 v12, 3, v3")
    A("s_mul_i32 s87, s87, 40")
    A(f"s_mul_i32 s88, s{sG1D}, 5")
    A("s_add_u32 s87, s87, s88")
    A("s_add_u32 s87, s87, s86")
    A("s_lshl_b32 s87, s87, 10")
    A(f"s_add_u32 s{sUS}, s87, {WS_U:#x}")
    A(f"s_add_u32 s{sUS+1}, s{sUS}, 4096")
    A(f"s_mov_b32 s90, {0xBDD2D3E8:#x}")
    A(f"s_mov_b32 s91, {0xBDD2D3E8:#x}")
    A(f"v_mov_b32 v{vGE+8}, {0xC0135761:#x}")
    A(f"v_mov_b32 v{vGE+9}, {0xC0135761:#x}")
    fa_params(A)
def b1_loads():
    return [[f"buffer_load_dwordx2 {vr(vGE+18+2*j,2)}, v12, s[{sB1}:{sB1+3}], s23 offen offset:{32*j}"] for j in range(2)]
def zero_acc(A):
    for i in range(0, 80, 2): A(f"v_mov_b64 {vr(ACC+i,2)}, 0")

def g1_phase(A):
    c_loop(A, "g1", 16, lambda o: ar(G1A+o, 4), True, True, lambda n, t: [f"ds_write_b128 v{vGE+t}, {ar(G1A+(t*5+n)*4,4)} offset:{4096*n}"])
    for j in range(2):
        for k in range(2):
            A(f"v_lshlrev_b32 v{vGE+10+4*j+2*k}, 16, v{vGE+18+2*j+k}")
            A(f"v_and_b32 v{vGE+11+4*j+2*k}, 0xffff0000, v{vGE+18+2*j+k}")
    A("s_waitcnt lgkmcnt(0)")
    A("s_barrier")
    stamp(A, "g1_red")
    if OPT["lnpost"] == 2:
        A("s_cmp_lt_u32 s82, 24")
        A("s_cbranch_scc1 g1_nw2")
        w2_prefetch(A, 24, list(range(3 - OPT["lnpn"], 3)))
        A.label("g1_nw2")
    A(poll_ld(15, 25))
    R = 128
    def rd(r):
        for j in range(2):
            for part in range(4):
                A(f"ds_read_b128 {vr(R+32*r+16*j+4*part,4)}, v{vGE+4+j+2*(part>>1)} offset:{8192*r + 20480*(part&1)}")
    def fin(r):
        b = R + 32*r
        for j in range(2):
            x = b + 16*j
            for i in (0, 2):
                A(f"v_pk_add_f32 {vr(x+i,2)}, {vr(x+i,2)}, {vr(x+4+i,2)}")
                A(f"v_pk_add_f32 {vr(x+8+i,2)}, {vr(x+8+i,2)}, {vr(x+12+i,2)}")
        for j in range(2):
            x = b + 16*j
            for i in (0, 2): A(f"v_pk_add_f32 {vr(x+i,2)}, {vr(x+i,2)}, {vr(vGE+10+4*j+i,2)}")
        for j in range(2):
            x = b + 16*j
            for i in (0, 2): A(f"v_pk_add_f32 {vr(x+i,2)}, {vr(x+i,2)}, {vr(x+8+i,2)}")
        E = [b + 16*j + i for j in range(2) for i in range(4)]
        E2 = E[::2]
        for x in E2: A(f"v_pk_mul_f32 {vr(x+4,2)}, {vr(x,2)}, {vr(x,2)}")
        for x in E2: A(f"v_pk_fma_f32 {vr(x+4,2)}, {vr(x+4,2)}, s[90:91], {vr(vGE+8,2)}")
        for x in E2: A(f"v_pk_mul_f32 {vr(x+4,2)}, {vr(x+4,2)}, {vr(x,2)}")
        for x in E: A(f"v_exp_f32 v{x+4}, v{x+4}")
        for x in E2: A(f"v_pk_add_f32 {vr(x+4,2)}, {vr(x+4,2)}, 1.0 op_sel_hi:[1,0]")
        for x in E: A(f"v_rcp_f32 v{x+4}, v{x+4}")
        for x in E2: A(f"v_pk_mul_f32 {vr(x,2)}, {vr(x,2)}, {vr(x+4,2)}")
        for j in range(2):
            x = b + 16*j
            A(f"v_cvt_pk_bf16_f32 v{b+8+2*j}, v{x}, v{x+1}")
            A(f"v_cvt_pk_bf16_f32 v{b+9+2*j}, v{x+2}, v{x+3}")
        A(f"buffer_store_dwordx4 {vr(b+8,4)}, v{vB0}, s[{sWS}:{sWS+3}], s{sUS if r < 2 else sUS+1} offen offset:{2048*(r&1)} sc1")
    rd(0)
    A("s_waitcnt lgkmcnt(4)")
    rd(1)
    A("s_waitcnt lgkmcnt(8)")
    fin(0)
    A(f"s_cmp_ge_u32 s{sWAVE}, 2")
    A("s_cbranch_scc1 g1_e1")
    rd(2)
    A("s_waitcnt lgkmcnt(8)")
    fin(1)
    A("s_waitcnt lgkmcnt(0)")
    fin(2)
    A("s_branch g1_e2")
    A.label("g1_e1")
    A("s_waitcnt lgkmcnt(0)")
    fin(1)
    A.label("g1_e2")
    stamp(A, "g1_st")
    A("s_waitcnt vmcnt(3)")
    A(f"s_cmp_lt_u32 s{sWAVE}, 2")
    A("s_cbranch_scc1 g1_q0")
    A("s_waitcnt vmcnt(2)")
    A.label("g1_q0")
    A(f"s_mov_b32 s{sQOK}, 0")
    A(f"v_cmp_ne_u32 vcc, s{sNON}, v{vPOLL}")
    A("s_cbranch_vccnz g1_q1")
    A(f"s_mov_b32 s{sQOK}, 1")
    fa_ld(A, 0)
    A("s_waitcnt vmcnt(9)")
    A("s_branch g1_q2")
    A.label("g1_q1")
    if OPT["tailw"]: A("s_waitcnt vmcnt(0)")
    else:
        c_wring(A)
        A(f"s_waitcnt vmcnt({4*OPT['d']})")
    A.label("g1_q2")
    A(f"s_mul_i32 s88, s{sG1D}, 24")
    A(f"s_add_u32 s88, s88, s{sG1F}")
    publish(A, "pub_u", FL_G1, 88, None)
    stamp(A, "g1_pub")
    if OPT["lnpost"] == 1:
        A("s_cmp_lt_u32 s82, 24")
        A("s_cbranch_scc1 g1_nw2")
        w2_prefetch(A, 24, list(range(3 - OPT["lnpn"], 3)))
        A.label("g1_nw2")
    if not OPT["tailw"]:
        A(f"s_cmp_eq_u32 s{sQOK}, 0")
        A("s_cbranch_scc1 g1_q3")
        c_wring(A)
        A("s_branch f_go")
        A.label("g1_q3")
    else:
        A(f"s_cmp_lg_u32 s{sQOK}, 0")
        A("s_cbranch_scc1 f_go")
    A(poll_ld(15, 25))
    A("s_waitcnt vmcnt(0)")
    poll_check(A, "pq", 15, 25)

def f_setup1():
    B = Asm()
    B("v_and_b32 v5, 15, v1")
    B("v_lshlrev_b32 v6, 2, v5")
    B(f"s_lshl_b32 s23, s{sFS}, 8")
    B(f"s_add_u32 s23, s23, {WS_G:#x}")
    for st in range(4):
        B(f"buffer_load_dword v{8+st}, v6, s[{sWS}:{sWS+3}], s23 offen offset:{64*st} sc1")
    B("v_lshlrev_b32 v6, 1, v5")
    B(f"s_lshl_b32 s23, s{sFS}, 7")
    B(f"s_cmp_eq_u32 s{sWAVE}, 0")
    B("s_cselect_b32 s23, s23, 0x40000000")
    for st in range(4):
        B(f"buffer_load_ushort v{29+st}, v6, s[{sB2}:{sB2+3}], s23 offen offset:{32*st}")
    return B.lines
def f_setup2():
    B = Asm()
    for st in range(4):
        B(f"v_sub_f32 v{8+st}, 1.0, v{8+st}")
        B(f"v_lshlrev_b32 v{ACC+st*20}, 16, v{29+st}")
        B(f"v_lshlrev_b32 v{ACC+st*20+1}, 16, v{29+st}")
        for k in range(2, 20, 2): B(f"v_mov_b64 {vr(ACC+st*20+k,2)}, {vr(ACC+st*20,2)}")
    B("v_min_u32 v12, 23, v1")
    B("v_lshlrev_b32 v12, 7, v12")
    B(f"s_mul_i32 s23, s{sFD}, {24*128}")
    B(f"s_add_u32 s23, s23, {FL_G1:#x}")
    B("v_and_b32 v5, 15, v1")
    B("v_lshrrev_b32 v6, 4, v1")
    B("v_mul_u32_u24 v4, 336, v5")
    B("v_lshl_add_u32 v4, v6, 4, v4")
    B(f"s_mul_i32 s85, s{sWAVE}, 21504")
    B(f"s_add_u32 s85, s85, {LDS_RED}")
    B("v_add_u32 v4, s85, v4")
    B(f"s_mul_i32 s85, s{sWAVE}, {16*336}")
    B(f"s_add_u32 s85, s85, {LDS_RED}")
    B(f"s_lshl_b32 s95, s{sFS}, 2")
    B(f"s_add_u32 s95, s95, s{sWAVE}")
    B(f"s_mul_i32 s95, s95, {16*1280}")
    B(f"s_mul_i32 s87, s{sFD}, 160")
    B("s_add_u32 s95, s95, s87")
    for r in range(5):
        B(f"v_add_u32 v5, {64*r}, v1")
        B("v_mul_u32_u24 v6, 3277, v5")
        B("v_lshrrev_b32 v6, 16, v6")
        B("v_mul_u32_u24 v7, 20, v6")
        B("v_sub_u32 v7, v5, v7")
        B(f"v_mul_u32_u24 v{16+r}, 336, v6")
        B(f"v_lshl_add_u32 v{16+r}, v7, 4, v{16+r}")
        B(f"v_add_u32 v{16+r}, s85, v{16+r}")
        B(f"v_mul_u32_u24 v{24+r}, 1280, v6")
        B(f"v_lshl_add_u32 v{24+r}, v7, 3, v{24+r}")
    if OPT["otouch"]:
        B("v_lshrrev_b32 v5, 1, v1")
        B("v_and_b32 v5, 15, v5")
        B("v_mul_u32_u24 v5, 1280, v5")
        B("v_and_b32 v6, 1, v1")
        B("v_mul_u32_u24 v6, 156, v6")
        B("v_add_u32 v5, v5, v6")
    return B.lines

def f_phase(A):
    ACA = 128
    A.label("f_entry")
    fa_ld(A, 0)
    A.label("f_go")
    fa_ld(A, 1)
    stamp(A, "f_qok")
    A(f"s_or_b32 s85, s2, s{sWAVE}")
    A("s_cmp_lg_u32 s85, 0")
    A("s_cbranch_scc1 f_nox")
    A(f"s_mov_b32 s85, {FL_X:#x}")
    flag_store(A, 85)
    A.label("f_nox")
    fb = fa_b
    def fam(i, side=[]):
        mf = []
        for n in range(5):
            for st in range(4):
                c = vr(ACA+(st*5+n)*4, 4)
                mf.append(f"v_mfma_f32_16x16x32_bf16 {c}, {ar(fb(i)+16+4*n,4)}, {ar(fb(i)+4*st,4)}, {c if i else 0}")
        fill = [[] for _ in range(20)]
        for k, g in enumerate(side): fill[(k*20)//len(side)] += g
        weave(A, mf, fill)
    def ldg(i):
        B = Asm(); fa_ld(B, i); g = [[x] for x in B.lines[:9]]; g[-1] += B.lines[9:]; return g
    D = OPT["d"]
    fa_ld(A, 2)
    A(f"s_mov_b32 s{sC2}, s{sF2}")
    A(f"s_mov_b32 s{sCB2}, s{sFB2}")
    A(f"s_mov_b32 s{sCE2}, s{sFE2}")
    stamp(A, "fa_i2")
    A("s_waitcnt vmcnt(18)")
    fam(0, ldg(3))
    stamp(A, "fa_m0")
    A("s_waitcnt vmcnt(18)")
    fam(1, [[poll_ld(12, 23)]] + ldg(4))
    stamp(A, "fa_m1")
    A("s_waitcnt vmcnt(19)")
    fam(2)
    stamp(A, "fa_m2")
    A("s_waitcnt vmcnt(9)")
    stamp(A, "fa_s3")
    poll_check(A, "pu", 12, 23)
    stamp(A, "f_uok")
    br = []
    for sl in range(D):
        br += [[c_bload(sl, n)] for n in range(5)]; br[-1] += c_adv2()
    fam(3, br)
    A(f"s_waitcnt vmcnt({5*D})")
    fam(4, [[]]*3 + [[x] for x in c_tr(0, 0)] + [[]]*5)
    A(f"s_waitcnt vmcnt({5 if D == 2 else 10})")
    stamp(A, "fb_first")
    def drain(n, st):
        b = (st*5+n)*4
        return [f"v_fma_f32 v{ACA+b+i}, v{ACC+b+i}, v{8+st}, v{ACA+b+i}" for i in range(4)] + [f"ds_write_b128 v4, {vr(ACA+b,4)} offset:{st*16*336 + 64*n}"]
    A(f"s_mov_b32 s{sCNT}, 2")
    c_loop(A, "fb", 12, lambda o: vr(ACC+o, 4), False, False, drain)
    A("s_waitcnt lgkmcnt(0)")
    A("s_barrier")
    stamp(A, "f_red")
    R = ACC
    def rd(r):
        for part in range(4):
            A(f"ds_read_b128 {vr(R+16*r+4*part,4)}, v{16+r} offset:{21504*part}")
    rd(0); rd(1); rd(2)
    for r in range(5):
        A(f"s_waitcnt lgkmcnt({8 if r < 3 else 4*(4-r)})")
        b = R + 16*r
        for i in (0, 2):
            A(f"v_pk_add_f32 {vr(b+i,2)}, {vr(b+i,2)}, {vr(b+4+i,2)}")
            A(f"v_pk_add_f32 {vr(b+8+i,2)}, {vr(b+8+i,2)}, {vr(b+12+i,2)}")
        if r + 3 < 5: rd(r+3)
        for i in (0, 2): A(f"v_pk_add_f32 {vr(b+i,2)}, {vr(b+i,2)}, {vr(b+8+i,2)}")
        A(f"v_cvt_pk_bf16_f32 v{b}, v{b}, v{b+1}")
        A(f"v_cvt_pk_bf16_f32 v{b+1}, v{b+2}, v{b+3}")
        A(f"buffer_store_dwordx2 {vr(b,2)}, v{24+r}, s[{sOUT}:{sOUT+3}], s95 offen" + ["", " nt", " sc1", " sc0 sc1", " sc1 nt", " sc0 nt", " sc0 sc1 nt"][OPT["ost"]])

def kd(name):
    return f""".section .rodata,"a"
.p2align 6
.amdhsa_kernel {name}
  .amdhsa_next_free_vgpr 512
  .amdhsa_next_free_sgpr 102
  .amdhsa_accum_offset 256
  .amdhsa_group_segment_fixed_size 0
  .amdhsa_kernarg_size 96
  .amdhsa_user_sgpr_count 2
  .amdhsa_user_sgpr_kernarg_segment_ptr 1
  .amdhsa_system_sgpr_workgroup_id_x 1
.end_amdhsa_kernel
"""

def gen():
    hdr = open("cdna_kernels/" + NAME + ".s.ref").read().split("; Override")[0]
    hdr += f"; @launch grid=(256,1,1) block=(256,1,1) lds={LDS_BYTES}\n"
    hdr += '.amdgcn_target "amdgcn-amd-amdhsa--gfx950"\n'
    A = Asm()
    K = NAME + "_kernel"
    A(".text"); A(f".globl {K}"); A(".p2align 8"); A(f".type {K},@function"); A.label(K)
    prologue(A)
    A("s_cmp_ge_u32 s82, 16"); A("s_cbranch_scc1 r_notkv")
    A("s_and_b32 s85, s82, 3")
    A("s_lshl_b32 s86, s83, 2")
    A(f"s_add_u32 s{sA}, s85, s86")
    A("s_lshr_b32 s85, s82, 2")
    A("s_lshl_b32 s86, s84, 2")
    A(f"s_add_u32 s{sBp}, s85, s86")
    qkv_setup(A, False)
    A("s_waitcnt lgkmcnt(0)"); srds(A, ["X", "W"])
    stamp(A, "kv_pre")
    def mid(A):
        params1(A); srds(A, ["WS", "W1", "B1", "W2", "B2", "OUT"]); cw_init(A)
        if not OPT["defer"]:
            params2(A); g1_params(A); mid3(A)
    def mid3(A):
        kv_esetup(A)
        A("s_lshl_b32 s85, s81, 4")
        A("s_add_u32 s85, s85, s82")
        A("s_lshl_b32 s85, s85, 2")
        A(f"s_add_u32 s85, s85, s{sWAVE}")
        A("s_lshl_b32 s27, s85, 13")
        A(f"s_lshl_b32 s{sPUB}, s{sA}, 3")
        A(f"s_add_u32 s{sPUB}, s{sPUB}, s{sBp}")
        A(f"s_lshl_b32 s{sPUB}, s{sPUB}, 7")
        A(f"s_add_u32 s{sPUB}, s{sPUB}, {FL_KV:#x}")
    D = OPT["d"]; EW = 5 if D == 2 else 10
    assert D == 3
    def wst(k):
        g = c_wdma(k); g[-1] = g[-1] + c_adv1(); return g
    def bst(k):
        g = [[c_bload(k, n)] for n in range(5)]; g[-1] = g[-1] + c_adv2(); return g
    E = kv_estream()
    g1acc = lambda o: ar(G1A+o, 4)
    def pubkv(A, wait):
        A(f"s_waitcnt vmcnt({wait})")
        A("s_barrier")
        A(f"s_cmp_lg_u32 s{sWAVE}, 0")
        A("s_cbranch_scc1 g1_pub1")
        flag_store(A, sPUB)
        A.label("g1_pub1")
        stamp(A, "kv_pub")
    nin = OPT["nbin"]
    ex = {8: ([[poll_ld(vPO, 24)]] + b1_loads() + wst(0) + wst(1), 9), 9: (wst(2), 8)}
    d0 = OPT["defer"]
    out_kv = qkv_gemm(A, "kv", False, mid, ex, {9: lambda A: poll_check(A, "pln", vPO, 24)},
                      [(d0, params2), (d0+1, g1_params), (d0+2, mid3)] if d0 else [])
    if OPT["kvw2"]:
        A(f"buffer_load_dword a255, v15, s[{sW2}:{sW2+3}], s27 offen")
    for m in qkv_mfmas(FB_, False): A(m)
    stamp(A, "kv_loopdone")
    Bs = bst(0) + bst(1) + bst(2)
    body = E[0] + E[1]
    sp = min(26, (len(body) - 30 - OPT["b0"]) // max(nin, 1))
    pos = [len(body) - 30 - sp*(nin - 1 - k) for k in range(nin)]
    assert not pos or pos[0] >= 0
    for i, x in enumerate(body):
        if i in pos:
            for y in Bs[pos.index(i)]: A(y)
        A(x)
    A("s_waitcnt lgkmcnt(0)")
    A("s_barrier")
    for x in E[2] + E[3]: A(x)
    stamp(A, "kv_st")
    for g in Bs[nin:]:
        for y in g: A(y)
    seq = ["W"]*12 + [f"B{k//5}" for k in range(nin)] + ["S"]*4 + [f"B{k//5}" for k in range(nin, 15)]
    def need(tags): return len(seq) - 1 - max(i for i, t in enumerate(seq) if t in tags)
    A(f"s_waitcnt vmcnt({need(['W'])})")
    for x in c_tr(0, 0): A(x)
    if OPT["pubat"] == 0: pubkv(A, need(["S"]))
    for u in range(4):
        c_step(A, u, min(need([f"B{u}", f"W{u+1}", "W"]), 63), True, True, True, g1acc, True, first=(u == 0),
               pre=f_setup1() if u == 1 else [], side=f_setup2() if u == 3 else None)
        if u == 1: seq += ["G"]*8
        seq += [f"W{u+3}"]*4 + [f"B{u+3}"]*5
        stamp(A, f"g1_s{u}")
        if OPT["pubat"] == u + 1: pubkv(A, need(["S"]))
    A(f"s_mov_b32 s{sCNT}, 2")
    g1_phase(A)
    f_phase(A)
    stamp_flush(A)
    A.label("k_end"); A("s_endpgm")
    out_kv(A)
    if OPT["lnmid"]:
        A.label("g1_blk")
        w2_prefetch(A, 24, list(range(3 - OPT["lnpn"], 3)))
        A("s_branch g1_noblk")
    A.label("r_notkv")
    if OPT["pf_code"]:
        A("s_getpc_b64 s[86:87]")
        A.label("pc_here")
        A(f"s_sub_u32 s86, s86, pc_here-{K}")
        A("s_subb_u32 s87, s87, 0")
        A("s_sub_u32 s85, s82, 16")
        A("s_lshl_b32 s85, s85, 2")
        A(f"s_add_u32 s85, s85, s{sWAVE}")
        A("s_lshl_b32 s85, s85, 3")
        A("v_add_lshl_u32 v2, v1, s85, 7")
        A(f"v_min_u32 v2, k_codeend-{K}-4, v2")
        A("s_mov_b64 exec, 0xff")
        A("global_load_dword a255, v2, s[86:87]")
        A("s_mov_b64 exec, -1")
    A("s_cmp_lt_u32 s82, 24"); A("s_cbranch_scc1 r_q")
    A("s_sub_u32 s87, s82, 24")
    A("s_lshl_b32 s85, s81, 3")
    A(f"s_add_u32 s{sA}, s85, s87")
    aux = " nt" if OPT.get("nt") else ""
    w1l = lambda k: f"buffer_load_dword a255, v22, s[{sW1}:{sW1+3}], s{26 + k//3} offen offset:{1024*(k%3)}{aux}"
    def after(A):
        params1(A); srds(A, ["WS", "W1", "B1", "W2", "B2", "OUT"]); cw_init(A); params2(A); g1_params(A)
        w1_setup(A, 24, 22)
        for k in range(OPT["early"] if OPT["pf_w1"] else 0): A(w1l(k))
    ln_role(A, after, OPT["early"] if OPT["pf_w1"] else 0)
    publish(A, "pub_ln", FL_LN, sA)
    stamp(A, "ln_pub")
    for k in range(OPT["early"], (3 - OPT["qw1n"]) if (OPT["pf_w1"] and not OPT["qfirst"]) else 0): A(w1l(k))
    def pf_h():
        A(poll_ld(vPO, 24))
        A("v_lshrrev_b32 v2, 5, v1")
        A("v_mul_u32_u24 v2, 40960, v2")
        A("v_and_b32 v3, 31, v1")
        A("v_lshl_add_u32 v2, v3, 7, v2")
        A("s_sub_u32 s85, s82, 24")
        A("s_lshl_b32 s85, s85, 2")
        A(f"s_add_u32 s85, s85, s{sWAVE}")
        A(f"s_mul_i32 s87, s85, {2*40960}")
        A("s_mul_i32 s86, s84, 20480")
        A("s_add_u32 s87, s87, s86")
        A("s_waitcnt vmcnt(0)")
        poll_check(A, "plnh", vPO, 24)
        A("s_barrier")
        for i in range(5):
            A(f"buffer_load_dword a255, v2, s[{sWS}:{sWS+3}], s87 offen sc1")
            A("s_add_u32 s87, s87, 4096")
    for c in str(OPT["lnseq"]):
        if c == "1" and OPT["pf_w1"]:
            for k in range(3, 6): A(w1l(k))
        if c == "6":
            for k in range(3): A(w1l(k))
        if c == "2": pf_h()
        if c == "3": w2_prefetch(A, 24, [0])
        if c == "7": w2_prefetch(A, 24, [2])
        if c == "4": w2_prefetch(A, 24, [0, 1])
        if c == "5": w2_prefetch(A, 24, [0, 1, 2])
    stamp(A, "ln_pf")
    for g in b1_loads(): A(g[0])
    A(poll_ld(vPO, 24))
    c_wring(A)
    A(f"s_waitcnt vmcnt({4*OPT['d']})")
    poll_check(A, "pln2", vPO, 24)
    A("s_barrier")
    for x in f_setup1(): A(x)
    c_bring(A)
    for i in range(80): A(f"v_accvgpr_write_b32 a{G1A+i}, 0")
    A(f"s_waitcnt vmcnt({5*D})")
    for x in f_setup2(): A(x)
    A(f"s_mov_b32 s{sCNT}, 3")
    A(f"s_mov_b32 s{sPUB}, {OPT['lnmid']}")
    A(f"s_waitcnt vmcnt({EW})")
    for x in c_tr(0, 0): A(x)
    stamp(A, "ln_ready")
    A("s_branch g1_loop")
    A.label("r_q")
    A("s_sub_u32 s87, s82, 16")
    A("s_and_b32 s85, s87, 3")
    A("s_lshl_b32 s86, s83, 2")
    A(f"s_add_u32 s{sA}, s85, s86")
    A("s_lshr_b32 s85, s87, 2")
    A("s_lshl_b32 s86, s84, 1")
    A(f"s_add_u32 s{sBp}, s85, s86")
    A(f"s_lshl_b32 s{sU}, s{sBp}, 2")
    A(f"s_and_b32 s85, s{sA}, 3")
    A(f"s_add_u32 s{sU}, s{sU}, s85")
    A(f"s_lshr_b32 s{sNR}, s{sA}, 2")
    def midq(A):
        params1(A); srds(A, ["WS", "W1", "WO", "W2", "B2", "OUT"]); cw_init(A); params2(A)
        w1_setup(A, 16, 12)
        if OPT["qw1"] == 0: q_pf_only(A)
        if not OPT["qdefer"]: q_setup(A)
    def qs(lo, hi):
        def f(A):
            B = Asm(); q_setup(B)
            assert len(B.lines) > 150
            for x in B.lines[lo:hi]: A(x)
        return f
    def qtouch(A):
        A("s_mov_b32 exec_lo, 0xffff03ff")
        A("s_mov_b32 exec_hi, 0")
        A(f"buffer_load_dword a255, v{vT1}, s[{sWS}:{sWS+3}], 0 offen sc1")
        A("s_mov_b64 exec, -1")
    qkv_setup(A, True)
    A("s_waitcnt lgkmcnt(0)"); srds(A, ["X", "W"])
    qb = [(max(OPT["qw1"], 1), q_loop_pf)]
    if OPT["qdefer"]:
        def both(A): q_loop_pf(A); q_setup(A); qtouch(A)
        qb = [(OPT["qw1"], both)]
    out_q = qkv_gemm(A, "q", True, midq, q_extras(), {9: lambda A: poll_check(A, "pln3", vPO, 24)}, qb)
    q_epilogue(A)
    A("s_lshl_b32 s88, s81, 3")
    A("s_add_u32 s88, s88, s82")
    A("s_sub_u32 s88, s88, 16")
    publish(A, "pub_q", FL_Q, 88)
    stamp(A, "q_pub")
    if OPT["qw2b"]: w2_prefetch(A, 16, list(range(3 - OPT["qw2b"], 3)))
    for x in f_setup1(): A(x)
    switch_to_fb(A)
    c_wring(A)
    A(poll_ld(vPO, 25))
    A(f"s_waitcnt vmcnt({4*D + 1})")
    for x in f_setup2(): A(x)
    A("s_waitcnt vmcnt(0)")
    poll_check(A, "pq2", vPO, 25)
    A("s_barrier")
    stamp(A, "q_allq")
    if OPT["pf_pq"]:
        A("s_sub_u32 s88, s82, 16")
        A("s_lshl_b32 s88, s88, 2")
        A(f"s_add_u32 s88, s88, s{sWAVE}")
        A("v_lshlrev_b32 v2, 7, v1")
        A(f"s_mul_i32 s85, s83, {8*81920}")
        A(f"s_mul_i32 s86, s88, {160*128}")
        A("s_add_u32 s85, s85, s86")
        A(f"s_add_u32 s85, s85, {WS_PQ:#x}")
        for i in range(3):
            if i == 2: A("s_mov_b32 exec_hi, 0")
            A(f"buffer_load_dword a255, v2, s[{sWS}:{sWS+3}], s85 offen sc1")
            A("s_add_u32 s85, s85, 8192")
        A("s_mov_b32 exec_hi, -1")
        A("s_cmp_ge_u32 s88, 20")
        A("s_cbranch_scc1 q_pfd")
        A("s_mul_i32 s85, s88, 40960")
        A("s_mul_i32 s86, s84, 20480")
        A("s_add_u32 s85, s85, s86")
        A(f"s_add_u32 s85, s85, {WS_M:#x}")
        for i in range(3):
            if i == 2: A("s_mov_b32 exec_hi, 0")
            A(f"buffer_load_dword a255, v2, s[{sWS}:{sWS+3}], s85 offen sc1")
            A("s_add_u32 s85, s85, 8192")
        A("s_mov_b32 exec_hi, -1")
        A.label("q_pfd")
    fa_params(A)
    A("s_branch f_entry")
    out_q(A)
    A.label("k_codeend")
    for i, l in enumerate(A.lines):
        if l.startswith("v_mad_i32_i24 v4, v3, -20"):
            A.lines[i] = l.replace("-20", "s89")
        if l == "s_movk_i32 s88, 3840":
            A.lines[i] = "s_movk_i32 s89, -20"
    if OPT["align"]:
        A.lines, nc, nn = align(A.lines, OPT["align"])
        print("aligned: widened", nc, "nops", nn, file=sys.stderr)
    nb = check(A.lines)
    print("hazards:", nb, file=sys.stderr)
    return hdr + A.text() + kd(K)

if __name__ == "__main__":
    out = sys.argv[1]
    for a in sys.argv[2:]:
        if a == "st": STAMPS = True
        else:
            k, v = a.split("="); OPT[k] = int(v)
    open(out, "w").write(gen())
    if STAMPS: json.dump(_st["names"], open(out + ".names", "w"))
```

```python
import sys, json
from asmlib import Asm, vr, ar, sr, check, align

NAME = "gated_mix__linear_attn_block__mixer_token_mlp__prompt"
WS_H   = 0x000000
WS_U   = 0x280000
WS_PQ  = 0x460000
WS_M   = 0x6E0000
WS_KVP = 0x7A8000
WS_ZP  = 0x880000
WS_G   = 0x972000
WS_FLAG = 0x974000
FL_X = WS_FLAG
FL_LN = WS_FLAG + 128
FL_KV = FL_LN + 64*128
FL_Q = FL_KV + 128*128
FL_G1 = FL_Q + 64*128
WS_SIZE = FL_G1 + 192*128
WS_STAMP = 0x1000000

sX, sW, sWS, sW1, sW2, sOUT, sWO, sB1, sB2, sGW = 28, 32, 36, 40, 44, 48, 52, 56, 60, 64
sWAVE = 68
sA, sBp = 69, 70
sG1D, sG1F, sFS, sFD = 71, 72, 73, 74
sCNT, sO1, sO2, sRD, sWR, sM0 = 75, 76, 77, 78, 79, 80
sEX, sMK = 90, 92
sU, sNR = 94, 95
sWR_, sWC_ = 96, 97
sPUB = 3
sQOK = 99
sM1 = 98
sC1, sC2, sCM0, sCB1, sCE1, sCB2, sCE2, sCST, sCW, sNON = 4, 5, 6, 7, 8, 9, 10, 11, 12, 16
sF1, sFB1, sFE1, sF2, sFB2, sFE2 = 17, 18, 19, 20, 21, 22
LOG2E = 0x3FB8AA3B
EPS6 = 0x358637BD
LDS_RED = 65536
LDS_BYTES = 163840
vXO, vWO_, vXB, vCUR = 16, 20, 25, 29
vWS_, vB0, vB1, vTR, vWS2 = 33, 37, 38, 39, 43
ACC = 48
FA_, FB_ = 112, 148
BR, AS = 0, 80
STG = 36864
vPOLL, vPO = 14, 13
OPT = {"rot": 1, "pf_w1": 1, "pf_w2": 1, "pf_code": 1, "pf_pq": 0, "sleep": 1, "early": 1, "d": 3, "qpoll": 2, "nbin": 10, "cv": 0, "lnseq": 15, "qw2": 0, "qw2b": 0, "ntq": 0, "qw1": 1, "qw1n": 2, "kvr": 1, "touch": 1, "perm": 0, "otouch": 0, "rdb": 4, "w2c": 1, "qfirst": 0, "rfd": 3, "tailw": 1, "pubat": 1, "kvw2": 0, "b0": 0, "qw1b": 0, "rfb": 4, "frot": 2, "arot": 2, "fmap": 1, "qrot": 1, "grot": 4, "lnpost": 0, "lnpn": 3, "align": 5, "defer": 0, "qdefer": 0, "lnmid": 0, "ost": 1, "tlb": 0}
STAMPS = False
_st = {"n": 0, "names": []}

def stamp(A, name, real=False):
    if not STAMPS: return
    i = _st["n"]; _st["n"] += 1; _st["names"].append(name)
    A("s_memrealtime s[100:101]" if real else "s_memtime s[100:101]")
    A("s_waitcnt lgkmcnt(0)")
    A(f"v_writelane_b32 v47, s100, {i}")
def stamp_flush(A):
    if not STAMPS: return
    stamp(A, "end"); stamp(A, "endreal", True)
    A("s_lshl_b32 s100, s2, 2")
    A(f"s_add_u32 s100, s100, s{sWAVE}")
    A("s_lshl_b32 s100, s100, 8")
    A(f"s_add_u32 s100, s100, {WS_STAMP:#x}")
    A(f"s_mov_b32 s{sWS+2}, 0x2000000")
    A("v_lshlrev_b32 v46, 2, v1")
    A(f"buffer_store_dword v47, v46, s[{sWS}:{sWS+3}], s100 offen")

def srds(A, which):
    tab = {"X": (sX, 4, 2048*1280), "W": (sW, 6, 640*3840), "WO": (sWO, 8, 640*1280), "W1": (sW1, 12, 2048*3072), "B1": (sB1, 14, 3072),
           "W2": (sW2, 16, 1536*4096), "B2": (sB2, 18, 4096), "GW": (sGW, 20, 1280), "OUT": (sOUT, 22, 2048*1280), "WS": (sWS, 26, WS_SIZE)}
    for w in which:
        base, ptr, size = tab[w]
        A(f"s_mov_b64 s[{base}:{base+1}], s[{ptr}:{ptr+1}]")
        A(f"s_mov_b32 s{base+2}, {size:#x}")
        A(f"s_mov_b32 s{base+3}, 0x20000")

def flat(groups):
    out = []
    for g in groups: out += g if isinstance(g, list) else [g]
    return out

def weave(A, mf, fill, first=0):
    for i, m in enumerate(mf):
        A(m)
        if i < len(fill):
            for x in fill[i]: A(x)
    for g in fill[len(mf):]:
        for x in g: A(x)

def poll_off(A, dst, nper, total_waves_split=True):
    A(f"v_and_b32 v{dst}, {nper-1}, v1")
    A(f"s_mul_i32 s85, s{sWAVE}, {nper}")
    A(f"v_add_lshl_u32 v{dst}, v{dst}, s85, 7")
def poll_ld(vo, so):
    return f"buffer_load_dword v{vPOLL}, v{vo}, s[{sWS}:{sWS+3}], s{so} offen sc1"
def poll_check(A, name, vo, so):
    A(f"v_cmp_ne_u32 vcc, s{sNON}, v{vPOLL}")
    A(f"s_cbranch_vccz {name}_ok")
    A(f"s_mov_b32 s{sM1}, 0")
    A.label(f"{name}_spin")
    A(f"s_add_u32 s{sM1}, s{sM1}, 1")
    A(f"s_cmp_gt_u32 s{sM1}, 0x8000")
    A(f"s_cbranch_scc1 {name}_ok")
    A(f"s_sleep {OPT['sleep']}")
    A(poll_ld(vo, so))
    A("s_waitcnt vmcnt(0)")
    A(f"v_cmp_ne_u32 vcc, s{sNON}, v{vPOLL}")
    A(f"s_cbranch_vccnz {name}_spin")
    A.label(f"{name}_ok")
def flag_store(A, so):
    A(f"v_mov_b32 v2, s{sNON}")
    A("v_lshlrev_b32 v3, 2, v1")
    A("s_mov_b32 exec_hi, 0")
    A(f"buffer_store_dword v2, v3, s[{sWS}:{sWS+3}], s{so} offen sc1")
    A("s_mov_b32 exec_hi, -1")
def publish(A, name, base, sidx, wait=0):
    if wait is not None: A(f"s_waitcnt vmcnt({wait})")
    A("s_barrier")
    A(f"s_cmp_lg_u32 s{sWAVE}, 0")
    A(f"s_cbranch_scc1 {name}_np")
    A(f"s_lshl_b32 s85, s{sidx}, 7")
    A(f"s_add_u32 s85, s85, {base:#x}")
    flag_store(A, 85)
    A.label(f"{name}_np")

def prologue(A):
    A("s_cmp_ge_u32 s2, 256")
    A("s_cbranch_scc1 k_end")
    if STAMPS: A("v_mov_b32 v47, 0")
    stamp(A, "startreal", True); stamp(A, "start")
    A("s_load_dwordx16 s[4:19], s[0:1], 0")
    A("s_load_dwordx8 s[20:27], s[0:1], 64")
    A("v_lshrrev_b32 v2, 6, v0")
    A("v_and_b32 v1, 63, v0")
    A(f"v_readfirstlane_b32 s{sWAVE}, v2")
    A("s_and_b32 s81, s2, 7")
    A("s_lshr_b32 s82, s2, 3")
    A("s_lshr_b32 s83, s81, 1")
    A("s_and_b32 s84, s81, 1")

def params1(A):
    A(f"s_add_u32 s86, s26, {FL_X:#x}")
    A("s_addc_u32 s87, s27, 0")
    A("s_load_dword s3, s[86:87], 0")
    A("s_lshr_b32 s85, s82, 2")
    A("s_lshl_b32 s88, s83, 3")
    if OPT["perm"]: A("s_xor_b32 s85, s85, 7")
    A(f"s_add_u32 s{sFS}, s85, s88")
    A("s_and_b32 s85, s82, 3")
    A("s_lshl_b32 s88, s84, 2")
    A(f"s_add_u32 s{sFD}, s85, s88")
    if OPT["fmap"]:
        A("s_lshr_b32 s85, s82, 3")
        if OPT["fmap"] == 1:
            A("s_lshl_b32 s85, s85, 3")
            A(f"s_add_u32 s{sFS}, s85, s81")
        else:
            A(f"s_lshl_b32 s{sFS}, s81, 2")
            A(f"s_add_u32 s{sFS}, s{sFS}, s85")
        A(f"s_and_b32 s{sFD}, s82, 7")
    A("s_sub_u32 s85, s82, 8")
    A("s_cmp_lt_u32 s82, 16")
    A("s_cselect_b32 s85, s82, s85")
    A("s_and_b32 s89, s85, 3")
    A(f"s_add_u32 s{sG1D}, s89, s88")
    A("s_lshr_b32 s85, s85, 2")
    A("s_lshl_b32 s88, s85, 2")
    A(f"s_add_u32 s{sG1F}, s83, s88")
    A("s_lshr_b32 s88, s85, 2")
    A("s_lshl_b32 s85, s85, 1")
    A("s_add_u32 s85, s85, s88")
    A("s_lshl_b32 s85, s85, 1")
    if OPT["rfb"] == 0: A("s_mov_b32 s85, 0")
    A(f"s_mul_i32 s89, s89, {OPT['rdb']}")
    A("s_add_u32 s85, s85, s89")
    if OPT["grot"] == 2: A("s_lshl_b32 s85, s85, 1")
    A(f"s_and_b32 s99, s85, {(15 if OPT['grot'] == 4 else 8) if OPT['grot'] else 0}")

def cw_init(A):
    A(f"s_mov_b64 s[{sCW}:{sCW+1}], s[{sW1}:{sW1+1}]")
    A(f"s_mov_b64 s[{sCW+2}:{sCW+3}], s[{sW1+2}:{sW1+3}]")
def params2(A):
    if OPT.get("same"):
        for k, r in enumerate((sG1D, sG1F, sFS, sFD)):
            A(f"s_mov_b32 s{100 if not STAMPS else 64+k}, s{r}")
            A(f"s_mov_b32 s{r}, 0")
        params2_(A)
        for k, r in enumerate((sG1D, sG1F, sFS, sFD)): A(f"s_mov_b32 s{r}, s{64+k}")
    else: params2_(A)
def params2_(A):
    A(f"s_mul_i32 s{sCB1}, s{sWAVE}, {16*32*3072}")
    A(f"s_lshl_b32 s85, s{sG1F}, 7")
    A(f"s_add_u32 s{sCB1}, s{sCB1}, s85")
    A(f"s_add_u32 s{sCE1}, s{sCB1}, {16*32*3072}")
    A(f"s_mul_i32 s85, s99, {32*3072}")
    A(f"s_add_u32 s{sC1}, s{sCB1}, s85")
    A(f"s_mul_i32 s{sCB2}, s{sWAVE}, {16*40960}")
    A(f"s_mul_i32 s85, s{sG1D}, 5120")
    A(f"s_add_u32 s{sCB2}, s{sCB2}, s85")
    A(f"s_add_u32 s{sCE2}, s{sCB2}, {16*40960}")
    A(f"s_mul_i32 s85, s99, 40960")
    A(f"s_add_u32 s{sC2}, s{sCB2}, s85")
    A(f"s_mov_b32 s{sCST}, {32*3072}")
    A(f"s_lshl_b32 s{sCM0}, s{sWAVE}, 14")
    A("s_and_b32 s85, s82, 3")
    A(f"s_mul_i32 s85, s85, {OPT['rfd']}")
    A("s_lshr_b32 s86, s82, 2")
    A("s_mul_i32 s86, s86, 3")
    A("s_lshr_b32 s86, s86, 1")
    A("s_add_u32 s85, s85, s86")
    A("s_cmp_ge_u32 s85, 12")
    A("s_cselect_b32 s86, 12, 0")
    A("s_sub_u32 s85, s85, s86")
    if OPT["frot"] == 0: A("s_mov_b32 s85, 0")
    if OPT["frot"] == 2:
        A(f"s_add_u32 s85, s{sFS}, s{sFD}")
        A("s_and_b32 s85, s85, 1")
        A("s_mul_i32 s85, s85, 6")
    if OPT["frot"] == 3:
        A(f"s_add_u32 s85, s{sFS}, s{sFD}")
        A("s_mul_i32 s86, s85, 86")
        A("s_lshr_b32 s86, s86, 8")
        A("s_mul_i32 s86, s86, 3")
        A("s_sub_u32 s85, s85, s86")
        A("s_lshl_b32 s85, s85, 2")
    A(f"s_mul_i32 s{sFB1}, s{sWAVE}, {12*32*4096}")
    A(f"s_lshl_b32 s86, s{sFS}, 7")
    A(f"s_add_u32 s{sFB1}, s{sFB1}, s86")
    A(f"s_add_u32 s{sFE1}, s{sFB1}, {12*32*4096}")
    A(f"s_lshl_b32 s86, s85, 17")
    A(f"s_add_u32 s{sF1}, s{sFB1}, s86")
    A(f"s_mul_i32 s{sFB2}, s{sWAVE}, {12*40960}")
    A(f"s_mul_i32 s86, s{sFD}, 5120")
    A(f"s_add_u32 s{sFB2}, s{sFB2}, s86")
    A(f"s_add_u32 s{sFB2}, s{sFB2}, {WS_U:#x}")
    A(f"s_add_u32 s{sFE2}, s{sFB2}, {12*40960}")
    A(f"s_mul_i32 s86, s85, 40960")
    A(f"s_add_u32 s{sF2}, s{sFB2}, s86")
    A(f"v_lshlrev_b32 v{vB0}, 4, v1")
    A(f"v_add_u32 v{vB1}, 4096, v{vB0}")
    A("v_lshrrev_b32 v2, 2, v1")
    A("v_lshrrev_b32 v3, 1, v2")
    A("v_and_b32 v3, 3, v3")
    A("v_lshlrev_b32 v2, 7, v2")
    A("v_lshl_add_u32 v2, v3, 5, v2")
    A("v_and_b32 v3, 3, v1")
    A("v_lshl_add_u32 v2, v3, 3, v2")
    A(f"v_add_u32 v{vTR}, s{sCM0}, v2")
    for t in range(1, 4): A(f"v_xor_b32 v{vTR+t}, {32*t}, v{vTR}")
    A("v_lshrrev_b32 v2, 3, v1")
    A("v_lshrrev_b32 v3, 4, v1")
    A("v_lshlrev_b32 v3, 1, v3")
    A("v_and_b32 v4, 7, v1")
    A("v_xor_b32 v3, v3, v4")
    A("v_lshlrev_b32 v3, 4, v3")
    for base, stride in ((vWS_, 3072), (vWS2, 4096)):
        A(f"v_mul_u32_u24 v4, {stride}, v2")
        A(f"v_add_u32 v{base}, v3, v4")
        for q in range(1, 4): A(f"v_add_u32 v{base+q}, {q*(8*stride-1024)}, v{base}")
    poll_off(A, vPO, 16)
    A("v_lshlrev_b32 v15, 7, v1")
    A(f"s_mov_b32 s24, {FL_LN:#x}")
    A(f"s_mov_b32 s25, {FL_Q:#x}")
    A("s_waitcnt lgkmcnt(0)")
    A(f"s_mul_i32 s{sNON}, s3, 0x41C64E6D")
    A(f"s_add_u32 s{sNON}, s{sNON}, 0x3C6EF35F")

def qkv_setup(A, isq):
    A(f"s_lshr_b32 s{sWR_}, s{sWAVE}, 1")
    A(f"s_and_b32 s{sWC_}, s{sWAVE}, 1")
    A("v_lshrrev_b32 v2, 3, v1")
    A(f"s_lshl_b32 s85, s{sWAVE}, 5")
    A("v_add_u32 v2, s85, v2")
    A("v_mul_u32_u24 v2, 1280, v2")
    A("v_lshrrev_b32 v3, 4, v1")
    A("v_and_b32 v4, 7, v1")
    A("v_xor_b32 v4, v4, v3")
    A(f"v_lshl_add_u32 v{vXO}, v4, 4, v2")
    A("v_xor_b32 v4, 4, v4")
    A("v_lshl_add_u32 v6, v4, 4, v2")
    A(f"v_add_u32 v{vXO+1}, {8*1280-1024}, v6")
    A(f"v_add_u32 v{vXO+2}, {16*1280-2048}, v{vXO}")
    A(f"v_add_u32 v{vXO+3}, {24*1280-3072}, v6")
    A(f"s_mul_i32 s{sO1}, s{sA}, {0 if OPT.get('same') else 128*1280}")
    if OPT.get("same"):
        A("s_mov_b32 s86, 1280")
    elif isq:
        A(f"s_mul_i32 s86, s{sBp}, 320")
    else:
        A(f"s_mul_i32 s86, s{sBp}, 160")
        A("s_add_u32 s86, s86, 1280")
    A(f"s_mul_i32 s85, s{sWAVE}, {16*3840}")
    A("s_add_u32 s85, s85, s86")
    A("s_movk_i32 s88, 3840")
    for n in range(5):
        if n: A(f"v_add_u32 v2, {64*n}, v1")
        q = "v2" if n else "v1"
        A(f"v_mul_u32_u24 v3, 3277, {q}")
        A("v_lshrrev_b32 v3, 16, v3")
        A(f"v_mad_i32_i24 v4, v3, -20, {q}")
        A("v_lshrrev_b32 v5, 2, v3")
        A("v_and_b32 v5, 2, v5")
        A("v_xor_b32 v4, v4, v5")
        comp = 1024*n if n < 4 else 0
        A(f"s_sub_u32 s87, s85, {comp}" if comp else "s_mov_b32 s87, s85")
        A("v_mad_u32_u24 v3, v3, s88, s87" if False else "v_mul_u32_u24 v3, 3840, v3")
        A("v_lshl_add_u32 v3, v4, 4, v3")
        if not isq:
            A("v_cmp_le_u32 vcc, 10, v4")
            A("v_add_u32 v5, 1120, v3")
            A("v_add_u32 v3, s87, v3")
            A("v_add_u32 v5, s87, v5")
            A(f"v_cndmask_b32 v{vWO_+n}, v3, v5, vcc")
        else:
            A(f"v_add_u32 v{vWO_+n}, s87, v3")
    A(f"s_mov_b32 s{sO2}, 0")
    if OPT["rot"]:
        q = OPT["qrot"]
        if q == 1:
            A("s_and_b32 s85, s82, 3")
            A("s_lshl_b32 s85, s85, 2")
            A("s_lshr_b32 s85, 0x8530, s85")
            A("s_and_b32 s85, s85, 15")
            A("s_and_b32 s86, s82, 12")
            A("s_lshr_b32 s86, 0x8530, s86")
            A("s_and_b32 s86, s86, 15")
            A("s_add_u32 s85, s85, s86")
            A("s_add_u32 s85, s85, s83")
            A("s_add_u32 s85, s85, s84")
        else:
            A("s_lshr_b32 s85, s82, 2")
            A("s_add_u32 s85, s85, s82")
            A("s_and_b32 s85, s85, 1")
            A("s_mul_i32 s85, s85, 5")
            if q == 2:
                A("s_add_u32 s85, s85, s83")
                A("s_add_u32 s85, s85, s84")
            if q == 4:
                A("s_add_u32 s85, s85, s81")
            if q == 5:
                A("s_mov_b32 s85, s81")
        if isq: A("s_add_u32 s85, s85, 1")
        A("s_mul_i32 s86, s85, 26")
        A("s_lshr_b32 s86, s86, 8")
        A("s_mul_i32 s86, s86, 10")
        A("s_sub_u32 s85, s85, s86")
        A(f"s_mul_i32 s{sO2}, s85, {64*3840}")
        A("s_lshl_b32 s85, s85, 7")
        A(f"s_add_u32 s{sO1}, s{sO1}, s85")
    A(f"s_lshl_b32 s{sM0}, s{sWAVE}, 12")
    A(f"s_mul_i32 s{sM1}, s{sWAVE}, 5120")
    A(f"s_add_u32 s{sM1}, s{sM1}, 16384")
    A(f"s_mov_b32 s{sWR}, {2*STG}")

def nt(b): return " nt" if OPT["ntq"] & b else ""
def qkv_dma():
    L = [[f"s_add_u32 m0, s{sWR}, s{sM0}"]]
    for n in range(4):
        L.append([f"buffer_load_dwordx4 v{vXO+n}, s[{sX}:{sX+3}], s{sO1} offen offset:{1024*n}{nt(1)} lds"])
    L.append([f"s_add_u32 m0, s{sWR}, s{sM1}"])
    for n in range(4):
        L.append([f"buffer_load_dwordx4 v{vWO_+n}, s[{sW}:{sW+3}], s{sO2} offen offset:{1024*n}{nt(2)} lds"])
    L.append(["s_add_u32 m0, m0, 4096"])
    L.append([f"buffer_load_dwordx4 v{vWO_+4}, s[{sW}:{sW+3}], s{sO2} offen{nt(2)} lds"])
    return L
def qkv_adv():
    return [f"s_add_u32 s{sO1}, s{sO1}, 128", f"s_add_u32 s{sO2}, s{sO2}, {64*3840}", f"s_cmp_eq_u32 s{sO2}, {640*3840}",
            "s_cselect_b32 s85, 1280, 0", f"s_cselect_b32 s{sO2}, 0, s{sO2}", f"s_sub_u32 s{sO1}, s{sO1}, s85",
            f"s_add_u32 s{sWR}, s{sWR}, {STG}", f"s_cmp_eq_u32 s{sWR}, {4*STG}", f"s_cselect_b32 s{sWR}, 0, s{sWR}"]
def emit_dma_block(A, groups):
    for g in groups:
        for x in g: A(x)
        if "m0" in g[0].split(",")[0]: A("s_nop 0")

NW = 5
vXB, vCUR = 26, 6
vXB = 208
vCUR = 215
def qkv_reads(kk, fs):
    def wr(t):
        return [f"ds_read_b64_tr_b16 {ar(fs+16+4*t+2*j,2)}, v{vCUR+2+t} offset:{kk*10240 + j*1280}" for j in range(2)]
    L = wr(0)
    for st in range(4):
        L.append(f"ds_read_b128 {ar(fs+4*st,4)}, v{vCUR+kk} offset:{st*2048}")
    for t in range(1, 5): L += wr(t)
    return L
def qkv_mfmas(fs, isq):
    L = []
    for t in range(5):
        for st in range(4):
            x = ar(fs + 4*st, 4); w = ar(fs + 16 + 4*t, 4); c = vr(ACC + (st*5+t)*4, 4)
            L.append(f"v_mfma_f32_16x16x32_bf16 {c}, {w}, {x}, {c}" if isq else f"v_mfma_f32_16x16x32_bf16 {c}, {x}, {w}, {c}")
    return L

def qkv_gemm(A, pfx, isq, mid_setup, extras, pres, blk):
    emit_dma_block(A, qkv_dma())
    for x in qkv_adv(): A(x)
    stamp(A, pfx + "_iss0")
    mid_setup(A)
    A("v_and_b32 v2, 15, v1")
    A("v_lshrrev_b32 v3, 4, v1")
    A("v_lshrrev_b32 v4, 1, v2")
    A("v_xor_b32 v4, v4, v3")
    A("v_lshlrev_b32 v4, 4, v4")
    A("v_lshl_add_u32 v4, v2, 7, v4")
    A(f"s_lshl_b32 s85, s{sWR_}, 13")
    A(f"v_add_u32 v{vXB}, s85, v4")
    A(f"v_xor_b32 v{vXB+1}, 64, v{vXB}")
    A("v_lshrrev_b32 v4, 2, v2")
    A("v_lshl_add_u32 v4, v3, 3, v4")
    A("v_mul_u32_u24 v4, 320, v4")
    A("v_and_b32 v5, 1, v1")
    A("v_lshl_add_u32 v4, v5, 3, v4")
    A("v_add_u32 v4, 16384, v4")
    A("v_bfe_u32 v5, v1, 1, 1")
    A("v_and_b32 v6, 1, v3")
    A("v_lshlrev_b32 v6, 1, v6")
    A(f"s_mul_i32 s85, s{sWC_}, {10 if isq else 5}")
    for t in range(5):
        if isq: c0, step = [(0, 1), (2, 1), (4, 5), (5, 1), (7, 1)][t]
        else: c0, step = [(0, 1), (2, 1), (4, 6), (11, 1), (13, 1)][t]
        A(f"s_add_u32 s86, s85, {c0}")
        if step == 1: A("v_add_u32 v7, s86, v5")
        else: A(f"v_mad_u32_u24 v7, v5, {step}, s86")
        A("v_xor_b32 v7, v7, v6")
        A(f"v_lshl_add_u32 v{vXB+2+t}, v7, 4, v4")
    zero_acc(A)
    A(f"s_mov_b32 s{sRD}, {2*STG}")
    A(f"s_mov_b32 s{sCNT}, 0")
    upd = [f"v_add_u32 v{vCUR+i}, s{sRD}, v{vXB+i}" for i in range(7)]
    rdadv = [f"s_add_u32 s{sRD}, s{sRD}, {STG}", f"s_cmp_eq_u32 s{sRD}, {4*STG}", f"s_cselect_b32 s{sRD}, 0, s{sRD}"]
    def spread(rd, dma_slots, groups, scal):
        fill = [[] for _ in range(20)]
        k = 0
        for gi in range(9):
            for _ in range(2 if gi < 5 else 1):
                fill[gi].append(rd[k]); k += 1
        g = list(groups)
        for sl in dma_slots:
            if not g: break
            if "m0" in g[0][0].split(",")[0]:
                fill[sl-1] += g.pop(0)
            fill[sl] += g.pop(0)
        return fill, g
    def put_scal(fill, scal, start):
        sc = list(scal); gi = start
        while sc:
            room = 2 - len(fill[gi]) if gi < 19 else len(sc)
            for _ in range(max(room, 0)):
                if sc: fill[gi].append(sc.pop(0))
            gi += 1
    def top_half(wait, groups, pre=None, slots=(3, 7, 11, 15, 19)):
        A(f"s_waitcnt vmcnt({wait}) lgkmcnt(0)")
        if pre: pre(A)
        A("s_barrier")
        fill, rest = spread(qkv_reads(0, FA_), slots, groups, [])
        weave(A, qkv_mfmas(FB_, isq), fill)
        return rest
    def bot_half(adv, tail, groups=[], slots=(2, 6, 10, 13)):
        A("s_waitcnt lgkmcnt(0)")
        fill, rest = spread(qkv_reads(1, FB_), slots, groups, [])
        assert not rest
        put_scal(fill, rdadv + upd, 9)
        put_scal(fill, (qkv_adv() if adv else []) + tail, 14)
        weave(A, qkv_mfmas(FA_, isq), fill)
    for x in upd: A(x)
    stamp(A, pfx + "_setup")
    emit_dma_block(A, qkv_dma())
    for x in qkv_adv(): A(x)
    stamp(A, pfx + "_issued")
    A("s_waitcnt vmcnt(9)")
    A("s_barrier")
    stamp(A, pfx + "_first")
    for x in qkv_reads(0, FA_): A(x)
    emit_dma_block(A, qkv_dma()[:7])
    A(f"s_branch {pfx}_mid")
    A(".p2align 3")
    A.label(f"{pfx}_loop")
    outl = []
    for k, (c, fn) in enumerate(blk):
        A(f"s_cmp_eq_u32 s{sCNT}, {c}")
        A(f"s_cbranch_scc1 {pfx}_blk{k}")
    A.label(f"{pfx}_noblk")
    rest = top_half(9, qkv_dma())
    assert len(rest) == 5
    A.label(f"{pfx}_mid")
    bot_half(True, [f"s_add_u32 s{sCNT}, s{sCNT}, 1", f"s_cmp_lt_u32 s{sCNT}, 8"], rest)
    A(f"s_cbranch_scc1 {pfx}_loop")
    for it in (8, 9):
        g, w = extras.get(it, ([], 9 if it == 8 else 0))
        sl = (1, 3, 5, 8, 10, 12, 14, 16, 18) if len(g) > 14 else (2, 5, 8, 11, 14, 17)
        rest = top_half(w, g, pres.get(it), sl)
        bot_half(False, [], rest, sl)
    stamp(A, pfx + "_loop9")
    A("s_waitcnt lgkmcnt(0)")
    if isq:
        for m in qkv_mfmas(FB_, isq): A(m)
        A("s_nop 7")
        stamp(A, pfx + "_loopdone")
    def outline(A):
        for k, (c, fn) in enumerate(blk):
            A.label(f"{pfx}_blk{k}")
            fn(A)
            A(f"s_branch {pfx}_noblk")
    return outline

PAIRS = [(2,0),(3,0),(2,1),(3,1),(4,1),(3,2),(4,2)]
def kv_mask(i):
    te, tc = PAIRS[i]; m = 0
    for l in range(64):
        c = 16*tc + l % 16; e = [-8, 8, 24][te-2] + 4*(l//16)
        if c < 40 and e >= 0 and c//20 == e//20: m |= 1 << l
    return m

KVB = [sum(bin(kv_mask(j)).count("1") for j in range(i)) for i in range(8)]
def kv_rank(A, dst, i, shift, add=0):
    m = kv_mask(i)
    A(f"s_mov_b32 s85, {m & 0xffffffff:#x}")
    A(f"s_mov_b32 s86, {m >> 32:#x}")
    A(f"v_mbcnt_lo_u32_b32 v{dst}, s85, {KVB[i]}" if KVB[i] <= 64 else f"v_mov_b32 v{dst}, {KVB[i]}\nv_mbcnt_lo_u32_b32 v{dst}, s85, v{dst}")
    A(f"v_mbcnt_hi_u32_b32 v{dst}, s86, v{dst}")
    A(f"v_lshlrev_b32 v{dst}, {shift}, v{dst}")
    if add: A(f"v_add_u32 v{dst}, {add}, v{dst}")
vKR = 246
def phi4(A, b, T, dst=None):
    dst = b if dst is None else dst
    A(f"v_pk_mul_f32 {vr(T,2)}, {vr(b,2)}, s[{sL2}:{sL2+1}]")
    A(f"v_pk_mul_f32 {vr(T+2,2)}, {vr(b+2,2)}, s[{sL2}:{sL2+1}]")
    for i in range(4): A(f"v_exp_f32 v{T+i}, v{T+i} clamp")
    for i in range(4): A(f"v_max_f32 v{dst+i}, {EPS6:#x}, v{b+i}")
    A(f"v_pk_add_f32 {vr(dst,2)}, {vr(dst,2)}, {vr(T,2)}")
    A(f"v_pk_add_f32 {vr(dst+2,2)}, {vr(dst+2,2)}, {vr(T+2,2)}")
sL2 = 88
vEW, vEZ, vER, sKVS = 250, 251, 252, 26
def kv_esetup(A):
    A(f"s_lshl_b32 s85, s{sBp}, 1")
    A(f"s_add_u32 s85, s85, s{sWC_}")
    A("s_lshl_b32 s86, s85, 4")
    A(f"s_add_u32 s86, s86, s{sA}")
    A("s_lshl_b32 s87, s86, 8")
    A(f"s_mul_i32 s{sKVS}, s86, 3200")
    A(f"s_sub_u32 s87, s87, s{sKVS}")
    A(f"s_add_u32 s87, s87, {WS_ZP - WS_KVP:#x}")
    A("s_lshr_b32 s87, s87, 4")
    A(f"s_add_u32 s{sKVS}, s{sKVS}, {WS_KVP:#x}")
    A("v_mov_b32 v2, 0x7ff00000")
    for k in range(4):
        mA = kv_mask(k); mB = kv_mask(4+k) if k < 3 else 0xffff
        A(f"s_cmp_eq_u32 s{sWR_}, 0")
        A(f"s_mov_b32 s92, {mB & 0xffffffff:#x}")
        A(f"s_cselect_b32 s92, {mA & 0xffffffff:#x}, s92")
        A(f"s_mov_b32 s93, {mB >> 32:#x}")
        A(f"s_cselect_b32 s93, {mA >> 32:#x}, s93")
        if k < 3: A(f"s_mov_b32 s88, {KVB[4+k]}")
        A(f"s_cselect_b32 s88, {KVB[k]}, s{88 if k < 3 else 87}")
        A(f"v_mov_b32 v{vKR+k}, s88")
        A(f"v_mbcnt_lo_u32_b32 v{vKR+k}, s92, v{vKR+k}")
        A(f"v_mbcnt_hi_u32_b32 v{vKR+k}, s93, v{vKR+k}")
        A(f"v_lshlrev_b32 v{vKR+k}, 4, v{vKR+k}")
        A(f"v_cndmask_b32 v{vKR+k}, v2, v{vKR+k}, s[92:93]")
    A(f"s_mul_i32 s85, s{sWAVE}, 8448")
    A(f"s_add_u32 s85, s85, {LDS_RED}")
    A(f"v_add_u32 v{vEW}, s85, v{vB0}")
    A(f"v_lshl_add_u32 v{vEZ}, v1, 2, s85")
    A(f"s_mul_i32 s85, s{sWC_}, 8448")
    A(f"s_lshl_b32 s86, s{sWR_}, 12")
    A("s_add_u32 s85, s85, s86")
    A(f"s_add_u32 s85, s85, {LDS_RED}")
    A(f"v_add_u32 v{vER}, s85, v{vB0}")
    A("v_and_b32 v2, 15, v1")
    A(f"v_cmp_gt_u32 s[{sMK}:{sMK+1}], 8, v2")
    A("v_cmp_lt_u32 s[64:65], 15, v1")
    A("v_cmp_lt_u32 s[66:67], 31, v1")
def kv_estream():
    PB, KA, ONE, TMP = 128, 168, 208, 212
    E = [Asm(), Asm(), Asm(), Asm()]
    A = E[0]
    A(f"s_mov_b32 s{sL2}, {LOG2E:#x}")
    A(f"s_mov_b32 s{sL2+1}, {LOG2E:#x}")
    for i in range(4): A(f"v_mov_b32 v{ONE+i}, 0x3f803f80")
    for st in range(4):
        A = E[st // 2]
        for t in range(3):
            b = ACC + (st*5+t)*4
            if t < 2: phi4(A, b, TMP)
            else:
                phi4(A, b, TMP, TMP+4)
                for i in range(4): A(f"v_cndmask_b32 v{b+i}, v{b+i}, v{TMP+4+i}, s[{sMK}:{sMK+1}]")
        for t in range(5):
            b = ACC + (st*5+t)*4
            d = PB + (t*2 + st//2)*4 + (st & 1)*2
            A(f"v_cvt_pk_bf16_f32 v{d}, v{b}, v{b+1}")
            A(f"v_cvt_pk_bf16_f32 v{d+1}, v{b+2}, v{b+3}")
        if st & 1:
            sp = st // 2
            A("s_nop 1")
            for tc in range(3):
                c = vr(KA+4*(7+tc), 4)
                A(f"v_mfma_f32_16x16x32_bf16 {c}, {vr(ONE,4)}, {vr(PB+(tc*2+sp)*4,4)}, {c if sp else 0}")
            for i, (te, tc) in enumerate(PAIRS):
                c = vr(KA+4*i, 4)
                A(f"v_mfma_f32_16x16x32_bf16 {c}, {vr(PB+(te*2+sp)*4,4)}, {vr(PB+(tc*2+sp)*4,4)}, {c if sp else 0}")
    A = E[1]
    A("s_nop 0")
    A(f"v_cndmask_b32 v{KA+28}, v{KA+28}, v{KA+32}, s[64:65]")
    A(f"v_cndmask_b32 v{KA+28}, v{KA+28}, v{KA+36}, s[66:67]")
    A(f"ds_write_b32 v{vEZ}, v{KA+28} offset:7168")
    for i in range(7): A(f"ds_write_b128 v{vEW}, {vr(KA+4*i,4)} offset:{1024*i}")
    A = E[2]
    for k in range(4):
        A(f"ds_read_b128 {vr(PB+8*k,4)}, v{vER} offset:{1024*k}")
        A(f"ds_read_b128 {vr(PB+8*k+4,4)}, v{vER} offset:{1024*k + 16896}")
    A = E[3]
    A("s_waitcnt lgkmcnt(0)")
    for k in range(4):
        for i in (0, 2): A(f"v_pk_add_f32 {vr(PB+8*k+i,2)}, {vr(PB+8*k+i,2)}, {vr(PB+8*k+4+i,2)}")
    for k in range(4):
        A(f"buffer_store_dwordx4 {vr(PB+8*k,4)}, v{vKR+k}, s[{sWS}:{sWS+3}], s{sKVS} offen sc1")
    return [e.lines for e in E]

def w1_setup(A, locbase, vreg):
    A(f"s_sub_u32 s88, s82, {locbase}")
    A("s_lshl_b32 s88, s88, 2")
    A(f"s_add_u32 s88, s88, s{sWAVE}")
    A(f"v_and_b32 v{vreg}, 31, v1")
    A(f"v_mul_u32_u24 v{vreg}, 3072, v{vreg}")
    A("v_lshrrev_b32 v3, 5, v1")
    A(f"v_lshl_add_u32 v{vreg}, v3, 9, v{vreg}")
    A(f"s_mul_i32 s85, s88, {32*3072}")
    A("s_lshl_b32 s86, s83, 7")
    A("s_add_u32 s85, s85, s86")
    A(f"s_mul_i32 s86, s84, {1024*3072}")
    A("s_add_u32 s26, s86, s85")
    A("s_xor_b32 s87, s84, 1")
    A(f"s_mul_i32 s87, s87, {1024*3072}")
    A("s_add_u32 s27, s87, s85")

def w2_prefetch(A, locbase, parts):
    A(f"s_sub_u32 s85, s82, {locbase}")
    A("s_lshl_b32 s85, s85, 2")
    A(f"s_add_u32 s85, s85, s{sWAVE}")
    if OPT["fmap"]:
        A("v_lshrrev_b32 v2, 2, v1")
        A("v_lshlrev_b32 v2, 12, v2")
        A("v_and_b32 v3, 3, v1")
        A(f"v_lshl_add_u32 v2, v3, {10 if OPT['fmap'] == 1 else 7}, v2")
        A(f"s_mul_i32 s85, s85, {48*4096}")
        A(f"s_lshl_b32 s86, s81, {7 if OPT['fmap'] == 1 else 9}")
        A("s_add_u32 s85, s85, s86")
        if parts[0]: A(f"s_add_u32 s85, s85, {16*4096*parts[0]}")
        for i in parts:
            A(f"buffer_load_dword a255, v2, s[{sW2}:{sW2+3}], s85 offen")
            if i != parts[-1]: A(f"s_add_u32 s85, s85, {16*4096}")
        return
    if OPT["w2c"]:
        A("s_lshl_b32 s86, s81, 5")
        A("s_add_u32 s85, s85, s86")
        A("s_lshl_b32 s85, s85, 13")
        if parts[0]: A(f"s_add_u32 s85, s85, {(8192*256)*parts[0]}")
        for i in parts:
            A(f"buffer_load_dword a255, v15, s[{sW2}:{sW2+3}], s85 offen")
            if i != parts[-1]: A(f"s_add_u32 s85, s85, {8192*256}")
        return
    A("v_lshrrev_b32 v2, 3, v1")
    A("v_lshlrev_b32 v2, 12, v2")
    A("v_and_b32 v3, 7, v1")
    A("v_lshl_add_u32 v2, v3, 7, v2")
    A("s_mul_i32 s85, s85, 24")
    A("s_mul_i32 s86, s84, 768")
    A("s_add_u32 s85, s85, s86")
    A(f"s_add_u32 s85, s85, {8*parts[0]}")
    A("s_lshl_b32 s85, s85, 12")
    A("s_lshl_b32 s86, s83, 10")
    A("s_add_u32 s85, s85, s86")
    for i in parts:
        A(f"buffer_load_dword a255, v2, s[{sW2}:{sW2+3}], s85 offen")
        if i != parts[-1]: A(f"s_add_u32 s85, s85, {8*4096}")

QCB = [0, 16, 32, 40, 56]
QDP = [(0,0),(0,1),(1,0),(1,1),(1,2),(2,1),(2,2),(2,4),(3,3),(3,4),(4,2),(4,3),(4,4)]
sMA, sZO, sKO, sPQ, sWOo, sGo = 56, 58, 59, 64, 67, 23
vWOd, vWOt, vZA, vKP, vGo, vT1 = 248, 246, 252, 245, 25, 244
MSK = 194
def q_setup(A):
    T = 128
    A(f"s_mul_i32 s{sWOo}, s{sU}, {40*1280}")
    A(f"s_mul_i32 s86, s{sNR}, 320")
    A(f"s_add_u32 s{sWOo}, s{sWOo}, s86")
    A(f"s_lshl_b32 s86, s{sWAVE}, 8")
    for n in range(4):
        A(f"v_add_u32 v2, {64*n}, v1")
        A("v_add_u32 v2, s86, v2")
        A("v_mul_u32_u24 v3, 3277, v2")
        A("v_lshrrev_b32 v3, 16, v3")
        A("v_mul_u32_u24 v4, 20, v3")
        A("v_sub_u32 v4, v2, v4")
        A("v_mul_u32_u24 v3, 1280, v3")
        A(f"v_lshl_add_u32 v{vWOd+n}, v4, 4, v3")
        if n: A(f"v_subrev_u32 v{vWOd+n}, {1024*n}, v{vWOd+n}")
    A("v_and_b32 v3, 15, v1")
    A("v_lshrrev_b32 v4, 4, v1")
    A(f"v_lshlrev_b32 v{vGo}, 2, v3")
    A(f"s_lshl_b32 s86, s{sA}, 9")
    A(f"s_lshl_b32 s87, s{sWR_}, 8")
    A("s_add_u32 s86, s86, s87")
    A(f"s_add_u32 s{sGo}, s86, {WS_G:#x}")
    A("v_bfe_u32 v5, v1, 1, 2")
    A(f"s_lshl_b32 s85, s{sWAVE}, 2")
    A("v_add_lshl_u32 v5, v5, s85, 3")
    A("v_and_b32 v6, 1, v1")
    A(f"s_lshl_b32 s85, s{sBp}, 1")
    A("v_add3_u32 v5, v5, v6, s85")
    A(f"v_lshlrev_b32 v{vKP}, 7, v5")
    A("v_lshrrev_b32 v5, 2, v3")
    A("v_lshl_add_u32 v5, v4, 2, v5")
    A("v_and_b32 v6, 7, v5")
    A("v_mul_u32_u24 v6, 320, v6")
    A("v_mul_u32_u24 v5, 320, v5")
    A("v_and_b32 v7, 3, v1")
    A("v_lshlrev_b32 v7, 3, v7")
    A(f"s_lshl_b32 s86, s{sWAVE}, 5")
    A("v_add_u32 v7, s86, v7")
    A(f"v_add_u32 v{vWOt}, v6, v7")
    A(f"v_add_u32 v{vWOt+1}, v5, v7")
    A(f"s_lshr_b32 s86, s{sU}, 2")
    A("s_mul_i32 s86, s86, 5")
    A(f"s_bfe_u32 s87, s{sU}, 0x10001")
    A(f"s_and_b32 s88, s{sU}, 1")
    A("s_mul_i32 s89, s87, 3")
    A("s_add_u32 s89, s89, s88")
    A("s_add_u32 s89, s89, s86")
    A(f"s_mul_i32 s{sMA}, s89, 40960")
    A("s_add_u32 s86, s86, 2")
    A(f"s_mul_i32 s{sMA+1}, s86, 40960")
    A("s_lshl_b32 s87, s87, 3")
    A("s_lshl_b32 s88, s88, 9")
    A(f"s_add_u32 s{sMA+1}, s{sMA+1}, s87")
    A(f"s_add_u32 s{sMA+1}, s{sMA+1}, s88")
    A(f"s_mul_i32 s86, s{sNR}, 10240")
    A(f"s_lshl_b32 s87, s{sWAVE}, 10")
    A("s_add_u32 s86, s86, s87")
    A(f"s_add_u32 s86, s86, {WS_M:#x}")
    A(f"s_add_u32 s{sMA}, s{sMA}, s86")
    A(f"s_add_u32 s{sMA+1}, s{sMA+1}, s86")
    A(f"s_lshl_b32 s85, s{sA}, 1")
    A(f"s_add_u32 s85, s85, s{sWR_}")
    A("s_mul_i32 s85, s85, 20")
    A(f"s_mul_i32 s86, s{sBp}, 5")
    A("s_add_u32 s85, s85, s86")
    A("s_lshl_b32 s85, s85, 12")
    A(f"s_add_u32 s85, s85, {WS_PQ:#x}")
    A(f"s_mul_i32 s86, s{sWC_}, {3*4096}")
    A(f"s_add_u32 s{sPQ}, s86, s85")
    A(f"s_add_u32 s{sPQ+1}, s{sPQ}, 4096")
    A(f"s_lshl_b32 s88, s{sWC_}, 3")
    A("s_add_u32 s88, s88, s85")
    A(f"s_add_u32 s{sPQ+2}, s88, 8192")
    A(f"v_add_u32 v5, s{sWAVE}, v1")
    A(f"s_mul_i32 s85, s{sWAVE}, 9")
    A("v_add_u32 v5, s85, v5")
    A("v_lshrrev_b32 v6, 2, v5")
    A("v_and_b32 v5, 3, v5")
    A("v_lshlrev_b32 v5, 7, v5")
    A("v_lshl_add_u32 v5, v6, 10, v5")
    A(f"s_sub_u32 s85, s{sMA+1}, s87")
    A("s_and_b32 s85, s85, 0xffffff80")
    A("v_add_u32 v5, s85, v5")
    A(f"s_and_b32 s85, s{sPQ+2}, 0xffffff80")
    A(f"s_lshl_b32 s86, s{sWC_}, 11")
    A("s_add_u32 s85, s85, s86")
    A("v_lshlrev_b32 v6, 7, v3")
    A("v_add_u32 v6, s85, v6")
    A("v_cmp_gt_u32 vcc, 10, v1")
    A("s_nop 1")
    A(f"v_cndmask_b32 v{vT1}, v6, v5, vcc")
    A(f"v_mov_b32 v{T}, {LDS_RED + 1600}")
    for i in range(7):
        kv_rank(A, 26+i, i, 3, LDS_RED)
        A(f"s_mov_b32 s92, s85")
        A(f"s_mov_b32 s93, s86")
        A(f"v_cndmask_b32 v{26+i}, v{T}, v{26+i}, s[92:93]")
    cb = QCB
    for t in range(5):
        A(f"v_lshl_add_u32 v{T+t}, v4, 2, {cb[t]}")
        A(f"v_add_u32 v{T+5+t}, {cb[t]}, v3")
        if t == 2:
            A("v_lshrrev_b32 v5, 1, v4")
            A(f"v_lshl_add_u32 v{T+t}, v5, 5, v{T+t}")
            A("v_mul_u32_u24 v7, 4064, v5")
            A("v_lshrrev_b32 v5, 3, v3")
            A(f"v_lshl_add_u32 v{T+5+t}, v5, 5, v{T+5+t}")
        A(f"v_mul_u32_u24 v{T+t}, 205, v{T+t}")
        A(f"v_lshrrev_b32 v{T+t}, 12, v{T+t}")
        A(f"v_mul_u32_u24 v{T+5+t}, 205, v{T+5+t}")
        A(f"v_lshrrev_b32 v{T+5+t}, 12, v{T+5+t}")
    for k, (tp, t) in enumerate(QDP):
        A(f"v_cmp_eq_u32 vcc, v{T+t}, v{T+5+tp}")
        A("s_nop 1")
        A(f"v_cndmask_b32 v{MSK+k}, 0, -1, vcc")
    A("v_lshlrev_b32 v5, 8, v3")
    A(f"v_lshl_add_u32 v{vZA}, v4, 4, v5")
    A(f"v_add_u32 v{vZA+2}, v7, v{vZA}")
    A(f"v_add_u32 v{vZA+1}, 4096, v{vZA}")
    A(f"s_lshl_b32 s86, s{sBp}, 14")
    A(f"s_lshl_b32 s87, s{sWC_}, 13")
    A("s_add_u32 s86, s86, s87")
    A(f"s_add_u32 s{sZO}, s86, {WS_ZP:#x}")
    A(f"s_mul_i32 s89, s{sU}, {16*3200}")
    A(f"s_mul_i32 s87, s{sWAVE}, 800")
    A("s_add_u32 s87, s87, s89")
    A(f"s_add_u32 s{sKO}, s87, {WS_KVP:#x}")
    if OPT["qw2"]:
        A("s_sub_u32 s85, s82, 16")
        A("s_lshl_b32 s85, s85, 2")
        A(f"s_add_u32 s85, s85, s{sWAVE}")
        A("s_lshl_b32 s86, s81, 5")
        A("s_add_u32 s85, s85, s86")
        A("s_lshl_b32 s85, s85, 13")
        A(f"s_add_u32 s99, s85, {8192*256*(3 - OPT['qw2'])}")
def q_pf_only(A):
    for k in range(3 - OPT["qw1n"], 3):
        A(f"buffer_load_dword a255, v12, s[{sW1}:{sW1+3}], s26 offen offset:{1024*k}")
def q_loop_pf(A):
    if OPT["qw1"] == 0:
        A("s_mov_b32 exec_lo, 0xffff03ff")
        A("s_mov_b32 exec_hi, 0")
        A(f"buffer_load_dword a255, v{vT1}, s[{sWS}:{sWS+3}], 0 offen sc1")
        A("s_mov_b64 exec, -1")
        return
    for k in range(3 - OPT["qw1n"], 3):
        A(f"buffer_load_dword a255, v12, s[{sW1}:{sW1+3}], s26 offen offset:{1024*k}")
    if OPT["qw1b"]:
        for k in range(3): A(f"buffer_load_dword a255, v12, s[{sW1}:{sW1+3}], s27 offen offset:{1024*k}")
    for k in range(OPT["qw2"]):
        A(f"buffer_load_dword a255, v15, s[{sW2}:{sW2+3}], s99 offen")
        A(f"s_add_u32 s99, s99, {8192*256}")
    if OPT["touch"] and not OPT["qdefer"]:
        A("s_mov_b32 exec_lo, 0xffff03ff")
        A("s_mov_b32 exec_hi, 0")
        A(f"buffer_load_dword a255, v{vT1}, s[{sWS}:{sWS+3}], 0 offen sc1")
        A("s_mov_b64 exec, -1")
def q_extras():
    g8 = [[poll_ld(vPO, 24)], [f"s_lshl_b32 m0, s{sWAVE}, 12"]] + [[f"buffer_load_dwordx4 v{vWOd+n}, s[{sWO}:{sWO+3}], s{sWOo} offen offset:{1024*n} lds"] for n in range(4)]
    g9 = [[f"buffer_load_dword v{8+st}, v{vGo}, s[{sWS}:{sWS+3}], s{sGo} offen offset:{64*st} sc1"] for st in range(4)]
    return {8: (g8, 9), 9: (g9, 0)}

def q_epilogue(A):
    PK, Z, AF, ZP, G = 128, 168, 168, 16, 8
    KA_, DEN, OUT, TMP = 48, 204+0, 224, 112
    WBa, KVa = 0, 20
    cb, dp = QCB, QDP
    A(f"s_mov_b32 s24, {FL_KV:#x}")
    for i in range(3):
        A(f"ds_read_b64_tr_b16 {ar(WBa+6*i,2)}, v{vWOt} offset:{128*i}")
        A(f"ds_read_b64_tr_b16 {ar(WBa+6*i+2,2)}, v{vWOt+1} offset:{128*i + 8*320}")
        A(f"ds_read_b64_tr_b16 {ar(WBa+6*i+4,2)}, v{vWOt+1} offset:{128*i + 24*320}")
    A(f"v_mov_b32 v2, {LDS_RED + 1600}")
    A("v_mov_b64 v[4:5], 0")
    A("ds_write_b64 v2, v[4:5]")
    A(f"s_mov_b32 s{sL2}, {LOG2E:#x}")
    A(f"s_mov_b32 s{sL2+1}, {LOG2E:#x}")
    for k, b in enumerate(range(ACC, ACC+80, 4)):
        if k == 12: A(poll_ld(vKP, 24))
        phi4(A, b, 208)
        A(f"v_cvt_pk_bf16_f32 v{PK+2*k}, v{b}, v{b+1}")
        A(f"v_cvt_pk_bf16_f32 v{PK+2*k+1}, v{b+2}, v{b+3}")
    stamp(A, "q_pre")
    A("s_waitcnt vmcnt(0) lgkmcnt(0)")
    poll_check(A, "pkv", vKP, 24)
    A("s_barrier")
    stamp(A, "q_kvok")
    for t in range(5):
        A(f"buffer_load_dwordx4 {vr(Z+4*t,4)}, v{vZA+[0,0,2,1,1][t]}, s[{sWS}:{sWS+3}], s{sZO} offen offset:{[0,64,128,0,64][t]} sc1")
    kvl = []
    for rb in range(0, 16, 2):
        kvl.append(["s_mov_b32 exec_hi, 0x3ffff",
                    f"buffer_load_dwordx4 {vr(KA_+4*rb,4)}, v{vB0}, s[{sWS}:{sWS+3}], s{sKO} offen sc1",
                    f"buffer_load_dwordx4 {vr(KA_+4*rb+4,4)}, v{vB0}, s[{sWS}:{sWS+3}], s{sKO} offen offset:3200 sc1",
                    "s_mov_b32 exec_hi, -1", f"s_add_u32 s{sKO}, s{sKO}, 6400"])
    def kv(n):
        for _ in range(n):
            if kvl:
                for x in kvl.pop(0): A(x)
    kv(2)
    A("s_waitcnt vmcnt(4)")
    stamp(A, "q_z")
    for rot in (8, 4, 2, 1):
        kv(1)
        for i in range(20):
            A(f"v_add_f32_dpp v{Z+i}, v{Z+i}, v{Z+i} row_ror:{rot} row_mask:0xf bank_mask:0xf")
    for i in range(10): A(f"v_cvt_pk_bf16_f32 v{ZP+i}, v{Z+2*i}, v{Z+2*i+1}")
    kv(2)
    for k, (tp, t) in enumerate(dp):
        A(f"v_and_b32 v{AF+2*k}, v{MSK+k}, v{ZP+2*t}")
        A(f"v_and_b32 v{AF+2*k+1}, v{MSK+k}, v{ZP+2*t+1}")
    A("s_nop 0")
    DEN2 = 224
    def den(st, Dn):
        seen = set()
        for k, (tp, t) in enumerate(dp):
            c = vr(Dn + 4*tp, 4)
            A(f"v_mfma_f32_16x16x16_bf16 {c}, {vr(AF+2*k,2)}, {vr(PK+(st*5+t)*2,2)}, {c if tp in seen else 0}")
            seen.add(tp)
    den(0, DEN)
    for st in range(4):
        Dn = DEN if (st & 1) == 0 else DEN2
        o = OUT
        U = TMP + 10
        if st < 3: den(st + 1, DEN2 if (st & 1) == 0 else DEN)
        else: A("s_nop 7")
        kv(OPT["kvr"])
        for tp in range(5): A(f"v_add_f32 v{TMP+2*tp}, {EPS6:#x}, v{Dn+4*tp}")
        for tp in range(5): A(f"v_rcp_f32 v{TMP+2*tp}, v{TMP+2*tp}")
        A("s_nop 0")
        for tp in range(5): A(f"v_mul_f32 v{TMP+2*tp}, v{TMP+2*tp}, v{G+st}")
        for tp in range(5):
            p = PK + (st*5+tp)*2
            if tp == 2: kv(OPT["kvr"])
            A(f"v_lshlrev_b32 v{U}, 16, v{p}")
            A(f"v_and_b32 v{U+1}, 0xffff0000, v{p}")
            A(f"v_lshlrev_b32 v{U+2}, 16, v{p+1}")
            A(f"v_and_b32 v{U+3}, 0xffff0000, v{p+1}")
            A(f"v_pk_mul_f32 {vr(U,2)}, {vr(U,2)}, {vr(TMP+2*tp,2)} op_sel_hi:[1,0]")
            A(f"v_pk_mul_f32 {vr(U+2,2)}, {vr(U+2,2)}, {vr(TMP+2*tp,2)} op_sel_hi:[1,0]")
            A(f"v_cvt_pk_bf16_f32 v{p}, v{U}, v{U+1}")
            A(f"v_cvt_pk_bf16_f32 v{p+1}, v{U+2}, v{U+3}")
        p = PK + st*10
        A(f"buffer_store_dwordx4 {vr(p,4)}, v{vB0}, s[{sWS}:{sWS+3}], s{sPQ} offen offset:{1024*st} sc1")
        A(f"buffer_store_dwordx4 {vr(p+6,4)}, v{vB0}, s[{sWS}:{sWS+3}], s{sPQ+1} offen offset:{1024*st} sc1")
        A(f"buffer_store_dwordx2 {vr(p+4,2)}, v{vB0}, s[{sWS}:{sWS+3}], s{sPQ+2} offen offset:{1024*st} sc1")
    assert not kvl
    stamp(A, "q_pq")
    A("s_waitcnt vmcnt(12)")
    stamp(A, "q_kv")
    for w in (32, 16, 8, 4):
        for i in range(0, w, 2):
            A(f"v_pk_add_f32 {vr(KA_+i,2)}, {vr(KA_+i,2)}, {vr(KA_+w+i,2)}")
    A(f"s_mul_i32 s86, s{sWAVE}, 400")
    A(f"s_add_u32 s86, s86, {LDS_RED}")
    A("v_lshlrev_b32 v7, 3, v1")
    A("v_add_u32 v7, s86, v7")
    A(f"v_cvt_pk_bf16_f32 v{KA_}, v{KA_}, v{KA_+1}")
    A(f"v_cvt_pk_bf16_f32 v{KA_+1}, v{KA_+2}, v{KA_+3}")
    A("s_mov_b32 exec_hi, 0x3ffff")
    A(f"ds_write_b64 v7, {vr(KA_,2)}")
    A("s_mov_b32 exec_hi, -1")
    A("s_waitcnt lgkmcnt(0)")
    A("s_barrier")
    stamp(A, "q_bar")
    for i in range(7): A(f"ds_read_b64 {ar(KVa+2*i,2)}, v{26+i}")
    A("s_waitcnt lgkmcnt(0)")
    MD = 64
    for i in range(3):
        seen = set()
        for k, (te, tc) in enumerate(PAIRS):
            c = vr(MD + (i*3+tc)*4, 4)
            A(f"v_mfma_f32_16x16x16_bf16 {c}, {ar(KVa+2*k,2)}, {ar(WBa+6*i+2*(te-2),2)}, {c if tc in seen else 0}")
            seen.add(tc)
    for i in range(3):
        if i == 2:
            A(f"s_cmp_ge_u32 s{sWAVE}, 2")
            A("s_cbranch_scc1 q_m_done")
            A("s_nop 2")
        b = MD + i*12
        for k in range(6): A(f"v_cvt_pk_bf16_f32 v{b+k}, v{b+2*k}, v{b+2*k+1}")
        A(f"buffer_store_dwordx4 {vr(b,4)}, v{vB0}, s[{sWS}:{sWS+3}], s{sMA} offen sc1")
        A("s_mov_b32 exec_hi, 0")
        A(f"buffer_store_dwordx2 {vr(b+4,2)}, v{vB0}, s[{sWS}:{sWS+3}], s{sMA+1} offen sc1")
        A("s_mov_b32 exec_hi, -1")
        A(f"s_add_u32 s{sMA}, s{sMA}, 4096")
        A(f"s_add_u32 s{sMA+1}, s{sMA+1}, 4096")
    A.label("q_m_done")
    stamp(A, "q_mdone")

def tlb_touch(A):
    for ptr, size in ((26, WS_SIZE), (22, 2048*1280), (16, 1536*4096), (12, 2048*3072), (8, 640*1280), (14, 4), (18, 4)):
        A(f"s_mov_b64 s[86:87], s[{ptr}:{ptr+1}]")
        offs = sorted(set(list(range(0, size, 1 << 21)) + [size - 4]))
        prev = 0
        for o in offs:
            if o - prev >= (1 << 20):
                A(f"s_add_u32 s86, s86, {o - prev:#x}")
                A("s_addc_u32 s87, s87, 0")
                prev = o
            A(f"s_load_dword s98, s[86:87], {o - prev:#x}")
def ln_role(A, after_loads, ne):
    X, GW, D = 48, 88, 128
    A("v_lshrrev_b32 v2, 3, v1")
    A(f"s_lshl_b32 s85, s{sWAVE}, 3")
    A("v_add_u32 v2, s85, v2")
    A("v_and_b32 v3, 7, v1")
    A("v_lshlrev_b32 v3, 4, v3")
    A("v_mul_u32_u24 v4, 1280, v2")
    A("v_add_u32 v4, v4, v3")
    A(f"s_mul_i32 s85, s{sA}, {32*1280}")
    A("s_waitcnt lgkmcnt(0)"); srds(A, ["X", "GW"])
    LN_TLB = True
    for i in range(10):
        A(f"buffer_load_dwordx4 {vr(X+4*i,4)}, v4, s[{sX}:{sX+3}], s85 offen offset:{128*i}")
    for i in range(10):
        A(f"buffer_load_dwordx4 {vr(GW+4*i,4)}, v3, s[{sGW}:{sGW+3}], 0 offen offset:{128*i}")
    A("v_mul_u32_u24 v16, 1312, v2")
    A("v_add_u32 v16, v16, v3")
    A("v_lshlrev_b32 v17, 2, v2")
    if OPT["tlb"]: tlb_touch(A)
    after_loads(A)
    A("v_mov_b32 v5, 0x3f803f80")
    for i in range(4): A(f"v_mov_b32 v{8+i}, 0")
    A(f"s_waitcnt vmcnt({10+ne})")
    stamp(A, "ln_first")
    for i in range(40):
        A(f"v_dot2_f32_bf16 v{8+(i&1)}, v{X+i}, v5, v{8+(i&1)}")
    A(f"s_waitcnt vmcnt({ne})")
    for i in range(40):
        A(f"v_dot2_f32_bf16 v{10+(i&1)}, v{X+i}, v{GW+i}, v{10+(i&1)}")
    A("s_nop 2")
    A("v_add_f32 v8, v8, v9")
    A("v_add_f32 v10, v10, v11")
    def red8(r):
        for m in ("quad_perm:[1,0,3,2]", "quad_perm:[2,3,0,1]", "row_half_mirror"):
            A("s_nop 1")
            for x in r: A(f"v_add_f32_dpp v{x}, v{x}, v{x} {m} row_mask:0xf bank_mask:0xf")
    red8([8, 10])
    A(f"v_mul_f32 v8, {0xBACCCCCD:#x}, v8")
    A("v_mov_b32 v9, v8")
    A(f"v_mul_f32 v10, {LOG2E | 0x80000000:#x}, v10")
    A("v_exp_f32 v10, v10")
    for i in range(40):
        A(f"v_lshlrev_b32 v{D+2*i}, 16, v{X+i}")
        A(f"v_and_b32 v{D+2*i+1}, 0xffff0000, v{X+i}")
    A("v_add_f32 v10, 1.0, v10")
    A("v_rcp_f32 v10, v10")
    for i in range(40):
        A(f"v_pk_add_f32 {vr(D+2*i,2)}, {vr(D+2*i,2)}, v[8:9]")
    A("v_pk_mul_f32 v[18:19], v[128:129], v[128:129]")
    A("v_pk_mul_f32 v[20:21], v[130:131], v[130:131]")
    for i in range(2, 40):
        a = 18 + 2*(i & 1)
        A(f"v_pk_fma_f32 {vr(a,2)}, {vr(D+2*i,2)}, {vr(D+2*i,2)}, {vr(a,2)}")
    A("v_pk_add_f32 v[18:19], v[18:19], v[20:21]")
    A("ds_write_b32 v17, v10 offset:49152")
    A("v_add_f32 v18, v18, v19")
    red8([18])
    A(f"v_mov_b32 v19, {0x3727C5AC:#x}")
    A(f"v_fmac_f32 v19, {0x3ACCCCCD:#x}, v18")
    A("v_rsq_f32 v18, v19")
    A("s_nop 0")
    A("v_mov_b32 v19, v18")
    for i in range(40):
        A(f"v_pk_mul_f32 {vr(D+2*i,2)}, {vr(D+2*i,2)}, v[18:19]")
        A(f"v_cvt_pk_bf16_f32 v{X+i}, v{D+2*i}, v{D+2*i+1}")
        if (i & 3) == 3:
            A(f"ds_write_b128 v16, {vr(X+i-3,4)} offset:{128*(i//4)}")
    A("v_lshrrev_b32 v2, 2, v1")
    A("v_mul_u32_u24 v2, 1312, v2")
    A("v_and_b32 v3, 3, v1")
    A("v_lshl_add_u32 v2, v3, 3, v2")
    A(f"s_mul_i32 s85, s{sWAVE}, 320")
    A("v_add_u32 v2, s85, v2")
    A(f"s_mul_i32 s85, s{sA}, 40960")
    A(f"s_mul_i32 s86, s{sWAVE}, 10240")
    A("s_add_u32 s85, s85, s86")
    A("s_add_u32 s86, s85, 4096")
    A("s_add_u32 s87, s85, 8192")
    A("v_lshlrev_b32 v17, 2, v1")
    A(f"s_lshl_b32 s88, s{sA}, 7")
    A(f"s_add_u32 s88, s88, {WS_G:#x}")
    A("s_waitcnt lgkmcnt(0)")
    A("s_barrier")
    A(f"s_cmp_lg_u32 s{sWAVE}, 3")
    A("s_cbranch_scc1 ln_ng")
    A("ds_read_b32 v10, v17 offset:49152")
    A("s_waitcnt lgkmcnt(0)")
    A("s_mov_b32 exec_hi, 0")
    A(f"buffer_store_dword v10, v17, s[{sWS}:{sWS+3}], s88 offen sc1")
    A("s_mov_b32 exec_hi, -1")
    A.label("ln_ng")
    for t in range(10):
        A(f"ds_read_b64_tr_b16 {vr(D+4*t,2)}, v2 offset:{32*t}")
        A(f"ds_read_b64_tr_b16 {vr(D+4*t+2,2)}, v2 offset:{32*t + 16*1312}")
        if t == 6: A("s_waitcnt lgkmcnt(6)")
    for t in range(10):
        A(f"s_waitcnt lgkmcnt({min(2*(9-t), 6)})")
        A(f"buffer_store_dwordx4 {vr(D+4*t,4)}, v{vB0}, s[{sWS}:{sWS+3}], s{85 + t//4} offen offset:{1024*(t&3)} sc1")

def c_adv1(): return [f"s_add_u32 s{sC1}, s{sC1}, s{sCST}", f"s_cmp_eq_u32 s{sC1}, s{sCE1}", f"s_cselect_b32 s{sC1}, s{sCB1}, s{sC1}"]
def c_adv2(): return [f"s_add_u32 s{sC2}, s{sC2}, 40960", f"s_cmp_eq_u32 s{sC2}, s{sCE2}", f"s_cselect_b32 s{sC2}, s{sCB2}, s{sC2}"]
def c_wdma(slot):
    L = [[f"s_add_u32 m0, s{sCM0}, {4096*slot}"]]
    for q in range(4):
        L.append([f"buffer_load_dwordx4 v{vWS_+q}, s[{sCW}:{sCW+3}], s{sC1} offen offset:{1024*q} lds"])
    return L
def c_bload(slot, n):
    return f"buffer_load_dwordx4 {ar(BR+20*slot+4*n,4)}, v{vB0 if n < 4 else vB1}, s[{sWS}:{sWS+3}], s{sC2} offen offset:{1024*(n&3)} sc1"
def c_tr(slot, aset):
    return [f"ds_read_b64_tr_b16 {ar(AS+16*aset+4*t+2*j,2)}, v{vTR+t} offset:{4096*slot+2048*j}" for t in range(4) for j in range(2)]
def c_wring(A):
    for s in range(OPT["d"]):
        emit_dma_block(A, c_wdma(s))
        for x in c_adv1(): A(x)
def c_bring(A):
    for s in range(OPT["d"]):
        for n in range(5): A(c_bload(s, n))
        for x in c_adv2(): A(x)
def switch_to_fb(A):
    A(f"s_mov_b64 s[{sCW}:{sCW+1}], s[{sW2}:{sW2+1}]")
    A(f"s_mov_b64 s[{sCW+2}:{sCW+3}], s[{sW2+2}:{sW2+3}]")
    for i in range(4): A(f"v_mov_b32 v{vWS_+i}, v{vWS2+i}")
    A(f"s_mov_b32 s{sC1}, s{sF1}")
    A(f"s_mov_b32 s{sCB1}, s{sFB1}")
    A(f"s_mov_b32 s{sCE1}, s{sFE1}")
    A(f"s_mov_b32 s{sCST}, {32*4096}")

G1A = 112
def c_step(A, u, wait, doW, doB, doT, accf, w_is_A, drain=None, first=False, side=None, pre=[], late=None):
    DD = OPT["d"]
    A(f"s_waitcnt vmcnt({wait}) lgkmcnt(0)")
    for x in pre: A(x)
    tr = c_tr((u+1) & 3, (u+1) & 1) if doT else []
    mf = []
    for n in range(5):
        for t in range(4):
            w = ar(AS+16*(u & 1)+4*t, 4); b = ar(BR+20*u+4*n, 4); c = accf((t*5+n)*4)
            cin = "0" if first else c
            mf.append(f"v_mfma_f32_16x16x32_bf16 {c}, {w}, {b}, {cin}" if w_is_A else f"v_mfma_f32_16x16x32_bf16 {c}, {b}, {w}, {cin}")
    fill = [[] for _ in range(20)]
    sl = (u + DD) & 3
    wd = c_wdma(sl)
    post = []
    if doW:
        A(wd[0][0])
        for t in range(4): fill[t] += wd[1+t]
        fill[5 if drain else 12] += c_adv1()
    for k, x in enumerate(tr): fill[4+k].append(x)
    if doB:
        for n in range(5): fill[4*n+3].append(c_bload(sl, n))
        fill[19] += c_adv2()
    if side:
        per = -(-len(side) // 20)
        for g in range(20): fill[g] = side[g*per:(g+1)*per] + fill[g]
    if late:
        fill[13] += late[:9]
        post += late[9:]
    if drain:
        for n in range(3):
            for t in range(4): fill[4*(n+2)+t] += drain(n, t)
        post += ["s_nop 3"] + flat([drain(3, t) for t in range(4)]) + flat([drain(4, t) for t in range(4)])
    weave(A, mf, fill)
    for x in post: A(x)

def c_loop(A, pfx, nks, accf, w_is_A, isg1, drain):
    DD = OPT["d"]; W0 = 5 + 9*(DD-2)
    tail_next = isg1 and OPT["tailw"]
    A(".p2align 3")
    A.label(f"{pfx}_loop")
    if isg1 and OPT["lnmid"]:
        A(f"s_cmp_eq_u32 s{sCNT}, s{sPUB}")
        A("s_cbranch_scc1 g1_blk")
        A.label("g1_noblk")
    for u in range(4):
        c_step(A, u, W0, True, True, True, accf, w_is_A)
    if STAMPS:
        ng = nks//4 - 1
        i = _st["n"]; _st["n"] += ng; _st["names"] += [f"{pfx}_g{k}" for k in range(ng)]
        A("s_memtime s[100:101]")
        A("s_waitcnt lgkmcnt(0)")
        A(f"s_sub_u32 m0, {i + ng}, s{sCNT}")
        A("s_nop 0")
        A("v_writelane_b32 v47, s100, m0")
    A(f"s_sub_u32 s{sCNT}, s{sCNT}, 1")
    A(f"s_cmp_lg_u32 s{sCNT}, 0")
    A(f"s_cbranch_scc1 {pfx}_loop")
    seq = []
    for k in range(DD): seq += [("W", k)]*4 + [("B", k)]*5
    for u in range(4):
        need = max([i for i, (t, k) in enumerate(seq) if (t == "B" and k == u) or (t == "W" and k == u+1)])
        wait = len(seq) - 1 - need
        own = u < 4 - DD
        if isg1 and u == 4 - DD: switch_to_fb(A)
        nxt = tail_next and not own
        c_step(A, u, wait, own or nxt, own, u < 3, accf, w_is_A, drain if u == 3 else None)
        if own: seq += [("W", u+DD)]*4 + [("B", u+DD)]*5
        if OPT["otouch"] and not isg1 and u == 3 - DD:
            A(f"buffer_load_dword a255, v5, s[{sOUT}:{sOUT+3}], s95 offen" + (" nt" if OPT["otouch"] == 2 else ""))
            seq += [("O", 0)]
        elif nxt: seq += [("N", 0)]*4
    stamp(A, pfx + "_loopdone")

sFA1, sFA2, sFR = 54, 55, 94
sUS = 52
vGE = 224
def fa_params(A):
    A(f"s_and_b32 s{sFR}, s{sFD}, 3")
    A(f"s_lshl_b32 s{sFR}, s{sFR}, 1")
    A(f"s_and_b32 s89, s{sFS}, 7")
    A(f"s_add_u32 s{sFR}, s{sFR}, s89")
    A(f"s_mul_i32 s89, s{sFR}, 52")
    A("s_lshr_b32 s89, s89, 8")
    A("s_mul_i32 s89, s89, 5")
    A(f"s_sub_u32 s{sFR}, s{sFR}, s89")
    if OPT["arot"] == 0: A(f"s_mov_b32 s{sFR}, 0")
    if OPT["arot"] == 2:
        A(f"s_add_u32 s{sFR}, s{sFS}, s{sFD}")
        A(f"s_and_b32 s{sFR}, s{sFR}, 1")
        A(f"s_mul_i32 s{sFR}, s{sFR}, 3")
    A(f"s_mul_i32 s86, s{sWAVE}, 5")
    A(f"s_add_u32 s86, s86, s{sFR}")
    A(f"s_mul_i32 s{sFA1}, s{sFS}, {0 if OPT.get('same') else 20}")
    A(f"s_add_u32 s{sFA1}, s{sFA1}, s86")
    A(f"s_lshl_b32 s{sFA1}, s{sFA1}, 12")
    A(f"s_add_u32 s{sFA1}, s{sFA1}, {WS_PQ:#x}")
    A(f"s_mul_i32 s{sFA2}, s86, 40960")
    A(f"s_mul_i32 s89, s{sFD}, {0 if OPT.get('same') else 5120}")
    A(f"s_add_u32 s{sFA2}, s{sFA2}, s89")
    A(f"s_add_u32 s{sFA2}, s{sFA2}, {WS_M:#x}")
fa_b = lambda i: 0 if i == 0 else 112 + 36*(i-1)
def fa_ld(A, i):
    for st in range(4):
        A(f"buffer_load_dwordx4 {ar(fa_b(i)+4*st,4)}, v{vB0}, s[{sWS}:{sWS+3}], s{sFA1} offen offset:{1024*st} sc1")
    for n in range(5):
        A(f"buffer_load_dwordx4 {ar(fa_b(i)+16+4*n,4)}, v{vB0 if n < 4 else vB1}, s[{sWS}:{sWS+3}], s{sFA2} offen offset:{1024*(n&3)} sc1")
    if i < 4:
        A(f"s_add_u32 s{sFA1}, s{sFA1}, 4096")
        A(f"s_add_u32 s{sFA2}, s{sFA2}, 40960")
        A(f"s_add_u32 s{sFR}, s{sFR}, 1")
        A(f"s_cmp_eq_u32 s{sFR}, 5")
        A(f"s_cselect_b32 s86, {5*4096}, 0")
        A(f"s_cselect_b32 s89, {5*40960}, 0")
        A(f"s_sub_u32 s{sFA1}, s{sFA1}, s86")
        A(f"s_sub_u32 s{sFA2}, s{sFA2}, s89")

def g1_params(A):
    W, Rr = vGE, vGE + 4
    A("v_and_b32 v2, 15, v1")
    A("v_lshrrev_b32 v3, 4, v1")
    A("v_xor_b32 v4, v2, v3")
    A("v_lshlrev_b32 v4, 4, v4")
    A("v_lshl_add_u32 v4, v2, 8, v4")
    A(f"s_mul_i32 s85, s{sWAVE}, 20480")
    A(f"s_add_u32 s85, s85, {LDS_RED}")
    A(f"v_add_u32 v{W}, s85, v4")
    for t in range(1, 4): A(f"v_xor_b32 v{W+t}, {64*t}, v{W}")
    A(f"s_and_b32 s85, s{sWAVE}, 1")
    A(f"s_lshr_b32 s86, s{sWAVE}, 1")
    A("s_lshl_b32 s87, s85, 7")
    A("v_xor_b32 v4, s87, v4")
    A("s_lshl_b32 s87, s86, 12")
    A(f"s_add_u32 s87, s87, {LDS_RED}")
    A(f"v_add_u32 v{Rr}, s87, v4")
    A(f"v_xor_b32 v{Rr+1}, 64, v{Rr}")
    A(f"v_add_u32 v{Rr+2}, 40960, v{Rr}")
    A(f"v_add_u32 v{Rr+3}, 40960, v{Rr+1}")
    A(f"s_lshl_b32 s87, s{sG1F}, 1")
    A("s_add_u32 s87, s87, s85")
    A("s_lshl_b32 s23, s87, 6")
    A("v_lshlrev_b32 v12, 3, v3")
    A("s_mul_i32 s87, s87, 40")
    A(f"s_mul_i32 s88, s{sG1D}, 5")
    A("s_add_u32 s87, s87, s88")
    A("s_add_u32 s87, s87, s86")
    A("s_lshl_b32 s87, s87, 10")
    A(f"s_add_u32 s{sUS}, s87, {WS_U:#x}")
    A(f"s_add_u32 s{sUS+1}, s{sUS}, 4096")
    A(f"s_mov_b32 s90, {0xBDD2D3E8:#x}")
    A(f"s_mov_b32 s91, {0xBDD2D3E8:#x}")
    A(f"v_mov_b32 v{vGE+8}, {0xC0135761:#x}")
    A(f"v_mov_b32 v{vGE+9}, {0xC0135761:#x}")
    fa_params(A)
def b1_loads():
    return [[f"buffer_load_dwordx2 {vr(vGE+18+2*j,2)}, v12, s[{sB1}:{sB1+3}], s23 offen offset:{32*j}"] for j in range(2)]
def zero_acc(A):
    for i in range(0, 80, 2): A(f"v_mov_b64 {vr(ACC+i,2)}, 0")

def g1_phase(A):
    c_loop(A, "g1", 16, lambda o: ar(G1A+o, 4), True, True, lambda n, t: [f"ds_write_b128 v{vGE+t}, {ar(G1A+(t*5+n)*4,4)} offset:{4096*n}"])
    for j in range(2):
        for k in range(2):
            A(f"v_lshlrev_b32 v{vGE+10+4*j+2*k}, 16, v{vGE+18+2*j+k}")
            A(f"v_and_b32 v{vGE+11+4*j+2*k}, 0xffff0000, v{vGE+18+2*j+k}")
    A("s_waitcnt lgkmcnt(0)")
    A("s_barrier")
    stamp(A, "g1_red")
    if OPT["lnpost"] == 2:
        A("s_cmp_lt_u32 s82, 24")
        A("s_cbranch_scc1 g1_nw2")
        w2_prefetch(A, 24, list(range(3 - OPT["lnpn"], 3)))
        A.label("g1_nw2")
    A(poll_ld(15, 25))
    R = 128
    def rd(r):
        for j in range(2):
            for part in range(4):
                A(f"ds_read_b128 {vr(R+32*r+16*j+4*part,4)}, v{vGE+4+j+2*(part>>1)} offset:{8192*r + 20480*(part&1)}")
    def fin(r):
        b = R + 32*r
        for j in range(2):
            x = b + 16*j
            for i in (0, 2):
                A(f"v_pk_add_f32 {vr(x+i,2)}, {vr(x+i,2)}, {vr(x+4+i,2)}")
                A(f"v_pk_add_f32 {vr(x+8+i,2)}, {vr(x+8+i,2)}, {vr(x+12+i,2)}")
        for j in range(2):
            x = b + 16*j
            for i in (0, 2): A(f"v_pk_add_f32 {vr(x+i,2)}, {vr(x+i,2)}, {vr(vGE+10+4*j+i,2)}")
        for j in range(2):
            x = b + 16*j
            for i in (0, 2): A(f"v_pk_add_f32 {vr(x+i,2)}, {vr(x+i,2)}, {vr(x+8+i,2)}")
        E = [b + 16*j + i for j in range(2) for i in range(4)]
        E2 = E[::2]
        for x in E2: A(f"v_pk_mul_f32 {vr(x+4,2)}, {vr(x,2)}, {vr(x,2)}")
        for x in E2: A(f"v_pk_fma_f32 {vr(x+4,2)}, {vr(x+4,2)}, s[90:91], {vr(vGE+8,2)}")
        for x in E2: A(f"v_pk_mul_f32 {vr(x+4,2)}, {vr(x+4,2)}, {vr(x,2)}")
        for x in E: A(f"v_exp_f32 v{x+4}, v{x+4}")
        for x in E2: A(f"v_pk_add_f32 {vr(x+4,2)}, {vr(x+4,2)}, 1.0 op_sel_hi:[1,0]")
        for x in E: A(f"v_rcp_f32 v{x+4}, v{x+4}")
        for x in E2: A(f"v_pk_mul_f32 {vr(x,2)}, {vr(x,2)}, {vr(x+4,2)}")
        for j in range(2):
            x = b + 16*j
            A(f"v_cvt_pk_bf16_f32 v{b+8+2*j}, v{x}, v{x+1}")
            A(f"v_cvt_pk_bf16_f32 v{b+9+2*j}, v{x+2}, v{x+3}")
        A(f"buffer_store_dwordx4 {vr(b+8,4)}, v{vB0}, s[{sWS}:{sWS+3}], s{sUS if r < 2 else sUS+1} offen offset:{2048*(r&1)} sc1")
    rd(0)
    A("s_waitcnt lgkmcnt(4)")
    rd(1)
    A("s_waitcnt lgkmcnt(8)")
    fin(0)
    A(f"s_cmp_ge_u32 s{sWAVE}, 2")
    A("s_cbranch_scc1 g1_e1")
    rd(2)
    A("s_waitcnt lgkmcnt(8)")
    fin(1)
    A("s_waitcnt lgkmcnt(0)")
    fin(2)
    A("s_branch g1_e2")
    A.label("g1_e1")
    A("s_waitcnt lgkmcnt(0)")
    fin(1)
    A.label("g1_e2")
    stamp(A, "g1_st")
    A("s_waitcnt vmcnt(3)")
    A(f"s_cmp_lt_u32 s{sWAVE}, 2")
    A("s_cbranch_scc1 g1_q0")
    A("s_waitcnt vmcnt(2)")
    A.label("g1_q0")
    A(f"s_mov_b32 s{sQOK}, 0")
    A(f"v_cmp_ne_u32 vcc, s{sNON}, v{vPOLL}")
    A("s_cbranch_vccnz g1_q1")
    A(f"s_mov_b32 s{sQOK}, 1")
    fa_ld(A, 0)
    A("s_waitcnt vmcnt(9)")
    A("s_branch g1_q2")
    A.label("g1_q1")
    if OPT["tailw"]: A("s_waitcnt vmcnt(0)")
    else:
        c_wring(A)
        A(f"s_waitcnt vmcnt({4*OPT['d']})")
    A.label("g1_q2")
    A(f"s_mul_i32 s88, s{sG1D}, 24")
    A(f"s_add_u32 s88, s88, s{sG1F}")
    publish(A, "pub_u", FL_G1, 88, None)
    stamp(A, "g1_pub")
    if OPT["lnpost"] == 1:
        A("s_cmp_lt_u32 s82, 24")
        A("s_cbranch_scc1 g1_nw2")
        w2_prefetch(A, 24, list(range(3 - OPT["lnpn"], 3)))
        A.label("g1_nw2")
    if not OPT["tailw"]:
        A(f"s_cmp_eq_u32 s{sQOK}, 0")
        A("s_cbranch_scc1 g1_q3")
        c_wring(A)
        A("s_branch f_go")
        A.label("g1_q3")
    else:
        A(f"s_cmp_lg_u32 s{sQOK}, 0")
        A("s_cbranch_scc1 f_go")
    A(poll_ld(15, 25))
    A("s_waitcnt vmcnt(0)")
    poll_check(A, "pq", 15, 25)

def f_setup1():
    B = Asm()
    B("v_and_b32 v5, 15, v1")
    B("v_lshlrev_b32 v6, 2, v5")
    B(f"s_lshl_b32 s23, s{sFS}, 8")
    B(f"s_add_u32 s23, s23, {WS_G:#x}")
    for st in range(4):
        B(f"buffer_load_dword v{8+st}, v6, s[{sWS}:{sWS+3}], s23 offen offset:{64*st} sc1")
    B("v_lshlrev_b32 v6, 1, v5")
    B(f"s_lshl_b32 s23, s{sFS}, 7")
    B(f"s_cmp_eq_u32 s{sWAVE}, 0")
    B("s_cselect_b32 s23, s23, 0x40000000")
    for st in range(4):
        B(f"buffer_load_ushort v{29+st}, v6, s[{sB2}:{sB2+3}], s23 offen offset:{32*st}")
    return B.lines
def f_setup2():
    B = Asm()
    for st in range(4):
        B(f"v_sub_f32 v{8+st}, 1.0, v{8+st}")
        B(f"v_lshlrev_b32 v{ACC+st*20}, 16, v{29+st}")
        B(f"v_lshlrev_b32 v{ACC+st*20+1}, 16, v{29+st}")
        for k in range(2, 20, 2): B(f"v_mov_b64 {vr(ACC+st*20+k,2)}, {vr(ACC+st*20,2)}")
    B("v_min_u32 v12, 23, v1")
    B("v_lshlrev_b32 v12, 7, v12")
    B(f"s_mul_i32 s23, s{sFD}, {24*128}")
    B(f"s_add_u32 s23, s23, {FL_G1:#x}")
    B("v_and_b32 v5, 15, v1")
    B("v_lshrrev_b32 v6, 4, v1")
    B("v_mul_u32_u24 v4, 336, v5")
    B("v_lshl_add_u32 v4, v6, 4, v4")
    B(f"s_mul_i32 s85, s{sWAVE}, 21504")
    B(f"s_add_u32 s85, s85, {LDS_RED}")
    B("v_add_u32 v4, s85, v4")
    B(f"s_mul_i32 s85, s{sWAVE}, {16*336}")
    B(f"s_add_u32 s85, s85, {LDS_RED}")
    B(f"s_lshl_b32 s95, s{sFS}, 2")
    B(f"s_add_u32 s95, s95, s{sWAVE}")
    B(f"s_mul_i32 s95, s95, {16*1280}")
    B(f"s_mul_i32 s87, s{sFD}, 160")
    B("s_add_u32 s95, s95, s87")
    for r in range(5):
        B(f"v_add_u32 v5, {64*r}, v1")
        B("v_mul_u32_u24 v6, 3277, v5")
        B("v_lshrrev_b32 v6, 16, v6")
        B("v_mul_u32_u24 v7, 20, v6")
        B("v_sub_u32 v7, v5, v7")
        B(f"v_mul_u32_u24 v{16+r}, 336, v6")
        B(f"v_lshl_add_u32 v{16+r}, v7, 4, v{16+r}")
        B(f"v_add_u32 v{16+r}, s85, v{16+r}")
        B(f"v_mul_u32_u24 v{24+r}, 1280, v6")
        B(f"v_lshl_add_u32 v{24+r}, v7, 3, v{24+r}")
    if OPT["otouch"]:
        B("v_lshrrev_b32 v5, 1, v1")
        B("v_and_b32 v5, 15, v5")
        B("v_mul_u32_u24 v5, 1280, v5")
        B("v_and_b32 v6, 1, v1")
        B("v_mul_u32_u24 v6, 156, v6")
        B("v_add_u32 v5, v5, v6")
    return B.lines

def f_phase(A):
    ACA = 128
    A.label("f_entry")
    fa_ld(A, 0)
    A.label("f_go")
    fa_ld(A, 1)
    stamp(A, "f_qok")
    A(f"s_or_b32 s85, s2, s{sWAVE}")
    A("s_cmp_lg_u32 s85, 0")
    A("s_cbranch_scc1 f_nox")
    A(f"s_mov_b32 s85, {FL_X:#x}")
    flag_store(A, 85)
    A.label("f_nox")
    fb = fa_b
    def fam(i, side=[]):
        mf = []
        for n in range(5):
            for st in range(4):
                c = vr(ACA+(st*5+n)*4, 4)
                mf.append(f"v_mfma_f32_16x16x32_bf16 {c}, {ar(fb(i)+16+4*n,4)}, {ar(fb(i)+4*st,4)}, {c if i else 0}")
        fill = [[] for _ in range(20)]
        for k, g in enumerate(side): fill[(k*20)//len(side)] += g
        weave(A, mf, fill)
    def ldg(i):
        B = Asm(); fa_ld(B, i); g = [[x] for x in B.lines[:9]]; g[-1] += B.lines[9:]; return g
    D = OPT["d"]
    fa_ld(A, 2)
    A(f"s_mov_b32 s{sC2}, s{sF2}")
    A(f"s_mov_b32 s{sCB2}, s{sFB2}")
    A(f"s_mov_b32 s{sCE2}, s{sFE2}")
    stamp(A, "fa_i2")
    A("s_waitcnt vmcnt(18)")
    fam(0, ldg(3))
    stamp(A, "fa_m0")
    A("s_waitcnt vmcnt(18)")
    fam(1, [[poll_ld(12, 23)]] + ldg(4))
    stamp(A, "fa_m1")
    A("s_waitcnt vmcnt(19)")
    fam(2)
    stamp(A, "fa_m2")
    A("s_waitcnt vmcnt(9)")
    stamp(A, "fa_s3")
    poll_check(A, "pu", 12, 23)
    stamp(A, "f_uok")
    br = []
    for sl in range(D):
        br += [[c_bload(sl, n)] for n in range(5)]; br[-1] += c_adv2()
    fam(3, br)
    A(f"s_waitcnt vmcnt({5*D})")
    fam(4, [[]]*3 + [[x] for x in c_tr(0, 0)] + [[]]*5)
    A(f"s_waitcnt vmcnt({5 if D == 2 else 10})")
    stamp(A, "fb_first")
    def drain(n, st):
        b = (st*5+n)*4
        return [f"v_fma_f32 v{ACA+b+i}, v{ACC+b+i}, v{8+st}, v{ACA+b+i}" for i in range(4)] + [f"ds_write_b128 v4, {vr(ACA+b,4)} offset:{st*16*336 + 64*n}"]
    A(f"s_mov_b32 s{sCNT}, 2")
    c_loop(A, "fb", 12, lambda o: vr(ACC+o, 4), False, False, drain)
    A("s_waitcnt lgkmcnt(0)")
    A("s_barrier")
    stamp(A, "f_red")
    R = ACC
    def rd(r):
        for part in range(4):
            A(f"ds_read_b128 {vr(R+16*r+4*part,4)}, v{16+r} offset:{21504*part}")
    rd(0); rd(1); rd(2)
    for r in range(5):
        A(f"s_waitcnt lgkmcnt({8 if r < 3 else 4*(4-r)})")
        b = R + 16*r
        for i in (0, 2):
            A(f"v_pk_add_f32 {vr(b+i,2)}, {vr(b+i,2)}, {vr(b+4+i,2)}")
            A(f"v_pk_add_f32 {vr(b+8+i,2)}, {vr(b+8+i,2)}, {vr(b+12+i,2)}")
        if r + 3 < 5: rd(r+3)
        for i in (0, 2): A(f"v_pk_add_f32 {vr(b+i,2)}, {vr(b+i,2)}, {vr(b+8+i,2)}")
        A(f"v_cvt_pk_bf16_f32 v{b}, v{b}, v{b+1}")
        A(f"v_cvt_pk_bf16_f32 v{b+1}, v{b+2}, v{b+3}")
        A(f"buffer_store_dwordx2 {vr(b,2)}, v{24+r}, s[{sOUT}:{sOUT+3}], s95 offen" + ["", " nt", " sc1", " sc0 sc1", " sc1 nt", " sc0 nt", " sc0 sc1 nt"][OPT["ost"]])

def kd(name):
    return f""".section .rodata,"a"
.p2align 6
.amdhsa_kernel {name}
  .amdhsa_next_free_vgpr 512
  .amdhsa_next_free_sgpr 102
  .amdhsa_accum_offset 256
  .amdhsa_group_segment_fixed_size 0
  .amdhsa_kernarg_size 96
  .amdhsa_user_sgpr_count 2
  .amdhsa_user_sgpr_kernarg_segment_ptr 1
  .amdhsa_system_sgpr_workgroup_id_x 1
.end_amdhsa_kernel
"""

def gen():
    hdr = open("cdna_kernels/" + NAME + ".s.ref").read().split("; Override")[0]
    hdr += f"; @launch grid=(256,1,1) block=(256,1,1) lds={LDS_BYTES}\n"
    hdr += '.amdgcn_target "amdgcn-amd-amdhsa--gfx950"\n'
    A = Asm()
    K = NAME + "_kernel"
    A(".text"); A(f".globl {K}"); A(".p2align 8"); A(f".type {K},@function"); A.label(K)
    prologue(A)
    A("s_cmp_ge_u32 s82, 16"); A("s_cbranch_scc1 r_notkv")
    A("s_and_b32 s85, s82, 3")
    A("s_lshl_b32 s86, s83, 2")
    A(f"s_add_u32 s{sA}, s85, s86")
    A("s_lshr_b32 s85, s82, 2")
    A("s_lshl_b32 s86, s84, 2")
    A(f"s_add_u32 s{sBp}, s85, s86")
    qkv_setup(A, False)
    A("s_waitcnt lgkmcnt(0)"); srds(A, ["X", "W"])
    stamp(A, "kv_pre")
    def mid(A):
        params1(A); srds(A, ["WS", "W1", "B1", "W2", "B2", "OUT"]); cw_init(A)
        if not OPT["defer"]:
            params2(A); g1_params(A); mid3(A)
    def mid3(A):
        kv_esetup(A)
        A("s_lshl_b32 s85, s81, 4")
        A("s_add_u32 s85, s85, s82")
        A("s_lshl_b32 s85, s85, 2")
        A(f"s_add_u32 s85, s85, s{sWAVE}")
        A("s_lshl_b32 s27, s85, 13")
        A(f"s_lshl_b32 s{sPUB}, s{sA}, 3")
        A(f"s_add_u32 s{sPUB}, s{sPUB}, s{sBp}")
        A(f"s_lshl_b32 s{sPUB}, s{sPUB}, 7")
        A(f"s_add_u32 s{sPUB}, s{sPUB}, {FL_KV:#x}")
    D = OPT["d"]; EW = 5 if D == 2 else 10
    assert D == 3
    def wst(k):
        g = c_wdma(k); g[-1] = g[-1] + c_adv1(); return g
    def bst(k):
        g = [[c_bload(k, n)] for n in range(5)]; g[-1] = g[-1] + c_adv2(); return g
    E = kv_estream()
    g1acc = lambda o: ar(G1A+o, 4)
    def pubkv(A, wait):
        A(f"s_waitcnt vmcnt({wait})")
        A("s_barrier")
        A(f"s_cmp_lg_u32 s{sWAVE}, 0")
        A("s_cbranch_scc1 g1_pub1")
        flag_store(A, sPUB)
        A.label("g1_pub1")
        stamp(A, "kv_pub")
    nin = OPT["nbin"]
    ex = {8: ([[poll_ld(vPO, 24)]] + b1_loads() + wst(0) + wst(1), 9), 9: (wst(2), 8)}
    d0 = OPT["defer"]
    out_kv = qkv_gemm(A, "kv", False, mid, ex, {9: lambda A: poll_check(A, "pln", vPO, 24)},
                      [(d0, params2), (d0+1, g1_params), (d0+2, mid3)] if d0 else [])
    if OPT["kvw2"]:
        A(f"buffer_load_dword a255, v15, s[{sW2}:{sW2+3}], s27 offen")
    for m in qkv_mfmas(FB_, False): A(m)
    stamp(A, "kv_loopdone")
    Bs = bst(0) + bst(1) + bst(2)
    body = E[0] + E[1]
    sp = min(26, (len(body) - 30 - OPT["b0"]) // max(nin, 1))
    pos = [len(body) - 30 - sp*(nin - 1 - k) for k in range(nin)]
    assert not pos or pos[0] >= 0
    for i, x in enumerate(body):
        if i in pos:
            for y in Bs[pos.index(i)]: A(y)
        A(x)
    A("s_waitcnt lgkmcnt(0)")
    A("s_barrier")
    for x in E[2] + E[3]: A(x)
    stamp(A, "kv_st")
    for g in Bs[nin:]:
        for y in g: A(y)
    seq = ["W"]*12 + [f"B{k//5}" for k in range(nin)] + ["S"]*4 + [f"B{k//5}" for k in range(nin, 15)]
    def need(tags): return len(seq) - 1 - max(i for i, t in enumerate(seq) if t in tags)
    A(f"s_waitcnt vmcnt({need(['W'])})")
    for x in c_tr(0, 0): A(x)
    if OPT["pubat"] == 0: pubkv(A, need(["S"]))
    for u in range(4):
        c_step(A, u, min(need([f"B{u}", f"W{u+1}", "W"]), 63), True, True, True, g1acc, True, first=(u == 0),
               pre=f_setup1() if u == 1 else [], side=f_setup2() if u == 3 else None)
        if u == 1: seq += ["G"]*8
        seq += [f"W{u+3}"]*4 + [f"B{u+3}"]*5
        stamp(A, f"g1_s{u}")
        if OPT["pubat"] == u + 1: pubkv(A, need(["S"]))
    A(f"s_mov_b32 s{sCNT}, 2")
    g1_phase(A)
    f_phase(A)
    stamp_flush(A)
    A.label("k_end"); A("s_endpgm")
    out_kv(A)
    if OPT["lnmid"]:
        A.label("g1_blk")
        w2_prefetch(A, 24, list(range(3 - OPT["lnpn"], 3)))
        A("s_branch g1_noblk")
    A.label("r_notkv")
    if OPT["pf_code"]:
        A("s_getpc_b64 s[86:87]")
        A.label("pc_here")
        A(f"s_sub_u32 s86, s86, pc_here-{K}")
        A("s_subb_u32 s87, s87, 0")
        A("s_sub_u32 s85, s82, 16")
        A("s_lshl_b32 s85, s85, 2")
        A(f"s_add_u32 s85, s85, s{sWAVE}")
        A("s_lshl_b32 s85, s85, 3")
        A("v_add_lshl_u32 v2, v1, s85, 7")
        A(f"v_min_u32 v2, k_codeend-{K}-4, v2")
        A("s_mov_b64 exec, 0xff")
        A("global_load_dword a255, v2, s[86:87]")
        A("s_mov_b64 exec, -1")
    A("s_cmp_lt_u32 s82, 24"); A("s_cbranch_scc1 r_q")
    A("s_sub_u32 s87, s82, 24")
    A("s_lshl_b32 s85, s81, 3")
    A(f"s_add_u32 s{sA}, s85, s87")
    aux = " nt" if OPT.get("nt") else ""
    w1l = lambda k: f"buffer_load_dword a255, v22, s[{sW1}:{sW1+3}], s{26 + k//3} offen offset:{1024*(k%3)}{aux}"
    def after(A):
        params1(A); srds(A, ["WS", "W1", "B1", "W2", "B2", "OUT"]); cw_init(A); params2(A); g1_params(A)
        w1_setup(A, 24, 22)
        for k in range(OPT["early"] if OPT["pf_w1"] else 0): A(w1l(k))
    ln_role(A, after, OPT["early"] if OPT["pf_w1"] else 0)
    publish(A, "pub_ln", FL_LN, sA)
    stamp(A, "ln_pub")
    for k in range(OPT["early"], (3 - OPT["qw1n"]) if (OPT["pf_w1"] and not OPT["qfirst"]) else 0): A(w1l(k))
    def pf_h():
        A(poll_ld(vPO, 24))
        A("v_lshrrev_b32 v2, 5, v1")
        A("v_mul_u32_u24 v2, 40960, v2")
        A("v_and_b32 v3, 31, v1")
        A("v_lshl_add_u32 v2, v3, 7, v2")
        A("s_sub_u32 s85, s82, 24")
        A("s_lshl_b32 s85, s85, 2")
        A(f"s_add_u32 s85, s85, s{sWAVE}")
        A(f"s_mul_i32 s87, s85, {2*40960}")
        A("s_mul_i32 s86, s84, 20480")
        A("s_add_u32 s87, s87, s86")
        A("s_waitcnt vmcnt(0)")
        poll_check(A, "plnh", vPO, 24)
        A("s_barrier")
        for i in range(5):
            A(f"buffer_load_dword a255, v2, s[{sWS}:{sWS+3}], s87 offen sc1")
            A("s_add_u32 s87, s87, 4096")
    for c in str(OPT["lnseq"]):
        if c == "1" and OPT["pf_w1"]:
            for k in range(3, 6): A(w1l(k))
        if c == "6":
            for k in range(3): A(w1l(k))
        if c == "2": pf_h()
        if c == "3": w2_prefetch(A, 24, [0])
        if c == "7": w2_prefetch(A, 24, [2])
        if c == "4": w2_prefetch(A, 24, [0, 1])
        if c == "5": w2_prefetch(A, 24, [0, 1, 2])
    stamp(A, "ln_pf")
    for g in b1_loads(): A(g[0])
    A(poll_ld(vPO, 24))
    c_wring(A)
    A(f"s_waitcnt vmcnt({4*OPT['d']})")
    poll_check(A, "pln2", vPO, 24)
    A("s_barrier")
    for x in f_setup1(): A(x)
    c_bring(A)
    for i in range(80): A(f"v_accvgpr_write_b32 a{G1A+i}, 0")
    A(f"s_waitcnt vmcnt({5*D})")
    for x in f_setup2(): A(x)
    A(f"s_mov_b32 s{sCNT}, 3")
    A(f"s_mov_b32 s{sPUB}, {OPT['lnmid']}")
    A(f"s_waitcnt vmcnt({EW})")
    for x in c_tr(0, 0): A(x)
    stamp(A, "ln_ready")
    A("s_branch g1_loop")
    A.label("r_q")
    A("s_sub_u32 s87, s82, 16")
    A("s_and_b32 s85, s87, 3")
    A("s_lshl_b32 s86, s83, 2")
    A(f"s_add_u32 s{sA}, s85, s86")
    A("s_lshr_b32 s85, s87, 2")
    A("s_lshl_b32 s86, s84, 1")
    A(f"s_add_u32 s{sBp}, s85, s86")
    A(f"s_lshl_b32 s{sU}, s{sBp}, 2")
    A(f"s_and_b32 s85, s{sA}, 3")
    A(f"s_add_u32 s{sU}, s{sU}, s85")
    A(f"s_lshr_b32 s{sNR}, s{sA}, 2")
    def midq(A):
        params1(A); srds(A, ["WS", "W1", "WO", "W2", "B2", "OUT"]); cw_init(A); params2(A)
        w1_setup(A, 16, 12)
        if OPT["qw1"] == 0: q_pf_only(A)
        if not OPT["qdefer"]: q_setup(A)
    def qs(lo, hi):
        def f(A):
            B = Asm(); q_setup(B)
            assert len(B.lines) > 150
            for x in B.lines[lo:hi]: A(x)
        return f
    def qtouch(A):
        A("s_mov_b32 exec_lo, 0xffff03ff")
        A("s_mov_b32 exec_hi, 0")
        A(f"buffer_load_dword a255, v{vT1}, s[{sWS}:{sWS+3}], 0 offen sc1")
        A("s_mov_b64 exec, -1")
    qkv_setup(A, True)
    A("s_waitcnt lgkmcnt(0)"); srds(A, ["X", "W"])
    qb = [(max(OPT["qw1"], 1), q_loop_pf)]
    if OPT["qdefer"]:
        def both(A): q_loop_pf(A); q_setup(A); qtouch(A)
        qb = [(OPT["qw1"], both)]
    out_q = qkv_gemm(A, "q", True, midq, q_extras(), {9: lambda A: poll_check(A, "pln3", vPO, 24)}, qb)
    q_epilogue(A)
    A("s_lshl_b32 s88, s81, 3")
    A("s_add_u32 s88, s88, s82")
    A("s_sub_u32 s88, s88, 16")
    publish(A, "pub_q", FL_Q, 88)
    stamp(A, "q_pub")
    if OPT["qw2b"]: w2_prefetch(A, 16, list(range(3 - OPT["qw2b"], 3)))
    for x in f_setup1(): A(x)
    switch_to_fb(A)
    c_wring(A)
    A(poll_ld(vPO, 25))
    A(f"s_waitcnt vmcnt({4*D + 1})")
    for x in f_setup2(): A(x)
    A("s_waitcnt vmcnt(0)")
    poll_check(A, "pq2", vPO, 25)
    A("s_barrier")
    stamp(A, "q_allq")
    if OPT["pf_pq"]:
        A("s_sub_u32 s88, s82, 16")
        A("s_lshl_b32 s88, s88, 2")
        A(f"s_add_u32 s88, s88, s{sWAVE}")
        A("v_lshlrev_b32 v2, 7, v1")
        A(f"s_mul_i32 s85, s83, {8*81920}")
        A(f"s_mul_i32 s86, s88, {160*128}")
        A("s_add_u32 s85, s85, s86")
        A(f"s_add_u32 s85, s85, {WS_PQ:#x}")
        for i in range(3):
            if i == 2: A("s_mov_b32 exec_hi, 0")
            A(f"buffer_load_dword a255, v2, s[{sWS}:{sWS+3}], s85 offen sc1")
            A("s_add_u32 s85, s85, 8192")
        A("s_mov_b32 exec_hi, -1")
        A("s_cmp_ge_u32 s88, 20")
        A("s_cbranch_scc1 q_pfd")
        A("s_mul_i32 s85, s88, 40960")
        A("s_mul_i32 s86, s84, 20480")
        A("s_add_u32 s85, s85, s86")
        A(f"s_add_u32 s85, s85, {WS_M:#x}")
        for i in range(3):
            if i == 2: A("s_mov_b32 exec_hi, 0")
            A(f"buffer_load_dword a255, v2, s[{sWS}:{sWS+3}], s85 offen sc1")
            A("s_add_u32 s85, s85, 8192")
        A("s_mov_b32 exec_hi, -1")
        A.label("q_pfd")
    fa_params(A)
    A("s_branch f_entry")
    out_q(A)
    A.label("k_codeend")
    for i, l in enumerate(A.lines):
        if l.startswith("v_mad_i32_i24 v4, v3, -20"):
            A.lines[i] = l.replace("-20", "s89")
        if l == "s_movk_i32 s88, 3840":
            A.lines[i] = "s_movk_i32 s89, -20"
    if OPT["align"]:
        A.lines, nc, nn = align(A.lines, OPT["align"])
        print("aligned: widened", nc, "nops", nn, file=sys.stderr)
    nb = check(A.lines)
    print("hazards:", nb, file=sys.stderr)
    return hdr + A.text() + kd(K)

if __name__ == "__main__":
    out = sys.argv[1]
    for a in sys.argv[2:]:
        if a == "st": STAMPS = True
        else:
            k, v = a.split("="); OPT[k] = int(v)
    open(out, "w").write(gen())
    if STAMPS: json.dump(_st["names"], open(out + ".names", "w"))
```

```python
import sys, json
from asmlib import Asm, vr, ar, sr, check, align

NAME = "gated_mix__linear_attn_block__mixer_token_mlp__prompt"
WS_H   = 0x000000
WS_U   = 0x280000
WS_PQ  = 0x460000
WS_M   = 0x6E0000
WS_KVP = 0x7A8000
WS_ZP  = 0x880000
WS_G   = 0x972000
WS_FLAG = 0x974000
FL_X = WS_FLAG
FL_LN = WS_FLAG + 128
FL_KV = FL_LN + 64*128
FL_Q = FL_KV + 128*128
FL_G1 = FL_Q + 64*128
WS_SIZE = FL_G1 + 192*128
WS_STAMP = 0x1000000

sX, sW, sWS, sW1, sW2, sOUT, sWO, sB1, sB2, sGW = 28, 32, 36, 40, 44, 48, 52, 56, 60, 64
sWAVE = 68
sA, sBp = 69, 70
sG1D, sG1F, sFS, sFD = 71, 72, 73, 74
sCNT, sO1, sO2, sRD, sWR, sM0 = 75, 76, 77, 78, 79, 80
sEX, sMK = 90, 92
sU, sNR = 94, 95
sWR_, sWC_ = 96, 97
sPUB = 3
sQOK = 99
sM1 = 98
sC1, sC2, sCM0, sCB1, sCE1, sCB2, sCE2, sCST, sCW, sNON = 4, 5, 6, 7, 8, 9, 10, 11, 12, 16
sF1, sFB1, sFE1, sF2, sFB2, sFE2 = 17, 18, 19, 20, 21, 22
LOG2E = 0x3FB8AA3B
EPS6 = 0x358637BD
LDS_RED = 65536
LDS_BYTES = 163840
vXO, vWO_, vXB, vCUR = 16, 20, 25, 29
vWS_, vB0, vB1, vTR, vWS2 = 33, 37, 38, 39, 43
ACC = 48
FA_, FB_ = 112, 148
BR, AS = 0, 80
STG = 36864
vPOLL, vPO = 14, 13
OPT = {"rot": 1, "pf_w1": 1, "pf_w2": 1, "pf_code": 1, "pf_pq": 0, "sleep": 1, "early": 1, "d": 3, "qpoll": 2, "nbin": 10, "cv": 0, "lnseq": 15, "qw2": 0, "qw2b": 0, "ntq": 0, "qw1": 1, "qw1n": 2, "kvr": 1, "touch": 1, "perm": 0, "otouch": 0, "rdb": 4, "w2c": 1, "qfirst": 0, "rfd": 3, "tailw": 1, "pubat": 1, "kvw2": 0, "b0": 0, "qw1b": 0, "rfb": 4, "frot": 2, "arot": 2, "fmap": 1, "qrot": 1, "grot": 4, "lnpost": 0, "lnpn": 3, "align": 5, "defer": 0, "qdefer": 0, "lnmid": 0, "ost": 1, "tlb": 0}
STAMPS = False
_st = {"n": 0, "names": []}

def stamp(A, name, real=False):
    if not STAMPS: return
    i = _st["n"]; _st["n"] += 1; _st["names"].append(name)
    A("s_memrealtime s[100:101]" if real else "s_memtime s[100:101]")
    A("s_waitcnt lgkmcnt(0)")
    A(f"v_writelane_b32 v47, s100, {i}")
def stamp_flush(A):
    if not STAMPS: return
    stamp(A, "end"); stamp(A, "endreal", True)
    A("s_lshl_b32 s100, s2, 2")
    A(f"s_add_u32 s100, s100, s{sWAVE}")
    A("s_lshl_b32 s100, s100, 8")
    A(f"s_add_u32 s100, s100, {WS_STAMP:#x}")
    A(f"s_mov_b32 s{sWS+2}, 0x2000000")
    A("v_lshlrev_b32 v46, 2, v1")
    A(f"buffer_store_dword v47, v46, s[{sWS}:{sWS+3}], s100 offen")

def srds(A, which):
    tab = {"X": (sX, 4, 2048*1280), "W": (sW, 6, 640*3840), "WO": (sWO, 8, 640*1280), "W1": (sW1, 12, 2048*3072), "B1": (sB1, 14, 3072),
           "W2": (sW2, 16, 1536*4096), "B2": (sB2, 18, 4096), "GW": (sGW, 20, 1280), "OUT": (sOUT, 22, 2048*1280), "WS": (sWS, 26, WS_SIZE)}
    for w in which:
        base, ptr, size = tab[w]
        A(f"s_mov_b64 s[{base}:{base+1}], s[{ptr}:{ptr+1}]")
        A(f"s_mov_b32 s{base+2}, {size:#x}")
        A(f"s_mov_b32 s{base+3}, 0x20000")

def flat(groups):
    out = []
    for g in groups: out += g if isinstance(g, list) else [g]
    return out

def weave(A, mf, fill, first=0):
    for i, m in enumerate(mf):
        A(m)
        if i < len(fill):
            for x in fill[i]: A(x)
    for g in fill[len(mf):]:
        for x in g: A(x)

def poll_off(A, dst, nper, total_waves_split=True):
    A(f"v_and_b32 v{dst}, {nper-1}, v1")
    A(f"s_mul_i32 s85, s{sWAVE}, {nper}")
    A(f"v_add_lshl_u32 v{dst}, v{dst}, s85, 7")
def poll_ld(vo, so):
    return f"buffer_load_dword v{vPOLL}, v{vo}, s[{sWS}:{sWS+3}], s{so} offen sc1"
def poll_check(A, name, vo, so):
    A(f"v_cmp_ne_u32 vcc, s{sNON}, v{vPOLL}")
    A(f"s_cbranch_vccz {name}_ok")
    A(f"s_mov_b32 s{sM1}, 0")
    A.label(f"{name}_spin")
    A(f"s_add_u32 s{sM1}, s{sM1}, 1")
    A(f"s_cmp_gt_u32 s{sM1}, 0x8000")
    A(f"s_cbranch_scc1 {name}_ok")
    A(f"s_sleep {OPT['sleep']}")
    A(poll_ld(vo, so))
    A("s_waitcnt vmcnt(0)")
    A(f"v_cmp_ne_u32 vcc, s{sNON}, v{vPOLL}")
    A(f"s_cbranch_vccnz {name}_spin")
    A.label(f"{name}_ok")
def flag_store(A, so):
    A(f"v_mov_b32 v2, s{sNON}")
    A("v_lshlrev_b32 v3, 2, v1")
    A("s_mov_b32 exec_hi, 0")
    A(f"buffer_store_dword v2, v3, s[{sWS}:{sWS+3}], s{so} offen sc1")
    A("s_mov_b32 exec_hi, -1")
def publish(A, name, base, sidx, wait=0):
    if wait is not None: A(f"s_waitcnt vmcnt({wait})")
    A("s_barrier")
    A(f"s_cmp_lg_u32 s{sWAVE}, 0")
    A(f"s_cbranch_scc1 {name}_np")
    A(f"s_lshl_b32 s85, s{sidx}, 7")
    A(f"s_add_u32 s85, s85, {base:#x}")
    flag_store(A, 85)
    A.label(f"{name}_np")

def prologue(A):
    A("s_cmp_ge_u32 s2, 256")
    A("s_cbranch_scc1 k_end")
    if STAMPS: A("v_mov_b32 v47, 0")
    stamp(A, "startreal", True); stamp(A, "start")
    A("s_load_dwordx16 s[4:19], s[0:1], 0")
    A("s_load_dwordx8 s[20:27], s[0:1], 64")
    A("v_lshrrev_b32 v2, 6, v0")
    A("v_and_b32 v1, 63, v0")
    A(f"v_readfirstlane_b32 s{sWAVE}, v2")
    A("s_and_b32 s81, s2, 7")
    A("s_lshr_b32 s82, s2, 3")
    A("s_lshr_b32 s83, s81, 1")
    A("s_and_b32 s84, s81, 1")

def params1(A):
    A(f"s_add_u32 s86, s26, {FL_X:#x}")
    A("s_addc_u32 s87, s27, 0")
    A("s_load_dword s3, s[86:87], 0")
    A("s_lshr_b32 s85, s82, 2")
    A("s_lshl_b32 s88, s83, 3")
    if OPT["perm"]: A("s_xor_b32 s85, s85, 7")
    A(f"s_add_u32 s{sFS}, s85, s88")
    A("s_and_b32 s85, s82, 3")
    A("s_lshl_b32 s88, s84, 2")
    A(f"s_add_u32 s{sFD}, s85, s88")
    if OPT["fmap"]:
        A("s_lshr_b32 s85, s82, 3")
        if OPT["fmap"] == 1:
            A("s_lshl_b32 s85, s85, 3")
            A(f"s_add_u32 s{sFS}, s85, s81")
        else:
            A(f"s_lshl_b32 s{sFS}, s81, 2")
            A(f"s_add_u32 s{sFS}, s{sFS}, s85")
        A(f"s_and_b32 s{sFD}, s82, 7")
    A("s_sub_u32 s85, s82, 8")
    A("s_cmp_lt_u32 s82, 16")
    A("s_cselect_b32 s85, s82, s85")
    A("s_and_b32 s89, s85, 3")
    A(f"s_add_u32 s{sG1D}, s89, s88")
    A("s_lshr_b32 s85, s85, 2")
    A("s_lshl_b32 s88, s85, 2")
    A(f"s_add_u32 s{sG1F}, s83, s88")
    A("s_lshr_b32 s88, s85, 2")
    A("s_lshl_b32 s85, s85, 1")
    A("s_add_u32 s85, s85, s88")
    A("s_lshl_b32 s85, s85, 1")
    if OPT["rfb"] == 0: A("s_mov_b32 s85, 0")
    A(f"s_mul_i32 s89, s89, {OPT['rdb']}")
    A("s_add_u32 s85, s85, s89")
    if OPT["grot"] == 2: A("s_lshl_b32 s85, s85, 1")
    A(f"s_and_b32 s99, s85, {(15 if OPT['grot'] == 4 else 8) if OPT['grot'] else 0}")

def cw_init(A):
    A(f"s_mov_b64 s[{sCW}:{sCW+1}], s[{sW1}:{sW1+1}]")
    A(f"s_mov_b64 s[{sCW+2}:{sCW+3}], s[{sW1+2}:{sW1+3}]")
def params2(A):
    if OPT.get("same"):
        for k, r in enumerate((sG1D, sG1F, sFS, sFD)):
            A(f"s_mov_b32 s{100 if not STAMPS else 64+k}, s{r}")
            A(f"s_mov_b32 s{r}, 0")
        params2_(A)
        for k, r in enumerate((sG1D, sG1F, sFS, sFD)): A(f"s_mov_b32 s{r}, s{64+k}")
    else: params2_(A)
def params2_(A):
    A(f"s_mul_i32 s{sCB1}, s{sWAVE}, {16*32*3072}")
    A(f"s_lshl_b32 s85, s{sG1F}, 7")
    A(f"s_add_u32 s{sCB1}, s{sCB1}, s85")
    A(f"s_add_u32 s{sCE1}, s{sCB1}, {16*32*3072}")
    A(f"s_mul_i32 s85, s99, {32*3072}")
    A(f"s_add_u32 s{sC1}, s{sCB1}, s85")
    A(f"s_mul_i32 s{sCB2}, s{sWAVE}, {16*40960}")
    A(f"s_mul_i32 s85, s{sG1D}, 5120")
    A(f"s_add_u32 s{sCB2}, s{sCB2}, s85")
    A(f"s_add_u32 s{sCE2}, s{sCB2}, {16*40960}")
    A(f"s_mul_i32 s85, s99, 40960")
    A(f"s_add_u32 s{sC2}, s{sCB2}, s85")
    A(f"s_mov_b32 s{sCST}, {32*3072}")
    A(f"s_lshl_b32 s{sCM0}, s{sWAVE}, 14")
    A("s_and_b32 s85, s82, 3")
    A(f"s_mul_i32 s85, s85, {OPT['rfd']}")
    A("s_lshr_b32 s86, s82, 2")
    A("s_mul_i32 s86, s86, 3")
    A("s_lshr_b32 s86, s86, 1")
    A("s_add_u32 s85, s85, s86")
    A("s_cmp_ge_u32 s85, 12")
    A("s_cselect_b32 s86, 12, 0")
    A("s_sub_u32 s85, s85, s86")
    if OPT["frot"] == 0: A("s_mov_b32 s85, 0")
    if OPT["frot"] == 2:
        A(f"s_add_u32 s85, s{sFS}, s{sFD}")
        A("s_and_b32 s85, s85, 1")
        A("s_mul_i32 s85, s85, 6")
    if OPT["frot"] == 3:
        A(f"s_add_u32 s85, s{sFS}, s{sFD}")
        A("s_mul_i32 s86, s85, 86")
        A("s_lshr_b32 s86, s86, 8")
        A("s_mul_i32 s86, s86, 3")
        A("s_sub_u32 s85, s85, s86")
        A("s_lshl_b32 s85, s85, 2")
    A(f"s_mul_i32 s{sFB1}, s{sWAVE}, {12*32*4096}")
    A(f"s_lshl_b32 s86, s{sFS}, 7")
    A(f"s_add_u32 s{sFB1}, s{sFB1}, s86")
    A(f"s_add_u32 s{sFE1}, s{sFB1}, {12*32*4096}")
    A(f"s_lshl_b32 s86, s85, 17")
    A(f"s_add_u32 s{sF1}, s{sFB1}, s86")
    A(f"s_mul_i32 s{sFB2}, s{sWAVE}, {12*40960}")
    A(f"s_mul_i32 s86, s{sFD}, 5120")
    A(f"s_add_u32 s{sFB2}, s{sFB2}, s86")
    A(f"s_add_u32 s{sFB2}, s{sFB2}, {WS_U:#x}")
    A(f"s_add_u32 s{sFE2}, s{sFB2}, {12*40960}")
    A(f"s_mul_i32 s86, s85, 40960")
    A(f"s_add_u32 s{sF2}, s{sFB2}, s86")
    A(f"v_lshlrev_b32 v{vB0}, 4, v1")
    A(f"v_add_u32 v{vB1}, 4096, v{vB0}")
    A("v_lshrrev_b32 v2, 2, v1")
    A("v_lshrrev_b32 v3, 1, v2")
    A("v_and_b32 v3, 3, v3")
    A("v_lshlrev_b32 v2, 7, v2")
    A("v_lshl_add_u32 v2, v3, 5, v2")
    A("v_and_b32 v3, 3, v1")
    A("v_lshl_add_u32 v2, v3, 3, v2")
    A(f"v_add_u32 v{vTR}, s{sCM0}, v2")
    for t in range(1, 4): A(f"v_xor_b32 v{vTR+t}, {32*t}, v{vTR}")
    A("v_lshrrev_b32 v2, 3, v1")
    A("v_lshrrev_b32 v3, 4, v1")
    A("v_lshlrev_b32 v3, 1, v3")
    A("v_and_b32 v4, 7, v1")
    A("v_xor_b32 v3, v3, v4")
    A("v_lshlrev_b32 v3, 4, v3")
    for base, stride in ((vWS_, 3072), (vWS2, 4096)):
        A(f"v_mul_u32_u24 v4, {stride}, v2")
        A(f"v_add_u32 v{base}, v3, v4")
        for q in range(1, 4): A(f"v_add_u32 v{base+q}, {q*(8*stride-1024)}, v{base}")
    poll_off(A, vPO, 16)
    A("v_lshlrev_b32 v15, 7, v1")
    A(f"s_mov_b32 s24, {FL_LN:#x}")
    A(f"s_mov_b32 s25, {FL_Q:#x}")
    A("s_waitcnt lgkmcnt(0)")
    A(f"s_mul_i32 s{sNON}, s3, 0x41C64E6D")
    A(f"s_add_u32 s{sNON}, s{sNON}, 0x3C6EF35F")

def qkv_setup(A, isq):
    A(f"s_lshr_b32 s{sWR_}, s{sWAVE}, 1")
    A(f"s_and_b32 s{sWC_}, s{sWAVE}, 1")
    A("v_lshrrev_b32 v2, 3, v1")
    A(f"s_lshl_b32 s85, s{sWAVE}, 5")
    A("v_add_u32 v2, s85, v2")
    A("v_mul_u32_u24 v2, 1280, v2")
    A("v_lshrrev_b32 v3, 4, v1")
    A("v_and_b32 v4, 7, v1")
    A("v_xor_b32 v4, v4, v3")
    A(f"v_lshl_add_u32 v{vXO}, v4, 4, v2")
    A("v_xor_b32 v4, 4, v4")
    A("v_lshl_add_u32 v6, v4, 4, v2")
    A(f"v_add_u32 v{vXO+1}, {8*1280-1024}, v6")
    A(f"v_add_u32 v{vXO+2}, {16*1280-2048}, v{vXO}")
    A(f"v_add_u32 v{vXO+3}, {24*1280-3072}, v6")
    A(f"s_mul_i32 s{sO1}, s{sA}, {0 if OPT.get('same') else 128*1280}")
    if OPT.get("same"):
        A("s_mov_b32 s86, 1280")
    elif isq:
        A(f"s_mul_i32 s86, s{sBp}, 320")
    else:
        A(f"s_mul_i32 s86, s{sBp}, 160")
        A("s_add_u32 s86, s86, 1280")
    A(f"s_mul_i32 s85, s{sWAVE}, {16*3840}")
    A("s_add_u32 s85, s85, s86")
    A("s_movk_i32 s88, 3840")
    for n in range(5):
        if n: A(f"v_add_u32 v2, {64*n}, v1")
        q = "v2" if n else "v1"
        A(f"v_mul_u32_u24 v3, 3277, {q}")
        A("v_lshrrev_b32 v3, 16, v3")
        A(f"v_mad_i32_i24 v4, v3, -20, {q}")
        A("v_lshrrev_b32 v5, 2, v3")
        A("v_and_b32 v5, 2, v5")
        A("v_xor_b32 v4, v4, v5")
        comp = 1024*n if n < 4 else 0
        A(f"s_sub_u32 s87, s85, {comp}" if comp else "s_mov_b32 s87, s85")
        A("v_mad_u32_u24 v3, v3, s88, s87" if False else "v_mul_u32_u24 v3, 3840, v3")
        A("v_lshl_add_u32 v3, v4, 4, v3")
        if not isq:
            A("v_cmp_le_u32 vcc, 10, v4")
            A("v_add_u32 v5, 1120, v3")
            A("v_add_u32 v3, s87, v3")
            A("v_add_u32 v5, s87, v5")
            A(f"v_cndmask_b32 v{vWO_+n}, v3, v5, vcc")
        else:
            A(f"v_add_u32 v{vWO_+n}, s87, v3")
    A(f"s_mov_b32 s{sO2}, 0")
    if OPT["rot"]:
        q = OPT["qrot"]
        if q == 1:
            A("s_and_b32 s85, s82, 3")
            A("s_lshl_b32 s85, s85, 2")
            A("s_lshr_b32 s85, 0x8530, s85")
            A("s_and_b32 s85, s85, 15")
            A("s_and_b32 s86, s82, 12")
            A("s_lshr_b32 s86, 0x8530, s86")
            A("s_and_b32 s86, s86, 15")
            A("s_add_u32 s85, s85, s86")
            A("s_add_u32 s85, s85, s83")
            A("s_add_u32 s85, s85, s84")
        else:
            A("s_lshr_b32 s85, s82, 2")
            A("s_add_u32 s85, s85, s82")
            A("s_and_b32 s85, s85, 1")
            A("s_mul_i32 s85, s85, 5")
            if q == 2:
                A("s_add_u32 s85, s85, s83")
                A("s_add_u32 s85, s85, s84")
            if q == 4:
                A("s_add_u32 s85, s85, s81")
            if q == 5:
                A("s_mov_b32 s85, s81")
        if isq: A("s_add_u32 s85, s85, 1")
        A("s_mul_i32 s86, s85, 26")
        A("s_lshr_b32 s86, s86, 8")
        A("s_mul_i32 s86, s86, 10")
        A("s_sub_u32 s85, s85, s86")
        A(f"s_mul_i32 s{sO2}, s85, {64*3840}")
        A("s_lshl_b32 s85, s85, 7")
        A(f"s_add_u32 s{sO1}, s{sO1}, s85")
    A(f"s_lshl_b32 s{sM0}, s{sWAVE}, 12")
    A(f"s_mul_i32 s{sM1}, s{sWAVE}, 5120")
    A(f"s_add_u32 s{sM1}, s{sM1}, 16384")
    A(f"s_mov_b32 s{sWR}, {2*STG}")

def nt(b): return " nt" if OPT["ntq"] & b else ""
def qkv_dma():
    L = [[f"s_add_u32 m0, s{sWR}, s{sM0}"]]
    for n in range(4):
        L.append([f"buffer_load_dwordx4 v{vXO+n}, s[{sX}:{sX+3}], s{sO1} offen offset:{1024*n}{nt(1)} lds"])
    L.append([f"s_add_u32 m0, s{sWR}, s{sM1}"])
    for n in range(4):
        L.append([f"buffer_load_dwordx4 v{vWO_+n}, s[{sW}:{sW+3}], s{sO2} offen offset:{1024*n}{nt(2)} lds"])
    L.append(["s_add_u32 m0, m0, 4096"])
    L.append([f"buffer_load_dwordx4 v{vWO_+4}, s[{sW}:{sW+3}], s{sO2} offen{nt(2)} lds"])
    return L
def qkv_adv():
    return [f"s_add_u32 s{sO1}, s{sO1}, 128", f"s_add_u32 s{sO2}, s{sO2}, {64*3840}", f"s_cmp_eq_u32 s{sO2}, {640*3840}",
            "s_cselect_b32 s85, 1280, 0", f"s_cselect_b32 s{sO2}, 0, s{sO2}", f"s_sub_u32 s{sO1}, s{sO1}, s85",
            f"s_add_u32 s{sWR}, s{sWR}, {STG}", f"s_cmp_eq_u32 s{sWR}, {4*STG}", f"s_cselect_b32 s{sWR}, 0, s{sWR}"]
def emit_dma_block(A, groups):
    for g in groups:
        for x in g: A(x)
        if "m0" in g[0].split(",")[0]: A("s_nop 0")

NW = 5
vXB, vCUR = 26, 6
vXB = 208
vCUR = 215
def qkv_reads(kk, fs):
    def wr(t):
        return [f"ds_read_b64_tr_b16 {ar(fs+16+4*t+2*j,2)}, v{vCUR+2+t} offset:{kk*10240 + j*1280}" for j in range(2)]
    L = wr(0)
    for st in range(4):
        L.append(f"ds_read_b128 {ar(fs+4*st,4)}, v{vCUR+kk} offset:{st*2048}")
    for t in range(1, 5): L += wr(t)
    return L
def qkv_mfmas(fs, isq):
    L = []
    for t in range(5):
        for st in range(4):
            x = ar(fs + 4*st, 4); w = ar(fs + 16 + 4*t, 4); c = vr(ACC + (st*5+t)*4, 4)
            L.append(f"v_mfma_f32_16x16x32_bf16 {c}, {w}, {x}, {c}" if isq else f"v_mfma_f32_16x16x32_bf16 {c}, {x}, {w}, {c}")
    return L

def qkv_gemm(A, pfx, isq, mid_setup, extras, pres, blk):
    emit_dma_block(A, qkv_dma())
    for x in qkv_adv(): A(x)
    stamp(A, pfx + "_iss0")
    mid_setup(A)
    A("v_and_b32 v2, 15, v1")
    A("v_lshrrev_b32 v3, 4, v1")
    A("v_lshrrev_b32 v4, 1, v2")
    A("v_xor_b32 v4, v4, v3")
    A("v_lshlrev_b32 v4, 4, v4")
    A("v_lshl_add_u32 v4, v2, 7, v4")
    A(f"s_lshl_b32 s85, s{sWR_}, 13")
    A(f"v_add_u32 v{vXB}, s85, v4")
    A(f"v_xor_b32 v{vXB+1}, 64, v{vXB}")
    A("v_lshrrev_b32 v4, 2, v2")
    A("v_lshl_add_u32 v4, v3, 3, v4")
    A("v_mul_u32_u24 v4, 320, v4")
    A("v_and_b32 v5, 1, v1")
    A("v_lshl_add_u32 v4, v5, 3, v4")
    A("v_add_u32 v4, 16384, v4")
    A("v_bfe_u32 v5, v1, 1, 1")
    A("v_and_b32 v6, 1, v3")
    A("v_lshlrev_b32 v6, 1, v6")
    A(f"s_mul_i32 s85, s{sWC_}, {10 if isq else 5}")
    for t in range(5):
        if isq: c0, step = [(0, 1), (2, 1), (4, 5), (5, 1), (7, 1)][t]
        else: c0, step = [(0, 1), (2, 1), (4, 6), (11, 1), (13, 1)][t]
        A(f"s_add_u32 s86, s85, {c0}")
        if step == 1: A("v_add_u32 v7, s86, v5")
        else: A(f"v_mad_u32_u24 v7, v5, {step}, s86")
        A("v_xor_b32 v7, v7, v6")
        A(f"v_lshl_add_u32 v{vXB+2+t}, v7, 4, v4")
    zero_acc(A)
    A(f"s_mov_b32 s{sRD}, {2*STG}")
    A(f"s_mov_b32 s{sCNT}, 0")
    upd = [f"v_add_u32 v{vCUR+i}, s{sRD}, v{vXB+i}" for i in range(7)]
    rdadv = [f"s_add_u32 s{sRD}, s{sRD}, {STG}", f"s_cmp_eq_u32 s{sRD}, {4*STG}", f"s_cselect_b32 s{sRD}, 0, s{sRD}"]
    def spread(rd, dma_slots, groups, scal):
        fill = [[] for _ in range(20)]
        k = 0
        for gi in range(9):
            for _ in range(2 if gi < 5 else 1):
                fill[gi].append(rd[k]); k += 1
        g = list(groups)
        for sl in dma_slots:
            if not g: break
            if "m0" in g[0][0].split(",")[0]:
                fill[sl-1] += g.pop(0)
            fill[sl] += g.pop(0)
        return fill, g
    def put_scal(fill, scal, start):
        sc = list(scal); gi = start
        while sc:
            room = 2 - len(fill[gi]) if gi < 19 else len(sc)
            for _ in range(max(room, 0)):
                if sc: fill[gi].append(sc.pop(0))
            gi += 1
    def top_half(wait, groups, pre=None, slots=(3, 7, 11, 15, 19)):
        A(f"s_waitcnt vmcnt({wait}) lgkmcnt(0)")
        if pre: pre(A)
        A("s_barrier")
        fill, rest = spread(qkv_reads(0, FA_), slots, groups, [])
        weave(A, qkv_mfmas(FB_, isq), fill)
        return rest
    def bot_half(adv, tail, groups=[], slots=(2, 6, 10, 13)):
        A("s_waitcnt lgkmcnt(0)")
        fill, rest = spread(qkv_reads(1, FB_), slots, groups, [])
        assert not rest
        put_scal(fill, rdadv + upd, 9)
        put_scal(fill, (qkv_adv() if adv else []) + tail, 14)
        weave(A, qkv_mfmas(FA_, isq), fill)
    for x in upd: A(x)
    stamp(A, pfx + "_setup")
    emit_dma_block(A, qkv_dma())
    for x in qkv_adv(): A(x)
    stamp(A, pfx + "_issued")
    A("s_waitcnt vmcnt(9)")
    A("s_barrier")
    stamp(A, pfx + "_first")
    for x in qkv_reads(0, FA_): A(x)
    emit_dma_block(A, qkv_dma()[:7])
    A(f"s_branch {pfx}_mid")
    A(".p2align 3")
    A.label(f"{pfx}_loop")
    outl = []
    for k, (c, fn) in enumerate(blk):
        A(f"s_cmp_eq_u32 s{sCNT}, {c}")
        A(f"s_cbranch_scc1 {pfx}_blk{k}")
    A.label(f"{pfx}_noblk")
    rest = top_half(9, qkv_dma())
    assert len(rest) == 5
    A.label(f"{pfx}_mid")
    bot_half(True, [f"s_add_u32 s{sCNT}, s{sCNT}, 1", f"s_cmp_lt_u32 s{sCNT}, 8"], rest)
    A(f"s_cbranch_scc1 {pfx}_loop")
    for it in (8, 9):
        g, w = extras.get(it, ([], 9 if it == 8 else 0))
        sl = (1, 3, 5, 8, 10, 12, 14, 16, 18) if len(g) > 14 else (2, 5, 8, 11, 14, 17)
        rest = top_half(w, g, pres.get(it), sl)
        bot_half(False, [], rest, sl)
    stamp(A, pfx + "_loop9")
    A("s_waitcnt lgkmcnt(0)")
    if isq:
        for m in qkv_mfmas(FB_, isq): A(m)
        A("s_nop 7")
        stamp(A, pfx + "_loopdone")
    def outline(A):
        for k, (c, fn) in enumerate(blk):
            A.label(f"{pfx}_blk{k}")
            fn(A)
            A(f"s_branch {pfx}_noblk")
    return outline

PAIRS = [(2,0),(3,0),(2,1),(3,1),(4,1),(3,2),(4,2)]
def kv_mask(i):
    te, tc = PAIRS[i]; m = 0
    for l in range(64):
        c = 16*tc + l % 16; e = [-8, 8, 24][te-2] + 4*(l//16)
        if c < 40 and e >= 0 and c//20 == e//20: m |= 1 << l
    return m

KVB = [sum(bin(kv_mask(j)).count("1") for j in range(i)) for i in range(8)]
def kv_rank(A, dst, i, shift, add=0):
    m = kv_mask(i)
    A(f"s_mov_b32 s85, {m & 0xffffffff:#x}")
    A(f"s_mov_b32 s86, {m >> 32:#x}")
    A(f"v_mbcnt_lo_u32_b32 v{dst}, s85, {KVB[i]}" if KVB[i] <= 64 else f"v_mov_b32 v{dst}, {KVB[i]}\nv_mbcnt_lo_u32_b32 v{dst}, s85, v{dst}")
    A(f"v_mbcnt_hi_u32_b32 v{dst}, s86, v{dst}")
    A(f"v_lshlrev_b32 v{dst}, {shift}, v{dst}")
    if add: A(f"v_add_u32 v{dst}, {add}, v{dst}")
vKR = 246
def phi4(A, b, T, dst=None):
    dst = b if dst is None else dst
    A(f"v_pk_mul_f32 {vr(T,2)}, {vr(b,2)}, s[{sL2}:{sL2+1}]")
    A(f"v_pk_mul_f32 {vr(T+2,2)}, {vr(b+2,2)}, s[{sL2}:{sL2+1}]")
    for i in range(4): A(f"v_exp_f32 v{T+i}, v{T+i} clamp")
    for i in range(4): A(f"v_max_f32 v{dst+i}, {EPS6:#x}, v{b+i}")
    A(f"v_pk_add_f32 {vr(dst,2)}, {vr(dst,2)}, {vr(T,2)}")
    A(f"v_pk_add_f32 {vr(dst+2,2)}, {vr(dst+2,2)}, {vr(T+2,2)}")
sL2 = 88
vEW, vEZ, vER, sKVS = 250, 251, 252, 26
def kv_esetup(A):
    A(f"s_lshl_b32 s85, s{sBp}, 1")
    A(f"s_add_u32 s85, s85, s{sWC_}")
    A("s_lshl_b32 s86, s85, 4")
    A(f"s_add_u32 s86, s86, s{sA}")
    A("s_lshl_b32 s87, s86, 8")
    A(f"s_mul_i32 s{sKVS}, s86, 3200")
    A(f"s_sub_u32 s87, s87, s{sKVS}")
    A(f"s_add_u32 s87, s87, {WS_ZP - WS_KVP:#x}")
    A("s_lshr_b32 s87, s87, 4")
    A(f"s_add_u32 s{sKVS}, s{sKVS}, {WS_KVP:#x}")
    A("v_mov_b32 v2, 0x7ff00000")
    for k in range(4):
        mA = kv_mask(k); mB = kv_mask(4+k) if k < 3 else 0xffff
        A(f"s_cmp_eq_u32 s{sWR_}, 0")
        A(f"s_mov_b32 s92, {mB & 0xffffffff:#x}")
        A(f"s_cselect_b32 s92, {mA & 0xffffffff:#x}, s92")
        A(f"s_mov_b32 s93, {mB >> 32:#x}")
        A(f"s_cselect_b32 s93, {mA >> 32:#x}, s93")
        if k < 3: A(f"s_mov_b32 s88, {KVB[4+k]}")
        A(f"s_cselect_b32 s88, {KVB[k]}, s{88 if k < 3 else 87}")
        A(f"v_mov_b32 v{vKR+k}, s88")
        A(f"v_mbcnt_lo_u32_b32 v{vKR+k}, s92, v{vKR+k}")
        A(f"v_mbcnt_hi_u32_b32 v{vKR+k}, s93, v{vKR+k}")
        A(f"v_lshlrev_b32 v{vKR+k}, 4, v{vKR+k}")
        A(f"v_cndmask_b32 v{vKR+k}, v2, v{vKR+k}, s[92:93]")
    A(f"s_mul_i32 s85, s{sWAVE}, 8448")
    A(f"s_add_u32 s85, s85, {LDS_RED}")
    A(f"v_add_u32 v{vEW}, s85, v{vB0}")
    A(f"v_lshl_add_u32 v{vEZ}, v1, 2, s85")
    A(f"s_mul_i32 s85, s{sWC_}, 8448")
    A(f"s_lshl_b32 s86, s{sWR_}, 12")
    A("s_add_u32 s85, s85, s86")
    A(f"s_add_u32 s85, s85, {LDS_RED}")
    A(f"v_add_u32 v{vER}, s85, v{vB0}")
    A("v_and_b32 v2, 15, v1")
    A(f"v_cmp_gt_u32 s[{sMK}:{sMK+1}], 8, v2")
    A("v_cmp_lt_u32 s[64:65], 15, v1")
    A("v_cmp_lt_u32 s[66:67], 31, v1")
def kv_estream():
    PB, KA, ONE, TMP = 128, 168, 208, 212
    E = [Asm(), Asm(), Asm(), Asm()]
    A = E[0]
    A(f"s_mov_b32 s{sL2}, {LOG2E:#x}")
    A(f"s_mov_b32 s{sL2+1}, {LOG2E:#x}")
    for i in range(4): A(f"v_mov_b32 v{ONE+i}, 0x3f803f80")
    for st in range(4):
        A = E[st // 2]
        for t in range(3):
            b = ACC + (st*5+t)*4
            if t < 2: phi4(A, b, TMP)
            else:
                phi4(A, b, TMP, TMP+4)
                for i in range(4): A(f"v_cndmask_b32 v{b+i}, v{b+i}, v{TMP+4+i}, s[{sMK}:{sMK+1}]")
        for t in range(5):
            b = ACC + (st*5+t)*4
            d = PB + (t*2 + st//2)*4 + (st & 1)*2
            A(f"v_cvt_pk_bf16_f32 v{d}, v{b}, v{b+1}")
            A(f"v_cvt_pk_bf16_f32 v{d+1}, v{b+2}, v{b+3}")
        if st & 1:
            sp = st // 2
            A("s_nop 1")
            for tc in range(3):
                c = vr(KA+4*(7+tc), 4)
                A(f"v_mfma_f32_16x16x32_bf16 {c}, {vr(ONE,4)}, {vr(PB+(tc*2+sp)*4,4)}, {c if sp else 0}")
            for i, (te, tc) in enumerate(PAIRS):
                c = vr(KA+4*i, 4)
                A(f"v_mfma_f32_16x16x32_bf16 {c}, {vr(PB+(te*2+sp)*4,4)}, {vr(PB+(tc*2+sp)*4,4)}, {c if sp else 0}")
    A = E[1]
    A("s_nop 0")
    A(f"v_cndmask_b32 v{KA+28}, v{KA+28}, v{KA+32}, s[64:65]")
    A(f"v_cndmask_b32 v{KA+28}, v{KA+28}, v{KA+36}, s[66:67]")
    A(f"ds_write_b32 v{vEZ}, v{KA+28} offset:7168")
    for i in range(7): A(f"ds_write_b128 v{vEW}, {vr(KA+4*i,4)} offset:{1024*i}")
    A = E[2]
    for k in range(4):
        A(f"ds_read_b128 {vr(PB+8*k,4)}, v{vER} offset:{1024*k}")
        A(f"ds_read_b128 {vr(PB+8*k+4,4)}, v{vER} offset:{1024*k + 16896}")
    A = E[3]
    A("s_waitcnt lgkmcnt(0)")
    for k in range(4):
        for i in (0, 2): A(f"v_pk_add_f32 {vr(PB+8*k+i,2)}, {vr(PB+8*k+i,2)}, {vr(PB+8*k+4+i,2)}")
    for k in range(4):
        A(f"buffer_store_dwordx4 {vr(PB+8*k,4)}, v{vKR+k}, s[{sWS}:{sWS+3}], s{sKVS} offen sc1")
    return [e.lines for e in E]

def w1_setup(A, locbase, vreg):
    A(f"s_sub_u32 s88, s82, {locbase}")
    A("s_lshl_b32 s88, s88, 2")
    A(f"s_add_u32 s88, s88, s{sWAVE}")
    A(f"v_and_b32 v{vreg}, 31, v1")
    A(f"v_mul_u32_u24 v{vreg}, 3072, v{vreg}")
    A("v_lshrrev_b32 v3, 5, v1")
    A(f"v_lshl_add_u32 v{vreg}, v3, 9, v{vreg}")
    A(f"s_mul_i32 s85, s88, {32*3072}")
    A("s_lshl_b32 s86, s83, 7")
    A("s_add_u32 s85, s85, s86")
    A(f"s_mul_i32 s86, s84, {1024*3072}")
    A("s_add_u32 s26, s86, s85")
    A("s_xor_b32 s87, s84, 1")
    A(f"s_mul_i32 s87, s87, {1024*3072}")
    A("s_add_u32 s27, s87, s85")

def w2_prefetch(A, locbase, parts):
    A(f"s_sub_u32 s85, s82, {locbase}")
    A("s_lshl_b32 s85, s85, 2")
    A(f"s_add_u32 s85, s85, s{sWAVE}")
    if OPT["fmap"]:
        A("v_lshrrev_b32 v2, 2, v1")
        A("v_lshlrev_b32 v2, 12, v2")
        A("v_and_b32 v3, 3, v1")
        A(f"v_lshl_add_u32 v2, v3, {10 if OPT['fmap'] == 1 else 7}, v2")
        A(f"s_mul_i32 s85, s85, {48*4096}")
        A(f"s_lshl_b32 s86, s81, {7 if OPT['fmap'] == 1 else 9}")
        A("s_add_u32 s85, s85, s86")
        if parts[0]: A(f"s_add_u32 s85, s85, {16*4096*parts[0]}")
        for i in parts:
            A(f"buffer_load_dword a255, v2, s[{sW2}:{sW2+3}], s85 offen")
            if i != parts[-1]: A(f"s_add_u32 s85, s85, {16*4096}")
        return
    if OPT["w2c"]:
        A("s_lshl_b32 s86, s81, 5")
        A("s_add_u32 s85, s85, s86")
        A("s_lshl_b32 s85, s85, 13")
        if parts[0]: A(f"s_add_u32 s85, s85, {(8192*256)*parts[0]}")
        for i in parts:
            A(f"buffer_load_dword a255, v15, s[{sW2}:{sW2+3}], s85 offen")
            if i != parts[-1]: A(f"s_add_u32 s85, s85, {8192*256}")
        return
    A("v_lshrrev_b32 v2, 3, v1")
    A("v_lshlrev_b32 v2, 12, v2")
    A("v_and_b32 v3, 7, v1")
    A("v_lshl_add_u32 v2, v3, 7, v2")
    A("s_mul_i32 s85, s85, 24")
    A("s_mul_i32 s86, s84, 768")
    A("s_add_u32 s85, s85, s86")
    A(f"s_add_u32 s85, s85, {8*parts[0]}")
    A("s_lshl_b32 s85, s85, 12")
    A("s_lshl_b32 s86, s83, 10")
    A("s_add_u32 s85, s85, s86")
    for i in parts:
        A(f"buffer_load_dword a255, v2, s[{sW2}:{sW2+3}], s85 offen")
        if i != parts[-1]: A(f"s_add_u32 s85, s85, {8*4096}")

QCB = [0, 16, 32, 40, 56]
QDP = [(0,0),(0,1),(1,0),(1,1),(1,2),(2,1),(2,2),(2,4),(3,3),(3,4),(4,2),(4,3),(4,4)]
sMA, sZO, sKO, sPQ, sWOo, sGo = 56, 58, 59, 64, 67, 23
vWOd, vWOt, vZA, vKP, vGo, vT1 = 248, 246, 252, 245, 25, 244
MSK = 194
def q_setup(A):
    T = 128
    A(f"s_mul_i32 s{sWOo}, s{sU}, {40*1280}")
    A(f"s_mul_i32 s86, s{sNR}, 320")
    A(f"s_add_u32 s{sWOo}, s{sWOo}, s86")
    A(f"s_lshl_b32 s86, s{sWAVE}, 8")
    for n in range(4):
        A(f"v_add_u32 v2, {64*n}, v1")
        A("v_add_u32 v2, s86, v2")
        A("v_mul_u32_u24 v3, 3277, v2")
        A("v_lshrrev_b32 v3, 16, v3")
        A("v_mul_u32_u24 v4, 20, v3")
        A("v_sub_u32 v4, v2, v4")
        A("v_mul_u32_u24 v3, 1280, v3")
        A(f"v_lshl_add_u32 v{vWOd+n}, v4, 4, v3")
        if n: A(f"v_subrev_u32 v{vWOd+n}, {1024*n}, v{vWOd+n}")
    A("v_and_b32 v3, 15, v1")
    A("v_lshrrev_b32 v4, 4, v1")
    A(f"v_lshlrev_b32 v{vGo}, 2, v3")
    A(f"s_lshl_b32 s86, s{sA}, 9")
    A(f"s_lshl_b32 s87, s{sWR_}, 8")
    A("s_add_u32 s86, s86, s87")
    A(f"s_add_u32 s{sGo}, s86, {WS_G:#x}")
    A("v_bfe_u32 v5, v1, 1, 2")
    A(f"s_lshl_b32 s85, s{sWAVE}, 2")
    A("v_add_lshl_u32 v5, v5, s85, 3")
    A("v_and_b32 v6, 1, v1")
    A(f"s_lshl_b32 s85, s{sBp}, 1")
    A("v_add3_u32 v5, v5, v6, s85")
    A(f"v_lshlrev_b32 v{vKP}, 7, v5")
    A("v_lshrrev_b32 v5, 2, v3")
    A("v_lshl_add_u32 v5, v4, 2, v5")
    A("v_and_b32 v6, 7, v5")
    A("v_mul_u32_u24 v6, 320, v6")
    A("v_mul_u32_u24 v5, 320, v5")
    A("v_and_b32 v7, 3, v1")
    A("v_lshlrev_b32 v7, 3, v7")
    A(f"s_lshl_b32 s86, s{sWAVE}, 5")
    A("v_add_u32 v7, s86, v7")
    A(f"v_add_u32 v{vWOt}, v6, v7")
    A(f"v_add_u32 v{vWOt+1}, v5, v7")
    A(f"s_lshr_b32 s86, s{sU}, 2")
    A("s_mul_i32 s86, s86, 5")
    A(f"s_bfe_u32 s87, s{sU}, 0x10001")
    A(f"s_and_b32 s88, s{sU}, 1")
    A("s_mul_i32 s89, s87, 3")
    A("s_add_u32 s89, s89, s88")
    A("s_add_u32 s89, s89, s86")
    A(f"s_mul_i32 s{sMA}, s89, 40960")
    A("s_add_u32 s86, s86, 2")
    A(f"s_mul_i32 s{sMA+1}, s86, 40960")
    A("s_lshl_b32 s87, s87, 3")
    A("s_lshl_b32 s88, s88, 9")
    A(f"s_add_u32 s{sMA+1}, s{sMA+1}, s87")
    A(f"s_add_u32 s{sMA+1}, s{sMA+1}, s88")
    A(f"s_mul_i32 s86, s{sNR}, 10240")
    A(f"s_lshl_b32 s87, s{sWAVE}, 10")
    A("s_add_u32 s86, s86, s87")
    A(f"s_add_u32 s86, s86, {WS_M:#x}")
    A(f"s_add_u32 s{sMA}, s{sMA}, s86")
    A(f"s_add_u32 s{sMA+1}, s{sMA+1}, s86")
    A(f"s_lshl_b32 s85, s{sA}, 1")
    A(f"s_add_u32 s85, s85, s{sWR_}")
    A("s_mul_i32 s85, s85, 20")
    A(f"s_mul_i32 s86, s{sBp}, 5")
    A("s_add_u32 s85, s85, s86")
    A("s_lshl_b32 s85, s85, 12")
    A(f"s_add_u32 s85, s85, {WS_PQ:#x}")
    A(f"s_mul_i32 s86, s{sWC_}, {3*4096}")
    A(f"s_add_u32 s{sPQ}, s86, s85")
    A(f"s_add_u32 s{sPQ+1}, s{sPQ}, 4096")
    A(f"s_lshl_b32 s88, s{sWC_}, 3")
    A("s_add_u32 s88, s88, s85")
    A(f"s_add_u32 s{sPQ+2}, s88, 8192")
    A(f"v_add_u32 v5, s{sWAVE}, v1")
    A(f"s_mul_i32 s85, s{sWAVE}, 9")
    A("v_add_u32 v5, s85, v5")
    A("v_lshrrev_b32 v6, 2, v5")
    A("v_and_b32 v5, 3, v5")
    A("v_lshlrev_b32 v5, 7, v5")
    A("v_lshl_add_u32 v5, v6, 10, v5")
    A(f"s_sub_u32 s85, s{sMA+1}, s87")
    A("s_and_b32 s85, s85, 0xffffff80")
    A("v_add_u32 v5, s85, v5")
    A(f"s_and_b32 s85, s{sPQ+2}, 0xffffff80")
    A(f"s_lshl_b32 s86, s{sWC_}, 11")
    A("s_add_u32 s85, s85, s86")
    A("v_lshlrev_b32 v6, 7, v3")
    A("v_add_u32 v6, s85, v6")
    A("v_cmp_gt_u32 vcc, 10, v1")
    A("s_nop 1")
    A(f"v_cndmask_b32 v{vT1}, v6, v5, vcc")
    A(f"v_mov_b32 v{T}, {LDS_RED + 1600}")
    for i in range(7):
        kv_rank(A, 26+i, i, 3, LDS_RED)
        A(f"s_mov_b32 s92, s85")
        A(f"s_mov_b32 s93, s86")
        A(f"v_cndmask_b32 v{26+i}, v{T}, v{26+i}, s[92:93]")
    cb = QCB
    for t in range(5):
        A(f"v_lshl_add_u32 v{T+t}, v4, 2, {cb[t]}")
        A(f"v_add_u32 v{T+5+t}, {cb[t]}, v3")
        if t == 2:
            A("v_lshrrev_b32 v5, 1, v4")
            A(f"v_lshl_add_u32 v{T+t}, v5, 5, v{T+t}")
            A("v_mul_u32_u24 v7, 4064, v5")
            A("v_lshrrev_b32 v5, 3, v3")
            A(f"v_lshl_add_u32 v{T+5+t}, v5, 5, v{T+5+t}")
        A(f"v_mul_u32_u24 v{T+t}, 205, v{T+t}")
        A(f"v_lshrrev_b32 v{T+t}, 12, v{T+t}")
        A(f"v_mul_u32_u24 v{T+5+t}, 205, v{T+5+t}")
        A(f"v_lshrrev_b32 v{T+5+t}, 12, v{T+5+t}")
    for k, (tp, t) in enumerate(QDP):
        A(f"v_cmp_eq_u32 vcc, v{T+t}, v{T+5+tp}")
        A("s_nop 1")
        A(f"v_cndmask_b32 v{MSK+k}, 0, -1, vcc")
    A("v_lshlrev_b32 v5, 8, v3")
    A(f"v_lshl_add_u32 v{vZA}, v4, 4, v5")
    A(f"v_add_u32 v{vZA+2}, v7, v{vZA}")
    A(f"v_add_u32 v{vZA+1}, 4096, v{vZA}")
    A(f"s_lshl_b32 s86, s{sBp}, 14")
    A(f"s_lshl_b32 s87, s{sWC_}, 13")
    A("s_add_u32 s86, s86, s87")
    A(f"s_add_u32 s{sZO}, s86, {WS_ZP:#x}")
    A(f"s_mul_i32 s89, s{sU}, {16*3200}")
    A(f"s_mul_i32 s87, s{sWAVE}, 800")
    A("s_add_u32 s87, s87, s89")
    A(f"s_add_u32 s{sKO}, s87, {WS_KVP:#x}")
    if OPT["qw2"]:
        A("s_sub_u32 s85, s82, 16")
        A("s_lshl_b32 s85, s85, 2")
        A(f"s_add_u32 s85, s85, s{sWAVE}")
        A("s_lshl_b32 s86, s81, 5")
        A("s_add_u32 s85, s85, s86")
        A("s_lshl_b32 s85, s85, 13")
        A(f"s_add_u32 s99, s85, {8192*256*(3 - OPT['qw2'])}")
def q_pf_only(A):
    for k in range(3 - OPT["qw1n"], 3):
        A(f"buffer_load_dword a255, v12, s[{sW1}:{sW1+3}], s26 offen offset:{1024*k}")
def q_loop_pf(A):
    if OPT["qw1"] == 0:
        A("s_mov_b32 exec_lo, 0xffff03ff")
        A("s_mov_b32 exec_hi, 0")
        A(f"buffer_load_dword a255, v{vT1}, s[{sWS}:{sWS+3}], 0 offen sc1")
        A("s_mov_b64 exec, -1")
        return
    for k in range(3 - OPT["qw1n"], 3):
        A(f"buffer_load_dword a255, v12, s[{sW1}:{sW1+3}], s26 offen offset:{1024*k}")
    if OPT["qw1b"]:
        for k in range(3): A(f"buffer_load_dword a255, v12, s[{sW1}:{sW1+3}], s27 offen offset:{1024*k}")
    for k in range(OPT["qw2"]):
        A(f"buffer_load_dword a255, v15, s[{sW2}:{sW2+3}], s99 offen")
        A(f"s_add_u32 s99, s99, {8192*256}")
    if OPT["touch"] and not OPT["qdefer"]:
        A("s_mov_b32 exec_lo, 0xffff03ff")
        A("s_mov_b32 exec_hi, 0")
        A(f"buffer_load_dword a255, v{vT1}, s[{sWS}:{sWS+3}], 0 offen sc1")
        A("s_mov_b64 exec, -1")
def q_extras():
    g8 = [[poll_ld(vPO, 24)], [f"s_lshl_b32 m0, s{sWAVE}, 12"]] + [[f"buffer_load_dwordx4 v{vWOd+n}, s[{sWO}:{sWO+3}], s{sWOo} offen offset:{1024*n} lds"] for n in range(4)]
    g9 = [[f"buffer_load_dword v{8+st}, v{vGo}, s[{sWS}:{sWS+3}], s{sGo} offen offset:{64*st} sc1"] for st in range(4)]
    return {8: (g8, 9), 9: (g9, 0)}

def q_epilogue(A):
    PK, Z, AF, ZP, G = 128, 168, 168, 16, 8
    KA_, DEN, OUT, TMP = 48, 204+0, 224, 112
    WBa, KVa = 0, 20
    cb, dp = QCB, QDP
    A(f"s_mov_b32 s24, {FL_KV:#x}")
    for i in range(3):
        A(f"ds_read_b64_tr_b16 {ar(WBa+6*i,2)}, v{vWOt} offset:{128*i}")
        A(f"ds_read_b64_tr_b16 {ar(WBa+6*i+2,2)}, v{vWOt+1} offset:{128*i + 8*320}")
        A(f"ds_read_b64_tr_b16 {ar(WBa+6*i+4,2)}, v{vWOt+1} offset:{128*i + 24*320}")
    A(f"v_mov_b32 v2, {LDS_RED + 1600}")
    A("v_mov_b64 v[4:5], 0")
    A("ds_write_b64 v2, v[4:5]")
    A(f"s_mov_b32 s{sL2}, {LOG2E:#x}")
    A(f"s_mov_b32 s{sL2+1}, {LOG2E:#x}")
    for k, b in enumerate(range(ACC, ACC+80, 4)):
        if k == 12: A(poll_ld(vKP, 24))
        phi4(A, b, 208)
        A(f"v_cvt_pk_bf16_f32 v{PK+2*k}, v{b}, v{b+1}")
        A(f"v_cvt_pk_bf16_f32 v{PK+2*k+1}, v{b+2}, v{b+3}")
    stamp(A, "q_pre")
    A("s_waitcnt vmcnt(0) lgkmcnt(0)")
    poll_check(A, "pkv", vKP, 24)
    A("s_barrier")
    stamp(A, "q_kvok")
    for t in range(5):
        A(f"buffer_load_dwordx4 {vr(Z+4*t,4)}, v{vZA+[0,0,2,1,1][t]}, s[{sWS}:{sWS+3}], s{sZO} offen offset:{[0,64,128,0,64][t]} sc1")
    kvl = []
    for rb in range(0, 16, 2):
        kvl.append(["s_mov_b32 exec_hi, 0x3ffff",
                    f"buffer_load_dwordx4 {vr(KA_+4*rb,4)}, v{vB0}, s[{sWS}:{sWS+3}], s{sKO} offen sc1",
                    f"buffer_load_dwordx4 {vr(KA_+4*rb+4,4)}, v{vB0}, s[{sWS}:{sWS+3}], s{sKO} offen offset:3200 sc1",
                    "s_mov_b32 exec_hi, -1", f"s_add_u32 s{sKO}, s{sKO}, 6400"])
    def kv(n):
        for _ in range(n):
            if kvl:
                for x in kvl.pop(0): A(x)
    kv(2)
    A("s_waitcnt vmcnt(4)")
    stamp(A, "q_z")
    for rot in (8, 4, 2, 1):
        kv(1)
        for i in range(20):
            A(f"v_add_f32_dpp v{Z+i}, v{Z+i}, v{Z+i} row_ror:{rot} row_mask:0xf bank_mask:0xf")
    for i in range(10): A(f"v_cvt_pk_bf16_f32 v{ZP+i}, v{Z+2*i}, v{Z+2*i+1}")
    kv(2)
    for k, (tp, t) in enumerate(dp):
        A(f"v_and_b32 v{AF+2*k}, v{MSK+k}, v{ZP+2*t}")
        A(f"v_and_b32 v{AF+2*k+1}, v{MSK+k}, v{ZP+2*t+1}")
    A("s_nop 0")
    DEN2 = 224
    def den(st, Dn):
        seen = set()
        for k, (tp, t) in enumerate(dp):
            c = vr(Dn + 4*tp, 4)
            A(f"v_mfma_f32_16x16x16_bf16 {c}, {vr(AF+2*k,2)}, {vr(PK+(st*5+t)*2,2)}, {c if tp in seen else 0}")
            seen.add(tp)
    den(0, DEN)
    for st in range(4):
        Dn = DEN if (st & 1) == 0 else DEN2
        o = OUT
        U = TMP + 10
        if st < 3: den(st + 1, DEN2 if (st & 1) == 0 else DEN)
        else: A("s_nop 7")
        kv(OPT["kvr"])
        for tp in range(5): A(f"v_add_f32 v{TMP+2*tp}, {EPS6:#x}, v{Dn+4*tp}")
        for tp in range(5): A(f"v_rcp_f32 v{TMP+2*tp}, v{TMP+2*tp}")
        A("s_nop 0")
        for tp in range(5): A(f"v_mul_f32 v{TMP+2*tp}, v{TMP+2*tp}, v{G+st}")
        for tp in range(5):
            p = PK + (st*5+tp)*2
            if tp == 2: kv(OPT["kvr"])
            A(f"v_lshlrev_b32 v{U}, 16, v{p}")
            A(f"v_and_b32 v{U+1}, 0xffff0000, v{p}")
            A(f"v_lshlrev_b32 v{U+2}, 16, v{p+1}")
            A(f"v_and_b32 v{U+3}, 0xffff0000, v{p+1}")
            A(f"v_pk_mul_f32 {vr(U,2)}, {vr(U,2)}, {vr(TMP+2*tp,2)} op_sel_hi:[1,0]")
            A(f"v_pk_mul_f32 {vr(U+2,2)}, {vr(U+2,2)}, {vr(TMP+2*tp,2)} op_sel_hi:[1,0]")
            A(f"v_cvt_pk_bf16_f32 v{p}, v{U}, v{U+1}")
            A(f"v_cvt_pk_bf16_f32 v{p+1}, v{U+2}, v{U+3}")
        p = PK + st*10
        A(f"buffer_store_dwordx4 {vr(p,4)}, v{vB0}, s[{sWS}:{sWS+3}], s{sPQ} offen offset:{1024*st} sc1")
        A(f"buffer_store_dwordx4 {vr(p+6,4)}, v{vB0}, s[{sWS}:{sWS+3}], s{sPQ+1} offen offset:{1024*st} sc1")
        A(f"buffer_store_dwordx2 {vr(p+4,2)}, v{vB0}, s[{sWS}:{sWS+3}], s{sPQ+2} offen offset:{1024*st} sc1")
    assert not kvl
    stamp(A, "q_pq")
    A("s_waitcnt vmcnt(12)")
    stamp(A, "q_kv")
    for w in (32, 16, 8, 4):
        for i in range(0, w, 2):
            A(f"v_pk_add_f32 {vr(KA_+i,2)}, {vr(KA_+i,2)}, {vr(KA_+w+i,2)}")
    A(f"s_mul_i32 s86, s{sWAVE}, 400")
    A(f"s_add_u32 s86, s86, {LDS_RED}")
    A("v_lshlrev_b32 v7, 3, v1")
    A("v_add_u32 v7, s86, v7")
    A(f"v_cvt_pk_bf16_f32 v{KA_}, v{KA_}, v{KA_+1}")
    A(f"v_cvt_pk_bf16_f32 v{KA_+1}, v{KA_+2}, v{KA_+3}")
    A("s_mov_b32 exec_hi, 0x3ffff")
    A(f"ds_write_b64 v7, {vr(KA_,2)}")
    A("s_mov_b32 exec_hi, -1")
    A("s_waitcnt lgkmcnt(0)")
    A("s_barrier")
    stamp(A, "q_bar")
    for i in range(7): A(f"ds_read_b64 {ar(KVa+2*i,2)}, v{26+i}")
    A("s_waitcnt lgkmcnt(0)")
    MD = 64
    for i in range(3):
        seen = set()
        for k, (te, tc) in enumerate(PAIRS):
            c = vr(MD + (i*3+tc)*4, 4)
            A(f"v_mfma_f32_16x16x16_bf16 {c}, {ar(KVa+2*k,2)}, {ar(WBa+6*i+2*(te-2),2)}, {c if tc in seen else 0}")
            seen.add(tc)
    for i in range(3):
        if i == 2:
            A(f"s_cmp_ge_u32 s{sWAVE}, 2")
            A("s_cbranch_scc1 q_m_done")
            A("s_nop 2")
        b = MD + i*12
        for k in range(6): A(f"v_cvt_pk_bf16_f32 v{b+k}, v{b+2*k}, v{b+2*k+1}")
        A(f"buffer_store_dwordx4 {vr(b,4)}, v{vB0}, s[{sWS}:{sWS+3}], s{sMA} offen sc1")
        A("s_mov_b32 exec_hi, 0")
        A(f"buffer_store_dwordx2 {vr(b+4,2)}, v{vB0}, s[{sWS}:{sWS+3}], s{sMA+1} offen sc1")
        A("s_mov_b32 exec_hi, -1")
        A(f"s_add_u32 s{sMA}, s{sMA}, 4096")
        A(f"s_add_u32 s{sMA+1}, s{sMA+1}, 4096")
    A.label("q_m_done")
    stamp(A, "q_mdone")

def tlb_touch(A):
    for ptr, size in ((26, WS_SIZE), (22, 2048*1280), (16, 1536*4096), (12, 2048*3072), (8, 640*1280), (14, 4), (18, 4)):
        A(f"s_mov_b64 s[86:87], s[{ptr}:{ptr+1}]")
        offs = sorted(set(list(range(0, size, 1 << 21)) + [size - 4]))
        prev = 0
        for o in offs:
            if o - prev >= (1 << 20):
                A(f"s_add_u32 s86, s86, {o - prev:#x}")
                A("s_addc_u32 s87, s87, 0")
                prev = o
            A(f"s_load_dword s98, s[86:87], {o - prev:#x}")
def ln_role(A, after_loads, ne):
    X, GW, D = 48, 88, 128
    A("v_lshrrev_b32 v2, 3, v1")
    A(f"s_lshl_b32 s85, s{sWAVE}, 3")
    A("v_add_u32 v2, s85, v2")
    A("v_and_b32 v3, 7, v1")
    A("v_lshlrev_b32 v3, 4, v3")
    A("v_mul_u32_u24 v4, 1280, v2")
    A("v_add_u32 v4, v4, v3")
    A(f"s_mul_i32 s85, s{sA}, {32*1280}")
    A("s_waitcnt lgkmcnt(0)"); srds(A, ["X", "GW"])
    LN_TLB = True
    for i in range(10):
        A(f"buffer_load_dwordx4 {vr(X+4*i,4)}, v4, s[{sX}:{sX+3}], s85 offen offset:{128*i}")
    for i in range(10):
        A(f"buffer_load_dwordx4 {vr(GW+4*i,4)}, v3, s[{sGW}:{sGW+3}], 0 offen offset:{128*i}")
    A("v_mul_u32_u24 v16, 1312, v2")
    A("v_add_u32 v16, v16, v3")
    A("v_lshlrev_b32 v17, 2, v2")
    if OPT["tlb"] == 1: tlb_touch(A)
    after_loads(A)
    A("v_mov_b32 v5, 0x3f803f80")
    for i in range(4): A(f"v_mov_b32 v{8+i}, 0")
    A(f"s_waitcnt vmcnt({10+ne})")
    stamp(A, "ln_first")
    for i in range(40):
        A(f"v_dot2_f32_bf16 v{8+(i&1)}, v{X+i}, v5, v{8+(i&1)}")
    A(f"s_waitcnt vmcnt({ne})")
    for i in range(40):
        A(f"v_dot2_f32_bf16 v{10+(i&1)}, v{X+i}, v{GW+i}, v{10+(i&1)}")
    A("s_nop 2")
    A("v_add_f32 v8, v8, v9")
    A("v_add_f32 v10, v10, v11")
    def red8(r):
        for m in ("quad_perm:[1,0,3,2]", "quad_perm:[2,3,0,1]", "row_half_mirror"):
            A("s_nop 1")
            for x in r: A(f"v_add_f32_dpp v{x}, v{x}, v{x} {m} row_mask:0xf bank_mask:0xf")
    red8([8, 10])
    A(f"v_mul_f32 v8, {0xBACCCCCD:#x}, v8")
    A("v_mov_b32 v9, v8")
    A(f"v_mul_f32 v10, {LOG2E | 0x80000000:#x}, v10")
    A("v_exp_f32 v10, v10")
    for i in range(40):
        A(f"v_lshlrev_b32 v{D+2*i}, 16, v{X+i}")
        A(f"v_and_b32 v{D+2*i+1}, 0xffff0000, v{X+i}")
    A("v_add_f32 v10, 1.0, v10")
    A("v_rcp_f32 v10, v10")
    for i in range(40):
        A(f"v_pk_add_f32 {vr(D+2*i,2)}, {vr(D+2*i,2)}, v[8:9]")
    A("v_pk_mul_f32 v[18:19], v[128:129], v[128:129]")
    A("v_pk_mul_f32 v[20:21], v[130:131], v[130:131]")
    for i in range(2, 40):
        a = 18 + 2*(i & 1)
        A(f"v_pk_fma_f32 {vr(a,2)}, {vr(D+2*i,2)}, {vr(D+2*i,2)}, {vr(a,2)}")
    A("v_pk_add_f32 v[18:19], v[18:19], v[20:21]")
    A("ds_write_b32 v17, v10 offset:49152")
    A("v_add_f32 v18, v18, v19")
    red8([18])
    A(f"v_mov_b32 v19, {0x3727C5AC:#x}")
    A(f"v_fmac_f32 v19, {0x3ACCCCCD:#x}, v18")
    A("v_rsq_f32 v18, v19")
    A("s_nop 0")
    A("v_mov_b32 v19, v18")
    for i in range(40):
        A(f"v_pk_mul_f32 {vr(D+2*i,2)}, {vr(D+2*i,2)}, v[18:19]")
        A(f"v_cvt_pk_bf16_f32 v{X+i}, v{D+2*i}, v{D+2*i+1}")
        if (i & 3) == 3:
            A(f"ds_write_b128 v16, {vr(X+i-3,4)} offset:{128*(i//4)}")
    A("v_lshrrev_b32 v2, 2, v1")
    A("v_mul_u32_u24 v2, 1312, v2")
    A("v_and_b32 v3, 3, v1")
    A("v_lshl_add_u32 v2, v3, 3, v2")
    A(f"s_mul_i32 s85, s{sWAVE}, 320")
    A("v_add_u32 v2, s85, v2")
    A(f"s_mul_i32 s85, s{sA}, 40960")
    A(f"s_mul_i32 s86, s{sWAVE}, 10240")
    A("s_add_u32 s85, s85, s86")
    A("s_add_u32 s86, s85, 4096")
    A("s_add_u32 s87, s85, 8192")
    A("v_lshlrev_b32 v17, 2, v1")
    A(f"s_lshl_b32 s88, s{sA}, 7")
    A(f"s_add_u32 s88, s88, {WS_G:#x}")
    A("s_waitcnt lgkmcnt(0)")
    A("s_barrier")
    A(f"s_cmp_lg_u32 s{sWAVE}, 3")
    A("s_cbranch_scc1 ln_ng")
    A("ds_read_b32 v10, v17 offset:49152")
    A("s_waitcnt lgkmcnt(0)")
    A("s_mov_b32 exec_hi, 0")
    A(f"buffer_store_dword v10, v17, s[{sWS}:{sWS+3}], s88 offen sc1")
    A("s_mov_b32 exec_hi, -1")
    A.label("ln_ng")
    for t in range(10):
        A(f"ds_read_b64_tr_b16 {vr(D+4*t,2)}, v2 offset:{32*t}")
        A(f"ds_read_b64_tr_b16 {vr(D+4*t+2,2)}, v2 offset:{32*t + 16*1312}")
        if t == 6: A("s_waitcnt lgkmcnt(6)")
    for t in range(10):
        A(f"s_waitcnt lgkmcnt({min(2*(9-t), 6)})")
        A(f"buffer_store_dwordx4 {vr(D+4*t,4)}, v{vB0}, s[{sWS}:{sWS+3}], s{85 + t//4} offen offset:{1024*(t&3)} sc1")

def c_adv1(): return [f"s_add_u32 s{sC1}, s{sC1}, s{sCST}", f"s_cmp_eq_u32 s{sC1}, s{sCE1}", f"s_cselect_b32 s{sC1}, s{sCB1}, s{sC1}"]
def c_adv2(): return [f"s_add_u32 s{sC2}, s{sC2}, 40960", f"s_cmp_eq_u32 s{sC2}, s{sCE2}", f"s_cselect_b32 s{sC2}, s{sCB2}, s{sC2}"]
def c_wdma(slot):
    L = [[f"s_add_u32 m0, s{sCM0}, {4096*slot}"]]
    for q in range(4):
        L.append([f"buffer_load_dwordx4 v{vWS_+q}, s[{sCW}:{sCW+3}], s{sC1} offen offset:{1024*q} lds"])
    return L
def c_bload(slot, n):
    return f"buffer_load_dwordx4 {ar(BR+20*slot+4*n,4)}, v{vB0 if n < 4 else vB1}, s[{sWS}:{sWS+3}], s{sC2} offen offset:{1024*(n&3)} sc1"
def c_tr(slot, aset):
    return [f"ds_read_b64_tr_b16 {ar(AS+16*aset+4*t+2*j,2)}, v{vTR+t} offset:{4096*slot+2048*j}" for t in range(4) for j in range(2)]
def c_wring(A):
    for s in range(OPT["d"]):
        emit_dma_block(A, c_wdma(s))
        for x in c_adv1(): A(x)
def c_bring(A):
    for s in range(OPT["d"]):
        for n in range(5): A(c_bload(s, n))
        for x in c_adv2(): A(x)
def switch_to_fb(A):
    A(f"s_mov_b64 s[{sCW}:{sCW+1}], s[{sW2}:{sW2+1}]")
    A(f"s_mov_b64 s[{sCW+2}:{sCW+3}], s[{sW2+2}:{sW2+3}]")
    for i in range(4): A(f"v_mov_b32 v{vWS_+i}, v{vWS2+i}")
    A(f"s_mov_b32 s{sC1}, s{sF1}")
    A(f"s_mov_b32 s{sCB1}, s{sFB1}")
    A(f"s_mov_b32 s{sCE1}, s{sFE1}")
    A(f"s_mov_b32 s{sCST}, {32*4096}")

G1A = 112
def c_step(A, u, wait, doW, doB, doT, accf, w_is_A, drain=None, first=False, side=None, pre=[], late=None):
    DD = OPT["d"]
    A(f"s_waitcnt vmcnt({wait}) lgkmcnt(0)")
    for x in pre: A(x)
    tr = c_tr((u+1) & 3, (u+1) & 1) if doT else []
    mf = []
    for n in range(5):
        for t in range(4):
            w = ar(AS+16*(u & 1)+4*t, 4); b = ar(BR+20*u+4*n, 4); c = accf((t*5+n)*4)
            cin = "0" if first else c
            mf.append(f"v_mfma_f32_16x16x32_bf16 {c}, {w}, {b}, {cin}" if w_is_A else f"v_mfma_f32_16x16x32_bf16 {c}, {b}, {w}, {cin}")
    fill = [[] for _ in range(20)]
    sl = (u + DD) & 3
    wd = c_wdma(sl)
    post = []
    if doW:
        A(wd[0][0])
        for t in range(4): fill[t] += wd[1+t]
        fill[5 if drain else 12] += c_adv1()
    for k, x in enumerate(tr): fill[4+k].append(x)
    if doB:
        for n in range(5): fill[4*n+3].append(c_bload(sl, n))
        fill[19] += c_adv2()
    if side:
        per = -(-len(side) // 20)
        for g in range(20): fill[g] = side[g*per:(g+1)*per] + fill[g]
    if late:
        fill[13] += late[:9]
        post += late[9:]
    if drain:
        for n in range(3):
            for t in range(4): fill[4*(n+2)+t] += drain(n, t)
        post += ["s_nop 3"] + flat([drain(3, t) for t in range(4)]) + flat([drain(4, t) for t in range(4)])
    weave(A, mf, fill)
    for x in post: A(x)

def c_loop(A, pfx, nks, accf, w_is_A, isg1, drain):
    DD = OPT["d"]; W0 = 5 + 9*(DD-2)
    tail_next = isg1 and OPT["tailw"]
    A(".p2align 3")
    A.label(f"{pfx}_loop")
    if isg1 and OPT["lnmid"]:
        A(f"s_cmp_eq_u32 s{sCNT}, s{sPUB}")
        A("s_cbranch_scc1 g1_blk")
        A.label("g1_noblk")
    for u in range(4):
        c_step(A, u, W0, True, True, True, accf, w_is_A)
    if STAMPS:
        ng = nks//4 - 1
        i = _st["n"]; _st["n"] += ng; _st["names"] += [f"{pfx}_g{k}" for k in range(ng)]
        A("s_memtime s[100:101]")
        A("s_waitcnt lgkmcnt(0)")
        A(f"s_sub_u32 m0, {i + ng}, s{sCNT}")
        A("s_nop 0")
        A("v_writelane_b32 v47, s100, m0")
    A(f"s_sub_u32 s{sCNT}, s{sCNT}, 1")
    A(f"s_cmp_lg_u32 s{sCNT}, 0")
    A(f"s_cbranch_scc1 {pfx}_loop")
    seq = []
    for k in range(DD): seq += [("W", k)]*4 + [("B", k)]*5
    for u in range(4):
        need = max([i for i, (t, k) in enumerate(seq) if (t == "B" and k == u) or (t == "W" and k == u+1)])
        wait = len(seq) - 1 - need
        own = u < 4 - DD
        if isg1 and u == 4 - DD: switch_to_fb(A)
        nxt = tail_next and not own
        c_step(A, u, wait, own or nxt, own, u < 3, accf, w_is_A, drain if u == 3 else None)
        if own: seq += [("W", u+DD)]*4 + [("B", u+DD)]*5
        if OPT["otouch"] and not isg1 and u == 3 - DD:
            A(f"buffer_load_dword a255, v5, s[{sOUT}:{sOUT+3}], s95 offen" + (" nt" if OPT["otouch"] == 2 else ""))
            seq += [("O", 0)]
        elif nxt: seq += [("N", 0)]*4
    stamp(A, pfx + "_loopdone")

sFA1, sFA2, sFR = 54, 55, 94
sUS = 52
vGE = 224
def fa_params(A):
    A(f"s_and_b32 s{sFR}, s{sFD}, 3")
    A(f"s_lshl_b32 s{sFR}, s{sFR}, 1")
    A(f"s_and_b32 s89, s{sFS}, 7")
    A(f"s_add_u32 s{sFR}, s{sFR}, s89")
    A(f"s_mul_i32 s89, s{sFR}, 52")
    A("s_lshr_b32 s89, s89, 8")
    A("s_mul_i32 s89, s89, 5")
    A(f"s_sub_u32 s{sFR}, s{sFR}, s89")
    if OPT["arot"] == 0: A(f"s_mov_b32 s{sFR}, 0")
    if OPT["arot"] == 2:
        A(f"s_add_u32 s{sFR}, s{sFS}, s{sFD}")
        A(f"s_and_b32 s{sFR}, s{sFR}, 1")
        A(f"s_mul_i32 s{sFR}, s{sFR}, 3")
    A(f"s_mul_i32 s86, s{sWAVE}, 5")
    A(f"s_add_u32 s86, s86, s{sFR}")
    A(f"s_mul_i32 s{sFA1}, s{sFS}, {0 if OPT.get('same') else 20}")
    A(f"s_add_u32 s{sFA1}, s{sFA1}, s86")
    A(f"s_lshl_b32 s{sFA1}, s{sFA1}, 12")
    A(f"s_add_u32 s{sFA1}, s{sFA1}, {WS_PQ:#x}")
    A(f"s_mul_i32 s{sFA2}, s86, 40960")
    A(f"s_mul_i32 s89, s{sFD}, {0 if OPT.get('same') else 5120}")
    A(f"s_add_u32 s{sFA2}, s{sFA2}, s89")
    A(f"s_add_u32 s{sFA2}, s{sFA2}, {WS_M:#x}")
fa_b = lambda i: 0 if i == 0 else 112 + 36*(i-1)
def fa_ld(A, i):
    for st in range(4):
        A(f"buffer_load_dwordx4 {ar(fa_b(i)+4*st,4)}, v{vB0}, s[{sWS}:{sWS+3}], s{sFA1} offen offset:{1024*st} sc1")
    for n in range(5):
        A(f"buffer_load_dwordx4 {ar(fa_b(i)+16+4*n,4)}, v{vB0 if n < 4 else vB1}, s[{sWS}:{sWS+3}], s{sFA2} offen offset:{1024*(n&3)} sc1")
    if i < 4:
        A(f"s_add_u32 s{sFA1}, s{sFA1}, 4096")
        A(f"s_add_u32 s{sFA2}, s{sFA2}, 40960")
        A(f"s_add_u32 s{sFR}, s{sFR}, 1")
        A(f"s_cmp_eq_u32 s{sFR}, 5")
        A(f"s_cselect_b32 s86, {5*4096}, 0")
        A(f"s_cselect_b32 s89, {5*40960}, 0")
        A(f"s_sub_u32 s{sFA1}, s{sFA1}, s86")
        A(f"s_sub_u32 s{sFA2}, s{sFA2}, s89")

def g1_params(A):
    W, Rr = vGE, vGE + 4
    A("v_and_b32 v2, 15, v1")
    A("v_lshrrev_b32 v3, 4, v1")
    A("v_xor_b32 v4, v2, v3")
    A("v_lshlrev_b32 v4, 4, v4")
    A("v_lshl_add_u32 v4, v2, 8, v4")
    A(f"s_mul_i32 s85, s{sWAVE}, 20480")
    A(f"s_add_u32 s85, s85, {LDS_RED}")
    A(f"v_add_u32 v{W}, s85, v4")
    for t in range(1, 4): A(f"v_xor_b32 v{W+t}, {64*t}, v{W}")
    A(f"s_and_b32 s85, s{sWAVE}, 1")
    A(f"s_lshr_b32 s86, s{sWAVE}, 1")
    A("s_lshl_b32 s87, s85, 7")
    A("v_xor_b32 v4, s87, v4")
    A("s_lshl_b32 s87, s86, 12")
    A(f"s_add_u32 s87, s87, {LDS_RED}")
    A(f"v_add_u32 v{Rr}, s87, v4")
    A(f"v_xor_b32 v{Rr+1}, 64, v{Rr}")
    A(f"v_add_u32 v{Rr+2}, 40960, v{Rr}")
    A(f"v_add_u32 v{Rr+3}, 40960, v{Rr+1}")
    A(f"s_lshl_b32 s87, s{sG1F}, 1")
    A("s_add_u32 s87, s87, s85")
    A("s_lshl_b32 s23, s87, 6")
    A("v_lshlrev_b32 v12, 3, v3")
    A("s_mul_i32 s87, s87, 40")
    A(f"s_mul_i32 s88, s{sG1D}, 5")
    A("s_add_u32 s87, s87, s88")
    A("s_add_u32 s87, s87, s86")
    A("s_lshl_b32 s87, s87, 10")
    A(f"s_add_u32 s{sUS}, s87, {WS_U:#x}")
    A(f"s_add_u32 s{sUS+1}, s{sUS}, 4096")
    A(f"s_mov_b32 s90, {0xBDD2D3E8:#x}")
    A(f"s_mov_b32 s91, {0xBDD2D3E8:#x}")
    A(f"v_mov_b32 v{vGE+8}, {0xC0135761:#x}")
    A(f"v_mov_b32 v{vGE+9}, {0xC0135761:#x}")
    fa_params(A)
def b1_loads():
    return [[f"buffer_load_dwordx2 {vr(vGE+18+2*j,2)}, v12, s[{sB1}:{sB1+3}], s23 offen offset:{32*j}"] for j in range(2)]
def zero_acc(A):
    for i in range(0, 80, 2): A(f"v_mov_b64 {vr(ACC+i,2)}, 0")

def g1_phase(A):
    c_loop(A, "g1", 16, lambda o: ar(G1A+o, 4), True, True, lambda n, t: [f"ds_write_b128 v{vGE+t}, {ar(G1A+(t*5+n)*4,4)} offset:{4096*n}"])
    for j in range(2):
        for k in range(2):
            A(f"v_lshlrev_b32 v{vGE+10+4*j+2*k}, 16, v{vGE+18+2*j+k}")
            A(f"v_and_b32 v{vGE+11+4*j+2*k}, 0xffff0000, v{vGE+18+2*j+k}")
    A("s_waitcnt lgkmcnt(0)")
    A("s_barrier")
    stamp(A, "g1_red")
    if OPT["lnpost"] == 2:
        A("s_cmp_lt_u32 s82, 24")
        A("s_cbranch_scc1 g1_nw2")
        w2_prefetch(A, 24, list(range(3 - OPT["lnpn"], 3)))
        A.label("g1_nw2")
    A(poll_ld(15, 25))
    R = 128
    def rd(r):
        for j in range(2):
            for part in range(4):
                A(f"ds_read_b128 {vr(R+32*r+16*j+4*part,4)}, v{vGE+4+j+2*(part>>1)} offset:{8192*r + 20480*(part&1)}")
    def fin(r):
        b = R + 32*r
        for j in range(2):
            x = b + 16*j
            for i in (0, 2):
                A(f"v_pk_add_f32 {vr(x+i,2)}, {vr(x+i,2)}, {vr(x+4+i,2)}")
                A(f"v_pk_add_f32 {vr(x+8+i,2)}, {vr(x+8+i,2)}, {vr(x+12+i,2)}")
        for j in range(2):
            x = b + 16*j
            for i in (0, 2): A(f"v_pk_add_f32 {vr(x+i,2)}, {vr(x+i,2)}, {vr(vGE+10+4*j+i,2)}")
        for j in range(2):
            x = b + 16*j
            for i in (0, 2): A(f"v_pk_add_f32 {vr(x+i,2)}, {vr(x+i,2)}, {vr(x+8+i,2)}")
        E = [b + 16*j + i for j in range(2) for i in range(4)]
        E2 = E[::2]
        for x in E2: A(f"v_pk_mul_f32 {vr(x+4,2)}, {vr(x,2)}, {vr(x,2)}")
        for x in E2: A(f"v_pk_fma_f32 {vr(x+4,2)}, {vr(x+4,2)}, s[90:91], {vr(vGE+8,2)}")
        for x in E2: A(f"v_pk_mul_f32 {vr(x+4,2)}, {vr(x+4,2)}, {vr(x,2)}")
        for x in E: A(f"v_exp_f32 v{x+4}, v{x+4}")
        for x in E2: A(f"v_pk_add_f32 {vr(x+4,2)}, {vr(x+4,2)}, 1.0 op_sel_hi:[1,0]")
        for x in E: A(f"v_rcp_f32 v{x+4}, v{x+4}")
        for x in E2: A(f"v_pk_mul_f32 {vr(x,2)}, {vr(x,2)}, {vr(x+4,2)}")
        for j in range(2):
            x = b + 16*j
            A(f"v_cvt_pk_bf16_f32 v{b+8+2*j}, v{x}, v{x+1}")
            A(f"v_cvt_pk_bf16_f32 v{b+9+2*j}, v{x+2}, v{x+3}")
        A(f"buffer_store_dwordx4 {vr(b+8,4)}, v{vB0}, s[{sWS}:{sWS+3}], s{sUS if r < 2 else sUS+1} offen offset:{2048*(r&1)} sc1")
    rd(0)
    A("s_waitcnt lgkmcnt(4)")
    rd(1)
    A("s_waitcnt lgkmcnt(8)")
    fin(0)
    A(f"s_cmp_ge_u32 s{sWAVE}, 2")
    A("s_cbranch_scc1 g1_e1")
    rd(2)
    A("s_waitcnt lgkmcnt(8)")
    fin(1)
    A("s_waitcnt lgkmcnt(0)")
    fin(2)
    A("s_branch g1_e2")
    A.label("g1_e1")
    A("s_waitcnt lgkmcnt(0)")
    fin(1)
    A.label("g1_e2")
    stamp(A, "g1_st")
    A("s_waitcnt vmcnt(3)")
    A(f"s_cmp_lt_u32 s{sWAVE}, 2")
    A("s_cbranch_scc1 g1_q0")
    A("s_waitcnt vmcnt(2)")
    A.label("g1_q0")
    A(f"s_mov_b32 s{sQOK}, 0")
    A(f"v_cmp_ne_u32 vcc, s{sNON}, v{vPOLL}")
    A("s_cbranch_vccnz g1_q1")
    A(f"s_mov_b32 s{sQOK}, 1")
    fa_ld(A, 0)
    A("s_waitcnt vmcnt(9)")
    A("s_branch g1_q2")
    A.label("g1_q1")
    if OPT["tailw"]: A("s_waitcnt vmcnt(0)")
    else:
        c_wring(A)
        A(f"s_waitcnt vmcnt({4*OPT['d']})")
    A.label("g1_q2")
    A(f"s_mul_i32 s88, s{sG1D}, 24")
    A(f"s_add_u32 s88, s88, s{sG1F}")
    publish(A, "pub_u", FL_G1, 88, None)
    stamp(A, "g1_pub")
    if OPT["lnpost"] == 1:
        A("s_cmp_lt_u32 s82, 24")
        A("s_cbranch_scc1 g1_nw2")
        w2_prefetch(A, 24, list(range(3 - OPT["lnpn"], 3)))
        A.label("g1_nw2")
    if not OPT["tailw"]:
        A(f"s_cmp_eq_u32 s{sQOK}, 0")
        A("s_cbranch_scc1 g1_q3")
        c_wring(A)
        A("s_branch f_go")
        A.label("g1_q3")
    else:
        A(f"s_cmp_lg_u32 s{sQOK}, 0")
        A("s_cbranch_scc1 f_go")
    A(poll_ld(15, 25))
    A("s_waitcnt vmcnt(0)")
    poll_check(A, "pq", 15, 25)

def f_setup1():
    B = Asm()
    B("v_and_b32 v5, 15, v1")
    B("v_lshlrev_b32 v6, 2, v5")
    B(f"s_lshl_b32 s23, s{sFS}, 8")
    B(f"s_add_u32 s23, s23, {WS_G:#x}")
    for st in range(4):
        B(f"buffer_load_dword v{8+st}, v6, s[{sWS}:{sWS+3}], s23 offen offset:{64*st} sc1")
    B("v_lshlrev_b32 v6, 1, v5")
    B(f"s_lshl_b32 s23, s{sFS}, 7")
    B(f"s_cmp_eq_u32 s{sWAVE}, 0")
    B("s_cselect_b32 s23, s23, 0x40000000")
    for st in range(4):
        B(f"buffer_load_ushort v{29+st}, v6, s[{sB2}:{sB2+3}], s23 offen offset:{32*st}")
    return B.lines
def f_setup2():
    B = Asm()
    for st in range(4):
        B(f"v_sub_f32 v{8+st}, 1.0, v{8+st}")
        B(f"v_lshlrev_b32 v{ACC+st*20}, 16, v{29+st}")
        B(f"v_lshlrev_b32 v{ACC+st*20+1}, 16, v{29+st}")
        for k in range(2, 20, 2): B(f"v_mov_b64 {vr(ACC+st*20+k,2)}, {vr(ACC+st*20,2)}")
    B("v_min_u32 v12, 23, v1")
    B("v_lshlrev_b32 v12, 7, v12")
    B(f"s_mul_i32 s23, s{sFD}, {24*128}")
    B(f"s_add_u32 s23, s23, {FL_G1:#x}")
    B("v_and_b32 v5, 15, v1")
    B("v_lshrrev_b32 v6, 4, v1")
    B("v_mul_u32_u24 v4, 336, v5")
    B("v_lshl_add_u32 v4, v6, 4, v4")
    B(f"s_mul_i32 s85, s{sWAVE}, 21504")
    B(f"s_add_u32 s85, s85, {LDS_RED}")
    B("v_add_u32 v4, s85, v4")
    B(f"s_mul_i32 s85, s{sWAVE}, {16*336}")
    B(f"s_add_u32 s85, s85, {LDS_RED}")
    B(f"s_lshl_b32 s95, s{sFS}, 2")
    B(f"s_add_u32 s95, s95, s{sWAVE}")
    B(f"s_mul_i32 s95, s95, {16*1280}")
    B(f"s_mul_i32 s87, s{sFD}, 160")
    B("s_add_u32 s95, s95, s87")
    for r in range(5):
        B(f"v_add_u32 v5, {64*r}, v1")
        B("v_mul_u32_u24 v6, 3277, v5")
        B("v_lshrrev_b32 v6, 16, v6")
        B("v_mul_u32_u24 v7, 20, v6")
        B("v_sub_u32 v7, v5, v7")
        B(f"v_mul_u32_u24 v{16+r}, 336, v6")
        B(f"v_lshl_add_u32 v{16+r}, v7, 4, v{16+r}")
        B(f"v_add_u32 v{16+r}, s85, v{16+r}")
        B(f"v_mul_u32_u24 v{24+r}, 1280, v6")
        B(f"v_lshl_add_u32 v{24+r}, v7, 3, v{24+r}")
    if OPT["otouch"]:
        B("v_lshrrev_b32 v5, 1, v1")
        B("v_and_b32 v5, 15, v5")
        B("v_mul_u32_u24 v5, 1280, v5")
        B("v_and_b32 v6, 1, v1")
        B("v_mul_u32_u24 v6, 156, v6")
        B("v_add_u32 v5, v5, v6")
    return B.lines

def f_phase(A):
    ACA = 128
    A.label("f_entry")
    fa_ld(A, 0)
    A.label("f_go")
    fa_ld(A, 1)
    stamp(A, "f_qok")
    A(f"s_or_b32 s85, s2, s{sWAVE}")
    A("s_cmp_lg_u32 s85, 0")
    A("s_cbranch_scc1 f_nox")
    A(f"s_mov_b32 s85, {FL_X:#x}")
    flag_store(A, 85)
    A.label("f_nox")
    fb = fa_b
    def fam(i, side=[]):
        mf = []
        for n in range(5):
            for st in range(4):
                c = vr(ACA+(st*5+n)*4, 4)
                mf.append(f"v_mfma_f32_16x16x32_bf16 {c}, {ar(fb(i)+16+4*n,4)}, {ar(fb(i)+4*st,4)}, {c if i else 0}")
        fill = [[] for _ in range(20)]
        for k, g in enumerate(side): fill[(k*20)//len(side)] += g
        weave(A, mf, fill)
    def ldg(i):
        B = Asm(); fa_ld(B, i); g = [[x] for x in B.lines[:9]]; g[-1] += B.lines[9:]; return g
    D = OPT["d"]
    fa_ld(A, 2)
    A(f"s_mov_b32 s{sC2}, s{sF2}")
    A(f"s_mov_b32 s{sCB2}, s{sFB2}")
    A(f"s_mov_b32 s{sCE2}, s{sFE2}")
    stamp(A, "fa_i2")
    A("s_waitcnt vmcnt(18)")
    fam(0, ldg(3))
    stamp(A, "fa_m0")
    A("s_waitcnt vmcnt(18)")
    fam(1, [[poll_ld(12, 23)]] + ldg(4))
    stamp(A, "fa_m1")
    A("s_waitcnt vmcnt(19)")
    fam(2)
    stamp(A, "fa_m2")
    A("s_waitcnt vmcnt(9)")
    stamp(A, "fa_s3")
    poll_check(A, "pu", 12, 23)
    stamp(A, "f_uok")
    br = []
    for sl in range(D):
        br += [[c_bload(sl, n)] for n in range(5)]; br[-1] += c_adv2()
    fam(3, br)
    A(f"s_waitcnt vmcnt({5*D})")
    fam(4, [[]]*3 + [[x] for x in c_tr(0, 0)] + [[]]*5)
    A(f"s_waitcnt vmcnt({5 if D == 2 else 10})")
    stamp(A, "fb_first")
    def drain(n, st):
        b = (st*5+n)*4
        return [f"v_fma_f32 v{ACA+b+i}, v{ACC+b+i}, v{8+st}, v{ACA+b+i}" for i in range(4)] + [f"ds_write_b128 v4, {vr(ACA+b,4)} offset:{st*16*336 + 64*n}"]
    A(f"s_mov_b32 s{sCNT}, 2")
    c_loop(A, "fb", 12, lambda o: vr(ACC+o, 4), False, False, drain)
    A("s_waitcnt lgkmcnt(0)")
    A("s_barrier")
    stamp(A, "f_red")
    R = ACC
    def rd(r):
        for part in range(4):
            A(f"ds_read_b128 {vr(R+16*r+4*part,4)}, v{16+r} offset:{21504*part}")
    rd(0); rd(1); rd(2)
    for r in range(5):
        A(f"s_waitcnt lgkmcnt({8 if r < 3 else 4*(4-r)})")
        b = R + 16*r
        for i in (0, 2):
            A(f"v_pk_add_f32 {vr(b+i,2)}, {vr(b+i,2)}, {vr(b+4+i,2)}")
            A(f"v_pk_add_f32 {vr(b+8+i,2)}, {vr(b+8+i,2)}, {vr(b+12+i,2)}")
        if r + 3 < 5: rd(r+3)
        for i in (0, 2): A(f"v_pk_add_f32 {vr(b+i,2)}, {vr(b+i,2)}, {vr(b+8+i,2)}")
        A(f"v_cvt_pk_bf16_f32 v{b}, v{b}, v{b+1}")
        A(f"v_cvt_pk_bf16_f32 v{b+1}, v{b+2}, v{b+3}")
        A(f"buffer_store_dwordx2 {vr(b,2)}, v{24+r}, s[{sOUT}:{sOUT+3}], s95 offen" + ["", " nt", " sc1", " sc0 sc1", " sc1 nt", " sc0 nt", " sc0 sc1 nt"][OPT["ost"]])

def kd(name):
    return f""".section .rodata,"a"
.p2align 6
.amdhsa_kernel {name}
  .amdhsa_next_free_vgpr 512
  .amdhsa_next_free_sgpr 102
  .amdhsa_accum_offset 256
  .amdhsa_group_segment_fixed_size 0
  .amdhsa_kernarg_size 96
  .amdhsa_user_sgpr_count 2
  .amdhsa_user_sgpr_kernarg_segment_ptr 1
  .amdhsa_system_sgpr_workgroup_id_x 1
.end_amdhsa_kernel
"""

def gen():
    hdr = open("cdna_kernels/" + NAME + ".s.ref").read().split("; Override")[0]
    hdr += f"; @launch grid=(256,1,1) block=(256,1,1) lds={LDS_BYTES}\n"
    hdr += '.amdgcn_target "amdgcn-amd-amdhsa--gfx950"\n'
    A = Asm()
    K = NAME + "_kernel"
    A(".text"); A(f".globl {K}"); A(".p2align 8"); A(f".type {K},@function"); A.label(K)
    prologue(A)
    A("s_cmp_ge_u32 s82, 16"); A("s_cbranch_scc1 r_notkv")
    A("s_and_b32 s85, s82, 3")
    A("s_lshl_b32 s86, s83, 2")
    A(f"s_add_u32 s{sA}, s85, s86")
    A("s_lshr_b32 s85, s82, 2")
    A("s_lshl_b32 s86, s84, 2")
    A(f"s_add_u32 s{sBp}, s85, s86")
    qkv_setup(A, False)
    A("s_waitcnt lgkmcnt(0)"); srds(A, ["X", "W"])
    stamp(A, "kv_pre")
    def mid(A):
        params1(A); srds(A, ["WS", "W1", "B1", "W2", "B2", "OUT"]); cw_init(A)
        if not OPT["defer"]:
            params2(A); g1_params(A); mid3(A)
    def mid3(A):
        kv_esetup(A)
        A("s_lshl_b32 s85, s81, 4")
        A("s_add_u32 s85, s85, s82")
        A("s_lshl_b32 s85, s85, 2")
        A(f"s_add_u32 s85, s85, s{sWAVE}")
        A("s_lshl_b32 s27, s85, 13")
        A(f"s_lshl_b32 s{sPUB}, s{sA}, 3")
        A(f"s_add_u32 s{sPUB}, s{sPUB}, s{sBp}")
        A(f"s_lshl_b32 s{sPUB}, s{sPUB}, 7")
        A(f"s_add_u32 s{sPUB}, s{sPUB}, {FL_KV:#x}")
    D = OPT["d"]; EW = 5 if D == 2 else 10
    assert D == 3
    def wst(k):
        g = c_wdma(k); g[-1] = g[-1] + c_adv1(); return g
    def bst(k):
        g = [[c_bload(k, n)] for n in range(5)]; g[-1] = g[-1] + c_adv2(); return g
    E = kv_estream()
    g1acc = lambda o: ar(G1A+o, 4)
    def pubkv(A, wait):
        A(f"s_waitcnt vmcnt({wait})")
        A("s_barrier")
        A(f"s_cmp_lg_u32 s{sWAVE}, 0")
        A("s_cbranch_scc1 g1_pub1")
        flag_store(A, sPUB)
        A.label("g1_pub1")
        stamp(A, "kv_pub")
    nin = OPT["nbin"]
    ex = {8: ([[poll_ld(vPO, 24)]] + b1_loads() + wst(0) + wst(1), 9), 9: (wst(2), 8)}
    d0 = OPT["defer"]
    out_kv = qkv_gemm(A, "kv", False, mid, ex, {9: lambda A: poll_check(A, "pln", vPO, 24)},
                      [(d0, params2), (d0+1, g1_params), (d0+2, mid3)] if d0 else [])
    if OPT["kvw2"]:
        A(f"buffer_load_dword a255, v15, s[{sW2}:{sW2+3}], s27 offen")
    for m in qkv_mfmas(FB_, False): A(m)
    stamp(A, "kv_loopdone")
    Bs = bst(0) + bst(1) + bst(2)
    body = E[0] + E[1]
    sp = min(26, (len(body) - 30 - OPT["b0"]) // max(nin, 1))
    pos = [len(body) - 30 - sp*(nin - 1 - k) for k in range(nin)]
    assert not pos or pos[0] >= 0
    for i, x in enumerate(body):
        if i in pos:
            for y in Bs[pos.index(i)]: A(y)
        A(x)
    A("s_waitcnt lgkmcnt(0)")
    A("s_barrier")
    for x in E[2] + E[3]: A(x)
    stamp(A, "kv_st")
    for g in Bs[nin:]:
        for y in g: A(y)
    seq = ["W"]*12 + [f"B{k//5}" for k in range(nin)] + ["S"]*4 + [f"B{k//5}" for k in range(nin, 15)]
    def need(tags): return len(seq) - 1 - max(i for i, t in enumerate(seq) if t in tags)
    A(f"s_waitcnt vmcnt({need(['W'])})")
    for x in c_tr(0, 0): A(x)
    if OPT["pubat"] == 0: pubkv(A, need(["S"]))
    for u in range(4):
        c_step(A, u, min(need([f"B{u}", f"W{u+1}", "W"]), 63), True, True, True, g1acc, True, first=(u == 0),
               pre=f_setup1() if u == 1 else [], side=f_setup2() if u == 3 else None)
        if u == 1: seq += ["G"]*8
        seq += [f"W{u+3}"]*4 + [f"B{u+3}"]*5
        stamp(A, f"g1_s{u}")
        if OPT["pubat"] == u + 1: pubkv(A, need(["S"]))
    A(f"s_mov_b32 s{sCNT}, 2")
    g1_phase(A)
    f_phase(A)
    stamp_flush(A)
    A.label("k_end"); A("s_endpgm")
    out_kv(A)
    if OPT["lnmid"]:
        A.label("g1_blk")
        w2_prefetch(A, 24, list(range(3 - OPT["lnpn"], 3)))
        A("s_branch g1_noblk")
    A.label("r_notkv")
    if OPT["pf_code"]:
        A("s_getpc_b64 s[86:87]")
        A.label("pc_here")
        A(f"s_sub_u32 s86, s86, pc_here-{K}")
        A("s_subb_u32 s87, s87, 0")
        A("s_sub_u32 s85, s82, 16")
        A("s_lshl_b32 s85, s85, 2")
        A(f"s_add_u32 s85, s85, s{sWAVE}")
        A("s_lshl_b32 s85, s85, 3")
        A("v_add_lshl_u32 v2, v1, s85, 7")
        A(f"v_min_u32 v2, k_codeend-{K}-4, v2")
        A("s_mov_b64 exec, 0xff")
        A("global_load_dword a255, v2, s[86:87]")
        A("s_mov_b64 exec, -1")
    A("s_cmp_lt_u32 s82, 24"); A("s_cbranch_scc1 r_q")
    A("s_sub_u32 s87, s82, 24")
    A("s_lshl_b32 s85, s81, 3")
    A(f"s_add_u32 s{sA}, s85, s87")
    aux = " nt" if OPT.get("nt") else ""
    w1l = lambda k: f"buffer_load_dword a255, v22, s[{sW1}:{sW1+3}], s{26 + k//3} offen offset:{1024*(k%3)}{aux}"
    def after(A):
        params1(A); srds(A, ["WS", "W1", "B1", "W2", "B2", "OUT"]); cw_init(A); params2(A); g1_params(A)
        w1_setup(A, 24, 22)
        for k in range(OPT["early"] if OPT["pf_w1"] else 0): A(w1l(k))
    ln_role(A, after, OPT["early"] if OPT["pf_w1"] else 0)
    publish(A, "pub_ln", FL_LN, sA)
    stamp(A, "ln_pub")
    if OPT["tlb"] == 2:
        A("v_lshlrev_b32 v2, 20, v1")
        A("s_mov_b64 exec, 0x3ff")
        A(f"buffer_load_dword a255, v2, s[{sWS}:{sWS+3}], 0 offen sc1")
        A(f"buffer_load_dword a255, v2, s[{sOUT}:{sOUT+3}], 0 offen")
        A(f"buffer_load_dword a255, v2, s[{sB2}:{sB2+3}], 0 offen")
        A("s_mov_b64 exec, -1")
    for k in range(OPT["early"], (3 - OPT["qw1n"]) if (OPT["pf_w1"] and not OPT["qfirst"]) else 0): A(w1l(k))
    def pf_h():
        A(poll_ld(vPO, 24))
        A("v_lshrrev_b32 v2, 5, v1")
        A("v_mul_u32_u24 v2, 40960, v2")
        A("v_and_b32 v3, 31, v1")
        A("v_lshl_add_u32 v2, v3, 7, v2")
        A("s_sub_u32 s85, s82, 24")
        A("s_lshl_b32 s85, s85, 2")
        A(f"s_add_u32 s85, s85, s{sWAVE}")
        A(f"s_mul_i32 s87, s85, {2*40960}")
        A("s_mul_i32 s86, s84, 20480")
        A("s_add_u32 s87, s87, s86")
        A("s_waitcnt vmcnt(0)")
        poll_check(A, "plnh", vPO, 24)
        A("s_barrier")
        for i in range(5):
            A(f"buffer_load_dword a255, v2, s[{sWS}:{sWS+3}], s87 offen sc1")
            A("s_add_u32 s87, s87, 4096")
    for c in str(OPT["lnseq"]):
        if c == "1" and OPT["pf_w1"]:
            for k in range(3, 6): A(w1l(k))
        if c == "6":
            for k in range(3): A(w1l(k))
        if c == "2": pf_h()
        if c == "3": w2_prefetch(A, 24, [0])
        if c == "7": w2_prefetch(A, 24, [2])
        if c == "4": w2_prefetch(A, 24, [0, 1])
        if c == "5": w2_prefetch(A, 24, [0, 1, 2])
    stamp(A, "ln_pf")
    for g in b1_loads(): A(g[0])
    A(poll_ld(vPO, 24))
    c_wring(A)
    A(f"s_waitcnt vmcnt({4*OPT['d']})")
    poll_check(A, "pln2", vPO, 24)
    A("s_barrier")
    for x in f_setup1(): A(x)
    c_bring(A)
    for i in range(80): A(f"v_accvgpr_write_b32 a{G1A+i}, 0")
    A(f"s_waitcnt vmcnt({5*D})")
    for x in f_setup2(): A(x)
    A(f"s_mov_b32 s{sCNT}, 3")
    A(f"s_mov_b32 s{sPUB}, {OPT['lnmid']}")
    A(f"s_waitcnt vmcnt({EW})")
    for x in c_tr(0, 0): A(x)
    stamp(A, "ln_ready")
    A("s_branch g1_loop")
    A.label("r_q")
    A("s_sub_u32 s87, s82, 16")
    A("s_and_b32 s85, s87, 3")
    A("s_lshl_b32 s86, s83, 2")
    A(f"s_add_u32 s{sA}, s85, s86")
    A("s_lshr_b32 s85, s87, 2")
    A("s_lshl_b32 s86, s84, 1")
    A(f"s_add_u32 s{sBp}, s85, s86")
    A(f"s_lshl_b32 s{sU}, s{sBp}, 2")
    A(f"s_and_b32 s85, s{sA}, 3")
    A(f"s_add_u32 s{sU}, s{sU}, s85")
    A(f"s_lshr_b32 s{sNR}, s{sA}, 2")
    def midq(A):
        params1(A); srds(A, ["WS", "W1", "WO", "W2", "B2", "OUT"]); cw_init(A); params2(A)
        w1_setup(A, 16, 12)
        if OPT["qw1"] == 0: q_pf_only(A)
        if not OPT["qdefer"]: q_setup(A)
    def qs(lo, hi):
        def f(A):
            B = Asm(); q_setup(B)
            assert len(B.lines) > 150
            for x in B.lines[lo:hi]: A(x)
        return f
    def qtouch(A):
        A("s_mov_b32 exec_lo, 0xffff03ff")
        A("s_mov_b32 exec_hi, 0")
        A(f"buffer_load_dword a255, v{vT1}, s[{sWS}:{sWS+3}], 0 offen sc1")
        A("s_mov_b64 exec, -1")
    qkv_setup(A, True)
    A("s_waitcnt lgkmcnt(0)"); srds(A, ["X", "W"])
    qb = [(max(OPT["qw1"], 1), q_loop_pf)]
    if OPT["qdefer"]:
        def both(A): q_loop_pf(A); q_setup(A); qtouch(A)
        qb = [(OPT["qw1"], both)]
    out_q = qkv_gemm(A, "q", True, midq, q_extras(), {9: lambda A: poll_check(A, "pln3", vPO, 24)}, qb)
    q_epilogue(A)
    A("s_lshl_b32 s88, s81, 3")
    A("s_add_u32 s88, s88, s82")
    A("s_sub_u32 s88, s88, 16")
    publish(A, "pub_q", FL_Q, 88)
    stamp(A, "q_pub")
    if OPT["qw2b"]: w2_prefetch(A, 16, list(range(3 - OPT["qw2b"], 3)))
    for x in f_setup1(): A(x)
    switch_to_fb(A)
    c_wring(A)
    A(poll_ld(vPO, 25))
    A(f"s_waitcnt vmcnt({4*D + 1})")
    for x in f_setup2(): A(x)
    A("s_waitcnt vmcnt(0)")
    poll_check(A, "pq2", vPO, 25)
    A("s_barrier")
    stamp(A, "q_allq")
    if OPT["pf_pq"]:
        A("s_sub_u32 s88, s82, 16")
        A("s_lshl_b32 s88, s88, 2")
        A(f"s_add_u32 s88, s88, s{sWAVE}")
        A("v_lshlrev_b32 v2, 7, v1")
        A(f"s_mul_i32 s85, s83, {8*81920}")
        A(f"s_mul_i32 s86, s88, {160*128}")
        A("s_add_u32 s85, s85, s86")
        A(f"s_add_u32 s85, s85, {WS_PQ:#x}")
        for i in range(3):
            if i == 2: A("s_mov_b32 exec_hi, 0")
            A(f"buffer_load_dword a255, v2, s[{sWS}:{sWS+3}], s85 offen sc1")
            A("s_add_u32 s85, s85, 8192")
        A("s_mov_b32 exec_hi, -1")
        A("s_cmp_ge_u32 s88, 20")
        A("s_cbranch_scc1 q_pfd")
        A("s_mul_i32 s85, s88, 40960")
        A("s_mul_i32 s86, s84, 20480")
        A("s_add_u32 s85, s85, s86")
        A(f"s_add_u32 s85, s85, {WS_M:#x}")
        for i in range(3):
            if i == 2: A("s_mov_b32 exec_hi, 0")
            A(f"buffer_load_dword a255, v2, s[{sWS}:{sWS+3}], s85 offen sc1")
            A("s_add_u32 s85, s85, 8192")
        A("s_mov_b32 exec_hi, -1")
        A.label("q_pfd")
    fa_params(A)
    A("s_branch f_entry")
    out_q(A)
    A.label("k_codeend")
    for i, l in enumerate(A.lines):
        if l.startswith("v_mad_i32_i24 v4, v3, -20"):
            A.lines[i] = l.replace("-20", "s89")
        if l == "s_movk_i32 s88, 3840":
            A.lines[i] = "s_movk_i32 s89, -20"
    if OPT["align"]:
        A.lines, nc, nn = align(A.lines, OPT["align"])
        print("aligned: widened", nc, "nops", nn, file=sys.stderr)
    nb = check(A.lines)
    print("hazards:", nb, file=sys.stderr)
    return hdr + A.text() + kd(K)

if __name__ == "__main__":
    out = sys.argv[1]
    for a in sys.argv[2:]:
        if a == "st": STAMPS = True
        else:
            k, v = a.split("="); OPT[k] = int(v)
    open(out, "w").write(gen())
    if STAMPS: json.dump(_st["names"], open(out + ".names", "w"))
```

```python
import sys, json
from asmlib import Asm, vr, ar, sr, check, align

NAME = "gated_mix__linear_attn_block__mixer_token_mlp__prompt"
WS_H   = 0x000000
WS_U   = 0x280000
WS_PQ  = 0x460000
WS_M   = 0x6E0000
WS_KVP = 0x7A8000
WS_ZP  = 0x880000
WS_G   = 0x972000
WS_FLAG = 0x974000
FL_X = WS_FLAG
FL_LN = WS_FLAG + 128
FL_KV = FL_LN + 64*128
FL_Q = FL_KV + 128*128
FL_G1 = FL_Q + 64*128
WS_SIZE = FL_G1 + 192*128
WS_STAMP = 0x1000000

sX, sW, sWS, sW1, sW2, sOUT, sWO, sB1, sB2, sGW = 28, 32, 36, 40, 44, 48, 52, 56, 60, 64
sWAVE = 68
sA, sBp = 69, 70
sG1D, sG1F, sFS, sFD = 71, 72, 73, 74
sCNT, sO1, sO2, sRD, sWR, sM0 = 75, 76, 77, 78, 79, 80
sEX, sMK = 90, 92
sU, sNR = 94, 95
sWR_, sWC_ = 96, 97
sPUB = 3
sQOK = 99
sM1 = 98
sC1, sC2, sCM0, sCB1, sCE1, sCB2, sCE2, sCST, sCW, sNON = 4, 5, 6, 7, 8, 9, 10, 11, 12, 16
sF1, sFB1, sFE1, sF2, sFB2, sFE2 = 17, 18, 19, 20, 21, 22
LOG2E = 0x3FB8AA3B
EPS6 = 0x358637BD
LDS_RED = 65536
LDS_BYTES = 163840
vXO, vWO_, vXB, vCUR = 16, 20, 25, 29
vWS_, vB0, vB1, vTR, vWS2 = 33, 37, 38, 39, 43
ACC = 48
FA_, FB_ = 112, 148
BR, AS = 0, 80
STG = 36864
vPOLL, vPO = 14, 13
OPT = {"rot": 1, "pf_w1": 1, "pf_w2": 1, "pf_code": 1, "pf_pq": 0, "sleep": 1, "early": 1, "d": 3, "qpoll": 2, "nbin": 10, "cv": 0, "lnseq": 15, "qw2": 0, "qw2b": 0, "ntq": 0, "qw1": 1, "qw1n": 2, "kvr": 1, "touch": 1, "perm": 0, "otouch": 0, "rdb": 4, "w2c": 1, "qfirst": 0, "rfd": 3, "tailw": 1, "pubat": 1, "kvw2": 0, "b0": 0, "qw1b": 0, "rfb": 4, "frot": 2, "arot": 2, "fmap": 1, "qrot": 1, "grot": 4, "lnpost": 0, "lnpn": 3, "align": 5, "defer": 0, "qdefer": 0, "lnmid": 0, "ost": 1, "tlb": 0, "pf0": 8, "xfirst": 1, "fsplit": 1, "xw": 0, "xwd": 0, "xsp": 6}
STAMPS = False
_st = {"n": 0, "names": []}

def stamp(A, name, real=False):
    if not STAMPS: return
    i = _st["n"]; _st["n"] += 1; _st["names"].append(name)
    A("s_memrealtime s[100:101]" if real else "s_memtime s[100:101]")
    A("s_waitcnt lgkmcnt(0)")
    A(f"v_writelane_b32 v47, s100, {i}")
def stamp_flush(A):
    if not STAMPS: return
    stamp(A, "end"); stamp(A, "endreal", True)
    A("s_lshl_b32 s100, s2, 2")
    A(f"s_add_u32 s100, s100, s{sWAVE}")
    A("s_lshl_b32 s100, s100, 8")
    A(f"s_add_u32 s100, s100, {WS_STAMP:#x}")
    A(f"s_mov_b32 s{sWS+2}, 0x2000000")
    A("v_lshlrev_b32 v46, 2, v1")
    A(f"buffer_store_dword v47, v46, s[{sWS}:{sWS+3}], s100 offen")

def srds(A, which):
    tab = {"X": (sX, 4, 2048*1280), "W": (sW, 6, 640*3840), "WO": (sWO, 8, 640*1280), "W1": (sW1, 12, 2048*3072), "B1": (sB1, 14, 3072),
           "W2": (sW2, 16, 1536*4096), "B2": (sB2, 18, 4096), "GW": (sGW, 20, 1280), "OUT": (sOUT, 22, 2048*1280), "WS": (sWS, 26, WS_SIZE)}
    for w in which:
        base, ptr, size = tab[w]
        A(f"s_mov_b64 s[{base}:{base+1}], s[{ptr}:{ptr+1}]")
        A(f"s_mov_b32 s{base+2}, {size:#x}")
        A(f"s_mov_b32 s{base+3}, 0x20000")

def flat(groups):
    out = []
    for g in groups: out += g if isinstance(g, list) else [g]
    return out

def weave(A, mf, fill, first=0):
    for i, m in enumerate(mf):
        A(m)
        if i < len(fill):
            for x in fill[i]: A(x)
    for g in fill[len(mf):]:
        for x in g: A(x)

def poll_off(A, dst, nper, total_waves_split=True):
    A(f"v_and_b32 v{dst}, {nper-1}, v1")
    A(f"s_mul_i32 s85, s{sWAVE}, {nper}")
    A(f"v_add_lshl_u32 v{dst}, v{dst}, s85, 7")
def poll_ld(vo, so):
    return f"buffer_load_dword v{vPOLL}, v{vo}, s[{sWS}:{sWS+3}], s{so} offen sc1"
def poll_check(A, name, vo, so):
    A(f"v_cmp_ne_u32 vcc, s{sNON}, v{vPOLL}")
    A(f"s_cbranch_vccz {name}_ok")
    A(f"s_mov_b32 s{sM1}, 0")
    A.label(f"{name}_spin")
    A(f"s_add_u32 s{sM1}, s{sM1}, 1")
    A(f"s_cmp_gt_u32 s{sM1}, 0x8000")
    A(f"s_cbranch_scc1 {name}_ok")
    A(f"s_sleep {OPT['sleep']}")
    A(poll_ld(vo, so))
    A("s_waitcnt vmcnt(0)")
    A(f"v_cmp_ne_u32 vcc, s{sNON}, v{vPOLL}")
    A(f"s_cbranch_vccnz {name}_spin")
    A.label(f"{name}_ok")
def flag_store(A, so):
    A(f"v_mov_b32 v2, s{sNON}")
    A("v_lshlrev_b32 v3, 2, v1")
    A("s_mov_b32 exec_hi, 0")
    A(f"buffer_store_dword v2, v3, s[{sWS}:{sWS+3}], s{so} offen sc1")
    A("s_mov_b32 exec_hi, -1")
def publish(A, name, base, sidx, wait=0):
    if wait is not None: A(f"s_waitcnt vmcnt({wait})")
    A("s_barrier")
    A(f"s_cmp_lg_u32 s{sWAVE}, 0")
    A(f"s_cbranch_scc1 {name}_np")
    A(f"s_lshl_b32 s85, s{sidx}, 7")
    A(f"s_add_u32 s85, s85, {base:#x}")
    flag_store(A, 85)
    A.label(f"{name}_np")

def prologue(A):
    A("s_cmp_ge_u32 s2, 256")
    A("s_cbranch_scc1 k_end")
    if STAMPS: A("v_mov_b32 v47, 0")
    stamp(A, "startreal", True); stamp(A, "start")
    A("s_load_dwordx16 s[4:19], s[0:1], 0")
    A("s_load_dwordx8 s[20:27], s[0:1], 64")
    if OPT["pf0"]:
        A("s_getpc_b64 s[86:87]")
        A("v_lshlrev_b32 v2, 7, v0")
        A(f"s_mov_b64 exec, {(1 << OPT['pf0']) - 1:#x}")
        A("global_load_dword a255, v2, s[86:87] offset:128")
        A("s_mov_b64 exec, -1")
    A("v_lshrrev_b32 v2, 6, v0")
    A("v_and_b32 v1, 63, v0")
    A(f"v_readfirstlane_b32 s{sWAVE}, v2")
    A("s_and_b32 s81, s2, 7")
    A("s_lshr_b32 s82, s2, 3")
    A("s_lshr_b32 s83, s81, 1")
    A("s_and_b32 s84, s81, 1")

def params1(A):
    A(f"s_add_u32 s86, s26, {FL_X:#x}")
    A("s_addc_u32 s87, s27, 0")
    A("s_load_dword s3, s[86:87], 0")
    A("s_lshr_b32 s85, s82, 2")
    A("s_lshl_b32 s88, s83, 3")
    if OPT["perm"]: A("s_xor_b32 s85, s85, 7")
    A(f"s_add_u32 s{sFS}, s85, s88")
    A("s_and_b32 s85, s82, 3")
    A("s_lshl_b32 s88, s84, 2")
    A(f"s_add_u32 s{sFD}, s85, s88")
    if OPT["fmap"]:
        A("s_lshr_b32 s85, s82, 3")
        if OPT["fmap"] == 1:
            A("s_lshl_b32 s85, s85, 3")
            A(f"s_add_u32 s{sFS}, s85, s81")
        else:
            A(f"s_lshl_b32 s{sFS}, s81, 2")
            A(f"s_add_u32 s{sFS}, s{sFS}, s85")
        A(f"s_and_b32 s{sFD}, s82, 7")
    A("s_sub_u32 s85, s82, 8")
    A("s_cmp_lt_u32 s82, 16")
    A("s_cselect_b32 s85, s82, s85")
    A("s_and_b32 s89, s85, 3")
    A(f"s_add_u32 s{sG1D}, s89, s88")
    A("s_lshr_b32 s85, s85, 2")
    A("s_lshl_b32 s88, s85, 2")
    A(f"s_add_u32 s{sG1F}, s83, s88")
    A("s_lshr_b32 s88, s85, 2")
    A("s_lshl_b32 s85, s85, 1")
    A("s_add_u32 s85, s85, s88")
    A("s_lshl_b32 s85, s85, 1")
    if OPT["rfb"] == 0: A("s_mov_b32 s85, 0")
    A(f"s_mul_i32 s89, s89, {OPT['rdb']}")
    A("s_add_u32 s85, s85, s89")
    if OPT["grot"] == 2: A("s_lshl_b32 s85, s85, 1")
    A(f"s_and_b32 s99, s85, {(15 if OPT['grot'] == 4 else 8) if OPT['grot'] else 0}")

def cw_init(A):
    A(f"s_mov_b64 s[{sCW}:{sCW+1}], s[{sW1}:{sW1+1}]")
    A(f"s_mov_b64 s[{sCW+2}:{sCW+3}], s[{sW1+2}:{sW1+3}]")
def params2(A):
    if OPT.get("same"):
        for k, r in enumerate((sG1D, sG1F, sFS, sFD)):
            A(f"s_mov_b32 s{100 if not STAMPS else 64+k}, s{r}")
            A(f"s_mov_b32 s{r}, 0")
        params2_(A)
        for k, r in enumerate((sG1D, sG1F, sFS, sFD)): A(f"s_mov_b32 s{r}, s{64+k}")
    else: params2_(A)
def params2_(A):
    A(f"s_mul_i32 s{sCB1}, s{sWAVE}, {16*32*3072}")
    A(f"s_lshl_b32 s85, s{sG1F}, 7")
    A(f"s_add_u32 s{sCB1}, s{sCB1}, s85")
    A(f"s_add_u32 s{sCE1}, s{sCB1}, {16*32*3072}")
    A(f"s_mul_i32 s85, s99, {32*3072}")
    A(f"s_add_u32 s{sC1}, s{sCB1}, s85")
    A(f"s_mul_i32 s{sCB2}, s{sWAVE}, {16*40960}")
    A(f"s_mul_i32 s85, s{sG1D}, 5120")
    A(f"s_add_u32 s{sCB2}, s{sCB2}, s85")
    A(f"s_add_u32 s{sCE2}, s{sCB2}, {16*40960}")
    A(f"s_mul_i32 s85, s99, 40960")
    A(f"s_add_u32 s{sC2}, s{sCB2}, s85")
    A(f"s_mov_b32 s{sCST}, {32*3072}")
    A(f"s_lshl_b32 s{sCM0}, s{sWAVE}, 14")
    A("s_and_b32 s85, s82, 3")
    A(f"s_mul_i32 s85, s85, {OPT['rfd']}")
    A("s_lshr_b32 s86, s82, 2")
    A("s_mul_i32 s86, s86, 3")
    A("s_lshr_b32 s86, s86, 1")
    A("s_add_u32 s85, s85, s86")
    A("s_cmp_ge_u32 s85, 12")
    A("s_cselect_b32 s86, 12, 0")
    A("s_sub_u32 s85, s85, s86")
    if OPT["frot"] == 0: A("s_mov_b32 s85, 0")
    if OPT["frot"] == 2:
        A(f"s_add_u32 s85, s{sFS}, s{sFD}")
        A("s_and_b32 s85, s85, 1")
        A("s_mul_i32 s85, s85, 6")
    if OPT["frot"] == 3:
        A(f"s_add_u32 s85, s{sFS}, s{sFD}")
        A("s_mul_i32 s86, s85, 86")
        A("s_lshr_b32 s86, s86, 8")
        A("s_mul_i32 s86, s86, 3")
        A("s_sub_u32 s85, s85, s86")
        A("s_lshl_b32 s85, s85, 2")
    A(f"s_mul_i32 s{sFB1}, s{sWAVE}, {12*32*4096}")
    A(f"s_lshl_b32 s86, s{sFS}, 7")
    A(f"s_add_u32 s{sFB1}, s{sFB1}, s86")
    A(f"s_add_u32 s{sFE1}, s{sFB1}, {12*32*4096}")
    A(f"s_lshl_b32 s86, s85, 17")
    A(f"s_add_u32 s{sF1}, s{sFB1}, s86")
    A(f"s_mul_i32 s{sFB2}, s{sWAVE}, {12*40960}")
    A(f"s_mul_i32 s86, s{sFD}, 5120")
    A(f"s_add_u32 s{sFB2}, s{sFB2}, s86")
    A(f"s_add_u32 s{sFB2}, s{sFB2}, {WS_U:#x}")
    A(f"s_add_u32 s{sFE2}, s{sFB2}, {12*40960}")
    A(f"s_mul_i32 s86, s85, 40960")
    A(f"s_add_u32 s{sF2}, s{sFB2}, s86")
    A(f"v_lshlrev_b32 v{vB0}, 4, v1")
    A(f"v_add_u32 v{vB1}, 4096, v{vB0}")
    A("v_lshrrev_b32 v2, 2, v1")
    A("v_lshrrev_b32 v3, 1, v2")
    A("v_and_b32 v3, 3, v3")
    A("v_lshlrev_b32 v2, 7, v2")
    A("v_lshl_add_u32 v2, v3, 5, v2")
    A("v_and_b32 v3, 3, v1")
    A("v_lshl_add_u32 v2, v3, 3, v2")
    A(f"v_add_u32 v{vTR}, s{sCM0}, v2")
    for t in range(1, 4): A(f"v_xor_b32 v{vTR+t}, {32*t}, v{vTR}")
    A("v_lshrrev_b32 v2, 3, v1")
    A("v_lshrrev_b32 v3, 4, v1")
    A("v_lshlrev_b32 v3, 1, v3")
    A("v_and_b32 v4, 7, v1")
    A("v_xor_b32 v3, v3, v4")
    A("v_lshlrev_b32 v3, 4, v3")
    for base, stride in ((vWS_, 3072), (vWS2, 4096)):
        A(f"v_mul_u32_u24 v4, {stride}, v2")
        A(f"v_add_u32 v{base}, v3, v4")
        for q in range(1, 4): A(f"v_add_u32 v{base+q}, {q*(8*stride-1024)}, v{base}")
    poll_off(A, vPO, 16)
    A("v_lshlrev_b32 v15, 7, v1")
    A(f"s_mov_b32 s24, {FL_LN:#x}")
    A(f"s_mov_b32 s25, {FL_Q:#x}")
    A("s_waitcnt lgkmcnt(0)")
    A(f"s_mul_i32 s{sNON}, s3, 0x41C64E6D")
    A(f"s_add_u32 s{sNON}, s{sNON}, 0x3C6EF35F")

def qkv_setup(A, isq):
    A(f"s_lshr_b32 s{sWR_}, s{sWAVE}, 1")
    A(f"s_and_b32 s{sWC_}, s{sWAVE}, 1")
    A("v_lshrrev_b32 v2, 3, v1")
    A(f"s_lshl_b32 s85, s{sWAVE}, 5")
    A("v_add_u32 v2, s85, v2")
    A("v_mul_u32_u24 v2, 1280, v2")
    A("v_lshrrev_b32 v3, 4, v1")
    A("v_and_b32 v4, 7, v1")
    A("v_xor_b32 v4, v4, v3")
    A(f"v_lshl_add_u32 v{vXO}, v4, 4, v2")
    A("v_xor_b32 v4, 4, v4")
    A("v_lshl_add_u32 v6, v4, 4, v2")
    A(f"v_add_u32 v{vXO+1}, {8*1280-1024}, v6")
    A(f"v_add_u32 v{vXO+2}, {16*1280-2048}, v{vXO}")
    A(f"v_add_u32 v{vXO+3}, {24*1280-3072}, v6")
    A(f"s_mul_i32 s{sO1}, s{sA}, {0 if OPT.get('same') else 128*1280}")
    A(f"s_mov_b32 s{sO2}, 0")
    if OPT["rot"]:
        q = OPT["qrot"]
        if q == 1:
            A("s_and_b32 s85, s82, 3")
            A("s_lshl_b32 s85, s85, 2")
            A("s_lshr_b32 s85, 0x8530, s85")
            A("s_and_b32 s85, s85, 15")
            A("s_and_b32 s86, s82, 12")
            A("s_lshr_b32 s86, 0x8530, s86")
            A("s_and_b32 s86, s86, 15")
            A("s_add_u32 s85, s85, s86")
            A("s_add_u32 s85, s85, s83")
            A("s_add_u32 s85, s85, s84")
        else:
            A("s_lshr_b32 s85, s82, 2")
            A("s_add_u32 s85, s85, s82")
            A("s_and_b32 s85, s85, 1")
            A("s_mul_i32 s85, s85, 5")
            if q == 2:
                A("s_add_u32 s85, s85, s83")
                A("s_add_u32 s85, s85, s84")
            if q == 4:
                A("s_add_u32 s85, s85, s81")
            if q == 5:
                A("s_mov_b32 s85, s81")
        if isq: A("s_add_u32 s85, s85, 1")
        A("s_mul_i32 s86, s85, 26")
        A("s_lshr_b32 s86, s86, 8")
        A("s_mul_i32 s86, s86, 10")
        A("s_sub_u32 s85, s85, s86")
        A(f"s_mul_i32 s{sO2}, s85, {64*3840}")
        A("s_lshl_b32 s85, s85, 7")
        A(f"s_add_u32 s{sO1}, s{sO1}, s85")
    A(f"s_lshl_b32 s{sM0}, s{sWAVE}, 12")
    A(f"s_mul_i32 s{sM1}, s{sWAVE}, 5120")
    A(f"s_add_u32 s{sM1}, s{sM1}, 16384")
    A(f"s_mov_b32 s{sWR}, {2*STG}")

def qkv_setup_w(A, isq):
    if OPT.get("same"):
        A("s_mov_b32 s86, 1280")
    elif isq:
        A(f"s_mul_i32 s86, s{sBp}, 320")
    else:
        A(f"s_mul_i32 s86, s{sBp}, 160")
        A("s_add_u32 s86, s86, 1280")
    A(f"s_mul_i32 s85, s{sWAVE}, {16*3840}")
    A("s_add_u32 s85, s85, s86")
    A("s_movk_i32 s88, 3840")
    for n in range(5):
        if n: A(f"v_add_u32 v2, {64*n}, v1")
        q = "v2" if n else "v1"
        A(f"v_mul_u32_u24 v3, 3277, {q}")
        A("v_lshrrev_b32 v3, 16, v3")
        A(f"v_mad_i32_i24 v4, v3, -20, {q}")
        A("v_lshrrev_b32 v5, 2, v3")
        A("v_and_b32 v5, 2, v5")
        A("v_xor_b32 v4, v4, v5")
        comp = 1024*n if n < 4 else 0
        A(f"s_sub_u32 s87, s85, {comp}" if comp else "s_mov_b32 s87, s85")
        A("v_mad_u32_u24 v3, v3, s88, s87" if False else "v_mul_u32_u24 v3, 3840, v3")
        A("v_lshl_add_u32 v3, v4, 4, v3")
        if not isq:
            A("v_cmp_le_u32 vcc, 10, v4")
            A("v_add_u32 v5, 1120, v3")
            A("v_add_u32 v3, s87, v3")
            A("v_add_u32 v5, s87, v5")
            A(f"v_cndmask_b32 v{vWO_+n}, v3, v5, vcc")
        else:
            A(f"v_add_u32 v{vWO_+n}, s87, v3")

def nt(b): return " nt" if OPT["ntq"] & b else ""
def qkv_dma():
    L = [[f"s_add_u32 m0, s{sWR}, s{sM0}"]]
    for n in range(4):
        L.append([f"buffer_load_dwordx4 v{vXO+n}, s[{sX}:{sX+3}], s{sO1} offen offset:{1024*n}{nt(1)} lds"])
    L.append([f"s_add_u32 m0, s{sWR}, s{sM1}"])
    for n in range(4):
        L.append([f"buffer_load_dwordx4 v{vWO_+n}, s[{sW}:{sW+3}], s{sO2} offen offset:{1024*n}{nt(2)} lds"])
    L.append(["s_add_u32 m0, m0, 4096"])
    L.append([f"buffer_load_dwordx4 v{vWO_+4}, s[{sW}:{sW+3}], s{sO2} offen{nt(2)} lds"])
    return L
def qkv_adv():
    return [f"s_add_u32 s{sO1}, s{sO1}, 128", f"s_add_u32 s{sO2}, s{sO2}, {64*3840}", f"s_cmp_eq_u32 s{sO2}, {640*3840}",
            "s_cselect_b32 s85, 1280, 0", f"s_cselect_b32 s{sO2}, 0, s{sO2}", f"s_sub_u32 s{sO1}, s{sO1}, s85",
            f"s_add_u32 s{sWR}, s{sWR}, {STG}", f"s_cmp_eq_u32 s{sWR}, {4*STG}", f"s_cselect_b32 s{sWR}, 0, s{sWR}"]
def emit_dma_block(A, groups):
    for g in groups:
        for x in g: A(x)
        if "m0" in g[0].split(",")[0]: A("s_nop 0")

NW = 5
vXB, vCUR = 26, 6
vXB = 208
vCUR = 215
def qkv_reads(kk, fs):
    def wr(t):
        return [f"ds_read_b64_tr_b16 {ar(fs+16+4*t+2*j,2)}, v{vCUR+2+t} offset:{kk*10240 + j*1280}" for j in range(2)]
    L = wr(0)
    for st in range(4):
        L.append(f"ds_read_b128 {ar(fs+4*st,4)}, v{vCUR+kk} offset:{st*2048}")
    for t in range(1, 5): L += wr(t)
    return L
def qkv_mfmas(fs, isq):
    L = []
    for t in range(5):
        for st in range(4):
            x = ar(fs + 4*st, 4); w = ar(fs + 16 + 4*t, 4); c = vr(ACC + (st*5+t)*4, 4)
            L.append(f"v_mfma_f32_16x16x32_bf16 {c}, {w}, {x}, {c}" if isq else f"v_mfma_f32_16x16x32_bf16 {c}, {x}, {w}, {c}")
    return L

def qkv_gemm(A, pfx, isq, mid_setup, extras, pres, blk):
    if OPT["xfirst"]:
        emit_dma_block(A, qkv_dma()[:5])
        qkv_setup_w(A, isq)
        emit_dma_block(A, qkv_dma()[5:])
    else:
        emit_dma_block(A, qkv_dma())
    for x in qkv_adv(): A(x)
    stamp(A, pfx + "_iss0")
    mid_setup(A)
    A("v_and_b32 v2, 15, v1")
    A("v_lshrrev_b32 v3, 4, v1")
    A("v_lshrrev_b32 v4, 1, v2")
    A("v_xor_b32 v4, v4, v3")
    A("v_lshlrev_b32 v4, 4, v4")
    A("v_lshl_add_u32 v4, v2, 7, v4")
    A(f"s_lshl_b32 s85, s{sWR_}, 13")
    A(f"v_add_u32 v{vXB}, s85, v4")
    A(f"v_xor_b32 v{vXB+1}, 64, v{vXB}")
    A("v_lshrrev_b32 v4, 2, v2")
    A("v_lshl_add_u32 v4, v3, 3, v4")
    A("v_mul_u32_u24 v4, 320, v4")
    A("v_and_b32 v5, 1, v1")
    A("v_lshl_add_u32 v4, v5, 3, v4")
    A("v_add_u32 v4, 16384, v4")
    A("v_bfe_u32 v5, v1, 1, 1")
    A("v_and_b32 v6, 1, v3")
    A("v_lshlrev_b32 v6, 1, v6")
    A(f"s_mul_i32 s85, s{sWC_}, {10 if isq else 5}")
    for t in range(5):
        if isq: c0, step = [(0, 1), (2, 1), (4, 5), (5, 1), (7, 1)][t]
        else: c0, step = [(0, 1), (2, 1), (4, 6), (11, 1), (13, 1)][t]
        A(f"s_add_u32 s86, s85, {c0}")
        if step == 1: A("v_add_u32 v7, s86, v5")
        else: A(f"v_mad_u32_u24 v7, v5, {step}, s86")
        A("v_xor_b32 v7, v7, v6")
        A(f"v_lshl_add_u32 v{vXB+2+t}, v7, 4, v4")
    zero_acc(A)
    A(f"s_mov_b32 s{sRD}, {2*STG}")
    A(f"s_mov_b32 s{sCNT}, 0")
    upd = [f"v_add_u32 v{vCUR+i}, s{sRD}, v{vXB+i}" for i in range(7)]
    rdadv = [f"s_add_u32 s{sRD}, s{sRD}, {STG}", f"s_cmp_eq_u32 s{sRD}, {4*STG}", f"s_cselect_b32 s{sRD}, 0, s{sRD}"]
    def spread(rd, dma_slots, groups, scal):
        fill = [[] for _ in range(20)]
        k = 0
        for gi in range(9):
            for _ in range(2 if gi < 5 else 1):
                fill[gi].append(rd[k]); k += 1
        g = list(groups)
        for sl in dma_slots:
            if not g: break
            if "m0" in g[0][0].split(",")[0]:
                fill[sl-1] += g.pop(0)
            fill[sl] += g.pop(0)
        return fill, g
    def put_scal(fill, scal, start):
        sc = list(scal); gi = start
        while sc:
            room = 2 - len(fill[gi]) if gi < 19 else len(sc)
            for _ in range(max(room, 0)):
                if sc: fill[gi].append(sc.pop(0))
            gi += 1
    def top_half(wait, groups, pre=None, slots=(3, 7, 11, 15, 19)):
        A(f"s_waitcnt vmcnt({wait}) lgkmcnt(0)")
        if pre: pre(A)
        A("s_barrier")
        fill, rest = spread(qkv_reads(0, FA_), slots, groups, [])
        weave(A, qkv_mfmas(FB_, isq), fill)
        return rest
    def bot_half(adv, tail, groups=[], slots=(2, 6, 10, 13)):
        A("s_waitcnt lgkmcnt(0)")
        fill, rest = spread(qkv_reads(1, FB_), slots, groups, [])
        assert not rest
        put_scal(fill, rdadv + upd, 9)
        put_scal(fill, (qkv_adv() if adv else []) + tail, 14)
        weave(A, qkv_mfmas(FA_, isq), fill)
    for x in upd: A(x)
    stamp(A, pfx + "_setup")
    emit_dma_block(A, qkv_dma())
    for x in qkv_adv(): A(x)
    stamp(A, pfx + "_issued")
    A("s_waitcnt vmcnt(9)")
    A("s_barrier")
    stamp(A, pfx + "_first")
    for x in qkv_reads(0, FA_): A(x)
    emit_dma_block(A, qkv_dma()[:7])
    A(f"s_branch {pfx}_mid")
    A(".p2align 3")
    A.label(f"{pfx}_loop")
    outl = []
    for k, (c, fn) in enumerate(blk):
        A(f"s_cmp_eq_u32 s{sCNT}, {c}")
        A(f"s_cbranch_scc1 {pfx}_blk{k}")
    A.label(f"{pfx}_noblk")
    rest = top_half(9, qkv_dma())
    assert len(rest) == 5
    A.label(f"{pfx}_mid")
    bot_half(True, [f"s_add_u32 s{sCNT}, s{sCNT}, 1", f"s_cmp_lt_u32 s{sCNT}, 8"], rest)
    A(f"s_cbranch_scc1 {pfx}_loop")
    for it in (8, 9):
        g, w = extras.get(it, ([], 9 if it == 8 else 0))
        sl = (1, 3, 5, 8, 10, 12, 14, 16, 18) if len(g) > 14 else (2, 5, 8, 11, 14, 17)
        rest = top_half(w, g, pres.get(it), sl)
        bot_half(False, [], rest, sl)
    stamp(A, pfx + "_loop9")
    A("s_waitcnt lgkmcnt(0)")
    if isq:
        for m in qkv_mfmas(FB_, isq): A(m)
        A("s_nop 7")
        stamp(A, pfx + "_loopdone")
    def outline(A):
        for k, (c, fn) in enumerate(blk):
            A.label(f"{pfx}_blk{k}")
            fn(A)
            A(f"s_branch {pfx}_noblk")
    return outline

PAIRS = [(2,0),(3,0),(2,1),(3,1),(4,1),(3,2),(4,2)]
def kv_mask(i):
    te, tc = PAIRS[i]; m = 0
    for l in range(64):
        c = 16*tc + l % 16; e = [-8, 8, 24][te-2] + 4*(l//16)
        if c < 40 and e >= 0 and c//20 == e//20: m |= 1 << l
    return m

KVB = [sum(bin(kv_mask(j)).count("1") for j in range(i)) for i in range(8)]
def kv_rank(A, dst, i, shift, add=0):
    m = kv_mask(i)
    A(f"s_mov_b32 s85, {m & 0xffffffff:#x}")
    A(f"s_mov_b32 s86, {m >> 32:#x}")
    A(f"v_mbcnt_lo_u32_b32 v{dst}, s85, {KVB[i]}" if KVB[i] <= 64 else f"v_mov_b32 v{dst}, {KVB[i]}\nv_mbcnt_lo_u32_b32 v{dst}, s85, v{dst}")
    A(f"v_mbcnt_hi_u32_b32 v{dst}, s86, v{dst}")
    A(f"v_lshlrev_b32 v{dst}, {shift}, v{dst}")
    if add: A(f"v_add_u32 v{dst}, {add}, v{dst}")
vKR = 246
def phi4(A, b, T, dst=None):
    dst = b if dst is None else dst
    A(f"v_pk_mul_f32 {vr(T,2)}, {vr(b,2)}, s[{sL2}:{sL2+1}]")
    A(f"v_pk_mul_f32 {vr(T+2,2)}, {vr(b+2,2)}, s[{sL2}:{sL2+1}]")
    for i in range(4): A(f"v_exp_f32 v{T+i}, v{T+i} clamp")
    for i in range(4): A(f"v_max_f32 v{dst+i}, {EPS6:#x}, v{b+i}")
    A(f"v_pk_add_f32 {vr(dst,2)}, {vr(dst,2)}, {vr(T,2)}")
    A(f"v_pk_add_f32 {vr(dst+2,2)}, {vr(dst+2,2)}, {vr(T+2,2)}")
sL2 = 88
vEW, vEZ, vER, sKVS = 250, 251, 252, 26
def kv_esetup(A):
    A(f"s_lshl_b32 s85, s{sBp}, 1")
    A(f"s_add_u32 s85, s85, s{sWC_}")
    A("s_lshl_b32 s86, s85, 4")
    A(f"s_add_u32 s86, s86, s{sA}")
    A("s_lshl_b32 s87, s86, 8")
    A(f"s_mul_i32 s{sKVS}, s86, 3200")
    A(f"s_sub_u32 s87, s87, s{sKVS}")
    A(f"s_add_u32 s87, s87, {WS_ZP - WS_KVP:#x}")
    A("s_lshr_b32 s87, s87, 4")
    A(f"s_add_u32 s{sKVS}, s{sKVS}, {WS_KVP:#x}")
    A("v_mov_b32 v2, 0x7ff00000")
    for k in range(4):
        mA = kv_mask(k); mB = kv_mask(4+k) if k < 3 else 0xffff
        A(f"s_cmp_eq_u32 s{sWR_}, 0")
        A(f"s_mov_b32 s92, {mB & 0xffffffff:#x}")
        A(f"s_cselect_b32 s92, {mA & 0xffffffff:#x}, s92")
        A(f"s_mov_b32 s93, {mB >> 32:#x}")
        A(f"s_cselect_b32 s93, {mA >> 32:#x}, s93")
        if k < 3: A(f"s_mov_b32 s88, {KVB[4+k]}")
        A(f"s_cselect_b32 s88, {KVB[k]}, s{88 if k < 3 else 87}")
        A(f"v_mov_b32 v{vKR+k}, s88")
        A(f"v_mbcnt_lo_u32_b32 v{vKR+k}, s92, v{vKR+k}")
        A(f"v_mbcnt_hi_u32_b32 v{vKR+k}, s93, v{vKR+k}")
        A(f"v_lshlrev_b32 v{vKR+k}, 4, v{vKR+k}")
        A(f"v_cndmask_b32 v{vKR+k}, v2, v{vKR+k}, s[92:93]")
    A(f"s_mul_i32 s85, s{sWAVE}, 8448")
    A(f"s_add_u32 s85, s85, {LDS_RED}")
    A(f"v_add_u32 v{vEW}, s85, v{vB0}")
    A(f"v_lshl_add_u32 v{vEZ}, v1, 2, s85")
    A(f"s_mul_i32 s85, s{sWC_}, 8448")
    A(f"s_lshl_b32 s86, s{sWR_}, 12")
    A("s_add_u32 s85, s85, s86")
    A(f"s_add_u32 s85, s85, {LDS_RED}")
    A(f"v_add_u32 v{vER}, s85, v{vB0}")
    A("v_and_b32 v2, 15, v1")
    A(f"v_cmp_gt_u32 s[{sMK}:{sMK+1}], 8, v2")
    A("v_cmp_lt_u32 s[64:65], 15, v1")
    A("v_cmp_lt_u32 s[66:67], 31, v1")
def kv_estream():
    PB, KA, ONE, TMP = 128, 168, 208, 212
    E = [Asm(), Asm(), Asm(), Asm()]
    A = E[0]
    A(f"s_mov_b32 s{sL2}, {LOG2E:#x}")
    A(f"s_mov_b32 s{sL2+1}, {LOG2E:#x}")
    for i in range(4): A(f"v_mov_b32 v{ONE+i}, 0x3f803f80")
    for st in range(4):
        A = E[st // 2]
        for t in range(3):
            b = ACC + (st*5+t)*4
            if t < 2: phi4(A, b, TMP)
            else:
                phi4(A, b, TMP, TMP+4)
                for i in range(4): A(f"v_cndmask_b32 v{b+i}, v{b+i}, v{TMP+4+i}, s[{sMK}:{sMK+1}]")
        for t in range(5):
            b = ACC + (st*5+t)*4
            d = PB + (t*2 + st//2)*4 + (st & 1)*2
            A(f"v_cvt_pk_bf16_f32 v{d}, v{b}, v{b+1}")
            A(f"v_cvt_pk_bf16_f32 v{d+1}, v{b+2}, v{b+3}")
        if st & 1:
            sp = st // 2
            A("s_nop 1")
            for tc in range(3):
                c = vr(KA+4*(7+tc), 4)
                A(f"v_mfma_f32_16x16x32_bf16 {c}, {vr(ONE,4)}, {vr(PB+(tc*2+sp)*4,4)}, {c if sp else 0}")
            for i, (te, tc) in enumerate(PAIRS):
                c = vr(KA+4*i, 4)
                A(f"v_mfma_f32_16x16x32_bf16 {c}, {vr(PB+(te*2+sp)*4,4)}, {vr(PB+(tc*2+sp)*4,4)}, {c if sp else 0}")
    A = E[1]
    A("s_nop 0")
    A(f"v_cndmask_b32 v{KA+28}, v{KA+28}, v{KA+32}, s[64:65]")
    A(f"v_cndmask_b32 v{KA+28}, v{KA+28}, v{KA+36}, s[66:67]")
    A(f"ds_write_b32 v{vEZ}, v{KA+28} offset:7168")
    for i in range(7): A(f"ds_write_b128 v{vEW}, {vr(KA+4*i,4)} offset:{1024*i}")
    A = E[2]
    for k in range(4):
        A(f"ds_read_b128 {vr(PB+8*k,4)}, v{vER} offset:{1024*k}")
        A(f"ds_read_b128 {vr(PB+8*k+4,4)}, v{vER} offset:{1024*k + 16896}")
    A = E[3]
    A("s_waitcnt lgkmcnt(0)")
    for k in range(4):
        for i in (0, 2): A(f"v_pk_add_f32 {vr(PB+8*k+i,2)}, {vr(PB+8*k+i,2)}, {vr(PB+8*k+4+i,2)}")
    for k in range(4):
        A(f"buffer_store_dwordx4 {vr(PB+8*k,4)}, v{vKR+k}, s[{sWS}:{sWS+3}], s{sKVS} offen sc1")
    return [e.lines for e in E]

def w1_setup(A, locbase, vreg):
    A(f"s_sub_u32 s88, s82, {locbase}")
    A("s_lshl_b32 s88, s88, 2")
    A(f"s_add_u32 s88, s88, s{sWAVE}")
    A(f"v_and_b32 v{vreg}, 31, v1")
    A(f"v_mul_u32_u24 v{vreg}, 3072, v{vreg}")
    A("v_lshrrev_b32 v3, 5, v1")
    A(f"v_lshl_add_u32 v{vreg}, v3, 9, v{vreg}")
    A(f"s_mul_i32 s85, s88, {32*3072}")
    A("s_lshl_b32 s86, s83, 7")
    A("s_add_u32 s85, s85, s86")
    A(f"s_mul_i32 s86, s84, {1024*3072}")
    A("s_add_u32 s26, s86, s85")
    A("s_xor_b32 s87, s84, 1")
    A(f"s_mul_i32 s87, s87, {1024*3072}")
    A("s_add_u32 s27, s87, s85")

def w2_prefetch(A, locbase, parts):
    A(f"s_sub_u32 s85, s82, {locbase}")
    A("s_lshl_b32 s85, s85, 2")
    A(f"s_add_u32 s85, s85, s{sWAVE}")
    if OPT["fmap"]:
        A("v_lshrrev_b32 v2, 2, v1")
        A("v_lshlrev_b32 v2, 12, v2")
        A("v_and_b32 v3, 3, v1")
        A(f"v_lshl_add_u32 v2, v3, {10 if OPT['fmap'] == 1 else 7}, v2")
        A(f"s_mul_i32 s85, s85, {48*4096}")
        A(f"s_lshl_b32 s86, s81, {7 if OPT['fmap'] == 1 else 9}")
        A("s_add_u32 s85, s85, s86")
        if parts[0]: A(f"s_add_u32 s85, s85, {16*4096*parts[0]}")
        for i in parts:
            A(f"buffer_load_dword a255, v2, s[{sW2}:{sW2+3}], s85 offen")
            if i != parts[-1]: A(f"s_add_u32 s85, s85, {16*4096}")
        return
    if OPT["w2c"]:
        A("s_lshl_b32 s86, s81, 5")
        A("s_add_u32 s85, s85, s86")
        A("s_lshl_b32 s85, s85, 13")
        if parts[0]: A(f"s_add_u32 s85, s85, {(8192*256)*parts[0]}")
        for i in parts:
            A(f"buffer_load_dword a255, v15, s[{sW2}:{sW2+3}], s85 offen")
            if i != parts[-1]: A(f"s_add_u32 s85, s85, {8192*256}")
        return
    A("v_lshrrev_b32 v2, 3, v1")
    A("v_lshlrev_b32 v2, 12, v2")
    A("v_and_b32 v3, 7, v1")
    A("v_lshl_add_u32 v2, v3, 7, v2")
    A("s_mul_i32 s85, s85, 24")
    A("s_mul_i32 s86, s84, 768")
    A("s_add_u32 s85, s85, s86")
    A(f"s_add_u32 s85, s85, {8*parts[0]}")
    A("s_lshl_b32 s85, s85, 12")
    A("s_lshl_b32 s86, s83, 10")
    A("s_add_u32 s85, s85, s86")
    for i in parts:
        A(f"buffer_load_dword a255, v2, s[{sW2}:{sW2+3}], s85 offen")
        if i != parts[-1]: A(f"s_add_u32 s85, s85, {8*4096}")

QCB = [0, 16, 32, 40, 56]
QDP = [(0,0),(0,1),(1,0),(1,1),(1,2),(2,1),(2,2),(2,4),(3,3),(3,4),(4,2),(4,3),(4,4)]
sMA, sZO, sKO, sPQ, sWOo, sGo = 56, 58, 59, 64, 67, 23
vWOd, vWOt, vZA, vKP, vGo, vT1 = 248, 246, 252, 245, 25, 244
MSK = 194
def q_setup(A):
    T = 128
    A(f"s_mul_i32 s{sWOo}, s{sU}, {40*1280}")
    A(f"s_mul_i32 s86, s{sNR}, 320")
    A(f"s_add_u32 s{sWOo}, s{sWOo}, s86")
    A(f"s_lshl_b32 s86, s{sWAVE}, 8")
    for n in range(4):
        A(f"v_add_u32 v2, {64*n}, v1")
        A("v_add_u32 v2, s86, v2")
        A("v_mul_u32_u24 v3, 3277, v2")
        A("v_lshrrev_b32 v3, 16, v3")
        A("v_mul_u32_u24 v4, 20, v3")
        A("v_sub_u32 v4, v2, v4")
        A("v_mul_u32_u24 v3, 1280, v3")
        A(f"v_lshl_add_u32 v{vWOd+n}, v4, 4, v3")
        if n: A(f"v_subrev_u32 v{vWOd+n}, {1024*n}, v{vWOd+n}")
    A("v_and_b32 v3, 15, v1")
    A("v_lshrrev_b32 v4, 4, v1")
    A(f"v_lshlrev_b32 v{vGo}, 2, v3")
    A(f"s_lshl_b32 s86, s{sA}, 9")
    A(f"s_lshl_b32 s87, s{sWR_}, 8")
    A("s_add_u32 s86, s86, s87")
    A(f"s_add_u32 s{sGo}, s86, {WS_G:#x}")
    A("v_bfe_u32 v5, v1, 1, 2")
    A(f"s_lshl_b32 s85, s{sWAVE}, 2")
    A("v_add_lshl_u32 v5, v5, s85, 3")
    A("v_and_b32 v6, 1, v1")
    A(f"s_lshl_b32 s85, s{sBp}, 1")
    A("v_add3_u32 v5, v5, v6, s85")
    A(f"v_lshlrev_b32 v{vKP}, 7, v5")
    A("v_lshrrev_b32 v5, 2, v3")
    A("v_lshl_add_u32 v5, v4, 2, v5")
    A("v_and_b32 v6, 7, v5")
    A("v_mul_u32_u24 v6, 320, v6")
    A("v_mul_u32_u24 v5, 320, v5")
    A("v_and_b32 v7, 3, v1")
    A("v_lshlrev_b32 v7, 3, v7")
    A(f"s_lshl_b32 s86, s{sWAVE}, 5")
    A("v_add_u32 v7, s86, v7")
    A(f"v_add_u32 v{vWOt}, v6, v7")
    A(f"v_add_u32 v{vWOt+1}, v5, v7")
    A(f"s_lshr_b32 s86, s{sU}, 2")
    A("s_mul_i32 s86, s86, 5")
    A(f"s_bfe_u32 s87, s{sU}, 0x10001")
    A(f"s_and_b32 s88, s{sU}, 1")
    A("s_mul_i32 s89, s87, 3")
    A("s_add_u32 s89, s89, s88")
    A("s_add_u32 s89, s89, s86")
    A(f"s_mul_i32 s{sMA}, s89, 40960")
    A("s_add_u32 s86, s86, 2")
    A(f"s_mul_i32 s{sMA+1}, s86, 40960")
    A("s_lshl_b32 s87, s87, 3")
    A("s_lshl_b32 s88, s88, 9")
    A(f"s_add_u32 s{sMA+1}, s{sMA+1}, s87")
    A(f"s_add_u32 s{sMA+1}, s{sMA+1}, s88")
    A(f"s_mul_i32 s86, s{sNR}, 10240")
    A(f"s_lshl_b32 s87, s{sWAVE}, 10")
    A("s_add_u32 s86, s86, s87")
    A(f"s_add_u32 s86, s86, {WS_M:#x}")
    A(f"s_add_u32 s{sMA}, s{sMA}, s86")
    A(f"s_add_u32 s{sMA+1}, s{sMA+1}, s86")
    A(f"s_lshl_b32 s85, s{sA}, 1")
    A(f"s_add_u32 s85, s85, s{sWR_}")
    A("s_mul_i32 s85, s85, 20")
    A(f"s_mul_i32 s86, s{sBp}, 5")
    A("s_add_u32 s85, s85, s86")
    A("s_lshl_b32 s85, s85, 12")
    A(f"s_add_u32 s85, s85, {WS_PQ:#x}")
    A(f"s_mul_i32 s86, s{sWC_}, {3*4096}")
    A(f"s_add_u32 s{sPQ}, s86, s85")
    A(f"s_add_u32 s{sPQ+1}, s{sPQ}, 4096")
    A(f"s_lshl_b32 s88, s{sWC_}, 3")
    A("s_add_u32 s88, s88, s85")
    A(f"s_add_u32 s{sPQ+2}, s88, 8192")
    A(f"v_add_u32 v5, s{sWAVE}, v1")
    A(f"s_mul_i32 s85, s{sWAVE}, 9")
    A("v_add_u32 v5, s85, v5")
    A("v_lshrrev_b32 v6, 2, v5")
    A("v_and_b32 v5, 3, v5")
    A("v_lshlrev_b32 v5, 7, v5")
    A("v_lshl_add_u32 v5, v6, 10, v5")
    A(f"s_sub_u32 s85, s{sMA+1}, s87")
    A("s_and_b32 s85, s85, 0xffffff80")
    A("v_add_u32 v5, s85, v5")
    A(f"s_and_b32 s85, s{sPQ+2}, 0xffffff80")
    A(f"s_lshl_b32 s86, s{sWC_}, 11")
    A("s_add_u32 s85, s85, s86")
    A("v_lshlrev_b32 v6, 7, v3")
    A("v_add_u32 v6, s85, v6")
    A("v_cmp_gt_u32 vcc, 10, v1")
    A("s_nop 1")
    A(f"v_cndmask_b32 v{vT1}, v6, v5, vcc")
    A(f"v_mov_b32 v{T}, {LDS_RED + 1600}")
    for i in range(7):
        kv_rank(A, 26+i, i, 3, LDS_RED)
        A(f"s_mov_b32 s92, s85")
        A(f"s_mov_b32 s93, s86")
        A(f"v_cndmask_b32 v{26+i}, v{T}, v{26+i}, s[92:93]")
    cb = QCB
    for t in range(5):
        A(f"v_lshl_add_u32 v{T+t}, v4, 2, {cb[t]}")
        A(f"v_add_u32 v{T+5+t}, {cb[t]}, v3")
        if t == 2:
            A("v_lshrrev_b32 v5, 1, v4")
            A(f"v_lshl_add_u32 v{T+t}, v5, 5, v{T+t}")
            A("v_mul_u32_u24 v7, 4064, v5")
            A("v_lshrrev_b32 v5, 3, v3")
            A(f"v_lshl_add_u32 v{T+5+t}, v5, 5, v{T+5+t}")
        A(f"v_mul_u32_u24 v{T+t}, 205, v{T+t}")
        A(f"v_lshrrev_b32 v{T+t}, 12, v{T+t}")
        A(f"v_mul_u32_u24 v{T+5+t}, 205, v{T+5+t}")
        A(f"v_lshrrev_b32 v{T+5+t}, 12, v{T+5+t}")
    for k, (tp, t) in enumerate(QDP):
        A(f"v_cmp_eq_u32 vcc, v{T+t}, v{T+5+tp}")
        A("s_nop 1")
        A(f"v_cndmask_b32 v{MSK+k}, 0, -1, vcc")
    A("v_lshlrev_b32 v5, 8, v3")
    A(f"v_lshl_add_u32 v{vZA}, v4, 4, v5")
    A(f"v_add_u32 v{vZA+2}, v7, v{vZA}")
    A(f"v_add_u32 v{vZA+1}, 4096, v{vZA}")
    A(f"s_lshl_b32 s86, s{sBp}, 14")
    A(f"s_lshl_b32 s87, s{sWC_}, 13")
    A("s_add_u32 s86, s86, s87")
    A(f"s_add_u32 s{sZO}, s86, {WS_ZP:#x}")
    A(f"s_mul_i32 s89, s{sU}, {16*3200}")
    A(f"s_mul_i32 s87, s{sWAVE}, 800")
    A("s_add_u32 s87, s87, s89")
    A(f"s_add_u32 s{sKO}, s87, {WS_KVP:#x}")
    if OPT["qw2"]:
        A("s_sub_u32 s85, s82, 16")
        A("s_lshl_b32 s85, s85, 2")
        A(f"s_add_u32 s85, s85, s{sWAVE}")
        A("s_lshl_b32 s86, s81, 5")
        A("s_add_u32 s85, s85, s86")
        A("s_lshl_b32 s85, s85, 13")
        A(f"s_add_u32 s99, s85, {8192*256*(3 - OPT['qw2'])}")
def q_pf_only(A):
    for k in range(3 - OPT["qw1n"], 3):
        A(f"buffer_load_dword a255, v12, s[{sW1}:{sW1+3}], s26 offen offset:{1024*k}")
def q_loop_pf(A):
    if OPT["qw1"] == 0:
        A("s_mov_b32 exec_lo, 0xffff03ff")
        A("s_mov_b32 exec_hi, 0")
        A(f"buffer_load_dword a255, v{vT1}, s[{sWS}:{sWS+3}], 0 offen sc1")
        A("s_mov_b64 exec, -1")
        return
    for k in range(3 - OPT["qw1n"], 3):
        A(f"buffer_load_dword a255, v12, s[{sW1}:{sW1+3}], s26 offen offset:{1024*k}")
    if OPT["qw1b"]:
        for k in range(3): A(f"buffer_load_dword a255, v12, s[{sW1}:{sW1+3}], s27 offen offset:{1024*k}")
    for k in range(OPT["qw2"]):
        A(f"buffer_load_dword a255, v15, s[{sW2}:{sW2+3}], s99 offen")
        A(f"s_add_u32 s99, s99, {8192*256}")
    if OPT["touch"] and not OPT["qdefer"]:
        A("s_mov_b32 exec_lo, 0xffff03ff")
        A("s_mov_b32 exec_hi, 0")
        A(f"buffer_load_dword a255, v{vT1}, s[{sWS}:{sWS+3}], 0 offen sc1")
        A("s_mov_b64 exec, -1")
def q_extras():
    g8 = [[poll_ld(vPO, 24)], [f"s_lshl_b32 m0, s{sWAVE}, 12"]] + [[f"buffer_load_dwordx4 v{vWOd+n}, s[{sWO}:{sWO+3}], s{sWOo} offen offset:{1024*n} lds"] for n in range(4)]
    g9 = [[f"buffer_load_dword v{8+st}, v{vGo}, s[{sWS}:{sWS+3}], s{sGo} offen offset:{64*st} sc1"] for st in range(4)]
    return {8: (g8, 9), 9: (g9, 0)}

def q_epilogue(A):
    PK, Z, AF, ZP, G = 128, 168, 168, 16, 8
    KA_, DEN, OUT, TMP = 48, 204+0, 224, 112
    WBa, KVa = 0, 20
    cb, dp = QCB, QDP
    A(f"s_mov_b32 s24, {FL_KV:#x}")
    for i in range(3):
        A(f"ds_read_b64_tr_b16 {ar(WBa+6*i,2)}, v{vWOt} offset:{128*i}")
        A(f"ds_read_b64_tr_b16 {ar(WBa+6*i+2,2)}, v{vWOt+1} offset:{128*i + 8*320}")
        A(f"ds_read_b64_tr_b16 {ar(WBa+6*i+4,2)}, v{vWOt+1} offset:{128*i + 24*320}")
    A(f"v_mov_b32 v2, {LDS_RED + 1600}")
    A("v_mov_b64 v[4:5], 0")
    A("ds_write_b64 v2, v[4:5]")
    A(f"s_mov_b32 s{sL2}, {LOG2E:#x}")
    A(f"s_mov_b32 s{sL2+1}, {LOG2E:#x}")
    for k, b in enumerate(range(ACC, ACC+80, 4)):
        if k == 12: A(poll_ld(vKP, 24))
        phi4(A, b, 208)
        A(f"v_cvt_pk_bf16_f32 v{PK+2*k}, v{b}, v{b+1}")
        A(f"v_cvt_pk_bf16_f32 v{PK+2*k+1}, v{b+2}, v{b+3}")
    stamp(A, "q_pre")
    A("s_waitcnt vmcnt(0) lgkmcnt(0)")
    poll_check(A, "pkv", vKP, 24)
    A("s_barrier")
    stamp(A, "q_kvok")
    for t in range(5):
        A(f"buffer_load_dwordx4 {vr(Z+4*t,4)}, v{vZA+[0,0,2,1,1][t]}, s[{sWS}:{sWS+3}], s{sZO} offen offset:{[0,64,128,0,64][t]} sc1")
    kvl = []
    for rb in range(0, 16, 2):
        kvl.append(["s_mov_b32 exec_hi, 0x3ffff",
                    f"buffer_load_dwordx4 {vr(KA_+4*rb,4)}, v{vB0}, s[{sWS}:{sWS+3}], s{sKO} offen sc1",
                    f"buffer_load_dwordx4 {vr(KA_+4*rb+4,4)}, v{vB0}, s[{sWS}:{sWS+3}], s{sKO} offen offset:3200 sc1",
                    "s_mov_b32 exec_hi, -1", f"s_add_u32 s{sKO}, s{sKO}, 6400"])
    def kv(n):
        for _ in range(n):
            if kvl:
                for x in kvl.pop(0): A(x)
    kv(2)
    A("s_waitcnt vmcnt(4)")
    stamp(A, "q_z")
    for rot in (8, 4, 2, 1):
        kv(1)
        for i in range(20):
            A(f"v_add_f32_dpp v{Z+i}, v{Z+i}, v{Z+i} row_ror:{rot} row_mask:0xf bank_mask:0xf")
    for i in range(10): A(f"v_cvt_pk_bf16_f32 v{ZP+i}, v{Z+2*i}, v{Z+2*i+1}")
    kv(2)
    for k, (tp, t) in enumerate(dp):
        A(f"v_and_b32 v{AF+2*k}, v{MSK+k}, v{ZP+2*t}")
        A(f"v_and_b32 v{AF+2*k+1}, v{MSK+k}, v{ZP+2*t+1}")
    A("s_nop 0")
    DEN2 = 224
    def den(st, Dn):
        seen = set()
        for k, (tp, t) in enumerate(dp):
            c = vr(Dn + 4*tp, 4)
            A(f"v_mfma_f32_16x16x16_bf16 {c}, {vr(AF+2*k,2)}, {vr(PK+(st*5+t)*2,2)}, {c if tp in seen else 0}")
            seen.add(tp)
    den(0, DEN)
    for st in range(4):
        Dn = DEN if (st & 1) == 0 else DEN2
        o = OUT
        U = TMP + 10
        if st < 3: den(st + 1, DEN2 if (st & 1) == 0 else DEN)
        else: A("s_nop 7")
        kv(OPT["kvr"])
        for tp in range(5): A(f"v_add_f32 v{TMP+2*tp}, {EPS6:#x}, v{Dn+4*tp}")
        for tp in range(5): A(f"v_rcp_f32 v{TMP+2*tp}, v{TMP+2*tp}")
        A("s_nop 0")
        for tp in range(5): A(f"v_mul_f32 v{TMP+2*tp}, v{TMP+2*tp}, v{G+st}")
        for tp in range(5):
            p = PK + (st*5+tp)*2
            if tp == 2: kv(OPT["kvr"])
            A(f"v_lshlrev_b32 v{U}, 16, v{p}")
            A(f"v_and_b32 v{U+1}, 0xffff0000, v{p}")
            A(f"v_lshlrev_b32 v{U+2}, 16, v{p+1}")
            A(f"v_and_b32 v{U+3}, 0xffff0000, v{p+1}")
            A(f"v_pk_mul_f32 {vr(U,2)}, {vr(U,2)}, {vr(TMP+2*tp,2)} op_sel_hi:[1,0]")
            A(f"v_pk_mul_f32 {vr(U+2,2)}, {vr(U+2,2)}, {vr(TMP+2*tp,2)} op_sel_hi:[1,0]")
            A(f"v_cvt_pk_bf16_f32 v{p}, v{U}, v{U+1}")
            A(f"v_cvt_pk_bf16_f32 v{p+1}, v{U+2}, v{U+3}")
        p = PK + st*10
        A(f"buffer_store_dwordx4 {vr(p,4)}, v{vB0}, s[{sWS}:{sWS+3}], s{sPQ} offen offset:{1024*st} sc1")
        A(f"buffer_store_dwordx4 {vr(p+6,4)}, v{vB0}, s[{sWS}:{sWS+3}], s{sPQ+1} offen offset:{1024*st} sc1")
        A(f"buffer_store_dwordx2 {vr(p+4,2)}, v{vB0}, s[{sWS}:{sWS+3}], s{sPQ+2} offen offset:{1024*st} sc1")
    assert not kvl
    stamp(A, "q_pq")
    A("s_waitcnt vmcnt(12)")
    stamp(A, "q_kv")
    for w in (32, 16, 8, 4):
        for i in range(0, w, 2):
            A(f"v_pk_add_f32 {vr(KA_+i,2)}, {vr(KA_+i,2)}, {vr(KA_+w+i,2)}")
    A(f"s_mul_i32 s86, s{sWAVE}, 400")
    A(f"s_add_u32 s86, s86, {LDS_RED}")
    A("v_lshlrev_b32 v7, 3, v1")
    A("v_add_u32 v7, s86, v7")
    A(f"v_cvt_pk_bf16_f32 v{KA_}, v{KA_}, v{KA_+1}")
    A(f"v_cvt_pk_bf16_f32 v{KA_+1}, v{KA_+2}, v{KA_+3}")
    A("s_mov_b32 exec_hi, 0x3ffff")
    A(f"ds_write_b64 v7, {vr(KA_,2)}")
    A("s_mov_b32 exec_hi, -1")
    A("s_waitcnt lgkmcnt(0)")
    A("s_barrier")
    stamp(A, "q_bar")
    for i in range(7): A(f"ds_read_b64 {ar(KVa+2*i,2)}, v{26+i}")
    A("s_waitcnt lgkmcnt(0)")
    MD = 64
    for i in range(3):
        seen = set()
        for k, (te, tc) in enumerate(PAIRS):
            c = vr(MD + (i*3+tc)*4, 4)
            A(f"v_mfma_f32_16x16x16_bf16 {c}, {ar(KVa+2*k,2)}, {ar(WBa+6*i+2*(te-2),2)}, {c if tc in seen else 0}")
            seen.add(tc)
    for i in range(3):
        if i == 2:
            A(f"s_cmp_ge_u32 s{sWAVE}, 2")
            A("s_cbranch_scc1 q_m_done")
            A("s_nop 2")
        b = MD + i*12
        for k in range(6): A(f"v_cvt_pk_bf16_f32 v{b+k}, v{b+2*k}, v{b+2*k+1}")
        A(f"buffer_store_dwordx4 {vr(b,4)}, v{vB0}, s[{sWS}:{sWS+3}], s{sMA} offen sc1")
        A("s_mov_b32 exec_hi, 0")
        A(f"buffer_store_dwordx2 {vr(b+4,2)}, v{vB0}, s[{sWS}:{sWS+3}], s{sMA+1} offen sc1")
        A("s_mov_b32 exec_hi, -1")
        A(f"s_add_u32 s{sMA}, s{sMA}, 4096")
        A(f"s_add_u32 s{sMA+1}, s{sMA+1}, 4096")
    A.label("q_m_done")
    stamp(A, "q_mdone")

def tlb_touch(A):
    for ptr, size in ((26, WS_SIZE), (22, 2048*1280), (16, 1536*4096), (12, 2048*3072), (8, 640*1280), (14, 4), (18, 4)):
        A(f"s_mov_b64 s[86:87], s[{ptr}:{ptr+1}]")
        offs = sorted(set(list(range(0, size, 1 << 21)) + [size - 4]))
        prev = 0
        for o in offs:
            if o - prev >= (1 << 20):
                A(f"s_add_u32 s86, s86, {o - prev:#x}")
                A("s_addc_u32 s87, s87, 0")
                prev = o
            A(f"s_load_dword s98, s[86:87], {o - prev:#x}")
def ln_role(A, after_loads, ne):
    X, GW, D = 48, 88, 128
    A("v_lshrrev_b32 v2, 3, v1")
    A(f"s_lshl_b32 s85, s{sWAVE}, 3")
    A("v_add_u32 v2, s85, v2")
    A("v_and_b32 v3, 7, v1")
    A("v_lshlrev_b32 v3, 4, v3")
    A("v_mul_u32_u24 v4, 1280, v2")
    A("v_add_u32 v4, v4, v3")
    A(f"s_mul_i32 s85, s{sA}, {32*1280}")
    A("s_waitcnt lgkmcnt(0)"); srds(A, ["X", "GW"])
    LN_TLB = True
    for i in range(10):
        A(f"buffer_load_dwordx4 {vr(X+4*i,4)}, v4, s[{sX}:{sX+3}], s85 offen offset:{128*i}")
    for i in range(10):
        A(f"buffer_load_dwordx4 {vr(GW+4*i,4)}, v3, s[{sGW}:{sGW+3}], 0 offen offset:{128*i}")
    A("v_mul_u32_u24 v16, 1312, v2")
    A("v_add_u32 v16, v16, v3")
    A("v_lshlrev_b32 v17, 2, v2")
    if OPT["tlb"] == 1: tlb_touch(A)
    after_loads(A)
    A("v_mov_b32 v5, 0x3f803f80")
    for i in range(4): A(f"v_mov_b32 v{8+i}, 0")
    A(f"s_waitcnt vmcnt({10+ne})")
    stamp(A, "ln_first")
    for i in range(40):
        A(f"v_dot2_f32_bf16 v{8+(i&1)}, v{X+i}, v5, v{8+(i&1)}")
    A(f"s_waitcnt vmcnt({ne})")
    for i in range(40):
        A(f"v_dot2_f32_bf16 v{10+(i&1)}, v{X+i}, v{GW+i}, v{10+(i&1)}")
    A("s_nop 2")
    A("v_add_f32 v8, v8, v9")
    A("v_add_f32 v10, v10, v11")
    def red8(r):
        for m in ("quad_perm:[1,0,3,2]", "quad_perm:[2,3,0,1]", "row_half_mirror"):
            A("s_nop 1")
            for x in r: A(f"v_add_f32_dpp v{x}, v{x}, v{x} {m} row_mask:0xf bank_mask:0xf")
    red8([8, 10])
    A(f"v_mul_f32 v8, {0xBACCCCCD:#x}, v8")
    A("v_mov_b32 v9, v8")
    A(f"v_mul_f32 v10, {LOG2E | 0x80000000:#x}, v10")
    A("v_exp_f32 v10, v10")
    for i in range(40):
        A(f"v_lshlrev_b32 v{D+2*i}, 16, v{X+i}")
        A(f"v_and_b32 v{D+2*i+1}, 0xffff0000, v{X+i}")
    A("v_add_f32 v10, 1.0, v10")
    A("v_rcp_f32 v10, v10")
    for i in range(40):
        A(f"v_pk_add_f32 {vr(D+2*i,2)}, {vr(D+2*i,2)}, v[8:9]")
    A("v_pk_mul_f32 v[18:19], v[128:129], v[128:129]")
    A("v_pk_mul_f32 v[20:21], v[130:131], v[130:131]")
    for i in range(2, 40):
        a = 18 + 2*(i & 1)
        A(f"v_pk_fma_f32 {vr(a,2)}, {vr(D+2*i,2)}, {vr(D+2*i,2)}, {vr(a,2)}")
    A("v_pk_add_f32 v[18:19], v[18:19], v[20:21]")
    A("ds_write_b32 v17, v10 offset:49152")
    A("v_add_f32 v18, v18, v19")
    red8([18])
    A(f"v_mov_b32 v19, {0x3727C5AC:#x}")
    A(f"v_fmac_f32 v19, {0x3ACCCCCD:#x}, v18")
    A("v_rsq_f32 v18, v19")
    A("s_nop 0")
    A("v_mov_b32 v19, v18")
    for i in range(40):
        A(f"v_pk_mul_f32 {vr(D+2*i,2)}, {vr(D+2*i,2)}, v[18:19]")
        A(f"v_cvt_pk_bf16_f32 v{X+i}, v{D+2*i}, v{D+2*i+1}")
        if (i & 3) == 3:
            A(f"ds_write_b128 v16, {vr(X+i-3,4)} offset:{128*(i//4)}")
    A("v_lshrrev_b32 v2, 2, v1")
    A("v_mul_u32_u24 v2, 1312, v2")
    A("v_and_b32 v3, 3, v1")
    A("v_lshl_add_u32 v2, v3, 3, v2")
    A(f"s_mul_i32 s85, s{sWAVE}, 320")
    A("v_add_u32 v2, s85, v2")
    A(f"s_mul_i32 s85, s{sA}, 40960")
    A(f"s_mul_i32 s86, s{sWAVE}, 10240")
    A("s_add_u32 s85, s85, s86")
    A("s_add_u32 s86, s85, 4096")
    A("s_add_u32 s87, s85, 8192")
    A("v_lshlrev_b32 v17, 2, v1")
    A(f"s_lshl_b32 s88, s{sA}, 7")
    A(f"s_add_u32 s88, s88, {WS_G:#x}")
    A("s_waitcnt lgkmcnt(0)")
    A("s_barrier")
    A(f"s_cmp_lg_u32 s{sWAVE}, 3")
    A("s_cbranch_scc1 ln_ng")
    A("ds_read_b32 v10, v17 offset:49152")
    A("s_waitcnt lgkmcnt(0)")
    A("s_mov_b32 exec_hi, 0")
    A(f"buffer_store_dword v10, v17, s[{sWS}:{sWS+3}], s88 offen sc1")
    A("s_mov_b32 exec_hi, -1")
    A.label("ln_ng")
    for t in range(10):
        A(f"ds_read_b64_tr_b16 {vr(D+4*t,2)}, v2 offset:{32*t}")
        A(f"ds_read_b64_tr_b16 {vr(D+4*t+2,2)}, v2 offset:{32*t + 16*1312}")
        if t == 6: A("s_waitcnt lgkmcnt(6)")
    for t in range(10):
        A(f"s_waitcnt lgkmcnt({min(2*(9-t), 6)})")
        A(f"buffer_store_dwordx4 {vr(D+4*t,4)}, v{vB0}, s[{sWS}:{sWS+3}], s{85 + t//4} offen offset:{1024*(t&3)} sc1")

def c_adv1(): return [f"s_add_u32 s{sC1}, s{sC1}, s{sCST}", f"s_cmp_eq_u32 s{sC1}, s{sCE1}", f"s_cselect_b32 s{sC1}, s{sCB1}, s{sC1}"]
def c_adv2(): return [f"s_add_u32 s{sC2}, s{sC2}, 40960", f"s_cmp_eq_u32 s{sC2}, s{sCE2}", f"s_cselect_b32 s{sC2}, s{sCB2}, s{sC2}"]
def c_wdma(slot):
    L = [[f"s_add_u32 m0, s{sCM0}, {4096*slot}"]]
    for q in range(4):
        L.append([f"buffer_load_dwordx4 v{vWS_+q}, s[{sCW}:{sCW+3}], s{sC1} offen offset:{1024*q} lds"])
    return L
def c_bload(slot, n):
    return f"buffer_load_dwordx4 {ar(BR+20*slot+4*n,4)}, v{vB0 if n < 4 else vB1}, s[{sWS}:{sWS+3}], s{sC2} offen offset:{1024*(n&3)} sc1"
def c_tr(slot, aset):
    return [f"ds_read_b64_tr_b16 {ar(AS+16*aset+4*t+2*j,2)}, v{vTR+t} offset:{4096*slot+2048*j}" for t in range(4) for j in range(2)]
def c_wring(A):
    for s in range(OPT["d"]):
        emit_dma_block(A, c_wdma(s))
        for x in c_adv1(): A(x)
def c_bring(A):
    for s in range(OPT["d"]):
        for n in range(5): A(c_bload(s, n))
        for x in c_adv2(): A(x)
def switch_to_fb(A):
    A(f"s_mov_b64 s[{sCW}:{sCW+1}], s[{sW2}:{sW2+1}]")
    A(f"s_mov_b64 s[{sCW+2}:{sCW+3}], s[{sW2+2}:{sW2+3}]")
    for i in range(4): A(f"v_mov_b32 v{vWS_+i}, v{vWS2+i}")
    A(f"s_mov_b32 s{sC1}, s{sF1}")
    A(f"s_mov_b32 s{sCB1}, s{sFB1}")
    A(f"s_mov_b32 s{sCE1}, s{sFE1}")
    A(f"s_mov_b32 s{sCST}, {32*4096}")

G1A = 112
def c_step(A, u, wait, doW, doB, doT, accf, w_is_A, drain=None, first=False, side=None, pre=[], late=None, wslot=None, trl=None):
    DD = OPT["d"]
    A(f"s_waitcnt vmcnt({wait}) lgkmcnt(0)")
    for x in pre: A(x)
    tr = c_tr((u+1) & 3, (u+1) & 1) if doT else (trl or [])
    mf = []
    for n in range(5):
        for t in range(4):
            w = ar(AS+16*(u & 1)+4*t, 4); b = ar(BR+20*u+4*n, 4); c = accf((t*5+n)*4)
            cin = "0" if first else c
            mf.append(f"v_mfma_f32_16x16x32_bf16 {c}, {w}, {b}, {cin}" if w_is_A else f"v_mfma_f32_16x16x32_bf16 {c}, {b}, {w}, {cin}")
    fill = [[] for _ in range(20)]
    sl = (u + DD) & 3
    wd = c_wdma(sl if wslot is None else wslot)
    post = []
    if doW:
        A(wd[0][0])
        for t in range(4): fill[t] += wd[1+t]
        fill[5 if drain else 12] += c_adv1()
    for k, x in enumerate(tr): fill[4+k].append(x)
    if doB:
        for n in range(5): fill[4*n+3].append(c_bload(sl, n))
        fill[19] += c_adv2()
    if side:
        per = -(-len(side) // 20)
        for g in range(20): fill[g] = side[g*per:(g+1)*per] + fill[g]
    if late:
        fill[13] += late[:9]
        post += late[9:]
    if drain:
        for n in range(3):
            for t in range(4): fill[4*(n+2)+t] += drain(n, t)
        post += ["s_nop 3"] + flat([drain(3, t) for t in range(4)]) + flat([drain(4, t) for t in range(4)])
    weave(A, mf, fill)
    for x in post: A(x)

def c_loop(A, pfx, nks, accf, w_is_A, isg1, drain):
    DD = OPT["d"]; W0 = 5 + 9*(DD-2)
    tail_next = isg1 and OPT["tailw"]
    A(".p2align 3")
    A.label(f"{pfx}_loop")
    if isg1 and OPT["lnmid"]:
        A(f"s_cmp_eq_u32 s{sCNT}, s{sPUB}")
        A("s_cbranch_scc1 g1_blk")
        A.label("g1_noblk")
    for u in range(4):
        c_step(A, u, W0, True, True, True, accf, w_is_A)
    if STAMPS:
        ng = nks//4 - 1
        i = _st["n"]; _st["n"] += ng; _st["names"] += [f"{pfx}_g{k}" for k in range(ng)]
        A("s_memtime s[100:101]")
        A("s_waitcnt lgkmcnt(0)")
        A(f"s_sub_u32 m0, {i + ng}, s{sCNT}")
        A("s_nop 0")
        A("v_writelane_b32 v47, s100, m0")
    A(f"s_sub_u32 s{sCNT}, s{sCNT}, 1")
    A(f"s_cmp_lg_u32 s{sCNT}, 0")
    A(f"s_cbranch_scc1 {pfx}_loop")
    seq = []
    for k in range(DD): seq += [("W", k)]*4 + [("B", k)]*5
    for u in range(4):
        need = max([i for i, (t, k) in enumerate(seq) if (t == "B" and k == u) or (t == "W" and k == u+1)])
        wait = len(seq) - 1 - need
        own = u < 4 - DD
        if isg1 and u == 4 - DD: switch_to_fb(A)
        nxt = tail_next and not own
        c_step(A, u, wait, own or nxt, own, u < 3, accf, w_is_A, drain if u == 3 else None)
        if own: seq += [("W", u+DD)]*4 + [("B", u+DD)]*5
        if OPT["otouch"] and not isg1 and u == 3 - DD:
            A(f"buffer_load_dword a255, v5, s[{sOUT}:{sOUT+3}], s95 offen" + (" nt" if OPT["otouch"] == 2 else ""))
            seq += [("O", 0)]
        elif nxt: seq += [("N", 0)]*4
    stamp(A, pfx + "_loopdone")

sFA1, sFA2, sFR = 54, 55, 94
sUS = 52
vGE = 224
def fa_params(A):
    A(f"s_and_b32 s{sFR}, s{sFD}, 3")
    A(f"s_lshl_b32 s{sFR}, s{sFR}, 1")
    A(f"s_and_b32 s89, s{sFS}, 7")
    A(f"s_add_u32 s{sFR}, s{sFR}, s89")
    A(f"s_mul_i32 s89, s{sFR}, 52")
    A("s_lshr_b32 s89, s89, 8")
    A("s_mul_i32 s89, s89, 5")
    A(f"s_sub_u32 s{sFR}, s{sFR}, s89")
    if OPT["arot"] == 0: A(f"s_mov_b32 s{sFR}, 0")
    if OPT["arot"] == 2:
        A(f"s_add_u32 s{sFR}, s{sFS}, s{sFD}")
        A(f"s_and_b32 s{sFR}, s{sFR}, 1")
        A(f"s_mul_i32 s{sFR}, s{sFR}, 3")
    A(f"s_mul_i32 s86, s{sWAVE}, 5")
    A(f"s_add_u32 s86, s86, s{sFR}")
    A(f"s_mul_i32 s{sFA1}, s{sFS}, {0 if OPT.get('same') else 20}")
    A(f"s_add_u32 s{sFA1}, s{sFA1}, s86")
    A(f"s_lshl_b32 s{sFA1}, s{sFA1}, 12")
    A(f"s_add_u32 s{sFA1}, s{sFA1}, {WS_PQ:#x}")
    A(f"s_mul_i32 s{sFA2}, s86, 40960")
    A(f"s_mul_i32 s89, s{sFD}, {0 if OPT.get('same') else 5120}")
    A(f"s_add_u32 s{sFA2}, s{sFA2}, s89")
    A(f"s_add_u32 s{sFA2}, s{sFA2}, {WS_M:#x}")
fa_b = lambda i: 0 if i == 0 else 112 + 36*(i-1)
def fa_ld(A, i):
    for st in range(4):
        A(f"buffer_load_dwordx4 {ar(fa_b(i)+4*st,4)}, v{vB0}, s[{sWS}:{sWS+3}], s{sFA1} offen offset:{1024*st} sc1")
    for n in range(5):
        A(f"buffer_load_dwordx4 {ar(fa_b(i)+16+4*n,4)}, v{vB0 if n < 4 else vB1}, s[{sWS}:{sWS+3}], s{sFA2} offen offset:{1024*(n&3)} sc1")
    if i < 4:
        A(f"s_add_u32 s{sFA1}, s{sFA1}, 4096")
        A(f"s_add_u32 s{sFA2}, s{sFA2}, 40960")
        A(f"s_add_u32 s{sFR}, s{sFR}, 1")
        A(f"s_cmp_eq_u32 s{sFR}, 5")
        A(f"s_cselect_b32 s86, {5*4096}, 0")
        A(f"s_cselect_b32 s89, {5*40960}, 0")
        A(f"s_sub_u32 s{sFA1}, s{sFA1}, s86")
        A(f"s_sub_u32 s{sFA2}, s{sFA2}, s89")

def g1_params(A):
    W, Rr = vGE, vGE + 4
    A("v_and_b32 v2, 15, v1")
    A("v_lshrrev_b32 v3, 4, v1")
    A("v_xor_b32 v4, v2, v3")
    A("v_lshlrev_b32 v4, 4, v4")
    A("v_lshl_add_u32 v4, v2, 8, v4")
    A(f"s_mul_i32 s85, s{sWAVE}, 20480")
    A(f"s_add_u32 s85, s85, {LDS_RED}")
    A(f"v_add_u32 v{W}, s85, v4")
    for t in range(1, 4): A(f"v_xor_b32 v{W+t}, {64*t}, v{W}")
    A(f"s_and_b32 s85, s{sWAVE}, 1")
    A(f"s_lshr_b32 s86, s{sWAVE}, 1")
    A("s_lshl_b32 s87, s85, 7")
    A("v_xor_b32 v4, s87, v4")
    A("s_lshl_b32 s87, s86, 12")
    A(f"s_add_u32 s87, s87, {LDS_RED}")
    A(f"v_add_u32 v{Rr}, s87, v4")
    A(f"v_xor_b32 v{Rr+1}, 64, v{Rr}")
    A(f"v_add_u32 v{Rr+2}, 40960, v{Rr}")
    A(f"v_add_u32 v{Rr+3}, 40960, v{Rr+1}")
    A(f"s_lshl_b32 s87, s{sG1F}, 1")
    A("s_add_u32 s87, s87, s85")
    A("s_lshl_b32 s23, s87, 6")
    A("v_lshlrev_b32 v12, 3, v3")
    A("s_mul_i32 s87, s87, 40")
    A(f"s_mul_i32 s88, s{sG1D}, 5")
    A("s_add_u32 s87, s87, s88")
    A("s_add_u32 s87, s87, s86")
    A("s_lshl_b32 s87, s87, 10")
    A(f"s_add_u32 s{sUS}, s87, {WS_U:#x}")
    A(f"s_add_u32 s{sUS+1}, s{sUS}, 4096")
    A(f"s_mov_b32 s90, {0xBDD2D3E8:#x}")
    A(f"s_mov_b32 s91, {0xBDD2D3E8:#x}")
    A(f"v_mov_b32 v{vGE+8}, {0xC0135761:#x}")
    A(f"v_mov_b32 v{vGE+9}, {0xC0135761:#x}")
    fa_params(A)
def b1_loads():
    return [[f"buffer_load_dwordx2 {vr(vGE+18+2*j,2)}, v12, s[{sB1}:{sB1+3}], s23 offen offset:{32*j}"] for j in range(2)]
def zero_acc(A):
    for i in range(0, 80, 2): A(f"v_mov_b64 {vr(ACC+i,2)}, 0")

def g1_phase(A):
    c_loop(A, "g1", 16, lambda o: ar(G1A+o, 4), True, True, lambda n, t: [f"ds_write_b128 v{vGE+t}, {ar(G1A+(t*5+n)*4,4)} offset:{4096*n}"])
    for j in range(2):
        for k in range(2):
            A(f"v_lshlrev_b32 v{vGE+10+4*j+2*k}, 16, v{vGE+18+2*j+k}")
            A(f"v_and_b32 v{vGE+11+4*j+2*k}, 0xffff0000, v{vGE+18+2*j+k}")
    A("s_waitcnt lgkmcnt(0)")
    A("s_barrier")
    stamp(A, "g1_red")
    if OPT["lnpost"] == 2:
        A("s_cmp_lt_u32 s82, 24")
        A("s_cbranch_scc1 g1_nw2")
        w2_prefetch(A, 24, list(range(3 - OPT["lnpn"], 3)))
        A.label("g1_nw2")
    A0 = A
    R = 128
    def rd(r):
        for j in range(2):
            for part in range(4):
                A(f"ds_read_b128 {vr(R+32*r+16*j+4*part,4)}, v{vGE+4+j+2*(part>>1)} offset:{8192*r + 20480*(part&1)}")
    def fin(r):
        b = R + 32*r
        for j in range(2):
            x = b + 16*j
            for i in (0, 2):
                A(f"v_pk_add_f32 {vr(x+i,2)}, {vr(x+i,2)}, {vr(x+4+i,2)}")
                A(f"v_pk_add_f32 {vr(x+8+i,2)}, {vr(x+8+i,2)}, {vr(x+12+i,2)}")
        for j in range(2):
            x = b + 16*j
            for i in (0, 2): A(f"v_pk_add_f32 {vr(x+i,2)}, {vr(x+i,2)}, {vr(vGE+10+4*j+i,2)}")
        for j in range(2):
            x = b + 16*j
            for i in (0, 2): A(f"v_pk_add_f32 {vr(x+i,2)}, {vr(x+i,2)}, {vr(x+8+i,2)}")
        E = [b + 16*j + i for j in range(2) for i in range(4)]
        E2 = E[::2]
        for x in E2: A(f"v_pk_mul_f32 {vr(x+4,2)}, {vr(x,2)}, {vr(x,2)}")
        for x in E2: A(f"v_pk_fma_f32 {vr(x+4,2)}, {vr(x+4,2)}, s[90:91], {vr(vGE+8,2)}")
        for x in E2: A(f"v_pk_mul_f32 {vr(x+4,2)}, {vr(x+4,2)}, {vr(x,2)}")
        for x in E: A(f"v_exp_f32 v{x+4}, v{x+4}")
        for x in E2: A(f"v_pk_add_f32 {vr(x+4,2)}, {vr(x+4,2)}, 1.0 op_sel_hi:[1,0]")
        for x in E: A(f"v_rcp_f32 v{x+4}, v{x+4}")
        for x in E2: A(f"v_pk_mul_f32 {vr(x,2)}, {vr(x,2)}, {vr(x+4,2)}")
        for j in range(2):
            x = b + 16*j
            A(f"v_cvt_pk_bf16_f32 v{b+8+2*j}, v{x}, v{x+1}")
            A(f"v_cvt_pk_bf16_f32 v{b+9+2*j}, v{x+2}, v{x+3}")
        A(f"buffer_store_dwordx4 {vr(b+8,4)}, v{vB0}, s[{sWS}:{sWS+3}], s{sUS if r < 2 else sUS+1} offen offset:{2048*(r&1)} sc1")
    def mix(body, groups, lo=0):
        n = len(groups)
        pos = {}
        for k in range(n): pos.setdefault(lo + (k*(len(body) - lo - 2))//max(n, 1), []).append(groups[k])
        for i, x in enumerate(body):
            for g in pos.get(i, []):
                for y in g: A0(y)
            A0(x)
    G = []
    if OPT["xw"]:
        B = Asm(); xw_loads(B)
        for x in B.lines:
            if x.startswith("buffer_load") or not G: G.append([x])
            else: G[-1].append(x)
        G[1] = G[0] + G[1]; G = G[1:]
    n0 = (len(G)*OPT["xsp"])//10
    A = Asm()
    rd(0)
    A("s_waitcnt lgkmcnt(4)")
    rd(1)
    A("s_waitcnt lgkmcnt(8)")
    fin(0)
    mix(A.lines, G[:n0] + ([] if G[n0:] else [[poll_ld(15, 25)]]), 8)
    late = (G[n0:] + [[poll_ld(15, 25)]]) if G[n0:] else []
    k = 0 if late else 1
    A0(f"s_cmp_ge_u32 s{sWAVE}, 2")
    A0("s_cbranch_scc1 g1_e1")
    A = A0
    rd(2)
    A("s_waitcnt lgkmcnt(8)")
    A = Asm(); fin(1); mix(A.lines, late); A = A0
    A("s_waitcnt lgkmcnt(0)")
    fin(2)
    A(f"s_waitcnt vmcnt({2 + k})")
    A("s_branch g1_e2")
    A.label("g1_e1")
    A("s_waitcnt lgkmcnt(0)")
    A = Asm(); fin(1); mix(A.lines, late); A = A0
    A(f"s_waitcnt vmcnt({1 + k})")
    A.label("g1_e2")
    stamp(A, "g1_st")
    A(f"s_mov_b32 s{sQOK}, 0")
    A(f"v_cmp_ne_u32 vcc, s{sNON}, v{vPOLL}")
    A("s_cbranch_vccnz g1_q1")
    A(f"s_mov_b32 s{sQOK}, 1")
    fa_ld(A, 0)
    A("s_waitcnt vmcnt(9)")
    A("s_branch g1_q2")
    A.label("g1_q1")
    if OPT["tailw"]: A("s_waitcnt vmcnt(0)")
    else:
        c_wring(A)
        A(f"s_waitcnt vmcnt({4*OPT['d']})")
    A.label("g1_q2")
    A(f"s_mul_i32 s88, s{sG1D}, 24")
    A(f"s_add_u32 s88, s88, s{sG1F}")
    publish(A, "pub_u", FL_G1, 88, None)
    stamp(A, "g1_pub")
    for x in xw_writes(): A(x)
    if OPT["lnpost"] == 1:
        A("s_cmp_lt_u32 s82, 24")
        A("s_cbranch_scc1 g1_nw2")
        w2_prefetch(A, 24, list(range(3 - OPT["lnpn"], 3)))
        A.label("g1_nw2")
    if not OPT["tailw"]:
        A(f"s_cmp_eq_u32 s{sQOK}, 0")
        A("s_cbranch_scc1 g1_q3")
        c_wring(A)
        A("s_branch f_go")
        A.label("g1_q3")
    else:
        A(f"s_cmp_lg_u32 s{sQOK}, 0")
        A("s_cbranch_scc1 f_go")
    A(poll_ld(15, 25))
    A("s_waitcnt vmcnt(0)")
    poll_check(A, "pq", 15, 25)

def accb_init(st):
    return [f"v_lshlrev_b32 v{ACC+st*20}, 16, v{29+st}", f"v_lshlrev_b32 v{ACC+st*20+1}, 16, v{29+st}"] + \
           [f"v_mov_b64 {vr(ACC+st*20+k,2)}, {vr(ACC+st*20,2)}" for k in range(2, 20, 2)]
vTX = 246
def xw_setup():
    L = [f"s_mul_i32 s85, s{sWAVE}, 21504", f"s_add_u32 s85, s85, {LDS_RED}", f"v_add_u32 v{vTX+4}, s85, v{vB0}", f"s_sub_u32 s85, s85, s{sCM0}"]
    L += [f"v_add_u32 v{vTX+t}, s85, v{vTR+t}" for t in range(4)]
    return L
def xw_loads(A):
    emit_dma_block(A, c_wdma(3))
    for x in c_adv1(): A(x)
    for i in range(OPT["xw"]):
        for q in range(4):
            A(f"buffer_load_dwordx4 {vr(ACC+16*i+4*q,4)}, v{vWS_+q}, s[{sCW}:{sCW+3}], s{sC1} offen offset:{1024*q}")
        for x in c_adv1(): A(x)
def xw_writes():
    return [f"ds_write_b128 v{vTX+4}, {vr(ACC+16*i+4*q,4)} offset:{4096*i+1024*q}" for i in range(OPT["xw"]) for q in range(4)]
def xw_dma(A):
    emit_dma_block(A, c_wdma(3))
    for x in c_adv1(): A(x)
    A(f"s_mul_i32 s85, s{sWAVE}, 21504")
    A(f"s_add_u32 s85, s85, {LDS_RED}")
    for i in range(OPT["xw"]):
        A(f"s_add_u32 m0, s85, {4096*i}")
        A("s_nop 0")
        for q in range(4):
            A(f"buffer_load_dwordx4 v{vWS_+q}, s[{sCW}:{sCW+3}], s{sC1} offen offset:{1024*q} lds")
        for x in c_adv1(): A(x)
def f_setup1():
    B = Asm()
    B("v_and_b32 v5, 15, v1")
    B("v_lshlrev_b32 v6, 2, v5")
    B(f"s_lshl_b32 s23, s{sFS}, 8")
    B(f"s_add_u32 s23, s23, {WS_G:#x}")
    for st in range(4):
        B(f"buffer_load_dword v{8+st}, v6, s[{sWS}:{sWS+3}], s23 offen offset:{64*st} sc1")
    B("v_lshlrev_b32 v6, 1, v5")
    B(f"s_lshl_b32 s23, s{sFS}, 7")
    B(f"s_cmp_eq_u32 s{sWAVE}, 0")
    B("s_cselect_b32 s23, s23, 0x40000000")
    for st in range(4):
        B(f"buffer_load_ushort v{29+st}, v6, s[{sB2}:{sB2+3}], s23 offen offset:{32*st}")
    return B.lines
def f_setup2():
    B = Asm()
    for st in range(4):
        B(f"v_sub_f32 v{8+st}, 1.0, v{8+st}")
        if not OPT["xw"]:
            for x in accb_init(st): B(x)
    B("v_min_u32 v12, 23, v1")
    B("v_lshlrev_b32 v12, 7, v12")
    B(f"s_mul_i32 s23, s{sFD}, {24*128}")
    B(f"s_add_u32 s23, s23, {FL_G1:#x}")
    B("v_and_b32 v5, 15, v1")
    B("v_lshrrev_b32 v6, 4, v1")
    B("v_mul_u32_u24 v4, 336, v5")
    B("v_lshl_add_u32 v4, v6, 4, v4")
    B(f"s_mul_i32 s85, s{sWAVE}, 21504")
    B(f"s_add_u32 s85, s85, {LDS_RED}")
    B("v_add_u32 v4, s85, v4")
    B(f"s_mul_i32 s85, s{sWAVE}, {16*336}")
    B(f"s_add_u32 s85, s85, {LDS_RED}")
    B(f"s_lshl_b32 s95, s{sFS}, 2")
    B(f"s_add_u32 s95, s95, s{sWAVE}")
    B(f"s_mul_i32 s95, s95, {16*1280}")
    B(f"s_mul_i32 s87, s{sFD}, 160")
    B("s_add_u32 s95, s95, s87")
    for r in range(5):
        B(f"v_add_u32 v5, {64*r}, v1")
        B("v_mul_u32_u24 v6, 3277, v5")
        B("v_lshrrev_b32 v6, 16, v6")
        B("v_mul_u32_u24 v7, 20, v6")
        B("v_sub_u32 v7, v5, v7")
        B(f"v_mul_u32_u24 v{16+r}, 336, v6")
        B(f"v_lshl_add_u32 v{16+r}, v7, 4, v{16+r}")
        B(f"v_add_u32 v{16+r}, s85, v{16+r}")
        B(f"v_mul_u32_u24 v{24+r}, 1280, v6")
        B(f"v_lshl_add_u32 v{24+r}, v7, 3, v{24+r}")
    if OPT["otouch"]:
        B("v_lshrrev_b32 v5, 1, v1")
        B("v_and_b32 v5, 15, v5")
        B("v_mul_u32_u24 v5, 1280, v5")
        B("v_and_b32 v6, 1, v1")
        B("v_mul_u32_u24 v6, 156, v6")
        B("v_add_u32 v5, v5, v6")
    if OPT["xw"]:
        for x in xw_setup(): B(x)
    return B.lines

def f_phase(A):
    ACA = 128
    A.label("f_entry")
    fa_ld(A, 0)
    A.label("f_go")
    fa_ld(A, 1)
    stamp(A, "f_qok")
    A(f"s_or_b32 s85, s2, s{sWAVE}")
    A("s_cmp_lg_u32 s85, 0")
    A("s_cbranch_scc1 f_nox")
    A(f"s_mov_b32 s85, {FL_X:#x}")
    flag_store(A, 85)
    A.label("f_nox")
    fb = fa_b
    def fam(i, side=[]):
        mf = []
        for n in range(5):
            for st in range(4):
                c = vr(ACA+(st*5+n)*4, 4)
                mf.append(f"v_mfma_f32_16x16x32_bf16 {c}, {ar(fb(i)+16+4*n,4)}, {ar(fb(i)+4*st,4)}, {c if i else 0}")
        fill = [[] for _ in range(20)]
        for k, g in enumerate(side): fill[(k*20)//len(side)] += g
        weave(A, mf, fill)
    def ldg(i):
        B = Asm(); fa_ld(B, i); g = [[x] for x in B.lines[:9]]; g[-1] += B.lines[9:]; return g
    D = OPT["d"]
    fa_ld(A, 2)
    A(f"s_mov_b32 s{sC2}, s{sF2}")
    A(f"s_mov_b32 s{sCB2}, s{sFB2}")
    A(f"s_mov_b32 s{sCE2}, s{sFE2}")
    stamp(A, "fa_i2")
    A("s_waitcnt vmcnt(18)")
    fam(0, ldg(3))
    stamp(A, "fa_m0")
    A("s_waitcnt vmcnt(18)")
    fam(1, [[poll_ld(12, 23)]] + ldg(4))
    stamp(A, "fa_m1")
    A("s_waitcnt vmcnt(19) lgkmcnt(0)")
    fam(2, [[x] for x in flat([accb_init(st) for st in range(4)])] if OPT["xw"] else [])
    stamp(A, "fa_m2")
    A("s_waitcnt vmcnt(9)")
    stamp(A, "fa_s3")
    poll_check(A, "pu", 12, 23)
    stamp(A, "f_uok")
    br = []
    for sl in range(D):
        br += [[c_bload(sl, n)] for n in range(5)]; br[-1] += c_adv2()
    fam(3, br)
    A(f"s_waitcnt vmcnt({5*D})")
    fam(4, [[]]*3 + [[x] for x in c_tr(0, 0)] + [[]]*5)
    A(f"s_waitcnt vmcnt({5 if D == 2 else 10})")
    stamp(A, "fb_first")
    def drain(n, st):
        b = (st*5+n)*4
        return [f"v_fma_f32 v{ACA+b+i}, v{ACC+b+i}, v{8+st}, v{ACA+b+i}" for i in range(4)] + [f"ds_write_b128 v4, {vr(ACA+b,4)} offset:{st*16*336 + 64*n}"]
    if OPT["xw"]:
        X = OPT["xw"]
        place = lambda k: ("r", k) if k < 4 else (("x", k-4) if k < 4 + X else ("r", (k - 4 - X) & 3))
        seq = [("B", 0)]*5 + [("B", 1)]*5 + [("B", 2)]*5
        for u in range(12):
            idx = [i for i, (t, k) in enumerate(seq) if (t == "B" and k == u) or (t == "W" and k == u+1)]
            wait = len(seq) - 1 - max(idx)
            kw = u + 3 + OPT["xwd"]; kb = u + 3
            doW = 4 + X <= kw < 12; doB = kb < 12
            nx = None
            if u < 11:
                kind, sl = place(u+1)
                base = vTR if kind == "r" else vTX
                nx = [f"ds_read_b64_tr_b16 {ar(AS+16*((u+1)&1)+4*t+2*j,2)}, v{base+t} offset:{4096*sl+2048*j}" for t in range(4) for j in range(2)]
            c_step(A, u & 3, min(wait, 63), doW, doB, False, lambda o: vr(ACC+o, 4), False, drain if u == 11 else None,
                   wslot=place(kw)[1] if doW else None, trl=nx)
            if doW: seq += [("W", kw)]*4
            if doB: seq += [("B", kb)]*5
            if u in (3, 7): stamp(A, f"fb_g{u//4}")
        stamp(A, "fb_loopdone")
    else:
        A(f"s_mov_b32 s{sCNT}, 2")
        c_loop(A, "fb", 12, lambda o: vr(ACC+o, 4), False, False, drain)
    A("s_waitcnt lgkmcnt(0)")
    A("s_barrier")
    stamp(A, "f_red")
    R = ACC
    def rd(r):
        for part in range(4):
            A(f"ds_read_b128 {vr(R+16*r+4*part,4)}, v{16+r} offset:{21504*part}")
    rd(0); rd(1); rd(2)
    for r in range(5):
        A(f"s_waitcnt lgkmcnt({8 if r < 3 else 4*(4-r)})")
        b = R + 16*r
        for i in (0, 2):
            A(f"v_pk_add_f32 {vr(b+i,2)}, {vr(b+i,2)}, {vr(b+4+i,2)}")
            A(f"v_pk_add_f32 {vr(b+8+i,2)}, {vr(b+8+i,2)}, {vr(b+12+i,2)}")
        if r + 3 < 5: rd(r+3)
        for i in (0, 2): A(f"v_pk_add_f32 {vr(b+i,2)}, {vr(b+i,2)}, {vr(b+8+i,2)}")
        A(f"v_cvt_pk_bf16_f32 v{b}, v{b}, v{b+1}")
        A(f"v_cvt_pk_bf16_f32 v{b+1}, v{b+2}, v{b+3}")
        A(f"buffer_store_dwordx2 {vr(b,2)}, v{24+r}, s[{sOUT}:{sOUT+3}], s95 offen" + ["", " nt", " sc1", " sc0 sc1", " sc1 nt", " sc0 nt", " sc0 sc1 nt"][OPT["ost"]])

def kd(name):
    return f""".section .rodata,"a"
.p2align 6
.amdhsa_kernel {name}
  .amdhsa_next_free_vgpr 512
  .amdhsa_next_free_sgpr 102
  .amdhsa_accum_offset 256
  .amdhsa_group_segment_fixed_size 0
  .amdhsa_kernarg_size 96
  .amdhsa_user_sgpr_count 2
  .amdhsa_user_sgpr_kernarg_segment_ptr 1
  .amdhsa_system_sgpr_workgroup_id_x 1
.end_amdhsa_kernel
"""

def gen():
    hdr = open("cdna_kernels/" + NAME + ".s.ref").read().split("; Override")[0]
    hdr += f"; @launch grid=(256,1,1) block=(256,1,1) lds={LDS_BYTES}\n"
    hdr += '.amdgcn_target "amdgcn-amd-amdhsa--gfx950"\n'
    A = Asm()
    K = NAME + "_kernel"
    A(".text"); A(f".globl {K}"); A(".p2align 8"); A(f".type {K},@function"); A.label(K)
    prologue(A)
    A("s_cmp_ge_u32 s82, 16"); A("s_cbranch_scc1 r_notkv")
    A("s_and_b32 s85, s82, 3")
    A("s_lshl_b32 s86, s83, 2")
    A(f"s_add_u32 s{sA}, s85, s86")
    A("s_lshr_b32 s85, s82, 2")
    A("s_lshl_b32 s86, s84, 2")
    A(f"s_add_u32 s{sBp}, s85, s86")
    qkv_setup(A, False)
    if not OPT["xfirst"]: qkv_setup_w(A, False)
    A("s_waitcnt lgkmcnt(0)"); srds(A, ["X", "W"])
    stamp(A, "kv_pre")
    def mid(A):
        params1(A); srds(A, ["WS", "W1", "B1", "W2", "B2", "OUT"]); cw_init(A)
        if not OPT["defer"]:
            params2(A); g1_params(A); mid3(A)
    def mid3(A):
        kv_esetup(A)
        A("s_lshl_b32 s85, s81, 4")
        A("s_add_u32 s85, s85, s82")
        A("s_lshl_b32 s85, s85, 2")
        A(f"s_add_u32 s85, s85, s{sWAVE}")
        A("s_lshl_b32 s27, s85, 13")
        A(f"s_lshl_b32 s{sPUB}, s{sA}, 3")
        A(f"s_add_u32 s{sPUB}, s{sPUB}, s{sBp}")
        A(f"s_lshl_b32 s{sPUB}, s{sPUB}, 7")
        A(f"s_add_u32 s{sPUB}, s{sPUB}, {FL_KV:#x}")
    D = OPT["d"]; EW = 5 if D == 2 else 10
    assert D == 3
    def wst(k):
        g = c_wdma(k); g[-1] = g[-1] + c_adv1(); return g
    def bst(k):
        g = [[c_bload(k, n)] for n in range(5)]; g[-1] = g[-1] + c_adv2(); return g
    NI = 4 if OPT["xw"] else 48
    E = kv_estream()
    g1acc = lambda o: ar(G1A+o, 4)
    def pubkv(A, wait):
        A(f"s_waitcnt vmcnt({wait})")
        A("s_barrier")
        A(f"s_cmp_lg_u32 s{sWAVE}, 0")
        A("s_cbranch_scc1 g1_pub1")
        flag_store(A, sPUB)
        A.label("g1_pub1")
        stamp(A, "kv_pub")
    nin = OPT["nbin"]
    ex = {8: ([[poll_ld(vPO, 24)]] + b1_loads() + wst(0) + wst(1), 9), 9: (wst(2), 8)}
    d0 = OPT["defer"]
    out_kv = qkv_gemm(A, "kv", False, mid, ex, {9: lambda A: poll_check(A, "pln", vPO, 24)},
                      [(d0, params2), (d0+1, g1_params), (d0+2, mid3)] if d0 else [])
    if OPT["kvw2"]:
        A(f"buffer_load_dword a255, v15, s[{sW2}:{sW2+3}], s27 offen")
    for m in qkv_mfmas(FB_, False): A(m)
    stamp(A, "kv_loopdone")
    Bs = bst(0) + bst(1) + bst(2)
    body = E[0] + E[1]
    sp = min(26, (len(body) - 30 - OPT["b0"]) // max(nin, 1))
    pos = [len(body) - 30 - sp*(nin - 1 - k) for k in range(nin)]
    assert not pos or pos[0] >= 0
    for i, x in enumerate(body):
        if i in pos:
            for y in Bs[pos.index(i)]: A(y)
        A(x)
    A("s_waitcnt lgkmcnt(0)")
    A("s_barrier")
    for x in E[2] + E[3]: A(x)
    stamp(A, "kv_st")
    for g in Bs[nin:]:
        for y in g: A(y)
    seq = ["W"]*12 + [f"B{k//5}" for k in range(nin)] + ["S"]*4 + [f"B{k//5}" for k in range(nin, 15)]
    def need(tags): return len(seq) - 1 - max(i for i, t in enumerate(seq) if t in tags)
    A(f"s_waitcnt vmcnt({need(['W'])})")
    for x in c_tr(0, 0): A(x)
    if OPT["pubat"] == 0: pubkv(A, need(["S"]))
    for u in range(4):
        c_step(A, u, min(need([f"B{u}", f"W{u+1}", "W"]), 63), True, True, True, g1acc, True, first=(u == 0),
               pre=f_setup1() if u == 1 else [],
               side=({2: f_setup2()[NI:], 3: f_setup2()[:NI]}.get(u) if OPT["fsplit"] else (f_setup2() if u == 3 else None)))
        if u == 1: seq += ["G"]*8
        seq += [f"W{u+3}"]*4 + [f"B{u+3}"]*5
        stamp(A, f"g1_s{u}")
        if OPT["pubat"] == u + 1: pubkv(A, need(["S"]))
    A(f"s_mov_b32 s{sCNT}, 2")
    g1_phase(A)
    f_phase(A)
    stamp_flush(A)
    A.label("k_end"); A("s_endpgm")
    out_kv(A)
    if OPT["lnmid"]:
        A.label("g1_blk")
        w2_prefetch(A, 24, list(range(3 - OPT["lnpn"], 3)))
        A("s_branch g1_noblk")
    A.label("r_notkv")
    if OPT["pf_code"]:
        A("s_getpc_b64 s[86:87]")
        A.label("pc_here")
        A(f"s_sub_u32 s86, s86, pc_here-{K}")
        A("s_subb_u32 s87, s87, 0")
        A("s_sub_u32 s85, s82, 16")
        A("s_lshl_b32 s85, s85, 2")
        A(f"s_add_u32 s85, s85, s{sWAVE}")
        A("s_lshl_b32 s85, s85, 3")
        A("v_add_lshl_u32 v2, v1, s85, 7")
        A(f"v_min_u32 v2, k_codeend-{K}-4, v2")
        A("s_mov_b64 exec, 0xff")
        A("global_load_dword a255, v2, s[86:87]")
        A("s_mov_b64 exec, -1")
    A("s_cmp_lt_u32 s82, 24"); A("s_cbranch_scc1 r_q")
    A("s_sub_u32 s87, s82, 24")
    A("s_lshl_b32 s85, s81, 3")
    A(f"s_add_u32 s{sA}, s85, s87")
    aux = " nt" if OPT.get("nt") else ""
    w1l = lambda k: f"buffer_load_dword a255, v22, s[{sW1}:{sW1+3}], s{26 + k//3} offen offset:{1024*(k%3)}{aux}"
    def after(A):
        params1(A); srds(A, ["WS", "W1", "B1", "W2", "B2", "OUT"]); cw_init(A); params2(A); g1_params(A)
        w1_setup(A, 24, 22)
        for k in range(OPT["early"] if OPT["pf_w1"] else 0): A(w1l(k))
    ln_role(A, after, OPT["early"] if OPT["pf_w1"] else 0)
    publish(A, "pub_ln", FL_LN, sA)
    stamp(A, "ln_pub")
    if OPT["tlb"] == 2:
        A("v_lshlrev_b32 v2, 20, v1")
        A("s_mov_b64 exec, 0x3ff")
        A(f"buffer_load_dword a255, v2, s[{sWS}:{sWS+3}], 0 offen sc1")
        A(f"buffer_load_dword a255, v2, s[{sOUT}:{sOUT+3}], 0 offen")
        A(f"buffer_load_dword a255, v2, s[{sB2}:{sB2+3}], 0 offen")
        A("s_mov_b64 exec, -1")
    for k in range(OPT["early"], (3 - OPT["qw1n"]) if (OPT["pf_w1"] and not OPT["qfirst"]) else 0): A(w1l(k))
    def pf_h():
        A(poll_ld(vPO, 24))
        A("v_lshrrev_b32 v2, 5, v1")
        A("v_mul_u32_u24 v2, 40960, v2")
        A("v_and_b32 v3, 31, v1")
        A("v_lshl_add_u32 v2, v3, 7, v2")
        A("s_sub_u32 s85, s82, 24")
        A("s_lshl_b32 s85, s85, 2")
        A(f"s_add_u32 s85, s85, s{sWAVE}")
        A(f"s_mul_i32 s87, s85, {2*40960}")
        A("s_mul_i32 s86, s84, 20480")
        A("s_add_u32 s87, s87, s86")
        A("s_waitcnt vmcnt(0)")
        poll_check(A, "plnh", vPO, 24)
        A("s_barrier")
        for i in range(5):
            A(f"buffer_load_dword a255, v2, s[{sWS}:{sWS+3}], s87 offen sc1")
            A("s_add_u32 s87, s87, 4096")
    for c in str(OPT["lnseq"]):
        if c == "1" and OPT["pf_w1"]:
            for k in range(3, 6): A(w1l(k))
        if c == "6":
            for k in range(3): A(w1l(k))
        if c == "2": pf_h()
        if c == "3": w2_prefetch(A, 24, [0])
        if c == "7": w2_prefetch(A, 24, [2])
        if c == "4": w2_prefetch(A, 24, [0, 1])
        if c == "5": w2_prefetch(A, 24, [0, 1, 2])
    stamp(A, "ln_pf")
    for g in b1_loads(): A(g[0])
    A(poll_ld(vPO, 24))
    c_wring(A)
    A(f"s_waitcnt vmcnt({4*OPT['d']})")
    poll_check(A, "pln2", vPO, 24)
    A("s_barrier")
    for x in f_setup1(): A(x)
    c_bring(A)
    for i in range(80): A(f"v_accvgpr_write_b32 a{G1A+i}, 0")
    A(f"s_waitcnt vmcnt({5*D})")
    for x in f_setup2(): A(x)
    A(f"s_mov_b32 s{sCNT}, 3")
    A(f"s_mov_b32 s{sPUB}, {OPT['lnmid']}")
    A(f"s_waitcnt vmcnt({EW})")
    for x in c_tr(0, 0): A(x)
    stamp(A, "ln_ready")
    A("s_branch g1_loop")
    A.label("r_q")
    A("s_sub_u32 s87, s82, 16")
    A("s_and_b32 s85, s87, 3")
    A("s_lshl_b32 s86, s83, 2")
    A(f"s_add_u32 s{sA}, s85, s86")
    A("s_lshr_b32 s85, s87, 2")
    A("s_lshl_b32 s86, s84, 1")
    A(f"s_add_u32 s{sBp}, s85, s86")
    A(f"s_lshl_b32 s{sU}, s{sBp}, 2")
    A(f"s_and_b32 s85, s{sA}, 3")
    A(f"s_add_u32 s{sU}, s{sU}, s85")
    A(f"s_lshr_b32 s{sNR}, s{sA}, 2")
    def midq(A):
        params1(A); srds(A, ["WS", "W1", "WO", "W2", "B2", "OUT"]); cw_init(A); params2(A)
        w1_setup(A, 16, 12)
        if OPT["qw1"] == 0: q_pf_only(A)
        if not OPT["qdefer"]: q_setup(A)
    def qs(lo, hi):
        def f(A):
            B = Asm(); q_setup(B)
            assert len(B.lines) > 150
            for x in B.lines[lo:hi]: A(x)
        return f
    def qtouch(A):
        A("s_mov_b32 exec_lo, 0xffff03ff")
        A("s_mov_b32 exec_hi, 0")
        A(f"buffer_load_dword a255, v{vT1}, s[{sWS}:{sWS+3}], 0 offen sc1")
        A("s_mov_b64 exec, -1")
    qkv_setup(A, True)
    if not OPT["xfirst"]: qkv_setup_w(A, True)
    A("s_waitcnt lgkmcnt(0)"); srds(A, ["X", "W"])
    qb = [(max(OPT["qw1"], 1), q_loop_pf)]
    if OPT["qdefer"]:
        def both(A): q_loop_pf(A); q_setup(A); qtouch(A)
        qb = [(OPT["qw1"], both)]
    out_q = qkv_gemm(A, "q", True, midq, q_extras(), {9: lambda A: poll_check(A, "pln3", vPO, 24)}, qb)
    q_epilogue(A)
    A("s_lshl_b32 s88, s81, 3")
    A("s_add_u32 s88, s88, s82")
    A("s_sub_u32 s88, s88, 16")
    publish(A, "pub_q", FL_Q, 88)
    stamp(A, "q_pub")
    if OPT["qw2b"]: w2_prefetch(A, 16, list(range(3 - OPT["qw2b"], 3)))
    for x in f_setup1(): A(x)
    switch_to_fb(A)
    c_wring(A)
    if OPT["xw"]: xw_dma(A)
    A(poll_ld(vPO, 25))
    A(f"s_waitcnt vmcnt({4*D + 1 + (4 + 4*OPT['xw'] if OPT['xw'] else 0)})")
    for x in f_setup2(): A(x)
    A("s_waitcnt vmcnt(0)")
    poll_check(A, "pq2", vPO, 25)
    A("s_barrier")
    stamp(A, "q_allq")
    if OPT["pf_pq"]:
        A("s_sub_u32 s88, s82, 16")
        A("s_lshl_b32 s88, s88, 2")
        A(f"s_add_u32 s88, s88, s{sWAVE}")
        A("v_lshlrev_b32 v2, 7, v1")
        A(f"s_mul_i32 s85, s83, {8*81920}")
        A(f"s_mul_i32 s86, s88, {160*128}")
        A("s_add_u32 s85, s85, s86")
        A(f"s_add_u32 s85, s85, {WS_PQ:#x}")
        for i in range(3):
            if i == 2: A("s_mov_b32 exec_hi, 0")
            A(f"buffer_load_dword a255, v2, s[{sWS}:{sWS+3}], s85 offen sc1")
            A("s_add_u32 s85, s85, 8192")
        A("s_mov_b32 exec_hi, -1")
        A("s_cmp_ge_u32 s88, 20")
        A("s_cbranch_scc1 q_pfd")
        A("s_mul_i32 s85, s88, 40960")
        A("s_mul_i32 s86, s84, 20480")
        A("s_add_u32 s85, s85, s86")
        A(f"s_add_u32 s85, s85, {WS_M:#x}")
        for i in range(3):
            if i == 2: A("s_mov_b32 exec_hi, 0")
            A(f"buffer_load_dword a255, v2, s[{sWS}:{sWS+3}], s85 offen sc1")
            A("s_add_u32 s85, s85, 8192")
        A("s_mov_b32 exec_hi, -1")
        A.label("q_pfd")
    fa_params(A)
    A("s_branch f_entry")
    out_q(A)
    A.label("k_codeend")
    for i, l in enumerate(A.lines):
        if l.startswith("v_mad_i32_i24 v4, v3, -20"):
            A.lines[i] = l.replace("-20", "s89")
        if l == "s_movk_i32 s88, 3840":
            A.lines[i] = "s_movk_i32 s89, -20"
    if OPT["align"]:
        A.lines, nc, nn = align(A.lines, OPT["align"])
        print("aligned: widened", nc, "nops", nn, file=sys.stderr)
    nb = check(A.lines)
    print("hazards:", nb, file=sys.stderr)
    return hdr + A.text() + kd(K)

if __name__ == "__main__":
    out = sys.argv[1]
    for a in sys.argv[2:]:
        if a == "st": STAMPS = True
        else:
            k, v = a.split("="); OPT[k] = int(v)
    open(out, "w").write(gen())
    if STAMPS: json.dump(_st["names"], open(out + ".names", "w"))
```

```python
import sys, json
from asmlib import Asm, vr, ar, sr, check, align

NAME = "gated_mix__linear_attn_block__mixer_token_mlp__prompt"
WS_H   = 0x000000
WS_U   = 0x280000
WS_PQ  = 0x460000
WS_M   = 0x6E0000
WS_KVP = 0x7A8000
WS_ZP  = 0x880000
WS_G   = 0x972000
WS_FLAG = 0x974000
FL_X = WS_FLAG
FL_LN = WS_FLAG + 128
FL_KV = FL_LN + 64*128
FL_Q = FL_KV + 128*128
FL_G1 = FL_Q + 64*128
WS_SIZE = FL_G1 + 192*128
WS_STAMP = 0x1000000

sX, sW, sWS, sW1, sW2, sOUT, sWO, sB1, sB2, sGW = 28, 32, 36, 40, 44, 48, 52, 56, 60, 64
sWAVE = 68
sA, sBp = 69, 70
sG1D, sG1F, sFS, sFD = 71, 72, 73, 74
sCNT, sO1, sO2, sRD, sWR, sM0 = 75, 76, 77, 78, 79, 80
sEX, sMK = 90, 92
sU, sNR = 94, 95
sWR_, sWC_ = 96, 97
sPUB = 3
sQOK = 99
sM1 = 98
sC1, sC2, sCM0, sCB1, sCE1, sCB2, sCE2, sCST, sCW, sNON = 4, 5, 6, 7, 8, 9, 10, 11, 12, 16
sF1, sFB1, sFE1, sF2, sFB2, sFE2 = 17, 18, 19, 20, 21, 22
LOG2E = 0x3FB8AA3B
EPS6 = 0x358637BD
LDS_RED = 65536
LDS_BYTES = 163840
vXO, vWO_, vXB, vCUR = 16, 20, 25, 29
vWS_, vB0, vB1, vTR, vWS2 = 33, 37, 38, 39, 43
ACC = 48
FA_, FB_ = 112, 148
BR, AS = 0, 80
STG = 36864
vPOLL, vPO = 14, 13
OPT = {"rot": 1, "pf_w1": 1, "pf_w2": 1, "pf_code": 1, "pf_pq": 0, "sleep": 1, "early": 1, "d": 3, "qpoll": 2, "nbin": 10, "cv": 0, "lnseq": 15, "qw2": 0, "qw2b": 0, "ntq": 0, "qw1": 1, "qw1n": 2, "kvr": 1, "touch": 1, "perm": 0, "otouch": 0, "rdb": 4, "w2c": 1, "qfirst": 0, "rfd": 3, "tailw": 1, "pubat": 1, "kvw2": 0, "b0": 0, "qw1b": 0, "rfb": 4, "frot": 2, "arot": 2, "fmap": 1, "qrot": 1, "grot": 4, "lnpost": 0, "lnpn": 3, "align": 5, "defer": 0, "qdefer": 0, "lnmid": 0, "ost": 1, "tlb": 0, "pf0": 8, "xfirst": 1, "fsplit": 1, "xw": 3, "xwd": 0, "xsp": 6, "pfall": 0}
STAMPS = False
_st = {"n": 0, "names": []}

def stamp(A, name, real=False):
    if not STAMPS: return
    i = _st["n"]; _st["n"] += 1; _st["names"].append(name)
    A("s_memrealtime s[100:101]" if real else "s_memtime s[100:101]")
    A("s_waitcnt lgkmcnt(0)")
    A(f"v_writelane_b32 v47, s100, {i}")
def stamp_flush(A):
    if not STAMPS: return
    stamp(A, "end"); stamp(A, "endreal", True)
    A("s_lshl_b32 s100, s2, 2")
    A(f"s_add_u32 s100, s100, s{sWAVE}")
    A("s_lshl_b32 s100, s100, 8")
    A(f"s_add_u32 s100, s100, {WS_STAMP:#x}")
    A(f"s_mov_b32 s{sWS+2}, 0x2000000")
    A("v_lshlrev_b32 v46, 2, v1")
    A(f"buffer_store_dword v47, v46, s[{sWS}:{sWS+3}], s100 offen")

def srds(A, which):
    tab = {"X": (sX, 4, 2048*1280), "W": (sW, 6, 640*3840), "WO": (sWO, 8, 640*1280), "W1": (sW1, 12, 2048*3072), "B1": (sB1, 14, 3072),
           "W2": (sW2, 16, 1536*4096), "B2": (sB2, 18, 4096), "GW": (sGW, 20, 1280), "OUT": (sOUT, 22, 2048*1280), "WS": (sWS, 26, WS_SIZE)}
    for w in which:
        base, ptr, size = tab[w]
        A(f"s_mov_b64 s[{base}:{base+1}], s[{ptr}:{ptr+1}]")
        A(f"s_mov_b32 s{base+2}, {size:#x}")
        A(f"s_mov_b32 s{base+3}, 0x20000")

def flat(groups):
    out = []
    for g in groups: out += g if isinstance(g, list) else [g]
    return out

def weave(A, mf, fill, first=0):
    for i, m in enumerate(mf):
        A(m)
        if i < len(fill):
            for x in fill[i]: A(x)
    for g in fill[len(mf):]:
        for x in g: A(x)

def poll_off(A, dst, nper, total_waves_split=True):
    A(f"v_and_b32 v{dst}, {nper-1}, v1")
    A(f"s_mul_i32 s85, s{sWAVE}, {nper}")
    A(f"v_add_lshl_u32 v{dst}, v{dst}, s85, 7")
def poll_ld(vo, so):
    return f"buffer_load_dword v{vPOLL}, v{vo}, s[{sWS}:{sWS+3}], s{so} offen sc1"
def poll_check(A, name, vo, so):
    A(f"v_cmp_ne_u32 vcc, s{sNON}, v{vPOLL}")
    A(f"s_cbranch_vccz {name}_ok")
    A(f"s_mov_b32 s{sM1}, 0")
    A.label(f"{name}_spin")
    A(f"s_add_u32 s{sM1}, s{sM1}, 1")
    A(f"s_cmp_gt_u32 s{sM1}, 0x8000")
    A(f"s_cbranch_scc1 {name}_ok")
    A(f"s_sleep {OPT['sleep']}")
    A(poll_ld(vo, so))
    A("s_waitcnt vmcnt(0)")
    A(f"v_cmp_ne_u32 vcc, s{sNON}, v{vPOLL}")
    A(f"s_cbranch_vccnz {name}_spin")
    A.label(f"{name}_ok")
def flag_store(A, so):
    A(f"v_mov_b32 v2, s{sNON}")
    A("v_lshlrev_b32 v3, 2, v1")
    A("s_mov_b32 exec_hi, 0")
    A(f"buffer_store_dword v2, v3, s[{sWS}:{sWS+3}], s{so} offen sc1")
    A("s_mov_b32 exec_hi, -1")
def publish(A, name, base, sidx, wait=0):
    if wait is not None: A(f"s_waitcnt vmcnt({wait})")
    A("s_barrier")
    A(f"s_cmp_lg_u32 s{sWAVE}, 0")
    A(f"s_cbranch_scc1 {name}_np")
    A(f"s_lshl_b32 s85, s{sidx}, 7")
    A(f"s_add_u32 s85, s85, {base:#x}")
    flag_store(A, 85)
    A.label(f"{name}_np")

def prologue(A):
    A("s_cmp_ge_u32 s2, 256")
    A("s_cbranch_scc1 k_end")
    if STAMPS: A("v_mov_b32 v47, 0")
    stamp(A, "startreal", True); stamp(A, "start")
    A("s_load_dwordx16 s[4:19], s[0:1], 0")
    A("s_load_dwordx8 s[20:27], s[0:1], 64")
    if OPT["pf0"] and not OPT["pfall"]:
        A("s_getpc_b64 s[86:87]")
        A("v_lshlrev_b32 v2, 7, v0")
        A(f"s_mov_b64 exec, {(1 << OPT['pf0']) - 1:#x}")
        A("global_load_dword a255, v2, s[86:87] offset:128")
        A("s_mov_b64 exec, -1")
    A("v_lshrrev_b32 v2, 6, v0")
    A("v_and_b32 v1, 63, v0")
    if OPT["pfall"]:
        A("s_getpc_b64 s[86:87]")
        A.label("pc_0")
        A("s_lshr_b32 s85, s2, 3")
        A("v_lshl_add_u32 v3, s85, 2, v2")
        A("v_mad_u32_u24 v3, v3, 3, v1")
        A("v_add_u32 v4, -2, v1")
        A("v_cmp_gt_u32 vcc, 3, v1")
        A(f"s_mov_b64 exec, {(1 << (3 + OPT['pf0'])) - 1:#x}")
        A("v_cndmask_b32 v3, v4, v3, vcc")
        A("v_lshlrev_b32 v3, 7, v3")
        A("v_min_u32 v3, k_codeend-pc_0-4, v3")
        A("global_load_dword a255, v3, s[86:87]")
        A("s_mov_b64 exec, -1")
    A(f"v_readfirstlane_b32 s{sWAVE}, v2")
    A("s_and_b32 s81, s2, 7")
    A("s_lshr_b32 s82, s2, 3")
    A("s_lshr_b32 s83, s81, 1")
    A("s_and_b32 s84, s81, 1")

def params1(A):
    A(f"s_add_u32 s86, s26, {FL_X:#x}")
    A("s_addc_u32 s87, s27, 0")
    A("s_load_dword s3, s[86:87], 0")
    A("s_lshr_b32 s85, s82, 2")
    A("s_lshl_b32 s88, s83, 3")
    if OPT["perm"]: A("s_xor_b32 s85, s85, 7")
    A(f"s_add_u32 s{sFS}, s85, s88")
    A("s_and_b32 s85, s82, 3")
    A("s_lshl_b32 s88, s84, 2")
    A(f"s_add_u32 s{sFD}, s85, s88")
    if OPT["fmap"]:
        A("s_lshr_b32 s85, s82, 3")
        if OPT["fmap"] == 1:
            A("s_lshl_b32 s85, s85, 3")
            A(f"s_add_u32 s{sFS}, s85, s81")
        else:
            A(f"s_lshl_b32 s{sFS}, s81, 2")
            A(f"s_add_u32 s{sFS}, s{sFS}, s85")
        A(f"s_and_b32 s{sFD}, s82, 7")
    A("s_sub_u32 s85, s82, 8")
    A("s_cmp_lt_u32 s82, 16")
    A("s_cselect_b32 s85, s82, s85")
    A("s_and_b32 s89, s85, 3")
    A(f"s_add_u32 s{sG1D}, s89, s88")
    A("s_lshr_b32 s85, s85, 2")
    A("s_lshl_b32 s88, s85, 2")
    A(f"s_add_u32 s{sG1F}, s83, s88")
    A("s_lshr_b32 s88, s85, 2")
    A("s_lshl_b32 s85, s85, 1")
    A("s_add_u32 s85, s85, s88")
    A("s_lshl_b32 s85, s85, 1")
    if OPT["rfb"] == 0: A("s_mov_b32 s85, 0")
    A(f"s_mul_i32 s89, s89, {OPT['rdb']}")
    A("s_add_u32 s85, s85, s89")
    if OPT["grot"] == 2: A("s_lshl_b32 s85, s85, 1")
    A(f"s_and_b32 s99, s85, {(15 if OPT['grot'] == 4 else 8) if OPT['grot'] else 0}")

def cw_init(A):
    A(f"s_mov_b64 s[{sCW}:{sCW+1}], s[{sW1}:{sW1+1}]")
    A(f"s_mov_b64 s[{sCW+2}:{sCW+3}], s[{sW1+2}:{sW1+3}]")
def params2(A):
    if OPT.get("same"):
        for k, r in enumerate((sG1D, sG1F, sFS, sFD)):
            A(f"s_mov_b32 s{100 if not STAMPS else 64+k}, s{r}")
            A(f"s_mov_b32 s{r}, 0")
        params2_(A)
        for k, r in enumerate((sG1D, sG1F, sFS, sFD)): A(f"s_mov_b32 s{r}, s{64+k}")
    else: params2_(A)
def params2_(A):
    A(f"s_mul_i32 s{sCB1}, s{sWAVE}, {16*32*3072}")
    A(f"s_lshl_b32 s85, s{sG1F}, 7")
    A(f"s_add_u32 s{sCB1}, s{sCB1}, s85")
    A(f"s_add_u32 s{sCE1}, s{sCB1}, {16*32*3072}")
    A(f"s_mul_i32 s85, s99, {32*3072}")
    A(f"s_add_u32 s{sC1}, s{sCB1}, s85")
    A(f"s_mul_i32 s{sCB2}, s{sWAVE}, {16*40960}")
    A(f"s_mul_i32 s85, s{sG1D}, 5120")
    A(f"s_add_u32 s{sCB2}, s{sCB2}, s85")
    A(f"s_add_u32 s{sCE2}, s{sCB2}, {16*40960}")
    A(f"s_mul_i32 s85, s99, 40960")
    A(f"s_add_u32 s{sC2}, s{sCB2}, s85")
    A(f"s_mov_b32 s{sCST}, {32*3072}")
    A(f"s_lshl_b32 s{sCM0}, s{sWAVE}, 14")
    A("s_and_b32 s85, s82, 3")
    A(f"s_mul_i32 s85, s85, {OPT['rfd']}")
    A("s_lshr_b32 s86, s82, 2")
    A("s_mul_i32 s86, s86, 3")
    A("s_lshr_b32 s86, s86, 1")
    A("s_add_u32 s85, s85, s86")
    A("s_cmp_ge_u32 s85, 12")
    A("s_cselect_b32 s86, 12, 0")
    A("s_sub_u32 s85, s85, s86")
    if OPT["frot"] == 0: A("s_mov_b32 s85, 0")
    if OPT["frot"] == 2:
        A(f"s_add_u32 s85, s{sFS}, s{sFD}")
        A("s_and_b32 s85, s85, 1")
        A("s_mul_i32 s85, s85, 6")
    if OPT["frot"] == 3:
        A(f"s_add_u32 s85, s{sFS}, s{sFD}")
        A("s_mul_i32 s86, s85, 86")
        A("s_lshr_b32 s86, s86, 8")
        A("s_mul_i32 s86, s86, 3")
        A("s_sub_u32 s85, s85, s86")
        A("s_lshl_b32 s85, s85, 2")
    A(f"s_mul_i32 s{sFB1}, s{sWAVE}, {12*32*4096}")
    A(f"s_lshl_b32 s86, s{sFS}, 7")
    A(f"s_add_u32 s{sFB1}, s{sFB1}, s86")
    A(f"s_add_u32 s{sFE1}, s{sFB1}, {12*32*4096}")
    A(f"s_lshl_b32 s86, s85, 17")
    A(f"s_add_u32 s{sF1}, s{sFB1}, s86")
    A(f"s_mul_i32 s{sFB2}, s{sWAVE}, {12*40960}")
    A(f"s_mul_i32 s86, s{sFD}, 5120")
    A(f"s_add_u32 s{sFB2}, s{sFB2}, s86")
    A(f"s_add_u32 s{sFB2}, s{sFB2}, {WS_U:#x}")
    A(f"s_add_u32 s{sFE2}, s{sFB2}, {12*40960}")
    A(f"s_mul_i32 s86, s85, 40960")
    A(f"s_add_u32 s{sF2}, s{sFB2}, s86")
    A(f"v_lshlrev_b32 v{vB0}, 4, v1")
    A(f"v_add_u32 v{vB1}, 4096, v{vB0}")
    A("v_lshrrev_b32 v2, 2, v1")
    A("v_lshrrev_b32 v3, 1, v2")
    A("v_and_b32 v3, 3, v3")
    A("v_lshlrev_b32 v2, 7, v2")
    A("v_lshl_add_u32 v2, v3, 5, v2")
    A("v_and_b32 v3, 3, v1")
    A("v_lshl_add_u32 v2, v3, 3, v2")
    A(f"v_add_u32 v{vTR}, s{sCM0}, v2")
    for t in range(1, 4): A(f"v_xor_b32 v{vTR+t}, {32*t}, v{vTR}")
    A("v_lshrrev_b32 v2, 3, v1")
    A("v_lshrrev_b32 v3, 4, v1")
    A("v_lshlrev_b32 v3, 1, v3")
    A("v_and_b32 v4, 7, v1")
    A("v_xor_b32 v3, v3, v4")
    A("v_lshlrev_b32 v3, 4, v3")
    for base, stride in ((vWS_, 3072), (vWS2, 4096)):
        A(f"v_mul_u32_u24 v4, {stride}, v2")
        A(f"v_add_u32 v{base}, v3, v4")
        for q in range(1, 4): A(f"v_add_u32 v{base+q}, {q*(8*stride-1024)}, v{base}")
    poll_off(A, vPO, 16)
    A("v_lshlrev_b32 v15, 7, v1")
    A(f"s_mov_b32 s24, {FL_LN:#x}")
    A(f"s_mov_b32 s25, {FL_Q:#x}")
    A("s_waitcnt lgkmcnt(0)")
    A(f"s_mul_i32 s{sNON}, s3, 0x41C64E6D")
    A(f"s_add_u32 s{sNON}, s{sNON}, 0x3C6EF35F")

def qkv_setup(A, isq):
    A(f"s_lshr_b32 s{sWR_}, s{sWAVE}, 1")
    A(f"s_and_b32 s{sWC_}, s{sWAVE}, 1")
    A("v_lshrrev_b32 v2, 3, v1")
    A(f"s_lshl_b32 s85, s{sWAVE}, 5")
    A("v_add_u32 v2, s85, v2")
    A("v_mul_u32_u24 v2, 1280, v2")
    A("v_lshrrev_b32 v3, 4, v1")
    A("v_and_b32 v4, 7, v1")
    A("v_xor_b32 v4, v4, v3")
    A(f"v_lshl_add_u32 v{vXO}, v4, 4, v2")
    A("v_xor_b32 v4, 4, v4")
    A("v_lshl_add_u32 v6, v4, 4, v2")
    A(f"v_add_u32 v{vXO+1}, {8*1280-1024}, v6")
    A(f"v_add_u32 v{vXO+2}, {16*1280-2048}, v{vXO}")
    A(f"v_add_u32 v{vXO+3}, {24*1280-3072}, v6")
    A(f"s_mul_i32 s{sO1}, s{sA}, {0 if OPT.get('same') else 128*1280}")
    A(f"s_mov_b32 s{sO2}, 0")
    if OPT["rot"]:
        q = OPT["qrot"]
        if q == 1:
            A("s_and_b32 s85, s82, 3")
            A("s_lshl_b32 s85, s85, 2")
            A("s_lshr_b32 s85, 0x8530, s85")
            A("s_and_b32 s85, s85, 15")
            A("s_and_b32 s86, s82, 12")
            A("s_lshr_b32 s86, 0x8530, s86")
            A("s_and_b32 s86, s86, 15")
            A("s_add_u32 s85, s85, s86")
            A("s_add_u32 s85, s85, s83")
            A("s_add_u32 s85, s85, s84")
        else:
            A("s_lshr_b32 s85, s82, 2")
            A("s_add_u32 s85, s85, s82")
            A("s_and_b32 s85, s85, 1")
            A("s_mul_i32 s85, s85, 5")
            if q == 2:
                A("s_add_u32 s85, s85, s83")
                A("s_add_u32 s85, s85, s84")
            if q == 4:
                A("s_add_u32 s85, s85, s81")
            if q == 5:
                A("s_mov_b32 s85, s81")
        if isq: A("s_add_u32 s85, s85, 1")
        A("s_mul_i32 s86, s85, 26")
        A("s_lshr_b32 s86, s86, 8")
        A("s_mul_i32 s86, s86, 10")
        A("s_sub_u32 s85, s85, s86")
        A(f"s_mul_i32 s{sO2}, s85, {64*3840}")
        A("s_lshl_b32 s85, s85, 7")
        A(f"s_add_u32 s{sO1}, s{sO1}, s85")
    A(f"s_lshl_b32 s{sM0}, s{sWAVE}, 12")
    A(f"s_mul_i32 s{sM1}, s{sWAVE}, 5120")
    A(f"s_add_u32 s{sM1}, s{sM1}, 16384")
    A(f"s_mov_b32 s{sWR}, {2*STG}")

def qkv_setup_w(A, isq):
    if OPT.get("same"):
        A("s_mov_b32 s86, 1280")
    elif isq:
        A(f"s_mul_i32 s86, s{sBp}, 320")
    else:
        A(f"s_mul_i32 s86, s{sBp}, 160")
        A("s_add_u32 s86, s86, 1280")
    A(f"s_mul_i32 s85, s{sWAVE}, {16*3840}")
    A("s_add_u32 s85, s85, s86")
    A("s_movk_i32 s88, 3840")
    for n in range(5):
        if n: A(f"v_add_u32 v2, {64*n}, v1")
        q = "v2" if n else "v1"
        A(f"v_mul_u32_u24 v3, 3277, {q}")
        A("v_lshrrev_b32 v3, 16, v3")
        A(f"v_mad_i32_i24 v4, v3, -20, {q}")
        A("v_lshrrev_b32 v5, 2, v3")
        A("v_and_b32 v5, 2, v5")
        A("v_xor_b32 v4, v4, v5")
        comp = 1024*n if n < 4 else 0
        A(f"s_sub_u32 s87, s85, {comp}" if comp else "s_mov_b32 s87, s85")
        A("v_mad_u32_u24 v3, v3, s88, s87" if False else "v_mul_u32_u24 v3, 3840, v3")
        A("v_lshl_add_u32 v3, v4, 4, v3")
        if not isq:
            A("v_cmp_le_u32 vcc, 10, v4")
            A("v_add_u32 v5, 1120, v3")
            A("v_add_u32 v3, s87, v3")
            A("v_add_u32 v5, s87, v5")
            A(f"v_cndmask_b32 v{vWO_+n}, v3, v5, vcc")
        else:
            A(f"v_add_u32 v{vWO_+n}, s87, v3")

def nt(b): return " nt" if OPT["ntq"] & b else ""
def qkv_dma():
    L = [[f"s_add_u32 m0, s{sWR}, s{sM0}"]]
    for n in range(4):
        L.append([f"buffer_load_dwordx4 v{vXO+n}, s[{sX}:{sX+3}], s{sO1} offen offset:{1024*n}{nt(1)} lds"])
    L.append([f"s_add_u32 m0, s{sWR}, s{sM1}"])
    for n in range(4):
        L.append([f"buffer_load_dwordx4 v{vWO_+n}, s[{sW}:{sW+3}], s{sO2} offen offset:{1024*n}{nt(2)} lds"])
    L.append(["s_add_u32 m0, m0, 4096"])
    L.append([f"buffer_load_dwordx4 v{vWO_+4}, s[{sW}:{sW+3}], s{sO2} offen{nt(2)} lds"])
    return L
def qkv_adv():
    return [f"s_add_u32 s{sO1}, s{sO1}, 128", f"s_add_u32 s{sO2}, s{sO2}, {64*3840}", f"s_cmp_eq_u32 s{sO2}, {640*3840}",
            "s_cselect_b32 s85, 1280, 0", f"s_cselect_b32 s{sO2}, 0, s{sO2}", f"s_sub_u32 s{sO1}, s{sO1}, s85",
            f"s_add_u32 s{sWR}, s{sWR}, {STG}", f"s_cmp_eq_u32 s{sWR}, {4*STG}", f"s_cselect_b32 s{sWR}, 0, s{sWR}"]
def emit_dma_block(A, groups):
    for g in groups:
        for x in g: A(x)
        if "m0" in g[0].split(",")[0]: A("s_nop 0")

NW = 5
vXB, vCUR = 26, 6
vXB = 208
vCUR = 215
def qkv_reads(kk, fs):
    def wr(t):
        return [f"ds_read_b64_tr_b16 {ar(fs+16+4*t+2*j,2)}, v{vCUR+2+t} offset:{kk*10240 + j*1280}" for j in range(2)]
    L = wr(0)
    for st in range(4):
        L.append(f"ds_read_b128 {ar(fs+4*st,4)}, v{vCUR+kk} offset:{st*2048}")
    for t in range(1, 5): L += wr(t)
    return L
def qkv_mfmas(fs, isq):
    L = []
    for t in range(5):
        for st in range(4):
            x = ar(fs + 4*st, 4); w = ar(fs + 16 + 4*t, 4); c = vr(ACC + (st*5+t)*4, 4)
            L.append(f"v_mfma_f32_16x16x32_bf16 {c}, {w}, {x}, {c}" if isq else f"v_mfma_f32_16x16x32_bf16 {c}, {x}, {w}, {c}")
    return L

def qkv_gemm(A, pfx, isq, mid_setup, extras, pres, blk):
    if OPT["xfirst"]:
        emit_dma_block(A, qkv_dma()[:5])
        qkv_setup_w(A, isq)
        emit_dma_block(A, qkv_dma()[5:])
    else:
        emit_dma_block(A, qkv_dma())
    for x in qkv_adv(): A(x)
    stamp(A, pfx + "_iss0")
    mid_setup(A)
    A("v_and_b32 v2, 15, v1")
    A("v_lshrrev_b32 v3, 4, v1")
    A("v_lshrrev_b32 v4, 1, v2")
    A("v_xor_b32 v4, v4, v3")
    A("v_lshlrev_b32 v4, 4, v4")
    A("v_lshl_add_u32 v4, v2, 7, v4")
    A(f"s_lshl_b32 s85, s{sWR_}, 13")
    A(f"v_add_u32 v{vXB}, s85, v4")
    A(f"v_xor_b32 v{vXB+1}, 64, v{vXB}")
    A("v_lshrrev_b32 v4, 2, v2")
    A("v_lshl_add_u32 v4, v3, 3, v4")
    A("v_mul_u32_u24 v4, 320, v4")
    A("v_and_b32 v5, 1, v1")
    A("v_lshl_add_u32 v4, v5, 3, v4")
    A("v_add_u32 v4, 16384, v4")
    A("v_bfe_u32 v5, v1, 1, 1")
    A("v_and_b32 v6, 1, v3")
    A("v_lshlrev_b32 v6, 1, v6")
    A(f"s_mul_i32 s85, s{sWC_}, {10 if isq else 5}")
    for t in range(5):
        if isq: c0, step = [(0, 1), (2, 1), (4, 5), (5, 1), (7, 1)][t]
        else: c0, step = [(0, 1), (2, 1), (4, 6), (11, 1), (13, 1)][t]
        A(f"s_add_u32 s86, s85, {c0}")
        if step == 1: A("v_add_u32 v7, s86, v5")
        else: A(f"v_mad_u32_u24 v7, v5, {step}, s86")
        A("v_xor_b32 v7, v7, v6")
        A(f"v_lshl_add_u32 v{vXB+2+t}, v7, 4, v4")
    zero_acc(A)
    A(f"s_mov_b32 s{sRD}, {2*STG}")
    A(f"s_mov_b32 s{sCNT}, 0")
    upd = [f"v_add_u32 v{vCUR+i}, s{sRD}, v{vXB+i}" for i in range(7)]
    rdadv = [f"s_add_u32 s{sRD}, s{sRD}, {STG}", f"s_cmp_eq_u32 s{sRD}, {4*STG}", f"s_cselect_b32 s{sRD}, 0, s{sRD}"]
    def spread(rd, dma_slots, groups, scal):
        fill = [[] for _ in range(20)]
        k = 0
        for gi in range(9):
            for _ in range(2 if gi < 5 else 1):
                fill[gi].append(rd[k]); k += 1
        g = list(groups)
        for sl in dma_slots:
            if not g: break
            if "m0" in g[0][0].split(",")[0]:
                fill[sl-1] += g.pop(0)
            fill[sl] += g.pop(0)
        return fill, g
    def put_scal(fill, scal, start):
        sc = list(scal); gi = start
        while sc:
            room = 2 - len(fill[gi]) if gi < 19 else len(sc)
            for _ in range(max(room, 0)):
                if sc: fill[gi].append(sc.pop(0))
            gi += 1
    def top_half(wait, groups, pre=None, slots=(3, 7, 11, 15, 19)):
        A(f"s_waitcnt vmcnt({wait}) lgkmcnt(0)")
        if pre: pre(A)
        A("s_barrier")
        fill, rest = spread(qkv_reads(0, FA_), slots, groups, [])
        weave(A, qkv_mfmas(FB_, isq), fill)
        return rest
    def bot_half(adv, tail, groups=[], slots=(2, 6, 10, 13)):
        A("s_waitcnt lgkmcnt(0)")
        fill, rest = spread(qkv_reads(1, FB_), slots, groups, [])
        assert not rest
        put_scal(fill, rdadv + upd, 9)
        put_scal(fill, (qkv_adv() if adv else []) + tail, 14)
        weave(A, qkv_mfmas(FA_, isq), fill)
    for x in upd: A(x)
    stamp(A, pfx + "_setup")
    emit_dma_block(A, qkv_dma())
    for x in qkv_adv(): A(x)
    stamp(A, pfx + "_issued")
    A("s_waitcnt vmcnt(9)")
    A("s_barrier")
    stamp(A, pfx + "_first")
    for x in qkv_reads(0, FA_): A(x)
    emit_dma_block(A, qkv_dma()[:7])
    A(f"s_branch {pfx}_mid")
    A(".p2align 3")
    A.label(f"{pfx}_loop")
    outl = []
    for k, (c, fn) in enumerate(blk):
        A(f"s_cmp_eq_u32 s{sCNT}, {c}")
        A(f"s_cbranch_scc1 {pfx}_blk{k}")
    A.label(f"{pfx}_noblk")
    rest = top_half(9, qkv_dma())
    assert len(rest) == 5
    A.label(f"{pfx}_mid")
    bot_half(True, [f"s_add_u32 s{sCNT}, s{sCNT}, 1", f"s_cmp_lt_u32 s{sCNT}, 8"], rest)
    A(f"s_cbranch_scc1 {pfx}_loop")
    for it in (8, 9):
        g, w = extras.get(it, ([], 9 if it == 8 else 0))
        sl = (1, 3, 5, 8, 10, 12, 14, 16, 18) if len(g) > 14 else (2, 5, 8, 11, 14, 17)
        rest = top_half(w, g, pres.get(it), sl)
        bot_half(False, [], rest, sl)
    stamp(A, pfx + "_loop9")
    A("s_waitcnt lgkmcnt(0)")
    if isq:
        for m in qkv_mfmas(FB_, isq): A(m)
        A("s_nop 7")
        stamp(A, pfx + "_loopdone")
    def outline(A):
        for k, (c, fn) in enumerate(blk):
            A.label(f"{pfx}_blk{k}")
            fn(A)
            A(f"s_branch {pfx}_noblk")
    return outline

PAIRS = [(2,0),(3,0),(2,1),(3,1),(4,1),(3,2),(4,2)]
def kv_mask(i):
    te, tc = PAIRS[i]; m = 0
    for l in range(64):
        c = 16*tc + l % 16; e = [-8, 8, 24][te-2] + 4*(l//16)
        if c < 40 and e >= 0 and c//20 == e//20: m |= 1 << l
    return m

KVB = [sum(bin(kv_mask(j)).count("1") for j in range(i)) for i in range(8)]
def kv_rank(A, dst, i, shift, add=0):
    m = kv_mask(i)
    A(f"s_mov_b32 s85, {m & 0xffffffff:#x}")
    A(f"s_mov_b32 s86, {m >> 32:#x}")
    A(f"v_mbcnt_lo_u32_b32 v{dst}, s85, {KVB[i]}" if KVB[i] <= 64 else f"v_mov_b32 v{dst}, {KVB[i]}\nv_mbcnt_lo_u32_b32 v{dst}, s85, v{dst}")
    A(f"v_mbcnt_hi_u32_b32 v{dst}, s86, v{dst}")
    A(f"v_lshlrev_b32 v{dst}, {shift}, v{dst}")
    if add: A(f"v_add_u32 v{dst}, {add}, v{dst}")
vKR = 246
def phi4(A, b, T, dst=None):
    dst = b if dst is None else dst
    A(f"v_pk_mul_f32 {vr(T,2)}, {vr(b,2)}, s[{sL2}:{sL2+1}]")
    A(f"v_pk_mul_f32 {vr(T+2,2)}, {vr(b+2,2)}, s[{sL2}:{sL2+1}]")
    for i in range(4): A(f"v_exp_f32 v{T+i}, v{T+i} clamp")
    for i in range(4): A(f"v_max_f32 v{dst+i}, {EPS6:#x}, v{b+i}")
    A(f"v_pk_add_f32 {vr(dst,2)}, {vr(dst,2)}, {vr(T,2)}")
    A(f"v_pk_add_f32 {vr(dst+2,2)}, {vr(dst+2,2)}, {vr(T+2,2)}")
sL2 = 88
vEW, vEZ, vER, sKVS = 250, 251, 252, 26
def kv_esetup(A):
    A(f"s_lshl_b32 s85, s{sBp}, 1")
    A(f"s_add_u32 s85, s85, s{sWC_}")
    A("s_lshl_b32 s86, s85, 4")
    A(f"s_add_u32 s86, s86, s{sA}")
    A("s_lshl_b32 s87, s86, 8")
    A(f"s_mul_i32 s{sKVS}, s86, 3200")
    A(f"s_sub_u32 s87, s87, s{sKVS}")
    A(f"s_add_u32 s87, s87, {WS_ZP - WS_KVP:#x}")
    A("s_lshr_b32 s87, s87, 4")
    A(f"s_add_u32 s{sKVS}, s{sKVS}, {WS_KVP:#x}")
    A("v_mov_b32 v2, 0x7ff00000")
    for k in range(4):
        mA = kv_mask(k); mB = kv_mask(4+k) if k < 3 else 0xffff
        A(f"s_cmp_eq_u32 s{sWR_}, 0")
        A(f"s_mov_b32 s92, {mB & 0xffffffff:#x}")
        A(f"s_cselect_b32 s92, {mA & 0xffffffff:#x}, s92")
        A(f"s_mov_b32 s93, {mB >> 32:#x}")
        A(f"s_cselect_b32 s93, {mA >> 32:#x}, s93")
        if k < 3: A(f"s_mov_b32 s88, {KVB[4+k]}")
        A(f"s_cselect_b32 s88, {KVB[k]}, s{88 if k < 3 else 87}")
        A(f"v_mov_b32 v{vKR+k}, s88")
        A(f"v_mbcnt_lo_u32_b32 v{vKR+k}, s92, v{vKR+k}")
        A(f"v_mbcnt_hi_u32_b32 v{vKR+k}, s93, v{vKR+k}")
        A(f"v_lshlrev_b32 v{vKR+k}, 4, v{vKR+k}")
        A(f"v_cndmask_b32 v{vKR+k}, v2, v{vKR+k}, s[92:93]")
    A(f"s_mul_i32 s85, s{sWAVE}, 8448")
    A(f"s_add_u32 s85, s85, {LDS_RED}")
    A(f"v_add_u32 v{vEW}, s85, v{vB0}")
    A(f"v_lshl_add_u32 v{vEZ}, v1, 2, s85")
    A(f"s_mul_i32 s85, s{sWC_}, 8448")
    A(f"s_lshl_b32 s86, s{sWR_}, 12")
    A("s_add_u32 s85, s85, s86")
    A(f"s_add_u32 s85, s85, {LDS_RED}")
    A(f"v_add_u32 v{vER}, s85, v{vB0}")
    A("v_and_b32 v2, 15, v1")
    A(f"v_cmp_gt_u32 s[{sMK}:{sMK+1}], 8, v2")
    A("v_cmp_lt_u32 s[64:65], 15, v1")
    A("v_cmp_lt_u32 s[66:67], 31, v1")
def kv_estream():
    PB, KA, ONE, TMP = 128, 168, 208, 212
    E = [Asm(), Asm(), Asm(), Asm()]
    A = E[0]
    A(f"s_mov_b32 s{sL2}, {LOG2E:#x}")
    A(f"s_mov_b32 s{sL2+1}, {LOG2E:#x}")
    for i in range(4): A(f"v_mov_b32 v{ONE+i}, 0x3f803f80")
    for st in range(4):
        A = E[st // 2]
        for t in range(3):
            b = ACC + (st*5+t)*4
            if t < 2: phi4(A, b, TMP)
            else:
                phi4(A, b, TMP, TMP+4)
                for i in range(4): A(f"v_cndmask_b32 v{b+i}, v{b+i}, v{TMP+4+i}, s[{sMK}:{sMK+1}]")
        for t in range(5):
            b = ACC + (st*5+t)*4
            d = PB + (t*2 + st//2)*4 + (st & 1)*2
            A(f"v_cvt_pk_bf16_f32 v{d}, v{b}, v{b+1}")
            A(f"v_cvt_pk_bf16_f32 v{d+1}, v{b+2}, v{b+3}")
        if st & 1:
            sp = st // 2
            A("s_nop 1")
            for tc in range(3):
                c = vr(KA+4*(7+tc), 4)
                A(f"v_mfma_f32_16x16x32_bf16 {c}, {vr(ONE,4)}, {vr(PB+(tc*2+sp)*4,4)}, {c if sp else 0}")
            for i, (te, tc) in enumerate(PAIRS):
                c = vr(KA+4*i, 4)
                A(f"v_mfma_f32_16x16x32_bf16 {c}, {vr(PB+(te*2+sp)*4,4)}, {vr(PB+(tc*2+sp)*4,4)}, {c if sp else 0}")
    A = E[1]
    A("s_nop 0")
    A(f"v_cndmask_b32 v{KA+28}, v{KA+28}, v{KA+32}, s[64:65]")
    A(f"v_cndmask_b32 v{KA+28}, v{KA+28}, v{KA+36}, s[66:67]")
    A(f"ds_write_b32 v{vEZ}, v{KA+28} offset:7168")
    for i in range(7): A(f"ds_write_b128 v{vEW}, {vr(KA+4*i,4)} offset:{1024*i}")
    A = E[2]
    for k in range(4):
        A(f"ds_read_b128 {vr(PB+8*k,4)}, v{vER} offset:{1024*k}")
        A(f"ds_read_b128 {vr(PB+8*k+4,4)}, v{vER} offset:{1024*k + 16896}")
    A = E[3]
    A("s_waitcnt lgkmcnt(0)")
    for k in range(4):
        for i in (0, 2): A(f"v_pk_add_f32 {vr(PB+8*k+i,2)}, {vr(PB+8*k+i,2)}, {vr(PB+8*k+4+i,2)}")
    for k in range(4):
        A(f"buffer_store_dwordx4 {vr(PB+8*k,4)}, v{vKR+k}, s[{sWS}:{sWS+3}], s{sKVS} offen sc1")
    return [e.lines for e in E]

def w1_setup(A, locbase, vreg):
    A(f"s_sub_u32 s88, s82, {locbase}")
    A("s_lshl_b32 s88, s88, 2")
    A(f"s_add_u32 s88, s88, s{sWAVE}")
    A(f"v_and_b32 v{vreg}, 31, v1")
    A(f"v_mul_u32_u24 v{vreg}, 3072, v{vreg}")
    A("v_lshrrev_b32 v3, 5, v1")
    A(f"v_lshl_add_u32 v{vreg}, v3, 9, v{vreg}")
    A(f"s_mul_i32 s85, s88, {32*3072}")
    A("s_lshl_b32 s86, s83, 7")
    A("s_add_u32 s85, s85, s86")
    A(f"s_mul_i32 s86, s84, {1024*3072}")
    A("s_add_u32 s26, s86, s85")
    A("s_xor_b32 s87, s84, 1")
    A(f"s_mul_i32 s87, s87, {1024*3072}")
    A("s_add_u32 s27, s87, s85")

def w2_prefetch(A, locbase, parts):
    A(f"s_sub_u32 s85, s82, {locbase}")
    A("s_lshl_b32 s85, s85, 2")
    A(f"s_add_u32 s85, s85, s{sWAVE}")
    if OPT["fmap"]:
        A("v_lshrrev_b32 v2, 2, v1")
        A("v_lshlrev_b32 v2, 12, v2")
        A("v_and_b32 v3, 3, v1")
        A(f"v_lshl_add_u32 v2, v3, {10 if OPT['fmap'] == 1 else 7}, v2")
        A(f"s_mul_i32 s85, s85, {48*4096}")
        A(f"s_lshl_b32 s86, s81, {7 if OPT['fmap'] == 1 else 9}")
        A("s_add_u32 s85, s85, s86")
        if parts[0]: A(f"s_add_u32 s85, s85, {16*4096*parts[0]}")
        for i in parts:
            A(f"buffer_load_dword a255, v2, s[{sW2}:{sW2+3}], s85 offen")
            if i != parts[-1]: A(f"s_add_u32 s85, s85, {16*4096}")
        return
    if OPT["w2c"]:
        A("s_lshl_b32 s86, s81, 5")
        A("s_add_u32 s85, s85, s86")
        A("s_lshl_b32 s85, s85, 13")
        if parts[0]: A(f"s_add_u32 s85, s85, {(8192*256)*parts[0]}")
        for i in parts:
            A(f"buffer_load_dword a255, v15, s[{sW2}:{sW2+3}], s85 offen")
            if i != parts[-1]: A(f"s_add_u32 s85, s85, {8192*256}")
        return
    A("v_lshrrev_b32 v2, 3, v1")
    A("v_lshlrev_b32 v2, 12, v2")
    A("v_and_b32 v3, 7, v1")
    A("v_lshl_add_u32 v2, v3, 7, v2")
    A("s_mul_i32 s85, s85, 24")
    A("s_mul_i32 s86, s84, 768")
    A("s_add_u32 s85, s85, s86")
    A(f"s_add_u32 s85, s85, {8*parts[0]}")
    A("s_lshl_b32 s85, s85, 12")
    A("s_lshl_b32 s86, s83, 10")
    A("s_add_u32 s85, s85, s86")
    for i in parts:
        A(f"buffer_load_dword a255, v2, s[{sW2}:{sW2+3}], s85 offen")
        if i != parts[-1]: A(f"s_add_u32 s85, s85, {8*4096}")

QCB = [0, 16, 32, 40, 56]
QDP = [(0,0),(0,1),(1,0),(1,1),(1,2),(2,1),(2,2),(2,4),(3,3),(3,4),(4,2),(4,3),(4,4)]
sMA, sZO, sKO, sPQ, sWOo, sGo = 56, 58, 59, 64, 67, 23
vWOd, vWOt, vZA, vKP, vGo, vT1 = 248, 246, 252, 245, 25, 244
MSK = 194
def q_setup(A):
    T = 128
    A(f"s_mul_i32 s{sWOo}, s{sU}, {40*1280}")
    A(f"s_mul_i32 s86, s{sNR}, 320")
    A(f"s_add_u32 s{sWOo}, s{sWOo}, s86")
    A(f"s_lshl_b32 s86, s{sWAVE}, 8")
    for n in range(4):
        A(f"v_add_u32 v2, {64*n}, v1")
        A("v_add_u32 v2, s86, v2")
        A("v_mul_u32_u24 v3, 3277, v2")
        A("v_lshrrev_b32 v3, 16, v3")
        A("v_mul_u32_u24 v4, 20, v3")
        A("v_sub_u32 v4, v2, v4")
        A("v_mul_u32_u24 v3, 1280, v3")
        A(f"v_lshl_add_u32 v{vWOd+n}, v4, 4, v3")
        if n: A(f"v_subrev_u32 v{vWOd+n}, {1024*n}, v{vWOd+n}")
    A("v_and_b32 v3, 15, v1")
    A("v_lshrrev_b32 v4, 4, v1")
    A(f"v_lshlrev_b32 v{vGo}, 2, v3")
    A(f"s_lshl_b32 s86, s{sA}, 9")
    A(f"s_lshl_b32 s87, s{sWR_}, 8")
    A("s_add_u32 s86, s86, s87")
    A(f"s_add_u32 s{sGo}, s86, {WS_G:#x}")
    A("v_bfe_u32 v5, v1, 1, 2")
    A(f"s_lshl_b32 s85, s{sWAVE}, 2")
    A("v_add_lshl_u32 v5, v5, s85, 3")
    A("v_and_b32 v6, 1, v1")
    A(f"s_lshl_b32 s85, s{sBp}, 1")
    A("v_add3_u32 v5, v5, v6, s85")
    A(f"v_lshlrev_b32 v{vKP}, 7, v5")
    A("v_lshrrev_b32 v5, 2, v3")
    A("v_lshl_add_u32 v5, v4, 2, v5")
    A("v_and_b32 v6, 7, v5")
    A("v_mul_u32_u24 v6, 320, v6")
    A("v_mul_u32_u24 v5, 320, v5")
    A("v_and_b32 v7, 3, v1")
    A("v_lshlrev_b32 v7, 3, v7")
    A(f"s_lshl_b32 s86, s{sWAVE}, 5")
    A("v_add_u32 v7, s86, v7")
    A(f"v_add_u32 v{vWOt}, v6, v7")
    A(f"v_add_u32 v{vWOt+1}, v5, v7")
    A(f"s_lshr_b32 s86, s{sU}, 2")
    A("s_mul_i32 s86, s86, 5")
    A(f"s_bfe_u32 s87, s{sU}, 0x10001")
    A(f"s_and_b32 s88, s{sU}, 1")
    A("s_mul_i32 s89, s87, 3")
    A("s_add_u32 s89, s89, s88")
    A("s_add_u32 s89, s89, s86")
    A(f"s_mul_i32 s{sMA}, s89, 40960")
    A("s_add_u32 s86, s86, 2")
    A(f"s_mul_i32 s{sMA+1}, s86, 40960")
    A("s_lshl_b32 s87, s87, 3")
    A("s_lshl_b32 s88, s88, 9")
    A(f"s_add_u32 s{sMA+1}, s{sMA+1}, s87")
    A(f"s_add_u32 s{sMA+1}, s{sMA+1}, s88")
    A(f"s_mul_i32 s86, s{sNR}, 10240")
    A(f"s_lshl_b32 s87, s{sWAVE}, 10")
    A("s_add_u32 s86, s86, s87")
    A(f"s_add_u32 s86, s86, {WS_M:#x}")
    A(f"s_add_u32 s{sMA}, s{sMA}, s86")
    A(f"s_add_u32 s{sMA+1}, s{sMA+1}, s86")
    A(f"s_lshl_b32 s85, s{sA}, 1")
    A(f"s_add_u32 s85, s85, s{sWR_}")
    A("s_mul_i32 s85, s85, 20")
    A(f"s_mul_i32 s86, s{sBp}, 5")
    A("s_add_u32 s85, s85, s86")
    A("s_lshl_b32 s85, s85, 12")
    A(f"s_add_u32 s85, s85, {WS_PQ:#x}")
    A(f"s_mul_i32 s86, s{sWC_}, {3*4096}")
    A(f"s_add_u32 s{sPQ}, s86, s85")
    A(f"s_add_u32 s{sPQ+1}, s{sPQ}, 4096")
    A(f"s_lshl_b32 s88, s{sWC_}, 3")
    A("s_add_u32 s88, s88, s85")
    A(f"s_add_u32 s{sPQ+2}, s88, 8192")
    A(f"v_add_u32 v5, s{sWAVE}, v1")
    A(f"s_mul_i32 s85, s{sWAVE}, 9")
    A("v_add_u32 v5, s85, v5")
    A("v_lshrrev_b32 v6, 2, v5")
    A("v_and_b32 v5, 3, v5")
    A("v_lshlrev_b32 v5, 7, v5")
    A("v_lshl_add_u32 v5, v6, 10, v5")
    A(f"s_sub_u32 s85, s{sMA+1}, s87")
    A("s_and_b32 s85, s85, 0xffffff80")
    A("v_add_u32 v5, s85, v5")
    A(f"s_and_b32 s85, s{sPQ+2}, 0xffffff80")
    A(f"s_lshl_b32 s86, s{sWC_}, 11")
    A("s_add_u32 s85, s85, s86")
    A("v_lshlrev_b32 v6, 7, v3")
    A("v_add_u32 v6, s85, v6")
    A("v_cmp_gt_u32 vcc, 10, v1")
    A("s_nop 1")
    A(f"v_cndmask_b32 v{vT1}, v6, v5, vcc")
    A(f"v_mov_b32 v{T}, {LDS_RED + 1600}")
    for i in range(7):
        kv_rank(A, 26+i, i, 3, LDS_RED)
        A(f"s_mov_b32 s92, s85")
        A(f"s_mov_b32 s93, s86")
        A(f"v_cndmask_b32 v{26+i}, v{T}, v{26+i}, s[92:93]")
    cb = QCB
    for t in range(5):
        A(f"v_lshl_add_u32 v{T+t}, v4, 2, {cb[t]}")
        A(f"v_add_u32 v{T+5+t}, {cb[t]}, v3")
        if t == 2:
            A("v_lshrrev_b32 v5, 1, v4")
            A(f"v_lshl_add_u32 v{T+t}, v5, 5, v{T+t}")
            A("v_mul_u32_u24 v7, 4064, v5")
            A("v_lshrrev_b32 v5, 3, v3")
            A(f"v_lshl_add_u32 v{T+5+t}, v5, 5, v{T+5+t}")
        A(f"v_mul_u32_u24 v{T+t}, 205, v{T+t}")
        A(f"v_lshrrev_b32 v{T+t}, 12, v{T+t}")
        A(f"v_mul_u32_u24 v{T+5+t}, 205, v{T+5+t}")
        A(f"v_lshrrev_b32 v{T+5+t}, 12, v{T+5+t}")
    for k, (tp, t) in enumerate(QDP):
        A(f"v_cmp_eq_u32 vcc, v{T+t}, v{T+5+tp}")
        A("s_nop 1")
        A(f"v_cndmask_b32 v{MSK+k}, 0, -1, vcc")
    A("v_lshlrev_b32 v5, 8, v3")
    A(f"v_lshl_add_u32 v{vZA}, v4, 4, v5")
    A(f"v_add_u32 v{vZA+2}, v7, v{vZA}")
    A(f"v_add_u32 v{vZA+1}, 4096, v{vZA}")
    A(f"s_lshl_b32 s86, s{sBp}, 14")
    A(f"s_lshl_b32 s87, s{sWC_}, 13")
    A("s_add_u32 s86, s86, s87")
    A(f"s_add_u32 s{sZO}, s86, {WS_ZP:#x}")
    A(f"s_mul_i32 s89, s{sU}, {16*3200}")
    A(f"s_mul_i32 s87, s{sWAVE}, 800")
    A("s_add_u32 s87, s87, s89")
    A(f"s_add_u32 s{sKO}, s87, {WS_KVP:#x}")
    if OPT["qw2"]:
        A("s_sub_u32 s85, s82, 16")
        A("s_lshl_b32 s85, s85, 2")
        A(f"s_add_u32 s85, s85, s{sWAVE}")
        A("s_lshl_b32 s86, s81, 5")
        A("s_add_u32 s85, s85, s86")
        A("s_lshl_b32 s85, s85, 13")
        A(f"s_add_u32 s99, s85, {8192*256*(3 - OPT['qw2'])}")
def q_pf_only(A):
    for k in range(3 - OPT["qw1n"], 3):
        A(f"buffer_load_dword a255, v12, s[{sW1}:{sW1+3}], s26 offen offset:{1024*k}")
def q_loop_pf(A):
    if OPT["qw1"] == 0:
        A("s_mov_b32 exec_lo, 0xffff03ff")
        A("s_mov_b32 exec_hi, 0")
        A(f"buffer_load_dword a255, v{vT1}, s[{sWS}:{sWS+3}], 0 offen sc1")
        A("s_mov_b64 exec, -1")
        return
    for k in range(3 - OPT["qw1n"], 3):
        A(f"buffer_load_dword a255, v12, s[{sW1}:{sW1+3}], s26 offen offset:{1024*k}")
    if OPT["qw1b"]:
        for k in range(3): A(f"buffer_load_dword a255, v12, s[{sW1}:{sW1+3}], s27 offen offset:{1024*k}")
    for k in range(OPT["qw2"]):
        A(f"buffer_load_dword a255, v15, s[{sW2}:{sW2+3}], s99 offen")
        A(f"s_add_u32 s99, s99, {8192*256}")
    if OPT["touch"] and not OPT["qdefer"]:
        A("s_mov_b32 exec_lo, 0xffff03ff")
        A("s_mov_b32 exec_hi, 0")
        A(f"buffer_load_dword a255, v{vT1}, s[{sWS}:{sWS+3}], 0 offen sc1")
        A("s_mov_b64 exec, -1")
def q_extras():
    g8 = [[poll_ld(vPO, 24)], [f"s_lshl_b32 m0, s{sWAVE}, 12"]] + [[f"buffer_load_dwordx4 v{vWOd+n}, s[{sWO}:{sWO+3}], s{sWOo} offen offset:{1024*n} lds"] for n in range(4)]
    g9 = [[f"buffer_load_dword v{8+st}, v{vGo}, s[{sWS}:{sWS+3}], s{sGo} offen offset:{64*st} sc1"] for st in range(4)]
    return {8: (g8, 9), 9: (g9, 0)}

def q_epilogue(A):
    PK, Z, AF, ZP, G = 128, 168, 168, 16, 8
    KA_, DEN, OUT, TMP = 48, 204+0, 224, 112
    WBa, KVa = 0, 20
    cb, dp = QCB, QDP
    A(f"s_mov_b32 s24, {FL_KV:#x}")
    for i in range(3):
        A(f"ds_read_b64_tr_b16 {ar(WBa+6*i,2)}, v{vWOt} offset:{128*i}")
        A(f"ds_read_b64_tr_b16 {ar(WBa+6*i+2,2)}, v{vWOt+1} offset:{128*i + 8*320}")
        A(f"ds_read_b64_tr_b16 {ar(WBa+6*i+4,2)}, v{vWOt+1} offset:{128*i + 24*320}")
    A(f"v_mov_b32 v2, {LDS_RED + 1600}")
    A("v_mov_b64 v[4:5], 0")
    A("ds_write_b64 v2, v[4:5]")
    A(f"s_mov_b32 s{sL2}, {LOG2E:#x}")
    A(f"s_mov_b32 s{sL2+1}, {LOG2E:#x}")
    for k, b in enumerate(range(ACC, ACC+80, 4)):
        if k == 12: A(poll_ld(vKP, 24))
        phi4(A, b, 208)
        A(f"v_cvt_pk_bf16_f32 v{PK+2*k}, v{b}, v{b+1}")
        A(f"v_cvt_pk_bf16_f32 v{PK+2*k+1}, v{b+2}, v{b+3}")
    stamp(A, "q_pre")
    A("s_waitcnt vmcnt(0) lgkmcnt(0)")
    poll_check(A, "pkv", vKP, 24)
    A("s_barrier")
    stamp(A, "q_kvok")
    for t in range(5):
        A(f"buffer_load_dwordx4 {vr(Z+4*t,4)}, v{vZA+[0,0,2,1,1][t]}, s[{sWS}:{sWS+3}], s{sZO} offen offset:{[0,64,128,0,64][t]} sc1")
    kvl = []
    for rb in range(0, 16, 2):
        kvl.append(["s_mov_b32 exec_hi, 0x3ffff",
                    f"buffer_load_dwordx4 {vr(KA_+4*rb,4)}, v{vB0}, s[{sWS}:{sWS+3}], s{sKO} offen sc1",
                    f"buffer_load_dwordx4 {vr(KA_+4*rb+4,4)}, v{vB0}, s[{sWS}:{sWS+3}], s{sKO} offen offset:3200 sc1",
                    "s_mov_b32 exec_hi, -1", f"s_add_u32 s{sKO}, s{sKO}, 6400"])
    def kv(n):
        for _ in range(n):
            if kvl:
                for x in kvl.pop(0): A(x)
    kv(2)
    A("s_waitcnt vmcnt(4)")
    stamp(A, "q_z")
    for rot in (8, 4, 2, 1):
        kv(1)
        for i in range(20):
            A(f"v_add_f32_dpp v{Z+i}, v{Z+i}, v{Z+i} row_ror:{rot} row_mask:0xf bank_mask:0xf")
    for i in range(10): A(f"v_cvt_pk_bf16_f32 v{ZP+i}, v{Z+2*i}, v{Z+2*i+1}")
    kv(2)
    for k, (tp, t) in enumerate(dp):
        A(f"v_and_b32 v{AF+2*k}, v{MSK+k}, v{ZP+2*t}")
        A(f"v_and_b32 v{AF+2*k+1}, v{MSK+k}, v{ZP+2*t+1}")
    A("s_nop 0")
    DEN2 = 224
    def den(st, Dn):
        seen = set()
        for k, (tp, t) in enumerate(dp):
            c = vr(Dn + 4*tp, 4)
            A(f"v_mfma_f32_16x16x16_bf16 {c}, {vr(AF+2*k,2)}, {vr(PK+(st*5+t)*2,2)}, {c if tp in seen else 0}")
            seen.add(tp)
    den(0, DEN)
    for st in range(4):
        Dn = DEN if (st & 1) == 0 else DEN2
        o = OUT
        U = TMP + 10
        if st < 3: den(st + 1, DEN2 if (st & 1) == 0 else DEN)
        else: A("s_nop 7")
        kv(OPT["kvr"])
        for tp in range(5): A(f"v_add_f32 v{TMP+2*tp}, {EPS6:#x}, v{Dn+4*tp}")
        for tp in range(5): A(f"v_rcp_f32 v{TMP+2*tp}, v{TMP+2*tp}")
        A("s_nop 0")
        for tp in range(5): A(f"v_mul_f32 v{TMP+2*tp}, v{TMP+2*tp}, v{G+st}")
        for tp in range(5):
            p = PK + (st*5+tp)*2
            if tp == 2: kv(OPT["kvr"])
            A(f"v_lshlrev_b32 v{U}, 16, v{p}")
            A(f"v_and_b32 v{U+1}, 0xffff0000, v{p}")
            A(f"v_lshlrev_b32 v{U+2}, 16, v{p+1}")
            A(f"v_and_b32 v{U+3}, 0xffff0000, v{p+1}")
            A(f"v_pk_mul_f32 {vr(U,2)}, {vr(U,2)}, {vr(TMP+2*tp,2)} op_sel_hi:[1,0]")
            A(f"v_pk_mul_f32 {vr(U+2,2)}, {vr(U+2,2)}, {vr(TMP+2*tp,2)} op_sel_hi:[1,0]")
            A(f"v_cvt_pk_bf16_f32 v{p}, v{U}, v{U+1}")
            A(f"v_cvt_pk_bf16_f32 v{p+1}, v{U+2}, v{U+3}")
        p = PK + st*10
        A(f"buffer_store_dwordx4 {vr(p,4)}, v{vB0}, s[{sWS}:{sWS+3}], s{sPQ} offen offset:{1024*st} sc1")
        A(f"buffer_store_dwordx4 {vr(p+6,4)}, v{vB0}, s[{sWS}:{sWS+3}], s{sPQ+1} offen offset:{1024*st} sc1")
        A(f"buffer_store_dwordx2 {vr(p+4,2)}, v{vB0}, s[{sWS}:{sWS+3}], s{sPQ+2} offen offset:{1024*st} sc1")
    assert not kvl
    stamp(A, "q_pq")
    A("s_waitcnt vmcnt(12)")
    stamp(A, "q_kv")
    for w in (32, 16, 8, 4):
        for i in range(0, w, 2):
            A(f"v_pk_add_f32 {vr(KA_+i,2)}, {vr(KA_+i,2)}, {vr(KA_+w+i,2)}")
    A(f"s_mul_i32 s86, s{sWAVE}, 400")
    A(f"s_add_u32 s86, s86, {LDS_RED}")
    A("v_lshlrev_b32 v7, 3, v1")
    A("v_add_u32 v7, s86, v7")
    A(f"v_cvt_pk_bf16_f32 v{KA_}, v{KA_}, v{KA_+1}")
    A(f"v_cvt_pk_bf16_f32 v{KA_+1}, v{KA_+2}, v{KA_+3}")
    A("s_mov_b32 exec_hi, 0x3ffff")
    A(f"ds_write_b64 v7, {vr(KA_,2)}")
    A("s_mov_b32 exec_hi, -1")
    A("s_waitcnt lgkmcnt(0)")
    A("s_barrier")
    stamp(A, "q_bar")
    for i in range(7): A(f"ds_read_b64 {ar(KVa+2*i,2)}, v{26+i}")
    A("s_waitcnt lgkmcnt(0)")
    MD = 64
    for i in range(3):
        seen = set()
        for k, (te, tc) in enumerate(PAIRS):
            c = vr(MD + (i*3+tc)*4, 4)
            A(f"v_mfma_f32_16x16x16_bf16 {c}, {ar(KVa+2*k,2)}, {ar(WBa+6*i+2*(te-2),2)}, {c if tc in seen else 0}")
            seen.add(tc)
    for i in range(3):
        if i == 2:
            A(f"s_cmp_ge_u32 s{sWAVE}, 2")
            A("s_cbranch_scc1 q_m_done")
            A("s_nop 2")
        b = MD + i*12
        for k in range(6): A(f"v_cvt_pk_bf16_f32 v{b+k}, v{b+2*k}, v{b+2*k+1}")
        A(f"buffer_store_dwordx4 {vr(b,4)}, v{vB0}, s[{sWS}:{sWS+3}], s{sMA} offen sc1")
        A("s_mov_b32 exec_hi, 0")
        A(f"buffer_store_dwordx2 {vr(b+4,2)}, v{vB0}, s[{sWS}:{sWS+3}], s{sMA+1} offen sc1")
        A("s_mov_b32 exec_hi, -1")
        A(f"s_add_u32 s{sMA}, s{sMA}, 4096")
        A(f"s_add_u32 s{sMA+1}, s{sMA+1}, 4096")
    A.label("q_m_done")
    stamp(A, "q_mdone")

def tlb_touch(A):
    for ptr, size in ((26, WS_SIZE), (22, 2048*1280), (16, 1536*4096), (12, 2048*3072), (8, 640*1280), (14, 4), (18, 4)):
        A(f"s_mov_b64 s[86:87], s[{ptr}:{ptr+1}]")
        offs = sorted(set(list(range(0, size, 1 << 21)) + [size - 4]))
        prev = 0
        for o in offs:
            if o - prev >= (1 << 20):
                A(f"s_add_u32 s86, s86, {o - prev:#x}")
                A("s_addc_u32 s87, s87, 0")
                prev = o
            A(f"s_load_dword s98, s[86:87], {o - prev:#x}")
def ln_role(A, after_loads, ne):
    X, GW, D = 48, 88, 128
    A("v_lshrrev_b32 v2, 3, v1")
    A(f"s_lshl_b32 s85, s{sWAVE}, 3")
    A("v_add_u32 v2, s85, v2")
    A("v_and_b32 v3, 7, v1")
    A("v_lshlrev_b32 v3, 4, v3")
    A("v_mul_u32_u24 v4, 1280, v2")
    A("v_add_u32 v4, v4, v3")
    A(f"s_mul_i32 s85, s{sA}, {32*1280}")
    A("s_waitcnt lgkmcnt(0)"); srds(A, ["X", "GW"])
    LN_TLB = True
    for i in range(10):
        A(f"buffer_load_dwordx4 {vr(X+4*i,4)}, v4, s[{sX}:{sX+3}], s85 offen offset:{128*i}")
    for i in range(10):
        A(f"buffer_load_dwordx4 {vr(GW+4*i,4)}, v3, s[{sGW}:{sGW+3}], 0 offen offset:{128*i}")
    A("v_mul_u32_u24 v16, 1312, v2")
    A("v_add_u32 v16, v16, v3")
    A("v_lshlrev_b32 v17, 2, v2")
    if OPT["tlb"] == 1: tlb_touch(A)
    after_loads(A)
    A("v_mov_b32 v5, 0x3f803f80")
    for i in range(4): A(f"v_mov_b32 v{8+i}, 0")
    A(f"s_waitcnt vmcnt({10+ne})")
    stamp(A, "ln_first")
    for i in range(40):
        A(f"v_dot2_f32_bf16 v{8+(i&1)}, v{X+i}, v5, v{8+(i&1)}")
    A(f"s_waitcnt vmcnt({ne})")
    for i in range(40):
        A(f"v_dot2_f32_bf16 v{10+(i&1)}, v{X+i}, v{GW+i}, v{10+(i&1)}")
    A("s_nop 2")
    A("v_add_f32 v8, v8, v9")
    A("v_add_f32 v10, v10, v11")
    def red8(r):
        for m in ("quad_perm:[1,0,3,2]", "quad_perm:[2,3,0,1]", "row_half_mirror"):
            A("s_nop 1")
            for x in r: A(f"v_add_f32_dpp v{x}, v{x}, v{x} {m} row_mask:0xf bank_mask:0xf")
    red8([8, 10])
    A(f"v_mul_f32 v8, {0xBACCCCCD:#x}, v8")
    A("v_mov_b32 v9, v8")
    A(f"v_mul_f32 v10, {LOG2E | 0x80000000:#x}, v10")
    A("v_exp_f32 v10, v10")
    for i in range(40):
        A(f"v_lshlrev_b32 v{D+2*i}, 16, v{X+i}")
        A(f"v_and_b32 v{D+2*i+1}, 0xffff0000, v{X+i}")
    A("v_add_f32 v10, 1.0, v10")
    A("v_rcp_f32 v10, v10")
    for i in range(40):
        A(f"v_pk_add_f32 {vr(D+2*i,2)}, {vr(D+2*i,2)}, v[8:9]")
    A("v_pk_mul_f32 v[18:19], v[128:129], v[128:129]")
    A("v_pk_mul_f32 v[20:21], v[130:131], v[130:131]")
    for i in range(2, 40):
        a = 18 + 2*(i & 1)
        A(f"v_pk_fma_f32 {vr(a,2)}, {vr(D+2*i,2)}, {vr(D+2*i,2)}, {vr(a,2)}")
    A("v_pk_add_f32 v[18:19], v[18:19], v[20:21]")
    A("ds_write_b32 v17, v10 offset:49152")
    A("v_add_f32 v18, v18, v19")
    red8([18])
    A(f"v_mov_b32 v19, {0x3727C5AC:#x}")
    A(f"v_fmac_f32 v19, {0x3ACCCCCD:#x}, v18")
    A("v_rsq_f32 v18, v19")
    A("s_nop 0")
    A("v_mov_b32 v19, v18")
    for i in range(40):
        A(f"v_pk_mul_f32 {vr(D+2*i,2)}, {vr(D+2*i,2)}, v[18:19]")
        A(f"v_cvt_pk_bf16_f32 v{X+i}, v{D+2*i}, v{D+2*i+1}")
        if (i & 3) == 3:
            A(f"ds_write_b128 v16, {vr(X+i-3,4)} offset:{128*(i//4)}")
    A("v_lshrrev_b32 v2, 2, v1")
    A("v_mul_u32_u24 v2, 1312, v2")
    A("v_and_b32 v3, 3, v1")
    A("v_lshl_add_u32 v2, v3, 3, v2")
    A(f"s_mul_i32 s85, s{sWAVE}, 320")
    A("v_add_u32 v2, s85, v2")
    A(f"s_mul_i32 s85, s{sA}, 40960")
    A(f"s_mul_i32 s86, s{sWAVE}, 10240")
    A("s_add_u32 s85, s85, s86")
    A("s_add_u32 s86, s85, 4096")
    A("s_add_u32 s87, s85, 8192")
    A("v_lshlrev_b32 v17, 2, v1")
    A(f"s_lshl_b32 s88, s{sA}, 7")
    A(f"s_add_u32 s88, s88, {WS_G:#x}")
    A("s_waitcnt lgkmcnt(0)")
    A("s_barrier")
    A(f"s_cmp_lg_u32 s{sWAVE}, 3")
    A("s_cbranch_scc1 ln_ng")
    A("ds_read_b32 v10, v17 offset:49152")
    A("s_waitcnt lgkmcnt(0)")
    A("s_mov_b32 exec_hi, 0")
    A(f"buffer_store_dword v10, v17, s[{sWS}:{sWS+3}], s88 offen sc1")
    A("s_mov_b32 exec_hi, -1")
    A.label("ln_ng")
    for t in range(10):
        A(f"ds_read_b64_tr_b16 {vr(D+4*t,2)}, v2 offset:{32*t}")
        A(f"ds_read_b64_tr_b16 {vr(D+4*t+2,2)}, v2 offset:{32*t + 16*1312}")
        if t == 6: A("s_waitcnt lgkmcnt(6)")
    for t in range(10):
        A(f"s_waitcnt lgkmcnt({min(2*(9-t), 6)})")
        A(f"buffer_store_dwordx4 {vr(D+4*t,4)}, v{vB0}, s[{sWS}:{sWS+3}], s{85 + t//4} offen offset:{1024*(t&3)} sc1")

def c_adv1(): return [f"s_add_u32 s{sC1}, s{sC1}, s{sCST}", f"s_cmp_eq_u32 s{sC1}, s{sCE1}", f"s_cselect_b32 s{sC1}, s{sCB1}, s{sC1}"]
def c_adv2(): return [f"s_add_u32 s{sC2}, s{sC2}, 40960", f"s_cmp_eq_u32 s{sC2}, s{sCE2}", f"s_cselect_b32 s{sC2}, s{sCB2}, s{sC2}"]
def c_wdma(slot):
    L = [[f"s_add_u32 m0, s{sCM0}, {4096*slot}"]]
    for q in range(4):
        L.append([f"buffer_load_dwordx4 v{vWS_+q}, s[{sCW}:{sCW+3}], s{sC1} offen offset:{1024*q} lds"])
    return L
def c_bload(slot, n):
    return f"buffer_load_dwordx4 {ar(BR+20*slot+4*n,4)}, v{vB0 if n < 4 else vB1}, s[{sWS}:{sWS+3}], s{sC2} offen offset:{1024*(n&3)} sc1"
def c_tr(slot, aset):
    return [f"ds_read_b64_tr_b16 {ar(AS+16*aset+4*t+2*j,2)}, v{vTR+t} offset:{4096*slot+2048*j}" for t in range(4) for j in range(2)]
def c_wring(A):
    for s in range(OPT["d"]):
        emit_dma_block(A, c_wdma(s))
        for x in c_adv1(): A(x)
def c_bring(A):
    for s in range(OPT["d"]):
        for n in range(5): A(c_bload(s, n))
        for x in c_adv2(): A(x)
def switch_to_fb(A):
    A(f"s_mov_b64 s[{sCW}:{sCW+1}], s[{sW2}:{sW2+1}]")
    A(f"s_mov_b64 s[{sCW+2}:{sCW+3}], s[{sW2+2}:{sW2+3}]")
    for i in range(4): A(f"v_mov_b32 v{vWS_+i}, v{vWS2+i}")
    A(f"s_mov_b32 s{sC1}, s{sF1}")
    A(f"s_mov_b32 s{sCB1}, s{sFB1}")
    A(f"s_mov_b32 s{sCE1}, s{sFE1}")
    A(f"s_mov_b32 s{sCST}, {32*4096}")

G1A = 112
def c_step(A, u, wait, doW, doB, doT, accf, w_is_A, drain=None, first=False, side=None, pre=[], late=None, wslot=None, trl=None):
    DD = OPT["d"]
    A(f"s_waitcnt vmcnt({wait}) lgkmcnt(0)")
    for x in pre: A(x)
    tr = c_tr((u+1) & 3, (u+1) & 1) if doT else (trl or [])
    mf = []
    for n in range(5):
        for t in range(4):
            w = ar(AS+16*(u & 1)+4*t, 4); b = ar(BR+20*u+4*n, 4); c = accf((t*5+n)*4)
            cin = "0" if first else c
            mf.append(f"v_mfma_f32_16x16x32_bf16 {c}, {w}, {b}, {cin}" if w_is_A else f"v_mfma_f32_16x16x32_bf16 {c}, {b}, {w}, {cin}")
    fill = [[] for _ in range(20)]
    sl = (u + DD) & 3
    wd = c_wdma(sl if wslot is None else wslot)
    post = []
    if doW:
        A(wd[0][0])
        for t in range(4): fill[t] += wd[1+t]
        fill[5 if drain else 12] += c_adv1()
    for k, x in enumerate(tr): fill[4+k].append(x)
    if doB:
        for n in range(5): fill[4*n+3].append(c_bload(sl, n))
        fill[19] += c_adv2()
    if side:
        per = -(-len(side) // 20)
        for g in range(20): fill[g] = side[g*per:(g+1)*per] + fill[g]
    if late:
        fill[13] += late[:9]
        post += late[9:]
    if drain:
        for n in range(3):
            for t in range(4): fill[4*(n+2)+t] += drain(n, t)
        post += ["s_nop 3"] + flat([drain(3, t) for t in range(4)]) + flat([drain(4, t) for t in range(4)])
    weave(A, mf, fill)
    for x in post: A(x)

def c_loop(A, pfx, nks, accf, w_is_A, isg1, drain):
    DD = OPT["d"]; W0 = 5 + 9*(DD-2)
    tail_next = isg1 and OPT["tailw"]
    A(".p2align 3")
    A.label(f"{pfx}_loop")
    if isg1 and OPT["lnmid"]:
        A(f"s_cmp_eq_u32 s{sCNT}, s{sPUB}")
        A("s_cbranch_scc1 g1_blk")
        A.label("g1_noblk")
    for u in range(4):
        c_step(A, u, W0, True, True, True, accf, w_is_A)
    if STAMPS:
        ng = nks//4 - 1
        i = _st["n"]; _st["n"] += ng; _st["names"] += [f"{pfx}_g{k}" for k in range(ng)]
        A("s_memtime s[100:101]")
        A("s_waitcnt lgkmcnt(0)")
        A(f"s_sub_u32 m0, {i + ng}, s{sCNT}")
        A("s_nop 0")
        A("v_writelane_b32 v47, s100, m0")
    A(f"s_sub_u32 s{sCNT}, s{sCNT}, 1")
    A(f"s_cmp_lg_u32 s{sCNT}, 0")
    A(f"s_cbranch_scc1 {pfx}_loop")
    seq = []
    for k in range(DD): seq += [("W", k)]*4 + [("B", k)]*5
    for u in range(4):
        need = max([i for i, (t, k) in enumerate(seq) if (t == "B" and k == u) or (t == "W" and k == u+1)])
        wait = len(seq) - 1 - need
        own = u < 4 - DD
        if isg1 and u == 4 - DD: switch_to_fb(A)
        nxt = tail_next and not own
        c_step(A, u, wait, own or nxt, own, u < 3, accf, w_is_A, drain if u == 3 else None)
        if own: seq += [("W", u+DD)]*4 + [("B", u+DD)]*5
        if OPT["otouch"] and not isg1 and u == 3 - DD:
            A(f"buffer_load_dword a255, v5, s[{sOUT}:{sOUT+3}], s95 offen" + (" nt" if OPT["otouch"] == 2 else ""))
            seq += [("O", 0)]
        elif nxt: seq += [("N", 0)]*4
    stamp(A, pfx + "_loopdone")

sFA1, sFA2, sFR = 54, 55, 94
sUS = 52
vGE = 224
def fa_params(A):
    A(f"s_and_b32 s{sFR}, s{sFD}, 3")
    A(f"s_lshl_b32 s{sFR}, s{sFR}, 1")
    A(f"s_and_b32 s89, s{sFS}, 7")
    A(f"s_add_u32 s{sFR}, s{sFR}, s89")
    A(f"s_mul_i32 s89, s{sFR}, 52")
    A("s_lshr_b32 s89, s89, 8")
    A("s_mul_i32 s89, s89, 5")
    A(f"s_sub_u32 s{sFR}, s{sFR}, s89")
    if OPT["arot"] == 0: A(f"s_mov_b32 s{sFR}, 0")
    if OPT["arot"] == 2:
        A(f"s_add_u32 s{sFR}, s{sFS}, s{sFD}")
        A(f"s_and_b32 s{sFR}, s{sFR}, 1")
        A(f"s_mul_i32 s{sFR}, s{sFR}, 3")
    A(f"s_mul_i32 s86, s{sWAVE}, 5")
    A(f"s_add_u32 s86, s86, s{sFR}")
    A(f"s_mul_i32 s{sFA1}, s{sFS}, {0 if OPT.get('same') else 20}")
    A(f"s_add_u32 s{sFA1}, s{sFA1}, s86")
    A(f"s_lshl_b32 s{sFA1}, s{sFA1}, 12")
    A(f"s_add_u32 s{sFA1}, s{sFA1}, {WS_PQ:#x}")
    A(f"s_mul_i32 s{sFA2}, s86, 40960")
    A(f"s_mul_i32 s89, s{sFD}, {0 if OPT.get('same') else 5120}")
    A(f"s_add_u32 s{sFA2}, s{sFA2}, s89")
    A(f"s_add_u32 s{sFA2}, s{sFA2}, {WS_M:#x}")
fa_b = lambda i: 0 if i == 0 else 112 + 36*(i-1)
def fa_ld(A, i):
    for st in range(4):
        A(f"buffer_load_dwordx4 {ar(fa_b(i)+4*st,4)}, v{vB0}, s[{sWS}:{sWS+3}], s{sFA1} offen offset:{1024*st} sc1")
    for n in range(5):
        A(f"buffer_load_dwordx4 {ar(fa_b(i)+16+4*n,4)}, v{vB0 if n < 4 else vB1}, s[{sWS}:{sWS+3}], s{sFA2} offen offset:{1024*(n&3)} sc1")
    if i < 4:
        A(f"s_add_u32 s{sFA1}, s{sFA1}, 4096")
        A(f"s_add_u32 s{sFA2}, s{sFA2}, 40960")
        A(f"s_add_u32 s{sFR}, s{sFR}, 1")
        A(f"s_cmp_eq_u32 s{sFR}, 5")
        A(f"s_cselect_b32 s86, {5*4096}, 0")
        A(f"s_cselect_b32 s89, {5*40960}, 0")
        A(f"s_sub_u32 s{sFA1}, s{sFA1}, s86")
        A(f"s_sub_u32 s{sFA2}, s{sFA2}, s89")

def g1_params(A):
    W, Rr = vGE, vGE + 4
    A("v_and_b32 v2, 15, v1")
    A("v_lshrrev_b32 v3, 4, v1")
    A("v_xor_b32 v4, v2, v3")
    A("v_lshlrev_b32 v4, 4, v4")
    A("v_lshl_add_u32 v4, v2, 8, v4")
    A(f"s_mul_i32 s85, s{sWAVE}, 20480")
    A(f"s_add_u32 s85, s85, {LDS_RED}")
    A(f"v_add_u32 v{W}, s85, v4")
    for t in range(1, 4): A(f"v_xor_b32 v{W+t}, {64*t}, v{W}")
    A(f"s_and_b32 s85, s{sWAVE}, 1")
    A(f"s_lshr_b32 s86, s{sWAVE}, 1")
    A("s_lshl_b32 s87, s85, 7")
    A("v_xor_b32 v4, s87, v4")
    A("s_lshl_b32 s87, s86, 12")
    A(f"s_add_u32 s87, s87, {LDS_RED}")
    A(f"v_add_u32 v{Rr}, s87, v4")
    A(f"v_xor_b32 v{Rr+1}, 64, v{Rr}")
    A(f"v_add_u32 v{Rr+2}, 40960, v{Rr}")
    A(f"v_add_u32 v{Rr+3}, 40960, v{Rr+1}")
    A(f"s_lshl_b32 s87, s{sG1F}, 1")
    A("s_add_u32 s87, s87, s85")
    A("s_lshl_b32 s23, s87, 6")
    A("v_lshlrev_b32 v12, 3, v3")
    A("s_mul_i32 s87, s87, 40")
    A(f"s_mul_i32 s88, s{sG1D}, 5")
    A("s_add_u32 s87, s87, s88")
    A("s_add_u32 s87, s87, s86")
    A("s_lshl_b32 s87, s87, 10")
    A(f"s_add_u32 s{sUS}, s87, {WS_U:#x}")
    A(f"s_add_u32 s{sUS+1}, s{sUS}, 4096")
    A(f"s_mov_b32 s90, {0xBDD2D3E8:#x}")
    A(f"s_mov_b32 s91, {0xBDD2D3E8:#x}")
    A(f"v_mov_b32 v{vGE+8}, {0xC0135761:#x}")
    A(f"v_mov_b32 v{vGE+9}, {0xC0135761:#x}")
    fa_params(A)
def b1_loads():
    return [[f"buffer_load_dwordx2 {vr(vGE+18+2*j,2)}, v12, s[{sB1}:{sB1+3}], s23 offen offset:{32*j}"] for j in range(2)]
def zero_acc(A):
    for i in range(0, 80, 2): A(f"v_mov_b64 {vr(ACC+i,2)}, 0")

def g1_phase(A):
    c_loop(A, "g1", 16, lambda o: ar(G1A+o, 4), True, True, lambda n, t: [f"ds_write_b128 v{vGE+t}, {ar(G1A+(t*5+n)*4,4)} offset:{4096*n}"])
    for j in range(2):
        for k in range(2):
            A(f"v_lshlrev_b32 v{vGE+10+4*j+2*k}, 16, v{vGE+18+2*j+k}")
            A(f"v_and_b32 v{vGE+11+4*j+2*k}, 0xffff0000, v{vGE+18+2*j+k}")
    A("s_waitcnt lgkmcnt(0)")
    A("s_barrier")
    stamp(A, "g1_red")
    if OPT["lnpost"] == 2:
        A("s_cmp_lt_u32 s82, 24")
        A("s_cbranch_scc1 g1_nw2")
        w2_prefetch(A, 24, list(range(3 - OPT["lnpn"], 3)))
        A.label("g1_nw2")
    A0 = A
    R = 128
    def rd(r):
        for j in range(2):
            for part in range(4):
                A(f"ds_read_b128 {vr(R+32*r+16*j+4*part,4)}, v{vGE+4+j+2*(part>>1)} offset:{8192*r + 20480*(part&1)}")
    def fin(r):
        b = R + 32*r
        for j in range(2):
            x = b + 16*j
            for i in (0, 2):
                A(f"v_pk_add_f32 {vr(x+i,2)}, {vr(x+i,2)}, {vr(x+4+i,2)}")
                A(f"v_pk_add_f32 {vr(x+8+i,2)}, {vr(x+8+i,2)}, {vr(x+12+i,2)}")
        for j in range(2):
            x = b + 16*j
            for i in (0, 2): A(f"v_pk_add_f32 {vr(x+i,2)}, {vr(x+i,2)}, {vr(vGE+10+4*j+i,2)}")
        for j in range(2):
            x = b + 16*j
            for i in (0, 2): A(f"v_pk_add_f32 {vr(x+i,2)}, {vr(x+i,2)}, {vr(x+8+i,2)}")
        E = [b + 16*j + i for j in range(2) for i in range(4)]
        E2 = E[::2]
        for x in E2: A(f"v_pk_mul_f32 {vr(x+4,2)}, {vr(x,2)}, {vr(x,2)}")
        for x in E2: A(f"v_pk_fma_f32 {vr(x+4,2)}, {vr(x+4,2)}, s[90:91], {vr(vGE+8,2)}")
        for x in E2: A(f"v_pk_mul_f32 {vr(x+4,2)}, {vr(x+4,2)}, {vr(x,2)}")
        for x in E: A(f"v_exp_f32 v{x+4}, v{x+4}")
        for x in E2: A(f"v_pk_add_f32 {vr(x+4,2)}, {vr(x+4,2)}, 1.0 op_sel_hi:[1,0]")
        for x in E: A(f"v_rcp_f32 v{x+4}, v{x+4}")
        for x in E2: A(f"v_pk_mul_f32 {vr(x,2)}, {vr(x,2)}, {vr(x+4,2)}")
        for j in range(2):
            x = b + 16*j
            A(f"v_cvt_pk_bf16_f32 v{b+8+2*j}, v{x}, v{x+1}")
            A(f"v_cvt_pk_bf16_f32 v{b+9+2*j}, v{x+2}, v{x+3}")
        A(f"buffer_store_dwordx4 {vr(b+8,4)}, v{vB0}, s[{sWS}:{sWS+3}], s{sUS if r < 2 else sUS+1} offen offset:{2048*(r&1)} sc1")
    def mix(body, groups, lo=0):
        n = len(groups)
        pos = {}
        for k in range(n): pos.setdefault(lo + (k*(len(body) - lo - 2))//max(n, 1), []).append(groups[k])
        for i, x in enumerate(body):
            for g in pos.get(i, []):
                for y in g: A0(y)
            A0(x)
    G = []
    if OPT["xw"]:
        B = Asm(); xw_loads(B)
        for x in B.lines:
            if x.startswith("buffer_load") or not G: G.append([x])
            else: G[-1].append(x)
        G[1] = G[0] + G[1]; G = G[1:]
    n0 = (len(G)*OPT["xsp"])//10
    A = Asm()
    rd(0)
    A("s_waitcnt lgkmcnt(4)")
    rd(1)
    A("s_waitcnt lgkmcnt(8)")
    fin(0)
    mix(A.lines, G[:n0] + ([] if G[n0:] else [[poll_ld(15, 25)]]), 8)
    late = (G[n0:] + [[poll_ld(15, 25)]]) if G[n0:] else []
    k = 0 if late else 1
    A0(f"s_cmp_ge_u32 s{sWAVE}, 2")
    A0("s_cbranch_scc1 g1_e1")
    A = A0
    rd(2)
    A("s_waitcnt lgkmcnt(8)")
    A = Asm(); fin(1); mix(A.lines, late); A = A0
    A("s_waitcnt lgkmcnt(0)")
    fin(2)
    A(f"s_waitcnt vmcnt({2 + k})")
    A("s_branch g1_e2")
    A.label("g1_e1")
    A("s_waitcnt lgkmcnt(0)")
    A = Asm(); fin(1); mix(A.lines, late); A = A0
    A(f"s_waitcnt vmcnt({1 + k})")
    A.label("g1_e2")
    stamp(A, "g1_st")
    A(f"s_mov_b32 s{sQOK}, 0")
    A(f"v_cmp_ne_u32 vcc, s{sNON}, v{vPOLL}")
    A("s_cbranch_vccnz g1_q1")
    A(f"s_mov_b32 s{sQOK}, 1")
    fa_ld(A, 0)
    A("s_waitcnt vmcnt(9)")
    A("s_branch g1_q2")
    A.label("g1_q1")
    if OPT["tailw"]: A("s_waitcnt vmcnt(0)")
    else:
        c_wring(A)
        A(f"s_waitcnt vmcnt({4*OPT['d']})")
    A.label("g1_q2")
    A(f"s_mul_i32 s88, s{sG1D}, 24")
    A(f"s_add_u32 s88, s88, s{sG1F}")
    publish(A, "pub_u", FL_G1, 88, None)
    stamp(A, "g1_pub")
    for x in xw_writes(): A(x)
    if OPT["lnpost"] == 1:
        A("s_cmp_lt_u32 s82, 24")
        A("s_cbranch_scc1 g1_nw2")
        w2_prefetch(A, 24, list(range(3 - OPT["lnpn"], 3)))
        A.label("g1_nw2")
    if not OPT["tailw"]:
        A(f"s_cmp_eq_u32 s{sQOK}, 0")
        A("s_cbranch_scc1 g1_q3")
        c_wring(A)
        A("s_branch f_go")
        A.label("g1_q3")
    else:
        A(f"s_cmp_lg_u32 s{sQOK}, 0")
        A("s_cbranch_scc1 f_go")
    A(poll_ld(15, 25))
    A("s_waitcnt vmcnt(0)")
    poll_check(A, "pq", 15, 25)

def accb_init(st):
    return [f"v_lshlrev_b32 v{ACC+st*20}, 16, v{29+st}", f"v_lshlrev_b32 v{ACC+st*20+1}, 16, v{29+st}"] + \
           [f"v_mov_b64 {vr(ACC+st*20+k,2)}, {vr(ACC+st*20,2)}" for k in range(2, 20, 2)]
vTX = 246
def xw_setup():
    L = [f"s_mul_i32 s85, s{sWAVE}, 21504", f"s_add_u32 s85, s85, {LDS_RED}", f"v_add_u32 v{vTX+4}, s85, v{vB0}", f"s_sub_u32 s85, s85, s{sCM0}"]
    L += [f"v_add_u32 v{vTX+t}, s85, v{vTR+t}" for t in range(4)]
    return L
def xw_loads(A):
    emit_dma_block(A, c_wdma(3))
    for x in c_adv1(): A(x)
    for i in range(OPT["xw"]):
        for q in range(4):
            A(f"buffer_load_dwordx4 {vr(ACC+16*i+4*q,4)}, v{vWS_+q}, s[{sCW}:{sCW+3}], s{sC1} offen offset:{1024*q}")
        for x in c_adv1(): A(x)
def xw_writes():
    return [f"ds_write_b128 v{vTX+4}, {vr(ACC+16*i+4*q,4)} offset:{4096*i+1024*q}" for i in range(OPT["xw"]) for q in range(4)]
def xw_dma(A):
    emit_dma_block(A, c_wdma(3))
    for x in c_adv1(): A(x)
    A(f"s_mul_i32 s85, s{sWAVE}, 21504")
    A(f"s_add_u32 s85, s85, {LDS_RED}")
    for i in range(OPT["xw"]):
        A(f"s_add_u32 m0, s85, {4096*i}")
        A("s_nop 0")
        for q in range(4):
            A(f"buffer_load_dwordx4 v{vWS_+q}, s[{sCW}:{sCW+3}], s{sC1} offen offset:{1024*q} lds")
        for x in c_adv1(): A(x)
def f_setup1():
    B = Asm()
    B("v_and_b32 v5, 15, v1")
    B("v_lshlrev_b32 v6, 2, v5")
    B(f"s_lshl_b32 s23, s{sFS}, 8")
    B(f"s_add_u32 s23, s23, {WS_G:#x}")
    for st in range(4):
        B(f"buffer_load_dword v{8+st}, v6, s[{sWS}:{sWS+3}], s23 offen offset:{64*st} sc1")
    B("v_lshlrev_b32 v6, 1, v5")
    B(f"s_lshl_b32 s23, s{sFS}, 7")
    B(f"s_cmp_eq_u32 s{sWAVE}, 0")
    B("s_cselect_b32 s23, s23, 0x40000000")
    for st in range(4):
        B(f"buffer_load_ushort v{29+st}, v6, s[{sB2}:{sB2+3}], s23 offen offset:{32*st}")
    return B.lines
def f_setup2():
    B = Asm()
    for st in range(4):
        B(f"v_sub_f32 v{8+st}, 1.0, v{8+st}")
        if not OPT["xw"]:
            for x in accb_init(st): B(x)
    B("v_min_u32 v12, 23, v1")
    B("v_lshlrev_b32 v12, 7, v12")
    B(f"s_mul_i32 s23, s{sFD}, {24*128}")
    B(f"s_add_u32 s23, s23, {FL_G1:#x}")
    B("v_and_b32 v5, 15, v1")
    B("v_lshrrev_b32 v6, 4, v1")
    B("v_mul_u32_u24 v4, 336, v5")
    B("v_lshl_add_u32 v4, v6, 4, v4")
    B(f"s_mul_i32 s85, s{sWAVE}, 21504")
    B(f"s_add_u32 s85, s85, {LDS_RED}")
    B("v_add_u32 v4, s85, v4")
    B(f"s_mul_i32 s85, s{sWAVE}, {16*336}")
    B(f"s_add_u32 s85, s85, {LDS_RED}")
    B(f"s_lshl_b32 s95, s{sFS}, 2")
    B(f"s_add_u32 s95, s95, s{sWAVE}")
    B(f"s_mul_i32 s95, s95, {16*1280}")
    B(f"s_mul_i32 s87, s{sFD}, 160")
    B("s_add_u32 s95, s95, s87")
    for r in range(5):
        B(f"v_add_u32 v5, {64*r}, v1")
        B("v_mul_u32_u24 v6, 3277, v5")
        B("v_lshrrev_b32 v6, 16, v6")
        B("v_mul_u32_u24 v7, 20, v6")
        B("v_sub_u32 v7, v5, v7")
        B(f"v_mul_u32_u24 v{16+r}, 336, v6")
        B(f"v_lshl_add_u32 v{16+r}, v7, 4, v{16+r}")
        B(f"v_add_u32 v{16+r}, s85, v{16+r}")
        B(f"v_mul_u32_u24 v{24+r}, 1280, v6")
        B(f"v_lshl_add_u32 v{24+r}, v7, 3, v{24+r}")
    if OPT["otouch"]:
        B("v_lshrrev_b32 v5, 1, v1")
        B("v_and_b32 v5, 15, v5")
        B("v_mul_u32_u24 v5, 1280, v5")
        B("v_and_b32 v6, 1, v1")
        B("v_mul_u32_u24 v6, 156, v6")
        B("v_add_u32 v5, v5, v6")
    if OPT["xw"]:
        for x in xw_setup(): B(x)
    return B.lines

def f_phase(A):
    ACA = 128
    A.label("f_entry")
    fa_ld(A, 0)
    A.label("f_go")
    fa_ld(A, 1)
    stamp(A, "f_qok")
    A(f"s_or_b32 s85, s2, s{sWAVE}")
    A("s_cmp_lg_u32 s85, 0")
    A("s_cbranch_scc1 f_nox")
    A(f"s_mov_b32 s85, {FL_X:#x}")
    flag_store(A, 85)
    A.label("f_nox")
    fb = fa_b
    def fam(i, side=[]):
        mf = []
        for n in range(5):
            for st in range(4):
                c = vr(ACA+(st*5+n)*4, 4)
                mf.append(f"v_mfma_f32_16x16x32_bf16 {c}, {ar(fb(i)+16+4*n,4)}, {ar(fb(i)+4*st,4)}, {c if i else 0}")
        fill = [[] for _ in range(20)]
        for k, g in enumerate(side): fill[(k*20)//len(side)] += g
        weave(A, mf, fill)
    def ldg(i):
        B = Asm(); fa_ld(B, i); g = [[x] for x in B.lines[:9]]; g[-1] += B.lines[9:]; return g
    D = OPT["d"]
    fa_ld(A, 2)
    A(f"s_mov_b32 s{sC2}, s{sF2}")
    A(f"s_mov_b32 s{sCB2}, s{sFB2}")
    A(f"s_mov_b32 s{sCE2}, s{sFE2}")
    stamp(A, "fa_i2")
    A("s_waitcnt vmcnt(18)")
    fam(0, ldg(3))
    stamp(A, "fa_m0")
    A("s_waitcnt vmcnt(18)")
    fam(1, [[poll_ld(12, 23)]] + ldg(4))
    stamp(A, "fa_m1")
    A("s_waitcnt vmcnt(19) lgkmcnt(0)")
    fam(2, [[x] for x in flat([accb_init(st) for st in range(4)])] if OPT["xw"] else [])
    stamp(A, "fa_m2")
    A("s_waitcnt vmcnt(9)")
    stamp(A, "fa_s3")
    poll_check(A, "pu", 12, 23)
    stamp(A, "f_uok")
    br = []
    for sl in range(D):
        br += [[c_bload(sl, n)] for n in range(5)]; br[-1] += c_adv2()
    fam(3, br)
    A(f"s_waitcnt vmcnt({5*D})")
    fam(4, [[]]*3 + [[x] for x in c_tr(0, 0)] + [[]]*5)
    A(f"s_waitcnt vmcnt({5 if D == 2 else 10})")
    stamp(A, "fb_first")
    def drain(n, st):
        b = (st*5+n)*4
        return [f"v_fma_f32 v{ACA+b+i}, v{ACC+b+i}, v{8+st}, v{ACA+b+i}" for i in range(4)] + [f"ds_write_b128 v4, {vr(ACA+b,4)} offset:{st*16*336 + 64*n}"]
    if OPT["xw"]:
        X = OPT["xw"]
        place = lambda k: ("r", k) if k < 4 else (("x", k-4) if k < 4 + X else ("r", (k - 4 - X) & 3))
        seq = [("B", 0)]*5 + [("B", 1)]*5 + [("B", 2)]*5
        for u in range(12):
            idx = [i for i, (t, k) in enumerate(seq) if (t == "B" and k == u) or (t == "W" and k == u+1)]
            wait = len(seq) - 1 - max(idx)
            kw = u + 3 + OPT["xwd"]; kb = u + 3
            doW = 4 + X <= kw < 12; doB = kb < 12
            nx = None
            if u < 11:
                kind, sl = place(u+1)
                base = vTR if kind == "r" else vTX
                nx = [f"ds_read_b64_tr_b16 {ar(AS+16*((u+1)&1)+4*t+2*j,2)}, v{base+t} offset:{4096*sl+2048*j}" for t in range(4) for j in range(2)]
            c_step(A, u & 3, min(wait, 63), doW, doB, False, lambda o: vr(ACC+o, 4), False, drain if u == 11 else None,
                   wslot=place(kw)[1] if doW else None, trl=nx)
            if doW: seq += [("W", kw)]*4
            if doB: seq += [("B", kb)]*5
            if u in (3, 7): stamp(A, f"fb_g{u//4}")
        stamp(A, "fb_loopdone")
    else:
        A(f"s_mov_b32 s{sCNT}, 2")
        c_loop(A, "fb", 12, lambda o: vr(ACC+o, 4), False, False, drain)
    A("s_waitcnt lgkmcnt(0)")
    A("s_barrier")
    stamp(A, "f_red")
    R = ACC
    def rd(r):
        for part in range(4):
            A(f"ds_read_b128 {vr(R+16*r+4*part,4)}, v{16+r} offset:{21504*part}")
    rd(0); rd(1); rd(2)
    for r in range(5):
        A(f"s_waitcnt lgkmcnt({8 if r < 3 else 4*(4-r)})")
        b = R + 16*r
        for i in (0, 2):
            A(f"v_pk_add_f32 {vr(b+i,2)}, {vr(b+i,2)}, {vr(b+4+i,2)}")
            A(f"v_pk_add_f32 {vr(b+8+i,2)}, {vr(b+8+i,2)}, {vr(b+12+i,2)}")
        if r + 3 < 5: rd(r+3)
        for i in (0, 2): A(f"v_pk_add_f32 {vr(b+i,2)}, {vr(b+i,2)}, {vr(b+8+i,2)}")
        A(f"v_cvt_pk_bf16_f32 v{b}, v{b}, v{b+1}")
        A(f"v_cvt_pk_bf16_f32 v{b+1}, v{b+2}, v{b+3}")
        A(f"buffer_store_dwordx2 {vr(b,2)}, v{24+r}, s[{sOUT}:{sOUT+3}], s95 offen" + ["", " nt", " sc1", " sc0 sc1", " sc1 nt", " sc0 nt", " sc0 sc1 nt"][OPT["ost"]])

def kd(name):
    return f""".section .rodata,"a"
.p2align 6
.amdhsa_kernel {name}
  .amdhsa_next_free_vgpr 512
  .amdhsa_next_free_sgpr 102
  .amdhsa_accum_offset 256
  .amdhsa_group_segment_fixed_size 0
  .amdhsa_kernarg_size 96
  .amdhsa_user_sgpr_count 2
  .amdhsa_user_sgpr_kernarg_segment_ptr 1
  .amdhsa_system_sgpr_workgroup_id_x 1
.end_amdhsa_kernel
"""

def gen():
    hdr = open("cdna_kernels/" + NAME + ".s.ref").read().split("; Override")[0]
    hdr += f"; @launch grid=(256,1,1) block=(256,1,1) lds={LDS_BYTES}\n"
    hdr += '.amdgcn_target "amdgcn-amd-amdhsa--gfx950"\n'
    A = Asm()
    K = NAME + "_kernel"
    A(".text"); A(f".globl {K}"); A(".p2align 8"); A(f".type {K},@function"); A.label(K)
    prologue(A)
    A("s_cmp_ge_u32 s82, 16"); A("s_cbranch_scc1 r_notkv")
    A("s_and_b32 s85, s82, 3")
    A("s_lshl_b32 s86, s83, 2")
    A(f"s_add_u32 s{sA}, s85, s86")
    A("s_lshr_b32 s85, s82, 2")
    A("s_lshl_b32 s86, s84, 2")
    A(f"s_add_u32 s{sBp}, s85, s86")
    qkv_setup(A, False)
    if not OPT["xfirst"]: qkv_setup_w(A, False)
    A("s_waitcnt lgkmcnt(0)"); srds(A, ["X", "W"])
    stamp(A, "kv_pre")
    def mid(A):
        params1(A); srds(A, ["WS", "W1", "B1", "W2", "B2", "OUT"]); cw_init(A)
        if not OPT["defer"]:
            params2(A); g1_params(A); mid3(A)
    def mid3(A):
        kv_esetup(A)
        A("s_lshl_b32 s85, s81, 4")
        A("s_add_u32 s85, s85, s82")
        A("s_lshl_b32 s85, s85, 2")
        A(f"s_add_u32 s85, s85, s{sWAVE}")
        A("s_lshl_b32 s27, s85, 13")
        A(f"s_lshl_b32 s{sPUB}, s{sA}, 3")
        A(f"s_add_u32 s{sPUB}, s{sPUB}, s{sBp}")
        A(f"s_lshl_b32 s{sPUB}, s{sPUB}, 7")
        A(f"s_add_u32 s{sPUB}, s{sPUB}, {FL_KV:#x}")
    D = OPT["d"]; EW = 5 if D == 2 else 10
    assert D == 3
    def wst(k):
        g = c_wdma(k); g[-1] = g[-1] + c_adv1(); return g
    def bst(k):
        g = [[c_bload(k, n)] for n in range(5)]; g[-1] = g[-1] + c_adv2(); return g
    NI = 4 if OPT["xw"] else 48
    E = kv_estream()
    g1acc = lambda o: ar(G1A+o, 4)
    def pubkv(A, wait):
        A(f"s_waitcnt vmcnt({wait})")
        A("s_barrier")
        A(f"s_cmp_lg_u32 s{sWAVE}, 0")
        A("s_cbranch_scc1 g1_pub1")
        flag_store(A, sPUB)
        A.label("g1_pub1")
        stamp(A, "kv_pub")
    nin = OPT["nbin"]
    ex = {8: ([[poll_ld(vPO, 24)]] + b1_loads() + wst(0) + wst(1), 9), 9: (wst(2), 8)}
    d0 = OPT["defer"]
    out_kv = qkv_gemm(A, "kv", False, mid, ex, {9: lambda A: poll_check(A, "pln", vPO, 24)},
                      [(d0, params2), (d0+1, g1_params), (d0+2, mid3)] if d0 else [])
    if OPT["kvw2"]:
        A(f"buffer_load_dword a255, v15, s[{sW2}:{sW2+3}], s27 offen")
    for m in qkv_mfmas(FB_, False): A(m)
    stamp(A, "kv_loopdone")
    Bs = bst(0) + bst(1) + bst(2)
    body = E[0] + E[1]
    sp = min(26, (len(body) - 30 - OPT["b0"]) // max(nin, 1))
    pos = [len(body) - 30 - sp*(nin - 1 - k) for k in range(nin)]
    assert not pos or pos[0] >= 0
    for i, x in enumerate(body):
        if i in pos:
            for y in Bs[pos.index(i)]: A(y)
        A(x)
    A("s_waitcnt lgkmcnt(0)")
    A("s_barrier")
    for x in E[2] + E[3]: A(x)
    stamp(A, "kv_st")
    for g in Bs[nin:]:
        for y in g: A(y)
    seq = ["W"]*12 + [f"B{k//5}" for k in range(nin)] + ["S"]*4 + [f"B{k//5}" for k in range(nin, 15)]
    def need(tags): return len(seq) - 1 - max(i for i, t in enumerate(seq) if t in tags)
    A(f"s_waitcnt vmcnt({need(['W'])})")
    for x in c_tr(0, 0): A(x)
    if OPT["pubat"] == 0: pubkv(A, need(["S"]))
    for u in range(4):
        c_step(A, u, min(need([f"B{u}", f"W{u+1}", "W"]), 63), True, True, True, g1acc, True, first=(u == 0),
               pre=f_setup1() if u == 1 else [],
               side=({2: f_setup2()[NI:], 3: f_setup2()[:NI]}.get(u) if OPT["fsplit"] else (f_setup2() if u == 3 else None)))
        if u == 1: seq += ["G"]*8
        seq += [f"W{u+3}"]*4 + [f"B{u+3}"]*5
        stamp(A, f"g1_s{u}")
        if OPT["pubat"] == u + 1: pubkv(A, need(["S"]))
    A(f"s_mov_b32 s{sCNT}, 2")
    g1_phase(A)
    f_phase(A)
    stamp_flush(A)
    A.label("k_end"); A("s_endpgm")
    out_kv(A)
    if OPT["lnmid"]:
        A.label("g1_blk")
        w2_prefetch(A, 24, list(range(3 - OPT["lnpn"], 3)))
        A("s_branch g1_noblk")
    A.label("r_notkv")
    if OPT["pf_code"] and not OPT["pfall"]:
        A("s_getpc_b64 s[86:87]")
        A.label("pc_here")
        A(f"s_sub_u32 s86, s86, pc_here-{K}")
        A("s_subb_u32 s87, s87, 0")
        A("s_sub_u32 s85, s82, 16")
        A("s_lshl_b32 s85, s85, 2")
        A(f"s_add_u32 s85, s85, s{sWAVE}")
        A("s_lshl_b32 s85, s85, 3")
        A("v_add_lshl_u32 v2, v1, s85, 7")
        A(f"v_min_u32 v2, k_codeend-{K}-4, v2")
        A("s_mov_b64 exec, 0xff")
        A("global_load_dword a255, v2, s[86:87]")
        A("s_mov_b64 exec, -1")
    A("s_cmp_lt_u32 s82, 24"); A("s_cbranch_scc1 r_q")
    A("s_sub_u32 s87, s82, 24")
    A("s_lshl_b32 s85, s81, 3")
    A(f"s_add_u32 s{sA}, s85, s87")
    aux = " nt" if OPT.get("nt") else ""
    w1l = lambda k: f"buffer_load_dword a255, v22, s[{sW1}:{sW1+3}], s{26 + k//3} offen offset:{1024*(k%3)}{aux}"
    def after(A):
        params1(A); srds(A, ["WS", "W1", "B1", "W2", "B2", "OUT"]); cw_init(A); params2(A); g1_params(A)
        w1_setup(A, 24, 22)
        for k in range(OPT["early"] if OPT["pf_w1"] else 0): A(w1l(k))
    ln_role(A, after, OPT["early"] if OPT["pf_w1"] else 0)
    publish(A, "pub_ln", FL_LN, sA)
    stamp(A, "ln_pub")
    if OPT["tlb"] == 2:
        A("v_lshlrev_b32 v2, 20, v1")
        A("s_mov_b64 exec, 0x3ff")
        A(f"buffer_load_dword a255, v2, s[{sWS}:{sWS+3}], 0 offen sc1")
        A(f"buffer_load_dword a255, v2, s[{sOUT}:{sOUT+3}], 0 offen")
        A(f"buffer_load_dword a255, v2, s[{sB2}:{sB2+3}], 0 offen")
        A("s_mov_b64 exec, -1")
    for k in range(OPT["early"], (3 - OPT["qw1n"]) if (OPT["pf_w1"] and not OPT["qfirst"]) else 0): A(w1l(k))
    def pf_h():
        A(poll_ld(vPO, 24))
        A("v_lshrrev_b32 v2, 5, v1")
        A("v_mul_u32_u24 v2, 40960, v2")
        A("v_and_b32 v3, 31, v1")
        A("v_lshl_add_u32 v2, v3, 7, v2")
        A("s_sub_u32 s85, s82, 24")
        A("s_lshl_b32 s85, s85, 2")
        A(f"s_add_u32 s85, s85, s{sWAVE}")
        A(f"s_mul_i32 s87, s85, {2*40960}")
        A("s_mul_i32 s86, s84, 20480")
        A("s_add_u32 s87, s87, s86")
        A("s_waitcnt vmcnt(0)")
        poll_check(A, "plnh", vPO, 24)
        A("s_barrier")
        for i in range(5):
            A(f"buffer_load_dword a255, v2, s[{sWS}:{sWS+3}], s87 offen sc1")
            A("s_add_u32 s87, s87, 4096")
    for c in str(OPT["lnseq"]):
        if c == "1" and OPT["pf_w1"]:
            for k in range(3, 6): A(w1l(k))
        if c == "6":
            for k in range(3): A(w1l(k))
        if c == "2": pf_h()
        if c == "3": w2_prefetch(A, 24, [0])
        if c == "7": w2_prefetch(A, 24, [2])
        if c == "4": w2_prefetch(A, 24, [0, 1])
        if c == "5": w2_prefetch(A, 24, [0, 1, 2])
    stamp(A, "ln_pf")
    for g in b1_loads(): A(g[0])
    A(poll_ld(vPO, 24))
    c_wring(A)
    A(f"s_waitcnt vmcnt({4*OPT['d']})")
    poll_check(A, "pln2", vPO, 24)
    A("s_barrier")
    for x in f_setup1(): A(x)
    c_bring(A)
    for i in range(80): A(f"v_accvgpr_write_b32 a{G1A+i}, 0")
    A(f"s_waitcnt vmcnt({5*D})")
    for x in f_setup2(): A(x)
    A(f"s_mov_b32 s{sCNT}, 3")
    A(f"s_mov_b32 s{sPUB}, {OPT['lnmid']}")
    A(f"s_waitcnt vmcnt({EW})")
    for x in c_tr(0, 0): A(x)
    stamp(A, "ln_ready")
    A("s_branch g1_loop")
    A.label("r_q")
    A("s_sub_u32 s87, s82, 16")
    A("s_and_b32 s85, s87, 3")
    A("s_lshl_b32 s86, s83, 2")
    A(f"s_add_u32 s{sA}, s85, s86")
    A("s_lshr_b32 s85, s87, 2")
    A("s_lshl_b32 s86, s84, 1")
    A(f"s_add_u32 s{sBp}, s85, s86")
    A(f"s_lshl_b32 s{sU}, s{sBp}, 2")
    A(f"s_and_b32 s85, s{sA}, 3")
    A(f"s_add_u32 s{sU}, s{sU}, s85")
    A(f"s_lshr_b32 s{sNR}, s{sA}, 2")
    def midq(A):
        params1(A); srds(A, ["WS", "W1", "WO", "W2", "B2", "OUT"]); cw_init(A); params2(A)
        w1_setup(A, 16, 12)
        if OPT["qw1"] == 0: q_pf_only(A)
        if not OPT["qdefer"]: q_setup(A)
    def qs(lo, hi):
        def f(A):
            B = Asm(); q_setup(B)
            assert len(B.lines) > 150
            for x in B.lines[lo:hi]: A(x)
        return f
    def qtouch(A):
        A("s_mov_b32 exec_lo, 0xffff03ff")
        A("s_mov_b32 exec_hi, 0")
        A(f"buffer_load_dword a255, v{vT1}, s[{sWS}:{sWS+3}], 0 offen sc1")
        A("s_mov_b64 exec, -1")
    qkv_setup(A, True)
    if not OPT["xfirst"]: qkv_setup_w(A, True)
    A("s_waitcnt lgkmcnt(0)"); srds(A, ["X", "W"])
    qb = [(max(OPT["qw1"], 1), q_loop_pf)]
    if OPT["qdefer"]:
        def both(A): q_loop_pf(A); q_setup(A); qtouch(A)
        qb = [(OPT["qw1"], both)]
    out_q = qkv_gemm(A, "q", True, midq, q_extras(), {9: lambda A: poll_check(A, "pln3", vPO, 24)}, qb)
    q_epilogue(A)
    A("s_lshl_b32 s88, s81, 3")
    A("s_add_u32 s88, s88, s82")
    A("s_sub_u32 s88, s88, 16")
    publish(A, "pub_q", FL_Q, 88)
    stamp(A, "q_pub")
    if OPT["qw2b"]: w2_prefetch(A, 16, list(range(3 - OPT["qw2b"], 3)))
    for x in f_setup1(): A(x)
    switch_to_fb(A)
    c_wring(A)
    if OPT["xw"]: xw_dma(A)
    A(poll_ld(vPO, 25))
    A(f"s_waitcnt vmcnt({4*D + 1 + (4 + 4*OPT['xw'] if OPT['xw'] else 0)})")
    for x in f_setup2(): A(x)
    A("s_waitcnt vmcnt(0)")
    poll_check(A, "pq2", vPO, 25)
    A("s_barrier")
    stamp(A, "q_allq")
    if OPT["pf_pq"]:
        A("s_sub_u32 s88, s82, 16")
        A("s_lshl_b32 s88, s88, 2")
        A(f"s_add_u32 s88, s88, s{sWAVE}")
        A("v_lshlrev_b32 v2, 7, v1")
        A(f"s_mul_i32 s85, s83, {8*81920}")
        A(f"s_mul_i32 s86, s88, {160*128}")
        A("s_add_u32 s85, s85, s86")
        A(f"s_add_u32 s85, s85, {WS_PQ:#x}")
        for i in range(3):
            if i == 2: A("s_mov_b32 exec_hi, 0")
            A(f"buffer_load_dword a255, v2, s[{sWS}:{sWS+3}], s85 offen sc1")
            A("s_add_u32 s85, s85, 8192")
        A("s_mov_b32 exec_hi, -1")
        A("s_cmp_ge_u32 s88, 20")
        A("s_cbranch_scc1 q_pfd")
        A("s_mul_i32 s85, s88, 40960")
        A("s_mul_i32 s86, s84, 20480")
        A("s_add_u32 s85, s85, s86")
        A(f"s_add_u32 s85, s85, {WS_M:#x}")
        for i in range(3):
            if i == 2: A("s_mov_b32 exec_hi, 0")
            A(f"buffer_load_dword a255, v2, s[{sWS}:{sWS+3}], s85 offen sc1")
            A("s_add_u32 s85, s85, 8192")
        A("s_mov_b32 exec_hi, -1")
        A.label("q_pfd")
    fa_params(A)
    A("s_branch f_entry")
    out_q(A)
    A.label("k_codeend")
    for i, l in enumerate(A.lines):
        if l.startswith("v_mad_i32_i24 v4, v3, -20"):
            A.lines[i] = l.replace("-20", "s89")
        if l == "s_movk_i32 s88, 3840":
            A.lines[i] = "s_movk_i32 s89, -20"
    if OPT["align"]:
        A.lines, nc, nn = align(A.lines, OPT["align"])
        print("aligned: widened", nc, "nops", nn, file=sys.stderr)
    nb = check(A.lines)
    print("hazards:", nb, file=sys.stderr)
    return hdr + A.text() + kd(K)

if __name__ == "__main__":
    out = sys.argv[1]
    for a in sys.argv[2:]:
        if a == "st": STAMPS = True
        else:
            k, v = a.split("="); OPT[k] = int(v)
    open(out, "w").write(gen())
    if STAMPS: json.dump(_st["names"], open(out + ".names", "w"))
```

```python
import sys, json
from asmlib import Asm, vr, ar, sr, check, align

NAME = "gated_mix__linear_attn_block__mixer_token_mlp__prompt"
WS_H   = 0x000000
WS_U   = 0x280000
WS_PQ  = 0x460000
WS_M   = 0x6E0000
WS_KVP = 0x7A8000
WS_ZP  = 0x880000
WS_G   = 0x972000
WS_FLAG = 0x974000
FL_X = WS_FLAG
FL_LN = WS_FLAG + 128
FL_KV = FL_LN + 64*128
FL_Q = FL_KV + 128*128
FL_G1 = FL_Q + 64*128
WS_SIZE = FL_G1 + 192*128
WS_STAMP = 0x1000000

sX, sW, sWS, sW1, sW2, sOUT, sWO, sB1, sB2, sGW = 28, 32, 36, 40, 44, 48, 52, 56, 60, 64
sWAVE = 68
sA, sBp = 69, 70
sG1D, sG1F, sFS, sFD = 71, 72, 73, 74
sCNT, sO1, sO2, sRD, sWR, sM0 = 75, 76, 77, 78, 79, 80
sEX, sMK = 90, 92
sU, sNR = 94, 95
sWR_, sWC_ = 96, 97
sPUB = 3
sQOK = 99
sM1 = 98
sC1, sC2, sCM0, sCB1, sCE1, sCB2, sCE2, sCST, sCW, sNON = 4, 5, 6, 7, 8, 9, 10, 11, 12, 16
sF1, sFB1, sFE1, sF2, sFB2, sFE2 = 17, 18, 19, 20, 21, 22
LOG2E = 0x3FB8AA3B
EPS6 = 0x358637BD
LDS_RED = 65536
LDS_BYTES = 163840
vXO, vWO_, vXB, vCUR = 16, 20, 25, 29
vWS_, vB0, vB1, vTR, vWS2 = 33, 37, 38, 39, 43
ACC = 48
FA_, FB_ = 112, 148
BR, AS = 0, 80
STG = 36864
vPOLL, vPO = 14, 13
OPT = {"rot": 1, "pf_w1": 1, "pf_w2": 1, "pf_code": 1, "pf_pq": 0, "sleep": 1, "early": 1, "d": 3, "qpoll": 2, "nbin": 10, "cv": 0, "lnseq": 15, "qw2": 0, "qw2b": 0, "ntq": 0, "qw1": 1, "qw1n": 2, "kvr": 1, "touch": 1, "perm": 0, "otouch": 0, "rdb": 4, "w2c": 1, "qfirst": 0, "rfd": 3, "tailw": 1, "pubat": 0, "kvw2": 0, "b0": 0, "qw1b": 0, "rfb": 4, "frot": 2, "arot": 2, "fmap": 1, "qrot": 1, "grot": 4, "lnpost": 0, "lnpn": 3, "align": 5, "defer": 0, "qdefer": 0, "lnmid": 0, "ost": 1, "tlb": 0, "pf0": 8, "xfirst": 1, "fsplit": 1, "xw": 3, "xwd": 0, "xsp": 6, "pfall": 0, "ntl": 6, "ntlk": 2, "ntlq": 3, "ox4": 0}
STAMPS = False
_st = {"n": 0, "names": []}

def stamp(A, name, real=False):
    if not STAMPS: return
    i = _st["n"]; _st["n"] += 1; _st["names"].append(name)
    A("s_memrealtime s[100:101]" if real else "s_memtime s[100:101]")
    A("s_waitcnt lgkmcnt(0)")
    A(f"v_writelane_b32 v47, s100, {i}")
def stamp_flush(A):
    if not STAMPS: return
    stamp(A, "end"); stamp(A, "endreal", True)
    A("s_lshl_b32 s100, s2, 2")
    A(f"s_add_u32 s100, s100, s{sWAVE}")
    A("s_lshl_b32 s100, s100, 8")
    A(f"s_add_u32 s100, s100, {WS_STAMP:#x}")
    A(f"s_mov_b32 s{sWS+2}, 0x2000000")
    A("v_lshlrev_b32 v46, 2, v1")
    A(f"buffer_store_dword v47, v46, s[{sWS}:{sWS+3}], s100 offen")

def srds(A, which):
    tab = {"X": (sX, 4, 2048*1280), "W": (sW, 6, 640*3840), "WO": (sWO, 8, 640*1280), "W1": (sW1, 12, 2048*3072), "B1": (sB1, 14, 3072),
           "W2": (sW2, 16, 1536*4096), "B2": (sB2, 18, 4096), "GW": (sGW, 20, 1280), "OUT": (sOUT, 22, 2048*1280), "WS": (sWS, 26, WS_SIZE)}
    for w in which:
        base, ptr, size = tab[w]
        A(f"s_mov_b64 s[{base}:{base+1}], s[{ptr}:{ptr+1}]")
        A(f"s_mov_b32 s{base+2}, {size:#x}")
        A(f"s_mov_b32 s{base+3}, 0x20000")

def flat(groups):
    out = []
    for g in groups: out += g if isinstance(g, list) else [g]
    return out

def weave(A, mf, fill, first=0):
    for i, m in enumerate(mf):
        A(m)
        if i < len(fill):
            for x in fill[i]: A(x)
    for g in fill[len(mf):]:
        for x in g: A(x)

def poll_off(A, dst, nper, total_waves_split=True):
    A(f"v_and_b32 v{dst}, {nper-1}, v1")
    A(f"s_mul_i32 s85, s{sWAVE}, {nper}")
    A(f"v_add_lshl_u32 v{dst}, v{dst}, s85, 7")
def poll_ld(vo, so):
    return f"buffer_load_dword v{vPOLL}, v{vo}, s[{sWS}:{sWS+3}], s{so} offen sc1"
def poll_check(A, name, vo, so):
    A(f"v_cmp_ne_u32 vcc, s{sNON}, v{vPOLL}")
    A(f"s_cbranch_vccz {name}_ok")
    A(f"s_mov_b32 s{sM1}, 0")
    A.label(f"{name}_spin")
    A(f"s_add_u32 s{sM1}, s{sM1}, 1")
    A(f"s_cmp_gt_u32 s{sM1}, 0x8000")
    A(f"s_cbranch_scc1 {name}_ok")
    A(f"s_sleep {OPT['sleep']}")
    A(poll_ld(vo, so))
    A("s_waitcnt vmcnt(0)")
    A(f"v_cmp_ne_u32 vcc, s{sNON}, v{vPOLL}")
    A(f"s_cbranch_vccnz {name}_spin")
    A.label(f"{name}_ok")
def flag_store(A, so):
    A(f"v_mov_b32 v2, s{sNON}")
    A("v_lshlrev_b32 v3, 2, v1")
    A("s_mov_b32 exec_hi, 0")
    A(f"buffer_store_dword v2, v3, s[{sWS}:{sWS+3}], s{so} offen sc1")
    A("s_mov_b32 exec_hi, -1")
def publish(A, name, base, sidx, wait=0):
    if wait is not None: A(f"s_waitcnt vmcnt({wait})")
    A("s_barrier")
    A(f"s_cmp_lg_u32 s{sWAVE}, 0")
    A(f"s_cbranch_scc1 {name}_np")
    A(f"s_lshl_b32 s85, s{sidx}, 7")
    A(f"s_add_u32 s85, s85, {base:#x}")
    flag_store(A, 85)
    A.label(f"{name}_np")

def prologue(A):
    A("s_cmp_ge_u32 s2, 256")
    A("s_cbranch_scc1 k_end")
    if STAMPS: A("v_mov_b32 v47, 0")
    stamp(A, "startreal", True); stamp(A, "start")
    A("s_load_dwordx16 s[4:19], s[0:1], 0")
    A("s_load_dwordx8 s[20:27], s[0:1], 64")
    if OPT["pf0"] and not OPT["pfall"]:
        A("s_getpc_b64 s[86:87]")
        A("v_lshlrev_b32 v2, 7, v0")
        A(f"s_mov_b64 exec, {(1 << OPT['pf0']) - 1:#x}")
        A("global_load_dword a255, v2, s[86:87] offset:128")
        A("s_mov_b64 exec, -1")
    A("v_lshrrev_b32 v2, 6, v0")
    A("v_and_b32 v1, 63, v0")
    if OPT["pfall"]:
        A("s_getpc_b64 s[86:87]")
        A.label("pc_0")
        A("s_lshr_b32 s85, s2, 3")
        A("v_lshl_add_u32 v3, s85, 2, v2")
        A("v_mad_u32_u24 v3, v3, 3, v1")
        A("v_cmp_gt_u32 vcc, 3, v1")
        A("v_add_u32 v4, -2, v1")
        A(f"s_mov_b64 exec, {(1 << (3 + OPT['pf0'])) - 1:#x}")
        A("v_cndmask_b32 v3, v4, v3, vcc")
        A("v_lshlrev_b32 v3, 7, v3")
        A("v_min_u32 v3, k_codeend-pc_0-4, v3")
        A("global_load_dword a255, v3, s[86:87]")
        A("s_mov_b64 exec, -1")
    A(f"v_readfirstlane_b32 s{sWAVE}, v2")
    A("s_and_b32 s81, s2, 7")
    A("s_lshr_b32 s82, s2, 3")
    A("s_lshr_b32 s83, s81, 1")
    A("s_and_b32 s84, s81, 1")

def params1(A):
    A(f"s_add_u32 s86, s26, {FL_X:#x}")
    A("s_addc_u32 s87, s27, 0")
    A("s_load_dword s3, s[86:87], 0")
    A("s_lshr_b32 s85, s82, 2")
    A("s_lshl_b32 s88, s83, 3")
    if OPT["perm"]: A("s_xor_b32 s85, s85, 7")
    A(f"s_add_u32 s{sFS}, s85, s88")
    A("s_and_b32 s85, s82, 3")
    A("s_lshl_b32 s88, s84, 2")
    A(f"s_add_u32 s{sFD}, s85, s88")
    if OPT["fmap"]:
        A("s_lshr_b32 s85, s82, 3")
        if OPT["fmap"] == 1:
            A("s_lshl_b32 s85, s85, 3")
            A(f"s_add_u32 s{sFS}, s85, s81")
        else:
            A(f"s_lshl_b32 s{sFS}, s81, 2")
            A(f"s_add_u32 s{sFS}, s{sFS}, s85")
        A(f"s_and_b32 s{sFD}, s82, 7")
    A("s_sub_u32 s85, s82, 8")
    A("s_cmp_lt_u32 s82, 16")
    A("s_cselect_b32 s85, s82, s85")
    A("s_and_b32 s89, s85, 3")
    A(f"s_add_u32 s{sG1D}, s89, s88")
    A("s_lshr_b32 s85, s85, 2")
    A("s_lshl_b32 s88, s85, 2")
    A(f"s_add_u32 s{sG1F}, s83, s88")
    A("s_lshr_b32 s88, s85, 2")
    A("s_lshl_b32 s85, s85, 1")
    A("s_add_u32 s85, s85, s88")
    A("s_lshl_b32 s85, s85, 1")
    if OPT["rfb"] == 0: A("s_mov_b32 s85, 0")
    A(f"s_mul_i32 s89, s89, {OPT['rdb']}")
    A("s_add_u32 s85, s85, s89")
    if OPT["grot"] == 2: A("s_lshl_b32 s85, s85, 1")
    A(f"s_and_b32 s99, s85, {(15 if OPT['grot'] == 4 else 8) if OPT['grot'] else 0}")

def cw_init(A):
    A(f"s_mov_b64 s[{sCW}:{sCW+1}], s[{sW1}:{sW1+1}]")
    A(f"s_mov_b64 s[{sCW+2}:{sCW+3}], s[{sW1+2}:{sW1+3}]")
def params2(A):
    if OPT.get("same"):
        for k, r in enumerate((sG1D, sG1F, sFS, sFD)):
            A(f"s_mov_b32 s{100 if not STAMPS else 64+k}, s{r}")
            A(f"s_mov_b32 s{r}, 0")
        params2_(A)
        for k, r in enumerate((sG1D, sG1F, sFS, sFD)): A(f"s_mov_b32 s{r}, s{64+k}")
    else: params2_(A)
def params2_(A):
    A(f"s_mul_i32 s{sCB1}, s{sWAVE}, {16*32*3072}")
    A(f"s_lshl_b32 s85, s{sG1F}, 7")
    A(f"s_add_u32 s{sCB1}, s{sCB1}, s85")
    A(f"s_add_u32 s{sCE1}, s{sCB1}, {16*32*3072}")
    A(f"s_mul_i32 s85, s99, {32*3072}")
    A(f"s_add_u32 s{sC1}, s{sCB1}, s85")
    A(f"s_mul_i32 s{sCB2}, s{sWAVE}, {16*40960}")
    A(f"s_mul_i32 s85, s{sG1D}, 5120")
    A(f"s_add_u32 s{sCB2}, s{sCB2}, s85")
    A(f"s_add_u32 s{sCE2}, s{sCB2}, {16*40960}")
    A(f"s_mul_i32 s85, s99, 40960")
    A(f"s_add_u32 s{sC2}, s{sCB2}, s85")
    A(f"s_mov_b32 s{sCST}, {32*3072}")
    A(f"s_lshl_b32 s{sCM0}, s{sWAVE}, 14")
    A("s_and_b32 s85, s82, 3")
    A(f"s_mul_i32 s85, s85, {OPT['rfd']}")
    A("s_lshr_b32 s86, s82, 2")
    A("s_mul_i32 s86, s86, 3")
    A("s_lshr_b32 s86, s86, 1")
    A("s_add_u32 s85, s85, s86")
    A("s_cmp_ge_u32 s85, 12")
    A("s_cselect_b32 s86, 12, 0")
    A("s_sub_u32 s85, s85, s86")
    if OPT["frot"] == 0: A("s_mov_b32 s85, 0")
    if OPT["frot"] == 2:
        A(f"s_add_u32 s85, s{sFS}, s{sFD}")
        A("s_and_b32 s85, s85, 1")
        A("s_mul_i32 s85, s85, 6")
    if OPT["frot"] == 3:
        A(f"s_add_u32 s85, s{sFS}, s{sFD}")
        A("s_mul_i32 s86, s85, 86")
        A("s_lshr_b32 s86, s86, 8")
        A("s_mul_i32 s86, s86, 3")
        A("s_sub_u32 s85, s85, s86")
        A("s_lshl_b32 s85, s85, 2")
    A(f"s_mul_i32 s{sFB1}, s{sWAVE}, {12*32*4096}")
    A(f"s_lshl_b32 s86, s{sFS}, 7")
    A(f"s_add_u32 s{sFB1}, s{sFB1}, s86")
    A(f"s_add_u32 s{sFE1}, s{sFB1}, {12*32*4096}")
    A(f"s_lshl_b32 s86, s85, 17")
    A(f"s_add_u32 s{sF1}, s{sFB1}, s86")
    A(f"s_mul_i32 s{sFB2}, s{sWAVE}, {12*40960}")
    A(f"s_mul_i32 s86, s{sFD}, 5120")
    A(f"s_add_u32 s{sFB2}, s{sFB2}, s86")
    A(f"s_add_u32 s{sFB2}, s{sFB2}, {WS_U:#x}")
    A(f"s_add_u32 s{sFE2}, s{sFB2}, {12*40960}")
    A(f"s_mul_i32 s86, s85, 40960")
    A(f"s_add_u32 s{sF2}, s{sFB2}, s86")
    A(f"v_lshlrev_b32 v{vB0}, 4, v1")
    A(f"v_add_u32 v{vB1}, 4096, v{vB0}")
    A("v_lshrrev_b32 v2, 2, v1")
    A("v_lshrrev_b32 v3, 1, v2")
    A("v_and_b32 v3, 3, v3")
    A("v_lshlrev_b32 v2, 7, v2")
    A("v_lshl_add_u32 v2, v3, 5, v2")
    A("v_and_b32 v3, 3, v1")
    A("v_lshl_add_u32 v2, v3, 3, v2")
    A(f"v_add_u32 v{vTR}, s{sCM0}, v2")
    for t in range(1, 4): A(f"v_xor_b32 v{vTR+t}, {32*t}, v{vTR}")
    A("v_lshrrev_b32 v2, 3, v1")
    A("v_lshrrev_b32 v3, 4, v1")
    A("v_lshlrev_b32 v3, 1, v3")
    A("v_and_b32 v4, 7, v1")
    A("v_xor_b32 v3, v3, v4")
    A("v_lshlrev_b32 v3, 4, v3")
    for base, stride in ((vWS_, 3072), (vWS2, 4096)):
        A(f"v_mul_u32_u24 v4, {stride}, v2")
        A(f"v_add_u32 v{base}, v3, v4")
        for q in range(1, 4): A(f"v_add_u32 v{base+q}, {q*(8*stride-1024)}, v{base}")
    poll_off(A, vPO, 16)
    A("v_lshlrev_b32 v15, 7, v1")
    A(f"s_mov_b32 s24, {FL_LN:#x}")
    A(f"s_mov_b32 s25, {FL_Q:#x}")
    A("s_waitcnt lgkmcnt(0)")
    A(f"s_mul_i32 s{sNON}, s3, 0x41C64E6D")
    A(f"s_add_u32 s{sNON}, s{sNON}, 0x3C6EF35F")

def qkv_setup(A, isq):
    A(f"s_lshr_b32 s{sWR_}, s{sWAVE}, 1")
    A(f"s_and_b32 s{sWC_}, s{sWAVE}, 1")
    A("v_lshrrev_b32 v2, 3, v1")
    A(f"s_lshl_b32 s85, s{sWAVE}, 5")
    A("v_add_u32 v2, s85, v2")
    A("v_mul_u32_u24 v2, 1280, v2")
    A("v_lshrrev_b32 v3, 4, v1")
    A("v_and_b32 v4, 7, v1")
    A("v_xor_b32 v4, v4, v3")
    A(f"v_lshl_add_u32 v{vXO}, v4, 4, v2")
    A("v_xor_b32 v4, 4, v4")
    A("v_lshl_add_u32 v6, v4, 4, v2")
    A(f"v_add_u32 v{vXO+1}, {8*1280-1024}, v6")
    A(f"v_add_u32 v{vXO+2}, {16*1280-2048}, v{vXO}")
    A(f"v_add_u32 v{vXO+3}, {24*1280-3072}, v6")
    A(f"s_mul_i32 s{sO1}, s{sA}, {0 if OPT.get('same') else 128*1280}")
    A(f"s_mov_b32 s{sO2}, 0")
    if OPT["rot"]:
        q = OPT["qrot"]
        if q == 1:
            A("s_and_b32 s85, s82, 3")
            A("s_lshl_b32 s85, s85, 2")
            A("s_lshr_b32 s85, 0x8530, s85")
            A("s_and_b32 s85, s85, 15")
            A("s_and_b32 s86, s82, 12")
            A("s_lshr_b32 s86, 0x8530, s86")
            A("s_and_b32 s86, s86, 15")
            A("s_add_u32 s85, s85, s86")
            A("s_add_u32 s85, s85, s83")
            A("s_add_u32 s85, s85, s84")
        else:
            A("s_lshr_b32 s85, s82, 2")
            A("s_add_u32 s85, s85, s82")
            A("s_and_b32 s85, s85, 1")
            A("s_mul_i32 s85, s85, 5")
            if q == 2:
                A("s_add_u32 s85, s85, s83")
                A("s_add_u32 s85, s85, s84")
            if q == 4:
                A("s_add_u32 s85, s85, s81")
            if q == 5:
                A("s_mov_b32 s85, s81")
        if isq: A("s_add_u32 s85, s85, 1")
        A("s_mul_i32 s86, s85, 26")
        A("s_lshr_b32 s86, s86, 8")
        A("s_mul_i32 s86, s86, 10")
        A("s_sub_u32 s85, s85, s86")
        A(f"s_mul_i32 s{sO2}, s85, {64*3840}")
        A("s_lshl_b32 s85, s85, 7")
        A(f"s_add_u32 s{sO1}, s{sO1}, s85")
    A(f"s_lshl_b32 s{sM0}, s{sWAVE}, 12")
    A(f"s_mul_i32 s{sM1}, s{sWAVE}, 5120")
    A(f"s_add_u32 s{sM1}, s{sM1}, 16384")
    A(f"s_mov_b32 s{sWR}, {2*STG}")

def qkv_setup_w(A, isq):
    if OPT.get("same"):
        A("s_mov_b32 s86, 1280")
    elif isq:
        A(f"s_mul_i32 s86, s{sBp}, 320")
    else:
        A(f"s_mul_i32 s86, s{sBp}, 160")
        A("s_add_u32 s86, s86, 1280")
    A(f"s_mul_i32 s85, s{sWAVE}, {16*3840}")
    A("s_add_u32 s85, s85, s86")
    A("s_movk_i32 s88, 3840")
    for n in range(5):
        if n: A(f"v_add_u32 v2, {64*n}, v1")
        q = "v2" if n else "v1"
        A(f"v_mul_u32_u24 v3, 3277, {q}")
        A("v_lshrrev_b32 v3, 16, v3")
        A(f"v_mad_i32_i24 v4, v3, -20, {q}")
        A("v_lshrrev_b32 v5, 2, v3")
        A("v_and_b32 v5, 2, v5")
        A("v_xor_b32 v4, v4, v5")
        comp = 1024*n if n < 4 else 0
        A(f"s_sub_u32 s87, s85, {comp}" if comp else "s_mov_b32 s87, s85")
        A("v_mad_u32_u24 v3, v3, s88, s87" if False else "v_mul_u32_u24 v3, 3840, v3")
        A("v_lshl_add_u32 v3, v4, 4, v3")
        if not isq:
            A("v_cmp_le_u32 vcc, 10, v4")
            A("v_add_u32 v5, 1120, v3")
            A("v_add_u32 v3, s87, v3")
            A("v_add_u32 v5, s87, v5")
            A(f"v_cndmask_b32 v{vWO_+n}, v3, v5, vcc")
        else:
            A(f"v_add_u32 v{vWO_+n}, s87, v3")

def nt(b): return " nt" if OPT["ntq"] & b else ""
def qkv_dma():
    L = [[f"s_add_u32 m0, s{sWR}, s{sM0}"]]
    for n in range(4):
        L.append([f"buffer_load_dwordx4 v{vXO+n}, s[{sX}:{sX+3}], s{sO1} offen offset:{1024*n}{nt(1)} lds"])
    L.append([f"s_add_u32 m0, s{sWR}, s{sM1}"])
    for n in range(4):
        L.append([f"buffer_load_dwordx4 v{vWO_+n}, s[{sW}:{sW+3}], s{sO2} offen offset:{1024*n}{nt(2)} lds"])
    L.append(["s_add_u32 m0, m0, 4096"])
    L.append([f"buffer_load_dwordx4 v{vWO_+4}, s[{sW}:{sW+3}], s{sO2} offen{nt(2)} lds"])
    return L
def qkv_adv():
    return [f"s_add_u32 s{sO1}, s{sO1}, 128", f"s_add_u32 s{sO2}, s{sO2}, {64*3840}", f"s_cmp_eq_u32 s{sO2}, {640*3840}",
            "s_cselect_b32 s85, 1280, 0", f"s_cselect_b32 s{sO2}, 0, s{sO2}", f"s_sub_u32 s{sO1}, s{sO1}, s85",
            f"s_add_u32 s{sWR}, s{sWR}, {STG}", f"s_cmp_eq_u32 s{sWR}, {4*STG}", f"s_cselect_b32 s{sWR}, 0, s{sWR}"]
def emit_dma_block(A, groups):
    for g in groups:
        for x in g: A(x)
        if "m0" in g[0].split(",")[0]: A("s_nop 0")

NW = 5
vXB, vCUR = 26, 6
vXB = 208
vCUR = 215
def qkv_reads(kk, fs):
    def wr(t):
        return [f"ds_read_b64_tr_b16 {ar(fs+16+4*t+2*j,2)}, v{vCUR+2+t} offset:{kk*10240 + j*1280}" for j in range(2)]
    L = wr(0)
    for st in range(4):
        L.append(f"ds_read_b128 {ar(fs+4*st,4)}, v{vCUR+kk} offset:{st*2048}")
    for t in range(1, 5): L += wr(t)
    return L
def qkv_mfmas(fs, isq):
    L = []
    for t in range(5):
        for st in range(4):
            x = ar(fs + 4*st, 4); w = ar(fs + 16 + 4*t, 4); c = vr(ACC + (st*5+t)*4, 4)
            L.append(f"v_mfma_f32_16x16x32_bf16 {c}, {w}, {x}, {c}" if isq else f"v_mfma_f32_16x16x32_bf16 {c}, {x}, {w}, {c}")
    return L

def qkv_gemm(A, pfx, isq, mid_setup, extras, pres, blk):
    if OPT["xfirst"]:
        emit_dma_block(A, qkv_dma()[:5])
        qkv_setup_w(A, isq)
        emit_dma_block(A, qkv_dma()[5:])
    else:
        emit_dma_block(A, qkv_dma())
    for x in qkv_adv(): A(x)
    stamp(A, pfx + "_iss0")
    mid_setup(A)
    A("v_and_b32 v2, 15, v1")
    A("v_lshrrev_b32 v3, 4, v1")
    A("v_lshrrev_b32 v4, 1, v2")
    A("v_xor_b32 v4, v4, v3")
    A("v_lshlrev_b32 v4, 4, v4")
    A("v_lshl_add_u32 v4, v2, 7, v4")
    A(f"s_lshl_b32 s85, s{sWR_}, 13")
    A(f"v_add_u32 v{vXB}, s85, v4")
    A(f"v_xor_b32 v{vXB+1}, 64, v{vXB}")
    A("v_lshrrev_b32 v4, 2, v2")
    A("v_lshl_add_u32 v4, v3, 3, v4")
    A("v_mul_u32_u24 v4, 320, v4")
    A("v_and_b32 v5, 1, v1")
    A("v_lshl_add_u32 v4, v5, 3, v4")
    A("v_add_u32 v4, 16384, v4")
    A("v_bfe_u32 v5, v1, 1, 1")
    A("v_and_b32 v6, 1, v3")
    A("v_lshlrev_b32 v6, 1, v6")
    A(f"s_mul_i32 s85, s{sWC_}, {10 if isq else 5}")
    for t in range(5):
        if isq: c0, step = [(0, 1), (2, 1), (4, 5), (5, 1), (7, 1)][t]
        else: c0, step = [(0, 1), (2, 1), (4, 6), (11, 1), (13, 1)][t]
        A(f"s_add_u32 s86, s85, {c0}")
        if step == 1: A("v_add_u32 v7, s86, v5")
        else: A(f"v_mad_u32_u24 v7, v5, {step}, s86")
        A("v_xor_b32 v7, v7, v6")
        A(f"v_lshl_add_u32 v{vXB+2+t}, v7, 4, v4")
    zero_acc(A)
    A(f"s_mov_b32 s{sRD}, {2*STG}")
    A(f"s_mov_b32 s{sCNT}, 0")
    upd = [f"v_add_u32 v{vCUR+i}, s{sRD}, v{vXB+i}" for i in range(7)]
    rdadv = [f"s_add_u32 s{sRD}, s{sRD}, {STG}", f"s_cmp_eq_u32 s{sRD}, {4*STG}", f"s_cselect_b32 s{sRD}, 0, s{sRD}"]
    def spread(rd, dma_slots, groups, scal):
        fill = [[] for _ in range(20)]
        k = 0
        for gi in range(9):
            for _ in range(2 if gi < 5 else 1):
                fill[gi].append(rd[k]); k += 1
        g = list(groups)
        for sl in dma_slots:
            if not g: break
            if "m0" in g[0][0].split(",")[0]:
                fill[sl-1] += g.pop(0)
            fill[sl] += g.pop(0)
        return fill, g
    def put_scal(fill, scal, start):
        sc = list(scal); gi = start
        while sc:
            room = 2 - len(fill[gi]) if gi < 19 else len(sc)
            for _ in range(max(room, 0)):
                if sc: fill[gi].append(sc.pop(0))
            gi += 1
    def top_half(wait, groups, pre=None, slots=(3, 7, 11, 15, 19)):
        A(f"s_waitcnt vmcnt({wait}) lgkmcnt(0)")
        if pre: pre(A)
        A("s_barrier")
        fill, rest = spread(qkv_reads(0, FA_), slots, groups, [])
        weave(A, qkv_mfmas(FB_, isq), fill)
        return rest
    def bot_half(adv, tail, groups=[], slots=(2, 6, 10, 13)):
        A("s_waitcnt lgkmcnt(0)")
        fill, rest = spread(qkv_reads(1, FB_), slots, groups, [])
        assert not rest
        put_scal(fill, rdadv + upd, 9)
        put_scal(fill, (qkv_adv() if adv else []) + tail, 14)
        weave(A, qkv_mfmas(FA_, isq), fill)
    for x in upd: A(x)
    stamp(A, pfx + "_setup")
    emit_dma_block(A, qkv_dma())
    for x in qkv_adv(): A(x)
    stamp(A, pfx + "_issued")
    A("s_waitcnt vmcnt(9)")
    A("s_barrier")
    stamp(A, pfx + "_first")
    for x in qkv_reads(0, FA_): A(x)
    emit_dma_block(A, qkv_dma()[:7])
    A(f"s_branch {pfx}_mid")
    A(".p2align 3")
    A.label(f"{pfx}_loop")
    outl = []
    for k, (c, fn) in enumerate(blk):
        A(f"s_cmp_eq_u32 s{sCNT}, {c}")
        A(f"s_cbranch_scc1 {pfx}_blk{k}")
    A.label(f"{pfx}_noblk")
    rest = top_half(9, qkv_dma())
    assert len(rest) == 5
    A.label(f"{pfx}_mid")
    ntl = OPT["ntl"]
    bot_half(True, [f"s_add_u32 s{sCNT}, s{sCNT}, 1", f"s_cmp_lt_u32 s{sCNT}, {ntl if ntl else 8}"], rest)
    A(f"s_cbranch_scc1 {pfx}_loop")
    if ntl:
        keep = OPT["ntq"]; OPT["ntq"] = OPT["ntlq"] if isq else OPT["ntlk"]
        A(".p2align 3")
        A.label(f"{pfx}_loop2")
        rest = top_half(9, qkv_dma())
        bot_half(True, [f"s_add_u32 s{sCNT}, s{sCNT}, 1", f"s_cmp_lt_u32 s{sCNT}, 8"], rest)
        A(f"s_cbranch_scc1 {pfx}_loop2")
        OPT["ntq"] = keep
    for it in (8, 9):
        g, w = extras.get(it, ([], 9 if it == 8 else 0))
        sl = (1, 3, 5, 8, 10, 12, 14, 16, 18) if len(g) > 14 else (2, 5, 8, 11, 14, 17)
        rest = top_half(w, g, pres.get(it), sl)
        bot_half(False, [], rest, sl)
    stamp(A, pfx + "_loop9")
    A("s_waitcnt lgkmcnt(0)")
    if isq:
        for m in qkv_mfmas(FB_, isq): A(m)
        A("s_nop 7")
        stamp(A, pfx + "_loopdone")
    def outline(A):
        for k, (c, fn) in enumerate(blk):
            A.label(f"{pfx}_blk{k}")
            fn(A)
            A(f"s_branch {pfx}_noblk")
    return outline

PAIRS = [(2,0),(3,0),(2,1),(3,1),(4,1),(3,2),(4,2)]
def kv_mask(i):
    te, tc = PAIRS[i]; m = 0
    for l in range(64):
        c = 16*tc + l % 16; e = [-8, 8, 24][te-2] + 4*(l//16)
        if c < 40 and e >= 0 and c//20 == e//20: m |= 1 << l
    return m

KVB = [sum(bin(kv_mask(j)).count("1") for j in range(i)) for i in range(8)]
def kv_rank(A, dst, i, shift, add=0):
    m = kv_mask(i)
    A(f"s_mov_b32 s85, {m & 0xffffffff:#x}")
    A(f"s_mov_b32 s86, {m >> 32:#x}")
    A(f"v_mbcnt_lo_u32_b32 v{dst}, s85, {KVB[i]}" if KVB[i] <= 64 else f"v_mov_b32 v{dst}, {KVB[i]}\nv_mbcnt_lo_u32_b32 v{dst}, s85, v{dst}")
    A(f"v_mbcnt_hi_u32_b32 v{dst}, s86, v{dst}")
    A(f"v_lshlrev_b32 v{dst}, {shift}, v{dst}")
    if add: A(f"v_add_u32 v{dst}, {add}, v{dst}")
vKR = 246
def phi4(A, b, T, dst=None):
    dst = b if dst is None else dst
    A(f"v_pk_mul_f32 {vr(T,2)}, {vr(b,2)}, s[{sL2}:{sL2+1}]")
    A(f"v_pk_mul_f32 {vr(T+2,2)}, {vr(b+2,2)}, s[{sL2}:{sL2+1}]")
    for i in range(4): A(f"v_exp_f32 v{T+i}, v{T+i} clamp")
    for i in range(4): A(f"v_max_f32 v{dst+i}, {EPS6:#x}, v{b+i}")
    A(f"v_pk_add_f32 {vr(dst,2)}, {vr(dst,2)}, {vr(T,2)}")
    A(f"v_pk_add_f32 {vr(dst+2,2)}, {vr(dst+2,2)}, {vr(T+2,2)}")
sL2 = 88
vEW, vEZ, vER, sKVS = 250, 251, 252, 26
def kv_esetup(A):
    A(f"s_lshl_b32 s85, s{sBp}, 1")
    A(f"s_add_u32 s85, s85, s{sWC_}")
    A("s_lshl_b32 s86, s85, 4")
    A(f"s_add_u32 s86, s86, s{sA}")
    A("s_lshl_b32 s87, s86, 8")
    A(f"s_mul_i32 s{sKVS}, s86, 3200")
    A(f"s_sub_u32 s87, s87, s{sKVS}")
    A(f"s_add_u32 s87, s87, {WS_ZP - WS_KVP:#x}")
    A("s_lshr_b32 s87, s87, 4")
    A(f"s_add_u32 s{sKVS}, s{sKVS}, {WS_KVP:#x}")
    A("v_mov_b32 v2, 0x7ff00000")
    for k in range(4):
        mA = kv_mask(k); mB = kv_mask(4+k) if k < 3 else 0xffff
        A(f"s_cmp_eq_u32 s{sWR_}, 0")
        A(f"s_mov_b32 s92, {mB & 0xffffffff:#x}")
        A(f"s_cselect_b32 s92, {mA & 0xffffffff:#x}, s92")
        A(f"s_mov_b32 s93, {mB >> 32:#x}")
        A(f"s_cselect_b32 s93, {mA >> 32:#x}, s93")
        if k < 3: A(f"s_mov_b32 s88, {KVB[4+k]}")
        A(f"s_cselect_b32 s88, {KVB[k]}, s{88 if k < 3 else 87}")
        A(f"v_mov_b32 v{vKR+k}, s88")
        A(f"v_mbcnt_lo_u32_b32 v{vKR+k}, s92, v{vKR+k}")
        A(f"v_mbcnt_hi_u32_b32 v{vKR+k}, s93, v{vKR+k}")
        A(f"v_lshlrev_b32 v{vKR+k}, 4, v{vKR+k}")
        A(f"v_cndmask_b32 v{vKR+k}, v2, v{vKR+k}, s[92:93]")
    A(f"s_mul_i32 s85, s{sWAVE}, 8448")
    A(f"s_add_u32 s85, s85, {LDS_RED}")
    A(f"v_add_u32 v{vEW}, s85, v{vB0}")
    A(f"v_lshl_add_u32 v{vEZ}, v1, 2, s85")
    A(f"s_mul_i32 s85, s{sWC_}, 8448")
    A(f"s_lshl_b32 s86, s{sWR_}, 12")
    A("s_add_u32 s85, s85, s86")
    A(f"s_add_u32 s85, s85, {LDS_RED}")
    A(f"v_add_u32 v{vER}, s85, v{vB0}")
    A("v_and_b32 v2, 15, v1")
    A(f"v_cmp_gt_u32 s[{sMK}:{sMK+1}], 8, v2")
    A("v_cmp_lt_u32 s[64:65], 15, v1")
    A("v_cmp_lt_u32 s[66:67], 31, v1")
def kv_estream():
    PB, KA, ONE, TMP = 128, 168, 208, 212
    E = [Asm(), Asm(), Asm(), Asm()]
    A = E[0]
    A(f"s_mov_b32 s{sL2}, {LOG2E:#x}")
    A(f"s_mov_b32 s{sL2+1}, {LOG2E:#x}")
    for i in range(4): A(f"v_mov_b32 v{ONE+i}, 0x3f803f80")
    for st in range(4):
        A = E[st // 2]
        for t in range(3):
            b = ACC + (st*5+t)*4
            if t < 2: phi4(A, b, TMP)
            else:
                phi4(A, b, TMP, TMP+4)
                for i in range(4): A(f"v_cndmask_b32 v{b+i}, v{b+i}, v{TMP+4+i}, s[{sMK}:{sMK+1}]")
        for t in range(5):
            b = ACC + (st*5+t)*4
            d = PB + (t*2 + st//2)*4 + (st & 1)*2
            A(f"v_cvt_pk_bf16_f32 v{d}, v{b}, v{b+1}")
            A(f"v_cvt_pk_bf16_f32 v{d+1}, v{b+2}, v{b+3}")
        if st & 1:
            sp = st // 2
            A("s_nop 1")
            for tc in range(3):
                c = vr(KA+4*(7+tc), 4)
                A(f"v_mfma_f32_16x16x32_bf16 {c}, {vr(ONE,4)}, {vr(PB+(tc*2+sp)*4,4)}, {c if sp else 0}")
            for i, (te, tc) in enumerate(PAIRS):
                c = vr(KA+4*i, 4)
                A(f"v_mfma_f32_16x16x32_bf16 {c}, {vr(PB+(te*2+sp)*4,4)}, {vr(PB+(tc*2+sp)*4,4)}, {c if sp else 0}")
    A = E[1]
    A("s_nop 0")
    A(f"v_cndmask_b32 v{KA+28}, v{KA+28}, v{KA+32}, s[64:65]")
    A(f"v_cndmask_b32 v{KA+28}, v{KA+28}, v{KA+36}, s[66:67]")
    A(f"ds_write_b32 v{vEZ}, v{KA+28} offset:7168")
    for i in range(7): A(f"ds_write_b128 v{vEW}, {vr(KA+4*i,4)} offset:{1024*i}")
    A = E[2]
    for k in range(4):
        A(f"ds_read_b128 {vr(PB+8*k,4)}, v{vER} offset:{1024*k}")
        A(f"ds_read_b128 {vr(PB+8*k+4,4)}, v{vER} offset:{1024*k + 16896}")
    A = E[3]
    A("s_waitcnt lgkmcnt(0)")
    for k in range(4):
        for i in (0, 2): A(f"v_pk_add_f32 {vr(PB+8*k+i,2)}, {vr(PB+8*k+i,2)}, {vr(PB+8*k+4+i,2)}")
    for k in range(4):
        A(f"buffer_store_dwordx4 {vr(PB+8*k,4)}, v{vKR+k}, s[{sWS}:{sWS+3}], s{sKVS} offen sc1")
    return [e.lines for e in E]

def w1_setup(A, locbase, vreg):
    A(f"s_sub_u32 s88, s82, {locbase}")
    A("s_lshl_b32 s88, s88, 2")
    A(f"s_add_u32 s88, s88, s{sWAVE}")
    A(f"v_and_b32 v{vreg}, 31, v1")
    A(f"v_mul_u32_u24 v{vreg}, 3072, v{vreg}")
    A("v_lshrrev_b32 v3, 5, v1")
    A(f"v_lshl_add_u32 v{vreg}, v3, 9, v{vreg}")
    A(f"s_mul_i32 s85, s88, {32*3072}")
    A("s_lshl_b32 s86, s83, 7")
    A("s_add_u32 s85, s85, s86")
    A(f"s_mul_i32 s86, s84, {1024*3072}")
    A("s_add_u32 s26, s86, s85")
    A("s_xor_b32 s87, s84, 1")
    A(f"s_mul_i32 s87, s87, {1024*3072}")
    A("s_add_u32 s27, s87, s85")

def w2_prefetch(A, locbase, parts):
    A(f"s_sub_u32 s85, s82, {locbase}")
    A("s_lshl_b32 s85, s85, 2")
    A(f"s_add_u32 s85, s85, s{sWAVE}")
    if OPT["fmap"]:
        A("v_lshrrev_b32 v2, 2, v1")
        A("v_lshlrev_b32 v2, 12, v2")
        A("v_and_b32 v3, 3, v1")
        A(f"v_lshl_add_u32 v2, v3, {10 if OPT['fmap'] == 1 else 7}, v2")
        A(f"s_mul_i32 s85, s85, {48*4096}")
        A(f"s_lshl_b32 s86, s81, {7 if OPT['fmap'] == 1 else 9}")
        A("s_add_u32 s85, s85, s86")
        if parts[0]: A(f"s_add_u32 s85, s85, {16*4096*parts[0]}")
        for i in parts:
            A(f"buffer_load_dword a255, v2, s[{sW2}:{sW2+3}], s85 offen")
            if i != parts[-1]: A(f"s_add_u32 s85, s85, {16*4096}")
        return
    if OPT["w2c"]:
        A("s_lshl_b32 s86, s81, 5")
        A("s_add_u32 s85, s85, s86")
        A("s_lshl_b32 s85, s85, 13")
        if parts[0]: A(f"s_add_u32 s85, s85, {(8192*256)*parts[0]}")
        for i in parts:
            A(f"buffer_load_dword a255, v15, s[{sW2}:{sW2+3}], s85 offen")
            if i != parts[-1]: A(f"s_add_u32 s85, s85, {8192*256}")
        return
    A("v_lshrrev_b32 v2, 3, v1")
    A("v_lshlrev_b32 v2, 12, v2")
    A("v_and_b32 v3, 7, v1")
    A("v_lshl_add_u32 v2, v3, 7, v2")
    A("s_mul_i32 s85, s85, 24")
    A("s_mul_i32 s86, s84, 768")
    A("s_add_u32 s85, s85, s86")
    A(f"s_add_u32 s85, s85, {8*parts[0]}")
    A("s_lshl_b32 s85, s85, 12")
    A("s_lshl_b32 s86, s83, 10")
    A("s_add_u32 s85, s85, s86")
    for i in parts:
        A(f"buffer_load_dword a255, v2, s[{sW2}:{sW2+3}], s85 offen")
        if i != parts[-1]: A(f"s_add_u32 s85, s85, {8*4096}")

QCB = [0, 16, 32, 40, 56]
QDP = [(0,0),(0,1),(1,0),(1,1),(1,2),(2,1),(2,2),(2,4),(3,3),(3,4),(4,2),(4,3),(4,4)]
sMA, sZO, sKO, sPQ, sWOo, sGo = 56, 58, 59, 64, 67, 23
vWOd, vWOt, vZA, vKP, vGo, vT1 = 248, 246, 252, 245, 25, 244
MSK = 194
def q_setup(A):
    T = 128
    A(f"s_mul_i32 s{sWOo}, s{sU}, {40*1280}")
    A(f"s_mul_i32 s86, s{sNR}, 320")
    A(f"s_add_u32 s{sWOo}, s{sWOo}, s86")
    A(f"s_lshl_b32 s86, s{sWAVE}, 8")
    for n in range(4):
        A(f"v_add_u32 v2, {64*n}, v1")
        A("v_add_u32 v2, s86, v2")
        A("v_mul_u32_u24 v3, 3277, v2")
        A("v_lshrrev_b32 v3, 16, v3")
        A("v_mul_u32_u24 v4, 20, v3")
        A("v_sub_u32 v4, v2, v4")
        A("v_mul_u32_u24 v3, 1280, v3")
        A(f"v_lshl_add_u32 v{vWOd+n}, v4, 4, v3")
        if n: A(f"v_subrev_u32 v{vWOd+n}, {1024*n}, v{vWOd+n}")
    A("v_and_b32 v3, 15, v1")
    A("v_lshrrev_b32 v4, 4, v1")
    A(f"v_lshlrev_b32 v{vGo}, 2, v3")
    A(f"s_lshl_b32 s86, s{sA}, 9")
    A(f"s_lshl_b32 s87, s{sWR_}, 8")
    A("s_add_u32 s86, s86, s87")
    A(f"s_add_u32 s{sGo}, s86, {WS_G:#x}")
    A("v_bfe_u32 v5, v1, 1, 2")
    A(f"s_lshl_b32 s85, s{sWAVE}, 2")
    A("v_add_lshl_u32 v5, v5, s85, 3")
    A("v_and_b32 v6, 1, v1")
    A(f"s_lshl_b32 s85, s{sBp}, 1")
    A("v_add3_u32 v5, v5, v6, s85")
    A(f"v_lshlrev_b32 v{vKP}, 7, v5")
    A("v_lshrrev_b32 v5, 2, v3")
    A("v_lshl_add_u32 v5, v4, 2, v5")
    A("v_and_b32 v6, 7, v5")
    A("v_mul_u32_u24 v6, 320, v6")
    A("v_mul_u32_u24 v5, 320, v5")
    A("v_and_b32 v7, 3, v1")
    A("v_lshlrev_b32 v7, 3, v7")
    A(f"s_lshl_b32 s86, s{sWAVE}, 5")
    A("v_add_u32 v7, s86, v7")
    A(f"v_add_u32 v{vWOt}, v6, v7")
    A(f"v_add_u32 v{vWOt+1}, v5, v7")
    A(f"s_lshr_b32 s86, s{sU}, 2")
    A("s_mul_i32 s86, s86, 5")
    A(f"s_bfe_u32 s87, s{sU}, 0x10001")
    A(f"s_and_b32 s88, s{sU}, 1")
    A("s_mul_i32 s89, s87, 3")
    A("s_add_u32 s89, s89, s88")
    A("s_add_u32 s89, s89, s86")
    A(f"s_mul_i32 s{sMA}, s89, 40960")
    A("s_add_u32 s86, s86, 2")
    A(f"s_mul_i32 s{sMA+1}, s86, 40960")
    A("s_lshl_b32 s87, s87, 3")
    A("s_lshl_b32 s88, s88, 9")
    A(f"s_add_u32 s{sMA+1}, s{sMA+1}, s87")
    A(f"s_add_u32 s{sMA+1}, s{sMA+1}, s88")
    A(f"s_mul_i32 s86, s{sNR}, 10240")
    A(f"s_lshl_b32 s87, s{sWAVE}, 10")
    A("s_add_u32 s86, s86, s87")
    A(f"s_add_u32 s86, s86, {WS_M:#x}")
    A(f"s_add_u32 s{sMA}, s{sMA}, s86")
    A(f"s_add_u32 s{sMA+1}, s{sMA+1}, s86")
    A(f"s_lshl_b32 s85, s{sA}, 1")
    A(f"s_add_u32 s85, s85, s{sWR_}")
    A("s_mul_i32 s85, s85, 20")
    A(f"s_mul_i32 s86, s{sBp}, 5")
    A("s_add_u32 s85, s85, s86")
    A("s_lshl_b32 s85, s85, 12")
    A(f"s_add_u32 s85, s85, {WS_PQ:#x}")
    A(f"s_mul_i32 s86, s{sWC_}, {3*4096}")
    A(f"s_add_u32 s{sPQ}, s86, s85")
    A(f"s_add_u32 s{sPQ+1}, s{sPQ}, 4096")
    A(f"s_lshl_b32 s88, s{sWC_}, 3")
    A("s_add_u32 s88, s88, s85")
    A(f"s_add_u32 s{sPQ+2}, s88, 8192")
    A(f"v_add_u32 v5, s{sWAVE}, v1")
    A(f"s_mul_i32 s85, s{sWAVE}, 9")
    A("v_add_u32 v5, s85, v5")
    A("v_lshrrev_b32 v6, 2, v5")
    A("v_and_b32 v5, 3, v5")
    A("v_lshlrev_b32 v5, 7, v5")
    A("v_lshl_add_u32 v5, v6, 10, v5")
    A(f"s_sub_u32 s85, s{sMA+1}, s87")
    A("s_and_b32 s85, s85, 0xffffff80")
    A("v_add_u32 v5, s85, v5")
    A(f"s_and_b32 s85, s{sPQ+2}, 0xffffff80")
    A(f"s_lshl_b32 s86, s{sWC_}, 11")
    A("s_add_u32 s85, s85, s86")
    A("v_lshlrev_b32 v6, 7, v3")
    A("v_add_u32 v6, s85, v6")
    A("v_cmp_gt_u32 vcc, 10, v1")
    A("s_nop 1")
    A(f"v_cndmask_b32 v{vT1}, v6, v5, vcc")
    A(f"v_mov_b32 v{T}, {LDS_RED + 1600}")
    for i in range(7):
        kv_rank(A, 26+i, i, 3, LDS_RED)
        A(f"s_mov_b32 s92, s85")
        A(f"s_mov_b32 s93, s86")
        A(f"v_cndmask_b32 v{26+i}, v{T}, v{26+i}, s[92:93]")
    cb = QCB
    for t in range(5):
        A(f"v_lshl_add_u32 v{T+t}, v4, 2, {cb[t]}")
        A(f"v_add_u32 v{T+5+t}, {cb[t]}, v3")
        if t == 2:
            A("v_lshrrev_b32 v5, 1, v4")
            A(f"v_lshl_add_u32 v{T+t}, v5, 5, v{T+t}")
            A("v_mul_u32_u24 v7, 4064, v5")
            A("v_lshrrev_b32 v5, 3, v3")
            A(f"v_lshl_add_u32 v{T+5+t}, v5, 5, v{T+5+t}")
        A(f"v_mul_u32_u24 v{T+t}, 205, v{T+t}")
        A(f"v_lshrrev_b32 v{T+t}, 12, v{T+t}")
        A(f"v_mul_u32_u24 v{T+5+t}, 205, v{T+5+t}")
        A(f"v_lshrrev_b32 v{T+5+t}, 12, v{T+5+t}")
    for k, (tp, t) in enumerate(QDP):
        A(f"v_cmp_eq_u32 vcc, v{T+t}, v{T+5+tp}")
        A("s_nop 1")
        A(f"v_cndmask_b32 v{MSK+k}, 0, -1, vcc")
    A("v_lshlrev_b32 v5, 8, v3")
    A(f"v_lshl_add_u32 v{vZA}, v4, 4, v5")
    A(f"v_add_u32 v{vZA+2}, v7, v{vZA}")
    A(f"v_add_u32 v{vZA+1}, 4096, v{vZA}")
    A(f"s_lshl_b32 s86, s{sBp}, 14")
    A(f"s_lshl_b32 s87, s{sWC_}, 13")
    A("s_add_u32 s86, s86, s87")
    A(f"s_add_u32 s{sZO}, s86, {WS_ZP:#x}")
    A(f"s_mul_i32 s89, s{sU}, {16*3200}")
    A(f"s_mul_i32 s87, s{sWAVE}, 800")
    A("s_add_u32 s87, s87, s89")
    A(f"s_add_u32 s{sKO}, s87, {WS_KVP:#x}")
    if OPT["qw2"]:
        A("s_sub_u32 s85, s82, 16")
        A("s_lshl_b32 s85, s85, 2")
        A(f"s_add_u32 s85, s85, s{sWAVE}")
        A("s_lshl_b32 s86, s81, 5")
        A("s_add_u32 s85, s85, s86")
        A("s_lshl_b32 s85, s85, 13")
        A(f"s_add_u32 s99, s85, {8192*256*(3 - OPT['qw2'])}")
def q_pf_only(A):
    for k in range(3 - OPT["qw1n"], 3):
        A(f"buffer_load_dword a255, v12, s[{sW1}:{sW1+3}], s26 offen offset:{1024*k}")
def q_loop_pf(A):
    if OPT["qw1"] == 0:
        A("s_mov_b32 exec_lo, 0xffff03ff")
        A("s_mov_b32 exec_hi, 0")
        A(f"buffer_load_dword a255, v{vT1}, s[{sWS}:{sWS+3}], 0 offen sc1")
        A("s_mov_b64 exec, -1")
        return
    for k in range(3 - OPT["qw1n"], 3):
        A(f"buffer_load_dword a255, v12, s[{sW1}:{sW1+3}], s26 offen offset:{1024*k}")
    if OPT["qw1b"]:
        for k in range(3): A(f"buffer_load_dword a255, v12, s[{sW1}:{sW1+3}], s27 offen offset:{1024*k}")
    for k in range(OPT["qw2"]):
        A(f"buffer_load_dword a255, v15, s[{sW2}:{sW2+3}], s99 offen")
        A(f"s_add_u32 s99, s99, {8192*256}")
    if OPT["touch"] and not OPT["qdefer"]:
        A("s_mov_b32 exec_lo, 0xffff03ff")
        A("s_mov_b32 exec_hi, 0")
        A(f"buffer_load_dword a255, v{vT1}, s[{sWS}:{sWS+3}], 0 offen sc1")
        A("s_mov_b64 exec, -1")
def q_extras():
    g8 = [[poll_ld(vPO, 24)], [f"s_lshl_b32 m0, s{sWAVE}, 12"]] + [[f"buffer_load_dwordx4 v{vWOd+n}, s[{sWO}:{sWO+3}], s{sWOo} offen offset:{1024*n} lds"] for n in range(4)]
    g9 = [[f"buffer_load_dword v{8+st}, v{vGo}, s[{sWS}:{sWS+3}], s{sGo} offen offset:{64*st} sc1"] for st in range(4)]
    return {8: (g8, 9), 9: (g9, 0)}

def q_epilogue(A):
    PK, Z, AF, ZP, G = 128, 168, 168, 16, 8
    KA_, DEN, OUT, TMP = 48, 204+0, 224, 112
    WBa, KVa = 0, 20
    cb, dp = QCB, QDP
    A(f"s_mov_b32 s24, {FL_KV:#x}")
    for i in range(3):
        A(f"ds_read_b64_tr_b16 {ar(WBa+6*i,2)}, v{vWOt} offset:{128*i}")
        A(f"ds_read_b64_tr_b16 {ar(WBa+6*i+2,2)}, v{vWOt+1} offset:{128*i + 8*320}")
        A(f"ds_read_b64_tr_b16 {ar(WBa+6*i+4,2)}, v{vWOt+1} offset:{128*i + 24*320}")
    A(f"v_mov_b32 v2, {LDS_RED + 1600}")
    A("v_mov_b64 v[4:5], 0")
    A("ds_write_b64 v2, v[4:5]")
    A(f"s_mov_b32 s{sL2}, {LOG2E:#x}")
    A(f"s_mov_b32 s{sL2+1}, {LOG2E:#x}")
    for k, b in enumerate(range(ACC, ACC+80, 4)):
        if k == 12: A(poll_ld(vKP, 24))
        phi4(A, b, 208)
        A(f"v_cvt_pk_bf16_f32 v{PK+2*k}, v{b}, v{b+1}")
        A(f"v_cvt_pk_bf16_f32 v{PK+2*k+1}, v{b+2}, v{b+3}")
    stamp(A, "q_pre")
    A("s_waitcnt vmcnt(0) lgkmcnt(0)")
    poll_check(A, "pkv", vKP, 24)
    A("s_barrier")
    stamp(A, "q_kvok")
    for t in range(5):
        A(f"buffer_load_dwordx4 {vr(Z+4*t,4)}, v{vZA+[0,0,2,1,1][t]}, s[{sWS}:{sWS+3}], s{sZO} offen offset:{[0,64,128,0,64][t]} sc1")
    kvl = []
    for rb in range(0, 16, 2):
        kvl.append(["s_mov_b32 exec_hi, 0x3ffff",
                    f"buffer_load_dwordx4 {vr(KA_+4*rb,4)}, v{vB0}, s[{sWS}:{sWS+3}], s{sKO} offen sc1",
                    f"buffer_load_dwordx4 {vr(KA_+4*rb+4,4)}, v{vB0}, s[{sWS}:{sWS+3}], s{sKO} offen offset:3200 sc1",
                    "s_mov_b32 exec_hi, -1", f"s_add_u32 s{sKO}, s{sKO}, 6400"])
    def kv(n):
        for _ in range(n):
            if kvl:
                for x in kvl.pop(0): A(x)
    kv(2)
    A("s_waitcnt vmcnt(4)")
    stamp(A, "q_z")
    for rot in (8, 4, 2, 1):
        kv(1)
        for i in range(20):
            A(f"v_add_f32_dpp v{Z+i}, v{Z+i}, v{Z+i} row_ror:{rot} row_mask:0xf bank_mask:0xf")
    for i in range(10): A(f"v_cvt_pk_bf16_f32 v{ZP+i}, v{Z+2*i}, v{Z+2*i+1}")
    kv(2)
    for k, (tp, t) in enumerate(dp):
        A(f"v_and_b32 v{AF+2*k}, v{MSK+k}, v{ZP+2*t}")
        A(f"v_and_b32 v{AF+2*k+1}, v{MSK+k}, v{ZP+2*t+1}")
    A("s_nop 0")
    DEN2 = 224
    def den(st, Dn):
        seen = set()
        for k, (tp, t) in enumerate(dp):
            c = vr(Dn + 4*tp, 4)
            A(f"v_mfma_f32_16x16x16_bf16 {c}, {vr(AF+2*k,2)}, {vr(PK+(st*5+t)*2,2)}, {c if tp in seen else 0}")
            seen.add(tp)
    den(0, DEN)
    for st in range(4):
        Dn = DEN if (st & 1) == 0 else DEN2
        o = OUT
        U = TMP + 10
        if st < 3: den(st + 1, DEN2 if (st & 1) == 0 else DEN)
        else: A("s_nop 7")
        kv(OPT["kvr"])
        for tp in range(5): A(f"v_add_f32 v{TMP+2*tp}, {EPS6:#x}, v{Dn+4*tp}")
        for tp in range(5): A(f"v_rcp_f32 v{TMP+2*tp}, v{TMP+2*tp}")
        A("s_nop 0")
        for tp in range(5): A(f"v_mul_f32 v{TMP+2*tp}, v{TMP+2*tp}, v{G+st}")
        for tp in range(5):
            p = PK + (st*5+tp)*2
            if tp == 2: kv(OPT["kvr"])
            A(f"v_lshlrev_b32 v{U}, 16, v{p}")
            A(f"v_and_b32 v{U+1}, 0xffff0000, v{p}")
            A(f"v_lshlrev_b32 v{U+2}, 16, v{p+1}")
            A(f"v_and_b32 v{U+3}, 0xffff0000, v{p+1}")
            A(f"v_pk_mul_f32 {vr(U,2)}, {vr(U,2)}, {vr(TMP+2*tp,2)} op_sel_hi:[1,0]")
            A(f"v_pk_mul_f32 {vr(U+2,2)}, {vr(U+2,2)}, {vr(TMP+2*tp,2)} op_sel_hi:[1,0]")
            A(f"v_cvt_pk_bf16_f32 v{p}, v{U}, v{U+1}")
            A(f"v_cvt_pk_bf16_f32 v{p+1}, v{U+2}, v{U+3}")
        p = PK + st*10
        A(f"buffer_store_dwordx4 {vr(p,4)}, v{vB0}, s[{sWS}:{sWS+3}], s{sPQ} offen offset:{1024*st} sc1")
        A(f"buffer_store_dwordx4 {vr(p+6,4)}, v{vB0}, s[{sWS}:{sWS+3}], s{sPQ+1} offen offset:{1024*st} sc1")
        A(f"buffer_store_dwordx2 {vr(p+4,2)}, v{vB0}, s[{sWS}:{sWS+3}], s{sPQ+2} offen offset:{1024*st} sc1")
    assert not kvl
    stamp(A, "q_pq")
    A("s_waitcnt vmcnt(12)")
    stamp(A, "q_kv")
    for w in (32, 16, 8, 4):
        for i in range(0, w, 2):
            A(f"v_pk_add_f32 {vr(KA_+i,2)}, {vr(KA_+i,2)}, {vr(KA_+w+i,2)}")
    A(f"s_mul_i32 s86, s{sWAVE}, 400")
    A(f"s_add_u32 s86, s86, {LDS_RED}")
    A("v_lshlrev_b32 v7, 3, v1")
    A("v_add_u32 v7, s86, v7")
    A(f"v_cvt_pk_bf16_f32 v{KA_}, v{KA_}, v{KA_+1}")
    A(f"v_cvt_pk_bf16_f32 v{KA_+1}, v{KA_+2}, v{KA_+3}")
    A("s_mov_b32 exec_hi, 0x3ffff")
    A(f"ds_write_b64 v7, {vr(KA_,2)}")
    A("s_mov_b32 exec_hi, -1")
    A("s_waitcnt lgkmcnt(0)")
    A("s_barrier")
    stamp(A, "q_bar")
    for i in range(7): A(f"ds_read_b64 {ar(KVa+2*i,2)}, v{26+i}")
    A("s_waitcnt lgkmcnt(0)")
    MD = 64
    for i in range(3):
        seen = set()
        for k, (te, tc) in enumerate(PAIRS):
            c = vr(MD + (i*3+tc)*4, 4)
            A(f"v_mfma_f32_16x16x16_bf16 {c}, {ar(KVa+2*k,2)}, {ar(WBa+6*i+2*(te-2),2)}, {c if tc in seen else 0}")
            seen.add(tc)
    for i in range(3):
        if i == 2:
            A(f"s_cmp_ge_u32 s{sWAVE}, 2")
            A("s_cbranch_scc1 q_m_done")
            A("s_nop 2")
        b = MD + i*12
        for k in range(6): A(f"v_cvt_pk_bf16_f32 v{b+k}, v{b+2*k}, v{b+2*k+1}")
        A(f"buffer_store_dwordx4 {vr(b,4)}, v{vB0}, s[{sWS}:{sWS+3}], s{sMA} offen sc1")
        A("s_mov_b32 exec_hi, 0")
        A(f"buffer_store_dwordx2 {vr(b+4,2)}, v{vB0}, s[{sWS}:{sWS+3}], s{sMA+1} offen sc1")
        A("s_mov_b32 exec_hi, -1")
        A(f"s_add_u32 s{sMA}, s{sMA}, 4096")
        A(f"s_add_u32 s{sMA+1}, s{sMA+1}, 4096")
    A.label("q_m_done")
    stamp(A, "q_mdone")

def tlb_touch(A):
    for ptr, size in ((26, WS_SIZE), (22, 2048*1280), (16, 1536*4096), (12, 2048*3072), (8, 640*1280), (14, 4), (18, 4)):
        A(f"s_mov_b64 s[86:87], s[{ptr}:{ptr+1}]")
        offs = sorted(set(list(range(0, size, 1 << 21)) + [size - 4]))
        prev = 0
        for o in offs:
            if o - prev >= (1 << 20):
                A(f"s_add_u32 s86, s86, {o - prev:#x}")
                A("s_addc_u32 s87, s87, 0")
                prev = o
            A(f"s_load_dword s98, s[86:87], {o - prev:#x}")
def ln_role(A, after_loads, ne):
    X, GW, D = 48, 88, 128
    A("v_lshrrev_b32 v2, 3, v1")
    A(f"s_lshl_b32 s85, s{sWAVE}, 3")
    A("v_add_u32 v2, s85, v2")
    A("v_and_b32 v3, 7, v1")
    A("v_lshlrev_b32 v3, 4, v3")
    A("v_mul_u32_u24 v4, 1280, v2")
    A("v_add_u32 v4, v4, v3")
    A(f"s_mul_i32 s85, s{sA}, {32*1280}")
    A("s_waitcnt lgkmcnt(0)"); srds(A, ["X", "GW"])
    LN_TLB = True
    for i in range(10):
        A(f"buffer_load_dwordx4 {vr(X+4*i,4)}, v4, s[{sX}:{sX+3}], s85 offen offset:{128*i}")
    for i in range(10):
        A(f"buffer_load_dwordx4 {vr(GW+4*i,4)}, v3, s[{sGW}:{sGW+3}], 0 offen offset:{128*i}")
    A("v_mul_u32_u24 v16, 1312, v2")
    A("v_add_u32 v16, v16, v3")
    A("v_lshlrev_b32 v17, 2, v2")
    if OPT["tlb"] == 1: tlb_touch(A)
    after_loads(A)
    A("v_mov_b32 v5, 0x3f803f80")
    for i in range(4): A(f"v_mov_b32 v{8+i}, 0")
    A(f"s_waitcnt vmcnt({10+ne})")
    stamp(A, "ln_first")
    for i in range(40):
        A(f"v_dot2_f32_bf16 v{8+(i&1)}, v{X+i}, v5, v{8+(i&1)}")
    A(f"s_waitcnt vmcnt({ne})")
    for i in range(40):
        A(f"v_dot2_f32_bf16 v{10+(i&1)}, v{X+i}, v{GW+i}, v{10+(i&1)}")
    A("s_nop 2")
    A("v_add_f32 v8, v8, v9")
    A("v_add_f32 v10, v10, v11")
    def red8(r):
        for m in ("quad_perm:[1,0,3,2]", "quad_perm:[2,3,0,1]", "row_half_mirror"):
            A("s_nop 1")
            for x in r: A(f"v_add_f32_dpp v{x}, v{x}, v{x} {m} row_mask:0xf bank_mask:0xf")
    red8([8, 10])
    A(f"v_mul_f32 v8, {0xBACCCCCD:#x}, v8")
    A("v_mov_b32 v9, v8")
    A(f"v_mul_f32 v10, {LOG2E | 0x80000000:#x}, v10")
    A("v_exp_f32 v10, v10")
    for i in range(40):
        A(f"v_lshlrev_b32 v{D+2*i}, 16, v{X+i}")
        A(f"v_and_b32 v{D+2*i+1}, 0xffff0000, v{X+i}")
    A("v_add_f32 v10, 1.0, v10")
    A("v_rcp_f32 v10, v10")
    for i in range(40):
        A(f"v_pk_add_f32 {vr(D+2*i,2)}, {vr(D+2*i,2)}, v[8:9]")
    A("v_pk_mul_f32 v[18:19], v[128:129], v[128:129]")
    A("v_pk_mul_f32 v[20:21], v[130:131], v[130:131]")
    for i in range(2, 40):
        a = 18 + 2*(i & 1)
        A(f"v_pk_fma_f32 {vr(a,2)}, {vr(D+2*i,2)}, {vr(D+2*i,2)}, {vr(a,2)}")
    A("v_pk_add_f32 v[18:19], v[18:19], v[20:21]")
    A("ds_write_b32 v17, v10 offset:49152")
    A("v_add_f32 v18, v18, v19")
    red8([18])
    A(f"v_mov_b32 v19, {0x3727C5AC:#x}")
    A(f"v_fmac_f32 v19, {0x3ACCCCCD:#x}, v18")
    A("v_rsq_f32 v18, v19")
    A("s_nop 0")
    A("v_mov_b32 v19, v18")
    for i in range(40):
        A(f"v_pk_mul_f32 {vr(D+2*i,2)}, {vr(D+2*i,2)}, v[18:19]")
        A(f"v_cvt_pk_bf16_f32 v{X+i}, v{D+2*i}, v{D+2*i+1}")
        if (i & 3) == 3:
            A(f"ds_write_b128 v16, {vr(X+i-3,4)} offset:{128*(i//4)}")
    A("v_lshrrev_b32 v2, 2, v1")
    A("v_mul_u32_u24 v2, 1312, v2")
    A("v_and_b32 v3, 3, v1")
    A("v_lshl_add_u32 v2, v3, 3, v2")
    A(f"s_mul_i32 s85, s{sWAVE}, 320")
    A("v_add_u32 v2, s85, v2")
    A(f"s_mul_i32 s85, s{sA}, 40960")
    A(f"s_mul_i32 s86, s{sWAVE}, 10240")
    A("s_add_u32 s85, s85, s86")
    A("s_add_u32 s86, s85, 4096")
    A("s_add_u32 s87, s85, 8192")
    A("v_lshlrev_b32 v17, 2, v1")
    A(f"s_lshl_b32 s88, s{sA}, 7")
    A(f"s_add_u32 s88, s88, {WS_G:#x}")
    A("s_waitcnt lgkmcnt(0)")
    A("s_barrier")
    A(f"s_cmp_lg_u32 s{sWAVE}, 3")
    A("s_cbranch_scc1 ln_ng")
    A("ds_read_b32 v10, v17 offset:49152")
    A("s_waitcnt lgkmcnt(0)")
    A("s_mov_b32 exec_hi, 0")
    A(f"buffer_store_dword v10, v17, s[{sWS}:{sWS+3}], s88 offen sc1")
    A("s_mov_b32 exec_hi, -1")
    A.label("ln_ng")
    for t in range(10):
        A(f"ds_read_b64_tr_b16 {vr(D+4*t,2)}, v2 offset:{32*t}")
        A(f"ds_read_b64_tr_b16 {vr(D+4*t+2,2)}, v2 offset:{32*t + 16*1312}")
        if t == 6: A("s_waitcnt lgkmcnt(6)")
    for t in range(10):
        A(f"s_waitcnt lgkmcnt({min(2*(9-t), 6)})")
        A(f"buffer_store_dwordx4 {vr(D+4*t,4)}, v{vB0}, s[{sWS}:{sWS+3}], s{85 + t//4} offen offset:{1024*(t&3)} sc1")

def c_adv1(): return [f"s_add_u32 s{sC1}, s{sC1}, s{sCST}", f"s_cmp_eq_u32 s{sC1}, s{sCE1}", f"s_cselect_b32 s{sC1}, s{sCB1}, s{sC1}"]
def c_adv2(): return [f"s_add_u32 s{sC2}, s{sC2}, 40960", f"s_cmp_eq_u32 s{sC2}, s{sCE2}", f"s_cselect_b32 s{sC2}, s{sCB2}, s{sC2}"]
def c_wdma(slot):
    L = [[f"s_add_u32 m0, s{sCM0}, {4096*slot}"]]
    for q in range(4):
        L.append([f"buffer_load_dwordx4 v{vWS_+q}, s[{sCW}:{sCW+3}], s{sC1} offen offset:{1024*q} lds"])
    return L
def c_bload(slot, n):
    return f"buffer_load_dwordx4 {ar(BR+20*slot+4*n,4)}, v{vB0 if n < 4 else vB1}, s[{sWS}:{sWS+3}], s{sC2} offen offset:{1024*(n&3)} sc1"
def c_tr(slot, aset):
    return [f"ds_read_b64_tr_b16 {ar(AS+16*aset+4*t+2*j,2)}, v{vTR+t} offset:{4096*slot+2048*j}" for t in range(4) for j in range(2)]
def c_wring(A):
    for s in range(OPT["d"]):
        emit_dma_block(A, c_wdma(s))
        for x in c_adv1(): A(x)
def c_bring(A):
    for s in range(OPT["d"]):
        for n in range(5): A(c_bload(s, n))
        for x in c_adv2(): A(x)
def switch_to_fb(A):
    A(f"s_mov_b64 s[{sCW}:{sCW+1}], s[{sW2}:{sW2+1}]")
    A(f"s_mov_b64 s[{sCW+2}:{sCW+3}], s[{sW2+2}:{sW2+3}]")
    for i in range(4): A(f"v_mov_b32 v{vWS_+i}, v{vWS2+i}")
    A(f"s_mov_b32 s{sC1}, s{sF1}")
    A(f"s_mov_b32 s{sCB1}, s{sFB1}")
    A(f"s_mov_b32 s{sCE1}, s{sFE1}")
    A(f"s_mov_b32 s{sCST}, {32*4096}")

G1A = 112
def c_step(A, u, wait, doW, doB, doT, accf, w_is_A, drain=None, first=False, side=None, pre=[], late=None, wslot=None, trl=None):
    DD = OPT["d"]
    A(f"s_waitcnt vmcnt({wait}) lgkmcnt(0)")
    for x in pre: A(x)
    tr = c_tr((u+1) & 3, (u+1) & 1) if doT else (trl or [])
    mf = []
    for n in range(5):
        for t in range(4):
            w = ar(AS+16*(u & 1)+4*t, 4); b = ar(BR+20*u+4*n, 4); c = accf((t*5+n)*4)
            cin = "0" if first else c
            mf.append(f"v_mfma_f32_16x16x32_bf16 {c}, {w}, {b}, {cin}" if w_is_A else f"v_mfma_f32_16x16x32_bf16 {c}, {b}, {w}, {cin}")
    fill = [[] for _ in range(20)]
    sl = (u + DD) & 3
    wd = c_wdma(sl if wslot is None else wslot)
    post = []
    if doW:
        A(wd[0][0])
        for t in range(4): fill[t] += wd[1+t]
        fill[5 if drain else 12] += c_adv1()
    for k, x in enumerate(tr): fill[4+k].append(x)
    if doB:
        for n in range(5): fill[4*n+3].append(c_bload(sl, n))
        fill[19] += c_adv2()
    if side:
        per = -(-len(side) // 20)
        for g in range(20): fill[g] = side[g*per:(g+1)*per] + fill[g]
    if late:
        fill[13] += late[:9]
        post += late[9:]
    if drain:
        for n in range(3):
            for t in range(4): fill[4*(n+2)+t] += drain(n, t)
        post += ["s_nop 3"] + flat([drain(3, t) for t in range(4)]) + flat([drain(4, t) for t in range(4)])
    weave(A, mf, fill)
    for x in post: A(x)

def c_loop(A, pfx, nks, accf, w_is_A, isg1, drain):
    DD = OPT["d"]; W0 = 5 + 9*(DD-2)
    tail_next = isg1 and OPT["tailw"]
    A(".p2align 3")
    A.label(f"{pfx}_loop")
    if isg1 and OPT["lnmid"]:
        A(f"s_cmp_eq_u32 s{sCNT}, s{sPUB}")
        A("s_cbranch_scc1 g1_blk")
        A.label("g1_noblk")
    for u in range(4):
        c_step(A, u, W0, True, True, True, accf, w_is_A)
    if STAMPS:
        ng = nks//4 - 1
        i = _st["n"]; _st["n"] += ng; _st["names"] += [f"{pfx}_g{k}" for k in range(ng)]
        A("s_memtime s[100:101]")
        A("s_waitcnt lgkmcnt(0)")
        A(f"s_sub_u32 m0, {i + ng}, s{sCNT}")
        A("s_nop 0")
        A("v_writelane_b32 v47, s100, m0")
    A(f"s_sub_u32 s{sCNT}, s{sCNT}, 1")
    A(f"s_cmp_lg_u32 s{sCNT}, 0")
    A(f"s_cbranch_scc1 {pfx}_loop")
    seq = []
    for k in range(DD): seq += [("W", k)]*4 + [("B", k)]*5
    for u in range(4):
        need = max([i for i, (t, k) in enumerate(seq) if (t == "B" and k == u) or (t == "W" and k == u+1)])
        wait = len(seq) - 1 - need
        own = u < 4 - DD
        if isg1 and u == 4 - DD: switch_to_fb(A)
        nxt = tail_next and not own
        c_step(A, u, wait, own or nxt, own, u < 3, accf, w_is_A, drain if u == 3 else None)
        if own: seq += [("W", u+DD)]*4 + [("B", u+DD)]*5
        if OPT["otouch"] and not isg1 and u == 3 - DD:
            A(f"buffer_load_dword a255, v5, s[{sOUT}:{sOUT+3}], s95 offen" + (" nt" if OPT["otouch"] == 2 else ""))
            seq += [("O", 0)]
        elif nxt: seq += [("N", 0)]*4
    stamp(A, pfx + "_loopdone")

sFA1, sFA2, sFR = 54, 55, 94
sUS = 52
vGE = 224
def fa_params(A):
    A(f"s_and_b32 s{sFR}, s{sFD}, 3")
    A(f"s_lshl_b32 s{sFR}, s{sFR}, 1")
    A(f"s_and_b32 s89, s{sFS}, 7")
    A(f"s_add_u32 s{sFR}, s{sFR}, s89")
    A(f"s_mul_i32 s89, s{sFR}, 52")
    A("s_lshr_b32 s89, s89, 8")
    A("s_mul_i32 s89, s89, 5")
    A(f"s_sub_u32 s{sFR}, s{sFR}, s89")
    if OPT["arot"] == 0: A(f"s_mov_b32 s{sFR}, 0")
    if OPT["arot"] == 2:
        A(f"s_add_u32 s{sFR}, s{sFS}, s{sFD}")
        A(f"s_and_b32 s{sFR}, s{sFR}, 1")
        A(f"s_mul_i32 s{sFR}, s{sFR}, 3")
    A(f"s_mul_i32 s86, s{sWAVE}, 5")
    A(f"s_add_u32 s86, s86, s{sFR}")
    A(f"s_mul_i32 s{sFA1}, s{sFS}, {0 if OPT.get('same') else 20}")
    A(f"s_add_u32 s{sFA1}, s{sFA1}, s86")
    A(f"s_lshl_b32 s{sFA1}, s{sFA1}, 12")
    A(f"s_add_u32 s{sFA1}, s{sFA1}, {WS_PQ:#x}")
    A(f"s_mul_i32 s{sFA2}, s86, 40960")
    A(f"s_mul_i32 s89, s{sFD}, {0 if OPT.get('same') else 5120}")
    A(f"s_add_u32 s{sFA2}, s{sFA2}, s89")
    A(f"s_add_u32 s{sFA2}, s{sFA2}, {WS_M:#x}")
fa_b = lambda i: 0 if i == 0 else 112 + 36*(i-1)
def fa_ld(A, i):
    for st in range(4):
        A(f"buffer_load_dwordx4 {ar(fa_b(i)+4*st,4)}, v{vB0}, s[{sWS}:{sWS+3}], s{sFA1} offen offset:{1024*st} sc1")
    for n in range(5):
        A(f"buffer_load_dwordx4 {ar(fa_b(i)+16+4*n,4)}, v{vB0 if n < 4 else vB1}, s[{sWS}:{sWS+3}], s{sFA2} offen offset:{1024*(n&3)} sc1")
    if i < 4:
        A(f"s_add_u32 s{sFA1}, s{sFA1}, 4096")
        A(f"s_add_u32 s{sFA2}, s{sFA2}, 40960")
        A(f"s_add_u32 s{sFR}, s{sFR}, 1")
        A(f"s_cmp_eq_u32 s{sFR}, 5")
        A(f"s_cselect_b32 s86, {5*4096}, 0")
        A(f"s_cselect_b32 s89, {5*40960}, 0")
        A(f"s_sub_u32 s{sFA1}, s{sFA1}, s86")
        A(f"s_sub_u32 s{sFA2}, s{sFA2}, s89")

def g1_params(A):
    W, Rr = vGE, vGE + 4
    A("v_and_b32 v2, 15, v1")
    A("v_lshrrev_b32 v3, 4, v1")
    A("v_xor_b32 v4, v2, v3")
    A("v_lshlrev_b32 v4, 4, v4")
    A("v_lshl_add_u32 v4, v2, 8, v4")
    A(f"s_mul_i32 s85, s{sWAVE}, 20480")
    A(f"s_add_u32 s85, s85, {LDS_RED}")
    A(f"v_add_u32 v{W}, s85, v4")
    for t in range(1, 4): A(f"v_xor_b32 v{W+t}, {64*t}, v{W}")
    A(f"s_and_b32 s85, s{sWAVE}, 1")
    A(f"s_lshr_b32 s86, s{sWAVE}, 1")
    A("s_lshl_b32 s87, s85, 7")
    A("v_xor_b32 v4, s87, v4")
    A("s_lshl_b32 s87, s86, 12")
    A(f"s_add_u32 s87, s87, {LDS_RED}")
    A(f"v_add_u32 v{Rr}, s87, v4")
    A(f"v_xor_b32 v{Rr+1}, 64, v{Rr}")
    A(f"v_add_u32 v{Rr+2}, 40960, v{Rr}")
    A(f"v_add_u32 v{Rr+3}, 40960, v{Rr+1}")
    A(f"s_lshl_b32 s87, s{sG1F}, 1")
    A("s_add_u32 s87, s87, s85")
    A("s_lshl_b32 s23, s87, 6")
    A("v_lshlrev_b32 v12, 3, v3")
    A("s_mul_i32 s87, s87, 40")
    A(f"s_mul_i32 s88, s{sG1D}, 5")
    A("s_add_u32 s87, s87, s88")
    A("s_add_u32 s87, s87, s86")
    A("s_lshl_b32 s87, s87, 10")
    A(f"s_add_u32 s{sUS}, s87, {WS_U:#x}")
    A(f"s_add_u32 s{sUS+1}, s{sUS}, 4096")
    A(f"s_mov_b32 s90, {0xBDD2D3E8:#x}")
    A(f"s_mov_b32 s91, {0xBDD2D3E8:#x}")
    A(f"v_mov_b32 v{vGE+8}, {0xC0135761:#x}")
    A(f"v_mov_b32 v{vGE+9}, {0xC0135761:#x}")
    fa_params(A)
def b1_loads():
    return [[f"buffer_load_dwordx2 {vr(vGE+18+2*j,2)}, v12, s[{sB1}:{sB1+3}], s23 offen offset:{32*j}"] for j in range(2)]
def zero_acc(A):
    for i in range(0, 80, 2): A(f"v_mov_b64 {vr(ACC+i,2)}, 0")

def g1_phase(A):
    c_loop(A, "g1", 16, lambda o: ar(G1A+o, 4), True, True, lambda n, t: [f"ds_write_b128 v{vGE+t}, {ar(G1A+(t*5+n)*4,4)} offset:{4096*n}"])
    for j in range(2):
        for k in range(2):
            A(f"v_lshlrev_b32 v{vGE+10+4*j+2*k}, 16, v{vGE+18+2*j+k}")
            A(f"v_and_b32 v{vGE+11+4*j+2*k}, 0xffff0000, v{vGE+18+2*j+k}")
    A("s_waitcnt lgkmcnt(0)")
    A("s_barrier")
    stamp(A, "g1_red")
    if OPT["lnpost"] == 2:
        A("s_cmp_lt_u32 s82, 24")
        A("s_cbranch_scc1 g1_nw2")
        w2_prefetch(A, 24, list(range(3 - OPT["lnpn"], 3)))
        A.label("g1_nw2")
    A0 = A
    R = 128
    def rd(r):
        for j in range(2):
            for part in range(4):
                A(f"ds_read_b128 {vr(R+32*r+16*j+4*part,4)}, v{vGE+4+j+2*(part>>1)} offset:{8192*r + 20480*(part&1)}")
    def fin(r):
        b = R + 32*r
        for j in range(2):
            x = b + 16*j
            for i in (0, 2):
                A(f"v_pk_add_f32 {vr(x+i,2)}, {vr(x+i,2)}, {vr(x+4+i,2)}")
                A(f"v_pk_add_f32 {vr(x+8+i,2)}, {vr(x+8+i,2)}, {vr(x+12+i,2)}")
        for j in range(2):
            x = b + 16*j
            for i in (0, 2): A(f"v_pk_add_f32 {vr(x+i,2)}, {vr(x+i,2)}, {vr(vGE+10+4*j+i,2)}")
        for j in range(2):
            x = b + 16*j
            for i in (0, 2): A(f"v_pk_add_f32 {vr(x+i,2)}, {vr(x+i,2)}, {vr(x+8+i,2)}")
        E = [b + 16*j + i for j in range(2) for i in range(4)]
        E2 = E[::2]
        for x in E2: A(f"v_pk_mul_f32 {vr(x+4,2)}, {vr(x,2)}, {vr(x,2)}")
        for x in E2: A(f"v_pk_fma_f32 {vr(x+4,2)}, {vr(x+4,2)}, s[90:91], {vr(vGE+8,2)}")
        for x in E2: A(f"v_pk_mul_f32 {vr(x+4,2)}, {vr(x+4,2)}, {vr(x,2)}")
        for x in E: A(f"v_exp_f32 v{x+4}, v{x+4}")
        for x in E2: A(f"v_pk_add_f32 {vr(x+4,2)}, {vr(x+4,2)}, 1.0 op_sel_hi:[1,0]")
        for x in E: A(f"v_rcp_f32 v{x+4}, v{x+4}")
        for x in E2: A(f"v_pk_mul_f32 {vr(x,2)}, {vr(x,2)}, {vr(x+4,2)}")
        for j in range(2):
            x = b + 16*j
            A(f"v_cvt_pk_bf16_f32 v{b+8+2*j}, v{x}, v{x+1}")
            A(f"v_cvt_pk_bf16_f32 v{b+9+2*j}, v{x+2}, v{x+3}")
        A(f"buffer_store_dwordx4 {vr(b+8,4)}, v{vB0}, s[{sWS}:{sWS+3}], s{sUS if r < 2 else sUS+1} offen offset:{2048*(r&1)} sc1")
    def mix(body, groups, lo=0):
        n = len(groups)
        pos = {}
        for k in range(n): pos.setdefault(lo + (k*(len(body) - lo - 2))//max(n, 1), []).append(groups[k])
        for i, x in enumerate(body):
            for g in pos.get(i, []):
                for y in g: A0(y)
            A0(x)
    G = []
    if OPT["xw"]:
        B = Asm(); xw_loads(B)
        for x in B.lines:
            if x.startswith("buffer_load") or not G: G.append([x])
            else: G[-1].append(x)
        G[1] = G[0] + G[1]; G = G[1:]
    n0 = (len(G)*OPT["xsp"])//10
    A = Asm()
    rd(0)
    A("s_waitcnt lgkmcnt(4)")
    rd(1)
    A("s_waitcnt lgkmcnt(8)")
    fin(0)
    mix(A.lines, G[:n0] + ([] if G[n0:] else [[poll_ld(15, 25)]]), 8)
    late = (G[n0:] + [[poll_ld(15, 25)]]) if G[n0:] else []
    k = 0 if late else 1
    A0(f"s_cmp_ge_u32 s{sWAVE}, 2")
    A0("s_cbranch_scc1 g1_e1")
    A = A0
    rd(2)
    A("s_waitcnt lgkmcnt(8)")
    A = Asm(); fin(1); mix(A.lines, late); A = A0
    A("s_waitcnt lgkmcnt(0)")
    fin(2)
    A(f"s_waitcnt vmcnt({2 + k})")
    A("s_branch g1_e2")
    A.label("g1_e1")
    A("s_waitcnt lgkmcnt(0)")
    A = Asm(); fin(1); mix(A.lines, late); A = A0
    A(f"s_waitcnt vmcnt({1 + k})")
    A.label("g1_e2")
    stamp(A, "g1_st")
    A(f"s_mov_b32 s{sQOK}, 0")
    A(f"v_cmp_ne_u32 vcc, s{sNON}, v{vPOLL}")
    A("s_cbranch_vccnz g1_q1")
    A(f"s_mov_b32 s{sQOK}, 1")
    fa_ld(A, 0)
    A("s_waitcnt vmcnt(9)")
    A("s_branch g1_q2")
    A.label("g1_q1")
    if OPT["tailw"]: A("s_waitcnt vmcnt(0)")
    else:
        c_wring(A)
        A(f"s_waitcnt vmcnt({4*OPT['d']})")
    A.label("g1_q2")
    A(f"s_mul_i32 s88, s{sG1D}, 24")
    A(f"s_add_u32 s88, s88, s{sG1F}")
    publish(A, "pub_u", FL_G1, 88, None)
    stamp(A, "g1_pub")
    for x in xw_writes(): A(x)
    if OPT["lnpost"] == 1:
        A("s_cmp_lt_u32 s82, 24")
        A("s_cbranch_scc1 g1_nw2")
        w2_prefetch(A, 24, list(range(3 - OPT["lnpn"], 3)))
        A.label("g1_nw2")
    if not OPT["tailw"]:
        A(f"s_cmp_eq_u32 s{sQOK}, 0")
        A("s_cbranch_scc1 g1_q3")
        c_wring(A)
        A("s_branch f_go")
        A.label("g1_q3")
    else:
        A(f"s_cmp_lg_u32 s{sQOK}, 0")
        A("s_cbranch_scc1 f_go")
    A(poll_ld(15, 25))
    A("s_waitcnt vmcnt(0)")
    poll_check(A, "pq", 15, 25)

def accb_init(st):
    return [f"v_lshlrev_b32 v{ACC+st*20}, 16, v{29+st}", f"v_lshlrev_b32 v{ACC+st*20+1}, 16, v{29+st}"] + \
           [f"v_mov_b64 {vr(ACC+st*20+k,2)}, {vr(ACC+st*20,2)}" for k in range(2, 20, 2)]
vTX = 246
def xw_setup():
    L = [f"s_mul_i32 s85, s{sWAVE}, 21504", f"s_add_u32 s85, s85, {LDS_RED}", f"v_add_u32 v{vTX+4}, s85, v{vB0}", f"s_sub_u32 s85, s85, s{sCM0}"]
    L += [f"v_add_u32 v{vTX+t}, s85, v{vTR+t}" for t in range(4)]
    return L
def xw_loads(A):
    emit_dma_block(A, c_wdma(3))
    for x in c_adv1(): A(x)
    for i in range(OPT["xw"]):
        for q in range(4):
            A(f"buffer_load_dwordx4 {vr(ACC+16*i+4*q,4)}, v{vWS_+q}, s[{sCW}:{sCW+3}], s{sC1} offen offset:{1024*q}")
        for x in c_adv1(): A(x)
def xw_writes():
    return [f"ds_write_b128 v{vTX+4}, {vr(ACC+16*i+4*q,4)} offset:{4096*i+1024*q}" for i in range(OPT["xw"]) for q in range(4)]
def xw_dma(A):
    emit_dma_block(A, c_wdma(3))
    for x in c_adv1(): A(x)
    A(f"s_mul_i32 s85, s{sWAVE}, 21504")
    A(f"s_add_u32 s85, s85, {LDS_RED}")
    for i in range(OPT["xw"]):
        A(f"s_add_u32 m0, s85, {4096*i}")
        A("s_nop 0")
        for q in range(4):
            A(f"buffer_load_dwordx4 v{vWS_+q}, s[{sCW}:{sCW+3}], s{sC1} offen offset:{1024*q} lds")
        for x in c_adv1(): A(x)
def f_setup1():
    B = Asm()
    B("v_and_b32 v5, 15, v1")
    B("v_lshlrev_b32 v6, 2, v5")
    B(f"s_lshl_b32 s23, s{sFS}, 8")
    B(f"s_add_u32 s23, s23, {WS_G:#x}")
    for st in range(4):
        B(f"buffer_load_dword v{8+st}, v6, s[{sWS}:{sWS+3}], s23 offen offset:{64*st} sc1")
    B("v_lshlrev_b32 v6, 1, v5")
    B(f"s_lshl_b32 s23, s{sFS}, 7")
    B(f"s_cmp_eq_u32 s{sWAVE}, 0")
    B("s_cselect_b32 s23, s23, 0x40000000")
    for st in range(4):
        B(f"buffer_load_ushort v{29+st}, v6, s[{sB2}:{sB2+3}], s23 offen offset:{32*st}")
    return B.lines
def f_setup2():
    B = Asm()
    for st in range(4):
        B(f"v_sub_f32 v{8+st}, 1.0, v{8+st}")
        if not OPT["xw"]:
            for x in accb_init(st): B(x)
    B("v_min_u32 v12, 23, v1")
    B("v_lshlrev_b32 v12, 7, v12")
    B(f"s_mul_i32 s23, s{sFD}, {24*128}")
    B(f"s_add_u32 s23, s23, {FL_G1:#x}")
    B("v_and_b32 v5, 15, v1")
    B("v_lshrrev_b32 v6, 4, v1")
    B("v_mul_u32_u24 v4, 336, v5")
    if OPT["ox4"]:
        B("v_lshrrev_b32 v7, 1, v6")
        B("v_lshl_add_u32 v4, v7, 4, v4")
        B("v_and_b32 v6, 1, v6")
        B("v_mul_u32_u24 v6, 160, v6")
        B("v_add_u32 v4, v4, v6")
    else:
        B("v_lshl_add_u32 v4, v6, 4, v4")
    B(f"s_mul_i32 s85, s{sWAVE}, 21504")
    B(f"s_add_u32 s85, s85, {LDS_RED}")
    B("v_add_u32 v4, s85, v4")
    B(f"s_mul_i32 s85, s{sWAVE}, {16*336}")
    B(f"s_add_u32 s85, s85, {LDS_RED}")
    B(f"s_lshl_b32 s95, s{sFS}, 2")
    B(f"s_add_u32 s95, s95, s{sWAVE}")
    B(f"s_mul_i32 s95, s95, {16*1280}")
    B(f"s_mul_i32 s87, s{sFD}, 160")
    B("s_add_u32 s95, s95, s87")
    if OPT["ox4"]:
        B("v_mul_u32_u24 v6, 205, v1")
        B("v_lshrrev_b32 v6, 11, v6")
        B("v_mul_u32_u24 v7, 10, v6")
        B("v_sub_u32 v7, v1, v7")
        B("v_min_u32 v6, 5, v6")
        B("v_mul_u32_u24 v16, 336, v6")
        B("v_lshl_add_u32 v16, v7, 4, v16")
        B("v_add_u32 v16, s85, v16")
        B("v_mul_u32_u24 v24, 1280, v6")
        B("v_lshl_add_u32 v24, v7, 4, v24")
    else:
        for r in range(5):
            B(f"v_add_u32 v5, {64*r}, v1")
            B("v_mul_u32_u24 v6, 3277, v5")
            B("v_lshrrev_b32 v6, 16, v6")
            B("v_mul_u32_u24 v7, 20, v6")
            B("v_sub_u32 v7, v5, v7")
            B(f"v_mul_u32_u24 v{16+r}, 336, v6")
            B(f"v_lshl_add_u32 v{16+r}, v7, 4, v{16+r}")
            B(f"v_add_u32 v{16+r}, s85, v{16+r}")
            B(f"v_mul_u32_u24 v{24+r}, 1280, v6")
            B(f"v_lshl_add_u32 v{24+r}, v7, 3, v{24+r}")
    if OPT["otouch"]:
        B("v_lshrrev_b32 v5, 1, v1")
        B("v_and_b32 v5, 15, v5")
        B("v_mul_u32_u24 v5, 1280, v5")
        B("v_and_b32 v6, 1, v1")
        B("v_mul_u32_u24 v6, 156, v6")
        B("v_add_u32 v5, v5, v6")
    if OPT["xw"]:
        for x in xw_setup(): B(x)
    return B.lines

def f_phase(A):
    ACA = 128
    A.label("f_entry")
    fa_ld(A, 0)
    A.label("f_go")
    fa_ld(A, 1)
    stamp(A, "f_qok")
    A(f"s_or_b32 s85, s2, s{sWAVE}")
    A("s_cmp_lg_u32 s85, 0")
    A("s_cbranch_scc1 f_nox")
    A(f"s_mov_b32 s85, {FL_X:#x}")
    flag_store(A, 85)
    A.label("f_nox")
    fb = fa_b
    def fam(i, side=[]):
        mf = []
        for n in range(5):
            for st in range(4):
                c = vr(ACA+(st*5+n)*4, 4)
                mf.append(f"v_mfma_f32_16x16x32_bf16 {c}, {ar(fb(i)+16+4*n,4)}, {ar(fb(i)+4*st,4)}, {c if i else 0}")
        fill = [[] for _ in range(20)]
        for k, g in enumerate(side): fill[(k*20)//len(side)] += g
        weave(A, mf, fill)
    def ldg(i):
        B = Asm(); fa_ld(B, i); g = [[x] for x in B.lines[:9]]; g[-1] += B.lines[9:]; return g
    D = OPT["d"]
    fa_ld(A, 2)
    A(f"s_mov_b32 s{sC2}, s{sF2}")
    A(f"s_mov_b32 s{sCB2}, s{sFB2}")
    A(f"s_mov_b32 s{sCE2}, s{sFE2}")
    stamp(A, "fa_i2")
    A("s_waitcnt vmcnt(18)")
    fam(0, ldg(3))
    stamp(A, "fa_m0")
    A("s_waitcnt vmcnt(18)")
    fam(1, [[poll_ld(12, 23)]] + ldg(4))
    stamp(A, "fa_m1")
    A("s_waitcnt vmcnt(19) lgkmcnt(0)")
    fam(2, [[x] for x in flat([accb_init(st) for st in range(4)])] if OPT["xw"] else [])
    stamp(A, "fa_m2")
    A("s_waitcnt vmcnt(9)")
    stamp(A, "fa_s3")
    poll_check(A, "pu", 12, 23)
    stamp(A, "f_uok")
    br = []
    for sl in range(D):
        br += [[c_bload(sl, n)] for n in range(5)]; br[-1] += c_adv2()
    fam(3, br)
    A(f"s_waitcnt vmcnt({5*D})")
    fam(4, [[]]*3 + [[x] for x in c_tr(0, 0)] + [[]]*5)
    A(f"s_waitcnt vmcnt({5 if D == 2 else 10})")
    stamp(A, "fb_first")
    def drain(n, st):
        b = (st*5+n)*4
        return [f"v_fma_f32 v{ACA+b+i}, v{ACC+b+i}, v{8+st}, v{ACA+b+i}" for i in range(4)] + [f"ds_write_b128 v4, {vr(ACA+b,4)} offset:{st*16*336 + (32 if OPT['ox4'] else 64)*n}"]
    if OPT["xw"]:
        X = OPT["xw"]
        place = lambda k: ("r", k) if k < 4 else (("x", k-4) if k < 4 + X else ("r", (k - 4 - X) & 3))
        seq = [("B", 0)]*5 + [("B", 1)]*5 + [("B", 2)]*5
        for u in range(12):
            idx = [i for i, (t, k) in enumerate(seq) if (t == "B" and k == u) or (t == "W" and k == u+1)]
            wait = len(seq) - 1 - max(idx)
            kw = u + 3 + OPT["xwd"]; kb = u + 3
            doW = 4 + X <= kw < 12; doB = kb < 12
            nx = None
            if u < 11:
                kind, sl = place(u+1)
                base = vTR if kind == "r" else vTX
                nx = [f"ds_read_b64_tr_b16 {ar(AS+16*((u+1)&1)+4*t+2*j,2)}, v{base+t} offset:{4096*sl+2048*j}" for t in range(4) for j in range(2)]
            c_step(A, u & 3, min(wait, 63), doW, doB, False, lambda o: vr(ACC+o, 4), False, drain if u == 11 else None,
                   wslot=place(kw)[1] if doW else None, trl=nx)
            if doW: seq += [("W", kw)]*4
            if doB: seq += [("B", kb)]*5
            if u in (3, 7): stamp(A, f"fb_g{u//4}")
        stamp(A, "fb_loopdone")
    else:
        A(f"s_mov_b32 s{sCNT}, 2")
        c_loop(A, "fb", 12, lambda o: vr(ACC+o, 4), False, False, drain)
    A("s_waitcnt lgkmcnt(0)")
    A("s_barrier")
    stamp(A, "f_red")
    R = ACC
    OST = ["", " nt", " sc1", " sc0 sc1", " sc1 nt", " sc0 nt", " sc0 sc1 nt"][OPT["ost"]]
    if OPT["ox4"]:
        A("v_add_u32 v17, 43008, v16")
        def rd4(r):
            for h in range(2):
                for part in range(4):
                    A(f"ds_read_b128 {vr(R+32*r+16*h+4*part,4)}, v{16 + (part >> 1)} offset:{21504*(part & 1) + 160*h + 2016*r}")
        rd4(0)
        A("s_waitcnt lgkmcnt(4)")
        rd4(1)
        A("s_mov_b32 exec_hi, 0x0fffffff")
        for r in range(3):
            A(f"s_waitcnt lgkmcnt({8 if r < 2 else 0})")
            b = R + 32*(r & 1) if r < 2 else R + 64 - 64
            b = R + 32*r if r < 2 else R
            for h in range(2):
                x = b + 16*h
                for i in (0, 2):
                    A(f"v_pk_add_f32 {vr(x+i,2)}, {vr(x+i,2)}, {vr(x+4+i,2)}")
                    A(f"v_pk_add_f32 {vr(x+8+i,2)}, {vr(x+8+i,2)}, {vr(x+12+i,2)}")
            for h in range(2):
                x = b + 16*h
                for i in (0, 2): A(f"v_pk_add_f32 {vr(x+i,2)}, {vr(x+i,2)}, {vr(x+8+i,2)}")
            o = R + 64 + 4*r
            for h in range(2):
                A(f"v_cvt_pk_bf16_f32 v{o+2*h}, v{b+16*h}, v{b+16*h+1}")
                A(f"v_cvt_pk_bf16_f32 v{o+2*h+1}, v{b+16*h+2}, v{b+16*h+3}")
            if r == 0:
                for h in range(2):
                    for part in range(4):
                        A(f"ds_read_b128 {vr(R+16*h+4*part,4)}, v{16 + (part >> 1)} offset:{21504*(part & 1) + 160*h + 2016*2}")
            if r == 2: A("s_mov_b32 exec_hi, 0xff")
            A(f"buffer_store_dwordx4 {vr(o,4)}, v24, s[{sOUT}:{sOUT+3}], s95 offen" + OST)
            if r < 2: A(f"s_add_u32 s95, s95, {6*1280}")
        A("s_mov_b32 exec_hi, -1")
        return
    def rd(r):
        for part in range(4):
            A(f"ds_read_b128 {vr(R+16*r+4*part,4)}, v{16+r} offset:{21504*part}")
    rd(0); rd(1); rd(2)
    for r in range(5):
        A(f"s_waitcnt lgkmcnt({8 if r < 3 else 4*(4-r)})")
        b = R + 16*r
        for i in (0, 2):
            A(f"v_pk_add_f32 {vr(b+i,2)}, {vr(b+i,2)}, {vr(b+4+i,2)}")
            A(f"v_pk_add_f32 {vr(b+8+i,2)}, {vr(b+8+i,2)}, {vr(b+12+i,2)}")
        if r + 3 < 5: rd(r+3)
        for i in (0, 2): A(f"v_pk_add_f32 {vr(b+i,2)}, {vr(b+i,2)}, {vr(b+8+i,2)}")
        A(f"v_cvt_pk_bf16_f32 v{b}, v{b}, v{b+1}")
        A(f"v_cvt_pk_bf16_f32 v{b+1}, v{b+2}, v{b+3}")
        A(f"buffer_store_dwordx2 {vr(b,2)}, v{24+r}, s[{sOUT}:{sOUT+3}], s95 offen" + OST)

def kd(name):
    return f""".section .rodata,"a"
.p2align 6
.amdhsa_kernel {name}
  .amdhsa_next_free_vgpr 512
  .amdhsa_next_free_sgpr 102
  .amdhsa_accum_offset 256
  .amdhsa_group_segment_fixed_size 0
  .amdhsa_kernarg_size 96
  .amdhsa_user_sgpr_count 2
  .amdhsa_user_sgpr_kernarg_segment_ptr 1
  .amdhsa_system_sgpr_workgroup_id_x 1
.end_amdhsa_kernel
"""

def gen():
    hdr = open("cdna_kernels/" + NAME + ".s.ref").read().split("; Override")[0]
    hdr += f"; @launch grid=(256,1,1) block=(256,1,1) lds={LDS_BYTES}\n"
    hdr += '.amdgcn_target "amdgcn-amd-amdhsa--gfx950"\n'
    A = Asm()
    K = NAME + "_kernel"
    A(".text"); A(f".globl {K}"); A(".p2align 8"); A(f".type {K},@function"); A.label(K)
    prologue(A)
    A("s_cmp_ge_u32 s82, 16"); A("s_cbranch_scc1 r_notkv")
    A("s_and_b32 s85, s82, 3")
    A("s_lshl_b32 s86, s83, 2")
    A(f"s_add_u32 s{sA}, s85, s86")
    A("s_lshr_b32 s85, s82, 2")
    A("s_lshl_b32 s86, s84, 2")
    A(f"s_add_u32 s{sBp}, s85, s86")
    qkv_setup(A, False)
    if not OPT["xfirst"]: qkv_setup_w(A, False)
    A("s_waitcnt lgkmcnt(0)"); srds(A, ["X", "W"])
    stamp(A, "kv_pre")
    def mid(A):
        params1(A); srds(A, ["WS", "W1", "B1", "W2", "B2", "OUT"]); cw_init(A)
        if not OPT["defer"]:
            params2(A); g1_params(A); mid3(A)
    def mid3(A):
        kv_esetup(A)
        A("s_lshl_b32 s85, s81, 4")
        A("s_add_u32 s85, s85, s82")
        A("s_lshl_b32 s85, s85, 2")
        A(f"s_add_u32 s85, s85, s{sWAVE}")
        A("s_lshl_b32 s27, s85, 13")
        A(f"s_lshl_b32 s{sPUB}, s{sA}, 3")
        A(f"s_add_u32 s{sPUB}, s{sPUB}, s{sBp}")
        A(f"s_lshl_b32 s{sPUB}, s{sPUB}, 7")
        A(f"s_add_u32 s{sPUB}, s{sPUB}, {FL_KV:#x}")
    D = OPT["d"]; EW = 5 if D == 2 else 10
    assert D == 3
    def wst(k):
        g = c_wdma(k); g[-1] = g[-1] + c_adv1(); return g
    def bst(k):
        g = [[c_bload(k, n)] for n in range(5)]; g[-1] = g[-1] + c_adv2(); return g
    NI = 4 if OPT["xw"] else 48
    E = kv_estream()
    g1acc = lambda o: ar(G1A+o, 4)
    def pubkv(A, wait):
        A(f"s_waitcnt vmcnt({wait})")
        A("s_barrier")
        A(f"s_cmp_lg_u32 s{sWAVE}, 0")
        A("s_cbranch_scc1 g1_pub1")
        flag_store(A, sPUB)
        A.label("g1_pub1")
        stamp(A, "kv_pub")
    nin = OPT["nbin"]
    ex = {8: ([[poll_ld(vPO, 24)]] + b1_loads() + wst(0) + wst(1), 9), 9: (wst(2), 8)}
    d0 = OPT["defer"]
    out_kv = qkv_gemm(A, "kv", False, mid, ex, {9: lambda A: poll_check(A, "pln", vPO, 24)},
                      [(d0, params2), (d0+1, g1_params), (d0+2, mid3)] if d0 else [])
    if OPT["kvw2"]:
        A(f"buffer_load_dword a255, v15, s[{sW2}:{sW2+3}], s27 offen")
    for m in qkv_mfmas(FB_, False): A(m)
    stamp(A, "kv_loopdone")
    Bs = bst(0) + bst(1) + bst(2)
    body = E[0] + E[1]
    sp = min(26, (len(body) - 30 - OPT["b0"]) // max(nin, 1))
    pos = [len(body) - 30 - sp*(nin - 1 - k) for k in range(nin)]
    assert not pos or pos[0] >= 0
    for i, x in enumerate(body):
        if i in pos:
            for y in Bs[pos.index(i)]: A(y)
        A(x)
    A("s_waitcnt lgkmcnt(0)")
    A("s_barrier")
    for x in E[2] + E[3]: A(x)
    stamp(A, "kv_st")
    for g in Bs[nin:]:
        for y in g: A(y)
    seq = ["W"]*12 + [f"B{k//5}" for k in range(nin)] + ["S"]*4 + [f"B{k//5}" for k in range(nin, 15)]
    def need(tags): return len(seq) - 1 - max(i for i, t in enumerate(seq) if t in tags)
    A(f"s_waitcnt vmcnt({need(['W'])})")
    for x in c_tr(0, 0): A(x)
    if OPT["pubat"] == 0: pubkv(A, need(["S"]))
    for u in range(4):
        c_step(A, u, min(need([f"B{u}", f"W{u+1}", "W"]), 63), True, True, True, g1acc, True, first=(u == 0),
               pre=f_setup1() if u == 1 else [],
               side=({2: f_setup2()[NI:], 3: f_setup2()[:NI]}.get(u) if OPT["fsplit"] else (f_setup2() if u == 3 else None)))
        if u == 1: seq += ["G"]*8
        seq += [f"W{u+3}"]*4 + [f"B{u+3}"]*5
        stamp(A, f"g1_s{u}")
        if OPT["pubat"] == u + 1: pubkv(A, need(["S"]))
    A(f"s_mov_b32 s{sCNT}, 2")
    g1_phase(A)
    f_phase(A)
    stamp_flush(A)
    A.label("k_end"); A("s_endpgm")
    out_kv(A)
    if OPT["lnmid"]:
        A.label("g1_blk")
        w2_prefetch(A, 24, list(range(3 - OPT["lnpn"], 3)))
        A("s_branch g1_noblk")
    A.label("r_notkv")
    if OPT["pf_code"] and not OPT["pfall"]:
        A("s_getpc_b64 s[86:87]")
        A.label("pc_here")
        A(f"s_sub_u32 s86, s86, pc_here-{K}")
        A("s_subb_u32 s87, s87, 0")
        A("s_sub_u32 s85, s82, 16")
        A("s_lshl_b32 s85, s85, 2")
        A(f"s_add_u32 s85, s85, s{sWAVE}")
        A("s_lshl_b32 s85, s85, 3")
        A("v_add_lshl_u32 v2, v1, s85, 7")
        A(f"v_min_u32 v2, k_codeend-{K}-4, v2")
        A("s_mov_b64 exec, 0xff")
        A("global_load_dword a255, v2, s[86:87]")
        A("s_mov_b64 exec, -1")
    A("s_cmp_lt_u32 s82, 24"); A("s_cbranch_scc1 r_q")
    A("s_sub_u32 s87, s82, 24")
    A("s_lshl_b32 s85, s81, 3")
    A(f"s_add_u32 s{sA}, s85, s87")
    aux = " nt" if OPT.get("nt") else ""
    w1l = lambda k: f"buffer_load_dword a255, v22, s[{sW1}:{sW1+3}], s{26 + k//3} offen offset:{1024*(k%3)}{aux}"
    def after(A):
        params1(A); srds(A, ["WS", "W1", "B1", "W2", "B2", "OUT"]); cw_init(A); params2(A); g1_params(A)
        w1_setup(A, 24, 22)
        for k in range(OPT["early"] if OPT["pf_w1"] else 0): A(w1l(k))
    ln_role(A, after, OPT["early"] if OPT["pf_w1"] else 0)
    publish(A, "pub_ln", FL_LN, sA)
    stamp(A, "ln_pub")
    if OPT["tlb"] == 2:
        A("v_lshlrev_b32 v2, 20, v1")
        A("s_mov_b64 exec, 0x3ff")
        A(f"buffer_load_dword a255, v2, s[{sWS}:{sWS+3}], 0 offen sc1")
        A(f"buffer_load_dword a255, v2, s[{sOUT}:{sOUT+3}], 0 offen")
        A(f"buffer_load_dword a255, v2, s[{sB2}:{sB2+3}], 0 offen")
        A("s_mov_b64 exec, -1")
    for k in range(OPT["early"], (3 - OPT["qw1n"]) if (OPT["pf_w1"] and not OPT["qfirst"]) else 0): A(w1l(k))
    def pf_h():
        A(poll_ld(vPO, 24))
        A("v_lshrrev_b32 v2, 5, v1")
        A("v_mul_u32_u24 v2, 40960, v2")
        A("v_and_b32 v3, 31, v1")
        A("v_lshl_add_u32 v2, v3, 7, v2")
        A("s_sub_u32 s85, s82, 24")
        A("s_lshl_b32 s85, s85, 2")
        A(f"s_add_u32 s85, s85, s{sWAVE}")
        A(f"s_mul_i32 s87, s85, {2*40960}")
        A("s_mul_i32 s86, s84, 20480")
        A("s_add_u32 s87, s87, s86")
        A("s_waitcnt vmcnt(0)")
        poll_check(A, "plnh", vPO, 24)
        A("s_barrier")
        for i in range(5):
            A(f"buffer_load_dword a255, v2, s[{sWS}:{sWS+3}], s87 offen sc1")
            A("s_add_u32 s87, s87, 4096")
    for c in str(OPT["lnseq"]):
        if c == "1" and OPT["pf_w1"]:
            for k in range(3, 6): A(w1l(k))
        if c == "6":
            for k in range(3): A(w1l(k))
        if c == "2": pf_h()
        if c == "3": w2_prefetch(A, 24, [0])
        if c == "7": w2_prefetch(A, 24, [2])
        if c == "4": w2_prefetch(A, 24, [0, 1])
        if c == "5": w2_prefetch(A, 24, [0, 1, 2])
    stamp(A, "ln_pf")
    for g in b1_loads(): A(g[0])
    A(poll_ld(vPO, 24))
    c_wring(A)
    A(f"s_waitcnt vmcnt({4*OPT['d']})")
    poll_check(A, "pln2", vPO, 24)
    A("s_barrier")
    for x in f_setup1(): A(x)
    c_bring(A)
    for i in range(80): A(f"v_accvgpr_write_b32 a{G1A+i}, 0")
    A(f"s_waitcnt vmcnt({5*D})")
    for x in f_setup2(): A(x)
    A(f"s_mov_b32 s{sCNT}, 3")
    A(f"s_mov_b32 s{sPUB}, {OPT['lnmid']}")
    A(f"s_waitcnt vmcnt({EW})")
    for x in c_tr(0, 0): A(x)
    stamp(A, "ln_ready")
    A("s_branch g1_loop")
    A.label("r_q")
    A("s_sub_u32 s87, s82, 16")
    A("s_and_b32 s85, s87, 3")
    A("s_lshl_b32 s86, s83, 2")
    A(f"s_add_u32 s{sA}, s85, s86")
    A("s_lshr_b32 s85, s87, 2")
    A("s_lshl_b32 s86, s84, 1")
    A(f"s_add_u32 s{sBp}, s85, s86")
    A(f"s_lshl_b32 s{sU}, s{sBp}, 2")
    A(f"s_and_b32 s85, s{sA}, 3")
    A(f"s_add_u32 s{sU}, s{sU}, s85")
    A(f"s_lshr_b32 s{sNR}, s{sA}, 2")
    def midq(A):
        params1(A); srds(A, ["WS", "W1", "WO", "W2", "B2", "OUT"]); cw_init(A); params2(A)
        w1_setup(A, 16, 12)
        if OPT["qw1"] == 0: q_pf_only(A)
        if not OPT["qdefer"]: q_setup(A)
    def qs(lo, hi):
        def f(A):
            B = Asm(); q_setup(B)
            assert len(B.lines) > 150
            for x in B.lines[lo:hi]: A(x)
        return f
    def qtouch(A):
        A("s_mov_b32 exec_lo, 0xffff03ff")
        A("s_mov_b32 exec_hi, 0")
        A(f"buffer_load_dword a255, v{vT1}, s[{sWS}:{sWS+3}], 0 offen sc1")
        A("s_mov_b64 exec, -1")
    qkv_setup(A, True)
    if not OPT["xfirst"]: qkv_setup_w(A, True)
    A("s_waitcnt lgkmcnt(0)"); srds(A, ["X", "W"])
    qb = [(max(OPT["qw1"], 1), q_loop_pf)]
    if OPT["qdefer"]:
        def both(A): q_loop_pf(A); q_setup(A); qtouch(A)
        qb = [(OPT["qw1"], both)]
    out_q = qkv_gemm(A, "q", True, midq, q_extras(), {9: lambda A: poll_check(A, "pln3", vPO, 24)}, qb)
    q_epilogue(A)
    A("s_lshl_b32 s88, s81, 3")
    A("s_add_u32 s88, s88, s82")
    A("s_sub_u32 s88, s88, 16")
    publish(A, "pub_q", FL_Q, 88)
    stamp(A, "q_pub")
    if OPT["qw2b"]: w2_prefetch(A, 16, list(range(3 - OPT["qw2b"], 3)))
    for x in f_setup1(): A(x)
    switch_to_fb(A)
    c_wring(A)
    if OPT["xw"]: xw_dma(A)
    A(poll_ld(vPO, 25))
    A(f"s_waitcnt vmcnt({4*D + 1 + (4 + 4*OPT['xw'] if OPT['xw'] else 0)})")
    for x in f_setup2(): A(x)
    A("s_waitcnt vmcnt(0)")
    poll_check(A, "pq2", vPO, 25)
    A("s_barrier")
    stamp(A, "q_allq")
    if OPT["pf_pq"]:
        A("s_sub_u32 s88, s82, 16")
        A("s_lshl_b32 s88, s88, 2")
        A(f"s_add_u32 s88, s88, s{sWAVE}")
        A("v_lshlrev_b32 v2, 7, v1")
        A(f"s_mul_i32 s85, s83, {8*81920}")
        A(f"s_mul_i32 s86, s88, {160*128}")
        A("s_add_u32 s85, s85, s86")
        A(f"s_add_u32 s85, s85, {WS_PQ:#x}")
        for i in range(3):
            if i == 2: A("s_mov_b32 exec_hi, 0")
            A(f"buffer_load_dword a255, v2, s[{sWS}:{sWS+3}], s85 offen sc1")
            A("s_add_u32 s85, s85, 8192")
        A("s_mov_b32 exec_hi, -1")
        A("s_cmp_ge_u32 s88, 20")
        A("s_cbranch_scc1 q_pfd")
        A("s_mul_i32 s85, s88, 40960")
        A("s_mul_i32 s86, s84, 20480")
        A("s_add_u32 s85, s85, s86")
        A(f"s_add_u32 s85, s85, {WS_M:#x}")
        for i in range(3):
            if i == 2: A("s_mov_b32 exec_hi, 0")
            A(f"buffer_load_dword a255, v2, s[{sWS}:{sWS+3}], s85 offen sc1")
            A("s_add_u32 s85, s85, 8192")
        A("s_mov_b32 exec_hi, -1")
        A.label("q_pfd")
    fa_params(A)
    A("s_branch f_entry")
    out_q(A)
    A.label("k_codeend")
    for i, l in enumerate(A.lines):
        if l.startswith("v_mad_i32_i24 v4, v3, -20"):
            A.lines[i] = l.replace("-20", "s89")
        if l == "s_movk_i32 s88, 3840":
            A.lines[i] = "s_movk_i32 s89, -20"
    if OPT["align"]:
        A.lines, nc, nn = align(A.lines, OPT["align"])
        print("aligned: widened", nc, "nops", nn, file=sys.stderr)
    nb = check(A.lines)
    print("hazards:", nb, file=sys.stderr)
    return hdr + A.text() + kd(K)

if __name__ == "__main__":
    out = sys.argv[1]
    for a in sys.argv[2:]:
        if a == "st": STAMPS = True
        else:
            k, v = a.split("="); OPT[k] = int(v)
    open(out, "w").write(gen())
    if STAMPS: json.dump(_st["names"], open(out + ".names", "w"))
```

```python
import sys, json
from asmlib import Asm, vr, ar, sr, check, align

NAME = "gated_mix__linear_attn_block__mixer_token_mlp__prompt"
WS_H   = 0x000000
WS_U   = 0x280000
WS_PQ  = 0x460000
WS_M   = 0x6E0000
WS_KVP = 0x7A8000
WS_ZP  = 0x880000
WS_G   = 0x972000
WS_FLAG = 0x974000
FL_X = WS_FLAG
FL_LN = WS_FLAG + 128
FL_KV = FL_LN + 64*128
FL_Q = FL_KV + 128*128
FL_G1 = FL_Q + 64*128
WS_SIZE = FL_G1 + 192*128
WS_STAMP = 0x1000000

sX, sW, sWS, sW1, sW2, sOUT, sWO, sB1, sB2, sGW = 28, 32, 36, 40, 44, 48, 52, 56, 60, 64
sWAVE = 68
sA, sBp = 69, 70
sG1D, sG1F, sFS, sFD = 71, 72, 73, 74
sCNT, sO1, sO2, sRD, sWR, sM0 = 75, 76, 77, 78, 79, 80
sEX, sMK = 90, 92
sU, sNR = 94, 95
sWR_, sWC_ = 96, 97
sPUB = 3
sQOK = 99
sM1 = 98
sC1, sC2, sCM0, sCB1, sCE1, sCB2, sCE2, sCST, sCW, sNON = 4, 5, 6, 7, 8, 9, 10, 11, 12, 16
sF1, sFB1, sFE1, sF2, sFB2, sFE2 = 17, 18, 19, 20, 21, 22
LOG2E = 0x3FB8AA3B
EPS6 = 0x358637BD
LDS_RED = 65536
LDS_BYTES = 163840
vXO, vWO_, vXB, vCUR = 16, 20, 25, 29
vWS_, vB0, vB1, vTR, vWS2 = 33, 37, 38, 39, 43
ACC = 48
FA_, FB_ = 112, 148
BR, AS = 0, 80
STG = 36864
vPOLL, vPO = 14, 13
OPT = {"rot": 1, "pf_w1": 1, "pf_w2": 1, "pf_code": 1, "pf_pq": 0, "sleep": 1, "early": 1, "d": 3, "qpoll": 2, "nbin": 10, "cv": 0, "lnseq": 51, "qw2": 0, "qw2b": 0, "ntq": 0, "qw1": 1, "qw1n": 2, "kvr": 1, "touch": 1, "perm": 0, "otouch": 0, "rdb": 4, "w2c": 1, "qfirst": 0, "rfd": 3, "tailw": 1, "pubat": 0, "kvw2": 0, "b0": 0, "qw1b": 0, "rfb": 4, "frot": 2, "arot": 2, "fmap": 1, "qrot": 1, "grot": 4, "lnpost": 0, "lnpn": 3, "align": 5, "defer": 0, "qdefer": 0, "lnmid": 0, "ost": 1, "tlb": 0, "pf0": 8, "xfirst": 1, "fsplit": 1, "xw": 3, "xwd": 0, "xsp": 6, "pfall": 0, "ntl": 6, "ntlk": 2, "ntlq": 3, "ox4": 1, "merge": 0, "mo": 0}
STAMPS = False
_st = {"n": 0, "names": []}

def stamp(A, name, real=False):
    if not STAMPS: return
    if OPT.get("clk") and not real and name in ("kv_first", "kv_loop9", "g1_s0", "g1_loopdone", "g1_pub", "fb_first", "fb_loopdone"): stamp(A, name + "_R", True)
    i = _st["n"]; _st["n"] += 1; _st["names"].append(name)
    A("s_memrealtime s[100:101]" if real else "s_memtime s[100:101]")
    A("s_waitcnt lgkmcnt(0)")
    A(f"v_writelane_b32 v47, s100, {i}")
def stamp_flush(A):
    if not STAMPS: return
    stamp(A, "end"); stamp(A, "endreal", True)
    A("s_lshl_b32 s100, s2, 2")
    A(f"s_add_u32 s100, s100, s{sWAVE}")
    A("s_lshl_b32 s100, s100, 8")
    A(f"s_add_u32 s100, s100, {WS_STAMP:#x}")
    A(f"s_mov_b32 s{sWS+2}, 0x2000000")
    A("v_lshlrev_b32 v46, 2, v1")
    A(f"buffer_store_dword v47, v46, s[{sWS}:{sWS+3}], s100 offen")

def srds(A, which):
    tab = {"X": (sX, 4, 2048*1280), "W": (sW, 6, 640*3840), "WO": (sWO, 8, 640*1280), "W1": (sW1, 12, 2048*3072), "B1": (sB1, 14, 3072),
           "W2": (sW2, 16, 1536*4096), "B2": (sB2, 18, 4096), "GW": (sGW, 20, 1280), "OUT": (sOUT, 22, 2048*1280), "WS": (sWS, 26, WS_SIZE)}
    for w in which:
        base, ptr, size = tab[w]
        A(f"s_mov_b64 s[{base}:{base+1}], s[{ptr}:{ptr+1}]")
        A(f"s_mov_b32 s{base+2}, {size:#x}")
        A(f"s_mov_b32 s{base+3}, 0x20000")

def flat(groups):
    out = []
    for g in groups: out += g if isinstance(g, list) else [g]
    return out

def weave(A, mf, fill, first=0):
    for i, m in enumerate(mf):
        A(m)
        if i < len(fill):
            for x in fill[i]: A(x)
    for g in fill[len(mf):]:
        for x in g: A(x)

def poll_off(A, dst, nper, total_waves_split=True):
    A(f"v_and_b32 v{dst}, {nper-1}, v1")
    A(f"s_mul_i32 s85, s{sWAVE}, {nper}")
    A(f"v_add_lshl_u32 v{dst}, v{dst}, s85, 7")
def poll_ld(vo, so):
    return f"buffer_load_dword v{vPOLL}, v{vo}, s[{sWS}:{sWS+3}], s{so} offen sc1"
def poll_check(A, name, vo, so):
    A(f"v_cmp_ne_u32 vcc, s{sNON}, v{vPOLL}")
    A(f"s_cbranch_vccz {name}_ok")
    A(f"s_mov_b32 s{sM1}, 0")
    A.label(f"{name}_spin")
    A(f"s_add_u32 s{sM1}, s{sM1}, 1")
    A(f"s_cmp_gt_u32 s{sM1}, 0x8000")
    A(f"s_cbranch_scc1 {name}_ok")
    A(f"s_sleep {OPT['sleep']}")
    A(poll_ld(vo, so))
    A("s_waitcnt vmcnt(0)")
    A(f"v_cmp_ne_u32 vcc, s{sNON}, v{vPOLL}")
    A(f"s_cbranch_vccnz {name}_spin")
    A.label(f"{name}_ok")
def flag_store(A, so):
    A(f"v_mov_b32 v2, s{sNON}")
    A("v_lshlrev_b32 v3, 2, v1")
    A("s_mov_b32 exec_hi, 0")
    A(f"buffer_store_dword v2, v3, s[{sWS}:{sWS+3}], s{so} offen sc1")
    A("s_mov_b32 exec_hi, -1")
def publish(A, name, base, sidx, wait=0):
    if wait is not None: A(f"s_waitcnt vmcnt({wait})")
    A("s_barrier")
    A(f"s_cmp_lg_u32 s{sWAVE}, 0")
    A(f"s_cbranch_scc1 {name}_np")
    A(f"s_lshl_b32 s85, s{sidx}, 7")
    A(f"s_add_u32 s85, s85, {base:#x}")
    flag_store(A, 85)
    A.label(f"{name}_np")

def prologue(A):
    A("s_cmp_ge_u32 s2, 256")
    A("s_cbranch_scc1 k_end")
    if STAMPS: A("v_mov_b32 v47, 0")
    stamp(A, "startreal", True); stamp(A, "start")
    A("s_load_dwordx16 s[4:19], s[0:1], 0")
    A("s_load_dwordx8 s[20:27], s[0:1], 64")
    if OPT["pf0"] and not OPT["pfall"]:
        A("s_getpc_b64 s[86:87]")
        A("v_lshlrev_b32 v2, 7, v0")
        A(f"s_mov_b64 exec, {(1 << OPT['pf0']) - 1:#x}")
        A("global_load_dword a255, v2, s[86:87] offset:128")
        A("s_mov_b64 exec, -1")
    A("v_lshrrev_b32 v2, 6, v0")
    A("v_and_b32 v1, 63, v0")
    if OPT["pfall"]:
        A("s_getpc_b64 s[86:87]")
        A.label("pc_0")
        A("s_lshr_b32 s85, s2, 3")
        A("v_lshl_add_u32 v3, s85, 2, v2")
        A("v_mad_u32_u24 v3, v3, 3, v1")
        A("v_cmp_gt_u32 vcc, 3, v1")
        A("v_add_u32 v4, -2, v1")
        A(f"s_mov_b64 exec, {(1 << (3 + OPT['pf0'])) - 1:#x}")
        A("v_cndmask_b32 v3, v4, v3, vcc")
        A("v_lshlrev_b32 v3, 7, v3")
        A("v_min_u32 v3, k_codeend-pc_0-4, v3")
        A("global_load_dword a255, v3, s[86:87]")
        A("s_mov_b64 exec, -1")
    A(f"v_readfirstlane_b32 s{sWAVE}, v2")
    A("s_and_b32 s81, s2, 7")
    A("s_lshr_b32 s82, s2, 3")
    A("s_lshr_b32 s83, s81, 1")
    A("s_and_b32 s84, s81, 1")

def params1(A):
    A(f"s_add_u32 s86, s26, {FL_X:#x}")
    A("s_addc_u32 s87, s27, 0")
    A("s_load_dword s3, s[86:87], 0")
    A("s_lshr_b32 s85, s82, 2")
    A("s_lshl_b32 s88, s83, 3")
    if OPT["perm"]: A("s_xor_b32 s85, s85, 7")
    A(f"s_add_u32 s{sFS}, s85, s88")
    A("s_and_b32 s85, s82, 3")
    A("s_lshl_b32 s88, s84, 2")
    A(f"s_add_u32 s{sFD}, s85, s88")
    if OPT["fmap"]:
        A("s_lshr_b32 s85, s82, 3")
        if OPT["fmap"] == 1:
            A("s_lshl_b32 s85, s85, 3")
            A(f"s_add_u32 s{sFS}, s85, s81")
        else:
            A(f"s_lshl_b32 s{sFS}, s81, 2")
            A(f"s_add_u32 s{sFS}, s{sFS}, s85")
        A(f"s_and_b32 s{sFD}, s82, 7")
    A("s_sub_u32 s85, s82, 8")
    A("s_cmp_lt_u32 s82, 16")
    A("s_cselect_b32 s85, s82, s85")
    A("s_and_b32 s89, s85, 3")
    A(f"s_add_u32 s{sG1D}, s89, s88")
    A("s_lshr_b32 s85, s85, 2")
    A("s_lshl_b32 s88, s85, 2")
    A(f"s_add_u32 s{sG1F}, s83, s88")
    A("s_lshr_b32 s88, s85, 2")
    A("s_lshl_b32 s85, s85, 1")
    A("s_add_u32 s85, s85, s88")
    A("s_lshl_b32 s85, s85, 1")
    if OPT["rfb"] == 0: A("s_mov_b32 s85, 0")
    A(f"s_mul_i32 s89, s89, {OPT['rdb']}")
    A("s_add_u32 s85, s85, s89")
    if OPT["grot"] == 2: A("s_lshl_b32 s85, s85, 1")
    A(f"s_and_b32 s99, s85, {(15 if OPT['grot'] == 4 else 8) if OPT['grot'] else 0}")

def cw_init(A):
    A(f"s_mov_b64 s[{sCW}:{sCW+1}], s[{sW1}:{sW1+1}]")
    A(f"s_mov_b64 s[{sCW+2}:{sCW+3}], s[{sW1+2}:{sW1+3}]")
def params2(A):
    if OPT.get("same"):
        for k, r in enumerate((sG1D, sG1F, sFS, sFD)):
            A(f"s_mov_b32 s{100 if not STAMPS else 64+k}, s{r}")
            A(f"s_mov_b32 s{r}, 0")
        params2_(A)
        for k, r in enumerate((sG1D, sG1F, sFS, sFD)): A(f"s_mov_b32 s{r}, s{64+k}")
    else: params2_(A)
def params2_(A):
    A(f"s_mul_i32 s{sCB1}, s{sWAVE}, {16*32*3072}")
    A(f"s_lshl_b32 s85, s{sG1F}, 7")
    A(f"s_add_u32 s{sCB1}, s{sCB1}, s85")
    A(f"s_add_u32 s{sCE1}, s{sCB1}, {16*32*3072}")
    A(f"s_mul_i32 s85, s99, {32*3072}")
    A(f"s_add_u32 s{sC1}, s{sCB1}, s85")
    A(f"s_mul_i32 s{sCB2}, s{sWAVE}, {16*40960}")
    A(f"s_mul_i32 s85, s{sG1D}, 5120")
    A(f"s_add_u32 s{sCB2}, s{sCB2}, s85")
    A(f"s_add_u32 s{sCE2}, s{sCB2}, {16*40960}")
    A(f"s_mul_i32 s85, s99, 40960")
    A(f"s_add_u32 s{sC2}, s{sCB2}, s85")
    A(f"s_mov_b32 s{sCST}, {32*3072}")
    A(f"s_lshl_b32 s{sCM0}, s{sWAVE}, 14")
    A("s_and_b32 s85, s82, 3")
    A(f"s_mul_i32 s85, s85, {OPT['rfd']}")
    A("s_lshr_b32 s86, s82, 2")
    A("s_mul_i32 s86, s86, 3")
    A("s_lshr_b32 s86, s86, 1")
    A("s_add_u32 s85, s85, s86")
    A("s_cmp_ge_u32 s85, 12")
    A("s_cselect_b32 s86, 12, 0")
    A("s_sub_u32 s85, s85, s86")
    if OPT["frot"] == 0: A("s_mov_b32 s85, 0")
    if OPT["frot"] == 2:
        A(f"s_add_u32 s85, s{sFS}, s{sFD}")
        A("s_and_b32 s85, s85, 1")
        A("s_mul_i32 s85, s85, 6")
    if OPT["frot"] == 3:
        A(f"s_add_u32 s85, s{sFS}, s{sFD}")
        A("s_mul_i32 s86, s85, 86")
        A("s_lshr_b32 s86, s86, 8")
        A("s_mul_i32 s86, s86, 3")
        A("s_sub_u32 s85, s85, s86")
        A("s_lshl_b32 s85, s85, 2")
    A(f"s_mul_i32 s{sFB1}, s{sWAVE}, {12*32*4096}")
    A(f"s_lshl_b32 s86, s{sFS}, 7")
    A(f"s_add_u32 s{sFB1}, s{sFB1}, s86")
    A(f"s_add_u32 s{sFE1}, s{sFB1}, {12*32*4096}")
    A(f"s_lshl_b32 s86, s85, 17")
    A(f"s_add_u32 s{sF1}, s{sFB1}, s86")
    A(f"s_mul_i32 s{sFB2}, s{sWAVE}, {12*40960}")
    A(f"s_mul_i32 s86, s{sFD}, 5120")
    A(f"s_add_u32 s{sFB2}, s{sFB2}, s86")
    A(f"s_add_u32 s{sFB2}, s{sFB2}, {WS_U:#x}")
    A(f"s_add_u32 s{sFE2}, s{sFB2}, {12*40960}")
    A(f"s_mul_i32 s86, s85, 40960")
    A(f"s_add_u32 s{sF2}, s{sFB2}, s86")
    A(f"v_lshlrev_b32 v{vB0}, 4, v1")
    A(f"v_add_u32 v{vB1}, 4096, v{vB0}")
    A("v_lshrrev_b32 v2, 2, v1")
    A("v_lshrrev_b32 v3, 1, v2")
    A("v_and_b32 v3, 3, v3")
    A("v_lshlrev_b32 v2, 7, v2")
    A("v_lshl_add_u32 v2, v3, 5, v2")
    A("v_and_b32 v3, 3, v1")
    A("v_lshl_add_u32 v2, v3, 3, v2")
    A(f"v_add_u32 v{vTR}, s{sCM0}, v2")
    for t in range(1, 4): A(f"v_xor_b32 v{vTR+t}, {32*t}, v{vTR}")
    A("v_lshrrev_b32 v2, 3, v1")
    A("v_lshrrev_b32 v3, 4, v1")
    A("v_lshlrev_b32 v3, 1, v3")
    A("v_and_b32 v4, 7, v1")
    A("v_xor_b32 v3, v3, v4")
    A("v_lshlrev_b32 v3, 4, v3")
    for base, stride in ((vWS_, 3072), (vWS2, 4096)):
        A(f"v_mul_u32_u24 v4, {stride}, v2")
        A(f"v_add_u32 v{base}, v3, v4")
        for q in range(1, 4): A(f"v_add_u32 v{base+q}, {q*(8*stride-1024)}, v{base}")
    poll_off(A, vPO, 16)
    A("v_lshlrev_b32 v15, 7, v1")
    A(f"s_mov_b32 s24, {FL_LN:#x}")
    A(f"s_mov_b32 s25, {FL_Q:#x}")
    A("s_waitcnt lgkmcnt(0)")
    A(f"s_mul_i32 s{sNON}, s3, 0x41C64E6D")
    A(f"s_add_u32 s{sNON}, s{sNON}, 0x3C6EF35F")

def qkv_setup(A, isq):
    A(f"s_lshr_b32 s{sWR_}, s{sWAVE}, 1")
    A(f"s_and_b32 s{sWC_}, s{sWAVE}, 1")
    A("v_lshrrev_b32 v2, 3, v1")
    A(f"s_lshl_b32 s85, s{sWAVE}, 5")
    A("v_add_u32 v2, s85, v2")
    A("v_mul_u32_u24 v2, 1280, v2")
    A("v_lshrrev_b32 v3, 4, v1")
    A("v_and_b32 v4, 7, v1")
    A("v_xor_b32 v4, v4, v3")
    A(f"v_lshl_add_u32 v{vXO}, v4, 4, v2")
    A("v_xor_b32 v4, 4, v4")
    A("v_lshl_add_u32 v6, v4, 4, v2")
    A(f"v_add_u32 v{vXO+1}, {8*1280-1024}, v6")
    A(f"v_add_u32 v{vXO+2}, {16*1280-2048}, v{vXO}")
    A(f"v_add_u32 v{vXO+3}, {24*1280-3072}, v6")
    A(f"s_mul_i32 s{sO1}, s{sA}, {0 if OPT.get('same') else 128*1280}")
    A(f"s_mov_b32 s{sO2}, 0")
    if OPT["rot"]:
        q = OPT["qrot"]
        if q == 1:
            A("s_and_b32 s85, s82, 3")
            A("s_lshl_b32 s85, s85, 2")
            A("s_lshr_b32 s85, 0x8530, s85")
            A("s_and_b32 s85, s85, 15")
            A("s_and_b32 s86, s82, 12")
            A("s_lshr_b32 s86, 0x8530, s86")
            A("s_and_b32 s86, s86, 15")
            A("s_add_u32 s85, s85, s86")
            A("s_add_u32 s85, s85, s83")
            A("s_add_u32 s85, s85, s84")
        else:
            A("s_lshr_b32 s85, s82, 2")
            A("s_add_u32 s85, s85, s82")
            A("s_and_b32 s85, s85, 1")
            A("s_mul_i32 s85, s85, 5")
            if q == 2:
                A("s_add_u32 s85, s85, s83")
                A("s_add_u32 s85, s85, s84")
            if q == 4:
                A("s_add_u32 s85, s85, s81")
            if q == 5:
                A("s_mov_b32 s85, s81")
        if isq: A("s_add_u32 s85, s85, 1")
        A("s_mul_i32 s86, s85, 26")
        A("s_lshr_b32 s86, s86, 8")
        A("s_mul_i32 s86, s86, 10")
        A("s_sub_u32 s85, s85, s86")
        A(f"s_mul_i32 s{sO2}, s85, {64*3840}")
        A("s_lshl_b32 s85, s85, 7")
        A(f"s_add_u32 s{sO1}, s{sO1}, s85")
    A(f"s_lshl_b32 s{sM0}, s{sWAVE}, 12")
    A(f"s_mul_i32 s{sM1}, s{sWAVE}, 5120")
    A(f"s_add_u32 s{sM1}, s{sM1}, 16384")
    A(f"s_mov_b32 s{sWR}, {2*STG}")

def qkv_setup_w(A, isq):
    if OPT.get("same"):
        A("s_mov_b32 s86, 1280")
    elif isq:
        A(f"s_mul_i32 s86, s{sBp}, 320")
    else:
        A(f"s_mul_i32 s86, s{sBp}, 160")
        A("s_add_u32 s86, s86, 1280")
    A(f"s_mul_i32 s85, s{sWAVE}, {16*3840}")
    A("s_add_u32 s85, s85, s86")
    A("s_movk_i32 s88, 3840")
    for n in range(5):
        if n: A(f"v_add_u32 v2, {64*n}, v1")
        q = "v2" if n else "v1"
        A(f"v_mul_u32_u24 v3, 3277, {q}")
        A("v_lshrrev_b32 v3, 16, v3")
        A(f"v_mad_i32_i24 v4, v3, -20, {q}")
        A("v_lshrrev_b32 v5, 2, v3")
        A("v_and_b32 v5, 2, v5")
        A("v_xor_b32 v4, v4, v5")
        comp = 1024*n if n < 4 else 0
        A(f"s_sub_u32 s87, s85, {comp}" if comp else "s_mov_b32 s87, s85")
        A("v_mad_u32_u24 v3, v3, s88, s87" if False else "v_mul_u32_u24 v3, 3840, v3")
        A("v_lshl_add_u32 v3, v4, 4, v3")
        if not isq:
            A("v_cmp_le_u32 vcc, 10, v4")
            A("v_add_u32 v5, 1120, v3")
            A("v_add_u32 v3, s87, v3")
            A("v_add_u32 v5, s87, v5")
            A(f"v_cndmask_b32 v{vWO_+n}, v3, v5, vcc")
        else:
            A(f"v_add_u32 v{vWO_+n}, s87, v3")

def nt(b): return " nt" if OPT["ntq"] & b else ""
def qkv_dma():
    L = [[f"s_add_u32 m0, s{sWR}, s{sM0}"]]
    for n in range(4):
        L.append([f"buffer_load_dwordx4 v{vXO+n}, s[{sX}:{sX+3}], s{sO1} offen offset:{1024*n}{nt(1)} lds"])
    L.append([f"s_add_u32 m0, s{sWR}, s{sM1}"])
    for n in range(4):
        L.append([f"buffer_load_dwordx4 v{vWO_+n}, s[{sW}:{sW+3}], s{sO2} offen offset:{1024*n}{nt(2)} lds"])
    L.append(["s_add_u32 m0, m0, 4096"])
    L.append([f"buffer_load_dwordx4 v{vWO_+4}, s[{sW}:{sW+3}], s{sO2} offen{nt(2)} lds"])
    return L
def qkv_adv():
    return [f"s_add_u32 s{sO1}, s{sO1}, 128", f"s_add_u32 s{sO2}, s{sO2}, {64*3840}", f"s_cmp_eq_u32 s{sO2}, {640*3840}",
            "s_cselect_b32 s85, 1280, 0", f"s_cselect_b32 s{sO2}, 0, s{sO2}", f"s_sub_u32 s{sO1}, s{sO1}, s85",
            f"s_add_u32 s{sWR}, s{sWR}, {STG}", f"s_cmp_eq_u32 s{sWR}, {4*STG}", f"s_cselect_b32 s{sWR}, 0, s{sWR}"]
def emit_dma_block(A, groups):
    for g in groups:
        for x in g: A(x)
        if "m0" in g[0].split(",")[0]: A("s_nop 0")

NW = 5
vXB, vCUR = 26, 6
vXB = 208
vCUR = 215
def qkv_reads(kk, fs):
    def wr(t):
        return [f"ds_read_b64_tr_b16 {ar(fs+16+4*t+2*j,2)}, v{vCUR+2+t} offset:{kk*10240 + j*1280}" for j in range(2)]
    L = wr(0)
    for st in range(4):
        L.append(f"ds_read_b128 {ar(fs+4*st,4)}, v{vCUR+kk} offset:{st*2048}")
    for t in range(1, 5): L += wr(t)
    return L
def qkv_mfmas(fs, isq):
    L = []
    order = [(t, st) for t in range(5) for st in range(4)]
    if OPT["mo"] & 1: order = [(t, st) for st in range(4) for t in range(5)]
    if OPT["mo"] & 4: order = [(t, st if t % 2 == 0 else 3 - st) for t in range(5) for st in range(4)]
    for t, st in order:
            x = ar(fs + 4*st, 4); w = ar(fs + 16 + 4*t, 4); c = vr(ACC + (st*5+t)*4, 4)
            L.append(f"v_mfma_f32_16x16x32_bf16 {c}, {w}, {x}, {c}" if isq else f"v_mfma_f32_16x16x32_bf16 {c}, {x}, {w}, {c}")
    return L

def qkv_gemm(A, pfx, isq, mid_setup, extras, pres, blk):
    if OPT["xfirst"]:
        emit_dma_block(A, qkv_dma()[:5])
        qkv_setup_w(A, isq)
        emit_dma_block(A, qkv_dma()[5:])
    else:
        emit_dma_block(A, qkv_dma())
    for x in qkv_adv(): A(x)
    stamp(A, pfx + "_iss0")
    mid_setup(A)
    A("v_and_b32 v2, 15, v1")
    A("v_lshrrev_b32 v3, 4, v1")
    A("v_lshrrev_b32 v4, 1, v2")
    A("v_xor_b32 v4, v4, v3")
    A("v_lshlrev_b32 v4, 4, v4")
    A("v_lshl_add_u32 v4, v2, 7, v4")
    A(f"s_lshl_b32 s85, s{sWR_}, 13")
    A(f"v_add_u32 v{vXB}, s85, v4")
    A(f"v_xor_b32 v{vXB+1}, 64, v{vXB}")
    A("v_lshrrev_b32 v4, 2, v2")
    A("v_lshl_add_u32 v4, v3, 3, v4")
    A("v_mul_u32_u24 v4, 320, v4")
    A("v_and_b32 v5, 1, v1")
    A("v_lshl_add_u32 v4, v5, 3, v4")
    A("v_add_u32 v4, 16384, v4")
    A("v_bfe_u32 v5, v1, 1, 1")
    A("v_and_b32 v6, 1, v3")
    A("v_lshlrev_b32 v6, 1, v6")
    A(f"s_mul_i32 s85, s{sWC_}, {10 if isq else 5}")
    for t in range(5):
        if isq: c0, step = [(0, 1), (2, 1), (4, 5), (5, 1), (7, 1)][t]
        else: c0, step = [(0, 1), (2, 1), (4, 6), (11, 1), (13, 1)][t]
        A(f"s_add_u32 s86, s85, {c0}")
        if step == 1: A("v_add_u32 v7, s86, v5")
        else: A(f"v_mad_u32_u24 v7, v5, {step}, s86")
        A("v_xor_b32 v7, v7, v6")
        A(f"v_lshl_add_u32 v{vXB+2+t}, v7, 4, v4")
    zero_acc(A)
    A(f"s_mov_b32 s{sRD}, {2*STG}")
    A(f"s_mov_b32 s{sCNT}, 0")
    upd = [f"v_add_u32 v{vCUR+i}, s{sRD}, v{vXB+i}" for i in range(7)]
    rdadv = [f"s_add_u32 s{sRD}, s{sRD}, {STG}", f"s_cmp_eq_u32 s{sRD}, {4*STG}", f"s_cselect_b32 s{sRD}, 0, s{sRD}"]
    def spread(rd, dma_slots, groups, scal):
        fill = [[] for _ in range(20)]
        k = 0
        for gi in range(9):
            for _ in range(2 if gi < 5 else 1):
                fill[gi].append(rd[k]); k += 1
        g = list(groups)
        for sl in dma_slots:
            if not g: break
            if "m0" in g[0][0].split(",")[0]:
                fill[sl-1] += g.pop(0)
            fill[sl] += g.pop(0)
        return fill, g
    def put_scal(fill, scal, start):
        sc = list(scal); gi = start
        while sc:
            room = 2 - len(fill[gi]) if gi < 19 else len(sc)
            for _ in range(max(room, 0)):
                if sc: fill[gi].append(sc.pop(0))
            gi += 1
    def top_half(wait, groups, pre=None, slots=(3, 7, 11, 15, 19)):
        A(f"s_waitcnt vmcnt({wait}) lgkmcnt(0)")
        if pre: pre(A)
        A("s_barrier")
        fill, rest = spread(qkv_reads(0, FA_), slots, groups, [])
        weave(A, qkv_mfmas(FB_, isq), fill)
        return rest
    def bot_half(adv, tail, groups=[], slots=(2, 6, 10, 13)):
        A("s_waitcnt lgkmcnt(0)")
        fill, rest = spread(qkv_reads(1, FB_), slots, groups, [])
        assert not rest
        put_scal(fill, rdadv + upd, 9)
        put_scal(fill, (qkv_adv() if adv else []) + tail, 14)
        weave(A, qkv_mfmas(FA_, isq), fill)
    for x in upd: A(x)
    stamp(A, pfx + "_setup")
    emit_dma_block(A, qkv_dma())
    for x in qkv_adv(): A(x)
    stamp(A, pfx + "_issued")
    A("s_waitcnt vmcnt(9)")
    A("s_barrier")
    stamp(A, pfx + "_first")
    for x in qkv_reads(0, FA_): A(x)
    emit_dma_block(A, qkv_dma()[:7])
    A(f"s_branch {pfx}_mid")
    A(".p2align 3")
    A.label(f"{pfx}_loop")
    outl = []
    for k, (c, fn) in enumerate(blk):
        A(f"s_cmp_eq_u32 s{sCNT}, {c}")
        A(f"s_cbranch_scc1 {pfx}_blk{k}")
    A.label(f"{pfx}_noblk")
    rest = top_half(9, qkv_dma())
    assert len(rest) == 5
    A.label(f"{pfx}_mid")
    ntl = OPT["ntl"]
    bot_half(True, [f"s_add_u32 s{sCNT}, s{sCNT}, 1", f"s_cmp_lt_u32 s{sCNT}, {ntl if ntl else 8}"], rest)
    A(f"s_cbranch_scc1 {pfx}_loop")
    if ntl:
        keep = OPT["ntq"]; OPT["ntq"] = OPT["ntlq"] if isq else OPT["ntlk"]
        A(".p2align 3")
        A.label(f"{pfx}_loop2")
        rest = top_half(9, qkv_dma())
        bot_half(True, [f"s_add_u32 s{sCNT}, s{sCNT}, 1", f"s_cmp_lt_u32 s{sCNT}, 8"], rest)
        A(f"s_cbranch_scc1 {pfx}_loop2")
        OPT["ntq"] = keep
    for it in (8, 9):
        g, w = extras.get(it, ([], 9 if it == 8 else 0))
        sl = (1, 3, 5, 8, 10, 12, 14, 16, 18) if len(g) > 14 else (2, 5, 8, 11, 14, 17)
        rest = top_half(w, g, pres.get(it), sl)
        bot_half(False, [], rest, sl)
    stamp(A, pfx + "_loop9")
    A("s_waitcnt lgkmcnt(0)")
    if isq:
        for m in qkv_mfmas(FB_, isq): A(m)
        A("s_nop 7")
        stamp(A, pfx + "_loopdone")
    def outline(A):
        for k, (c, fn) in enumerate(blk):
            A.label(f"{pfx}_blk{k}")
            fn(A)
            A(f"s_branch {pfx}_noblk")
    return outline

PAIRS = [(2,0),(3,0),(2,1),(3,1),(4,1),(3,2),(4,2)]
def kv_mask(i):
    te, tc = PAIRS[i]; m = 0
    for l in range(64):
        c = 16*tc + l % 16; e = [-8, 8, 24][te-2] + 4*(l//16)
        if c < 40 and e >= 0 and c//20 == e//20: m |= 1 << l
    return m

KVB = [sum(bin(kv_mask(j)).count("1") for j in range(i)) for i in range(8)]
def kv_rank(A, dst, i, shift, add=0):
    m = kv_mask(i)
    A(f"s_mov_b32 s85, {m & 0xffffffff:#x}")
    A(f"s_mov_b32 s86, {m >> 32:#x}")
    A(f"v_mbcnt_lo_u32_b32 v{dst}, s85, {KVB[i]}" if KVB[i] <= 64 else f"v_mov_b32 v{dst}, {KVB[i]}\nv_mbcnt_lo_u32_b32 v{dst}, s85, v{dst}")
    A(f"v_mbcnt_hi_u32_b32 v{dst}, s86, v{dst}")
    A(f"v_lshlrev_b32 v{dst}, {shift}, v{dst}")
    if add: A(f"v_add_u32 v{dst}, {add}, v{dst}")
vKR = 246
def phi4(A, b, T, dst=None):
    dst = b if dst is None else dst
    A(f"v_pk_mul_f32 {vr(T,2)}, {vr(b,2)}, s[{sL2}:{sL2+1}]")
    A(f"v_pk_mul_f32 {vr(T+2,2)}, {vr(b+2,2)}, s[{sL2}:{sL2+1}]")
    for i in range(4): A(f"v_exp_f32 v{T+i}, v{T+i} clamp")
    for i in range(4): A(f"v_max_f32 v{dst+i}, {EPS6:#x}, v{b+i}")
    A(f"v_pk_add_f32 {vr(dst,2)}, {vr(dst,2)}, {vr(T,2)}")
    A(f"v_pk_add_f32 {vr(dst+2,2)}, {vr(dst+2,2)}, {vr(T+2,2)}")
sL2 = 88
vEW, vEZ, vER, sKVS = 250, 251, 252, 26
def kv_esetup(A):
    A(f"s_lshl_b32 s85, s{sBp}, 1")
    A(f"s_add_u32 s85, s85, s{sWC_}")
    A("s_lshl_b32 s86, s85, 4")
    A(f"s_add_u32 s86, s86, s{sA}")
    A("s_lshl_b32 s87, s86, 8")
    A(f"s_mul_i32 s{sKVS}, s86, 3200")
    A(f"s_sub_u32 s87, s87, s{sKVS}")
    A(f"s_add_u32 s87, s87, {WS_ZP - WS_KVP:#x}")
    A("s_lshr_b32 s87, s87, 4")
    A(f"s_add_u32 s{sKVS}, s{sKVS}, {WS_KVP:#x}")
    A("v_mov_b32 v2, 0x7ff00000")
    for k in range(4):
        mA = kv_mask(k); mB = kv_mask(4+k) if k < 3 else 0xffff
        A(f"s_cmp_eq_u32 s{sWR_}, 0")
        A(f"s_mov_b32 s92, {mB & 0xffffffff:#x}")
        A(f"s_cselect_b32 s92, {mA & 0xffffffff:#x}, s92")
        A(f"s_mov_b32 s93, {mB >> 32:#x}")
        A(f"s_cselect_b32 s93, {mA >> 32:#x}, s93")
        if k < 3: A(f"s_mov_b32 s88, {KVB[4+k]}")
        A(f"s_cselect_b32 s88, {KVB[k]}, s{88 if k < 3 else 87}")
        A(f"v_mov_b32 v{vKR+k}, s88")
        A(f"v_mbcnt_lo_u32_b32 v{vKR+k}, s92, v{vKR+k}")
        A(f"v_mbcnt_hi_u32_b32 v{vKR+k}, s93, v{vKR+k}")
        A(f"v_lshlrev_b32 v{vKR+k}, 4, v{vKR+k}")
        A(f"v_cndmask_b32 v{vKR+k}, v2, v{vKR+k}, s[92:93]")
    A(f"s_mul_i32 s85, s{sWAVE}, 8448")
    A(f"s_add_u32 s85, s85, {LDS_RED}")
    A(f"v_add_u32 v{vEW}, s85, v{vB0}")
    A(f"v_lshl_add_u32 v{vEZ}, v1, 2, s85")
    A(f"s_mul_i32 s85, s{sWC_}, 8448")
    A(f"s_lshl_b32 s86, s{sWR_}, 12")
    A("s_add_u32 s85, s85, s86")
    A(f"s_add_u32 s85, s85, {LDS_RED}")
    A(f"v_add_u32 v{vER}, s85, v{vB0}")
    A("v_and_b32 v2, 15, v1")
    A(f"v_cmp_gt_u32 s[{sMK}:{sMK+1}], 8, v2")
    A("v_cmp_lt_u32 s[64:65], 15, v1")
    A("v_cmp_lt_u32 s[66:67], 31, v1")
def kv_estream():
    PB, KA, ONE, TMP = 128, 168, 208, 212
    E = [Asm(), Asm(), Asm(), Asm()]
    A = E[0]
    A(f"s_mov_b32 s{sL2}, {LOG2E:#x}")
    A(f"s_mov_b32 s{sL2+1}, {LOG2E:#x}")
    for i in range(4): A(f"v_mov_b32 v{ONE+i}, 0x3f803f80")
    for st in range(4):
        A = E[st // 2]
        for t in range(3):
            b = ACC + (st*5+t)*4
            if t < 2: phi4(A, b, TMP)
            else:
                phi4(A, b, TMP, TMP+4)
                for i in range(4): A(f"v_cndmask_b32 v{b+i}, v{b+i}, v{TMP+4+i}, s[{sMK}:{sMK+1}]")
        for t in range(5):
            b = ACC + (st*5+t)*4
            d = PB + (t*2 + st//2)*4 + (st & 1)*2
            A(f"v_cvt_pk_bf16_f32 v{d}, v{b}, v{b+1}")
            A(f"v_cvt_pk_bf16_f32 v{d+1}, v{b+2}, v{b+3}")
        if st & 1:
            sp = st // 2
            A("s_nop 1")
            for tc in range(3):
                c = vr(KA+4*(7+tc), 4)
                A(f"v_mfma_f32_16x16x32_bf16 {c}, {vr(ONE,4)}, {vr(PB+(tc*2+sp)*4,4)}, {c if sp else 0}")
            for i, (te, tc) in enumerate(PAIRS):
                c = vr(KA+4*i, 4)
                A(f"v_mfma_f32_16x16x32_bf16 {c}, {vr(PB+(te*2+sp)*4,4)}, {vr(PB+(tc*2+sp)*4,4)}, {c if sp else 0}")
    A = E[1]
    A("s_nop 0")
    A(f"v_cndmask_b32 v{KA+28}, v{KA+28}, v{KA+32}, s[64:65]")
    A(f"v_cndmask_b32 v{KA+28}, v{KA+28}, v{KA+36}, s[66:67]")
    A(f"ds_write_b32 v{vEZ}, v{KA+28} offset:7168")
    for i in range(7): A(f"ds_write_b128 v{vEW}, {vr(KA+4*i,4)} offset:{1024*i}")
    A = E[2]
    for k in range(4):
        A(f"ds_read_b128 {vr(PB+8*k,4)}, v{vER} offset:{1024*k}")
        A(f"ds_read_b128 {vr(PB+8*k+4,4)}, v{vER} offset:{1024*k + 16896}")
    A = E[3]
    A("s_waitcnt lgkmcnt(0)")
    for k in range(4):
        for i in (0, 2): A(f"v_pk_add_f32 {vr(PB+8*k+i,2)}, {vr(PB+8*k+i,2)}, {vr(PB+8*k+4+i,2)}")
    for k in range(4):
        A(f"buffer_store_dwordx4 {vr(PB+8*k,4)}, v{vKR+k}, s[{sWS}:{sWS+3}], s{sKVS} offen sc1")
    return [e.lines for e in E]

def w1_setup(A, locbase, vreg):
    A(f"s_sub_u32 s88, s82, {locbase}")
    A("s_lshl_b32 s88, s88, 2")
    A(f"s_add_u32 s88, s88, s{sWAVE}")
    A(f"v_and_b32 v{vreg}, 31, v1")
    A(f"v_mul_u32_u24 v{vreg}, 3072, v{vreg}")
    A("v_lshrrev_b32 v3, 5, v1")
    A(f"v_lshl_add_u32 v{vreg}, v3, 9, v{vreg}")
    A(f"s_mul_i32 s85, s88, {32*3072}")
    A("s_lshl_b32 s86, s83, 7")
    A("s_add_u32 s85, s85, s86")
    A(f"s_mul_i32 s86, s84, {1024*3072}")
    A("s_add_u32 s26, s86, s85")
    A("s_xor_b32 s87, s84, 1")
    A(f"s_mul_i32 s87, s87, {1024*3072}")
    A("s_add_u32 s27, s87, s85")

def w2_prefetch(A, locbase, parts):
    A(f"s_sub_u32 s85, s82, {locbase}")
    A("s_lshl_b32 s85, s85, 2")
    A(f"s_add_u32 s85, s85, s{sWAVE}")
    if OPT["fmap"] and OPT["w2c"] != 2:
        A("v_lshrrev_b32 v2, 2, v1")
        A("v_lshlrev_b32 v2, 12, v2")
        A("v_and_b32 v3, 3, v1")
        A(f"v_lshl_add_u32 v2, v3, {10 if OPT['fmap'] == 1 else 7}, v2")
        A(f"s_mul_i32 s85, s85, {48*4096}")
        A(f"s_lshl_b32 s86, s81, {7 if OPT['fmap'] == 1 else 9}")
        A("s_add_u32 s85, s85, s86")
        if parts[0]: A(f"s_add_u32 s85, s85, {16*4096*parts[0]}")
        for i in parts:
            A(f"buffer_load_dword a255, v2, s[{sW2}:{sW2+3}], s85 offen")
            if i != parts[-1]: A(f"s_add_u32 s85, s85, {16*4096}")
        return
    if OPT["w2c"]:
        A("s_lshl_b32 s86, s81, 5")
        A("s_add_u32 s85, s85, s86")
        A("s_lshl_b32 s85, s85, 13")
        if parts[0]: A(f"s_add_u32 s85, s85, {(8192*256)*parts[0]}")
        for i in parts:
            A(f"buffer_load_dword a255, v15, s[{sW2}:{sW2+3}], s85 offen")
            if i != parts[-1]: A(f"s_add_u32 s85, s85, {8192*256}")
        return
    A("v_lshrrev_b32 v2, 3, v1")
    A("v_lshlrev_b32 v2, 12, v2")
    A("v_and_b32 v3, 7, v1")
    A("v_lshl_add_u32 v2, v3, 7, v2")
    A("s_mul_i32 s85, s85, 24")
    A("s_mul_i32 s86, s84, 768")
    A("s_add_u32 s85, s85, s86")
    A(f"s_add_u32 s85, s85, {8*parts[0]}")
    A("s_lshl_b32 s85, s85, 12")
    A("s_lshl_b32 s86, s83, 10")
    A("s_add_u32 s85, s85, s86")
    for i in parts:
        A(f"buffer_load_dword a255, v2, s[{sW2}:{sW2+3}], s85 offen")
        if i != parts[-1]: A(f"s_add_u32 s85, s85, {8*4096}")

QCB = [0, 16, 32, 40, 56]
QDP = [(0,0),(0,1),(1,0),(1,1),(1,2),(2,1),(2,2),(2,4),(3,3),(3,4),(4,2),(4,3),(4,4)]
sMA, sZO, sKO, sPQ, sWOo, sGo = 56, 58, 59, 64, 67, 23
vWOd, vWOt, vZA, vKP, vGo, vT1 = 248, 246, 252, 245, 25, 244
MSK = 194
def q_setup(A):
    T = 128
    A(f"s_mul_i32 s{sWOo}, s{sU}, {40*1280}")
    A(f"s_mul_i32 s86, s{sNR}, 320")
    A(f"s_add_u32 s{sWOo}, s{sWOo}, s86")
    A(f"s_lshl_b32 s86, s{sWAVE}, 8")
    for n in range(4):
        A(f"v_add_u32 v2, {64*n}, v1")
        A("v_add_u32 v2, s86, v2")
        A("v_mul_u32_u24 v3, 3277, v2")
        A("v_lshrrev_b32 v3, 16, v3")
        A("v_mul_u32_u24 v4, 20, v3")
        A("v_sub_u32 v4, v2, v4")
        A("v_mul_u32_u24 v3, 1280, v3")
        A(f"v_lshl_add_u32 v{vWOd+n}, v4, 4, v3")
        if n: A(f"v_subrev_u32 v{vWOd+n}, {1024*n}, v{vWOd+n}")
    A("v_and_b32 v3, 15, v1")
    A("v_lshrrev_b32 v4, 4, v1")
    A(f"v_lshlrev_b32 v{vGo}, 2, v3")
    A(f"s_lshl_b32 s86, s{sA}, 9")
    A(f"s_lshl_b32 s87, s{sWR_}, 8")
    A("s_add_u32 s86, s86, s87")
    A(f"s_add_u32 s{sGo}, s86, {WS_G:#x}")
    A("v_bfe_u32 v5, v1, 1, 2")
    A(f"s_lshl_b32 s85, s{sWAVE}, 2")
    A("v_add_lshl_u32 v5, v5, s85, 3")
    A("v_and_b32 v6, 1, v1")
    A(f"s_lshl_b32 s85, s{sBp}, 1")
    A("v_add3_u32 v5, v5, v6, s85")
    A(f"v_lshlrev_b32 v{vKP}, 7, v5")
    A("v_lshrrev_b32 v5, 2, v3")
    A("v_lshl_add_u32 v5, v4, 2, v5")
    A("v_and_b32 v6, 7, v5")
    A("v_mul_u32_u24 v6, 320, v6")
    A("v_mul_u32_u24 v5, 320, v5")
    A("v_and_b32 v7, 3, v1")
    A("v_lshlrev_b32 v7, 3, v7")
    A(f"s_lshl_b32 s86, s{sWAVE}, 5")
    A("v_add_u32 v7, s86, v7")
    A(f"v_add_u32 v{vWOt}, v6, v7")
    A(f"v_add_u32 v{vWOt+1}, v5, v7")
    A(f"s_lshr_b32 s86, s{sU}, 2")
    A("s_mul_i32 s86, s86, 5")
    A(f"s_bfe_u32 s87, s{sU}, 0x10001")
    A(f"s_and_b32 s88, s{sU}, 1")
    A("s_mul_i32 s89, s87, 3")
    A("s_add_u32 s89, s89, s88")
    A("s_add_u32 s89, s89, s86")
    A(f"s_mul_i32 s{sMA}, s89, 40960")
    A("s_add_u32 s86, s86, 2")
    A(f"s_mul_i32 s{sMA+1}, s86, 40960")
    A("s_lshl_b32 s87, s87, 3")
    A("s_lshl_b32 s88, s88, 9")
    A(f"s_add_u32 s{sMA+1}, s{sMA+1}, s87")
    A(f"s_add_u32 s{sMA+1}, s{sMA+1}, s88")
    A(f"s_mul_i32 s86, s{sNR}, 10240")
    A(f"s_lshl_b32 s87, s{sWAVE}, 10")
    A("s_add_u32 s86, s86, s87")
    A(f"s_add_u32 s86, s86, {WS_M:#x}")
    A(f"s_add_u32 s{sMA}, s{sMA}, s86")
    A(f"s_add_u32 s{sMA+1}, s{sMA+1}, s86")
    A(f"s_lshl_b32 s85, s{sA}, 1")
    A(f"s_add_u32 s85, s85, s{sWR_}")
    A("s_mul_i32 s85, s85, 20")
    A(f"s_mul_i32 s86, s{sBp}, 5")
    A("s_add_u32 s85, s85, s86")
    A("s_lshl_b32 s85, s85, 12")
    A(f"s_add_u32 s85, s85, {WS_PQ:#x}")
    A(f"s_mul_i32 s86, s{sWC_}, {3*4096}")
    A(f"s_add_u32 s{sPQ}, s86, s85")
    A(f"s_add_u32 s{sPQ+1}, s{sPQ}, 4096")
    A(f"s_lshl_b32 s88, s{sWC_}, 3")
    A("s_add_u32 s88, s88, s85")
    A(f"s_add_u32 s{sPQ+2}, s88, 8192")
    A(f"v_add_u32 v5, s{sWAVE}, v1")
    A(f"s_mul_i32 s85, s{sWAVE}, 9")
    A("v_add_u32 v5, s85, v5")
    A("v_lshrrev_b32 v6, 2, v5")
    A("v_and_b32 v5, 3, v5")
    A("v_lshlrev_b32 v5, 7, v5")
    A("v_lshl_add_u32 v5, v6, 10, v5")
    A(f"s_sub_u32 s85, s{sMA+1}, s87")
    A("s_and_b32 s85, s85, 0xffffff80")
    A("v_add_u32 v5, s85, v5")
    A(f"s_and_b32 s85, s{sPQ+2}, 0xffffff80")
    A(f"s_lshl_b32 s86, s{sWC_}, 11")
    A("s_add_u32 s85, s85, s86")
    A("v_lshlrev_b32 v6, 7, v3")
    A("v_add_u32 v6, s85, v6")
    A("v_cmp_gt_u32 vcc, 10, v1")
    A("s_nop 1")
    A(f"v_cndmask_b32 v{vT1}, v6, v5, vcc")
    A(f"v_mov_b32 v{T}, {LDS_RED + 1600}")
    for i in range(7):
        kv_rank(A, 26+i, i, 3, LDS_RED)
        A(f"s_mov_b32 s92, s85")
        A(f"s_mov_b32 s93, s86")
        A(f"v_cndmask_b32 v{26+i}, v{T}, v{26+i}, s[92:93]")
    cb = QCB
    for t in range(5):
        A(f"v_lshl_add_u32 v{T+t}, v4, 2, {cb[t]}")
        A(f"v_add_u32 v{T+5+t}, {cb[t]}, v3")
        if t == 2:
            A("v_lshrrev_b32 v5, 1, v4")
            A(f"v_lshl_add_u32 v{T+t}, v5, 5, v{T+t}")
            A("v_mul_u32_u24 v7, 4064, v5")
            A("v_lshrrev_b32 v5, 3, v3")
            A(f"v_lshl_add_u32 v{T+5+t}, v5, 5, v{T+5+t}")
        A(f"v_mul_u32_u24 v{T+t}, 205, v{T+t}")
        A(f"v_lshrrev_b32 v{T+t}, 12, v{T+t}")
        A(f"v_mul_u32_u24 v{T+5+t}, 205, v{T+5+t}")
        A(f"v_lshrrev_b32 v{T+5+t}, 12, v{T+5+t}")
    for k, (tp, t) in enumerate(QDP):
        A(f"v_cmp_eq_u32 vcc, v{T+t}, v{T+5+tp}")
        A("s_nop 1")
        A(f"v_cndmask_b32 v{MSK+k}, 0, -1, vcc")
    A("v_lshlrev_b32 v5, 8, v3")
    A(f"v_lshl_add_u32 v{vZA}, v4, 4, v5")
    A(f"v_add_u32 v{vZA+2}, v7, v{vZA}")
    A(f"v_add_u32 v{vZA+1}, 4096, v{vZA}")
    A(f"s_lshl_b32 s86, s{sBp}, 14")
    A(f"s_lshl_b32 s87, s{sWC_}, 13")
    A("s_add_u32 s86, s86, s87")
    A(f"s_add_u32 s{sZO}, s86, {WS_ZP:#x}")
    A(f"s_mul_i32 s89, s{sU}, {16*3200}")
    A(f"s_mul_i32 s87, s{sWAVE}, 800")
    A("s_add_u32 s87, s87, s89")
    A(f"s_add_u32 s{sKO}, s87, {WS_KVP:#x}")
    if OPT["qw2"]:
        A("s_sub_u32 s85, s82, 16")
        A("s_lshl_b32 s85, s85, 2")
        A(f"s_add_u32 s85, s85, s{sWAVE}")
        A("s_lshl_b32 s86, s81, 5")
        A("s_add_u32 s85, s85, s86")
        A("s_lshl_b32 s85, s85, 13")
        A(f"s_add_u32 s99, s85, {8192*256*(3 - OPT['qw2'])}")
def q_pf_only(A):
    for k in range(3 - OPT["qw1n"], 3):
        A(f"buffer_load_dword a255, v12, s[{sW1}:{sW1+3}], s26 offen offset:{1024*k}")
def q_loop_pf(A):
    if OPT["qw1"] == 0:
        A("s_mov_b32 exec_lo, 0xffff03ff")
        A("s_mov_b32 exec_hi, 0")
        A(f"buffer_load_dword a255, v{vT1}, s[{sWS}:{sWS+3}], 0 offen sc1")
        A("s_mov_b64 exec, -1")
        return
    for k in range(3 - OPT["qw1n"], 3):
        A(f"buffer_load_dword a255, v12, s[{sW1}:{sW1+3}], s26 offen offset:{1024*k}")
    if OPT["qw1b"]:
        for k in range(3): A(f"buffer_load_dword a255, v12, s[{sW1}:{sW1+3}], s27 offen offset:{1024*k}")
    for k in range(OPT["qw2"]):
        A(f"buffer_load_dword a255, v15, s[{sW2}:{sW2+3}], s99 offen")
        A(f"s_add_u32 s99, s99, {8192*256}")
    if OPT["touch"] and not OPT["qdefer"]:
        A("s_mov_b32 exec_lo, 0xffff03ff")
        A("s_mov_b32 exec_hi, 0")
        A(f"buffer_load_dword a255, v{vT1}, s[{sWS}:{sWS+3}], 0 offen sc1")
        A("s_mov_b64 exec, -1")
def q_extras():
    g8 = [[poll_ld(vPO, 24)], [f"s_lshl_b32 m0, s{sWAVE}, 12"]] + [[f"buffer_load_dwordx4 v{vWOd+n}, s[{sWO}:{sWO+3}], s{sWOo} offen offset:{1024*n} lds"] for n in range(4)]
    g9 = [[f"buffer_load_dword v{8+st}, v{vGo}, s[{sWS}:{sWS+3}], s{sGo} offen offset:{64*st} sc1"] for st in range(4)]
    return {8: (g8, 9), 9: (g9, 0)}

def q_epilogue(A):
    PK, Z, AF, ZP, G = 128, 168, 168, 16, 8
    KA_, DEN, OUT, TMP = 48, 204+0, 224, 112
    WBa, KVa = 0, 20
    cb, dp = QCB, QDP
    A(f"s_mov_b32 s24, {FL_KV:#x}")
    for i in range(3):
        A(f"ds_read_b64_tr_b16 {ar(WBa+6*i,2)}, v{vWOt} offset:{128*i}")
        A(f"ds_read_b64_tr_b16 {ar(WBa+6*i+2,2)}, v{vWOt+1} offset:{128*i + 8*320}")
        A(f"ds_read_b64_tr_b16 {ar(WBa+6*i+4,2)}, v{vWOt+1} offset:{128*i + 24*320}")
    A(f"v_mov_b32 v2, {LDS_RED + 1600}")
    A("v_mov_b64 v[4:5], 0")
    A("ds_write_b64 v2, v[4:5]")
    A(f"s_mov_b32 s{sL2}, {LOG2E:#x}")
    A(f"s_mov_b32 s{sL2+1}, {LOG2E:#x}")
    for k, b in enumerate(range(ACC, ACC+80, 4)):
        if k == 12: A(poll_ld(vKP, 24))
        phi4(A, b, 208)
        A(f"v_cvt_pk_bf16_f32 v{PK+2*k}, v{b}, v{b+1}")
        A(f"v_cvt_pk_bf16_f32 v{PK+2*k+1}, v{b+2}, v{b+3}")
    stamp(A, "q_pre")
    A("s_waitcnt vmcnt(0) lgkmcnt(0)")
    poll_check(A, "pkv", vKP, 24)
    A("s_barrier")
    stamp(A, "q_kvok")
    for t in range(5):
        A(f"buffer_load_dwordx4 {vr(Z+4*t,4)}, v{vZA+[0,0,2,1,1][t]}, s[{sWS}:{sWS+3}], s{sZO} offen offset:{[0,64,128,0,64][t]} sc1")
    kvl = []
    for rb in range(0, 16, 2):
        kvl.append(["s_mov_b32 exec_hi, 0x3ffff",
                    f"buffer_load_dwordx4 {vr(KA_+4*rb,4)}, v{vB0}, s[{sWS}:{sWS+3}], s{sKO} offen sc1",
                    f"buffer_load_dwordx4 {vr(KA_+4*rb+4,4)}, v{vB0}, s[{sWS}:{sWS+3}], s{sKO} offen offset:3200 sc1",
                    "s_mov_b32 exec_hi, -1", f"s_add_u32 s{sKO}, s{sKO}, 6400"])
    def kv(n):
        for _ in range(n):
            if kvl:
                for x in kvl.pop(0): A(x)
    kv(2)
    A("s_waitcnt vmcnt(4)")
    stamp(A, "q_z")
    for rot in (8, 4, 2, 1):
        kv(1)
        for i in range(20):
            A(f"v_add_f32_dpp v{Z+i}, v{Z+i}, v{Z+i} row_ror:{rot} row_mask:0xf bank_mask:0xf")
    for i in range(10): A(f"v_cvt_pk_bf16_f32 v{ZP+i}, v{Z+2*i}, v{Z+2*i+1}")
    kv(2)
    for k, (tp, t) in enumerate(dp):
        A(f"v_and_b32 v{AF+2*k}, v{MSK+k}, v{ZP+2*t}")
        A(f"v_and_b32 v{AF+2*k+1}, v{MSK+k}, v{ZP+2*t+1}")
    A("s_nop 0")
    DEN2 = 224
    def den(st, Dn):
        seen = set()
        for k, (tp, t) in enumerate(dp):
            c = vr(Dn + 4*tp, 4)
            A(f"v_mfma_f32_16x16x16_bf16 {c}, {vr(AF+2*k,2)}, {vr(PK+(st*5+t)*2,2)}, {c if tp in seen else 0}")
            seen.add(tp)
    den(0, DEN)
    for st in range(4):
        Dn = DEN if (st & 1) == 0 else DEN2
        o = OUT
        U = TMP + 10
        if st < 3: den(st + 1, DEN2 if (st & 1) == 0 else DEN)
        else: A("s_nop 7")
        kv(OPT["kvr"])
        for tp in range(5): A(f"v_add_f32 v{TMP+2*tp}, {EPS6:#x}, v{Dn+4*tp}")
        for tp in range(5): A(f"v_rcp_f32 v{TMP+2*tp}, v{TMP+2*tp}")
        A("s_nop 0")
        for tp in range(5): A(f"v_mul_f32 v{TMP+2*tp}, v{TMP+2*tp}, v{G+st}")
        for tp in range(5):
            p = PK + (st*5+tp)*2
            if tp == 2: kv(OPT["kvr"])
            A(f"v_lshlrev_b32 v{U}, 16, v{p}")
            A(f"v_and_b32 v{U+1}, 0xffff0000, v{p}")
            A(f"v_lshlrev_b32 v{U+2}, 16, v{p+1}")
            A(f"v_and_b32 v{U+3}, 0xffff0000, v{p+1}")
            A(f"v_pk_mul_f32 {vr(U,2)}, {vr(U,2)}, {vr(TMP+2*tp,2)} op_sel_hi:[1,0]")
            A(f"v_pk_mul_f32 {vr(U+2,2)}, {vr(U+2,2)}, {vr(TMP+2*tp,2)} op_sel_hi:[1,0]")
            A(f"v_cvt_pk_bf16_f32 v{p}, v{U}, v{U+1}")
            A(f"v_cvt_pk_bf16_f32 v{p+1}, v{U+2}, v{U+3}")
        p = PK + st*10
        A(f"buffer_store_dwordx4 {vr(p,4)}, v{vB0}, s[{sWS}:{sWS+3}], s{sPQ} offen offset:{1024*st} sc1")
        A(f"buffer_store_dwordx4 {vr(p+6,4)}, v{vB0}, s[{sWS}:{sWS+3}], s{sPQ+1} offen offset:{1024*st} sc1")
        A(f"buffer_store_dwordx2 {vr(p+4,2)}, v{vB0}, s[{sWS}:{sWS+3}], s{sPQ+2} offen offset:{1024*st} sc1")
    assert not kvl
    stamp(A, "q_pq")
    A("s_waitcnt vmcnt(12)")
    stamp(A, "q_kv")
    for w in (32, 16, 8, 4):
        for i in range(0, w, 2):
            A(f"v_pk_add_f32 {vr(KA_+i,2)}, {vr(KA_+i,2)}, {vr(KA_+w+i,2)}")
    A(f"s_mul_i32 s86, s{sWAVE}, 400")
    A(f"s_add_u32 s86, s86, {LDS_RED}")
    A("v_lshlrev_b32 v7, 3, v1")
    A("v_add_u32 v7, s86, v7")
    A(f"v_cvt_pk_bf16_f32 v{KA_}, v{KA_}, v{KA_+1}")
    A(f"v_cvt_pk_bf16_f32 v{KA_+1}, v{KA_+2}, v{KA_+3}")
    A("s_mov_b32 exec_hi, 0x3ffff")
    A(f"ds_write_b64 v7, {vr(KA_,2)}")
    A("s_mov_b32 exec_hi, -1")
    A("s_waitcnt lgkmcnt(0)")
    A("s_barrier")
    stamp(A, "q_bar")
    for i in range(7): A(f"ds_read_b64 {ar(KVa+2*i,2)}, v{26+i}")
    A("s_waitcnt lgkmcnt(0)")
    MD = 64
    for i in range(3):
        seen = set()
        for k, (te, tc) in enumerate(PAIRS):
            c = vr(MD + (i*3+tc)*4, 4)
            A(f"v_mfma_f32_16x16x16_bf16 {c}, {ar(KVa+2*k,2)}, {ar(WBa+6*i+2*(te-2),2)}, {c if tc in seen else 0}")
            seen.add(tc)
    for i in range(3):
        if i == 2:
            A(f"s_cmp_ge_u32 s{sWAVE}, 2")
            A("s_cbranch_scc1 q_m_done")
            A("s_nop 2")
        b = MD + i*12
        for k in range(6): A(f"v_cvt_pk_bf16_f32 v{b+k}, v{b+2*k}, v{b+2*k+1}")
        A(f"buffer_store_dwordx4 {vr(b,4)}, v{vB0}, s[{sWS}:{sWS+3}], s{sMA} offen sc1")
        A("s_mov_b32 exec_hi, 0")
        A(f"buffer_store_dwordx2 {vr(b+4,2)}, v{vB0}, s[{sWS}:{sWS+3}], s{sMA+1} offen sc1")
        A("s_mov_b32 exec_hi, -1")
        A(f"s_add_u32 s{sMA}, s{sMA}, 4096")
        A(f"s_add_u32 s{sMA+1}, s{sMA+1}, 4096")
    A.label("q_m_done")
    stamp(A, "q_mdone")

def tlb_touch(A):
    for ptr, size in ((26, WS_SIZE), (22, 2048*1280), (16, 1536*4096), (12, 2048*3072), (8, 640*1280), (14, 4), (18, 4)):
        A(f"s_mov_b64 s[86:87], s[{ptr}:{ptr+1}]")
        offs = sorted(set(list(range(0, size, 1 << 21)) + [size - 4]))
        prev = 0
        for o in offs:
            if o - prev >= (1 << 20):
                A(f"s_add_u32 s86, s86, {o - prev:#x}")
                A("s_addc_u32 s87, s87, 0")
                prev = o
            A(f"s_load_dword s98, s[86:87], {o - prev:#x}")
def ln_role(A, after_loads, ne):
    X, GW, D = 48, 88, 128
    A("v_lshrrev_b32 v2, 3, v1")
    A(f"s_lshl_b32 s85, s{sWAVE}, 3")
    A("v_add_u32 v2, s85, v2")
    A("v_and_b32 v3, 7, v1")
    A("v_lshlrev_b32 v3, 4, v3")
    A("v_mul_u32_u24 v4, 1280, v2")
    A("v_add_u32 v4, v4, v3")
    A(f"s_mul_i32 s85, s{sA}, {32*1280}")
    A("s_waitcnt lgkmcnt(0)"); srds(A, ["X", "GW"])
    LN_TLB = True
    for i in range(10):
        A(f"buffer_load_dwordx4 {vr(X+4*i,4)}, v4, s[{sX}:{sX+3}], s85 offen offset:{128*i}")
    for i in range(10):
        A(f"buffer_load_dwordx4 {vr(GW+4*i,4)}, v3, s[{sGW}:{sGW+3}], 0 offen offset:{128*i}")
    A("v_mul_u32_u24 v16, 1312, v2")
    A("v_add_u32 v16, v16, v3")
    A("v_lshlrev_b32 v17, 2, v2")
    if OPT["tlb"] == 1: tlb_touch(A)
    after_loads(A)
    A("v_mov_b32 v5, 0x3f803f80")
    for i in range(4): A(f"v_mov_b32 v{8+i}, 0")
    A(f"s_waitcnt vmcnt({10+ne})")
    stamp(A, "ln_first")
    for i in range(40):
        A(f"v_dot2_f32_bf16 v{8+(i&1)}, v{X+i}, v5, v{8+(i&1)}")
    A(f"s_waitcnt vmcnt({ne})")
    for i in range(40):
        A(f"v_dot2_f32_bf16 v{10+(i&1)}, v{X+i}, v{GW+i}, v{10+(i&1)}")
    A("s_nop 2")
    A("v_add_f32 v8, v8, v9")
    A("v_add_f32 v10, v10, v11")
    def red8(r):
        for m in ("quad_perm:[1,0,3,2]", "quad_perm:[2,3,0,1]", "row_half_mirror"):
            A("s_nop 1")
            for x in r: A(f"v_add_f32_dpp v{x}, v{x}, v{x} {m} row_mask:0xf bank_mask:0xf")
    red8([8, 10])
    A(f"v_mul_f32 v8, {0xBACCCCCD:#x}, v8")
    A("v_mov_b32 v9, v8")
    A(f"v_mul_f32 v10, {LOG2E | 0x80000000:#x}, v10")
    A("v_exp_f32 v10, v10")
    for i in range(40):
        A(f"v_lshlrev_b32 v{D+2*i}, 16, v{X+i}")
        A(f"v_and_b32 v{D+2*i+1}, 0xffff0000, v{X+i}")
    A("v_add_f32 v10, 1.0, v10")
    A("v_rcp_f32 v10, v10")
    for i in range(40):
        A(f"v_pk_add_f32 {vr(D+2*i,2)}, {vr(D+2*i,2)}, v[8:9]")
    A("v_pk_mul_f32 v[18:19], v[128:129], v[128:129]")
    A("v_pk_mul_f32 v[20:21], v[130:131], v[130:131]")
    for i in range(2, 40):
        a = 18 + 2*(i & 1)
        A(f"v_pk_fma_f32 {vr(a,2)}, {vr(D+2*i,2)}, {vr(D+2*i,2)}, {vr(a,2)}")
    A("v_pk_add_f32 v[18:19], v[18:19], v[20:21]")
    A("ds_write_b32 v17, v10 offset:49152")
    A("v_add_f32 v18, v18, v19")
    red8([18])
    A(f"v_mov_b32 v19, {0x3727C5AC:#x}")
    A(f"v_fmac_f32 v19, {0x3ACCCCCD:#x}, v18")
    A("v_rsq_f32 v18, v19")
    A("s_nop 0")
    A("v_mov_b32 v19, v18")
    for i in range(40):
        A(f"v_pk_mul_f32 {vr(D+2*i,2)}, {vr(D+2*i,2)}, v[18:19]")
        A(f"v_cvt_pk_bf16_f32 v{X+i}, v{D+2*i}, v{D+2*i+1}")
        if (i & 3) == 3:
            A(f"ds_write_b128 v16, {vr(X+i-3,4)} offset:{128*(i//4)}")
    A("v_lshrrev_b32 v2, 2, v1")
    A("v_mul_u32_u24 v2, 1312, v2")
    A("v_and_b32 v3, 3, v1")
    A("v_lshl_add_u32 v2, v3, 3, v2")
    A(f"s_mul_i32 s85, s{sWAVE}, 320")
    A("v_add_u32 v2, s85, v2")
    A(f"s_mul_i32 s85, s{sA}, 40960")
    A(f"s_mul_i32 s86, s{sWAVE}, 10240")
    A("s_add_u32 s85, s85, s86")
    A("s_add_u32 s86, s85, 4096")
    A("s_add_u32 s87, s85, 8192")
    A("v_lshlrev_b32 v17, 2, v1")
    A(f"s_lshl_b32 s88, s{sA}, 7")
    A(f"s_add_u32 s88, s88, {WS_G:#x}")
    A("s_waitcnt lgkmcnt(0)")
    A("s_barrier")
    A(f"s_cmp_lg_u32 s{sWAVE}, 3")
    A("s_cbranch_scc1 ln_ng")
    A("ds_read_b32 v10, v17 offset:49152")
    A("s_waitcnt lgkmcnt(0)")
    A("s_mov_b32 exec_hi, 0")
    A(f"buffer_store_dword v10, v17, s[{sWS}:{sWS+3}], s88 offen sc1")
    A("s_mov_b32 exec_hi, -1")
    A.label("ln_ng")
    for t in range(10):
        A(f"ds_read_b64_tr_b16 {vr(D+4*t,2)}, v2 offset:{32*t}")
        A(f"ds_read_b64_tr_b16 {vr(D+4*t+2,2)}, v2 offset:{32*t + 16*1312}")
        if t == 6: A("s_waitcnt lgkmcnt(6)")
    for t in range(10):
        A(f"s_waitcnt lgkmcnt({min(2*(9-t), 6)})")
        A(f"buffer_store_dwordx4 {vr(D+4*t,4)}, v{vB0}, s[{sWS}:{sWS+3}], s{85 + t//4} offen offset:{1024*(t&3)} sc1")

def c_adv1(): return [f"s_add_u32 s{sC1}, s{sC1}, s{sCST}", f"s_cmp_eq_u32 s{sC1}, s{sCE1}", f"s_cselect_b32 s{sC1}, s{sCB1}, s{sC1}"]
def c_adv2(): return [f"s_add_u32 s{sC2}, s{sC2}, 40960", f"s_cmp_eq_u32 s{sC2}, s{sCE2}", f"s_cselect_b32 s{sC2}, s{sCB2}, s{sC2}"]
def c_wdma(slot):
    L = [[f"s_add_u32 m0, s{sCM0}, {4096*slot}"]]
    for q in range(4):
        L.append([f"buffer_load_dwordx4 v{vWS_+q}, s[{sCW}:{sCW+3}], s{sC1} offen offset:{1024*q} lds"])
    return L
def c_bload(slot, n):
    return f"buffer_load_dwordx4 {ar(BR+20*slot+4*n,4)}, v{vB0 if n < 4 else vB1}, s[{sWS}:{sWS+3}], s{sC2} offen offset:{1024*(n&3)} sc1"
def c_tr(slot, aset):
    return [f"ds_read_b64_tr_b16 {ar(AS+16*aset+4*t+2*j,2)}, v{vTR+t} offset:{4096*slot+2048*j}" for t in range(4) for j in range(2)]
def c_wring(A):
    for s in range(OPT["d"]):
        emit_dma_block(A, c_wdma(s))
        for x in c_adv1(): A(x)
def c_bring(A):
    for s in range(OPT["d"]):
        for n in range(5): A(c_bload(s, n))
        for x in c_adv2(): A(x)
def switch_to_fb(A):
    A(f"s_mov_b64 s[{sCW}:{sCW+1}], s[{sW2}:{sW2+1}]")
    A(f"s_mov_b64 s[{sCW+2}:{sCW+3}], s[{sW2+2}:{sW2+3}]")
    for i in range(4): A(f"v_mov_b32 v{vWS_+i}, v{vWS2+i}")
    A(f"s_mov_b32 s{sC1}, s{sF1}")
    A(f"s_mov_b32 s{sCB1}, s{sFB1}")
    A(f"s_mov_b32 s{sCE1}, s{sFE1}")
    A(f"s_mov_b32 s{sCST}, {32*4096}")

G1A = 112
def c_step(A, u, wait, doW, doB, doT, accf, w_is_A, drain=None, first=False, side=None, pre=[], late=None, wslot=None, trl=None):
    DD = OPT["d"]
    A(f"s_waitcnt vmcnt({wait}) lgkmcnt(0)")
    for x in pre: A(x)
    tr = c_tr((u+1) & 3, (u+1) & 1) if doT else (trl or [])
    mf = []
    order = [(n, t) for n in range(5) for t in range(4)]
    if OPT["mo"] & 2 and not drain: order = [(n, t) for t in range(4) for n in range(5)]
    if OPT["mo"] & 4 and not drain: order = [(n, t if n % 2 == 0 else 3 - t) for n in range(5) for t in range(4)]
    for n, t in order:
            w = ar(AS+16*(u & 1)+4*t, 4); b = ar(BR+20*u+4*n, 4); c = accf((t*5+n)*4)
            cin = "0" if first else c
            mf.append(f"v_mfma_f32_16x16x32_bf16 {c}, {w}, {b}, {cin}" if w_is_A else f"v_mfma_f32_16x16x32_bf16 {c}, {b}, {w}, {cin}")
    fill = [[] for _ in range(20)]
    sl = (u + DD) & 3
    wd = c_wdma(sl if wslot is None else wslot)
    post = []
    if doW:
        A(wd[0][0])
        for t in range(4): fill[t] += wd[1+t]
        fill[5 if drain else 12] += c_adv1()
    for k, x in enumerate(tr): fill[4+k].append(x)
    if doB:
        for n in range(5): fill[4*n+3].append(c_bload(sl, n))
        fill[19] += c_adv2()
    if side:
        per = -(-len(side) // 20)
        for g in range(20): fill[g] = side[g*per:(g+1)*per] + fill[g]
    if late:
        fill[13] += late[:9]
        post += late[9:]
    if drain:
        for n in range(3):
            for t in range(4): fill[4*(n+2)+t] += drain(n, t)
        post += ["s_nop 3"] + flat([drain(3, t) for t in range(4)]) + flat([drain(4, t) for t in range(4)])
    weave(A, mf, fill)
    for x in post: A(x)

AS3 = 192
def c_merged(A, u, wait, doW, accf, w_is_A, drain, wslots=None):
    A(f"s_waitcnt vmcnt({wait}) lgkmcnt(0)")
    mf = []
    for n in range(5):
        for k, aset in ((u, AS + 16*(u & 1)), (u + 1, AS3)):
            for t in range(4):
                w = ar(aset+4*t, 4); b = ar(BR+20*(k & 3)+4*n, 4); c = accf((t*5+n)*4)
                mf.append(f"v_mfma_f32_16x16x32_bf16 {c}, {w}, {b}, {c}" if w_is_A else f"v_mfma_f32_16x16x32_bf16 {c}, {b}, {w}, {c}")
    fill = [[] for _ in range(40)]
    if doW:
        for j, sl in enumerate(wslots):
            wd = c_wdma(sl)
            fill[6*j] += wd[0]
            for t in range(4): fill[6*j+1+t] += wd[1+t]
            fill[6*j+5] += c_adv1()
    for n in range(4):
        for t in range(4):
            g = 8*(n+1) + 4 + 2*t
            if g + (0) < 40: fill[g] += drain(n, t)
            else: fill[39] += drain(n, t)
    weave(A, mf, fill)
    for x in ["s_nop 3"] + flat([drain(4, t) for t in range(4)]): A(x)
def tr3(place):
    kind, sl = place
    base = vTR if kind == "r" else vTX
    return [f"ds_read_b64_tr_b16 {ar(AS3+4*t+2*j,2)}, v{base+t} offset:{4096*sl+2048*j}" for t in range(4) for j in range(2)]

def c_loop(A, pfx, nks, accf, w_is_A, isg1, drain):
    DD = OPT["d"]; W0 = 5 + 9*(DD-2)
    tail_next = isg1 and OPT["tailw"]
    A(".p2align 3")
    A.label(f"{pfx}_loop")
    if isg1 and OPT["lnmid"]:
        A(f"s_cmp_eq_u32 s{sCNT}, s{sPUB}")
        A("s_cbranch_scc1 g1_blk")
        A.label("g1_noblk")
    for u in range(4):
        c_step(A, u, W0, True, True, True, accf, w_is_A)
    if STAMPS:
        ng = nks//4 - 1
        i = _st["n"]; _st["n"] += ng; _st["names"] += [f"{pfx}_g{k}" for k in range(ng)]
        A("s_memtime s[100:101]")
        A("s_waitcnt lgkmcnt(0)")
        A(f"s_sub_u32 m0, {i + ng}, s{sCNT}")
        A("s_nop 0")
        A("v_writelane_b32 v47, s100, m0")
    A(f"s_sub_u32 s{sCNT}, s{sCNT}, 1")
    A(f"s_cmp_lg_u32 s{sCNT}, 0")
    A(f"s_cbranch_scc1 {pfx}_loop")
    seq = []
    for k in range(DD): seq += [("W", k)]*4 + [("B", k)]*5
    for u in range(4):
        need = max([i for i, (t, k) in enumerate(seq) if (t == "B" and k == u) or (t == "W" and k == u+1)])
        wait = len(seq) - 1 - need
        own = u < 4 - DD
        if isg1 and u == 4 - DD: switch_to_fb(A)
        nxt = tail_next and not own
        if OPT["merge"] and u == 1:
            nW = 4 if nxt else 0
            w3 = len(seq) + nW - 1 - max(i for i, (t, k) in enumerate(seq) if t == "W" and k == 3)
            c_step(A, u, wait, own or nxt, own, True, accf, w_is_A, late=[f"s_waitcnt vmcnt({w3})"] + tr3(("r", 3)))
        elif OPT["merge"] and u == 2:
            wait = len(seq) - 1 - max(i for i, (t, k) in enumerate(seq) if t == "B" and k == 3)
            c_merged(A, 2, wait, nxt, accf, w_is_A, drain, [(2+DD) & 3, (3+DD) & 3])
            break
        else:
            c_step(A, u, wait, own or nxt, own, u < 3, accf, w_is_A, drain if u == 3 else None)
        if own: seq += [("W", u+DD)]*4 + [("B", u+DD)]*5
        elif nxt: seq += [("N", 0)]*4
    stamp(A, pfx + "_loopdone")

sFA1, sFA2, sFR = 54, 55, 94
sUS = 52
vGE = 224
def fa_params(A):
    A(f"s_and_b32 s{sFR}, s{sFD}, 3")
    A(f"s_lshl_b32 s{sFR}, s{sFR}, 1")
    A(f"s_and_b32 s89, s{sFS}, 7")
    A(f"s_add_u32 s{sFR}, s{sFR}, s89")
    A(f"s_mul_i32 s89, s{sFR}, 52")
    A("s_lshr_b32 s89, s89, 8")
    A("s_mul_i32 s89, s89, 5")
    A(f"s_sub_u32 s{sFR}, s{sFR}, s89")
    if OPT["arot"] == 0: A(f"s_mov_b32 s{sFR}, 0")
    if OPT["arot"] == 2:
        A(f"s_add_u32 s{sFR}, s{sFS}, s{sFD}")
        A(f"s_and_b32 s{sFR}, s{sFR}, 1")
        A(f"s_mul_i32 s{sFR}, s{sFR}, 3")
    A(f"s_mul_i32 s86, s{sWAVE}, 5")
    A(f"s_add_u32 s86, s86, s{sFR}")
    A(f"s_mul_i32 s{sFA1}, s{sFS}, {0 if OPT.get('same') else 20}")
    A(f"s_add_u32 s{sFA1}, s{sFA1}, s86")
    A(f"s_lshl_b32 s{sFA1}, s{sFA1}, 12")
    A(f"s_add_u32 s{sFA1}, s{sFA1}, {WS_PQ:#x}")
    A(f"s_mul_i32 s{sFA2}, s86, 40960")
    A(f"s_mul_i32 s89, s{sFD}, {0 if OPT.get('same') else 5120}")
    A(f"s_add_u32 s{sFA2}, s{sFA2}, s89")
    A(f"s_add_u32 s{sFA2}, s{sFA2}, {WS_M:#x}")
fa_b = lambda i: 0 if i == 0 else 112 + 36*(i-1)
def fa_ld(A, i):
    for st in range(4):
        A(f"buffer_load_dwordx4 {ar(fa_b(i)+4*st,4)}, v{vB0}, s[{sWS}:{sWS+3}], s{sFA1} offen offset:{1024*st} sc1")
    for n in range(5):
        A(f"buffer_load_dwordx4 {ar(fa_b(i)+16+4*n,4)}, v{vB0 if n < 4 else vB1}, s[{sWS}:{sWS+3}], s{sFA2} offen offset:{1024*(n&3)} sc1")
    if i < 4:
        A(f"s_add_u32 s{sFA1}, s{sFA1}, 4096")
        A(f"s_add_u32 s{sFA2}, s{sFA2}, 40960")
        A(f"s_add_u32 s{sFR}, s{sFR}, 1")
        A(f"s_cmp_eq_u32 s{sFR}, 5")
        A(f"s_cselect_b32 s86, {5*4096}, 0")
        A(f"s_cselect_b32 s89, {5*40960}, 0")
        A(f"s_sub_u32 s{sFA1}, s{sFA1}, s86")
        A(f"s_sub_u32 s{sFA2}, s{sFA2}, s89")

def g1_params(A):
    W, Rr = vGE, vGE + 4
    A("v_and_b32 v2, 15, v1")
    A("v_lshrrev_b32 v3, 4, v1")
    A("v_xor_b32 v4, v2, v3")
    A("v_lshlrev_b32 v4, 4, v4")
    A("v_lshl_add_u32 v4, v2, 8, v4")
    A(f"s_mul_i32 s85, s{sWAVE}, 20480")
    A(f"s_add_u32 s85, s85, {LDS_RED}")
    A(f"v_add_u32 v{W}, s85, v4")
    for t in range(1, 4): A(f"v_xor_b32 v{W+t}, {64*t}, v{W}")
    A(f"s_and_b32 s85, s{sWAVE}, 1")
    A(f"s_lshr_b32 s86, s{sWAVE}, 1")
    A("s_lshl_b32 s87, s85, 7")
    A("v_xor_b32 v4, s87, v4")
    A("s_lshl_b32 s87, s86, 12")
    A(f"s_add_u32 s87, s87, {LDS_RED}")
    A(f"v_add_u32 v{Rr}, s87, v4")
    A(f"v_xor_b32 v{Rr+1}, 64, v{Rr}")
    A(f"v_add_u32 v{Rr+2}, 40960, v{Rr}")
    A(f"v_add_u32 v{Rr+3}, 40960, v{Rr+1}")
    A(f"s_lshl_b32 s87, s{sG1F}, 1")
    A("s_add_u32 s87, s87, s85")
    A("s_lshl_b32 s23, s87, 6")
    A("v_lshlrev_b32 v12, 3, v3")
    A("s_mul_i32 s87, s87, 40")
    A(f"s_mul_i32 s88, s{sG1D}, 5")
    A("s_add_u32 s87, s87, s88")
    A("s_add_u32 s87, s87, s86")
    A("s_lshl_b32 s87, s87, 10")
    A(f"s_add_u32 s{sUS}, s87, {WS_U:#x}")
    A(f"s_add_u32 s{sUS+1}, s{sUS}, 4096")
    A(f"s_mov_b32 s90, {0xBDD2D3E8:#x}")
    A(f"s_mov_b32 s91, {0xBDD2D3E8:#x}")
    A(f"v_mov_b32 v{vGE+8}, {0xC0135761:#x}")
    A(f"v_mov_b32 v{vGE+9}, {0xC0135761:#x}")
    fa_params(A)
def b1_loads():
    return [[f"buffer_load_dwordx2 {vr(vGE+18+2*j,2)}, v12, s[{sB1}:{sB1+3}], s23 offen offset:{32*j}"] for j in range(2)]
def zero_acc(A):
    for i in range(0, 80, 2): A(f"v_mov_b64 {vr(ACC+i,2)}, 0")

def g1_phase(A):
    c_loop(A, "g1", 16, lambda o: ar(G1A+o, 4), True, True, lambda n, t: [f"ds_write_b128 v{vGE+t}, {ar(G1A+(t*5+n)*4,4)} offset:{4096*n}"])
    for j in range(2):
        for k in range(2):
            A(f"v_lshlrev_b32 v{vGE+10+4*j+2*k}, 16, v{vGE+18+2*j+k}")
            A(f"v_and_b32 v{vGE+11+4*j+2*k}, 0xffff0000, v{vGE+18+2*j+k}")
    A("s_waitcnt lgkmcnt(0)")
    A("s_barrier")
    stamp(A, "g1_red")
    if OPT["lnpost"] == 2:
        A("s_cmp_lt_u32 s82, 24")
        A("s_cbranch_scc1 g1_nw2")
        w2_prefetch(A, 24, list(range(3 - OPT["lnpn"], 3)))
        A.label("g1_nw2")
    A0 = A
    R = 128
    def rd(r):
        for j in range(2):
            for part in range(4):
                A(f"ds_read_b128 {vr(R+32*r+16*j+4*part,4)}, v{vGE+4+j+2*(part>>1)} offset:{8192*r + 20480*(part&1)}")
    def fin(r):
        b = R + 32*r
        for j in range(2):
            x = b + 16*j
            for i in (0, 2):
                A(f"v_pk_add_f32 {vr(x+i,2)}, {vr(x+i,2)}, {vr(x+4+i,2)}")
                A(f"v_pk_add_f32 {vr(x+8+i,2)}, {vr(x+8+i,2)}, {vr(x+12+i,2)}")
        for j in range(2):
            x = b + 16*j
            for i in (0, 2): A(f"v_pk_add_f32 {vr(x+i,2)}, {vr(x+i,2)}, {vr(vGE+10+4*j+i,2)}")
        for j in range(2):
            x = b + 16*j
            for i in (0, 2): A(f"v_pk_add_f32 {vr(x+i,2)}, {vr(x+i,2)}, {vr(x+8+i,2)}")
        E = [b + 16*j + i for j in range(2) for i in range(4)]
        E2 = E[::2]
        for x in E2: A(f"v_pk_mul_f32 {vr(x+4,2)}, {vr(x,2)}, {vr(x,2)}")
        for x in E2: A(f"v_pk_fma_f32 {vr(x+4,2)}, {vr(x+4,2)}, s[90:91], {vr(vGE+8,2)}")
        for x in E2: A(f"v_pk_mul_f32 {vr(x+4,2)}, {vr(x+4,2)}, {vr(x,2)}")
        for x in E: A(f"v_exp_f32 v{x+4}, v{x+4}")
        for x in E2: A(f"v_pk_add_f32 {vr(x+4,2)}, {vr(x+4,2)}, 1.0 op_sel_hi:[1,0]")
        for x in E: A(f"v_rcp_f32 v{x+4}, v{x+4}")
        for x in E2: A(f"v_pk_mul_f32 {vr(x,2)}, {vr(x,2)}, {vr(x+4,2)}")
        for j in range(2):
            x = b + 16*j
            A(f"v_cvt_pk_bf16_f32 v{b+8+2*j}, v{x}, v{x+1}")
            A(f"v_cvt_pk_bf16_f32 v{b+9+2*j}, v{x+2}, v{x+3}")
        A(f"buffer_store_dwordx4 {vr(b+8,4)}, v{vB0}, s[{sWS}:{sWS+3}], s{sUS if r < 2 else sUS+1} offen offset:{2048*(r&1)} sc1")
    def mix(body, groups, lo=0):
        n = len(groups)
        pos = {}
        for k in range(n): pos.setdefault(lo + (k*(len(body) - lo - 2))//max(n, 1), []).append(groups[k])
        for i, x in enumerate(body):
            for g in pos.get(i, []):
                for y in g: A0(y)
            A0(x)
    G = []
    if OPT["xw"]:
        B = Asm(); xw_loads(B)
        for x in B.lines:
            if x.startswith("buffer_load") or not G: G.append([x])
            else: G[-1].append(x)
        G[1] = G[0] + G[1]; G = G[1:]
    n0 = (len(G)*OPT["xsp"])//10
    A = Asm()
    rd(0)
    A("s_waitcnt lgkmcnt(4)")
    rd(1)
    A("s_waitcnt lgkmcnt(8)")
    fin(0)
    mix(A.lines, G[:n0] + ([] if G[n0:] else [[poll_ld(15, 25)]]), 8)
    late = (G[n0:] + [[poll_ld(15, 25)]]) if G[n0:] else []
    k = 0 if late else 1
    A0(f"s_cmp_ge_u32 s{sWAVE}, 2")
    A0("s_cbranch_scc1 g1_e1")
    A = A0
    rd(2)
    A("s_waitcnt lgkmcnt(8)")
    A = Asm(); fin(1); mix(A.lines, late); A = A0
    A("s_waitcnt lgkmcnt(0)")
    fin(2)
    A(f"s_waitcnt vmcnt({2 + k})")
    A("s_branch g1_e2")
    A.label("g1_e1")
    A("s_waitcnt lgkmcnt(0)")
    A = Asm(); fin(1); mix(A.lines, late); A = A0
    A(f"s_waitcnt vmcnt({1 + k})")
    A.label("g1_e2")
    stamp(A, "g1_st")
    A(f"s_mov_b32 s{sQOK}, 0")
    A(f"v_cmp_ne_u32 vcc, s{sNON}, v{vPOLL}")
    A("s_cbranch_vccnz g1_q1")
    A(f"s_mov_b32 s{sQOK}, 1")
    fa_ld(A, 0)
    A("s_waitcnt vmcnt(9)")
    A("s_branch g1_q2")
    A.label("g1_q1")
    if OPT["tailw"]: A("s_waitcnt vmcnt(0)")
    else:
        c_wring(A)
        A(f"s_waitcnt vmcnt({4*OPT['d']})")
    A.label("g1_q2")
    A(f"s_mul_i32 s88, s{sG1D}, 24")
    A(f"s_add_u32 s88, s88, s{sG1F}")
    publish(A, "pub_u", FL_G1, 88, None)
    stamp(A, "g1_pub")
    for x in xw_writes(): A(x)
    if OPT["lnpost"] == 1:
        A("s_cmp_lt_u32 s82, 24")
        A("s_cbranch_scc1 g1_nw2")
        w2_prefetch(A, 24, list(range(3 - OPT["lnpn"], 3)))
        A.label("g1_nw2")
    if not OPT["tailw"]:
        A(f"s_cmp_eq_u32 s{sQOK}, 0")
        A("s_cbranch_scc1 g1_q3")
        c_wring(A)
        A("s_branch f_go")
        A.label("g1_q3")
    else:
        A(f"s_cmp_lg_u32 s{sQOK}, 0")
        A("s_cbranch_scc1 f_go")
    A(poll_ld(15, 25))
    A("s_waitcnt vmcnt(0)")
    poll_check(A, "pq", 15, 25)

def accb_init(st):
    return [f"v_lshlrev_b32 v{ACC+st*20}, 16, v{29+st}", f"v_lshlrev_b32 v{ACC+st*20+1}, 16, v{29+st}"] + \
           [f"v_mov_b64 {vr(ACC+st*20+k,2)}, {vr(ACC+st*20,2)}" for k in range(2, 20, 2)]
vTX = 246
def xw_setup():
    L = [f"s_mul_i32 s85, s{sWAVE}, 21504", f"s_add_u32 s85, s85, {LDS_RED}", f"v_add_u32 v{vTX+4}, s85, v{vB0}", f"s_sub_u32 s85, s85, s{sCM0}"]
    L += [f"v_add_u32 v{vTX+t}, s85, v{vTR+t}" for t in range(4)]
    return L
def xw_loads(A):
    emit_dma_block(A, c_wdma(3))
    for x in c_adv1(): A(x)
    for i in range(OPT["xw"]):
        for q in range(4):
            A(f"buffer_load_dwordx4 {vr(ACC+16*i+4*q,4)}, v{vWS_+q}, s[{sCW}:{sCW+3}], s{sC1} offen offset:{1024*q}")
        for x in c_adv1(): A(x)
def xw_writes():
    return [f"ds_write_b128 v{vTX+4}, {vr(ACC+16*i+4*q,4)} offset:{4096*i+1024*q}" for i in range(OPT["xw"]) for q in range(4)]
def xw_dma(A):
    emit_dma_block(A, c_wdma(3))
    for x in c_adv1(): A(x)
    A(f"s_mul_i32 s85, s{sWAVE}, 21504")
    A(f"s_add_u32 s85, s85, {LDS_RED}")
    for i in range(OPT["xw"]):
        A(f"s_add_u32 m0, s85, {4096*i}")
        A("s_nop 0")
        for q in range(4):
            A(f"buffer_load_dwordx4 v{vWS_+q}, s[{sCW}:{sCW+3}], s{sC1} offen offset:{1024*q} lds")
        for x in c_adv1(): A(x)
def f_setup1():
    B = Asm()
    B("v_and_b32 v5, 15, v1")
    B("v_lshlrev_b32 v6, 2, v5")
    B(f"s_lshl_b32 s23, s{sFS}, 8")
    B(f"s_add_u32 s23, s23, {WS_G:#x}")
    for st in range(4):
        B(f"buffer_load_dword v{8+st}, v6, s[{sWS}:{sWS+3}], s23 offen offset:{64*st} sc1")
    B("v_lshlrev_b32 v6, 1, v5")
    B(f"s_lshl_b32 s23, s{sFS}, 7")
    B(f"s_cmp_eq_u32 s{sWAVE}, 0")
    B("s_cselect_b32 s23, s23, 0x40000000")
    for st in range(4):
        B(f"buffer_load_ushort v{29+st}, v6, s[{sB2}:{sB2+3}], s23 offen offset:{32*st}")
    return B.lines
def f_setup2():
    B = Asm()
    for st in range(4):
        B(f"v_sub_f32 v{8+st}, 1.0, v{8+st}")
        if not OPT["xw"]:
            for x in accb_init(st): B(x)
    B("v_min_u32 v12, 23, v1")
    B("v_lshlrev_b32 v12, 7, v12")
    B(f"s_mul_i32 s23, s{sFD}, {24*128}")
    B(f"s_add_u32 s23, s23, {FL_G1:#x}")
    B("v_and_b32 v5, 15, v1")
    B("v_lshrrev_b32 v6, 4, v1")
    B("v_mul_u32_u24 v4, 336, v5")
    if OPT["ox4"]:
        B("v_lshrrev_b32 v7, 1, v6")
        B("v_lshl_add_u32 v4, v7, 4, v4")
        B("v_and_b32 v6, 1, v6")
        B("v_mul_u32_u24 v6, 160, v6")
        B("v_add_u32 v4, v4, v6")
    else:
        B("v_lshl_add_u32 v4, v6, 4, v4")
    B(f"s_mul_i32 s85, s{sWAVE}, 21504")
    B(f"s_add_u32 s85, s85, {LDS_RED}")
    B("v_add_u32 v4, s85, v4")
    B(f"s_mul_i32 s85, s{sWAVE}, {16*336}")
    B(f"s_add_u32 s85, s85, {LDS_RED}")
    B(f"s_lshl_b32 s95, s{sFS}, 2")
    B(f"s_add_u32 s95, s95, s{sWAVE}")
    B(f"s_mul_i32 s95, s95, {16*1280}")
    B(f"s_mul_i32 s87, s{sFD}, 160")
    B("s_add_u32 s95, s95, s87")
    if OPT["ox4"]:
        B("v_mul_u32_u24 v6, 205, v1")
        B("v_lshrrev_b32 v6, 11, v6")
        B("v_mul_u32_u24 v7, 10, v6")
        B("v_sub_u32 v7, v1, v7")
        B("v_min_u32 v6, 5, v6")
        B("v_mul_u32_u24 v16, 336, v6")
        B("v_lshl_add_u32 v16, v7, 4, v16")
        B("v_add_u32 v16, s85, v16")
        B("v_mul_u32_u24 v24, 1280, v6")
        B("v_lshl_add_u32 v24, v7, 4, v24")
    else:
        for r in range(5):
            B(f"v_add_u32 v5, {64*r}, v1")
            B("v_mul_u32_u24 v6, 3277, v5")
            B("v_lshrrev_b32 v6, 16, v6")
            B("v_mul_u32_u24 v7, 20, v6")
            B("v_sub_u32 v7, v5, v7")
            B(f"v_mul_u32_u24 v{16+r}, 336, v6")
            B(f"v_lshl_add_u32 v{16+r}, v7, 4, v{16+r}")
            B(f"v_add_u32 v{16+r}, s85, v{16+r}")
            B(f"v_mul_u32_u24 v{24+r}, 1280, v6")
            B(f"v_lshl_add_u32 v{24+r}, v7, 3, v{24+r}")
    if OPT["otouch"]:
        B("v_lshrrev_b32 v5, 1, v1")
        B("v_and_b32 v5, 15, v5")
        B("v_mul_u32_u24 v5, 1280, v5")
        B("v_and_b32 v6, 1, v1")
        B("v_mul_u32_u24 v6, 156, v6")
        B("v_add_u32 v5, v5, v6")
    if OPT["xw"]:
        for x in xw_setup(): B(x)
    return B.lines

def f_phase(A):
    ACA = 128
    A.label("f_entry")
    fa_ld(A, 0)
    A.label("f_go")
    fa_ld(A, 1)
    stamp(A, "f_qok")
    A(f"s_or_b32 s85, s2, s{sWAVE}")
    A("s_cmp_lg_u32 s85, 0")
    A("s_cbranch_scc1 f_nox")
    A(f"s_mov_b32 s85, {FL_X:#x}")
    flag_store(A, 85)
    A.label("f_nox")
    fb = fa_b
    def fam(i, side=[]):
        mf = []
        for n in range(5):
            for st in range(4):
                c = vr(ACA+(st*5+n)*4, 4)
                mf.append(f"v_mfma_f32_16x16x32_bf16 {c}, {ar(fb(i)+16+4*n,4)}, {ar(fb(i)+4*st,4)}, {c if i else 0}")
        fill = [[] for _ in range(20)]
        for k, g in enumerate(side): fill[(k*20)//len(side)] += g
        weave(A, mf, fill)
    def ldg(i):
        B = Asm(); fa_ld(B, i); g = [[x] for x in B.lines[:9]]; g[-1] += B.lines[9:]; return g
    D = OPT["d"]
    fa_ld(A, 2)
    A(f"s_mov_b32 s{sC2}, s{sF2}")
    A(f"s_mov_b32 s{sCB2}, s{sFB2}")
    A(f"s_mov_b32 s{sCE2}, s{sFE2}")
    stamp(A, "fa_i2")
    A("s_waitcnt vmcnt(18)")
    fam(0, ldg(3))
    stamp(A, "fa_m0")
    A("s_waitcnt vmcnt(18)")
    fam(1, [[poll_ld(12, 23)]] + ldg(4))
    stamp(A, "fa_m1")
    A("s_waitcnt vmcnt(19) lgkmcnt(0)")
    fam(2, [[x] for x in flat([accb_init(st) for st in range(4)])] if OPT["xw"] else [])
    stamp(A, "fa_m2")
    A("s_waitcnt vmcnt(9)")
    stamp(A, "fa_s3")
    poll_check(A, "pu", 12, 23)
    stamp(A, "f_uok")
    br = []
    for sl in range(D):
        br += [[c_bload(sl, n)] for n in range(5)]; br[-1] += c_adv2()
    fam(3, br)
    A(f"s_waitcnt vmcnt({5*D})")
    fam(4, [[]]*3 + [[x] for x in c_tr(0, 0)] + [[]]*5)
    A(f"s_waitcnt vmcnt({5 if D == 2 else 10})")
    stamp(A, "fb_first")
    def drain(n, st):
        b = (st*5+n)*4
        return [f"v_fma_f32 v{ACA+b+i}, v{ACC+b+i}, v{8+st}, v{ACA+b+i}" for i in range(4)] + [f"ds_write_b128 v4, {vr(ACA+b,4)} offset:{st*16*336 + (32 if OPT['ox4'] else 64)*n}"]
    if OPT["xw"]:
        X = OPT["xw"]
        place = lambda k: ("r", k) if k < 4 else (("x", k-4) if k < 4 + X else ("r", (k - 4 - X) & 3))
        seq = [("B", 0)]*5 + [("B", 1)]*5 + [("B", 2)]*5
        for u in range(12):
            idx = [i for i, (t, k) in enumerate(seq) if (t == "B" and k == u) or (t == "W" and k == u+1)]
            wait = len(seq) - 1 - max(idx)
            kw = u + 3 + OPT["xwd"]; kb = u + 3
            doW = 4 + X <= kw < 12; doB = kb < 12
            nx = None
            if u < 11:
                kind, sl = place(u+1)
                base = vTR if kind == "r" else vTX
                nx = [f"ds_read_b64_tr_b16 {ar(AS+16*((u+1)&1)+4*t+2*j,2)}, v{base+t} offset:{4096*sl+2048*j}" for t in range(4) for j in range(2)]
            if OPT["merge"] and u == 10:
                wait = len(seq) - 1 - max(i for i, (t, k) in enumerate(seq) if t == "B" and k == 11)
                c_merged(A, 2, wait, False, lambda o: vr(ACC+o, 4), False, drain)
                break
            late = None
            if OPT["merge"] and u == 9:
                w3 = len(seq) - 1 - max(i for i, (t, k) in enumerate(seq) if t == "W" and k == 11)
                late = [f"s_waitcnt vmcnt({w3})"] + tr3(place(11))
            c_step(A, u & 3, min(wait, 63), doW, doB, False, lambda o: vr(ACC+o, 4), False, drain if u == 11 else None,
                   wslot=place(kw)[1] if doW else None, trl=nx, late=late)
            if doW: seq += [("W", kw)]*4
            if doB: seq += [("B", kb)]*5
            if u in (3, 7): stamp(A, f"fb_g{u//4}")
        stamp(A, "fb_loopdone")
    else:
        A(f"s_mov_b32 s{sCNT}, 2")
        c_loop(A, "fb", 12, lambda o: vr(ACC+o, 4), False, False, drain)
    A("s_waitcnt lgkmcnt(0)")
    A("s_barrier")
    stamp(A, "f_red")
    R = ACC
    OST = ["", " nt", " sc1", " sc0 sc1", " sc1 nt", " sc0 nt", " sc0 sc1 nt"][OPT["ost"]]
    if OPT["ox4"]:
        A("v_add_u32 v17, 43008, v16")
        def rd4(r):
            for h in range(2):
                for part in range(4):
                    A(f"ds_read_b128 {vr(R+32*r+16*h+4*part,4)}, v{16 + (part >> 1)} offset:{21504*(part & 1) + 160*h + 2016*r}")
        rd4(0)
        A("s_waitcnt lgkmcnt(4)")
        rd4(1)
        A("s_mov_b32 exec_hi, 0x0fffffff")
        for r in range(3):
            A(f"s_waitcnt lgkmcnt({8 if r < 2 else 0})")
            b = R + 32*(r & 1) if r < 2 else R + 64 - 64
            b = R + 32*r if r < 2 else R
            for h in range(2):
                x = b + 16*h
                for i in (0, 2):
                    A(f"v_pk_add_f32 {vr(x+i,2)}, {vr(x+i,2)}, {vr(x+4+i,2)}")
                    A(f"v_pk_add_f32 {vr(x+8+i,2)}, {vr(x+8+i,2)}, {vr(x+12+i,2)}")
            for h in range(2):
                x = b + 16*h
                for i in (0, 2): A(f"v_pk_add_f32 {vr(x+i,2)}, {vr(x+i,2)}, {vr(x+8+i,2)}")
            o = R + 64 + 4*r
            for h in range(2):
                A(f"v_cvt_pk_bf16_f32 v{o+2*h}, v{b+16*h}, v{b+16*h+1}")
                A(f"v_cvt_pk_bf16_f32 v{o+2*h+1}, v{b+16*h+2}, v{b+16*h+3}")
            if r == 0:
                for h in range(2):
                    for part in range(4):
                        A(f"ds_read_b128 {vr(R+16*h+4*part,4)}, v{16 + (part >> 1)} offset:{21504*(part & 1) + 160*h + 2016*2}")
            if r == 2: A("s_mov_b32 exec_hi, 0xff")
            A(f"buffer_store_dwordx4 {vr(o,4)}, v24, s[{sOUT}:{sOUT+3}], s95 offen" + OST)
            if r < 2: A(f"s_add_u32 s95, s95, {6*1280}")
        A("s_mov_b32 exec_hi, -1")
        return
    def rd(r):
        for part in range(4):
            A(f"ds_read_b128 {vr(R+16*r+4*part,4)}, v{16+r} offset:{21504*part}")
    rd(0); rd(1); rd(2)
    for r in range(5):
        A(f"s_waitcnt lgkmcnt({8 if r < 3 else 4*(4-r)})")
        b = R + 16*r
        for i in (0, 2):
            A(f"v_pk_add_f32 {vr(b+i,2)}, {vr(b+i,2)}, {vr(b+4+i,2)}")
            A(f"v_pk_add_f32 {vr(b+8+i,2)}, {vr(b+8+i,2)}, {vr(b+12+i,2)}")
        if r + 3 < 5: rd(r+3)
        for i in (0, 2): A(f"v_pk_add_f32 {vr(b+i,2)}, {vr(b+i,2)}, {vr(b+8+i,2)}")
        A(f"v_cvt_pk_bf16_f32 v{b}, v{b}, v{b+1}")
        A(f"v_cvt_pk_bf16_f32 v{b+1}, v{b+2}, v{b+3}")
        A(f"buffer_store_dwordx2 {vr(b,2)}, v{24+r}, s[{sOUT}:{sOUT+3}], s95 offen" + OST)

def kd(name):
    return f""".section .rodata,"a"
.p2align 6
.amdhsa_kernel {name}
  .amdhsa_next_free_vgpr 512
  .amdhsa_next_free_sgpr 102
  .amdhsa_accum_offset 256
  .amdhsa_group_segment_fixed_size 0
  .amdhsa_kernarg_size 96
  .amdhsa_user_sgpr_count 2
  .amdhsa_user_sgpr_kernarg_segment_ptr 1
  .amdhsa_system_sgpr_workgroup_id_x 1
.end_amdhsa_kernel
"""

def gen():
    hdr = open("cdna_kernels/" + NAME + ".s.ref").read().split("; Override")[0]
    hdr += f"; @launch grid=(256,1,1) block=(256,1,1) lds={LDS_BYTES}\n"
    hdr += '.amdgcn_target "amdgcn-amd-amdhsa--gfx950"\n'
    A = Asm()
    K = NAME + "_kernel"
    A(".text"); A(f".globl {K}"); A(".p2align 8"); A(f".type {K},@function"); A.label(K)
    prologue(A)
    A("s_cmp_ge_u32 s82, 16"); A("s_cbranch_scc1 r_notkv")
    A("s_and_b32 s85, s82, 3")
    A("s_lshl_b32 s86, s83, 2")
    A(f"s_add_u32 s{sA}, s85, s86")
    A("s_lshr_b32 s85, s82, 2")
    A("s_lshl_b32 s86, s84, 2")
    A(f"s_add_u32 s{sBp}, s85, s86")
    qkv_setup(A, False)
    if not OPT["xfirst"]: qkv_setup_w(A, False)
    A("s_waitcnt lgkmcnt(0)"); srds(A, ["X", "W"])
    stamp(A, "kv_pre")
    def mid(A):
        params1(A); srds(A, ["WS", "W1", "B1", "W2", "B2", "OUT"]); cw_init(A)
        if not OPT["defer"]:
            params2(A); g1_params(A); mid3(A)
    def mid3(A):
        kv_esetup(A)
        A("s_lshl_b32 s85, s81, 4")
        A("s_add_u32 s85, s85, s82")
        A("s_lshl_b32 s85, s85, 2")
        A(f"s_add_u32 s85, s85, s{sWAVE}")
        A("s_lshl_b32 s27, s85, 13")
        A(f"s_lshl_b32 s{sPUB}, s{sA}, 3")
        A(f"s_add_u32 s{sPUB}, s{sPUB}, s{sBp}")
        A(f"s_lshl_b32 s{sPUB}, s{sPUB}, 7")
        A(f"s_add_u32 s{sPUB}, s{sPUB}, {FL_KV:#x}")
    D = OPT["d"]; EW = 5 if D == 2 else 10
    assert D == 3
    def wst(k):
        g = c_wdma(k); g[-1] = g[-1] + c_adv1(); return g
    def bst(k):
        g = [[c_bload(k, n)] for n in range(5)]; g[-1] = g[-1] + c_adv2(); return g
    NI = 4 if OPT["xw"] else 48
    E = kv_estream()
    g1acc = lambda o: ar(G1A+o, 4)
    def pubkv(A, wait):
        A(f"s_waitcnt vmcnt({wait})")
        A("s_barrier")
        A(f"s_cmp_lg_u32 s{sWAVE}, 0")
        A("s_cbranch_scc1 g1_pub1")
        flag_store(A, sPUB)
        A.label("g1_pub1")
        stamp(A, "kv_pub")
    nin = OPT["nbin"]
    ex = {8: ([[poll_ld(vPO, 24)]] + b1_loads() + wst(0) + wst(1), 9), 9: (wst(2), 8)}
    d0 = OPT["defer"]
    out_kv = qkv_gemm(A, "kv", False, mid, ex, {9: lambda A: poll_check(A, "pln", vPO, 24)},
                      [(d0, params2), (d0+1, g1_params), (d0+2, mid3)] if d0 else [])
    if OPT["kvw2"]:
        A(f"buffer_load_dword a255, v15, s[{sW2}:{sW2+3}], s27 offen")
    for m in qkv_mfmas(FB_, False): A(m)
    stamp(A, "kv_loopdone")
    Bs = bst(0) + bst(1) + bst(2)
    body = E[0] + E[1]
    sp = min(26, (len(body) - 30 - OPT["b0"]) // max(nin, 1))
    pos = [len(body) - 30 - sp*(nin - 1 - k) for k in range(nin)]
    assert not pos or pos[0] >= 0
    for i, x in enumerate(body):
        if i in pos:
            for y in Bs[pos.index(i)]: A(y)
        A(x)
    A("s_waitcnt lgkmcnt(0)")
    A("s_barrier")
    for x in E[2] + E[3]: A(x)
    stamp(A, "kv_st")
    for g in Bs[nin:]:
        for y in g: A(y)
    seq = ["W"]*12 + [f"B{k//5}" for k in range(nin)] + ["S"]*4 + [f"B{k//5}" for k in range(nin, 15)]
    def need(tags): return len(seq) - 1 - max(i for i, t in enumerate(seq) if t in tags)
    A(f"s_waitcnt vmcnt({need(['W'])})")
    for x in c_tr(0, 0): A(x)
    if OPT["pubat"] == 0: pubkv(A, need(["S"]))
    for u in range(4):
        c_step(A, u, min(need([f"B{u}", f"W{u+1}", "W"]), 63), True, True, True, g1acc, True, first=(u == 0),
               pre=f_setup1() if u == 1 else [],
               side=({2: f_setup2()[NI:], 3: f_setup2()[:NI]}.get(u) if OPT["fsplit"] else (f_setup2() if u == 3 else None)))
        if u == 1: seq += ["G"]*8
        seq += [f"W{u+3}"]*4 + [f"B{u+3}"]*5
        stamp(A, f"g1_s{u}")
        if OPT["pubat"] == u + 1: pubkv(A, need(["S"]))
    A(f"s_mov_b32 s{sCNT}, 2")
    g1_phase(A)
    f_phase(A)
    stamp_flush(A)
    A.label("k_end"); A("s_endpgm")
    out_kv(A)
    if OPT["lnmid"]:
        A.label("g1_blk")
        w2_prefetch(A, 24, list(range(3 - OPT["lnpn"], 3)))
        A("s_branch g1_noblk")
    A.label("r_notkv")
    if OPT["pf_code"] and not OPT["pfall"]:
        A("s_getpc_b64 s[86:87]")
        A.label("pc_here")
        A(f"s_sub_u32 s86, s86, pc_here-{K}")
        A("s_subb_u32 s87, s87, 0")
        A("s_sub_u32 s85, s82, 16")
        A("s_lshl_b32 s85, s85, 2")
        A(f"s_add_u32 s85, s85, s{sWAVE}")
        A("s_lshl_b32 s85, s85, 3")
        A("v_add_lshl_u32 v2, v1, s85, 7")
        A(f"v_min_u32 v2, k_codeend-{K}-4, v2")
        A("s_mov_b64 exec, 0xff")
        A("global_load_dword a255, v2, s[86:87]")
        A("s_mov_b64 exec, -1")
    A("s_cmp_lt_u32 s82, 24"); A("s_cbranch_scc1 r_q")
    A("s_sub_u32 s87, s82, 24")
    A("s_lshl_b32 s85, s81, 3")
    A(f"s_add_u32 s{sA}, s85, s87")
    aux = " nt" if OPT.get("nt") else ""
    w1l = lambda k: f"buffer_load_dword a255, v22, s[{sW1}:{sW1+3}], s{26 + k//3} offen offset:{1024*(k%3)}{aux}"
    def after(A):
        params1(A); srds(A, ["WS", "W1", "B1", "W2", "B2", "OUT"]); cw_init(A); params2(A); g1_params(A)
        w1_setup(A, 24, 22)
        for k in range(OPT["early"] if OPT["pf_w1"] else 0): A(w1l(k))
    ln_role(A, after, OPT["early"] if OPT["pf_w1"] else 0)
    publish(A, "pub_ln", FL_LN, sA)
    stamp(A, "ln_pub")
    if OPT["tlb"] == 2:
        A("v_lshlrev_b32 v2, 20, v1")
        A("s_mov_b64 exec, 0x3ff")
        A(f"buffer_load_dword a255, v2, s[{sWS}:{sWS+3}], 0 offen sc1")
        A(f"buffer_load_dword a255, v2, s[{sOUT}:{sOUT+3}], 0 offen")
        A(f"buffer_load_dword a255, v2, s[{sB2}:{sB2+3}], 0 offen")
        A("s_mov_b64 exec, -1")
    for k in range(OPT["early"], (3 - OPT["qw1n"]) if (OPT["pf_w1"] and not OPT["qfirst"]) else 0): A(w1l(k))
    def pf_h():
        A(poll_ld(vPO, 24))
        A("v_lshrrev_b32 v2, 5, v1")
        A("v_mul_u32_u24 v2, 40960, v2")
        A("v_and_b32 v3, 31, v1")
        A("v_lshl_add_u32 v2, v3, 7, v2")
        A("s_sub_u32 s85, s82, 24")
        A("s_lshl_b32 s85, s85, 2")
        A(f"s_add_u32 s85, s85, s{sWAVE}")
        A(f"s_mul_i32 s87, s85, {2*40960}")
        A("s_mul_i32 s86, s84, 20480")
        A("s_add_u32 s87, s87, s86")
        A("s_waitcnt vmcnt(0)")
        poll_check(A, "plnh", vPO, 24)
        A("s_barrier")
        for i in range(5):
            A(f"buffer_load_dword a255, v2, s[{sWS}:{sWS+3}], s87 offen sc1")
            A("s_add_u32 s87, s87, 4096")
    for c in str(OPT["lnseq"]):
        if c == "1" and OPT["pf_w1"]:
            for k in range(3, 6): A(w1l(k))
        if c == "6":
            for k in range(3): A(w1l(k))
        if c == "2": pf_h()
        if c == "3": w2_prefetch(A, 24, [0])
        if c == "7": w2_prefetch(A, 24, [2])
        if c == "4": w2_prefetch(A, 24, [0, 1])
        if c == "5": w2_prefetch(A, 24, [0, 1, 2])
    stamp(A, "ln_pf")
    for g in b1_loads(): A(g[0])
    A(poll_ld(vPO, 24))
    c_wring(A)
    A(f"s_waitcnt vmcnt({4*OPT['d']})")
    poll_check(A, "pln2", vPO, 24)
    A("s_barrier")
    for x in f_setup1(): A(x)
    c_bring(A)
    for i in range(80): A(f"v_accvgpr_write_b32 a{G1A+i}, 0")
    A(f"s_waitcnt vmcnt({5*D})")
    for x in f_setup2(): A(x)
    A(f"s_mov_b32 s{sCNT}, 3")
    A(f"s_mov_b32 s{sPUB}, {OPT['lnmid']}")
    A(f"s_waitcnt vmcnt({EW})")
    for x in c_tr(0, 0): A(x)
    stamp(A, "ln_ready")
    A("s_branch g1_loop")
    A.label("r_q")
    A("s_sub_u32 s87, s82, 16")
    A("s_and_b32 s85, s87, 3")
    A("s_lshl_b32 s86, s83, 2")
    A(f"s_add_u32 s{sA}, s85, s86")
    A("s_lshr_b32 s85, s87, 2")
    A("s_lshl_b32 s86, s84, 1")
    A(f"s_add_u32 s{sBp}, s85, s86")
    A(f"s_lshl_b32 s{sU}, s{sBp}, 2")
    A(f"s_and_b32 s85, s{sA}, 3")
    A(f"s_add_u32 s{sU}, s{sU}, s85")
    A(f"s_lshr_b32 s{sNR}, s{sA}, 2")
    def midq(A):
        params1(A); srds(A, ["WS", "W1", "WO", "W2", "B2", "OUT"]); cw_init(A); params2(A)
        w1_setup(A, 16, 12)
        if OPT["qw1"] == 0: q_pf_only(A)
        if not OPT["qdefer"]: q_setup(A)
    def qs(lo, hi):
        def f(A):
            B = Asm(); q_setup(B)
            assert len(B.lines) > 150
            for x in B.lines[lo:hi]: A(x)
        return f
    def qtouch(A):
        A("s_mov_b32 exec_lo, 0xffff03ff")
        A("s_mov_b32 exec_hi, 0")
        A(f"buffer_load_dword a255, v{vT1}, s[{sWS}:{sWS+3}], 0 offen sc1")
        A("s_mov_b64 exec, -1")
    qkv_setup(A, True)
    if not OPT["xfirst"]: qkv_setup_w(A, True)
    A("s_waitcnt lgkmcnt(0)"); srds(A, ["X", "W"])
    qb = [(max(OPT["qw1"], 1), q_loop_pf)]
    if OPT["qdefer"]:
        def both(A): q_loop_pf(A); q_setup(A); qtouch(A)
        qb = [(OPT["qw1"], both)]
    out_q = qkv_gemm(A, "q", True, midq, q_extras(), {9: lambda A: poll_check(A, "pln3", vPO, 24)}, qb)
    q_epilogue(A)
    A("s_lshl_b32 s88, s81, 3")
    A("s_add_u32 s88, s88, s82")
    A("s_sub_u32 s88, s88, 16")
    publish(A, "pub_q", FL_Q, 88)
    stamp(A, "q_pub")
    if OPT["qw2b"]: w2_prefetch(A, 16, list(range(3 - OPT["qw2b"], 3)))
    for x in f_setup1(): A(x)
    switch_to_fb(A)
    c_wring(A)
    if OPT["xw"]: xw_dma(A)
    A(poll_ld(vPO, 25))
    A(f"s_waitcnt vmcnt({4*D + 1 + (4 + 4*OPT['xw'] if OPT['xw'] else 0)})")
    for x in f_setup2(): A(x)
    A("s_waitcnt vmcnt(0)")
    poll_check(A, "pq2", vPO, 25)
    A("s_barrier")
    stamp(A, "q_allq")
    if OPT["pf_pq"]:
        A("s_sub_u32 s88, s82, 16")
        A("s_lshl_b32 s88, s88, 2")
        A(f"s_add_u32 s88, s88, s{sWAVE}")
        A("v_lshlrev_b32 v2, 7, v1")
        A(f"s_mul_i32 s85, s83, {8*81920}")
        A(f"s_mul_i32 s86, s88, {160*128}")
        A("s_add_u32 s85, s85, s86")
        A(f"s_add_u32 s85, s85, {WS_PQ:#x}")
        for i in range(3):
            if i == 2: A("s_mov_b32 exec_hi, 0")
            A(f"buffer_load_dword a255, v2, s[{sWS}:{sWS+3}], s85 offen sc1")
            A("s_add_u32 s85, s85, 8192")
        A("s_mov_b32 exec_hi, -1")
        A("s_cmp_ge_u32 s88, 20")
        A("s_cbranch_scc1 q_pfd")
        A("s_mul_i32 s85, s88, 40960")
        A("s_mul_i32 s86, s84, 20480")
        A("s_add_u32 s85, s85, s86")
        A(f"s_add_u32 s85, s85, {WS_M:#x}")
        for i in range(3):
            if i == 2: A("s_mov_b32 exec_hi, 0")
            A(f"buffer_load_dword a255, v2, s[{sWS}:{sWS+3}], s85 offen sc1")
            A("s_add_u32 s85, s85, 8192")
        A("s_mov_b32 exec_hi, -1")
        A.label("q_pfd")
    fa_params(A)
    A("s_branch f_entry")
    out_q(A)
    A.label("k_codeend")
    for i, l in enumerate(A.lines):
        if l.startswith("v_mad_i32_i24 v4, v3, -20"):
            A.lines[i] = l.replace("-20", "s89")
        if l == "s_movk_i32 s88, 3840":
            A.lines[i] = "s_movk_i32 s89, -20"
    if OPT["align"]:
        A.lines, nc, nn = align(A.lines, OPT["align"])
        print("aligned: widened", nc, "nops", nn, file=sys.stderr)
    nb = check(A.lines)
    print("hazards:", nb, file=sys.stderr)
    return hdr + A.text() + kd(K)

if __name__ == "__main__":
    out = sys.argv[1]
    for a in sys.argv[2:]:
        if a == "st": STAMPS = True
        else:
            k, v = a.split("="); OPT[k] = int(v)
    open(out, "w").write(gen())
    if STAMPS: json.dump(_st["names"], open(out + ".names", "w"))
```

```python
import sys, json
from asmlib import Asm, vr, ar, sr, check, align

NAME = "gated_mix__linear_attn_block__mixer_token_mlp__prompt"
WS_H   = 0x000000
WS_U   = 0x280000
WS_PQ  = 0x460000
WS_M   = 0x6E0000
WS_KVP = 0x7A8000
WS_ZP  = 0x880000
WS_G   = 0x972000
WS_FLAG = 0x974000
FL_X = WS_FLAG
FL_LN = WS_FLAG + 128
FL_KV = FL_LN + 64*128
FL_Q = FL_KV + 128*128
FL_G1 = FL_Q + 64*128
WS_SIZE = FL_G1 + 192*128
WS_STAMP = 0x1000000

sX, sW, sWS, sW1, sW2, sOUT, sWO, sB1, sB2, sGW = 28, 32, 36, 40, 44, 48, 52, 56, 60, 64
sWAVE = 68
sA, sBp = 69, 70
sG1D, sG1F, sFS, sFD = 71, 72, 73, 74
sCNT, sO1, sO2, sRD, sWR, sM0 = 75, 76, 77, 78, 79, 80
sEX, sMK = 90, 92
sU, sNR = 94, 95
sWR_, sWC_ = 96, 97
sPUB = 3
sQOK = 99
sM1 = 98
sC1, sC2, sCM0, sCB1, sCE1, sCB2, sCE2, sCST, sCW, sNON = 4, 5, 6, 7, 8, 9, 10, 11, 12, 16
sF1, sFB1, sFE1, sF2, sFB2, sFE2 = 17, 18, 19, 20, 21, 22
LOG2E = 0x3FB8AA3B
EPS6 = 0x358637BD
LDS_RED = 65536
LDS_BYTES = 163840
vXO, vWO_, vXB, vCUR = 16, 20, 25, 29
vWS_, vB0, vB1, vTR, vWS2 = 33, 37, 38, 39, 43
ACC = 48
FA_, FB_ = 112, 148
BR, AS = 0, 80
STG = 36864
vPOLL, vPO = 14, 13
OPT = {"rot": 1, "pf_w1": 1, "pf_w2": 1, "pf_code": 1, "pf_pq": 0, "sleep": 1, "early": 1, "d": 3, "qpoll": 2, "nbin": 10, "cv": 0, "lnseq": 51, "qw2": 0, "qw2b": 0, "ntq": 0, "qw1": 1, "qw1n": 2, "kvr": 1, "touch": 0, "perm": 0, "otouch": 0, "rdb": 4, "w2c": 2, "qfirst": 0, "rfd": 3, "tailw": 1, "pubat": 0, "kvw2": 0, "b0": 0, "qw1b": 0, "rfb": 4, "frot": 2, "arot": 2, "fmap": 1, "qrot": 1, "grot": 4, "lnpost": 0, "lnpn": 3, "align": 5, "defer": 0, "qdefer": 0, "lnmid": 0, "ost": 1, "tlb": 0, "pf0": 8, "xfirst": 1, "fsplit": 1, "xw": 3, "xwd": 0, "xsp": 6, "pfall": 0, "ntl": 6, "ntlk": 2, "ntlq": 3, "ox4": 0, "merge": 0, "mo": 0, "uearly": 1, "kweave": 1, "lal": 3}
STAMPS = False
_st = {"n": 0, "names": []}

def stamp(A, name, real=False):
    if not STAMPS: return
    if OPT.get("clk") and not real and name in ("kv_first", "kv_loop9", "g1_s0", "g1_loopdone", "g1_pub", "fb_first", "fb_loopdone"): stamp(A, name + "_R", True)
    i = _st["n"]; _st["n"] += 1; _st["names"].append(name)
    A("s_memrealtime s[100:101]" if real else "s_memtime s[100:101]")
    A("s_waitcnt lgkmcnt(0)")
    A(f"v_writelane_b32 v47, s100, {i}")
def stamp_flush(A):
    if not STAMPS: return
    stamp(A, "end"); stamp(A, "endreal", True)
    A("s_lshl_b32 s100, s2, 2")
    A(f"s_add_u32 s100, s100, s{sWAVE}")
    A("s_lshl_b32 s100, s100, 8")
    A(f"s_add_u32 s100, s100, {WS_STAMP:#x}")
    A(f"s_mov_b32 s{sWS+2}, 0x2000000")
    A("v_lshlrev_b32 v46, 2, v1")
    A(f"buffer_store_dword v47, v46, s[{sWS}:{sWS+3}], s100 offen")

def srds(A, which):
    tab = {"X": (sX, 4, 2048*1280), "W": (sW, 6, 640*3840), "WO": (sWO, 8, 640*1280), "W1": (sW1, 12, 2048*3072), "B1": (sB1, 14, 3072),
           "W2": (sW2, 16, 1536*4096), "B2": (sB2, 18, 4096), "GW": (sGW, 20, 1280), "OUT": (sOUT, 22, 2048*1280), "WS": (sWS, 26, WS_SIZE)}
    for w in which:
        base, ptr, size = tab[w]
        A(f"s_mov_b64 s[{base}:{base+1}], s[{ptr}:{ptr+1}]")
        A(f"s_mov_b32 s{base+2}, {size:#x}")
        A(f"s_mov_b32 s{base+3}, 0x20000")

def PS(): return 22528 if OPT["ox4"] else 21504
def RS(): return 176 if OPT["ox4"] else 336
def flat(groups):
    out = []
    for g in groups: out += g if isinstance(g, list) else [g]
    return out

def weave(A, mf, fill, first=0):
    for i, m in enumerate(mf):
        A(m)
        if i < len(fill):
            for x in fill[i]: A(x)
    for g in fill[len(mf):]:
        for x in g: A(x)

def poll_off(A, dst, nper, total_waves_split=True):
    A(f"v_and_b32 v{dst}, {nper-1}, v1")
    A(f"s_mul_i32 s85, s{sWAVE}, {nper}")
    A(f"v_add_lshl_u32 v{dst}, v{dst}, s85, 7")
def poll_ld(vo, so):
    return f"buffer_load_dword v{vPOLL}, v{vo}, s[{sWS}:{sWS+3}], s{so} offen sc1"
def poll_check(A, name, vo, so):
    A(f"v_cmp_ne_u32 vcc, s{sNON}, v{vPOLL}")
    A(f"s_cbranch_vccz {name}_ok")
    A(f"s_mov_b32 s{sM1}, 0")
    A.label(f"{name}_spin")
    A(f"s_add_u32 s{sM1}, s{sM1}, 1")
    A(f"s_cmp_gt_u32 s{sM1}, 0x80000")
    A(f"s_cbranch_scc1 {name}_ok")
    A(f"s_sleep {OPT['sleep']}")
    A(poll_ld(vo, so))
    A("s_waitcnt vmcnt(0)")
    A(f"v_cmp_ne_u32 vcc, s{sNON}, v{vPOLL}")
    A(f"s_cbranch_vccnz {name}_spin")
    A.label(f"{name}_ok")
def flag_store(A, so):
    A(f"v_mov_b32 v2, s{sNON}")
    A("v_lshlrev_b32 v3, 2, v1")
    A("s_mov_b32 exec_hi, 0")
    A(f"buffer_store_dword v2, v3, s[{sWS}:{sWS+3}], s{so} offen sc1")
    A("s_mov_b32 exec_hi, -1")
def publish(A, name, base, sidx, wait=0):
    if wait is not None: A(f"s_waitcnt vmcnt({wait})")
    A("s_barrier")
    A(f"s_cmp_lg_u32 s{sWAVE}, 0")
    A(f"s_cbranch_scc1 {name}_np")
    A(f"s_lshl_b32 s85, s{sidx}, 7")
    A(f"s_add_u32 s85, s85, {base:#x}")
    flag_store(A, 85)
    A.label(f"{name}_np")

def prologue(A):
    A("s_cmp_ge_u32 s2, 256")
    A("s_cbranch_scc1 k_end")
    if STAMPS: A("v_mov_b32 v47, 0")
    stamp(A, "startreal", True); stamp(A, "start")
    A("s_load_dwordx16 s[4:19], s[0:1], 0")
    A("s_load_dwordx8 s[20:27], s[0:1], 64")
    if OPT["pf0"] and not OPT["pfall"]:
        A("s_getpc_b64 s[86:87]")
        A("v_lshlrev_b32 v2, 7, v0")
        A(f"s_mov_b64 exec, {(1 << OPT['pf0']) - 1:#x}")
        A("global_load_dword a255, v2, s[86:87] offset:128")
        A("s_mov_b64 exec, -1")
    A("v_lshrrev_b32 v2, 6, v0")
    A("v_and_b32 v1, 63, v0")
    if OPT["pfall"]:
        A("s_getpc_b64 s[86:87]")
        A.label("pc_0")
        A("s_lshr_b32 s85, s2, 3")
        A("v_lshl_add_u32 v3, s85, 2, v2")
        A("v_mad_u32_u24 v3, v3, 3, v1")
        A("v_cmp_gt_u32 vcc, 3, v1")
        A("v_add_u32 v4, -2, v1")
        A(f"s_mov_b64 exec, {(1 << (3 + OPT['pf0'])) - 1:#x}")
        A("v_cndmask_b32 v3, v4, v3, vcc")
        A("v_lshlrev_b32 v3, 7, v3")
        A("v_min_u32 v3, k_codeend-pc_0-4, v3")
        A("global_load_dword a255, v3, s[86:87]")
        A("s_mov_b64 exec, -1")
    A(f"v_readfirstlane_b32 s{sWAVE}, v2")
    A("s_and_b32 s81, s2, 7")
    A("s_lshr_b32 s82, s2, 3")
    A("s_lshr_b32 s83, s81, 1")
    A("s_and_b32 s84, s81, 1")

def params1(A):
    A(f"s_add_u32 s86, s26, {FL_X:#x}")
    A("s_addc_u32 s87, s27, 0")
    A("s_load_dword s3, s[86:87], 0")
    A("s_lshr_b32 s85, s82, 2")
    A("s_lshl_b32 s88, s83, 3")
    if OPT["perm"]: A("s_xor_b32 s85, s85, 7")
    A(f"s_add_u32 s{sFS}, s85, s88")
    A("s_and_b32 s85, s82, 3")
    A("s_lshl_b32 s88, s84, 2")
    A(f"s_add_u32 s{sFD}, s85, s88")
    if OPT["fmap"]:
        A("s_lshr_b32 s85, s82, 3")
        if OPT["fmap"] == 1:
            A("s_lshl_b32 s85, s85, 3")
            A(f"s_add_u32 s{sFS}, s85, s81")
        else:
            A(f"s_lshl_b32 s{sFS}, s81, 2")
            A(f"s_add_u32 s{sFS}, s{sFS}, s85")
        A(f"s_and_b32 s{sFD}, s82, 7")
    A("s_sub_u32 s85, s82, 8")
    A("s_cmp_lt_u32 s82, 16")
    A("s_cselect_b32 s85, s82, s85")
    A("s_and_b32 s89, s85, 3")
    A(f"s_add_u32 s{sG1D}, s89, s88")
    A("s_lshr_b32 s85, s85, 2")
    A("s_lshl_b32 s88, s85, 2")
    A(f"s_add_u32 s{sG1F}, s83, s88")
    A("s_lshr_b32 s88, s85, 2")
    A("s_lshl_b32 s85, s85, 1")
    A("s_add_u32 s85, s85, s88")
    A("s_lshl_b32 s85, s85, 1")
    if OPT["rfb"] == 0: A("s_mov_b32 s85, 0")
    A(f"s_mul_i32 s89, s89, {OPT['rdb']}")
    A("s_add_u32 s85, s85, s89")
    if OPT["grot"] == 2: A("s_lshl_b32 s85, s85, 1")
    A(f"s_and_b32 s99, s85, {(15 if OPT['grot'] == 4 else 8) if OPT['grot'] else 0}")

def cw_init(A):
    A(f"s_mov_b64 s[{sCW}:{sCW+1}], s[{sW1}:{sW1+1}]")
    A(f"s_mov_b64 s[{sCW+2}:{sCW+3}], s[{sW1+2}:{sW1+3}]")
def params2(A):
    if OPT.get("same"):
        for k, r in enumerate((sG1D, sG1F, sFS, sFD)):
            A(f"s_mov_b32 s{100 if not STAMPS else 64+k}, s{r}")
            A(f"s_mov_b32 s{r}, 0")
        params2_(A)
        for k, r in enumerate((sG1D, sG1F, sFS, sFD)): A(f"s_mov_b32 s{r}, s{64+k}")
    else: params2_(A)
def params2_(A):
    A(f"s_mul_i32 s{sCB1}, s{sWAVE}, {16*32*3072}")
    A(f"s_lshl_b32 s85, s{sG1F}, 7")
    A(f"s_add_u32 s{sCB1}, s{sCB1}, s85")
    A(f"s_add_u32 s{sCE1}, s{sCB1}, {16*32*3072}")
    A(f"s_mul_i32 s85, s99, {32*3072}")
    A(f"s_add_u32 s{sC1}, s{sCB1}, s85")
    A(f"s_mul_i32 s{sCB2}, s{sWAVE}, {16*40960}")
    A(f"s_mul_i32 s85, s{sG1D}, 5120")
    A(f"s_add_u32 s{sCB2}, s{sCB2}, s85")
    A(f"s_add_u32 s{sCE2}, s{sCB2}, {16*40960}")
    A(f"s_mul_i32 s85, s99, 40960")
    A(f"s_add_u32 s{sC2}, s{sCB2}, s85")
    A(f"s_mov_b32 s{sCST}, {32*3072}")
    A(f"s_lshl_b32 s{sCM0}, s{sWAVE}, 14")
    A("s_and_b32 s85, s82, 3")
    A(f"s_mul_i32 s85, s85, {OPT['rfd']}")
    A("s_lshr_b32 s86, s82, 2")
    A("s_mul_i32 s86, s86, 3")
    A("s_lshr_b32 s86, s86, 1")
    A("s_add_u32 s85, s85, s86")
    A("s_cmp_ge_u32 s85, 12")
    A("s_cselect_b32 s86, 12, 0")
    A("s_sub_u32 s85, s85, s86")
    if OPT["frot"] == 0: A("s_mov_b32 s85, 0")
    if OPT["frot"] == 2:
        A(f"s_add_u32 s85, s{sFS}, s{sFD}")
        A("s_and_b32 s85, s85, 1")
        A("s_mul_i32 s85, s85, 6")
    if OPT["frot"] == 3:
        A(f"s_add_u32 s85, s{sFS}, s{sFD}")
        A("s_mul_i32 s86, s85, 86")
        A("s_lshr_b32 s86, s86, 8")
        A("s_mul_i32 s86, s86, 3")
        A("s_sub_u32 s85, s85, s86")
        A("s_lshl_b32 s85, s85, 2")
    A(f"s_mul_i32 s{sFB1}, s{sWAVE}, {12*32*4096}")
    A(f"s_lshl_b32 s86, s{sFS}, 7")
    A(f"s_add_u32 s{sFB1}, s{sFB1}, s86")
    A(f"s_add_u32 s{sFE1}, s{sFB1}, {12*32*4096}")
    A(f"s_lshl_b32 s86, s85, 17")
    A(f"s_add_u32 s{sF1}, s{sFB1}, s86")
    A(f"s_mul_i32 s{sFB2}, s{sWAVE}, {12*40960}")
    A(f"s_mul_i32 s86, s{sFD}, 5120")
    A(f"s_add_u32 s{sFB2}, s{sFB2}, s86")
    A(f"s_add_u32 s{sFB2}, s{sFB2}, {WS_U:#x}")
    A(f"s_add_u32 s{sFE2}, s{sFB2}, {12*40960}")
    A(f"s_mul_i32 s86, s85, 40960")
    A(f"s_add_u32 s{sF2}, s{sFB2}, s86")
    A(f"v_lshlrev_b32 v{vB0}, 4, v1")
    A(f"v_add_u32 v{vB1}, 4096, v{vB0}")
    A("v_lshrrev_b32 v2, 2, v1")
    A("v_lshrrev_b32 v3, 1, v2")
    A("v_and_b32 v3, 3, v3")
    A("v_lshlrev_b32 v2, 7, v2")
    A("v_lshl_add_u32 v2, v3, 5, v2")
    A("v_and_b32 v3, 3, v1")
    A("v_lshl_add_u32 v2, v3, 3, v2")
    A(f"v_add_u32 v{vTR}, s{sCM0}, v2")
    for t in range(1, 4): A(f"v_xor_b32 v{vTR+t}, {32*t}, v{vTR}")
    A("v_lshrrev_b32 v2, 3, v1")
    A("v_lshrrev_b32 v3, 4, v1")
    A("v_lshlrev_b32 v3, 1, v3")
    A("v_and_b32 v4, 7, v1")
    A("v_xor_b32 v3, v3, v4")
    A("v_lshlrev_b32 v3, 4, v3")
    for base, stride in ((vWS_, 3072), (vWS2, 4096)):
        A(f"v_mul_u32_u24 v4, {stride}, v2")
        A(f"v_add_u32 v{base}, v3, v4")
        for q in range(1, 4): A(f"v_add_u32 v{base+q}, {q*(8*stride-1024)}, v{base}")
    poll_off(A, vPO, 16)
    A("v_lshlrev_b32 v15, 7, v1")
    A(f"s_mov_b32 s24, {FL_LN:#x}")
    A(f"s_mov_b32 s25, {FL_Q:#x}")
    A("s_waitcnt lgkmcnt(0)")
    A(f"s_mul_i32 s{sNON}, s3, 0x41C64E6D")
    A(f"s_add_u32 s{sNON}, s{sNON}, 0x3C6EF35F")

def qkv_setup(A, isq):
    A(f"s_lshr_b32 s{sWR_}, s{sWAVE}, 1")
    A(f"s_and_b32 s{sWC_}, s{sWAVE}, 1")
    A("v_lshrrev_b32 v2, 3, v1")
    A(f"s_lshl_b32 s85, s{sWAVE}, 5")
    A("v_add_u32 v2, s85, v2")
    A("v_mul_u32_u24 v2, 1280, v2")
    A("v_lshrrev_b32 v3, 4, v1")
    A("v_and_b32 v4, 7, v1")
    A("v_xor_b32 v4, v4, v3")
    A(f"v_lshl_add_u32 v{vXO}, v4, 4, v2")
    A("v_xor_b32 v4, 4, v4")
    A("v_lshl_add_u32 v6, v4, 4, v2")
    A(f"v_add_u32 v{vXO+1}, {8*1280-1024}, v6")
    A(f"v_add_u32 v{vXO+2}, {16*1280-2048}, v{vXO}")
    A(f"v_add_u32 v{vXO+3}, {24*1280-3072}, v6")
    A(f"s_mul_i32 s{sO1}, s{sA}, {0 if OPT.get('same') else 128*1280}")
    A(f"s_mov_b32 s{sO2}, 0")
    if OPT["rot"]:
        q = OPT["qrot"]
        if q == 1:
            A("s_and_b32 s85, s82, 3")
            A("s_lshl_b32 s85, s85, 2")
            A("s_lshr_b32 s85, 0x8530, s85")
            A("s_and_b32 s85, s85, 15")
            A("s_and_b32 s86, s82, 12")
            A("s_lshr_b32 s86, 0x8530, s86")
            A("s_and_b32 s86, s86, 15")
            A("s_add_u32 s85, s85, s86")
            A("s_add_u32 s85, s85, s83")
            A("s_add_u32 s85, s85, s84")
        else:
            A("s_lshr_b32 s85, s82, 2")
            A("s_add_u32 s85, s85, s82")
            A("s_and_b32 s85, s85, 1")
            A("s_mul_i32 s85, s85, 5")
            if q == 2:
                A("s_add_u32 s85, s85, s83")
                A("s_add_u32 s85, s85, s84")
            if q == 4:
                A("s_add_u32 s85, s85, s81")
            if q == 5:
                A("s_mov_b32 s85, s81")
        if isq: A("s_add_u32 s85, s85, 1")
        A("s_mul_i32 s86, s85, 26")
        A("s_lshr_b32 s86, s86, 8")
        A("s_mul_i32 s86, s86, 10")
        A("s_sub_u32 s85, s85, s86")
        A(f"s_mul_i32 s{sO2}, s85, {64*3840}")
        A("s_lshl_b32 s85, s85, 7")
        A(f"s_add_u32 s{sO1}, s{sO1}, s85")
    A(f"s_lshl_b32 s{sM0}, s{sWAVE}, 12")
    A(f"s_mul_i32 s{sM1}, s{sWAVE}, 5120")
    A(f"s_add_u32 s{sM1}, s{sM1}, 16384")
    A(f"s_mov_b32 s{sWR}, {2*STG}")

def qkv_setup_w(A, isq):
    if OPT.get("same"):
        A("s_mov_b32 s86, 1280")
    elif isq:
        A(f"s_mul_i32 s86, s{sBp}, 320")
    else:
        A(f"s_mul_i32 s86, s{sBp}, 160")
        A("s_add_u32 s86, s86, 1280")
    A(f"s_mul_i32 s85, s{sWAVE}, {16*3840}")
    A("s_add_u32 s85, s85, s86")
    A("s_movk_i32 s88, 3840")
    for n in range(5):
        if n: A(f"v_add_u32 v2, {64*n}, v1")
        q = "v2" if n else "v1"
        A(f"v_mul_u32_u24 v3, 3277, {q}")
        A("v_lshrrev_b32 v3, 16, v3")
        A(f"v_mad_i32_i24 v4, v3, -20, {q}")
        A("v_lshrrev_b32 v5, 2, v3")
        A("v_and_b32 v5, 2, v5")
        A("v_xor_b32 v4, v4, v5")
        comp = 1024*n if n < 4 else 0
        A(f"s_sub_u32 s87, s85, {comp}" if comp else "s_mov_b32 s87, s85")
        A("v_mad_u32_u24 v3, v3, s88, s87" if False else "v_mul_u32_u24 v3, 3840, v3")
        A("v_lshl_add_u32 v3, v4, 4, v3")
        if not isq:
            A("v_cmp_le_u32 vcc, 10, v4")
            A("v_add_u32 v5, 1120, v3")
            A("v_add_u32 v3, s87, v3")
            A("v_add_u32 v5, s87, v5")
            A(f"v_cndmask_b32 v{vWO_+n}, v3, v5, vcc")
        else:
            A(f"v_add_u32 v{vWO_+n}, s87, v3")

def nt(b): return " nt" if OPT["ntq"] & b else ""
def qkv_dma():
    L = [[f"s_add_u32 m0, s{sWR}, s{sM0}"]]
    for n in range(4):
        L.append([f"buffer_load_dwordx4 v{vXO+n}, s[{sX}:{sX+3}], s{sO1} offen offset:{1024*n}{nt(1)} lds"])
    L.append([f"s_add_u32 m0, s{sWR}, s{sM1}"])
    for n in range(4):
        L.append([f"buffer_load_dwordx4 v{vWO_+n}, s[{sW}:{sW+3}], s{sO2} offen offset:{1024*n}{nt(2)} lds"])
    L.append(["s_add_u32 m0, m0, 4096"])
    L.append([f"buffer_load_dwordx4 v{vWO_+4}, s[{sW}:{sW+3}], s{sO2} offen{nt(2)} lds"])
    return L
def qkv_adv():
    return [f"s_add_u32 s{sO1}, s{sO1}, 128", f"s_add_u32 s{sO2}, s{sO2}, {64*3840}", f"s_cmp_eq_u32 s{sO2}, {640*3840}",
            "s_cselect_b32 s85, 1280, 0", f"s_cselect_b32 s{sO2}, 0, s{sO2}", f"s_sub_u32 s{sO1}, s{sO1}, s85",
            f"s_add_u32 s{sWR}, s{sWR}, {STG}", f"s_cmp_eq_u32 s{sWR}, {4*STG}", f"s_cselect_b32 s{sWR}, 0, s{sWR}"]
def emit_dma_block(A, groups):
    for g in groups:
        for x in g: A(x)
        if "m0" in g[0].split(",")[0]: A("s_nop 0")

NW = 5
vXB, vCUR = 26, 6
vXB = 208
vCUR = 215
def qkv_reads(kk, fs):
    def wr(t):
        return [f"ds_read_b64_tr_b16 {ar(fs+16+4*t+2*j,2)}, v{vCUR+2+t} offset:{kk*10240 + j*1280}" for j in range(2)]
    L = wr(0)
    for st in range(4):
        L.append(f"ds_read_b128 {ar(fs+4*st,4)}, v{vCUR+kk} offset:{st*2048}")
    for t in range(1, 5): L += wr(t)
    return L
def qkv_mfmas(fs, isq):
    L = []
    order = [(t, st) for t in range(5) for st in range(4)]
    if OPT["mo"] & 1: order = [(t, st) for st in range(4) for t in range(5)]
    if OPT["mo"] & 4: order = [(t, st if t % 2 == 0 else 3 - st) for t in range(5) for st in range(4)]
    for t, st in order:
            x = ar(fs + 4*st, 4); w = ar(fs + 16 + 4*t, 4); c = vr(ACC + (st*5+t)*4, 4)
            L.append(f"v_mfma_f32_16x16x32_bf16 {c}, {w}, {x}, {c}" if isq else f"v_mfma_f32_16x16x32_bf16 {c}, {x}, {w}, {c}")
    return L

def qkv_gemm(A, pfx, isq, mid_setup, extras, pres, blk):
    if OPT["xfirst"]:
        emit_dma_block(A, qkv_dma()[:5])
        qkv_setup_w(A, isq)
        emit_dma_block(A, qkv_dma()[5:])
    else:
        emit_dma_block(A, qkv_dma())
    for x in qkv_adv(): A(x)
    stamp(A, pfx + "_iss0")
    mid_setup(A)
    A("v_and_b32 v2, 15, v1")
    A("v_lshrrev_b32 v3, 4, v1")
    A("v_lshrrev_b32 v4, 1, v2")
    A("v_xor_b32 v4, v4, v3")
    A("v_lshlrev_b32 v4, 4, v4")
    A("v_lshl_add_u32 v4, v2, 7, v4")
    A(f"s_lshl_b32 s85, s{sWR_}, 13")
    A(f"v_add_u32 v{vXB}, s85, v4")
    A(f"v_xor_b32 v{vXB+1}, 64, v{vXB}")
    A("v_lshrrev_b32 v4, 2, v2")
    A("v_lshl_add_u32 v4, v3, 3, v4")
    A("v_mul_u32_u24 v4, 320, v4")
    A("v_and_b32 v5, 1, v1")
    A("v_lshl_add_u32 v4, v5, 3, v4")
    A("v_add_u32 v4, 16384, v4")
    A("v_bfe_u32 v5, v1, 1, 1")
    A("v_and_b32 v6, 1, v3")
    A("v_lshlrev_b32 v6, 1, v6")
    A(f"s_mul_i32 s85, s{sWC_}, {10 if isq else 5}")
    for t in range(5):
        if isq: c0, step = [(0, 1), (2, 1), (4, 5), (5, 1), (7, 1)][t]
        else: c0, step = [(0, 1), (2, 1), (4, 6), (11, 1), (13, 1)][t]
        A(f"s_add_u32 s86, s85, {c0}")
        if step == 1: A("v_add_u32 v7, s86, v5")
        else: A(f"v_mad_u32_u24 v7, v5, {step}, s86")
        A("v_xor_b32 v7, v7, v6")
        A(f"v_lshl_add_u32 v{vXB+2+t}, v7, 4, v4")
    zero_acc(A)
    A(f"s_mov_b32 s{sRD}, {2*STG}")
    A(f"s_mov_b32 s{sCNT}, 0")
    upd = [f"v_add_u32 v{vCUR+i}, s{sRD}, v{vXB+i}" for i in range(7)]
    rdadv = [f"s_add_u32 s{sRD}, s{sRD}, {STG}", f"s_cmp_eq_u32 s{sRD}, {4*STG}", f"s_cselect_b32 s{sRD}, 0, s{sRD}"]
    def spread(rd, dma_slots, groups, scal):
        fill = [[] for _ in range(20)]
        k = 0
        for gi in range(9):
            for _ in range(2 if gi < 5 else 1):
                fill[gi].append(rd[k]); k += 1
        g = list(groups)
        for sl in dma_slots:
            if not g: break
            if "m0" in g[0][0].split(",")[0]:
                fill[sl-1] += g.pop(0)
            fill[sl] += g.pop(0)
        return fill, g
    def put_scal(fill, scal, start):
        sc = list(scal); gi = start
        while sc:
            room = 2 - len(fill[gi]) if gi < 19 else len(sc)
            for _ in range(max(room, 0)):
                if sc: fill[gi].append(sc.pop(0))
            gi += 1
    def top_half(wait, groups, pre=None, slots=(3, 7, 11, 15, 19)):
        A(f"s_waitcnt vmcnt({wait}) lgkmcnt(0)")
        if pre: pre(A)
        A("s_barrier")
        fill, rest = spread(qkv_reads(0, FA_), slots, groups, [])
        weave(A, qkv_mfmas(FB_, isq), fill)
        return rest
    def bot_half(adv, tail, groups=[], slots=(2, 6, 10, 13)):
        A("s_waitcnt lgkmcnt(0)")
        fill, rest = spread(qkv_reads(1, FB_), slots, groups, [])
        assert not rest
        put_scal(fill, rdadv + upd, 9)
        put_scal(fill, (qkv_adv() if adv else []) + tail, 14)
        weave(A, qkv_mfmas(FA_, isq), fill)
    for x in upd: A(x)
    stamp(A, pfx + "_setup")
    emit_dma_block(A, qkv_dma())
    for x in qkv_adv(): A(x)
    stamp(A, pfx + "_issued")
    A("s_waitcnt vmcnt(9)")
    A("s_barrier")
    stamp(A, pfx + "_first")
    for x in qkv_reads(0, FA_): A(x)
    emit_dma_block(A, qkv_dma()[:7])
    A(f"s_branch {pfx}_mid")
    A(f".p2align {OPT['lal']}")
    A.label(f"{pfx}_loop")
    outl = []
    for k, (c, fn) in enumerate(blk):
        A(f"s_cmp_eq_u32 s{sCNT}, {c}")
        A(f"s_cbranch_scc1 {pfx}_blk{k}")
    A.label(f"{pfx}_noblk")
    rest = top_half(9, qkv_dma())
    assert len(rest) == 5
    A.label(f"{pfx}_mid")
    ntl = OPT["ntl"]
    bot_half(True, [f"s_add_u32 s{sCNT}, s{sCNT}, 1", f"s_cmp_lt_u32 s{sCNT}, {ntl if ntl else 8}"], rest)
    A(f"s_cbranch_scc1 {pfx}_loop")
    if ntl:
        keep = OPT["ntq"]; OPT["ntq"] = OPT["ntlq"] if isq else OPT["ntlk"]
        A(f".p2align {OPT['lal']}")
        A.label(f"{pfx}_loop2")
        rest = top_half(9, qkv_dma())
        bot_half(True, [f"s_add_u32 s{sCNT}, s{sCNT}, 1", f"s_cmp_lt_u32 s{sCNT}, 8"], rest)
        A(f"s_cbranch_scc1 {pfx}_loop2")
        OPT["ntq"] = keep
    for it in (8, 9):
        g, w = extras.get(it, ([], 9 if it == 8 else 0))
        sl = (1, 3, 5, 8, 10, 12, 14, 16, 18) if len(g) > 14 else (2, 5, 8, 11, 14, 17)
        rest = top_half(w, g, pres.get(it), sl)
        bot_half(False, [], rest, sl)
    stamp(A, pfx + "_loop9")
    A("s_waitcnt lgkmcnt(0)")
    if isq and not OPT["kweave"]:
        for m in qkv_mfmas(FB_, isq): A(m)
        A("s_nop 7")
        stamp(A, pfx + "_loopdone")
    def outline(A):
        for k, (c, fn) in enumerate(blk):
            A.label(f"{pfx}_blk{k}")
            fn(A)
            A(f"s_branch {pfx}_noblk")
    return outline

PAIRS = [(2,0),(3,0),(2,1),(3,1),(4,1),(3,2),(4,2)]
def kv_mask(i):
    te, tc = PAIRS[i]; m = 0
    for l in range(64):
        c = 16*tc + l % 16; e = [-8, 8, 24][te-2] + 4*(l//16)
        if c < 40 and e >= 0 and c//20 == e//20: m |= 1 << l
    return m

KVB = [sum(bin(kv_mask(j)).count("1") for j in range(i)) for i in range(8)]
def kv_rank(A, dst, i, shift, add=0):
    m = kv_mask(i)
    A(f"s_mov_b32 s85, {m & 0xffffffff:#x}")
    A(f"s_mov_b32 s86, {m >> 32:#x}")
    A(f"v_mbcnt_lo_u32_b32 v{dst}, s85, {KVB[i]}" if KVB[i] <= 64 else f"v_mov_b32 v{dst}, {KVB[i]}\nv_mbcnt_lo_u32_b32 v{dst}, s85, v{dst}")
    A(f"v_mbcnt_hi_u32_b32 v{dst}, s86, v{dst}")
    A(f"v_lshlrev_b32 v{dst}, {shift}, v{dst}")
    if add: A(f"v_add_u32 v{dst}, {add}, v{dst}")
vKR = 246
def phi4(A, b, T, dst=None):
    dst = b if dst is None else dst
    A(f"v_pk_mul_f32 {vr(T,2)}, {vr(b,2)}, s[{sL2}:{sL2+1}]")
    A(f"v_pk_mul_f32 {vr(T+2,2)}, {vr(b+2,2)}, s[{sL2}:{sL2+1}]")
    for i in range(4): A(f"v_exp_f32 v{T+i}, v{T+i} clamp")
    for i in range(4): A(f"v_max_f32 v{dst+i}, {EPS6:#x}, v{b+i}")
    A(f"v_pk_add_f32 {vr(dst,2)}, {vr(dst,2)}, {vr(T,2)}")
    A(f"v_pk_add_f32 {vr(dst+2,2)}, {vr(dst+2,2)}, {vr(T+2,2)}")
sL2 = 88
vEW, vEZ, vER, sKVS = 250, 251, 252, 26
def kv_esetup(A):
    A(f"s_lshl_b32 s85, s{sBp}, 1")
    A(f"s_add_u32 s85, s85, s{sWC_}")
    A("s_lshl_b32 s86, s85, 4")
    A(f"s_add_u32 s86, s86, s{sA}")
    A("s_lshl_b32 s87, s86, 8")
    A(f"s_mul_i32 s{sKVS}, s86, 3200")
    A(f"s_sub_u32 s87, s87, s{sKVS}")
    A(f"s_add_u32 s87, s87, {WS_ZP - WS_KVP:#x}")
    A("s_lshr_b32 s87, s87, 4")
    A(f"s_add_u32 s{sKVS}, s{sKVS}, {WS_KVP:#x}")
    A("v_mov_b32 v2, 0x7ff00000")
    for k in range(4):
        mA = kv_mask(k); mB = kv_mask(4+k) if k < 3 else 0xffff
        A(f"s_cmp_eq_u32 s{sWR_}, 0")
        A(f"s_mov_b32 s92, {mB & 0xffffffff:#x}")
        A(f"s_cselect_b32 s92, {mA & 0xffffffff:#x}, s92")
        A(f"s_mov_b32 s93, {mB >> 32:#x}")
        A(f"s_cselect_b32 s93, {mA >> 32:#x}, s93")
        if k < 3: A(f"s_mov_b32 s88, {KVB[4+k]}")
        A(f"s_cselect_b32 s88, {KVB[k]}, s{88 if k < 3 else 87}")
        A(f"v_mov_b32 v{vKR+k}, s88")
        A(f"v_mbcnt_lo_u32_b32 v{vKR+k}, s92, v{vKR+k}")
        A(f"v_mbcnt_hi_u32_b32 v{vKR+k}, s93, v{vKR+k}")
        A(f"v_lshlrev_b32 v{vKR+k}, 4, v{vKR+k}")
        A(f"v_cndmask_b32 v{vKR+k}, v2, v{vKR+k}, s[92:93]")
    A(f"s_mul_i32 s85, s{sWAVE}, 8448")
    A(f"s_add_u32 s85, s85, {LDS_RED}")
    A(f"v_add_u32 v{vEW}, s85, v{vB0}")
    A(f"v_lshl_add_u32 v{vEZ}, v1, 2, s85")
    A(f"s_mul_i32 s85, s{sWC_}, 8448")
    A(f"s_lshl_b32 s86, s{sWR_}, 12")
    A("s_add_u32 s85, s85, s86")
    A(f"s_add_u32 s85, s85, {LDS_RED}")
    A(f"v_add_u32 v{vER}, s85, v{vB0}")
    A("v_and_b32 v2, 15, v1")
    A(f"v_cmp_gt_u32 s[{sMK}:{sMK+1}], 8, v2")
    A("v_cmp_lt_u32 s[64:65], 15, v1")
    A("v_cmp_lt_u32 s[66:67], 31, v1")
def kv_estream():
    PB, KA, ONE, TMP = 128, 168, 208, 212
    E = [Asm(), Asm(), Asm(), Asm()]
    A = E[0]
    A(f"s_mov_b32 s{sL2}, {LOG2E:#x}")
    A(f"s_mov_b32 s{sL2+1}, {LOG2E:#x}")
    for i in range(4): A(f"v_mov_b32 v{ONE+i}, 0x3f803f80")
    for st in range(4):
        A = E[st // 2]
        for t in range(3):
            b = ACC + (st*5+t)*4
            if t < 2: phi4(A, b, TMP)
            else:
                phi4(A, b, TMP, TMP+4)
                for i in range(4): A(f"v_cndmask_b32 v{b+i}, v{b+i}, v{TMP+4+i}, s[{sMK}:{sMK+1}]")
        for t in range(5):
            b = ACC + (st*5+t)*4
            d = PB + (t*2 + st//2)*4 + (st & 1)*2
            A(f"v_cvt_pk_bf16_f32 v{d}, v{b}, v{b+1}")
            A(f"v_cvt_pk_bf16_f32 v{d+1}, v{b+2}, v{b+3}")
        if st & 1:
            sp = st // 2
            A("s_nop 1")
            for tc in range(3):
                c = vr(KA+4*(7+tc), 4)
                A(f"v_mfma_f32_16x16x32_bf16 {c}, {vr(ONE,4)}, {vr(PB+(tc*2+sp)*4,4)}, {c if sp else 0}")
            for i, (te, tc) in enumerate(PAIRS):
                c = vr(KA+4*i, 4)
                A(f"v_mfma_f32_16x16x32_bf16 {c}, {vr(PB+(te*2+sp)*4,4)}, {vr(PB+(tc*2+sp)*4,4)}, {c if sp else 0}")
    A = E[1]
    A("s_nop 0")
    A(f"v_cndmask_b32 v{KA+28}, v{KA+28}, v{KA+32}, s[64:65]")
    A(f"v_cndmask_b32 v{KA+28}, v{KA+28}, v{KA+36}, s[66:67]")
    A(f"ds_write_b32 v{vEZ}, v{KA+28} offset:7168")
    for i in range(7): A(f"ds_write_b128 v{vEW}, {vr(KA+4*i,4)} offset:{1024*i}")
    A = E[2]
    for k in range(4):
        A(f"ds_read_b128 {vr(PB+8*k,4)}, v{vER} offset:{1024*k}")
        A(f"ds_read_b128 {vr(PB+8*k+4,4)}, v{vER} offset:{1024*k + 16896}")
    A = E[3]
    A("s_waitcnt lgkmcnt(0)")
    for k in range(4):
        for i in (0, 2): A(f"v_pk_add_f32 {vr(PB+8*k+i,2)}, {vr(PB+8*k+i,2)}, {vr(PB+8*k+4+i,2)}")
    for k in range(4):
        A(f"buffer_store_dwordx4 {vr(PB+8*k,4)}, v{vKR+k}, s[{sWS}:{sWS+3}], s{sKVS} offen sc1")
    return [e.lines for e in E]

def w1_setup(A, locbase, vreg):
    A(f"s_sub_u32 s88, s82, {locbase}")
    A("s_lshl_b32 s88, s88, 2")
    A(f"s_add_u32 s88, s88, s{sWAVE}")
    A(f"v_and_b32 v{vreg}, 31, v1")
    A(f"v_mul_u32_u24 v{vreg}, 3072, v{vreg}")
    A("v_lshrrev_b32 v3, 5, v1")
    A(f"v_lshl_add_u32 v{vreg}, v3, 9, v{vreg}")
    A(f"s_mul_i32 s85, s88, {32*3072}")
    A("s_lshl_b32 s86, s83, 7")
    A("s_add_u32 s85, s85, s86")
    A(f"s_mul_i32 s86, s84, {1024*3072}")
    A("s_add_u32 s26, s86, s85")
    A("s_xor_b32 s87, s84, 1")
    A(f"s_mul_i32 s87, s87, {1024*3072}")
    A("s_add_u32 s27, s87, s85")

def w2_prefetch(A, locbase, parts):
    A(f"s_sub_u32 s85, s82, {locbase}")
    A("s_lshl_b32 s85, s85, 2")
    A(f"s_add_u32 s85, s85, s{sWAVE}")
    if OPT["fmap"] and OPT["w2c"] != 2:
        A("v_lshrrev_b32 v2, 2, v1")
        A("v_lshlrev_b32 v2, 12, v2")
        A("v_and_b32 v3, 3, v1")
        A(f"v_lshl_add_u32 v2, v3, {10 if OPT['fmap'] == 1 else 7}, v2")
        A(f"s_mul_i32 s85, s85, {48*4096}")
        A(f"s_lshl_b32 s86, s81, {7 if OPT['fmap'] == 1 else 9}")
        A("s_add_u32 s85, s85, s86")
        if parts[0]: A(f"s_add_u32 s85, s85, {16*4096*parts[0]}")
        for i in parts:
            A(f"buffer_load_dword a255, v2, s[{sW2}:{sW2+3}], s85 offen")
            if i != parts[-1]: A(f"s_add_u32 s85, s85, {16*4096}")
        return
    if OPT["w2c"]:
        A("s_lshl_b32 s86, s81, 5")
        A("s_add_u32 s85, s85, s86")
        A("s_lshl_b32 s85, s85, 13")
        if parts[0]: A(f"s_add_u32 s85, s85, {(8192*256)*parts[0]}")
        for i in parts:
            A(f"buffer_load_dword a255, v15, s[{sW2}:{sW2+3}], s85 offen")
            if i != parts[-1]: A(f"s_add_u32 s85, s85, {8192*256}")
        return
    A("v_lshrrev_b32 v2, 3, v1")
    A("v_lshlrev_b32 v2, 12, v2")
    A("v_and_b32 v3, 7, v1")
    A("v_lshl_add_u32 v2, v3, 7, v2")
    A("s_mul_i32 s85, s85, 24")
    A("s_mul_i32 s86, s84, 768")
    A("s_add_u32 s85, s85, s86")
    A(f"s_add_u32 s85, s85, {8*parts[0]}")
    A("s_lshl_b32 s85, s85, 12")
    A("s_lshl_b32 s86, s83, 10")
    A("s_add_u32 s85, s85, s86")
    for i in parts:
        A(f"buffer_load_dword a255, v2, s[{sW2}:{sW2+3}], s85 offen")
        if i != parts[-1]: A(f"s_add_u32 s85, s85, {8*4096}")

QCB = [0, 16, 32, 40, 56]
QDP = [(0,0),(0,1),(1,0),(1,1),(1,2),(2,1),(2,2),(2,4),(3,3),(3,4),(4,2),(4,3),(4,4)]
sMA, sZO, sKO, sPQ, sWOo, sGo = 56, 58, 59, 64, 67, 23
vWOd, vWOt, vZA, vKP, vGo, vT1 = 248, 246, 252, 245, 25, 244
MSK = 194
def q_setup(A):
    T = 128
    A(f"s_mul_i32 s{sWOo}, s{sU}, {40*1280}")
    A(f"s_mul_i32 s86, s{sNR}, 320")
    A(f"s_add_u32 s{sWOo}, s{sWOo}, s86")
    A(f"s_lshl_b32 s86, s{sWAVE}, 8")
    for n in range(4):
        A(f"v_add_u32 v2, {64*n}, v1")
        A("v_add_u32 v2, s86, v2")
        A("v_mul_u32_u24 v3, 3277, v2")
        A("v_lshrrev_b32 v3, 16, v3")
        A("v_mul_u32_u24 v4, 20, v3")
        A("v_sub_u32 v4, v2, v4")
        A("v_mul_u32_u24 v3, 1280, v3")
        A(f"v_lshl_add_u32 v{vWOd+n}, v4, 4, v3")
        if n: A(f"v_subrev_u32 v{vWOd+n}, {1024*n}, v{vWOd+n}")
    A("v_and_b32 v3, 15, v1")
    A("v_lshrrev_b32 v4, 4, v1")
    A(f"v_lshlrev_b32 v{vGo}, 2, v3")
    A(f"s_lshl_b32 s86, s{sA}, 9")
    A(f"s_lshl_b32 s87, s{sWR_}, 8")
    A("s_add_u32 s86, s86, s87")
    A(f"s_add_u32 s{sGo}, s86, {WS_G:#x}")
    A("v_bfe_u32 v5, v1, 1, 2")
    A(f"s_lshl_b32 s85, s{sWAVE}, 2")
    A("v_add_lshl_u32 v5, v5, s85, 3")
    A("v_and_b32 v6, 1, v1")
    A(f"s_lshl_b32 s85, s{sBp}, 1")
    A("v_add3_u32 v5, v5, v6, s85")
    A(f"v_lshlrev_b32 v{vKP}, 7, v5")
    A("v_lshrrev_b32 v5, 2, v3")
    A("v_lshl_add_u32 v5, v4, 2, v5")
    A("v_and_b32 v6, 7, v5")
    A("v_mul_u32_u24 v6, 320, v6")
    A("v_mul_u32_u24 v5, 320, v5")
    A("v_and_b32 v7, 3, v1")
    A("v_lshlrev_b32 v7, 3, v7")
    A(f"s_lshl_b32 s86, s{sWAVE}, 5")
    A("v_add_u32 v7, s86, v7")
    A(f"v_add_u32 v{vWOt}, v6, v7")
    A(f"v_add_u32 v{vWOt+1}, v5, v7")
    A(f"s_lshr_b32 s86, s{sU}, 2")
    A("s_mul_i32 s86, s86, 5")
    A(f"s_bfe_u32 s87, s{sU}, 0x10001")
    A(f"s_and_b32 s88, s{sU}, 1")
    A("s_mul_i32 s89, s87, 3")
    A("s_add_u32 s89, s89, s88")
    A("s_add_u32 s89, s89, s86")
    A(f"s_mul_i32 s{sMA}, s89, 40960")
    A("s_add_u32 s86, s86, 2")
    A(f"s_mul_i32 s{sMA+1}, s86, 40960")
    A("s_lshl_b32 s87, s87, 3")
    A("s_lshl_b32 s88, s88, 9")
    A(f"s_add_u32 s{sMA+1}, s{sMA+1}, s87")
    A(f"s_add_u32 s{sMA+1}, s{sMA+1}, s88")
    A(f"s_mul_i32 s86, s{sNR}, 10240")
    A(f"s_lshl_b32 s87, s{sWAVE}, 10")
    A("s_add_u32 s86, s86, s87")
    A(f"s_add_u32 s86, s86, {WS_M:#x}")
    A(f"s_add_u32 s{sMA}, s{sMA}, s86")
    A(f"s_add_u32 s{sMA+1}, s{sMA+1}, s86")
    A(f"s_lshl_b32 s85, s{sA}, 1")
    A(f"s_add_u32 s85, s85, s{sWR_}")
    A("s_mul_i32 s85, s85, 20")
    A(f"s_mul_i32 s86, s{sBp}, 5")
    A("s_add_u32 s85, s85, s86")
    A("s_lshl_b32 s85, s85, 12")
    A(f"s_add_u32 s85, s85, {WS_PQ:#x}")
    A(f"s_mul_i32 s86, s{sWC_}, {3*4096}")
    A(f"s_add_u32 s{sPQ}, s86, s85")
    A(f"s_add_u32 s{sPQ+1}, s{sPQ}, 4096")
    A(f"s_lshl_b32 s88, s{sWC_}, 3")
    A("s_add_u32 s88, s88, s85")
    A(f"s_add_u32 s{sPQ+2}, s88, 8192")
    A(f"v_add_u32 v5, s{sWAVE}, v1")
    A(f"s_mul_i32 s85, s{sWAVE}, 9")
    A("v_add_u32 v5, s85, v5")
    A("v_lshrrev_b32 v6, 2, v5")
    A("v_and_b32 v5, 3, v5")
    A("v_lshlrev_b32 v5, 7, v5")
    A("v_lshl_add_u32 v5, v6, 10, v5")
    A(f"s_sub_u32 s85, s{sMA+1}, s87")
    A("s_and_b32 s85, s85, 0xffffff80")
    A("v_add_u32 v5, s85, v5")
    A(f"s_and_b32 s85, s{sPQ+2}, 0xffffff80")
    A(f"s_lshl_b32 s86, s{sWC_}, 11")
    A("s_add_u32 s85, s85, s86")
    A("v_lshlrev_b32 v6, 7, v3")
    A("v_add_u32 v6, s85, v6")
    A("v_cmp_gt_u32 vcc, 10, v1")
    A("s_nop 1")
    A(f"v_cndmask_b32 v{vT1}, v6, v5, vcc")
    A(f"v_mov_b32 v{T}, {LDS_RED + 1600}")
    for i in range(7):
        kv_rank(A, 26+i, i, 3, LDS_RED)
        A(f"s_mov_b32 s92, s85")
        A(f"s_mov_b32 s93, s86")
        A(f"v_cndmask_b32 v{26+i}, v{T}, v{26+i}, s[92:93]")
    cb = QCB
    for t in range(5):
        A(f"v_lshl_add_u32 v{T+t}, v4, 2, {cb[t]}")
        A(f"v_add_u32 v{T+5+t}, {cb[t]}, v3")
        if t == 2:
            A("v_lshrrev_b32 v5, 1, v4")
            A(f"v_lshl_add_u32 v{T+t}, v5, 5, v{T+t}")
            A("v_mul_u32_u24 v7, 4064, v5")
            A("v_lshrrev_b32 v5, 3, v3")
            A(f"v_lshl_add_u32 v{T+5+t}, v5, 5, v{T+5+t}")
        A(f"v_mul_u32_u24 v{T+t}, 205, v{T+t}")
        A(f"v_lshrrev_b32 v{T+t}, 12, v{T+t}")
        A(f"v_mul_u32_u24 v{T+5+t}, 205, v{T+5+t}")
        A(f"v_lshrrev_b32 v{T+5+t}, 12, v{T+5+t}")
    for k, (tp, t) in enumerate(QDP):
        A(f"v_cmp_eq_u32 vcc, v{T+t}, v{T+5+tp}")
        A("s_nop 1")
        A(f"v_cndmask_b32 v{MSK+k}, 0, -1, vcc")
    A("v_lshlrev_b32 v5, 8, v3")
    A(f"v_lshl_add_u32 v{vZA}, v4, 4, v5")
    A(f"v_add_u32 v{vZA+2}, v7, v{vZA}")
    A(f"v_add_u32 v{vZA+1}, 4096, v{vZA}")
    A(f"s_lshl_b32 s86, s{sBp}, 14")
    A(f"s_lshl_b32 s87, s{sWC_}, 13")
    A("s_add_u32 s86, s86, s87")
    A(f"s_add_u32 s{sZO}, s86, {WS_ZP:#x}")
    A(f"s_mul_i32 s89, s{sU}, {16*3200}")
    A(f"s_mul_i32 s87, s{sWAVE}, 800")
    A("s_add_u32 s87, s87, s89")
    A(f"s_add_u32 s{sKO}, s87, {WS_KVP:#x}")
    if OPT["qw2"]:
        A("s_sub_u32 s85, s82, 16")
        A("s_lshl_b32 s85, s85, 2")
        A(f"s_add_u32 s85, s85, s{sWAVE}")
        A("s_lshl_b32 s86, s81, 5")
        A("s_add_u32 s85, s85, s86")
        A("s_lshl_b32 s85, s85, 13")
        A(f"s_add_u32 s99, s85, {8192*256*(3 - OPT['qw2'])}")
def q_pf_only(A):
    for k in range(3 - OPT["qw1n"], 3):
        A(f"buffer_load_dword a255, v12, s[{sW1}:{sW1+3}], s26 offen offset:{1024*k}")
def q_loop_pf(A):
    if OPT["qw1"] == 0:
        A("s_mov_b32 exec_lo, 0xffff03ff")
        A("s_mov_b32 exec_hi, 0")
        A(f"buffer_load_dword a255, v{vT1}, s[{sWS}:{sWS+3}], 0 offen sc1")
        A("s_mov_b64 exec, -1")
        return
    for k in range(3 - OPT["qw1n"], 3):
        A(f"buffer_load_dword a255, v12, s[{sW1}:{sW1+3}], s26 offen offset:{1024*k}")
    if OPT["qw1b"]:
        for k in range(3): A(f"buffer_load_dword a255, v12, s[{sW1}:{sW1+3}], s27 offen offset:{1024*k}")
    for k in range(OPT["qw2"]):
        A(f"buffer_load_dword a255, v15, s[{sW2}:{sW2+3}], s99 offen")
        A(f"s_add_u32 s99, s99, {8192*256}")
    if OPT["touch"] and not OPT["qdefer"]:
        A("s_mov_b32 exec_lo, 0xffff03ff")
        A("s_mov_b32 exec_hi, 0")
        A(f"buffer_load_dword a255, v{vT1}, s[{sWS}:{sWS+3}], 0 offen sc1")
        A("s_mov_b64 exec, -1")
def q_extras():
    g8 = [[poll_ld(vPO, 24)], [f"s_lshl_b32 m0, s{sWAVE}, 12"]] + [[f"buffer_load_dwordx4 v{vWOd+n}, s[{sWO}:{sWO+3}], s{sWOo} offen offset:{1024*n} lds"] for n in range(4)]
    g9 = [[f"buffer_load_dword v{8+st}, v{vGo}, s[{sWS}:{sWS+3}], s{sGo} offen offset:{64*st} sc1"] for st in range(4)]
    return {8: (g8, 9), 9: (g9, 0)}

def q_epilogue(A):
    PK, Z, AF, ZP, G = 128, 168, 168, 16, 8
    KA_, DEN, OUT, TMP = 48, 204+0, 224, 112
    WBa, KVa = 0, 20
    cb, dp = QCB, QDP
    A(f"s_mov_b32 s24, {FL_KV:#x}")
    for i in range(3):
        A(f"ds_read_b64_tr_b16 {ar(WBa+6*i,2)}, v{vWOt} offset:{128*i}")
        A(f"ds_read_b64_tr_b16 {ar(WBa+6*i+2,2)}, v{vWOt+1} offset:{128*i + 8*320}")
        A(f"ds_read_b64_tr_b16 {ar(WBa+6*i+4,2)}, v{vWOt+1} offset:{128*i + 24*320}")
    A(f"v_mov_b32 v2, {LDS_RED + 1600}")
    A("v_mov_b64 v[4:5], 0")
    A("ds_write_b64 v2, v[4:5]")
    A(f"s_mov_b32 s{sL2}, {LOG2E:#x}")
    A(f"s_mov_b32 s{sL2+1}, {LOG2E:#x}")
    B = Asm()
    for k, b in enumerate(range(ACC, ACC+80, 4)):
        if k == 12: B(poll_ld(vKP, 24))
        phi4(B, b, 208)
        B(f"v_cvt_pk_bf16_f32 v{PK+2*k}, v{b}, v{b+1}")
        B(f"v_cvt_pk_bf16_f32 v{PK+2*k+1}, v{b+2}, v{b+3}")
    k = 0
    if OPT["kweave"]:
        keep = OPT["mo"]; OPT["mo"] = 1; fm = qkv_mfmas(FB_, True); OPT["mo"] = keep
        fill = [[] for _ in range(20)]
        for g in range(9, 20):
            fill[g] = B.lines[k:k+2]; k += 2
        weave(A, fm, fill)
    for x in B.lines[k:]: A(x)
    stamp(A, "q_pre")
    A("s_waitcnt vmcnt(0) lgkmcnt(0)")
    poll_check(A, "pkv", vKP, 24)
    A("s_barrier")
    stamp(A, "q_kvok")
    for t in range(5):
        A(f"buffer_load_dwordx4 {vr(Z+4*t,4)}, v{vZA+[0,0,2,1,1][t]}, s[{sWS}:{sWS+3}], s{sZO} offen offset:{[0,64,128,0,64][t]} sc1")
    kvl = []
    for rb in range(0, 16, 2):
        kvl.append(["s_mov_b32 exec_hi, 0x3ffff",
                    f"buffer_load_dwordx4 {vr(KA_+4*rb,4)}, v{vB0}, s[{sWS}:{sWS+3}], s{sKO} offen sc1",
                    f"buffer_load_dwordx4 {vr(KA_+4*rb+4,4)}, v{vB0}, s[{sWS}:{sWS+3}], s{sKO} offen offset:3200 sc1",
                    "s_mov_b32 exec_hi, -1", f"s_add_u32 s{sKO}, s{sKO}, 6400"])
    def kv(n):
        for _ in range(n):
            if kvl:
                for x in kvl.pop(0): A(x)
    kv(2)
    A("s_waitcnt vmcnt(4)")
    stamp(A, "q_z")
    for rot in (8, 4, 2, 1):
        kv(1)
        for i in range(20):
            A(f"v_add_f32_dpp v{Z+i}, v{Z+i}, v{Z+i} row_ror:{rot} row_mask:0xf bank_mask:0xf")
    for i in range(10): A(f"v_cvt_pk_bf16_f32 v{ZP+i}, v{Z+2*i}, v{Z+2*i+1}")
    kv(2)
    for k, (tp, t) in enumerate(dp):
        A(f"v_and_b32 v{AF+2*k}, v{MSK+k}, v{ZP+2*t}")
        A(f"v_and_b32 v{AF+2*k+1}, v{MSK+k}, v{ZP+2*t+1}")
    A("s_nop 0")
    DEN2 = 224
    def den(st, Dn):
        seen = set()
        for k, (tp, t) in enumerate(dp):
            c = vr(Dn + 4*tp, 4)
            A(f"v_mfma_f32_16x16x16_bf16 {c}, {vr(AF+2*k,2)}, {vr(PK+(st*5+t)*2,2)}, {c if tp in seen else 0}")
            seen.add(tp)
    den(0, DEN)
    for st in range(4):
        Dn = DEN if (st & 1) == 0 else DEN2
        o = OUT
        U = TMP + 10
        if st < 3: den(st + 1, DEN2 if (st & 1) == 0 else DEN)
        else: A("s_nop 7")
        kv(OPT["kvr"])
        for tp in range(5): A(f"v_add_f32 v{TMP+2*tp}, {EPS6:#x}, v{Dn+4*tp}")
        for tp in range(5): A(f"v_rcp_f32 v{TMP+2*tp}, v{TMP+2*tp}")
        A("s_nop 0")
        for tp in range(5): A(f"v_mul_f32 v{TMP+2*tp}, v{TMP+2*tp}, v{G+st}")
        for tp in range(5):
            p = PK + (st*5+tp)*2
            if tp == 2: kv(OPT["kvr"])
            A(f"v_lshlrev_b32 v{U}, 16, v{p}")
            A(f"v_and_b32 v{U+1}, 0xffff0000, v{p}")
            A(f"v_lshlrev_b32 v{U+2}, 16, v{p+1}")
            A(f"v_and_b32 v{U+3}, 0xffff0000, v{p+1}")
            A(f"v_pk_mul_f32 {vr(U,2)}, {vr(U,2)}, {vr(TMP+2*tp,2)} op_sel_hi:[1,0]")
            A(f"v_pk_mul_f32 {vr(U+2,2)}, {vr(U+2,2)}, {vr(TMP+2*tp,2)} op_sel_hi:[1,0]")
            A(f"v_cvt_pk_bf16_f32 v{p}, v{U}, v{U+1}")
            A(f"v_cvt_pk_bf16_f32 v{p+1}, v{U+2}, v{U+3}")
        p = PK + st*10
        A(f"buffer_store_dwordx4 {vr(p,4)}, v{vB0}, s[{sWS}:{sWS+3}], s{sPQ} offen offset:{1024*st} sc1")
        A(f"buffer_store_dwordx4 {vr(p+6,4)}, v{vB0}, s[{sWS}:{sWS+3}], s{sPQ+1} offen offset:{1024*st} sc1")
        A(f"buffer_store_dwordx2 {vr(p+4,2)}, v{vB0}, s[{sWS}:{sWS+3}], s{sPQ+2} offen offset:{1024*st} sc1")
    assert not kvl
    stamp(A, "q_pq")
    A("s_waitcnt vmcnt(12)")
    stamp(A, "q_kv")
    for w in (32, 16, 8, 4):
        for i in range(0, w, 2):
            A(f"v_pk_add_f32 {vr(KA_+i,2)}, {vr(KA_+i,2)}, {vr(KA_+w+i,2)}")
    A(f"s_mul_i32 s86, s{sWAVE}, 400")
    A(f"s_add_u32 s86, s86, {LDS_RED}")
    A("v_lshlrev_b32 v7, 3, v1")
    A("v_add_u32 v7, s86, v7")
    A(f"v_cvt_pk_bf16_f32 v{KA_}, v{KA_}, v{KA_+1}")
    A(f"v_cvt_pk_bf16_f32 v{KA_+1}, v{KA_+2}, v{KA_+3}")
    A("s_mov_b32 exec_hi, 0x3ffff")
    A(f"ds_write_b64 v7, {vr(KA_,2)}")
    A("s_mov_b32 exec_hi, -1")
    A("s_waitcnt lgkmcnt(0)")
    A("s_barrier")
    stamp(A, "q_bar")
    for i in range(7): A(f"ds_read_b64 {ar(KVa+2*i,2)}, v{26+i}")
    A("s_waitcnt lgkmcnt(0)")
    MD = 64
    for i in range(3):
        seen = set()
        for k, (te, tc) in enumerate(PAIRS):
            c = vr(MD + (i*3+tc)*4, 4)
            A(f"v_mfma_f32_16x16x16_bf16 {c}, {ar(KVa+2*k,2)}, {ar(WBa+6*i+2*(te-2),2)}, {c if tc in seen else 0}")
            seen.add(tc)
    for i in range(3):
        if i == 2:
            A(f"s_cmp_ge_u32 s{sWAVE}, 2")
            A("s_cbranch_scc1 q_m_done")
            A("s_nop 2")
        b = MD + i*12
        for k in range(6): A(f"v_cvt_pk_bf16_f32 v{b+k}, v{b+2*k}, v{b+2*k+1}")
        A(f"buffer_store_dwordx4 {vr(b,4)}, v{vB0}, s[{sWS}:{sWS+3}], s{sMA} offen sc1")
        A("s_mov_b32 exec_hi, 0")
        A(f"buffer_store_dwordx2 {vr(b+4,2)}, v{vB0}, s[{sWS}:{sWS+3}], s{sMA+1} offen sc1")
        A("s_mov_b32 exec_hi, -1")
        A(f"s_add_u32 s{sMA}, s{sMA}, 4096")
        A(f"s_add_u32 s{sMA+1}, s{sMA+1}, 4096")
    A.label("q_m_done")
    stamp(A, "q_mdone")

def tlb_touch(A):
    for ptr, size in ((26, WS_SIZE), (22, 2048*1280), (16, 1536*4096), (12, 2048*3072), (8, 640*1280), (14, 4), (18, 4)):
        A(f"s_mov_b64 s[86:87], s[{ptr}:{ptr+1}]")
        offs = sorted(set(list(range(0, size, 1 << 21)) + [size - 4]))
        prev = 0
        for o in offs:
            if o - prev >= (1 << 20):
                A(f"s_add_u32 s86, s86, {o - prev:#x}")
                A("s_addc_u32 s87, s87, 0")
                prev = o
            A(f"s_load_dword s98, s[86:87], {o - prev:#x}")
def ln_role(A, after_loads, ne):
    X, GW, D = 48, 88, 128
    A("v_lshrrev_b32 v2, 3, v1")
    A(f"s_lshl_b32 s85, s{sWAVE}, 3")
    A("v_add_u32 v2, s85, v2")
    A("v_and_b32 v3, 7, v1")
    A("v_lshlrev_b32 v3, 4, v3")
    A("v_mul_u32_u24 v4, 1280, v2")
    A("v_add_u32 v4, v4, v3")
    A(f"s_mul_i32 s85, s{sA}, {32*1280}")
    A("s_waitcnt lgkmcnt(0)"); srds(A, ["X", "GW"])
    LN_TLB = True
    for i in range(10):
        A(f"buffer_load_dwordx4 {vr(X+4*i,4)}, v4, s[{sX}:{sX+3}], s85 offen offset:{128*i}")
    for i in range(10):
        A(f"buffer_load_dwordx4 {vr(GW+4*i,4)}, v3, s[{sGW}:{sGW+3}], 0 offen offset:{128*i}")
    A("v_mul_u32_u24 v16, 1312, v2")
    A("v_add_u32 v16, v16, v3")
    A("v_lshlrev_b32 v17, 2, v2")
    if OPT["tlb"] == 1: tlb_touch(A)
    after_loads(A)
    A("v_mov_b32 v5, 0x3f803f80")
    for i in range(4): A(f"v_mov_b32 v{8+i}, 0")
    A(f"s_waitcnt vmcnt({10+ne})")
    stamp(A, "ln_first")
    for i in range(40):
        A(f"v_dot2_f32_bf16 v{8+(i&1)}, v{X+i}, v5, v{8+(i&1)}")
    A(f"s_waitcnt vmcnt({ne})")
    for i in range(40):
        A(f"v_dot2_f32_bf16 v{10+(i&1)}, v{X+i}, v{GW+i}, v{10+(i&1)}")
    A("s_nop 2")
    A("v_add_f32 v8, v8, v9")
    A("v_add_f32 v10, v10, v11")
    def red8(r):
        for m in ("quad_perm:[1,0,3,2]", "quad_perm:[2,3,0,1]", "row_half_mirror"):
            A("s_nop 1")
            for x in r: A(f"v_add_f32_dpp v{x}, v{x}, v{x} {m} row_mask:0xf bank_mask:0xf")
    red8([8, 10])
    A(f"v_mul_f32 v8, {0xBACCCCCD:#x}, v8")
    A("v_mov_b32 v9, v8")
    A(f"v_mul_f32 v10, {LOG2E | 0x80000000:#x}, v10")
    A("v_exp_f32 v10, v10")
    for i in range(40):
        A(f"v_lshlrev_b32 v{D+2*i}, 16, v{X+i}")
        A(f"v_and_b32 v{D+2*i+1}, 0xffff0000, v{X+i}")
    A("v_add_f32 v10, 1.0, v10")
    A("v_rcp_f32 v10, v10")
    for i in range(40):
        A(f"v_pk_add_f32 {vr(D+2*i,2)}, {vr(D+2*i,2)}, v[8:9]")
    A("v_pk_mul_f32 v[18:19], v[128:129], v[128:129]")
    A("v_pk_mul_f32 v[20:21], v[130:131], v[130:131]")
    for i in range(2, 40):
        a = 18 + 2*(i & 1)
        A(f"v_pk_fma_f32 {vr(a,2)}, {vr(D+2*i,2)}, {vr(D+2*i,2)}, {vr(a,2)}")
    A("v_pk_add_f32 v[18:19], v[18:19], v[20:21]")
    A("ds_write_b32 v17, v10 offset:49152")
    A("v_add_f32 v18, v18, v19")
    red8([18])
    A(f"v_mov_b32 v19, {0x3727C5AC:#x}")
    A(f"v_fmac_f32 v19, {0x3ACCCCCD:#x}, v18")
    A("v_rsq_f32 v18, v19")
    A("s_nop 0")
    A("v_mov_b32 v19, v18")
    for i in range(40):
        A(f"v_pk_mul_f32 {vr(D+2*i,2)}, {vr(D+2*i,2)}, v[18:19]")
        A(f"v_cvt_pk_bf16_f32 v{X+i}, v{D+2*i}, v{D+2*i+1}")
        if (i & 3) == 3:
            A(f"ds_write_b128 v16, {vr(X+i-3,4)} offset:{128*(i//4)}")
    A("v_lshrrev_b32 v2, 2, v1")
    A("v_mul_u32_u24 v2, 1312, v2")
    A("v_and_b32 v3, 3, v1")
    A("v_lshl_add_u32 v2, v3, 3, v2")
    A(f"s_mul_i32 s85, s{sWAVE}, 320")
    A("v_add_u32 v2, s85, v2")
    A(f"s_mul_i32 s85, s{sA}, 40960")
    A(f"s_mul_i32 s86, s{sWAVE}, 10240")
    A("s_add_u32 s85, s85, s86")
    A("s_add_u32 s86, s85, 4096")
    A("s_add_u32 s87, s85, 8192")
    A("v_lshlrev_b32 v17, 2, v1")
    A(f"s_lshl_b32 s88, s{sA}, 7")
    A(f"s_add_u32 s88, s88, {WS_G:#x}")
    A("s_waitcnt lgkmcnt(0)")
    A("s_barrier")
    A(f"s_cmp_lg_u32 s{sWAVE}, 3")
    A("s_cbranch_scc1 ln_ng")
    A("ds_read_b32 v10, v17 offset:49152")
    A("s_waitcnt lgkmcnt(0)")
    A("s_mov_b32 exec_hi, 0")
    A(f"buffer_store_dword v10, v17, s[{sWS}:{sWS+3}], s88 offen sc1")
    A("s_mov_b32 exec_hi, -1")
    A.label("ln_ng")
    for t in range(10):
        A(f"ds_read_b64_tr_b16 {vr(D+4*t,2)}, v2 offset:{32*t}")
        A(f"ds_read_b64_tr_b16 {vr(D+4*t+2,2)}, v2 offset:{32*t + 16*1312}")
        if t == 6: A("s_waitcnt lgkmcnt(6)")
    for t in range(10):
        A(f"s_waitcnt lgkmcnt({min(2*(9-t), 6)})")
        A(f"buffer_store_dwordx4 {vr(D+4*t,4)}, v{vB0}, s[{sWS}:{sWS+3}], s{85 + t//4} offen offset:{1024*(t&3)} sc1")

def c_adv1(): return [f"s_add_u32 s{sC1}, s{sC1}, s{sCST}", f"s_cmp_eq_u32 s{sC1}, s{sCE1}", f"s_cselect_b32 s{sC1}, s{sCB1}, s{sC1}"]
def c_adv2(): return [f"s_add_u32 s{sC2}, s{sC2}, 40960", f"s_cmp_eq_u32 s{sC2}, s{sCE2}", f"s_cselect_b32 s{sC2}, s{sCB2}, s{sC2}"]
def c_wdma(slot):
    L = [[f"s_add_u32 m0, s{sCM0}, {4096*slot}"]]
    for q in range(4):
        L.append([f"buffer_load_dwordx4 v{vWS_+q}, s[{sCW}:{sCW+3}], s{sC1} offen offset:{1024*q} lds"])
    return L
def c_bload(slot, n):
    return f"buffer_load_dwordx4 {ar(BR+20*slot+4*n,4)}, v{vB0 if n < 4 else vB1}, s[{sWS}:{sWS+3}], s{sC2} offen offset:{1024*(n&3)} sc1"
def c_tr(slot, aset):
    return [f"ds_read_b64_tr_b16 {ar(AS+16*aset+4*t+2*j,2)}, v{vTR+t} offset:{4096*slot+2048*j}" for t in range(4) for j in range(2)]
def c_wring(A):
    for s in range(OPT["d"]):
        emit_dma_block(A, c_wdma(s))
        for x in c_adv1(): A(x)
def c_bring(A):
    for s in range(OPT["d"]):
        for n in range(5): A(c_bload(s, n))
        for x in c_adv2(): A(x)
def switch_to_fb(A):
    A(f"s_mov_b64 s[{sCW}:{sCW+1}], s[{sW2}:{sW2+1}]")
    A(f"s_mov_b64 s[{sCW+2}:{sCW+3}], s[{sW2+2}:{sW2+3}]")
    for i in range(4): A(f"v_mov_b32 v{vWS_+i}, v{vWS2+i}")
    A(f"s_mov_b32 s{sC1}, s{sF1}")
    A(f"s_mov_b32 s{sCB1}, s{sFB1}")
    A(f"s_mov_b32 s{sCE1}, s{sFE1}")
    A(f"s_mov_b32 s{sCST}, {32*4096}")

G1A = 112
def c_step(A, u, wait, doW, doB, doT, accf, w_is_A, drain=None, first=False, side=None, pre=[], late=None, wslot=None, trl=None):
    DD = OPT["d"]
    A(f"s_waitcnt vmcnt({wait}) lgkmcnt(0)")
    for x in pre: A(x)
    tr = c_tr((u+1) & 3, (u+1) & 1) if doT else (trl or [])
    mf = []
    order = [(n, t) for n in range(5) for t in range(4)]
    if OPT["mo"] & 2 and not drain: order = [(n, t) for t in range(4) for n in range(5)]
    if OPT["mo"] & 4 and not drain: order = [(n, t if n % 2 == 0 else 3 - t) for n in range(5) for t in range(4)]
    for n, t in order:
            w = ar(AS+16*(u & 1)+4*t, 4); b = ar(BR+20*u+4*n, 4); c = accf((t*5+n)*4)
            cin = "0" if first else c
            mf.append(f"v_mfma_f32_16x16x32_bf16 {c}, {w}, {b}, {cin}" if w_is_A else f"v_mfma_f32_16x16x32_bf16 {c}, {b}, {w}, {cin}")
    fill = [[] for _ in range(20)]
    sl = (u + DD) & 3
    wd = c_wdma(sl if wslot is None else wslot)
    post = []
    if doW:
        A(wd[0][0])
        for t in range(4): fill[t] += wd[1+t]
        fill[5 if drain else 12] += c_adv1()
    for k, x in enumerate(tr): fill[4+k].append(x)
    if doB:
        for n in range(5): fill[4*n+3].append(c_bload(sl, n))
        fill[19] += c_adv2()
    if side:
        per = -(-len(side) // 20)
        for g in range(20): fill[g] = side[g*per:(g+1)*per] + fill[g]
    if late:
        fill[13] += late[:9]
        post += late[9:]
    if drain:
        for n in range(3):
            for t in range(4): fill[4*(n+2)+t] += drain(n, t)
        post += ["s_nop 3"] + flat([drain(3, t) for t in range(4)]) + flat([drain(4, t) for t in range(4)])
    weave(A, mf, fill)
    for x in post: A(x)

AS3 = 192
def c_merged(A, u, wait, doW, accf, w_is_A, drain, wslots=None):
    A(f"s_waitcnt vmcnt({wait}) lgkmcnt(0)")
    mf = []
    for n in range(5):
        for k, aset in ((u, AS + 16*(u & 1)), (u + 1, AS3)):
            for t in range(4):
                w = ar(aset+4*t, 4); b = ar(BR+20*(k & 3)+4*n, 4); c = accf((t*5+n)*4)
                mf.append(f"v_mfma_f32_16x16x32_bf16 {c}, {w}, {b}, {c}" if w_is_A else f"v_mfma_f32_16x16x32_bf16 {c}, {b}, {w}, {c}")
    fill = [[] for _ in range(40)]
    if doW:
        for j, sl in enumerate(wslots):
            wd = c_wdma(sl)
            fill[6*j] += wd[0]
            for t in range(4): fill[6*j+1+t] += wd[1+t]
            fill[6*j+5] += c_adv1()
    for n in range(4):
        for t in range(4):
            g = 8*(n+1) + 4 + 2*t
            if g + (0) < 40: fill[g] += drain(n, t)
            else: fill[39] += drain(n, t)
    weave(A, mf, fill)
    for x in ["s_nop 3"] + flat([drain(4, t) for t in range(4)]): A(x)
def tr3(place):
    kind, sl = place
    base = vTR if kind == "r" else vTX
    return [f"ds_read_b64_tr_b16 {ar(AS3+4*t+2*j,2)}, v{base+t} offset:{4096*sl+2048*j}" for t in range(4) for j in range(2)]

def c_loop(A, pfx, nks, accf, w_is_A, isg1, drain):
    DD = OPT["d"]; W0 = 5 + 9*(DD-2)
    tail_next = isg1 and OPT["tailw"]
    A(f".p2align {OPT['lal']}")
    A.label(f"{pfx}_loop")
    if isg1 and OPT["lnmid"]:
        A(f"s_cmp_eq_u32 s{sCNT}, s{sPUB}")
        A("s_cbranch_scc1 g1_blk")
        A.label("g1_noblk")
    for u in range(4):
        c_step(A, u, W0, True, True, True, accf, w_is_A)
    if STAMPS:
        ng = nks//4 - 1
        i = _st["n"]; _st["n"] += ng; _st["names"] += [f"{pfx}_g{k}" for k in range(ng)]
        A("s_memtime s[100:101]")
        A("s_waitcnt lgkmcnt(0)")
        A(f"s_sub_u32 m0, {i + ng}, s{sCNT}")
        A("s_nop 0")
        A("v_writelane_b32 v47, s100, m0")
    A(f"s_sub_u32 s{sCNT}, s{sCNT}, 1")
    A(f"s_cmp_lg_u32 s{sCNT}, 0")
    A(f"s_cbranch_scc1 {pfx}_loop")
    seq = []
    for k in range(DD): seq += [("W", k)]*4 + [("B", k)]*5
    for u in range(4):
        need = max([i for i, (t, k) in enumerate(seq) if (t == "B" and k == u) or (t == "W" and k == u+1)])
        wait = len(seq) - 1 - need
        own = u < 4 - DD
        if isg1 and u == 4 - DD: switch_to_fb(A)
        nxt = tail_next and not own
        if OPT["merge"] and u == 1:
            nW = 4 if nxt else 0
            w3 = len(seq) + nW - 1 - max(i for i, (t, k) in enumerate(seq) if t == "W" and k == 3)
            c_step(A, u, wait, own or nxt, own, True, accf, w_is_A, late=[f"s_waitcnt vmcnt({w3})"] + tr3(("r", 3)))
        elif OPT["merge"] and u == 2:
            wait = len(seq) - 1 - max(i for i, (t, k) in enumerate(seq) if t == "B" and k == 3)
            c_merged(A, 2, wait, nxt, accf, w_is_A, drain, [(2+DD) & 3, (3+DD) & 3])
            break
        else:
            c_step(A, u, wait, own or nxt, own, u < 3, accf, w_is_A, drain if u == 3 else None)
        if own: seq += [("W", u+DD)]*4 + [("B", u+DD)]*5
        elif nxt: seq += [("N", 0)]*4
    stamp(A, pfx + "_loopdone")

sFA1, sFA2, sFR = 54, 55, 94
sUS = 52
vGE = 224
def fa_params(A):
    A(f"s_and_b32 s{sFR}, s{sFD}, 3")
    A(f"s_lshl_b32 s{sFR}, s{sFR}, 1")
    A(f"s_and_b32 s89, s{sFS}, 7")
    A(f"s_add_u32 s{sFR}, s{sFR}, s89")
    A(f"s_mul_i32 s89, s{sFR}, 52")
    A("s_lshr_b32 s89, s89, 8")
    A("s_mul_i32 s89, s89, 5")
    A(f"s_sub_u32 s{sFR}, s{sFR}, s89")
    if OPT["arot"] == 0: A(f"s_mov_b32 s{sFR}, 0")
    if OPT["arot"] == 2:
        A(f"s_add_u32 s{sFR}, s{sFS}, s{sFD}")
        A(f"s_and_b32 s{sFR}, s{sFR}, 1")
        A(f"s_mul_i32 s{sFR}, s{sFR}, 3")
    A(f"s_mul_i32 s86, s{sWAVE}, 5")
    A(f"s_add_u32 s86, s86, s{sFR}")
    A(f"s_mul_i32 s{sFA1}, s{sFS}, {0 if OPT.get('same') else 20}")
    A(f"s_add_u32 s{sFA1}, s{sFA1}, s86")
    A(f"s_lshl_b32 s{sFA1}, s{sFA1}, 12")
    A(f"s_add_u32 s{sFA1}, s{sFA1}, {WS_PQ:#x}")
    A(f"s_mul_i32 s{sFA2}, s86, 40960")
    A(f"s_mul_i32 s89, s{sFD}, {0 if OPT.get('same') else 5120}")
    A(f"s_add_u32 s{sFA2}, s{sFA2}, s89")
    A(f"s_add_u32 s{sFA2}, s{sFA2}, {WS_M:#x}")
fa_b = lambda i: 0 if i == 0 else 112 + 36*(i-1)
def fa_ld(A, i):
    for st in range(4):
        A(f"buffer_load_dwordx4 {ar(fa_b(i)+4*st,4)}, v{vB0}, s[{sWS}:{sWS+3}], s{sFA1} offen offset:{1024*st} sc1")
    for n in range(5):
        A(f"buffer_load_dwordx4 {ar(fa_b(i)+16+4*n,4)}, v{vB0 if n < 4 else vB1}, s[{sWS}:{sWS+3}], s{sFA2} offen offset:{1024*(n&3)} sc1")
    if i < 4:
        A(f"s_add_u32 s{sFA1}, s{sFA1}, 4096")
        A(f"s_add_u32 s{sFA2}, s{sFA2}, 40960")
        A(f"s_add_u32 s{sFR}, s{sFR}, 1")
        A(f"s_cmp_eq_u32 s{sFR}, 5")
        A(f"s_cselect_b32 s86, {5*4096}, 0")
        A(f"s_cselect_b32 s89, {5*40960}, 0")
        A(f"s_sub_u32 s{sFA1}, s{sFA1}, s86")
        A(f"s_sub_u32 s{sFA2}, s{sFA2}, s89")

def g1_params(A):
    W, Rr = vGE, vGE + 4
    A("v_and_b32 v2, 15, v1")
    A("v_lshrrev_b32 v3, 4, v1")
    A("v_xor_b32 v4, v2, v3")
    A("v_lshlrev_b32 v4, 4, v4")
    A("v_lshl_add_u32 v4, v2, 8, v4")
    A(f"s_mul_i32 s85, s{sWAVE}, 20480")
    A(f"s_add_u32 s85, s85, {LDS_RED}")
    A(f"v_add_u32 v{W}, s85, v4")
    for t in range(1, 4): A(f"v_xor_b32 v{W+t}, {64*t}, v{W}")
    A(f"s_and_b32 s85, s{sWAVE}, 1")
    A(f"s_lshr_b32 s86, s{sWAVE}, 1")
    A("s_lshl_b32 s87, s85, 7")
    A("v_xor_b32 v4, s87, v4")
    A("s_lshl_b32 s87, s86, 12")
    A(f"s_add_u32 s87, s87, {LDS_RED}")
    A(f"v_add_u32 v{Rr}, s87, v4")
    A(f"v_xor_b32 v{Rr+1}, 64, v{Rr}")
    A(f"v_add_u32 v{Rr+2}, 40960, v{Rr}")
    A(f"v_add_u32 v{Rr+3}, 40960, v{Rr+1}")
    A(f"s_lshl_b32 s87, s{sG1F}, 1")
    A("s_add_u32 s87, s87, s85")
    A("s_lshl_b32 s23, s87, 6")
    A("v_lshlrev_b32 v12, 3, v3")
    A("s_mul_i32 s87, s87, 40")
    A(f"s_mul_i32 s88, s{sG1D}, 5")
    A("s_add_u32 s87, s87, s88")
    A("s_add_u32 s87, s87, s86")
    A("s_lshl_b32 s87, s87, 10")
    A(f"s_add_u32 s{sUS}, s87, {WS_U:#x}")
    A(f"s_add_u32 s{sUS+1}, s{sUS}, 4096")
    A(f"s_mov_b32 s90, {0xBDD2D3E8:#x}")
    A(f"s_mov_b32 s91, {0xBDD2D3E8:#x}")
    A(f"v_mov_b32 v{vGE+8}, {0xC0135761:#x}")
    A(f"v_mov_b32 v{vGE+9}, {0xC0135761:#x}")
    fa_params(A)
def b1_loads():
    return [[f"buffer_load_dwordx2 {vr(vGE+18+2*j,2)}, v12, s[{sB1}:{sB1+3}], s23 offen offset:{32*j}"] for j in range(2)]
def zero_acc(A):
    for i in range(0, 80, 2): A(f"v_mov_b64 {vr(ACC+i,2)}, 0")

def g1_phase(A):
    c_loop(A, "g1", 16, lambda o: ar(G1A+o, 4), True, True, lambda n, t: [f"ds_write_b128 v{vGE+t}, {ar(G1A+(t*5+n)*4,4)} offset:{4096*n}"])
    for j in range(2):
        for k in range(2):
            A(f"v_lshlrev_b32 v{vGE+10+4*j+2*k}, 16, v{vGE+18+2*j+k}")
            A(f"v_and_b32 v{vGE+11+4*j+2*k}, 0xffff0000, v{vGE+18+2*j+k}")
    A("s_waitcnt lgkmcnt(0)")
    A("s_barrier")
    stamp(A, "g1_red")
    if OPT["lnpost"] == 2:
        A("s_cmp_lt_u32 s82, 24")
        A("s_cbranch_scc1 g1_nw2")
        w2_prefetch(A, 24, list(range(3 - OPT["lnpn"], 3)))
        A.label("g1_nw2")
    A0 = A
    R = 128
    def rd(r):
        for j in range(2):
            for part in range(4):
                A(f"ds_read_b128 {vr(R+32*r+16*j+4*part,4)}, v{vGE+4+j+2*(part>>1)} offset:{8192*r + 20480*(part&1)}")
    def fin(r):
        b = R + 32*r
        for j in range(2):
            x = b + 16*j
            for i in (0, 2):
                A(f"v_pk_add_f32 {vr(x+i,2)}, {vr(x+i,2)}, {vr(x+4+i,2)}")
                A(f"v_pk_add_f32 {vr(x+8+i,2)}, {vr(x+8+i,2)}, {vr(x+12+i,2)}")
        for j in range(2):
            x = b + 16*j
            for i in (0, 2): A(f"v_pk_add_f32 {vr(x+i,2)}, {vr(x+i,2)}, {vr(vGE+10+4*j+i,2)}")
        for j in range(2):
            x = b + 16*j
            for i in (0, 2): A(f"v_pk_add_f32 {vr(x+i,2)}, {vr(x+i,2)}, {vr(x+8+i,2)}")
        E = [b + 16*j + i for j in range(2) for i in range(4)]
        E2 = E[::2]
        for x in E2: A(f"v_pk_mul_f32 {vr(x+4,2)}, {vr(x,2)}, {vr(x,2)}")
        for x in E2: A(f"v_pk_fma_f32 {vr(x+4,2)}, {vr(x+4,2)}, s[90:91], {vr(vGE+8,2)}")
        for x in E2: A(f"v_pk_mul_f32 {vr(x+4,2)}, {vr(x+4,2)}, {vr(x,2)}")
        for x in E: A(f"v_exp_f32 v{x+4}, v{x+4}")
        for x in E2: A(f"v_pk_add_f32 {vr(x+4,2)}, {vr(x+4,2)}, 1.0 op_sel_hi:[1,0]")
        for x in E: A(f"v_rcp_f32 v{x+4}, v{x+4}")
        for x in E2: A(f"v_pk_mul_f32 {vr(x,2)}, {vr(x,2)}, {vr(x+4,2)}")
        for j in range(2):
            x = b + 16*j
            A(f"v_cvt_pk_bf16_f32 v{b+8+2*j}, v{x}, v{x+1}")
            A(f"v_cvt_pk_bf16_f32 v{b+9+2*j}, v{x+2}, v{x+3}")
        A(f"buffer_store_dwordx4 {vr(b+8,4)}, v{vB0}, s[{sWS}:{sWS+3}], s{sUS if r < 2 else sUS+1} offen offset:{2048*(r&1)} sc1")
    def mix(body, groups, lo=0):
        n = len(groups)
        pos = {}
        for k in range(n): pos.setdefault(lo + (k*(len(body) - lo - 2))//max(n, 1), []).append(groups[k])
        for i, x in enumerate(body):
            for g in pos.get(i, []):
                for y in g: A0(y)
            A0(x)
    G = []
    if OPT["xw"]:
        B = Asm(); xw_loads(B)
        for x in B.lines:
            if x.startswith("buffer_load") or not G: G.append([x])
            else: G[-1].append(x)
        G[1] = G[0] + G[1]; G = G[1:]
    n0 = (len(G)*OPT["xsp"])//10
    A = Asm()
    rd(0)
    A("s_waitcnt lgkmcnt(4)")
    rd(1)
    A("s_waitcnt lgkmcnt(8)")
    fin(0)
    mix(A.lines, G[:n0] + ([] if G[n0:] else [[poll_ld(15, 25)]]), 8)
    late = (G[n0:] + [[poll_ld(15, 25)]]) if G[n0:] else []
    k = 0 if late else 1
    A0(f"s_cmp_ge_u32 s{sWAVE}, 2")
    A0("s_cbranch_scc1 g1_e1")
    A = A0
    rd(2)
    A("s_waitcnt lgkmcnt(8)")
    A = Asm(); fin(1); mix(A.lines, late); A = A0
    A("s_waitcnt lgkmcnt(0)")
    fin(2)
    A(f"s_waitcnt vmcnt({2 + k})")
    A("s_branch g1_e2")
    A.label("g1_e1")
    A("s_waitcnt lgkmcnt(0)")
    A = Asm(); fin(1); mix(A.lines, late); A = A0
    A(f"s_waitcnt vmcnt({1 + k})")
    A.label("g1_e2")
    stamp(A, "g1_st")
    A(f"s_mov_b32 s{sQOK}, 0")
    A(f"v_cmp_ne_u32 vcc, s{sNON}, v{vPOLL}")
    A("s_cbranch_vccnz g1_q1")
    A(f"s_mov_b32 s{sQOK}, 1")
    fa_ld(A, 0)
    A("s_waitcnt vmcnt(9)")
    A("s_branch g1_q2")
    A.label("g1_q1")
    if OPT["tailw"]: A("s_waitcnt vmcnt(0)")
    else:
        c_wring(A)
        A(f"s_waitcnt vmcnt({4*OPT['d']})")
    A.label("g1_q2")
    A(f"s_mul_i32 s88, s{sG1D}, 24")
    A(f"s_add_u32 s88, s88, s{sG1F}")
    publish(A, "pub_u", FL_G1, 88, None)
    stamp(A, "g1_pub")
    for x in xw_writes(): A(x)
    if OPT["lnpost"] == 1:
        A("s_cmp_lt_u32 s82, 24")
        A("s_cbranch_scc1 g1_nw2")
        w2_prefetch(A, 24, list(range(3 - OPT["lnpn"], 3)))
        A.label("g1_nw2")
    if not OPT["tailw"]:
        A(f"s_cmp_eq_u32 s{sQOK}, 0")
        A("s_cbranch_scc1 g1_q3")
        c_wring(A)
        A("s_branch f_go")
        A.label("g1_q3")
    else:
        A(f"s_cmp_lg_u32 s{sQOK}, 0")
        A("s_cbranch_scc1 f_go")
    A(poll_ld(15, 25))
    A("s_waitcnt vmcnt(0)")
    poll_check(A, "pq", 15, 25)

def accb_init(st):
    return [f"v_lshlrev_b32 v{ACC+st*20}, 16, v{29+st}", f"v_lshlrev_b32 v{ACC+st*20+1}, 16, v{29+st}"] + \
           [f"v_mov_b64 {vr(ACC+st*20+k,2)}, {vr(ACC+st*20,2)}" for k in range(2, 20, 2)]
vTX = 246
def xw_setup():
    L = [f"s_mul_i32 s85, s{sWAVE}, {PS()}", f"s_add_u32 s85, s85, {LDS_RED}", f"v_add_u32 v{vTX+4}, s85, v{vB0}", f"s_sub_u32 s85, s85, s{sCM0}"]
    L += [f"v_add_u32 v{vTX+t}, s85, v{vTR+t}" for t in range(4)]
    return L
def xw_loads(A):
    emit_dma_block(A, c_wdma(3))
    for x in c_adv1(): A(x)
    for i in range(OPT["xw"]):
        for q in range(4):
            A(f"buffer_load_dwordx4 {vr(ACC+16*i+4*q,4)}, v{vWS_+q}, s[{sCW}:{sCW+3}], s{sC1} offen offset:{1024*q}")
        for x in c_adv1(): A(x)
def xw_writes():
    return [f"ds_write_b128 v{vTX+4}, {vr(ACC+16*i+4*q,4)} offset:{4096*i+1024*q}" for i in range(OPT["xw"]) for q in range(4)]
def xw_dma(A):
    emit_dma_block(A, c_wdma(3))
    for x in c_adv1(): A(x)
    A(f"s_mul_i32 s85, s{sWAVE}, {PS()}")
    A(f"s_add_u32 s85, s85, {LDS_RED}")
    for i in range(OPT["xw"]):
        A(f"s_add_u32 m0, s85, {4096*i}")
        A("s_nop 0")
        for q in range(4):
            A(f"buffer_load_dwordx4 v{vWS_+q}, s[{sCW}:{sCW+3}], s{sC1} offen offset:{1024*q} lds")
        for x in c_adv1(): A(x)
def f_setup1():
    B = Asm()
    B("v_and_b32 v5, 15, v1")
    B("v_lshlrev_b32 v6, 2, v5")
    B(f"s_lshl_b32 s23, s{sFS}, 8")
    B(f"s_add_u32 s23, s23, {WS_G:#x}")
    for st in range(4):
        B(f"buffer_load_dword v{8+st}, v6, s[{sWS}:{sWS+3}], s23 offen offset:{64*st} sc1")
    B("v_lshlrev_b32 v6, 1, v5")
    B(f"s_lshl_b32 s23, s{sFS}, 7")
    B(f"s_cmp_eq_u32 s{sWAVE}, 0")
    B("s_cselect_b32 s23, s23, 0x40000000")
    for st in range(4):
        B(f"buffer_load_ushort v{29+st}, v6, s[{sB2}:{sB2+3}], s23 offen offset:{32*st}")
    return B.lines
def f_setup2():
    B = Asm()
    for st in range(4):
        B(f"v_sub_f32 v{8+st}, 1.0, v{8+st}")
        if not OPT["xw"]:
            for x in accb_init(st): B(x)
    B("v_min_u32 v12, 23, v1")
    B("v_lshlrev_b32 v12, 7, v12")
    B(f"s_mul_i32 s23, s{sFD}, {24*128}")
    B(f"s_add_u32 s23, s23, {FL_G1:#x}")
    B("v_and_b32 v5, 15, v1")
    B("v_lshrrev_b32 v6, 4, v1")
    B(f"v_mul_u32_u24 v4, {RS()}, v5")
    if OPT["ox4"]:
        B("v_lshrrev_b32 v7, 1, v6")
        B("v_lshl_add_u32 v4, v7, 4, v4")
        B("v_and_b32 v6, 1, v6")
        B("v_mul_u32_u24 v6, 11264, v6")
        B("v_add_u32 v4, v4, v6")
    else:
        B("v_lshl_add_u32 v4, v6, 4, v4")
    B(f"s_mul_i32 s85, s{sWAVE}, {PS()}")
    B(f"s_add_u32 s85, s85, {LDS_RED}")
    B("v_add_u32 v4, s85, v4")
    B(f"s_mul_i32 s85, s{sWAVE}, {16*RS()}")
    B(f"s_add_u32 s85, s85, {LDS_RED}")
    B(f"s_lshl_b32 s95, s{sFS}, 2")
    B(f"s_add_u32 s95, s95, s{sWAVE}")
    B(f"s_mul_i32 s95, s95, {16*1280}")
    B(f"s_mul_i32 s87, s{sFD}, 160")
    B("s_add_u32 s95, s95, s87")
    if OPT["ox4"]:
        B("v_mul_u32_u24 v6, 205, v1")
        B("v_lshrrev_b32 v6, 11, v6")
        B("v_mul_u32_u24 v7, 10, v6")
        B("v_sub_u32 v7, v1, v7")
        B("v_min_u32 v6, 5, v6")
        B("v_mul_u32_u24 v16, 176, v6")
        B("v_lshl_add_u32 v16, v7, 4, v16")
        B("v_add_u32 v16, s85, v16")
        B("v_mul_u32_u24 v24, 1280, v6")
        B("v_lshl_add_u32 v24, v7, 4, v24")
    else:
        for r in range(5):
            B(f"v_add_u32 v5, {64*r}, v1")
            B("v_mul_u32_u24 v6, 3277, v5")
            B("v_lshrrev_b32 v6, 16, v6")
            B("v_mul_u32_u24 v7, 20, v6")
            B("v_sub_u32 v7, v5, v7")
            B(f"v_mul_u32_u24 v{16+r}, 336, v6")
            B(f"v_lshl_add_u32 v{16+r}, v7, 4, v{16+r}")
            B(f"v_add_u32 v{16+r}, s85, v{16+r}")
            B(f"v_mul_u32_u24 v{24+r}, 1280, v6")
            B(f"v_lshl_add_u32 v{24+r}, v7, 3, v{24+r}")
    if OPT["otouch"]:
        B("v_lshrrev_b32 v5, 1, v1")
        B("v_and_b32 v5, 15, v5")
        B("v_mul_u32_u24 v5, 1280, v5")
        B("v_and_b32 v6, 1, v1")
        B("v_mul_u32_u24 v6, 156, v6")
        B("v_add_u32 v5, v5, v6")
    if OPT["xw"]:
        for x in xw_setup(): B(x)
    return B.lines

def f_phase(A):
    ACA = 128
    A.label("f_entry")
    fa_ld(A, 0)
    A.label("f_go")
    fa_ld(A, 1)
    stamp(A, "f_qok")
    A(f"s_or_b32 s85, s2, s{sWAVE}")
    A("s_cmp_lg_u32 s85, 0")
    A("s_cbranch_scc1 f_nox")
    A(f"s_mov_b32 s85, {FL_X:#x}")
    flag_store(A, 85)
    A.label("f_nox")
    fb = fa_b
    def fam(i, side=[]):
        mf = []
        for n in range(5):
            for st in range(4):
                c = vr(ACA+(st*5+n)*4, 4)
                mf.append(f"v_mfma_f32_16x16x32_bf16 {c}, {ar(fb(i)+16+4*n,4)}, {ar(fb(i)+4*st,4)}, {c if i else 0}")
        fill = [[] for _ in range(20)]
        for k, g in enumerate(side): fill[(k*20)//len(side)] += g
        weave(A, mf, fill)
    def ldg(i):
        B = Asm(); fa_ld(B, i); g = [[x] for x in B.lines[:9]]; g[-1] += B.lines[9:]; return g
    D = OPT["d"]
    fa_ld(A, 2)
    A(f"s_mov_b32 s{sC2}, s{sF2}")
    A(f"s_mov_b32 s{sCB2}, s{sFB2}")
    A(f"s_mov_b32 s{sCE2}, s{sFE2}")
    stamp(A, "fa_i2")
    A("s_waitcnt vmcnt(18)")
    fam(0, ldg(3))
    stamp(A, "fa_m0")
    A("s_waitcnt vmcnt(18)")
    fam(1, [[poll_ld(12, 23)]] + ldg(4))
    stamp(A, "fa_m1")
    br = []
    for sl in range(D):
        br += [[c_bload(sl, n)] for n in range(5)]; br[-1] += c_adv2()
    ai = [[x] for x in flat([accb_init(st) for st in range(4)])] if OPT["xw"] else []
    if OPT["uearly"]:
        A("s_waitcnt vmcnt(9) lgkmcnt(0)")
        stamp(A, "fa_s3")
        poll_check(A, "pu", 12, 23)
        stamp(A, "f_uok")
        fam(2, br)
        stamp(A, "fa_m2")
        fam(3, ai)
    else:
        A("s_waitcnt vmcnt(19) lgkmcnt(0)")
        fam(2, ai)
        stamp(A, "fa_m2")
        A("s_waitcnt vmcnt(9)")
        stamp(A, "fa_s3")
        poll_check(A, "pu", 12, 23)
        stamp(A, "f_uok")
        fam(3, br)
    A(f"s_waitcnt vmcnt({5*D})")
    fam(4, [[]]*3 + [[x] for x in c_tr(0, 0)] + [[]]*5)
    A(f"s_waitcnt vmcnt({5 if D == 2 else 10})")
    stamp(A, "fb_first")
    def drain(n, st):
        b = (st*5+n)*4
        return [f"v_fma_f32 v{ACA+b+i}, v{ACC+b+i}, v{8+st}, v{ACA+b+i}" for i in range(4)] + [f"ds_write_b128 v4, {vr(ACA+b,4)} offset:{st*16*RS() + (32 if OPT['ox4'] else 64)*n}"]
    if OPT["xw"]:
        X = OPT["xw"]
        place = lambda k: ("r", k) if k < 4 else (("x", k-4) if k < 4 + X else ("r", (k - 4 - X) & 3))
        seq = [("B", 0)]*5 + [("B", 1)]*5 + [("B", 2)]*5
        for u in range(12):
            idx = [i for i, (t, k) in enumerate(seq) if (t == "B" and k == u) or (t == "W" and k == u+1)]
            wait = len(seq) - 1 - max(idx)
            kw = u + 3 + OPT["xwd"]; kb = u + 3
            doW = 4 + X <= kw < 12; doB = kb < 12
            nx = None
            if u < 11:
                kind, sl = place(u+1)
                base = vTR if kind == "r" else vTX
                nx = [f"ds_read_b64_tr_b16 {ar(AS+16*((u+1)&1)+4*t+2*j,2)}, v{base+t} offset:{4096*sl+2048*j}" for t in range(4) for j in range(2)]
            if OPT["merge"] and u == 10:
                wait = len(seq) - 1 - max(i for i, (t, k) in enumerate(seq) if t == "B" and k == 11)
                c_merged(A, 2, wait, False, lambda o: vr(ACC+o, 4), False, drain)
                break
            late = None
            if OPT["merge"] and u == 9:
                w3 = len(seq) - 1 - max(i for i, (t, k) in enumerate(seq) if t == "W" and k == 11)
                late = [f"s_waitcnt vmcnt({w3})"] + tr3(place(11))
            c_step(A, u & 3, min(wait, 63), doW, doB, False, lambda o: vr(ACC+o, 4), False, drain if u == 11 else None,
                   wslot=place(kw)[1] if doW else None, trl=nx, late=late)
            if doW: seq += [("W", kw)]*4
            if doB: seq += [("B", kb)]*5
            if u in (3, 7): stamp(A, f"fb_g{u//4}")
        stamp(A, "fb_loopdone")
    else:
        A(f"s_mov_b32 s{sCNT}, 2")
        c_loop(A, "fb", 12, lambda o: vr(ACC+o, 4), False, False, drain)
    A("s_waitcnt lgkmcnt(0)")
    A("s_barrier")
    stamp(A, "f_red")
    R = ACC
    OST = ["", " nt", " sc1", " sc0 sc1", " sc1 nt", " sc0 nt", " sc0 sc1 nt"][OPT["ost"]]
    if OPT["ox4"]:
        A("v_add_u32 v17, 45056, v16")
        def rd4(r):
            for h in range(2):
                for part in range(4):
                    A(f"ds_read_b128 {vr(R+32*r+16*h+4*part,4)}, v{16 + (part >> 1)} offset:{PS()*(part & 1) + 11264*h + 1056*r}")
        rd4(0)
        A("s_waitcnt lgkmcnt(4)")
        rd4(1)
        A("s_mov_b32 exec_hi, 0x0fffffff")
        for r in range(3):
            A(f"s_waitcnt lgkmcnt({8 if r < 2 else 0})")
            b = R + 32*(r & 1) if r < 2 else R + 64 - 64
            b = R + 32*r if r < 2 else R
            for h in range(2):
                x = b + 16*h
                for i in (0, 2):
                    A(f"v_pk_add_f32 {vr(x+i,2)}, {vr(x+i,2)}, {vr(x+4+i,2)}")
                    A(f"v_pk_add_f32 {vr(x+8+i,2)}, {vr(x+8+i,2)}, {vr(x+12+i,2)}")
            for h in range(2):
                x = b + 16*h
                for i in (0, 2): A(f"v_pk_add_f32 {vr(x+i,2)}, {vr(x+i,2)}, {vr(x+8+i,2)}")
            o = R + 64 + 4*r
            for h in range(2):
                A(f"v_cvt_pk_bf16_f32 v{o+2*h}, v{b+16*h}, v{b+16*h+1}")
                A(f"v_cvt_pk_bf16_f32 v{o+2*h+1}, v{b+16*h+2}, v{b+16*h+3}")
            if r == 0:
                for h in range(2):
                    for part in range(4):
                        A(f"ds_read_b128 {vr(R+16*h+4*part,4)}, v{16 + (part >> 1)} offset:{PS()*(part & 1) + 11264*h + 1056*2}")
            if r == 2: A("s_mov_b32 exec_hi, 0xff")
            A(f"buffer_store_dwordx4 {vr(o,4)}, v24, s[{sOUT}:{sOUT+3}], s95 offen" + OST)
            if r < 2: A(f"s_add_u32 s95, s95, {6*1280}")
        A("s_mov_b32 exec_hi, -1")
        return
    def rd(r):
        for part in range(4):
            A(f"ds_read_b128 {vr(R+16*r+4*part,4)}, v{16+r} offset:{PS()*part}")
    rd(0); rd(1); rd(2)
    for r in range(5):
        A(f"s_waitcnt lgkmcnt({8 if r < 3 else 4*(4-r)})")
        b = R + 16*r
        for i in (0, 2):
            A(f"v_pk_add_f32 {vr(b+i,2)}, {vr(b+i,2)}, {vr(b+4+i,2)}")
            A(f"v_pk_add_f32 {vr(b+8+i,2)}, {vr(b+8+i,2)}, {vr(b+12+i,2)}")
        if r + 3 < 5: rd(r+3)
        for i in (0, 2): A(f"v_pk_add_f32 {vr(b+i,2)}, {vr(b+i,2)}, {vr(b+8+i,2)}")
        A(f"v_cvt_pk_bf16_f32 v{b}, v{b}, v{b+1}")
        A(f"v_cvt_pk_bf16_f32 v{b+1}, v{b+2}, v{b+3}")
        A(f"buffer_store_dwordx2 {vr(b,2)}, v{24+r}, s[{sOUT}:{sOUT+3}], s95 offen" + OST)

def kd(name):
    return f""".section .rodata,"a"
.p2align 6
.amdhsa_kernel {name}
  .amdhsa_next_free_vgpr 512
  .amdhsa_next_free_sgpr 102
  .amdhsa_accum_offset 256
  .amdhsa_group_segment_fixed_size 0
  .amdhsa_kernarg_size 96
  .amdhsa_user_sgpr_count 2
  .amdhsa_user_sgpr_kernarg_segment_ptr 1
  .amdhsa_system_sgpr_workgroup_id_x 1
.end_amdhsa_kernel
"""

def gen():
    hdr = open("cdna_kernels/" + NAME + ".s.ref").read().split("; Override")[0]
    hdr += f"; @launch grid=(256,1,1) block=(256,1,1) lds={LDS_BYTES}\n"
    hdr += '.amdgcn_target "amdgcn-amd-amdhsa--gfx950"\n'
    A = Asm()
    K = NAME + "_kernel"
    A(".text"); A(f".globl {K}"); A(".p2align 8"); A(f".type {K},@function"); A.label(K)
    prologue(A)
    A("s_cmp_ge_u32 s82, 16"); A("s_cbranch_scc1 r_notkv")
    A("s_and_b32 s85, s82, 3")
    A("s_lshl_b32 s86, s83, 2")
    A(f"s_add_u32 s{sA}, s85, s86")
    A("s_lshr_b32 s85, s82, 2")
    A("s_lshl_b32 s86, s84, 2")
    A(f"s_add_u32 s{sBp}, s85, s86")
    qkv_setup(A, False)
    if not OPT["xfirst"]: qkv_setup_w(A, False)
    A("s_waitcnt lgkmcnt(0)"); srds(A, ["X", "W"])
    stamp(A, "kv_pre")
    def mid(A):
        params1(A); srds(A, ["WS", "W1", "B1", "W2", "B2", "OUT"]); cw_init(A)
        if not OPT["defer"]:
            params2(A); g1_params(A); mid3(A)
    def mid3(A):
        kv_esetup(A)
        A("s_lshl_b32 s85, s81, 4")
        A("s_add_u32 s85, s85, s82")
        A("s_lshl_b32 s85, s85, 2")
        A(f"s_add_u32 s85, s85, s{sWAVE}")
        A("s_lshl_b32 s27, s85, 13")
        A(f"s_lshl_b32 s{sPUB}, s{sA}, 3")
        A(f"s_add_u32 s{sPUB}, s{sPUB}, s{sBp}")
        A(f"s_lshl_b32 s{sPUB}, s{sPUB}, 7")
        A(f"s_add_u32 s{sPUB}, s{sPUB}, {FL_KV:#x}")
    D = OPT["d"]; EW = 5 if D == 2 else 10
    assert D == 3
    def wst(k):
        g = c_wdma(k); g[-1] = g[-1] + c_adv1(); return g
    def bst(k):
        g = [[c_bload(k, n)] for n in range(5)]; g[-1] = g[-1] + c_adv2(); return g
    NI = 4 if OPT["xw"] else 48
    E = kv_estream()
    g1acc = lambda o: ar(G1A+o, 4)
    def pubkv(A, wait):
        A(f"s_waitcnt vmcnt({wait})")
        A("s_barrier")
        A(f"s_cmp_lg_u32 s{sWAVE}, 0")
        A("s_cbranch_scc1 g1_pub1")
        flag_store(A, sPUB)
        A.label("g1_pub1")
        stamp(A, "kv_pub")
    nin = OPT["nbin"]
    ex = {8: ([[poll_ld(vPO, 24)]] + b1_loads() + wst(0) + wst(1), 9), 9: (wst(2), 8)}
    d0 = OPT["defer"]
    out_kv = qkv_gemm(A, "kv", False, mid, ex, {9: lambda A: poll_check(A, "pln", vPO, 24)},
                      [(d0, params2), (d0+1, g1_params), (d0+2, mid3)] if d0 else [])
    if OPT["kvw2"]:
        A(f"buffer_load_dword a255, v15, s[{sW2}:{sW2+3}], s27 offen")
    Bs = bst(0) + bst(1) + bst(2)
    if OPT["kweave"]:
        keep = OPT["mo"]; OPT["mo"] = 1; fm = qkv_mfmas(FB_, False); OPT["mo"] = keep
        e0 = [x for x in E[0] if "mfma" not in x and x != "s_nop 1"]; m0 = [x for x in E[0] if "mfma" in x]
        fill = [[] for _ in range(20)]
        fill[0] = e0[:6]
        k = 6
        for g in range(9, 20):
            fill[g] = e0[k:k+2]; k += 2
        weave(A, fm, fill)
        e1 = list(E[1])
        for j, m in enumerate(m0): e1.insert(3 + 5*j, m)
        body = e0[k:] + e1
    else:
        for m in qkv_mfmas(FB_, False): A(m)
        body = E[0] + E[1]
    stamp(A, "kv_loopdone")
    sp = min(26, (len(body) - 30 - OPT["b0"]) // max(nin, 1))
    pos = [len(body) - 30 - sp*(nin - 1 - k) for k in range(nin)]
    assert not pos or pos[0] >= 0
    for i, x in enumerate(body):
        if i in pos:
            for y in Bs[pos.index(i)]: A(y)
        A(x)
    A("s_waitcnt lgkmcnt(0)")
    A("s_barrier")
    for x in E[2] + E[3]: A(x)
    stamp(A, "kv_st")
    for g in Bs[nin:]:
        for y in g: A(y)
    seq = ["W"]*12 + [f"B{k//5}" for k in range(nin)] + ["S"]*4 + [f"B{k//5}" for k in range(nin, 15)]
    def need(tags): return len(seq) - 1 - max(i for i, t in enumerate(seq) if t in tags)
    A(f"s_waitcnt vmcnt({need(['W'])})")
    for x in c_tr(0, 0): A(x)
    if OPT["pubat"] == 0: pubkv(A, need(["S"]))
    for u in range(4):
        c_step(A, u, min(need([f"B{u}", f"W{u+1}", "W"]), 63), True, True, True, g1acc, True, first=(u == 0),
               pre=f_setup1() if u == 1 else [],
               side=({2: f_setup2()[NI:], 3: f_setup2()[:NI]}.get(u) if OPT["fsplit"] else (f_setup2() if u == 3 else None)))
        if u == 1: seq += ["G"]*8
        seq += [f"W{u+3}"]*4 + [f"B{u+3}"]*5
        stamp(A, f"g1_s{u}")
        if OPT["pubat"] == u + 1: pubkv(A, need(["S"]))
    A(f"s_mov_b32 s{sCNT}, 2")
    g1_phase(A)
    f_phase(A)
    stamp_flush(A)
    A.label("k_end"); A("s_endpgm")
    out_kv(A)
    if OPT["lnmid"]:
        A.label("g1_blk")
        w2_prefetch(A, 24, list(range(3 - OPT["lnpn"], 3)))
        A("s_branch g1_noblk")
    A.label("r_notkv")
    if OPT["pf_code"] and not OPT["pfall"]:
        A("s_getpc_b64 s[86:87]")
        A.label("pc_here")
        A(f"s_sub_u32 s86, s86, pc_here-{K}")
        A("s_subb_u32 s87, s87, 0")
        A("s_sub_u32 s85, s82, 16")
        A("s_lshl_b32 s85, s85, 2")
        A(f"s_add_u32 s85, s85, s{sWAVE}")
        A("s_lshl_b32 s85, s85, 3")
        A("v_add_lshl_u32 v2, v1, s85, 7")
        A(f"v_min_u32 v2, k_codeend-{K}-4, v2")
        A("s_mov_b64 exec, 0xff")
        A("global_load_dword a255, v2, s[86:87]")
        A("s_mov_b64 exec, -1")
    A("s_cmp_lt_u32 s82, 24"); A("s_cbranch_scc1 r_q")
    A("s_sub_u32 s87, s82, 24")
    A("s_lshl_b32 s85, s81, 3")
    A(f"s_add_u32 s{sA}, s85, s87")
    aux = " nt" if OPT.get("nt") else ""
    w1l = lambda k: f"buffer_load_dword a255, v22, s[{sW1}:{sW1+3}], s{26 + k//3} offen offset:{1024*(k%3)}{aux}"
    def after(A):
        params1(A); srds(A, ["WS", "W1", "B1", "W2", "B2", "OUT"]); cw_init(A); params2(A); g1_params(A)
        w1_setup(A, 24, 22)
        for k in range(OPT["early"] if OPT["pf_w1"] else 0): A(w1l(k))
    ln_role(A, after, OPT["early"] if OPT["pf_w1"] else 0)
    publish(A, "pub_ln", FL_LN, sA)
    stamp(A, "ln_pub")
    if OPT["tlb"] == 2:
        A("v_lshlrev_b32 v2, 20, v1")
        A("s_mov_b64 exec, 0x3ff")
        A(f"buffer_load_dword a255, v2, s[{sWS}:{sWS+3}], 0 offen sc1")
        A(f"buffer_load_dword a255, v2, s[{sOUT}:{sOUT+3}], 0 offen")
        A(f"buffer_load_dword a255, v2, s[{sB2}:{sB2+3}], 0 offen")
        A("s_mov_b64 exec, -1")
    for k in range(OPT["early"], (3 - OPT["qw1n"]) if (OPT["pf_w1"] and not OPT["qfirst"]) else 0): A(w1l(k))
    def pf_h():
        A(poll_ld(vPO, 24))
        A("v_lshrrev_b32 v2, 5, v1")
        A("v_mul_u32_u24 v2, 40960, v2")
        A("v_and_b32 v3, 31, v1")
        A("v_lshl_add_u32 v2, v3, 7, v2")
        A("s_sub_u32 s85, s82, 24")
        A("s_lshl_b32 s85, s85, 2")
        A(f"s_add_u32 s85, s85, s{sWAVE}")
        A(f"s_mul_i32 s87, s85, {2*40960}")
        A("s_mul_i32 s86, s84, 20480")
        A("s_add_u32 s87, s87, s86")
        A("s_waitcnt vmcnt(0)")
        poll_check(A, "plnh", vPO, 24)
        A("s_barrier")
        for i in range(5):
            A(f"buffer_load_dword a255, v2, s[{sWS}:{sWS+3}], s87 offen sc1")
            A("s_add_u32 s87, s87, 4096")
    for c in str(OPT["lnseq"]):
        if c == "1" and OPT["pf_w1"]:
            for k in range(3, 6): A(w1l(k))
        if c == "6":
            for k in range(3): A(w1l(k))
        if c == "2": pf_h()
        if c == "3": w2_prefetch(A, 24, [0])
        if c == "7": w2_prefetch(A, 24, [2])
        if c == "4": w2_prefetch(A, 24, [0, 1])
        if c == "5": w2_prefetch(A, 24, [0, 1, 2])
    stamp(A, "ln_pf")
    for g in b1_loads(): A(g[0])
    A(poll_ld(vPO, 24))
    c_wring(A)
    A(f"s_waitcnt vmcnt({4*OPT['d']})")
    poll_check(A, "pln2", vPO, 24)
    A("s_barrier")
    for x in f_setup1(): A(x)
    c_bring(A)
    for i in range(80): A(f"v_accvgpr_write_b32 a{G1A+i}, 0")
    A(f"s_waitcnt vmcnt({5*D})")
    for x in f_setup2(): A(x)
    A(f"s_mov_b32 s{sCNT}, 3")
    A(f"s_mov_b32 s{sPUB}, {OPT['lnmid']}")
    A(f"s_waitcnt vmcnt({EW})")
    for x in c_tr(0, 0): A(x)
    stamp(A, "ln_ready")
    A("s_branch g1_loop")
    A.label("r_q")
    A("s_sub_u32 s87, s82, 16")
    A("s_and_b32 s85, s87, 3")
    A("s_lshl_b32 s86, s83, 2")
    A(f"s_add_u32 s{sA}, s85, s86")
    A("s_lshr_b32 s85, s87, 2")
    A("s_lshl_b32 s86, s84, 1")
    A(f"s_add_u32 s{sBp}, s85, s86")
    A(f"s_lshl_b32 s{sU}, s{sBp}, 2")
    A(f"s_and_b32 s85, s{sA}, 3")
    A(f"s_add_u32 s{sU}, s{sU}, s85")
    A(f"s_lshr_b32 s{sNR}, s{sA}, 2")
    def midq(A):
        params1(A); srds(A, ["WS", "W1", "WO", "W2", "B2", "OUT"]); cw_init(A); params2(A)
        w1_setup(A, 16, 12)
        if OPT["qw1"] == 0: q_pf_only(A)
        if not OPT["qdefer"]: q_setup(A)
    def qs(lo, hi):
        def f(A):
            B = Asm(); q_setup(B)
            assert len(B.lines) > 150
            for x in B.lines[lo:hi]: A(x)
        return f
    def qtouch(A):
        A("s_mov_b32 exec_lo, 0xffff03ff")
        A("s_mov_b32 exec_hi, 0")
        A(f"buffer_load_dword a255, v{vT1}, s[{sWS}:{sWS+3}], 0 offen sc1")
        A("s_mov_b64 exec, -1")
    qkv_setup(A, True)
    if not OPT["xfirst"]: qkv_setup_w(A, True)
    A("s_waitcnt lgkmcnt(0)"); srds(A, ["X", "W"])
    qb = [(max(OPT["qw1"], 1), q_loop_pf)]
    if OPT["qdefer"]:
        def both(A): q_loop_pf(A); q_setup(A); qtouch(A)
        qb = [(OPT["qw1"], both)]
    out_q = qkv_gemm(A, "q", True, midq, q_extras(), {9: lambda A: poll_check(A, "pln3", vPO, 24)}, qb)
    q_epilogue(A)
    A("s_lshl_b32 s88, s81, 3")
    A("s_add_u32 s88, s88, s82")
    A("s_sub_u32 s88, s88, 16")
    publish(A, "pub_q", FL_Q, 88)
    stamp(A, "q_pub")
    if OPT["qw2b"]: w2_prefetch(A, 16, list(range(3 - OPT["qw2b"], 3)))
    for x in f_setup1(): A(x)
    switch_to_fb(A)
    c_wring(A)
    if OPT["xw"]: xw_dma(A)
    A(poll_ld(vPO, 25))
    A(f"s_waitcnt vmcnt({4*D + 1 + (4 + 4*OPT['xw'] if OPT['xw'] else 0)})")
    for x in f_setup2(): A(x)
    A("s_waitcnt vmcnt(0)")
    poll_check(A, "pq2", vPO, 25)
    A("s_barrier")
    stamp(A, "q_allq")
    if OPT["pf_pq"]:
        A("s_sub_u32 s88, s82, 16")
        A("s_lshl_b32 s88, s88, 2")
        A(f"s_add_u32 s88, s88, s{sWAVE}")
        A("v_lshlrev_b32 v2, 7, v1")
        A(f"s_mul_i32 s85, s83, {8*81920}")
        A(f"s_mul_i32 s86, s88, {160*128}")
        A("s_add_u32 s85, s85, s86")
        A(f"s_add_u32 s85, s85, {WS_PQ:#x}")
        for i in range(3):
            if i == 2: A("s_mov_b32 exec_hi, 0")
            A(f"buffer_load_dword a255, v2, s[{sWS}:{sWS+3}], s85 offen sc1")
            A("s_add_u32 s85, s85, 8192")
        A("s_mov_b32 exec_hi, -1")
        A("s_cmp_ge_u32 s88, 20")
        A("s_cbranch_scc1 q_pfd")
        A("s_mul_i32 s85, s88, 40960")
        A("s_mul_i32 s86, s84, 20480")
        A("s_add_u32 s85, s85, s86")
        A(f"s_add_u32 s85, s85, {WS_M:#x}")
        for i in range(3):
            if i == 2: A("s_mov_b32 exec_hi, 0")
            A(f"buffer_load_dword a255, v2, s[{sWS}:{sWS+3}], s85 offen sc1")
            A("s_add_u32 s85, s85, 8192")
        A("s_mov_b32 exec_hi, -1")
        A.label("q_pfd")
    fa_params(A)
    A("s_branch f_entry")
    out_q(A)
    A.label("k_codeend")
    for i, l in enumerate(A.lines):
        if l.startswith("v_mad_i32_i24 v4, v3, -20"):
            A.lines[i] = l.replace("-20", "s89")
        if l == "s_movk_i32 s88, 3840":
            A.lines[i] = "s_movk_i32 s89, -20"
    if OPT["align"]:
        A.lines, nc, nn = align(A.lines, OPT["align"])
        print("aligned: widened", nc, "nops", nn, file=sys.stderr)
    nb = check(A.lines)
    print("hazards:", nb, file=sys.stderr)
    return hdr + A.text() + kd(K)

if __name__ == "__main__":
    out = sys.argv[1]
    for a in sys.argv[2:]:
        if a == "st": STAMPS = True
        else:
            k, v = a.split("="); OPT[k] = int(v)
    open(out, "w").write(gen())
    if STAMPS: json.dump(_st["names"], open(out + ".names", "w"))
```

```python
import sys, json
from asmlib import Asm, vr, ar, sr, check, align

NAME = "gated_mix__linear_attn_block__mixer_token_mlp__prompt"
WS_H   = 0x000000
WS_U   = 0x280000
WS_PQ  = 0x460000
WS_M   = 0x6E0000
WS_KVP = 0x7A8000
WS_ZP  = 0x880000
WS_G   = 0x972000
WS_FLAG = 0x974000
FL_X = WS_FLAG
FL_LN = WS_FLAG + 128
FL_KV = FL_LN + 64*128
FL_Q = FL_KV + 128*128
FL_G1 = FL_Q + 64*128
WS_SIZE = FL_G1 + 192*128
WS_STAMP = 0x1000000

sX, sW, sWS, sW1, sW2, sOUT, sWO, sB1, sB2, sGW = 28, 32, 36, 40, 44, 48, 52, 56, 60, 64
sWAVE = 68
sA, sBp = 69, 70
sG1D, sG1F, sFS, sFD = 71, 72, 73, 74
sCNT, sO1, sO2, sRD, sWR, sM0 = 75, 76, 77, 78, 79, 80
sEX, sMK = 90, 92
sU, sNR = 94, 95
sWR_, sWC_ = 96, 97
sPUB = 3
sQOK = 99
sM1 = 98
sC1, sC2, sCM0, sCB1, sCE1, sCB2, sCE2, sCST, sCW, sNON = 4, 5, 6, 7, 8, 9, 10, 11, 12, 16
sF1, sFB1, sFE1, sF2, sFB2, sFE2 = 17, 18, 19, 20, 21, 22
LOG2E = 0x3FB8AA3B
EPS6 = 0x358637BD
LDS_RED = 65536
LDS_BYTES = 163840
vXO, vWO_, vXB, vCUR = 16, 20, 25, 29
vWS_, vB0, vB1, vTR, vWS2 = 33, 37, 38, 39, 43
ACC = 48
FA_, FB_ = 112, 148
BR, AS = 0, 80
STG = 36864
vPOLL, vPO = 14, 13
OPT = {"rot": 1, "pf_w1": 1, "pf_w2": 1, "pf_code": 1, "pf_pq": 0, "sleep": 1, "early": 1, "d": 3, "qpoll": 2, "nbin": 13, "cv": 0, "lnseq": 51, "qw2": 0, "qw2b": 0, "ntq": 0, "qw1": 1, "qw1n": 2, "kvr": 1, "touch": 0, "perm": 0, "otouch": 0, "rdb": 4, "w2c": 2, "qfirst": 0, "rfd": 3, "tailw": 1, "pubat": 0, "kvw2": 0, "b0": 0, "qw1b": 0, "rfb": 4, "frot": 2, "arot": 2, "fmap": 1, "qrot": 1, "grot": 4, "lnpost": 0, "lnpn": 3, "align": 5, "defer": 0, "qdefer": 0, "lnmid": 0, "ost": 1, "tlb": 0, "pf0": 8, "xfirst": 1, "fsplit": 1, "xw": 3, "xwd": 0, "xsp": 6, "pfall": 0, "ntl": 6, "ntlk": 2, "ntlq": 3, "ox4": 0, "merge": 0, "mo": 0, "uearly": 1, "kweave": 1, "lal": 3, "rev": 0, "g1late": 1, "fblate": 0}
STAMPS = False
_st = {"n": 0, "names": []}

def stamp(A, name, real=False):
    if not STAMPS: return
    if OPT.get("clk") and not real and name in ("kv_first", "kv_loop9", "g1_s0", "g1_loopdone", "g1_pub", "fb_first", "fb_loopdone"): stamp(A, name + "_R", True)
    i = _st["n"]; _st["n"] += 1; _st["names"].append(name)
    A("s_memrealtime s[100:101]" if real else "s_memtime s[100:101]")
    A("s_waitcnt lgkmcnt(0)")
    A(f"v_writelane_b32 v47, s100, {i}")
def stamp_flush(A):
    if not STAMPS: return
    stamp(A, "end"); stamp(A, "endreal", True)
    A("s_lshl_b32 s100, s2, 2")
    A(f"s_add_u32 s100, s100, s{sWAVE}")
    A("s_lshl_b32 s100, s100, 8")
    A(f"s_add_u32 s100, s100, {WS_STAMP:#x}")
    A(f"s_mov_b32 s{sWS+2}, 0x2000000")
    A("v_lshlrev_b32 v46, 2, v1")
    A(f"buffer_store_dword v47, v46, s[{sWS}:{sWS+3}], s100 offen")

def srds(A, which):
    tab = {"X": (sX, 4, 2048*1280), "W": (sW, 6, 640*3840), "WO": (sWO, 8, 640*1280), "W1": (sW1, 12, 2048*3072), "B1": (sB1, 14, 3072),
           "W2": (sW2, 16, 1536*4096), "B2": (sB2, 18, 4096), "GW": (sGW, 20, 1280), "OUT": (sOUT, 22, 2048*1280), "WS": (sWS, 26, WS_SIZE)}
    for w in which:
        base, ptr, size = tab[w]
        A(f"s_mov_b64 s[{base}:{base+1}], s[{ptr}:{ptr+1}]")
        A(f"s_mov_b32 s{base+2}, {size:#x}")
        A(f"s_mov_b32 s{base+3}, 0x20000")

def PS(): return 22528 if OPT["ox4"] else 21504
def RS(): return 176 if OPT["ox4"] else 336
def flat(groups):
    out = []
    for g in groups: out += g if isinstance(g, list) else [g]
    return out

def weave(A, mf, fill, first=0):
    for i, m in enumerate(mf):
        A(m)
        if i < len(fill):
            for x in fill[i]: A(x)
    for g in fill[len(mf):]:
        for x in g: A(x)

def poll_off(A, dst, nper, total_waves_split=True):
    A(f"v_and_b32 v{dst}, {nper-1}, v1")
    A(f"s_mul_i32 s85, s{sWAVE}, {nper}")
    A(f"v_add_lshl_u32 v{dst}, v{dst}, s85, 7")
def poll_ld(vo, so):
    return f"buffer_load_dword v{vPOLL}, v{vo}, s[{sWS}:{sWS+3}], s{so} offen sc1"
def poll_check(A, name, vo, so):
    A(f"v_cmp_ne_u32 vcc, s{sNON}, v{vPOLL}")
    A(f"s_cbranch_vccz {name}_ok")
    A(f"s_mov_b32 s{sM1}, 0")
    A.label(f"{name}_spin")
    A(f"s_add_u32 s{sM1}, s{sM1}, 1")
    A(f"s_cmp_gt_u32 s{sM1}, 0x80000")
    A(f"s_cbranch_scc1 {name}_ok")
    A(f"s_sleep {OPT['sleep']}")
    A(poll_ld(vo, so))
    A("s_waitcnt vmcnt(0)")
    A(f"v_cmp_ne_u32 vcc, s{sNON}, v{vPOLL}")
    A(f"s_cbranch_vccnz {name}_spin")
    A.label(f"{name}_ok")
def flag_store(A, so):
    A(f"v_mov_b32 v2, s{sNON}")
    A("v_lshlrev_b32 v3, 2, v1")
    A("s_mov_b32 exec_hi, 0")
    A(f"buffer_store_dword v2, v3, s[{sWS}:{sWS+3}], s{so} offen sc1")
    A("s_mov_b32 exec_hi, -1")
def publish(A, name, base, sidx, wait=0):
    if wait is not None: A(f"s_waitcnt vmcnt({wait})")
    A("s_barrier")
    A(f"s_cmp_lg_u32 s{sWAVE}, 0")
    A(f"s_cbranch_scc1 {name}_np")
    A(f"s_lshl_b32 s85, s{sidx}, 7")
    A(f"s_add_u32 s85, s85, {base:#x}")
    flag_store(A, 85)
    A.label(f"{name}_np")

def prologue(A):
    A("s_cmp_ge_u32 s2, 256")
    A("s_cbranch_scc1 k_end")
    if STAMPS: A("v_mov_b32 v47, 0")
    stamp(A, "startreal", True); stamp(A, "start")
    A("s_load_dwordx16 s[4:19], s[0:1], 0")
    A("s_load_dwordx8 s[20:27], s[0:1], 64")
    if OPT["pf0"] and not OPT["pfall"]:
        A("s_getpc_b64 s[86:87]")
        A("v_lshlrev_b32 v2, 7, v0")
        A(f"s_mov_b64 exec, {(1 << OPT['pf0']) - 1:#x}")
        A("global_load_dword a255, v2, s[86:87] offset:128")
        A("s_mov_b64 exec, -1")
    A("v_lshrrev_b32 v2, 6, v0")
    A("v_and_b32 v1, 63, v0")
    if OPT["pfall"]:
        A("s_getpc_b64 s[86:87]")
        A.label("pc_0")
        A("s_lshr_b32 s85, s2, 3")
        A("v_lshl_add_u32 v3, s85, 2, v2")
        A("v_mad_u32_u24 v3, v3, 3, v1")
        A("v_cmp_gt_u32 vcc, 3, v1")
        A("v_add_u32 v4, -2, v1")
        A(f"s_mov_b64 exec, {(1 << (3 + OPT['pf0'])) - 1:#x}")
        A("v_cndmask_b32 v3, v4, v3, vcc")
        A("v_lshlrev_b32 v3, 7, v3")
        A("v_min_u32 v3, k_codeend-pc_0-4, v3")
        A("global_load_dword a255, v3, s[86:87]")
        A("s_mov_b64 exec, -1")
    A(f"v_readfirstlane_b32 s{sWAVE}, v2")
    A("s_and_b32 s81, s2, 7")
    A("s_lshr_b32 s82, s2, 3")
    A("s_lshr_b32 s83, s81, 1")
    A("s_and_b32 s84, s81, 1")

def params1(A):
    A(f"s_add_u32 s86, s26, {FL_X:#x}")
    A("s_addc_u32 s87, s27, 0")
    A("s_load_dword s3, s[86:87], 0")
    A("s_lshr_b32 s85, s82, 2")
    A("s_lshl_b32 s88, s83, 3")
    if OPT["perm"]: A("s_xor_b32 s85, s85, 7")
    A(f"s_add_u32 s{sFS}, s85, s88")
    A("s_and_b32 s85, s82, 3")
    A("s_lshl_b32 s88, s84, 2")
    A(f"s_add_u32 s{sFD}, s85, s88")
    if OPT["fmap"]:
        A("s_lshr_b32 s85, s82, 3")
        if OPT["fmap"] == 1:
            A("s_lshl_b32 s85, s85, 3")
            A(f"s_add_u32 s{sFS}, s85, s81")
        else:
            A(f"s_lshl_b32 s{sFS}, s81, 2")
            A(f"s_add_u32 s{sFS}, s{sFS}, s85")
        A(f"s_and_b32 s{sFD}, s82, 7")
    A("s_sub_u32 s85, s82, 8")
    A("s_cmp_lt_u32 s82, 16")
    A("s_cselect_b32 s85, s82, s85")
    A("s_and_b32 s89, s85, 3")
    A(f"s_add_u32 s{sG1D}, s89, s88")
    A("s_lshr_b32 s85, s85, 2")
    A("s_lshl_b32 s88, s85, 2")
    A(f"s_add_u32 s{sG1F}, s83, s88")
    A("s_lshr_b32 s88, s85, 2")
    A("s_lshl_b32 s85, s85, 1")
    A("s_add_u32 s85, s85, s88")
    A("s_lshl_b32 s85, s85, 1")
    if OPT["rfb"] == 0: A("s_mov_b32 s85, 0")
    A(f"s_mul_i32 s89, s89, {OPT['rdb']}")
    A("s_add_u32 s85, s85, s89")
    if OPT["grot"] == 2: A("s_lshl_b32 s85, s85, 1")
    A(f"s_and_b32 s99, s85, {(15 if OPT['grot'] == 4 else 8) if OPT['grot'] else 0}")

def cw_init(A):
    A(f"s_mov_b64 s[{sCW}:{sCW+1}], s[{sW1}:{sW1+1}]")
    A(f"s_mov_b64 s[{sCW+2}:{sCW+3}], s[{sW1+2}:{sW1+3}]")
def params2(A):
    if OPT.get("same"):
        for k, r in enumerate((sG1D, sG1F, sFS, sFD)):
            A(f"s_mov_b32 s{100 if not STAMPS else 64+k}, s{r}")
            A(f"s_mov_b32 s{r}, 0")
        params2_(A)
        for k, r in enumerate((sG1D, sG1F, sFS, sFD)): A(f"s_mov_b32 s{r}, s{64+k}")
    else: params2_(A)
def params_fb(A):
    A("s_and_b32 s85, s82, 3")
    A(f"s_mul_i32 s85, s85, {OPT['rfd']}")
    A("s_lshr_b32 s86, s82, 2")
    A("s_mul_i32 s86, s86, 3")
    A("s_lshr_b32 s86, s86, 1")
    A("s_add_u32 s85, s85, s86")
    A("s_cmp_ge_u32 s85, 12")
    A("s_cselect_b32 s86, 12, 0")
    A("s_sub_u32 s85, s85, s86")
    if OPT["frot"] == 0: A("s_mov_b32 s85, 0")
    if OPT["frot"] == 2:
        A(f"s_add_u32 s85, s{sFS}, s{sFD}")
        A("s_and_b32 s85, s85, 1")
        A("s_mul_i32 s85, s85, 6")
    if OPT["frot"] == 4:
        A("s_bfe_u32 s85, s82, 0x10003")
        A("s_mul_i32 s85, s85, 6")
    if OPT["frot"] == 3:
        A(f"s_add_u32 s85, s{sFS}, s{sFD}")
        A("s_mul_i32 s86, s85, 86")
        A("s_lshr_b32 s86, s86, 8")
        A("s_mul_i32 s86, s86, 3")
        A("s_sub_u32 s85, s85, s86")
        A("s_lshl_b32 s85, s85, 2")
    A(f"s_mul_i32 s{sFB1}, s{sWAVE}, {12*32*4096}")
    A(f"s_lshl_b32 s86, s{sFS}, 7")
    A(f"s_add_u32 s{sFB1}, s{sFB1}, s86")
    A(f"s_add_u32 s{sFE1}, s{sFB1}, {12*32*4096}")
    A(f"s_lshl_b32 s86, s85, 17")
    A(f"s_add_u32 s{sF1}, s{sFB1}, s86")
    A(f"s_mul_i32 s{sFB2}, s{sWAVE}, {12*40960}")
    A(f"s_mul_i32 s86, s{sFD}, 5120")
    A(f"s_add_u32 s{sFB2}, s{sFB2}, s86")
    A(f"s_add_u32 s{sFB2}, s{sFB2}, {WS_U:#x}")
    A(f"s_add_u32 s{sFE2}, s{sFB2}, {12*40960}")
    A(f"s_mul_i32 s86, s85, 40960")
    A(f"s_add_u32 s{sF2}, s{sFB2}, s86")
def params2_(A, skip_fb=False):
    A(f"s_mul_i32 s{sCB1}, s{sWAVE}, {16*32*3072}")
    A(f"s_lshl_b32 s85, s{sG1F}, 7")
    A(f"s_add_u32 s{sCB1}, s{sCB1}, s85")
    A(f"s_add_u32 s{sCE1}, s{sCB1}, {16*32*3072}")
    A(f"s_mul_i32 s85, s99, {32*3072}")
    A(f"s_add_u32 s{sC1}, s{sCB1}, s85")
    A(f"s_mul_i32 s{sCB2}, s{sWAVE}, {16*40960}")
    A(f"s_mul_i32 s85, s{sG1D}, 5120")
    A(f"s_add_u32 s{sCB2}, s{sCB2}, s85")
    A(f"s_add_u32 s{sCE2}, s{sCB2}, {16*40960}")
    A(f"s_mul_i32 s85, s99, 40960")
    A(f"s_add_u32 s{sC2}, s{sCB2}, s85")
    A(f"s_mov_b32 s{sCST}, {32*3072}")
    A(f"s_lshl_b32 s{sCM0}, s{sWAVE}, 14")
    if not skip_fb: params_fb(A)
    A(f"v_lshlrev_b32 v{vB0}, 4, v1")
    A(f"v_add_u32 v{vB1}, 4096, v{vB0}")
    A("v_lshrrev_b32 v2, 2, v1")
    A("v_lshrrev_b32 v3, 1, v2")
    A("v_and_b32 v3, 3, v3")
    A("v_lshlrev_b32 v2, 7, v2")
    A("v_lshl_add_u32 v2, v3, 5, v2")
    A("v_and_b32 v3, 3, v1")
    A("v_lshl_add_u32 v2, v3, 3, v2")
    A(f"v_add_u32 v{vTR}, s{sCM0}, v2")
    for t in range(1, 4): A(f"v_xor_b32 v{vTR+t}, {32*t}, v{vTR}")
    A("v_lshrrev_b32 v2, 3, v1")
    A("v_lshrrev_b32 v3, 4, v1")
    A("v_lshlrev_b32 v3, 1, v3")
    A("v_and_b32 v4, 7, v1")
    A("v_xor_b32 v3, v3, v4")
    A("v_lshlrev_b32 v3, 4, v3")
    for base, stride in ((vWS_, 3072), (vWS2, 4096)):
        A(f"v_mul_u32_u24 v4, {stride}, v2")
        A(f"v_add_u32 v{base}, v3, v4")
        for q in range(1, 4): A(f"v_add_u32 v{base+q}, {q*(8*stride-1024)}, v{base}")
    poll_off(A, vPO, 16)
    A("v_lshlrev_b32 v15, 7, v1")
    A(f"s_mov_b32 s24, {FL_LN:#x}")
    A(f"s_mov_b32 s25, {FL_Q:#x}")
    A("s_waitcnt lgkmcnt(0)")
    A(f"s_mul_i32 s{sNON}, s3, 0x41C64E6D")
    A(f"s_add_u32 s{sNON}, s{sNON}, 0x3C6EF35F")

def qkv_setup(A, isq):
    A(f"s_lshr_b32 s{sWR_}, s{sWAVE}, 1")
    A(f"s_and_b32 s{sWC_}, s{sWAVE}, 1")
    A("v_lshrrev_b32 v2, 3, v1")
    A(f"s_lshl_b32 s85, s{sWAVE}, 5")
    A("v_add_u32 v2, s85, v2")
    A("v_mul_u32_u24 v2, 1280, v2")
    A("v_lshrrev_b32 v3, 4, v1")
    A("v_and_b32 v4, 7, v1")
    A("v_xor_b32 v4, v4, v3")
    A(f"v_lshl_add_u32 v{vXO}, v4, 4, v2")
    A("v_xor_b32 v4, 4, v4")
    A("v_lshl_add_u32 v6, v4, 4, v2")
    A(f"v_add_u32 v{vXO+1}, {8*1280-1024}, v6")
    A(f"v_add_u32 v{vXO+2}, {16*1280-2048}, v{vXO}")
    A(f"v_add_u32 v{vXO+3}, {24*1280-3072}, v6")
    A(f"s_mul_i32 s{sO1}, s{sA}, {0 if OPT.get('same') else 128*1280}")
    A(f"s_mov_b32 s{sO2}, 0")
    if OPT["rot"]:
        q = OPT["qrot"]
        if q in (1, 6):
            A("s_and_b32 s85, s82, 3")
            A("s_lshl_b32 s85, s85, 2")
            A(f"s_lshr_b32 s85, {0x8530 if q == 1 else 0x5500:#x}, s85")
            A("s_and_b32 s85, s85, 15")
            A("s_and_b32 s86, s82, 12")
            A("s_lshr_b32 s86, 0x8530, s86")
            A("s_and_b32 s86, s86, 15")
            A("s_add_u32 s85, s85, s86")
            A("s_add_u32 s85, s85, s83")
            A("s_add_u32 s85, s85, s84")
        else:
            A("s_lshr_b32 s85, s82, 2")
            A("s_add_u32 s85, s85, s82")
            A("s_and_b32 s85, s85, 1")
            A("s_mul_i32 s85, s85, 5")
            if q == 2:
                A("s_add_u32 s85, s85, s83")
                A("s_add_u32 s85, s85, s84")
            if q == 4:
                A("s_add_u32 s85, s85, s81")
            if q == 5:
                A("s_mov_b32 s85, s81")
        if isq: A("s_add_u32 s85, s85, 1")
        A("s_mul_i32 s86, s85, 26")
        A("s_lshr_b32 s86, s86, 8")
        A("s_mul_i32 s86, s86, 10")
        A("s_sub_u32 s85, s85, s86")
        A(f"s_mul_i32 s{sO2}, s85, {64*3840}")
        A("s_lshl_b32 s85, s85, 7")
        A(f"s_add_u32 s{sO1}, s{sO1}, s85")
    A(f"s_lshl_b32 s{sM0}, s{sWAVE}, 12")
    A(f"s_mul_i32 s{sM1}, s{sWAVE}, 5120")
    A(f"s_add_u32 s{sM1}, s{sM1}, 16384")
    A(f"s_mov_b32 s{sWR}, {2*STG}")

def qkv_setup_w(A, isq):
    if OPT.get("same"):
        A("s_mov_b32 s86, 1280")
    elif isq:
        A(f"s_mul_i32 s86, s{sBp}, 320")
    else:
        A(f"s_mul_i32 s86, s{sBp}, 160")
        A("s_add_u32 s86, s86, 1280")
    A(f"s_mul_i32 s85, s{sWAVE}, {16*3840}")
    A("s_add_u32 s85, s85, s86")
    A("s_movk_i32 s88, 3840")
    for n in range(5):
        if n: A(f"v_add_u32 v2, {64*n}, v1")
        q = "v2" if n else "v1"
        A(f"v_mul_u32_u24 v3, 3277, {q}")
        A("v_lshrrev_b32 v3, 16, v3")
        A(f"v_mad_i32_i24 v4, v3, -20, {q}")
        A("v_lshrrev_b32 v5, 2, v3")
        A("v_and_b32 v5, 2, v5")
        A("v_xor_b32 v4, v4, v5")
        comp = 1024*n if n < 4 else 0
        A(f"s_sub_u32 s87, s85, {comp}" if comp else "s_mov_b32 s87, s85")
        A("v_mad_u32_u24 v3, v3, s88, s87" if False else "v_mul_u32_u24 v3, 3840, v3")
        A("v_lshl_add_u32 v3, v4, 4, v3")
        if not isq:
            A("v_cmp_le_u32 vcc, 10, v4")
            A("v_add_u32 v5, 1120, v3")
            A("v_add_u32 v3, s87, v3")
            A("v_add_u32 v5, s87, v5")
            A(f"v_cndmask_b32 v{vWO_+n}, v3, v5, vcc")
        else:
            A(f"v_add_u32 v{vWO_+n}, s87, v3")

def nt(b): return " nt" if OPT["ntq"] & b else ""
def qkv_dma():
    L = [[f"s_add_u32 m0, s{sWR}, s{sM0}"]]
    for n in range(4):
        L.append([f"buffer_load_dwordx4 v{vXO+n}, s[{sX}:{sX+3}], s{sO1} offen offset:{1024*n}{nt(1)} lds"])
    L.append([f"s_add_u32 m0, s{sWR}, s{sM1}"])
    for n in range(4):
        L.append([f"buffer_load_dwordx4 v{vWO_+n}, s[{sW}:{sW+3}], s{sO2} offen offset:{1024*n}{nt(2)} lds"])
    L.append(["s_add_u32 m0, m0, 4096"])
    L.append([f"buffer_load_dwordx4 v{vWO_+4}, s[{sW}:{sW+3}], s{sO2} offen{nt(2)} lds"])
    return L
def qkv_adv():
    return [f"s_add_u32 s{sO1}, s{sO1}, 128", f"s_add_u32 s{sO2}, s{sO2}, {64*3840}", f"s_cmp_eq_u32 s{sO2}, {640*3840}",
            "s_cselect_b32 s85, 1280, 0", f"s_cselect_b32 s{sO2}, 0, s{sO2}", f"s_sub_u32 s{sO1}, s{sO1}, s85",
            f"s_add_u32 s{sWR}, s{sWR}, {STG}", f"s_cmp_eq_u32 s{sWR}, {4*STG}", f"s_cselect_b32 s{sWR}, 0, s{sWR}"]
def emit_dma_block(A, groups):
    for g in groups:
        for x in g: A(x)
        if "m0" in g[0].split(",")[0]: A("s_nop 0")

NW = 5
vXB, vCUR = 26, 6
vXB = 208
vCUR = 215
def qkv_reads(kk, fs):
    def wr(t):
        return [f"ds_read_b64_tr_b16 {ar(fs+16+4*t+2*j,2)}, v{vCUR+2+t} offset:{kk*10240 + j*1280}" for j in range(2)]
    L = wr(0)
    for st in range(4):
        L.append(f"ds_read_b128 {ar(fs+4*st,4)}, v{vCUR+kk} offset:{st*2048}")
    for t in range(1, 5): L += wr(t)
    return L
def qkv_mfmas(fs, isq):
    L = []
    order = [(t, st) for t in range(5) for st in range(4)]
    if OPT["mo"] & 1: order = [(t, st) for st in range(4) for t in range(5)]
    if OPT["mo"] & 4: order = [(t, st if t % 2 == 0 else 3 - st) for t in range(5) for st in range(4)]
    for t, st in order:
            x = ar(fs + 4*st, 4); w = ar(fs + 16 + 4*t, 4); c = vr(ACC + (st*5+t)*4, 4)
            L.append(f"v_mfma_f32_16x16x32_bf16 {c}, {w}, {x}, {c}" if isq else f"v_mfma_f32_16x16x32_bf16 {c}, {x}, {w}, {c}")
    return L

def qkv_gemm(A, pfx, isq, mid_setup, extras, pres, blk):
    if OPT["xfirst"]:
        emit_dma_block(A, qkv_dma()[:5])
        qkv_setup_w(A, isq)
        if OPT["rev"]:
            A("s_bitcmp1_b32 s82, 0")
            A(f"s_cbranch_scc0 {pfx}_fwd")
            d = qkv_dma()
            A(f"s_add_u32 m0, s{sWR}, s{sM1}")
            A("s_add_u32 m0, m0, 4096")
            A("s_nop 0")
            A(d[11][0])
            emit_dma_block(A, [d[5], d[9], d[8], d[7], d[6]])
            A(f"s_branch {pfx}_rvd")
            A.label(f"{pfx}_fwd")
        emit_dma_block(A, qkv_dma()[5:])
        if OPT["rev"]: A.label(f"{pfx}_rvd")
    else:
        emit_dma_block(A, qkv_dma())
    for x in qkv_adv(): A(x)
    stamp(A, pfx + "_iss0")
    mid_setup(A)
    A("v_and_b32 v2, 15, v1")
    A("v_lshrrev_b32 v3, 4, v1")
    A("v_lshrrev_b32 v4, 1, v2")
    A("v_xor_b32 v4, v4, v3")
    A("v_lshlrev_b32 v4, 4, v4")
    A("v_lshl_add_u32 v4, v2, 7, v4")
    A(f"s_lshl_b32 s85, s{sWR_}, 13")
    A(f"v_add_u32 v{vXB}, s85, v4")
    A(f"v_xor_b32 v{vXB+1}, 64, v{vXB}")
    A("v_lshrrev_b32 v4, 2, v2")
    A("v_lshl_add_u32 v4, v3, 3, v4")
    A("v_mul_u32_u24 v4, 320, v4")
    A("v_and_b32 v5, 1, v1")
    A("v_lshl_add_u32 v4, v5, 3, v4")
    A("v_add_u32 v4, 16384, v4")
    A("v_bfe_u32 v5, v1, 1, 1")
    A("v_and_b32 v6, 1, v3")
    A("v_lshlrev_b32 v6, 1, v6")
    A(f"s_mul_i32 s85, s{sWC_}, {10 if isq else 5}")
    for t in range(5):
        if isq: c0, step = [(0, 1), (2, 1), (4, 5), (5, 1), (7, 1)][t]
        else: c0, step = [(0, 1), (2, 1), (4, 6), (11, 1), (13, 1)][t]
        A(f"s_add_u32 s86, s85, {c0}")
        if step == 1: A("v_add_u32 v7, s86, v5")
        else: A(f"v_mad_u32_u24 v7, v5, {step}, s86")
        A("v_xor_b32 v7, v7, v6")
        A(f"v_lshl_add_u32 v{vXB+2+t}, v7, 4, v4")
    zero_acc(A)
    A(f"s_mov_b32 s{sRD}, {2*STG}")
    A(f"s_mov_b32 s{sCNT}, 0")
    upd = [f"v_add_u32 v{vCUR+i}, s{sRD}, v{vXB+i}" for i in range(7)]
    rdadv = [f"s_add_u32 s{sRD}, s{sRD}, {STG}", f"s_cmp_eq_u32 s{sRD}, {4*STG}", f"s_cselect_b32 s{sRD}, 0, s{sRD}"]
    def spread(rd, dma_slots, groups, scal):
        fill = [[] for _ in range(20)]
        k = 0
        for gi in range(9):
            for _ in range(2 if gi < 5 else 1):
                fill[gi].append(rd[k]); k += 1
        g = list(groups)
        for sl in dma_slots:
            if not g: break
            if "m0" in g[0][0].split(",")[0]:
                fill[sl-1] += g.pop(0)
            fill[sl] += g.pop(0)
        return fill, g
    def put_scal(fill, scal, start):
        sc = list(scal); gi = start
        while sc:
            room = 2 - len(fill[gi]) if gi < 19 else len(sc)
            for _ in range(max(room, 0)):
                if sc: fill[gi].append(sc.pop(0))
            gi += 1
    def top_half(wait, groups, pre=None, slots=(3, 7, 11, 15, 19)):
        A(f"s_waitcnt vmcnt({wait}) lgkmcnt(0)")
        if pre: pre(A)
        A("s_barrier")
        fill, rest = spread(qkv_reads(0, FA_), slots, groups, [])
        weave(A, qkv_mfmas(FB_, isq), fill)
        return rest
    def bot_half(adv, tail, groups=[], slots=(2, 6, 10, 13)):
        A("s_waitcnt lgkmcnt(0)")
        fill, rest = spread(qkv_reads(1, FB_), slots, groups, [])
        assert not rest
        put_scal(fill, rdadv + upd, 9)
        put_scal(fill, (qkv_adv() if adv else []) + tail, 14)
        weave(A, qkv_mfmas(FA_, isq), fill)
    for x in upd: A(x)
    stamp(A, pfx + "_setup")
    emit_dma_block(A, qkv_dma())
    for x in qkv_adv(): A(x)
    stamp(A, pfx + "_issued")
    A("s_waitcnt vmcnt(9)")
    A("s_barrier")
    stamp(A, pfx + "_first")
    for x in qkv_reads(0, FA_): A(x)
    emit_dma_block(A, qkv_dma()[:7])
    A(f"s_branch {pfx}_mid")
    A(f".p2align {OPT['lal']}")
    A.label(f"{pfx}_loop")
    outl = []
    for k, (c, fn) in enumerate(blk):
        A(f"s_cmp_eq_u32 s{sCNT}, {c}")
        A(f"s_cbranch_scc1 {pfx}_blk{k}")
    A.label(f"{pfx}_noblk")
    rest = top_half(9, qkv_dma())
    assert len(rest) == 5
    A.label(f"{pfx}_mid")
    ntl = OPT["ntl"]
    bot_half(True, [f"s_add_u32 s{sCNT}, s{sCNT}, 1", f"s_cmp_lt_u32 s{sCNT}, {ntl if ntl else 8}"], rest)
    A(f"s_cbranch_scc1 {pfx}_loop")
    if ntl:
        keep = OPT["ntq"]; OPT["ntq"] = OPT["ntlq"] if isq else OPT["ntlk"]
        A(f".p2align {OPT['lal']}")
        A.label(f"{pfx}_loop2")
        rest = top_half(9, qkv_dma())
        bot_half(True, [f"s_add_u32 s{sCNT}, s{sCNT}, 1", f"s_cmp_lt_u32 s{sCNT}, 8"], rest)
        A(f"s_cbranch_scc1 {pfx}_loop2")
        OPT["ntq"] = keep
    for it in (8, 9):
        g, w = extras.get(it, ([], 9 if it == 8 else 0))
        sl = (1, 3, 5, 8, 10, 12, 14, 16, 18) if len(g) > 14 else (2, 5, 8, 11, 14, 17)
        rest = top_half(w, g, pres.get(it), sl)
        bot_half(False, [], rest, sl)
    stamp(A, pfx + "_loop9")
    A("s_waitcnt lgkmcnt(0)")
    if isq and not OPT["kweave"]:
        for m in qkv_mfmas(FB_, isq): A(m)
        A("s_nop 7")
        stamp(A, pfx + "_loopdone")
    def outline(A):
        for k, (c, fn) in enumerate(blk):
            A.label(f"{pfx}_blk{k}")
            fn(A)
            A(f"s_branch {pfx}_noblk")
    return outline

PAIRS = [(2,0),(3,0),(2,1),(3,1),(4,1),(3,2),(4,2)]
def kv_mask(i):
    te, tc = PAIRS[i]; m = 0
    for l in range(64):
        c = 16*tc + l % 16; e = [-8, 8, 24][te-2] + 4*(l//16)
        if c < 40 and e >= 0 and c//20 == e//20: m |= 1 << l
    return m

KVB = [sum(bin(kv_mask(j)).count("1") for j in range(i)) for i in range(8)]
def kv_rank(A, dst, i, shift, add=0):
    m = kv_mask(i)
    A(f"s_mov_b32 s85, {m & 0xffffffff:#x}")
    A(f"s_mov_b32 s86, {m >> 32:#x}")
    A(f"v_mbcnt_lo_u32_b32 v{dst}, s85, {KVB[i]}" if KVB[i] <= 64 else f"v_mov_b32 v{dst}, {KVB[i]}\nv_mbcnt_lo_u32_b32 v{dst}, s85, v{dst}")
    A(f"v_mbcnt_hi_u32_b32 v{dst}, s86, v{dst}")
    A(f"v_lshlrev_b32 v{dst}, {shift}, v{dst}")
    if add: A(f"v_add_u32 v{dst}, {add}, v{dst}")
vKR = 246
def phi4(A, b, T, dst=None):
    dst = b if dst is None else dst
    A(f"v_pk_mul_f32 {vr(T,2)}, {vr(b,2)}, s[{sL2}:{sL2+1}]")
    A(f"v_pk_mul_f32 {vr(T+2,2)}, {vr(b+2,2)}, s[{sL2}:{sL2+1}]")
    for i in range(4): A(f"v_exp_f32 v{T+i}, v{T+i} clamp")
    for i in range(4): A(f"v_max_f32 v{dst+i}, {EPS6:#x}, v{b+i}")
    A(f"v_pk_add_f32 {vr(dst,2)}, {vr(dst,2)}, {vr(T,2)}")
    A(f"v_pk_add_f32 {vr(dst+2,2)}, {vr(dst+2,2)}, {vr(T+2,2)}")
sL2 = 88
vEW, vEZ, vER, sKVS = 250, 251, 252, 26
def kv_esetup(A):
    A(f"s_lshl_b32 s85, s{sBp}, 1")
    A(f"s_add_u32 s85, s85, s{sWC_}")
    A("s_lshl_b32 s86, s85, 4")
    A(f"s_add_u32 s86, s86, s{sA}")
    A("s_lshl_b32 s87, s86, 8")
    A(f"s_mul_i32 s{sKVS}, s86, 3200")
    A(f"s_sub_u32 s87, s87, s{sKVS}")
    A(f"s_add_u32 s87, s87, {WS_ZP - WS_KVP:#x}")
    A("s_lshr_b32 s87, s87, 4")
    A(f"s_add_u32 s{sKVS}, s{sKVS}, {WS_KVP:#x}")
    A("v_mov_b32 v2, 0x7ff00000")
    for k in range(4):
        mA = kv_mask(k); mB = kv_mask(4+k) if k < 3 else 0xffff
        A(f"s_cmp_eq_u32 s{sWR_}, 0")
        A(f"s_mov_b32 s92, {mB & 0xffffffff:#x}")
        A(f"s_cselect_b32 s92, {mA & 0xffffffff:#x}, s92")
        A(f"s_mov_b32 s93, {mB >> 32:#x}")
        A(f"s_cselect_b32 s93, {mA >> 32:#x}, s93")
        if k < 3: A(f"s_mov_b32 s88, {KVB[4+k]}")
        A(f"s_cselect_b32 s88, {KVB[k]}, s{88 if k < 3 else 87}")
        A(f"v_mov_b32 v{vKR+k}, s88")
        A(f"v_mbcnt_lo_u32_b32 v{vKR+k}, s92, v{vKR+k}")
        A(f"v_mbcnt_hi_u32_b32 v{vKR+k}, s93, v{vKR+k}")
        A(f"v_lshlrev_b32 v{vKR+k}, 4, v{vKR+k}")
        A(f"v_cndmask_b32 v{vKR+k}, v2, v{vKR+k}, s[92:93]")
    A(f"s_mul_i32 s85, s{sWAVE}, 8448")
    A(f"s_add_u32 s85, s85, {LDS_RED}")
    A(f"v_add_u32 v{vEW}, s85, v{vB0}")
    A(f"v_lshl_add_u32 v{vEZ}, v1, 2, s85")
    A(f"s_mul_i32 s85, s{sWC_}, 8448")
    A(f"s_lshl_b32 s86, s{sWR_}, 12")
    A("s_add_u32 s85, s85, s86")
    A(f"s_add_u32 s85, s85, {LDS_RED}")
    A(f"v_add_u32 v{vER}, s85, v{vB0}")
    A("v_and_b32 v2, 15, v1")
    A(f"v_cmp_gt_u32 s[{sMK}:{sMK+1}], 8, v2")
    A("v_cmp_lt_u32 s[64:65], 15, v1")
    A("v_cmp_lt_u32 s[66:67], 31, v1")
def kv_estream():
    PB, KA, ONE, TMP = 128, 168, 208, 212
    E = [Asm(), Asm(), Asm(), Asm()]
    A = E[0]
    A(f"s_mov_b32 s{sL2}, {LOG2E:#x}")
    A(f"s_mov_b32 s{sL2+1}, {LOG2E:#x}")
    for i in range(4): A(f"v_mov_b32 v{ONE+i}, 0x3f803f80")
    for st in range(4):
        A = E[st // 2]
        for t in range(3):
            b = ACC + (st*5+t)*4
            if t < 2: phi4(A, b, TMP)
            else:
                phi4(A, b, TMP, TMP+4)
                for i in range(4): A(f"v_cndmask_b32 v{b+i}, v{b+i}, v{TMP+4+i}, s[{sMK}:{sMK+1}]")
        for t in range(5):
            b = ACC + (st*5+t)*4
            d = PB + (t*2 + st//2)*4 + (st & 1)*2
            A(f"v_cvt_pk_bf16_f32 v{d}, v{b}, v{b+1}")
            A(f"v_cvt_pk_bf16_f32 v{d+1}, v{b+2}, v{b+3}")
        if st & 1:
            sp = st // 2
            A("s_nop 1")
            for tc in range(3):
                c = vr(KA+4*(7+tc), 4)
                A(f"v_mfma_f32_16x16x32_bf16 {c}, {vr(ONE,4)}, {vr(PB+(tc*2+sp)*4,4)}, {c if sp else 0}")
            for i, (te, tc) in enumerate(PAIRS):
                c = vr(KA+4*i, 4)
                A(f"v_mfma_f32_16x16x32_bf16 {c}, {vr(PB+(te*2+sp)*4,4)}, {vr(PB+(tc*2+sp)*4,4)}, {c if sp else 0}")
    A = E[1]
    A("s_nop 0")
    A(f"v_cndmask_b32 v{KA+28}, v{KA+28}, v{KA+32}, s[64:65]")
    A(f"v_cndmask_b32 v{KA+28}, v{KA+28}, v{KA+36}, s[66:67]")
    A(f"ds_write_b32 v{vEZ}, v{KA+28} offset:7168")
    for i in range(7): A(f"ds_write_b128 v{vEW}, {vr(KA+4*i,4)} offset:{1024*i}")
    A = E[2]
    for k in range(4):
        A(f"ds_read_b128 {vr(PB+8*k,4)}, v{vER} offset:{1024*k}")
        A(f"ds_read_b128 {vr(PB+8*k+4,4)}, v{vER} offset:{1024*k + 16896}")
    A = E[3]
    A("s_waitcnt lgkmcnt(0)")
    for k in range(4):
        for i in (0, 2): A(f"v_pk_add_f32 {vr(PB+8*k+i,2)}, {vr(PB+8*k+i,2)}, {vr(PB+8*k+4+i,2)}")
    for k in range(4):
        A(f"buffer_store_dwordx4 {vr(PB+8*k,4)}, v{vKR+k}, s[{sWS}:{sWS+3}], s{sKVS} offen sc1")
    return [e.lines for e in E]

def w1_setup(A, locbase, vreg):
    A(f"s_sub_u32 s88, s82, {locbase}")
    A("s_lshl_b32 s88, s88, 2")
    A(f"s_add_u32 s88, s88, s{sWAVE}")
    A(f"v_and_b32 v{vreg}, 31, v1")
    A(f"v_mul_u32_u24 v{vreg}, 3072, v{vreg}")
    A("v_lshrrev_b32 v3, 5, v1")
    A(f"v_lshl_add_u32 v{vreg}, v3, 9, v{vreg}")
    A(f"s_mul_i32 s85, s88, {32*3072}")
    A("s_lshl_b32 s86, s83, 7")
    A("s_add_u32 s85, s85, s86")
    A(f"s_mul_i32 s86, s84, {1024*3072}")
    A("s_add_u32 s26, s86, s85")
    A("s_xor_b32 s87, s84, 1")
    A(f"s_mul_i32 s87, s87, {1024*3072}")
    A("s_add_u32 s27, s87, s85")

def w2_prefetch(A, locbase, parts):
    A(f"s_sub_u32 s85, s82, {locbase}")
    A("s_lshl_b32 s85, s85, 2")
    A(f"s_add_u32 s85, s85, s{sWAVE}")
    if OPT["fmap"] and OPT["w2c"] != 2:
        A("v_lshrrev_b32 v2, 2, v1")
        A("v_lshlrev_b32 v2, 12, v2")
        A("v_and_b32 v3, 3, v1")
        A(f"v_lshl_add_u32 v2, v3, {10 if OPT['fmap'] == 1 else 7}, v2")
        A(f"s_mul_i32 s85, s85, {48*4096}")
        A(f"s_lshl_b32 s86, s81, {7 if OPT['fmap'] == 1 else 9}")
        A("s_add_u32 s85, s85, s86")
        if parts[0]: A(f"s_add_u32 s85, s85, {16*4096*parts[0]}")
        for i in parts:
            A(f"buffer_load_dword a255, v2, s[{sW2}:{sW2+3}], s85 offen")
            if i != parts[-1]: A(f"s_add_u32 s85, s85, {16*4096}")
        return
    if OPT["w2c"]:
        A("s_lshl_b32 s86, s81, 5")
        A("s_add_u32 s85, s85, s86")
        A("s_lshl_b32 s85, s85, 13")
        if parts[0]: A(f"s_add_u32 s85, s85, {(8192*256)*parts[0]}")
        for i in parts:
            A(f"buffer_load_dword a255, v15, s[{sW2}:{sW2+3}], s85 offen")
            if i != parts[-1]: A(f"s_add_u32 s85, s85, {8192*256}")
        return
    A("v_lshrrev_b32 v2, 3, v1")
    A("v_lshlrev_b32 v2, 12, v2")
    A("v_and_b32 v3, 7, v1")
    A("v_lshl_add_u32 v2, v3, 7, v2")
    A("s_mul_i32 s85, s85, 24")
    A("s_mul_i32 s86, s84, 768")
    A("s_add_u32 s85, s85, s86")
    A(f"s_add_u32 s85, s85, {8*parts[0]}")
    A("s_lshl_b32 s85, s85, 12")
    A("s_lshl_b32 s86, s83, 10")
    A("s_add_u32 s85, s85, s86")
    for i in parts:
        A(f"buffer_load_dword a255, v2, s[{sW2}:{sW2+3}], s85 offen")
        if i != parts[-1]: A(f"s_add_u32 s85, s85, {8*4096}")

QCB = [0, 16, 32, 40, 56]
QDP = [(0,0),(0,1),(1,0),(1,1),(1,2),(2,1),(2,2),(2,4),(3,3),(3,4),(4,2),(4,3),(4,4)]
sMA, sZO, sKO, sPQ, sWOo, sGo = 56, 58, 59, 64, 67, 23
vWOd, vWOt, vZA, vKP, vGo, vT1 = 248, 246, 252, 245, 25, 244
MSK = 194
def q_setup(A):
    T = 128
    A(f"s_mul_i32 s{sWOo}, s{sU}, {40*1280}")
    A(f"s_mul_i32 s86, s{sNR}, 320")
    A(f"s_add_u32 s{sWOo}, s{sWOo}, s86")
    A(f"s_lshl_b32 s86, s{sWAVE}, 8")
    for n in range(4):
        A(f"v_add_u32 v2, {64*n}, v1")
        A("v_add_u32 v2, s86, v2")
        A("v_mul_u32_u24 v3, 3277, v2")
        A("v_lshrrev_b32 v3, 16, v3")
        A("v_mul_u32_u24 v4, 20, v3")
        A("v_sub_u32 v4, v2, v4")
        A("v_mul_u32_u24 v3, 1280, v3")
        A(f"v_lshl_add_u32 v{vWOd+n}, v4, 4, v3")
        if n: A(f"v_subrev_u32 v{vWOd+n}, {1024*n}, v{vWOd+n}")
    A("v_and_b32 v3, 15, v1")
    A("v_lshrrev_b32 v4, 4, v1")
    A(f"v_lshlrev_b32 v{vGo}, 2, v3")
    A(f"s_lshl_b32 s86, s{sA}, 9")
    A(f"s_lshl_b32 s87, s{sWR_}, 8")
    A("s_add_u32 s86, s86, s87")
    A(f"s_add_u32 s{sGo}, s86, {WS_G:#x}")
    A("v_bfe_u32 v5, v1, 1, 2")
    A(f"s_lshl_b32 s85, s{sWAVE}, 2")
    A("v_add_lshl_u32 v5, v5, s85, 3")
    A("v_and_b32 v6, 1, v1")
    A(f"s_lshl_b32 s85, s{sBp}, 1")
    A("v_add3_u32 v5, v5, v6, s85")
    A(f"v_lshlrev_b32 v{vKP}, 7, v5")
    A("v_lshrrev_b32 v5, 2, v3")
    A("v_lshl_add_u32 v5, v4, 2, v5")
    A("v_and_b32 v6, 7, v5")
    A("v_mul_u32_u24 v6, 320, v6")
    A("v_mul_u32_u24 v5, 320, v5")
    A("v_and_b32 v7, 3, v1")
    A("v_lshlrev_b32 v7, 3, v7")
    A(f"s_lshl_b32 s86, s{sWAVE}, 5")
    A("v_add_u32 v7, s86, v7")
    A(f"v_add_u32 v{vWOt}, v6, v7")
    A(f"v_add_u32 v{vWOt+1}, v5, v7")
    A(f"s_lshr_b32 s86, s{sU}, 2")
    A("s_mul_i32 s86, s86, 5")
    A(f"s_bfe_u32 s87, s{sU}, 0x10001")
    A(f"s_and_b32 s88, s{sU}, 1")
    A("s_mul_i32 s89, s87, 3")
    A("s_add_u32 s89, s89, s88")
    A("s_add_u32 s89, s89, s86")
    A(f"s_mul_i32 s{sMA}, s89, 40960")
    A("s_add_u32 s86, s86, 2")
    A(f"s_mul_i32 s{sMA+1}, s86, 40960")
    A("s_lshl_b32 s87, s87, 3")
    A("s_lshl_b32 s88, s88, 9")
    A(f"s_add_u32 s{sMA+1}, s{sMA+1}, s87")
    A(f"s_add_u32 s{sMA+1}, s{sMA+1}, s88")
    A(f"s_mul_i32 s86, s{sNR}, 10240")
    A(f"s_lshl_b32 s87, s{sWAVE}, 10")
    A("s_add_u32 s86, s86, s87")
    A(f"s_add_u32 s86, s86, {WS_M:#x}")
    A(f"s_add_u32 s{sMA}, s{sMA}, s86")
    A(f"s_add_u32 s{sMA+1}, s{sMA+1}, s86")
    A(f"s_lshl_b32 s85, s{sA}, 1")
    A(f"s_add_u32 s85, s85, s{sWR_}")
    A("s_mul_i32 s85, s85, 20")
    A(f"s_mul_i32 s86, s{sBp}, 5")
    A("s_add_u32 s85, s85, s86")
    A("s_lshl_b32 s85, s85, 12")
    A(f"s_add_u32 s85, s85, {WS_PQ:#x}")
    A(f"s_mul_i32 s86, s{sWC_}, {3*4096}")
    A(f"s_add_u32 s{sPQ}, s86, s85")
    A(f"s_add_u32 s{sPQ+1}, s{sPQ}, 4096")
    A(f"s_lshl_b32 s88, s{sWC_}, 3")
    A("s_add_u32 s88, s88, s85")
    A(f"s_add_u32 s{sPQ+2}, s88, 8192")
    A(f"v_add_u32 v5, s{sWAVE}, v1")
    A(f"s_mul_i32 s85, s{sWAVE}, 9")
    A("v_add_u32 v5, s85, v5")
    A("v_lshrrev_b32 v6, 2, v5")
    A("v_and_b32 v5, 3, v5")
    A("v_lshlrev_b32 v5, 7, v5")
    A("v_lshl_add_u32 v5, v6, 10, v5")
    A(f"s_sub_u32 s85, s{sMA+1}, s87")
    A("s_and_b32 s85, s85, 0xffffff80")
    A("v_add_u32 v5, s85, v5")
    A(f"s_and_b32 s85, s{sPQ+2}, 0xffffff80")
    A(f"s_lshl_b32 s86, s{sWC_}, 11")
    A("s_add_u32 s85, s85, s86")
    A("v_lshlrev_b32 v6, 7, v3")
    A("v_add_u32 v6, s85, v6")
    A("v_cmp_gt_u32 vcc, 10, v1")
    A("s_nop 1")
    A(f"v_cndmask_b32 v{vT1}, v6, v5, vcc")
    A(f"v_mov_b32 v{T}, {LDS_RED + 1600}")
    for i in range(7):
        kv_rank(A, 26+i, i, 3, LDS_RED)
        A(f"s_mov_b32 s92, s85")
        A(f"s_mov_b32 s93, s86")
        A(f"v_cndmask_b32 v{26+i}, v{T}, v{26+i}, s[92:93]")
    cb = QCB
    for t in range(5):
        A(f"v_lshl_add_u32 v{T+t}, v4, 2, {cb[t]}")
        A(f"v_add_u32 v{T+5+t}, {cb[t]}, v3")
        if t == 2:
            A("v_lshrrev_b32 v5, 1, v4")
            A(f"v_lshl_add_u32 v{T+t}, v5, 5, v{T+t}")
            A("v_mul_u32_u24 v7, 4064, v5")
            A("v_lshrrev_b32 v5, 3, v3")
            A(f"v_lshl_add_u32 v{T+5+t}, v5, 5, v{T+5+t}")
        A(f"v_mul_u32_u24 v{T+t}, 205, v{T+t}")
        A(f"v_lshrrev_b32 v{T+t}, 12, v{T+t}")
        A(f"v_mul_u32_u24 v{T+5+t}, 205, v{T+5+t}")
        A(f"v_lshrrev_b32 v{T+5+t}, 12, v{T+5+t}")
    for k, (tp, t) in enumerate(QDP):
        A(f"v_cmp_eq_u32 vcc, v{T+t}, v{T+5+tp}")
        A("s_nop 1")
        A(f"v_cndmask_b32 v{MSK+k}, 0, -1, vcc")
    A("v_lshlrev_b32 v5, 8, v3")
    A(f"v_lshl_add_u32 v{vZA}, v4, 4, v5")
    A(f"v_add_u32 v{vZA+2}, v7, v{vZA}")
    A(f"v_add_u32 v{vZA+1}, 4096, v{vZA}")
    A(f"s_lshl_b32 s86, s{sBp}, 14")
    A(f"s_lshl_b32 s87, s{sWC_}, 13")
    A("s_add_u32 s86, s86, s87")
    A(f"s_add_u32 s{sZO}, s86, {WS_ZP:#x}")
    A(f"s_mul_i32 s89, s{sU}, {16*3200}")
    A(f"s_mul_i32 s87, s{sWAVE}, 800")
    A("s_add_u32 s87, s87, s89")
    A(f"s_add_u32 s{sKO}, s87, {WS_KVP:#x}")
    if OPT["qw2"]:
        A("s_sub_u32 s85, s82, 16")
        A("s_lshl_b32 s85, s85, 2")
        A(f"s_add_u32 s85, s85, s{sWAVE}")
        A("s_lshl_b32 s86, s81, 5")
        A("s_add_u32 s85, s85, s86")
        A("s_lshl_b32 s85, s85, 13")
        A(f"s_add_u32 s99, s85, {8192*256*(3 - OPT['qw2'])}")
def q_pf_only(A):
    for k in range(3 - OPT["qw1n"], 3):
        A(f"buffer_load_dword a255, v12, s[{sW1}:{sW1+3}], s26 offen offset:{1024*k}")
def q_loop_pf(A):
    if OPT["qw1"] == 0:
        A("s_mov_b32 exec_lo, 0xffff03ff")
        A("s_mov_b32 exec_hi, 0")
        A(f"buffer_load_dword a255, v{vT1}, s[{sWS}:{sWS+3}], 0 offen sc1")
        A("s_mov_b64 exec, -1")
        return
    for k in range(3 - OPT["qw1n"], 3):
        A(f"buffer_load_dword a255, v12, s[{sW1}:{sW1+3}], s26 offen offset:{1024*k}")
    if OPT["qw1b"]:
        for k in range(3): A(f"buffer_load_dword a255, v12, s[{sW1}:{sW1+3}], s27 offen offset:{1024*k}")
    for k in range(OPT["qw2"]):
        A(f"buffer_load_dword a255, v15, s[{sW2}:{sW2+3}], s99 offen")
        A(f"s_add_u32 s99, s99, {8192*256}")
    if OPT["touch"] and not OPT["qdefer"]:
        A("s_mov_b32 exec_lo, 0xffff03ff")
        A("s_mov_b32 exec_hi, 0")
        A(f"buffer_load_dword a255, v{vT1}, s[{sWS}:{sWS+3}], 0 offen sc1")
        A("s_mov_b64 exec, -1")
def q_extras():
    g8 = [[poll_ld(vPO, 24)], [f"s_lshl_b32 m0, s{sWAVE}, 12"]] + [[f"buffer_load_dwordx4 v{vWOd+n}, s[{sWO}:{sWO+3}], s{sWOo} offen offset:{1024*n} lds"] for n in range(4)]
    g9 = [[f"buffer_load_dword v{8+st}, v{vGo}, s[{sWS}:{sWS+3}], s{sGo} offen offset:{64*st} sc1"] for st in range(4)]
    return {8: (g8, 9), 9: (g9, 0)}

def q_epilogue(A):
    PK, Z, AF, ZP, G = 128, 168, 168, 16, 8
    KA_, DEN, OUT, TMP = 48, 204+0, 224, 112
    WBa, KVa = 0, 20
    cb, dp = QCB, QDP
    A(f"s_mov_b32 s24, {FL_KV:#x}")
    for i in range(3):
        A(f"ds_read_b64_tr_b16 {ar(WBa+6*i,2)}, v{vWOt} offset:{128*i}")
        A(f"ds_read_b64_tr_b16 {ar(WBa+6*i+2,2)}, v{vWOt+1} offset:{128*i + 8*320}")
        A(f"ds_read_b64_tr_b16 {ar(WBa+6*i+4,2)}, v{vWOt+1} offset:{128*i + 24*320}")
    A(f"v_mov_b32 v2, {LDS_RED + 1600}")
    A("v_mov_b64 v[4:5], 0")
    A("ds_write_b64 v2, v[4:5]")
    A(f"s_mov_b32 s{sL2}, {LOG2E:#x}")
    A(f"s_mov_b32 s{sL2+1}, {LOG2E:#x}")
    B = Asm()
    for k, b in enumerate(range(ACC, ACC+80, 4)):
        if k == 12: B(poll_ld(vKP, 24))
        phi4(B, b, 208)
        B(f"v_cvt_pk_bf16_f32 v{PK+2*k}, v{b}, v{b+1}")
        B(f"v_cvt_pk_bf16_f32 v{PK+2*k+1}, v{b+2}, v{b+3}")
    k = 0
    if OPT["kweave"]:
        keep = OPT["mo"]; OPT["mo"] = 1; fm = qkv_mfmas(FB_, True); OPT["mo"] = keep
        fill = [[] for _ in range(20)]
        for g in range(9, 20):
            fill[g] = B.lines[k:k+2]; k += 2
        weave(A, fm, fill)
    for x in B.lines[k:]: A(x)
    stamp(A, "q_pre")
    A("s_waitcnt vmcnt(0) lgkmcnt(0)")
    poll_check(A, "pkv", vKP, 24)
    A("s_barrier")
    stamp(A, "q_kvok")
    for t in range(5):
        A(f"buffer_load_dwordx4 {vr(Z+4*t,4)}, v{vZA+[0,0,2,1,1][t]}, s[{sWS}:{sWS+3}], s{sZO} offen offset:{[0,64,128,0,64][t]} sc1")
    kvl = []
    for rb in range(0, 16, 2):
        kvl.append(["s_mov_b32 exec_hi, 0x3ffff",
                    f"buffer_load_dwordx4 {vr(KA_+4*rb,4)}, v{vB0}, s[{sWS}:{sWS+3}], s{sKO} offen sc1",
                    f"buffer_load_dwordx4 {vr(KA_+4*rb+4,4)}, v{vB0}, s[{sWS}:{sWS+3}], s{sKO} offen offset:3200 sc1",
                    "s_mov_b32 exec_hi, -1", f"s_add_u32 s{sKO}, s{sKO}, 6400"])
    def kv(n):
        for _ in range(n):
            if kvl:
                for x in kvl.pop(0): A(x)
    kv(2)
    A("s_waitcnt vmcnt(4)")
    stamp(A, "q_z")
    for rot in (8, 4, 2, 1):
        kv(1)
        for i in range(20):
            A(f"v_add_f32_dpp v{Z+i}, v{Z+i}, v{Z+i} row_ror:{rot} row_mask:0xf bank_mask:0xf")
    for i in range(10): A(f"v_cvt_pk_bf16_f32 v{ZP+i}, v{Z+2*i}, v{Z+2*i+1}")
    kv(2)
    for k, (tp, t) in enumerate(dp):
        A(f"v_and_b32 v{AF+2*k}, v{MSK+k}, v{ZP+2*t}")
        A(f"v_and_b32 v{AF+2*k+1}, v{MSK+k}, v{ZP+2*t+1}")
    A("s_nop 0")
    DEN2 = 224
    def den(st, Dn):
        seen = set()
        for k, (tp, t) in enumerate(dp):
            c = vr(Dn + 4*tp, 4)
            A(f"v_mfma_f32_16x16x16_bf16 {c}, {vr(AF+2*k,2)}, {vr(PK+(st*5+t)*2,2)}, {c if tp in seen else 0}")
            seen.add(tp)
    den(0, DEN)
    for st in range(4):
        Dn = DEN if (st & 1) == 0 else DEN2
        o = OUT
        U = TMP + 10
        if st < 3: den(st + 1, DEN2 if (st & 1) == 0 else DEN)
        else: A("s_nop 7")
        kv(OPT["kvr"])
        for tp in range(5): A(f"v_add_f32 v{TMP+2*tp}, {EPS6:#x}, v{Dn+4*tp}")
        for tp in range(5): A(f"v_rcp_f32 v{TMP+2*tp}, v{TMP+2*tp}")
        A("s_nop 0")
        for tp in range(5): A(f"v_mul_f32 v{TMP+2*tp}, v{TMP+2*tp}, v{G+st}")
        for tp in range(5):
            p = PK + (st*5+tp)*2
            if tp == 2: kv(OPT["kvr"])
            A(f"v_lshlrev_b32 v{U}, 16, v{p}")
            A(f"v_and_b32 v{U+1}, 0xffff0000, v{p}")
            A(f"v_lshlrev_b32 v{U+2}, 16, v{p+1}")
            A(f"v_and_b32 v{U+3}, 0xffff0000, v{p+1}")
            A(f"v_pk_mul_f32 {vr(U,2)}, {vr(U,2)}, {vr(TMP+2*tp,2)} op_sel_hi:[1,0]")
            A(f"v_pk_mul_f32 {vr(U+2,2)}, {vr(U+2,2)}, {vr(TMP+2*tp,2)} op_sel_hi:[1,0]")
            A(f"v_cvt_pk_bf16_f32 v{p}, v{U}, v{U+1}")
            A(f"v_cvt_pk_bf16_f32 v{p+1}, v{U+2}, v{U+3}")
        p = PK + st*10
        A(f"buffer_store_dwordx4 {vr(p,4)}, v{vB0}, s[{sWS}:{sWS+3}], s{sPQ} offen offset:{1024*st} sc1")
        A(f"buffer_store_dwordx4 {vr(p+6,4)}, v{vB0}, s[{sWS}:{sWS+3}], s{sPQ+1} offen offset:{1024*st} sc1")
        A(f"buffer_store_dwordx2 {vr(p+4,2)}, v{vB0}, s[{sWS}:{sWS+3}], s{sPQ+2} offen offset:{1024*st} sc1")
    assert not kvl
    stamp(A, "q_pq")
    A("s_waitcnt vmcnt(12)")
    stamp(A, "q_kv")
    for w in (32, 16, 8, 4):
        for i in range(0, w, 2):
            A(f"v_pk_add_f32 {vr(KA_+i,2)}, {vr(KA_+i,2)}, {vr(KA_+w+i,2)}")
    A(f"s_mul_i32 s86, s{sWAVE}, 400")
    A(f"s_add_u32 s86, s86, {LDS_RED}")
    A("v_lshlrev_b32 v7, 3, v1")
    A("v_add_u32 v7, s86, v7")
    A(f"v_cvt_pk_bf16_f32 v{KA_}, v{KA_}, v{KA_+1}")
    A(f"v_cvt_pk_bf16_f32 v{KA_+1}, v{KA_+2}, v{KA_+3}")
    A("s_mov_b32 exec_hi, 0x3ffff")
    A(f"ds_write_b64 v7, {vr(KA_,2)}")
    A("s_mov_b32 exec_hi, -1")
    A("s_waitcnt lgkmcnt(0)")
    A("s_barrier")
    stamp(A, "q_bar")
    for i in range(7): A(f"ds_read_b64 {ar(KVa+2*i,2)}, v{26+i}")
    A("s_waitcnt lgkmcnt(0)")
    MD = 64
    for i in range(3):
        seen = set()
        for k, (te, tc) in enumerate(PAIRS):
            c = vr(MD + (i*3+tc)*4, 4)
            A(f"v_mfma_f32_16x16x16_bf16 {c}, {ar(KVa+2*k,2)}, {ar(WBa+6*i+2*(te-2),2)}, {c if tc in seen else 0}")
            seen.add(tc)
    for i in range(3):
        if i == 2:
            A(f"s_cmp_ge_u32 s{sWAVE}, 2")
            A("s_cbranch_scc1 q_m_done")
            A("s_nop 2")
        b = MD + i*12
        for k in range(6): A(f"v_cvt_pk_bf16_f32 v{b+k}, v{b+2*k}, v{b+2*k+1}")
        A(f"buffer_store_dwordx4 {vr(b,4)}, v{vB0}, s[{sWS}:{sWS+3}], s{sMA} offen sc1")
        A("s_mov_b32 exec_hi, 0")
        A(f"buffer_store_dwordx2 {vr(b+4,2)}, v{vB0}, s[{sWS}:{sWS+3}], s{sMA+1} offen sc1")
        A("s_mov_b32 exec_hi, -1")
        A(f"s_add_u32 s{sMA}, s{sMA}, 4096")
        A(f"s_add_u32 s{sMA+1}, s{sMA+1}, 4096")
    A.label("q_m_done")
    stamp(A, "q_mdone")

def tlb_touch(A):
    for ptr, size in ((26, WS_SIZE), (22, 2048*1280), (16, 1536*4096), (12, 2048*3072), (8, 640*1280), (14, 4), (18, 4)):
        A(f"s_mov_b64 s[86:87], s[{ptr}:{ptr+1}]")
        offs = sorted(set(list(range(0, size, 1 << 21)) + [size - 4]))
        prev = 0
        for o in offs:
            if o - prev >= (1 << 20):
                A(f"s_add_u32 s86, s86, {o - prev:#x}")
                A("s_addc_u32 s87, s87, 0")
                prev = o
            A(f"s_load_dword s98, s[86:87], {o - prev:#x}")
def ln_role(A, after_loads, ne):
    X, GW, D = 48, 88, 128
    A("v_lshrrev_b32 v2, 3, v1")
    A(f"s_lshl_b32 s85, s{sWAVE}, 3")
    A("v_add_u32 v2, s85, v2")
    A("v_and_b32 v3, 7, v1")
    A("v_lshlrev_b32 v3, 4, v3")
    A("v_mul_u32_u24 v4, 1280, v2")
    A("v_add_u32 v4, v4, v3")
    A(f"s_mul_i32 s85, s{sA}, {32*1280}")
    A("s_waitcnt lgkmcnt(0)"); srds(A, ["X", "GW"])
    LN_TLB = True
    for i in range(10):
        A(f"buffer_load_dwordx4 {vr(X+4*i,4)}, v4, s[{sX}:{sX+3}], s85 offen offset:{128*i}")
    for i in range(10):
        A(f"buffer_load_dwordx4 {vr(GW+4*i,4)}, v3, s[{sGW}:{sGW+3}], 0 offen offset:{128*i}")
    A("v_mul_u32_u24 v16, 1312, v2")
    A("v_add_u32 v16, v16, v3")
    A("v_lshlrev_b32 v17, 2, v2")
    if OPT["tlb"] == 1: tlb_touch(A)
    after_loads(A)
    A("v_mov_b32 v5, 0x3f803f80")
    for i in range(4): A(f"v_mov_b32 v{8+i}, 0")
    A(f"s_waitcnt vmcnt({10+ne})")
    stamp(A, "ln_first")
    for i in range(40):
        A(f"v_dot2_f32_bf16 v{8+(i&1)}, v{X+i}, v5, v{8+(i&1)}")
    A(f"s_waitcnt vmcnt({ne})")
    for i in range(40):
        A(f"v_dot2_f32_bf16 v{10+(i&1)}, v{X+i}, v{GW+i}, v{10+(i&1)}")
    A("s_nop 2")
    A("v_add_f32 v8, v8, v9")
    A("v_add_f32 v10, v10, v11")
    def red8(r):
        for m in ("quad_perm:[1,0,3,2]", "quad_perm:[2,3,0,1]", "row_half_mirror"):
            A("s_nop 1")
            for x in r: A(f"v_add_f32_dpp v{x}, v{x}, v{x} {m} row_mask:0xf bank_mask:0xf")
    red8([8, 10])
    A(f"v_mul_f32 v8, {0xBACCCCCD:#x}, v8")
    A("v_mov_b32 v9, v8")
    A(f"v_mul_f32 v10, {LOG2E | 0x80000000:#x}, v10")
    A("v_exp_f32 v10, v10")
    for i in range(40):
        A(f"v_lshlrev_b32 v{D+2*i}, 16, v{X+i}")
        A(f"v_and_b32 v{D+2*i+1}, 0xffff0000, v{X+i}")
    A("v_add_f32 v10, 1.0, v10")
    A("v_rcp_f32 v10, v10")
    for i in range(40):
        A(f"v_pk_add_f32 {vr(D+2*i,2)}, {vr(D+2*i,2)}, v[8:9]")
    A("v_pk_mul_f32 v[18:19], v[128:129], v[128:129]")
    A("v_pk_mul_f32 v[20:21], v[130:131], v[130:131]")
    for i in range(2, 40):
        a = 18 + 2*(i & 1)
        A(f"v_pk_fma_f32 {vr(a,2)}, {vr(D+2*i,2)}, {vr(D+2*i,2)}, {vr(a,2)}")
    A("v_pk_add_f32 v[18:19], v[18:19], v[20:21]")
    A("ds_write_b32 v17, v10 offset:49152")
    A("v_add_f32 v18, v18, v19")
    red8([18])
    A(f"v_mov_b32 v19, {0x3727C5AC:#x}")
    A(f"v_fmac_f32 v19, {0x3ACCCCCD:#x}, v18")
    A("v_rsq_f32 v18, v19")
    A("s_nop 0")
    A("v_mov_b32 v19, v18")
    for i in range(40):
        A(f"v_pk_mul_f32 {vr(D+2*i,2)}, {vr(D+2*i,2)}, v[18:19]")
        A(f"v_cvt_pk_bf16_f32 v{X+i}, v{D+2*i}, v{D+2*i+1}")
        if (i & 3) == 3:
            A(f"ds_write_b128 v16, {vr(X+i-3,4)} offset:{128*(i//4)}")
    A("v_lshrrev_b32 v2, 2, v1")
    A("v_mul_u32_u24 v2, 1312, v2")
    A("v_and_b32 v3, 3, v1")
    A("v_lshl_add_u32 v2, v3, 3, v2")
    A(f"s_mul_i32 s85, s{sWAVE}, 320")
    A("v_add_u32 v2, s85, v2")
    A(f"s_mul_i32 s85, s{sA}, 40960")
    A(f"s_mul_i32 s86, s{sWAVE}, 10240")
    A("s_add_u32 s85, s85, s86")
    A("s_add_u32 s86, s85, 4096")
    A("s_add_u32 s87, s85, 8192")
    A("v_lshlrev_b32 v17, 2, v1")
    A(f"s_lshl_b32 s88, s{sA}, 7")
    A(f"s_add_u32 s88, s88, {WS_G:#x}")
    A("s_waitcnt lgkmcnt(0)")
    A("s_barrier")
    A(f"s_cmp_lg_u32 s{sWAVE}, 3")
    A("s_cbranch_scc1 ln_ng")
    A("ds_read_b32 v10, v17 offset:49152")
    A("s_waitcnt lgkmcnt(0)")
    A("s_mov_b32 exec_hi, 0")
    A(f"buffer_store_dword v10, v17, s[{sWS}:{sWS+3}], s88 offen sc1")
    A("s_mov_b32 exec_hi, -1")
    A.label("ln_ng")
    for t in range(10):
        A(f"ds_read_b64_tr_b16 {vr(D+4*t,2)}, v2 offset:{32*t}")
        A(f"ds_read_b64_tr_b16 {vr(D+4*t+2,2)}, v2 offset:{32*t + 16*1312}")
        if t == 6: A("s_waitcnt lgkmcnt(6)")
    for t in range(10):
        A(f"s_waitcnt lgkmcnt({min(2*(9-t), 6)})")
        A(f"buffer_store_dwordx4 {vr(D+4*t,4)}, v{vB0}, s[{sWS}:{sWS+3}], s{85 + t//4} offen offset:{1024*(t&3)} sc1")

def c_adv1(): return [f"s_add_u32 s{sC1}, s{sC1}, s{sCST}", f"s_cmp_eq_u32 s{sC1}, s{sCE1}", f"s_cselect_b32 s{sC1}, s{sCB1}, s{sC1}"]
def c_adv2(): return [f"s_add_u32 s{sC2}, s{sC2}, 40960", f"s_cmp_eq_u32 s{sC2}, s{sCE2}", f"s_cselect_b32 s{sC2}, s{sCB2}, s{sC2}"]
def c_wdma(slot):
    L = [[f"s_add_u32 m0, s{sCM0}, {4096*slot}"]]
    for q in range(4):
        L.append([f"buffer_load_dwordx4 v{vWS_+q}, s[{sCW}:{sCW+3}], s{sC1} offen offset:{1024*q} lds"])
    return L
def c_bload(slot, n):
    return f"buffer_load_dwordx4 {ar(BR+20*slot+4*n,4)}, v{vB0 if n < 4 else vB1}, s[{sWS}:{sWS+3}], s{sC2} offen offset:{1024*(n&3)} sc1"
def c_tr(slot, aset):
    return [f"ds_read_b64_tr_b16 {ar(AS+16*aset+4*t+2*j,2)}, v{vTR+t} offset:{4096*slot+2048*j}" for t in range(4) for j in range(2)]
def c_wring(A):
    for s in range(OPT["d"]):
        emit_dma_block(A, c_wdma(s))
        for x in c_adv1(): A(x)
def c_bring(A):
    for s in range(OPT["d"]):
        for n in range(5): A(c_bload(s, n))
        for x in c_adv2(): A(x)
def switch_to_fb(A):
    A(f"s_mov_b64 s[{sCW}:{sCW+1}], s[{sW2}:{sW2+1}]")
    A(f"s_mov_b64 s[{sCW+2}:{sCW+3}], s[{sW2+2}:{sW2+3}]")
    for i in range(4): A(f"v_mov_b32 v{vWS_+i}, v{vWS2+i}")
    A(f"s_mov_b32 s{sC1}, s{sF1}")
    A(f"s_mov_b32 s{sCB1}, s{sFB1}")
    A(f"s_mov_b32 s{sCE1}, s{sFE1}")
    A(f"s_mov_b32 s{sCST}, {32*4096}")

G1A = 112
def c_step(A, u, wait, doW, doB, doT, accf, w_is_A, drain=None, first=False, side=None, pre=[], late=None, wslot=None, trl=None):
    DD = OPT["d"]
    A(f"s_waitcnt vmcnt({wait}) lgkmcnt(0)")
    for x in pre: A(x)
    tr = c_tr((u+1) & 3, (u+1) & 1) if doT else (trl or [])
    mf = []
    order = [(n, t) for n in range(5) for t in range(4)]
    if OPT["mo"] & 2 and not drain: order = [(n, t) for t in range(4) for n in range(5)]
    if OPT["mo"] & 4 and not drain: order = [(n, t if n % 2 == 0 else 3 - t) for n in range(5) for t in range(4)]
    for n, t in order:
            w = ar(AS+16*(u & 1)+4*t, 4); b = ar(BR+20*u+4*n, 4); c = accf((t*5+n)*4)
            cin = "0" if first else c
            mf.append(f"v_mfma_f32_16x16x32_bf16 {c}, {w}, {b}, {cin}" if w_is_A else f"v_mfma_f32_16x16x32_bf16 {c}, {b}, {w}, {cin}")
    fill = [[] for _ in range(20)]
    sl = (u + DD) & 3
    wd = c_wdma(sl if wslot is None else wslot)
    post = []
    if doW:
        A(wd[0][0])
        for t in range(4): fill[t] += wd[1+t]
        fill[5 if drain else 12] += c_adv1()
    for k, x in enumerate(tr): fill[4+k].append(x)
    if doB:
        for n in range(5): fill[4*n+3].append(c_bload(sl, n))
        fill[19] += c_adv2()
    if side:
        per = -(-len(side) // 20)
        for g in range(20): fill[g] = side[g*per:(g+1)*per] + fill[g]
    if late:
        fill[13] += late[:9]
        post += late[9:]
    if drain:
        for n in range(3):
            for t in range(4): fill[4*(n+2)+t] += drain(n, t)
        post += ["s_nop 3"] + flat([drain(3, t) for t in range(4)]) + flat([drain(4, t) for t in range(4)])
    weave(A, mf, fill)
    for x in post: A(x)

AS3 = 192
def c_merged(A, u, wait, doW, accf, w_is_A, drain, wslots=None):
    A(f"s_waitcnt vmcnt({wait}) lgkmcnt(0)")
    mf = []
    for n in range(5):
        for k, aset in ((u, AS + 16*(u & 1)), (u + 1, AS3)):
            for t in range(4):
                w = ar(aset+4*t, 4); b = ar(BR+20*(k & 3)+4*n, 4); c = accf((t*5+n)*4)
                mf.append(f"v_mfma_f32_16x16x32_bf16 {c}, {w}, {b}, {c}" if w_is_A else f"v_mfma_f32_16x16x32_bf16 {c}, {b}, {w}, {c}")
    fill = [[] for _ in range(40)]
    if doW:
        for j, sl in enumerate(wslots):
            wd = c_wdma(sl)
            fill[6*j] += wd[0]
            for t in range(4): fill[6*j+1+t] += wd[1+t]
            fill[6*j+5] += c_adv1()
    for n in range(4):
        for t in range(4):
            g = 8*(n+1) + 4 + 2*t
            if g + (0) < 40: fill[g] += drain(n, t)
            else: fill[39] += drain(n, t)
    weave(A, mf, fill)
    for x in ["s_nop 3"] + flat([drain(4, t) for t in range(4)]): A(x)
def tr3(place):
    kind, sl = place
    base = vTR if kind == "r" else vTX
    return [f"ds_read_b64_tr_b16 {ar(AS3+4*t+2*j,2)}, v{base+t} offset:{4096*sl+2048*j}" for t in range(4) for j in range(2)]

def c_loop(A, pfx, nks, accf, w_is_A, isg1, drain):
    DD = OPT["d"]; W0 = 5 + 9*(DD-2)
    tail_next = isg1 and OPT["tailw"]
    A(f".p2align {OPT['lal']}")
    A.label(f"{pfx}_loop")
    if isg1 and OPT["lnmid"]:
        A(f"s_cmp_eq_u32 s{sCNT}, s{sPUB}")
        A("s_cbranch_scc1 g1_blk")
        A.label("g1_noblk")
    for u in range(4):
        c_step(A, u, W0, True, True, True, accf, w_is_A)
    if STAMPS:
        ng = nks//4 - 1
        i = _st["n"]; _st["n"] += ng; _st["names"] += [f"{pfx}_g{k}" for k in range(ng)]
        A("s_memtime s[100:101]")
        A("s_waitcnt lgkmcnt(0)")
        A(f"s_sub_u32 m0, {i + ng}, s{sCNT}")
        A("s_nop 0")
        A("v_writelane_b32 v47, s100, m0")
    A(f"s_sub_u32 s{sCNT}, s{sCNT}, 1")
    A(f"s_cmp_lg_u32 s{sCNT}, 0")
    A(f"s_cbranch_scc1 {pfx}_loop")
    seq = []
    for k in range(DD): seq += [("W", k)]*4 + [("B", k)]*5
    for u in range(4):
        need = max([i for i, (t, k) in enumerate(seq) if (t == "B" and k == u) or (t == "W" and k == u+1)])
        wait = len(seq) - 1 - need
        own = u < 4 - DD
        if isg1 and u == 4 - DD: switch_to_fb(A)
        nxt = tail_next and not own
        if OPT["merge"] and u == 1:
            nW = 4 if nxt else 0
            w3 = len(seq) + nW - 1 - max(i for i, (t, k) in enumerate(seq) if t == "W" and k == 3)
            c_step(A, u, wait, own or nxt, own, True, accf, w_is_A, late=[f"s_waitcnt vmcnt({w3})"] + tr3(("r", 3)))
        elif OPT["merge"] and u == 2:
            wait = len(seq) - 1 - max(i for i, (t, k) in enumerate(seq) if t == "B" and k == 3)
            c_merged(A, 2, wait, nxt, accf, w_is_A, drain, [(2+DD) & 3, (3+DD) & 3])
            break
        else:
            c_step(A, u, wait, own or nxt, own, u < 3, accf, w_is_A, drain if u == 3 else None)
        if own: seq += [("W", u+DD)]*4 + [("B", u+DD)]*5
        elif nxt: seq += [("N", 0)]*4
    stamp(A, pfx + "_loopdone")

sFA1, sFA2, sFR = 54, 55, 94
sUS = 52
vGE = 224
def fa_params(A):
    A(f"s_and_b32 s{sFR}, s{sFD}, 3")
    A(f"s_lshl_b32 s{sFR}, s{sFR}, 1")
    A(f"s_and_b32 s89, s{sFS}, 7")
    A(f"s_add_u32 s{sFR}, s{sFR}, s89")
    A(f"s_mul_i32 s89, s{sFR}, 52")
    A("s_lshr_b32 s89, s89, 8")
    A("s_mul_i32 s89, s89, 5")
    A(f"s_sub_u32 s{sFR}, s{sFR}, s89")
    if OPT["arot"] == 0: A(f"s_mov_b32 s{sFR}, 0")
    if OPT["arot"] == 2:
        A(f"s_add_u32 s{sFR}, s{sFS}, s{sFD}")
        A(f"s_and_b32 s{sFR}, s{sFR}, 1")
        A(f"s_mul_i32 s{sFR}, s{sFR}, 3")
    A(f"s_mul_i32 s86, s{sWAVE}, 5")
    A(f"s_add_u32 s86, s86, s{sFR}")
    A(f"s_mul_i32 s{sFA1}, s{sFS}, {0 if OPT.get('same') else 20}")
    A(f"s_add_u32 s{sFA1}, s{sFA1}, s86")
    A(f"s_lshl_b32 s{sFA1}, s{sFA1}, 12")
    A(f"s_add_u32 s{sFA1}, s{sFA1}, {WS_PQ:#x}")
    A(f"s_mul_i32 s{sFA2}, s86, 40960")
    A(f"s_mul_i32 s89, s{sFD}, {0 if OPT.get('same') else 5120}")
    A(f"s_add_u32 s{sFA2}, s{sFA2}, s89")
    A(f"s_add_u32 s{sFA2}, s{sFA2}, {WS_M:#x}")
fa_b = lambda i: 0 if i == 0 else 112 + 36*(i-1)
def fa_ld(A, i):
    for st in range(4):
        A(f"buffer_load_dwordx4 {ar(fa_b(i)+4*st,4)}, v{vB0}, s[{sWS}:{sWS+3}], s{sFA1} offen offset:{1024*st} sc1")
    for n in range(5):
        A(f"buffer_load_dwordx4 {ar(fa_b(i)+16+4*n,4)}, v{vB0 if n < 4 else vB1}, s[{sWS}:{sWS+3}], s{sFA2} offen offset:{1024*(n&3)} sc1")
    if i < 4:
        A(f"s_add_u32 s{sFA1}, s{sFA1}, 4096")
        A(f"s_add_u32 s{sFA2}, s{sFA2}, 40960")
        A(f"s_add_u32 s{sFR}, s{sFR}, 1")
        A(f"s_cmp_eq_u32 s{sFR}, 5")
        A(f"s_cselect_b32 s86, {5*4096}, 0")
        A(f"s_cselect_b32 s89, {5*40960}, 0")
        A(f"s_sub_u32 s{sFA1}, s{sFA1}, s86")
        A(f"s_sub_u32 s{sFA2}, s{sFA2}, s89")

def g1_params(A):
    W, Rr = vGE, vGE + 4
    A("v_and_b32 v2, 15, v1")
    A("v_lshrrev_b32 v3, 4, v1")
    A("v_xor_b32 v4, v2, v3")
    A("v_lshlrev_b32 v4, 4, v4")
    A("v_lshl_add_u32 v4, v2, 8, v4")
    A(f"s_mul_i32 s85, s{sWAVE}, 20480")
    A(f"s_add_u32 s85, s85, {LDS_RED}")
    A(f"v_add_u32 v{W}, s85, v4")
    for t in range(1, 4): A(f"v_xor_b32 v{W+t}, {64*t}, v{W}")
    A(f"s_and_b32 s85, s{sWAVE}, 1")
    A(f"s_lshr_b32 s86, s{sWAVE}, 1")
    A("s_lshl_b32 s87, s85, 7")
    A("v_xor_b32 v4, s87, v4")
    A("s_lshl_b32 s87, s86, 12")
    A(f"s_add_u32 s87, s87, {LDS_RED}")
    A(f"v_add_u32 v{Rr}, s87, v4")
    A(f"v_xor_b32 v{Rr+1}, 64, v{Rr}")
    A(f"v_add_u32 v{Rr+2}, 40960, v{Rr}")
    A(f"v_add_u32 v{Rr+3}, 40960, v{Rr+1}")
    A(f"s_lshl_b32 s87, s{sG1F}, 1")
    A("s_add_u32 s87, s87, s85")
    A("s_lshl_b32 s23, s87, 6")
    A("v_lshlrev_b32 v12, 3, v3")
    A("s_mul_i32 s87, s87, 40")
    A(f"s_mul_i32 s88, s{sG1D}, 5")
    A("s_add_u32 s87, s87, s88")
    A("s_add_u32 s87, s87, s86")
    A("s_lshl_b32 s87, s87, 10")
    A(f"s_add_u32 s{sUS}, s87, {WS_U:#x}")
    A(f"s_add_u32 s{sUS+1}, s{sUS}, 4096")
    A(f"s_mov_b32 s90, {0xBDD2D3E8:#x}")
    A(f"s_mov_b32 s91, {0xBDD2D3E8:#x}")
    A(f"v_mov_b32 v{vGE+8}, {0xC0135761:#x}")
    A(f"v_mov_b32 v{vGE+9}, {0xC0135761:#x}")
    fa_params(A)
def b1_loads():
    return [[f"buffer_load_dwordx2 {vr(vGE+18+2*j,2)}, v12, s[{sB1}:{sB1+3}], s23 offen offset:{32*j}"] for j in range(2)]
def zero_acc(A):
    for i in range(0, 80, 2): A(f"v_mov_b64 {vr(ACC+i,2)}, 0")

def g1_phase(A):
    c_loop(A, "g1", 16, lambda o: ar(G1A+o, 4), True, True, lambda n, t: [f"ds_write_b128 v{vGE+t}, {ar(G1A+(t*5+n)*4,4)} offset:{4096*n}"])
    for j in range(2):
        for k in range(2):
            A(f"v_lshlrev_b32 v{vGE+10+4*j+2*k}, 16, v{vGE+18+2*j+k}")
            A(f"v_and_b32 v{vGE+11+4*j+2*k}, 0xffff0000, v{vGE+18+2*j+k}")
    A("s_waitcnt lgkmcnt(0)")
    A("s_barrier")
    stamp(A, "g1_red")
    if OPT["lnpost"] == 2:
        A("s_cmp_lt_u32 s82, 24")
        A("s_cbranch_scc1 g1_nw2")
        w2_prefetch(A, 24, list(range(3 - OPT["lnpn"], 3)))
        A.label("g1_nw2")
    A0 = A
    R = 128
    def rd(r):
        for j in range(2):
            for part in range(4):
                A(f"ds_read_b128 {vr(R+32*r+16*j+4*part,4)}, v{vGE+4+j+2*(part>>1)} offset:{8192*r + 20480*(part&1)}")
    def fin(r):
        b = R + 32*r
        for j in range(2):
            x = b + 16*j
            for i in (0, 2):
                A(f"v_pk_add_f32 {vr(x+i,2)}, {vr(x+i,2)}, {vr(x+4+i,2)}")
                A(f"v_pk_add_f32 {vr(x+8+i,2)}, {vr(x+8+i,2)}, {vr(x+12+i,2)}")
        for j in range(2):
            x = b + 16*j
            for i in (0, 2): A(f"v_pk_add_f32 {vr(x+i,2)}, {vr(x+i,2)}, {vr(vGE+10+4*j+i,2)}")
        for j in range(2):
            x = b + 16*j
            for i in (0, 2): A(f"v_pk_add_f32 {vr(x+i,2)}, {vr(x+i,2)}, {vr(x+8+i,2)}")
        E = [b + 16*j + i for j in range(2) for i in range(4)]
        E2 = E[::2]
        for x in E2: A(f"v_pk_mul_f32 {vr(x+4,2)}, {vr(x,2)}, {vr(x,2)}")
        for x in E2: A(f"v_pk_fma_f32 {vr(x+4,2)}, {vr(x+4,2)}, s[90:91], {vr(vGE+8,2)}")
        for x in E2: A(f"v_pk_mul_f32 {vr(x+4,2)}, {vr(x+4,2)}, {vr(x,2)}")
        for x in E: A(f"v_exp_f32 v{x+4}, v{x+4}")
        for x in E2: A(f"v_pk_add_f32 {vr(x+4,2)}, {vr(x+4,2)}, 1.0 op_sel_hi:[1,0]")
        for x in E: A(f"v_rcp_f32 v{x+4}, v{x+4}")
        for x in E2: A(f"v_pk_mul_f32 {vr(x,2)}, {vr(x,2)}, {vr(x+4,2)}")
        for j in range(2):
            x = b + 16*j
            A(f"v_cvt_pk_bf16_f32 v{b+8+2*j}, v{x}, v{x+1}")
            A(f"v_cvt_pk_bf16_f32 v{b+9+2*j}, v{x+2}, v{x+3}")
        A(f"buffer_store_dwordx4 {vr(b+8,4)}, v{vB0}, s[{sWS}:{sWS+3}], s{sUS if r < 2 else sUS+1} offen offset:{2048*(r&1)} sc1")
    def mix(body, groups, lo=0):
        n = len(groups)
        pos = {}
        for k in range(n): pos.setdefault(lo + (k*(len(body) - lo - 2))//max(n, 1), []).append(groups[k])
        for i, x in enumerate(body):
            for g in pos.get(i, []):
                for y in g: A0(y)
            A0(x)
    G = []
    if OPT["xw"]:
        B = Asm(); xw_loads(B)
        for x in B.lines:
            if x.startswith("buffer_load") or not G: G.append([x])
            else: G[-1].append(x)
        G[1] = G[0] + G[1]; G = G[1:]
    n0 = (len(G)*OPT["xsp"])//10
    A = Asm()
    rd(0)
    A("s_waitcnt lgkmcnt(4)")
    rd(1)
    A("s_waitcnt lgkmcnt(8)")
    fin(0)
    mix(A.lines, G[:n0] + ([] if G[n0:] else [[poll_ld(15, 25)]]), 8)
    late = (G[n0:] + [[poll_ld(15, 25)]]) if G[n0:] else []
    k = 0 if late else 1
    A0(f"s_cmp_ge_u32 s{sWAVE}, 2")
    A0("s_cbranch_scc1 g1_e1")
    A = A0
    rd(2)
    A("s_waitcnt lgkmcnt(8)")
    A = Asm(); fin(1); mix(A.lines, late); A = A0
    A("s_waitcnt lgkmcnt(0)")
    fin(2)
    A(f"s_waitcnt vmcnt({2 + k})")
    A("s_branch g1_e2")
    A.label("g1_e1")
    A("s_waitcnt lgkmcnt(0)")
    A = Asm(); fin(1); mix(A.lines, late); A = A0
    A(f"s_waitcnt vmcnt({1 + k})")
    A.label("g1_e2")
    stamp(A, "g1_st")
    A(f"s_mov_b32 s{sQOK}, 0")
    A(f"v_cmp_ne_u32 vcc, s{sNON}, v{vPOLL}")
    A("s_cbranch_vccnz g1_q1")
    A(f"s_mov_b32 s{sQOK}, 1")
    fa_ld(A, 0)
    A("s_waitcnt vmcnt(9)")
    A("s_branch g1_q2")
    A.label("g1_q1")
    if OPT["tailw"]: A("s_waitcnt vmcnt(0)")
    else:
        c_wring(A)
        A(f"s_waitcnt vmcnt({4*OPT['d']})")
    A.label("g1_q2")
    A(f"s_mul_i32 s88, s{sG1D}, 24")
    A(f"s_add_u32 s88, s88, s{sG1F}")
    publish(A, "pub_u", FL_G1, 88, None)
    stamp(A, "g1_pub")
    for x in xw_writes(): A(x)
    if OPT["lnpost"] == 1:
        A("s_cmp_lt_u32 s82, 24")
        A("s_cbranch_scc1 g1_nw2")
        w2_prefetch(A, 24, list(range(3 - OPT["lnpn"], 3)))
        A.label("g1_nw2")
    if not OPT["tailw"]:
        A(f"s_cmp_eq_u32 s{sQOK}, 0")
        A("s_cbranch_scc1 g1_q3")
        c_wring(A)
        A("s_branch f_go")
        A.label("g1_q3")
    else:
        A(f"s_cmp_lg_u32 s{sQOK}, 0")
        A("s_cbranch_scc1 f_go")
    A(poll_ld(15, 25))
    A("s_waitcnt vmcnt(0)")
    poll_check(A, "pq", 15, 25)

def accb_init(st):
    return [f"v_lshlrev_b32 v{ACC+st*20}, 16, v{29+st}", f"v_lshlrev_b32 v{ACC+st*20+1}, 16, v{29+st}"] + \
           [f"v_mov_b64 {vr(ACC+st*20+k,2)}, {vr(ACC+st*20,2)}" for k in range(2, 20, 2)]
vTX = 246
def xw_setup():
    L = [f"s_mul_i32 s85, s{sWAVE}, {PS()}", f"s_add_u32 s85, s85, {LDS_RED}", f"v_add_u32 v{vTX+4}, s85, v{vB0}", f"s_sub_u32 s85, s85, s{sCM0}"]
    L += [f"v_add_u32 v{vTX+t}, s85, v{vTR+t}" for t in range(4)]
    return L
def xw_loads(A):
    emit_dma_block(A, c_wdma(3))
    for x in c_adv1(): A(x)
    for i in range(OPT["xw"]):
        for q in range(4):
            A(f"buffer_load_dwordx4 {vr(ACC+16*i+4*q,4)}, v{vWS_+q}, s[{sCW}:{sCW+3}], s{sC1} offen offset:{1024*q}")
        for x in c_adv1(): A(x)
def xw_writes():
    return [f"ds_write_b128 v{vTX+4}, {vr(ACC+16*i+4*q,4)} offset:{4096*i+1024*q}" for i in range(OPT["xw"]) for q in range(4)]
def xw_dma(A):
    emit_dma_block(A, c_wdma(3))
    for x in c_adv1(): A(x)
    A(f"s_mul_i32 s85, s{sWAVE}, {PS()}")
    A(f"s_add_u32 s85, s85, {LDS_RED}")
    for i in range(OPT["xw"]):
        A(f"s_add_u32 m0, s85, {4096*i}")
        A("s_nop 0")
        for q in range(4):
            A(f"buffer_load_dwordx4 v{vWS_+q}, s[{sCW}:{sCW+3}], s{sC1} offen offset:{1024*q} lds")
        for x in c_adv1(): A(x)
def f_setup1():
    B = Asm()
    B("v_and_b32 v5, 15, v1")
    B("v_lshlrev_b32 v6, 2, v5")
    B(f"s_lshl_b32 s23, s{sFS}, 8")
    B(f"s_add_u32 s23, s23, {WS_G:#x}")
    for st in range(4):
        B(f"buffer_load_dword v{8+st}, v6, s[{sWS}:{sWS+3}], s23 offen offset:{64*st} sc1")
    B("v_lshlrev_b32 v6, 1, v5")
    B(f"s_lshl_b32 s23, s{sFS}, 7")
    B(f"s_cmp_eq_u32 s{sWAVE}, 0")
    B("s_cselect_b32 s23, s23, 0x40000000")
    for st in range(4):
        B(f"buffer_load_ushort v{29+st}, v6, s[{sB2}:{sB2+3}], s23 offen offset:{32*st}")
    return B.lines
def f_setup2():
    B = Asm()
    for st in range(4):
        B(f"v_sub_f32 v{8+st}, 1.0, v{8+st}")
        if not OPT["xw"]:
            for x in accb_init(st): B(x)
    B("v_min_u32 v12, 23, v1")
    B("v_lshlrev_b32 v12, 7, v12")
    B(f"s_mul_i32 s23, s{sFD}, {24*128}")
    B(f"s_add_u32 s23, s23, {FL_G1:#x}")
    B("v_and_b32 v5, 15, v1")
    B("v_lshrrev_b32 v6, 4, v1")
    B(f"v_mul_u32_u24 v4, {RS()}, v5")
    if OPT["ox4"]:
        B("v_lshrrev_b32 v7, 1, v6")
        B("v_lshl_add_u32 v4, v7, 4, v4")
        B("v_and_b32 v6, 1, v6")
        B("v_mul_u32_u24 v6, 11264, v6")
        B("v_add_u32 v4, v4, v6")
    else:
        B("v_lshl_add_u32 v4, v6, 4, v4")
    B(f"s_mul_i32 s85, s{sWAVE}, {PS()}")
    B(f"s_add_u32 s85, s85, {LDS_RED}")
    B("v_add_u32 v4, s85, v4")
    B(f"s_mul_i32 s85, s{sWAVE}, {16*RS()}")
    B(f"s_add_u32 s85, s85, {LDS_RED}")
    B(f"s_lshl_b32 s95, s{sFS}, 2")
    B(f"s_add_u32 s95, s95, s{sWAVE}")
    B(f"s_mul_i32 s95, s95, {16*1280}")
    B(f"s_mul_i32 s87, s{sFD}, 160")
    B("s_add_u32 s95, s95, s87")
    if OPT["ox4"]:
        B("v_mul_u32_u24 v6, 205, v1")
        B("v_lshrrev_b32 v6, 11, v6")
        B("v_mul_u32_u24 v7, 10, v6")
        B("v_sub_u32 v7, v1, v7")
        B("v_min_u32 v6, 5, v6")
        B("v_mul_u32_u24 v16, 176, v6")
        B("v_lshl_add_u32 v16, v7, 4, v16")
        B("v_add_u32 v16, s85, v16")
        B("v_mul_u32_u24 v24, 1280, v6")
        B("v_lshl_add_u32 v24, v7, 4, v24")
    else:
        for r in range(5):
            B(f"v_add_u32 v5, {64*r}, v1")
            B("v_mul_u32_u24 v6, 3277, v5")
            B("v_lshrrev_b32 v6, 16, v6")
            B("v_mul_u32_u24 v7, 20, v6")
            B("v_sub_u32 v7, v5, v7")
            B(f"v_mul_u32_u24 v{16+r}, 336, v6")
            B(f"v_lshl_add_u32 v{16+r}, v7, 4, v{16+r}")
            B(f"v_add_u32 v{16+r}, s85, v{16+r}")
            B(f"v_mul_u32_u24 v{24+r}, 1280, v6")
            B(f"v_lshl_add_u32 v{24+r}, v7, 3, v{24+r}")
    if OPT["otouch"]:
        B("v_lshrrev_b32 v5, 1, v1")
        B("v_and_b32 v5, 15, v5")
        B("v_mul_u32_u24 v5, 1280, v5")
        B("v_and_b32 v6, 1, v1")
        B("v_mul_u32_u24 v6, 156, v6")
        B("v_add_u32 v5, v5, v6")
    if OPT["xw"]:
        for x in xw_setup(): B(x)
    return B.lines

def f_phase(A):
    ACA = 128
    A.label("f_entry")
    fa_ld(A, 0)
    A.label("f_go")
    fa_ld(A, 1)
    stamp(A, "f_qok")
    A(f"s_or_b32 s85, s2, s{sWAVE}")
    A("s_cmp_lg_u32 s85, 0")
    A("s_cbranch_scc1 f_nox")
    A(f"s_mov_b32 s85, {FL_X:#x}")
    flag_store(A, 85)
    A.label("f_nox")
    fb = fa_b
    def fam(i, side=[]):
        mf = []
        for n in range(5):
            for st in range(4):
                c = vr(ACA+(st*5+n)*4, 4)
                mf.append(f"v_mfma_f32_16x16x32_bf16 {c}, {ar(fb(i)+16+4*n,4)}, {ar(fb(i)+4*st,4)}, {c if i else 0}")
        fill = [[] for _ in range(20)]
        for k, g in enumerate(side): fill[(k*20)//len(side)] += g
        weave(A, mf, fill)
    def ldg(i):
        B = Asm(); fa_ld(B, i); g = [[x] for x in B.lines[:9]]; g[-1] += B.lines[9:]; return g
    D = OPT["d"]
    fa_ld(A, 2)
    A(f"s_mov_b32 s{sC2}, s{sF2}")
    A(f"s_mov_b32 s{sCB2}, s{sFB2}")
    A(f"s_mov_b32 s{sCE2}, s{sFE2}")
    stamp(A, "fa_i2")
    A("s_waitcnt vmcnt(18)")
    fam(0, ldg(3))
    stamp(A, "fa_m0")
    A("s_waitcnt vmcnt(18)")
    fam(1, [[poll_ld(12, 23)]] + ldg(4))
    stamp(A, "fa_m1")
    br = []
    for sl in range(D):
        br += [[c_bload(sl, n)] for n in range(5)]; br[-1] += c_adv2()
    ai = [[x] for x in flat([accb_init(st) for st in range(4)])] if OPT["xw"] else []
    if OPT["uearly"]:
        A("s_waitcnt vmcnt(9) lgkmcnt(0)")
        stamp(A, "fa_s3")
        poll_check(A, "pu", 12, 23)
        stamp(A, "f_uok")
        fam(2, br)
        stamp(A, "fa_m2")
        fam(3, ai)
    else:
        A("s_waitcnt vmcnt(19) lgkmcnt(0)")
        fam(2, ai)
        stamp(A, "fa_m2")
        A("s_waitcnt vmcnt(9)")
        stamp(A, "fa_s3")
        poll_check(A, "pu", 12, 23)
        stamp(A, "f_uok")
        fam(3, br)
    A(f"s_waitcnt vmcnt({5*D})")
    fam(4, [[]]*3 + [[x] for x in c_tr(0, 0)] + [[]]*5)
    A(f"s_waitcnt vmcnt({5 if D == 2 else 10})")
    stamp(A, "fb_first")
    def drain(n, st):
        b = (st*5+n)*4
        return [f"v_fma_f32 v{ACA+b+i}, v{ACC+b+i}, v{8+st}, v{ACA+b+i}" for i in range(4)] + [f"ds_write_b128 v4, {vr(ACA+b,4)} offset:{st*16*RS() + (32 if OPT['ox4'] else 64)*n}"]
    if OPT["xw"]:
        X = OPT["xw"]
        place = lambda k: ("r", k) if k < 4 else (("x", k-4) if k < 4 + X else ("r", (k - 4 - X) & 3))
        seq = [("B", 0)]*5 + [("B", 1)]*5 + [("B", 2)]*5
        for u in range(12):
            idx = [i for i, (t, k) in enumerate(seq) if (t == "B" and k == u) or (t == "W" and k == u+1)]
            wait = len(seq) - 1 - max(idx)
            kw = u + 3 + OPT["xwd"]; kb = u + 3
            doW = 4 + X <= kw < 12; doB = kb < 12
            nx = None
            if u < 11:
                kind, sl = place(u+1)
                base = vTR if kind == "r" else vTX
                nx = [f"ds_read_b64_tr_b16 {ar(AS+16*((u+1)&1)+4*t+2*j,2)}, v{base+t} offset:{4096*sl+2048*j}" for t in range(4) for j in range(2)]
            if OPT["merge"] and u == 10:
                wait = len(seq) - 1 - max(i for i, (t, k) in enumerate(seq) if t == "B" and k == 11)
                c_merged(A, 2, wait, False, lambda o: vr(ACC+o, 4), False, drain)
                break
            late = None
            if OPT["merge"] and u == 9:
                w3 = len(seq) - 1 - max(i for i, (t, k) in enumerate(seq) if t == "W" and k == 11)
                late = [f"s_waitcnt vmcnt({w3})"] + tr3(place(11))
            c_step(A, u & 3, min(wait, 63), doW, doB, False, lambda o: vr(ACC+o, 4), False, drain if u == 11 else None,
                   wslot=place(kw)[1] if doW else None, trl=nx, late=late)
            if doW: seq += [("W", kw)]*4
            if doB: seq += [("B", kb)]*5
            if u in (3, 7): stamp(A, f"fb_g{u//4}")
        stamp(A, "fb_loopdone")
    else:
        A(f"s_mov_b32 s{sCNT}, 2")
        c_loop(A, "fb", 12, lambda o: vr(ACC+o, 4), False, False, drain)
    A("s_waitcnt lgkmcnt(0)")
    A("s_barrier")
    stamp(A, "f_red")
    R = ACC
    OST = ["", " nt", " sc1", " sc0 sc1", " sc1 nt", " sc0 nt", " sc0 sc1 nt"][OPT["ost"]]
    if OPT["ox4"]:
        A("v_add_u32 v17, 45056, v16")
        def rd4(r):
            for h in range(2):
                for part in range(4):
                    A(f"ds_read_b128 {vr(R+32*r+16*h+4*part,4)}, v{16 + (part >> 1)} offset:{PS()*(part & 1) + 11264*h + 1056*r}")
        rd4(0)
        A("s_waitcnt lgkmcnt(4)")
        rd4(1)
        A("s_mov_b32 exec_hi, 0x0fffffff")
        for r in range(3):
            A(f"s_waitcnt lgkmcnt({8 if r < 2 else 0})")
            b = R + 32*(r & 1) if r < 2 else R + 64 - 64
            b = R + 32*r if r < 2 else R
            for h in range(2):
                x = b + 16*h
                for i in (0, 2):
                    A(f"v_pk_add_f32 {vr(x+i,2)}, {vr(x+i,2)}, {vr(x+4+i,2)}")
                    A(f"v_pk_add_f32 {vr(x+8+i,2)}, {vr(x+8+i,2)}, {vr(x+12+i,2)}")
            for h in range(2):
                x = b + 16*h
                for i in (0, 2): A(f"v_pk_add_f32 {vr(x+i,2)}, {vr(x+i,2)}, {vr(x+8+i,2)}")
            o = R + 64 + 4*r
            for h in range(2):
                A(f"v_cvt_pk_bf16_f32 v{o+2*h}, v{b+16*h}, v{b+16*h+1}")
                A(f"v_cvt_pk_bf16_f32 v{o+2*h+1}, v{b+16*h+2}, v{b+16*h+3}")
            if r == 0:
                for h in range(2):
                    for part in range(4):
                        A(f"ds_read_b128 {vr(R+16*h+4*part,4)}, v{16 + (part >> 1)} offset:{PS()*(part & 1) + 11264*h + 1056*2}")
            if r == 2: A("s_mov_b32 exec_hi, 0xff")
            A(f"buffer_store_dwordx4 {vr(o,4)}, v24, s[{sOUT}:{sOUT+3}], s95 offen" + OST)
            if r < 2: A(f"s_add_u32 s95, s95, {6*1280}")
        A("s_mov_b32 exec_hi, -1")
        return
    def rd(r):
        for part in range(4):
            A(f"ds_read_b128 {vr(R+16*r+4*part,4)}, v{16+r} offset:{PS()*part}")
    rd(0); rd(1); rd(2)
    for r in range(5):
        A(f"s_waitcnt lgkmcnt({8 if r < 3 else 4*(4-r)})")
        b = R + 16*r
        for i in (0, 2):
            A(f"v_pk_add_f32 {vr(b+i,2)}, {vr(b+i,2)}, {vr(b+4+i,2)}")
            A(f"v_pk_add_f32 {vr(b+8+i,2)}, {vr(b+8+i,2)}, {vr(b+12+i,2)}")
        if r + 3 < 5: rd(r+3)
        for i in (0, 2): A(f"v_pk_add_f32 {vr(b+i,2)}, {vr(b+i,2)}, {vr(b+8+i,2)}")
        A(f"v_cvt_pk_bf16_f32 v{b}, v{b}, v{b+1}")
        A(f"v_cvt_pk_bf16_f32 v{b+1}, v{b+2}, v{b+3}")
        A(f"buffer_store_dwordx2 {vr(b,2)}, v{24+r}, s[{sOUT}:{sOUT+3}], s95 offen" + OST)

def kd(name):
    return f""".section .rodata,"a"
.p2align 6
.amdhsa_kernel {name}
  .amdhsa_next_free_vgpr 512
  .amdhsa_next_free_sgpr 102
  .amdhsa_accum_offset 256
  .amdhsa_group_segment_fixed_size 0
  .amdhsa_kernarg_size 96
  .amdhsa_user_sgpr_count 2
  .amdhsa_user_sgpr_kernarg_segment_ptr 1
  .amdhsa_system_sgpr_workgroup_id_x 1
.end_amdhsa_kernel
"""

DOC = """;
; One persistent launch, 256 workgroups (one per CU), roles by workgroup id (xcd = id & 7, loc = id >> 3):
; Hand-offs go through d_ws: write-through stores, wait, barrier, then one flag line per producer holding a
"""
def gen():
    hdr = open("cdna_kernels/" + NAME + ".s.ref").read().split("; Override")[0]
    hdr += DOC
    hdr += f"; @launch grid=(256,1,1) block=(256,1,1) lds={LDS_BYTES}\n"
    hdr += '.amdgcn_target "amdgcn-amd-amdhsa--gfx950"\n'
    A = Asm()
    K = NAME + "_kernel"
    A(".text"); A(f".globl {K}"); A(".p2align 8"); A(f".type {K},@function"); A.label(K)
    prologue(A)
    A("s_cmp_ge_u32 s82, 16"); A("s_cbranch_scc1 r_notkv")
    A("s_and_b32 s85, s82, 3")
    A("s_lshl_b32 s86, s83, 2")
    A(f"s_add_u32 s{sA}, s85, s86")
    A("s_lshr_b32 s85, s82, 2")
    A("s_lshl_b32 s86, s84, 2")
    A(f"s_add_u32 s{sBp}, s85, s86")
    qkv_setup(A, False)
    if not OPT["xfirst"]: qkv_setup_w(A, False)
    A("s_waitcnt lgkmcnt(0)"); srds(A, ["X", "W"])
    stamp(A, "kv_pre")
    def mid(A):
        params1(A); srds(A, ["WS", "W1", "B1", "W2", "B2", "OUT"]); cw_init(A)
        if not OPT["defer"]:
            params2_(A, OPT["fblate"])
            if OPT["g1late"]:
                A("v_lshrrev_b32 v12, 4, v1")
                A("v_lshlrev_b32 v12, 3, v12")
                A(f"s_and_b32 s85, s{sWAVE}, 1")
                A(f"s_lshl_b32 s23, s{sG1F}, 1")
                A("s_add_u32 s23, s23, s85")
                A("s_lshl_b32 s23, s23, 6")
            else: g1_params(A)
            mid3(A)
    def mid3(A):
        kv_esetup(A)
        A("s_lshl_b32 s85, s81, 4")
        A("s_add_u32 s85, s85, s82")
        A("s_lshl_b32 s85, s85, 2")
        A(f"s_add_u32 s85, s85, s{sWAVE}")
        A("s_lshl_b32 s27, s85, 13")
        A(f"s_lshl_b32 s{sPUB}, s{sA}, 3")
        A(f"s_add_u32 s{sPUB}, s{sPUB}, s{sBp}")
        A(f"s_lshl_b32 s{sPUB}, s{sPUB}, 7")
        A(f"s_add_u32 s{sPUB}, s{sPUB}, {FL_KV:#x}")
    D = OPT["d"]; EW = 5 if D == 2 else 10
    assert D == 3
    def wst(k):
        g = c_wdma(k); g[-1] = g[-1] + c_adv1(); return g
    def bst(k):
        g = [[c_bload(k, n)] for n in range(5)]; g[-1] = g[-1] + c_adv2(); return g
    NI = 4 if OPT["xw"] else 48
    g1p = None; fbp = None
    if OPT["fblate"]:
        B = Asm(); params_fb(B); fbp = B.lines
        assert not any("s_cmp" in x for x in fbp[9:])
        fbp = fbp[9:] if OPT["frot"] in (0, 2, 4) else None
    if OPT["g1late"]:
        B = Asm(); g1_params(B); g1p = [x for x in B.lines if "s23" not in x and "v12" not in x]
    E = kv_estream()
    g1acc = lambda o: ar(G1A+o, 4)
    def pubkv(A, wait):
        A(f"s_waitcnt vmcnt({wait})")
        A("s_barrier")
        A(f"s_cmp_lg_u32 s{sWAVE}, 0")
        A("s_cbranch_scc1 g1_pub1")
        flag_store(A, sPUB)
        A.label("g1_pub1")
        stamp(A, "kv_pub")
    nin = OPT["nbin"]
    ex = {8: ([[poll_ld(vPO, 24)]] + b1_loads() + wst(0) + wst(1), 9), 9: (wst(2), 8)}
    d0 = OPT["defer"]
    out_kv = qkv_gemm(A, "kv", False, mid, ex, {9: lambda A: poll_check(A, "pln", vPO, 24)},
                      [(d0, params2), (d0+1, g1_params), (d0+2, mid3)] if d0 else [])
    if OPT["kvw2"]:
        A(f"buffer_load_dword a255, v15, s[{sW2}:{sW2+3}], s27 offen")
    Bs = bst(0) + bst(1) + bst(2)
    if OPT["kweave"]:
        keep = OPT["mo"]; OPT["mo"] = 1; fm = qkv_mfmas(FB_, False); OPT["mo"] = keep
        e0 = [x for x in E[0] if "mfma" not in x and x != "s_nop 1"]; m0 = [x for x in E[0] if "mfma" in x]
        fill = [[] for _ in range(20)]
        fill[0] = e0[:6]
        k = 6
        for g in range(9, 20):
            fill[g] = e0[k:k+2]; k += 2
        weave(A, fm, fill)
        e1 = list(E[1])
        for j, m in enumerate(m0): e1.insert(3 + 5*j, m)
        body = e0[k:] + e1
    else:
        for m in qkv_mfmas(FB_, False): A(m)
        body = E[0] + E[1]
    stamp(A, "kv_loopdone")
    sp = min(26, (len(body) - 30 - OPT["b0"]) // max(nin, 1))
    pos = [len(body) - 30 - sp*(nin - 1 - k) for k in range(nin)]
    assert not pos or pos[0] >= 0
    for i, x in enumerate(body):
        if i in pos:
            for y in Bs[pos.index(i)]: A(y)
        A(x)
    A("s_waitcnt lgkmcnt(0)")
    A("s_barrier")
    for x in E[2] + E[3]: A(x)
    stamp(A, "kv_st")
    for g in Bs[nin:]:
        for y in g: A(y)
    seq = ["W"]*12 + [f"B{k//5}" for k in range(nin)] + ["S"]*4 + [f"B{k//5}" for k in range(nin, 15)]
    def need(tags): return len(seq) - 1 - max(i for i, t in enumerate(seq) if t in tags)
    A(f"s_waitcnt vmcnt({need(['W'])})")
    for x in c_tr(0, 0): A(x)
    if OPT["pubat"] == 0: pubkv(A, need(["S"]))
    for u in range(4):
        c_step(A, u, min(need([f"B{u}", f"W{u+1}", "W"]), 63), True, True, True, g1acc, True, first=(u == 0),
               pre=f_setup1() if u == 1 else [],
               side=({0: g1p, 1: fbp, 2: f_setup2()[NI:], 3: f_setup2()[:NI]}.get(u) if OPT["fsplit"] else (f_setup2() if u == 3 else None)))
        if u == 1: seq += ["G"]*8
        seq += [f"W{u+3}"]*4 + [f"B{u+3}"]*5
        stamp(A, f"g1_s{u}")
        if OPT["pubat"] == u + 1: pubkv(A, need(["S"]))
    A(f"s_mov_b32 s{sCNT}, 2")
    g1_phase(A)
    f_phase(A)
    stamp_flush(A)
    A.label("k_end"); A("s_endpgm")
    out_kv(A)
    if OPT["lnmid"]:
        A.label("g1_blk")
        w2_prefetch(A, 24, list(range(3 - OPT["lnpn"], 3)))
        A("s_branch g1_noblk")
    A.label("r_notkv")
    if OPT["pf_code"] and not OPT["pfall"]:
        A("s_getpc_b64 s[86:87]")
        A.label("pc_here")
        A(f"s_sub_u32 s86, s86, pc_here-{K}")
        A("s_subb_u32 s87, s87, 0")
        A("s_sub_u32 s85, s82, 16")
        A("s_lshl_b32 s85, s85, 2")
        A(f"s_add_u32 s85, s85, s{sWAVE}")
        A("s_lshl_b32 s85, s85, 3")
        A("v_add_lshl_u32 v2, v1, s85, 7")
        A(f"v_min_u32 v2, k_codeend-{K}-4, v2")
        A("s_mov_b64 exec, 0xff")
        A("global_load_dword a255, v2, s[86:87]")
        A("s_mov_b64 exec, -1")
    A("s_cmp_lt_u32 s82, 24"); A("s_cbranch_scc1 r_q")
    A("s_sub_u32 s87, s82, 24")
    A("s_lshl_b32 s85, s81, 3")
    A(f"s_add_u32 s{sA}, s85, s87")
    aux = " nt" if OPT.get("nt") else ""
    w1l = lambda k: f"buffer_load_dword a255, v22, s[{sW1}:{sW1+3}], s{26 + k//3} offen offset:{1024*(k%3)}{aux}"
    def after(A):
        params1(A); srds(A, ["WS", "W1", "B1", "W2", "B2", "OUT"]); cw_init(A); params2(A); g1_params(A)
        w1_setup(A, 24, 22)
        for k in range(OPT["early"] if OPT["pf_w1"] else 0): A(w1l(k))
    ln_role(A, after, OPT["early"] if OPT["pf_w1"] else 0)
    publish(A, "pub_ln", FL_LN, sA)
    stamp(A, "ln_pub")
    if OPT["tlb"] == 2:
        A("v_lshlrev_b32 v2, 20, v1")
        A("s_mov_b64 exec, 0x3ff")
        A(f"buffer_load_dword a255, v2, s[{sWS}:{sWS+3}], 0 offen sc1")
        A(f"buffer_load_dword a255, v2, s[{sOUT}:{sOUT+3}], 0 offen")
        A(f"buffer_load_dword a255, v2, s[{sB2}:{sB2+3}], 0 offen")
        A("s_mov_b64 exec, -1")
    for k in range(OPT["early"], (3 - OPT["qw1n"]) if (OPT["pf_w1"] and not OPT["qfirst"]) else 0): A(w1l(k))
    def pf_h():
        A(poll_ld(vPO, 24))
        A("v_lshrrev_b32 v2, 5, v1")
        A("v_mul_u32_u24 v2, 40960, v2")
        A("v_and_b32 v3, 31, v1")
        A("v_lshl_add_u32 v2, v3, 7, v2")
        A("s_sub_u32 s85, s82, 24")
        A("s_lshl_b32 s85, s85, 2")
        A(f"s_add_u32 s85, s85, s{sWAVE}")
        A(f"s_mul_i32 s87, s85, {2*40960}")
        A("s_mul_i32 s86, s84, 20480")
        A("s_add_u32 s87, s87, s86")
        A("s_waitcnt vmcnt(0)")
        poll_check(A, "plnh", vPO, 24)
        A("s_barrier")
        for i in range(5):
            A(f"buffer_load_dword a255, v2, s[{sWS}:{sWS+3}], s87 offen sc1")
            A("s_add_u32 s87, s87, 4096")
    for c in str(OPT["lnseq"]):
        if c == "1" and OPT["pf_w1"]:
            for k in range(3, 6): A(w1l(k))
        if c == "6":
            for k in range(3): A(w1l(k))
        if c == "2": pf_h()
        if c == "3": w2_prefetch(A, 24, [0])
        if c == "7": w2_prefetch(A, 24, [2])
        if c == "4": w2_prefetch(A, 24, [0, 1])
        if c == "5": w2_prefetch(A, 24, [0, 1, 2])
    stamp(A, "ln_pf")
    for g in b1_loads(): A(g[0])
    A(poll_ld(vPO, 24))
    c_wring(A)
    A(f"s_waitcnt vmcnt({4*OPT['d']})")
    poll_check(A, "pln2", vPO, 24)
    A("s_barrier")
    for x in f_setup1(): A(x)
    c_bring(A)
    for i in range(80): A(f"v_accvgpr_write_b32 a{G1A+i}, 0")
    A(f"s_waitcnt vmcnt({5*D})")
    for x in f_setup2(): A(x)
    A(f"s_mov_b32 s{sCNT}, 3")
    A(f"s_mov_b32 s{sPUB}, {OPT['lnmid']}")
    A(f"s_waitcnt vmcnt({EW})")
    for x in c_tr(0, 0): A(x)
    stamp(A, "ln_ready")
    A("s_branch g1_loop")
    A.label("r_q")
    A("s_sub_u32 s87, s82, 16")
    A("s_and_b32 s85, s87, 3")
    A("s_lshl_b32 s86, s83, 2")
    A(f"s_add_u32 s{sA}, s85, s86")
    A("s_lshr_b32 s85, s87, 2")
    A("s_lshl_b32 s86, s84, 1")
    A(f"s_add_u32 s{sBp}, s85, s86")
    A(f"s_lshl_b32 s{sU}, s{sBp}, 2")
    A(f"s_and_b32 s85, s{sA}, 3")
    A(f"s_add_u32 s{sU}, s{sU}, s85")
    A(f"s_lshr_b32 s{sNR}, s{sA}, 2")
    def midq(A):
        params1(A); srds(A, ["WS", "W1", "WO", "W2", "B2", "OUT"]); cw_init(A); params2(A)
        w1_setup(A, 16, 12)
        if OPT["qw1"] == 0: q_pf_only(A)
        if not OPT["qdefer"]: q_setup(A)
    def qs(lo, hi):
        def f(A):
            B = Asm(); q_setup(B)
            assert len(B.lines) > 150
            for x in B.lines[lo:hi]: A(x)
        return f
    def qtouch(A):
        A("s_mov_b32 exec_lo, 0xffff03ff")
        A("s_mov_b32 exec_hi, 0")
        A(f"buffer_load_dword a255, v{vT1}, s[{sWS}:{sWS+3}], 0 offen sc1")
        A("s_mov_b64 exec, -1")
    qkv_setup(A, True)
    if not OPT["xfirst"]: qkv_setup_w(A, True)
    A("s_waitcnt lgkmcnt(0)"); srds(A, ["X", "W"])
    qb = [(max(OPT["qw1"], 1), q_loop_pf)]
    if OPT["qdefer"]:
        def both(A): q_loop_pf(A); q_setup(A); qtouch(A)
        qb = [(OPT["qw1"], both)]
    out_q = qkv_gemm(A, "q", True, midq, q_extras(), {9: lambda A: poll_check(A, "pln3", vPO, 24)}, qb)
    q_epilogue(A)
    A("s_lshl_b32 s88, s81, 3")
    A("s_add_u32 s88, s88, s82")
    A("s_sub_u32 s88, s88, 16")
    publish(A, "pub_q", FL_Q, 88)
    stamp(A, "q_pub")
    if OPT["qw2b"]: w2_prefetch(A, 16, list(range(3 - OPT["qw2b"], 3)))
    for x in f_setup1(): A(x)
    switch_to_fb(A)
    c_wring(A)
    if OPT["xw"]: xw_dma(A)
    A(poll_ld(vPO, 25))
    A(f"s_waitcnt vmcnt({4*D + 1 + (4 + 4*OPT['xw'] if OPT['xw'] else 0)})")
    for x in f_setup2(): A(x)
    A("s_waitcnt vmcnt(0)")
    poll_check(A, "pq2", vPO, 25)
    A("s_barrier")
    stamp(A, "q_allq")
    if OPT["pf_pq"]:
        A("s_sub_u32 s88, s82, 16")
        A("s_lshl_b32 s88, s88, 2")
        A(f"s_add_u32 s88, s88, s{sWAVE}")
        A("v_lshlrev_b32 v2, 7, v1")
        A(f"s_mul_i32 s85, s83, {8*81920}")
        A(f"s_mul_i32 s86, s88, {160*128}")
        A("s_add_u32 s85, s85, s86")
        A(f"s_add_u32 s85, s85, {WS_PQ:#x}")
        for i in range(3):
            if i == 2: A("s_mov_b32 exec_hi, 0")
            A(f"buffer_load_dword a255, v2, s[{sWS}:{sWS+3}], s85 offen sc1")
            A("s_add_u32 s85, s85, 8192")
        A("s_mov_b32 exec_hi, -1")
        A("s_cmp_ge_u32 s88, 20")
        A("s_cbranch_scc1 q_pfd")
        A("s_mul_i32 s85, s88, 40960")
        A("s_mul_i32 s86, s84, 20480")
        A("s_add_u32 s85, s85, s86")
        A(f"s_add_u32 s85, s85, {WS_M:#x}")
        for i in range(3):
            if i == 2: A("s_mov_b32 exec_hi, 0")
            A(f"buffer_load_dword a255, v2, s[{sWS}:{sWS+3}], s85 offen sc1")
            A("s_add_u32 s85, s85, 8192")
        A("s_mov_b32 exec_hi, -1")
        A.label("q_pfd")
    fa_params(A)
    A("s_branch f_entry")
    out_q(A)
    A.label("k_codeend")
    for i, l in enumerate(A.lines):
        if l.startswith("v_mad_i32_i24 v4, v3, -20"):
            A.lines[i] = l.replace("-20", "s89")
        if l == "s_movk_i32 s88, 3840":
            A.lines[i] = "s_movk_i32 s89, -20"
    if OPT["align"]:
        A.lines, nc, nn = align(A.lines, OPT["align"])
        print("aligned: widened", nc, "nops", nn, file=sys.stderr)
    nb = check(A.lines)
    print("hazards:", nb, file=sys.stderr)
    return hdr + A.text() + kd(K)

if __name__ == "__main__":
    out = sys.argv[1]
    for a in sys.argv[2:]:
        if a == "st": STAMPS = True
        else:
            k, v = a.split("="); OPT[k] = int(v)
    open(out, "w").write(gen())
    if STAMPS: json.dump(_st["names"], open(out + ".names", "w"))
```

```python
import sys, json
from asmlib import Asm, vr, ar, sr, check, align

NAME = "gated_mix__linear_attn_block__mixer_token_mlp__prompt"
WS_H   = 0x000000
WS_U   = 0x280000
WS_PQ  = 0x460000
WS_M   = 0x6E0000
WS_KVP = 0x7A8000
WS_ZP  = 0x880000
WS_G   = 0x972000
WS_FLAG = 0x974000
FL_X = WS_FLAG
FL_LN = WS_FLAG + 128
FL_KV = FL_LN + 64*128
FL_Q = FL_KV + 128*128
FL_G1 = FL_Q + 64*128
WS_SIZE = FL_G1 + 192*128
WS_STAMP = 0x1000000

sX, sW, sWS, sW1, sW2, sOUT, sWO, sB1, sB2, sGW = 28, 32, 36, 40, 44, 48, 52, 56, 60, 64
sWAVE = 68
sA, sBp = 69, 70
sG1D, sG1F, sFS, sFD = 71, 72, 73, 74
sCNT, sO1, sO2, sRD, sWR, sM0 = 75, 76, 77, 78, 79, 80
sEX, sMK = 90, 92
sU, sNR = 94, 95
sWR_, sWC_ = 96, 97
sPUB = 3
sQOK = 99
sM1 = 98
sC1, sC2, sCM0, sCB1, sCE1, sCB2, sCE2, sCST, sCW, sNON = 4, 5, 6, 7, 8, 9, 10, 11, 12, 16
sF1, sFB1, sFE1, sF2, sFB2, sFE2 = 17, 18, 19, 20, 21, 22
LOG2E = 0x3FB8AA3B
EPS6 = 0x358637BD
LDS_RED = 65536
LDS_BYTES = 163840
vXO, vWO_, vXB, vCUR = 16, 20, 25, 29
vWS_, vB0, vB1, vTR, vWS2 = 33, 37, 38, 39, 43
ACC = 48
FA_, FB_ = 112, 148
BR, AS = 0, 80
STG = 36864
vPOLL, vPO = 14, 13
OPT = {"rot": 1, "pf_w1": 1, "pf_w2": 1, "pf_code": 1, "pf_pq": 0, "sleep": 1, "early": 1, "d": 3, "qpoll": 2, "nbin": 13, "cv": 0, "lnseq": 51, "qw2": 0, "qw2b": 0, "ntq": 0, "qw1": 1, "qw1n": 2, "kvr": 1, "touch": 0, "perm": 0, "otouch": 0, "rdb": 4, "w2c": 2, "qfirst": 0, "rfd": 3, "tailw": 1, "pubat": 0, "kvw2": 0, "b0": 0, "qw1b": 0, "rfb": 4, "frot": 2, "arot": 2, "fmap": 1, "qrot": 1, "grot": 4, "lnpost": 0, "lnpn": 3, "align": 5, "defer": 0, "qdefer": 0, "lnmid": 0, "ost": 1, "tlb": 0, "pf0": 8, "xfirst": 1, "fsplit": 1, "xw": 3, "xwd": 0, "xsp": 6, "pfall": 0, "ntl": 6, "ntlk": 2, "ntlq": 3, "ox4": 0, "merge": 0, "mo": 0, "uearly": 1, "kweave": 1, "lal": 3, "rev": 0, "g1late": 1, "fblate": 0}
STAMPS = False
_st = {"n": 0, "names": []}

DBGL = ["startreal", "kv_pre", "kv_first", "kv_loop9", "kv_st", "kv_pub", "g1_loopdone", "g1_st", "g1_pub", "f_uok", "fb_first", "fb_loopdone", "endreal"]
def stamp(A, name, real=False):
    if OPT.get("dbg"):
        if name in DBGL:
            A("s_memrealtime s[100:101]")
            A("s_waitcnt lgkmcnt(0)")
            A(f"v_writelane_b32 v47, s100, {DBGL.index(name)}")
        return
    if not STAMPS: return
    if OPT.get("clk") and not real and name in ("kv_first", "kv_loop9", "g1_s0", "g1_loopdone", "g1_pub", "fb_first", "fb_loopdone"): stamp(A, name + "_R", True)
    i = _st["n"]; _st["n"] += 1; _st["names"].append(name)
    A("s_memrealtime s[100:101]" if real else "s_memtime s[100:101]")
    A("s_waitcnt lgkmcnt(0)")
    A(f"v_writelane_b32 v47, s100, {i}")
def stamp_flush(A):
    if OPT.get("dbg"):
        A("s_waitcnt vmcnt(0)")
        stamp(A, "endreal", True)
        A(f"s_cmp_lg_u32 s{sWAVE}, 0")
        A("s_cbranch_scc1 k_end")
        A("s_load_dwordx2 s[4:5], s[0:1], 80")
        A("v_readlane_b32 s8, v47, 0")
        A("s_waitcnt lgkmcnt(0)")
        A("s_mov_b32 s6, 256")
        A("s_mov_b32 s7, 0x20000")
        A("s_not_b32 s9, s8")
        A("v_mov_b32 v2, s9")
        A("v_mov_b32 v3, s100")
        A("v_mov_b32 v4, s8")
        A("v_mov_b32 v5, 0")
        A("s_mov_b64 exec, 1")
        A("buffer_atomic_umax v2, v5, s[4:7], 0 offen")
        A("buffer_atomic_umax v3, v5, s[4:7], 0 offen offset:4")
        A("buffer_atomic_umax v4, v5, s[4:7], 0 offen offset:8")
        A("s_mov_b64 exec, -1")
        A(f"s_cmp_lg_u32 s2, {OPT['dbg'] - 1}")
        A("s_cbranch_scc1 k_end")
        A("v_lshlrev_b32 v5, 2, v1")
        A("s_mov_b64 exec, 0x1fff")
        A("buffer_store_dword v47, v5, s[4:7], 0 offen offset:12")
        A("s_branch k_end")
        return
    if not STAMPS: return
    stamp(A, "end"); stamp(A, "endreal", True)
    A("s_lshl_b32 s100, s2, 2")
    A(f"s_add_u32 s100, s100, s{sWAVE}")
    A("s_lshl_b32 s100, s100, 8")
    A(f"s_add_u32 s100, s100, {WS_STAMP:#x}")
    A(f"s_mov_b32 s{sWS+2}, 0x2000000")
    A("v_lshlrev_b32 v46, 2, v1")
    A(f"buffer_store_dword v47, v46, s[{sWS}:{sWS+3}], s100 offen")

def srds(A, which):
    tab = {"X": (sX, 4, 2048*1280), "W": (sW, 6, 640*3840), "WO": (sWO, 8, 640*1280), "W1": (sW1, 12, 2048*3072), "B1": (sB1, 14, 3072),
           "W2": (sW2, 16, 1536*4096), "B2": (sB2, 18, 4096), "GW": (sGW, 20, 1280), "OUT": (sOUT, 22, 2048*1280), "WS": (sWS, 26, WS_SIZE)}
    for w in which:
        base, ptr, size = tab[w]
        A(f"s_mov_b64 s[{base}:{base+1}], s[{ptr}:{ptr+1}]")
        A(f"s_mov_b32 s{base+2}, {size:#x}")
        A(f"s_mov_b32 s{base+3}, 0x20000")

def PS(): return 22528 if OPT["ox4"] else 21504
def RS(): return 176 if OPT["ox4"] else 336
def flat(groups):
    out = []
    for g in groups: out += g if isinstance(g, list) else [g]
    return out

def weave(A, mf, fill, first=0):
    for i, m in enumerate(mf):
        A(m)
        if i < len(fill):
            for x in fill[i]: A(x)
    for g in fill[len(mf):]:
        for x in g: A(x)

def poll_off(A, dst, nper, total_waves_split=True):
    A(f"v_and_b32 v{dst}, {nper-1}, v1")
    A(f"s_mul_i32 s85, s{sWAVE}, {nper}")
    A(f"v_add_lshl_u32 v{dst}, v{dst}, s85, 7")
def poll_ld(vo, so):
    return f"buffer_load_dword v{vPOLL}, v{vo}, s[{sWS}:{sWS+3}], s{so} offen sc1"
def poll_check(A, name, vo, so):
    A(f"v_cmp_ne_u32 vcc, s{sNON}, v{vPOLL}")
    A(f"s_cbranch_vccz {name}_ok")
    A(f"s_mov_b32 s{sM1}, 0")
    A.label(f"{name}_spin")
    A(f"s_add_u32 s{sM1}, s{sM1}, 1")
    A(f"s_cmp_gt_u32 s{sM1}, 0x80000")
    A(f"s_cbranch_scc1 {name}_ok")
    A(f"s_sleep {OPT['sleep']}")
    A(poll_ld(vo, so))
    A("s_waitcnt vmcnt(0)")
    A(f"v_cmp_ne_u32 vcc, s{sNON}, v{vPOLL}")
    A(f"s_cbranch_vccnz {name}_spin")
    A.label(f"{name}_ok")
def flag_store(A, so):
    A(f"v_mov_b32 v2, s{sNON}")
    A("v_lshlrev_b32 v3, 2, v1")
    A("s_mov_b32 exec_hi, 0")
    A(f"buffer_store_dword v2, v3, s[{sWS}:{sWS+3}], s{so} offen sc1")
    A("s_mov_b32 exec_hi, -1")
def publish(A, name, base, sidx, wait=0):
    if wait is not None: A(f"s_waitcnt vmcnt({wait})")
    A("s_barrier")
    A(f"s_cmp_lg_u32 s{sWAVE}, 0")
    A(f"s_cbranch_scc1 {name}_np")
    A(f"s_lshl_b32 s85, s{sidx}, 7")
    A(f"s_add_u32 s85, s85, {base:#x}")
    flag_store(A, 85)
    A.label(f"{name}_np")

def prologue(A):
    A("s_cmp_ge_u32 s2, 256")
    A("s_cbranch_scc1 k_end")
    if STAMPS or OPT.get("dbg"): A("v_mov_b32 v47, 0")
    stamp(A, "startreal", True); stamp(A, "start")
    A("s_load_dwordx16 s[4:19], s[0:1], 0")
    A("s_load_dwordx8 s[20:27], s[0:1], 64")
    if OPT["pf0"] and not OPT["pfall"]:
        A("s_getpc_b64 s[86:87]")
        A("v_lshlrev_b32 v2, 7, v0")
        A(f"s_mov_b64 exec, {(1 << OPT['pf0']) - 1:#x}")
        A("global_load_dword a255, v2, s[86:87] offset:128")
        A("s_mov_b64 exec, -1")
    A("v_lshrrev_b32 v2, 6, v0")
    A("v_and_b32 v1, 63, v0")
    if OPT["pfall"]:
        A("s_getpc_b64 s[86:87]")
        A.label("pc_0")
        A("s_lshr_b32 s85, s2, 3")
        A("v_lshl_add_u32 v3, s85, 2, v2")
        A("v_mad_u32_u24 v3, v3, 3, v1")
        A("v_cmp_gt_u32 vcc, 3, v1")
        A("v_add_u32 v4, -2, v1")
        A(f"s_mov_b64 exec, {(1 << (3 + OPT['pf0'])) - 1:#x}")
        A("v_cndmask_b32 v3, v4, v3, vcc")
        A("v_lshlrev_b32 v3, 7, v3")
        A("v_min_u32 v3, k_codeend-pc_0-4, v3")
        A("global_load_dword a255, v3, s[86:87]")
        A("s_mov_b64 exec, -1")
    A(f"v_readfirstlane_b32 s{sWAVE}, v2")
    A("s_and_b32 s81, s2, 7")
    A("s_lshr_b32 s82, s2, 3")
    A("s_lshr_b32 s83, s81, 1")
    A("s_and_b32 s84, s81, 1")

def params1(A):
    A(f"s_add_u32 s86, s26, {FL_X:#x}")
    A("s_addc_u32 s87, s27, 0")
    A("s_load_dword s3, s[86:87], 0")
    A("s_lshr_b32 s85, s82, 2")
    A("s_lshl_b32 s88, s83, 3")
    if OPT["perm"]: A("s_xor_b32 s85, s85, 7")
    A(f"s_add_u32 s{sFS}, s85, s88")
    A("s_and_b32 s85, s82, 3")
    A("s_lshl_b32 s88, s84, 2")
    A(f"s_add_u32 s{sFD}, s85, s88")
    if OPT["fmap"]:
        A("s_lshr_b32 s85, s82, 3")
        if OPT["fmap"] == 1:
            A("s_lshl_b32 s85, s85, 3")
            A(f"s_add_u32 s{sFS}, s85, s81")
        else:
            A(f"s_lshl_b32 s{sFS}, s81, 2")
            A(f"s_add_u32 s{sFS}, s{sFS}, s85")
        A(f"s_and_b32 s{sFD}, s82, 7")
    A("s_sub_u32 s85, s82, 8")
    A("s_cmp_lt_u32 s82, 16")
    A("s_cselect_b32 s85, s82, s85")
    A("s_and_b32 s89, s85, 3")
    A(f"s_add_u32 s{sG1D}, s89, s88")
    A("s_lshr_b32 s85, s85, 2")
    A("s_lshl_b32 s88, s85, 2")
    A(f"s_add_u32 s{sG1F}, s83, s88")
    A("s_lshr_b32 s88, s85, 2")
    A("s_lshl_b32 s85, s85, 1")
    A("s_add_u32 s85, s85, s88")
    A("s_lshl_b32 s85, s85, 1")
    if OPT["rfb"] == 0: A("s_mov_b32 s85, 0")
    A(f"s_mul_i32 s89, s89, {OPT['rdb']}")
    A("s_add_u32 s85, s85, s89")
    if OPT["grot"] == 2: A("s_lshl_b32 s85, s85, 1")
    A(f"s_and_b32 s99, s85, {(15 if OPT['grot'] == 4 else 8) if OPT['grot'] else 0}")

def cw_init(A):
    A(f"s_mov_b64 s[{sCW}:{sCW+1}], s[{sW1}:{sW1+1}]")
    A(f"s_mov_b64 s[{sCW+2}:{sCW+3}], s[{sW1+2}:{sW1+3}]")
def params2(A):
    if OPT.get("same"):
        for k, r in enumerate((sG1D, sG1F, sFS, sFD)):
            A(f"s_mov_b32 s{100 if not STAMPS else 64+k}, s{r}")
            A(f"s_mov_b32 s{r}, 0")
        params2_(A)
        for k, r in enumerate((sG1D, sG1F, sFS, sFD)): A(f"s_mov_b32 s{r}, s{64+k}")
    else: params2_(A)
def params_fb(A):
    A("s_and_b32 s85, s82, 3")
    A(f"s_mul_i32 s85, s85, {OPT['rfd']}")
    A("s_lshr_b32 s86, s82, 2")
    A("s_mul_i32 s86, s86, 3")
    A("s_lshr_b32 s86, s86, 1")
    A("s_add_u32 s85, s85, s86")
    A("s_cmp_ge_u32 s85, 12")
    A("s_cselect_b32 s86, 12, 0")
    A("s_sub_u32 s85, s85, s86")
    if OPT["frot"] == 0: A("s_mov_b32 s85, 0")
    if OPT["frot"] == 2:
        A(f"s_add_u32 s85, s{sFS}, s{sFD}")
        A("s_and_b32 s85, s85, 1")
        A("s_mul_i32 s85, s85, 6")
    if OPT["frot"] == 4:
        A("s_bfe_u32 s85, s82, 0x10003")
        A("s_mul_i32 s85, s85, 6")
    if OPT["frot"] == 3:
        A(f"s_add_u32 s85, s{sFS}, s{sFD}")
        A("s_mul_i32 s86, s85, 86")
        A("s_lshr_b32 s86, s86, 8")
        A("s_mul_i32 s86, s86, 3")
        A("s_sub_u32 s85, s85, s86")
        A("s_lshl_b32 s85, s85, 2")
    A(f"s_mul_i32 s{sFB1}, s{sWAVE}, {12*32*4096}")
    A(f"s_lshl_b32 s86, s{sFS}, 7")
    A(f"s_add_u32 s{sFB1}, s{sFB1}, s86")
    A(f"s_add_u32 s{sFE1}, s{sFB1}, {12*32*4096}")
    A(f"s_lshl_b32 s86, s85, 17")
    A(f"s_add_u32 s{sF1}, s{sFB1}, s86")
    A(f"s_mul_i32 s{sFB2}, s{sWAVE}, {12*40960}")
    A(f"s_mul_i32 s86, s{sFD}, 5120")
    A(f"s_add_u32 s{sFB2}, s{sFB2}, s86")
    A(f"s_add_u32 s{sFB2}, s{sFB2}, {WS_U:#x}")
    A(f"s_add_u32 s{sFE2}, s{sFB2}, {12*40960}")
    A(f"s_mul_i32 s86, s85, 40960")
    A(f"s_add_u32 s{sF2}, s{sFB2}, s86")
def params2_(A, skip_fb=False):
    A(f"s_mul_i32 s{sCB1}, s{sWAVE}, {16*32*3072}")
    A(f"s_lshl_b32 s85, s{sG1F}, 7")
    A(f"s_add_u32 s{sCB1}, s{sCB1}, s85")
    A(f"s_add_u32 s{sCE1}, s{sCB1}, {16*32*3072}")
    A(f"s_mul_i32 s85, s99, {32*3072}")
    A(f"s_add_u32 s{sC1}, s{sCB1}, s85")
    A(f"s_mul_i32 s{sCB2}, s{sWAVE}, {16*40960}")
    A(f"s_mul_i32 s85, s{sG1D}, 5120")
    A(f"s_add_u32 s{sCB2}, s{sCB2}, s85")
    A(f"s_add_u32 s{sCE2}, s{sCB2}, {16*40960}")
    A(f"s_mul_i32 s85, s99, 40960")
    A(f"s_add_u32 s{sC2}, s{sCB2}, s85")
    A(f"s_mov_b32 s{sCST}, {32*3072}")
    A(f"s_lshl_b32 s{sCM0}, s{sWAVE}, 14")
    if not skip_fb: params_fb(A)
    A(f"v_lshlrev_b32 v{vB0}, 4, v1")
    A(f"v_add_u32 v{vB1}, 4096, v{vB0}")
    A("v_lshrrev_b32 v2, 2, v1")
    A("v_lshrrev_b32 v3, 1, v2")
    A("v_and_b32 v3, 3, v3")
    A("v_lshlrev_b32 v2, 7, v2")
    A("v_lshl_add_u32 v2, v3, 5, v2")
    A("v_and_b32 v3, 3, v1")
    A("v_lshl_add_u32 v2, v3, 3, v2")
    A(f"v_add_u32 v{vTR}, s{sCM0}, v2")
    for t in range(1, 4): A(f"v_xor_b32 v{vTR+t}, {32*t}, v{vTR}")
    A("v_lshrrev_b32 v2, 3, v1")
    A("v_lshrrev_b32 v3, 4, v1")
    A("v_lshlrev_b32 v3, 1, v3")
    A("v_and_b32 v4, 7, v1")
    A("v_xor_b32 v3, v3, v4")
    A("v_lshlrev_b32 v3, 4, v3")
    for base, stride in ((vWS_, 3072), (vWS2, 4096)):
        A(f"v_mul_u32_u24 v4, {stride}, v2")
        A(f"v_add_u32 v{base}, v3, v4")
        for q in range(1, 4): A(f"v_add_u32 v{base+q}, {q*(8*stride-1024)}, v{base}")
    poll_off(A, vPO, 16)
    A("v_lshlrev_b32 v15, 7, v1")
    A(f"s_mov_b32 s24, {FL_LN:#x}")
    A(f"s_mov_b32 s25, {FL_Q:#x}")
    A("s_waitcnt lgkmcnt(0)")
    A(f"s_mul_i32 s{sNON}, s3, 0x41C64E6D")
    A(f"s_add_u32 s{sNON}, s{sNON}, 0x3C6EF35F")

def qkv_setup(A, isq):
    A(f"s_lshr_b32 s{sWR_}, s{sWAVE}, 1")
    A(f"s_and_b32 s{sWC_}, s{sWAVE}, 1")
    A("v_lshrrev_b32 v2, 3, v1")
    A(f"s_lshl_b32 s85, s{sWAVE}, 5")
    A("v_add_u32 v2, s85, v2")
    A("v_mul_u32_u24 v2, 1280, v2")
    A("v_lshrrev_b32 v3, 4, v1")
    A("v_and_b32 v4, 7, v1")
    A("v_xor_b32 v4, v4, v3")
    A(f"v_lshl_add_u32 v{vXO}, v4, 4, v2")
    A("v_xor_b32 v4, 4, v4")
    A("v_lshl_add_u32 v6, v4, 4, v2")
    A(f"v_add_u32 v{vXO+1}, {8*1280-1024}, v6")
    A(f"v_add_u32 v{vXO+2}, {16*1280-2048}, v{vXO}")
    A(f"v_add_u32 v{vXO+3}, {24*1280-3072}, v6")
    A(f"s_mul_i32 s{sO1}, s{sA}, {0 if OPT.get('same') else 128*1280}")
    A(f"s_mov_b32 s{sO2}, 0")
    if OPT["rot"]:
        q = OPT["qrot"]
        if q in (1, 6):
            A("s_and_b32 s85, s82, 3")
            A("s_lshl_b32 s85, s85, 2")
            A(f"s_lshr_b32 s85, {0x8530 if q == 1 else 0x5500:#x}, s85")
            A("s_and_b32 s85, s85, 15")
            A("s_and_b32 s86, s82, 12")
            A("s_lshr_b32 s86, 0x8530, s86")
            A("s_and_b32 s86, s86, 15")
            A("s_add_u32 s85, s85, s86")
            A("s_add_u32 s85, s85, s83")
            A("s_add_u32 s85, s85, s84")
        else:
            A("s_lshr_b32 s85, s82, 2")
            A("s_add_u32 s85, s85, s82")
            A("s_and_b32 s85, s85, 1")
            A("s_mul_i32 s85, s85, 5")
            if q == 2:
                A("s_add_u32 s85, s85, s83")
                A("s_add_u32 s85, s85, s84")
            if q == 4:
                A("s_add_u32 s85, s85, s81")
            if q == 5:
                A("s_mov_b32 s85, s81")
        if isq: A("s_add_u32 s85, s85, 1")
        A("s_mul_i32 s86, s85, 26")
        A("s_lshr_b32 s86, s86, 8")
        A("s_mul_i32 s86, s86, 10")
        A("s_sub_u32 s85, s85, s86")
        A(f"s_mul_i32 s{sO2}, s85, {64*3840}")
        A("s_lshl_b32 s85, s85, 7")
        A(f"s_add_u32 s{sO1}, s{sO1}, s85")
    A(f"s_lshl_b32 s{sM0}, s{sWAVE}, 12")
    A(f"s_mul_i32 s{sM1}, s{sWAVE}, 5120")
    A(f"s_add_u32 s{sM1}, s{sM1}, 16384")
    A(f"s_mov_b32 s{sWR}, {2*STG}")

def qkv_setup_w(A, isq):
    if OPT.get("same"):
        A("s_mov_b32 s86, 1280")
    elif isq:
        A(f"s_mul_i32 s86, s{sBp}, 320")
    else:
        A(f"s_mul_i32 s86, s{sBp}, 160")
        A("s_add_u32 s86, s86, 1280")
    A(f"s_mul_i32 s85, s{sWAVE}, {16*3840}")
    A("s_add_u32 s85, s85, s86")
    A("s_movk_i32 s88, 3840")
    for n in range(5):
        if n: A(f"v_add_u32 v2, {64*n}, v1")
        q = "v2" if n else "v1"
        A(f"v_mul_u32_u24 v3, 3277, {q}")
        A("v_lshrrev_b32 v3, 16, v3")
        A(f"v_mad_i32_i24 v4, v3, -20, {q}")
        A("v_lshrrev_b32 v5, 2, v3")
        A("v_and_b32 v5, 2, v5")
        A("v_xor_b32 v4, v4, v5")
        comp = 1024*n if n < 4 else 0
        A(f"s_sub_u32 s87, s85, {comp}" if comp else "s_mov_b32 s87, s85")
        A("v_mad_u32_u24 v3, v3, s88, s87" if False else "v_mul_u32_u24 v3, 3840, v3")
        A("v_lshl_add_u32 v3, v4, 4, v3")
        if not isq:
            A("v_cmp_le_u32 vcc, 10, v4")
            A("v_add_u32 v5, 1120, v3")
            A("v_add_u32 v3, s87, v3")
            A("v_add_u32 v5, s87, v5")
            A(f"v_cndmask_b32 v{vWO_+n}, v3, v5, vcc")
        else:
            A(f"v_add_u32 v{vWO_+n}, s87, v3")

def nt(b): return " nt" if OPT["ntq"] & b else ""
def qkv_dma():
    L = [[f"s_add_u32 m0, s{sWR}, s{sM0}"]]
    for n in range(4):
        L.append([f"buffer_load_dwordx4 v{vXO+n}, s[{sX}:{sX+3}], s{sO1} offen offset:{1024*n}{nt(1)} lds"])
    L.append([f"s_add_u32 m0, s{sWR}, s{sM1}"])
    for n in range(4):
        L.append([f"buffer_load_dwordx4 v{vWO_+n}, s[{sW}:{sW+3}], s{sO2} offen offset:{1024*n}{nt(2)} lds"])
    L.append(["s_add_u32 m0, m0, 4096"])
    L.append([f"buffer_load_dwordx4 v{vWO_+4}, s[{sW}:{sW+3}], s{sO2} offen{nt(2)} lds"])
    return L
def qkv_adv():
    return [f"s_add_u32 s{sO1}, s{sO1}, 128", f"s_add_u32 s{sO2}, s{sO2}, {64*3840}", f"s_cmp_eq_u32 s{sO2}, {640*3840}",
            "s_cselect_b32 s85, 1280, 0", f"s_cselect_b32 s{sO2}, 0, s{sO2}", f"s_sub_u32 s{sO1}, s{sO1}, s85",
            f"s_add_u32 s{sWR}, s{sWR}, {STG}", f"s_cmp_eq_u32 s{sWR}, {4*STG}", f"s_cselect_b32 s{sWR}, 0, s{sWR}"]
def emit_dma_block(A, groups):
    for g in groups:
        for x in g: A(x)
        if "m0" in g[0].split(",")[0]: A("s_nop 0")

NW = 5
vXB, vCUR = 26, 6
vXB = 208
vCUR = 215
def qkv_reads(kk, fs):
    def wr(t):
        return [f"ds_read_b64_tr_b16 {ar(fs+16+4*t+2*j,2)}, v{vCUR+2+t} offset:{kk*10240 + j*1280}" for j in range(2)]
    L = wr(0)
    for st in range(4):
        L.append(f"ds_read_b128 {ar(fs+4*st,4)}, v{vCUR+kk} offset:{st*2048}")
    for t in range(1, 5): L += wr(t)
    return L
def qkv_mfmas(fs, isq):
    L = []
    order = [(t, st) for t in range(5) for st in range(4)]
    if OPT["mo"] & 1: order = [(t, st) for st in range(4) for t in range(5)]
    if OPT["mo"] & 4: order = [(t, st if t % 2 == 0 else 3 - st) for t in range(5) for st in range(4)]
    for t, st in order:
            x = ar(fs + 4*st, 4); w = ar(fs + 16 + 4*t, 4); c = vr(ACC + (st*5+t)*4, 4)
            L.append(f"v_mfma_f32_16x16x32_bf16 {c}, {w}, {x}, {c}" if isq else f"v_mfma_f32_16x16x32_bf16 {c}, {x}, {w}, {c}")
    return L

def qkv_gemm(A, pfx, isq, mid_setup, extras, pres, blk):
    if OPT["xfirst"]:
        emit_dma_block(A, qkv_dma()[:5])
        qkv_setup_w(A, isq)
        if OPT["rev"]:
            A("s_bitcmp1_b32 s82, 0")
            A(f"s_cbranch_scc0 {pfx}_fwd")
            d = qkv_dma()
            A(f"s_add_u32 m0, s{sWR}, s{sM1}")
            A("s_add_u32 m0, m0, 4096")
            A("s_nop 0")
            A(d[11][0])
            emit_dma_block(A, [d[5], d[9], d[8], d[7], d[6]])
            A(f"s_branch {pfx}_rvd")
            A.label(f"{pfx}_fwd")
        emit_dma_block(A, qkv_dma()[5:])
        if OPT["rev"]: A.label(f"{pfx}_rvd")
    else:
        emit_dma_block(A, qkv_dma())
    for x in qkv_adv(): A(x)
    stamp(A, pfx + "_iss0")
    mid_setup(A)
    A("v_and_b32 v2, 15, v1")
    A("v_lshrrev_b32 v3, 4, v1")
    A("v_lshrrev_b32 v4, 1, v2")
    A("v_xor_b32 v4, v4, v3")
    A("v_lshlrev_b32 v4, 4, v4")
    A("v_lshl_add_u32 v4, v2, 7, v4")
    A(f"s_lshl_b32 s85, s{sWR_}, 13")
    A(f"v_add_u32 v{vXB}, s85, v4")
    A(f"v_xor_b32 v{vXB+1}, 64, v{vXB}")
    A("v_lshrrev_b32 v4, 2, v2")
    A("v_lshl_add_u32 v4, v3, 3, v4")
    A("v_mul_u32_u24 v4, 320, v4")
    A("v_and_b32 v5, 1, v1")
    A("v_lshl_add_u32 v4, v5, 3, v4")
    A("v_add_u32 v4, 16384, v4")
    A("v_bfe_u32 v5, v1, 1, 1")
    A("v_and_b32 v6, 1, v3")
    A("v_lshlrev_b32 v6, 1, v6")
    A(f"s_mul_i32 s85, s{sWC_}, {10 if isq else 5}")
    for t in range(5):
        if isq: c0, step = [(0, 1), (2, 1), (4, 5), (5, 1), (7, 1)][t]
        else: c0, step = [(0, 1), (2, 1), (4, 6), (11, 1), (13, 1)][t]
        A(f"s_add_u32 s86, s85, {c0}")
        if step == 1: A("v_add_u32 v7, s86, v5")
        else: A(f"v_mad_u32_u24 v7, v5, {step}, s86")
        A("v_xor_b32 v7, v7, v6")
        A(f"v_lshl_add_u32 v{vXB+2+t}, v7, 4, v4")
    zero_acc(A)
    A(f"s_mov_b32 s{sRD}, {2*STG}")
    A(f"s_mov_b32 s{sCNT}, 0")
    upd = [f"v_add_u32 v{vCUR+i}, s{sRD}, v{vXB+i}" for i in range(7)]
    rdadv = [f"s_add_u32 s{sRD}, s{sRD}, {STG}", f"s_cmp_eq_u32 s{sRD}, {4*STG}", f"s_cselect_b32 s{sRD}, 0, s{sRD}"]
    def spread(rd, dma_slots, groups, scal):
        fill = [[] for _ in range(20)]
        k = 0
        for gi in range(9):
            for _ in range(2 if gi < 5 else 1):
                fill[gi].append(rd[k]); k += 1
        g = list(groups)
        for sl in dma_slots:
            if not g: break
            if "m0" in g[0][0].split(",")[0]:
                fill[sl-1] += g.pop(0)
            fill[sl] += g.pop(0)
        return fill, g
    def put_scal(fill, scal, start):
        sc = list(scal); gi = start
        while sc:
            room = 2 - len(fill[gi]) if gi < 19 else len(sc)
            for _ in range(max(room, 0)):
                if sc: fill[gi].append(sc.pop(0))
            gi += 1
    def top_half(wait, groups, pre=None, slots=(3, 7, 11, 15, 19)):
        A(f"s_waitcnt vmcnt({wait}) lgkmcnt(0)")
        if pre: pre(A)
        A("s_barrier")
        fill, rest = spread(qkv_reads(0, FA_), slots, groups, [])
        weave(A, qkv_mfmas(FB_, isq), fill)
        return rest
    def bot_half(adv, tail, groups=[], slots=(2, 6, 10, 13)):
        A("s_waitcnt lgkmcnt(0)")
        fill, rest = spread(qkv_reads(1, FB_), slots, groups, [])
        assert not rest
        put_scal(fill, rdadv + upd, 9)
        put_scal(fill, (qkv_adv() if adv else []) + tail, 14)
        weave(A, qkv_mfmas(FA_, isq), fill)
    for x in upd: A(x)
    stamp(A, pfx + "_setup")
    emit_dma_block(A, qkv_dma())
    for x in qkv_adv(): A(x)
    stamp(A, pfx + "_issued")
    A("s_waitcnt vmcnt(9)")
    A("s_barrier")
    stamp(A, pfx + "_first")
    for x in qkv_reads(0, FA_): A(x)
    emit_dma_block(A, qkv_dma()[:7])
    A(f"s_branch {pfx}_mid")
    A(f".p2align {OPT['lal']}")
    A.label(f"{pfx}_loop")
    outl = []
    for k, (c, fn) in enumerate(blk):
        A(f"s_cmp_eq_u32 s{sCNT}, {c}")
        A(f"s_cbranch_scc1 {pfx}_blk{k}")
    A.label(f"{pfx}_noblk")
    rest = top_half(9, qkv_dma())
    assert len(rest) == 5
    A.label(f"{pfx}_mid")
    ntl = OPT["ntl"]
    bot_half(True, [f"s_add_u32 s{sCNT}, s{sCNT}, 1", f"s_cmp_lt_u32 s{sCNT}, {ntl if ntl else 8}"], rest)
    A(f"s_cbranch_scc1 {pfx}_loop")
    if ntl:
        keep = OPT["ntq"]; OPT["ntq"] = OPT["ntlq"] if isq else OPT["ntlk"]
        A(f".p2align {OPT['lal']}")
        A.label(f"{pfx}_loop2")
        rest = top_half(9, qkv_dma())
        bot_half(True, [f"s_add_u32 s{sCNT}, s{sCNT}, 1", f"s_cmp_lt_u32 s{sCNT}, 8"], rest)
        A(f"s_cbranch_scc1 {pfx}_loop2")
        OPT["ntq"] = keep
    for it in (8, 9):
        g, w = extras.get(it, ([], 9 if it == 8 else 0))
        sl = (1, 3, 5, 8, 10, 12, 14, 16, 18) if len(g) > 14 else (2, 5, 8, 11, 14, 17)
        rest = top_half(w, g, pres.get(it), sl)
        bot_half(False, [], rest, sl)
    stamp(A, pfx + "_loop9")
    A("s_waitcnt lgkmcnt(0)")
    if isq and not OPT["kweave"]:
        for m in qkv_mfmas(FB_, isq): A(m)
        A("s_nop 7")
        stamp(A, pfx + "_loopdone")
    def outline(A):
        for k, (c, fn) in enumerate(blk):
            A.label(f"{pfx}_blk{k}")
            fn(A)
            A(f"s_branch {pfx}_noblk")
    return outline

PAIRS = [(2,0),(3,0),(2,1),(3,1),(4,1),(3,2),(4,2)]
def kv_mask(i):
    te, tc = PAIRS[i]; m = 0
    for l in range(64):
        c = 16*tc + l % 16; e = [-8, 8, 24][te-2] + 4*(l//16)
        if c < 40 and e >= 0 and c//20 == e//20: m |= 1 << l
    return m

KVB = [sum(bin(kv_mask(j)).count("1") for j in range(i)) for i in range(8)]
def kv_rank(A, dst, i, shift, add=0):
    m = kv_mask(i)
    A(f"s_mov_b32 s85, {m & 0xffffffff:#x}")
    A(f"s_mov_b32 s86, {m >> 32:#x}")
    A(f"v_mbcnt_lo_u32_b32 v{dst}, s85, {KVB[i]}" if KVB[i] <= 64 else f"v_mov_b32 v{dst}, {KVB[i]}\nv_mbcnt_lo_u32_b32 v{dst}, s85, v{dst}")
    A(f"v_mbcnt_hi_u32_b32 v{dst}, s86, v{dst}")
    A(f"v_lshlrev_b32 v{dst}, {shift}, v{dst}")
    if add: A(f"v_add_u32 v{dst}, {add}, v{dst}")
vKR = 246
def phi4(A, b, T, dst=None):
    dst = b if dst is None else dst
    A(f"v_pk_mul_f32 {vr(T,2)}, {vr(b,2)}, s[{sL2}:{sL2+1}]")
    A(f"v_pk_mul_f32 {vr(T+2,2)}, {vr(b+2,2)}, s[{sL2}:{sL2+1}]")
    for i in range(4): A(f"v_exp_f32 v{T+i}, v{T+i} clamp")
    for i in range(4): A(f"v_max_f32 v{dst+i}, {EPS6:#x}, v{b+i}")
    A(f"v_pk_add_f32 {vr(dst,2)}, {vr(dst,2)}, {vr(T,2)}")
    A(f"v_pk_add_f32 {vr(dst+2,2)}, {vr(dst+2,2)}, {vr(T+2,2)}")
sL2 = 88
vEW, vEZ, vER, sKVS = 250, 251, 252, 26
def kv_esetup(A):
    A(f"s_lshl_b32 s85, s{sBp}, 1")
    A(f"s_add_u32 s85, s85, s{sWC_}")
    A("s_lshl_b32 s86, s85, 4")
    A(f"s_add_u32 s86, s86, s{sA}")
    A("s_lshl_b32 s87, s86, 8")
    A(f"s_mul_i32 s{sKVS}, s86, 3200")
    A(f"s_sub_u32 s87, s87, s{sKVS}")
    A(f"s_add_u32 s87, s87, {WS_ZP - WS_KVP:#x}")
    A("s_lshr_b32 s87, s87, 4")
    A(f"s_add_u32 s{sKVS}, s{sKVS}, {WS_KVP:#x}")
    A("v_mov_b32 v2, 0x7ff00000")
    for k in range(4):
        mA = kv_mask(k); mB = kv_mask(4+k) if k < 3 else 0xffff
        A(f"s_cmp_eq_u32 s{sWR_}, 0")
        A(f"s_mov_b32 s92, {mB & 0xffffffff:#x}")
        A(f"s_cselect_b32 s92, {mA & 0xffffffff:#x}, s92")
        A(f"s_mov_b32 s93, {mB >> 32:#x}")
        A(f"s_cselect_b32 s93, {mA >> 32:#x}, s93")
        if k < 3: A(f"s_mov_b32 s88, {KVB[4+k]}")
        A(f"s_cselect_b32 s88, {KVB[k]}, s{88 if k < 3 else 87}")
        A(f"v_mov_b32 v{vKR+k}, s88")
        A(f"v_mbcnt_lo_u32_b32 v{vKR+k}, s92, v{vKR+k}")
        A(f"v_mbcnt_hi_u32_b32 v{vKR+k}, s93, v{vKR+k}")
        A(f"v_lshlrev_b32 v{vKR+k}, 4, v{vKR+k}")
        A(f"v_cndmask_b32 v{vKR+k}, v2, v{vKR+k}, s[92:93]")
    A(f"s_mul_i32 s85, s{sWAVE}, 8448")
    A(f"s_add_u32 s85, s85, {LDS_RED}")
    A(f"v_add_u32 v{vEW}, s85, v{vB0}")
    A(f"v_lshl_add_u32 v{vEZ}, v1, 2, s85")
    A(f"s_mul_i32 s85, s{sWC_}, 8448")
    A(f"s_lshl_b32 s86, s{sWR_}, 12")
    A("s_add_u32 s85, s85, s86")
    A(f"s_add_u32 s85, s85, {LDS_RED}")
    A(f"v_add_u32 v{vER}, s85, v{vB0}")
    A("v_and_b32 v2, 15, v1")
    A(f"v_cmp_gt_u32 s[{sMK}:{sMK+1}], 8, v2")
    A("v_cmp_lt_u32 s[64:65], 15, v1")
    A("v_cmp_lt_u32 s[66:67], 31, v1")
def kv_estream():
    PB, KA, ONE, TMP = 128, 168, 208, 212
    E = [Asm(), Asm(), Asm(), Asm()]
    A = E[0]
    A(f"s_mov_b32 s{sL2}, {LOG2E:#x}")
    A(f"s_mov_b32 s{sL2+1}, {LOG2E:#x}")
    for i in range(4): A(f"v_mov_b32 v{ONE+i}, 0x3f803f80")
    for st in range(4):
        A = E[st // 2]
        for t in range(3):
            b = ACC + (st*5+t)*4
            if t < 2: phi4(A, b, TMP)
            else:
                phi4(A, b, TMP, TMP+4)
                for i in range(4): A(f"v_cndmask_b32 v{b+i}, v{b+i}, v{TMP+4+i}, s[{sMK}:{sMK+1}]")
        for t in range(5):
            b = ACC + (st*5+t)*4
            d = PB + (t*2 + st//2)*4 + (st & 1)*2
            A(f"v_cvt_pk_bf16_f32 v{d}, v{b}, v{b+1}")
            A(f"v_cvt_pk_bf16_f32 v{d+1}, v{b+2}, v{b+3}")
        if st & 1:
            sp = st // 2
            A("s_nop 1")
            for tc in range(3):
                c = vr(KA+4*(7+tc), 4)
                A(f"v_mfma_f32_16x16x32_bf16 {c}, {vr(ONE,4)}, {vr(PB+(tc*2+sp)*4,4)}, {c if sp else 0}")
            for i, (te, tc) in enumerate(PAIRS):
                c = vr(KA+4*i, 4)
                A(f"v_mfma_f32_16x16x32_bf16 {c}, {vr(PB+(te*2+sp)*4,4)}, {vr(PB+(tc*2+sp)*4,4)}, {c if sp else 0}")
    A = E[1]
    A("s_nop 0")
    A(f"v_cndmask_b32 v{KA+28}, v{KA+28}, v{KA+32}, s[64:65]")
    A(f"v_cndmask_b32 v{KA+28}, v{KA+28}, v{KA+36}, s[66:67]")
    A(f"ds_write_b32 v{vEZ}, v{KA+28} offset:7168")
    for i in range(7): A(f"ds_write_b128 v{vEW}, {vr(KA+4*i,4)} offset:{1024*i}")
    A = E[2]
    for k in range(4):
        A(f"ds_read_b128 {vr(PB+8*k,4)}, v{vER} offset:{1024*k}")
        A(f"ds_read_b128 {vr(PB+8*k+4,4)}, v{vER} offset:{1024*k + 16896}")
    A = E[3]
    A("s_waitcnt lgkmcnt(0)")
    for k in range(4):
        for i in (0, 2): A(f"v_pk_add_f32 {vr(PB+8*k+i,2)}, {vr(PB+8*k+i,2)}, {vr(PB+8*k+4+i,2)}")
    for k in range(4):
        A(f"buffer_store_dwordx4 {vr(PB+8*k,4)}, v{vKR+k}, s[{sWS}:{sWS+3}], s{sKVS} offen sc1")
    return [e.lines for e in E]

def w1_setup(A, locbase, vreg):
    A(f"s_sub_u32 s88, s82, {locbase}")
    A("s_lshl_b32 s88, s88, 2")
    A(f"s_add_u32 s88, s88, s{sWAVE}")
    A(f"v_and_b32 v{vreg}, 31, v1")
    A(f"v_mul_u32_u24 v{vreg}, 3072, v{vreg}")
    A("v_lshrrev_b32 v3, 5, v1")
    A(f"v_lshl_add_u32 v{vreg}, v3, 9, v{vreg}")
    A(f"s_mul_i32 s85, s88, {32*3072}")
    A("s_lshl_b32 s86, s83, 7")
    A("s_add_u32 s85, s85, s86")
    A(f"s_mul_i32 s86, s84, {1024*3072}")
    A("s_add_u32 s26, s86, s85")
    A("s_xor_b32 s87, s84, 1")
    A(f"s_mul_i32 s87, s87, {1024*3072}")
    A("s_add_u32 s27, s87, s85")

def w2_prefetch(A, locbase, parts):
    A(f"s_sub_u32 s85, s82, {locbase}")
    A("s_lshl_b32 s85, s85, 2")
    A(f"s_add_u32 s85, s85, s{sWAVE}")
    if OPT["fmap"] and OPT["w2c"] != 2:
        A("v_lshrrev_b32 v2, 2, v1")
        A("v_lshlrev_b32 v2, 12, v2")
        A("v_and_b32 v3, 3, v1")
        A(f"v_lshl_add_u32 v2, v3, {10 if OPT['fmap'] == 1 else 7}, v2")
        A(f"s_mul_i32 s85, s85, {48*4096}")
        A(f"s_lshl_b32 s86, s81, {7 if OPT['fmap'] == 1 else 9}")
        A("s_add_u32 s85, s85, s86")
        if parts[0]: A(f"s_add_u32 s85, s85, {16*4096*parts[0]}")
        for i in parts:
            A(f"buffer_load_dword a255, v2, s[{sW2}:{sW2+3}], s85 offen")
            if i != parts[-1]: A(f"s_add_u32 s85, s85, {16*4096}")
        return
    if OPT["w2c"]:
        A("s_lshl_b32 s86, s81, 5")
        A("s_add_u32 s85, s85, s86")
        A("s_lshl_b32 s85, s85, 13")
        if parts[0]: A(f"s_add_u32 s85, s85, {(8192*256)*parts[0]}")
        for i in parts:
            A(f"buffer_load_dword a255, v15, s[{sW2}:{sW2+3}], s85 offen")
            if i != parts[-1]: A(f"s_add_u32 s85, s85, {8192*256}")
        return
    A("v_lshrrev_b32 v2, 3, v1")
    A("v_lshlrev_b32 v2, 12, v2")
    A("v_and_b32 v3, 7, v1")
    A("v_lshl_add_u32 v2, v3, 7, v2")
    A("s_mul_i32 s85, s85, 24")
    A("s_mul_i32 s86, s84, 768")
    A("s_add_u32 s85, s85, s86")
    A(f"s_add_u32 s85, s85, {8*parts[0]}")
    A("s_lshl_b32 s85, s85, 12")
    A("s_lshl_b32 s86, s83, 10")
    A("s_add_u32 s85, s85, s86")
    for i in parts:
        A(f"buffer_load_dword a255, v2, s[{sW2}:{sW2+3}], s85 offen")
        if i != parts[-1]: A(f"s_add_u32 s85, s85, {8*4096}")

QCB = [0, 16, 32, 40, 56]
QDP = [(0,0),(0,1),(1,0),(1,1),(1,2),(2,1),(2,2),(2,4),(3,3),(3,4),(4,2),(4,3),(4,4)]
sMA, sZO, sKO, sPQ, sWOo, sGo = 56, 58, 59, 64, 67, 23
vWOd, vWOt, vZA, vKP, vGo, vT1 = 248, 246, 252, 245, 25, 244
MSK = 194
def q_setup(A):
    T = 128
    A(f"s_mul_i32 s{sWOo}, s{sU}, {40*1280}")
    A(f"s_mul_i32 s86, s{sNR}, 320")
    A(f"s_add_u32 s{sWOo}, s{sWOo}, s86")
    A(f"s_lshl_b32 s86, s{sWAVE}, 8")
    for n in range(4):
        A(f"v_add_u32 v2, {64*n}, v1")
        A("v_add_u32 v2, s86, v2")
        A("v_mul_u32_u24 v3, 3277, v2")
        A("v_lshrrev_b32 v3, 16, v3")
        A("v_mul_u32_u24 v4, 20, v3")
        A("v_sub_u32 v4, v2, v4")
        A("v_mul_u32_u24 v3, 1280, v3")
        A(f"v_lshl_add_u32 v{vWOd+n}, v4, 4, v3")
        if n: A(f"v_subrev_u32 v{vWOd+n}, {1024*n}, v{vWOd+n}")
    A("v_and_b32 v3, 15, v1")
    A("v_lshrrev_b32 v4, 4, v1")
    A(f"v_lshlrev_b32 v{vGo}, 2, v3")
    A(f"s_lshl_b32 s86, s{sA}, 9")
    A(f"s_lshl_b32 s87, s{sWR_}, 8")
    A("s_add_u32 s86, s86, s87")
    A(f"s_add_u32 s{sGo}, s86, {WS_G:#x}")
    A("v_bfe_u32 v5, v1, 1, 2")
    A(f"s_lshl_b32 s85, s{sWAVE}, 2")
    A("v_add_lshl_u32 v5, v5, s85, 3")
    A("v_and_b32 v6, 1, v1")
    A(f"s_lshl_b32 s85, s{sBp}, 1")
    A("v_add3_u32 v5, v5, v6, s85")
    A(f"v_lshlrev_b32 v{vKP}, 7, v5")
    A("v_lshrrev_b32 v5, 2, v3")
    A("v_lshl_add_u32 v5, v4, 2, v5")
    A("v_and_b32 v6, 7, v5")
    A("v_mul_u32_u24 v6, 320, v6")
    A("v_mul_u32_u24 v5, 320, v5")
    A("v_and_b32 v7, 3, v1")
    A("v_lshlrev_b32 v7, 3, v7")
    A(f"s_lshl_b32 s86, s{sWAVE}, 5")
    A("v_add_u32 v7, s86, v7")
    A(f"v_add_u32 v{vWOt}, v6, v7")
    A(f"v_add_u32 v{vWOt+1}, v5, v7")
    A(f"s_lshr_b32 s86, s{sU}, 2")
    A("s_mul_i32 s86, s86, 5")
    A(f"s_bfe_u32 s87, s{sU}, 0x10001")
    A(f"s_and_b32 s88, s{sU}, 1")
    A("s_mul_i32 s89, s87, 3")
    A("s_add_u32 s89, s89, s88")
    A("s_add_u32 s89, s89, s86")
    A(f"s_mul_i32 s{sMA}, s89, 40960")
    A("s_add_u32 s86, s86, 2")
    A(f"s_mul_i32 s{sMA+1}, s86, 40960")
    A("s_lshl_b32 s87, s87, 3")
    A("s_lshl_b32 s88, s88, 9")
    A(f"s_add_u32 s{sMA+1}, s{sMA+1}, s87")
    A(f"s_add_u32 s{sMA+1}, s{sMA+1}, s88")
    A(f"s_mul_i32 s86, s{sNR}, 10240")
    A(f"s_lshl_b32 s87, s{sWAVE}, 10")
    A("s_add_u32 s86, s86, s87")
    A(f"s_add_u32 s86, s86, {WS_M:#x}")
    A(f"s_add_u32 s{sMA}, s{sMA}, s86")
    A(f"s_add_u32 s{sMA+1}, s{sMA+1}, s86")
    A(f"s_lshl_b32 s85, s{sA}, 1")
    A(f"s_add_u32 s85, s85, s{sWR_}")
    A("s_mul_i32 s85, s85, 20")
    A(f"s_mul_i32 s86, s{sBp}, 5")
    A("s_add_u32 s85, s85, s86")
    A("s_lshl_b32 s85, s85, 12")
    A(f"s_add_u32 s85, s85, {WS_PQ:#x}")
    A(f"s_mul_i32 s86, s{sWC_}, {3*4096}")
    A(f"s_add_u32 s{sPQ}, s86, s85")
    A(f"s_add_u32 s{sPQ+1}, s{sPQ}, 4096")
    A(f"s_lshl_b32 s88, s{sWC_}, 3")
    A("s_add_u32 s88, s88, s85")
    A(f"s_add_u32 s{sPQ+2}, s88, 8192")
    A(f"v_add_u32 v5, s{sWAVE}, v1")
    A(f"s_mul_i32 s85, s{sWAVE}, 9")
    A("v_add_u32 v5, s85, v5")
    A("v_lshrrev_b32 v6, 2, v5")
    A("v_and_b32 v5, 3, v5")
    A("v_lshlrev_b32 v5, 7, v5")
    A("v_lshl_add_u32 v5, v6, 10, v5")
    A(f"s_sub_u32 s85, s{sMA+1}, s87")
    A("s_and_b32 s85, s85, 0xffffff80")
    A("v_add_u32 v5, s85, v5")
    A(f"s_and_b32 s85, s{sPQ+2}, 0xffffff80")
    A(f"s_lshl_b32 s86, s{sWC_}, 11")
    A("s_add_u32 s85, s85, s86")
    A("v_lshlrev_b32 v6, 7, v3")
    A("v_add_u32 v6, s85, v6")
    A("v_cmp_gt_u32 vcc, 10, v1")
    A("s_nop 1")
    A(f"v_cndmask_b32 v{vT1}, v6, v5, vcc")
    A(f"v_mov_b32 v{T}, {LDS_RED + 1600}")
    for i in range(7):
        kv_rank(A, 26+i, i, 3, LDS_RED)
        A(f"s_mov_b32 s92, s85")
        A(f"s_mov_b32 s93, s86")
        A(f"v_cndmask_b32 v{26+i}, v{T}, v{26+i}, s[92:93]")
    cb = QCB
    for t in range(5):
        A(f"v_lshl_add_u32 v{T+t}, v4, 2, {cb[t]}")
        A(f"v_add_u32 v{T+5+t}, {cb[t]}, v3")
        if t == 2:
            A("v_lshrrev_b32 v5, 1, v4")
            A(f"v_lshl_add_u32 v{T+t}, v5, 5, v{T+t}")
            A("v_mul_u32_u24 v7, 4064, v5")
            A("v_lshrrev_b32 v5, 3, v3")
            A(f"v_lshl_add_u32 v{T+5+t}, v5, 5, v{T+5+t}")
        A(f"v_mul_u32_u24 v{T+t}, 205, v{T+t}")
        A(f"v_lshrrev_b32 v{T+t}, 12, v{T+t}")
        A(f"v_mul_u32_u24 v{T+5+t}, 205, v{T+5+t}")
        A(f"v_lshrrev_b32 v{T+5+t}, 12, v{T+5+t}")
    for k, (tp, t) in enumerate(QDP):
        A(f"v_cmp_eq_u32 vcc, v{T+t}, v{T+5+tp}")
        A("s_nop 1")
        A(f"v_cndmask_b32 v{MSK+k}, 0, -1, vcc")
    A("v_lshlrev_b32 v5, 8, v3")
    A(f"v_lshl_add_u32 v{vZA}, v4, 4, v5")
    A(f"v_add_u32 v{vZA+2}, v7, v{vZA}")
    A(f"v_add_u32 v{vZA+1}, 4096, v{vZA}")
    A(f"s_lshl_b32 s86, s{sBp}, 14")
    A(f"s_lshl_b32 s87, s{sWC_}, 13")
    A("s_add_u32 s86, s86, s87")
    A(f"s_add_u32 s{sZO}, s86, {WS_ZP:#x}")
    A(f"s_mul_i32 s89, s{sU}, {16*3200}")
    A(f"s_mul_i32 s87, s{sWAVE}, 800")
    A("s_add_u32 s87, s87, s89")
    A(f"s_add_u32 s{sKO}, s87, {WS_KVP:#x}")
    if OPT["qw2"]:
        A("s_sub_u32 s85, s82, 16")
        A("s_lshl_b32 s85, s85, 2")
        A(f"s_add_u32 s85, s85, s{sWAVE}")
        A("s_lshl_b32 s86, s81, 5")
        A("s_add_u32 s85, s85, s86")
        A("s_lshl_b32 s85, s85, 13")
        A(f"s_add_u32 s99, s85, {8192*256*(3 - OPT['qw2'])}")
def q_pf_only(A):
    for k in range(3 - OPT["qw1n"], 3):
        A(f"buffer_load_dword a255, v12, s[{sW1}:{sW1+3}], s26 offen offset:{1024*k}")
def q_loop_pf(A):
    if OPT["qw1"] == 0:
        A("s_mov_b32 exec_lo, 0xffff03ff")
        A("s_mov_b32 exec_hi, 0")
        A(f"buffer_load_dword a255, v{vT1}, s[{sWS}:{sWS+3}], 0 offen sc1")
        A("s_mov_b64 exec, -1")
        return
    for k in range(3 - OPT["qw1n"], 3):
        A(f"buffer_load_dword a255, v12, s[{sW1}:{sW1+3}], s26 offen offset:{1024*k}")
    if OPT["qw1b"]:
        for k in range(3): A(f"buffer_load_dword a255, v12, s[{sW1}:{sW1+3}], s27 offen offset:{1024*k}")
    for k in range(OPT["qw2"]):
        A(f"buffer_load_dword a255, v15, s[{sW2}:{sW2+3}], s99 offen")
        A(f"s_add_u32 s99, s99, {8192*256}")
    if OPT["touch"] and not OPT["qdefer"]:
        A("s_mov_b32 exec_lo, 0xffff03ff")
        A("s_mov_b32 exec_hi, 0")
        A(f"buffer_load_dword a255, v{vT1}, s[{sWS}:{sWS+3}], 0 offen sc1")
        A("s_mov_b64 exec, -1")
def q_extras():
    g8 = [[poll_ld(vPO, 24)], [f"s_lshl_b32 m0, s{sWAVE}, 12"]] + [[f"buffer_load_dwordx4 v{vWOd+n}, s[{sWO}:{sWO+3}], s{sWOo} offen offset:{1024*n} lds"] for n in range(4)]
    g9 = [[f"buffer_load_dword v{8+st}, v{vGo}, s[{sWS}:{sWS+3}], s{sGo} offen offset:{64*st} sc1"] for st in range(4)]
    return {8: (g8, 9), 9: (g9, 0)}

def q_epilogue(A):
    PK, Z, AF, ZP, G = 128, 168, 168, 16, 8
    KA_, DEN, OUT, TMP = 48, 204+0, 224, 112
    WBa, KVa = 0, 20
    cb, dp = QCB, QDP
    A(f"s_mov_b32 s24, {FL_KV:#x}")
    for i in range(3):
        A(f"ds_read_b64_tr_b16 {ar(WBa+6*i,2)}, v{vWOt} offset:{128*i}")
        A(f"ds_read_b64_tr_b16 {ar(WBa+6*i+2,2)}, v{vWOt+1} offset:{128*i + 8*320}")
        A(f"ds_read_b64_tr_b16 {ar(WBa+6*i+4,2)}, v{vWOt+1} offset:{128*i + 24*320}")
    A(f"v_mov_b32 v2, {LDS_RED + 1600}")
    A("v_mov_b64 v[4:5], 0")
    A("ds_write_b64 v2, v[4:5]")
    A(f"s_mov_b32 s{sL2}, {LOG2E:#x}")
    A(f"s_mov_b32 s{sL2+1}, {LOG2E:#x}")
    B = Asm()
    for k, b in enumerate(range(ACC, ACC+80, 4)):
        if k == 12: B(poll_ld(vKP, 24))
        phi4(B, b, 208)
        B(f"v_cvt_pk_bf16_f32 v{PK+2*k}, v{b}, v{b+1}")
        B(f"v_cvt_pk_bf16_f32 v{PK+2*k+1}, v{b+2}, v{b+3}")
    k = 0
    if OPT["kweave"]:
        keep = OPT["mo"]; OPT["mo"] = 1; fm = qkv_mfmas(FB_, True); OPT["mo"] = keep
        fill = [[] for _ in range(20)]
        for g in range(9, 20):
            fill[g] = B.lines[k:k+2]; k += 2
        weave(A, fm, fill)
    for x in B.lines[k:]: A(x)
    stamp(A, "q_pre")
    A("s_waitcnt vmcnt(0) lgkmcnt(0)")
    poll_check(A, "pkv", vKP, 24)
    A("s_barrier")
    stamp(A, "q_kvok")
    for t in range(5):
        A(f"buffer_load_dwordx4 {vr(Z+4*t,4)}, v{vZA+[0,0,2,1,1][t]}, s[{sWS}:{sWS+3}], s{sZO} offen offset:{[0,64,128,0,64][t]} sc1")
    kvl = []
    for rb in range(0, 16, 2):
        kvl.append(["s_mov_b32 exec_hi, 0x3ffff",
                    f"buffer_load_dwordx4 {vr(KA_+4*rb,4)}, v{vB0}, s[{sWS}:{sWS+3}], s{sKO} offen sc1",
                    f"buffer_load_dwordx4 {vr(KA_+4*rb+4,4)}, v{vB0}, s[{sWS}:{sWS+3}], s{sKO} offen offset:3200 sc1",
                    "s_mov_b32 exec_hi, -1", f"s_add_u32 s{sKO}, s{sKO}, 6400"])
    def kv(n):
        for _ in range(n):
            if kvl:
                for x in kvl.pop(0): A(x)
    kv(2)
    A("s_waitcnt vmcnt(4)")
    stamp(A, "q_z")
    for rot in (8, 4, 2, 1):
        kv(1)
        for i in range(20):
            A(f"v_add_f32_dpp v{Z+i}, v{Z+i}, v{Z+i} row_ror:{rot} row_mask:0xf bank_mask:0xf")
    for i in range(10): A(f"v_cvt_pk_bf16_f32 v{ZP+i}, v{Z+2*i}, v{Z+2*i+1}")
    kv(2)
    for k, (tp, t) in enumerate(dp):
        A(f"v_and_b32 v{AF+2*k}, v{MSK+k}, v{ZP+2*t}")
        A(f"v_and_b32 v{AF+2*k+1}, v{MSK+k}, v{ZP+2*t+1}")
    A("s_nop 0")
    DEN2 = 224
    def den(st, Dn):
        seen = set()
        for k, (tp, t) in enumerate(dp):
            c = vr(Dn + 4*tp, 4)
            A(f"v_mfma_f32_16x16x16_bf16 {c}, {vr(AF+2*k,2)}, {vr(PK+(st*5+t)*2,2)}, {c if tp in seen else 0}")
            seen.add(tp)
    den(0, DEN)
    for st in range(4):
        Dn = DEN if (st & 1) == 0 else DEN2
        o = OUT
        U = TMP + 10
        if st < 3: den(st + 1, DEN2 if (st & 1) == 0 else DEN)
        else: A("s_nop 7")
        kv(OPT["kvr"])
        for tp in range(5): A(f"v_add_f32 v{TMP+2*tp}, {EPS6:#x}, v{Dn+4*tp}")
        for tp in range(5): A(f"v_rcp_f32 v{TMP+2*tp}, v{TMP+2*tp}")
        A("s_nop 0")
        for tp in range(5): A(f"v_mul_f32 v{TMP+2*tp}, v{TMP+2*tp}, v{G+st}")
        for tp in range(5):
            p = PK + (st*5+tp)*2
            if tp == 2: kv(OPT["kvr"])
            A(f"v_lshlrev_b32 v{U}, 16, v{p}")
            A(f"v_and_b32 v{U+1}, 0xffff0000, v{p}")
            A(f"v_lshlrev_b32 v{U+2}, 16, v{p+1}")
            A(f"v_and_b32 v{U+3}, 0xffff0000, v{p+1}")
            A(f"v_pk_mul_f32 {vr(U,2)}, {vr(U,2)}, {vr(TMP+2*tp,2)} op_sel_hi:[1,0]")
            A(f"v_pk_mul_f32 {vr(U+2,2)}, {vr(U+2,2)}, {vr(TMP+2*tp,2)} op_sel_hi:[1,0]")
            A(f"v_cvt_pk_bf16_f32 v{p}, v{U}, v{U+1}")
            A(f"v_cvt_pk_bf16_f32 v{p+1}, v{U+2}, v{U+3}")
        p = PK + st*10
        A(f"buffer_store_dwordx4 {vr(p,4)}, v{vB0}, s[{sWS}:{sWS+3}], s{sPQ} offen offset:{1024*st} sc1")
        A(f"buffer_store_dwordx4 {vr(p+6,4)}, v{vB0}, s[{sWS}:{sWS+3}], s{sPQ+1} offen offset:{1024*st} sc1")
        A(f"buffer_store_dwordx2 {vr(p+4,2)}, v{vB0}, s[{sWS}:{sWS+3}], s{sPQ+2} offen offset:{1024*st} sc1")
    assert not kvl
    stamp(A, "q_pq")
    A("s_waitcnt vmcnt(12)")
    stamp(A, "q_kv")
    for w in (32, 16, 8, 4):
        for i in range(0, w, 2):
            A(f"v_pk_add_f32 {vr(KA_+i,2)}, {vr(KA_+i,2)}, {vr(KA_+w+i,2)}")
    A(f"s_mul_i32 s86, s{sWAVE}, 400")
    A(f"s_add_u32 s86, s86, {LDS_RED}")
    A("v_lshlrev_b32 v7, 3, v1")
    A("v_add_u32 v7, s86, v7")
    A(f"v_cvt_pk_bf16_f32 v{KA_}, v{KA_}, v{KA_+1}")
    A(f"v_cvt_pk_bf16_f32 v{KA_+1}, v{KA_+2}, v{KA_+3}")
    A("s_mov_b32 exec_hi, 0x3ffff")
    A(f"ds_write_b64 v7, {vr(KA_,2)}")
    A("s_mov_b32 exec_hi, -1")
    A("s_waitcnt lgkmcnt(0)")
    A("s_barrier")
    stamp(A, "q_bar")
    for i in range(7): A(f"ds_read_b64 {ar(KVa+2*i,2)}, v{26+i}")
    A("s_waitcnt lgkmcnt(0)")
    MD = 64
    for i in range(3):
        seen = set()
        for k, (te, tc) in enumerate(PAIRS):
            c = vr(MD + (i*3+tc)*4, 4)
            A(f"v_mfma_f32_16x16x16_bf16 {c}, {ar(KVa+2*k,2)}, {ar(WBa+6*i+2*(te-2),2)}, {c if tc in seen else 0}")
            seen.add(tc)
    for i in range(3):
        if i == 2:
            A(f"s_cmp_ge_u32 s{sWAVE}, 2")
            A("s_cbranch_scc1 q_m_done")
            A("s_nop 2")
        b = MD + i*12
        for k in range(6): A(f"v_cvt_pk_bf16_f32 v{b+k}, v{b+2*k}, v{b+2*k+1}")
        A(f"buffer_store_dwordx4 {vr(b,4)}, v{vB0}, s[{sWS}:{sWS+3}], s{sMA} offen sc1")
        A("s_mov_b32 exec_hi, 0")
        A(f"buffer_store_dwordx2 {vr(b+4,2)}, v{vB0}, s[{sWS}:{sWS+3}], s{sMA+1} offen sc1")
        A("s_mov_b32 exec_hi, -1")
        A(f"s_add_u32 s{sMA}, s{sMA}, 4096")
        A(f"s_add_u32 s{sMA+1}, s{sMA+1}, 4096")
    A.label("q_m_done")
    stamp(A, "q_mdone")

def tlb_touch(A):
    for ptr, size in ((26, WS_SIZE), (22, 2048*1280), (16, 1536*4096), (12, 2048*3072), (8, 640*1280), (14, 4), (18, 4)):
        A(f"s_mov_b64 s[86:87], s[{ptr}:{ptr+1}]")
        offs = sorted(set(list(range(0, size, 1 << 21)) + [size - 4]))
        prev = 0
        for o in offs:
            if o - prev >= (1 << 20):
                A(f"s_add_u32 s86, s86, {o - prev:#x}")
                A("s_addc_u32 s87, s87, 0")
                prev = o
            A(f"s_load_dword s98, s[86:87], {o - prev:#x}")
def ln_role(A, after_loads, ne):
    X, GW, D = 48, 88, 128
    A("v_lshrrev_b32 v2, 3, v1")
    A(f"s_lshl_b32 s85, s{sWAVE}, 3")
    A("v_add_u32 v2, s85, v2")
    A("v_and_b32 v3, 7, v1")
    A("v_lshlrev_b32 v3, 4, v3")
    A("v_mul_u32_u24 v4, 1280, v2")
    A("v_add_u32 v4, v4, v3")
    A(f"s_mul_i32 s85, s{sA}, {32*1280}")
    A("s_waitcnt lgkmcnt(0)"); srds(A, ["X", "GW"])
    LN_TLB = True
    for i in range(10):
        A(f"buffer_load_dwordx4 {vr(X+4*i,4)}, v4, s[{sX}:{sX+3}], s85 offen offset:{128*i}")
    for i in range(10):
        A(f"buffer_load_dwordx4 {vr(GW+4*i,4)}, v3, s[{sGW}:{sGW+3}], 0 offen offset:{128*i}")
    A("v_mul_u32_u24 v16, 1312, v2")
    A("v_add_u32 v16, v16, v3")
    A("v_lshlrev_b32 v17, 2, v2")
    if OPT["tlb"] == 1: tlb_touch(A)
    after_loads(A)
    A("v_mov_b32 v5, 0x3f803f80")
    for i in range(4): A(f"v_mov_b32 v{8+i}, 0")
    A(f"s_waitcnt vmcnt({10+ne})")
    stamp(A, "ln_first")
    for i in range(40):
        A(f"v_dot2_f32_bf16 v{8+(i&1)}, v{X+i}, v5, v{8+(i&1)}")
    A(f"s_waitcnt vmcnt({ne})")
    for i in range(40):
        A(f"v_dot2_f32_bf16 v{10+(i&1)}, v{X+i}, v{GW+i}, v{10+(i&1)}")
    A("s_nop 2")
    A("v_add_f32 v8, v8, v9")
    A("v_add_f32 v10, v10, v11")
    def red8(r):
        for m in ("quad_perm:[1,0,3,2]", "quad_perm:[2,3,0,1]", "row_half_mirror"):
            A("s_nop 1")
            for x in r: A(f"v_add_f32_dpp v{x}, v{x}, v{x} {m} row_mask:0xf bank_mask:0xf")
    red8([8, 10])
    A(f"v_mul_f32 v8, {0xBACCCCCD:#x}, v8")
    A("v_mov_b32 v9, v8")
    A(f"v_mul_f32 v10, {LOG2E | 0x80000000:#x}, v10")
    A("v_exp_f32 v10, v10")
    for i in range(40):
        A(f"v_lshlrev_b32 v{D+2*i}, 16, v{X+i}")
        A(f"v_and_b32 v{D+2*i+1}, 0xffff0000, v{X+i}")
    A("v_add_f32 v10, 1.0, v10")
    A("v_rcp_f32 v10, v10")
    for i in range(40):
        A(f"v_pk_add_f32 {vr(D+2*i,2)}, {vr(D+2*i,2)}, v[8:9]")
    A("v_pk_mul_f32 v[18:19], v[128:129], v[128:129]")
    A("v_pk_mul_f32 v[20:21], v[130:131], v[130:131]")
    for i in range(2, 40):
        a = 18 + 2*(i & 1)
        A(f"v_pk_fma_f32 {vr(a,2)}, {vr(D+2*i,2)}, {vr(D+2*i,2)}, {vr(a,2)}")
    A("v_pk_add_f32 v[18:19], v[18:19], v[20:21]")
    A("ds_write_b32 v17, v10 offset:49152")
    A("v_add_f32 v18, v18, v19")
    red8([18])
    A(f"v_mov_b32 v19, {0x3727C5AC:#x}")
    A(f"v_fmac_f32 v19, {0x3ACCCCCD:#x}, v18")
    A("v_rsq_f32 v18, v19")
    A("s_nop 0")
    A("v_mov_b32 v19, v18")
    for i in range(40):
        A(f"v_pk_mul_f32 {vr(D+2*i,2)}, {vr(D+2*i,2)}, v[18:19]")
        A(f"v_cvt_pk_bf16_f32 v{X+i}, v{D+2*i}, v{D+2*i+1}")
        if (i & 3) == 3:
            A(f"ds_write_b128 v16, {vr(X+i-3,4)} offset:{128*(i//4)}")
    A("v_lshrrev_b32 v2, 2, v1")
    A("v_mul_u32_u24 v2, 1312, v2")
    A("v_and_b32 v3, 3, v1")
    A("v_lshl_add_u32 v2, v3, 3, v2")
    A(f"s_mul_i32 s85, s{sWAVE}, 320")
    A("v_add_u32 v2, s85, v2")
    A(f"s_mul_i32 s85, s{sA}, 40960")
    A(f"s_mul_i32 s86, s{sWAVE}, 10240")
    A("s_add_u32 s85, s85, s86")
    A("s_add_u32 s86, s85, 4096")
    A("s_add_u32 s87, s85, 8192")
    A("v_lshlrev_b32 v17, 2, v1")
    A(f"s_lshl_b32 s88, s{sA}, 7")
    A(f"s_add_u32 s88, s88, {WS_G:#x}")
    A("s_waitcnt lgkmcnt(0)")
    A("s_barrier")
    A(f"s_cmp_lg_u32 s{sWAVE}, 3")
    A("s_cbranch_scc1 ln_ng")
    A("ds_read_b32 v10, v17 offset:49152")
    A("s_waitcnt lgkmcnt(0)")
    A("s_mov_b32 exec_hi, 0")
    A(f"buffer_store_dword v10, v17, s[{sWS}:{sWS+3}], s88 offen sc1")
    A("s_mov_b32 exec_hi, -1")
    A.label("ln_ng")
    for t in range(10):
        A(f"ds_read_b64_tr_b16 {vr(D+4*t,2)}, v2 offset:{32*t}")
        A(f"ds_read_b64_tr_b16 {vr(D+4*t+2,2)}, v2 offset:{32*t + 16*1312}")
        if t == 6: A("s_waitcnt lgkmcnt(6)")
    for t in range(10):
        A(f"s_waitcnt lgkmcnt({min(2*(9-t), 6)})")
        A(f"buffer_store_dwordx4 {vr(D+4*t,4)}, v{vB0}, s[{sWS}:{sWS+3}], s{85 + t//4} offen offset:{1024*(t&3)} sc1")

def c_adv1(): return [f"s_add_u32 s{sC1}, s{sC1}, s{sCST}", f"s_cmp_eq_u32 s{sC1}, s{sCE1}", f"s_cselect_b32 s{sC1}, s{sCB1}, s{sC1}"]
def c_adv2(): return [f"s_add_u32 s{sC2}, s{sC2}, 40960", f"s_cmp_eq_u32 s{sC2}, s{sCE2}", f"s_cselect_b32 s{sC2}, s{sCB2}, s{sC2}"]
def c_wdma(slot):
    L = [[f"s_add_u32 m0, s{sCM0}, {4096*slot}"]]
    for q in range(4):
        L.append([f"buffer_load_dwordx4 v{vWS_+q}, s[{sCW}:{sCW+3}], s{sC1} offen offset:{1024*q} lds"])
    return L
def c_bload(slot, n):
    return f"buffer_load_dwordx4 {ar(BR+20*slot+4*n,4)}, v{vB0 if n < 4 else vB1}, s[{sWS}:{sWS+3}], s{sC2} offen offset:{1024*(n&3)} sc1"
def c_tr(slot, aset):
    return [f"ds_read_b64_tr_b16 {ar(AS+16*aset+4*t+2*j,2)}, v{vTR+t} offset:{4096*slot+2048*j}" for t in range(4) for j in range(2)]
def c_wring(A):
    for s in range(OPT["d"]):
        emit_dma_block(A, c_wdma(s))
        for x in c_adv1(): A(x)
def c_bring(A):
    for s in range(OPT["d"]):
        for n in range(5): A(c_bload(s, n))
        for x in c_adv2(): A(x)
def switch_to_fb(A):
    A(f"s_mov_b64 s[{sCW}:{sCW+1}], s[{sW2}:{sW2+1}]")
    A(f"s_mov_b64 s[{sCW+2}:{sCW+3}], s[{sW2+2}:{sW2+3}]")
    for i in range(4): A(f"v_mov_b32 v{vWS_+i}, v{vWS2+i}")
    A(f"s_mov_b32 s{sC1}, s{sF1}")
    A(f"s_mov_b32 s{sCB1}, s{sFB1}")
    A(f"s_mov_b32 s{sCE1}, s{sFE1}")
    A(f"s_mov_b32 s{sCST}, {32*4096}")

G1A = 112
def c_step(A, u, wait, doW, doB, doT, accf, w_is_A, drain=None, first=False, side=None, pre=[], late=None, wslot=None, trl=None):
    DD = OPT["d"]
    A(f"s_waitcnt vmcnt({wait}) lgkmcnt(0)")
    for x in pre: A(x)
    tr = c_tr((u+1) & 3, (u+1) & 1) if doT else (trl or [])
    mf = []
    order = [(n, t) for n in range(5) for t in range(4)]
    if OPT["mo"] & 2 and not drain: order = [(n, t) for t in range(4) for n in range(5)]
    if OPT["mo"] & 4 and not drain: order = [(n, t if n % 2 == 0 else 3 - t) for n in range(5) for t in range(4)]
    for n, t in order:
            w = ar(AS+16*(u & 1)+4*t, 4); b = ar(BR+20*u+4*n, 4); c = accf((t*5+n)*4)
            cin = "0" if first else c
            mf.append(f"v_mfma_f32_16x16x32_bf16 {c}, {w}, {b}, {cin}" if w_is_A else f"v_mfma_f32_16x16x32_bf16 {c}, {b}, {w}, {cin}")
    fill = [[] for _ in range(20)]
    sl = (u + DD) & 3
    wd = c_wdma(sl if wslot is None else wslot)
    post = []
    if doW:
        A(wd[0][0])
        for t in range(4): fill[t] += wd[1+t]
        fill[5 if drain else 12] += c_adv1()
    for k, x in enumerate(tr): fill[4+k].append(x)
    if doB:
        for n in range(5): fill[4*n+3].append(c_bload(sl, n))
        fill[19] += c_adv2()
    if side:
        per = -(-len(side) // 20)
        for g in range(20): fill[g] = side[g*per:(g+1)*per] + fill[g]
    if late:
        fill[13] += late[:9]
        post += late[9:]
    if drain:
        for n in range(3):
            for t in range(4): fill[4*(n+2)+t] += drain(n, t)
        post += ["s_nop 3"] + flat([drain(3, t) for t in range(4)]) + flat([drain(4, t) for t in range(4)])
    weave(A, mf, fill)
    for x in post: A(x)

AS3 = 192
def c_merged(A, u, wait, doW, accf, w_is_A, drain, wslots=None):
    A(f"s_waitcnt vmcnt({wait}) lgkmcnt(0)")
    mf = []
    for n in range(5):
        for k, aset in ((u, AS + 16*(u & 1)), (u + 1, AS3)):
            for t in range(4):
                w = ar(aset+4*t, 4); b = ar(BR+20*(k & 3)+4*n, 4); c = accf((t*5+n)*4)
                mf.append(f"v_mfma_f32_16x16x32_bf16 {c}, {w}, {b}, {c}" if w_is_A else f"v_mfma_f32_16x16x32_bf16 {c}, {b}, {w}, {c}")
    fill = [[] for _ in range(40)]
    if doW:
        for j, sl in enumerate(wslots):
            wd = c_wdma(sl)
            fill[6*j] += wd[0]
            for t in range(4): fill[6*j+1+t] += wd[1+t]
            fill[6*j+5] += c_adv1()
    for n in range(4):
        for t in range(4):
            g = 8*(n+1) + 4 + 2*t
            if g + (0) < 40: fill[g] += drain(n, t)
            else: fill[39] += drain(n, t)
    weave(A, mf, fill)
    for x in ["s_nop 3"] + flat([drain(4, t) for t in range(4)]): A(x)
def tr3(place):
    kind, sl = place
    base = vTR if kind == "r" else vTX
    return [f"ds_read_b64_tr_b16 {ar(AS3+4*t+2*j,2)}, v{base+t} offset:{4096*sl+2048*j}" for t in range(4) for j in range(2)]

def c_loop(A, pfx, nks, accf, w_is_A, isg1, drain):
    DD = OPT["d"]; W0 = 5 + 9*(DD-2)
    tail_next = isg1 and OPT["tailw"]
    A(f".p2align {OPT['lal']}")
    A.label(f"{pfx}_loop")
    if isg1 and OPT["lnmid"]:
        A(f"s_cmp_eq_u32 s{sCNT}, s{sPUB}")
        A("s_cbranch_scc1 g1_blk")
        A.label("g1_noblk")
    for u in range(4):
        c_step(A, u, W0, True, True, True, accf, w_is_A)
    if STAMPS:
        ng = nks//4 - 1
        i = _st["n"]; _st["n"] += ng; _st["names"] += [f"{pfx}_g{k}" for k in range(ng)]
        A("s_memtime s[100:101]")
        A("s_waitcnt lgkmcnt(0)")
        A(f"s_sub_u32 m0, {i + ng}, s{sCNT}")
        A("s_nop 0")
        A("v_writelane_b32 v47, s100, m0")
    A(f"s_sub_u32 s{sCNT}, s{sCNT}, 1")
    A(f"s_cmp_lg_u32 s{sCNT}, 0")
    A(f"s_cbranch_scc1 {pfx}_loop")
    seq = []
    for k in range(DD): seq += [("W", k)]*4 + [("B", k)]*5
    for u in range(4):
        need = max([i for i, (t, k) in enumerate(seq) if (t == "B" and k == u) or (t == "W" and k == u+1)])
        wait = len(seq) - 1 - need
        own = u < 4 - DD
        if isg1 and u == 4 - DD: switch_to_fb(A)
        nxt = tail_next and not own
        if OPT["merge"] and u == 1:
            nW = 4 if nxt else 0
            w3 = len(seq) + nW - 1 - max(i for i, (t, k) in enumerate(seq) if t == "W" and k == 3)
            c_step(A, u, wait, own or nxt, own, True, accf, w_is_A, late=[f"s_waitcnt vmcnt({w3})"] + tr3(("r", 3)))
        elif OPT["merge"] and u == 2:
            wait = len(seq) - 1 - max(i for i, (t, k) in enumerate(seq) if t == "B" and k == 3)
            c_merged(A, 2, wait, nxt, accf, w_is_A, drain, [(2+DD) & 3, (3+DD) & 3])
            break
        else:
            c_step(A, u, wait, own or nxt, own, u < 3, accf, w_is_A, drain if u == 3 else None)
        if own: seq += [("W", u+DD)]*4 + [("B", u+DD)]*5
        elif nxt: seq += [("N", 0)]*4
    stamp(A, pfx + "_loopdone")

sFA1, sFA2, sFR = 54, 55, 94
sUS = 52
vGE = 224
def fa_params(A):
    A(f"s_and_b32 s{sFR}, s{sFD}, 3")
    A(f"s_lshl_b32 s{sFR}, s{sFR}, 1")
    A(f"s_and_b32 s89, s{sFS}, 7")
    A(f"s_add_u32 s{sFR}, s{sFR}, s89")
    A(f"s_mul_i32 s89, s{sFR}, 52")
    A("s_lshr_b32 s89, s89, 8")
    A("s_mul_i32 s89, s89, 5")
    A(f"s_sub_u32 s{sFR}, s{sFR}, s89")
    if OPT["arot"] == 0: A(f"s_mov_b32 s{sFR}, 0")
    if OPT["arot"] == 2:
        A(f"s_add_u32 s{sFR}, s{sFS}, s{sFD}")
        A(f"s_and_b32 s{sFR}, s{sFR}, 1")
        A(f"s_mul_i32 s{sFR}, s{sFR}, 3")
    A(f"s_mul_i32 s86, s{sWAVE}, 5")
    A(f"s_add_u32 s86, s86, s{sFR}")
    A(f"s_mul_i32 s{sFA1}, s{sFS}, {0 if OPT.get('same') else 20}")
    A(f"s_add_u32 s{sFA1}, s{sFA1}, s86")
    A(f"s_lshl_b32 s{sFA1}, s{sFA1}, 12")
    A(f"s_add_u32 s{sFA1}, s{sFA1}, {WS_PQ:#x}")
    A(f"s_mul_i32 s{sFA2}, s86, 40960")
    A(f"s_mul_i32 s89, s{sFD}, {0 if OPT.get('same') else 5120}")
    A(f"s_add_u32 s{sFA2}, s{sFA2}, s89")
    A(f"s_add_u32 s{sFA2}, s{sFA2}, {WS_M:#x}")
fa_b = lambda i: 0 if i == 0 else 112 + 36*(i-1)
def fa_ld(A, i):
    for st in range(4):
        A(f"buffer_load_dwordx4 {ar(fa_b(i)+4*st,4)}, v{vB0}, s[{sWS}:{sWS+3}], s{sFA1} offen offset:{1024*st} sc1")
    for n in range(5):
        A(f"buffer_load_dwordx4 {ar(fa_b(i)+16+4*n,4)}, v{vB0 if n < 4 else vB1}, s[{sWS}:{sWS+3}], s{sFA2} offen offset:{1024*(n&3)} sc1")
    if i < 4:
        A(f"s_add_u32 s{sFA1}, s{sFA1}, 4096")
        A(f"s_add_u32 s{sFA2}, s{sFA2}, 40960")
        A(f"s_add_u32 s{sFR}, s{sFR}, 1")
        A(f"s_cmp_eq_u32 s{sFR}, 5")
        A(f"s_cselect_b32 s86, {5*4096}, 0")
        A(f"s_cselect_b32 s89, {5*40960}, 0")
        A(f"s_sub_u32 s{sFA1}, s{sFA1}, s86")
        A(f"s_sub_u32 s{sFA2}, s{sFA2}, s89")

def g1_params(A):
    W, Rr = vGE, vGE + 4
    A("v_and_b32 v2, 15, v1")
    A("v_lshrrev_b32 v3, 4, v1")
    A("v_xor_b32 v4, v2, v3")
    A("v_lshlrev_b32 v4, 4, v4")
    A("v_lshl_add_u32 v4, v2, 8, v4")
    A(f"s_mul_i32 s85, s{sWAVE}, 20480")
    A(f"s_add_u32 s85, s85, {LDS_RED}")
    A(f"v_add_u32 v{W}, s85, v4")
    for t in range(1, 4): A(f"v_xor_b32 v{W+t}, {64*t}, v{W}")
    A(f"s_and_b32 s85, s{sWAVE}, 1")
    A(f"s_lshr_b32 s86, s{sWAVE}, 1")
    A("s_lshl_b32 s87, s85, 7")
    A("v_xor_b32 v4, s87, v4")
    A("s_lshl_b32 s87, s86, 12")
    A(f"s_add_u32 s87, s87, {LDS_RED}")
    A(f"v_add_u32 v{Rr}, s87, v4")
    A(f"v_xor_b32 v{Rr+1}, 64, v{Rr}")
    A(f"v_add_u32 v{Rr+2}, 40960, v{Rr}")
    A(f"v_add_u32 v{Rr+3}, 40960, v{Rr+1}")
    A(f"s_lshl_b32 s87, s{sG1F}, 1")
    A("s_add_u32 s87, s87, s85")
    A("s_lshl_b32 s23, s87, 6")
    A("v_lshlrev_b32 v12, 3, v3")
    A("s_mul_i32 s87, s87, 40")
    A(f"s_mul_i32 s88, s{sG1D}, 5")
    A("s_add_u32 s87, s87, s88")
    A("s_add_u32 s87, s87, s86")
    A("s_lshl_b32 s87, s87, 10")
    A(f"s_add_u32 s{sUS}, s87, {WS_U:#x}")
    A(f"s_add_u32 s{sUS+1}, s{sUS}, 4096")
    A(f"s_mov_b32 s90, {0xBDD2D3E8:#x}")
    A(f"s_mov_b32 s91, {0xBDD2D3E8:#x}")
    A(f"v_mov_b32 v{vGE+8}, {0xC0135761:#x}")
    A(f"v_mov_b32 v{vGE+9}, {0xC0135761:#x}")
    fa_params(A)
def b1_loads():
    return [[f"buffer_load_dwordx2 {vr(vGE+18+2*j,2)}, v12, s[{sB1}:{sB1+3}], s23 offen offset:{32*j}"] for j in range(2)]
def zero_acc(A):
    for i in range(0, 80, 2): A(f"v_mov_b64 {vr(ACC+i,2)}, 0")

def g1_phase(A):
    c_loop(A, "g1", 16, lambda o: ar(G1A+o, 4), True, True, lambda n, t: [f"ds_write_b128 v{vGE+t}, {ar(G1A+(t*5+n)*4,4)} offset:{4096*n}"])
    for j in range(2):
        for k in range(2):
            A(f"v_lshlrev_b32 v{vGE+10+4*j+2*k}, 16, v{vGE+18+2*j+k}")
            A(f"v_and_b32 v{vGE+11+4*j+2*k}, 0xffff0000, v{vGE+18+2*j+k}")
    A("s_waitcnt lgkmcnt(0)")
    A("s_barrier")
    stamp(A, "g1_red")
    if OPT["lnpost"] == 2:
        A("s_cmp_lt_u32 s82, 24")
        A("s_cbranch_scc1 g1_nw2")
        w2_prefetch(A, 24, list(range(3 - OPT["lnpn"], 3)))
        A.label("g1_nw2")
    A0 = A
    R = 128
    def rd(r):
        for j in range(2):
            for part in range(4):
                A(f"ds_read_b128 {vr(R+32*r+16*j+4*part,4)}, v{vGE+4+j+2*(part>>1)} offset:{8192*r + 20480*(part&1)}")
    def fin(r):
        b = R + 32*r
        for j in range(2):
            x = b + 16*j
            for i in (0, 2):
                A(f"v_pk_add_f32 {vr(x+i,2)}, {vr(x+i,2)}, {vr(x+4+i,2)}")
                A(f"v_pk_add_f32 {vr(x+8+i,2)}, {vr(x+8+i,2)}, {vr(x+12+i,2)}")
        for j in range(2):
            x = b + 16*j
            for i in (0, 2): A(f"v_pk_add_f32 {vr(x+i,2)}, {vr(x+i,2)}, {vr(vGE+10+4*j+i,2)}")
        for j in range(2):
            x = b + 16*j
            for i in (0, 2): A(f"v_pk_add_f32 {vr(x+i,2)}, {vr(x+i,2)}, {vr(x+8+i,2)}")
        E = [b + 16*j + i for j in range(2) for i in range(4)]
        E2 = E[::2]
        for x in E2: A(f"v_pk_mul_f32 {vr(x+4,2)}, {vr(x,2)}, {vr(x,2)}")
        for x in E2: A(f"v_pk_fma_f32 {vr(x+4,2)}, {vr(x+4,2)}, s[90:91], {vr(vGE+8,2)}")
        for x in E2: A(f"v_pk_mul_f32 {vr(x+4,2)}, {vr(x+4,2)}, {vr(x,2)}")
        for x in E: A(f"v_exp_f32 v{x+4}, v{x+4}")
        for x in E2: A(f"v_pk_add_f32 {vr(x+4,2)}, {vr(x+4,2)}, 1.0 op_sel_hi:[1,0]")
        for x in E: A(f"v_rcp_f32 v{x+4}, v{x+4}")
        for x in E2: A(f"v_pk_mul_f32 {vr(x,2)}, {vr(x,2)}, {vr(x+4,2)}")
        for j in range(2):
            x = b + 16*j
            A(f"v_cvt_pk_bf16_f32 v{b+8+2*j}, v{x}, v{x+1}")
            A(f"v_cvt_pk_bf16_f32 v{b+9+2*j}, v{x+2}, v{x+3}")
        A(f"buffer_store_dwordx4 {vr(b+8,4)}, v{vB0}, s[{sWS}:{sWS+3}], s{sUS if r < 2 else sUS+1} offen offset:{2048*(r&1)} sc1")
    def mix(body, groups, lo=0):
        n = len(groups)
        pos = {}
        for k in range(n): pos.setdefault(lo + (k*(len(body) - lo - 2))//max(n, 1), []).append(groups[k])
        for i, x in enumerate(body):
            for g in pos.get(i, []):
                for y in g: A0(y)
            A0(x)
    G = []
    if OPT["xw"]:
        B = Asm(); xw_loads(B)
        for x in B.lines:
            if x.startswith("buffer_load") or not G: G.append([x])
            else: G[-1].append(x)
        G[1] = G[0] + G[1]; G = G[1:]
    n0 = (len(G)*OPT["xsp"])//10
    A = Asm()
    rd(0)
    A("s_waitcnt lgkmcnt(4)")
    rd(1)
    A("s_waitcnt lgkmcnt(8)")
    fin(0)
    mix(A.lines, G[:n0] + ([] if G[n0:] else [[poll_ld(15, 25)]]), 8)
    late = (G[n0:] + [[poll_ld(15, 25)]]) if G[n0:] else []
    k = 0 if late else 1
    A0(f"s_cmp_ge_u32 s{sWAVE}, 2")
    A0("s_cbranch_scc1 g1_e1")
    A = A0
    rd(2)
    A("s_waitcnt lgkmcnt(8)")
    A = Asm(); fin(1); mix(A.lines, late); A = A0
    A("s_waitcnt lgkmcnt(0)")
    fin(2)
    A(f"s_waitcnt vmcnt({2 + k})")
    A("s_branch g1_e2")
    A.label("g1_e1")
    A("s_waitcnt lgkmcnt(0)")
    A = Asm(); fin(1); mix(A.lines, late); A = A0
    A(f"s_waitcnt vmcnt({1 + k})")
    A.label("g1_e2")
    stamp(A, "g1_st")
    A(f"s_mov_b32 s{sQOK}, 0")
    A(f"v_cmp_ne_u32 vcc, s{sNON}, v{vPOLL}")
    A("s_cbranch_vccnz g1_q1")
    A(f"s_mov_b32 s{sQOK}, 1")
    fa_ld(A, 0)
    A("s_waitcnt vmcnt(9)")
    A("s_branch g1_q2")
    A.label("g1_q1")
    if OPT["tailw"]: A("s_waitcnt vmcnt(0)")
    else:
        c_wring(A)
        A(f"s_waitcnt vmcnt({4*OPT['d']})")
    A.label("g1_q2")
    A(f"s_mul_i32 s88, s{sG1D}, 24")
    A(f"s_add_u32 s88, s88, s{sG1F}")
    publish(A, "pub_u", FL_G1, 88, None)
    stamp(A, "g1_pub")
    for x in xw_writes(): A(x)
    if OPT["lnpost"] == 1:
        A("s_cmp_lt_u32 s82, 24")
        A("s_cbranch_scc1 g1_nw2")
        w2_prefetch(A, 24, list(range(3 - OPT["lnpn"], 3)))
        A.label("g1_nw2")
    if not OPT["tailw"]:
        A(f"s_cmp_eq_u32 s{sQOK}, 0")
        A("s_cbranch_scc1 g1_q3")
        c_wring(A)
        A("s_branch f_go")
        A.label("g1_q3")
    else:
        A(f"s_cmp_lg_u32 s{sQOK}, 0")
        A("s_cbranch_scc1 f_go")
    A(poll_ld(15, 25))
    A("s_waitcnt vmcnt(0)")
    poll_check(A, "pq", 15, 25)

def accb_init(st):
    return [f"v_lshlrev_b32 v{ACC+st*20}, 16, v{29+st}", f"v_lshlrev_b32 v{ACC+st*20+1}, 16, v{29+st}"] + \
           [f"v_mov_b64 {vr(ACC+st*20+k,2)}, {vr(ACC+st*20,2)}" for k in range(2, 20, 2)]
vTX = 246
def xw_setup():
    L = [f"s_mul_i32 s85, s{sWAVE}, {PS()}", f"s_add_u32 s85, s85, {LDS_RED}", f"v_add_u32 v{vTX+4}, s85, v{vB0}", f"s_sub_u32 s85, s85, s{sCM0}"]
    L += [f"v_add_u32 v{vTX+t}, s85, v{vTR+t}" for t in range(4)]
    return L
def xw_loads(A):
    emit_dma_block(A, c_wdma(3))
    for x in c_adv1(): A(x)
    for i in range(OPT["xw"]):
        for q in range(4):
            A(f"buffer_load_dwordx4 {vr(ACC+16*i+4*q,4)}, v{vWS_+q}, s[{sCW}:{sCW+3}], s{sC1} offen offset:{1024*q}")
        for x in c_adv1(): A(x)
def xw_writes():
    return [f"ds_write_b128 v{vTX+4}, {vr(ACC+16*i+4*q,4)} offset:{4096*i+1024*q}" for i in range(OPT["xw"]) for q in range(4)]
def xw_dma(A):
    emit_dma_block(A, c_wdma(3))
    for x in c_adv1(): A(x)
    A(f"s_mul_i32 s85, s{sWAVE}, {PS()}")
    A(f"s_add_u32 s85, s85, {LDS_RED}")
    for i in range(OPT["xw"]):
        A(f"s_add_u32 m0, s85, {4096*i}")
        A("s_nop 0")
        for q in range(4):
            A(f"buffer_load_dwordx4 v{vWS_+q}, s[{sCW}:{sCW+3}], s{sC1} offen offset:{1024*q} lds")
        for x in c_adv1(): A(x)
def f_setup1():
    B = Asm()
    B("v_and_b32 v5, 15, v1")
    B("v_lshlrev_b32 v6, 2, v5")
    B(f"s_lshl_b32 s23, s{sFS}, 8")
    B(f"s_add_u32 s23, s23, {WS_G:#x}")
    for st in range(4):
        B(f"buffer_load_dword v{8+st}, v6, s[{sWS}:{sWS+3}], s23 offen offset:{64*st} sc1")
    B("v_lshlrev_b32 v6, 1, v5")
    B(f"s_lshl_b32 s23, s{sFS}, 7")
    B(f"s_cmp_eq_u32 s{sWAVE}, 0")
    B("s_cselect_b32 s23, s23, 0x40000000")
    for st in range(4):
        B(f"buffer_load_ushort v{29+st}, v6, s[{sB2}:{sB2+3}], s23 offen offset:{32*st}")
    return B.lines
def f_setup2():
    B = Asm()
    for st in range(4):
        B(f"v_sub_f32 v{8+st}, 1.0, v{8+st}")
        if not OPT["xw"]:
            for x in accb_init(st): B(x)
    B("v_min_u32 v12, 23, v1")
    B("v_lshlrev_b32 v12, 7, v12")
    B(f"s_mul_i32 s23, s{sFD}, {24*128}")
    B(f"s_add_u32 s23, s23, {FL_G1:#x}")
    B("v_and_b32 v5, 15, v1")
    B("v_lshrrev_b32 v6, 4, v1")
    B(f"v_mul_u32_u24 v4, {RS()}, v5")
    if OPT["ox4"]:
        B("v_lshrrev_b32 v7, 1, v6")
        B("v_lshl_add_u32 v4, v7, 4, v4")
        B("v_and_b32 v6, 1, v6")
        B("v_mul_u32_u24 v6, 11264, v6")
        B("v_add_u32 v4, v4, v6")
    else:
        B("v_lshl_add_u32 v4, v6, 4, v4")
    B(f"s_mul_i32 s85, s{sWAVE}, {PS()}")
    B(f"s_add_u32 s85, s85, {LDS_RED}")
    B("v_add_u32 v4, s85, v4")
    B(f"s_mul_i32 s85, s{sWAVE}, {16*RS()}")
    B(f"s_add_u32 s85, s85, {LDS_RED}")
    B(f"s_lshl_b32 s95, s{sFS}, 2")
    B(f"s_add_u32 s95, s95, s{sWAVE}")
    B(f"s_mul_i32 s95, s95, {16*1280}")
    B(f"s_mul_i32 s87, s{sFD}, 160")
    B("s_add_u32 s95, s95, s87")
    if OPT["ox4"]:
        B("v_mul_u32_u24 v6, 205, v1")
        B("v_lshrrev_b32 v6, 11, v6")
        B("v_mul_u32_u24 v7, 10, v6")
        B("v_sub_u32 v7, v1, v7")
        B("v_min_u32 v6, 5, v6")
        B("v_mul_u32_u24 v16, 176, v6")
        B("v_lshl_add_u32 v16, v7, 4, v16")
        B("v_add_u32 v16, s85, v16")
        B("v_mul_u32_u24 v24, 1280, v6")
        B("v_lshl_add_u32 v24, v7, 4, v24")
    else:
        for r in range(5):
            B(f"v_add_u32 v5, {64*r}, v1")
            B("v_mul_u32_u24 v6, 3277, v5")
            B("v_lshrrev_b32 v6, 16, v6")
            B("v_mul_u32_u24 v7, 20, v6")
            B("v_sub_u32 v7, v5, v7")
            B(f"v_mul_u32_u24 v{16+r}, 336, v6")
            B(f"v_lshl_add_u32 v{16+r}, v7, 4, v{16+r}")
            B(f"v_add_u32 v{16+r}, s85, v{16+r}")
            B(f"v_mul_u32_u24 v{24+r}, 1280, v6")
            B(f"v_lshl_add_u32 v{24+r}, v7, 3, v{24+r}")
    if OPT["otouch"]:
        B("v_lshrrev_b32 v5, 1, v1")
        B("v_and_b32 v5, 15, v5")
        B("v_mul_u32_u24 v5, 1280, v5")
        B("v_and_b32 v6, 1, v1")
        B("v_mul_u32_u24 v6, 156, v6")
        B("v_add_u32 v5, v5, v6")
    if OPT["xw"]:
        for x in xw_setup(): B(x)
    return B.lines

def f_phase(A):
    ACA = 128
    A.label("f_entry")
    fa_ld(A, 0)
    A.label("f_go")
    fa_ld(A, 1)
    stamp(A, "f_qok")
    A(f"s_or_b32 s85, s2, s{sWAVE}")
    A("s_cmp_lg_u32 s85, 0")
    A("s_cbranch_scc1 f_nox")
    A(f"s_mov_b32 s85, {FL_X:#x}")
    flag_store(A, 85)
    A.label("f_nox")
    fb = fa_b
    def fam(i, side=[]):
        mf = []
        for n in range(5):
            for st in range(4):
                c = vr(ACA+(st*5+n)*4, 4)
                mf.append(f"v_mfma_f32_16x16x32_bf16 {c}, {ar(fb(i)+16+4*n,4)}, {ar(fb(i)+4*st,4)}, {c if i else 0}")
        fill = [[] for _ in range(20)]
        for k, g in enumerate(side): fill[(k*20)//len(side)] += g
        weave(A, mf, fill)
    def ldg(i):
        B = Asm(); fa_ld(B, i); g = [[x] for x in B.lines[:9]]; g[-1] += B.lines[9:]; return g
    D = OPT["d"]
    fa_ld(A, 2)
    A(f"s_mov_b32 s{sC2}, s{sF2}")
    A(f"s_mov_b32 s{sCB2}, s{sFB2}")
    A(f"s_mov_b32 s{sCE2}, s{sFE2}")
    stamp(A, "fa_i2")
    A("s_waitcnt vmcnt(18)")
    fam(0, ldg(3))
    stamp(A, "fa_m0")
    A("s_waitcnt vmcnt(18)")
    fam(1, [[poll_ld(12, 23)]] + ldg(4))
    stamp(A, "fa_m1")
    br = []
    for sl in range(D):
        br += [[c_bload(sl, n)] for n in range(5)]; br[-1] += c_adv2()
    ai = [[x] for x in flat([accb_init(st) for st in range(4)])] if OPT["xw"] else []
    if OPT["uearly"]:
        A("s_waitcnt vmcnt(9) lgkmcnt(0)")
        stamp(A, "fa_s3")
        poll_check(A, "pu", 12, 23)
        stamp(A, "f_uok")
        fam(2, br)
        stamp(A, "fa_m2")
        fam(3, ai)
    else:
        A("s_waitcnt vmcnt(19) lgkmcnt(0)")
        fam(2, ai)
        stamp(A, "fa_m2")
        A("s_waitcnt vmcnt(9)")
        stamp(A, "fa_s3")
        poll_check(A, "pu", 12, 23)
        stamp(A, "f_uok")
        fam(3, br)
    A(f"s_waitcnt vmcnt({5*D})")
    fam(4, [[]]*3 + [[x] for x in c_tr(0, 0)] + [[]]*5)
    A(f"s_waitcnt vmcnt({5 if D == 2 else 10})")
    stamp(A, "fb_first")
    def drain(n, st):
        b = (st*5+n)*4
        return [f"v_fma_f32 v{ACA+b+i}, v{ACC+b+i}, v{8+st}, v{ACA+b+i}" for i in range(4)] + [f"ds_write_b128 v4, {vr(ACA+b,4)} offset:{st*16*RS() + (32 if OPT['ox4'] else 64)*n}"]
    if OPT["xw"]:
        X = OPT["xw"]
        place = lambda k: ("r", k) if k < 4 else (("x", k-4) if k < 4 + X else ("r", (k - 4 - X) & 3))
        seq = [("B", 0)]*5 + [("B", 1)]*5 + [("B", 2)]*5
        for u in range(12):
            idx = [i for i, (t, k) in enumerate(seq) if (t == "B" and k == u) or (t == "W" and k == u+1)]
            wait = len(seq) - 1 - max(idx)
            kw = u + 3 + OPT["xwd"]; kb = u + 3
            doW = 4 + X <= kw < 12; doB = kb < 12
            nx = None
            if u < 11:
                kind, sl = place(u+1)
                base = vTR if kind == "r" else vTX
                nx = [f"ds_read_b64_tr_b16 {ar(AS+16*((u+1)&1)+4*t+2*j,2)}, v{base+t} offset:{4096*sl+2048*j}" for t in range(4) for j in range(2)]
            if OPT["merge"] and u == 10:
                wait = len(seq) - 1 - max(i for i, (t, k) in enumerate(seq) if t == "B" and k == 11)
                c_merged(A, 2, wait, False, lambda o: vr(ACC+o, 4), False, drain)
                break
            late = None
            if OPT["merge"] and u == 9:
                w3 = len(seq) - 1 - max(i for i, (t, k) in enumerate(seq) if t == "W" and k == 11)
                late = [f"s_waitcnt vmcnt({w3})"] + tr3(place(11))
            c_step(A, u & 3, min(wait, 63), doW, doB, False, lambda o: vr(ACC+o, 4), False, drain if u == 11 else None,
                   wslot=place(kw)[1] if doW else None, trl=nx, late=late)
            if doW: seq += [("W", kw)]*4
            if doB: seq += [("B", kb)]*5
            if u in (3, 7): stamp(A, f"fb_g{u//4}")
        stamp(A, "fb_loopdone")
    else:
        A(f"s_mov_b32 s{sCNT}, 2")
        c_loop(A, "fb", 12, lambda o: vr(ACC+o, 4), False, False, drain)
    A("s_waitcnt lgkmcnt(0)")
    A("s_barrier")
    stamp(A, "f_red")
    R = ACC
    OST = ["", " nt", " sc1", " sc0 sc1", " sc1 nt", " sc0 nt", " sc0 sc1 nt"][OPT["ost"]]
    if OPT["ox4"]:
        A("v_add_u32 v17, 45056, v16")
        def rd4(r):
            for h in range(2):
                for part in range(4):
                    A(f"ds_read_b128 {vr(R+32*r+16*h+4*part,4)}, v{16 + (part >> 1)} offset:{PS()*(part & 1) + 11264*h + 1056*r}")
        rd4(0)
        A("s_waitcnt lgkmcnt(4)")
        rd4(1)
        A("s_mov_b32 exec_hi, 0x0fffffff")
        for r in range(3):
            A(f"s_waitcnt lgkmcnt({8 if r < 2 else 0})")
            b = R + 32*(r & 1) if r < 2 else R + 64 - 64
            b = R + 32*r if r < 2 else R
            for h in range(2):
                x = b + 16*h
                for i in (0, 2):
                    A(f"v_pk_add_f32 {vr(x+i,2)}, {vr(x+i,2)}, {vr(x+4+i,2)}")
                    A(f"v_pk_add_f32 {vr(x+8+i,2)}, {vr(x+8+i,2)}, {vr(x+12+i,2)}")
            for h in range(2):
                x = b + 16*h
                for i in (0, 2): A(f"v_pk_add_f32 {vr(x+i,2)}, {vr(x+i,2)}, {vr(x+8+i,2)}")
            o = R + 64 + 4*r
            for h in range(2):
                A(f"v_cvt_pk_bf16_f32 v{o+2*h}, v{b+16*h}, v{b+16*h+1}")
                A(f"v_cvt_pk_bf16_f32 v{o+2*h+1}, v{b+16*h+2}, v{b+16*h+3}")
            if r == 0:
                for h in range(2):
                    for part in range(4):
                        A(f"ds_read_b128 {vr(R+16*h+4*part,4)}, v{16 + (part >> 1)} offset:{PS()*(part & 1) + 11264*h + 1056*2}")
            if r == 2: A("s_mov_b32 exec_hi, 0xff")
            A(f"buffer_store_dwordx4 {vr(o,4)}, v24, s[{sOUT}:{sOUT+3}], s95 offen" + OST)
            if r < 2: A(f"s_add_u32 s95, s95, {6*1280}")
        A("s_mov_b32 exec_hi, -1")
        return
    def rd(r):
        for part in range(4):
            A(f"ds_read_b128 {vr(R+16*r+4*part,4)}, v{16+r} offset:{PS()*part}")
    rd(0); rd(1); rd(2)
    for r in range(5):
        A(f"s_waitcnt lgkmcnt({8 if r < 3 else 4*(4-r)})")
        b = R + 16*r
        for i in (0, 2):
            A(f"v_pk_add_f32 {vr(b+i,2)}, {vr(b+i,2)}, {vr(b+4+i,2)}")
            A(f"v_pk_add_f32 {vr(b+8+i,2)}, {vr(b+8+i,2)}, {vr(b+12+i,2)}")
        if r + 3 < 5: rd(r+3)
        for i in (0, 2): A(f"v_pk_add_f32 {vr(b+i,2)}, {vr(b+i,2)}, {vr(b+8+i,2)}")
        A(f"v_cvt_pk_bf16_f32 v{b}, v{b}, v{b+1}")
        A(f"v_cvt_pk_bf16_f32 v{b+1}, v{b+2}, v{b+3}")
        A(f"buffer_store_dwordx2 {vr(b,2)}, v{24+r}, s[{sOUT}:{sOUT+3}], s95 offen" + OST)

def kd(name):
    return f""".section .rodata,"a"
.p2align 6
.amdhsa_kernel {name}
  .amdhsa_next_free_vgpr 512
  .amdhsa_next_free_sgpr 102
  .amdhsa_accum_offset 256
  .amdhsa_group_segment_fixed_size 0
  .amdhsa_kernarg_size 96
  .amdhsa_user_sgpr_count 2
  .amdhsa_user_sgpr_kernarg_segment_ptr 1
  .amdhsa_system_sgpr_workgroup_id_x 1
.end_amdhsa_kernel
"""

DOC = """;
; One persistent launch, 256 workgroups (one per CU), roles by workgroup id (xcd = id & 7, loc = id >> 3):
; Hand-offs go through d_ws: write-through stores, wait, barrier, then one flag line per producer holding a
"""
def gen():
    hdr = open("cdna_kernels/" + NAME + ".s.ref").read().split("; Override")[0]
    hdr += DOC
    hdr += f"; @launch grid=(256,1,1) block=(256,1,1) lds={LDS_BYTES}\n"
    hdr += '.amdgcn_target "amdgcn-amd-amdhsa--gfx950"\n'
    A = Asm()
    K = NAME + "_kernel"
    A(".text"); A(f".globl {K}"); A(".p2align 8"); A(f".type {K},@function"); A.label(K)
    prologue(A)
    A("s_cmp_ge_u32 s82, 16"); A("s_cbranch_scc1 r_notkv")
    A("s_and_b32 s85, s82, 3")
    A("s_lshl_b32 s86, s83, 2")
    A(f"s_add_u32 s{sA}, s85, s86")
    A("s_lshr_b32 s85, s82, 2")
    A("s_lshl_b32 s86, s84, 2")
    A(f"s_add_u32 s{sBp}, s85, s86")
    qkv_setup(A, False)
    if not OPT["xfirst"]: qkv_setup_w(A, False)
    A("s_waitcnt lgkmcnt(0)"); srds(A, ["X", "W"])
    stamp(A, "kv_pre")
    def mid(A):
        params1(A); srds(A, ["WS", "W1", "B1", "W2", "B2", "OUT"]); cw_init(A)
        if not OPT["defer"]:
            params2_(A, OPT["fblate"])
            if OPT["g1late"]:
                A("v_lshrrev_b32 v12, 4, v1")
                A("v_lshlrev_b32 v12, 3, v12")
                A(f"s_and_b32 s85, s{sWAVE}, 1")
                A(f"s_lshl_b32 s23, s{sG1F}, 1")
                A("s_add_u32 s23, s23, s85")
                A("s_lshl_b32 s23, s23, 6")
            else: g1_params(A)
            mid3(A)
    def mid3(A):
        kv_esetup(A)
        A("s_lshl_b32 s85, s81, 4")
        A("s_add_u32 s85, s85, s82")
        A("s_lshl_b32 s85, s85, 2")
        A(f"s_add_u32 s85, s85, s{sWAVE}")
        A("s_lshl_b32 s27, s85, 13")
        A(f"s_lshl_b32 s{sPUB}, s{sA}, 3")
        A(f"s_add_u32 s{sPUB}, s{sPUB}, s{sBp}")
        A(f"s_lshl_b32 s{sPUB}, s{sPUB}, 7")
        A(f"s_add_u32 s{sPUB}, s{sPUB}, {FL_KV:#x}")
    D = OPT["d"]; EW = 5 if D == 2 else 10
    assert D == 3
    def wst(k):
        g = c_wdma(k); g[-1] = g[-1] + c_adv1(); return g
    def bst(k):
        g = [[c_bload(k, n)] for n in range(5)]; g[-1] = g[-1] + c_adv2(); return g
    NI = 4 if OPT["xw"] else 48
    g1p = None; fbp = None
    if OPT["fblate"]:
        B = Asm(); params_fb(B); fbp = B.lines
        assert not any("s_cmp" in x for x in fbp[9:])
        fbp = fbp[9:] if OPT["frot"] in (0, 2, 4) else None
    if OPT["g1late"]:
        B = Asm(); g1_params(B); g1p = [x for x in B.lines if "s23" not in x and "v12" not in x]
    E = kv_estream()
    g1acc = lambda o: ar(G1A+o, 4)
    def pubkv(A, wait):
        A(f"s_waitcnt vmcnt({wait})")
        A("s_barrier")
        A(f"s_cmp_lg_u32 s{sWAVE}, 0")
        A("s_cbranch_scc1 g1_pub1")
        flag_store(A, sPUB)
        A.label("g1_pub1")
        stamp(A, "kv_pub")
    nin = OPT["nbin"]
    ex = {8: ([[poll_ld(vPO, 24)]] + b1_loads() + wst(0) + wst(1), 9), 9: (wst(2), 8)}
    d0 = OPT["defer"]
    out_kv = qkv_gemm(A, "kv", False, mid, ex, {9: lambda A: poll_check(A, "pln", vPO, 24)},
                      [(d0, params2), (d0+1, g1_params), (d0+2, mid3)] if d0 else [])
    if OPT["kvw2"]:
        A(f"buffer_load_dword a255, v15, s[{sW2}:{sW2+3}], s27 offen")
    Bs = bst(0) + bst(1) + bst(2)
    if OPT["kweave"]:
        keep = OPT["mo"]; OPT["mo"] = 1; fm = qkv_mfmas(FB_, False); OPT["mo"] = keep
        e0 = [x for x in E[0] if "mfma" not in x and x != "s_nop 1"]; m0 = [x for x in E[0] if "mfma" in x]
        fill = [[] for _ in range(20)]
        fill[0] = e0[:6]
        k = 6
        for g in range(9, 20):
            fill[g] = e0[k:k+2]; k += 2
        weave(A, fm, fill)
        e1 = list(E[1])
        for j, m in enumerate(m0): e1.insert(3 + 5*j, m)
        body = e0[k:] + e1
    else:
        for m in qkv_mfmas(FB_, False): A(m)
        body = E[0] + E[1]
    stamp(A, "kv_loopdone")
    sp = min(26, (len(body) - 30 - OPT["b0"]) // max(nin, 1))
    pos = [len(body) - 30 - sp*(nin - 1 - k) for k in range(nin)]
    assert not pos or pos[0] >= 0
    for i, x in enumerate(body):
        if i in pos:
            for y in Bs[pos.index(i)]: A(y)
        A(x)
    A("s_waitcnt lgkmcnt(0)")
    A("s_barrier")
    for x in E[2] + E[3]: A(x)
    stamp(A, "kv_st")
    for g in Bs[nin:]:
        for y in g: A(y)
    seq = ["W"]*12 + [f"B{k//5}" for k in range(nin)] + ["S"]*4 + [f"B{k//5}" for k in range(nin, 15)]
    def need(tags): return len(seq) - 1 - max(i for i, t in enumerate(seq) if t in tags)
    A(f"s_waitcnt vmcnt({need(['W'])})")
    for x in c_tr(0, 0): A(x)
    if OPT["pubat"] == 0: pubkv(A, need(["S"]))
    for u in range(4):
        c_step(A, u, min(need([f"B{u}", f"W{u+1}", "W"]), 63), True, True, True, g1acc, True, first=(u == 0),
               pre=f_setup1() if u == 1 else [],
               side=({0: g1p, 1: fbp, 2: f_setup2()[NI:], 3: f_setup2()[:NI]}.get(u) if OPT["fsplit"] else (f_setup2() if u == 3 else None)))
        if u == 1: seq += ["G"]*8
        seq += [f"W{u+3}"]*4 + [f"B{u+3}"]*5
        stamp(A, f"g1_s{u}")
        if OPT["pubat"] == u + 1: pubkv(A, need(["S"]))
    A(f"s_mov_b32 s{sCNT}, 2")
    g1_phase(A)
    f_phase(A)
    stamp_flush(A)
    A.label("k_end"); A("s_endpgm")
    out_kv(A)
    if OPT["lnmid"]:
        A.label("g1_blk")
        w2_prefetch(A, 24, list(range(3 - OPT["lnpn"], 3)))
        A("s_branch g1_noblk")
    A.label("r_notkv")
    if OPT["pf_code"] and not OPT["pfall"]:
        A("s_getpc_b64 s[86:87]")
        A.label("pc_here")
        A(f"s_sub_u32 s86, s86, pc_here-{K}")
        A("s_subb_u32 s87, s87, 0")
        A("s_sub_u32 s85, s82, 16")
        A("s_lshl_b32 s85, s85, 2")
        A(f"s_add_u32 s85, s85, s{sWAVE}")
        A("s_lshl_b32 s85, s85, 3")
        A("v_add_lshl_u32 v2, v1, s85, 7")
        A(f"v_min_u32 v2, k_codeend-{K}-4, v2")
        A("s_mov_b64 exec, 0xff")
        A("global_load_dword a255, v2, s[86:87]")
        A("s_mov_b64 exec, -1")
    A("s_cmp_lt_u32 s82, 24"); A("s_cbranch_scc1 r_q")
    A("s_sub_u32 s87, s82, 24")
    A("s_lshl_b32 s85, s81, 3")
    A(f"s_add_u32 s{sA}, s85, s87")
    aux = " nt" if OPT.get("nt") else ""
    w1l = lambda k: f"buffer_load_dword a255, v22, s[{sW1}:{sW1+3}], s{26 + k//3} offen offset:{1024*(k%3)}{aux}"
    def after(A):
        params1(A); srds(A, ["WS", "W1", "B1", "W2", "B2", "OUT"]); cw_init(A); params2(A); g1_params(A)
        w1_setup(A, 24, 22)
        for k in range(OPT["early"] if OPT["pf_w1"] else 0): A(w1l(k))
    ln_role(A, after, OPT["early"] if OPT["pf_w1"] else 0)
    publish(A, "pub_ln", FL_LN, sA)
    stamp(A, "ln_pub")
    if OPT["tlb"] == 2:
        A("v_lshlrev_b32 v2, 20, v1")
        A("s_mov_b64 exec, 0x3ff")
        A(f"buffer_load_dword a255, v2, s[{sWS}:{sWS+3}], 0 offen sc1")
        A(f"buffer_load_dword a255, v2, s[{sOUT}:{sOUT+3}], 0 offen")
        A(f"buffer_load_dword a255, v2, s[{sB2}:{sB2+3}], 0 offen")
        A("s_mov_b64 exec, -1")
    for k in range(OPT["early"], (3 - OPT["qw1n"]) if (OPT["pf_w1"] and not OPT["qfirst"]) else 0): A(w1l(k))
    def pf_h():
        A(poll_ld(vPO, 24))
        A("v_lshrrev_b32 v2, 5, v1")
        A("v_mul_u32_u24 v2, 40960, v2")
        A("v_and_b32 v3, 31, v1")
        A("v_lshl_add_u32 v2, v3, 7, v2")
        A("s_sub_u32 s85, s82, 24")
        A("s_lshl_b32 s85, s85, 2")
        A(f"s_add_u32 s85, s85, s{sWAVE}")
        A(f"s_mul_i32 s87, s85, {2*40960}")
        A("s_mul_i32 s86, s84, 20480")
        A("s_add_u32 s87, s87, s86")
        A("s_waitcnt vmcnt(0)")
        poll_check(A, "plnh", vPO, 24)
        A("s_barrier")
        for i in range(5):
            A(f"buffer_load_dword a255, v2, s[{sWS}:{sWS+3}], s87 offen sc1")
            A("s_add_u32 s87, s87, 4096")
    for c in str(OPT["lnseq"]):
        if c == "1" and OPT["pf_w1"]:
            for k in range(3, 6): A(w1l(k))
        if c == "6":
            for k in range(3): A(w1l(k))
        if c == "2": pf_h()
        if c == "3": w2_prefetch(A, 24, [0])
        if c == "7": w2_prefetch(A, 24, [2])
        if c == "4": w2_prefetch(A, 24, [0, 1])
        if c == "5": w2_prefetch(A, 24, [0, 1, 2])
    stamp(A, "ln_pf")
    for g in b1_loads(): A(g[0])
    A(poll_ld(vPO, 24))
    c_wring(A)
    A(f"s_waitcnt vmcnt({4*OPT['d']})")
    poll_check(A, "pln2", vPO, 24)
    A("s_barrier")
    for x in f_setup1(): A(x)
    c_bring(A)
    for i in range(80): A(f"v_accvgpr_write_b32 a{G1A+i}, 0")
    A(f"s_waitcnt vmcnt({5*D})")
    for x in f_setup2(): A(x)
    A(f"s_mov_b32 s{sCNT}, 3")
    A(f"s_mov_b32 s{sPUB}, {OPT['lnmid']}")
    A(f"s_waitcnt vmcnt({EW})")
    for x in c_tr(0, 0): A(x)
    stamp(A, "ln_ready")
    A("s_branch g1_loop")
    A.label("r_q")
    A("s_sub_u32 s87, s82, 16")
    A("s_and_b32 s85, s87, 3")
    A("s_lshl_b32 s86, s83, 2")
    A(f"s_add_u32 s{sA}, s85, s86")
    A("s_lshr_b32 s85, s87, 2")
    A("s_lshl_b32 s86, s84, 1")
    A(f"s_add_u32 s{sBp}, s85, s86")
    A(f"s_lshl_b32 s{sU}, s{sBp}, 2")
    A(f"s_and_b32 s85, s{sA}, 3")
    A(f"s_add_u32 s{sU}, s{sU}, s85")
    A(f"s_lshr_b32 s{sNR}, s{sA}, 2")
    def midq(A):
        params1(A); srds(A, ["WS", "W1", "WO", "W2", "B2", "OUT"]); cw_init(A); params2(A)
        w1_setup(A, 16, 12)
        if OPT["qw1"] == 0: q_pf_only(A)
        if not OPT["qdefer"]: q_setup(A)
    def qs(lo, hi):
        def f(A):
            B = Asm(); q_setup(B)
            assert len(B.lines) > 150
            for x in B.lines[lo:hi]: A(x)
        return f
    def qtouch(A):
        A("s_mov_b32 exec_lo, 0xffff03ff")
        A("s_mov_b32 exec_hi, 0")
        A(f"buffer_load_dword a255, v{vT1}, s[{sWS}:{sWS+3}], 0 offen sc1")
        A("s_mov_b64 exec, -1")
    qkv_setup(A, True)
    if not OPT["xfirst"]: qkv_setup_w(A, True)
    A("s_waitcnt lgkmcnt(0)"); srds(A, ["X", "W"])
    qb = [(max(OPT["qw1"], 1), q_loop_pf)]
    if OPT["qdefer"]:
        def both(A): q_loop_pf(A); q_setup(A); qtouch(A)
        qb = [(OPT["qw1"], both)]
    out_q = qkv_gemm(A, "q", True, midq, q_extras(), {9: lambda A: poll_check(A, "pln3", vPO, 24)}, qb)
    q_epilogue(A)
    A("s_lshl_b32 s88, s81, 3")
    A("s_add_u32 s88, s88, s82")
    A("s_sub_u32 s88, s88, 16")
    publish(A, "pub_q", FL_Q, 88)
    stamp(A, "q_pub")
    if OPT["qw2b"]: w2_prefetch(A, 16, list(range(3 - OPT["qw2b"], 3)))
    for x in f_setup1(): A(x)
    switch_to_fb(A)
    c_wring(A)
    if OPT["xw"]: xw_dma(A)
    A(poll_ld(vPO, 25))
    A(f"s_waitcnt vmcnt({4*D + 1 + (4 + 4*OPT['xw'] if OPT['xw'] else 0)})")
    for x in f_setup2(): A(x)
    A("s_waitcnt vmcnt(0)")
    poll_check(A, "pq2", vPO, 25)
    A("s_barrier")
    stamp(A, "q_allq")
    if OPT["pf_pq"]:
        A("s_sub_u32 s88, s82, 16")
        A("s_lshl_b32 s88, s88, 2")
        A(f"s_add_u32 s88, s88, s{sWAVE}")
        A("v_lshlrev_b32 v2, 7, v1")
        A(f"s_mul_i32 s85, s83, {8*81920}")
        A(f"s_mul_i32 s86, s88, {160*128}")
        A("s_add_u32 s85, s85, s86")
        A(f"s_add_u32 s85, s85, {WS_PQ:#x}")
        for i in range(3):
            if i == 2: A("s_mov_b32 exec_hi, 0")
            A(f"buffer_load_dword a255, v2, s[{sWS}:{sWS+3}], s85 offen sc1")
            A("s_add_u32 s85, s85, 8192")
        A("s_mov_b32 exec_hi, -1")
        A("s_cmp_ge_u32 s88, 20")
        A("s_cbranch_scc1 q_pfd")
        A("s_mul_i32 s85, s88, 40960")
        A("s_mul_i32 s86, s84, 20480")
        A("s_add_u32 s85, s85, s86")
        A(f"s_add_u32 s85, s85, {WS_M:#x}")
        for i in range(3):
            if i == 2: A("s_mov_b32 exec_hi, 0")
            A(f"buffer_load_dword a255, v2, s[{sWS}:{sWS+3}], s85 offen sc1")
            A("s_add_u32 s85, s85, 8192")
        A("s_mov_b32 exec_hi, -1")
        A.label("q_pfd")
    fa_params(A)
    A("s_branch f_entry")
    out_q(A)
    A.label("k_codeend")
    for i, l in enumerate(A.lines):
        if l.startswith("v_mad_i32_i24 v4, v3, -20"):
            A.lines[i] = l.replace("-20", "s89")
        if l == "s_movk_i32 s88, 3840":
            A.lines[i] = "s_movk_i32 s89, -20"
    if OPT["align"]:
        A.lines, nc, nn = align(A.lines, OPT["align"])
        print("aligned: widened", nc, "nops", nn, file=sys.stderr)
    nb = check(A.lines)
    print("hazards:", nb, file=sys.stderr)
    return hdr + A.text() + kd(K)

if __name__ == "__main__":
    out = sys.argv[1]
    for a in sys.argv[2:]:
        if a == "st": STAMPS = True
        else:
            k, v = a.split("="); OPT[k] = int(v)
    open(out, "w").write(gen())
    if STAMPS: json.dump(_st["names"], open(out + ".names", "w"))
```

```python
import sys, json
from asmlib import Asm, vr, ar, sr, check, align

NAME = "gated_mix__linear_attn_block__mixer_token_mlp__prompt"
WS_H   = 0x000000
WS_U   = 0x280000
WS_PQ  = 0x460000
WS_M   = 0x6E0000
WS_KVP = 0x7A8000
WS_ZP  = 0x880000
WS_G   = 0x972000
WS_FLAG = 0x974000
FL_X = WS_FLAG
FL_LN = WS_FLAG + 128
FL_KV = FL_LN + 64*128
FL_Q = FL_KV + 128*128
FL_G1 = FL_Q + 64*128
WS_SIZE = FL_G1 + 192*128
WS_STAMP = 0x1000000

sX, sW, sWS, sW1, sW2, sOUT, sWO, sB1, sB2, sGW = 28, 32, 36, 40, 44, 48, 52, 56, 60, 64
sWAVE = 68
sA, sBp = 69, 70
sG1D, sG1F, sFS, sFD = 71, 72, 73, 74
sCNT, sO1, sO2, sRD, sWR, sM0 = 75, 76, 77, 78, 79, 80
sEX, sMK = 90, 92
sU, sNR = 94, 95
sWR_, sWC_ = 96, 97
sPUB = 3
sQOK = 99
sM1 = 98
sC1, sC2, sCM0, sCB1, sCE1, sCB2, sCE2, sCST, sCW, sNON = 4, 5, 6, 7, 8, 9, 10, 11, 12, 16
sF1, sFB1, sFE1, sF2, sFB2, sFE2 = 17, 18, 19, 20, 21, 22
LOG2E = 0x3FB8AA3B
EPS6 = 0x358637BD
LDS_RED = 65536
LDS_BYTES = 163840
vXO, vWO_, vXB, vCUR = 16, 20, 25, 29
vWS_, vB0, vB1, vTR, vWS2 = 33, 37, 38, 39, 43
ACC = 48
FA_, FB_ = 112, 148
BR, AS = 0, 80
STG = 36864
vPOLL, vPO = 14, 13
OPT = {"rot": 1, "pf_w1": 1, "pf_w2": 1, "pf_code": 1, "pf_pq": 0, "sleep": 1, "early": 1, "d": 3, "qpoll": 2, "nbin": 13, "cv": 0, "lnseq": 51, "qw2": 0, "qw2b": 0, "ntq": 0, "qw1": 1, "qw1n": 2, "kvr": 1, "touch": 0, "perm": 0, "otouch": 0, "rdb": 4, "w2c": 2, "qfirst": 0, "rfd": 3, "tailw": 1, "pubat": 0, "kvw2": 0, "b0": 0, "qw1b": 0, "rfb": 4, "frot": 2, "arot": 2, "fmap": 1, "qrot": 1, "grot": 4, "lnpost": 0, "lnpn": 3, "align": 5, "defer": 0, "qdefer": 0, "lnmid": 0, "ost": 1, "tlb": 0, "pf0": 8, "xfirst": 1, "fsplit": 1, "xw": 3, "xwd": 0, "xsp": 6, "pfall": 0, "ntl": 6, "ntlk": 2, "ntlq": 3, "ox4": 0, "merge": 0, "mo": 0, "uearly": 1, "kweave": 1, "lal": 3, "rev": 0, "g1late": 1, "fblate": 0}
STAMPS = False
_st = {"n": 0, "names": []}

DBGL = ["startreal", "kv_pre", "kv_first", "kv_loop9", "kv_st", "kv_pub", "g1_loopdone", "g1_st", "g1_pub", "f_uok", "fb_first", "fb_loopdone", "endreal"]
def stamp(A, name, real=False):
    if OPT.get("dbg"):
        if name in DBGL:
            A("s_memrealtime s[100:101]")
            A("s_waitcnt lgkmcnt(0)")
            A(f"v_writelane_b32 v47, s100, {DBGL.index(name)}")
        return
    if not STAMPS: return
    if OPT.get("clk") and not real and name in ("kv_first", "kv_loop9", "g1_s0", "g1_loopdone", "g1_pub", "fb_first", "fb_loopdone"): stamp(A, name + "_R", True)
    i = _st["n"]; _st["n"] += 1; _st["names"].append(name)
    A("s_memrealtime s[100:101]" if real else "s_memtime s[100:101]")
    A("s_waitcnt lgkmcnt(0)")
    A(f"v_writelane_b32 v47, s100, {i}")
def stamp_flush(A):
    if OPT.get("hold"):
        A("s_waitcnt vmcnt(0)")
        stamp(A, "endreal", True)
        A("v_readlane_b32 s8, v47, 0")
        k = OPT["hold"]
        if k == 99:
            A("s_add_u32 s9, s8, 4000")
        else:
            A(f"v_readlane_b32 s9, v47, {k}")
            A("s_nop 3")
            A("s_cmp_eq_u32 s9, 0")
            A("s_cselect_b32 s9, s8, s9")
            A("s_sub_u32 s9, s9, s8")
            A("s_lshl_b32 s9, s9, 1")
            A("s_add_u32 s9, s9, s8")
            A("s_add_u32 s9, s9, 3000")
        A.label("hold_l")
        A("s_memrealtime s[100:101]")
        A("s_waitcnt lgkmcnt(0)")
        A("s_sub_u32 s10, s100, s9")
        A("s_cmp_lt_i32 s10, 0")
        A("s_cbranch_scc1 hold_l")
        return
    if OPT.get("dbg"):
        A("s_waitcnt vmcnt(0)")
        stamp(A, "endreal", True)
        A(f"s_cmp_lg_u32 s{sWAVE}, 0")
        A("s_cbranch_scc1 k_end")
        A("s_load_dwordx2 s[4:5], s[0:1], 80")
        A("v_readlane_b32 s8, v47, 0")
        A("s_waitcnt lgkmcnt(0)")
        A("s_mov_b32 s6, 256")
        A("s_mov_b32 s7, 0x20000")
        A("s_not_b32 s9, s8")
        A("v_mov_b32 v2, s9")
        A("v_mov_b32 v3, s100")
        A("v_mov_b32 v4, s8")
        A("v_mov_b32 v5, 0")
        A("s_mov_b64 exec, 1")
        A("buffer_atomic_umax v2, v5, s[4:7], 0 offen")
        A("buffer_atomic_umax v3, v5, s[4:7], 0 offen offset:4")
        A("buffer_atomic_umax v4, v5, s[4:7], 0 offen offset:8")
        A("s_mov_b64 exec, -1")
        A(f"s_cmp_lg_u32 s2, {OPT['dbg'] - 1}")
        A("s_cbranch_scc1 k_end")
        A("v_lshlrev_b32 v5, 2, v1")
        A("s_mov_b64 exec, 0x1fff")
        A("buffer_store_dword v47, v5, s[4:7], 0 offen offset:12")
        A("s_branch k_end")
        return
    if not STAMPS: return
    stamp(A, "end"); stamp(A, "endreal", True)
    A("s_lshl_b32 s100, s2, 2")
    A(f"s_add_u32 s100, s100, s{sWAVE}")
    A("s_lshl_b32 s100, s100, 8")
    A(f"s_add_u32 s100, s100, {WS_STAMP:#x}")
    A(f"s_mov_b32 s{sWS+2}, 0x2000000")
    A("v_lshlrev_b32 v46, 2, v1")
    A(f"buffer_store_dword v47, v46, s[{sWS}:{sWS+3}], s100 offen")

def srds(A, which):
    tab = {"X": (sX, 4, 2048*1280), "W": (sW, 6, 640*3840), "WO": (sWO, 8, 640*1280), "W1": (sW1, 12, 2048*3072), "B1": (sB1, 14, 3072),
           "W2": (sW2, 16, 1536*4096), "B2": (sB2, 18, 4096), "GW": (sGW, 20, 1280), "OUT": (sOUT, 22, 2048*1280), "WS": (sWS, 26, WS_SIZE)}
    for w in which:
        base, ptr, size = tab[w]
        A(f"s_mov_b64 s[{base}:{base+1}], s[{ptr}:{ptr+1}]")
        A(f"s_mov_b32 s{base+2}, {size:#x}")
        A(f"s_mov_b32 s{base+3}, 0x20000")

def PS(): return 22528 if OPT["ox4"] else 21504
def RS(): return 176 if OPT["ox4"] else 336
def flat(groups):
    out = []
    for g in groups: out += g if isinstance(g, list) else [g]
    return out

def weave(A, mf, fill, first=0):
    for i, m in enumerate(mf):
        A(m)
        if i < len(fill):
            for x in fill[i]: A(x)
    for g in fill[len(mf):]:
        for x in g: A(x)

def poll_off(A, dst, nper, total_waves_split=True):
    A(f"v_and_b32 v{dst}, {nper-1}, v1")
    A(f"s_mul_i32 s85, s{sWAVE}, {nper}")
    A(f"v_add_lshl_u32 v{dst}, v{dst}, s85, 7")
def poll_ld(vo, so):
    return f"buffer_load_dword v{vPOLL}, v{vo}, s[{sWS}:{sWS+3}], s{so} offen sc1"
def poll_check(A, name, vo, so):
    A(f"v_cmp_ne_u32 vcc, s{sNON}, v{vPOLL}")
    A(f"s_cbranch_vccz {name}_ok")
    A(f"s_mov_b32 s{sM1}, 0")
    A.label(f"{name}_spin")
    A(f"s_add_u32 s{sM1}, s{sM1}, 1")
    A(f"s_cmp_gt_u32 s{sM1}, 0x80000")
    A(f"s_cbranch_scc1 {name}_ok")
    A(f"s_sleep {OPT['sleep']}")
    A(poll_ld(vo, so))
    A("s_waitcnt vmcnt(0)")
    A(f"v_cmp_ne_u32 vcc, s{sNON}, v{vPOLL}")
    A(f"s_cbranch_vccnz {name}_spin")
    A.label(f"{name}_ok")
def flag_store(A, so):
    A(f"v_mov_b32 v2, s{sNON}")
    A("v_lshlrev_b32 v3, 2, v1")
    A("s_mov_b32 exec_hi, 0")
    A(f"buffer_store_dword v2, v3, s[{sWS}:{sWS+3}], s{so} offen sc1")
    A("s_mov_b32 exec_hi, -1")
def publish(A, name, base, sidx, wait=0):
    if wait is not None: A(f"s_waitcnt vmcnt({wait})")
    A("s_barrier")
    A(f"s_cmp_lg_u32 s{sWAVE}, 0")
    A(f"s_cbranch_scc1 {name}_np")
    A(f"s_lshl_b32 s85, s{sidx}, 7")
    A(f"s_add_u32 s85, s85, {base:#x}")
    flag_store(A, 85)
    A.label(f"{name}_np")

def prologue(A):
    A("s_cmp_ge_u32 s2, 256")
    A("s_cbranch_scc1 k_end")
    if STAMPS or OPT.get("dbg"): A("v_mov_b32 v47, 0")
    stamp(A, "startreal", True); stamp(A, "start")
    A("s_load_dwordx16 s[4:19], s[0:1], 0")
    A("s_load_dwordx8 s[20:27], s[0:1], 64")
    if OPT["pf0"] and not OPT["pfall"]:
        A("s_getpc_b64 s[86:87]")
        A("v_lshlrev_b32 v2, 7, v0")
        A(f"s_mov_b64 exec, {(1 << OPT['pf0']) - 1:#x}")
        A("global_load_dword a255, v2, s[86:87] offset:128")
        A("s_mov_b64 exec, -1")
    A("v_lshrrev_b32 v2, 6, v0")
    A("v_and_b32 v1, 63, v0")
    if OPT["pfall"]:
        A("s_getpc_b64 s[86:87]")
        A.label("pc_0")
        A("s_lshr_b32 s85, s2, 3")
        A("v_lshl_add_u32 v3, s85, 2, v2")
        A("v_mad_u32_u24 v3, v3, 3, v1")
        A("v_cmp_gt_u32 vcc, 3, v1")
        A("v_add_u32 v4, -2, v1")
        A(f"s_mov_b64 exec, {(1 << (3 + OPT['pf0'])) - 1:#x}")
        A("v_cndmask_b32 v3, v4, v3, vcc")
        A("v_lshlrev_b32 v3, 7, v3")
        A("v_min_u32 v3, k_codeend-pc_0-4, v3")
        A("global_load_dword a255, v3, s[86:87]")
        A("s_mov_b64 exec, -1")
    A(f"v_readfirstlane_b32 s{sWAVE}, v2")
    A("s_and_b32 s81, s2, 7")
    A("s_lshr_b32 s82, s2, 3")
    A("s_lshr_b32 s83, s81, 1")
    A("s_and_b32 s84, s81, 1")

def params1(A):
    A(f"s_add_u32 s86, s26, {FL_X:#x}")
    A("s_addc_u32 s87, s27, 0")
    A("s_load_dword s3, s[86:87], 0")
    A("s_lshr_b32 s85, s82, 2")
    A("s_lshl_b32 s88, s83, 3")
    if OPT["perm"]: A("s_xor_b32 s85, s85, 7")
    A(f"s_add_u32 s{sFS}, s85, s88")
    A("s_and_b32 s85, s82, 3")
    A("s_lshl_b32 s88, s84, 2")
    A(f"s_add_u32 s{sFD}, s85, s88")
    if OPT["fmap"]:
        A("s_lshr_b32 s85, s82, 3")
        if OPT["fmap"] == 1:
            A("s_lshl_b32 s85, s85, 3")
            A(f"s_add_u32 s{sFS}, s85, s81")
        else:
            A(f"s_lshl_b32 s{sFS}, s81, 2")
            A(f"s_add_u32 s{sFS}, s{sFS}, s85")
        A(f"s_and_b32 s{sFD}, s82, 7")
    A("s_sub_u32 s85, s82, 8")
    A("s_cmp_lt_u32 s82, 16")
    A("s_cselect_b32 s85, s82, s85")
    A("s_and_b32 s89, s85, 3")
    A(f"s_add_u32 s{sG1D}, s89, s88")
    A("s_lshr_b32 s85, s85, 2")
    A("s_lshl_b32 s88, s85, 2")
    A(f"s_add_u32 s{sG1F}, s83, s88")
    A("s_lshr_b32 s88, s85, 2")
    A("s_lshl_b32 s85, s85, 1")
    A("s_add_u32 s85, s85, s88")
    A("s_lshl_b32 s85, s85, 1")
    if OPT["rfb"] == 0: A("s_mov_b32 s85, 0")
    A(f"s_mul_i32 s89, s89, {OPT['rdb']}")
    A("s_add_u32 s85, s85, s89")
    if OPT["grot"] == 2: A("s_lshl_b32 s85, s85, 1")
    A(f"s_and_b32 s99, s85, {(15 if OPT['grot'] == 4 else 8) if OPT['grot'] else 0}")

def cw_init(A):
    A(f"s_mov_b64 s[{sCW}:{sCW+1}], s[{sW1}:{sW1+1}]")
    A(f"s_mov_b64 s[{sCW+2}:{sCW+3}], s[{sW1+2}:{sW1+3}]")
def params2(A):
    if OPT.get("same"):
        for k, r in enumerate((sG1D, sG1F, sFS, sFD)):
            A(f"s_mov_b32 s{100 if not STAMPS else 64+k}, s{r}")
            A(f"s_mov_b32 s{r}, 0")
        params2_(A)
        for k, r in enumerate((sG1D, sG1F, sFS, sFD)): A(f"s_mov_b32 s{r}, s{64+k}")
    else: params2_(A)
def params_fb(A):
    A("s_and_b32 s85, s82, 3")
    A(f"s_mul_i32 s85, s85, {OPT['rfd']}")
    A("s_lshr_b32 s86, s82, 2")
    A("s_mul_i32 s86, s86, 3")
    A("s_lshr_b32 s86, s86, 1")
    A("s_add_u32 s85, s85, s86")
    A("s_cmp_ge_u32 s85, 12")
    A("s_cselect_b32 s86, 12, 0")
    A("s_sub_u32 s85, s85, s86")
    if OPT["frot"] == 0: A("s_mov_b32 s85, 0")
    if OPT["frot"] == 2:
        A(f"s_add_u32 s85, s{sFS}, s{sFD}")
        A("s_and_b32 s85, s85, 1")
        A("s_mul_i32 s85, s85, 6")
    if OPT["frot"] == 4:
        A("s_bfe_u32 s85, s82, 0x10003")
        A("s_mul_i32 s85, s85, 6")
    if OPT["frot"] == 3:
        A(f"s_add_u32 s85, s{sFS}, s{sFD}")
        A("s_mul_i32 s86, s85, 86")
        A("s_lshr_b32 s86, s86, 8")
        A("s_mul_i32 s86, s86, 3")
        A("s_sub_u32 s85, s85, s86")
        A("s_lshl_b32 s85, s85, 2")
    A(f"s_mul_i32 s{sFB1}, s{sWAVE}, {12*32*4096}")
    A(f"s_lshl_b32 s86, s{sFS}, 7")
    A(f"s_add_u32 s{sFB1}, s{sFB1}, s86")
    A(f"s_add_u32 s{sFE1}, s{sFB1}, {12*32*4096}")
    A(f"s_lshl_b32 s86, s85, 17")
    A(f"s_add_u32 s{sF1}, s{sFB1}, s86")
    A(f"s_mul_i32 s{sFB2}, s{sWAVE}, {12*40960}")
    A(f"s_mul_i32 s86, s{sFD}, 5120")
    A(f"s_add_u32 s{sFB2}, s{sFB2}, s86")
    A(f"s_add_u32 s{sFB2}, s{sFB2}, {WS_U:#x}")
    A(f"s_add_u32 s{sFE2}, s{sFB2}, {12*40960}")
    A(f"s_mul_i32 s86, s85, 40960")
    A(f"s_add_u32 s{sF2}, s{sFB2}, s86")
def params2_(A, skip_fb=False):
    A(f"s_mul_i32 s{sCB1}, s{sWAVE}, {16*32*3072}")
    A(f"s_lshl_b32 s85, s{sG1F}, 7")
    A(f"s_add_u32 s{sCB1}, s{sCB1}, s85")
    A(f"s_add_u32 s{sCE1}, s{sCB1}, {16*32*3072}")
    A(f"s_mul_i32 s85, s99, {32*3072}")
    A(f"s_add_u32 s{sC1}, s{sCB1}, s85")
    A(f"s_mul_i32 s{sCB2}, s{sWAVE}, {16*40960}")
    A(f"s_mul_i32 s85, s{sG1D}, 5120")
    A(f"s_add_u32 s{sCB2}, s{sCB2}, s85")
    A(f"s_add_u32 s{sCE2}, s{sCB2}, {16*40960}")
    A(f"s_mul_i32 s85, s99, 40960")
    A(f"s_add_u32 s{sC2}, s{sCB2}, s85")
    A(f"s_mov_b32 s{sCST}, {32*3072}")
    A(f"s_lshl_b32 s{sCM0}, s{sWAVE}, 14")
    if not skip_fb: params_fb(A)
    A(f"v_lshlrev_b32 v{vB0}, 4, v1")
    A(f"v_add_u32 v{vB1}, 4096, v{vB0}")
    A("v_lshrrev_b32 v2, 2, v1")
    A("v_lshrrev_b32 v3, 1, v2")
    A("v_and_b32 v3, 3, v3")
    A("v_lshlrev_b32 v2, 7, v2")
    A("v_lshl_add_u32 v2, v3, 5, v2")
    A("v_and_b32 v3, 3, v1")
    A("v_lshl_add_u32 v2, v3, 3, v2")
    A(f"v_add_u32 v{vTR}, s{sCM0}, v2")
    for t in range(1, 4): A(f"v_xor_b32 v{vTR+t}, {32*t}, v{vTR}")
    A("v_lshrrev_b32 v2, 3, v1")
    A("v_lshrrev_b32 v3, 4, v1")
    A("v_lshlrev_b32 v3, 1, v3")
    A("v_and_b32 v4, 7, v1")
    A("v_xor_b32 v3, v3, v4")
    A("v_lshlrev_b32 v3, 4, v3")
    for base, stride in ((vWS_, 3072), (vWS2, 4096)):
        A(f"v_mul_u32_u24 v4, {stride}, v2")
        A(f"v_add_u32 v{base}, v3, v4")
        for q in range(1, 4): A(f"v_add_u32 v{base+q}, {q*(8*stride-1024)}, v{base}")
    poll_off(A, vPO, 16)
    A("v_lshlrev_b32 v15, 7, v1")
    A(f"s_mov_b32 s24, {FL_LN:#x}")
    A(f"s_mov_b32 s25, {FL_Q:#x}")
    A("s_waitcnt lgkmcnt(0)")
    A(f"s_mul_i32 s{sNON}, s3, 0x41C64E6D")
    A(f"s_add_u32 s{sNON}, s{sNON}, 0x3C6EF35F")

def qkv_setup(A, isq):
    A(f"s_lshr_b32 s{sWR_}, s{sWAVE}, 1")
    A(f"s_and_b32 s{sWC_}, s{sWAVE}, 1")
    A("v_lshrrev_b32 v2, 3, v1")
    A(f"s_lshl_b32 s85, s{sWAVE}, 5")
    A("v_add_u32 v2, s85, v2")
    A("v_mul_u32_u24 v2, 1280, v2")
    A("v_lshrrev_b32 v3, 4, v1")
    A("v_and_b32 v4, 7, v1")
    A("v_xor_b32 v4, v4, v3")
    A(f"v_lshl_add_u32 v{vXO}, v4, 4, v2")
    A("v_xor_b32 v4, 4, v4")
    A("v_lshl_add_u32 v6, v4, 4, v2")
    A(f"v_add_u32 v{vXO+1}, {8*1280-1024}, v6")
    A(f"v_add_u32 v{vXO+2}, {16*1280-2048}, v{vXO}")
    A(f"v_add_u32 v{vXO+3}, {24*1280-3072}, v6")
    A(f"s_mul_i32 s{sO1}, s{sA}, {0 if OPT.get('same') else 128*1280}")
    A(f"s_mov_b32 s{sO2}, 0")
    if OPT["rot"]:
        q = OPT["qrot"]
        if q in (1, 6):
            A("s_and_b32 s85, s82, 3")
            A("s_lshl_b32 s85, s85, 2")
            A(f"s_lshr_b32 s85, {0x8530 if q == 1 else 0x5500:#x}, s85")
            A("s_and_b32 s85, s85, 15")
            A("s_and_b32 s86, s82, 12")
            A("s_lshr_b32 s86, 0x8530, s86")
            A("s_and_b32 s86, s86, 15")
            A("s_add_u32 s85, s85, s86")
            A("s_add_u32 s85, s85, s83")
            A("s_add_u32 s85, s85, s84")
        else:
            A("s_lshr_b32 s85, s82, 2")
            A("s_add_u32 s85, s85, s82")
            A("s_and_b32 s85, s85, 1")
            A("s_mul_i32 s85, s85, 5")
            if q == 2:
                A("s_add_u32 s85, s85, s83")
                A("s_add_u32 s85, s85, s84")
            if q == 4:
                A("s_add_u32 s85, s85, s81")
            if q == 5:
                A("s_mov_b32 s85, s81")
        if isq: A("s_add_u32 s85, s85, 1")
        A("s_mul_i32 s86, s85, 26")
        A("s_lshr_b32 s86, s86, 8")
        A("s_mul_i32 s86, s86, 10")
        A("s_sub_u32 s85, s85, s86")
        A(f"s_mul_i32 s{sO2}, s85, {64*3840}")
        A("s_lshl_b32 s85, s85, 7")
        A(f"s_add_u32 s{sO1}, s{sO1}, s85")
    A(f"s_lshl_b32 s{sM0}, s{sWAVE}, 12")
    A(f"s_mul_i32 s{sM1}, s{sWAVE}, 5120")
    A(f"s_add_u32 s{sM1}, s{sM1}, 16384")
    A(f"s_mov_b32 s{sWR}, {2*STG}")

def qkv_setup_w(A, isq):
    if OPT.get("same"):
        A("s_mov_b32 s86, 1280")
    elif isq:
        A(f"s_mul_i32 s86, s{sBp}, 320")
    else:
        A(f"s_mul_i32 s86, s{sBp}, 160")
        A("s_add_u32 s86, s86, 1280")
    A(f"s_mul_i32 s85, s{sWAVE}, {16*3840}")
    A("s_add_u32 s85, s85, s86")
    A("s_movk_i32 s88, 3840")
    for n in range(5):
        if n: A(f"v_add_u32 v2, {64*n}, v1")
        q = "v2" if n else "v1"
        A(f"v_mul_u32_u24 v3, 3277, {q}")
        A("v_lshrrev_b32 v3, 16, v3")
        A(f"v_mad_i32_i24 v4, v3, -20, {q}")
        A("v_lshrrev_b32 v5, 2, v3")
        A("v_and_b32 v5, 2, v5")
        A("v_xor_b32 v4, v4, v5")
        comp = 1024*n if n < 4 else 0
        A(f"s_sub_u32 s87, s85, {comp}" if comp else "s_mov_b32 s87, s85")
        A("v_mad_u32_u24 v3, v3, s88, s87" if False else "v_mul_u32_u24 v3, 3840, v3")
        A("v_lshl_add_u32 v3, v4, 4, v3")
        if not isq:
            A("v_cmp_le_u32 vcc, 10, v4")
            A("v_add_u32 v5, 1120, v3")
            A("v_add_u32 v3, s87, v3")
            A("v_add_u32 v5, s87, v5")
            A(f"v_cndmask_b32 v{vWO_+n}, v3, v5, vcc")
        else:
            A(f"v_add_u32 v{vWO_+n}, s87, v3")

def nt(b): return " nt" if OPT["ntq"] & b else ""
def qkv_dma():
    L = [[f"s_add_u32 m0, s{sWR}, s{sM0}"]]
    for n in range(4):
        L.append([f"buffer_load_dwordx4 v{vXO+n}, s[{sX}:{sX+3}], s{sO1} offen offset:{1024*n}{nt(1)} lds"])
    L.append([f"s_add_u32 m0, s{sWR}, s{sM1}"])
    for n in range(4):
        L.append([f"buffer_load_dwordx4 v{vWO_+n}, s[{sW}:{sW+3}], s{sO2} offen offset:{1024*n}{nt(2)} lds"])
    L.append(["s_add_u32 m0, m0, 4096"])
    L.append([f"buffer_load_dwordx4 v{vWO_+4}, s[{sW}:{sW+3}], s{sO2} offen{nt(2)} lds"])
    return L
def qkv_adv():
    return [f"s_add_u32 s{sO1}, s{sO1}, 128", f"s_add_u32 s{sO2}, s{sO2}, {64*3840}", f"s_cmp_eq_u32 s{sO2}, {640*3840}",
            "s_cselect_b32 s85, 1280, 0", f"s_cselect_b32 s{sO2}, 0, s{sO2}", f"s_sub_u32 s{sO1}, s{sO1}, s85",
            f"s_add_u32 s{sWR}, s{sWR}, {STG}", f"s_cmp_eq_u32 s{sWR}, {4*STG}", f"s_cselect_b32 s{sWR}, 0, s{sWR}"]
def emit_dma_block(A, groups):
    for g in groups:
        for x in g: A(x)
        if "m0" in g[0].split(",")[0]: A("s_nop 0")

NW = 5
vXB, vCUR = 26, 6
vXB = 208
vCUR = 215
def qkv_reads(kk, fs):
    def wr(t):
        return [f"ds_read_b64_tr_b16 {ar(fs+16+4*t+2*j,2)}, v{vCUR+2+t} offset:{kk*10240 + j*1280}" for j in range(2)]
    L = wr(0)
    for st in range(4):
        L.append(f"ds_read_b128 {ar(fs+4*st,4)}, v{vCUR+kk} offset:{st*2048}")
    for t in range(1, 5): L += wr(t)
    return L
def qkv_mfmas(fs, isq):
    L = []
    order = [(t, st) for t in range(5) for st in range(4)]
    if OPT["mo"] & 1: order = [(t, st) for st in range(4) for t in range(5)]
    if OPT["mo"] & 4: order = [(t, st if t % 2 == 0 else 3 - st) for t in range(5) for st in range(4)]
    for t, st in order:
            x = ar(fs + 4*st, 4); w = ar(fs + 16 + 4*t, 4); c = vr(ACC + (st*5+t)*4, 4)
            L.append(f"v_mfma_f32_16x16x32_bf16 {c}, {w}, {x}, {c}" if isq else f"v_mfma_f32_16x16x32_bf16 {c}, {x}, {w}, {c}")
    return L

def qkv_gemm(A, pfx, isq, mid_setup, extras, pres, blk):
    if OPT["xfirst"]:
        emit_dma_block(A, qkv_dma()[:5])
        qkv_setup_w(A, isq)
        if OPT["rev"]:
            A("s_bitcmp1_b32 s82, 0")
            A(f"s_cbranch_scc0 {pfx}_fwd")
            d = qkv_dma()
            A(f"s_add_u32 m0, s{sWR}, s{sM1}")
            A("s_add_u32 m0, m0, 4096")
            A("s_nop 0")
            A(d[11][0])
            emit_dma_block(A, [d[5], d[9], d[8], d[7], d[6]])
            A(f"s_branch {pfx}_rvd")
            A.label(f"{pfx}_fwd")
        emit_dma_block(A, qkv_dma()[5:])
        if OPT["rev"]: A.label(f"{pfx}_rvd")
    else:
        emit_dma_block(A, qkv_dma())
    for x in qkv_adv(): A(x)
    stamp(A, pfx + "_iss0")
    mid_setup(A)
    A("v_and_b32 v2, 15, v1")
    A("v_lshrrev_b32 v3, 4, v1")
    A("v_lshrrev_b32 v4, 1, v2")
    A("v_xor_b32 v4, v4, v3")
    A("v_lshlrev_b32 v4, 4, v4")
    A("v_lshl_add_u32 v4, v2, 7, v4")
    A(f"s_lshl_b32 s85, s{sWR_}, 13")
    A(f"v_add_u32 v{vXB}, s85, v4")
    A(f"v_xor_b32 v{vXB+1}, 64, v{vXB}")
    A("v_lshrrev_b32 v4, 2, v2")
    A("v_lshl_add_u32 v4, v3, 3, v4")
    A("v_mul_u32_u24 v4, 320, v4")
    A("v_and_b32 v5, 1, v1")
    A("v_lshl_add_u32 v4, v5, 3, v4")
    A("v_add_u32 v4, 16384, v4")
    A("v_bfe_u32 v5, v1, 1, 1")
    A("v_and_b32 v6, 1, v3")
    A("v_lshlrev_b32 v6, 1, v6")
    A(f"s_mul_i32 s85, s{sWC_}, {10 if isq else 5}")
    for t in range(5):
        if isq: c0, step = [(0, 1), (2, 1), (4, 5), (5, 1), (7, 1)][t]
        else: c0, step = [(0, 1), (2, 1), (4, 6), (11, 1), (13, 1)][t]
        A(f"s_add_u32 s86, s85, {c0}")
        if step == 1: A("v_add_u32 v7, s86, v5")
        else: A(f"v_mad_u32_u24 v7, v5, {step}, s86")
        A("v_xor_b32 v7, v7, v6")
        A(f"v_lshl_add_u32 v{vXB+2+t}, v7, 4, v4")
    zero_acc(A)
    A(f"s_mov_b32 s{sRD}, {2*STG}")
    A(f"s_mov_b32 s{sCNT}, 0")
    upd = [f"v_add_u32 v{vCUR+i}, s{sRD}, v{vXB+i}" for i in range(7)]
    rdadv = [f"s_add_u32 s{sRD}, s{sRD}, {STG}", f"s_cmp_eq_u32 s{sRD}, {4*STG}", f"s_cselect_b32 s{sRD}, 0, s{sRD}"]
    def spread(rd, dma_slots, groups, scal):
        fill = [[] for _ in range(20)]
        k = 0
        for gi in range(9):
            for _ in range(2 if gi < 5 else 1):
                fill[gi].append(rd[k]); k += 1
        g = list(groups)
        for sl in dma_slots:
            if not g: break
            if "m0" in g[0][0].split(",")[0]:
                fill[sl-1] += g.pop(0)
            fill[sl] += g.pop(0)
        return fill, g
    def put_scal(fill, scal, start):
        sc = list(scal); gi = start
        while sc:
            room = 2 - len(fill[gi]) if gi < 19 else len(sc)
            for _ in range(max(room, 0)):
                if sc: fill[gi].append(sc.pop(0))
            gi += 1
    def top_half(wait, groups, pre=None, slots=(3, 7, 11, 15, 19)):
        A(f"s_waitcnt vmcnt({wait}) lgkmcnt(0)")
        if pre: pre(A)
        A("s_barrier")
        fill, rest = spread(qkv_reads(0, FA_), slots, groups, [])
        weave(A, qkv_mfmas(FB_, isq), fill)
        return rest
    def bot_half(adv, tail, groups=[], slots=(2, 6, 10, 13)):
        A("s_waitcnt lgkmcnt(0)")
        fill, rest = spread(qkv_reads(1, FB_), slots, groups, [])
        assert not rest
        put_scal(fill, rdadv + upd, 9)
        put_scal(fill, (qkv_adv() if adv else []) + tail, 14)
        weave(A, qkv_mfmas(FA_, isq), fill)
    for x in upd: A(x)
    stamp(A, pfx + "_setup")
    emit_dma_block(A, qkv_dma())
    for x in qkv_adv(): A(x)
    stamp(A, pfx + "_issued")
    A("s_waitcnt vmcnt(9)")
    A("s_barrier")
    stamp(A, pfx + "_first")
    for x in qkv_reads(0, FA_): A(x)
    emit_dma_block(A, qkv_dma()[:7])
    A(f"s_branch {pfx}_mid")
    A(f".p2align {OPT['lal']}")
    A.label(f"{pfx}_loop")
    outl = []
    for k, (c, fn) in enumerate(blk):
        A(f"s_cmp_eq_u32 s{sCNT}, {c}")
        A(f"s_cbranch_scc1 {pfx}_blk{k}")
    A.label(f"{pfx}_noblk")
    rest = top_half(9, qkv_dma())
    assert len(rest) == 5
    A.label(f"{pfx}_mid")
    ntl = OPT["ntl"]
    bot_half(True, [f"s_add_u32 s{sCNT}, s{sCNT}, 1", f"s_cmp_lt_u32 s{sCNT}, {ntl if ntl else 8}"], rest)
    A(f"s_cbranch_scc1 {pfx}_loop")
    if ntl:
        keep = OPT["ntq"]; OPT["ntq"] = OPT["ntlq"] if isq else OPT["ntlk"]
        A(f".p2align {OPT['lal']}")
        A.label(f"{pfx}_loop2")
        rest = top_half(9, qkv_dma())
        bot_half(True, [f"s_add_u32 s{sCNT}, s{sCNT}, 1", f"s_cmp_lt_u32 s{sCNT}, 8"], rest)
        A(f"s_cbranch_scc1 {pfx}_loop2")
        OPT["ntq"] = keep
    for it in (8, 9):
        g, w = extras.get(it, ([], 9 if it == 8 else 0))
        sl = (1, 3, 5, 8, 10, 12, 14, 16, 18) if len(g) > 14 else (2, 5, 8, 11, 14, 17)
        rest = top_half(w, g, pres.get(it), sl)
        bot_half(False, [], rest, sl)
    stamp(A, pfx + "_loop9")
    A("s_waitcnt lgkmcnt(0)")
    if isq and not OPT["kweave"]:
        for m in qkv_mfmas(FB_, isq): A(m)
        A("s_nop 7")
        stamp(A, pfx + "_loopdone")
    def outline(A):
        for k, (c, fn) in enumerate(blk):
            A.label(f"{pfx}_blk{k}")
            fn(A)
            A(f"s_branch {pfx}_noblk")
    return outline

PAIRS = [(2,0),(3,0),(2,1),(3,1),(4,1),(3,2),(4,2)]
def kv_mask(i):
    te, tc = PAIRS[i]; m = 0
    for l in range(64):
        c = 16*tc + l % 16; e = [-8, 8, 24][te-2] + 4*(l//16)
        if c < 40 and e >= 0 and c//20 == e//20: m |= 1 << l
    return m

KVB = [sum(bin(kv_mask(j)).count("1") for j in range(i)) for i in range(8)]
def kv_rank(A, dst, i, shift, add=0):
    m = kv_mask(i)
    A(f"s_mov_b32 s85, {m & 0xffffffff:#x}")
    A(f"s_mov_b32 s86, {m >> 32:#x}")
    A(f"v_mbcnt_lo_u32_b32 v{dst}, s85, {KVB[i]}" if KVB[i] <= 64 else f"v_mov_b32 v{dst}, {KVB[i]}\nv_mbcnt_lo_u32_b32 v{dst}, s85, v{dst}")
    A(f"v_mbcnt_hi_u32_b32 v{dst}, s86, v{dst}")
    A(f"v_lshlrev_b32 v{dst}, {shift}, v{dst}")
    if add: A(f"v_add_u32 v{dst}, {add}, v{dst}")
vKR = 246
def phi4(A, b, T, dst=None):
    dst = b if dst is None else dst
    A(f"v_pk_mul_f32 {vr(T,2)}, {vr(b,2)}, s[{sL2}:{sL2+1}]")
    A(f"v_pk_mul_f32 {vr(T+2,2)}, {vr(b+2,2)}, s[{sL2}:{sL2+1}]")
    for i in range(4): A(f"v_exp_f32 v{T+i}, v{T+i} clamp")
    for i in range(4): A(f"v_max_f32 v{dst+i}, {EPS6:#x}, v{b+i}")
    A(f"v_pk_add_f32 {vr(dst,2)}, {vr(dst,2)}, {vr(T,2)}")
    A(f"v_pk_add_f32 {vr(dst+2,2)}, {vr(dst+2,2)}, {vr(T+2,2)}")
sL2 = 88
vEW, vEZ, vER, sKVS = 250, 251, 252, 26
def kv_esetup(A):
    A(f"s_lshl_b32 s85, s{sBp}, 1")
    A(f"s_add_u32 s85, s85, s{sWC_}")
    A("s_lshl_b32 s86, s85, 4")
    A(f"s_add_u32 s86, s86, s{sA}")
    A("s_lshl_b32 s87, s86, 8")
    A(f"s_mul_i32 s{sKVS}, s86, 3200")
    A(f"s_sub_u32 s87, s87, s{sKVS}")
    A(f"s_add_u32 s87, s87, {WS_ZP - WS_KVP:#x}")
    A("s_lshr_b32 s87, s87, 4")
    A(f"s_add_u32 s{sKVS}, s{sKVS}, {WS_KVP:#x}")
    A("v_mov_b32 v2, 0x7ff00000")
    for k in range(4):
        mA = kv_mask(k); mB = kv_mask(4+k) if k < 3 else 0xffff
        A(f"s_cmp_eq_u32 s{sWR_}, 0")
        A(f"s_mov_b32 s92, {mB & 0xffffffff:#x}")
        A(f"s_cselect_b32 s92, {mA & 0xffffffff:#x}, s92")
        A(f"s_mov_b32 s93, {mB >> 32:#x}")
        A(f"s_cselect_b32 s93, {mA >> 32:#x}, s93")
        if k < 3: A(f"s_mov_b32 s88, {KVB[4+k]}")
        A(f"s_cselect_b32 s88, {KVB[k]}, s{88 if k < 3 else 87}")
        A(f"v_mov_b32 v{vKR+k}, s88")
        A(f"v_mbcnt_lo_u32_b32 v{vKR+k}, s92, v{vKR+k}")
        A(f"v_mbcnt_hi_u32_b32 v{vKR+k}, s93, v{vKR+k}")
        A(f"v_lshlrev_b32 v{vKR+k}, 4, v{vKR+k}")
        A(f"v_cndmask_b32 v{vKR+k}, v2, v{vKR+k}, s[92:93]")
    A(f"s_mul_i32 s85, s{sWAVE}, 8448")
    A(f"s_add_u32 s85, s85, {LDS_RED}")
    A(f"v_add_u32 v{vEW}, s85, v{vB0}")
    A(f"v_lshl_add_u32 v{vEZ}, v1, 2, s85")
    A(f"s_mul_i32 s85, s{sWC_}, 8448")
    A(f"s_lshl_b32 s86, s{sWR_}, 12")
    A("s_add_u32 s85, s85, s86")
    A(f"s_add_u32 s85, s85, {LDS_RED}")
    A(f"v_add_u32 v{vER}, s85, v{vB0}")
    A("v_and_b32 v2, 15, v1")
    A(f"v_cmp_gt_u32 s[{sMK}:{sMK+1}], 8, v2")
    A("v_cmp_lt_u32 s[64:65], 15, v1")
    A("v_cmp_lt_u32 s[66:67], 31, v1")
def kv_estream():
    PB, KA, ONE, TMP = 128, 168, 208, 212
    E = [Asm(), Asm(), Asm(), Asm()]
    A = E[0]
    A(f"s_mov_b32 s{sL2}, {LOG2E:#x}")
    A(f"s_mov_b32 s{sL2+1}, {LOG2E:#x}")
    for i in range(4): A(f"v_mov_b32 v{ONE+i}, 0x3f803f80")
    for st in range(4):
        A = E[st // 2]
        for t in range(3):
            b = ACC + (st*5+t)*4
            if t < 2: phi4(A, b, TMP)
            else:
                phi4(A, b, TMP, TMP+4)
                for i in range(4): A(f"v_cndmask_b32 v{b+i}, v{b+i}, v{TMP+4+i}, s[{sMK}:{sMK+1}]")
        for t in range(5):
            b = ACC + (st*5+t)*4
            d = PB + (t*2 + st//2)*4 + (st & 1)*2
            A(f"v_cvt_pk_bf16_f32 v{d}, v{b}, v{b+1}")
            A(f"v_cvt_pk_bf16_f32 v{d+1}, v{b+2}, v{b+3}")
        if st & 1:
            sp = st // 2
            A("s_nop 1")
            for tc in range(3):
                c = vr(KA+4*(7+tc), 4)
                A(f"v_mfma_f32_16x16x32_bf16 {c}, {vr(ONE,4)}, {vr(PB+(tc*2+sp)*4,4)}, {c if sp else 0}")
            for i, (te, tc) in enumerate(PAIRS):
                c = vr(KA+4*i, 4)
                A(f"v_mfma_f32_16x16x32_bf16 {c}, {vr(PB+(te*2+sp)*4,4)}, {vr(PB+(tc*2+sp)*4,4)}, {c if sp else 0}")
    A = E[1]
    A("s_nop 0")
    A(f"v_cndmask_b32 v{KA+28}, v{KA+28}, v{KA+32}, s[64:65]")
    A(f"v_cndmask_b32 v{KA+28}, v{KA+28}, v{KA+36}, s[66:67]")
    A(f"ds_write_b32 v{vEZ}, v{KA+28} offset:7168")
    for i in range(7): A(f"ds_write_b128 v{vEW}, {vr(KA+4*i,4)} offset:{1024*i}")
    A = E[2]
    for k in range(4):
        A(f"ds_read_b128 {vr(PB+8*k,4)}, v{vER} offset:{1024*k}")
        A(f"ds_read_b128 {vr(PB+8*k+4,4)}, v{vER} offset:{1024*k + 16896}")
    A = E[3]
    A("s_waitcnt lgkmcnt(0)")
    for k in range(4):
        for i in (0, 2): A(f"v_pk_add_f32 {vr(PB+8*k+i,2)}, {vr(PB+8*k+i,2)}, {vr(PB+8*k+4+i,2)}")
    for k in range(4):
        A(f"buffer_store_dwordx4 {vr(PB+8*k,4)}, v{vKR+k}, s[{sWS}:{sWS+3}], s{sKVS} offen sc1")
    return [e.lines for e in E]

def w1_setup(A, locbase, vreg):
    A(f"s_sub_u32 s88, s82, {locbase}")
    A("s_lshl_b32 s88, s88, 2")
    A(f"s_add_u32 s88, s88, s{sWAVE}")
    A(f"v_and_b32 v{vreg}, 31, v1")
    A(f"v_mul_u32_u24 v{vreg}, 3072, v{vreg}")
    A("v_lshrrev_b32 v3, 5, v1")
    A(f"v_lshl_add_u32 v{vreg}, v3, 9, v{vreg}")
    A(f"s_mul_i32 s85, s88, {32*3072}")
    A("s_lshl_b32 s86, s83, 7")
    A("s_add_u32 s85, s85, s86")
    A(f"s_mul_i32 s86, s84, {1024*3072}")
    A("s_add_u32 s26, s86, s85")
    A("s_xor_b32 s87, s84, 1")
    A(f"s_mul_i32 s87, s87, {1024*3072}")
    A("s_add_u32 s27, s87, s85")

def w2_prefetch(A, locbase, parts):
    A(f"s_sub_u32 s85, s82, {locbase}")
    A("s_lshl_b32 s85, s85, 2")
    A(f"s_add_u32 s85, s85, s{sWAVE}")
    if OPT["fmap"] and OPT["w2c"] != 2:
        A("v_lshrrev_b32 v2, 2, v1")
        A("v_lshlrev_b32 v2, 12, v2")
        A("v_and_b32 v3, 3, v1")
        A(f"v_lshl_add_u32 v2, v3, {10 if OPT['fmap'] == 1 else 7}, v2")
        A(f"s_mul_i32 s85, s85, {48*4096}")
        A(f"s_lshl_b32 s86, s81, {7 if OPT['fmap'] == 1 else 9}")
        A("s_add_u32 s85, s85, s86")
        if parts[0]: A(f"s_add_u32 s85, s85, {16*4096*parts[0]}")
        for i in parts:
            A(f"buffer_load_dword a255, v2, s[{sW2}:{sW2+3}], s85 offen")
            if i != parts[-1]: A(f"s_add_u32 s85, s85, {16*4096}")
        return
    if OPT["w2c"]:
        A("s_lshl_b32 s86, s81, 5")
        A("s_add_u32 s85, s85, s86")
        A("s_lshl_b32 s85, s85, 13")
        if parts[0]: A(f"s_add_u32 s85, s85, {(8192*256)*parts[0]}")
        for i in parts:
            A(f"buffer_load_dword a255, v15, s[{sW2}:{sW2+3}], s85 offen")
            if i != parts[-1]: A(f"s_add_u32 s85, s85, {8192*256}")
        return
    A("v_lshrrev_b32 v2, 3, v1")
    A("v_lshlrev_b32 v2, 12, v2")
    A("v_and_b32 v3, 7, v1")
    A("v_lshl_add_u32 v2, v3, 7, v2")
    A("s_mul_i32 s85, s85, 24")
    A("s_mul_i32 s86, s84, 768")
    A("s_add_u32 s85, s85, s86")
    A(f"s_add_u32 s85, s85, {8*parts[0]}")
    A("s_lshl_b32 s85, s85, 12")
    A("s_lshl_b32 s86, s83, 10")
    A("s_add_u32 s85, s85, s86")
    for i in parts:
        A(f"buffer_load_dword a255, v2, s[{sW2}:{sW2+3}], s85 offen")
        if i != parts[-1]: A(f"s_add_u32 s85, s85, {8*4096}")

QCB = [0, 16, 32, 40, 56]
QDP = [(0,0),(0,1),(1,0),(1,1),(1,2),(2,1),(2,2),(2,4),(3,3),(3,4),(4,2),(4,3),(4,4)]
sMA, sZO, sKO, sPQ, sWOo, sGo = 56, 58, 59, 64, 67, 23
vWOd, vWOt, vZA, vKP, vGo, vT1 = 248, 246, 252, 245, 25, 244
MSK = 194
def q_setup(A):
    T = 128
    A(f"s_mul_i32 s{sWOo}, s{sU}, {40*1280}")
    A(f"s_mul_i32 s86, s{sNR}, 320")
    A(f"s_add_u32 s{sWOo}, s{sWOo}, s86")
    A(f"s_lshl_b32 s86, s{sWAVE}, 8")
    for n in range(4):
        A(f"v_add_u32 v2, {64*n}, v1")
        A("v_add_u32 v2, s86, v2")
        A("v_mul_u32_u24 v3, 3277, v2")
        A("v_lshrrev_b32 v3, 16, v3")
        A("v_mul_u32_u24 v4, 20, v3")
        A("v_sub_u32 v4, v2, v4")
        A("v_mul_u32_u24 v3, 1280, v3")
        A(f"v_lshl_add_u32 v{vWOd+n}, v4, 4, v3")
        if n: A(f"v_subrev_u32 v{vWOd+n}, {1024*n}, v{vWOd+n}")
    A("v_and_b32 v3, 15, v1")
    A("v_lshrrev_b32 v4, 4, v1")
    A(f"v_lshlrev_b32 v{vGo}, 2, v3")
    A(f"s_lshl_b32 s86, s{sA}, 9")
    A(f"s_lshl_b32 s87, s{sWR_}, 8")
    A("s_add_u32 s86, s86, s87")
    A(f"s_add_u32 s{sGo}, s86, {WS_G:#x}")
    A("v_bfe_u32 v5, v1, 1, 2")
    A(f"s_lshl_b32 s85, s{sWAVE}, 2")
    A("v_add_lshl_u32 v5, v5, s85, 3")
    A("v_and_b32 v6, 1, v1")
    A(f"s_lshl_b32 s85, s{sBp}, 1")
    A("v_add3_u32 v5, v5, v6, s85")
    A(f"v_lshlrev_b32 v{vKP}, 7, v5")
    A("v_lshrrev_b32 v5, 2, v3")
    A("v_lshl_add_u32 v5, v4, 2, v5")
    A("v_and_b32 v6, 7, v5")
    A("v_mul_u32_u24 v6, 320, v6")
    A("v_mul_u32_u24 v5, 320, v5")
    A("v_and_b32 v7, 3, v1")
    A("v_lshlrev_b32 v7, 3, v7")
    A(f"s_lshl_b32 s86, s{sWAVE}, 5")
    A("v_add_u32 v7, s86, v7")
    A(f"v_add_u32 v{vWOt}, v6, v7")
    A(f"v_add_u32 v{vWOt+1}, v5, v7")
    A(f"s_lshr_b32 s86, s{sU}, 2")
    A("s_mul_i32 s86, s86, 5")
    A(f"s_bfe_u32 s87, s{sU}, 0x10001")
    A(f"s_and_b32 s88, s{sU}, 1")
    A("s_mul_i32 s89, s87, 3")
    A("s_add_u32 s89, s89, s88")
    A("s_add_u32 s89, s89, s86")
    A(f"s_mul_i32 s{sMA}, s89, 40960")
    A("s_add_u32 s86, s86, 2")
    A(f"s_mul_i32 s{sMA+1}, s86, 40960")
    A("s_lshl_b32 s87, s87, 3")
    A("s_lshl_b32 s88, s88, 9")
    A(f"s_add_u32 s{sMA+1}, s{sMA+1}, s87")
    A(f"s_add_u32 s{sMA+1}, s{sMA+1}, s88")
    A(f"s_mul_i32 s86, s{sNR}, 10240")
    A(f"s_lshl_b32 s87, s{sWAVE}, 10")
    A("s_add_u32 s86, s86, s87")
    A(f"s_add_u32 s86, s86, {WS_M:#x}")
    A(f"s_add_u32 s{sMA}, s{sMA}, s86")
    A(f"s_add_u32 s{sMA+1}, s{sMA+1}, s86")
    A(f"s_lshl_b32 s85, s{sA}, 1")
    A(f"s_add_u32 s85, s85, s{sWR_}")
    A("s_mul_i32 s85, s85, 20")
    A(f"s_mul_i32 s86, s{sBp}, 5")
    A("s_add_u32 s85, s85, s86")
    A("s_lshl_b32 s85, s85, 12")
    A(f"s_add_u32 s85, s85, {WS_PQ:#x}")
    A(f"s_mul_i32 s86, s{sWC_}, {3*4096}")
    A(f"s_add_u32 s{sPQ}, s86, s85")
    A(f"s_add_u32 s{sPQ+1}, s{sPQ}, 4096")
    A(f"s_lshl_b32 s88, s{sWC_}, 3")
    A("s_add_u32 s88, s88, s85")
    A(f"s_add_u32 s{sPQ+2}, s88, 8192")
    A(f"v_add_u32 v5, s{sWAVE}, v1")
    A(f"s_mul_i32 s85, s{sWAVE}, 9")
    A("v_add_u32 v5, s85, v5")
    A("v_lshrrev_b32 v6, 2, v5")
    A("v_and_b32 v5, 3, v5")
    A("v_lshlrev_b32 v5, 7, v5")
    A("v_lshl_add_u32 v5, v6, 10, v5")
    A(f"s_sub_u32 s85, s{sMA+1}, s87")
    A("s_and_b32 s85, s85, 0xffffff80")
    A("v_add_u32 v5, s85, v5")
    A(f"s_and_b32 s85, s{sPQ+2}, 0xffffff80")
    A(f"s_lshl_b32 s86, s{sWC_}, 11")
    A("s_add_u32 s85, s85, s86")
    A("v_lshlrev_b32 v6, 7, v3")
    A("v_add_u32 v6, s85, v6")
    A("v_cmp_gt_u32 vcc, 10, v1")
    A("s_nop 1")
    A(f"v_cndmask_b32 v{vT1}, v6, v5, vcc")
    A(f"v_mov_b32 v{T}, {LDS_RED + 1600}")
    for i in range(7):
        kv_rank(A, 26+i, i, 3, LDS_RED)
        A(f"s_mov_b32 s92, s85")
        A(f"s_mov_b32 s93, s86")
        A(f"v_cndmask_b32 v{26+i}, v{T}, v{26+i}, s[92:93]")
    cb = QCB
    for t in range(5):
        A(f"v_lshl_add_u32 v{T+t}, v4, 2, {cb[t]}")
        A(f"v_add_u32 v{T+5+t}, {cb[t]}, v3")
        if t == 2:
            A("v_lshrrev_b32 v5, 1, v4")
            A(f"v_lshl_add_u32 v{T+t}, v5, 5, v{T+t}")
            A("v_mul_u32_u24 v7, 4064, v5")
            A("v_lshrrev_b32 v5, 3, v3")
            A(f"v_lshl_add_u32 v{T+5+t}, v5, 5, v{T+5+t}")
        A(f"v_mul_u32_u24 v{T+t}, 205, v{T+t}")
        A(f"v_lshrrev_b32 v{T+t}, 12, v{T+t}")
        A(f"v_mul_u32_u24 v{T+5+t}, 205, v{T+5+t}")
        A(f"v_lshrrev_b32 v{T+5+t}, 12, v{T+5+t}")
    for k, (tp, t) in enumerate(QDP):
        A(f"v_cmp_eq_u32 vcc, v{T+t}, v{T+5+tp}")
        A("s_nop 1")
        A(f"v_cndmask_b32 v{MSK+k}, 0, -1, vcc")
    A("v_lshlrev_b32 v5, 8, v3")
    A(f"v_lshl_add_u32 v{vZA}, v4, 4, v5")
    A(f"v_add_u32 v{vZA+2}, v7, v{vZA}")
    A(f"v_add_u32 v{vZA+1}, 4096, v{vZA}")
    A(f"s_lshl_b32 s86, s{sBp}, 14")
    A(f"s_lshl_b32 s87, s{sWC_}, 13")
    A("s_add_u32 s86, s86, s87")
    A(f"s_add_u32 s{sZO}, s86, {WS_ZP:#x}")
    A(f"s_mul_i32 s89, s{sU}, {16*3200}")
    A(f"s_mul_i32 s87, s{sWAVE}, 800")
    A("s_add_u32 s87, s87, s89")
    A(f"s_add_u32 s{sKO}, s87, {WS_KVP:#x}")
    if OPT["qw2"]:
        A("s_sub_u32 s85, s82, 16")
        A("s_lshl_b32 s85, s85, 2")
        A(f"s_add_u32 s85, s85, s{sWAVE}")
        A("s_lshl_b32 s86, s81, 5")
        A("s_add_u32 s85, s85, s86")
        A("s_lshl_b32 s85, s85, 13")
        A(f"s_add_u32 s99, s85, {8192*256*(3 - OPT['qw2'])}")
def q_pf_only(A):
    for k in range(3 - OPT["qw1n"], 3):
        A(f"buffer_load_dword a255, v12, s[{sW1}:{sW1+3}], s26 offen offset:{1024*k}")
def q_loop_pf(A):
    if OPT["qw1"] == 0:
        A("s_mov_b32 exec_lo, 0xffff03ff")
        A("s_mov_b32 exec_hi, 0")
        A(f"buffer_load_dword a255, v{vT1}, s[{sWS}:{sWS+3}], 0 offen sc1")
        A("s_mov_b64 exec, -1")
        return
    for k in range(3 - OPT["qw1n"], 3):
        A(f"buffer_load_dword a255, v12, s[{sW1}:{sW1+3}], s26 offen offset:{1024*k}")
    if OPT["qw1b"]:
        for k in range(3): A(f"buffer_load_dword a255, v12, s[{sW1}:{sW1+3}], s27 offen offset:{1024*k}")
    for k in range(OPT["qw2"]):
        A(f"buffer_load_dword a255, v15, s[{sW2}:{sW2+3}], s99 offen")
        A(f"s_add_u32 s99, s99, {8192*256}")
    if OPT["touch"] and not OPT["qdefer"]:
        A("s_mov_b32 exec_lo, 0xffff03ff")
        A("s_mov_b32 exec_hi, 0")
        A(f"buffer_load_dword a255, v{vT1}, s[{sWS}:{sWS+3}], 0 offen sc1")
        A("s_mov_b64 exec, -1")
def q_extras():
    g8 = [[poll_ld(vPO, 24)], [f"s_lshl_b32 m0, s{sWAVE}, 12"]] + [[f"buffer_load_dwordx4 v{vWOd+n}, s[{sWO}:{sWO+3}], s{sWOo} offen offset:{1024*n} lds"] for n in range(4)]
    g9 = [[f"buffer_load_dword v{8+st}, v{vGo}, s[{sWS}:{sWS+3}], s{sGo} offen offset:{64*st} sc1"] for st in range(4)]
    return {8: (g8, 9), 9: (g9, 0)}

def q_epilogue(A):
    PK, Z, AF, ZP, G = 128, 168, 168, 16, 8
    KA_, DEN, OUT, TMP = 48, 204+0, 224, 112
    WBa, KVa = 0, 20
    cb, dp = QCB, QDP
    A(f"s_mov_b32 s24, {FL_KV:#x}")
    for i in range(3):
        A(f"ds_read_b64_tr_b16 {ar(WBa+6*i,2)}, v{vWOt} offset:{128*i}")
        A(f"ds_read_b64_tr_b16 {ar(WBa+6*i+2,2)}, v{vWOt+1} offset:{128*i + 8*320}")
        A(f"ds_read_b64_tr_b16 {ar(WBa+6*i+4,2)}, v{vWOt+1} offset:{128*i + 24*320}")
    A(f"v_mov_b32 v2, {LDS_RED + 1600}")
    A("v_mov_b64 v[4:5], 0")
    A("ds_write_b64 v2, v[4:5]")
    A(f"s_mov_b32 s{sL2}, {LOG2E:#x}")
    A(f"s_mov_b32 s{sL2+1}, {LOG2E:#x}")
    B = Asm()
    for k, b in enumerate(range(ACC, ACC+80, 4)):
        if k == 12: B(poll_ld(vKP, 24))
        phi4(B, b, 208)
        B(f"v_cvt_pk_bf16_f32 v{PK+2*k}, v{b}, v{b+1}")
        B(f"v_cvt_pk_bf16_f32 v{PK+2*k+1}, v{b+2}, v{b+3}")
    k = 0
    if OPT["kweave"]:
        keep = OPT["mo"]; OPT["mo"] = 1; fm = qkv_mfmas(FB_, True); OPT["mo"] = keep
        fill = [[] for _ in range(20)]
        for g in range(9, 20):
            fill[g] = B.lines[k:k+2]; k += 2
        weave(A, fm, fill)
    for x in B.lines[k:]: A(x)
    stamp(A, "q_pre")
    A("s_waitcnt vmcnt(0) lgkmcnt(0)")
    poll_check(A, "pkv", vKP, 24)
    A("s_barrier")
    stamp(A, "q_kvok")
    for t in range(5):
        A(f"buffer_load_dwordx4 {vr(Z+4*t,4)}, v{vZA+[0,0,2,1,1][t]}, s[{sWS}:{sWS+3}], s{sZO} offen offset:{[0,64,128,0,64][t]} sc1")
    kvl = []
    for rb in range(0, 16, 2):
        kvl.append(["s_mov_b32 exec_hi, 0x3ffff",
                    f"buffer_load_dwordx4 {vr(KA_+4*rb,4)}, v{vB0}, s[{sWS}:{sWS+3}], s{sKO} offen sc1",
                    f"buffer_load_dwordx4 {vr(KA_+4*rb+4,4)}, v{vB0}, s[{sWS}:{sWS+3}], s{sKO} offen offset:3200 sc1",
                    "s_mov_b32 exec_hi, -1", f"s_add_u32 s{sKO}, s{sKO}, 6400"])
    def kv(n):
        for _ in range(n):
            if kvl:
                for x in kvl.pop(0): A(x)
    kv(2)
    A("s_waitcnt vmcnt(4)")
    stamp(A, "q_z")
    for rot in (8, 4, 2, 1):
        kv(1)
        for i in range(20):
            A(f"v_add_f32_dpp v{Z+i}, v{Z+i}, v{Z+i} row_ror:{rot} row_mask:0xf bank_mask:0xf")
    for i in range(10): A(f"v_cvt_pk_bf16_f32 v{ZP+i}, v{Z+2*i}, v{Z+2*i+1}")
    kv(2)
    for k, (tp, t) in enumerate(dp):
        A(f"v_and_b32 v{AF+2*k}, v{MSK+k}, v{ZP+2*t}")
        A(f"v_and_b32 v{AF+2*k+1}, v{MSK+k}, v{ZP+2*t+1}")
    A("s_nop 0")
    DEN2 = 224
    def den(st, Dn):
        seen = set()
        for k, (tp, t) in enumerate(dp):
            c = vr(Dn + 4*tp, 4)
            A(f"v_mfma_f32_16x16x16_bf16 {c}, {vr(AF+2*k,2)}, {vr(PK+(st*5+t)*2,2)}, {c if tp in seen else 0}")
            seen.add(tp)
    den(0, DEN)
    for st in range(4):
        Dn = DEN if (st & 1) == 0 else DEN2
        o = OUT
        U = TMP + 10
        if st < 3: den(st + 1, DEN2 if (st & 1) == 0 else DEN)
        else: A("s_nop 7")
        kv(OPT["kvr"])
        for tp in range(5): A(f"v_add_f32 v{TMP+2*tp}, {EPS6:#x}, v{Dn+4*tp}")
        for tp in range(5): A(f"v_rcp_f32 v{TMP+2*tp}, v{TMP+2*tp}")
        A("s_nop 0")
        for tp in range(5): A(f"v_mul_f32 v{TMP+2*tp}, v{TMP+2*tp}, v{G+st}")
        for tp in range(5):
            p = PK + (st*5+tp)*2
            if tp == 2: kv(OPT["kvr"])
            A(f"v_lshlrev_b32 v{U}, 16, v{p}")
            A(f"v_and_b32 v{U+1}, 0xffff0000, v{p}")
            A(f"v_lshlrev_b32 v{U+2}, 16, v{p+1}")
            A(f"v_and_b32 v{U+3}, 0xffff0000, v{p+1}")
            A(f"v_pk_mul_f32 {vr(U,2)}, {vr(U,2)}, {vr(TMP+2*tp,2)} op_sel_hi:[1,0]")
            A(f"v_pk_mul_f32 {vr(U+2,2)}, {vr(U+2,2)}, {vr(TMP+2*tp,2)} op_sel_hi:[1,0]")
            A(f"v_cvt_pk_bf16_f32 v{p}, v{U}, v{U+1}")
            A(f"v_cvt_pk_bf16_f32 v{p+1}, v{U+2}, v{U+3}")
        p = PK + st*10
        A(f"buffer_store_dwordx4 {vr(p,4)}, v{vB0}, s[{sWS}:{sWS+3}], s{sPQ} offen offset:{1024*st} sc1")
        A(f"buffer_store_dwordx4 {vr(p+6,4)}, v{vB0}, s[{sWS}:{sWS+3}], s{sPQ+1} offen offset:{1024*st} sc1")
        A(f"buffer_store_dwordx2 {vr(p+4,2)}, v{vB0}, s[{sWS}:{sWS+3}], s{sPQ+2} offen offset:{1024*st} sc1")
    assert not kvl
    stamp(A, "q_pq")
    A("s_waitcnt vmcnt(12)")
    stamp(A, "q_kv")
    for w in (32, 16, 8, 4):
        for i in range(0, w, 2):
            A(f"v_pk_add_f32 {vr(KA_+i,2)}, {vr(KA_+i,2)}, {vr(KA_+w+i,2)}")
    A(f"s_mul_i32 s86, s{sWAVE}, 400")
    A(f"s_add_u32 s86, s86, {LDS_RED}")
    A("v_lshlrev_b32 v7, 3, v1")
    A("v_add_u32 v7, s86, v7")
    A(f"v_cvt_pk_bf16_f32 v{KA_}, v{KA_}, v{KA_+1}")
    A(f"v_cvt_pk_bf16_f32 v{KA_+1}, v{KA_+2}, v{KA_+3}")
    A("s_mov_b32 exec_hi, 0x3ffff")
    A(f"ds_write_b64 v7, {vr(KA_,2)}")
    A("s_mov_b32 exec_hi, -1")
    A("s_waitcnt lgkmcnt(0)")
    A("s_barrier")
    stamp(A, "q_bar")
    for i in range(7): A(f"ds_read_b64 {ar(KVa+2*i,2)}, v{26+i}")
    A("s_waitcnt lgkmcnt(0)")
    MD = 64
    for i in range(3):
        seen = set()
        for k, (te, tc) in enumerate(PAIRS):
            c = vr(MD + (i*3+tc)*4, 4)
            A(f"v_mfma_f32_16x16x16_bf16 {c}, {ar(KVa+2*k,2)}, {ar(WBa+6*i+2*(te-2),2)}, {c if tc in seen else 0}")
            seen.add(tc)
    for i in range(3):
        if i == 2:
            A(f"s_cmp_ge_u32 s{sWAVE}, 2")
            A("s_cbranch_scc1 q_m_done")
            A("s_nop 2")
        b = MD + i*12
        for k in range(6): A(f"v_cvt_pk_bf16_f32 v{b+k}, v{b+2*k}, v{b+2*k+1}")
        A(f"buffer_store_dwordx4 {vr(b,4)}, v{vB0}, s[{sWS}:{sWS+3}], s{sMA} offen sc1")
        A("s_mov_b32 exec_hi, 0")
        A(f"buffer_store_dwordx2 {vr(b+4,2)}, v{vB0}, s[{sWS}:{sWS+3}], s{sMA+1} offen sc1")
        A("s_mov_b32 exec_hi, -1")
        A(f"s_add_u32 s{sMA}, s{sMA}, 4096")
        A(f"s_add_u32 s{sMA+1}, s{sMA+1}, 4096")
    A.label("q_m_done")
    stamp(A, "q_mdone")

def tlb_touch(A):
    for ptr, size in ((26, WS_SIZE), (22, 2048*1280), (16, 1536*4096), (12, 2048*3072), (8, 640*1280), (14, 4), (18, 4)):
        A(f"s_mov_b64 s[86:87], s[{ptr}:{ptr+1}]")
        offs = sorted(set(list(range(0, size, 1 << 21)) + [size - 4]))
        prev = 0
        for o in offs:
            if o - prev >= (1 << 20):
                A(f"s_add_u32 s86, s86, {o - prev:#x}")
                A("s_addc_u32 s87, s87, 0")
                prev = o
            A(f"s_load_dword s98, s[86:87], {o - prev:#x}")
def ln_role(A, after_loads, ne):
    X, GW, D = 48, 88, 128
    A("v_lshrrev_b32 v2, 3, v1")
    A(f"s_lshl_b32 s85, s{sWAVE}, 3")
    A("v_add_u32 v2, s85, v2")
    A("v_and_b32 v3, 7, v1")
    A("v_lshlrev_b32 v3, 4, v3")
    A("v_mul_u32_u24 v4, 1280, v2")
    A("v_add_u32 v4, v4, v3")
    A(f"s_mul_i32 s85, s{sA}, {32*1280}")
    A("s_waitcnt lgkmcnt(0)"); srds(A, ["X", "GW"])
    LN_TLB = True
    for i in range(10):
        A(f"buffer_load_dwordx4 {vr(X+4*i,4)}, v4, s[{sX}:{sX+3}], s85 offen offset:{128*i}")
    for i in range(10):
        A(f"buffer_load_dwordx4 {vr(GW+4*i,4)}, v3, s[{sGW}:{sGW+3}], 0 offen offset:{128*i}")
    A("v_mul_u32_u24 v16, 1312, v2")
    A("v_add_u32 v16, v16, v3")
    A("v_lshlrev_b32 v17, 2, v2")
    if OPT["tlb"] == 1: tlb_touch(A)
    after_loads(A)
    A("v_mov_b32 v5, 0x3f803f80")
    for i in range(4): A(f"v_mov_b32 v{8+i}, 0")
    A(f"s_waitcnt vmcnt({10+ne})")
    stamp(A, "ln_first")
    for i in range(40):
        A(f"v_dot2_f32_bf16 v{8+(i&1)}, v{X+i}, v5, v{8+(i&1)}")
    A(f"s_waitcnt vmcnt({ne})")
    for i in range(40):
        A(f"v_dot2_f32_bf16 v{10+(i&1)}, v{X+i}, v{GW+i}, v{10+(i&1)}")
    A("s_nop 2")
    A("v_add_f32 v8, v8, v9")
    A("v_add_f32 v10, v10, v11")
    def red8(r):
        for m in ("quad_perm:[1,0,3,2]", "quad_perm:[2,3,0,1]", "row_half_mirror"):
            A("s_nop 1")
            for x in r: A(f"v_add_f32_dpp v{x}, v{x}, v{x} {m} row_mask:0xf bank_mask:0xf")
    red8([8, 10])
    A(f"v_mul_f32 v8, {0xBACCCCCD:#x}, v8")
    A("v_mov_b32 v9, v8")
    A(f"v_mul_f32 v10, {LOG2E | 0x80000000:#x}, v10")
    A("v_exp_f32 v10, v10")
    for i in range(40):
        A(f"v_lshlrev_b32 v{D+2*i}, 16, v{X+i}")
        A(f"v_and_b32 v{D+2*i+1}, 0xffff0000, v{X+i}")
    A("v_add_f32 v10, 1.0, v10")
    A("v_rcp_f32 v10, v10")
    for i in range(40):
        A(f"v_pk_add_f32 {vr(D+2*i,2)}, {vr(D+2*i,2)}, v[8:9]")
    A("v_pk_mul_f32 v[18:19], v[128:129], v[128:129]")
    A("v_pk_mul_f32 v[20:21], v[130:131], v[130:131]")
    for i in range(2, 40):
        a = 18 + 2*(i & 1)
        A(f"v_pk_fma_f32 {vr(a,2)}, {vr(D+2*i,2)}, {vr(D+2*i,2)}, {vr(a,2)}")
    A("v_pk_add_f32 v[18:19], v[18:19], v[20:21]")
    A("ds_write_b32 v17, v10 offset:49152")
    A("v_add_f32 v18, v18, v19")
    red8([18])
    A(f"v_mov_b32 v19, {0x3727C5AC:#x}")
    A(f"v_fmac_f32 v19, {0x3ACCCCCD:#x}, v18")
    A("v_rsq_f32 v18, v19")
    A("s_nop 0")
    A("v_mov_b32 v19, v18")
    for i in range(40):
        A(f"v_pk_mul_f32 {vr(D+2*i,2)}, {vr(D+2*i,2)}, v[18:19]")
        A(f"v_cvt_pk_bf16_f32 v{X+i}, v{D+2*i}, v{D+2*i+1}")
        if (i & 3) == 3:
            A(f"ds_write_b128 v16, {vr(X+i-3,4)} offset:{128*(i//4)}")
    A("v_lshrrev_b32 v2, 2, v1")
    A("v_mul_u32_u24 v2, 1312, v2")
    A("v_and_b32 v3, 3, v1")
    A("v_lshl_add_u32 v2, v3, 3, v2")
    A(f"s_mul_i32 s85, s{sWAVE}, 320")
    A("v_add_u32 v2, s85, v2")
    A(f"s_mul_i32 s85, s{sA}, 40960")
    A(f"s_mul_i32 s86, s{sWAVE}, 10240")
    A("s_add_u32 s85, s85, s86")
    A("s_add_u32 s86, s85, 4096")
    A("s_add_u32 s87, s85, 8192")
    A("v_lshlrev_b32 v17, 2, v1")
    A(f"s_lshl_b32 s88, s{sA}, 7")
    A(f"s_add_u32 s88, s88, {WS_G:#x}")
    A("s_waitcnt lgkmcnt(0)")
    A("s_barrier")
    A(f"s_cmp_lg_u32 s{sWAVE}, 3")
    A("s_cbranch_scc1 ln_ng")
    A("ds_read_b32 v10, v17 offset:49152")
    A("s_waitcnt lgkmcnt(0)")
    A("s_mov_b32 exec_hi, 0")
    A(f"buffer_store_dword v10, v17, s[{sWS}:{sWS+3}], s88 offen sc1")
    A("s_mov_b32 exec_hi, -1")
    A.label("ln_ng")
    for t in range(10):
        A(f"ds_read_b64_tr_b16 {vr(D+4*t,2)}, v2 offset:{32*t}")
        A(f"ds_read_b64_tr_b16 {vr(D+4*t+2,2)}, v2 offset:{32*t + 16*1312}")
        if t == 6: A("s_waitcnt lgkmcnt(6)")
    for t in range(10):
        A(f"s_waitcnt lgkmcnt({min(2*(9-t), 6)})")
        A(f"buffer_store_dwordx4 {vr(D+4*t,4)}, v{vB0}, s[{sWS}:{sWS+3}], s{85 + t//4} offen offset:{1024*(t&3)} sc1")

def c_adv1(): return [f"s_add_u32 s{sC1}, s{sC1}, s{sCST}", f"s_cmp_eq_u32 s{sC1}, s{sCE1}", f"s_cselect_b32 s{sC1}, s{sCB1}, s{sC1}"]
def c_adv2(): return [f"s_add_u32 s{sC2}, s{sC2}, 40960", f"s_cmp_eq_u32 s{sC2}, s{sCE2}", f"s_cselect_b32 s{sC2}, s{sCB2}, s{sC2}"]
def c_wdma(slot):
    L = [[f"s_add_u32 m0, s{sCM0}, {4096*slot}"]]
    for q in range(4):
        L.append([f"buffer_load_dwordx4 v{vWS_+q}, s[{sCW}:{sCW+3}], s{sC1} offen offset:{1024*q} lds"])
    return L
def c_bload(slot, n):
    return f"buffer_load_dwordx4 {ar(BR+20*slot+4*n,4)}, v{vB0 if n < 4 else vB1}, s[{sWS}:{sWS+3}], s{sC2} offen offset:{1024*(n&3)} sc1"
def c_tr(slot, aset):
    return [f"ds_read_b64_tr_b16 {ar(AS+16*aset+4*t+2*j,2)}, v{vTR+t} offset:{4096*slot+2048*j}" for t in range(4) for j in range(2)]
def c_wring(A):
    for s in range(OPT["d"]):
        emit_dma_block(A, c_wdma(s))
        for x in c_adv1(): A(x)
def c_bring(A):
    for s in range(OPT["d"]):
        for n in range(5): A(c_bload(s, n))
        for x in c_adv2(): A(x)
def switch_to_fb(A):
    A(f"s_mov_b64 s[{sCW}:{sCW+1}], s[{sW2}:{sW2+1}]")
    A(f"s_mov_b64 s[{sCW+2}:{sCW+3}], s[{sW2+2}:{sW2+3}]")
    for i in range(4): A(f"v_mov_b32 v{vWS_+i}, v{vWS2+i}")
    A(f"s_mov_b32 s{sC1}, s{sF1}")
    A(f"s_mov_b32 s{sCB1}, s{sFB1}")
    A(f"s_mov_b32 s{sCE1}, s{sFE1}")
    A(f"s_mov_b32 s{sCST}, {32*4096}")

G1A = 112
def c_step(A, u, wait, doW, doB, doT, accf, w_is_A, drain=None, first=False, side=None, pre=[], late=None, wslot=None, trl=None):
    DD = OPT["d"]
    A(f"s_waitcnt vmcnt({wait}) lgkmcnt(0)")
    for x in pre: A(x)
    tr = c_tr((u+1) & 3, (u+1) & 1) if doT else (trl or [])
    mf = []
    order = [(n, t) for n in range(5) for t in range(4)]
    if OPT["mo"] & 2 and not drain: order = [(n, t) for t in range(4) for n in range(5)]
    if OPT["mo"] & 4 and not drain: order = [(n, t if n % 2 == 0 else 3 - t) for n in range(5) for t in range(4)]
    for n, t in order:
            w = ar(AS+16*(u & 1)+4*t, 4); b = ar(BR+20*u+4*n, 4); c = accf((t*5+n)*4)
            cin = "0" if first else c
            mf.append(f"v_mfma_f32_16x16x32_bf16 {c}, {w}, {b}, {cin}" if w_is_A else f"v_mfma_f32_16x16x32_bf16 {c}, {b}, {w}, {cin}")
    fill = [[] for _ in range(20)]
    sl = (u + DD) & 3
    wd = c_wdma(sl if wslot is None else wslot)
    post = []
    if doW:
        A(wd[0][0])
        for t in range(4): fill[t] += wd[1+t]
        fill[5 if drain else 12] += c_adv1()
    for k, x in enumerate(tr): fill[4+k].append(x)
    if doB:
        for n in range(5): fill[4*n+3].append(c_bload(sl, n))
        fill[19] += c_adv2()
    if side:
        per = -(-len(side) // 20)
        for g in range(20): fill[g] = side[g*per:(g+1)*per] + fill[g]
    if late:
        fill[13] += late[:9]
        post += late[9:]
    if drain:
        for n in range(3):
            for t in range(4): fill[4*(n+2)+t] += drain(n, t)
        post += ["s_nop 3"] + flat([drain(3, t) for t in range(4)]) + flat([drain(4, t) for t in range(4)])
    weave(A, mf, fill)
    for x in post: A(x)

AS3 = 192
def c_merged(A, u, wait, doW, accf, w_is_A, drain, wslots=None):
    A(f"s_waitcnt vmcnt({wait}) lgkmcnt(0)")
    mf = []
    for n in range(5):
        for k, aset in ((u, AS + 16*(u & 1)), (u + 1, AS3)):
            for t in range(4):
                w = ar(aset+4*t, 4); b = ar(BR+20*(k & 3)+4*n, 4); c = accf((t*5+n)*4)
                mf.append(f"v_mfma_f32_16x16x32_bf16 {c}, {w}, {b}, {c}" if w_is_A else f"v_mfma_f32_16x16x32_bf16 {c}, {b}, {w}, {c}")
    fill = [[] for _ in range(40)]
    if doW:
        for j, sl in enumerate(wslots):
            wd = c_wdma(sl)
            fill[6*j] += wd[0]
            for t in range(4): fill[6*j+1+t] += wd[1+t]
            fill[6*j+5] += c_adv1()
    for n in range(4):
        for t in range(4):
            g = 8*(n+1) + 4 + 2*t
            if g + (0) < 40: fill[g] += drain(n, t)
            else: fill[39] += drain(n, t)
    weave(A, mf, fill)
    for x in ["s_nop 3"] + flat([drain(4, t) for t in range(4)]): A(x)
def tr3(place):
    kind, sl = place
    base = vTR if kind == "r" else vTX
    return [f"ds_read_b64_tr_b16 {ar(AS3+4*t+2*j,2)}, v{base+t} offset:{4096*sl+2048*j}" for t in range(4) for j in range(2)]

def c_loop(A, pfx, nks, accf, w_is_A, isg1, drain):
    DD = OPT["d"]; W0 = 5 + 9*(DD-2)
    tail_next = isg1 and OPT["tailw"]
    A(f".p2align {OPT['lal']}")
    A.label(f"{pfx}_loop")
    if isg1 and OPT["lnmid"]:
        A(f"s_cmp_eq_u32 s{sCNT}, s{sPUB}")
        A("s_cbranch_scc1 g1_blk")
        A.label("g1_noblk")
    for u in range(4):
        c_step(A, u, W0, True, True, True, accf, w_is_A)
    if STAMPS:
        ng = nks//4 - 1
        i = _st["n"]; _st["n"] += ng; _st["names"] += [f"{pfx}_g{k}" for k in range(ng)]
        A("s_memtime s[100:101]")
        A("s_waitcnt lgkmcnt(0)")
        A(f"s_sub_u32 m0, {i + ng}, s{sCNT}")
        A("s_nop 0")
        A("v_writelane_b32 v47, s100, m0")
    A(f"s_sub_u32 s{sCNT}, s{sCNT}, 1")
    A(f"s_cmp_lg_u32 s{sCNT}, 0")
    A(f"s_cbranch_scc1 {pfx}_loop")
    seq = []
    for k in range(DD): seq += [("W", k)]*4 + [("B", k)]*5
    for u in range(4):
        need = max([i for i, (t, k) in enumerate(seq) if (t == "B" and k == u) or (t == "W" and k == u+1)])
        wait = len(seq) - 1 - need
        own = u < 4 - DD
        if isg1 and u == 4 - DD: switch_to_fb(A)
        nxt = tail_next and not own
        if OPT["merge"] and u == 1:
            nW = 4 if nxt else 0
            w3 = len(seq) + nW - 1 - max(i for i, (t, k) in enumerate(seq) if t == "W" and k == 3)
            c_step(A, u, wait, own or nxt, own, True, accf, w_is_A, late=[f"s_waitcnt vmcnt({w3})"] + tr3(("r", 3)))
        elif OPT["merge"] and u == 2:
            wait = len(seq) - 1 - max(i for i, (t, k) in enumerate(seq) if t == "B" and k == 3)
            c_merged(A, 2, wait, nxt, accf, w_is_A, drain, [(2+DD) & 3, (3+DD) & 3])
            break
        else:
            c_step(A, u, wait, own or nxt, own, u < 3, accf, w_is_A, drain if u == 3 else None)
        if own: seq += [("W", u+DD)]*4 + [("B", u+DD)]*5
        elif nxt: seq += [("N", 0)]*4
    stamp(A, pfx + "_loopdone")

sFA1, sFA2, sFR = 54, 55, 94
sUS = 52
vGE = 224
def fa_params(A):
    A(f"s_and_b32 s{sFR}, s{sFD}, 3")
    A(f"s_lshl_b32 s{sFR}, s{sFR}, 1")
    A(f"s_and_b32 s89, s{sFS}, 7")
    A(f"s_add_u32 s{sFR}, s{sFR}, s89")
    A(f"s_mul_i32 s89, s{sFR}, 52")
    A("s_lshr_b32 s89, s89, 8")
    A("s_mul_i32 s89, s89, 5")
    A(f"s_sub_u32 s{sFR}, s{sFR}, s89")
    if OPT["arot"] == 0: A(f"s_mov_b32 s{sFR}, 0")
    if OPT["arot"] == 2:
        A(f"s_add_u32 s{sFR}, s{sFS}, s{sFD}")
        A(f"s_and_b32 s{sFR}, s{sFR}, 1")
        A(f"s_mul_i32 s{sFR}, s{sFR}, 3")
    A(f"s_mul_i32 s86, s{sWAVE}, 5")
    A(f"s_add_u32 s86, s86, s{sFR}")
    A(f"s_mul_i32 s{sFA1}, s{sFS}, {0 if OPT.get('same') else 20}")
    A(f"s_add_u32 s{sFA1}, s{sFA1}, s86")
    A(f"s_lshl_b32 s{sFA1}, s{sFA1}, 12")
    A(f"s_add_u32 s{sFA1}, s{sFA1}, {WS_PQ:#x}")
    A(f"s_mul_i32 s{sFA2}, s86, 40960")
    A(f"s_mul_i32 s89, s{sFD}, {0 if OPT.get('same') else 5120}")
    A(f"s_add_u32 s{sFA2}, s{sFA2}, s89")
    A(f"s_add_u32 s{sFA2}, s{sFA2}, {WS_M:#x}")
fa_b = lambda i: 0 if i == 0 else 112 + 36*(i-1)
def fa_ld(A, i):
    for st in range(4):
        A(f"buffer_load_dwordx4 {ar(fa_b(i)+4*st,4)}, v{vB0}, s[{sWS}:{sWS+3}], s{sFA1} offen offset:{1024*st} sc1")
    for n in range(5):
        A(f"buffer_load_dwordx4 {ar(fa_b(i)+16+4*n,4)}, v{vB0 if n < 4 else vB1}, s[{sWS}:{sWS+3}], s{sFA2} offen offset:{1024*(n&3)} sc1")
    if i < 4:
        A(f"s_add_u32 s{sFA1}, s{sFA1}, 4096")
        A(f"s_add_u32 s{sFA2}, s{sFA2}, 40960")
        A(f"s_add_u32 s{sFR}, s{sFR}, 1")
        A(f"s_cmp_eq_u32 s{sFR}, 5")
        A(f"s_cselect_b32 s86, {5*4096}, 0")
        A(f"s_cselect_b32 s89, {5*40960}, 0")
        A(f"s_sub_u32 s{sFA1}, s{sFA1}, s86")
        A(f"s_sub_u32 s{sFA2}, s{sFA2}, s89")

def g1_params(A):
    W, Rr = vGE, vGE + 4
    A("v_and_b32 v2, 15, v1")
    A("v_lshrrev_b32 v3, 4, v1")
    A("v_xor_b32 v4, v2, v3")
    A("v_lshlrev_b32 v4, 4, v4")
    A("v_lshl_add_u32 v4, v2, 8, v4")
    A(f"s_mul_i32 s85, s{sWAVE}, 20480")
    A(f"s_add_u32 s85, s85, {LDS_RED}")
    A(f"v_add_u32 v{W}, s85, v4")
    for t in range(1, 4): A(f"v_xor_b32 v{W+t}, {64*t}, v{W}")
    A(f"s_and_b32 s85, s{sWAVE}, 1")
    A(f"s_lshr_b32 s86, s{sWAVE}, 1")
    A("s_lshl_b32 s87, s85, 7")
    A("v_xor_b32 v4, s87, v4")
    A("s_lshl_b32 s87, s86, 12")
    A(f"s_add_u32 s87, s87, {LDS_RED}")
    A(f"v_add_u32 v{Rr}, s87, v4")
    A(f"v_xor_b32 v{Rr+1}, 64, v{Rr}")
    A(f"v_add_u32 v{Rr+2}, 40960, v{Rr}")
    A(f"v_add_u32 v{Rr+3}, 40960, v{Rr+1}")
    A(f"s_lshl_b32 s87, s{sG1F}, 1")
    A("s_add_u32 s87, s87, s85")
    A("s_lshl_b32 s23, s87, 6")
    A("v_lshlrev_b32 v12, 3, v3")
    A("s_mul_i32 s87, s87, 40")
    A(f"s_mul_i32 s88, s{sG1D}, 5")
    A("s_add_u32 s87, s87, s88")
    A("s_add_u32 s87, s87, s86")
    A("s_lshl_b32 s87, s87, 10")
    A(f"s_add_u32 s{sUS}, s87, {WS_U:#x}")
    A(f"s_add_u32 s{sUS+1}, s{sUS}, 4096")
    A(f"s_mov_b32 s90, {0xBDD2D3E8:#x}")
    A(f"s_mov_b32 s91, {0xBDD2D3E8:#x}")
    A(f"v_mov_b32 v{vGE+8}, {0xC0135761:#x}")
    A(f"v_mov_b32 v{vGE+9}, {0xC0135761:#x}")
    fa_params(A)
def b1_loads():
    return [[f"buffer_load_dwordx2 {vr(vGE+18+2*j,2)}, v12, s[{sB1}:{sB1+3}], s23 offen offset:{32*j}"] for j in range(2)]
def zero_acc(A):
    for i in range(0, 80, 2): A(f"v_mov_b64 {vr(ACC+i,2)}, 0")

def g1_phase(A):
    c_loop(A, "g1", 16, lambda o: ar(G1A+o, 4), True, True, lambda n, t: [f"ds_write_b128 v{vGE+t}, {ar(G1A+(t*5+n)*4,4)} offset:{4096*n}"])
    for j in range(2):
        for k in range(2):
            A(f"v_lshlrev_b32 v{vGE+10+4*j+2*k}, 16, v{vGE+18+2*j+k}")
            A(f"v_and_b32 v{vGE+11+4*j+2*k}, 0xffff0000, v{vGE+18+2*j+k}")
    A("s_waitcnt lgkmcnt(0)")
    A("s_barrier")
    stamp(A, "g1_red")
    if OPT["lnpost"] == 2:
        A("s_cmp_lt_u32 s82, 24")
        A("s_cbranch_scc1 g1_nw2")
        w2_prefetch(A, 24, list(range(3 - OPT["lnpn"], 3)))
        A.label("g1_nw2")
    A0 = A
    R = 128
    def rd(r):
        for j in range(2):
            for part in range(4):
                A(f"ds_read_b128 {vr(R+32*r+16*j+4*part,4)}, v{vGE+4+j+2*(part>>1)} offset:{8192*r + 20480*(part&1)}")
    def fin(r):
        b = R + 32*r
        for j in range(2):
            x = b + 16*j
            for i in (0, 2):
                A(f"v_pk_add_f32 {vr(x+i,2)}, {vr(x+i,2)}, {vr(x+4+i,2)}")
                A(f"v_pk_add_f32 {vr(x+8+i,2)}, {vr(x+8+i,2)}, {vr(x+12+i,2)}")
        for j in range(2):
            x = b + 16*j
            for i in (0, 2): A(f"v_pk_add_f32 {vr(x+i,2)}, {vr(x+i,2)}, {vr(vGE+10+4*j+i,2)}")
        for j in range(2):
            x = b + 16*j
            for i in (0, 2): A(f"v_pk_add_f32 {vr(x+i,2)}, {vr(x+i,2)}, {vr(x+8+i,2)}")
        E = [b + 16*j + i for j in range(2) for i in range(4)]
        E2 = E[::2]
        for x in E2: A(f"v_pk_mul_f32 {vr(x+4,2)}, {vr(x,2)}, {vr(x,2)}")
        for x in E2: A(f"v_pk_fma_f32 {vr(x+4,2)}, {vr(x+4,2)}, s[90:91], {vr(vGE+8,2)}")
        for x in E2: A(f"v_pk_mul_f32 {vr(x+4,2)}, {vr(x+4,2)}, {vr(x,2)}")
        for x in E: A(f"v_exp_f32 v{x+4}, v{x+4}")
        for x in E2: A(f"v_pk_add_f32 {vr(x+4,2)}, {vr(x+4,2)}, 1.0 op_sel_hi:[1,0]")
        for x in E: A(f"v_rcp_f32 v{x+4}, v{x+4}")
        for x in E2: A(f"v_pk_mul_f32 {vr(x,2)}, {vr(x,2)}, {vr(x+4,2)}")
        for j in range(2):
            x = b + 16*j
            A(f"v_cvt_pk_bf16_f32 v{b+8+2*j}, v{x}, v{x+1}")
            A(f"v_cvt_pk_bf16_f32 v{b+9+2*j}, v{x+2}, v{x+3}")
        A(f"buffer_store_dwordx4 {vr(b+8,4)}, v{vB0}, s[{sWS}:{sWS+3}], s{sUS if r < 2 else sUS+1} offen offset:{2048*(r&1)} sc1")
    def mix(body, groups, lo=0):
        n = len(groups)
        pos = {}
        for k in range(n): pos.setdefault(lo + (k*(len(body) - lo - 2))//max(n, 1), []).append(groups[k])
        for i, x in enumerate(body):
            for g in pos.get(i, []):
                for y in g: A0(y)
            A0(x)
    G = []
    if OPT["xw"]:
        B = Asm(); xw_loads(B)
        for x in B.lines:
            if x.startswith("buffer_load") or not G: G.append([x])
            else: G[-1].append(x)
        G[1] = G[0] + G[1]; G = G[1:]
    n0 = (len(G)*OPT["xsp"])//10
    A = Asm()
    rd(0)
    A("s_waitcnt lgkmcnt(4)")
    rd(1)
    A("s_waitcnt lgkmcnt(8)")
    fin(0)
    mix(A.lines, G[:n0] + ([] if G[n0:] else [[poll_ld(15, 25)]]), 8)
    late = (G[n0:] + [[poll_ld(15, 25)]]) if G[n0:] else []
    k = 0 if late else 1
    A0(f"s_cmp_ge_u32 s{sWAVE}, 2")
    A0("s_cbranch_scc1 g1_e1")
    A = A0
    rd(2)
    A("s_waitcnt lgkmcnt(8)")
    A = Asm(); fin(1); mix(A.lines, late); A = A0
    A("s_waitcnt lgkmcnt(0)")
    fin(2)
    A(f"s_waitcnt vmcnt({2 + k})")
    A("s_branch g1_e2")
    A.label("g1_e1")
    A("s_waitcnt lgkmcnt(0)")
    A = Asm(); fin(1); mix(A.lines, late); A = A0
    A(f"s_waitcnt vmcnt({1 + k})")
    A.label("g1_e2")
    stamp(A, "g1_st")
    A(f"s_mov_b32 s{sQOK}, 0")
    A(f"v_cmp_ne_u32 vcc, s{sNON}, v{vPOLL}")
    A("s_cbranch_vccnz g1_q1")
    A(f"s_mov_b32 s{sQOK}, 1")
    fa_ld(A, 0)
    A("s_waitcnt vmcnt(9)")
    A("s_branch g1_q2")
    A.label("g1_q1")
    if OPT["tailw"]: A("s_waitcnt vmcnt(0)")
    else:
        c_wring(A)
        A(f"s_waitcnt vmcnt({4*OPT['d']})")
    A.label("g1_q2")
    A(f"s_mul_i32 s88, s{sG1D}, 24")
    A(f"s_add_u32 s88, s88, s{sG1F}")
    publish(A, "pub_u", FL_G1, 88, None)
    stamp(A, "g1_pub")
    for x in xw_writes(): A(x)
    if OPT["lnpost"] == 1:
        A("s_cmp_lt_u32 s82, 24")
        A("s_cbranch_scc1 g1_nw2")
        w2_prefetch(A, 24, list(range(3 - OPT["lnpn"], 3)))
        A.label("g1_nw2")
    if not OPT["tailw"]:
        A(f"s_cmp_eq_u32 s{sQOK}, 0")
        A("s_cbranch_scc1 g1_q3")
        c_wring(A)
        A("s_branch f_go")
        A.label("g1_q3")
    else:
        A(f"s_cmp_lg_u32 s{sQOK}, 0")
        A("s_cbranch_scc1 f_go")
    A(poll_ld(15, 25))
    A("s_waitcnt vmcnt(0)")
    poll_check(A, "pq", 15, 25)

def accb_init(st):
    return [f"v_lshlrev_b32 v{ACC+st*20}, 16, v{29+st}", f"v_lshlrev_b32 v{ACC+st*20+1}, 16, v{29+st}"] + \
           [f"v_mov_b64 {vr(ACC+st*20+k,2)}, {vr(ACC+st*20,2)}" for k in range(2, 20, 2)]
vTX = 246
def xw_setup():
    L = [f"s_mul_i32 s85, s{sWAVE}, {PS()}", f"s_add_u32 s85, s85, {LDS_RED}", f"v_add_u32 v{vTX+4}, s85, v{vB0}", f"s_sub_u32 s85, s85, s{sCM0}"]
    L += [f"v_add_u32 v{vTX+t}, s85, v{vTR+t}" for t in range(4)]
    return L
def xw_loads(A):
    emit_dma_block(A, c_wdma(3))
    for x in c_adv1(): A(x)
    for i in range(OPT["xw"]):
        for q in range(4):
            A(f"buffer_load_dwordx4 {vr(ACC+16*i+4*q,4)}, v{vWS_+q}, s[{sCW}:{sCW+3}], s{sC1} offen offset:{1024*q}")
        for x in c_adv1(): A(x)
def xw_writes():
    return [f"ds_write_b128 v{vTX+4}, {vr(ACC+16*i+4*q,4)} offset:{4096*i+1024*q}" for i in range(OPT["xw"]) for q in range(4)]
def xw_dma(A):
    emit_dma_block(A, c_wdma(3))
    for x in c_adv1(): A(x)
    A(f"s_mul_i32 s85, s{sWAVE}, {PS()}")
    A(f"s_add_u32 s85, s85, {LDS_RED}")
    for i in range(OPT["xw"]):
        A(f"s_add_u32 m0, s85, {4096*i}")
        A("s_nop 0")
        for q in range(4):
            A(f"buffer_load_dwordx4 v{vWS_+q}, s[{sCW}:{sCW+3}], s{sC1} offen offset:{1024*q} lds")
        for x in c_adv1(): A(x)
def f_setup1():
    B = Asm()
    B("v_and_b32 v5, 15, v1")
    B("v_lshlrev_b32 v6, 2, v5")
    B(f"s_lshl_b32 s23, s{sFS}, 8")
    B(f"s_add_u32 s23, s23, {WS_G:#x}")
    for st in range(4):
        B(f"buffer_load_dword v{8+st}, v6, s[{sWS}:{sWS+3}], s23 offen offset:{64*st} sc1")
    B("v_lshlrev_b32 v6, 1, v5")
    B(f"s_lshl_b32 s23, s{sFS}, 7")
    B(f"s_cmp_eq_u32 s{sWAVE}, 0")
    B("s_cselect_b32 s23, s23, 0x40000000")
    for st in range(4):
        B(f"buffer_load_ushort v{29+st}, v6, s[{sB2}:{sB2+3}], s23 offen offset:{32*st}")
    return B.lines
def f_setup2():
    B = Asm()
    for st in range(4):
        B(f"v_sub_f32 v{8+st}, 1.0, v{8+st}")
        if not OPT["xw"]:
            for x in accb_init(st): B(x)
    B("v_min_u32 v12, 23, v1")
    B("v_lshlrev_b32 v12, 7, v12")
    B(f"s_mul_i32 s23, s{sFD}, {24*128}")
    B(f"s_add_u32 s23, s23, {FL_G1:#x}")
    B("v_and_b32 v5, 15, v1")
    B("v_lshrrev_b32 v6, 4, v1")
    B(f"v_mul_u32_u24 v4, {RS()}, v5")
    if OPT["ox4"]:
        B("v_lshrrev_b32 v7, 1, v6")
        B("v_lshl_add_u32 v4, v7, 4, v4")
        B("v_and_b32 v6, 1, v6")
        B("v_mul_u32_u24 v6, 11264, v6")
        B("v_add_u32 v4, v4, v6")
    else:
        B("v_lshl_add_u32 v4, v6, 4, v4")
    B(f"s_mul_i32 s85, s{sWAVE}, {PS()}")
    B(f"s_add_u32 s85, s85, {LDS_RED}")
    B("v_add_u32 v4, s85, v4")
    B(f"s_mul_i32 s85, s{sWAVE}, {16*RS()}")
    B(f"s_add_u32 s85, s85, {LDS_RED}")
    B(f"s_lshl_b32 s95, s{sFS}, 2")
    B(f"s_add_u32 s95, s95, s{sWAVE}")
    B(f"s_mul_i32 s95, s95, {16*1280}")
    B(f"s_mul_i32 s87, s{sFD}, 160")
    B("s_add_u32 s95, s95, s87")
    if OPT["ox4"]:
        B("v_mul_u32_u24 v6, 205, v1")
        B("v_lshrrev_b32 v6, 11, v6")
        B("v_mul_u32_u24 v7, 10, v6")
        B("v_sub_u32 v7, v1, v7")
        B("v_min_u32 v6, 5, v6")
        B("v_mul_u32_u24 v16, 176, v6")
        B("v_lshl_add_u32 v16, v7, 4, v16")
        B("v_add_u32 v16, s85, v16")
        B("v_mul_u32_u24 v24, 1280, v6")
        B("v_lshl_add_u32 v24, v7, 4, v24")
    else:
        for r in range(5):
            B(f"v_add_u32 v5, {64*r}, v1")
            B("v_mul_u32_u24 v6, 3277, v5")
            B("v_lshrrev_b32 v6, 16, v6")
            B("v_mul_u32_u24 v7, 20, v6")
            B("v_sub_u32 v7, v5, v7")
            B(f"v_mul_u32_u24 v{16+r}, 336, v6")
            B(f"v_lshl_add_u32 v{16+r}, v7, 4, v{16+r}")
            B(f"v_add_u32 v{16+r}, s85, v{16+r}")
            B(f"v_mul_u32_u24 v{24+r}, 1280, v6")
            B(f"v_lshl_add_u32 v{24+r}, v7, 3, v{24+r}")
    if OPT["otouch"]:
        B("v_lshrrev_b32 v5, 1, v1")
        B("v_and_b32 v5, 15, v5")
        B("v_mul_u32_u24 v5, 1280, v5")
        B("v_and_b32 v6, 1, v1")
        B("v_mul_u32_u24 v6, 156, v6")
        B("v_add_u32 v5, v5, v6")
    if OPT["xw"]:
        for x in xw_setup(): B(x)
    return B.lines

def f_phase(A):
    ACA = 128
    A.label("f_entry")
    fa_ld(A, 0)
    A.label("f_go")
    fa_ld(A, 1)
    stamp(A, "f_qok")
    A(f"s_or_b32 s85, s2, s{sWAVE}")
    A("s_cmp_lg_u32 s85, 0")
    A("s_cbranch_scc1 f_nox")
    A(f"s_mov_b32 s85, {FL_X:#x}")
    flag_store(A, 85)
    A.label("f_nox")
    fb = fa_b
    def fam(i, side=[]):
        mf = []
        for n in range(5):
            for st in range(4):
                c = vr(ACA+(st*5+n)*4, 4)
                mf.append(f"v_mfma_f32_16x16x32_bf16 {c}, {ar(fb(i)+16+4*n,4)}, {ar(fb(i)+4*st,4)}, {c if i else 0}")
        fill = [[] for _ in range(20)]
        for k, g in enumerate(side): fill[(k*20)//len(side)] += g
        weave(A, mf, fill)
    def ldg(i):
        B = Asm(); fa_ld(B, i); g = [[x] for x in B.lines[:9]]; g[-1] += B.lines[9:]; return g
    D = OPT["d"]
    fa_ld(A, 2)
    A(f"s_mov_b32 s{sC2}, s{sF2}")
    A(f"s_mov_b32 s{sCB2}, s{sFB2}")
    A(f"s_mov_b32 s{sCE2}, s{sFE2}")
    stamp(A, "fa_i2")
    A("s_waitcnt vmcnt(18)")
    fam(0, ldg(3))
    stamp(A, "fa_m0")
    A("s_waitcnt vmcnt(18)")
    fam(1, [[poll_ld(12, 23)]] + ldg(4))
    stamp(A, "fa_m1")
    br = []
    for sl in range(D):
        br += [[c_bload(sl, n)] for n in range(5)]; br[-1] += c_adv2()
    ai = [[x] for x in flat([accb_init(st) for st in range(4)])] if OPT["xw"] else []
    if OPT["uearly"]:
        A("s_waitcnt vmcnt(9) lgkmcnt(0)")
        stamp(A, "fa_s3")
        poll_check(A, "pu", 12, 23)
        stamp(A, "f_uok")
        fam(2, br)
        stamp(A, "fa_m2")
        fam(3, ai)
    else:
        A("s_waitcnt vmcnt(19) lgkmcnt(0)")
        fam(2, ai)
        stamp(A, "fa_m2")
        A("s_waitcnt vmcnt(9)")
        stamp(A, "fa_s3")
        poll_check(A, "pu", 12, 23)
        stamp(A, "f_uok")
        fam(3, br)
    A(f"s_waitcnt vmcnt({5*D})")
    fam(4, [[]]*3 + [[x] for x in c_tr(0, 0)] + [[]]*5)
    A(f"s_waitcnt vmcnt({5 if D == 2 else 10})")
    stamp(A, "fb_first")
    def drain(n, st):
        b = (st*5+n)*4
        return [f"v_fma_f32 v{ACA+b+i}, v{ACC+b+i}, v{8+st}, v{ACA+b+i}" for i in range(4)] + [f"ds_write_b128 v4, {vr(ACA+b,4)} offset:{st*16*RS() + (32 if OPT['ox4'] else 64)*n}"]
    if OPT["xw"]:
        X = OPT["xw"]
        place = lambda k: ("r", k) if k < 4 else (("x", k-4) if k < 4 + X else ("r", (k - 4 - X) & 3))
        seq = [("B", 0)]*5 + [("B", 1)]*5 + [("B", 2)]*5
        for u in range(12):
            idx = [i for i, (t, k) in enumerate(seq) if (t == "B" and k == u) or (t == "W" and k == u+1)]
            wait = len(seq) - 1 - max(idx)
            kw = u + 3 + OPT["xwd"]; kb = u + 3
            doW = 4 + X <= kw < 12; doB = kb < 12
            nx = None
            if u < 11:
                kind, sl = place(u+1)
                base = vTR if kind == "r" else vTX
                nx = [f"ds_read_b64_tr_b16 {ar(AS+16*((u+1)&1)+4*t+2*j,2)}, v{base+t} offset:{4096*sl+2048*j}" for t in range(4) for j in range(2)]
            if OPT["merge"] and u == 10:
                wait = len(seq) - 1 - max(i for i, (t, k) in enumerate(seq) if t == "B" and k == 11)
                c_merged(A, 2, wait, False, lambda o: vr(ACC+o, 4), False, drain)
                break
            late = None
            if OPT["merge"] and u == 9:
                w3 = len(seq) - 1 - max(i for i, (t, k) in enumerate(seq) if t == "W" and k == 11)
                late = [f"s_waitcnt vmcnt({w3})"] + tr3(place(11))
            c_step(A, u & 3, min(wait, 63), doW, doB, False, lambda o: vr(ACC+o, 4), False, drain if u == 11 else None,
                   wslot=place(kw)[1] if doW else None, trl=nx, late=late)
            if doW: seq += [("W", kw)]*4
            if doB: seq += [("B", kb)]*5
            if u in (3, 7): stamp(A, f"fb_g{u//4}")
        stamp(A, "fb_loopdone")
    else:
        A(f"s_mov_b32 s{sCNT}, 2")
        c_loop(A, "fb", 12, lambda o: vr(ACC+o, 4), False, False, drain)
    A("s_waitcnt lgkmcnt(0)")
    A("s_barrier")
    stamp(A, "f_red")
    R = ACC
    OST = ["", " nt", " sc1", " sc0 sc1", " sc1 nt", " sc0 nt", " sc0 sc1 nt"][OPT["ost"]]
    if OPT["ox4"]:
        A("v_add_u32 v17, 45056, v16")
        def rd4(r):
            for h in range(2):
                for part in range(4):
                    A(f"ds_read_b128 {vr(R+32*r+16*h+4*part,4)}, v{16 + (part >> 1)} offset:{PS()*(part & 1) + 11264*h + 1056*r}")
        rd4(0)
        A("s_waitcnt lgkmcnt(4)")
        rd4(1)
        A("s_mov_b32 exec_hi, 0x0fffffff")
        for r in range(3):
            A(f"s_waitcnt lgkmcnt({8 if r < 2 else 0})")
            b = R + 32*(r & 1) if r < 2 else R + 64 - 64
            b = R + 32*r if r < 2 else R
            for h in range(2):
                x = b + 16*h
                for i in (0, 2):
                    A(f"v_pk_add_f32 {vr(x+i,2)}, {vr(x+i,2)}, {vr(x+4+i,2)}")
                    A(f"v_pk_add_f32 {vr(x+8+i,2)}, {vr(x+8+i,2)}, {vr(x+12+i,2)}")
            for h in range(2):
                x = b + 16*h
                for i in (0, 2): A(f"v_pk_add_f32 {vr(x+i,2)}, {vr(x+i,2)}, {vr(x+8+i,2)}")
            o = R + 64 + 4*r
            for h in range(2):
                A(f"v_cvt_pk_bf16_f32 v{o+2*h}, v{b+16*h}, v{b+16*h+1}")
                A(f"v_cvt_pk_bf16_f32 v{o+2*h+1}, v{b+16*h+2}, v{b+16*h+3}")
            if r == 0:
                for h in range(2):
                    for part in range(4):
                        A(f"ds_read_b128 {vr(R+16*h+4*part,4)}, v{16 + (part >> 1)} offset:{PS()*(part & 1) + 11264*h + 1056*2}")
            if r == 2: A("s_mov_b32 exec_hi, 0xff")
            A(f"buffer_store_dwordx4 {vr(o,4)}, v24, s[{sOUT}:{sOUT+3}], s95 offen" + OST)
            if r < 2: A(f"s_add_u32 s95, s95, {6*1280}")
        A("s_mov_b32 exec_hi, -1")
        return
    def rd(r):
        for part in range(4):
            A(f"ds_read_b128 {vr(R+16*r+4*part,4)}, v{16+r} offset:{PS()*part}")
    rd(0); rd(1); rd(2)
    for r in range(5):
        A(f"s_waitcnt lgkmcnt({8 if r < 3 else 4*(4-r)})")
        b = R + 16*r
        for i in (0, 2):
            A(f"v_pk_add_f32 {vr(b+i,2)}, {vr(b+i,2)}, {vr(b+4+i,2)}")
            A(f"v_pk_add_f32 {vr(b+8+i,2)}, {vr(b+8+i,2)}, {vr(b+12+i,2)}")
        if r + 3 < 5: rd(r+3)
        for i in (0, 2): A(f"v_pk_add_f32 {vr(b+i,2)}, {vr(b+i,2)}, {vr(b+8+i,2)}")
        A(f"v_cvt_pk_bf16_f32 v{b}, v{b}, v{b+1}")
        A(f"v_cvt_pk_bf16_f32 v{b+1}, v{b+2}, v{b+3}")
        A(f"buffer_store_dwordx2 {vr(b,2)}, v{24+r}, s[{sOUT}:{sOUT+3}], s95 offen" + OST)

def kd(name):
    return f""".section .rodata,"a"
.p2align 6
.amdhsa_kernel {name}
  .amdhsa_next_free_vgpr 512
  .amdhsa_next_free_sgpr 102
  .amdhsa_accum_offset 256
  .amdhsa_group_segment_fixed_size 0
  .amdhsa_kernarg_size 96
  .amdhsa_user_sgpr_count 2
  .amdhsa_user_sgpr_kernarg_segment_ptr 1
  .amdhsa_system_sgpr_workgroup_id_x 1
.end_amdhsa_kernel
"""

DOC = """;
; One persistent launch, 256 workgroups (one per CU), roles by workgroup id (xcd = id & 7, loc = id >> 3):
; Hand-offs go through d_ws: write-through stores, wait, barrier, then one flag line per producer holding a
"""
def gen():
    hdr = open("cdna_kernels/" + NAME + ".s.ref").read().split("; Override")[0]
    hdr += DOC
    hdr += f"; @launch grid=(256,1,1) block=(256,1,1) lds={LDS_BYTES}\n"
    hdr += '.amdgcn_target "amdgcn-amd-amdhsa--gfx950"\n'
    A = Asm()
    K = NAME + "_kernel"
    A(".text"); A(f".globl {K}"); A(".p2align 8"); A(f".type {K},@function"); A.label(K)
    prologue(A)
    A("s_cmp_ge_u32 s82, 16"); A("s_cbranch_scc1 r_notkv")
    A("s_and_b32 s85, s82, 3")
    A("s_lshl_b32 s86, s83, 2")
    A(f"s_add_u32 s{sA}, s85, s86")
    A("s_lshr_b32 s85, s82, 2")
    A("s_lshl_b32 s86, s84, 2")
    A(f"s_add_u32 s{sBp}, s85, s86")
    qkv_setup(A, False)
    if not OPT["xfirst"]: qkv_setup_w(A, False)
    A("s_waitcnt lgkmcnt(0)"); srds(A, ["X", "W"])
    stamp(A, "kv_pre")
    def mid(A):
        params1(A); srds(A, ["WS", "W1", "B1", "W2", "B2", "OUT"]); cw_init(A)
        if not OPT["defer"]:
            params2_(A, OPT["fblate"])
            if OPT["g1late"]:
                A("v_lshrrev_b32 v12, 4, v1")
                A("v_lshlrev_b32 v12, 3, v12")
                A(f"s_and_b32 s85, s{sWAVE}, 1")
                A(f"s_lshl_b32 s23, s{sG1F}, 1")
                A("s_add_u32 s23, s23, s85")
                A("s_lshl_b32 s23, s23, 6")
            else: g1_params(A)
            mid3(A)
    def mid3(A):
        kv_esetup(A)
        A("s_lshl_b32 s85, s81, 4")
        A("s_add_u32 s85, s85, s82")
        A("s_lshl_b32 s85, s85, 2")
        A(f"s_add_u32 s85, s85, s{sWAVE}")
        A("s_lshl_b32 s27, s85, 13")
        A(f"s_lshl_b32 s{sPUB}, s{sA}, 3")
        A(f"s_add_u32 s{sPUB}, s{sPUB}, s{sBp}")
        A(f"s_lshl_b32 s{sPUB}, s{sPUB}, 7")
        A(f"s_add_u32 s{sPUB}, s{sPUB}, {FL_KV:#x}")
    D = OPT["d"]; EW = 5 if D == 2 else 10
    assert D == 3
    def wst(k):
        g = c_wdma(k); g[-1] = g[-1] + c_adv1(); return g
    def bst(k):
        g = [[c_bload(k, n)] for n in range(5)]; g[-1] = g[-1] + c_adv2(); return g
    NI = 4 if OPT["xw"] else 48
    g1p = None; fbp = None
    if OPT["fblate"]:
        B = Asm(); params_fb(B); fbp = B.lines
        assert not any("s_cmp" in x for x in fbp[9:])
        fbp = fbp[9:] if OPT["frot"] in (0, 2, 4) else None
    if OPT["g1late"]:
        B = Asm(); g1_params(B); g1p = [x for x in B.lines if "s23" not in x and "v12" not in x]
    E = kv_estream()
    g1acc = lambda o: ar(G1A+o, 4)
    def pubkv(A, wait):
        A(f"s_waitcnt vmcnt({wait})")
        A("s_barrier")
        A(f"s_cmp_lg_u32 s{sWAVE}, 0")
        A("s_cbranch_scc1 g1_pub1")
        flag_store(A, sPUB)
        A.label("g1_pub1")
        stamp(A, "kv_pub")
    nin = OPT["nbin"]
    ex = {8: ([[poll_ld(vPO, 24)]] + b1_loads() + wst(0) + wst(1), 9), 9: (wst(2), 8)}
    d0 = OPT["defer"]
    out_kv = qkv_gemm(A, "kv", False, mid, ex, {9: lambda A: poll_check(A, "pln", vPO, 24)},
                      [(d0, params2), (d0+1, g1_params), (d0+2, mid3)] if d0 else [])
    if OPT["kvw2"]:
        A(f"buffer_load_dword a255, v15, s[{sW2}:{sW2+3}], s27 offen")
    Bs = bst(0) + bst(1) + bst(2)
    if OPT["kweave"]:
        keep = OPT["mo"]; OPT["mo"] = 1; fm = qkv_mfmas(FB_, False); OPT["mo"] = keep
        e0 = [x for x in E[0] if "mfma" not in x and x != "s_nop 1"]; m0 = [x for x in E[0] if "mfma" in x]
        fill = [[] for _ in range(20)]
        fill[0] = e0[:6]
        k = 6
        for g in range(9, 20):
            fill[g] = e0[k:k+2]; k += 2
        weave(A, fm, fill)
        e1 = list(E[1])
        for j, m in enumerate(m0): e1.insert(3 + 5*j, m)
        body = e0[k:] + e1
    else:
        for m in qkv_mfmas(FB_, False): A(m)
        body = E[0] + E[1]
    stamp(A, "kv_loopdone")
    sp = min(26, (len(body) - 30 - OPT["b0"]) // max(nin, 1))
    pos = [len(body) - 30 - sp*(nin - 1 - k) for k in range(nin)]
    assert not pos or pos[0] >= 0
    for i, x in enumerate(body):
        if i in pos:
            for y in Bs[pos.index(i)]: A(y)
        A(x)
    A("s_waitcnt lgkmcnt(0)")
    A("s_barrier")
    for x in E[2] + E[3]: A(x)
    stamp(A, "kv_st")
    for g in Bs[nin:]:
        for y in g: A(y)
    seq = ["W"]*12 + [f"B{k//5}" for k in range(nin)] + ["S"]*4 + [f"B{k//5}" for k in range(nin, 15)]
    def need(tags): return len(seq) - 1 - max(i for i, t in enumerate(seq) if t in tags)
    A(f"s_waitcnt vmcnt({need(['W'])})")
    for x in c_tr(0, 0): A(x)
    if OPT["pubat"] == 0: pubkv(A, need(["S"]))
    for u in range(4):
        c_step(A, u, min(need([f"B{u}", f"W{u+1}", "W"]), 63), True, True, True, g1acc, True, first=(u == 0),
               pre=f_setup1() if u == 1 else [],
               side=({0: g1p, 1: fbp, 2: f_setup2()[NI:], 3: f_setup2()[:NI]}.get(u) if OPT["fsplit"] else (f_setup2() if u == 3 else None)))
        if u == 1: seq += ["G"]*8
        seq += [f"W{u+3}"]*4 + [f"B{u+3}"]*5
        stamp(A, f"g1_s{u}")
        if OPT["pubat"] == u + 1: pubkv(A, need(["S"]))
    A(f"s_mov_b32 s{sCNT}, 2")
    g1_phase(A)
    f_phase(A)
    stamp_flush(A)
    A.label("k_end"); A("s_endpgm")
    out_kv(A)
    if OPT["lnmid"]:
        A.label("g1_blk")
        w2_prefetch(A, 24, list(range(3 - OPT["lnpn"], 3)))
        A("s_branch g1_noblk")
    A.label("r_notkv")
    if OPT["pf_code"] and not OPT["pfall"]:
        A("s_getpc_b64 s[86:87]")
        A.label("pc_here")
        A(f"s_sub_u32 s86, s86, pc_here-{K}")
        A("s_subb_u32 s87, s87, 0")
        A("s_sub_u32 s85, s82, 16")
        A("s_lshl_b32 s85, s85, 2")
        A(f"s_add_u32 s85, s85, s{sWAVE}")
        A("s_lshl_b32 s85, s85, 3")
        A("v_add_lshl_u32 v2, v1, s85, 7")
        A(f"v_min_u32 v2, k_codeend-{K}-4, v2")
        A("s_mov_b64 exec, 0xff")
        A("global_load_dword a255, v2, s[86:87]")
        A("s_mov_b64 exec, -1")
    A("s_cmp_lt_u32 s82, 24"); A("s_cbranch_scc1 r_q")
    A("s_sub_u32 s87, s82, 24")
    A("s_lshl_b32 s85, s81, 3")
    A(f"s_add_u32 s{sA}, s85, s87")
    aux = " nt" if OPT.get("nt") else ""
    w1l = lambda k: f"buffer_load_dword a255, v22, s[{sW1}:{sW1+3}], s{26 + k//3} offen offset:{1024*(k%3)}{aux}"
    def after(A):
        params1(A); srds(A, ["WS", "W1", "B1", "W2", "B2", "OUT"]); cw_init(A); params2(A); g1_params(A)
        w1_setup(A, 24, 22)
        for k in range(OPT["early"] if OPT["pf_w1"] else 0): A(w1l(k))
    ln_role(A, after, OPT["early"] if OPT["pf_w1"] else 0)
    publish(A, "pub_ln", FL_LN, sA)
    stamp(A, "ln_pub")
    if OPT["tlb"] == 2:
        A("v_lshlrev_b32 v2, 20, v1")
        A("s_mov_b64 exec, 0x3ff")
        A(f"buffer_load_dword a255, v2, s[{sWS}:{sWS+3}], 0 offen sc1")
        A(f"buffer_load_dword a255, v2, s[{sOUT}:{sOUT+3}], 0 offen")
        A(f"buffer_load_dword a255, v2, s[{sB2}:{sB2+3}], 0 offen")
        A("s_mov_b64 exec, -1")
    for k in range(OPT["early"], (3 - OPT["qw1n"]) if (OPT["pf_w1"] and not OPT["qfirst"]) else 0): A(w1l(k))
    def pf_h():
        A(poll_ld(vPO, 24))
        A("v_lshrrev_b32 v2, 5, v1")
        A("v_mul_u32_u24 v2, 40960, v2")
        A("v_and_b32 v3, 31, v1")
        A("v_lshl_add_u32 v2, v3, 7, v2")
        A("s_sub_u32 s85, s82, 24")
        A("s_lshl_b32 s85, s85, 2")
        A(f"s_add_u32 s85, s85, s{sWAVE}")
        A(f"s_mul_i32 s87, s85, {2*40960}")
        A("s_mul_i32 s86, s84, 20480")
        A("s_add_u32 s87, s87, s86")
        A("s_waitcnt vmcnt(0)")
        poll_check(A, "plnh", vPO, 24)
        A("s_barrier")
        for i in range(5):
            A(f"buffer_load_dword a255, v2, s[{sWS}:{sWS+3}], s87 offen sc1")
            A("s_add_u32 s87, s87, 4096")
    for c in str(OPT["lnseq"]):
        if c == "1" and OPT["pf_w1"]:
            for k in range(3, 6): A(w1l(k))
        if c == "6":
            for k in range(3): A(w1l(k))
        if c == "2": pf_h()
        if c == "3": w2_prefetch(A, 24, [0])
        if c == "7": w2_prefetch(A, 24, [2])
        if c == "4": w2_prefetch(A, 24, [0, 1])
        if c == "5": w2_prefetch(A, 24, [0, 1, 2])
    stamp(A, "ln_pf")
    for g in b1_loads(): A(g[0])
    A(poll_ld(vPO, 24))
    c_wring(A)
    A(f"s_waitcnt vmcnt({4*OPT['d']})")
    poll_check(A, "pln2", vPO, 24)
    A("s_barrier")
    for x in f_setup1(): A(x)
    c_bring(A)
    for i in range(80): A(f"v_accvgpr_write_b32 a{G1A+i}, 0")
    A(f"s_waitcnt vmcnt({5*D})")
    for x in f_setup2(): A(x)
    A(f"s_mov_b32 s{sCNT}, 3")
    A(f"s_mov_b32 s{sPUB}, {OPT['lnmid']}")
    A(f"s_waitcnt vmcnt({EW})")
    for x in c_tr(0, 0): A(x)
    stamp(A, "ln_ready")
    A("s_branch g1_loop")
    A.label("r_q")
    A("s_sub_u32 s87, s82, 16")
    A("s_and_b32 s85, s87, 3")
    A("s_lshl_b32 s86, s83, 2")
    A(f"s_add_u32 s{sA}, s85, s86")
    A("s_lshr_b32 s85, s87, 2")
    A("s_lshl_b32 s86, s84, 1")
    A(f"s_add_u32 s{sBp}, s85, s86")
    A(f"s_lshl_b32 s{sU}, s{sBp}, 2")
    A(f"s_and_b32 s85, s{sA}, 3")
    A(f"s_add_u32 s{sU}, s{sU}, s85")
    A(f"s_lshr_b32 s{sNR}, s{sA}, 2")
    def midq(A):
        params1(A); srds(A, ["WS", "W1", "WO", "W2", "B2", "OUT"]); cw_init(A); params2(A)
        w1_setup(A, 16, 12)
        if OPT["qw1"] == 0: q_pf_only(A)
        if not OPT["qdefer"]: q_setup(A)
    def qs(lo, hi):
        def f(A):
            B = Asm(); q_setup(B)
            assert len(B.lines) > 150
            for x in B.lines[lo:hi]: A(x)
        return f
    def qtouch(A):
        A("s_mov_b32 exec_lo, 0xffff03ff")
        A("s_mov_b32 exec_hi, 0")
        A(f"buffer_load_dword a255, v{vT1}, s[{sWS}:{sWS+3}], 0 offen sc1")
        A("s_mov_b64 exec, -1")
    qkv_setup(A, True)
    if not OPT["xfirst"]: qkv_setup_w(A, True)
    A("s_waitcnt lgkmcnt(0)"); srds(A, ["X", "W"])
    qb = [(max(OPT["qw1"], 1), q_loop_pf)]
    if OPT["qdefer"]:
        def both(A): q_loop_pf(A); q_setup(A); qtouch(A)
        qb = [(OPT["qw1"], both)]
    out_q = qkv_gemm(A, "q", True, midq, q_extras(), {9: lambda A: poll_check(A, "pln3", vPO, 24)}, qb)
    q_epilogue(A)
    A("s_lshl_b32 s88, s81, 3")
    A("s_add_u32 s88, s88, s82")
    A("s_sub_u32 s88, s88, 16")
    publish(A, "pub_q", FL_Q, 88)
    stamp(A, "q_pub")
    if OPT["qw2b"]: w2_prefetch(A, 16, list(range(3 - OPT["qw2b"], 3)))
    for x in f_setup1(): A(x)
    switch_to_fb(A)
    c_wring(A)
    if OPT["xw"]: xw_dma(A)
    A(poll_ld(vPO, 25))
    A(f"s_waitcnt vmcnt({4*D + 1 + (4 + 4*OPT['xw'] if OPT['xw'] else 0)})")
    for x in f_setup2(): A(x)
    A("s_waitcnt vmcnt(0)")
    poll_check(A, "pq2", vPO, 25)
    A("s_barrier")
    stamp(A, "q_allq")
    if OPT["pf_pq"]:
        A("s_sub_u32 s88, s82, 16")
        A("s_lshl_b32 s88, s88, 2")
        A(f"s_add_u32 s88, s88, s{sWAVE}")
        A("v_lshlrev_b32 v2, 7, v1")
        A(f"s_mul_i32 s85, s83, {8*81920}")
        A(f"s_mul_i32 s86, s88, {160*128}")
        A("s_add_u32 s85, s85, s86")
        A(f"s_add_u32 s85, s85, {WS_PQ:#x}")
        for i in range(3):
            if i == 2: A("s_mov_b32 exec_hi, 0")
            A(f"buffer_load_dword a255, v2, s[{sWS}:{sWS+3}], s85 offen sc1")
            A("s_add_u32 s85, s85, 8192")
        A("s_mov_b32 exec_hi, -1")
        A("s_cmp_ge_u32 s88, 20")
        A("s_cbranch_scc1 q_pfd")
        A("s_mul_i32 s85, s88, 40960")
        A("s_mul_i32 s86, s84, 20480")
        A("s_add_u32 s85, s85, s86")
        A(f"s_add_u32 s85, s85, {WS_M:#x}")
        for i in range(3):
            if i == 2: A("s_mov_b32 exec_hi, 0")
            A(f"buffer_load_dword a255, v2, s[{sWS}:{sWS+3}], s85 offen sc1")
            A("s_add_u32 s85, s85, 8192")
        A("s_mov_b32 exec_hi, -1")
        A.label("q_pfd")
    fa_params(A)
    A("s_branch f_entry")
    out_q(A)
    A.label("k_codeend")
    for i, l in enumerate(A.lines):
        if l.startswith("v_mad_i32_i24 v4, v3, -20"):
            A.lines[i] = l.replace("-20", "s89")
        if l == "s_movk_i32 s88, 3840":
            A.lines[i] = "s_movk_i32 s89, -20"
    if OPT["align"]:
        A.lines, nc, nn = align(A.lines, OPT["align"])
        print("aligned: widened", nc, "nops", nn, file=sys.stderr)
    nb = check(A.lines)
    print("hazards:", nb, file=sys.stderr)
    return hdr + A.text() + kd(K)

if __name__ == "__main__":
    out = sys.argv[1]
    for a in sys.argv[2:]:
        if a == "st": STAMPS = True
        else:
            k, v = a.split("="); OPT[k] = int(v)
    open(out, "w").write(gen())
    if STAMPS: json.dump(_st["names"], open(out + ".names", "w"))
```

```python
import sys, json
from asmlib import Asm, vr, ar, sr, check, align

NAME = "gated_mix__linear_attn_block__mixer_token_mlp__prompt"
WS_H   = 0x000000
WS_U   = 0x280000
WS_PQ  = 0x460000
WS_M   = 0x6E0000
WS_KVP = 0x7A8000
WS_ZP  = 0x880000
WS_G   = 0x972000
WS_FLAG = 0x974000
FL_X = WS_FLAG
FL_LN = WS_FLAG + 128
FL_KV = FL_LN + 64*128
FL_Q = FL_KV + 128*128
FL_G1 = FL_Q + 64*128
WS_SIZE = FL_G1 + 192*128
WS_STAMP = 0x1000000

sX, sW, sWS, sW1, sW2, sOUT, sWO, sB1, sB2, sGW = 28, 32, 36, 40, 44, 48, 52, 56, 60, 64
sWAVE = 68
sA, sBp = 69, 70
sG1D, sG1F, sFS, sFD = 71, 72, 73, 74
sCNT, sO1, sO2, sRD, sWR, sM0 = 75, 76, 77, 78, 79, 80
sEX, sMK = 90, 92
sU, sNR = 94, 95
sWR_, sWC_ = 96, 97
sPUB = 3
sQOK = 99
sM1 = 98
sC1, sC2, sCM0, sCB1, sCE1, sCB2, sCE2, sCST, sCW, sNON = 4, 5, 6, 7, 8, 9, 10, 11, 12, 16
sF1, sFB1, sFE1, sF2, sFB2, sFE2 = 17, 18, 19, 20, 21, 22
LOG2E = 0x3FB8AA3B
EPS6 = 0x358637BD
LDS_RED = 65536
LDS_BYTES = 163840
vXO, vWO_, vXB, vCUR = 16, 20, 25, 29
vWS_, vB0, vB1, vTR, vWS2 = 33, 37, 38, 39, 43
ACC = 48
FA_, FB_ = 112, 148
BR, AS = 0, 80
STG = 36864
vPOLL, vPO = 14, 13
OPT = {"rot": 1, "pf_w1": 1, "pf_w2": 1, "pf_code": 1, "pf_pq": 0, "sleep": 1, "early": 1, "d": 3, "qpoll": 2, "nbin": 13, "cv": 0, "lnseq": 51, "qw2": 0, "qw2b": 0, "ntq": 0, "qw1": 1, "qw1n": 2, "kvr": 1, "touch": 0, "perm": 0, "otouch": 0, "rdb": 4, "w2c": 2, "qfirst": 0, "rfd": 3, "tailw": 1, "pubat": 0, "kvw2": 0, "b0": 0, "qw1b": 0, "rfb": 4, "frot": 2, "arot": 2, "fmap": 1, "qrot": 1, "grot": 4, "lnpost": 0, "lnpn": 3, "align": 5, "defer": 0, "qdefer": 0, "lnmid": 0, "ost": 1, "tlb": 0, "pf0": 8, "xfirst": 1, "fsplit": 1, "xw": 3, "xwd": 0, "xsp": 6, "pfall": 0, "ntl": 6, "ntlk": 2, "ntlq": 3, "ox4": 0, "merge": 0, "mo": 0, "uearly": 1, "kweave": 1, "lal": 3, "rev": 0, "g1late": 1, "fblate": 0}
STAMPS = False
_st = {"n": 0, "names": []}

DBGL = ["startreal", "kv_pre", "kv_first", "kv_loop9", "kv_st", "kv_pub", "g1_loopdone", "g1_st", "g1_pub", "f_uok", "fb_first", "fb_loopdone", "endreal"]
_dl = {"n": 0}
def stamp(A, name, real=False):
    if OPT.get("dly") and not real and name not in ("start",):
        k = _dl["n"]; _dl["n"] += 1
        A(f"s_mul_i32 s100, s2, {(2654435761 * (k + 3) * OPT['dly']) & 0x7fffffff | 1}")
        A(f"s_mul_i32 s101, s{sWAVE}, {(40503 * (k + 7)) & 0xffff | 1}")
        A("s_add_u32 s100, s100, s101")
        A("s_lshr_b32 s100, s100, 9")
        A("s_and_b32 s100, s100, 15")
        A(f"s_cmp_gt_u32 s100, 2")
        A(f"s_cbranch_scc1 dly{k}_e")
        A.label(f"dly{k}_l")
        A("s_sleep 60")
        A("s_sub_u32 s100, s100, 1")
        A("s_cmp_ge_i32 s100, 0")
        A(f"s_cbranch_scc1 dly{k}_l")
        A.label(f"dly{k}_e")
        return
    if OPT.get("dbg"):
        if name in DBGL:
            A("s_memrealtime s[100:101]")
            A("s_waitcnt lgkmcnt(0)")
            A(f"v_writelane_b32 v47, s100, {DBGL.index(name)}")
        return
    if not STAMPS: return
    if OPT.get("clk") and not real and name in ("kv_first", "kv_loop9", "g1_s0", "g1_loopdone", "g1_pub", "fb_first", "fb_loopdone"): stamp(A, name + "_R", True)
    i = _st["n"]; _st["n"] += 1; _st["names"].append(name)
    A("s_memrealtime s[100:101]" if real else "s_memtime s[100:101]")
    A("s_waitcnt lgkmcnt(0)")
    A(f"v_writelane_b32 v47, s100, {i}")
def stamp_flush(A):
    if OPT.get("hold"):
        A("s_waitcnt vmcnt(0)")
        stamp(A, "endreal", True)
        A("v_readlane_b32 s8, v47, 0")
        k = OPT["hold"]
        if k == 99:
            A("s_add_u32 s9, s8, 4000")
        else:
            A(f"v_readlane_b32 s9, v47, {k}")
            A("s_nop 3")
            A("s_cmp_eq_u32 s9, 0")
            A("s_cselect_b32 s9, s8, s9")
            A("s_sub_u32 s9, s9, s8")
            A("s_lshl_b32 s9, s9, 1")
            A("s_add_u32 s9, s9, s8")
            A("s_add_u32 s9, s9, 3000")
        A.label("hold_l")
        A("s_memrealtime s[100:101]")
        A("s_waitcnt lgkmcnt(0)")
        A("s_sub_u32 s10, s100, s9")
        A("s_cmp_lt_i32 s10, 0")
        A("s_cbranch_scc1 hold_l")
        return
    if OPT.get("dbg"):
        A("s_waitcnt vmcnt(0)")
        stamp(A, "endreal", True)
        A(f"s_cmp_lg_u32 s{sWAVE}, 0")
        A("s_cbranch_scc1 k_end")
        A("s_load_dwordx2 s[4:5], s[0:1], 80")
        A("v_readlane_b32 s8, v47, 0")
        A("s_waitcnt lgkmcnt(0)")
        A("s_mov_b32 s6, 256")
        A("s_mov_b32 s7, 0x20000")
        A("s_not_b32 s9, s8")
        A("v_mov_b32 v2, s9")
        A("v_mov_b32 v3, s100")
        A("v_mov_b32 v4, s8")
        A("v_mov_b32 v5, 0")
        A("s_mov_b64 exec, 1")
        A("buffer_atomic_umax v2, v5, s[4:7], 0 offen")
        A("buffer_atomic_umax v3, v5, s[4:7], 0 offen offset:4")
        A("buffer_atomic_umax v4, v5, s[4:7], 0 offen offset:8")
        A("s_mov_b64 exec, -1")
        A(f"s_cmp_lg_u32 s2, {OPT['dbg'] - 1}")
        A("s_cbranch_scc1 k_end")
        A("v_lshlrev_b32 v5, 2, v1")
        A("s_mov_b64 exec, 0x1fff")
        A("buffer_store_dword v47, v5, s[4:7], 0 offen offset:12")
        A("s_branch k_end")
        return
    if not STAMPS: return
    stamp(A, "end"); stamp(A, "endreal", True)
    A("s_lshl_b32 s100, s2, 2")
    A(f"s_add_u32 s100, s100, s{sWAVE}")
    A("s_lshl_b32 s100, s100, 8")
    A(f"s_add_u32 s100, s100, {WS_STAMP:#x}")
    A(f"s_mov_b32 s{sWS+2}, 0x2000000")
    A("v_lshlrev_b32 v46, 2, v1")
    A(f"buffer_store_dword v47, v46, s[{sWS}:{sWS+3}], s100 offen")

def srds(A, which):
    tab = {"X": (sX, 4, 2048*1280), "W": (sW, 6, 640*3840), "WO": (sWO, 8, 640*1280), "W1": (sW1, 12, 2048*3072), "B1": (sB1, 14, 3072),
           "W2": (sW2, 16, 1536*4096), "B2": (sB2, 18, 4096), "GW": (sGW, 20, 1280), "OUT": (sOUT, 22, 2048*1280), "WS": (sWS, 26, WS_SIZE)}
    for w in which:
        base, ptr, size = tab[w]
        A(f"s_mov_b64 s[{base}:{base+1}], s[{ptr}:{ptr+1}]")
        A(f"s_mov_b32 s{base+2}, {size:#x}")
        A(f"s_mov_b32 s{base+3}, 0x20000")

def PS(): return 22528 if OPT["ox4"] else 21504
def RS(): return 176 if OPT["ox4"] else 336
def flat(groups):
    out = []
    for g in groups: out += g if isinstance(g, list) else [g]
    return out

def weave(A, mf, fill, first=0):
    for i, m in enumerate(mf):
        A(m)
        if i < len(fill):
            for x in fill[i]: A(x)
    for g in fill[len(mf):]:
        for x in g: A(x)

def poll_off(A, dst, nper, total_waves_split=True):
    A(f"v_and_b32 v{dst}, {nper-1}, v1")
    A(f"s_mul_i32 s85, s{sWAVE}, {nper}")
    A(f"v_add_lshl_u32 v{dst}, v{dst}, s85, 7")
def poll_ld(vo, so):
    return f"buffer_load_dword v{vPOLL}, v{vo}, s[{sWS}:{sWS+3}], s{so} offen sc1"
def poll_check(A, name, vo, so):
    A(f"v_cmp_ne_u32 vcc, s{sNON}, v{vPOLL}")
    A(f"s_cbranch_vccz {name}_ok")
    A(f"s_mov_b32 s{sM1}, 0")
    A.label(f"{name}_spin")
    A(f"s_add_u32 s{sM1}, s{sM1}, 1")
    A(f"s_cmp_gt_u32 s{sM1}, 0x80000")
    A(f"s_cbranch_scc1 {name}_ok")
    A(f"s_sleep {OPT['sleep']}")
    A(poll_ld(vo, so))
    A("s_waitcnt vmcnt(0)")
    A(f"v_cmp_ne_u32 vcc, s{sNON}, v{vPOLL}")
    A(f"s_cbranch_vccnz {name}_spin")
    A.label(f"{name}_ok")
def flag_store(A, so):
    A(f"v_mov_b32 v2, s{sNON}")
    A("v_lshlrev_b32 v3, 2, v1")
    A("s_mov_b32 exec_hi, 0")
    A(f"buffer_store_dword v2, v3, s[{sWS}:{sWS+3}], s{so} offen sc1")
    A("s_mov_b32 exec_hi, -1")
def publish(A, name, base, sidx, wait=0):
    if wait is not None: A(f"s_waitcnt vmcnt({wait})")
    A("s_barrier")
    A(f"s_cmp_lg_u32 s{sWAVE}, 0")
    A(f"s_cbranch_scc1 {name}_np")
    A(f"s_lshl_b32 s85, s{sidx}, 7")
    A(f"s_add_u32 s85, s85, {base:#x}")
    flag_store(A, 85)
    A.label(f"{name}_np")

def prologue(A):
    A("s_cmp_ge_u32 s2, 256")
    A("s_cbranch_scc1 k_end")
    if STAMPS or OPT.get("dbg"): A("v_mov_b32 v47, 0")
    stamp(A, "startreal", True); stamp(A, "start")
    A("s_load_dwordx16 s[4:19], s[0:1], 0")
    A("s_load_dwordx8 s[20:27], s[0:1], 64")
    if OPT["pf0"] and not OPT["pfall"]:
        A("s_getpc_b64 s[86:87]")
        A("v_lshlrev_b32 v2, 7, v0")
        A(f"s_mov_b64 exec, {(1 << OPT['pf0']) - 1:#x}")
        A("global_load_dword a255, v2, s[86:87] offset:128")
        A("s_mov_b64 exec, -1")
    A("v_lshrrev_b32 v2, 6, v0")
    A("v_and_b32 v1, 63, v0")
    if OPT["pfall"]:
        A("s_getpc_b64 s[86:87]")
        A.label("pc_0")
        A("s_lshr_b32 s85, s2, 3")
        A("v_lshl_add_u32 v3, s85, 2, v2")
        A("v_mad_u32_u24 v3, v3, 3, v1")
        A("v_cmp_gt_u32 vcc, 3, v1")
        A("v_add_u32 v4, -2, v1")
        A(f"s_mov_b64 exec, {(1 << (3 + OPT['pf0'])) - 1:#x}")
        A("v_cndmask_b32 v3, v4, v3, vcc")
        A("v_lshlrev_b32 v3, 7, v3")
        A("v_min_u32 v3, k_codeend-pc_0-4, v3")
        A("global_load_dword a255, v3, s[86:87]")
        A("s_mov_b64 exec, -1")
    A(f"v_readfirstlane_b32 s{sWAVE}, v2")
    A("s_and_b32 s81, s2, 7")
    A("s_lshr_b32 s82, s2, 3")
    A("s_lshr_b32 s83, s81, 1")
    A("s_and_b32 s84, s81, 1")

def params1(A):
    A(f"s_add_u32 s86, s26, {FL_X:#x}")
    A("s_addc_u32 s87, s27, 0")
    A("s_load_dword s3, s[86:87], 0")
    A("s_lshr_b32 s85, s82, 2")
    A("s_lshl_b32 s88, s83, 3")
    if OPT["perm"]: A("s_xor_b32 s85, s85, 7")
    A(f"s_add_u32 s{sFS}, s85, s88")
    A("s_and_b32 s85, s82, 3")
    A("s_lshl_b32 s88, s84, 2")
    A(f"s_add_u32 s{sFD}, s85, s88")
    if OPT["fmap"]:
        A("s_lshr_b32 s85, s82, 3")
        if OPT["fmap"] == 1:
            A("s_lshl_b32 s85, s85, 3")
            A(f"s_add_u32 s{sFS}, s85, s81")
        else:
            A(f"s_lshl_b32 s{sFS}, s81, 2")
            A(f"s_add_u32 s{sFS}, s{sFS}, s85")
        A(f"s_and_b32 s{sFD}, s82, 7")
    A("s_sub_u32 s85, s82, 8")
    A("s_cmp_lt_u32 s82, 16")
    A("s_cselect_b32 s85, s82, s85")
    A("s_and_b32 s89, s85, 3")
    A(f"s_add_u32 s{sG1D}, s89, s88")
    A("s_lshr_b32 s85, s85, 2")
    A("s_lshl_b32 s88, s85, 2")
    A(f"s_add_u32 s{sG1F}, s83, s88")
    A("s_lshr_b32 s88, s85, 2")
    A("s_lshl_b32 s85, s85, 1")
    A("s_add_u32 s85, s85, s88")
    A("s_lshl_b32 s85, s85, 1")
    if OPT["rfb"] == 0: A("s_mov_b32 s85, 0")
    A(f"s_mul_i32 s89, s89, {OPT['rdb']}")
    A("s_add_u32 s85, s85, s89")
    if OPT["grot"] == 2: A("s_lshl_b32 s85, s85, 1")
    A(f"s_and_b32 s99, s85, {(15 if OPT['grot'] == 4 else 8) if OPT['grot'] else 0}")

def cw_init(A):
    A(f"s_mov_b64 s[{sCW}:{sCW+1}], s[{sW1}:{sW1+1}]")
    A(f"s_mov_b64 s[{sCW+2}:{sCW+3}], s[{sW1+2}:{sW1+3}]")
def params2(A):
    if OPT.get("same"):
        for k, r in enumerate((sG1D, sG1F, sFS, sFD)):
            A(f"s_mov_b32 s{100 if not STAMPS else 64+k}, s{r}")
            A(f"s_mov_b32 s{r}, 0")
        params2_(A)
        for k, r in enumerate((sG1D, sG1F, sFS, sFD)): A(f"s_mov_b32 s{r}, s{64+k}")
    else: params2_(A)
def params_fb(A):
    A("s_and_b32 s85, s82, 3")
    A(f"s_mul_i32 s85, s85, {OPT['rfd']}")
    A("s_lshr_b32 s86, s82, 2")
    A("s_mul_i32 s86, s86, 3")
    A("s_lshr_b32 s86, s86, 1")
    A("s_add_u32 s85, s85, s86")
    A("s_cmp_ge_u32 s85, 12")
    A("s_cselect_b32 s86, 12, 0")
    A("s_sub_u32 s85, s85, s86")
    if OPT["frot"] == 0: A("s_mov_b32 s85, 0")
    if OPT["frot"] == 2:
        A(f"s_add_u32 s85, s{sFS}, s{sFD}")
        A("s_and_b32 s85, s85, 1")
        A("s_mul_i32 s85, s85, 6")
    if OPT["frot"] == 4:
        A("s_bfe_u32 s85, s82, 0x10003")
        A("s_mul_i32 s85, s85, 6")
    if OPT["frot"] == 3:
        A(f"s_add_u32 s85, s{sFS}, s{sFD}")
        A("s_mul_i32 s86, s85, 86")
        A("s_lshr_b32 s86, s86, 8")
        A("s_mul_i32 s86, s86, 3")
        A("s_sub_u32 s85, s85, s86")
        A("s_lshl_b32 s85, s85, 2")
    A(f"s_mul_i32 s{sFB1}, s{sWAVE}, {12*32*4096}")
    A(f"s_lshl_b32 s86, s{sFS}, 7")
    A(f"s_add_u32 s{sFB1}, s{sFB1}, s86")
    A(f"s_add_u32 s{sFE1}, s{sFB1}, {12*32*4096}")
    A(f"s_lshl_b32 s86, s85, 17")
    A(f"s_add_u32 s{sF1}, s{sFB1}, s86")
    A(f"s_mul_i32 s{sFB2}, s{sWAVE}, {12*40960}")
    A(f"s_mul_i32 s86, s{sFD}, 5120")
    A(f"s_add_u32 s{sFB2}, s{sFB2}, s86")
    A(f"s_add_u32 s{sFB2}, s{sFB2}, {WS_U:#x}")
    A(f"s_add_u32 s{sFE2}, s{sFB2}, {12*40960}")
    A(f"s_mul_i32 s86, s85, 40960")
    A(f"s_add_u32 s{sF2}, s{sFB2}, s86")
def params2_(A, skip_fb=False):
    A(f"s_mul_i32 s{sCB1}, s{sWAVE}, {16*32*3072}")
    A(f"s_lshl_b32 s85, s{sG1F}, 7")
    A(f"s_add_u32 s{sCB1}, s{sCB1}, s85")
    A(f"s_add_u32 s{sCE1}, s{sCB1}, {16*32*3072}")
    A(f"s_mul_i32 s85, s99, {32*3072}")
    A(f"s_add_u32 s{sC1}, s{sCB1}, s85")
    A(f"s_mul_i32 s{sCB2}, s{sWAVE}, {16*40960}")
    A(f"s_mul_i32 s85, s{sG1D}, 5120")
    A(f"s_add_u32 s{sCB2}, s{sCB2}, s85")
    A(f"s_add_u32 s{sCE2}, s{sCB2}, {16*40960}")
    A(f"s_mul_i32 s85, s99, 40960")
    A(f"s_add_u32 s{sC2}, s{sCB2}, s85")
    A(f"s_mov_b32 s{sCST}, {32*3072}")
    A(f"s_lshl_b32 s{sCM0}, s{sWAVE}, 14")
    if not skip_fb: params_fb(A)
    A(f"v_lshlrev_b32 v{vB0}, 4, v1")
    A(f"v_add_u32 v{vB1}, 4096, v{vB0}")
    A("v_lshrrev_b32 v2, 2, v1")
    A("v_lshrrev_b32 v3, 1, v2")
    A("v_and_b32 v3, 3, v3")
    A("v_lshlrev_b32 v2, 7, v2")
    A("v_lshl_add_u32 v2, v3, 5, v2")
    A("v_and_b32 v3, 3, v1")
    A("v_lshl_add_u32 v2, v3, 3, v2")
    A(f"v_add_u32 v{vTR}, s{sCM0}, v2")
    for t in range(1, 4): A(f"v_xor_b32 v{vTR+t}, {32*t}, v{vTR}")
    A("v_lshrrev_b32 v2, 3, v1")
    A("v_lshrrev_b32 v3, 4, v1")
    A("v_lshlrev_b32 v3, 1, v3")
    A("v_and_b32 v4, 7, v1")
    A("v_xor_b32 v3, v3, v4")
    A("v_lshlrev_b32 v3, 4, v3")
    for base, stride in ((vWS_, 3072), (vWS2, 4096)):
        A(f"v_mul_u32_u24 v4, {stride}, v2")
        A(f"v_add_u32 v{base}, v3, v4")
        for q in range(1, 4): A(f"v_add_u32 v{base+q}, {q*(8*stride-1024)}, v{base}")
    poll_off(A, vPO, 16)
    A("v_lshlrev_b32 v15, 7, v1")
    A(f"s_mov_b32 s24, {FL_LN:#x}")
    A(f"s_mov_b32 s25, {FL_Q:#x}")
    A("s_waitcnt lgkmcnt(0)")
    A(f"s_mul_i32 s{sNON}, s3, 0x41C64E6D")
    A(f"s_add_u32 s{sNON}, s{sNON}, 0x3C6EF35F")

def qkv_setup(A, isq):
    A(f"s_lshr_b32 s{sWR_}, s{sWAVE}, 1")
    A(f"s_and_b32 s{sWC_}, s{sWAVE}, 1")
    A("v_lshrrev_b32 v2, 3, v1")
    A(f"s_lshl_b32 s85, s{sWAVE}, 5")
    A("v_add_u32 v2, s85, v2")
    A("v_mul_u32_u24 v2, 1280, v2")
    A("v_lshrrev_b32 v3, 4, v1")
    A("v_and_b32 v4, 7, v1")
    A("v_xor_b32 v4, v4, v3")
    A(f"v_lshl_add_u32 v{vXO}, v4, 4, v2")
    A("v_xor_b32 v4, 4, v4")
    A("v_lshl_add_u32 v6, v4, 4, v2")
    A(f"v_add_u32 v{vXO+1}, {8*1280-1024}, v6")
    A(f"v_add_u32 v{vXO+2}, {16*1280-2048}, v{vXO}")
    A(f"v_add_u32 v{vXO+3}, {24*1280-3072}, v6")
    A(f"s_mul_i32 s{sO1}, s{sA}, {0 if OPT.get('same') else 128*1280}")
    A(f"s_mov_b32 s{sO2}, 0")
    if OPT["rot"]:
        q = OPT["qrot"]
        if q in (1, 6):
            A("s_and_b32 s85, s82, 3")
            A("s_lshl_b32 s85, s85, 2")
            A(f"s_lshr_b32 s85, {0x8530 if q == 1 else 0x5500:#x}, s85")
            A("s_and_b32 s85, s85, 15")
            A("s_and_b32 s86, s82, 12")
            A("s_lshr_b32 s86, 0x8530, s86")
            A("s_and_b32 s86, s86, 15")
            A("s_add_u32 s85, s85, s86")
            A("s_add_u32 s85, s85, s83")
            A("s_add_u32 s85, s85, s84")
        else:
            A("s_lshr_b32 s85, s82, 2")
            A("s_add_u32 s85, s85, s82")
            A("s_and_b32 s85, s85, 1")
            A("s_mul_i32 s85, s85, 5")
            if q == 2:
                A("s_add_u32 s85, s85, s83")
                A("s_add_u32 s85, s85, s84")
            if q == 4:
                A("s_add_u32 s85, s85, s81")
            if q == 5:
                A("s_mov_b32 s85, s81")
        if isq: A("s_add_u32 s85, s85, 1")
        A("s_mul_i32 s86, s85, 26")
        A("s_lshr_b32 s86, s86, 8")
        A("s_mul_i32 s86, s86, 10")
        A("s_sub_u32 s85, s85, s86")
        A(f"s_mul_i32 s{sO2}, s85, {64*3840}")
        A("s_lshl_b32 s85, s85, 7")
        A(f"s_add_u32 s{sO1}, s{sO1}, s85")
    A(f"s_lshl_b32 s{sM0}, s{sWAVE}, 12")
    A(f"s_mul_i32 s{sM1}, s{sWAVE}, 5120")
    A(f"s_add_u32 s{sM1}, s{sM1}, 16384")
    A(f"s_mov_b32 s{sWR}, {2*STG}")

def qkv_setup_w(A, isq):
    if OPT.get("same"):
        A("s_mov_b32 s86, 1280")
    elif isq:
        A(f"s_mul_i32 s86, s{sBp}, 320")
    else:
        A(f"s_mul_i32 s86, s{sBp}, 160")
        A("s_add_u32 s86, s86, 1280")
    A(f"s_mul_i32 s85, s{sWAVE}, {16*3840}")
    A("s_add_u32 s85, s85, s86")
    A("s_movk_i32 s88, 3840")
    for n in range(5):
        if n: A(f"v_add_u32 v2, {64*n}, v1")
        q = "v2" if n else "v1"
        A(f"v_mul_u32_u24 v3, 3277, {q}")
        A("v_lshrrev_b32 v3, 16, v3")
        A(f"v_mad_i32_i24 v4, v3, -20, {q}")
        A("v_lshrrev_b32 v5, 2, v3")
        A("v_and_b32 v5, 2, v5")
        A("v_xor_b32 v4, v4, v5")
        comp = 1024*n if n < 4 else 0
        A(f"s_sub_u32 s87, s85, {comp}" if comp else "s_mov_b32 s87, s85")
        A("v_mad_u32_u24 v3, v3, s88, s87" if False else "v_mul_u32_u24 v3, 3840, v3")
        A("v_lshl_add_u32 v3, v4, 4, v3")
        if not isq:
            A("v_cmp_le_u32 vcc, 10, v4")
            A("v_add_u32 v5, 1120, v3")
            A("v_add_u32 v3, s87, v3")
            A("v_add_u32 v5, s87, v5")
            A(f"v_cndmask_b32 v{vWO_+n}, v3, v5, vcc")
        else:
            A(f"v_add_u32 v{vWO_+n}, s87, v3")

def nt(b): return " nt" if OPT["ntq"] & b else ""
def qkv_dma():
    L = [[f"s_add_u32 m0, s{sWR}, s{sM0}"]]
    for n in range(4):
        L.append([f"buffer_load_dwordx4 v{vXO+n}, s[{sX}:{sX+3}], s{sO1} offen offset:{1024*n}{nt(1)} lds"])
    L.append([f"s_add_u32 m0, s{sWR}, s{sM1}"])
    for n in range(4):
        L.append([f"buffer_load_dwordx4 v{vWO_+n}, s[{sW}:{sW+3}], s{sO2} offen offset:{1024*n}{nt(2)} lds"])
    L.append(["s_add_u32 m0, m0, 4096"])
    L.append([f"buffer_load_dwordx4 v{vWO_+4}, s[{sW}:{sW+3}], s{sO2} offen{nt(2)} lds"])
    return L
def qkv_adv():
    return [f"s_add_u32 s{sO1}, s{sO1}, 128", f"s_add_u32 s{sO2}, s{sO2}, {64*3840}", f"s_cmp_eq_u32 s{sO2}, {640*3840}",
            "s_cselect_b32 s85, 1280, 0", f"s_cselect_b32 s{sO2}, 0, s{sO2}", f"s_sub_u32 s{sO1}, s{sO1}, s85",
            f"s_add_u32 s{sWR}, s{sWR}, {STG}", f"s_cmp_eq_u32 s{sWR}, {4*STG}", f"s_cselect_b32 s{sWR}, 0, s{sWR}"]
def emit_dma_block(A, groups):
    for g in groups:
        for x in g: A(x)
        if "m0" in g[0].split(",")[0]: A("s_nop 0")

NW = 5
vXB, vCUR = 26, 6
vXB = 208
vCUR = 215
def qkv_reads(kk, fs):
    def wr(t):
        return [f"ds_read_b64_tr_b16 {ar(fs+16+4*t+2*j,2)}, v{vCUR+2+t} offset:{kk*10240 + j*1280}" for j in range(2)]
    L = wr(0)
    for st in range(4):
        L.append(f"ds_read_b128 {ar(fs+4*st,4)}, v{vCUR+kk} offset:{st*2048}")
    for t in range(1, 5): L += wr(t)
    return L
def qkv_mfmas(fs, isq):
    L = []
    order = [(t, st) for t in range(5) for st in range(4)]
    if OPT["mo"] & 1: order = [(t, st) for st in range(4) for t in range(5)]
    if OPT["mo"] & 4: order = [(t, st if t % 2 == 0 else 3 - st) for t in range(5) for st in range(4)]
    for t, st in order:
            x = ar(fs + 4*st, 4); w = ar(fs + 16 + 4*t, 4); c = vr(ACC + (st*5+t)*4, 4)
            L.append(f"v_mfma_f32_16x16x32_bf16 {c}, {w}, {x}, {c}" if isq else f"v_mfma_f32_16x16x32_bf16 {c}, {x}, {w}, {c}")
    return L

def qkv_gemm(A, pfx, isq, mid_setup, extras, pres, blk):
    if OPT["xfirst"]:
        emit_dma_block(A, qkv_dma()[:5])
        qkv_setup_w(A, isq)
        if OPT["rev"]:
            A("s_bitcmp1_b32 s82, 0")
            A(f"s_cbranch_scc0 {pfx}_fwd")
            d = qkv_dma()
            A(f"s_add_u32 m0, s{sWR}, s{sM1}")
            A("s_add_u32 m0, m0, 4096")
            A("s_nop 0")
            A(d[11][0])
            emit_dma_block(A, [d[5], d[9], d[8], d[7], d[6]])
            A(f"s_branch {pfx}_rvd")
            A.label(f"{pfx}_fwd")
        emit_dma_block(A, qkv_dma()[5:])
        if OPT["rev"]: A.label(f"{pfx}_rvd")
    else:
        emit_dma_block(A, qkv_dma())
    for x in qkv_adv(): A(x)
    stamp(A, pfx + "_iss0")
    mid_setup(A)
    A("v_and_b32 v2, 15, v1")
    A("v_lshrrev_b32 v3, 4, v1")
    A("v_lshrrev_b32 v4, 1, v2")
    A("v_xor_b32 v4, v4, v3")
    A("v_lshlrev_b32 v4, 4, v4")
    A("v_lshl_add_u32 v4, v2, 7, v4")
    A(f"s_lshl_b32 s85, s{sWR_}, 13")
    A(f"v_add_u32 v{vXB}, s85, v4")
    A(f"v_xor_b32 v{vXB+1}, 64, v{vXB}")
    A("v_lshrrev_b32 v4, 2, v2")
    A("v_lshl_add_u32 v4, v3, 3, v4")
    A("v_mul_u32_u24 v4, 320, v4")
    A("v_and_b32 v5, 1, v1")
    A("v_lshl_add_u32 v4, v5, 3, v4")
    A("v_add_u32 v4, 16384, v4")
    A("v_bfe_u32 v5, v1, 1, 1")
    A("v_and_b32 v6, 1, v3")
    A("v_lshlrev_b32 v6, 1, v6")
    A(f"s_mul_i32 s85, s{sWC_}, {10 if isq else 5}")
    for t in range(5):
        if isq: c0, step = [(0, 1), (2, 1), (4, 5), (5, 1), (7, 1)][t]
        else: c0, step = [(0, 1), (2, 1), (4, 6), (11, 1), (13, 1)][t]
        A(f"s_add_u32 s86, s85, {c0}")
        if step == 1: A("v_add_u32 v7, s86, v5")
        else: A(f"v_mad_u32_u24 v7, v5, {step}, s86")
        A("v_xor_b32 v7, v7, v6")
        A(f"v_lshl_add_u32 v{vXB+2+t}, v7, 4, v4")
    zero_acc(A)
    A(f"s_mov_b32 s{sRD}, {2*STG}")
    A(f"s_mov_b32 s{sCNT}, 0")
    upd = [f"v_add_u32 v{vCUR+i}, s{sRD}, v{vXB+i}" for i in range(7)]
    rdadv = [f"s_add_u32 s{sRD}, s{sRD}, {STG}", f"s_cmp_eq_u32 s{sRD}, {4*STG}", f"s_cselect_b32 s{sRD}, 0, s{sRD}"]
    def spread(rd, dma_slots, groups, scal):
        fill = [[] for _ in range(20)]
        k = 0
        for gi in range(9):
            for _ in range(2 if gi < 5 else 1):
                fill[gi].append(rd[k]); k += 1
        g = list(groups)
        for sl in dma_slots:
            if not g: break
            if "m0" in g[0][0].split(",")[0]:
                fill[sl-1] += g.pop(0)
            fill[sl] += g.pop(0)
        return fill, g
    def put_scal(fill, scal, start):
        sc = list(scal); gi = start
        while sc:
            room = 2 - len(fill[gi]) if gi < 19 else len(sc)
            for _ in range(max(room, 0)):
                if sc: fill[gi].append(sc.pop(0))
            gi += 1
    def top_half(wait, groups, pre=None, slots=(3, 7, 11, 15, 19)):
        A(f"s_waitcnt vmcnt({wait}) lgkmcnt(0)")
        if pre: pre(A)
        A("s_barrier")
        fill, rest = spread(qkv_reads(0, FA_), slots, groups, [])
        weave(A, qkv_mfmas(FB_, isq), fill)
        return rest
    def bot_half(adv, tail, groups=[], slots=(2, 6, 10, 13)):
        A("s_waitcnt lgkmcnt(0)")
        fill, rest = spread(qkv_reads(1, FB_), slots, groups, [])
        assert not rest
        put_scal(fill, rdadv + upd, 9)
        put_scal(fill, (qkv_adv() if adv else []) + tail, 14)
        weave(A, qkv_mfmas(FA_, isq), fill)
    for x in upd: A(x)
    stamp(A, pfx + "_setup")
    emit_dma_block(A, qkv_dma())
    for x in qkv_adv(): A(x)
    stamp(A, pfx + "_issued")
    A("s_waitcnt vmcnt(9)")
    A("s_barrier")
    stamp(A, pfx + "_first")
    for x in qkv_reads(0, FA_): A(x)
    emit_dma_block(A, qkv_dma()[:7])
    A(f"s_branch {pfx}_mid")
    A(f".p2align {OPT['lal']}")
    A.label(f"{pfx}_loop")
    outl = []
    for k, (c, fn) in enumerate(blk):
        A(f"s_cmp_eq_u32 s{sCNT}, {c}")
        A(f"s_cbranch_scc1 {pfx}_blk{k}")
    A.label(f"{pfx}_noblk")
    rest = top_half(9, qkv_dma())
    assert len(rest) == 5
    A.label(f"{pfx}_mid")
    ntl = OPT["ntl"]
    bot_half(True, [f"s_add_u32 s{sCNT}, s{sCNT}, 1", f"s_cmp_lt_u32 s{sCNT}, {ntl if ntl else 8}"], rest)
    A(f"s_cbranch_scc1 {pfx}_loop")
    if ntl:
        keep = OPT["ntq"]; OPT["ntq"] = OPT["ntlq"] if isq else OPT["ntlk"]
        A(f".p2align {OPT['lal']}")
        A.label(f"{pfx}_loop2")
        rest = top_half(9, qkv_dma())
        bot_half(True, [f"s_add_u32 s{sCNT}, s{sCNT}, 1", f"s_cmp_lt_u32 s{sCNT}, 8"], rest)
        A(f"s_cbranch_scc1 {pfx}_loop2")
        OPT["ntq"] = keep
    for it in (8, 9):
        g, w = extras.get(it, ([], 9 if it == 8 else 0))
        sl = (1, 3, 5, 8, 10, 12, 14, 16, 18) if len(g) > 14 else (2, 5, 8, 11, 14, 17)
        rest = top_half(w, g, pres.get(it), sl)
        bot_half(False, [], rest, sl)
    stamp(A, pfx + "_loop9")
    A("s_waitcnt lgkmcnt(0)")
    if isq and not OPT["kweave"]:
        for m in qkv_mfmas(FB_, isq): A(m)
        A("s_nop 7")
        stamp(A, pfx + "_loopdone")
    def outline(A):
        for k, (c, fn) in enumerate(blk):
            A.label(f"{pfx}_blk{k}")
            fn(A)
            A(f"s_branch {pfx}_noblk")
    return outline

PAIRS = [(2,0),(3,0),(2,1),(3,1),(4,1),(3,2),(4,2)]
def kv_mask(i):
    te, tc = PAIRS[i]; m = 0
    for l in range(64):
        c = 16*tc + l % 16; e = [-8, 8, 24][te-2] + 4*(l//16)
        if c < 40 and e >= 0 and c//20 == e//20: m |= 1 << l
    return m

KVB = [sum(bin(kv_mask(j)).count("1") for j in range(i)) for i in range(8)]
def kv_rank(A, dst, i, shift, add=0):
    m = kv_mask(i)
    A(f"s_mov_b32 s85, {m & 0xffffffff:#x}")
    A(f"s_mov_b32 s86, {m >> 32:#x}")
    A(f"v_mbcnt_lo_u32_b32 v{dst}, s85, {KVB[i]}" if KVB[i] <= 64 else f"v_mov_b32 v{dst}, {KVB[i]}\nv_mbcnt_lo_u32_b32 v{dst}, s85, v{dst}")
    A(f"v_mbcnt_hi_u32_b32 v{dst}, s86, v{dst}")
    A(f"v_lshlrev_b32 v{dst}, {shift}, v{dst}")
    if add: A(f"v_add_u32 v{dst}, {add}, v{dst}")
vKR = 246
def phi4(A, b, T, dst=None):
    dst = b if dst is None else dst
    A(f"v_pk_mul_f32 {vr(T,2)}, {vr(b,2)}, s[{sL2}:{sL2+1}]")
    A(f"v_pk_mul_f32 {vr(T+2,2)}, {vr(b+2,2)}, s[{sL2}:{sL2+1}]")
    for i in range(4): A(f"v_exp_f32 v{T+i}, v{T+i} clamp")
    for i in range(4): A(f"v_max_f32 v{dst+i}, {EPS6:#x}, v{b+i}")
    A(f"v_pk_add_f32 {vr(dst,2)}, {vr(dst,2)}, {vr(T,2)}")
    A(f"v_pk_add_f32 {vr(dst+2,2)}, {vr(dst+2,2)}, {vr(T+2,2)}")
sL2 = 88
vEW, vEZ, vER, sKVS = 250, 251, 252, 26
def kv_esetup(A):
    A(f"s_lshl_b32 s85, s{sBp}, 1")
    A(f"s_add_u32 s85, s85, s{sWC_}")
    A("s_lshl_b32 s86, s85, 4")
    A(f"s_add_u32 s86, s86, s{sA}")
    A("s_lshl_b32 s87, s86, 8")
    A(f"s_mul_i32 s{sKVS}, s86, 3200")
    A(f"s_sub_u32 s87, s87, s{sKVS}")
    A(f"s_add_u32 s87, s87, {WS_ZP - WS_KVP:#x}")
    A("s_lshr_b32 s87, s87, 4")
    A(f"s_add_u32 s{sKVS}, s{sKVS}, {WS_KVP:#x}")
    A("v_mov_b32 v2, 0x7ff00000")
    for k in range(4):
        mA = kv_mask(k); mB = kv_mask(4+k) if k < 3 else 0xffff
        A(f"s_cmp_eq_u32 s{sWR_}, 0")
        A(f"s_mov_b32 s92, {mB & 0xffffffff:#x}")
        A(f"s_cselect_b32 s92, {mA & 0xffffffff:#x}, s92")
        A(f"s_mov_b32 s93, {mB >> 32:#x}")
        A(f"s_cselect_b32 s93, {mA >> 32:#x}, s93")
        if k < 3: A(f"s_mov_b32 s88, {KVB[4+k]}")
        A(f"s_cselect_b32 s88, {KVB[k]}, s{88 if k < 3 else 87}")
        A(f"v_mov_b32 v{vKR+k}, s88")
        A(f"v_mbcnt_lo_u32_b32 v{vKR+k}, s92, v{vKR+k}")
        A(f"v_mbcnt_hi_u32_b32 v{vKR+k}, s93, v{vKR+k}")
        A(f"v_lshlrev_b32 v{vKR+k}, 4, v{vKR+k}")
        A(f"v_cndmask_b32 v{vKR+k}, v2, v{vKR+k}, s[92:93]")
    A(f"s_mul_i32 s85, s{sWAVE}, 8448")
    A(f"s_add_u32 s85, s85, {LDS_RED}")
    A(f"v_add_u32 v{vEW}, s85, v{vB0}")
    A(f"v_lshl_add_u32 v{vEZ}, v1, 2, s85")
    A(f"s_mul_i32 s85, s{sWC_}, 8448")
    A(f"s_lshl_b32 s86, s{sWR_}, 12")
    A("s_add_u32 s85, s85, s86")
    A(f"s_add_u32 s85, s85, {LDS_RED}")
    A(f"v_add_u32 v{vER}, s85, v{vB0}")
    A("v_and_b32 v2, 15, v1")
    A(f"v_cmp_gt_u32 s[{sMK}:{sMK+1}], 8, v2")
    A("v_cmp_lt_u32 s[64:65], 15, v1")
    A("v_cmp_lt_u32 s[66:67], 31, v1")
def kv_estream():
    PB, KA, ONE, TMP = 128, 168, 208, 212
    E = [Asm(), Asm(), Asm(), Asm()]
    A = E[0]
    A(f"s_mov_b32 s{sL2}, {LOG2E:#x}")
    A(f"s_mov_b32 s{sL2+1}, {LOG2E:#x}")
    for i in range(4): A(f"v_mov_b32 v{ONE+i}, 0x3f803f80")
    for st in range(4):
        A = E[st // 2]
        for t in range(3):
            b = ACC + (st*5+t)*4
            if t < 2: phi4(A, b, TMP)
            else:
                phi4(A, b, TMP, TMP+4)
                for i in range(4): A(f"v_cndmask_b32 v{b+i}, v{b+i}, v{TMP+4+i}, s[{sMK}:{sMK+1}]")
        for t in range(5):
            b = ACC + (st*5+t)*4
            d = PB + (t*2 + st//2)*4 + (st & 1)*2
            A(f"v_cvt_pk_bf16_f32 v{d}, v{b}, v{b+1}")
            A(f"v_cvt_pk_bf16_f32 v{d+1}, v{b+2}, v{b+3}")
        if st & 1:
            sp = st // 2
            A("s_nop 1")
            for tc in range(3):
                c = vr(KA+4*(7+tc), 4)
                A(f"v_mfma_f32_16x16x32_bf16 {c}, {vr(ONE,4)}, {vr(PB+(tc*2+sp)*4,4)}, {c if sp else 0}")
            for i, (te, tc) in enumerate(PAIRS):
                c = vr(KA+4*i, 4)
                A(f"v_mfma_f32_16x16x32_bf16 {c}, {vr(PB+(te*2+sp)*4,4)}, {vr(PB+(tc*2+sp)*4,4)}, {c if sp else 0}")
    A = E[1]
    A("s_nop 0")
    A(f"v_cndmask_b32 v{KA+28}, v{KA+28}, v{KA+32}, s[64:65]")
    A(f"v_cndmask_b32 v{KA+28}, v{KA+28}, v{KA+36}, s[66:67]")
    A(f"ds_write_b32 v{vEZ}, v{KA+28} offset:7168")
    for i in range(7): A(f"ds_write_b128 v{vEW}, {vr(KA+4*i,4)} offset:{1024*i}")
    A = E[2]
    for k in range(4):
        A(f"ds_read_b128 {vr(PB+8*k,4)}, v{vER} offset:{1024*k}")
        A(f"ds_read_b128 {vr(PB+8*k+4,4)}, v{vER} offset:{1024*k + 16896}")
    A = E[3]
    A("s_waitcnt lgkmcnt(0)")
    for k in range(4):
        for i in (0, 2): A(f"v_pk_add_f32 {vr(PB+8*k+i,2)}, {vr(PB+8*k+i,2)}, {vr(PB+8*k+4+i,2)}")
    for k in range(4):
        A(f"buffer_store_dwordx4 {vr(PB+8*k,4)}, v{vKR+k}, s[{sWS}:{sWS+3}], s{sKVS} offen sc1")
    return [e.lines for e in E]

def w1_setup(A, locbase, vreg):
    A(f"s_sub_u32 s88, s82, {locbase}")
    A("s_lshl_b32 s88, s88, 2")
    A(f"s_add_u32 s88, s88, s{sWAVE}")
    A(f"v_and_b32 v{vreg}, 31, v1")
    A(f"v_mul_u32_u24 v{vreg}, 3072, v{vreg}")
    A("v_lshrrev_b32 v3, 5, v1")
    A(f"v_lshl_add_u32 v{vreg}, v3, 9, v{vreg}")
    A(f"s_mul_i32 s85, s88, {32*3072}")
    A("s_lshl_b32 s86, s83, 7")
    A("s_add_u32 s85, s85, s86")
    A(f"s_mul_i32 s86, s84, {1024*3072}")
    A("s_add_u32 s26, s86, s85")
    A("s_xor_b32 s87, s84, 1")
    A(f"s_mul_i32 s87, s87, {1024*3072}")
    A("s_add_u32 s27, s87, s85")

def w2_prefetch(A, locbase, parts):
    A(f"s_sub_u32 s85, s82, {locbase}")
    A("s_lshl_b32 s85, s85, 2")
    A(f"s_add_u32 s85, s85, s{sWAVE}")
    if OPT["fmap"] and OPT["w2c"] != 2:
        A("v_lshrrev_b32 v2, 2, v1")
        A("v_lshlrev_b32 v2, 12, v2")
        A("v_and_b32 v3, 3, v1")
        A(f"v_lshl_add_u32 v2, v3, {10 if OPT['fmap'] == 1 else 7}, v2")
        A(f"s_mul_i32 s85, s85, {48*4096}")
        A(f"s_lshl_b32 s86, s81, {7 if OPT['fmap'] == 1 else 9}")
        A("s_add_u32 s85, s85, s86")
        if parts[0]: A(f"s_add_u32 s85, s85, {16*4096*parts[0]}")
        for i in parts:
            A(f"buffer_load_dword a255, v2, s[{sW2}:{sW2+3}], s85 offen")
            if i != parts[-1]: A(f"s_add_u32 s85, s85, {16*4096}")
        return
    if OPT["w2c"]:
        A("s_lshl_b32 s86, s81, 5")
        A("s_add_u32 s85, s85, s86")
        A("s_lshl_b32 s85, s85, 13")
        if parts[0]: A(f"s_add_u32 s85, s85, {(8192*256)*parts[0]}")
        for i in parts:
            A(f"buffer_load_dword a255, v15, s[{sW2}:{sW2+3}], s85 offen")
            if i != parts[-1]: A(f"s_add_u32 s85, s85, {8192*256}")
        return
    A("v_lshrrev_b32 v2, 3, v1")
    A("v_lshlrev_b32 v2, 12, v2")
    A("v_and_b32 v3, 7, v1")
    A("v_lshl_add_u32 v2, v3, 7, v2")
    A("s_mul_i32 s85, s85, 24")
    A("s_mul_i32 s86, s84, 768")
    A("s_add_u32 s85, s85, s86")
    A(f"s_add_u32 s85, s85, {8*parts[0]}")
    A("s_lshl_b32 s85, s85, 12")
    A("s_lshl_b32 s86, s83, 10")
    A("s_add_u32 s85, s85, s86")
    for i in parts:
        A(f"buffer_load_dword a255, v2, s[{sW2}:{sW2+3}], s85 offen")
        if i != parts[-1]: A(f"s_add_u32 s85, s85, {8*4096}")

QCB = [0, 16, 32, 40, 56]
QDP = [(0,0),(0,1),(1,0),(1,1),(1,2),(2,1),(2,2),(2,4),(3,3),(3,4),(4,2),(4,3),(4,4)]
sMA, sZO, sKO, sPQ, sWOo, sGo = 56, 58, 59, 64, 67, 23
vWOd, vWOt, vZA, vKP, vGo, vT1 = 248, 246, 252, 245, 25, 244
MSK = 194
def q_setup(A):
    T = 128
    A(f"s_mul_i32 s{sWOo}, s{sU}, {40*1280}")
    A(f"s_mul_i32 s86, s{sNR}, 320")
    A(f"s_add_u32 s{sWOo}, s{sWOo}, s86")
    A(f"s_lshl_b32 s86, s{sWAVE}, 8")
    for n in range(4):
        A(f"v_add_u32 v2, {64*n}, v1")
        A("v_add_u32 v2, s86, v2")
        A("v_mul_u32_u24 v3, 3277, v2")
        A("v_lshrrev_b32 v3, 16, v3")
        A("v_mul_u32_u24 v4, 20, v3")
        A("v_sub_u32 v4, v2, v4")
        A("v_mul_u32_u24 v3, 1280, v3")
        A(f"v_lshl_add_u32 v{vWOd+n}, v4, 4, v3")
        if n: A(f"v_subrev_u32 v{vWOd+n}, {1024*n}, v{vWOd+n}")
    A("v_and_b32 v3, 15, v1")
    A("v_lshrrev_b32 v4, 4, v1")
    A(f"v_lshlrev_b32 v{vGo}, 2, v3")
    A(f"s_lshl_b32 s86, s{sA}, 9")
    A(f"s_lshl_b32 s87, s{sWR_}, 8")
    A("s_add_u32 s86, s86, s87")
    A(f"s_add_u32 s{sGo}, s86, {WS_G:#x}")
    A("v_bfe_u32 v5, v1, 1, 2")
    A(f"s_lshl_b32 s85, s{sWAVE}, 2")
    A("v_add_lshl_u32 v5, v5, s85, 3")
    A("v_and_b32 v6, 1, v1")
    A(f"s_lshl_b32 s85, s{sBp}, 1")
    A("v_add3_u32 v5, v5, v6, s85")
    A(f"v_lshlrev_b32 v{vKP}, 7, v5")
    A("v_lshrrev_b32 v5, 2, v3")
    A("v_lshl_add_u32 v5, v4, 2, v5")
    A("v_and_b32 v6, 7, v5")
    A("v_mul_u32_u24 v6, 320, v6")
    A("v_mul_u32_u24 v5, 320, v5")
    A("v_and_b32 v7, 3, v1")
    A("v_lshlrev_b32 v7, 3, v7")
    A(f"s_lshl_b32 s86, s{sWAVE}, 5")
    A("v_add_u32 v7, s86, v7")
    A(f"v_add_u32 v{vWOt}, v6, v7")
    A(f"v_add_u32 v{vWOt+1}, v5, v7")
    A(f"s_lshr_b32 s86, s{sU}, 2")
    A("s_mul_i32 s86, s86, 5")
    A(f"s_bfe_u32 s87, s{sU}, 0x10001")
    A(f"s_and_b32 s88, s{sU}, 1")
    A("s_mul_i32 s89, s87, 3")
    A("s_add_u32 s89, s89, s88")
    A("s_add_u32 s89, s89, s86")
    A(f"s_mul_i32 s{sMA}, s89, 40960")
    A("s_add_u32 s86, s86, 2")
    A(f"s_mul_i32 s{sMA+1}, s86, 40960")
    A("s_lshl_b32 s87, s87, 3")
    A("s_lshl_b32 s88, s88, 9")
    A(f"s_add_u32 s{sMA+1}, s{sMA+1}, s87")
    A(f"s_add_u32 s{sMA+1}, s{sMA+1}, s88")
    A(f"s_mul_i32 s86, s{sNR}, 10240")
    A(f"s_lshl_b32 s87, s{sWAVE}, 10")
    A("s_add_u32 s86, s86, s87")
    A(f"s_add_u32 s86, s86, {WS_M:#x}")
    A(f"s_add_u32 s{sMA}, s{sMA}, s86")
    A(f"s_add_u32 s{sMA+1}, s{sMA+1}, s86")
    A(f"s_lshl_b32 s85, s{sA}, 1")
    A(f"s_add_u32 s85, s85, s{sWR_}")
    A("s_mul_i32 s85, s85, 20")
    A(f"s_mul_i32 s86, s{sBp}, 5")
    A("s_add_u32 s85, s85, s86")
    A("s_lshl_b32 s85, s85, 12")
    A(f"s_add_u32 s85, s85, {WS_PQ:#x}")
    A(f"s_mul_i32 s86, s{sWC_}, {3*4096}")
    A(f"s_add_u32 s{sPQ}, s86, s85")
    A(f"s_add_u32 s{sPQ+1}, s{sPQ}, 4096")
    A(f"s_lshl_b32 s88, s{sWC_}, 3")
    A("s_add_u32 s88, s88, s85")
    A(f"s_add_u32 s{sPQ+2}, s88, 8192")
    A(f"v_add_u32 v5, s{sWAVE}, v1")
    A(f"s_mul_i32 s85, s{sWAVE}, 9")
    A("v_add_u32 v5, s85, v5")
    A("v_lshrrev_b32 v6, 2, v5")
    A("v_and_b32 v5, 3, v5")
    A("v_lshlrev_b32 v5, 7, v5")
    A("v_lshl_add_u32 v5, v6, 10, v5")
    A(f"s_sub_u32 s85, s{sMA+1}, s87")
    A("s_and_b32 s85, s85, 0xffffff80")
    A("v_add_u32 v5, s85, v5")
    A(f"s_and_b32 s85, s{sPQ+2}, 0xffffff80")
    A(f"s_lshl_b32 s86, s{sWC_}, 11")
    A("s_add_u32 s85, s85, s86")
    A("v_lshlrev_b32 v6, 7, v3")
    A("v_add_u32 v6, s85, v6")
    A("v_cmp_gt_u32 vcc, 10, v1")
    A("s_nop 1")
    A(f"v_cndmask_b32 v{vT1}, v6, v5, vcc")
    A(f"v_mov_b32 v{T}, {LDS_RED + 1600}")
    for i in range(7):
        kv_rank(A, 26+i, i, 3, LDS_RED)
        A(f"s_mov_b32 s92, s85")
        A(f"s_mov_b32 s93, s86")
        A(f"v_cndmask_b32 v{26+i}, v{T}, v{26+i}, s[92:93]")
    cb = QCB
    for t in range(5):
        A(f"v_lshl_add_u32 v{T+t}, v4, 2, {cb[t]}")
        A(f"v_add_u32 v{T+5+t}, {cb[t]}, v3")
        if t == 2:
            A("v_lshrrev_b32 v5, 1, v4")
            A(f"v_lshl_add_u32 v{T+t}, v5, 5, v{T+t}")
            A("v_mul_u32_u24 v7, 4064, v5")
            A("v_lshrrev_b32 v5, 3, v3")
            A(f"v_lshl_add_u32 v{T+5+t}, v5, 5, v{T+5+t}")
        A(f"v_mul_u32_u24 v{T+t}, 205, v{T+t}")
        A(f"v_lshrrev_b32 v{T+t}, 12, v{T+t}")
        A(f"v_mul_u32_u24 v{T+5+t}, 205, v{T+5+t}")
        A(f"v_lshrrev_b32 v{T+5+t}, 12, v{T+5+t}")
    for k, (tp, t) in enumerate(QDP):
        A(f"v_cmp_eq_u32 vcc, v{T+t}, v{T+5+tp}")
        A("s_nop 1")
        A(f"v_cndmask_b32 v{MSK+k}, 0, -1, vcc")
    A("v_lshlrev_b32 v5, 8, v3")
    A(f"v_lshl_add_u32 v{vZA}, v4, 4, v5")
    A(f"v_add_u32 v{vZA+2}, v7, v{vZA}")
    A(f"v_add_u32 v{vZA+1}, 4096, v{vZA}")
    A(f"s_lshl_b32 s86, s{sBp}, 14")
    A(f"s_lshl_b32 s87, s{sWC_}, 13")
    A("s_add_u32 s86, s86, s87")
    A(f"s_add_u32 s{sZO}, s86, {WS_ZP:#x}")
    A(f"s_mul_i32 s89, s{sU}, {16*3200}")
    A(f"s_mul_i32 s87, s{sWAVE}, 800")
    A("s_add_u32 s87, s87, s89")
    A(f"s_add_u32 s{sKO}, s87, {WS_KVP:#x}")
    if OPT["qw2"]:
        A("s_sub_u32 s85, s82, 16")
        A("s_lshl_b32 s85, s85, 2")
        A(f"s_add_u32 s85, s85, s{sWAVE}")
        A("s_lshl_b32 s86, s81, 5")
        A("s_add_u32 s85, s85, s86")
        A("s_lshl_b32 s85, s85, 13")
        A(f"s_add_u32 s99, s85, {8192*256*(3 - OPT['qw2'])}")
def q_pf_only(A):
    for k in range(3 - OPT["qw1n"], 3):
        A(f"buffer_load_dword a255, v12, s[{sW1}:{sW1+3}], s26 offen offset:{1024*k}")
def q_loop_pf(A):
    if OPT["qw1"] == 0:
        A("s_mov_b32 exec_lo, 0xffff03ff")
        A("s_mov_b32 exec_hi, 0")
        A(f"buffer_load_dword a255, v{vT1}, s[{sWS}:{sWS+3}], 0 offen sc1")
        A("s_mov_b64 exec, -1")
        return
    for k in range(3 - OPT["qw1n"], 3):
        A(f"buffer_load_dword a255, v12, s[{sW1}:{sW1+3}], s26 offen offset:{1024*k}")
    if OPT["qw1b"]:
        for k in range(3): A(f"buffer_load_dword a255, v12, s[{sW1}:{sW1+3}], s27 offen offset:{1024*k}")
    for k in range(OPT["qw2"]):
        A(f"buffer_load_dword a255, v15, s[{sW2}:{sW2+3}], s99 offen")
        A(f"s_add_u32 s99, s99, {8192*256}")
    if OPT["touch"] and not OPT["qdefer"]:
        A("s_mov_b32 exec_lo, 0xffff03ff")
        A("s_mov_b32 exec_hi, 0")
        A(f"buffer_load_dword a255, v{vT1}, s[{sWS}:{sWS+3}], 0 offen sc1")
        A("s_mov_b64 exec, -1")
def q_extras():
    g8 = [[poll_ld(vPO, 24)], [f"s_lshl_b32 m0, s{sWAVE}, 12"]] + [[f"buffer_load_dwordx4 v{vWOd+n}, s[{sWO}:{sWO+3}], s{sWOo} offen offset:{1024*n} lds"] for n in range(4)]
    g9 = [[f"buffer_load_dword v{8+st}, v{vGo}, s[{sWS}:{sWS+3}], s{sGo} offen offset:{64*st} sc1"] for st in range(4)]
    return {8: (g8, 9), 9: (g9, 0)}

def q_epilogue(A):
    PK, Z, AF, ZP, G = 128, 168, 168, 16, 8
    KA_, DEN, OUT, TMP = 48, 204+0, 224, 112
    WBa, KVa = 0, 20
    cb, dp = QCB, QDP
    A(f"s_mov_b32 s24, {FL_KV:#x}")
    for i in range(3):
        A(f"ds_read_b64_tr_b16 {ar(WBa+6*i,2)}, v{vWOt} offset:{128*i}")
        A(f"ds_read_b64_tr_b16 {ar(WBa+6*i+2,2)}, v{vWOt+1} offset:{128*i + 8*320}")
        A(f"ds_read_b64_tr_b16 {ar(WBa+6*i+4,2)}, v{vWOt+1} offset:{128*i + 24*320}")
    A(f"v_mov_b32 v2, {LDS_RED + 1600}")
    A("v_mov_b64 v[4:5], 0")
    A("ds_write_b64 v2, v[4:5]")
    A(f"s_mov_b32 s{sL2}, {LOG2E:#x}")
    A(f"s_mov_b32 s{sL2+1}, {LOG2E:#x}")
    B = Asm()
    for k, b in enumerate(range(ACC, ACC+80, 4)):
        if k == 12: B(poll_ld(vKP, 24))
        phi4(B, b, 208)
        B(f"v_cvt_pk_bf16_f32 v{PK+2*k}, v{b}, v{b+1}")
        B(f"v_cvt_pk_bf16_f32 v{PK+2*k+1}, v{b+2}, v{b+3}")
    k = 0
    if OPT["kweave"]:
        keep = OPT["mo"]; OPT["mo"] = 1; fm = qkv_mfmas(FB_, True); OPT["mo"] = keep
        fill = [[] for _ in range(20)]
        for g in range(9, 20):
            fill[g] = B.lines[k:k+2]; k += 2
        weave(A, fm, fill)
    for x in B.lines[k:]: A(x)
    stamp(A, "q_pre")
    A("s_waitcnt vmcnt(0) lgkmcnt(0)")
    poll_check(A, "pkv", vKP, 24)
    A("s_barrier")
    stamp(A, "q_kvok")
    for t in range(5):
        A(f"buffer_load_dwordx4 {vr(Z+4*t,4)}, v{vZA+[0,0,2,1,1][t]}, s[{sWS}:{sWS+3}], s{sZO} offen offset:{[0,64,128,0,64][t]} sc1")
    kvl = []
    for rb in range(0, 16, 2):
        kvl.append(["s_mov_b32 exec_hi, 0x3ffff",
                    f"buffer_load_dwordx4 {vr(KA_+4*rb,4)}, v{vB0}, s[{sWS}:{sWS+3}], s{sKO} offen sc1",
                    f"buffer_load_dwordx4 {vr(KA_+4*rb+4,4)}, v{vB0}, s[{sWS}:{sWS+3}], s{sKO} offen offset:3200 sc1",
                    "s_mov_b32 exec_hi, -1", f"s_add_u32 s{sKO}, s{sKO}, 6400"])
    def kv(n):
        for _ in range(n):
            if kvl:
                for x in kvl.pop(0): A(x)
    kv(2)
    A("s_waitcnt vmcnt(4)")
    stamp(A, "q_z")
    for rot in (8, 4, 2, 1):
        kv(1)
        for i in range(20):
            A(f"v_add_f32_dpp v{Z+i}, v{Z+i}, v{Z+i} row_ror:{rot} row_mask:0xf bank_mask:0xf")
    for i in range(10): A(f"v_cvt_pk_bf16_f32 v{ZP+i}, v{Z+2*i}, v{Z+2*i+1}")
    kv(2)
    for k, (tp, t) in enumerate(dp):
        A(f"v_and_b32 v{AF+2*k}, v{MSK+k}, v{ZP+2*t}")
        A(f"v_and_b32 v{AF+2*k+1}, v{MSK+k}, v{ZP+2*t+1}")
    A("s_nop 0")
    DEN2 = 224
    def den(st, Dn):
        seen = set()
        for k, (tp, t) in enumerate(dp):
            c = vr(Dn + 4*tp, 4)
            A(f"v_mfma_f32_16x16x16_bf16 {c}, {vr(AF+2*k,2)}, {vr(PK+(st*5+t)*2,2)}, {c if tp in seen else 0}")
            seen.add(tp)
    den(0, DEN)
    for st in range(4):
        Dn = DEN if (st & 1) == 0 else DEN2
        o = OUT
        U = TMP + 10
        if st < 3: den(st + 1, DEN2 if (st & 1) == 0 else DEN)
        else: A("s_nop 7")
        kv(OPT["kvr"])
        for tp in range(5): A(f"v_add_f32 v{TMP+2*tp}, {EPS6:#x}, v{Dn+4*tp}")
        for tp in range(5): A(f"v_rcp_f32 v{TMP+2*tp}, v{TMP+2*tp}")
        A("s_nop 0")
        for tp in range(5): A(f"v_mul_f32 v{TMP+2*tp}, v{TMP+2*tp}, v{G+st}")
        for tp in range(5):
            p = PK + (st*5+tp)*2
            if tp == 2: kv(OPT["kvr"])
            A(f"v_lshlrev_b32 v{U}, 16, v{p}")
            A(f"v_and_b32 v{U+1}, 0xffff0000, v{p}")
            A(f"v_lshlrev_b32 v{U+2}, 16, v{p+1}")
            A(f"v_and_b32 v{U+3}, 0xffff0000, v{p+1}")
            A(f"v_pk_mul_f32 {vr(U,2)}, {vr(U,2)}, {vr(TMP+2*tp,2)} op_sel_hi:[1,0]")
            A(f"v_pk_mul_f32 {vr(U+2,2)}, {vr(U+2,2)}, {vr(TMP+2*tp,2)} op_sel_hi:[1,0]")
            A(f"v_cvt_pk_bf16_f32 v{p}, v{U}, v{U+1}")
            A(f"v_cvt_pk_bf16_f32 v{p+1}, v{U+2}, v{U+3}")
        p = PK + st*10
        A(f"buffer_store_dwordx4 {vr(p,4)}, v{vB0}, s[{sWS}:{sWS+3}], s{sPQ} offen offset:{1024*st} sc1")
        A(f"buffer_store_dwordx4 {vr(p+6,4)}, v{vB0}, s[{sWS}:{sWS+3}], s{sPQ+1} offen offset:{1024*st} sc1")
        A(f"buffer_store_dwordx2 {vr(p+4,2)}, v{vB0}, s[{sWS}:{sWS+3}], s{sPQ+2} offen offset:{1024*st} sc1")
    assert not kvl
    stamp(A, "q_pq")
    A("s_waitcnt vmcnt(12)")
    stamp(A, "q_kv")
    for w in (32, 16, 8, 4):
        for i in range(0, w, 2):
            A(f"v_pk_add_f32 {vr(KA_+i,2)}, {vr(KA_+i,2)}, {vr(KA_+w+i,2)}")
    A(f"s_mul_i32 s86, s{sWAVE}, 400")
    A(f"s_add_u32 s86, s86, {LDS_RED}")
    A("v_lshlrev_b32 v7, 3, v1")
    A("v_add_u32 v7, s86, v7")
    A(f"v_cvt_pk_bf16_f32 v{KA_}, v{KA_}, v{KA_+1}")
    A(f"v_cvt_pk_bf16_f32 v{KA_+1}, v{KA_+2}, v{KA_+3}")
    A("s_mov_b32 exec_hi, 0x3ffff")
    A(f"ds_write_b64 v7, {vr(KA_,2)}")
    A("s_mov_b32 exec_hi, -1")
    A("s_waitcnt lgkmcnt(0)")
    A("s_barrier")
    stamp(A, "q_bar")
    for i in range(7): A(f"ds_read_b64 {ar(KVa+2*i,2)}, v{26+i}")
    A("s_waitcnt lgkmcnt(0)")
    MD = 64
    for i in range(3):
        seen = set()
        for k, (te, tc) in enumerate(PAIRS):
            c = vr(MD + (i*3+tc)*4, 4)
            A(f"v_mfma_f32_16x16x16_bf16 {c}, {ar(KVa+2*k,2)}, {ar(WBa+6*i+2*(te-2),2)}, {c if tc in seen else 0}")
            seen.add(tc)
    for i in range(3):
        if i == 2:
            A(f"s_cmp_ge_u32 s{sWAVE}, 2")
            A("s_cbranch_scc1 q_m_done")
            A("s_nop 2")
        b = MD + i*12
        for k in range(6): A(f"v_cvt_pk_bf16_f32 v{b+k}, v{b+2*k}, v{b+2*k+1}")
        A(f"buffer_store_dwordx4 {vr(b,4)}, v{vB0}, s[{sWS}:{sWS+3}], s{sMA} offen sc1")
        A("s_mov_b32 exec_hi, 0")
        A(f"buffer_store_dwordx2 {vr(b+4,2)}, v{vB0}, s[{sWS}:{sWS+3}], s{sMA+1} offen sc1")
        A("s_mov_b32 exec_hi, -1")
        A(f"s_add_u32 s{sMA}, s{sMA}, 4096")
        A(f"s_add_u32 s{sMA+1}, s{sMA+1}, 4096")
    A.label("q_m_done")
    stamp(A, "q_mdone")

def tlb_touch(A):
    for ptr, size in ((26, WS_SIZE), (22, 2048*1280), (16, 1536*4096), (12, 2048*3072), (8, 640*1280), (14, 4), (18, 4)):
        A(f"s_mov_b64 s[86:87], s[{ptr}:{ptr+1}]")
        offs = sorted(set(list(range(0, size, 1 << 21)) + [size - 4]))
        prev = 0
        for o in offs:
            if o - prev >= (1 << 20):
                A(f"s_add_u32 s86, s86, {o - prev:#x}")
                A("s_addc_u32 s87, s87, 0")
                prev = o
            A(f"s_load_dword s98, s[86:87], {o - prev:#x}")
def ln_role(A, after_loads, ne):
    X, GW, D = 48, 88, 128
    A("v_lshrrev_b32 v2, 3, v1")
    A(f"s_lshl_b32 s85, s{sWAVE}, 3")
    A("v_add_u32 v2, s85, v2")
    A("v_and_b32 v3, 7, v1")
    A("v_lshlrev_b32 v3, 4, v3")
    A("v_mul_u32_u24 v4, 1280, v2")
    A("v_add_u32 v4, v4, v3")
    A(f"s_mul_i32 s85, s{sA}, {32*1280}")
    A("s_waitcnt lgkmcnt(0)"); srds(A, ["X", "GW"])
    LN_TLB = True
    for i in range(10):
        A(f"buffer_load_dwordx4 {vr(X+4*i,4)}, v4, s[{sX}:{sX+3}], s85 offen offset:{128*i}")
    for i in range(10):
        A(f"buffer_load_dwordx4 {vr(GW+4*i,4)}, v3, s[{sGW}:{sGW+3}], 0 offen offset:{128*i}")
    A("v_mul_u32_u24 v16, 1312, v2")
    A("v_add_u32 v16, v16, v3")
    A("v_lshlrev_b32 v17, 2, v2")
    if OPT["tlb"] == 1: tlb_touch(A)
    after_loads(A)
    A("v_mov_b32 v5, 0x3f803f80")
    for i in range(4): A(f"v_mov_b32 v{8+i}, 0")
    A(f"s_waitcnt vmcnt({10+ne})")
    stamp(A, "ln_first")
    for i in range(40):
        A(f"v_dot2_f32_bf16 v{8+(i&1)}, v{X+i}, v5, v{8+(i&1)}")
    A(f"s_waitcnt vmcnt({ne})")
    for i in range(40):
        A(f"v_dot2_f32_bf16 v{10+(i&1)}, v{X+i}, v{GW+i}, v{10+(i&1)}")
    A("s_nop 2")
    A("v_add_f32 v8, v8, v9")
    A("v_add_f32 v10, v10, v11")
    def red8(r):
        for m in ("quad_perm:[1,0,3,2]", "quad_perm:[2,3,0,1]", "row_half_mirror"):
            A("s_nop 1")
            for x in r: A(f"v_add_f32_dpp v{x}, v{x}, v{x} {m} row_mask:0xf bank_mask:0xf")
    red8([8, 10])
    A(f"v_mul_f32 v8, {0xBACCCCCD:#x}, v8")
    A("v_mov_b32 v9, v8")
    A(f"v_mul_f32 v10, {LOG2E | 0x80000000:#x}, v10")
    A("v_exp_f32 v10, v10")
    for i in range(40):
        A(f"v_lshlrev_b32 v{D+2*i}, 16, v{X+i}")
        A(f"v_and_b32 v{D+2*i+1}, 0xffff0000, v{X+i}")
    A("v_add_f32 v10, 1.0, v10")
    A("v_rcp_f32 v10, v10")
    for i in range(40):
        A(f"v_pk_add_f32 {vr(D+2*i,2)}, {vr(D+2*i,2)}, v[8:9]")
    A("v_pk_mul_f32 v[18:19], v[128:129], v[128:129]")
    A("v_pk_mul_f32 v[20:21], v[130:131], v[130:131]")
    for i in range(2, 40):
        a = 18 + 2*(i & 1)
        A(f"v_pk_fma_f32 {vr(a,2)}, {vr(D+2*i,2)}, {vr(D+2*i,2)}, {vr(a,2)}")
    A("v_pk_add_f32 v[18:19], v[18:19], v[20:21]")
    A("ds_write_b32 v17, v10 offset:49152")
    A("v_add_f32 v18, v18, v19")
    red8([18])
    A(f"v_mov_b32 v19, {0x3727C5AC:#x}")
    A(f"v_fmac_f32 v19, {0x3ACCCCCD:#x}, v18")
    A("v_rsq_f32 v18, v19")
    A("s_nop 0")
    A("v_mov_b32 v19, v18")
    for i in range(40):
        A(f"v_pk_mul_f32 {vr(D+2*i,2)}, {vr(D+2*i,2)}, v[18:19]")
        A(f"v_cvt_pk_bf16_f32 v{X+i}, v{D+2*i}, v{D+2*i+1}")
        if (i & 3) == 3:
            A(f"ds_write_b128 v16, {vr(X+i-3,4)} offset:{128*(i//4)}")
    A("v_lshrrev_b32 v2, 2, v1")
    A("v_mul_u32_u24 v2, 1312, v2")
    A("v_and_b32 v3, 3, v1")
    A("v_lshl_add_u32 v2, v3, 3, v2")
    A(f"s_mul_i32 s85, s{sWAVE}, 320")
    A("v_add_u32 v2, s85, v2")
    A(f"s_mul_i32 s85, s{sA}, 40960")
    A(f"s_mul_i32 s86, s{sWAVE}, 10240")
    A("s_add_u32 s85, s85, s86")
    A("s_add_u32 s86, s85, 4096")
    A("s_add_u32 s87, s85, 8192")
    A("v_lshlrev_b32 v17, 2, v1")
    A(f"s_lshl_b32 s88, s{sA}, 7")
    A(f"s_add_u32 s88, s88, {WS_G:#x}")
    A("s_waitcnt lgkmcnt(0)")
    A("s_barrier")
    A(f"s_cmp_lg_u32 s{sWAVE}, 3")
    A("s_cbranch_scc1 ln_ng")
    A("ds_read_b32 v10, v17 offset:49152")
    A("s_waitcnt lgkmcnt(0)")
    A("s_mov_b32 exec_hi, 0")
    A(f"buffer_store_dword v10, v17, s[{sWS}:{sWS+3}], s88 offen sc1")
    A("s_mov_b32 exec_hi, -1")
    A.label("ln_ng")
    for t in range(10):
        A(f"ds_read_b64_tr_b16 {vr(D+4*t,2)}, v2 offset:{32*t}")
        A(f"ds_read_b64_tr_b16 {vr(D+4*t+2,2)}, v2 offset:{32*t + 16*1312}")
        if t == 6: A("s_waitcnt lgkmcnt(6)")
    for t in range(10):
        A(f"s_waitcnt lgkmcnt({min(2*(9-t), 6)})")
        A(f"buffer_store_dwordx4 {vr(D+4*t,4)}, v{vB0}, s[{sWS}:{sWS+3}], s{85 + t//4} offen offset:{1024*(t&3)} sc1")

def c_adv1(): return [f"s_add_u32 s{sC1}, s{sC1}, s{sCST}", f"s_cmp_eq_u32 s{sC1}, s{sCE1}", f"s_cselect_b32 s{sC1}, s{sCB1}, s{sC1}"]
def c_adv2(): return [f"s_add_u32 s{sC2}, s{sC2}, 40960", f"s_cmp_eq_u32 s{sC2}, s{sCE2}", f"s_cselect_b32 s{sC2}, s{sCB2}, s{sC2}"]
def c_wdma(slot):
    L = [[f"s_add_u32 m0, s{sCM0}, {4096*slot}"]]
    for q in range(4):
        L.append([f"buffer_load_dwordx4 v{vWS_+q}, s[{sCW}:{sCW+3}], s{sC1} offen offset:{1024*q} lds"])
    return L
def c_bload(slot, n):
    return f"buffer_load_dwordx4 {ar(BR+20*slot+4*n,4)}, v{vB0 if n < 4 else vB1}, s[{sWS}:{sWS+3}], s{sC2} offen offset:{1024*(n&3)} sc1"
def c_tr(slot, aset):
    return [f"ds_read_b64_tr_b16 {ar(AS+16*aset+4*t+2*j,2)}, v{vTR+t} offset:{4096*slot+2048*j}" for t in range(4) for j in range(2)]
def c_wring(A):
    for s in range(OPT["d"]):
        emit_dma_block(A, c_wdma(s))
        for x in c_adv1(): A(x)
def c_bring(A):
    for s in range(OPT["d"]):
        for n in range(5): A(c_bload(s, n))
        for x in c_adv2(): A(x)
def switch_to_fb(A):
    A(f"s_mov_b64 s[{sCW}:{sCW+1}], s[{sW2}:{sW2+1}]")
    A(f"s_mov_b64 s[{sCW+2}:{sCW+3}], s[{sW2+2}:{sW2+3}]")
    for i in range(4): A(f"v_mov_b32 v{vWS_+i}, v{vWS2+i}")
    A(f"s_mov_b32 s{sC1}, s{sF1}")
    A(f"s_mov_b32 s{sCB1}, s{sFB1}")
    A(f"s_mov_b32 s{sCE1}, s{sFE1}")
    A(f"s_mov_b32 s{sCST}, {32*4096}")

G1A = 112
def c_step(A, u, wait, doW, doB, doT, accf, w_is_A, drain=None, first=False, side=None, pre=[], late=None, wslot=None, trl=None):
    DD = OPT["d"]
    A(f"s_waitcnt vmcnt({wait}) lgkmcnt(0)")
    for x in pre: A(x)
    tr = c_tr((u+1) & 3, (u+1) & 1) if doT else (trl or [])
    mf = []
    order = [(n, t) for n in range(5) for t in range(4)]
    if OPT["mo"] & 2 and not drain: order = [(n, t) for t in range(4) for n in range(5)]
    if OPT["mo"] & 4 and not drain: order = [(n, t if n % 2 == 0 else 3 - t) for n in range(5) for t in range(4)]
    for n, t in order:
            w = ar(AS+16*(u & 1)+4*t, 4); b = ar(BR+20*u+4*n, 4); c = accf((t*5+n)*4)
            cin = "0" if first else c
            mf.append(f"v_mfma_f32_16x16x32_bf16 {c}, {w}, {b}, {cin}" if w_is_A else f"v_mfma_f32_16x16x32_bf16 {c}, {b}, {w}, {cin}")
    fill = [[] for _ in range(20)]
    sl = (u + DD) & 3
    wd = c_wdma(sl if wslot is None else wslot)
    post = []
    if doW:
        A(wd[0][0])
        for t in range(4): fill[t] += wd[1+t]
        fill[5 if drain else 12] += c_adv1()
    for k, x in enumerate(tr): fill[4+k].append(x)
    if doB:
        for n in range(5): fill[4*n+3].append(c_bload(sl, n))
        fill[19] += c_adv2()
    if side:
        per = -(-len(side) // 20)
        for g in range(20): fill[g] = side[g*per:(g+1)*per] + fill[g]
    if late:
        fill[13] += late[:9]
        post += late[9:]
    if drain:
        for n in range(3):
            for t in range(4): fill[4*(n+2)+t] += drain(n, t)
        post += ["s_nop 3"] + flat([drain(3, t) for t in range(4)]) + flat([drain(4, t) for t in range(4)])
    weave(A, mf, fill)
    for x in post: A(x)

AS3 = 192
def c_merged(A, u, wait, doW, accf, w_is_A, drain, wslots=None):
    A(f"s_waitcnt vmcnt({wait}) lgkmcnt(0)")
    mf = []
    for n in range(5):
        for k, aset in ((u, AS + 16*(u & 1)), (u + 1, AS3)):
            for t in range(4):
                w = ar(aset+4*t, 4); b = ar(BR+20*(k & 3)+4*n, 4); c = accf((t*5+n)*4)
                mf.append(f"v_mfma_f32_16x16x32_bf16 {c}, {w}, {b}, {c}" if w_is_A else f"v_mfma_f32_16x16x32_bf16 {c}, {b}, {w}, {c}")
    fill = [[] for _ in range(40)]
    if doW:
        for j, sl in enumerate(wslots):
            wd = c_wdma(sl)
            fill[6*j] += wd[0]
            for t in range(4): fill[6*j+1+t] += wd[1+t]
            fill[6*j+5] += c_adv1()
    for n in range(4):
        for t in range(4):
            g = 8*(n+1) + 4 + 2*t
            if g + (0) < 40: fill[g] += drain(n, t)
            else: fill[39] += drain(n, t)
    weave(A, mf, fill)
    for x in ["s_nop 3"] + flat([drain(4, t) for t in range(4)]): A(x)
def tr3(place):
    kind, sl = place
    base = vTR if kind == "r" else vTX
    return [f"ds_read_b64_tr_b16 {ar(AS3+4*t+2*j,2)}, v{base+t} offset:{4096*sl+2048*j}" for t in range(4) for j in range(2)]

def c_loop(A, pfx, nks, accf, w_is_A, isg1, drain):
    DD = OPT["d"]; W0 = 5 + 9*(DD-2)
    tail_next = isg1 and OPT["tailw"]
    A(f".p2align {OPT['lal']}")
    A.label(f"{pfx}_loop")
    if isg1 and OPT["lnmid"]:
        A(f"s_cmp_eq_u32 s{sCNT}, s{sPUB}")
        A("s_cbranch_scc1 g1_blk")
        A.label("g1_noblk")
    for u in range(4):
        c_step(A, u, W0, True, True, True, accf, w_is_A)
    if STAMPS:
        ng = nks//4 - 1
        i = _st["n"]; _st["n"] += ng; _st["names"] += [f"{pfx}_g{k}" for k in range(ng)]
        A("s_memtime s[100:101]")
        A("s_waitcnt lgkmcnt(0)")
        A(f"s_sub_u32 m0, {i + ng}, s{sCNT}")
        A("s_nop 0")
        A("v_writelane_b32 v47, s100, m0")
    A(f"s_sub_u32 s{sCNT}, s{sCNT}, 1")
    A(f"s_cmp_lg_u32 s{sCNT}, 0")
    A(f"s_cbranch_scc1 {pfx}_loop")
    seq = []
    for k in range(DD): seq += [("W", k)]*4 + [("B", k)]*5
    for u in range(4):
        need = max([i for i, (t, k) in enumerate(seq) if (t == "B" and k == u) or (t == "W" and k == u+1)])
        wait = len(seq) - 1 - need
        own = u < 4 - DD
        if isg1 and u == 4 - DD: switch_to_fb(A)
        nxt = tail_next and not own
        if OPT["merge"] and u == 1:
            nW = 4 if nxt else 0
            w3 = len(seq) + nW - 1 - max(i for i, (t, k) in enumerate(seq) if t == "W" and k == 3)
            c_step(A, u, wait, own or nxt, own, True, accf, w_is_A, late=[f"s_waitcnt vmcnt({w3})"] + tr3(("r", 3)))
        elif OPT["merge"] and u == 2:
            wait = len(seq) - 1 - max(i for i, (t, k) in enumerate(seq) if t == "B" and k == 3)
            c_merged(A, 2, wait, nxt, accf, w_is_A, drain, [(2+DD) & 3, (3+DD) & 3])
            break
        else:
            c_step(A, u, wait, own or nxt, own, u < 3, accf, w_is_A, drain if u == 3 else None)
        if own: seq += [("W", u+DD)]*4 + [("B", u+DD)]*5
        elif nxt: seq += [("N", 0)]*4
    stamp(A, pfx + "_loopdone")

sFA1, sFA2, sFR = 54, 55, 94
sUS = 52
vGE = 224
def fa_params(A):
    A(f"s_and_b32 s{sFR}, s{sFD}, 3")
    A(f"s_lshl_b32 s{sFR}, s{sFR}, 1")
    A(f"s_and_b32 s89, s{sFS}, 7")
    A(f"s_add_u32 s{sFR}, s{sFR}, s89")
    A(f"s_mul_i32 s89, s{sFR}, 52")
    A("s_lshr_b32 s89, s89, 8")
    A("s_mul_i32 s89, s89, 5")
    A(f"s_sub_u32 s{sFR}, s{sFR}, s89")
    if OPT["arot"] == 0: A(f"s_mov_b32 s{sFR}, 0")
    if OPT["arot"] == 2:
        A(f"s_add_u32 s{sFR}, s{sFS}, s{sFD}")
        A(f"s_and_b32 s{sFR}, s{sFR}, 1")
        A(f"s_mul_i32 s{sFR}, s{sFR}, 3")
    A(f"s_mul_i32 s86, s{sWAVE}, 5")
    A(f"s_add_u32 s86, s86, s{sFR}")
    A(f"s_mul_i32 s{sFA1}, s{sFS}, {0 if OPT.get('same') else 20}")
    A(f"s_add_u32 s{sFA1}, s{sFA1}, s86")
    A(f"s_lshl_b32 s{sFA1}, s{sFA1}, 12")
    A(f"s_add_u32 s{sFA1}, s{sFA1}, {WS_PQ:#x}")
    A(f"s_mul_i32 s{sFA2}, s86, 40960")
    A(f"s_mul_i32 s89, s{sFD}, {0 if OPT.get('same') else 5120}")
    A(f"s_add_u32 s{sFA2}, s{sFA2}, s89")
    A(f"s_add_u32 s{sFA2}, s{sFA2}, {WS_M:#x}")
fa_b = lambda i: 0 if i == 0 else 112 + 36*(i-1)
def fa_ld(A, i):
    for st in range(4):
        A(f"buffer_load_dwordx4 {ar(fa_b(i)+4*st,4)}, v{vB0}, s[{sWS}:{sWS+3}], s{sFA1} offen offset:{1024*st} sc1")
    for n in range(5):
        A(f"buffer_load_dwordx4 {ar(fa_b(i)+16+4*n,4)}, v{vB0 if n < 4 else vB1}, s[{sWS}:{sWS+3}], s{sFA2} offen offset:{1024*(n&3)} sc1")
    if i < 4:
        A(f"s_add_u32 s{sFA1}, s{sFA1}, 4096")
        A(f"s_add_u32 s{sFA2}, s{sFA2}, 40960")
        A(f"s_add_u32 s{sFR}, s{sFR}, 1")
        A(f"s_cmp_eq_u32 s{sFR}, 5")
        A(f"s_cselect_b32 s86, {5*4096}, 0")
        A(f"s_cselect_b32 s89, {5*40960}, 0")
        A(f"s_sub_u32 s{sFA1}, s{sFA1}, s86")
        A(f"s_sub_u32 s{sFA2}, s{sFA2}, s89")

def g1_params(A):
    W, Rr = vGE, vGE + 4
    A("v_and_b32 v2, 15, v1")
    A("v_lshrrev_b32 v3, 4, v1")
    A("v_xor_b32 v4, v2, v3")
    A("v_lshlrev_b32 v4, 4, v4")
    A("v_lshl_add_u32 v4, v2, 8, v4")
    A(f"s_mul_i32 s85, s{sWAVE}, 20480")
    A(f"s_add_u32 s85, s85, {LDS_RED}")
    A(f"v_add_u32 v{W}, s85, v4")
    for t in range(1, 4): A(f"v_xor_b32 v{W+t}, {64*t}, v{W}")
    A(f"s_and_b32 s85, s{sWAVE}, 1")
    A(f"s_lshr_b32 s86, s{sWAVE}, 1")
    A("s_lshl_b32 s87, s85, 7")
    A("v_xor_b32 v4, s87, v4")
    A("s_lshl_b32 s87, s86, 12")
    A(f"s_add_u32 s87, s87, {LDS_RED}")
    A(f"v_add_u32 v{Rr}, s87, v4")
    A(f"v_xor_b32 v{Rr+1}, 64, v{Rr}")
    A(f"v_add_u32 v{Rr+2}, 40960, v{Rr}")
    A(f"v_add_u32 v{Rr+3}, 40960, v{Rr+1}")
    A(f"s_lshl_b32 s87, s{sG1F}, 1")
    A("s_add_u32 s87, s87, s85")
    A("s_lshl_b32 s23, s87, 6")
    A("v_lshlrev_b32 v12, 3, v3")
    A("s_mul_i32 s87, s87, 40")
    A(f"s_mul_i32 s88, s{sG1D}, 5")
    A("s_add_u32 s87, s87, s88")
    A("s_add_u32 s87, s87, s86")
    A("s_lshl_b32 s87, s87, 10")
    A(f"s_add_u32 s{sUS}, s87, {WS_U:#x}")
    A(f"s_add_u32 s{sUS+1}, s{sUS}, 4096")
    A(f"s_mov_b32 s90, {0xBDD2D3E8:#x}")
    A(f"s_mov_b32 s91, {0xBDD2D3E8:#x}")
    A(f"v_mov_b32 v{vGE+8}, {0xC0135761:#x}")
    A(f"v_mov_b32 v{vGE+9}, {0xC0135761:#x}")
    fa_params(A)
def b1_loads():
    return [[f"buffer_load_dwordx2 {vr(vGE+18+2*j,2)}, v12, s[{sB1}:{sB1+3}], s23 offen offset:{32*j}"] for j in range(2)]
def zero_acc(A):
    for i in range(0, 80, 2): A(f"v_mov_b64 {vr(ACC+i,2)}, 0")

def g1_phase(A):
    c_loop(A, "g1", 16, lambda o: ar(G1A+o, 4), True, True, lambda n, t: [f"ds_write_b128 v{vGE+t}, {ar(G1A+(t*5+n)*4,4)} offset:{4096*n}"])
    for j in range(2):
        for k in range(2):
            A(f"v_lshlrev_b32 v{vGE+10+4*j+2*k}, 16, v{vGE+18+2*j+k}")
            A(f"v_and_b32 v{vGE+11+4*j+2*k}, 0xffff0000, v{vGE+18+2*j+k}")
    A("s_waitcnt lgkmcnt(0)")
    A("s_barrier")
    stamp(A, "g1_red")
    if OPT["lnpost"] == 2:
        A("s_cmp_lt_u32 s82, 24")
        A("s_cbranch_scc1 g1_nw2")
        w2_prefetch(A, 24, list(range(3 - OPT["lnpn"], 3)))
        A.label("g1_nw2")
    A0 = A
    R = 128
    def rd(r):
        for j in range(2):
            for part in range(4):
                A(f"ds_read_b128 {vr(R+32*r+16*j+4*part,4)}, v{vGE+4+j+2*(part>>1)} offset:{8192*r + 20480*(part&1)}")
    def fin(r):
        b = R + 32*r
        for j in range(2):
            x = b + 16*j
            for i in (0, 2):
                A(f"v_pk_add_f32 {vr(x+i,2)}, {vr(x+i,2)}, {vr(x+4+i,2)}")
                A(f"v_pk_add_f32 {vr(x+8+i,2)}, {vr(x+8+i,2)}, {vr(x+12+i,2)}")
        for j in range(2):
            x = b + 16*j
            for i in (0, 2): A(f"v_pk_add_f32 {vr(x+i,2)}, {vr(x+i,2)}, {vr(vGE+10+4*j+i,2)}")
        for j in range(2):
            x = b + 16*j
            for i in (0, 2): A(f"v_pk_add_f32 {vr(x+i,2)}, {vr(x+i,2)}, {vr(x+8+i,2)}")
        E = [b + 16*j + i for j in range(2) for i in range(4)]
        E2 = E[::2]
        for x in E2: A(f"v_pk_mul_f32 {vr(x+4,2)}, {vr(x,2)}, {vr(x,2)}")
        for x in E2: A(f"v_pk_fma_f32 {vr(x+4,2)}, {vr(x+4,2)}, s[90:91], {vr(vGE+8,2)}")
        for x in E2: A(f"v_pk_mul_f32 {vr(x+4,2)}, {vr(x+4,2)}, {vr(x,2)}")
        for x in E: A(f"v_exp_f32 v{x+4}, v{x+4}")
        for x in E2: A(f"v_pk_add_f32 {vr(x+4,2)}, {vr(x+4,2)}, 1.0 op_sel_hi:[1,0]")
        for x in E: A(f"v_rcp_f32 v{x+4}, v{x+4}")
        for x in E2: A(f"v_pk_mul_f32 {vr(x,2)}, {vr(x,2)}, {vr(x+4,2)}")
        for j in range(2):
            x = b + 16*j
            A(f"v_cvt_pk_bf16_f32 v{b+8+2*j}, v{x}, v{x+1}")
            A(f"v_cvt_pk_bf16_f32 v{b+9+2*j}, v{x+2}, v{x+3}")
        A(f"buffer_store_dwordx4 {vr(b+8,4)}, v{vB0}, s[{sWS}:{sWS+3}], s{sUS if r < 2 else sUS+1} offen offset:{2048*(r&1)} sc1")
    def mix(body, groups, lo=0):
        n = len(groups)
        pos = {}
        for k in range(n): pos.setdefault(lo + (k*(len(body) - lo - 2))//max(n, 1), []).append(groups[k])
        for i, x in enumerate(body):
            for g in pos.get(i, []):
                for y in g: A0(y)
            A0(x)
    G = []
    if OPT["xw"]:
        B = Asm(); xw_loads(B)
        for x in B.lines:
            if x.startswith("buffer_load") or not G: G.append([x])
            else: G[-1].append(x)
        G[1] = G[0] + G[1]; G = G[1:]
    n0 = (len(G)*OPT["xsp"])//10
    A = Asm()
    rd(0)
    A("s_waitcnt lgkmcnt(4)")
    rd(1)
    A("s_waitcnt lgkmcnt(8)")
    fin(0)
    mix(A.lines, G[:n0] + ([] if G[n0:] else [[poll_ld(15, 25)]]), 8)
    late = (G[n0:] + [[poll_ld(15, 25)]]) if G[n0:] else []
    k = 0 if late else 1
    A0(f"s_cmp_ge_u32 s{sWAVE}, 2")
    A0("s_cbranch_scc1 g1_e1")
    A = A0
    rd(2)
    A("s_waitcnt lgkmcnt(8)")
    A = Asm(); fin(1); mix(A.lines, late); A = A0
    A("s_waitcnt lgkmcnt(0)")
    fin(2)
    A(f"s_waitcnt vmcnt({2 + k})")
    A("s_branch g1_e2")
    A.label("g1_e1")
    A("s_waitcnt lgkmcnt(0)")
    A = Asm(); fin(1); mix(A.lines, late); A = A0
    A(f"s_waitcnt vmcnt({1 + k})")
    A.label("g1_e2")
    stamp(A, "g1_st")
    A(f"s_mov_b32 s{sQOK}, 0")
    A(f"v_cmp_ne_u32 vcc, s{sNON}, v{vPOLL}")
    A("s_cbranch_vccnz g1_q1")
    A(f"s_mov_b32 s{sQOK}, 1")
    fa_ld(A, 0)
    A("s_waitcnt vmcnt(9)")
    A("s_branch g1_q2")
    A.label("g1_q1")
    if OPT["tailw"]: A("s_waitcnt vmcnt(0)")
    else:
        c_wring(A)
        A(f"s_waitcnt vmcnt({4*OPT['d']})")
    A.label("g1_q2")
    A(f"s_mul_i32 s88, s{sG1D}, 24")
    A(f"s_add_u32 s88, s88, s{sG1F}")
    publish(A, "pub_u", FL_G1, 88, None)
    stamp(A, "g1_pub")
    for x in xw_writes(): A(x)
    if OPT["lnpost"] == 1:
        A("s_cmp_lt_u32 s82, 24")
        A("s_cbranch_scc1 g1_nw2")
        w2_prefetch(A, 24, list(range(3 - OPT["lnpn"], 3)))
        A.label("g1_nw2")
    if not OPT["tailw"]:
        A(f"s_cmp_eq_u32 s{sQOK}, 0")
        A("s_cbranch_scc1 g1_q3")
        c_wring(A)
        A("s_branch f_go")
        A.label("g1_q3")
    else:
        A(f"s_cmp_lg_u32 s{sQOK}, 0")
        A("s_cbranch_scc1 f_go")
    A(poll_ld(15, 25))
    A("s_waitcnt vmcnt(0)")
    poll_check(A, "pq", 15, 25)

def accb_init(st):
    return [f"v_lshlrev_b32 v{ACC+st*20}, 16, v{29+st}", f"v_lshlrev_b32 v{ACC+st*20+1}, 16, v{29+st}"] + \
           [f"v_mov_b64 {vr(ACC+st*20+k,2)}, {vr(ACC+st*20,2)}" for k in range(2, 20, 2)]
vTX = 246
def xw_setup():
    L = [f"s_mul_i32 s85, s{sWAVE}, {PS()}", f"s_add_u32 s85, s85, {LDS_RED}", f"v_add_u32 v{vTX+4}, s85, v{vB0}", f"s_sub_u32 s85, s85, s{sCM0}"]
    L += [f"v_add_u32 v{vTX+t}, s85, v{vTR+t}" for t in range(4)]
    return L
def xw_loads(A):
    emit_dma_block(A, c_wdma(3))
    for x in c_adv1(): A(x)
    for i in range(OPT["xw"]):
        for q in range(4):
            A(f"buffer_load_dwordx4 {vr(ACC+16*i+4*q,4)}, v{vWS_+q}, s[{sCW}:{sCW+3}], s{sC1} offen offset:{1024*q}")
        for x in c_adv1(): A(x)
def xw_writes():
    return [f"ds_write_b128 v{vTX+4}, {vr(ACC+16*i+4*q,4)} offset:{4096*i+1024*q}" for i in range(OPT["xw"]) for q in range(4)]
def xw_dma(A):
    emit_dma_block(A, c_wdma(3))
    for x in c_adv1(): A(x)
    A(f"s_mul_i32 s85, s{sWAVE}, {PS()}")
    A(f"s_add_u32 s85, s85, {LDS_RED}")
    for i in range(OPT["xw"]):
        A(f"s_add_u32 m0, s85, {4096*i}")
        A("s_nop 0")
        for q in range(4):
            A(f"buffer_load_dwordx4 v{vWS_+q}, s[{sCW}:{sCW+3}], s{sC1} offen offset:{1024*q} lds")
        for x in c_adv1(): A(x)
def f_setup1():
    B = Asm()
    B("v_and_b32 v5, 15, v1")
    B("v_lshlrev_b32 v6, 2, v5")
    B(f"s_lshl_b32 s23, s{sFS}, 8")
    B(f"s_add_u32 s23, s23, {WS_G:#x}")
    for st in range(4):
        B(f"buffer_load_dword v{8+st}, v6, s[{sWS}:{sWS+3}], s23 offen offset:{64*st} sc1")
    B("v_lshlrev_b32 v6, 1, v5")
    B(f"s_lshl_b32 s23, s{sFS}, 7")
    B(f"s_cmp_eq_u32 s{sWAVE}, 0")
    B("s_cselect_b32 s23, s23, 0x40000000")
    for st in range(4):
        B(f"buffer_load_ushort v{29+st}, v6, s[{sB2}:{sB2+3}], s23 offen offset:{32*st}")
    return B.lines
def f_setup2():
    B = Asm()
    for st in range(4):
        B(f"v_sub_f32 v{8+st}, 1.0, v{8+st}")
        if not OPT["xw"]:
            for x in accb_init(st): B(x)
    B("v_min_u32 v12, 23, v1")
    B("v_lshlrev_b32 v12, 7, v12")
    B(f"s_mul_i32 s23, s{sFD}, {24*128}")
    B(f"s_add_u32 s23, s23, {FL_G1:#x}")
    B("v_and_b32 v5, 15, v1")
    B("v_lshrrev_b32 v6, 4, v1")
    B(f"v_mul_u32_u24 v4, {RS()}, v5")
    if OPT["ox4"]:
        B("v_lshrrev_b32 v7, 1, v6")
        B("v_lshl_add_u32 v4, v7, 4, v4")
        B("v_and_b32 v6, 1, v6")
        B("v_mul_u32_u24 v6, 11264, v6")
        B("v_add_u32 v4, v4, v6")
    else:
        B("v_lshl_add_u32 v4, v6, 4, v4")
    B(f"s_mul_i32 s85, s{sWAVE}, {PS()}")
    B(f"s_add_u32 s85, s85, {LDS_RED}")
    B("v_add_u32 v4, s85, v4")
    B(f"s_mul_i32 s85, s{sWAVE}, {16*RS()}")
    B(f"s_add_u32 s85, s85, {LDS_RED}")
    B(f"s_lshl_b32 s95, s{sFS}, 2")
    B(f"s_add_u32 s95, s95, s{sWAVE}")
    B(f"s_mul_i32 s95, s95, {16*1280}")
    B(f"s_mul_i32 s87, s{sFD}, 160")
    B("s_add_u32 s95, s95, s87")
    if OPT["ox4"]:
        B("v_mul_u32_u24 v6, 205, v1")
        B("v_lshrrev_b32 v6, 11, v6")
        B("v_mul_u32_u24 v7, 10, v6")
        B("v_sub_u32 v7, v1, v7")
        B("v_min_u32 v6, 5, v6")
        B("v_mul_u32_u24 v16, 176, v6")
        B("v_lshl_add_u32 v16, v7, 4, v16")
        B("v_add_u32 v16, s85, v16")
        B("v_mul_u32_u24 v24, 1280, v6")
        B("v_lshl_add_u32 v24, v7, 4, v24")
    else:
        for r in range(5):
            B(f"v_add_u32 v5, {64*r}, v1")
            B("v_mul_u32_u24 v6, 3277, v5")
            B("v_lshrrev_b32 v6, 16, v6")
            B("v_mul_u32_u24 v7, 20, v6")
            B("v_sub_u32 v7, v5, v7")
            B(f"v_mul_u32_u24 v{16+r}, 336, v6")
            B(f"v_lshl_add_u32 v{16+r}, v7, 4, v{16+r}")
            B(f"v_add_u32 v{16+r}, s85, v{16+r}")
            B(f"v_mul_u32_u24 v{24+r}, 1280, v6")
            B(f"v_lshl_add_u32 v{24+r}, v7, 3, v{24+r}")
    if OPT["otouch"]:
        B("v_lshrrev_b32 v5, 1, v1")
        B("v_and_b32 v5, 15, v5")
        B("v_mul_u32_u24 v5, 1280, v5")
        B("v_and_b32 v6, 1, v1")
        B("v_mul_u32_u24 v6, 156, v6")
        B("v_add_u32 v5, v5, v6")
    if OPT["xw"]:
        for x in xw_setup(): B(x)
    return B.lines

def f_phase(A):
    ACA = 128
    A.label("f_entry")
    fa_ld(A, 0)
    A.label("f_go")
    fa_ld(A, 1)
    stamp(A, "f_qok")
    A(f"s_or_b32 s85, s2, s{sWAVE}")
    A("s_cmp_lg_u32 s85, 0")
    A("s_cbranch_scc1 f_nox")
    A(f"s_mov_b32 s85, {FL_X:#x}")
    flag_store(A, 85)
    A.label("f_nox")
    fb = fa_b
    def fam(i, side=[]):
        mf = []
        for n in range(5):
            for st in range(4):
                c = vr(ACA+(st*5+n)*4, 4)
                mf.append(f"v_mfma_f32_16x16x32_bf16 {c}, {ar(fb(i)+16+4*n,4)}, {ar(fb(i)+4*st,4)}, {c if i else 0}")
        fill = [[] for _ in range(20)]
        for k, g in enumerate(side): fill[(k*20)//len(side)] += g
        weave(A, mf, fill)
    def ldg(i):
        B = Asm(); fa_ld(B, i); g = [[x] for x in B.lines[:9]]; g[-1] += B.lines[9:]; return g
    D = OPT["d"]
    fa_ld(A, 2)
    A(f"s_mov_b32 s{sC2}, s{sF2}")
    A(f"s_mov_b32 s{sCB2}, s{sFB2}")
    A(f"s_mov_b32 s{sCE2}, s{sFE2}")
    stamp(A, "fa_i2")
    A("s_waitcnt vmcnt(18)")
    fam(0, ldg(3))
    stamp(A, "fa_m0")
    A("s_waitcnt vmcnt(18)")
    fam(1, [[poll_ld(12, 23)]] + ldg(4))
    stamp(A, "fa_m1")
    br = []
    for sl in range(D):
        br += [[c_bload(sl, n)] for n in range(5)]; br[-1] += c_adv2()
    ai = [[x] for x in flat([accb_init(st) for st in range(4)])] if OPT["xw"] else []
    if OPT["uearly"]:
        A("s_waitcnt vmcnt(9) lgkmcnt(0)")
        stamp(A, "fa_s3")
        poll_check(A, "pu", 12, 23)
        stamp(A, "f_uok")
        fam(2, br)
        stamp(A, "fa_m2")
        fam(3, ai)
    else:
        A("s_waitcnt vmcnt(19) lgkmcnt(0)")
        fam(2, ai)
        stamp(A, "fa_m2")
        A("s_waitcnt vmcnt(9)")
        stamp(A, "fa_s3")
        poll_check(A, "pu", 12, 23)
        stamp(A, "f_uok")
        fam(3, br)
    A(f"s_waitcnt vmcnt({5*D})")
    fam(4, [[]]*3 + [[x] for x in c_tr(0, 0)] + [[]]*5)
    A(f"s_waitcnt vmcnt({5 if D == 2 else 10})")
    stamp(A, "fb_first")
    def drain(n, st):
        b = (st*5+n)*4
        return [f"v_fma_f32 v{ACA+b+i}, v{ACC+b+i}, v{8+st}, v{ACA+b+i}" for i in range(4)] + [f"ds_write_b128 v4, {vr(ACA+b,4)} offset:{st*16*RS() + (32 if OPT['ox4'] else 64)*n}"]
    if OPT["xw"]:
        X = OPT["xw"]
        place = lambda k: ("r", k) if k < 4 else (("x", k-4) if k < 4 + X else ("r", (k - 4 - X) & 3))
        seq = [("B", 0)]*5 + [("B", 1)]*5 + [("B", 2)]*5
        for u in range(12):
            idx = [i for i, (t, k) in enumerate(seq) if (t == "B" and k == u) or (t == "W" and k == u+1)]
            wait = len(seq) - 1 - max(idx)
            kw = u + 3 + OPT["xwd"]; kb = u + 3
            doW = 4 + X <= kw < 12; doB = kb < 12
            nx = None
            if u < 11:
                kind, sl = place(u+1)
                base = vTR if kind == "r" else vTX
                nx = [f"ds_read_b64_tr_b16 {ar(AS+16*((u+1)&1)+4*t+2*j,2)}, v{base+t} offset:{4096*sl+2048*j}" for t in range(4) for j in range(2)]
            if OPT["merge"] and u == 10:
                wait = len(seq) - 1 - max(i for i, (t, k) in enumerate(seq) if t == "B" and k == 11)
                c_merged(A, 2, wait, False, lambda o: vr(ACC+o, 4), False, drain)
                break
            late = None
            if OPT["merge"] and u == 9:
                w3 = len(seq) - 1 - max(i for i, (t, k) in enumerate(seq) if t == "W" and k == 11)
                late = [f"s_waitcnt vmcnt({w3})"] + tr3(place(11))
            c_step(A, u & 3, min(wait, 63), doW, doB, False, lambda o: vr(ACC+o, 4), False, drain if u == 11 else None,
                   wslot=place(kw)[1] if doW else None, trl=nx, late=late)
            if doW: seq += [("W", kw)]*4
            if doB: seq += [("B", kb)]*5
            if u in (3, 7): stamp(A, f"fb_g{u//4}")
        stamp(A, "fb_loopdone")
    else:
        A(f"s_mov_b32 s{sCNT}, 2")
        c_loop(A, "fb", 12, lambda o: vr(ACC+o, 4), False, False, drain)
    A("s_waitcnt lgkmcnt(0)")
    A("s_barrier")
    stamp(A, "f_red")
    R = ACC
    OST = ["", " nt", " sc1", " sc0 sc1", " sc1 nt", " sc0 nt", " sc0 sc1 nt"][OPT["ost"]]
    if OPT["ox4"]:
        A("v_add_u32 v17, 45056, v16")
        def rd4(r):
            for h in range(2):
                for part in range(4):
                    A(f"ds_read_b128 {vr(R+32*r+16*h+4*part,4)}, v{16 + (part >> 1)} offset:{PS()*(part & 1) + 11264*h + 1056*r}")
        rd4(0)
        A("s_waitcnt lgkmcnt(4)")
        rd4(1)
        A("s_mov_b32 exec_hi, 0x0fffffff")
        for r in range(3):
            A(f"s_waitcnt lgkmcnt({8 if r < 2 else 0})")
            b = R + 32*(r & 1) if r < 2 else R + 64 - 64
            b = R + 32*r if r < 2 else R
            for h in range(2):
                x = b + 16*h
                for i in (0, 2):
                    A(f"v_pk_add_f32 {vr(x+i,2)}, {vr(x+i,2)}, {vr(x+4+i,2)}")
                    A(f"v_pk_add_f32 {vr(x+8+i,2)}, {vr(x+8+i,2)}, {vr(x+12+i,2)}")
            for h in range(2):
                x = b + 16*h
                for i in (0, 2): A(f"v_pk_add_f32 {vr(x+i,2)}, {vr(x+i,2)}, {vr(x+8+i,2)}")
            o = R + 64 + 4*r
            for h in range(2):
                A(f"v_cvt_pk_bf16_f32 v{o+2*h}, v{b+16*h}, v{b+16*h+1}")
                A(f"v_cvt_pk_bf16_f32 v{o+2*h+1}, v{b+16*h+2}, v{b+16*h+3}")
            if r == 0:
                for h in range(2):
                    for part in range(4):
                        A(f"ds_read_b128 {vr(R+16*h+4*part,4)}, v{16 + (part >> 1)} offset:{PS()*(part & 1) + 11264*h + 1056*2}")
            if r == 2: A("s_mov_b32 exec_hi, 0xff")
            A(f"buffer_store_dwordx4 {vr(o,4)}, v24, s[{sOUT}:{sOUT+3}], s95 offen" + OST)
            if r < 2: A(f"s_add_u32 s95, s95, {6*1280}")
        A("s_mov_b32 exec_hi, -1")
        return
    def rd(r):
        for part in range(4):
            A(f"ds_read_b128 {vr(R+16*r+4*part,4)}, v{16+r} offset:{PS()*part}")
    rd(0); rd(1); rd(2)
    for r in range(5):
        A(f"s_waitcnt lgkmcnt({8 if r < 3 else 4*(4-r)})")
        b = R + 16*r
        for i in (0, 2):
            A(f"v_pk_add_f32 {vr(b+i,2)}, {vr(b+i,2)}, {vr(b+4+i,2)}")
            A(f"v_pk_add_f32 {vr(b+8+i,2)}, {vr(b+8+i,2)}, {vr(b+12+i,2)}")
        if r + 3 < 5: rd(r+3)
        for i in (0, 2): A(f"v_pk_add_f32 {vr(b+i,2)}, {vr(b+i,2)}, {vr(b+8+i,2)}")
        A(f"v_cvt_pk_bf16_f32 v{b}, v{b}, v{b+1}")
        A(f"v_cvt_pk_bf16_f32 v{b+1}, v{b+2}, v{b+3}")
        A(f"buffer_store_dwordx2 {vr(b,2)}, v{24+r}, s[{sOUT}:{sOUT+3}], s95 offen" + OST)

def kd(name):
    return f""".section .rodata,"a"
.p2align 6
.amdhsa_kernel {name}
  .amdhsa_next_free_vgpr 512
  .amdhsa_next_free_sgpr 102
  .amdhsa_accum_offset 256
  .amdhsa_group_segment_fixed_size 0
  .amdhsa_kernarg_size 96
  .amdhsa_user_sgpr_count 2
  .amdhsa_user_sgpr_kernarg_segment_ptr 1
  .amdhsa_system_sgpr_workgroup_id_x 1
.end_amdhsa_kernel
"""

DOC = """;
; One persistent launch, 256 workgroups (one per CU), roles by workgroup id (xcd = id & 7, loc = id >> 3):
; Hand-offs go through d_ws: write-through stores, wait, barrier, then one flag line per producer holding a
"""
def gen():
    hdr = open("cdna_kernels/" + NAME + ".s.ref").read().split("; Override")[0]
    hdr += DOC
    hdr += f"; @launch grid=(256,1,1) block=(256,1,1) lds={LDS_BYTES}\n"
    hdr += '.amdgcn_target "amdgcn-amd-amdhsa--gfx950"\n'
    A = Asm()
    K = NAME + "_kernel"
    A(".text"); A(f".globl {K}"); A(".p2align 8"); A(f".type {K},@function"); A.label(K)
    prologue(A)
    A("s_cmp_ge_u32 s82, 16"); A("s_cbranch_scc1 r_notkv")
    A("s_and_b32 s85, s82, 3")
    A("s_lshl_b32 s86, s83, 2")
    A(f"s_add_u32 s{sA}, s85, s86")
    A("s_lshr_b32 s85, s82, 2")
    A("s_lshl_b32 s86, s84, 2")
    A(f"s_add_u32 s{sBp}, s85, s86")
    qkv_setup(A, False)
    if not OPT["xfirst"]: qkv_setup_w(A, False)
    A("s_waitcnt lgkmcnt(0)"); srds(A, ["X", "W"])
    stamp(A, "kv_pre")
    def mid(A):
        params1(A); srds(A, ["WS", "W1", "B1", "W2", "B2", "OUT"]); cw_init(A)
        if not OPT["defer"]:
            params2_(A, OPT["fblate"])
            if OPT["g1late"]:
                A("v_lshrrev_b32 v12, 4, v1")
                A("v_lshlrev_b32 v12, 3, v12")
                A(f"s_and_b32 s85, s{sWAVE}, 1")
                A(f"s_lshl_b32 s23, s{sG1F}, 1")
                A("s_add_u32 s23, s23, s85")
                A("s_lshl_b32 s23, s23, 6")
            else: g1_params(A)
            mid3(A)
    def mid3(A):
        kv_esetup(A)
        A("s_lshl_b32 s85, s81, 4")
        A("s_add_u32 s85, s85, s82")
        A("s_lshl_b32 s85, s85, 2")
        A(f"s_add_u32 s85, s85, s{sWAVE}")
        A("s_lshl_b32 s27, s85, 13")
        A(f"s_lshl_b32 s{sPUB}, s{sA}, 3")
        A(f"s_add_u32 s{sPUB}, s{sPUB}, s{sBp}")
        A(f"s_lshl_b32 s{sPUB}, s{sPUB}, 7")
        A(f"s_add_u32 s{sPUB}, s{sPUB}, {FL_KV:#x}")
    D = OPT["d"]; EW = 5 if D == 2 else 10
    assert D == 3
    def wst(k):
        g = c_wdma(k); g[-1] = g[-1] + c_adv1(); return g
    def bst(k):
        g = [[c_bload(k, n)] for n in range(5)]; g[-1] = g[-1] + c_adv2(); return g
    NI = 4 if OPT["xw"] else 48
    g1p = None; fbp = None
    if OPT["fblate"]:
        B = Asm(); params_fb(B); fbp = B.lines
        assert not any("s_cmp" in x for x in fbp[9:])
        fbp = fbp[9:] if OPT["frot"] in (0, 2, 4) else None
    if OPT["g1late"]:
        B = Asm(); g1_params(B); g1p = [x for x in B.lines if "s23" not in x and "v12" not in x]
    E = kv_estream()
    g1acc = lambda o: ar(G1A+o, 4)
    def pubkv(A, wait):
        A(f"s_waitcnt vmcnt({wait})")
        A("s_barrier")
        A(f"s_cmp_lg_u32 s{sWAVE}, 0")
        A("s_cbranch_scc1 g1_pub1")
        flag_store(A, sPUB)
        A.label("g1_pub1")
        stamp(A, "kv_pub")
    nin = OPT["nbin"]
    ex = {8: ([[poll_ld(vPO, 24)]] + b1_loads() + wst(0) + wst(1), 9), 9: (wst(2), 8)}
    d0 = OPT["defer"]
    out_kv = qkv_gemm(A, "kv", False, mid, ex, {9: lambda A: poll_check(A, "pln", vPO, 24)},
                      [(d0, params2), (d0+1, g1_params), (d0+2, mid3)] if d0 else [])
    if OPT["kvw2"]:
        A(f"buffer_load_dword a255, v15, s[{sW2}:{sW2+3}], s27 offen")
    Bs = bst(0) + bst(1) + bst(2)
    if OPT["kweave"]:
        keep = OPT["mo"]; OPT["mo"] = 1; fm = qkv_mfmas(FB_, False); OPT["mo"] = keep
        e0 = [x for x in E[0] if "mfma" not in x and x != "s_nop 1"]; m0 = [x for x in E[0] if "mfma" in x]
        fill = [[] for _ in range(20)]
        fill[0] = e0[:6]
        k = 6
        for g in range(9, 20):
            fill[g] = e0[k:k+2]; k += 2
        weave(A, fm, fill)
        e1 = list(E[1])
        for j, m in enumerate(m0): e1.insert(3 + 5*j, m)
        body = e0[k:] + e1
    else:
        for m in qkv_mfmas(FB_, False): A(m)
        body = E[0] + E[1]
    stamp(A, "kv_loopdone")
    sp = min(26, (len(body) - 30 - OPT["b0"]) // max(nin, 1))
    pos = [len(body) - 30 - sp*(nin - 1 - k) for k in range(nin)]
    assert not pos or pos[0] >= 0
    for i, x in enumerate(body):
        if i in pos:
            for y in Bs[pos.index(i)]: A(y)
        A(x)
    A("s_waitcnt lgkmcnt(0)")
    A("s_barrier")
    for x in E[2] + E[3]: A(x)
    stamp(A, "kv_st")
    for g in Bs[nin:]:
        for y in g: A(y)
    seq = ["W"]*12 + [f"B{k//5}" for k in range(nin)] + ["S"]*4 + [f"B{k//5}" for k in range(nin, 15)]
    def need(tags): return len(seq) - 1 - max(i for i, t in enumerate(seq) if t in tags)
    A(f"s_waitcnt vmcnt({need(['W'])})")
    for x in c_tr(0, 0): A(x)
    if OPT["pubat"] == 0: pubkv(A, need(["S"]))
    for u in range(4):
        c_step(A, u, min(need([f"B{u}", f"W{u+1}", "W"]), 63), True, True, True, g1acc, True, first=(u == 0),
               pre=f_setup1() if u == 1 else [],
               side=({0: g1p, 1: fbp, 2: f_setup2()[NI:], 3: f_setup2()[:NI]}.get(u) if OPT["fsplit"] else (f_setup2() if u == 3 else None)))
        if u == 1: seq += ["G"]*8
        seq += [f"W{u+3}"]*4 + [f"B{u+3}"]*5
        stamp(A, f"g1_s{u}")
        if OPT["pubat"] == u + 1: pubkv(A, need(["S"]))
    A(f"s_mov_b32 s{sCNT}, 2")
    g1_phase(A)
    f_phase(A)
    stamp_flush(A)
    A.label("k_end"); A("s_endpgm")
    out_kv(A)
    if OPT["lnmid"]:
        A.label("g1_blk")
        w2_prefetch(A, 24, list(range(3 - OPT["lnpn"], 3)))
        A("s_branch g1_noblk")
    A.label("r_notkv")
    if OPT["pf_code"] and not OPT["pfall"]:
        A("s_getpc_b64 s[86:87]")
        A.label("pc_here")
        A(f"s_sub_u32 s86, s86, pc_here-{K}")
        A("s_subb_u32 s87, s87, 0")
        A("s_sub_u32 s85, s82, 16")
        A("s_lshl_b32 s85, s85, 2")
        A(f"s_add_u32 s85, s85, s{sWAVE}")
        A("s_lshl_b32 s85, s85, 3")
        A("v_add_lshl_u32 v2, v1, s85, 7")
        A(f"v_min_u32 v2, k_codeend-{K}-4, v2")
        A("s_mov_b64 exec, 0xff")
        A("global_load_dword a255, v2, s[86:87]")
        A("s_mov_b64 exec, -1")
    A("s_cmp_lt_u32 s82, 24"); A("s_cbranch_scc1 r_q")
    A("s_sub_u32 s87, s82, 24")
    A("s_lshl_b32 s85, s81, 3")
    A(f"s_add_u32 s{sA}, s85, s87")
    aux = " nt" if OPT.get("nt") else ""
    w1l = lambda k: f"buffer_load_dword a255, v22, s[{sW1}:{sW1+3}], s{26 + k//3} offen offset:{1024*(k%3)}{aux}"
    def after(A):
        params1(A); srds(A, ["WS", "W1", "B1", "W2", "B2", "OUT"]); cw_init(A); params2(A); g1_params(A)
        w1_setup(A, 24, 22)
        for k in range(OPT["early"] if OPT["pf_w1"] else 0): A(w1l(k))
    ln_role(A, after, OPT["early"] if OPT["pf_w1"] else 0)
    publish(A, "pub_ln", FL_LN, sA)
    stamp(A, "ln_pub")
    if OPT["tlb"] == 2:
        A("v_lshlrev_b32 v2, 20, v1")
        A("s_mov_b64 exec, 0x3ff")
        A(f"buffer_load_dword a255, v2, s[{sWS}:{sWS+3}], 0 offen sc1")
        A(f"buffer_load_dword a255, v2, s[{sOUT}:{sOUT+3}], 0 offen")
        A(f"buffer_load_dword a255, v2, s[{sB2}:{sB2+3}], 0 offen")
        A("s_mov_b64 exec, -1")
    for k in range(OPT["early"], (3 - OPT["qw1n"]) if (OPT["pf_w1"] and not OPT["qfirst"]) else 0): A(w1l(k))
    def pf_h():
        A(poll_ld(vPO, 24))
        A("v_lshrrev_b32 v2, 5, v1")
        A("v_mul_u32_u24 v2, 40960, v2")
        A("v_and_b32 v3, 31, v1")
        A("v_lshl_add_u32 v2, v3, 7, v2")
        A("s_sub_u32 s85, s82, 24")
        A("s_lshl_b32 s85, s85, 2")
        A(f"s_add_u32 s85, s85, s{sWAVE}")
        A(f"s_mul_i32 s87, s85, {2*40960}")
        A("s_mul_i32 s86, s84, 20480")
        A("s_add_u32 s87, s87, s86")
        A("s_waitcnt vmcnt(0)")
        poll_check(A, "plnh", vPO, 24)
        A("s_barrier")
        for i in range(5):
            A(f"buffer_load_dword a255, v2, s[{sWS}:{sWS+3}], s87 offen sc1")
            A("s_add_u32 s87, s87, 4096")
    for c in str(OPT["lnseq"]):
        if c == "1" and OPT["pf_w1"]:
            for k in range(3, 6): A(w1l(k))
        if c == "6":
            for k in range(3): A(w1l(k))
        if c == "2": pf_h()
        if c == "3": w2_prefetch(A, 24, [0])
        if c == "7": w2_prefetch(A, 24, [2])
        if c == "4": w2_prefetch(A, 24, [0, 1])
        if c == "5": w2_prefetch(A, 24, [0, 1, 2])
    stamp(A, "ln_pf")
    for g in b1_loads(): A(g[0])
    A(poll_ld(vPO, 24))
    c_wring(A)
    A(f"s_waitcnt vmcnt({4*OPT['d']})")
    poll_check(A, "pln2", vPO, 24)
    A("s_barrier")
    for x in f_setup1(): A(x)
    c_bring(A)
    for i in range(80): A(f"v_accvgpr_write_b32 a{G1A+i}, 0")
    A(f"s_waitcnt vmcnt({5*D})")
    for x in f_setup2(): A(x)
    A(f"s_mov_b32 s{sCNT}, 3")
    A(f"s_mov_b32 s{sPUB}, {OPT['lnmid']}")
    A(f"s_waitcnt vmcnt({EW})")
    for x in c_tr(0, 0): A(x)
    stamp(A, "ln_ready")
    A("s_branch g1_loop")
    A.label("r_q")
    A("s_sub_u32 s87, s82, 16")
    A("s_and_b32 s85, s87, 3")
    A("s_lshl_b32 s86, s83, 2")
    A(f"s_add_u32 s{sA}, s85, s86")
    A("s_lshr_b32 s85, s87, 2")
    A("s_lshl_b32 s86, s84, 1")
    A(f"s_add_u32 s{sBp}, s85, s86")
    A(f"s_lshl_b32 s{sU}, s{sBp}, 2")
    A(f"s_and_b32 s85, s{sA}, 3")
    A(f"s_add_u32 s{sU}, s{sU}, s85")
    A(f"s_lshr_b32 s{sNR}, s{sA}, 2")
    def midq(A):
        params1(A); srds(A, ["WS", "W1", "WO", "W2", "B2", "OUT"]); cw_init(A); params2(A)
        w1_setup(A, 16, 12)
        if OPT["qw1"] == 0: q_pf_only(A)
        if not OPT["qdefer"]: q_setup(A)
    def qs(lo, hi):
        def f(A):
            B = Asm(); q_setup(B)
            assert len(B.lines) > 150
            for x in B.lines[lo:hi]: A(x)
        return f
    def qtouch(A):
        A("s_mov_b32 exec_lo, 0xffff03ff")
        A("s_mov_b32 exec_hi, 0")
        A(f"buffer_load_dword a255, v{vT1}, s[{sWS}:{sWS+3}], 0 offen sc1")
        A("s_mov_b64 exec, -1")
    qkv_setup(A, True)
    if not OPT["xfirst"]: qkv_setup_w(A, True)
    A("s_waitcnt lgkmcnt(0)"); srds(A, ["X", "W"])
    qb = [(max(OPT["qw1"], 1), q_loop_pf)]
    if OPT["qdefer"]:
        def both(A): q_loop_pf(A); q_setup(A); qtouch(A)
        qb = [(OPT["qw1"], both)]
    out_q = qkv_gemm(A, "q", True, midq, q_extras(), {9: lambda A: poll_check(A, "pln3", vPO, 24)}, qb)
    q_epilogue(A)
    A("s_lshl_b32 s88, s81, 3")
    A("s_add_u32 s88, s88, s82")
    A("s_sub_u32 s88, s88, 16")
    publish(A, "pub_q", FL_Q, 88)
    stamp(A, "q_pub")
    if OPT["qw2b"]:
        keep = OPT["w2c"]; OPT["w2c"] = 1
        w2_prefetch(A, 16, list(range(3 - OPT["qw2b"], 3)))
        OPT["w2c"] = keep
    for x in f_setup1(): A(x)
    switch_to_fb(A)
    c_wring(A)
    if OPT["xw"]: xw_dma(A)
    A(poll_ld(vPO, 25))
    A(f"s_waitcnt vmcnt({4*D + 1 + (4 + 4*OPT['xw'] if OPT['xw'] else 0)})")
    for x in f_setup2(): A(x)
    A("s_waitcnt vmcnt(0)")
    poll_check(A, "pq2", vPO, 25)
    A("s_barrier")
    stamp(A, "q_allq")
    if OPT["pf_pq"] >= 2:
        assert OPT["fmap"] == 1 and OPT["arot"] == 0
        A("s_sub_u32 s88, s82, 16")
        A("s_lshl_b32 s88, s88, 2")
        A(f"s_add_u32 s88, s88, s{sWAVE}")
        A("s_cmp_ge_u32 s88, 28")
        A("s_cbranch_scc1 q_pfd")
        A("s_cmp_ge_u32 s88, 20")
        A("s_cbranch_scc1 q_pfq")
        A("s_mul_i32 s86, s88, 52")
        A("s_lshr_b32 s86, s86, 8")
        A("s_mul_i32 s87, s86, 5")
        A("s_sub_u32 s87, s88, s87")
        A("s_lshl_b32 s87, s87, 13")
        A(f"s_mul_i32 s85, s86, {5*40960}")
        A("s_add_u32 s85, s85, s87")
        A(f"s_add_u32 s85, s85, {WS_M:#x}")
        A("s_mov_b32 s86, 40960")
        A("v_mov_b32 v2, v15")
        A("s_branch q_pfg")
        A.label("q_pfq")
        A("s_sub_u32 s88, s88, 20")
        A("s_lshr_b32 s86, s88, 1")
        A("s_lshl_b32 s86, s86, 3")
        A("s_add_u32 s86, s86, s81")
        A("s_mul_i32 s85, s86, 81920")
        A("s_and_b32 s88, s88, 1")
        A(f"s_mul_i32 s88, s88, {2*20480}")
        A("s_add_u32 s85, s85, s88")
        A(f"s_add_u32 s85, s85, {WS_PQ:#x}")
        A("s_mov_b32 s86, 4096")
        A("v_lshrrev_b32 v2, 5, v1")
        A("v_mul_u32_u24 v2, 16384, v2")
        A("v_add_u32 v2, v2, v15")
        A.label("q_pfg")
        for T in range(5):
            if T >= OPT["pf_pq"] - 2: A(f"buffer_load_dword a255, v2, s[{sWS}:{sWS+3}], s85 offen sc1")
            A("s_add_u32 s85, s85, s86")
        A.label("q_pfd")
    elif OPT["pf_pq"]:
        A("s_sub_u32 s88, s82, 16")
        A("s_lshl_b32 s88, s88, 2")
        A(f"s_add_u32 s88, s88, s{sWAVE}")
        A("v_lshlrev_b32 v2, 7, v1")
        A(f"s_mul_i32 s85, s83, {8*81920}")
        A(f"s_mul_i32 s86, s88, {160*128}")
        A("s_add_u32 s85, s85, s86")
        A(f"s_add_u32 s85, s85, {WS_PQ:#x}")
        for i in range(3):
            if i == 2: A("s_mov_b32 exec_hi, 0")
            A(f"buffer_load_dword a255, v2, s[{sWS}:{sWS+3}], s85 offen sc1")
            A("s_add_u32 s85, s85, 8192")
        A("s_mov_b32 exec_hi, -1")
        A("s_cmp_ge_u32 s88, 20")
        A("s_cbranch_scc1 q_pfd")
        A("s_mul_i32 s85, s88, 40960")
        A("s_mul_i32 s86, s84, 20480")
        A("s_add_u32 s85, s85, s86")
        A(f"s_add_u32 s85, s85, {WS_M:#x}")
        for i in range(3):
            if i == 2: A("s_mov_b32 exec_hi, 0")
            A(f"buffer_load_dword a255, v2, s[{sWS}:{sWS+3}], s85 offen sc1")
            A("s_add_u32 s85, s85, 8192")
        A("s_mov_b32 exec_hi, -1")
        A.label("q_pfd")
    fa_params(A)
    A("s_branch f_entry")
    out_q(A)
    A.label("k_codeend")
    for i, l in enumerate(A.lines):
        if l.startswith("v_mad_i32_i24 v4, v3, -20"):
            A.lines[i] = l.replace("-20", "s89")
        if l == "s_movk_i32 s88, 3840":
            A.lines[i] = "s_movk_i32 s89, -20"
    if OPT["align"]:
        A.lines, nc, nn = align(A.lines, OPT["align"])
        print("aligned: widened", nc, "nops", nn, file=sys.stderr)
    nb = check(A.lines)
    print("hazards:", nb, file=sys.stderr)
    return hdr + A.text() + kd(K)

if __name__ == "__main__":
    out = sys.argv[1]
    for a in sys.argv[2:]:
        if a == "st": STAMPS = True
        else:
            k, v = a.split("="); OPT[k] = int(v)
    open(out, "w").write(gen())
    if STAMPS: json.dump(_st["names"], open(out + ".names", "w"))
```
